```python
import torch

def _softmax(x, axis=-1):
    return torch.softmax(x, dim=axis)
def _gelu(x):
    return torch.nn.functional.gelu(x, approximate="tanh")
def _silu(x):
    return torch.nn.functional.silu(x)
def _sigmoid(x):
    return torch.sigmoid(x)
def _layernorm(x, axis=-1, eps=1e-5):
    m = x.mean(dim=axis, keepdim=True)
    v = x.var(dim=axis, keepdim=True, unbiased=False)
    return (x - m) / torch.sqrt(v + eps)
def _scatter_add(tgt, idx, src, axis=0):
    return tgt.clone().index_add_(axis, idx, src)
def _segment_sum(src, seg, n):
    out = torch.zeros((n,) + src.shape[1:], dtype=src.dtype)
    return out.index_add_(0, seg, src)
def _pad(x, pw):
    flat = tuple(v for pair in reversed(pw) for v in pair)
    return torch.nn.functional.pad(x, flat)

kernel_name = 'sequential_preLN__ssm_conv_s4d__moe_arch_mod__prompt'

def setup_inputs():

    _w = (lambda a: (lambda t: t.to(torch.bfloat16) if t.is_floating_point() else t)(torch.as_tensor(a)))
    def _A_setup():
        Bsz, L, D, N = 1, 2048, 512, 128
        return {
            "u": _w((lambda *s: torch.randn(*s, dtype=torch.bfloat16) * 0.05)(Bsz, L, D)),
            "log_A_real": _w((lambda *s: torch.randn(*s, dtype=torch.bfloat16) * 6.4)(D, N) * 0.5),
            "A_imag": _w((lambda *s: torch.randn(*s, dtype=torch.bfloat16) * 0.05)(D, N) * 3.14),
            "C_real": _w((lambda *s: torch.randn(*s, dtype=torch.bfloat16) * 0.05)(D, N) / N ** 0.5),
            "C_imag": _w((lambda *s: torch.randn(*s, dtype=torch.bfloat16) * 0.05)(D, N) / N ** 0.5),
            "log_dt": _w((lambda *s: torch.randn(*s, dtype=torch.bfloat16) * 0.05)(D) * 0.5 - 4.0),
            "D_skip": _w((lambda *s: torch.randn(*s, dtype=torch.bfloat16) * 0.05)(D)),
        }
    _A_in = _A_setup()

    def _B_setup():
        B, S, D, F, C = 1, 2048, 512, 1792, 1
        return {
            "x": _w((lambda *s: torch.randn(*s, dtype=torch.bfloat16) * 0.05)(B, S, D)),
            "w_r": _w((lambda *s: torch.randn(*s, dtype=torch.bfloat16) * 0.05)(D)),
            "w_gate": _w((lambda *s: torch.randn(*s, dtype=torch.bfloat16) * 0.05)(D, F)),
            "w_up": _w((lambda *s: torch.randn(*s, dtype=torch.bfloat16) * 0.05)(D, F)),
            "w_down": _w((lambda *s: torch.randn(*s, dtype=torch.bfloat16) * 0.05)(F, D)),
        }
    _B_in = _B_setup()

    return {
        "A_u": _A_in["u"],
        "A_log_A_real": _A_in["log_A_real"],
        "A_A_imag": _A_in["A_imag"],
        "A_C_real": _A_in["C_real"],
        "A_C_imag": _A_in["C_imag"],
        "A_log_dt": _A_in["log_dt"],
        "A_D_skip": _A_in["D_skip"],
        "B_x": _B_in["x"],
        "B_w_r": _B_in["w_r"],
        "B_w_gate": _B_in["w_gate"],
        "B_w_up": _B_in["w_up"],
        "B_w_down": _B_in["w_down"],
    }

def reference(A_u, A_log_A_real, A_A_imag, A_C_real, A_C_imag, A_log_dt, A_D_skip, B_x, B_w_r, B_w_gate, B_w_up, B_w_down):
    def _A_ref(u, log_A_real, A_imag, C_real, C_imag, log_dt, D_skip):
        L = u.shape[1]
        dt = torch.exp(log_dt)
        A = -torch.exp(log_A_real) + 1j * A_imag
        C = (C_real + 1j * C_imag) * dt[:, None]
        pos = (lambda x, dt: x.to(dt))(torch.arange(L), log_dt.dtype)
        P = torch.exp((A * dt[:, None])[:, :, None] * pos[None, None, :])
        K = 2.0 * torch.einsum("dn,dnl->dl", C, P).real
        L2 = 2 * L
        u_t = (lambda x, *d: x.permute(*d))(u, 0, 2, 1)
        Kf = (lambda x, *a, **k: torch.fft.rfft(x.float(), *a, **k))(K, L2)
        Uf = (lambda x, *a, **k: torch.fft.rfft(x.float(), *a, **k))(u_t, L2)
        y = (lambda x, *a, **k: torch.fft.irfft(x, *a, **k).to(torch.bfloat16))(Uf * Kf[None, :, :], L2)[:, :, :L]
        y = (lambda x, *d: x.permute(*d))(y, 0, 2, 1)
        return y + u * D_skip[None, None, :]

    def _B_ref(x, w_r, w_gate, w_up, w_down):
        B, S, D = x.shape
        C = 1
        r = x @ w_r
        idx = torch.argsort(-r, axis=-1)[:, :C]
        idx_e = (lambda x, n, axis: torch.repeat_interleave(x, n, dim=axis))(idx.reshape(B, C, 1), D, axis=2)
        x_sel = (lambda x, i, axis: torch.take_along_dim(x, i, dim=axis))(x, idx_e, axis=1)
        g = _silu(x_sel @ w_gate)
        u = x_sel @ w_up
        y = (g * u) @ w_down
        r_sel = _sigmoid((lambda x, i, axis: torch.take_along_dim(x, i, dim=axis))(r, idx, axis=1))
        y = y * r_sel.reshape(B, C, 1)
        b_off = (torch.arange(B) * S).reshape(B, 1)
        flat_idx = (idx + b_off).reshape(B * C)
        zero = (x * 0.0).reshape(B * S, D)
        upd = _scatter_add(zero, flat_idx, y.reshape(B * C, D), axis=0)
        return x + upd.reshape(B, S, D)

    x = A_u
    h = x + _A_ref(_layernorm(x, axis=-1), A_log_A_real, A_A_imag, A_C_real, A_C_imag, A_log_dt, A_D_skip)
    h2 = h + _B_ref(_layernorm(h, axis=-1), B_w_r, B_w_gate, B_w_up, B_w_down)
    return h2
```

```python
import copy
import re

REG = re.compile(r"^(-|\|)?(abs\()?([vas])(\d+|\[(\d+):(\d+)\])\)?\|?$")
TRANS = ("v_exp_f32", "v_log_f32", "v_rcp_f32", "v_rsq_f32", "v_sqrt_f32", "v_sin_f32", "v_cos_f32")
NODST = ("global_store", "ds_write", "global_load_lds", "s_cmp", "s_waitcnt", "s_nop", "s_barrier", "s_branch",
         "s_cbranch", "s_endpgm", "s_setprio", "s_sleep", "s_bitcmp", "buffer_inv", "buffer_wbl2")


def regs_of(tok):
    tok = tok.strip()
    if tok in ("vcc",):
        return [("s", 106), ("s", 107)]
    if tok == "vcc_lo":
        return [("s", 106)]
    if tok == "vcc_hi":
        return [("s", 107)]
    if tok == "exec":
        return [("s", 126), ("s", 127)]
    if tok == "exec_lo":
        return [("s", 126)]
    if tok == "exec_hi":
        return [("s", 127)]
    if tok == "m0":
        return [("s", 124)]
    m = REG.match(tok)
    if not m:
        return []
    f = m.group(3)
    if m.group(5) is not None:
        return [(f, i) for i in range(int(m.group(5)), int(m.group(6)) + 1)]
    return [(f, int(m.group(4)))]


def split_ops(s):
    out, depth, cur = [], 0, ""
    for ch in s:
        if ch == "[":
            depth += 1
        if ch == "]":
            depth -= 1
        if ch == "," and depth == 0:
            out.append(cur.strip())
            cur = ""
        else:
            cur += ch
    if cur.strip():
        out.append(cur.strip())
    return out


class Ins:
    def __init__(self, text):
        self.text = text.strip()
        parts = self.text.split(None, 1)
        self.op = parts[0]
        ops = split_ops(parts[1]) if len(parts) > 1 else []
        self.mods = ""
        if ops:
            last = ops[-1].split(None, 1)
            if len(last) > 1:
                ops[-1] = last[0]
                self.mods = last[1]
        self.ops = ops
        op = self.op
        self.is_mfma = op.startswith("v_mfma")
        self.is_valu = op.startswith("v_") and not self.is_mfma
        self.is_trans = op.replace("_e32", "").replace("_e64", "") in TRANS
        self.is_dot = op.startswith("v_dot")
        self.is_dpp = op.endswith("_dpp")
        self.is_perm = op.startswith("v_permlane")
        self.is_rdlane = op.startswith("v_readlane") or op.startswith("v_readfirstlane")
        self.is_ds = op.startswith("ds_")
        self.is_vmem = op.startswith("global_") or op.startswith("buffer_")
        self.is_smem = op.startswith("s_load") or op.startswith("s_memtime") or op.startswith("s_memrealtime")
        self.is_salu = op.startswith("s_") and not self.is_smem
        ndst = 1
        if op.startswith(NODST):
            ndst = 0
        if op.startswith(("v_add_co", "v_addc_co", "v_sub_co", "v_subb_co")):
            ndst = 2
        self.dst, self.src = [], []
        for i, o in enumerate(ops):
            (self.dst if i < ndst else self.src).extend(regs_of(o))
        if self.is_perm:
            self.dst = regs_of(ops[0]) + regs_of(ops[1])
            self.src = list(self.dst)
        if op.startswith(("v_fmac", "v_dot2c", "s_bitset", "s_addk", "s_mulk", "v_writelane")) or self.is_dpp \
                or "d16" in op and ndst:
            self.src = self.src + self.dst
        if "saveexec" in op:
            self.dst = self.dst + regs_of("exec")
        if op.startswith("v_cndmask") and len(ops) == 3:
            self.src = self.src + regs_of("vcc")
        if op.startswith("s_cbranch_vcc"):
            self.src = regs_of("vcc")
        if op.startswith("global_load_lds"):
            self.src = self.src + regs_of("m0")
        if self.is_mfma:
            self.srcAB = regs_of(ops[1]) + regs_of(ops[2])
            self.srcC = regs_of(ops[3])
            self.passes = 8 if "32x32" in op else 4
        self.wide_store = (op.startswith("global_store_dwordx") and op[-1] in "34") or op in ("ds_write_b128", "ds_write_b96")
        self.store_data = []
        if self.wide_store:
            self.store_data = regs_of(ops[1])
        self.states = 1
        if op == "s_nop":
            self.states = int(ops[0]) + 1


def ov(a, b):
    return bool(set(a) & set(b))


def need_states(p, c):
    n = 0
    pv = [r for r in p.dst if r[0] != "s"]
    ps = [r for r in p.dst if r[0] == "s"]
    if p.is_valu:
        if c.is_dpp and ov(pv, c.src):
            n = max(n, 2)
        if c.is_perm and ov(pv, c.src):
            n = max(n, 2)
        if c.is_rdlane and ov(pv, c.src):
            n = max(n, 1)
        if c.is_mfma and ov(pv, c.src):
            n = max(n, 3 if p.is_dot else 2)
        if p.is_trans and c.is_valu and not c.is_trans and ov(pv, c.src):
            n = max(n, 1)
        if p.is_dot and (ov(pv, c.src) or ov(pv, c.dst)):
            same_c = c.op == p.op and len(c.ops) == 4 and not ov(pv, regs_of(c.ops[1]) + regs_of(c.ops[2]))
            if not same_c:
                n = max(n, 3)
        if ps:
            if c.is_valu and ov(ps, c.src):
                n = max(n, 4 if c.op.startswith(("v_readlane", "v_writelane")) else 2)
            if c.is_vmem and ov(ps, c.src):
                n = max(n, 5)
            if (c.is_salu or c.is_smem) and ov(ps, c.src) and not c.op.startswith("s_cbranch"):
                n = max(n, 1)
        if "op_sel" in p.mods and not p.op.startswith("v_pk") and (c.is_valu or c.is_mfma) and ov(pv, c.src + c.dst):
            n = max(n, 1)
    if p.is_mfma:
        lat = {4: 8, 8: 12}[p.passes]
        if c.is_mfma:
            if ov(p.dst, c.srcAB):
                n = max(n, lat)
            if ov(p.dst, c.srcC) and not (c.srcC == p.dst and c.passes == p.passes):
                n = max(n, lat - 2)
            if ov(p.dst, c.dst) and c.srcC != p.dst:
                n = max(n, lat)
        elif (c.is_valu or c.is_vmem or c.is_ds) and (ov(p.dst, c.src) or ov(p.dst, c.dst)):
            n = max(n, lat)
        if (c.is_valu or c.is_ds or c.is_vmem) and ov(p.srcC, c.dst):
            n = max(n, {4: 3, 8: 7}[p.passes])
    if p.wide_store and ov(p.store_data, c.dst):
        n = max(n, 2)
    if p.is_salu and ("s", 124) in p.dst and c.op.startswith("global_load_lds"):
        n = max(n, 1)
    return n


class Asm:
    def __init__(self):
        self.lines = []
        self.hist = []
        self.vm = []
        self.lg = []
        self.sm = []
        self.nops = 0
        self.count = 0

    def fork(self):
        o = Asm()
        o.hist = list(self.hist)
        o.vm = list(self.vm)
        o.lg = list(self.lg)
        o.sm = list(self.sm)
        return o

    def raw(self, text):
        self.lines.append(text)

    def comment(self, text):
        self.lines.append("; " + text)

    def label(self, name):
        self.lines.append(name + ":")

    def _push(self, ins):
        self.lines.append("    " + ins.text)
        self.hist.append(ins)
        self.hist = self.hist[-24:]
        self.count += 1

    def wait(self, vm=None, lg=None):
        parts = []
        if vm is not None and vm < len(self.vm):
            assert vm <= 63
            parts.append(f"vmcnt({vm})")
            self.vm = self.vm[len(self.vm) - vm:] if vm else []
        if lg is not None and (lg < len(self.lg) or (lg == 0 and self.sm)):
            if self.sm:
                lg = 0
            lg = min(lg, 15)
            parts.append(f"lgkmcnt({lg})")
            self.lg = self.lg[len(self.lg) - lg:] if lg else []
            if lg == 0:
                self.sm = []
        if parts:
            self._push(Ins("s_waitcnt " + " ".join(parts)))

    def wait_tag(self, tag):
        idx = [i for i, (_, t) in enumerate(self.vm) if t == tag]
        if idx:
            self.wait(vm=len(self.vm) - 1 - idx[-1])

    def barrier(self):
        self.wait(lg=0)
        self("s_barrier")

    def flush(self):
        need = 0
        dist = 0
        for p in reversed(self.hist):
            w = 0
            if p.is_mfma:
                w = {4: 8, 8: 12}[p.passes]
            elif p.is_valu:
                w = 5 if any(r[0] == "s" for r in p.dst) else 3
            elif p.wide_store:
                w = 2
            need = max(need, w - dist)
            dist += p.states
        while need > 0:
            k = min(need, 16)
            self._push(Ins(f"s_nop {k - 1}"))
            self.nops += k
            need -= k

    def __call__(self, text, tag=None):
        for line in text.strip().split("\n"):
            line = line.split(";")[0].strip()
            if line:
                self._emit(Ins(line), tag)

    def _emit(self, c, tag):
        touched = set(c.src) | set(c.dst)
        vm = lg = None
        for i, (regs, _) in enumerate(self.vm):
            if regs and touched & set(regs):
                vm = len(self.vm) - 1 - i
        for i, (regs, _) in enumerate(self.lg):
            if regs and touched & set(regs):
                lg = len(self.lg) - 1 - i
        if any(touched & set(r) for r in self.sm):
            lg = 0
        if c.is_ds and len(self.lg) >= 15 and lg is None:
            pass
        if vm is not None or lg is not None:
            self.wait(vm=vm, lg=lg)
        need, dist = 0, 0
        for p in reversed(self.hist):
            need = max(need, need_states(p, c) - dist)
            dist += p.states
            if dist > 20:
                break
        while need > 0:
            k = min(need, 16)
            self._push(Ins(f"s_nop {k - 1}"))
            self.nops += k
            need -= k
        self._push(c)
        if c.is_vmem and not c.op.startswith(("buffer_inv", "buffer_wbl2")):
            self.vm.append((c.dst, tag))
            assert len(self.vm) <= 63, "vmcnt overflow"
        if c.is_ds:
            self.lg.append((c.dst, tag))
        if c.is_smem:
            self.sm.append(c.dst)

    def text(self):
        return "\n".join(self.lines) + "\n"


class Pool:
    def __init__(self, kind, lo, hi):
        self.kind, self.free = kind, set(range(lo, hi + 1))
        self.top = lo - 1

    def get(self, n=1, align=None):
        align = align or (2 if n > 1 else 1)
        for b in sorted(self.free):
            if b % align == 0 and all(b + i in self.free for i in range(n)):
                for i in range(n):
                    self.free.discard(b + i)
                self.top = max(self.top, b + n - 1)
                return R(self.kind, b, n)
        raise RuntimeError(f"out of {self.kind} registers for {n}")

    def put(self, *rs):
        for r in rs:
            for i in range(r.n):
                assert r.b + i not in self.free
                self.free.add(r.b + i)


class R:
    def __init__(self, kind, b, n):
        self.kind, self.b, self.n = kind, b, n

    def __getitem__(self, i):
        if isinstance(i, slice):
            lo, hi = i.start or 0, i.stop if i.stop is not None else self.n
            assert 0 <= lo < hi <= self.n
            return R(self.kind, self.b + lo, hi - lo)
        assert 0 <= i < self.n
        return R(self.kind, self.b + i, 1)

    def __str__(self):
        return f"{self.kind}{self.b}" if self.n == 1 else f"{self.kind}[{self.b}:{self.b + self.n - 1}]"

    __repr__ = __str__
```

```python
import sys
from asmdsl import Asm, Pool, R

NAME = "sequential_preLN__ssm_conv_s4d__moe_arch_mod__prompt"

WS_EPOCH = 0
WS_S3 = 0x8000
WS_S4 = 0x10000
WS_ROWS = 0x20000
WS_S1 = 0x100000
WS_S2 = 0x300000
WS_STAMP = 0x600000

ROWB = 544
STAGE_CH = 57 * ROWB
L_K = 0
KCOPY = 2112
KCH = 4 * KCOPY
L_U = L_K + 2 * KCH
UCH = 4672
L_Z = 26368
L_H = L_Z + 8192
L_ST = L_H + 8192
L_KEY = L_ST + 64
L_KEY2 = L_KEY + 32
L_RED = L_KEY2 + 32
L_STAGE = 43520
LDS_BYTES = L_STAGE + 2 * STAGE_CH
assert L_U + UCH + 4608 <= L_Z and L_RED + 512 <= L_STAGE and L_STAGE % 256 == 0

NX = 560
V2 = [608 + 64 * s for s in range(4)]
V3 = [864 + 80 * s for s in range(2)]
TAGMASK = 0x40074007
LOG2E = 0x3FB8AA3B
INV2PI = 0x3E22F983
SPIN_MAX = 1 << 14

DEFAULTS = dict(stamps=False, s1_at="mfma", warm=True, out_pol="sc1", pf_code=True)


class Gen:
    def __init__(self, **opt):
        self.o = dict(DEFAULTS)
        self.o.update(opt)
        self.A = Asm()
        self.V = Pool("v", 1, 255)
        self.AC = Pool("a", 0, 255)
        self.S = Pool("s", 32, 63)
        self.cold = []
        self.nstamp = 0

    def stamp(self, i, A=None):
        if self.o["stamps"]:
            (A or self.A)(f"s_memrealtime s[{64 + 2 * i}:{65 + 2 * i}]")
            self.nstamp = max(self.nstamp, i + 1)

    def dump_stamps(self, A):
        if not self.o["stamps"]:
            return
        a, d = self.V.get(), self.V.get(2)
        A("s_mov_b64 exec, 1")
        A.wait(lg=0)
        A(f"s_lshl_b32 s3, {self.sL}, 2\ns_add_u32 s3, s3, {self.sW}\ns_lshl_b32 s3, s3, 8\ns_add_u32 s3, s3, {WS_STAMP}")
        A(f"v_mov_b32 {a}, s3")
        for i in range(19):
            A(f"v_mov_b32 {d[0]}, s{64 + 2 * i}\nv_mov_b32 {d[1]}, s{65 + 2 * i}")
            A(f"global_store_dwordx2 {a}, {d}, s[30:31] offset:{8 * i}")
            A.wait(vm=0)
        self.V.put(a, d)

    def rnd(self, A, dst, src, neg=False):
        A(f"v_cvt_pk_bf16_f32 {dst}, 0, {'-' if neg else ''}{src}")

    def allreduce(self, A, op, regs, width):
        steps = ["quad_perm:[1,0,3,2]", "quad_perm:[2,3,0,1]", "row_half_mirror", "row_mirror"]
        for st in steps:
            for r in regs:
                A(f"{op}_dpp {r}, {r}, {r} {st} row_mask:0xf bank_mask:0xf")
        tmp = [self.V.get() for _ in regs]
        for w, sw in ((32, "v_permlane16_swap_b32"), (64, "v_permlane32_swap_b32")):
            if width >= w:
                for r, t in zip(regs, tmp):
                    A(f"v_mov_b32 {t}, {r}")
                for r, t in zip(regs, tmp):
                    A(f"{sw} {r}, {t}")
                for r, t in zip(regs, tmp):
                    A(f"{op} {r}, {r}, {t}")
        self.V.put(*tmp)

    def ln_stats(self, A, s1, s2, nm, rs):
        t = self.V.get()
        A(f"v_mul_f32 {s1}, 0x3b000000, {s1}")
        A(f"v_mul_f32 {s2}, 0x3b000000, {s2}")
        A(f"v_fma_f32 {t}, -{s1}, {s1}, {s2}")
        A(f"v_max_f32 {t}, 0, {t}")
        self.rnd(A, t, t)
        self.rnd(A, nm, s1, neg=True)
        A(f"v_add_f32 {t}, 0x3727c5ac, {t}")
        self.rnd(A, t, t)
        A(f"v_sqrt_f32 {t}, {t}")
        self.rnd(A, t, t)
        A(f"v_rcp_f32 {rs}, {t}")
        self.V.put(t)

    def poll(self, A, name, loads, check):
        check(A)
        A(f"s_cbranch_vccnz L_{name}_slow")
        A.label(f"L_{name}_ok")
        C = Asm()
        C.label(f"L_{name}_slow")
        C("s_mov_b32 s3, 0")
        C.label(f"L_{name}_loop")
        C("s_waitcnt vmcnt(0)")
        C("s_nop 1")
        loads(C)
        C(f"s_add_u32 s3, s3, 1\ns_cmp_ge_u32 s3, {SPIN_MAX}")
        C("s_cselect_b32 s18, 0, -1\ns_mov_b32 s19, s18")
        check(C)
        C.wait(vm=0)
        C("s_nop 1")
        C("s_and_b64 vcc, vcc, s[18:19]")
        C(f"s_cbranch_vccnz L_{name}_loop")
        C("s_nop 3")
        C(f"s_branch L_{name}_ok")
        self.cold.append(C)

    def prologue(self):
        A, V, S = self.A, self.V, self.S
        A("s_cmp_ge_u32 s2, 0x100\ns_cbranch_scc1 L_end")
        A("s_load_dwordx16 s[4:19], s[0:1], 0\ns_load_dwordx8 s[20:27], s[0:1], 64")
        A("s_load_dwordx2 s[28:29], s[0:1], 96\ns_load_dwordx2 s[30:31], s[0:1], 112")
        self.stamp(0)
        self.sL, self.sW, self.sTag, self.sE = S.get(), S.get(), S.get(), S.get()
        self.sOnes, self.sLo, self.sHi, self.sCh = S.get(), S.get(), S.get(), S.get()
        sL, sW = self.sL, self.sW
        self.vL = V.get()
        self.vI = V.get()
        self.vG = V.get()
        t0, t1, t2 = V.get(), V.get(), V.get()
        A(f"""
        s_and_b32 s3, s2, 7
        s_lshl_b32 s3, s3, 5
        s_lshr_b32 {sL}, s2, 3
        s_add_u32 {sL}, {sL}, s3
        v_lshrrev_b32 {t0}, 6, v0
        v_and_b32 {self.vL}, 63, v0
        v_readfirstlane_b32 {sW}, {t0}
        v_and_b32 {self.vI}, 15, v0
        v_bfe_u32 {self.vG}, v0, 4, 2
        """)
        self.vRow = V.get()
        vXa = V.get()
        A(f"""
        v_lshrrev_b32 {t0}, 5, v0
        v_and_b32 {t1}, 31, v0
        v_lshlrev_b32 {t0}, 10, {t0}
        s_lshl_b32 s3, {sL}, 13
        v_lshl_add_u32 {t0}, {t1}, 4, {t0}
        v_add_u32 {self.vRow}, s3, {t0}
        v_lshl_add_u32 {vXa}, v0, 2, s3
        """)
        A(f"""
        s_lshr_b32 s3, {sL}, 6
        s_lshl_b32 {self.sCh}, s3, 7
        s_and_b32 s3, {sL}, 31
        s_lshl_b32 s3, s3, 2
        s_add_u32 {self.sCh}, {self.sCh}, s3
        s_bfe_u32 s3, {sL}, 0x10005
        s_add_u32 {self.sCh}, {self.sCh}, s3
        s_and_b32 s3, {sW}, 2
        s_add_u32 {self.sCh}, {self.sCh}, s3
        """)
        vP, vC, vXb = V.get(), V.get(), V.get()
        A(f"""
        s_lshl_b32 s3, {self.sCh}, 8
        v_lshl_add_u32 {vP}, {self.vL}, 2, s3
        s_lshl_b32 s3, {self.sCh}, 1
        v_mov_b32 {vC}, s3
        v_add_u32 {vXb}, 0x1000, {vXa}
        v_lshlrev_b32 {t1}, 4, {t1}
        """)
        self.XB = V.get(8)
        self.XA = V.get(8)
        self.PAR = V.get(6)
        self.WR = V.get(8)
        A(f"global_load_dwordx4 {self.XB[0:4]}, {self.vRow}, s[4:5]")
        A(f"global_load_dwordx4 {self.XB[4:8]}, {self.vRow}, s[4:5] offset:512")
        A(f"s_load_dword {self.sE}, s[30:31], {WS_EPOCH}")
        self.stamp(1)
        for j in range(8):
            A(f"global_load_dword {self.XA[j]}, {vXa if j < 4 else vXb}, s[4:5] offset:{1024 * (j % 4)}")
        for k in range(4):
            A(f"global_load_dword {self.PAR[k]}, {vP}, s[{6 + 2 * k}:{7 + 2 * k}]")
        A(f"global_load_ushort {self.PAR[4]}, {vC}, s[14:15]")
        A(f"global_load_ushort {self.PAR[5]}, {vC}, s[16:17]")
        A(f"global_load_dwordx4 {self.WR[0:4]}, {t1}, s[20:21]")
        A(f"global_load_dwordx4 {self.WR[4:8]}, {t1}, s[20:21] offset:512")
        self.vJunk = V.get(4)
        if self.o["pf_code"]:
            A("s_getpc_b64 s[14:15]")
            A.label("L_pc")
            A(f"v_lshlrev_b32 {t0}, 7, v0")
            A(f"v_min_u32 {t0}, L_code_end-L_pc-4, {t0}")
            A(f"global_load_dword {self.vJunk[0]}, {t0}, s[14:15]")
        V.put(vXa, vXb, vP, vC)
        M1 = V.get(4)
        self.vS2o = V.get()
        self.vS2o2 = V.get()
        for k in range(4):
            A(f"v_mov_b32 {M1[k]}, -1")
        A(f"""
        s_lshl_b32 s3, {sL}, 13
        s_add_u32 s3, s3, {WS_S2}
        v_lshl_add_u32 {self.vS2o}, v0, 4, s3
        v_add_u32 {self.vS2o2}, 0x1000, {self.vS2o}
        """)
        A(f"s_lshl_b32 s16, {sW}, 11\ns_add_u32 s3, s3, s16\nv_lshl_add_u32 {t0}, {self.vL}, 4, s3")
        A(f"global_store_dwordx4 {t0}, {M1}, s[30:31] sc1", tag="poison")
        A(f"global_store_dwordx4 {t0}, {M1}, s[30:31] offset:1024 sc1", tag="poison")
        self.sPhi, self.sRole = S.get(), S.get()
        A(f"""
        s_lshr_b32 s3, {sL}, 5
        s_and_b32 s16, {sL}, 31
        s_mul_i32 s17, s3, 28
        s_add_u32 s17, s17, s16
        s_lshl_b32 s3, s3, 2
        s_add_u32 s3, s3, s16
        s_add_u32 s3, s3, {224 - 28}
        s_cmp_ge_u32 s16, 28
        s_cselect_b32 {self.sPhi}, s3, s17
        s_cselect_b32 {self.sRole}, 1, 0
        """)
        A(f"""
        s_lshl_b32 s3, {sL}, 11
        s_add_u32 s3, s3, {WS_ROWS}
        v_lshl_add_u32 {t0}, v0, 4, s3
        s_lshl_b32 s16, {sL}, 4
        s_add_u32 s16, s16, {WS_S3}
        s_lshl_b32 s17, {self.sPhi}, 4
        s_add_u32 s17, s17, {WS_S4}
        s_cmp_eq_u32 {sW}, 2
        s_cselect_b32 s16, s16, s17
        v_lshl_add_u32 {t1}, {self.vL}, 12, s16
        s_cmp_lt_u32 {sW}, 2
        s_cselect_b64 vcc, -1, 0
        v_cndmask_b32 {t0}, {t1}, {t0}, vcc
        s_cselect_b64 exec, -1, 0xff
        """)
        A(f"global_store_dwordx4 {t0}, {M1}, s[30:31] sc1", tag="poison")
        A("s_mov_b64 exec, -1")
        Z = V.get(4)
        for k in range(4):
            A(f"v_mov_b32 {Z[k]}, 0")
        A(f"""
        v_lshrrev_b32 {t0}, 7, v0
        v_and_b32 {t1}, 127, v0
        v_mul_u32_u24 {t0}, {KCH}, {t0}
        v_lshl_add_u32 {t0}, {t1}, 4, {t0}
        ds_write_b128 {t0}, {Z} offset:{L_K}
        v_lshrrev_b32 {t2}, 7, v0
        v_mul_u32_u24 {t2}, {UCH}, {t2}
        v_lshl_add_u32 {t2}, {t1}, 2, {t2}
        ds_write_b32 {t2}, {Z[0]} offset:{L_U}
        """)
        self.vShift = V.get()
        A(f"v_mov_b32 {self.vShift}, {t0}")
        V.put(M1, Z)
        A(f"s_mov_b32 {self.sOnes}, 0x3f803f80\ns_mov_b32 {self.sLo}, 0x3f80\ns_mov_b32 {self.sHi}, 0x3f800000")
        self.consts(t0, t1, t2)
        V.put(t0, t1, t2)

    def consts(self, t0, t1, t2):
        A, V, S = self.A, self.V, self.S
        vI, vG, vL, sW, sL = self.vI, self.vG, self.vL, self.sW, self.sL
        self.BAND = {}
        A(f"v_lshlrev_b32 {t0}, 3, {vG}\nv_sub_u32 {t0}, {vI}, {t0}")
        for (delta, h) in ((12, 1), (8, 2), (4, 1), (8, 3), (8, 4)):
            B = V.get(4)
            self.BAND[(delta, h)] = B
            win = (1 << (2 * h + 1)) - 1
            A(f"v_add_u32 {t1}, {delta - h + 12}, {t0}")
            A(f"v_med3_i32 {t1}, {t1}, 0, 22")
            A(f"v_mov_b32 {t2}, {win}")
            A(f"v_lshlrev_b32 {t1}, {t1}, {t2}")
            for d in range(4):
                A(f"v_bfe_u32 {t2}, {t1}, {12 + 2 * d}, 2")
                A(f"v_mul_u32_u24 {t2}, 0x8001, {t2}")
                A(f"v_and_b32 {t2}, 0x10001, {t2}")
                A(f"v_mul_u32_u24 {B[d]}, 0x3c00, {t2}")
        sB, sH = S.get(), S.get()
        self.sB, self.sH = sB, sH
        A(f"s_lshr_b32 {sB}, {sW}, 1\ns_and_b32 {sH}, {sW}, 1")
        self.vStW = V.get()
        A(f"""
        s_mul_i32 s3, {sB}, {STAGE_CH}
        s_add_u32 s3, s3, {L_STAGE}
        s_lshl_b32 s16, {sH}, 8
        s_add_u32 s16, s16, s3
        v_lshl_add_u32 {self.vStW}, {vL}, 2, s16
        """)
        self.vA1, self.vA2, self.vBm = V.get(), V.get(), V.get()
        A(f"""
        v_xor_b32 {t0}, 3, {vI}
        v_bfe_u32 {t1}, {t0}, 1, 1
        v_add_u32 {t1}, {t0}, {t1}
        v_lshrrev_b32 {t1}, 1, {t1}
        v_add_u32 {t1}, 32, {t1}
        s_cmp_eq_u32 {sH}, 0
        s_cselect_b64 vcc, -1, 0
        s_cselect_b32 s16, 16, 0
        s_cselect_b32 s17, 0, 41
        v_cndmask_b32 {t1}, {t0}, {t1}, vcc
        v_add_u32 {t0}, s16, {t0}
        v_add_u32 {t2}, s17, {vI}
        v_mul_u32_u24 {t0}, {ROWB}, {t0}
        v_mul_u32_u24 {t1}, {ROWB}, {t1}
        v_mul_u32_u24 {t2}, {ROWB}, {t2}
        v_lshl_add_u32 {t0}, {vG}, 4, {t0}
        v_lshl_add_u32 {t1}, {vG}, 4, {t1}
        v_lshl_add_u32 {t2}, {vG}, 4, {t2}
        v_add_u32 {self.vA1}, s3, {t0}
        v_add_u32 {self.vA2}, s3, {t1}
        v_add_u32 {self.vBm}, s3, {t2}
        """)
        self.vK1, self.vK2, self.vKs = V.get(), V.get(), V.get()
        t3 = V.get()
        A(f"""
        v_lshlrev_b32 {t0}, 4, {vI}
        v_sub_u32 {t0}, 540, {t0}
        v_and_b32 {t1}, 3, {vI}
        v_lshlrev_b32 {t1}, 6, {t1}
        v_lshrrev_b32 {t2}, 2, {vI}
        v_lshlrev_b32 {t2}, 4, {t2}
        v_sub_u32 {t1}, {t1}, {t2}
        v_add_u32 {t1}, {V2[0] + 44}, {t1}
        v_and_b32 {t2}, 1, {vI}
        v_mul_u32_u24 {t2}, 80, {t2}
        v_lshrrev_b32 {t3}, 1, {vI}
        v_lshlrev_b32 {t3}, 4, {t3}
        v_sub_u32 {t2}, {t2}, {t3}
        v_add_u32 {t2}, {V3[0] + 60 + 64}, {t2}
        v_cmp_gt_u32 s[16:17], 8, {vI}
        v_cndmask_b32 {t1}, {t2}, {t1}, s[16:17]
        v_cndmask_b32 {t2}, {t1}, {t0}, vcc
        v_subrev_u32 {t0}, 256, {t0}
        v_cndmask_b32 {t1}, {t1}, {t0}, vcc
        v_lshlrev_b32 {t3}, 2, {vG}
        v_sub_u32 {t2}, {t2}, {t3}
        v_sub_u32 {t1}, {t1}, {t3}
        s_mul_i32 s3, {sB}, {KCH}
        s_add_u32 s3, s3, {L_K}
        v_lshl_add_u32 {self.vK1}, {t2}, 1, s3
        v_lshl_add_u32 {self.vK2}, {t1}, 1, s3
        s_cmp_eq_u32 {sH}, 0
        s_cselect_b32 s16, {2 * 29}, {2 * (NX + 27)}
        s_add_u32 s16, s16, s3
        v_mov_b32 {self.vKs}, s16
        """)
        self.vN, self.vF = V.get(), V.get()
        A(f"""
        v_sub_u32 {t0}, 15, {vI}
        v_and_b32 {t1}, 3, {t0}
        v_and_b32 {t0}, 12, {t0}
        v_mul_u32_u24 {t1}, {KCOPY}, {t1}
        v_lshl_add_u32 {t0}, {t0}, 1, {t1}
        v_add_u32 {t0}, s3, {t0}
        v_lshl_add_u32 {self.vN}, {vG}, 4, {t0}
        v_lshl_add_u32 {self.vF}, {vG}, 3, {t0}
        """)
        self.vUf, self.vUe, self.vZw, self.vZr, self.vUw = V.get(), V.get(), V.get(), V.get(), V.get()
        A(f"""
        s_mul_i32 s3, {sB}, {UCH}
        s_add_u32 s3, s3, {L_U}
        v_lshl_add_u32 {t0}, {vI}, 5, s3
        v_lshl_add_u32 {self.vUf}, {vG}, 4, {t0}
        v_lshl_add_u32 {self.vUe}, {vG}, 3, {t0}
        v_and_b32 {t0}, 2, {vG}
        v_lshl_add_u32 {t0}, {vI}, 2, {t0}
        v_add_u32 {t0}, {sB}, {t0}
        v_lshrrev_b32 {t1}, 1, {vI}
        v_xor_b32 {t0}, {t0}, {t1}
        v_and_b32 {t1}, 1, {vG}
        v_lshlrev_b32 {t1}, 3, {t1}
        v_lshl_add_u32 {self.vZw}, {t0}, 4, {t1}
        v_bfe_u32 {t0}, v0, 3, 3
        v_xor_b32 {t0}, v0, {t0}
        v_lshlrev_b32 {self.vZr}, 4, {t0}
        v_and_b32 {t0}, 1, v0
        v_lshrrev_b32 {t1}, 1, v0
        v_mul_u32_u24 {t2}, {UCH}, {t0}
        v_lshl_add_u32 {self.vUw}, {t1}, 4, {t2}
        """)
        self.vS1o, self.vS1i, self.vS1i2, self.vS2i, self.vS2i2 = V.get(), V.get(), V.get(), V.get(), V.get()
        A(f"""
        s_lshl_b32 s3, {sL}, 13
        s_lshl_b32 s16, {sW}, 11
        s_add_u32 s3, s3, s16
        s_add_u32 s3, s3, {WS_S1}
        v_lshl_add_u32 {self.vS1o}, {vL}, 4, s3
        v_lshlrev_b32 {t0}, 4, {t0}
        s_lshl_b32 s3, {sL}, 5
        s_add_u32 s16, s3, {WS_S1}
        v_lshl_add_u32 {t2}, {t1}, 13, {t0}
        v_add_u32 {self.vS1i}, s16, {t2}
        v_add_u32 {self.vS1i2}, 0x100000, {self.vS1i}
        v_lshrrev_b32 {t1}, 1, {vL}
        v_lshl_add_u32 {t2}, {t1}, 13, {t0}
        s_lshl_b32 s16, {sW}, 19
        s_add_u32 s16, s16, s3
        s_add_u32 s16, s16, {WS_S2}
        v_add_u32 {self.vS2i}, s16, {t2}
        v_add_u32 {self.vS2i2}, 0x40000, {self.vS2i}
        """)
        self.vTau, self.vMask = V.get(), V.get()
        A(f"v_lshrrev_b32 {self.vTau}, 5, v0\nv_mov_b32 {self.vMask}, {0xFFFFFFFF ^ TAGMASK}")
        V.put(t3)

    def ln1(self):
        A, V = self.A, self.V
        s1, s2, nm, rs, ad = V.get(), V.get(), V.get(), V.get(), V.get()
        A(f"v_lshlrev_b32 {ad}, 2, {self.vTau}")
        for k in range(8):
            A(f"v_dot2_f32_bf16 {s1}, {self.XB[k]}, {self.sOnes}, {s1 if k else 0}")
            A(f"v_dot2_f32_bf16 {s2}, {self.XB[k]}, {self.XB[k]}, {s2 if k else 0}")
            if k == 0:
                self.stamp(2)
        self.allreduce(A, "v_add_f32", [s1, s2], 32)
        self.ln_stats(A, s1, s2, nm, rs)
        A("s_mov_b64 exec, 1\ns_bitset1_b64 exec, 32")
        A(f"v_mul_f32 {rs}, 0x3d800000, {rs}")
        A(f"ds_write2_b32 {ad}, {nm}, {rs} offset0:0 offset1:8" if False else
          f"ds_write_b32 {ad}, {nm} offset:{L_ST}\nds_write_b32 {ad}, {rs} offset:{L_ST + 32}")
        A("s_mov_b64 exec, -1")
        V.put(self.XB)
        self.XL, self.XH = V.get(8), V.get(8)
        for j in range(8):
            A(f"v_lshlrev_b32 {self.XL[j]}, 16, {self.XA[j]}")
            A(f"v_and_b32 {self.XH[j]}, 0xffff0000, {self.XA[j]}")
        V.put(self.XA)
        A.barrier()
        NM, RS = V.get(8), V.get(8)
        A(f"v_mov_b32 {ad}, 0")
        for k in range(2):
            A(f"ds_read_b128 {NM[4 * k:4 * k + 4]}, {ad} offset:{L_ST + 16 * k}")
        for k in range(2):
            A(f"ds_read_b128 {RS[4 * k:4 * k + 4]}, {ad} offset:{L_ST + 32 + 16 * k}")
        A(f"s_add_u32 {self.sE}, {self.sE}, 1\ns_and_b32 {self.sTag}, {self.sE}, {TAGMASK}")
        T = V.get(8)
        for e, X in enumerate((self.XL, self.XH)):
            G = V.get(4)
            for q in range(4):
                A(f"v_pk_add_f32 {T[2 * q:2 * q + 2]}, {X[2 * q:2 * q + 2]}, {NM[2 * q:2 * q + 2]}")
            for j in range(8):
                self.rnd(A, T[j], T[j])
            for q in range(4):
                A(f"v_pk_mul_f32 {T[2 * q:2 * q + 2]}, {T[2 * q:2 * q + 2]}, {RS[2 * q:2 * q + 2]}")
            for j in range(8):
                self.rnd(A, T[j], T[j])
            for q in range(4):
                A(f"v_cvt_pk_f16_f32 {G[q]}, {T[2 * q]}, {T[2 * q + 1]}")
            for q in range(4):
                A(f"v_and_or_b32 {G[q]}, {G[q]}, {self.vMask}, {self.sTag}")
            if e == 0:
                A.wait_tag("poison")
            A(f"global_store_dwordx4 {self.vS1o}, {G}, s[30:31] offset:{1024 * e} sc1", tag="s1st")
            self.G = getattr(self, "G", []) + [G]
        self.stamp(3)
        V.put(T, NM, RS, s1, s2, nm, rs, ad, self.vS1o, self.vMask)

    def warm(self):
        if not self.o["warm"]:
            return
        A, V = self.A, self.V
        t0, t1 = V.get(), V.get()
        A(f"""
        s_lshr_b32 s3, {self.sL}, 5
        s_and_b32 s16, {self.sL}, 31
        s_mul_i32 s17, s16, {16 * 3584}
        s_mul_i32 s18, s3, 448
        s_add_u32 s17, s17, s18
        v_bfe_u32 {t0}, v0, 3, 4
        v_and_b32 {t1}, 7, v0
        v_min_u32 {t1}, 6, {t1}
        v_mul_u32_u24 {t0}, 3584, {t0}
        v_lshl_add_u32 {t0}, {t1}, 6, {t0}
        v_add_u32 {t0}, s17, {t0}
        s_cmp_lt_u32 {self.sW}, 2
        s_cselect_b32 s18, s22, s24
        s_cselect_b32 s19, s23, s25
        global_load_dword {self.vJunk[1]}, {t0}, s[18:19]
        s_mul_i32 s17, s16, {56 * 1024}
        s_lshl_b32 s3, s3, 7
        s_add_u32 s17, s17, s3
        v_min_u32 {t0}, 111, v0
        v_and_b32 {t1}, 1, {t0}
        v_lshrrev_b32 {t0}, 1, {t0}
        v_lshlrev_b32 {t0}, 10, {t0}
        v_lshl_add_u32 {t0}, {t1}, 6, {t0}
        v_add_u32 {t0}, s17, {t0}
        global_load_dword {self.vJunk[2]}, {t0}, s[26:27]
        """)
        V.put(t0, t1)

    def s1_loads(self, A):
        A(f"global_load_dwordx4 {self.UG[0:4]}, {self.vS1i}, s[30:31] sc1")
        A(f"global_load_dwordx4 {self.UG[4:8]}, {self.vS1i2}, s[30:31] sc1")

    def maybe_s1(self, where):
        if self.o["s1_at"] == where:
            self.UG = self.V.get(8)
            self.s1_loads(self.A)

    def kgen(self):
        A, V = self.A, self.V
        P = self.PAR
        V.put(*self.G)
        t0, t1, dt = V.get(), V.get(), V.get()
        self.vG16, self.vD16 = V.get(2), V.get()
        A(f"""
        v_and_b32 {t0}, 0x7fff7fff, {P[2]}
        v_and_b32 {t1}, 0x7fff7fff, {P[3]}
        v_pk_max_u16 {t0}, {t0}, {t1}
        v_lshrrev_b32 {t1}, 16, {t0}
        v_and_b32 {t0}, 0xffff, {t0}
        v_max_u32 {t0}, {t0}, {t1}
        v_lshlrev_b32 {dt}, 16, {P[4]}
        v_mul_f32 {dt}, {LOG2E}, {dt}
        v_exp_f32 {dt}, {dt}
        s_cmp_eq_u32 {self.sH}, 0
        s_cselect_b32 s3, 16, 0
        """)
        for k in range(4):
            A(f"v_lshlrev_b32 {P[k]}, s3, {P[k]}")
        for k in range(4):
            A(f"v_and_b32 {P[k]}, 0xffff0000, {P[k]}")
        self.rnd(A, dt, dt)
        A(f"v_mul_f32 {P[0]}, {LOG2E}, {P[0]}\nv_exp_f32 {P[0]}, {P[0]}")
        self.allreduce(A, "v_max_u32", [t0], 64)
        self.rnd(A, P[0], P[0])
        A(f"""
        v_lshlrev_b32 {self.vD16}, 16, {P[5]}
        v_mul_f32 {self.vD16}, 0x41800000, {self.vD16}
        v_mul_f32 {P[0]}, {P[0]}, {dt}
        v_mul_f32 {P[1]}, {P[1]}, {dt}
        v_mul_f32 {P[0]}, {LOG2E | 0x80000000}, {P[0]}
        v_mul_f32 {P[1]}, {INV2PI}, {P[1]}
        v_lshrrev_b32 {t0}, 7, {t0}
        v_max_u32 {t0}, 8, {t0}
        v_lshrrev_b32 {t1}, 23, {dt}
        v_add_u32 {t1}, {t1}, {t0}
        v_subrev_u32 {t1}, 127, {t1}
        v_max_i32 {t1}, 0, {t1}
        v_min_i32 {t1}, 254, {t1}
        v_lshlrev_b32 {self.vG16[0]}, 23, {t1}
        v_lshlrev_b32 {self.vG16[1]}, 23, {t1}
        v_sub_u32 {t0}, 259, {t0}
        v_and_b32 {dt}, 0x007fffff, {dt}
        v_lshl_or_b32 {dt}, {t0}, 23, {dt}
        """)
        W = {p: V.get(2) for p in (1, 16, 256)}
        for p, mul in ((1, None), (16, 0x41800000), (256, 0x43800000)):
            w = W[p]
            if mul:
                A(f"v_mul_f32 {t0}, {mul}, {P[0]}\nv_mul_f32 {t1}, {mul}, {P[1]}")
                A(f"v_exp_f32 {t0}, {t0}\nv_fract_f32 {t1}, {t1}")
            else:
                A(f"v_exp_f32 {t0}, {P[0]}\nv_fract_f32 {t1}, {P[1]}")
            A(f"v_cos_f32 {w[0]}, {t1}\nv_sin_f32 {w[1]}, {t1}")
            A(f"v_mul_f32 {w[0]}, {w[0]}, {t0}\nv_mul_f32 {w[1]}, {w[1]}, {t0}")
        L, M, Rr, T = V.get(2), V.get(2), V.get(2), V.get(2)
        A(f"v_mul_f32 {L[0]}, {P[2]}, {dt}\nv_mul_f32 {L[1]}, {P[3]}, {dt}")
        pk = [V.get() for _ in range(4)]
        cnt = [0]

        def cmul(d, a, b):
            A(f"v_pk_mul_f32 {T}, {a}, {b} op_sel_hi:[0,1]")
            A(f"v_pk_fma_f32 {d}, {a}, {b}, {T} op_sel:[1,1,0] op_sel_hi:[1,0,1] neg_lo:[0,1,0]")

        def put(row, v, conj=False):
            r = pk[cnt[0] % 4]
            cnt[0] += 1
            A(f"v_cvt_pk_f16_f32 {r}, {v[0]}, {'-' if conj else ''}{v[1]}")
            A(f"ds_write_b32 {self.vStW}, {r} offset:{row * ROWB}")

        A(f"v_mov_b32 {t0}, 0x3c00\nds_write_b32 {self.vStW}, {t0}")
        put(1, W[16], conj=True)
        cmul(Rr, W[16], W[16])
        put(2, Rr, conj=True)
        for j in range(3, 16):
            cmul(Rr, Rr, W[16])
            put(j, Rr, conj=True)
        self.maybe_s1("rec0")
        for al in range(17):
            if al:
                cmul(L, L, W[1])
            if al < 16:
                put(16 + al, L)
            if al % 2 == 0:
                cmul(M, L, W[256])
                put(32 + al // 2, M)
                if al and al % 4 == 0:
                    for a in range(2):
                        cmul(M, M, W[256])
                        put(41 + 4 * a + al // 4 - 1, M)
                    if al % 8 == 0:
                        for a in range(4):
                            cmul(M, M, W[256])
                            put(49 + 2 * a + al // 8 - 1, M)
            if al == 8:
                self.maybe_s1("rec1")
        V.put(L, M, Rr, T, *pk, *W.values(), t0, t1, dt, P, self.vStW)
        self.stamp(4)
        self.maybe_s1("rec2")
        A.barrier()
        NB = 4
        Bb = [V.get(4) for _ in range(NB)]
        A1 = [V.get(4) for _ in range(NB)]
        A2 = [V.get(4) for _ in range(NB)]
        D1, D2 = V.get(4), V.get(4)

        def rd(q):
            A(f"ds_read_b128 {Bb[q % NB]}, {self.vBm} offset:{64 * q}")
            A(f"ds_read_b128 {A1[q % NB]}, {self.vA1} offset:{64 * q}")
            A(f"ds_read_b128 {A2[q % NB]}, {self.vA2} offset:{64 * q}")
        for q in range(NB):
            rd(q)
        for q in range(8):
            A(f"v_mfma_f32_16x16x32_f16 {D1}, {A1[q % NB]}, {Bb[q % NB]}, {D1 if q else 0}")
            A(f"v_mfma_f32_16x16x32_f16 {D2}, {A2[q % NB]}, {Bb[q % NB]}, {D2 if q else 0}")
            if q + NB < 8:
                rd(q + NB)
        self.maybe_s1("mfma")
        K1, K2 = V.get(2), V.get(2)
        A(f"s_cmp_eq_u32 {self.sH}, 0\ns_cselect_b32 s3, 63, 55\ns_cselect_b32 s16, 4, 2")
        t0 = V.get()
        A(f"v_add_u32 {t0}, s16, {self.vKs}")
        A(f"v_cvt_pk_f16_f32 {K1[0]}, {D1[0]}, {D1[1]}\nv_cvt_pk_f16_f32 {K1[1]}, {D1[2]}, {D1[3]}")
        A(f"v_cvt_pk_f16_f32 {K2[0]}, {D2[0]}, {D2[1]}\nv_cvt_pk_f16_f32 {K2[1]}, {D2[2]}, {D2[3]}")
        A(f"ds_write_b64 {self.vK1}, {K1}\nds_write_b64 {self.vK2}, {K2}")
        A("s_mov_b64 exec, 0\ns_bitset1_b64 exec, s3")
        A(f"ds_write_b16 {self.vKs}, {K2[0]}\nds_write_b16 {self.vKs}, {K2[0]} offset:2\nds_write_b16 {t0}, {K2[0]}")
        A("s_mov_b64 exec, -1")
        V.put(*Bb, *A1, *A2, D1, D2, self.vA1, self.vA2, self.vBm, self.vK1, self.vK2, self.vKs, t0)
        A.barrier()
        V.put(K1, K2)
        self.stamp(5)
        self.maybe_s1("shift")
        D, C1, C2, C3 = V.get(6), V.get(4), V.get(4), V.get(4)
        A(f"ds_read_b128 {D[0:4]}, {self.vShift} offset:{L_K}\nds_read_b64 {D[4:6]}, {self.vShift} offset:{L_K + 16}")
        for k in range(4):
            A(f"v_alignbit_b32 {C1[k]}, {D[k + 1]}, {D[k]}, 16")
        A(f"ds_write_b128 {self.vShift}, {C1} offset:{L_K + KCOPY}")
        for k in range(4):
            A(f"v_mov_b32 {C2[k]}, {D[k + 1]}")
        A(f"ds_write_b128 {self.vShift}, {C2} offset:{L_K + 2 * KCOPY}")
        for k in range(4):
            A(f"v_alignbit_b32 {C3[k]}, {D[k + 2]}, {D[k + 1]}, 16")
        A(f"ds_write_b128 {self.vShift}, {C3} offset:{L_K + 3 * KCOPY}")
        A.barrier()
        V.put(D, C1, C2, C3, self.vShift)
        self.maybe_s1("frag")
        AC = self.AC
        self.KN = [AC.get(4, 4) for _ in range(17)]
        self.KX = AC.get(4, 4)
        self.B2 = {(k, d): AC.get(4, 4) for k in range(2) for d in (2, 3, 4)}
        self.B3 = {d: AC.get(4, 4) for d in (4, 5, 6, 7)}
        for q in range(17):
            for hf in range(2):
                A(f"ds_read_b64 {self.KN[q][2 * hf:2 * hf + 2]}, {self.vN} offset:{64 * (16 - q) + 8 * hf}")
        for hf in range(2):
            A(f"ds_read_b64 {self.KX[2 * hf:2 * hf + 2]}, {self.vN} offset:{2 * NX + 8 * hf}")
        for (k, d), r in self.B2.items():
            for hf in range(2):
                A(f"ds_read_b64 {r[2 * hf:2 * hf + 2]}, {self.vF} offset:{2 * (V2[2 * k + hf] + 32 - 16 * (d - 2))}")
        for d, r in self.B3.items():
            for hf in range(2):
                A(f"ds_read_b64 {r[2 * hf:2 * hf + 2]}, {self.vF} offset:{2 * (V3[hf] + 48 - 16 * (d - 4))}")
        V.put(self.vN, self.vF)
        self.maybe_s1("end")
        self.stamp(6)

    def s1_consume(self):
        A, V = self.A, self.V
        UG = self.UG
        t0, t1 = V.get(), V.get()

        def check(C):
            for k in range(8):
                C(f"v_xor_b32 {UG[k]}, {self.sTag}, {UG[k]}")
            C(f"v_or3_b32 {t0}, {UG[0]}, {UG[1]}, {UG[2]}\nv_or3_b32 {t1}, {UG[3]}, {UG[4]}, {UG[5]}")
            C(f"v_or3_b32 {t0}, {t0}, {UG[6]}, {UG[7]}\nv_or_b32 {t0}, {t0}, {t1}")
            C(f"v_and_b32 {t0}, {TAGMASK}, {t0}\nv_cmp_ne_u32 vcc, 0, {t0}")
        self.poll(A, "s1", self.s1_loads, check)
        A(f"ds_write_b128 {self.vUw}, {UG[0:4]} offset:{L_U + 512}")
        A(f"ds_write_b128 {self.vUw}, {UG[4:8]} offset:{L_U + 512 + 2048}")
        self.stamp(7)
        A.barrier()
        V.put(t0, t1, UG, self.vUw, self.vS1i, self.vS1i2)

    def conv(self, A, tiles):
        V = self.V
        acc = {j: V.get(4) for j in tiles}
        started = set()
        NF, NW, NP = 7, 4, 4
        Fb = [V.get(4) for _ in range(NF)]
        Wb = [V.get(4) for _ in range(NW)]
        Pb = [V.get(4) for _ in range(NP)]
        EU = [V.get(2) for _ in range(2)]
        ED = [V.get(4) for _ in range(2)]
        EY, EZ = V.get(4), V.get(2)
        qmax = {0: 7, 1: 15}
        b2 = sorted({j - d for j in tiles for d in (2, 3, 4) if j - d >= 0})
        b3 = sorted({j - d for j in tiles for d in (4, 5, 6, 7) if j - d >= 0})
        nlo = min(8 * j - qmax.get(j, 16) for j in tiles)
        nhi = 8 * max(tiles)
        order = [("a", 8 * b) for b in sorted(set(b2) | set(b3)) if 8 * b < nlo] + [("a", n) for n in range(nlo, nhi + 1)]
        frags = []
        for kind, n in order:
            frags.append((kind, n))
            if n >= 0 and n % 8 == 0 and (n // 8 in b2 or n // 8 in b3):
                frags.append(("b", n // 8))
        mf = []
        fill = []
        fuse = {}
        wcount, pcount = [0], [0]
        pending = []

        def emit_acc(j, a, b):
            mf.append(f"v_mfma_f32_16x16x32_f16 {acc[j]}, {a}, {b}, {acc[j] if j in started else 0}")
            started.add(j)

        def drain(force_tile=None, all_=False):
            for item in list(pending):
                rdy, j, a, b = item
                if rdy <= len(mf) or all_ or j == force_tile:
                    assert rdy <= len(mf)
                    emit_acc(j, a, b)
                    pending.remove(item)
                    plast[str(a)] = len(mf) - 1

        plast = {}
        wlast = {}
        half = {}

        def band(F, key, name, hf, b, users):
            w = Wb[wcount[0] % NW]
            wcount[0] += 1
            if (name, b) not in half:
                p = Pb[pcount[0] % NP]
                pcount[0] += 1
                for item in list(pending):
                    if str(item[2]) == str(p):
                        assert item[0] <= len(mf)
                        emit_acc(item[1], item[2], item[3])
                        pending.remove(item)
                        plast[str(p)] = len(mf) - 1
                half[(name, b)] = [p, 0]
            p = half[(name, b)][0]
            mf.append(f"v_mfma_f32_16x16x32_f16 {w}, {F}, {self.BAND[key]}, 0")
            t = len(mf) - 1
            early = max(t + 2, plast.get(str(p), -1))
            for k in range(2):
                fill.append([early, t + NW - 1, f"v_cvt_pk_f16_f32 {p[2 * hf + k]}, {w[2 * k]}, {w[2 * k + 1]}", "cvt"])
            half[(name, b)][1] += 1
            if half[(name, b)][1] == 2:
                for j, m in users:
                    pending.append([t + NW, j, p, m])

        done_at = {}
        for fi, (kind, n) in enumerate(frags):
            F = Fb[fi % NF]
            first = len(mf)
            if kind == "a":
                for j in tiles:
                    q = 8 * j - n
                    if 0 <= q <= qmax.get(j, 16) and n >= nlo:
                        if q == 0:
                            drain(force_tile=j)
                        emit_acc(j, self.KN[q], F)
                        if q == 0:
                            done_at[j] = len(mf) - 1
                if n >= 0 and n % 8 == 0:
                    b = n // 8
                    if b + 4 in tiles:
                        emit_acc(b + 4, self.KX, F)
                    u2a = [(b + d, self.B2[(0, d)]) for d in (2, 3, 4) if b + d in tiles]
                    u2b = [(b + d, self.B2[(1, d)]) for d in (2, 3, 4) if b + d in tiles]
                    u3 = [(b + d, self.B3[d]) for d in (4, 5, 6, 7) if b + d in tiles]
                    if b in b2:
                        band(F, (12, 1), "2a", 0, b, u2a)
                        band(F, (8, 2), "2a", 1, b, u2a)
                        band(F, (4, 1), "2b", 0, b, u2b)
                    if b in b3:
                        band(F, (8, 3), "3", 0, b, u3)
            else:
                b = n
                u2b = [(b + d, self.B2[(1, d)]) for d in (2, 3, 4) if b + d in tiles]
                u3 = [(b + d, self.B3[d]) for d in (4, 5, 6, 7) if b + d in tiles]
                if b in b2:
                    band(F, (8, 2), "2b", 1, b, u2b)
                if b in b3:
                    band(F, (8, 4), "3", 1, b, u3)
            fuse[fi] = (first, len(mf) - 1)
            drain()
        assert not pending
        nm = len(mf)
        pre = []
        for fi, (kind, n) in enumerate(frags):
            off = 512 + 2 * ((32 * n - 16) if kind == "a" else (256 * n - 24))
            txt = f"ds_read_b128 {Fb[fi % NF]}, {self.vUf} offset:{off}"
            if fi < NF:
                pre.append(txt)
            else:
                fill.append([fuse[fi - NF][1], max(fuse[fi - NF][1], fuse[fi][0] - 5), txt, "rd"])
        order_t = sorted(tiles, key=lambda j: done_at[j])
        prev_end = -1
        for k, j in enumerate(order_t):
            eu, ed = EU[k % 2], ED[k % 2]
            t = done_at[j]
            nxt = done_at[order_t[k + 1]] if k + 1 < len(order_t) else nm + 100
            seq1 = [f"ds_read_b64 {eu}, {self.vUe} offset:{512 + 512 * j}"]
            for r in range(4):
                seq1.append(f"v_fma_mix_f32 {ed[r]}, {eu[r // 2]}, {self.vD16}, 0 op_sel:[{r % 2},0,0] op_sel_hi:[1,0,0]")
            for r in range(4):
                seq1.append(f"v_cvt_pk_bf16_f32 {ed[r]}, 0, {ed[r]}")
            e0 = max(prev_end, 0) if k < 2 else done_at[order_t[k - 2]] + 10
            e0 = min(e0, t - 1)
            fill.append([e0, t, seq1[0], f"e1_{j}"])
            for s in seq1[1:]:
                fill.append([min(e0 + 4, t), t + 2, s, f"e1_{j}"])
            seq2 = []
            for r in range(2):
                seq2.append(f"v_pk_mul_f32 {EY[2 * r:2 * r + 2]}, {acc[j][2 * r:2 * r + 2]}, {self.vG16}")
            for r in range(4):
                seq2.append(f"v_cvt_pk_bf16_f32 {EY[r]}, 0, {EY[r]}")
            for r in range(2):
                seq2.append(f"v_pk_add_f32 {EY[2 * r:2 * r + 2]}, {EY[2 * r:2 * r + 2]}, {ed[2 * r:2 * r + 2]}")
            for r in range(2):
                seq2.append(f"v_cvt_pk_bf16_f32 {EZ[r]}, {EY[2 * r]}, {EY[2 * r + 1]}")
            seq2.append(f"ds_write_b64 {self.vZw}, {EZ} offset:{L_Z + 1024 * j}")
            for s in seq2:
                fill.append([t + 3, min(t + 9, nxt + 2), s, f"e2_{j}"])
            prev_end = t
        for txt in pre:
            A(txt)
        for i, f in enumerate(fill):
            f.append(i)
        left = list(fill)
        for t in range(nm):
            A(mf[t])
            avail = sorted([f for f in left if f[0] <= t], key=lambda f: (f[1], f[4]))
            n = 0
            for f in avail:
                if n >= 2 and f[1] > t:
                    break
                if any(g[3] == f[3] and g[4] < f[4] and f[3] not in ("rd", "cvt") for g in left):
                    continue
                A(f[2])
                left.remove(f)
                n += 1
        for f in sorted(left, key=lambda f: (f[1], f[4])):
            A(f[2])
        self.nmfma = getattr(self, "nmfma", []) + [nm]
        V.put(*acc.values(), *Fb, *Wb, *Pb, *EU, *ED, EY, EZ)

    def conv_both(self):
        A = self.A
        A(f"s_cmp_eq_u32 {self.sH}, 0\ns_cbranch_scc0 L_conv_b")
        B = A.fork()
        self.conv(A, [0, 1, 2, 3, 4])
        A.wait(lg=0)
        A.flush()
        A("s_branch L_conv_done")
        B.label("L_conv_b")
        self.conv(B, [5, 6, 7])
        B.wait(lg=0)
        B.flush()
        A.lines += B.lines
        A.count += B.count
        A.nops += B.nops
        A.label("L_conv_done")
        self.V.put(*self.BAND.values(), self.vUf, self.vUe, self.vZw, self.vG16, self.vD16)
        for r in self.KN + [self.KX] + list(self.B2.values()) + list(self.B3.values()):
            self.AC.put(r)
        self.stamp(8)
        A("s_barrier")
        ZT = self.V.get(8)
        A(f"ds_read_b128 {ZT[0:4]}, {self.vZr} offset:{L_Z}\nds_read_b128 {ZT[4:8]}, {self.vZr} offset:{L_Z + 4096}")
        A(f"global_store_dwordx4 {self.vS2o}, {ZT[0:4]}, s[30:31] sc1", tag="s2st")
        A(f"global_store_dwordx4 {self.vS2o2}, {ZT[4:8]}, s[30:31] sc1", tag="s2st")
        self.ZT = ZT
        self.V.put(self.vZr, self.vS2o, self.vS2o2)

    def weights_dma(self, A, role, lo, hi):
        V = self.V
        t0 = self.vWg
        if role == 0:
            for m in range(lo, hi):
                mat, part = m // 2, m % 2
                A(f"s_add_u32 m0, {self.sWb}, {mat * 2112 + part * 1024}")
                if part:
                    A(f"v_add_u32 {self.vWg2}, {64 * 3584}, {t0}")
                A(f"global_load_lds_dwordx4 {self.vWg2 if part else t0}, s[{22 + 2 * mat}:{23 + 2 * mat}]", tag="dma")
        else:
            for m in range(lo, hi):
                A(f"s_add_u32 m0, {self.sWb}, {m * 1024}")
                A(f"v_add_u32 {self.vWg2}, {m * 32 * 1024}, {t0}")
                A(f"global_load_lds_dwordx4 {self.vWg2}, s[26:27]", tag="dma")

    def tail(self, A, role):
        V, S = self.V, self.S
        vL, vI, vG, sL, sW = self.vL, self.vI, self.vG, self.sL, self.sW
        sfx = f"r{role}"
        got = []

        def get(n=1, al=None):
            r = V.get(n, al)
            got.append(r)
            return r
        t0, t1, t2 = get(), get(), get()
        self.vWg, self.vWg2 = get(), get()
        vTr = get()
        if role == 0:
            A(f"""
            s_mul_i32 {self.sWb}, {sW}, 4224
            s_add_u32 {self.sWb}, {self.sWb}, {L_STAGE}
            s_lshl_b32 s3, {sW}, 7
            v_add_u32 {t0}, s3, {vL}
            v_mul_u32_u24 {t0}, 3584, {t0}
            s_lshl_b32 s3, {self.sPhi}, 4
            v_add_u32 {self.vWg}, s3, {t0}
            """)
            self.weights_dma(A, 0, 0, 4)
            A(f"""
            v_bfe_u32 {t0}, {vI}, 1, 1
            v_mul_u32_u24 {t0}, 2112, {t0}
            v_and_b32 {t1}, 1, {vI}
            v_lshl_add_u32 {t0}, {t1}, 3, {t0}
            v_lshrrev_b32 {t1}, 2, {vI}
            v_lshl_add_u32 {t1}, {vG}, 3, {t1}
            v_lshl_add_u32 {t0}, {t1}, 4, {t0}
            v_add_u32 {vTr}, {self.sWb}, {t0}
            """)
        else:
            A(f"""
            s_mul_i32 {self.sWb}, {sW}, 14336
            s_add_u32 {self.sWb}, {self.sWb}, {L_STAGE}
            s_mul_i32 s3, {sW}, 448
            v_lshrrev_b32 {t0}, 1, {vL}
            v_add_u32 {t0}, s3, {t0}
            v_lshlrev_b32 {t0}, 10, {t0}
            v_and_b32 {t1}, 1, {vL}
            v_lshl_add_u32 {t0}, {t1}, 4, {t0}
            s_sub_u32 s3, {self.sPhi}, 224
            s_lshl_b32 s3, s3, 5
            v_add_u32 {self.vWg}, s3, {t0}
            """)
            self.weights_dma(A, 1, 0, 7)
            A(f"""
            v_and_b32 {t0}, 3, {vI}
            v_lshlrev_b32 {t0}, 3, {t0}
            v_lshrrev_b32 {t1}, 2, {vI}
            v_lshl_add_u32 {t1}, {vG}, 3, {t1}
            v_lshl_add_u32 {t0}, {t1}, 5, {t0}
            v_add_u32 {vTr}, {self.sWb}, {t0}
            """)
        vSW, vHw, vHr, vKw, vS3o, vS3i, vRo = get(), get(), get(), get(), get(), get(), get()
        for k in range(8):
            A(f"v_dot2_f32_bf16 {vSW}, {self.WR[k]}, {self.sOnes}, {vSW if k else 0}")
        self.allreduce(A, "v_add_f32", [vSW], 32)
        A(f"""
        v_lshlrev_b32 {vHw}, 2, v0
        v_and_b32 {t0}, 31, v0
        v_lshlrev_b32 {t0}, 4, {t0}
        v_lshl_add_u32 {vHr}, {self.vTau}, 10, {t0}
        v_lshlrev_b32 {vKw}, 2, {self.vTau}
        s_lshl_b32 s3, {sW}, 13
        s_lshl_b32 s16, {sL}, 4
        s_add_u32 s3, s3, s16
        s_add_u32 s3, s3, {WS_S3}
        v_lshl_add_u32 {vS3o}, {vL}, 12, s3
        s_lshr_b32 s3, {sL}, 5
        s_lshl_b32 s3, s3, 12
        s_add_u32 s16, s3, {WS_S3}
        v_lshl_add_u32 {vS3i}, v0, 4, s16
        s_lshl_b32 s16, {sL}, 11
        s_add_u32 s16, s16, {WS_ROWS}
        v_add_u32 {vRo}, s16, {t0}
        """)
        A.wait_tag("s2st")
        self.stamp(9, A)
        ZT = self.ZT

        def s2_loads(C):
            C(f"global_load_dwordx4 {ZT[0:4]}, {self.vS2i}, s[30:31] sc1")
            C(f"global_load_dwordx4 {ZT[4:8]}, {self.vS2i2}, s[30:31] sc1")
        s2_loads(A)
        if role == 1:
            self.weights_dma(A, 1, 7, 14)

        def poison_check(regs):
            def chk(C):
                r = list(regs)
                if len(r) == 1:
                    C(f"v_cmp_eq_u32 vcc, -1, {r[0]}")
                    return
                C(f"v_max3_u32 {t0}, {r[0]}, {r[1]}, {r[2] if len(r) > 2 else r[1]}")
                r = r[3:]
                while r:
                    C(f"v_max3_u32 {t0}, {t0}, {r[0]}, {r[1] if len(r) > 1 else r[0]}")
                    r = r[2:]
                C(f"v_cmp_eq_u32 vcc, -1, {t0}")
            return chk
        self.poll(A, "s2" + sfx, s2_loads, poison_check([ZT[k] for k in range(8)]))
        self.stamp(10, A)
        HP = get(4)
        T = get(8)
        for grp in range(2):
            for jj in range(4):
                j = 4 * grp + jj
                sel = self.sHi if j % 2 else self.sLo
                A(f"v_dot2_f32_bf16 {T[2 * jj]}, {ZT[j // 2]}, {sel}, {self.XL[j]}")
                A(f"v_dot2_f32_bf16 {T[2 * jj + 1]}, {ZT[4 + j // 2]}, {sel}, {self.XH[j]}")
            for jj in range(4):
                j = 4 * grp + jj
                A(f"v_cvt_pk_bf16_f32 {HP[jj]}, {T[2 * jj]}, {T[2 * jj + 1]}")
                A(f"ds_write_b32 {vHw}, {HP[jj]} offset:{L_H + 1024 * j}")
        A.barrier()
        HB = get(8)
        A(f"ds_read_b128 {HB[0:4]}, {vHr} offset:{L_H}\nds_read_b128 {HB[4:8]}, {vHr} offset:{L_H + 512}")
        s1, s2, s3, NM, RS, key = get(), get(), get(), get(2), get(2), get()
        A(f"s_lshl_b32 s3, {sL}, 3\ns_sub_u32 s3, 2047, s3\nv_sub_u32 {t2}, s3, {self.vTau}")
        for k in range(8):
            A(f"v_dot2_f32_bf16 {s1}, {HB[k]}, {self.sOnes}, {s1 if k else 0}")
            A(f"v_dot2_f32_bf16 {s2}, {HB[k]}, {HB[k]}, {s2 if k else 0}")
            A(f"v_dot2_f32_bf16 {s3}, {HB[k]}, {self.WR[k]}, {s3 if k else 0}")
        self.allreduce(A, "v_add_f32", [s1, s2, s3], 32)
        self.ln_stats(A, s1, s2, NM[0], RS[0])
        A(f"v_fma_f32 {s3}, {NM[0]}, {vSW}, {s3}\nv_mul_f32 {s3}, {s3}, {RS[0]}")
        self.rnd(A, s3, s3)
        A(f"""
        v_ashrrev_i32 {t1}, 31, {s3}
        v_or_b32 {t1}, 0x80000000, {t1}
        v_xor_b32 {t1}, {s3}, {t1}
        v_and_b32 {t1}, 0xffff0000, {t1}
        v_or_b32 {key}, {t1}, {t2}
        s_mov_b64 exec, 1
        s_bitset1_b64 exec, 32
        ds_write_b32 {vKw}, {key} offset:{L_KEY}
        s_mov_b64 exec, -1
        v_mov_b32 {t1}, 0
        """)
        H32 = get(16)
        for k in range(8):
            A(f"v_lshlrev_b32 {H32[2 * k]}, 16, {HB[k]}\nv_and_b32 {H32[2 * k + 1]}, 0xffff0000, {HB[k]}")
        A.barrier()
        kmax = get()
        A(f"ds_read_b128 {T[0:4]}, {t1} offset:{L_KEY}\nds_read_b128 {T[4:8]}, {t1} offset:{L_KEY + 16}")
        A(f"v_max3_u32 {kmax}, {T[0]}, {T[1]}, {T[2]}\nv_max3_u32 {t0}, {T[3]}, {T[4]}, {T[5]}")
        A(f"v_max3_u32 {kmax}, {kmax}, {T[6]}, {T[7]}\nv_max_u32 {kmax}, {kmax}, {t0}")
        A("s_mov_b64 exec, 3")
        A(f"global_store_dword {vS3o}, {kmax}, s[30:31] sc1", tag="s3st")
        A("s_mov_b64 exec, -1")
        self.stamp(11, A)
        sC = self.sC
        A(f"v_cmp_eq_u32 {sC}, {key}, {kmax}")
        HN, D = get(8), get(16)
        A(f"v_mov_b32 {NM[1]}, {NM[0]}\nv_mov_b32 {RS[1]}, {RS[0]}")
        for k in range(8):
            A(f"v_pk_add_f32 {D[2 * k:2 * k + 2]}, {H32[2 * k:2 * k + 2]}, {NM}")
        for k in range(16):
            self.rnd(A, D[k], D[k])
        for k in range(8):
            A(f"v_pk_mul_f32 {D[2 * k:2 * k + 2]}, {D[2 * k:2 * k + 2]}, {RS}")
        for k in range(8):
            A(f"v_cvt_pk_bf16_f32 {HN[k]}, {D[2 * k]}, {D[2 * k + 1]}")
        A(f"s_mov_b64 exec, {sC}")
        A(f"global_store_dwordx4 {vRo}, {HN[0:4]}, s[30:31] sc1", tag="s3st")
        A(f"global_store_dwordx4 {vRo}, {HN[4:8]}, s[30:31] offset:512 sc1", tag="s3st")
        A(f"global_store_dwordx4 {vRo}, {HB[0:4]}, s[30:31] offset:1024 sc1", tag="s3st")
        A(f"global_store_dwordx4 {vRo}, {HB[4:8]}, s[30:31] offset:1536 sc1", tag="s3st")
        A("s_mov_b64 exec, -1")
        O = get(8)
        for k in range(8):
            A(f"v_dot2_f32_bf16 {D[2 * k]}, {HN[k]}, {self.sLo}, {H32[2 * k]}")
            A(f"v_dot2_f32_bf16 {D[2 * k + 1]}, {HN[k]}, {self.sHi}, {H32[2 * k + 1]}")
        for k in range(8):
            A(f"v_cvt_pk_bf16_f32 {O[k]}, {D[2 * k]}, {D[2 * k + 1]}")
        pol = self.o["out_pol"]

        def out_stores(C):
            C(f"global_store_dwordx4 {self.vRow}, {O[0:4]}, s[28:29] {pol}", tag="out")
            C(f"global_store_dwordx4 {self.vRow}, {O[4:8]}, s[28:29] offset:512 {pol}", tag="out")
        nw = 4 if role == 0 else 14
        WT = [self.AC.get(4, 4) for _ in range(nw)]

        def tr_reads():
            A.wait_tag("dma")
            for m in range(nw):
                for e2 in range(2):
                    off = (32 * m + 4 * e2) * (16 if role == 0 else 32)
                    A(f"ds_read_b64_tr_b16 {WT[m][2 * e2:2 * e2 + 2]}, {vTr} offset:{off}")
        if role == 0:
            tr_reads()
        A.wait(vm=0)
        self.stamp(12, A)
        kin = get()

        def s3_loads(C):
            C(f"global_load_dword {kin}, {vS3i}, s[30:31] sc1")
        s3_loads(A)
        if role == 0:
            A(f"s_andn2_b64 exec, -1, {sC}")
            out_stores(A)
            A("s_mov_b64 exec, -1")
        A(f"v_lshlrev_b32 {t1}, 2, v0\nv_lshrrev_b32 {t1}, 6, {t1}\nv_and_b32 {t1}, 12, {t1}\nv_mov_b32 {t2}, 0")
        self.poll(A, "s3" + sfx, s3_loads, poison_check([kin]))
        self.allreduce(A, "v_max_u32", [kin], 64)
        A(f"s_mov_b64 exec, 1\nds_write_b32 {t1}, {kin} offset:{L_KEY2}\ns_mov_b64 exec, -1")
        A.barrier()
        A(f"ds_read_b128 {T[0:4]}, {t2} offset:{L_KEY2}")
        A(f"v_max3_u32 {kin}, {T[0]}, {T[1]}, {T[2]}\nv_max_u32 {kin}, {kin}, {T[3]}")
        sK, sT = self.sK, self.sT
        A(f"v_readfirstlane_b32 {sK}, {kin}")
        A(f"s_and_b32 {sT}, {sK}, 0x7ff\ns_sub_u32 {sT}, 2047, {sT}")
        self.stamp(13, A)
        A(f"s_lshr_b32 s3, {sT}, 3\ns_lshl_b32 s3, s3, 11\ns_add_u32 s3, s3, {WS_ROWS}")
        XS = get(4)
        vRed = get()
        if role == 0:
            A(f"""
            s_lshl_b32 s16, {sW}, 8
            s_add_u32 s3, s3, s16
            v_and_b32 {t1}, 3, {vI}
            v_lshlrev_b32 {t1}, 6, {t1}
            v_lshl_add_u32 {t1}, {vG}, 4, {t1}
            v_add_u32 {t1}, s3, {t1}
            """)

            def row_loads(C):
                C(f"global_load_dwordx4 {XS}, {t1}, s[30:31] sc1")
            row_loads(A)
            A(f"v_cmp_ne_u32 vcc, {kin}, {kmax}\ns_and_b64 exec, vcc, {sC}")
            out_stores(A)
            A("s_mov_b64 exec, -1")
            A(f"s_lshl_b32 s3, {sW}, 2\nv_lshl_add_u32 {vRed}, {vI}, 4, s3")
            self.poll(A, "row" + sfx, row_loads, poison_check([XS[k] for k in range(4)]))
            self.stamp(14, A)
            for m in range(4):
                A(f"v_mfma_f32_16x16x32_bf16 {D[4 * m:4 * m + 4]}, {XS}, {WT[m]}, 0")
            A(f"""
            v_and_b32 {t1}, 7, {vL}
            v_lshlrev_b32 {t1}, 4, {t1}
            v_lshrrev_b32 {t2}, 3, {vL}
            s_lshl_b32 s3, {self.sPhi}, 4
            s_add_u32 s3, s3, {WS_S4}
            v_lshl_add_u32 {t2}, {t2}, 12, s3
            v_add_f32 {t0}, {D[0]}, {D[5]}
            v_add_f32 {t0}, {t0}, {D[10]}
            v_add_f32 {t0}, {t0}, {D[15]}
            s_mov_b64 exec, 0xffff
            ds_write_b32 {vRed}, {t0} offset:{L_RED}
            s_mov_b64 exec, -1
            """)
            A.barrier()
            A(f"s_cmp_eq_u32 {sW}, 0\ns_cbranch_scc0 L_fin_{sfx}")
            A(f"ds_read_b128 {T[0:4]}, {t1} offset:{L_RED}\nds_read_b128 {T[4:8]}, {t1} offset:{L_RED + 128}")
            A(f"v_pk_add_f32 {T[0:2]}, {T[0:2]}, {T[2:4]}\nv_pk_add_f32 {T[4:6]}, {T[4:6]}, {T[6:8]}")
            A(f"v_add_f32 {T[0]}, {T[0]}, {T[1]}\nv_add_f32 {T[4]}, {T[4]}, {T[5]}")
            self.rnd(A, T[0], T[0])
            self.rnd(A, T[4], T[4])
            A(f"v_mul_f32 {t0}, {LOG2E | 0x80000000}, {T[0]}\nv_exp_f32 {t0}, {t0}\nv_add_f32 {t0}, 1.0, {t0}")
            A(f"v_rcp_f32 {t0}, {t0}\nv_mul_f32 {t0}, {T[0]}, {t0}")
            self.rnd(A, t0, t0)
            A(f"v_mul_f32 {t0}, {t0}, {T[4]}")
            A(f"v_mov_b32_dpp {t1}, {t0} row_shl:1 row_mask:0xf bank_mask:0xf")
            A(f"v_cvt_pk_bf16_f32 {XS[0]}, {t0}, {t1}")
            for k in range(1, 4):
                A(f"v_mov_b32_dpp {XS[k]}, {XS[0]} row_shl:{2 * k} row_mask:0xf bank_mask:0xf")
            A("s_mov_b32 exec_lo, 0x01010101\ns_mov_b32 exec_hi, 0x01010101")
            A(f"global_store_dwordx4 {t2}, {XS}, s[30:31] sc1")
            self.stamp(15, A)
        else:
            HH = get(2)
            A(f"""
            s_sub_u32 s16, {self.sPhi}, 224
            s_lshl_b32 s16, s16, 5
            s_add_u32 s3, s3, s16
            v_lshrrev_b32 {t1}, 1, {vI}
            v_lshl_add_u32 {t1}, {t1}, 2, s3
            """)

            def row_loads(C):
                C(f"global_load_dword {HH[0]}, {t1}, s[30:31] sc1")
                C(f"global_load_dword {HH[1]}, {t1}, s[30:31] offset:1024 sc1")
            row_loads(A)
            self.poll(A, "row" + sfx, row_loads, poison_check([HH[0], HH[1]]))
            self.stamp(14, A)
            A(f"v_cmp_eq_u32 vcc, {kin}, {key}\ns_andn2_b64 exec, -1, vcc")
            out_stores(A)
            A("s_mov_b64 exec, 1")
            A(f"v_mov_b32 {t0}, {self.sE}\nv_mov_b32 {t2}, 0")
            A(f"global_store_dword {t2}, {t0}, s[30:31] offset:{WS_EPOCH}")
            A("s_mov_b64 exec, -1")
            tr_reads()
            vSig, vOut, vS4i = get(), get(), get()
            A(f"""
            s_and_b32 s16, {sK}, 0x7fff0000
            s_andn2_b32 s17, 0xffff0000, {sK}
            s_bitcmp1_b32 {sK}, 31
            s_cselect_b32 s16, s16, s17
            v_mov_b32 {t0}, s16
            v_mul_f32 {t0}, {LOG2E | 0x80000000}, {t0}
            v_exp_f32 {t0}, {t0}
            v_add_f32 {t0}, 1.0, {t0}
            v_rcp_f32 {t0}, {t0}
            """)
            self.rnd(A, vSig, t0)
            A(f"""
            v_and_b32 {t0}, 1, {vI}
            v_xor_b32 {t0}, 1, {t0}
            v_lshlrev_b32 {t0}, 4, {t0}
            v_lshlrev_b32 {HH[0]}, {t0}, {HH[0]}
            v_lshlrev_b32 {HH[1]}, {t0}, {HH[1]}
            v_and_b32 {HH[0]}, 0xffff0000, {HH[0]}
            v_and_b32 {HH[1]}, 0xffff0000, {HH[1]}
            s_lshl_b32 s3, {sT}, 10
            s_sub_u32 s16, {self.sPhi}, 224
            s_lshl_b32 s16, s16, 5
            s_add_u32 s3, s3, s16
            v_lshl_add_u32 {vOut}, {vI}, 1, s3
            s_lshr_b32 s3, {sL}, 5
            s_lshl_b32 s3, s3, 12
            s_mul_i32 s16, {sW}, {56 * 16}
            s_add_u32 s3, s3, s16
            s_add_u32 s3, s3, {WS_S4}
            v_min_u32 {t0}, 13, {vI}
            v_lshl_add_u32 {t0}, {t0}, 2, {vG}
            v_lshl_add_u32 {vS4i}, {t0}, 4, s3
            s_lshl_b32 s3, {sW}, 2
            v_lshl_add_u32 {vRed}, {vI}, 4, s3
            v_mov_b32 {t2}, 0
            """)
            A.wait(vm=0)

            def s4_loads(C):
                C(f"global_load_dwordx4 {XS}, {vS4i}, s[30:31] sc1")
            s4_loads(A)
            self.poll(A, "s4", s4_loads, poison_check([XS[k] for k in range(4)]))
            self.stamp(15, A)
            DD = [get(4) for _ in range(6)]
            for m in range(14 + 3):
                if m < 14:
                    A(f"v_mfma_f32_16x16x32_bf16 {DD[m % 6]}, {XS}, {WT[m]}, 0")
                k = m - 3
                if k >= 0:
                    A(f"v_add_f32_dpp {t2}, {DD[k % 6][k % 4]}, {t2} quad_perm:[0,1,2,3] row_mask:{1 << (k // 4)} bank_mask:0xf")
            for sw in ("v_permlane16_swap_b32", "v_permlane32_swap_b32"):
                A(f"v_mov_b32 {t0}, {t2}\n{sw} {t2}, {t0}\nv_add_f32 {t2}, {t2}, {t0}")
            A(f"s_mov_b64 exec, 0xffff\nds_write_b32 {vRed}, {t2} offset:{L_RED}\ns_mov_b64 exec, -1")
            A(f"v_lshlrev_b32 {t1}, 4, {vI}")
            A.barrier()
            A(f"s_cmp_eq_u32 {sW}, 0\ns_cbranch_scc0 L_fin_{sfx}")
            A(f"ds_read_b128 {T[0:4]}, {t1} offset:{L_RED}")
            A(f"v_pk_add_f32 {T[0:2]}, {T[0:2]}, {T[2:4]}\nv_add_f32 {t0}, {T[0]}, {T[1]}")
            self.rnd(A, t0, t0)
            A(f"v_mul_f32 {t0}, {t0}, {vSig}")
            self.rnd(A, t0, t0)
            A(f"v_add_f32 {t0}, {t0}, {HH[0]}")
            self.rnd(A, t0, t0)
            A(f"v_add_f32 {t0}, {t0}, {HH[1]}")
            self.rnd(A, t0, t0)
            A("s_mov_b64 exec, 0xffff")
            A(f"global_store_short_d16_hi {vOut}, {t0}, s[28:29]")
            self.stamp(16, A)
        A.flush()
        A.label(f"L_fin_{sfx}")
        if self.o["stamps"]:
            A.wait(vm=0)
            self.stamp(17, A)
            A("s_waitcnt vmcnt(0) lgkmcnt(0)")
            self.dump_stamps(A)
        A("s_endpgm")
        V.put(*got)
        self.AC.put(*WT)

    def build(self):
        A = self.A
        self.prologue()
        self.ln1()
        self.warm()
        self.kgen()
        self.s1_consume()
        self.conv_both()
        self.sWb, self.sC, self.sK, self.sT = self.S.get(), self.S.get(2), self.S.get(), self.S.get()
        A(f"s_cmp_eq_u32 {self.sRole}, 0\ns_cbranch_scc0 L_role1")
        B = A.fork()
        self.tail(A, 0)
        B.label("L_role1")
        self.tail(B, 1)
        body = A.text() + B.text() + "".join(c.text() for c in self.cold)
        nv = self.V.top + 1
        accum = (nv + 3) // 4 * 4
        total = max(accum + self.AC.top + 1, 264)
        head = open(f"cdna_kernels/{NAME}.s.ref").read().split("; Override launch geometry")[0]
        self.stats = dict(instr=A.count + B.count, nops=A.nops + B.nops, vgpr=nv, agpr=self.AC.top + 1, mfma=self.nmfma)
        return head + f"""; One persistent launch: 256 workgroups, one per CU, exchanging data through d_ws.
; @launch grid=(256,1,1) block=(256,1,1) lds={LDS_BYTES}
.amdgcn_target "amdgcn-amd-amdhsa--gfx950"
.text
.globl {NAME}_kernel
.p2align 8
.type {NAME}_kernel,@function
{NAME}_kernel:
{body}L_end:
    s_endpgm
L_code_end:
.section .rodata,"a"
.p2align 6
.amdhsa_kernel {NAME}_kernel
  .amdhsa_next_free_vgpr {total}
  .amdhsa_next_free_sgpr 102
  .amdhsa_accum_offset {accum}
  .amdhsa_group_segment_fixed_size 0
  .amdhsa_kernarg_size 120
  .amdhsa_user_sgpr_count 2
  .amdhsa_user_sgpr_kernarg_segment_ptr 1
  .amdhsa_system_sgpr_workgroup_id_x 1
  .amdhsa_float_denorm_mode_32 3
.end_amdhsa_kernel
"""


def generate(path, **opt):
    g = Gen(**opt)
    text = g.build()
    open(path, "w").write(text)
    return g.stats


if __name__ == "__main__":
    out = sys.argv[1] if len(sys.argv) > 1 else f"cdna_kernels/{NAME}.s"
    opts = {}
    for a in sys.argv[2:]:
        k, v = a.split("=")
        opts[k] = {"True": True, "False": False}.get(v, int(v) if v.isdigit() else v)
    print(generate(out, **opts))
```

```python
import sys
from asmdsl import Asm, Pool, R

NAME = "sequential_preLN__ssm_conv_s4d__moe_arch_mod__prompt"

WS_EPOCH = 0
WS_S3 = 0x8000
WS_S4 = 0x10000
WS_ROWS = 0x20000
WS_S1 = 0x100000
WS_S2 = 0x300000
WS_STAMP = 0x600000

ROWB = 544
STAGE_CH = 57 * ROWB
L_K = 0
KCOPY = 2112
KCH = 4 * KCOPY
L_U = L_K + 2 * KCH
UCH = 4672
L_Z = 26368
L_H = L_Z + 8192
L_ST = L_H + 8192
L_KEY = L_ST + 64
L_KEY2 = L_KEY + 32
L_RED = L_KEY2 + 32
L_STAGE = 43520
LDS_BYTES = L_STAGE + 2 * STAGE_CH
assert L_U + UCH + 4608 <= L_Z and L_RED + 512 <= L_STAGE and L_STAGE % 256 == 0

NX = 560
V2 = [608 + 64 * s for s in range(4)]
V3 = [864 + 80 * s for s in range(2)]
TAGMASK = 0x40074007
LOG2E = 0x3FB8AA3B
INV2PI = 0x3E22F983
SPIN_MAX = 1 << 14

DEFAULTS = dict(stamps=False, s1_at="mfma", warm=True, out_pol="sc1", pf_code=True, dbg=False)


class Gen:
    def __init__(self, **opt):
        self.o = dict(DEFAULTS)
        self.o.update(opt)
        self.A = Asm()
        self.V = Pool("v", 1, 255)
        self.AC = Pool("a", 0, 255)
        self.S = Pool("s", 32, 63)
        self.cold = []
        self.nstamp = 0

    def stamp(self, i, A=None):
        if self.o["stamps"]:
            (A or self.A)(f"s_memrealtime s[{64 + 2 * i}:{65 + 2 * i}]")
            self.nstamp = max(self.nstamp, i + 1)

    def dump_stamps(self, A):
        if not self.o["stamps"]:
            return
        if self.o["dbg"]:
            self.dump_debug(A)
            return
        a, d = self.V.get(), self.V.get(2)
        A("s_mov_b64 exec, 1")
        A.wait(lg=0)
        A(f"s_lshl_b32 s3, {self.sL}, 2\ns_add_u32 s3, s3, {self.sW}\ns_lshl_b32 s3, s3, 8\ns_add_u32 s3, s3, {WS_STAMP}")
        A(f"v_mov_b32 {a}, s3")
        for i in range(19):
            A(f"v_mov_b32 {d[0]}, s{64 + 2 * i}\nv_mov_b32 {d[1]}, s{65 + 2 * i}")
            A(f"global_store_dwordx2 {a}, {d}, s[30:31] offset:{8 * i}")
            A.wait(vm=0)
        self.V.put(a, d)

    def dump_debug(self, A):
        a, d = self.V.get(), self.V.get()
        n = getattr(self, "ndbg", 0)
        self.ndbg = n + 1
        A("s_mov_b64 exec, 1")
        A(f"s_cmp_eq_u32 {self.sL}, 255\ns_cbranch_scc0 L_dbg{n}\ns_cmp_eq_u32 {self.sW}, 0\ns_cbranch_scc0 L_dbg{n}")
        A("s_load_dwordx2 s[4:5], s[0:1], 104")
        A.wait(lg=0)
        A(f"v_mov_b32 {a}, 0")
        for i in range(1, 17):
            A(f"s_sub_u32 s3, s{64 + 2 * (i + 1)}, s64\nv_mov_b32 {d}, s3")
            A(f"global_store_dword {a}, {d}, s[4:5] offset:{4 * (i - 1)}")
        A.label(f"L_dbg{n}")
        self.V.put(a, d)

    def rnd(self, A, dst, src, neg=False):
        A(f"v_cvt_pk_bf16_f32 {dst}, 0, {'-' if neg else ''}{src}")

    def allreduce(self, A, op, regs, width):
        steps = ["quad_perm:[1,0,3,2]", "quad_perm:[2,3,0,1]", "row_half_mirror", "row_mirror"]
        for st in steps:
            for r in regs:
                A(f"{op}_dpp {r}, {r}, {r} {st} row_mask:0xf bank_mask:0xf")
        tmp = [self.V.get() for _ in regs]
        for w, sw in ((32, "v_permlane16_swap_b32"), (64, "v_permlane32_swap_b32")):
            if width >= w:
                for r, t in zip(regs, tmp):
                    A(f"v_mov_b32 {t}, {r}")
                for r, t in zip(regs, tmp):
                    A(f"{sw} {r}, {t}")
                for r, t in zip(regs, tmp):
                    A(f"{op} {r}, {r}, {t}")
        self.V.put(*tmp)

    def ln_stats(self, A, s1, s2, nm, rs):
        t = self.V.get()
        A(f"v_mul_f32 {s1}, 0x3b000000, {s1}")
        A(f"v_mul_f32 {s2}, 0x3b000000, {s2}")
        A(f"v_fma_f32 {t}, -{s1}, {s1}, {s2}")
        A(f"v_max_f32 {t}, 0, {t}")
        self.rnd(A, t, t)
        self.rnd(A, nm, s1, neg=True)
        A(f"v_add_f32 {t}, 0x3727c5ac, {t}")
        self.rnd(A, t, t)
        A(f"v_sqrt_f32 {t}, {t}")
        self.rnd(A, t, t)
        A(f"v_rcp_f32 {rs}, {t}")
        self.V.put(t)

    def poll(self, A, name, loads, check):
        check(A)
        A(f"s_cbranch_vccnz L_{name}_slow")
        A.label(f"L_{name}_ok")
        C = Asm()
        C.label(f"L_{name}_slow")
        C("s_mov_b32 s3, 0")
        C.label(f"L_{name}_loop")
        C("s_waitcnt vmcnt(0)")
        C("s_nop 1")
        loads(C)
        C(f"s_add_u32 s3, s3, 1\ns_cmp_ge_u32 s3, {SPIN_MAX}")
        C("s_cselect_b32 s18, 0, -1\ns_mov_b32 s19, s18")
        check(C)
        C.wait(vm=0)
        C("s_nop 1")
        C("s_and_b64 vcc, vcc, s[18:19]")
        C(f"s_cbranch_vccnz L_{name}_loop")
        C("s_nop 3")
        C(f"s_branch L_{name}_ok")
        self.cold.append(C)

    def prologue(self):
        A, V, S = self.A, self.V, self.S
        A("s_cmp_ge_u32 s2, 0x100\ns_cbranch_scc1 L_end")
        A("s_load_dwordx16 s[4:19], s[0:1], 0\ns_load_dwordx8 s[20:27], s[0:1], 64")
        A("s_load_dwordx2 s[28:29], s[0:1], 96\ns_load_dwordx2 s[30:31], s[0:1], 112")
        self.stamp(0)
        self.sL, self.sW, self.sTag, self.sE = S.get(), S.get(), S.get(), S.get()
        self.sOnes, self.sLo, self.sHi, self.sCh = S.get(), S.get(), S.get(), S.get()
        sL, sW = self.sL, self.sW
        self.vL = V.get()
        self.vI = V.get()
        self.vG = V.get()
        t0, t1, t2 = V.get(), V.get(), V.get()
        A(f"""
        s_and_b32 s3, s2, 7
        s_lshl_b32 s3, s3, 5
        s_lshr_b32 {sL}, s2, 3
        s_add_u32 {sL}, {sL}, s3
        v_lshrrev_b32 {t0}, 6, v0
        v_and_b32 {self.vL}, 63, v0
        v_readfirstlane_b32 {sW}, {t0}
        v_and_b32 {self.vI}, 15, v0
        v_bfe_u32 {self.vG}, v0, 4, 2
        """)
        self.vRow = V.get()
        vXa = V.get()
        A(f"""
        v_lshrrev_b32 {t0}, 5, v0
        v_and_b32 {t1}, 31, v0
        v_lshlrev_b32 {t0}, 10, {t0}
        s_lshl_b32 s3, {sL}, 13
        v_lshl_add_u32 {t0}, {t1}, 4, {t0}
        v_add_u32 {self.vRow}, s3, {t0}
        v_lshl_add_u32 {vXa}, v0, 2, s3
        """)
        A(f"""
        s_lshr_b32 s3, {sL}, 6
        s_lshl_b32 {self.sCh}, s3, 7
        s_and_b32 s3, {sL}, 31
        s_lshl_b32 s3, s3, 2
        s_add_u32 {self.sCh}, {self.sCh}, s3
        s_bfe_u32 s3, {sL}, 0x10005
        s_add_u32 {self.sCh}, {self.sCh}, s3
        s_and_b32 s3, {sW}, 2
        s_add_u32 {self.sCh}, {self.sCh}, s3
        """)
        vP, vC, vXb = V.get(), V.get(), V.get()
        A(f"""
        s_lshl_b32 s3, {self.sCh}, 8
        v_lshl_add_u32 {vP}, {self.vL}, 2, s3
        s_lshl_b32 s3, {self.sCh}, 1
        v_mov_b32 {vC}, s3
        v_add_u32 {vXb}, 0x1000, {vXa}
        v_lshlrev_b32 {t1}, 4, {t1}
        """)
        self.XB = V.get(8)
        self.XA = V.get(8)
        self.PAR = V.get(6)
        self.WR = V.get(8)
        A(f"global_load_dwordx4 {self.XB[0:4]}, {self.vRow}, s[4:5]")
        A(f"global_load_dwordx4 {self.XB[4:8]}, {self.vRow}, s[4:5] offset:512")
        A(f"s_load_dword {self.sE}, s[30:31], {WS_EPOCH}")
        self.stamp(1)
        for j in range(8):
            A(f"global_load_dword {self.XA[j]}, {vXa if j < 4 else vXb}, s[4:5] offset:{1024 * (j % 4)}")
        for k in range(4):
            A(f"global_load_dword {self.PAR[k]}, {vP}, s[{6 + 2 * k}:{7 + 2 * k}]")
        A(f"global_load_ushort {self.PAR[4]}, {vC}, s[14:15]")
        A(f"global_load_ushort {self.PAR[5]}, {vC}, s[16:17]")
        A(f"global_load_dwordx4 {self.WR[0:4]}, {t1}, s[20:21]")
        A(f"global_load_dwordx4 {self.WR[4:8]}, {t1}, s[20:21] offset:512")
        self.vJunk = V.get(4)
        if self.o["pf_code"]:
            A("s_getpc_b64 s[14:15]")
            A.label("L_pc")
            A(f"v_lshlrev_b32 {t0}, 7, v0")
            A(f"v_min_u32 {t0}, L_code_end-L_pc-4, {t0}")
            A(f"global_load_dword {self.vJunk[0]}, {t0}, s[14:15]")
        V.put(vXa, vXb, vP, vC)
        M1 = V.get(4)
        self.vS2o = V.get()
        self.vS2o2 = V.get()
        for k in range(4):
            A(f"v_mov_b32 {M1[k]}, -1")
        A(f"""
        s_lshl_b32 s3, {sL}, 13
        s_add_u32 s3, s3, {WS_S2}
        v_lshl_add_u32 {self.vS2o}, v0, 4, s3
        v_add_u32 {self.vS2o2}, 0x1000, {self.vS2o}
        """)
        A(f"s_lshl_b32 s16, {sW}, 11\ns_add_u32 s3, s3, s16\nv_lshl_add_u32 {t0}, {self.vL}, 4, s3")
        A(f"global_store_dwordx4 {t0}, {M1}, s[30:31] sc1", tag="poison")
        A(f"global_store_dwordx4 {t0}, {M1}, s[30:31] offset:1024 sc1", tag="poison")
        self.sPhi, self.sRole = S.get(), S.get()
        A(f"""
        s_lshr_b32 s3, {sL}, 5
        s_and_b32 s16, {sL}, 31
        s_mul_i32 s17, s3, 28
        s_add_u32 s17, s17, s16
        s_lshl_b32 s3, s3, 2
        s_add_u32 s3, s3, s16
        s_add_u32 s3, s3, {224 - 28}
        s_cmp_ge_u32 s16, 28
        s_cselect_b32 {self.sPhi}, s3, s17
        s_cselect_b32 {self.sRole}, 1, 0
        """)
        A(f"""
        s_lshl_b32 s3, {sL}, 11
        s_add_u32 s3, s3, {WS_ROWS}
        v_lshl_add_u32 {t0}, v0, 4, s3
        s_lshl_b32 s16, {sL}, 4
        s_add_u32 s16, s16, {WS_S3}
        s_lshl_b32 s17, {self.sPhi}, 4
        s_add_u32 s17, s17, {WS_S4}
        s_cmp_eq_u32 {sW}, 2
        s_cselect_b32 s16, s16, s17
        v_lshl_add_u32 {t1}, {self.vL}, 12, s16
        s_cmp_lt_u32 {sW}, 2
        s_cselect_b64 vcc, -1, 0
        v_cndmask_b32 {t0}, {t1}, {t0}, vcc
        s_cselect_b64 exec, -1, 0xff
        """)
        A(f"global_store_dwordx4 {t0}, {M1}, s[30:31] sc1", tag="poison")
        A("s_mov_b64 exec, -1")
        Z = V.get(4)
        for k in range(4):
            A(f"v_mov_b32 {Z[k]}, 0")
        A(f"""
        v_lshrrev_b32 {t0}, 7, v0
        v_and_b32 {t1}, 127, v0
        v_mul_u32_u24 {t0}, {KCH}, {t0}
        v_lshl_add_u32 {t0}, {t1}, 4, {t0}
        ds_write_b128 {t0}, {Z} offset:{L_K}
        v_lshrrev_b32 {t2}, 7, v0
        v_mul_u32_u24 {t2}, {UCH}, {t2}
        v_lshl_add_u32 {t2}, {t1}, 2, {t2}
        ds_write_b32 {t2}, {Z[0]} offset:{L_U}
        """)
        self.vShift = V.get()
        A(f"v_mov_b32 {self.vShift}, {t0}")
        V.put(M1, Z)
        A(f"s_mov_b32 {self.sOnes}, 0x3f803f80\ns_mov_b32 {self.sLo}, 0x3f80\ns_mov_b32 {self.sHi}, 0x3f800000")
        self.consts(t0, t1, t2)
        V.put(t0, t1, t2)

    def consts(self, t0, t1, t2):
        A, V, S = self.A, self.V, self.S
        vI, vG, vL, sW, sL = self.vI, self.vG, self.vL, self.sW, self.sL
        self.BAND = {}
        A(f"v_lshlrev_b32 {t0}, 3, {vG}\nv_sub_u32 {t0}, {vI}, {t0}")
        for (delta, h) in ((12, 1), (8, 2), (4, 1), (8, 3), (8, 4)):
            B = V.get(4)
            self.BAND[(delta, h)] = B
            win = (1 << (2 * h + 1)) - 1
            A(f"v_add_u32 {t1}, {delta - h + 12}, {t0}")
            A(f"v_med3_i32 {t1}, {t1}, 0, 22")
            A(f"v_mov_b32 {t2}, {win}")
            A(f"v_lshlrev_b32 {t1}, {t1}, {t2}")
            for d in range(4):
                A(f"v_bfe_u32 {t2}, {t1}, {12 + 2 * d}, 2")
                A(f"v_mul_u32_u24 {t2}, 0x8001, {t2}")
                A(f"v_and_b32 {t2}, 0x10001, {t2}")
                A(f"v_mul_u32_u24 {B[d]}, 0x3c00, {t2}")
        sB, sH = S.get(), S.get()
        self.sB, self.sH = sB, sH
        A(f"s_lshr_b32 {sB}, {sW}, 1\ns_and_b32 {sH}, {sW}, 1")
        self.vStW = V.get()
        A(f"""
        s_mul_i32 s3, {sB}, {STAGE_CH}
        s_add_u32 s3, s3, {L_STAGE}
        s_lshl_b32 s16, {sH}, 8
        s_add_u32 s16, s16, s3
        v_lshl_add_u32 {self.vStW}, {vL}, 2, s16
        """)
        self.vA1, self.vA2, self.vBm = V.get(), V.get(), V.get()
        A(f"""
        v_xor_b32 {t0}, 3, {vI}
        v_bfe_u32 {t1}, {t0}, 1, 1
        v_add_u32 {t1}, {t0}, {t1}
        v_lshrrev_b32 {t1}, 1, {t1}
        v_add_u32 {t1}, 32, {t1}
        s_cmp_eq_u32 {sH}, 0
        s_cselect_b64 vcc, -1, 0
        s_cselect_b32 s16, 16, 0
        s_cselect_b32 s17, 0, 41
        v_cndmask_b32 {t1}, {t0}, {t1}, vcc
        v_add_u32 {t0}, s16, {t0}
        v_add_u32 {t2}, s17, {vI}
        v_mul_u32_u24 {t0}, {ROWB}, {t0}
        v_mul_u32_u24 {t1}, {ROWB}, {t1}
        v_mul_u32_u24 {t2}, {ROWB}, {t2}
        v_lshl_add_u32 {t0}, {vG}, 4, {t0}
        v_lshl_add_u32 {t1}, {vG}, 4, {t1}
        v_lshl_add_u32 {t2}, {vG}, 4, {t2}
        v_add_u32 {self.vA1}, s3, {t0}
        v_add_u32 {self.vA2}, s3, {t1}
        v_add_u32 {self.vBm}, s3, {t2}
        """)
        self.vK1, self.vK2, self.vKs = V.get(), V.get(), V.get()
        t3 = V.get()
        A(f"""
        v_lshlrev_b32 {t0}, 4, {vI}
        v_sub_u32 {t0}, 540, {t0}
        v_and_b32 {t1}, 3, {vI}
        v_lshlrev_b32 {t1}, 6, {t1}
        v_lshrrev_b32 {t2}, 2, {vI}
        v_lshlrev_b32 {t2}, 4, {t2}
        v_sub_u32 {t1}, {t1}, {t2}
        v_add_u32 {t1}, {V2[0] + 44}, {t1}
        v_and_b32 {t2}, 1, {vI}
        v_mul_u32_u24 {t2}, 80, {t2}
        v_lshrrev_b32 {t3}, 1, {vI}
        v_lshlrev_b32 {t3}, 4, {t3}
        v_sub_u32 {t2}, {t2}, {t3}
        v_add_u32 {t2}, {V3[0] + 60 + 64}, {t2}
        v_cmp_gt_u32 s[16:17], 8, {vI}
        v_cndmask_b32 {t1}, {t2}, {t1}, s[16:17]
        v_cndmask_b32 {t2}, {t1}, {t0}, vcc
        v_subrev_u32 {t0}, 256, {t0}
        v_cndmask_b32 {t1}, {t1}, {t0}, vcc
        v_lshlrev_b32 {t3}, 2, {vG}
        v_sub_u32 {t2}, {t2}, {t3}
        v_sub_u32 {t1}, {t1}, {t3}
        s_mul_i32 s3, {sB}, {KCH}
        s_add_u32 s3, s3, {L_K}
        v_lshl_add_u32 {self.vK1}, {t2}, 1, s3
        v_lshl_add_u32 {self.vK2}, {t1}, 1, s3
        s_cmp_eq_u32 {sH}, 0
        s_cselect_b32 s16, {2 * 29}, {2 * (NX + 27)}
        s_add_u32 s16, s16, s3
        v_mov_b32 {self.vKs}, s16
        """)
        self.vN, self.vF = V.get(), V.get()
        A(f"""
        v_sub_u32 {t0}, 15, {vI}
        v_and_b32 {t1}, 3, {t0}
        v_and_b32 {t0}, 12, {t0}
        v_mul_u32_u24 {t1}, {KCOPY}, {t1}
        v_lshl_add_u32 {t0}, {t0}, 1, {t1}
        v_add_u32 {t0}, s3, {t0}
        v_lshl_add_u32 {self.vN}, {vG}, 4, {t0}
        v_lshl_add_u32 {self.vF}, {vG}, 3, {t0}
        """)
        self.vUf, self.vUe, self.vZw, self.vZr, self.vUw = V.get(), V.get(), V.get(), V.get(), V.get()
        A(f"""
        s_mul_i32 s3, {sB}, {UCH}
        s_add_u32 s3, s3, {L_U}
        v_lshl_add_u32 {t0}, {vI}, 5, s3
        v_lshl_add_u32 {self.vUf}, {vG}, 4, {t0}
        v_lshl_add_u32 {self.vUe}, {vG}, 3, {t0}
        v_and_b32 {t0}, 2, {vG}
        v_lshl_add_u32 {t0}, {vI}, 2, {t0}
        v_add_u32 {t0}, {sB}, {t0}
        v_lshrrev_b32 {t1}, 1, {vI}
        v_xor_b32 {t0}, {t0}, {t1}
        v_and_b32 {t1}, 1, {vG}
        v_lshlrev_b32 {t1}, 3, {t1}
        v_lshl_add_u32 {self.vZw}, {t0}, 4, {t1}
        v_bfe_u32 {t0}, v0, 3, 3
        v_xor_b32 {t0}, v0, {t0}
        v_lshlrev_b32 {self.vZr}, 4, {t0}
        v_and_b32 {t0}, 1, v0
        v_lshrrev_b32 {t1}, 1, v0
        v_mul_u32_u24 {t2}, {UCH}, {t0}
        v_lshl_add_u32 {self.vUw}, {t1}, 4, {t2}
        """)
        self.vS1o, self.vS1i, self.vS1i2, self.vS2i, self.vS2i2 = V.get(), V.get(), V.get(), V.get(), V.get()
        A(f"""
        s_lshl_b32 s3, {sL}, 13
        s_lshl_b32 s16, {sW}, 11
        s_add_u32 s3, s3, s16
        s_add_u32 s3, s3, {WS_S1}
        v_lshl_add_u32 {self.vS1o}, {vL}, 4, s3
        v_lshlrev_b32 {t0}, 4, {t0}
        s_lshl_b32 s3, {sL}, 5
        s_add_u32 s16, s3, {WS_S1}
        v_lshl_add_u32 {t2}, {t1}, 13, {t0}
        v_add_u32 {self.vS1i}, s16, {t2}
        v_add_u32 {self.vS1i2}, 0x100000, {self.vS1i}
        v_lshrrev_b32 {t1}, 1, {vL}
        v_lshl_add_u32 {t2}, {t1}, 13, {t0}
        s_lshl_b32 s16, {sW}, 19
        s_add_u32 s16, s16, s3
        s_add_u32 s16, s16, {WS_S2}
        v_add_u32 {self.vS2i}, s16, {t2}
        v_add_u32 {self.vS2i2}, 0x40000, {self.vS2i}
        """)
        self.vTau, self.vMask = V.get(), V.get()
        A(f"v_lshrrev_b32 {self.vTau}, 5, v0\nv_mov_b32 {self.vMask}, {0xFFFFFFFF ^ TAGMASK}")
        V.put(t3)

    def ln1(self):
        A, V = self.A, self.V
        s1, s2, nm, rs, ad = V.get(), V.get(), V.get(), V.get(), V.get()
        A(f"v_lshlrev_b32 {ad}, 2, {self.vTau}")
        for k in range(8):
            A(f"v_dot2_f32_bf16 {s1}, {self.XB[k]}, {self.sOnes}, {s1 if k else 0}")
            A(f"v_dot2_f32_bf16 {s2}, {self.XB[k]}, {self.XB[k]}, {s2 if k else 0}")
            if k == 0:
                self.stamp(2)
        self.allreduce(A, "v_add_f32", [s1, s2], 32)
        self.ln_stats(A, s1, s2, nm, rs)
        A("s_mov_b64 exec, 1\ns_bitset1_b64 exec, 32")
        A(f"v_mul_f32 {rs}, 0x3d800000, {rs}")
        A(f"ds_write2_b32 {ad}, {nm}, {rs} offset0:0 offset1:8" if False else
          f"ds_write_b32 {ad}, {nm} offset:{L_ST}\nds_write_b32 {ad}, {rs} offset:{L_ST + 32}")
        A("s_mov_b64 exec, -1")
        V.put(self.XB)
        self.XL, self.XH = V.get(8), V.get(8)
        for j in range(8):
            A(f"v_lshlrev_b32 {self.XL[j]}, 16, {self.XA[j]}")
            A(f"v_and_b32 {self.XH[j]}, 0xffff0000, {self.XA[j]}")
        V.put(self.XA)
        A.barrier()
        NM, RS = V.get(8), V.get(8)
        A(f"v_mov_b32 {ad}, 0")
        for k in range(2):
            A(f"ds_read_b128 {NM[4 * k:4 * k + 4]}, {ad} offset:{L_ST + 16 * k}")
        for k in range(2):
            A(f"ds_read_b128 {RS[4 * k:4 * k + 4]}, {ad} offset:{L_ST + 32 + 16 * k}")
        A(f"s_add_u32 {self.sE}, {self.sE}, 1\ns_and_b32 {self.sTag}, {self.sE}, {TAGMASK}")
        T = V.get(8)
        for e, X in enumerate((self.XL, self.XH)):
            G = V.get(4)
            for q in range(4):
                A(f"v_pk_add_f32 {T[2 * q:2 * q + 2]}, {X[2 * q:2 * q + 2]}, {NM[2 * q:2 * q + 2]}")
            for j in range(8):
                self.rnd(A, T[j], T[j])
            for q in range(4):
                A(f"v_pk_mul_f32 {T[2 * q:2 * q + 2]}, {T[2 * q:2 * q + 2]}, {RS[2 * q:2 * q + 2]}")
            for j in range(8):
                self.rnd(A, T[j], T[j])
            for q in range(4):
                A(f"v_cvt_pk_f16_f32 {G[q]}, {T[2 * q]}, {T[2 * q + 1]}")
            for q in range(4):
                A(f"v_and_or_b32 {G[q]}, {G[q]}, {self.vMask}, {self.sTag}")
            if e == 0:
                A.wait_tag("poison")
            A(f"global_store_dwordx4 {self.vS1o}, {G}, s[30:31] offset:{1024 * e} sc1", tag="s1st")
            self.G = getattr(self, "G", []) + [G]
        self.stamp(3)
        V.put(T, NM, RS, s1, s2, nm, rs, ad, self.vS1o, self.vMask)

    def warm(self):
        if not self.o["warm"]:
            return
        A, V = self.A, self.V
        t0, t1 = V.get(), V.get()
        A(f"""
        s_lshr_b32 s3, {self.sL}, 5
        s_and_b32 s16, {self.sL}, 31
        s_mul_i32 s17, s16, {16 * 3584}
        s_mul_i32 s18, s3, 448
        s_add_u32 s17, s17, s18
        v_bfe_u32 {t0}, v0, 3, 4
        v_and_b32 {t1}, 7, v0
        v_min_u32 {t1}, 6, {t1}
        v_mul_u32_u24 {t0}, 3584, {t0}
        v_lshl_add_u32 {t0}, {t1}, 6, {t0}
        v_add_u32 {t0}, s17, {t0}
        s_cmp_lt_u32 {self.sW}, 2
        s_cselect_b32 s18, s22, s24
        s_cselect_b32 s19, s23, s25
        global_load_dword {self.vJunk[1]}, {t0}, s[18:19]
        s_mul_i32 s17, s16, {56 * 1024}
        s_lshl_b32 s3, s3, 7
        s_add_u32 s17, s17, s3
        v_min_u32 {t0}, 111, v0
        v_and_b32 {t1}, 1, {t0}
        v_lshrrev_b32 {t0}, 1, {t0}
        v_lshlrev_b32 {t0}, 10, {t0}
        v_lshl_add_u32 {t0}, {t1}, 6, {t0}
        v_add_u32 {t0}, s17, {t0}
        global_load_dword {self.vJunk[2]}, {t0}, s[26:27]
        """)
        V.put(t0, t1)

    def s1_loads(self, A):
        A(f"global_load_dwordx4 {self.UG[0:4]}, {self.vS1i}, s[30:31] sc1")
        A(f"global_load_dwordx4 {self.UG[4:8]}, {self.vS1i2}, s[30:31] sc1")

    def maybe_s1(self, where):
        if self.o["s1_at"] == where:
            self.UG = self.V.get(8)
            self.s1_loads(self.A)

    def kgen(self):
        A, V = self.A, self.V
        P = self.PAR
        V.put(*self.G)
        t0, t1, dt = V.get(), V.get(), V.get()
        self.vG16, self.vD16 = V.get(2), V.get()
        A(f"""
        v_and_b32 {t0}, 0x7fff7fff, {P[2]}
        v_and_b32 {t1}, 0x7fff7fff, {P[3]}
        v_pk_max_u16 {t0}, {t0}, {t1}
        v_lshrrev_b32 {t1}, 16, {t0}
        v_and_b32 {t0}, 0xffff, {t0}
        v_max_u32 {t0}, {t0}, {t1}
        v_lshlrev_b32 {dt}, 16, {P[4]}
        v_mul_f32 {dt}, {LOG2E}, {dt}
        v_exp_f32 {dt}, {dt}
        s_cmp_eq_u32 {self.sH}, 0
        s_cselect_b32 s3, 16, 0
        """)
        for k in range(4):
            A(f"v_lshlrev_b32 {P[k]}, s3, {P[k]}")
        for k in range(4):
            A(f"v_and_b32 {P[k]}, 0xffff0000, {P[k]}")
        self.rnd(A, dt, dt)
        A(f"v_mul_f32 {P[0]}, {LOG2E}, {P[0]}\nv_exp_f32 {P[0]}, {P[0]}")
        self.allreduce(A, "v_max_u32", [t0], 64)
        self.rnd(A, P[0], P[0])
        A(f"""
        v_lshlrev_b32 {self.vD16}, 16, {P[5]}
        v_mul_f32 {self.vD16}, 0x41800000, {self.vD16}
        v_mul_f32 {P[0]}, {P[0]}, {dt}
        v_mul_f32 {P[1]}, {P[1]}, {dt}
        v_mul_f32 {P[0]}, {LOG2E | 0x80000000}, {P[0]}
        v_mul_f32 {P[1]}, {INV2PI}, {P[1]}
        v_lshrrev_b32 {t0}, 7, {t0}
        v_max_u32 {t0}, 8, {t0}
        v_lshrrev_b32 {t1}, 23, {dt}
        v_add_u32 {t1}, {t1}, {t0}
        v_subrev_u32 {t1}, 127, {t1}
        v_max_i32 {t1}, 0, {t1}
        v_min_i32 {t1}, 254, {t1}
        v_lshlrev_b32 {self.vG16[0]}, 23, {t1}
        v_lshlrev_b32 {self.vG16[1]}, 23, {t1}
        v_sub_u32 {t0}, 259, {t0}
        v_and_b32 {dt}, 0x007fffff, {dt}
        v_lshl_or_b32 {dt}, {t0}, 23, {dt}
        """)
        W = {p: V.get(2) for p in (1, 16, 256)}
        for p, mul in ((1, None), (16, 0x41800000), (256, 0x43800000)):
            w = W[p]
            if mul:
                A(f"v_mul_f32 {t0}, {mul}, {P[0]}\nv_mul_f32 {t1}, {mul}, {P[1]}")
                A(f"v_exp_f32 {t0}, {t0}\nv_fract_f32 {t1}, {t1}")
            else:
                A(f"v_exp_f32 {t0}, {P[0]}\nv_fract_f32 {t1}, {P[1]}")
            A(f"v_cos_f32 {w[0]}, {t1}\nv_sin_f32 {w[1]}, {t1}")
            A(f"v_mul_f32 {w[0]}, {w[0]}, {t0}\nv_mul_f32 {w[1]}, {w[1]}, {t0}")
        L, M, Rr, T = V.get(2), V.get(2), V.get(2), V.get(2)
        A(f"v_mul_f32 {L[0]}, {P[2]}, {dt}\nv_mul_f32 {L[1]}, {P[3]}, {dt}")
        pk = [V.get() for _ in range(4)]
        cnt = [0]

        def cmul(d, a, b):
            A(f"v_pk_mul_f32 {T}, {a}, {b} op_sel_hi:[0,1]")
            A(f"v_pk_fma_f32 {d}, {a}, {b}, {T} op_sel:[1,1,0] op_sel_hi:[1,0,1] neg_lo:[0,1,0]")

        def put(row, v, conj=False):
            r = pk[cnt[0] % 4]
            cnt[0] += 1
            A(f"v_cvt_pk_f16_f32 {r}, {v[0]}, {'-' if conj else ''}{v[1]}")
            A(f"ds_write_b32 {self.vStW}, {r} offset:{row * ROWB}")

        A(f"v_mov_b32 {t0}, 0x3c00\nds_write_b32 {self.vStW}, {t0}")
        put(1, W[16], conj=True)
        cmul(Rr, W[16], W[16])
        put(2, Rr, conj=True)
        for j in range(3, 16):
            cmul(Rr, Rr, W[16])
            put(j, Rr, conj=True)
        self.maybe_s1("rec0")
        for al in range(17):
            if al:
                cmul(L, L, W[1])
            if al < 16:
                put(16 + al, L)
            if al % 2 == 0:
                cmul(M, L, W[256])
                put(32 + al // 2, M)
                if al and al % 4 == 0:
                    for a in range(2):
                        cmul(M, M, W[256])
                        put(41 + 4 * a + al // 4 - 1, M)
                    if al % 8 == 0:
                        for a in range(4):
                            cmul(M, M, W[256])
                            put(49 + 2 * a + al // 8 - 1, M)
            if al == 8:
                self.maybe_s1("rec1")
        V.put(L, M, Rr, T, *pk, *W.values(), t0, t1, dt, P, self.vStW)
        self.stamp(4)
        self.maybe_s1("rec2")
        A.barrier()
        NB = 4
        Bb = [V.get(4) for _ in range(NB)]
        A1 = [V.get(4) for _ in range(NB)]
        A2 = [V.get(4) for _ in range(NB)]
        D1, D2 = V.get(4), V.get(4)

        def rd(q):
            A(f"ds_read_b128 {Bb[q % NB]}, {self.vBm} offset:{64 * q}")
            A(f"ds_read_b128 {A1[q % NB]}, {self.vA1} offset:{64 * q}")
            A(f"ds_read_b128 {A2[q % NB]}, {self.vA2} offset:{64 * q}")
        for q in range(NB):
            rd(q)
        for q in range(8):
            A(f"v_mfma_f32_16x16x32_f16 {D1}, {A1[q % NB]}, {Bb[q % NB]}, {D1 if q else 0}")
            A(f"v_mfma_f32_16x16x32_f16 {D2}, {A2[q % NB]}, {Bb[q % NB]}, {D2 if q else 0}")
            if q + NB < 8:
                rd(q + NB)
        self.maybe_s1("mfma")
        K1, K2 = V.get(2), V.get(2)
        A(f"s_cmp_eq_u32 {self.sH}, 0\ns_cselect_b32 s3, 63, 55\ns_cselect_b32 s16, 4, 2")
        t0 = V.get()
        A(f"v_add_u32 {t0}, s16, {self.vKs}")
        A(f"v_cvt_pk_f16_f32 {K1[0]}, {D1[0]}, {D1[1]}\nv_cvt_pk_f16_f32 {K1[1]}, {D1[2]}, {D1[3]}")
        A(f"v_cvt_pk_f16_f32 {K2[0]}, {D2[0]}, {D2[1]}\nv_cvt_pk_f16_f32 {K2[1]}, {D2[2]}, {D2[3]}")
        A(f"ds_write_b64 {self.vK1}, {K1}\nds_write_b64 {self.vK2}, {K2}")
        A("s_mov_b64 exec, 0\ns_bitset1_b64 exec, s3")
        A(f"ds_write_b16 {self.vKs}, {K2[0]}\nds_write_b16 {self.vKs}, {K2[0]} offset:2\nds_write_b16 {t0}, {K2[0]}")
        A("s_mov_b64 exec, -1")
        V.put(*Bb, *A1, *A2, D1, D2, self.vA1, self.vA2, self.vBm, self.vK1, self.vK2, self.vKs, t0)
        A.barrier()
        V.put(K1, K2)
        self.stamp(5)
        self.maybe_s1("shift")
        D, C1, C2, C3 = V.get(6), V.get(4), V.get(4), V.get(4)
        A(f"ds_read_b128 {D[0:4]}, {self.vShift} offset:{L_K}\nds_read_b64 {D[4:6]}, {self.vShift} offset:{L_K + 16}")
        for k in range(4):
            A(f"v_alignbit_b32 {C1[k]}, {D[k + 1]}, {D[k]}, 16")
        A(f"ds_write_b128 {self.vShift}, {C1} offset:{L_K + KCOPY}")
        for k in range(4):
            A(f"v_mov_b32 {C2[k]}, {D[k + 1]}")
        A(f"ds_write_b128 {self.vShift}, {C2} offset:{L_K + 2 * KCOPY}")
        for k in range(4):
            A(f"v_alignbit_b32 {C3[k]}, {D[k + 2]}, {D[k + 1]}, 16")
        A(f"ds_write_b128 {self.vShift}, {C3} offset:{L_K + 3 * KCOPY}")
        A.barrier()
        V.put(D, C1, C2, C3, self.vShift)
        self.maybe_s1("frag")
        AC = self.AC
        self.KN = [AC.get(4, 4) for _ in range(17)]
        self.KX = AC.get(4, 4)
        self.B2 = {(k, d): AC.get(4, 4) for k in range(2) for d in (2, 3, 4)}
        self.B3 = {d: AC.get(4, 4) for d in (4, 5, 6, 7)}
        for q in range(17):
            for hf in range(2):
                A(f"ds_read_b64 {self.KN[q][2 * hf:2 * hf + 2]}, {self.vN} offset:{64 * (16 - q) + 8 * hf}")
        for hf in range(2):
            A(f"ds_read_b64 {self.KX[2 * hf:2 * hf + 2]}, {self.vN} offset:{2 * NX + 8 * hf}")
        for (k, d), r in self.B2.items():
            for hf in range(2):
                A(f"ds_read_b64 {r[2 * hf:2 * hf + 2]}, {self.vF} offset:{2 * (V2[2 * k + hf] + 32 - 16 * (d - 2))}")
        for d, r in self.B3.items():
            for hf in range(2):
                A(f"ds_read_b64 {r[2 * hf:2 * hf + 2]}, {self.vF} offset:{2 * (V3[hf] + 48 - 16 * (d - 4))}")
        V.put(self.vN, self.vF)
        self.maybe_s1("end")
        self.stamp(6)

    def s1_consume(self):
        A, V = self.A, self.V
        UG = self.UG
        t0, t1 = V.get(), V.get()

        def check(C):
            for k in range(8):
                C(f"v_xor_b32 {UG[k]}, {self.sTag}, {UG[k]}")
            C(f"v_or3_b32 {t0}, {UG[0]}, {UG[1]}, {UG[2]}\nv_or3_b32 {t1}, {UG[3]}, {UG[4]}, {UG[5]}")
            C(f"v_or3_b32 {t0}, {t0}, {UG[6]}, {UG[7]}\nv_or_b32 {t0}, {t0}, {t1}")
            C(f"v_and_b32 {t0}, {TAGMASK}, {t0}\nv_cmp_ne_u32 vcc, 0, {t0}")
        self.poll(A, "s1", self.s1_loads, check)
        A(f"ds_write_b128 {self.vUw}, {UG[0:4]} offset:{L_U + 512}")
        A(f"ds_write_b128 {self.vUw}, {UG[4:8]} offset:{L_U + 512 + 2048}")
        self.stamp(7)
        A.barrier()
        V.put(t0, t1, UG, self.vUw, self.vS1i, self.vS1i2)

    def conv(self, A, tiles):
        V = self.V
        acc = {j: V.get(4) for j in tiles}
        started = set()
        NF, NW, NP = 7, 4, 4
        Fb = [V.get(4) for _ in range(NF)]
        Wb = [V.get(4) for _ in range(NW)]
        Pb = [V.get(4) for _ in range(NP)]
        EU = [V.get(2) for _ in range(2)]
        ED = [V.get(4) for _ in range(2)]
        EY, EZ = V.get(4), V.get(2)
        qmax = {0: 7, 1: 15}
        b2 = sorted({j - d for j in tiles for d in (2, 3, 4) if j - d >= 0})
        b3 = sorted({j - d for j in tiles for d in (4, 5, 6, 7) if j - d >= 0})
        nlo = min(8 * j - qmax.get(j, 16) for j in tiles)
        nhi = 8 * max(tiles)
        order = [("a", 8 * b) for b in sorted(set(b2) | set(b3)) if 8 * b < nlo] + [("a", n) for n in range(nlo, nhi + 1)]
        frags = []
        for kind, n in order:
            frags.append((kind, n))
            if n >= 0 and n % 8 == 0 and (n // 8 in b2 or n // 8 in b3):
                frags.append(("b", n // 8))
        mf = []
        fill = []
        fuse = {}
        wcount, pcount = [0], [0]
        pending = []

        def emit_acc(j, a, b):
            mf.append(f"v_mfma_f32_16x16x32_f16 {acc[j]}, {a}, {b}, {acc[j] if j in started else 0}")
            started.add(j)

        def drain(force_tile=None, all_=False):
            for item in list(pending):
                rdy, j, a, b = item
                if rdy <= len(mf) or all_ or j == force_tile:
                    assert rdy <= len(mf)
                    emit_acc(j, a, b)
                    pending.remove(item)
                    plast[str(a)] = len(mf) - 1

        plast = {}
        wlast = {}
        half = {}

        def band(F, key, name, hf, b, users):
            w = Wb[wcount[0] % NW]
            wcount[0] += 1
            if (name, b) not in half:
                p = Pb[pcount[0] % NP]
                pcount[0] += 1
                for item in list(pending):
                    if str(item[2]) == str(p):
                        assert item[0] <= len(mf)
                        emit_acc(item[1], item[2], item[3])
                        pending.remove(item)
                        plast[str(p)] = len(mf) - 1
                half[(name, b)] = [p, 0]
            p = half[(name, b)][0]
            mf.append(f"v_mfma_f32_16x16x32_f16 {w}, {F}, {self.BAND[key]}, 0")
            t = len(mf) - 1
            early = max(t + 2, plast.get(str(p), -1))
            for k in range(2):
                fill.append([early, t + NW - 1, f"v_cvt_pk_f16_f32 {p[2 * hf + k]}, {w[2 * k]}, {w[2 * k + 1]}", "cvt"])
            half[(name, b)][1] += 1
            if half[(name, b)][1] == 2:
                for j, m in users:
                    pending.append([t + NW, j, p, m])

        done_at = {}
        for fi, (kind, n) in enumerate(frags):
            F = Fb[fi % NF]
            first = len(mf)
            if kind == "a":
                for j in tiles:
                    q = 8 * j - n
                    if 0 <= q <= qmax.get(j, 16) and n >= nlo:
                        if q == 0:
                            drain(force_tile=j)
                        emit_acc(j, self.KN[q], F)
                        if q == 0:
                            done_at[j] = len(mf) - 1
                if n >= 0 and n % 8 == 0:
                    b = n // 8
                    if b + 4 in tiles:
                        emit_acc(b + 4, self.KX, F)
                    u2a = [(b + d, self.B2[(0, d)]) for d in (2, 3, 4) if b + d in tiles]
                    u2b = [(b + d, self.B2[(1, d)]) for d in (2, 3, 4) if b + d in tiles]
                    u3 = [(b + d, self.B3[d]) for d in (4, 5, 6, 7) if b + d in tiles]
                    if b in b2:
                        band(F, (12, 1), "2a", 0, b, u2a)
                        band(F, (8, 2), "2a", 1, b, u2a)
                        band(F, (4, 1), "2b", 0, b, u2b)
                    if b in b3:
                        band(F, (8, 3), "3", 0, b, u3)
            else:
                b = n
                u2b = [(b + d, self.B2[(1, d)]) for d in (2, 3, 4) if b + d in tiles]
                u3 = [(b + d, self.B3[d]) for d in (4, 5, 6, 7) if b + d in tiles]
                if b in b2:
                    band(F, (8, 2), "2b", 1, b, u2b)
                if b in b3:
                    band(F, (8, 4), "3", 1, b, u3)
            fuse[fi] = (first, len(mf) - 1)
            drain()
        assert not pending
        nm = len(mf)
        pre = []
        for fi, (kind, n) in enumerate(frags):
            off = 512 + 2 * ((32 * n - 16) if kind == "a" else (256 * n - 24))
            txt = f"ds_read_b128 {Fb[fi % NF]}, {self.vUf} offset:{off}"
            if fi < NF:
                pre.append(txt)
            else:
                fill.append([fuse[fi - NF][1], max(fuse[fi - NF][1], fuse[fi][0] - 5), txt, "rd"])
        order_t = sorted(tiles, key=lambda j: done_at[j])
        prev_end = -1
        for k, j in enumerate(order_t):
            eu, ed = EU[k % 2], ED[k % 2]
            t = done_at[j]
            nxt = done_at[order_t[k + 1]] if k + 1 < len(order_t) else nm + 100
            seq1 = [f"ds_read_b64 {eu}, {self.vUe} offset:{512 + 512 * j}"]
            for r in range(4):
                seq1.append(f"v_fma_mix_f32 {ed[r]}, {eu[r // 2]}, {self.vD16}, 0 op_sel:[{r % 2},0,0] op_sel_hi:[1,0,0]")
            for r in range(4):
                seq1.append(f"v_cvt_pk_bf16_f32 {ed[r]}, 0, {ed[r]}")
            e0 = max(prev_end, 0) if k < 2 else done_at[order_t[k - 2]] + 10
            e0 = min(e0, t - 1)
            fill.append([e0, t, seq1[0], f"e1_{j}"])
            for s in seq1[1:]:
                fill.append([min(e0 + 4, t), t + 2, s, f"e1_{j}"])
            seq2 = []
            for r in range(2):
                seq2.append(f"v_pk_mul_f32 {EY[2 * r:2 * r + 2]}, {acc[j][2 * r:2 * r + 2]}, {self.vG16}")
            for r in range(4):
                seq2.append(f"v_cvt_pk_bf16_f32 {EY[r]}, 0, {EY[r]}")
            for r in range(2):
                seq2.append(f"v_pk_add_f32 {EY[2 * r:2 * r + 2]}, {EY[2 * r:2 * r + 2]}, {ed[2 * r:2 * r + 2]}")
            for r in range(2):
                seq2.append(f"v_cvt_pk_bf16_f32 {EZ[r]}, {EY[2 * r]}, {EY[2 * r + 1]}")
            seq2.append(f"ds_write_b64 {self.vZw}, {EZ} offset:{L_Z + 1024 * j}")
            for s in seq2:
                fill.append([t + 3, min(t + 9, nxt + 2), s, f"e2_{j}"])
            prev_end = t
        for txt in pre:
            A(txt)
        for i, f in enumerate(fill):
            f.append(i)
        left = list(fill)
        for t in range(nm):
            A(mf[t])
            avail = sorted([f for f in left if f[0] <= t], key=lambda f: (f[1], f[4]))
            n = 0
            for f in avail:
                if n >= 2 and f[1] > t:
                    break
                if any(g[3] == f[3] and g[4] < f[4] and f[3] not in ("rd", "cvt") for g in left):
                    continue
                A(f[2])
                left.remove(f)
                n += 1
        for f in sorted(left, key=lambda f: (f[1], f[4])):
            A(f[2])
        self.nmfma = getattr(self, "nmfma", []) + [nm]
        V.put(*acc.values(), *Fb, *Wb, *Pb, *EU, *ED, EY, EZ)

    def conv_both(self):
        A = self.A
        A(f"s_cmp_eq_u32 {self.sH}, 0\ns_cbranch_scc0 L_conv_b")
        B = A.fork()
        self.conv(A, [0, 1, 2, 3, 4])
        A.wait(lg=0)
        A.flush()
        A("s_branch L_conv_done")
        B.label("L_conv_b")
        self.conv(B, [5, 6, 7])
        B.wait(lg=0)
        B.flush()
        A.lines += B.lines
        A.count += B.count
        A.nops += B.nops
        A.label("L_conv_done")
        self.V.put(*self.BAND.values(), self.vUf, self.vUe, self.vZw, self.vG16, self.vD16)
        for r in self.KN + [self.KX] + list(self.B2.values()) + list(self.B3.values()):
            self.AC.put(r)
        self.stamp(8)
        A("s_barrier")
        ZT = self.V.get(8)
        A(f"ds_read_b128 {ZT[0:4]}, {self.vZr} offset:{L_Z}\nds_read_b128 {ZT[4:8]}, {self.vZr} offset:{L_Z + 4096}")
        A(f"global_store_dwordx4 {self.vS2o}, {ZT[0:4]}, s[30:31] sc1", tag="s2st")
        A(f"global_store_dwordx4 {self.vS2o2}, {ZT[4:8]}, s[30:31] sc1", tag="s2st")
        self.ZT = ZT
        self.V.put(self.vZr, self.vS2o, self.vS2o2)

    def weights_dma(self, A, role, lo, hi):
        V = self.V
        t0 = self.vWg
        if role == 0:
            for m in range(lo, hi):
                mat, part = m // 2, m % 2
                A(f"s_add_u32 m0, {self.sWb}, {mat * 2112 + part * 1024}")
                if part:
                    A(f"v_add_u32 {self.vWg2}, {64 * 3584}, {t0}")
                A(f"global_load_lds_dwordx4 {self.vWg2 if part else t0}, s[{22 + 2 * mat}:{23 + 2 * mat}]", tag="dma")
        else:
            for m in range(lo, hi):
                A(f"s_add_u32 m0, {self.sWb}, {m * 1024}")
                A(f"v_add_u32 {self.vWg2}, {m * 32 * 1024}, {t0}")
                A(f"global_load_lds_dwordx4 {self.vWg2}, s[26:27]", tag="dma")

    def tail(self, A, role):
        V, S = self.V, self.S
        vL, vI, vG, sL, sW = self.vL, self.vI, self.vG, self.sL, self.sW
        sfx = f"r{role}"
        got = []

        def get(n=1, al=None):
            r = V.get(n, al)
            got.append(r)
            return r
        t0, t1, t2 = get(), get(), get()
        self.vWg, self.vWg2 = get(), get()
        vTr = get()
        if role == 0:
            A(f"""
            s_mul_i32 {self.sWb}, {sW}, 4224
            s_add_u32 {self.sWb}, {self.sWb}, {L_STAGE}
            s_lshl_b32 s3, {sW}, 7
            v_add_u32 {t0}, s3, {vL}
            v_mul_u32_u24 {t0}, 3584, {t0}
            s_lshl_b32 s3, {self.sPhi}, 4
            v_add_u32 {self.vWg}, s3, {t0}
            """)
            self.weights_dma(A, 0, 0, 4)
            A(f"""
            v_bfe_u32 {t0}, {vI}, 1, 1
            v_mul_u32_u24 {t0}, 2112, {t0}
            v_and_b32 {t1}, 1, {vI}
            v_lshl_add_u32 {t0}, {t1}, 3, {t0}
            v_lshrrev_b32 {t1}, 2, {vI}
            v_lshl_add_u32 {t1}, {vG}, 3, {t1}
            v_lshl_add_u32 {t0}, {t1}, 4, {t0}
            v_add_u32 {vTr}, {self.sWb}, {t0}
            """)
        else:
            A(f"""
            s_mul_i32 {self.sWb}, {sW}, 14336
            s_add_u32 {self.sWb}, {self.sWb}, {L_STAGE}
            s_mul_i32 s3, {sW}, 448
            v_lshrrev_b32 {t0}, 1, {vL}
            v_add_u32 {t0}, s3, {t0}
            v_lshlrev_b32 {t0}, 10, {t0}
            v_and_b32 {t1}, 1, {vL}
            v_lshl_add_u32 {t0}, {t1}, 4, {t0}
            s_sub_u32 s3, {self.sPhi}, 224
            s_lshl_b32 s3, s3, 5
            v_add_u32 {self.vWg}, s3, {t0}
            """)
            self.weights_dma(A, 1, 0, 7)
            A(f"""
            v_and_b32 {t0}, 3, {vI}
            v_lshlrev_b32 {t0}, 3, {t0}
            v_lshrrev_b32 {t1}, 2, {vI}
            v_lshl_add_u32 {t1}, {vG}, 3, {t1}
            v_lshl_add_u32 {t0}, {t1}, 5, {t0}
            v_add_u32 {vTr}, {self.sWb}, {t0}
            """)
        vSW, vHw, vHr, vKw, vS3o, vS3i, vRo = get(), get(), get(), get(), get(), get(), get()
        for k in range(8):
            A(f"v_dot2_f32_bf16 {vSW}, {self.WR[k]}, {self.sOnes}, {vSW if k else 0}")
        self.allreduce(A, "v_add_f32", [vSW], 32)
        A(f"""
        v_lshlrev_b32 {vHw}, 2, v0
        v_and_b32 {t0}, 31, v0
        v_lshlrev_b32 {t0}, 4, {t0}
        v_lshl_add_u32 {vHr}, {self.vTau}, 10, {t0}
        v_lshlrev_b32 {vKw}, 2, {self.vTau}
        s_lshl_b32 s3, {sW}, 13
        s_lshl_b32 s16, {sL}, 4
        s_add_u32 s3, s3, s16
        s_add_u32 s3, s3, {WS_S3}
        v_lshl_add_u32 {vS3o}, {vL}, 12, s3
        s_lshr_b32 s3, {sL}, 5
        s_lshl_b32 s3, s3, 12
        s_add_u32 s16, s3, {WS_S3}
        v_lshl_add_u32 {vS3i}, v0, 4, s16
        s_lshl_b32 s16, {sL}, 11
        s_add_u32 s16, s16, {WS_ROWS}
        v_add_u32 {vRo}, s16, {t0}
        """)
        A.wait_tag("s2st")
        self.stamp(9, A)
        ZT = self.ZT

        def s2_loads(C):
            C(f"global_load_dwordx4 {ZT[0:4]}, {self.vS2i}, s[30:31] sc1")
            C(f"global_load_dwordx4 {ZT[4:8]}, {self.vS2i2}, s[30:31] sc1")
        s2_loads(A)
        if role == 1:
            self.weights_dma(A, 1, 7, 14)

        def poison_check(regs):
            def chk(C):
                r = list(regs)
                if len(r) == 1:
                    C(f"v_cmp_eq_u32 vcc, -1, {r[0]}")
                    return
                C(f"v_max3_u32 {t0}, {r[0]}, {r[1]}, {r[2] if len(r) > 2 else r[1]}")
                r = r[3:]
                while r:
                    C(f"v_max3_u32 {t0}, {t0}, {r[0]}, {r[1] if len(r) > 1 else r[0]}")
                    r = r[2:]
                C(f"v_cmp_eq_u32 vcc, -1, {t0}")
            return chk
        self.poll(A, "s2" + sfx, s2_loads, poison_check([ZT[k] for k in range(8)]))
        self.stamp(10, A)
        HP = get(4)
        T = get(8)
        for grp in range(2):
            for jj in range(4):
                j = 4 * grp + jj
                sel = self.sHi if j % 2 else self.sLo
                A(f"v_dot2_f32_bf16 {T[2 * jj]}, {ZT[j // 2]}, {sel}, {self.XL[j]}")
                A(f"v_dot2_f32_bf16 {T[2 * jj + 1]}, {ZT[4 + j // 2]}, {sel}, {self.XH[j]}")
            for jj in range(4):
                j = 4 * grp + jj
                A(f"v_cvt_pk_bf16_f32 {HP[jj]}, {T[2 * jj]}, {T[2 * jj + 1]}")
                A(f"ds_write_b32 {vHw}, {HP[jj]} offset:{L_H + 1024 * j}")
        A.barrier()
        HB = get(8)
        A(f"ds_read_b128 {HB[0:4]}, {vHr} offset:{L_H}\nds_read_b128 {HB[4:8]}, {vHr} offset:{L_H + 512}")
        s1, s2, s3, NM, RS, key = get(), get(), get(), get(2), get(2), get()
        A(f"s_lshl_b32 s3, {sL}, 3\ns_sub_u32 s3, 2047, s3\nv_sub_u32 {t2}, s3, {self.vTau}")
        for k in range(8):
            A(f"v_dot2_f32_bf16 {s1}, {HB[k]}, {self.sOnes}, {s1 if k else 0}")
            A(f"v_dot2_f32_bf16 {s2}, {HB[k]}, {HB[k]}, {s2 if k else 0}")
            A(f"v_dot2_f32_bf16 {s3}, {HB[k]}, {self.WR[k]}, {s3 if k else 0}")
        self.allreduce(A, "v_add_f32", [s1, s2, s3], 32)
        self.ln_stats(A, s1, s2, NM[0], RS[0])
        A(f"v_fma_f32 {s3}, {NM[0]}, {vSW}, {s3}\nv_mul_f32 {s3}, {s3}, {RS[0]}")
        self.rnd(A, s3, s3)
        A(f"""
        v_ashrrev_i32 {t1}, 31, {s3}
        v_or_b32 {t1}, 0x80000000, {t1}
        v_xor_b32 {t1}, {s3}, {t1}
        v_and_b32 {t1}, 0xffff0000, {t1}
        v_or_b32 {key}, {t1}, {t2}
        s_mov_b64 exec, 1
        s_bitset1_b64 exec, 32
        ds_write_b32 {vKw}, {key} offset:{L_KEY}
        s_mov_b64 exec, -1
        v_mov_b32 {t1}, 0
        """)
        H32 = get(16)
        for k in range(8):
            A(f"v_lshlrev_b32 {H32[2 * k]}, 16, {HB[k]}\nv_and_b32 {H32[2 * k + 1]}, 0xffff0000, {HB[k]}")
        A.barrier()
        kmax = get()
        A(f"ds_read_b128 {T[0:4]}, {t1} offset:{L_KEY}\nds_read_b128 {T[4:8]}, {t1} offset:{L_KEY + 16}")
        A(f"v_max3_u32 {kmax}, {T[0]}, {T[1]}, {T[2]}\nv_max3_u32 {t0}, {T[3]}, {T[4]}, {T[5]}")
        A(f"v_max3_u32 {kmax}, {kmax}, {T[6]}, {T[7]}\nv_max_u32 {kmax}, {kmax}, {t0}")
        A("s_mov_b64 exec, 3")
        A(f"global_store_dword {vS3o}, {kmax}, s[30:31] sc1", tag="s3st")
        A("s_mov_b64 exec, -1")
        self.stamp(11, A)
        sC = self.sC
        A(f"v_cmp_eq_u32 {sC}, {key}, {kmax}")
        HN, D = get(8), get(16)
        A(f"v_mov_b32 {NM[1]}, {NM[0]}\nv_mov_b32 {RS[1]}, {RS[0]}")
        for k in range(8):
            A(f"v_pk_add_f32 {D[2 * k:2 * k + 2]}, {H32[2 * k:2 * k + 2]}, {NM}")
        for k in range(16):
            self.rnd(A, D[k], D[k])
        for k in range(8):
            A(f"v_pk_mul_f32 {D[2 * k:2 * k + 2]}, {D[2 * k:2 * k + 2]}, {RS}")
        for k in range(8):
            A(f"v_cvt_pk_bf16_f32 {HN[k]}, {D[2 * k]}, {D[2 * k + 1]}")
        A(f"s_mov_b64 exec, {sC}")
        A(f"global_store_dwordx4 {vRo}, {HN[0:4]}, s[30:31] sc1", tag="s3st")
        A(f"global_store_dwordx4 {vRo}, {HN[4:8]}, s[30:31] offset:512 sc1", tag="s3st")
        A(f"global_store_dwordx4 {vRo}, {HB[0:4]}, s[30:31] offset:1024 sc1", tag="s3st")
        A(f"global_store_dwordx4 {vRo}, {HB[4:8]}, s[30:31] offset:1536 sc1", tag="s3st")
        A("s_mov_b64 exec, -1")
        O = get(8)
        for k in range(8):
            A(f"v_dot2_f32_bf16 {D[2 * k]}, {HN[k]}, {self.sLo}, {H32[2 * k]}")
            A(f"v_dot2_f32_bf16 {D[2 * k + 1]}, {HN[k]}, {self.sHi}, {H32[2 * k + 1]}")
        for k in range(8):
            A(f"v_cvt_pk_bf16_f32 {O[k]}, {D[2 * k]}, {D[2 * k + 1]}")
        pol = self.o["out_pol"]

        def out_stores(C):
            C(f"global_store_dwordx4 {self.vRow}, {O[0:4]}, s[28:29] {pol}", tag="out")
            C(f"global_store_dwordx4 {self.vRow}, {O[4:8]}, s[28:29] offset:512 {pol}", tag="out")
        nw = 4 if role == 0 else 14
        WT = [self.AC.get(4, 4) for _ in range(nw)]

        def tr_reads():
            A.wait_tag("dma")
            for m in range(nw):
                for e2 in range(2):
                    off = (32 * m + 4 * e2) * (16 if role == 0 else 32)
                    A(f"ds_read_b64_tr_b16 {WT[m][2 * e2:2 * e2 + 2]}, {vTr} offset:{off}")
        if role == 0:
            tr_reads()
        A.wait(vm=0)
        self.stamp(12, A)
        kin = get()

        def s3_loads(C):
            C(f"global_load_dword {kin}, {vS3i}, s[30:31] sc1")
        s3_loads(A)
        if role == 0:
            A(f"s_andn2_b64 exec, -1, {sC}")
            out_stores(A)
            A("s_mov_b64 exec, -1")
        A(f"v_lshlrev_b32 {t1}, 2, v0\nv_lshrrev_b32 {t1}, 6, {t1}\nv_and_b32 {t1}, 12, {t1}\nv_mov_b32 {t2}, 0")
        self.poll(A, "s3" + sfx, s3_loads, poison_check([kin]))
        self.allreduce(A, "v_max_u32", [kin], 64)
        A(f"s_mov_b64 exec, 1\nds_write_b32 {t1}, {kin} offset:{L_KEY2}\ns_mov_b64 exec, -1")
        A.barrier()
        A(f"ds_read_b128 {T[0:4]}, {t2} offset:{L_KEY2}")
        A(f"v_max3_u32 {kin}, {T[0]}, {T[1]}, {T[2]}\nv_max_u32 {kin}, {kin}, {T[3]}")
        sK, sT = self.sK, self.sT
        A(f"v_readfirstlane_b32 {sK}, {kin}")
        A(f"s_and_b32 {sT}, {sK}, 0x7ff\ns_sub_u32 {sT}, 2047, {sT}")
        self.stamp(13, A)
        A(f"s_lshr_b32 s3, {sT}, 3\ns_lshl_b32 s3, s3, 11\ns_add_u32 s3, s3, {WS_ROWS}")
        XS = get(4)
        vRed = get()
        if role == 0:
            A(f"""
            s_lshl_b32 s16, {sW}, 8
            s_add_u32 s3, s3, s16
            v_and_b32 {t1}, 3, {vI}
            v_lshlrev_b32 {t1}, 6, {t1}
            v_lshl_add_u32 {t1}, {vG}, 4, {t1}
            v_add_u32 {t1}, s3, {t1}
            """)

            def row_loads(C):
                C(f"global_load_dwordx4 {XS}, {t1}, s[30:31] sc1")
            row_loads(A)
            A(f"v_cmp_ne_u32 vcc, {kin}, {kmax}\ns_and_b64 exec, vcc, {sC}")
            out_stores(A)
            A("s_mov_b64 exec, -1")
            A(f"s_lshl_b32 s3, {sW}, 2\nv_lshl_add_u32 {vRed}, {vI}, 4, s3")
            self.poll(A, "row" + sfx, row_loads, poison_check([XS[k] for k in range(4)]))
            self.stamp(14, A)
            for m in range(4):
                A(f"v_mfma_f32_16x16x32_bf16 {D[4 * m:4 * m + 4]}, {XS}, {WT[m]}, 0")
            A(f"""
            v_and_b32 {t1}, 7, {vL}
            v_lshlrev_b32 {t1}, 4, {t1}
            v_lshrrev_b32 {t2}, 3, {vL}
            s_lshl_b32 s3, {self.sPhi}, 4
            s_add_u32 s3, s3, {WS_S4}
            v_lshl_add_u32 {t2}, {t2}, 12, s3
            v_add_f32 {t0}, {D[0]}, {D[5]}
            v_add_f32 {t0}, {t0}, {D[10]}
            v_add_f32 {t0}, {t0}, {D[15]}
            s_mov_b64 exec, 0xffff
            ds_write_b32 {vRed}, {t0} offset:{L_RED}
            s_mov_b64 exec, -1
            """)
            A.barrier()
            A(f"s_cmp_eq_u32 {sW}, 0\ns_cbranch_scc0 L_fin_{sfx}")
            A(f"ds_read_b128 {T[0:4]}, {t1} offset:{L_RED}\nds_read_b128 {T[4:8]}, {t1} offset:{L_RED + 128}")
            A(f"v_pk_add_f32 {T[0:2]}, {T[0:2]}, {T[2:4]}\nv_pk_add_f32 {T[4:6]}, {T[4:6]}, {T[6:8]}")
            A(f"v_add_f32 {T[0]}, {T[0]}, {T[1]}\nv_add_f32 {T[4]}, {T[4]}, {T[5]}")
            self.rnd(A, T[0], T[0])
            self.rnd(A, T[4], T[4])
            A(f"v_mul_f32 {t0}, {LOG2E | 0x80000000}, {T[0]}\nv_exp_f32 {t0}, {t0}\nv_add_f32 {t0}, 1.0, {t0}")
            A(f"v_rcp_f32 {t0}, {t0}\nv_mul_f32 {t0}, {T[0]}, {t0}")
            self.rnd(A, t0, t0)
            A(f"v_mul_f32 {t0}, {t0}, {T[4]}")
            A(f"v_mov_b32_dpp {t1}, {t0} row_shl:1 row_mask:0xf bank_mask:0xf")
            A(f"v_cvt_pk_bf16_f32 {XS[0]}, {t0}, {t1}")
            for k in range(1, 4):
                A(f"v_mov_b32_dpp {XS[k]}, {XS[0]} row_shl:{2 * k} row_mask:0xf bank_mask:0xf")
            A("s_mov_b32 exec_lo, 0x01010101\ns_mov_b32 exec_hi, 0x01010101")
            A(f"global_store_dwordx4 {t2}, {XS}, s[30:31] sc1")
            self.stamp(15, A)
        else:
            HH = get(2)
            A(f"""
            s_sub_u32 s16, {self.sPhi}, 224
            s_lshl_b32 s16, s16, 5
            s_add_u32 s3, s3, s16
            v_lshrrev_b32 {t1}, 1, {vI}
            v_lshl_add_u32 {t1}, {t1}, 2, s3
            """)

            def row_loads(C):
                C(f"global_load_dword {HH[0]}, {t1}, s[30:31] sc1")
                C(f"global_load_dword {HH[1]}, {t1}, s[30:31] offset:1024 sc1")
            row_loads(A)
            self.poll(A, "row" + sfx, row_loads, poison_check([HH[0], HH[1]]))
            self.stamp(14, A)
            A(f"v_cmp_eq_u32 vcc, {kin}, {key}\ns_andn2_b64 exec, -1, vcc")
            out_stores(A)
            A("s_mov_b64 exec, 1")
            A(f"v_mov_b32 {t0}, {self.sE}\nv_mov_b32 {t2}, 0")
            A(f"global_store_dword {t2}, {t0}, s[30:31] offset:{WS_EPOCH}")
            A("s_mov_b64 exec, -1")
            tr_reads()
            vSig, vOut, vS4i = get(), get(), get()
            A(f"""
            s_and_b32 s16, {sK}, 0x7fff0000
            s_andn2_b32 s17, 0xffff0000, {sK}
            s_bitcmp1_b32 {sK}, 31
            s_cselect_b32 s16, s16, s17
            v_mov_b32 {t0}, s16
            v_mul_f32 {t0}, {LOG2E | 0x80000000}, {t0}
            v_exp_f32 {t0}, {t0}
            v_add_f32 {t0}, 1.0, {t0}
            v_rcp_f32 {t0}, {t0}
            """)
            self.rnd(A, vSig, t0)
            A(f"""
            v_and_b32 {t0}, 1, {vI}
            v_xor_b32 {t0}, 1, {t0}
            v_lshlrev_b32 {t0}, 4, {t0}
            v_lshlrev_b32 {HH[0]}, {t0}, {HH[0]}
            v_lshlrev_b32 {HH[1]}, {t0}, {HH[1]}
            v_and_b32 {HH[0]}, 0xffff0000, {HH[0]}
            v_and_b32 {HH[1]}, 0xffff0000, {HH[1]}
            s_lshl_b32 s3, {sT}, 10
            s_sub_u32 s16, {self.sPhi}, 224
            s_lshl_b32 s16, s16, 5
            s_add_u32 s3, s3, s16
            v_lshl_add_u32 {vOut}, {vI}, 1, s3
            s_lshr_b32 s3, {sL}, 5
            s_lshl_b32 s3, s3, 12
            s_mul_i32 s16, {sW}, {56 * 16}
            s_add_u32 s3, s3, s16
            s_add_u32 s3, s3, {WS_S4}
            v_min_u32 {t0}, 13, {vI}
            v_lshl_add_u32 {t0}, {t0}, 2, {vG}
            v_lshl_add_u32 {vS4i}, {t0}, 4, s3
            s_lshl_b32 s3, {sW}, 2
            v_lshl_add_u32 {vRed}, {vI}, 4, s3
            v_mov_b32 {t2}, 0
            """)
            A.wait(vm=0)

            def s4_loads(C):
                C(f"global_load_dwordx4 {XS}, {vS4i}, s[30:31] sc1")
            s4_loads(A)
            self.poll(A, "s4", s4_loads, poison_check([XS[k] for k in range(4)]))
            self.stamp(15, A)
            DD = [get(4) for _ in range(6)]
            for m in range(14 + 3):
                if m < 14:
                    A(f"v_mfma_f32_16x16x32_bf16 {DD[m % 6]}, {XS}, {WT[m]}, 0")
                k = m - 3
                if k >= 0:
                    A(f"v_add_f32_dpp {t2}, {DD[k % 6][k % 4]}, {t2} quad_perm:[0,1,2,3] row_mask:{1 << (k // 4)} bank_mask:0xf")
            for sw in ("v_permlane16_swap_b32", "v_permlane32_swap_b32"):
                A(f"v_mov_b32 {t0}, {t2}\n{sw} {t2}, {t0}\nv_add_f32 {t2}, {t2}, {t0}")
            A(f"s_mov_b64 exec, 0xffff\nds_write_b32 {vRed}, {t2} offset:{L_RED}\ns_mov_b64 exec, -1")
            A(f"v_lshlrev_b32 {t1}, 4, {vI}")
            A.barrier()
            A(f"s_cmp_eq_u32 {sW}, 0\ns_cbranch_scc0 L_fin_{sfx}")
            A(f"ds_read_b128 {T[0:4]}, {t1} offset:{L_RED}")
            A(f"v_pk_add_f32 {T[0:2]}, {T[0:2]}, {T[2:4]}\nv_add_f32 {t0}, {T[0]}, {T[1]}")
            self.rnd(A, t0, t0)
            A(f"v_mul_f32 {t0}, {t0}, {vSig}")
            self.rnd(A, t0, t0)
            A(f"v_add_f32 {t0}, {t0}, {HH[0]}")
            self.rnd(A, t0, t0)
            A(f"v_add_f32 {t0}, {t0}, {HH[1]}")
            self.rnd(A, t0, t0)
            A("s_mov_b64 exec, 0xffff")
            A(f"global_store_short_d16_hi {vOut}, {t0}, s[28:29]")
            self.stamp(16, A)
        A.flush()
        A.label(f"L_fin_{sfx}")
        if self.o["stamps"]:
            A.wait(vm=0)
            self.stamp(17, A)
            A("s_waitcnt vmcnt(0) lgkmcnt(0)")
            self.dump_stamps(A)
        A("s_endpgm")
        V.put(*got)
        self.AC.put(*WT)

    def build(self):
        A = self.A
        self.prologue()
        self.ln1()
        self.warm()
        self.kgen()
        self.s1_consume()
        self.conv_both()
        self.sWb, self.sC, self.sK, self.sT = self.S.get(), self.S.get(2), self.S.get(), self.S.get()
        A(f"s_cmp_eq_u32 {self.sRole}, 0\ns_cbranch_scc0 L_role1")
        B = A.fork()
        self.tail(A, 0)
        B.label("L_role1")
        self.tail(B, 1)
        body = A.text() + B.text() + "".join(c.text() for c in self.cold)
        nv = self.V.top + 1
        accum = (nv + 3) // 4 * 4
        total = max(accum + self.AC.top + 1, 264)
        head = open(f"cdna_kernels/{NAME}.s.ref").read().split("; Override launch geometry")[0]
        self.stats = dict(instr=A.count + B.count, nops=A.nops + B.nops, vgpr=nv, agpr=self.AC.top + 1, mfma=self.nmfma)
        return head + f"""; One persistent launch: 256 workgroups, one per CU, exchanging data through d_ws.
; @launch grid=(256,1,1) block=(256,1,1) lds={LDS_BYTES}
.amdgcn_target "amdgcn-amd-amdhsa--gfx950"
.text
.globl {NAME}_kernel
.p2align 8
.type {NAME}_kernel,@function
{NAME}_kernel:
{body}L_end:
    s_endpgm
L_code_end:
.section .rodata,"a"
.p2align 6
.amdhsa_kernel {NAME}_kernel
  .amdhsa_next_free_vgpr {total}
  .amdhsa_next_free_sgpr 102
  .amdhsa_accum_offset {accum}
  .amdhsa_group_segment_fixed_size 0
  .amdhsa_kernarg_size 120
  .amdhsa_user_sgpr_count 2
  .amdhsa_user_sgpr_kernarg_segment_ptr 1
  .amdhsa_system_sgpr_workgroup_id_x 1
  .amdhsa_float_denorm_mode_32 3
.end_amdhsa_kernel
"""


def generate(path, **opt):
    g = Gen(**opt)
    text = g.build()
    open(path, "w").write(text)
    return g.stats


if __name__ == "__main__":
    out = sys.argv[1] if len(sys.argv) > 1 else f"cdna_kernels/{NAME}.s"
    opts = {}
    for a in sys.argv[2:]:
        k, v = a.split("=")
        opts[k] = {"True": True, "False": False}.get(v, int(v) if v.isdigit() else v)
    print(generate(out, **opts))
```

```python
import copy
import re

REG = re.compile(r"^(-|\|)?(abs\()?([vas])(\d+|\[(\d+):(\d+)\])\)?\|?$")
TRANS = ("v_exp_f32", "v_log_f32", "v_rcp_f32", "v_rsq_f32", "v_sqrt_f32", "v_sin_f32", "v_cos_f32")
NODST = ("global_store", "ds_write", "ds_pk_add", "ds_max", "global_load_lds", "s_cmp", "s_waitcnt", "s_nop", "s_barrier", "s_branch",
         "s_cbranch", "s_endpgm", "s_setprio", "s_sleep", "s_bitcmp", "buffer_inv", "buffer_wbl2")


def regs_of(tok):
    tok = tok.strip()
    if tok in ("vcc",):
        return [("s", 106), ("s", 107)]
    if tok == "vcc_lo":
        return [("s", 106)]
    if tok == "vcc_hi":
        return [("s", 107)]
    if tok == "exec":
        return [("s", 126), ("s", 127)]
    if tok == "exec_lo":
        return [("s", 126)]
    if tok == "exec_hi":
        return [("s", 127)]
    if tok == "m0":
        return [("s", 124)]
    m = REG.match(tok)
    if not m:
        return []
    f = m.group(3)
    if m.group(5) is not None:
        return [(f, i) for i in range(int(m.group(5)), int(m.group(6)) + 1)]
    return [(f, int(m.group(4)))]


def split_ops(s):
    out, depth, cur = [], 0, ""
    for ch in s:
        if ch == "[":
            depth += 1
        if ch == "]":
            depth -= 1
        if ch == "," and depth == 0:
            out.append(cur.strip())
            cur = ""
        else:
            cur += ch
    if cur.strip():
        out.append(cur.strip())
    return out


class Ins:
    def __init__(self, text):
        self.text = text.strip()
        parts = self.text.split(None, 1)
        self.op = parts[0]
        ops = split_ops(parts[1]) if len(parts) > 1 else []
        self.mods = ""
        if ops:
            last = ops[-1].split(None, 1)
            if len(last) > 1:
                ops[-1] = last[0]
                self.mods = last[1]
        self.ops = ops
        op = self.op
        self.is_mfma = op.startswith("v_mfma")
        self.is_valu = op.startswith("v_") and not self.is_mfma
        self.is_trans = op.replace("_e32", "").replace("_e64", "") in TRANS
        self.is_dot = op.startswith("v_dot")
        self.is_dpp = op.endswith("_dpp")
        self.is_perm = op.startswith("v_permlane")
        self.is_rdlane = op.startswith("v_readlane") or op.startswith("v_readfirstlane")
        self.is_ds = op.startswith("ds_")
        self.is_vmem = op.startswith("global_") or op.startswith("buffer_")
        self.is_smem = op.startswith("s_load") or op.startswith("s_memtime") or op.startswith("s_memrealtime")
        self.is_salu = op.startswith("s_") and not self.is_smem
        ndst = 1
        if op.startswith(NODST):
            ndst = 0
        if op.startswith(("v_add_co", "v_addc_co", "v_sub_co", "v_subb_co")):
            ndst = 2
        self.dst, self.src = [], []
        for i, o in enumerate(ops):
            (self.dst if i < ndst else self.src).extend(regs_of(o))
        if self.is_perm:
            self.dst = regs_of(ops[0]) + regs_of(ops[1])
            self.src = list(self.dst)
        if op.startswith(("v_fmac", "v_dot2c", "s_bitset", "s_addk", "s_mulk", "v_writelane")) or self.is_dpp \
                or "d16" in op and ndst:
            self.src = self.src + self.dst
        if "saveexec" in op:
            self.dst = self.dst + regs_of("exec")
        if op.startswith("v_cndmask") and len(ops) == 3:
            self.src = self.src + regs_of("vcc")
        if op.startswith("s_cbranch_vcc"):
            self.src = regs_of("vcc")
        if op.startswith("global_load_lds") or "addtid" in op:
            self.src = self.src + regs_of("m0")
        if self.is_mfma:
            self.srcAB = regs_of(ops[1]) + regs_of(ops[2])
            self.srcC = regs_of(ops[3])
            self.passes = 8 if "32x32" in op else 4
        self.wide_store = (op.startswith("global_store_dwordx") and op[-1] in "34") or op in ("ds_write_b128", "ds_write_b96")
        self.store_data = []
        if self.wide_store:
            self.store_data = regs_of(ops[1])
        self.states = 1
        if op == "s_nop":
            self.states = int(ops[0]) + 1


def ov(a, b):
    return bool(set(a) & set(b))


def need_states(p, c):
    n = 0
    pv = [r for r in p.dst if r[0] != "s"]
    ps = [r for r in p.dst if r[0] == "s"]
    if p.is_valu:
        if c.is_dpp and ov(pv, c.src):
            n = max(n, 2)
        if c.is_perm and ov(pv, c.src):
            n = max(n, 2)
        if c.is_rdlane and ov(pv, c.src):
            n = max(n, 1)
        if c.is_mfma and ov(pv, c.src):
            n = max(n, 3 if p.is_dot else 2)
        if p.is_trans and c.is_valu and not c.is_trans and ov(pv, c.src):
            n = max(n, 1)
        if p.is_dot and (ov(pv, c.src) or ov(pv, c.dst)):
            same_c = c.op == p.op and len(c.ops) == 4 and not ov(pv, regs_of(c.ops[1]) + regs_of(c.ops[2]))
            if not same_c:
                n = max(n, 3)
        if ps:
            if c.is_valu and ov(ps, c.src):
                n = max(n, 4 if c.op.startswith(("v_readlane", "v_writelane")) else 2)
            if c.is_vmem and ov(ps, c.src):
                n = max(n, 5)
            if (c.is_salu or c.is_smem) and ov(ps, c.src) and not c.op.startswith("s_cbranch"):
                n = max(n, 1)
        if "op_sel" in p.mods and not p.op.startswith("v_pk") and (c.is_valu or c.is_mfma) and ov(pv, c.src + c.dst):
            n = max(n, 1)
    if p.is_mfma:
        lat = {4: 8, 8: 12}[p.passes]
        if c.is_mfma:
            if ov(p.dst, c.srcAB):
                n = max(n, lat)
            if ov(p.dst, c.srcC) and not (c.srcC == p.dst and c.passes == p.passes):
                n = max(n, lat - 2)
            if ov(p.dst, c.dst) and c.srcC != p.dst:
                n = max(n, lat)
        elif (c.is_valu or c.is_vmem or c.is_ds) and (ov(p.dst, c.src) or ov(p.dst, c.dst)):
            n = max(n, lat)
        if (c.is_valu or c.is_ds or c.is_vmem) and ov(p.srcC, c.dst):
            n = max(n, {4: 3, 8: 7}[p.passes])
    if p.wide_store and ov(p.store_data, c.dst):
        n = max(n, 2)
    if p.is_salu and ("s", 124) in p.dst and (c.op.startswith("global_load_lds") or "addtid" in c.op):
        n = max(n, 1)
    return n


class Asm:
    def __init__(self):
        self.lines = []
        self.hist = []
        self.vm = []
        self.lg = []
        self.sm = []
        self.nops = 0
        self.count = 0

    def fork(self):
        o = Asm()
        o.hist = list(self.hist)
        o.vm = list(self.vm)
        o.lg = list(self.lg)
        o.sm = list(self.sm)
        return o

    def raw(self, text):
        self.lines.append(text)

    def comment(self, text):
        self.lines.append("; " + text)

    def label(self, name):
        self.lines.append(name + ":")

    def _push(self, ins):
        self.lines.append("    " + ins.text)
        self.hist.append(ins)
        self.hist = self.hist[-24:]
        self.count += 1

    def wait(self, vm=None, lg=None):
        parts = []
        if vm is not None and vm < len(self.vm):
            assert vm <= 63
            parts.append(f"vmcnt({vm})")
            self.vm = self.vm[len(self.vm) - vm:] if vm else []
        if lg is not None and (lg < len(self.lg) or (lg == 0 and self.sm)):
            if self.sm:
                lg = 0
            lg = min(lg, 15)
            parts.append(f"lgkmcnt({lg})")
            self.lg = self.lg[len(self.lg) - lg:] if lg else []
            if lg == 0:
                self.sm = []
        if parts:
            self._push(Ins("s_waitcnt " + " ".join(parts)))

    def wait_tag(self, tag):
        idx = [i for i, (_, t) in enumerate(self.vm) if t == tag]
        if idx:
            self.wait(vm=len(self.vm) - 1 - idx[-1])

    def prewait(self, texts):
        touched = set()
        for t in texts:
            c = Ins(t)
            touched |= set(c.src) | set(c.dst)
        vm = lg = None
        for i, (regs, _) in enumerate(self.vm):
            if regs and touched & set(regs):
                vm = len(self.vm) - 1 - i
        for i, (regs, _) in enumerate(self.lg):
            if regs and touched & set(regs):
                lg = len(self.lg) - 1 - i
        if vm is not None or lg is not None:
            self.wait(vm=vm, lg=lg)

    def barrier(self):
        self.wait(lg=0)
        self("s_barrier")

    def flush(self):
        need = 0
        dist = 0
        for p in reversed(self.hist):
            w = 0
            if p.is_mfma:
                w = {4: 8, 8: 12}[p.passes]
            elif p.is_valu:
                w = 5 if any(r[0] == "s" for r in p.dst) else 3
            elif p.wide_store:
                w = 2
            need = max(need, w - dist)
            dist += p.states
        while need > 0:
            k = min(need, 16)
            self._push(Ins(f"s_nop {k - 1}"))
            self.nops += k
            need -= k

    def __call__(self, text, tag=None):
        for line in text.strip().split("\n"):
            line = line.split(";")[0].strip()
            if line:
                self._emit(Ins(line), tag)

    def _emit(self, c, tag):
        touched = set(c.src) | set(c.dst)
        vm = lg = None
        for i, (regs, _) in enumerate(self.vm):
            if regs and touched & set(regs):
                vm = len(self.vm) - 1 - i
        for i, (regs, _) in enumerate(self.lg):
            if regs and touched & set(regs):
                lg = len(self.lg) - 1 - i
        if any(touched & set(r) for r in self.sm):
            lg = 0
        if c.is_ds and len(self.lg) >= 15 and lg is None:
            pass
        if vm is not None or lg is not None:
            self.wait(vm=vm, lg=lg)
        need, dist = 0, 0
        for p in reversed(self.hist):
            need = max(need, need_states(p, c) - dist)
            dist += p.states
            if dist > 20:
                break
        while need > 0:
            k = min(need, 16)
            self._push(Ins(f"s_nop {k - 1}"))
            self.nops += k
            need -= k
        self._push(c)
        if c.is_vmem and not c.op.startswith(("buffer_inv", "buffer_wbl2")):
            self.vm.append((c.dst, tag))
            assert len(self.vm) <= 63, "vmcnt overflow"
        if c.is_ds:
            self.lg.append((c.dst, tag))
        if c.is_smem:
            self.sm.append(c.dst)

    def text(self):
        return "\n".join(self.lines) + "\n"


class Pool:
    def __init__(self, kind, lo, hi):
        self.kind, self.free = kind, set(range(lo, hi + 1))
        self.top = lo - 1

    def get(self, n=1, align=None):
        align = align or (2 if n > 1 else 1)
        for b in sorted(self.free):
            if b % align == 0 and all(b + i in self.free for i in range(n)):
                for i in range(n):
                    self.free.discard(b + i)
                self.top = max(self.top, b + n - 1)
                return R(self.kind, b, n)
        raise RuntimeError(f"out of {self.kind} registers for {n}")

    def put(self, *rs):
        for r in rs:
            for i in range(r.n):
                assert r.b + i not in self.free
                self.free.add(r.b + i)


class R:
    def __init__(self, kind, b, n):
        self.kind, self.b, self.n = kind, b, n

    def __getitem__(self, i):
        if isinstance(i, slice):
            lo, hi = i.start or 0, i.stop if i.stop is not None else self.n
            assert 0 <= lo < hi <= self.n
            return R(self.kind, self.b + lo, hi - lo)
        assert 0 <= i < self.n
        return R(self.kind, self.b + i, 1)

    def __str__(self):
        return f"{self.kind}{self.b}" if self.n == 1 else f"{self.kind}[{self.b}:{self.b + self.n - 1}]"

    __repr__ = __str__
```

```python
import sys
from asmdsl import Asm, Pool, R

NAME = "sequential_preLN__ssm_conv_s4d__moe_arch_mod__prompt"

WS_EPOCH = 0
WS_S3 = 0x8000
WS_S4 = 0x10000
WS_ROWS = 0x20000
WS_S1 = 0x100000
WS_S2 = 0x300000
WS_STAMP = 0x600000

ROWB = 544
STAGE_CH = 57 * ROWB
L_K = 0
KCOPY = 2112
KCH = 4 * KCOPY
L_U = L_K + 2 * KCH
UCH = 4672
L_Z = 26368
L_H = L_Z + 8192
L_ST = L_H + 8192
L_KEY = L_ST + 64
L_KEY2 = L_KEY + 32
L_RED = L_KEY2 + 32
L_STAGE = 43520
LDS_BYTES = L_STAGE + 2 * STAGE_CH
assert L_U + UCH + 4608 <= L_Z and L_RED + 512 <= L_STAGE and L_STAGE % 256 == 0

NX = 560
V2 = [608 + 64 * s for s in range(4)]
V3 = [864 + 80 * s for s in range(2)]
TAGMASK = 0x40074007
LOG2E = 0x3FB8AA3B
INV2PI = 0x3E22F983
SPIN_MAX = 1 << 14

STAMP_SETS = {
    True: ["start", "karg", "x", "pub1", "rec", "kmf", "frag", "s1", "conv", "ack2", "s2", "pub3", "ack3", "s3", "row", "g1", "g2", "end"],
    "a": ["start", "karg", "issued", "consts", "x", "stat", "b1", "norm", "pub1", "warm", "par", "ws", "recR", "rec", "b2", "kmf0", "kmf", "end"],
    "b": ["start", "kmf", "shift", "frag", "s1w", "s1", "b5", "conv", "b6", "st2", "dma", "ack2", "s2", "hw", "b7", "key", "pub3", "end"],
    "c": ["start", "pub3", "hn", "outc", "ack3", "s3p", "s3w", "s3", "row", "g1m", "g1b", "g1", "r1o", "r1t", "r1a", "g2m", "g2", "end"],
}
DEFAULTS = dict(stamps=False, s1_at="mfma", warm=True, out_pol="sc1", pf_code=False, dbg=False, poison_at="x", recb=4, warm_at="pub", xa_at="start", nf=7, ng=4, pe=14, pd=6, npre=6, clk=False, dma_at="conv", warm_mode="sect", far_span=(56, 40))


class Gen:
    def __init__(self, **opt):
        self.o = dict(DEFAULTS)
        self.o.update(opt)
        self.A = Asm()
        self.V = Pool("v", 1, 255)
        self.AC = Pool("a", 0, 255)
        self.S = Pool("s", 32, 63)
        self.cold = []
        self.nstamp = 0

    def stamp(self, name, A=None):
        sel = STAMP_SETS.get(self.o["stamps"])
        if sel and name in sel:
            i = sel.index(name)
            (A or self.A)(f"s_memrealtime s[{64 + 2 * i}:{65 + 2 * i}]")

    def dump_stamps(self, A):
        if not self.o["stamps"]:
            return
        if self.o["dbg"]:
            self.dump_debug(A)
            return
        a, d = self.V.get(), self.V.get(2)
        A("s_mov_b64 exec, 1")
        A.wait(lg=0)
        A(f"s_lshl_b32 s3, {self.sL}, 2\ns_add_u32 s3, s3, {self.sW}\ns_lshl_b32 s3, s3, 8\ns_add_u32 s3, s3, {WS_STAMP}")
        A(f"v_mov_b32 {a}, s3")
        for i in range(19):
            A(f"v_mov_b32 {d[0]}, s{64 + 2 * i}\nv_mov_b32 {d[1]}, s{65 + 2 * i}")
            A(f"global_store_dwordx2 {a}, {d}, s[30:31] offset:{8 * i}")
            A.wait(vm=0)
        self.V.put(a, d)

    def dump_debug(self, A):
        a, d = self.V.get(), self.V.get()
        n = getattr(self, "ndbg", 0)
        self.ndbg = n + 1
        A("s_mov_b64 exec, 1")
        A(f"s_cmp_eq_u32 {self.sL}, 255\ns_cbranch_scc0 L_dbg{n}\ns_cmp_eq_u32 {self.sW}, 0\ns_cbranch_scc0 L_dbg{n}")
        A("s_load_dwordx2 s[4:5], s[0:1], 104")
        A.wait(lg=0)
        A(f"v_mov_b32 {a}, 0")
        for i in range(1, 17):
            A(f"s_sub_u32 s3, s{64 + 2 * (i + 1)}, s64\nv_mov_b32 {d}, s3")
            A(f"global_store_dword {a}, {d}, s[4:5] offset:{4 * (i - 1)}")
        A.label(f"L_dbg{n}")
        self.V.put(a, d)

    def rnd(self, A, dst, src, neg=False):
        A(f"v_cvt_pk_bf16_f32 {dst}, 0, {'-' if neg else ''}{src}")

    def allreduce(self, A, op, regs, width):
        steps = ["quad_perm:[1,0,3,2]", "quad_perm:[2,3,0,1]", "row_half_mirror", "row_mirror"]
        for st in steps:
            for r in regs:
                A(f"{op}_dpp {r}, {r}, {r} {st} row_mask:0xf bank_mask:0xf")
        tmp = [self.V.get() for _ in regs]
        for w, sw in ((32, "v_permlane16_swap_b32"), (64, "v_permlane32_swap_b32")):
            if width >= w:
                for r, t in zip(regs, tmp):
                    A(f"v_mov_b32 {t}, {r}")
                for r, t in zip(regs, tmp):
                    A(f"{sw} {r}, {t}")
                for r, t in zip(regs, tmp):
                    A(f"{op} {r}, {r}, {t}")
        self.V.put(*tmp)

    def ln_stats(self, A, s1, s2, nm, rs):
        t = self.V.get()
        A(f"v_mul_f32 {s1}, 0x3b000000, {s1}")
        A(f"v_mul_f32 {s2}, 0x3b000000, {s2}")
        A(f"v_fma_f32 {t}, -{s1}, {s1}, {s2}")
        A(f"v_max_f32 {t}, 0, {t}")
        self.rnd(A, t, t)
        self.rnd(A, nm, s1, neg=True)
        A(f"v_add_f32 {t}, 0x3727c5ac, {t}")
        self.rnd(A, t, t)
        A(f"v_sqrt_f32 {t}, {t}")
        self.rnd(A, t, t)
        A(f"v_rcp_f32 {rs}, {t}")
        self.V.put(t)

    def poll(self, A, name, loads, check):
        check(A)
        A(f"s_cbranch_vccnz L_{name}_slow")
        A.label(f"L_{name}_ok")
        C = Asm()
        C.label(f"L_{name}_slow")
        C("s_mov_b32 s3, 0")
        C.label(f"L_{name}_loop")
        C("s_waitcnt vmcnt(0)")
        C("s_nop 1")
        loads(C)
        C(f"s_add_u32 s3, s3, 1\ns_cmp_ge_u32 s3, {SPIN_MAX}")
        C("s_cselect_b32 s18, 0, -1\ns_mov_b32 s19, s18")
        check(C)
        C.wait(vm=0)
        C("s_nop 1")
        C("s_and_b64 vcc, vcc, s[18:19]")
        C(f"s_cbranch_vccnz L_{name}_loop")
        C("s_nop 3")
        C(f"s_branch L_{name}_ok")
        self.cold.append(C)

    def prologue(self):
        A, V, S = self.A, self.V, self.S
        A("s_cmp_ge_u32 s2, 0x100\ns_cbranch_scc1 L_end")
        A("s_load_dwordx16 s[4:19], s[0:1], 0\ns_load_dwordx8 s[20:27], s[0:1], 64")
        A("s_load_dwordx2 s[28:29], s[0:1], 96\ns_load_dwordx2 s[30:31], s[0:1], 112")
        self.stamp("start")
        if self.o["clk"]:
            A("s_memtime s[100:101]")
        self.sL, self.sW, self.sTag, self.sE = S.get(), S.get(), S.get(), S.get()
        self.sOnes, self.sLo, self.sHi, self.sCh = S.get(), S.get(), S.get(), S.get()
        sL, sW = self.sL, self.sW
        self.vL = V.get()
        self.vI = V.get()
        self.vG = V.get()
        t0, t1, t2 = V.get(), V.get(), V.get()
        A(f"""
        s_and_b32 s3, s2, 7
        s_lshl_b32 s3, s3, 5
        s_lshr_b32 {sL}, s2, 3
        s_add_u32 {sL}, {sL}, s3
        v_lshrrev_b32 {t0}, 6, v0
        v_and_b32 {self.vL}, 63, v0
        v_readfirstlane_b32 {sW}, {t0}
        v_and_b32 {self.vI}, 15, v0
        v_bfe_u32 {self.vG}, v0, 4, 2
        """)
        self.vRow = V.get()
        vXa = V.get()
        A(f"""
        v_lshrrev_b32 {t0}, 5, v0
        v_and_b32 {t1}, 31, v0
        v_lshlrev_b32 {t0}, 10, {t0}
        s_lshl_b32 s3, {sL}, 13
        v_lshl_add_u32 {t0}, {t1}, 4, {t0}
        v_add_u32 {self.vRow}, s3, {t0}
        v_lshl_add_u32 {vXa}, v0, 2, s3
        """)
        A(f"""
        s_lshr_b32 s3, {sL}, 6
        s_lshl_b32 {self.sCh}, s3, 7
        s_and_b32 s3, {sL}, 31
        s_lshl_b32 s3, s3, 2
        s_add_u32 {self.sCh}, {self.sCh}, s3
        s_bfe_u32 s3, {sL}, 0x10005
        s_add_u32 {self.sCh}, {self.sCh}, s3
        s_and_b32 s3, {sW}, 2
        s_add_u32 {self.sCh}, {self.sCh}, s3
        """)
        vP, vC, vXb = V.get(), V.get(), V.get()
        A(f"""
        s_lshl_b32 s3, {self.sCh}, 8
        v_lshl_add_u32 {vP}, {self.vL}, 2, s3
        s_lshl_b32 s3, {self.sCh}, 1
        v_mov_b32 {vC}, s3
        v_add_u32 {vXb}, 0x1000, {vXa}
        v_lshlrev_b32 {t1}, 4, {t1}
        """)
        self.XB = V.get(8)
        self.XA = V.get(8)
        self.PAR = V.get(6)
        self.WR = V.get(8)
        A(f"global_load_dwordx4 {self.XB[0:4]}, {self.vRow}, s[4:5]")
        A(f"global_load_dwordx4 {self.XB[4:8]}, {self.vRow}, s[4:5] offset:512")
        A(f"s_load_dword {self.sE}, s[30:31], {WS_EPOCH}")
        self.stamp("karg")
        def late_loads():
            for j in range(8):
                A(f"global_load_dword {self.XA[j]}, {vXa if j < 4 else vXb}, s[4:5] offset:{1024 * (j % 4)}")
            for k in range(4):
                A(f"global_load_dword {self.PAR[k]}, {vP}, s[{6 + 2 * k}:{7 + 2 * k}]")
            A(f"global_load_ushort {self.PAR[4]}, {vC}, s[14:15]")
            A(f"global_load_ushort {self.PAR[5]}, {vC}, s[{self.sDs.b}:{self.sDs.b + 1}]")
            V.put(vXa, vXb, vP, vC)
            if self.o["poison_at"] == "xa":
                self.poison2()
        self.late_loads = late_loads
        self.sDs = S.get(2)
        A(f"s_mov_b64 {self.sDs}, s[16:17]")
        if self.o["xa_at"] == "start":
            late_loads()
        self.vJunk = V.get(4)
        if self.o["pf_code"]:
            A("s_getpc_b64 s[18:19]")
            A.label("L_pc")
            A(f"v_lshlrev_b32 {t0}, 7, v0")
            A(f"v_min_u32 {t0}, L_code_end-L_pc-4, {t0}")
            A(f"global_load_dword {self.vJunk[0]}, {t0}, s[18:19]")
        self.stamp("issued")
        self.vWr = V.get()
        A(f"v_mov_b32 {self.vWr}, {t1}")
        self.M1 = M1 = V.get(4)
        self.vS2o, self.vS2o2, self.vP2, self.vP3 = V.get(), V.get(), V.get(), V.get()
        for k in range(4):
            A(f"v_mov_b32 {M1[k]}, -1")
        A(f"""
        s_lshl_b32 s3, {sL}, 13
        s_add_u32 s3, s3, {WS_S2}
        v_lshl_add_u32 {self.vS2o}, v0, 4, s3
        v_add_u32 {self.vS2o2}, 0x1000, {self.vS2o}
        """)
        A(f"s_lshl_b32 s16, {sW}, 11\ns_add_u32 s3, s3, s16\nv_lshl_add_u32 {self.vP2}, {self.vL}, 4, s3")
        if self.o["poison_at"] == "start":
            self.poison2()
        self.sPhi, self.sRole = S.get(), S.get()
        A(f"""
        s_lshr_b32 s3, {sL}, 5
        s_and_b32 s16, {sL}, 31
        s_mul_i32 s17, s3, 28
        s_add_u32 s17, s17, s16
        s_lshl_b32 s3, s3, 2
        s_add_u32 s3, s3, s16
        s_add_u32 s3, s3, {224 - 28}
        s_cmp_ge_u32 s16, 28
        s_cselect_b32 {self.sPhi}, s3, s17
        s_cselect_b32 {self.sRole}, 1, 0
        """)
        A(f"""
        s_lshl_b32 s3, {sL}, 11
        s_add_u32 s3, s3, {WS_ROWS}
        v_lshl_add_u32 {t0}, v0, 4, s3
        s_lshl_b32 s16, {sL}, 4
        s_add_u32 s16, s16, {WS_S3}
        s_lshl_b32 s17, {self.sPhi}, 4
        s_add_u32 s17, s17, {WS_S4}
        s_cmp_eq_u32 {sW}, 2
        s_cselect_b32 s16, s16, s17
        v_lshl_add_u32 {t1}, {self.vL}, 12, s16
        s_cmp_lt_u32 {sW}, 2
        s_cselect_b64 vcc, -1, 0
        v_cndmask_b32 {self.vP3}, {t1}, {t0}, vcc
        """)
        Z = V.get(4)
        for k in range(4):
            A(f"v_mov_b32 {Z[k]}, 0")
        A(f"""
        v_lshrrev_b32 {t0}, 7, v0
        v_and_b32 {t1}, 127, v0
        v_mul_u32_u24 {t0}, {KCH}, {t0}
        v_lshl_add_u32 {t0}, {t1}, 4, {t0}
        ds_write_b128 {t0}, {Z} offset:{L_K}
        v_lshrrev_b32 {t2}, 7, v0
        v_mul_u32_u24 {t2}, {UCH}, {t2}
        v_lshl_add_u32 {t2}, {t1}, 2, {t2}
        ds_write_b32 {t2}, {Z[0]} offset:{L_U}
        """)
        self.vShift = V.get()
        A(f"v_mov_b32 {self.vShift}, {t0}")
        V.put(Z)
        A(f"s_mov_b32 {self.sOnes}, 0x3f803f80\ns_mov_b32 {self.sLo}, 0x3f80\ns_mov_b32 {self.sHi}, 0x3f800000")
        self.consts(t0, t1, t2)
        self.warm("consts")
        self.stamp("consts")
        V.put(t0, t1, t2)

    def poison2(self):
        A = self.A
        A(f"global_store_dwordx4 {self.vP2}, {self.M1}, s[30:31] sc1", tag="poison")
        A(f"global_store_dwordx4 {self.vP2}, {self.M1}, s[30:31] offset:1024 sc1", tag="poison")

    def after_publish(self):
        A, V = self.A, self.V
        A(f"s_cmp_lt_u32 {self.sW}, 2\ns_cselect_b64 exec, -1, 0xff")
        A(f"global_store_dwordx4 {self.vP3}, {self.M1}, s[30:31] sc1", tag="poison3")
        A("s_mov_b64 exec, -1")
        A(f"global_load_dwordx4 {self.WR[0:4]}, {self.vWr}, s[20:21]")
        A(f"global_load_dwordx4 {self.WR[4:8]}, {self.vWr}, s[20:21] offset:512")
        self.warm("pub")
        V.put(self.M1, self.vP2, self.vP3, self.vWr)

    def consts(self, t0, t1, t2):
        A, V, S = self.A, self.V, self.S
        vI, vG, vL, sW, sL = self.vI, self.vG, self.vL, self.sW, self.sL
        self.BAND = {}
        if self.o["xa_at"] == "pre":
            self.late_loads()
        A(f"v_lshlrev_b32 {t0}, 3, {vG}\nv_sub_u32 {t0}, {vI}, {t0}")
        for (delta, h) in ((12, 1), (8, 2), (4, 1), (8, 3), (8, 4)):
            B = V.get(4)
            self.BAND[(delta, h)] = B
            win = (1 << (2 * h + 1)) - 1
            A(f"v_add_u32 {t1}, {delta - h + 12}, {t0}")
            A(f"v_med3_i32 {t1}, {t1}, 0, 22")
            A(f"v_mov_b32 {t2}, {win}")
            A(f"v_lshlrev_b32 {t1}, {t1}, {t2}")
            for d in range(4):
                A(f"v_bfe_u32 {t2}, {t1}, {12 + 2 * d}, 2")
                A(f"v_mul_u32_u24 {t2}, 0x8001, {t2}")
                A(f"v_and_b32 {t2}, 0x10001, {t2}")
                A(f"v_mul_u32_u24 {B[d]}, 0x3c00, {t2}")
        if self.o["xa_at"] == "band":
            self.late_loads()
        sB, sH = S.get(), S.get()
        self.sB, self.sH = sB, sH
        A(f"s_lshr_b32 {sB}, {sW}, 1\ns_and_b32 {sH}, {sW}, 1")
        self.sStM = S.get()
        A(f"""
        s_mul_i32 s3, {sB}, {STAGE_CH}
        s_add_u32 s3, s3, {L_STAGE}
        s_lshl_b32 s16, {sH}, 8
        s_add_u32 s16, s16, s3
        s_sub_u32 {self.sStM}, s16, 0x8000
        """)
        self.vA1, self.vA2, self.vBm = V.get(), V.get(), V.get()
        A(f"""
        v_xor_b32 {t0}, 3, {vI}
        v_bfe_u32 {t1}, {t0}, 1, 1
        v_add_u32 {t1}, {t0}, {t1}
        v_lshrrev_b32 {t1}, 1, {t1}
        v_add_u32 {t1}, 32, {t1}
        s_cmp_eq_u32 {sH}, 0
        s_cselect_b64 vcc, -1, 0
        s_cselect_b32 s16, 16, 0
        s_cselect_b32 s17, 0, 41
        v_cndmask_b32 {t1}, {t0}, {t1}, vcc
        v_add_u32 {t0}, s16, {t0}
        v_add_u32 {t2}, s17, {vI}
        v_mul_u32_u24 {t0}, {ROWB}, {t0}
        v_mul_u32_u24 {t1}, {ROWB}, {t1}
        v_mul_u32_u24 {t2}, {ROWB}, {t2}
        v_lshl_add_u32 {t0}, {vG}, 4, {t0}
        v_lshl_add_u32 {t1}, {vG}, 4, {t1}
        v_lshl_add_u32 {t2}, {vG}, 4, {t2}
        v_add_u32 {self.vA1}, s3, {t0}
        v_add_u32 {self.vA2}, s3, {t1}
        v_add_u32 {self.vBm}, s3, {t2}
        """)
        self.vK1, self.vK2, self.vKs = V.get(), V.get(), V.get()
        t3 = V.get()
        A(f"""
        v_lshlrev_b32 {t0}, 4, {vI}
        v_sub_u32 {t0}, 540, {t0}
        v_and_b32 {t1}, 3, {vI}
        v_lshlrev_b32 {t1}, 6, {t1}
        v_lshrrev_b32 {t2}, 2, {vI}
        v_lshlrev_b32 {t2}, 4, {t2}
        v_sub_u32 {t1}, {t1}, {t2}
        v_add_u32 {t1}, {V2[0] + 44}, {t1}
        v_and_b32 {t2}, 1, {vI}
        v_mul_u32_u24 {t2}, 80, {t2}
        v_lshrrev_b32 {t3}, 1, {vI}
        v_lshlrev_b32 {t3}, 4, {t3}
        v_sub_u32 {t2}, {t2}, {t3}
        v_add_u32 {t2}, {V3[0] + 60 + 64}, {t2}
        v_cmp_gt_u32 s[16:17], 8, {vI}
        v_cndmask_b32 {t1}, {t2}, {t1}, s[16:17]
        v_cndmask_b32 {t2}, {t1}, {t0}, vcc
        v_subrev_u32 {t0}, 256, {t0}
        v_cndmask_b32 {t1}, {t1}, {t0}, vcc
        v_lshlrev_b32 {t3}, 2, {vG}
        v_sub_u32 {t2}, {t2}, {t3}
        v_sub_u32 {t1}, {t1}, {t3}
        s_mul_i32 s3, {sB}, {KCH}
        s_add_u32 s3, s3, {L_K}
        v_lshl_add_u32 {self.vK1}, {t2}, 1, s3
        v_lshl_add_u32 {self.vK2}, {t1}, 1, s3
        s_cmp_eq_u32 {sH}, 0
        s_cselect_b32 s16, {2 * 29}, {2 * (NX + 27)}
        s_add_u32 s16, s16, s3
        v_mov_b32 {self.vKs}, s16
        """)
        self.vN, self.vF = V.get(), V.get()
        A(f"""
        v_sub_u32 {t0}, 15, {vI}
        v_and_b32 {t1}, 3, {t0}
        v_and_b32 {t0}, 12, {t0}
        v_mul_u32_u24 {t1}, {KCOPY}, {t1}
        v_lshl_add_u32 {t0}, {t0}, 1, {t1}
        v_add_u32 {t0}, s3, {t0}
        v_lshl_add_u32 {self.vN}, {vG}, 4, {t0}
        v_lshl_add_u32 {self.vF}, {vG}, 3, {t0}
        """)
        self.vUf, self.vUe, self.vZw, self.vZr, self.vUw = V.get(), V.get(), V.get(), V.get(), V.get()
        A(f"""
        s_mul_i32 s3, {sB}, {UCH}
        s_add_u32 s3, s3, {L_U}
        v_lshl_add_u32 {t0}, {vI}, 5, s3
        v_lshl_add_u32 {self.vUf}, {vG}, 4, {t0}
        v_lshl_add_u32 {self.vUe}, {vG}, 3, {t0}
        v_and_b32 {t0}, 2, {vG}
        v_lshl_add_u32 {t0}, {vI}, 2, {t0}
        v_add_u32 {t0}, {sB}, {t0}
        v_lshrrev_b32 {t1}, 1, {vI}
        v_xor_b32 {t0}, {t0}, {t1}
        v_and_b32 {t1}, 1, {vG}
        v_lshlrev_b32 {t1}, 3, {t1}
        v_lshl_add_u32 {self.vZw}, {t0}, 4, {t1}
        v_bfe_u32 {t0}, v0, 3, 3
        v_xor_b32 {t0}, v0, {t0}
        v_lshlrev_b32 {self.vZr}, 4, {t0}
        v_and_b32 {t0}, 1, v0
        v_lshrrev_b32 {t1}, 1, v0
        v_mul_u32_u24 {t2}, {UCH}, {t0}
        v_lshl_add_u32 {self.vUw}, {t1}, 4, {t2}
        """)
        self.vS1o, self.vS1i, self.vS1i2, self.vS2i, self.vS2i2 = V.get(), V.get(), V.get(), V.get(), V.get()
        A(f"""
        s_lshl_b32 s3, {sL}, 13
        s_lshl_b32 s16, {sW}, 11
        s_add_u32 s3, s3, s16
        s_add_u32 s3, s3, {WS_S1}
        v_lshl_add_u32 {self.vS1o}, {vL}, 4, s3
        v_lshlrev_b32 {t0}, 4, {t0}
        s_lshl_b32 s3, {sL}, 5
        s_add_u32 s16, s3, {WS_S1}
        v_lshl_add_u32 {t2}, {t1}, 13, {t0}
        v_add_u32 {self.vS1i}, s16, {t2}
        v_add_u32 {self.vS1i2}, 0x100000, {self.vS1i}
        v_lshrrev_b32 {t1}, 1, {vL}
        v_lshl_add_u32 {t2}, {t1}, 13, {t0}
        s_lshl_b32 s16, {sW}, 19
        s_add_u32 s16, s16, s3
        s_add_u32 s16, s16, {WS_S2}
        v_add_u32 {self.vS2i}, s16, {t2}
        v_add_u32 {self.vS2i2}, 0x40000, {self.vS2i}
        """)
        self.vTau, self.vMask = V.get(), V.get()
        A(f"v_lshrrev_b32 {self.vTau}, 5, v0\nv_mov_b32 {self.vMask}, {0xFFFFFFFF ^ TAGMASK}")
        V.put(t3)

    def ln1(self):
        A, V = self.A, self.V
        s1, s2, nm, rs, ad = V.get(), V.get(), V.get(), V.get(), V.get()
        A(f"v_lshlrev_b32 {ad}, 2, {self.vTau}")
        for k in range(8):
            A(f"v_dot2_f32_bf16 {s1}, {self.XB[k]}, {self.sOnes}, {s1 if k else 0}")
            A(f"v_dot2_f32_bf16 {s2}, {self.XB[k]}, {self.XB[k]}, {s2 if k else 0}")
            if k == 0:
                self.stamp("x")
                if self.o["poison_at"] == "x":
                    self.poison2()
        self.allreduce(A, "v_add_f32", [s1, s2], 32)
        self.ln_stats(A, s1, s2, nm, rs)
        self.stamp("stat")
        A("s_mov_b64 exec, 1\ns_bitset1_b64 exec, 32")
        A(f"v_mul_f32 {rs}, 0x3d800000, {rs}")
        A(f"ds_write2_b32 {ad}, {nm}, {rs} offset0:0 offset1:8" if False else
          f"ds_write_b32 {ad}, {nm} offset:{L_ST}\nds_write_b32 {ad}, {rs} offset:{L_ST + 32}")
        A("s_mov_b64 exec, -1")
        V.put(self.XB)
        self.XL, self.XH = V.get(8), V.get(8)
        for j in range(8):
            A(f"v_lshlrev_b32 {self.XL[j]}, 16, {self.XA[j]}")
            A(f"v_and_b32 {self.XH[j]}, 0xffff0000, {self.XA[j]}")
        V.put(self.XA)
        A.barrier()
        self.stamp("b1")
        NM, RS = V.get(8), V.get(8)
        A(f"v_mov_b32 {ad}, 0")
        for k in range(2):
            A(f"ds_read_b128 {NM[4 * k:4 * k + 4]}, {ad} offset:{L_ST + 16 * k}")
        for k in range(2):
            A(f"ds_read_b128 {RS[4 * k:4 * k + 4]}, {ad} offset:{L_ST + 32 + 16 * k}")
        A(f"s_add_u32 {self.sE}, {self.sE}, 1\ns_and_b32 {self.sTag}, {self.sE}, {TAGMASK}")
        T = V.get(8)
        for e, X in enumerate((self.XL, self.XH)):
            G = V.get(4)
            for q in range(4):
                A(f"v_pk_add_f32 {T[2 * q:2 * q + 2]}, {X[2 * q:2 * q + 2]}, {NM[2 * q:2 * q + 2]}")
            for j in range(8):
                self.rnd(A, T[j], T[j])
            for q in range(4):
                A(f"v_pk_mul_f32 {T[2 * q:2 * q + 2]}, {T[2 * q:2 * q + 2]}, {RS[2 * q:2 * q + 2]}")
            for j in range(8):
                self.rnd(A, T[j], T[j])
            for q in range(4):
                A(f"v_cvt_pk_f16_f32 {G[q]}, {T[2 * q]}, {T[2 * q + 1]}")
            for q in range(4):
                A(f"v_and_or_b32 {G[q]}, {G[q]}, {self.vMask}, {self.sTag}")
            if e == 0:
                self.stamp("norm")
                A.wait_tag("poison")
            A(f"global_store_dwordx4 {self.vS1o}, {G}, s[30:31] offset:{1024 * e} sc1", tag="s1st")
            self.G = getattr(self, "G", []) + [G]
        self.stamp("pub1")
        V.put(T, NM, RS, s1, s2, nm, rs, ad, self.vS1o, self.vMask)

    def warm(self, where):
        if not self.o["warm"] or self.o["warm_at"] != where:
            return
        A, V = self.A, self.V
        t0, t1 = V.get(), V.get()
        if self.o["warm_mode"] == "line":
            A(f"""
            s_lshr_b32 s3, {self.sL}, 5
            s_and_b32 s16, {self.sL}, 31
            s_mul_i32 s17, s16, {16 * 3584}
            s_mul_i32 s18, s3, 448
            s_add_u32 s17, s17, s18
            v_lshrrev_b32 {t0}, 2, {self.vL}
            v_and_b32 {t1}, 3, v0
            v_mul_u32_u24 {t0}, 3584, {t0}
            v_lshl_add_u32 {t0}, {t1}, 7, {t0}
            v_add_u32 {t0}, s17, {t0}
            s_mul_i32 s17, s16, {56 * 1024}
            s_lshl_b32 s3, s3, 7
            s_add_u32 s17, s17, s3
            s_and_b32 s3, {self.sW}, 1
            s_mul_i32 s3, s3, {28 * 1024}
            s_add_u32 s17, s17, s3
            v_min_u32 {t1}, 27, {self.vL}
            v_lshl_add_u32 {t1}, {t1}, 10, s17
            s_cmp_eq_u32 {self.sW}, 0
            s_cselect_b32 s18, s22, s24
            s_cselect_b32 s19, s23, s25
            s_cmp_lt_u32 {self.sW}, 2
            s_cselect_b32 s18, s18, s26
            s_cselect_b32 s19, s19, s27
            s_cselect_b64 vcc, -1, 0
            v_cndmask_b32 {t0}, {t1}, {t0}, vcc
            global_load_dword {self.vJunk[1]}, {t0}, s[18:19]
            """)
            V.put(t0, t1)
            return
        A(f"""
        s_lshr_b32 s3, {self.sL}, 5
        s_and_b32 s16, {self.sL}, 31
        s_mul_i32 s17, s16, {16 * 3584}
        s_mul_i32 s18, s3, 448
        s_add_u32 s17, s17, s18
        v_bfe_u32 {t0}, v0, 3, 4
        v_and_b32 {t1}, 7, v0
        v_min_u32 {t1}, 6, {t1}
        v_mul_u32_u24 {t0}, 3584, {t0}
        v_lshl_add_u32 {t0}, {t1}, 6, {t0}
        v_add_u32 {t0}, s17, {t0}
        s_cmp_lt_u32 {self.sW}, 2
        s_cselect_b32 s18, s22, s24
        s_cselect_b32 s19, s23, s25
        global_load_dword {self.vJunk[1]}, {t0}, s[18:19]
        s_mul_i32 s17, s16, {56 * 1024}
        s_lshl_b32 s3, s3, 7
        s_add_u32 s17, s17, s3
        v_min_u32 {t0}, 111, v0
        v_and_b32 {t1}, 1, {t0}
        v_lshrrev_b32 {t0}, 1, {t0}
        v_lshlrev_b32 {t0}, 10, {t0}
        v_lshl_add_u32 {t0}, {t1}, 6, {t0}
        v_add_u32 {t0}, s17, {t0}
        global_load_dword {self.vJunk[2]}, {t0}, s[26:27]
        """)
        V.put(t0, t1)

    def s1_loads(self, A):
        A(f"global_load_dwordx4 {self.UG[0:4]}, {self.vS1i}, s[30:31] sc1")
        A(f"global_load_dwordx4 {self.UG[4:8]}, {self.vS1i2}, s[30:31] sc1")

    def maybe_s1(self, where):
        if self.o["s1_at"] == where:
            self.UG = self.V.get(8)
            self.s1_loads(self.A)

    def kgen(self):
        A, V = self.A, self.V
        P = self.PAR
        V.put(*self.G)
        t0, t1, dt = V.get(), V.get(), V.get()
        self.vG16, self.vD16 = V.get(), V.get()
        A(f"""
        v_and_b32 {t0}, 0x7fff7fff, {P[2]}
        v_and_b32 {t1}, 0x7fff7fff, {P[3]}
        v_pk_max_u16 {t0}, {t0}, {t1}
        v_lshrrev_b32 {t1}, 16, {t0}
        v_and_b32 {t0}, 0xffff, {t0}
        v_max_u32 {t0}, {t0}, {t1}
        v_lshlrev_b32 {dt}, 16, {P[4]}
        v_mul_f32 {dt}, {LOG2E}, {dt}
        v_exp_f32 {dt}, {dt}
        s_cmp_eq_u32 {self.sH}, 0
        s_cselect_b32 s3, 16, 0
        """)
        for k in range(4):
            A(f"v_lshlrev_b32 {P[k]}, s3, {P[k]}")
        for k in range(4):
            A(f"v_and_b32 {P[k]}, 0xffff0000, {P[k]}")
        self.rnd(A, dt, dt)
        self.stamp("par")
        A(f"v_mul_f32 {P[0]}, {LOG2E}, {P[0]}\nv_exp_f32 {P[0]}, {P[0]}")
        self.allreduce(A, "v_max_u32", [t0], 64)
        self.rnd(A, P[0], P[0])
        A(f"""
        v_lshlrev_b32 {self.vD16}, 16, {P[5]}
        v_mul_f32 {self.vD16}, 0x41800000, {self.vD16}
        v_mul_f32 {P[0]}, {P[0]}, {dt}
        v_mul_f32 {P[1]}, {P[1]}, {dt}
        v_mul_f32 {P[0]}, {LOG2E | 0x80000000}, {P[0]}
        v_mul_f32 {P[1]}, {INV2PI}, {P[1]}
        v_lshrrev_b32 {t0}, 7, {t0}
        v_max_u32 {t0}, 8, {t0}
        v_lshrrev_b32 {t1}, 23, {dt}
        v_add_u32 {t1}, {t1}, {t0}
        v_subrev_u32 {t1}, 127, {t1}
        v_max_i32 {t1}, 0, {t1}
        v_min_i32 {t1}, 254, {t1}
        v_lshlrev_b32 {self.vG16}, 23, {t1}
        v_sub_u32 {t0}, 259, {t0}
        v_and_b32 {dt}, 0x007fffff, {dt}
        v_lshl_or_b32 {dt}, {t0}, 23, {dt}
        """)
        W = {p: V.get(2) for p in (1, 16, 256)}
        for p, mul in ((1, None), (16, 0x41800000), (256, 0x43800000)):
            w = W[p]
            if mul:
                A(f"v_mul_f32 {t0}, {mul}, {P[0]}\nv_mul_f32 {t1}, {mul}, {P[1]}")
                A(f"v_exp_f32 {t0}, {t0}\nv_fract_f32 {t1}, {t1}")
            else:
                A(f"v_exp_f32 {t0}, {P[0]}\nv_fract_f32 {t1}, {P[1]}")
            A(f"v_cos_f32 {w[0]}, {t1}\nv_sin_f32 {w[1]}, {t1}")
            A(f"v_mul_f32 {w[0]}, {w[0]}, {t0}\nv_mul_f32 {w[1]}, {w[1]}, {t0}")
        L, M, Rr, T = V.get(2), V.get(2), V.get(2), V.get(2)
        A(f"v_mul_f32 {L[0]}, {P[2]}, {dt}\nv_mul_f32 {L[1]}, {P[3]}, {dt}")
        self.stamp("ws")
        NB_ = self.o["recb"]
        pk = [V.get() for _ in range(2 * NB_)]
        cnt = [0]
        queue = []
        A(f"s_mov_b32 m0, {self.sStM}")

        def cmul(d, a, b):
            A(f"v_pk_mul_f32 {T}, {a}, {b} op_sel_hi:[0,1]")
            A(f"v_pk_fma_f32 {d}, {a}, {b}, {T} op_sel:[1,1,0] op_sel_hi:[1,0,1] neg_lo:[0,1,0]")

        def flush_q():
            for row, r in queue:
                A(f"ds_write_addtid_b32 {r} offset:{32768 + row * ROWB}")
            queue.clear()

        def put(row, v, conj=False):
            r = pk[cnt[0] % (2 * NB_)]
            cnt[0] += 1
            A(f"v_cvt_pk_f16_f32 {r}, {v[0]}, {'-' if conj else ''}{v[1]}")
            queue.append((row, r))
            if len(queue) == NB_:
                flush_q()

        A(f"v_mov_b32 {t0}, 0x3c00")
        queue.append((0, t0))
        put(1, W[16], conj=True)
        cmul(Rr, W[16], W[16])
        put(2, Rr, conj=True)
        for j in range(3, 16):
            cmul(Rr, Rr, W[16])
            put(j, Rr, conj=True)
        self.maybe_s1("rec0")
        self.stamp("recR")
        for al in range(17):
            if al:
                cmul(L, L, W[1])
            if al < 16:
                put(16 + al, L)
            if al % 2 == 0:
                cmul(M, L, W[256])
                put(32 + al // 2, M)
                if al and al % 4 == 0:
                    for a in range(2):
                        cmul(M, M, W[256])
                        put(41 + 4 * a + al // 4 - 1, M)
                    if al % 8 == 0:
                        for a in range(4):
                            cmul(M, M, W[256])
                            put(49 + 2 * a + al // 8 - 1, M)
            if al == 8:
                self.maybe_s1("rec1")
        flush_q()
        V.put(L, M, Rr, T, *pk, *W.values(), t0, t1, dt, P)
        self.stamp("rec")
        self.maybe_s1("rec2")
        A.barrier()
        self.stamp("b2")
        NB = 4
        Bb = [V.get(4) for _ in range(NB)]
        A1 = [V.get(4) for _ in range(NB)]
        A2 = [V.get(4) for _ in range(NB)]
        D1, D2 = V.get(4), V.get(4)

        def rd(q):
            A(f"ds_read_b128 {Bb[q % NB]}, {self.vBm} offset:{64 * q}")
            A(f"ds_read_b128 {A1[q % NB]}, {self.vA1} offset:{64 * q}")
            A(f"ds_read_b128 {A2[q % NB]}, {self.vA2} offset:{64 * q}")
        for q in range(NB):
            rd(q)
        for q in range(8):
            A(f"v_mfma_f32_16x16x32_f16 {D1}, {A1[q % NB]}, {Bb[q % NB]}, {D1 if q else 0}")
            A(f"v_mfma_f32_16x16x32_f16 {D2}, {A2[q % NB]}, {Bb[q % NB]}, {D2 if q else 0}")
            if q + NB < 8:
                rd(q + NB)
        self.maybe_s1("mfma")
        self.stamp("kmf0")
        K1, K2 = V.get(2), V.get(2)
        A(f"s_cmp_eq_u32 {self.sH}, 0\ns_cselect_b32 s3, 63, 55\ns_cselect_b32 s16, 4, 2")
        t0 = V.get()
        A(f"v_add_u32 {t0}, s16, {self.vKs}")
        A(f"v_cvt_pk_f16_f32 {K1[0]}, {D1[0]}, {D1[1]}\nv_cvt_pk_f16_f32 {K1[1]}, {D1[2]}, {D1[3]}")
        A(f"v_cvt_pk_f16_f32 {K2[0]}, {D2[0]}, {D2[1]}\nv_cvt_pk_f16_f32 {K2[1]}, {D2[2]}, {D2[3]}")
        A(f"ds_write_b64 {self.vK1}, {K1}\nds_write_b64 {self.vK2}, {K2}")
        A("s_mov_b64 exec, 0\ns_bitset1_b64 exec, s3")
        A(f"ds_write_b16 {self.vKs}, {K2[0]}\nds_write_b16 {self.vKs}, {K2[0]} offset:2\nds_write_b16 {t0}, {K2[0]}")
        A("s_mov_b64 exec, -1")
        V.put(*Bb, *A1, *A2, D1, D2, self.vA1, self.vA2, self.vBm, self.vK1, self.vK2, self.vKs, t0)
        A.barrier()
        V.put(K1, K2)
        self.stamp("kmf")
        self.maybe_s1("shift")
        D, C1, C2, C3 = V.get(6), V.get(4), V.get(4), V.get(4)
        A(f"ds_read_b128 {D[0:4]}, {self.vShift} offset:{L_K}\nds_read_b64 {D[4:6]}, {self.vShift} offset:{L_K + 16}")
        for k in range(4):
            A(f"v_alignbit_b32 {C1[k]}, {D[k + 1]}, {D[k]}, 16")
        A(f"ds_write_b128 {self.vShift}, {C1} offset:{L_K + KCOPY}")
        for k in range(4):
            A(f"v_mov_b32 {C2[k]}, {D[k + 1]}")
        A(f"ds_write_b128 {self.vShift}, {C2} offset:{L_K + 2 * KCOPY}")
        for k in range(4):
            A(f"v_alignbit_b32 {C3[k]}, {D[k + 2]}, {D[k + 1]}, 16")
        A(f"ds_write_b128 {self.vShift}, {C3} offset:{L_K + 3 * KCOPY}")
        A.barrier()
        V.put(D, C1, C2, C3, self.vShift)
        self.stamp("shift")
        self.maybe_s1("frag")
        AC = self.AC
        self.KN = [AC.get(4, 4) for _ in range(17)]
        self.KX = AC.get(4, 4)
        self.B2 = {(k, d): AC.get(4, 4) for k in range(2) for d in (2, 3, 4)}
        self.B3 = {d: AC.get(4, 4) for d in (4, 5, 6, 7)}
        for q in range(17):
            for hf in range(2):
                A(f"ds_read_b64 {self.KN[q][2 * hf:2 * hf + 2]}, {self.vN} offset:{64 * (16 - q) + 8 * hf}")
        for hf in range(2):
            A(f"ds_read_b64 {self.KX[2 * hf:2 * hf + 2]}, {self.vN} offset:{2 * NX + 8 * hf}")
        for (k, d), r in self.B2.items():
            for hf in range(2):
                A(f"ds_read_b64 {r[2 * hf:2 * hf + 2]}, {self.vF} offset:{2 * (V2[2 * k + hf] + 32 - 16 * (d - 2))}")
        for d, r in self.B3.items():
            for hf in range(2):
                A(f"ds_read_b64 {r[2 * hf:2 * hf + 2]}, {self.vF} offset:{2 * (V3[hf] + 48 - 16 * (d - 4))}")
        V.put(self.vN, self.vF)
        self.maybe_s1("end")
        self.stamp("frag")

    def s1_consume(self, A, sfx):
        V = self.V
        UG = self.UG
        t0, t1 = V.get(), V.get()

        def check(C):
            for k in range(8):
                C(f"v_xor_b32 {UG[k]}, {self.sTag}, {UG[k]}")
            C(f"v_or3_b32 {t0}, {UG[0]}, {UG[1]}, {UG[2]}\nv_or3_b32 {t1}, {UG[3]}, {UG[4]}, {UG[5]}")
            C(f"v_or3_b32 {t0}, {t0}, {UG[6]}, {UG[7]}\nv_or_b32 {t0}, {t0}, {t1}")
            C(f"v_and_b32 {t0}, {TAGMASK}, {t0}\nv_cmp_ne_u32 vcc, 0, {t0}")
        self.poll(A, "s1" + sfx, self.s1_loads, check)
        self.stamp("s1w", A)
        A(f"ds_write_b128 {self.vUw}, {UG[0:4]} offset:{L_U + 512}")
        A(f"ds_write_b128 {self.vUw}, {UG[4:8]} offset:{L_U + 512 + 2048}")
        self.stamp("s1", A)
        A.barrier()
        self.stamp("b5", A)
        V.put(t0, t1)

    def conv(self, A, tiles, dma):
        V, AC = self.V, self.AC
        acc = {j: V.get(4) for j in tiles}
        NF, NG, NW, NP = self.o["nf"], self.o["ng"], 6, 6
        PE, PD, NPRE = self.o["pe"], self.o["pd"], self.o["npre"]
        Fb = [AC.get(4, 4) for _ in range(NF)]
        Gb = [AC.get(4, 4) for _ in range(NG)]
        Wb = [V.get(4) for _ in range(NW)]
        Pb = [V.get(4) for _ in range(NP)]
        EU = [V.get(2) for _ in range(2)]
        ED = [V.get(4) for _ in range(2)]
        EY, EZ = V.get(4), V.get(2)
        qmax = {0: 7, 1: 15}
        b2 = sorted({j - d for j in tiles for d in (2, 3, 4) if j - d >= 0})
        b3 = sorted({j - d for j in tiles for d in (4, 5, 6, 7) if j - d >= 0})
        nlo = min(8 * j - qmax.get(j, 16) for j in tiles)
        nhi = 8 * max(tiles)
        near = []
        for fi, n in enumerate(range(nlo, nhi + 1)):
            for j in tiles:
                q = 8 * j - n
                if 0 <= q <= qmax.get(j, 16):
                    near.append((j, self.KN[q], fi, q == 0))
        far = []
        gfr, pcount = [], 0
        for b in sorted(set(b2) | set(b3)):
            ga, gb = len(gfr), len(gfr) + 1
            gfr += [256 * b - 16, 256 * b - 24]
            mains = []
            if b in b2:
                pa, pb = pcount, pcount + 1
                pcount += 2
                far += [("band", ga, (12, 1), pa, 0), ("band", ga, (8, 2), pa, 1), ("band", ga, (4, 1), pb, 0), ("band", gb, (8, 2), pb, 1)]
                mains += [("main", b + d, pa, self.B2[(0, d)]) for d in (2, 3, 4) if b + d in tiles]
                mains += [("main", b + d, pb, self.B2[(1, d)]) for d in (2, 3, 4) if b + d in tiles]
            if b in b3:
                pc = pcount
                pcount += 1
                far += [("band", ga, (8, 3), pc, 0), ("band", gb, (8, 4), pc, 1)]
                mains += [("main", b + d, pc, self.B3[d]) for d in (4, 5, 6, 7) if b + d in tiles]
            if b + 4 in tiles:
                far.append(("x", b + 4, ga))
            far += mains
        LAT = 5
        mf, fill = [], []
        started, done_at = set(), {}
        fuse, guse, plast, pready = {}, {}, {}, {}
        wcount = 0
        ni = 0
        farleft = list(far)
        span = self.o["far_span"][0 if 0 in tiles else 1]
        credit = 0.0

        def acc_mf(j, a, b):
            mf.append(f"v_mfma_f32_16x16x32_f16 {acc[j]}, {a}, {b}, {acc[j] if j in started else 0}")
            started.add(j)

        def far_ok(it):
            t = len(mf)
            if it[0] == "main":
                return pready.get(it[2], 10 ** 6) <= t
            if it[0] == "band":
                prev = it[3] - NP
                return prev < 0 or not any(o[0] == "main" and o[2] == prev for o in farleft)
            return True

        while ni < len(near) or farleft:
            t = len(mf)
            want_far = farleft and (credit >= 1.0 or ni >= len(near))
            if ni < len(near) and near[ni][3] and any(o[0] in ("main", "x") and o[1] == near[ni][0] for o in farleft):
                want_far = True
            pick = None
            if want_far:
                for it in farleft[:8]:
                    if far_ok(it):
                        if it[0] == "band" and any(o[0] == "band" for o in farleft[:farleft.index(it)]):
                            continue
                        pick = it
                        break
            if pick is None and ni < len(near) and not (near[ni][3] and any(o[0] in ("main", "x") and o[1] == near[ni][0] for o in farleft)):
                j, a, fi, last = near[ni]
                ni += 1
                acc_mf(j, a, Fb[fi % NF])
                fuse.setdefault(fi, [t, t])[1] = t
                if last:
                    done_at[j] = t
                credit += len(far) / span
                continue
            assert pick is not None, "conv schedule is stuck"
            farleft.remove(pick)
            credit -= 1.0
            if pick[0] == "band":
                _, g, key, p, hf = pick
                w = Wb[wcount % NW]
                wcount += 1
                mf.append(f"v_mfma_f32_16x16x32_f16 {w}, {Gb[g % NG]}, {self.BAND[key]}, 0")
                guse.setdefault(g, [t, t])[1] = t
                for k in range(2):
                    fill.append([t + 3, t + LAT - 1, f"v_cvt_pk_f16_f32 {Pb[p % NP][2 * hf + k]}, {w[2 * k]}, {w[2 * k + 1]}", None])
                if hf == 1:
                    pready[p] = t + LAT
            elif pick[0] == "x":
                acc_mf(pick[1], self.KX, Gb[pick[2] % NG])
                guse.setdefault(pick[2], [t, t])[1] = t
            else:
                acc_mf(pick[1], Pb[pick[2] % NP], pick[3])
        nm = len(mf)
        pre = []
        reads = []
        for fi in sorted(fuse):
            txt = f"ds_read_b128 {Fb[fi % NF]}, {self.vUf} offset:{512 + 2 * (32 * (nlo + fi) - 16)}"
            reads.append((fuse[fi][0], fuse[fi - NF][1] if fi >= NF else -1, txt))
        for g in sorted(guse):
            txt = f"ds_read_b128 {Gb[g % NG]}, {self.vUf} offset:{512 + 2 * gfr[g]}"
            reads.append((guse[g][0], guse[g - NG][1] if g >= NG else -1, txt))
        reads.sort()
        for first, free, txt in reads:
            if free < 0 and first <= NPRE:
                pre.append(txt)
            else:
                assert free < first
                fill.append([max(free, first - PE, 0), max(free, first - PD, 0), txt, None])
        order_t = sorted(tiles, key=lambda j: done_at[j])
        for k, j in enumerate(order_t):
            eu, ed = EU[k % 2], ED[k % 2]
            t = done_at[j]
            nxt = done_at[order_t[k + 1]] if k + 1 < len(order_t) else nm + 100
            e0 = 2 if k < 2 else done_at[order_t[k - 2]] + 12
            assert e0 + 4 <= t + 2
            fill.append([e0, max(e0, t - 8), f"ds_read_b64 {eu}, {self.vUe} offset:{512 + 512 * j}", f"e1_{j}"])
            for r in range(4):
                fill.append([e0 + 4, t + 2, f"v_fma_mix_f32 {ed[r]}, {eu[r // 2]}, {self.vD16}, 0 op_sel:[{r % 2},0,0] op_sel_hi:[1,0,0]", f"e1_{j}"])
            for r in range(4):
                fill.append([e0 + 4, t + 2, f"v_cvt_pk_bf16_f32 {ed[r]}, 0, {ed[r]}", f"e1_{j}"])
            seq2 = [f"v_cvt_pk_bf16_f32 {EY[r]}, 0, {acc[j][r]}" for r in range(4)]
            seq2 += [f"v_fma_f32 {EY[r]}, {EY[r]}, {self.vG16}, {ed[r]}" for r in range(4)]
            seq2 += [f"v_cvt_pk_bf16_f32 {EZ[r]}, {EY[2 * r]}, {EY[2 * r + 1]}" for r in range(2)]
            seq2.append(f"ds_write_b64 {self.vZw}, {EZ} offset:{L_Z + 1024 * j}")
            for txt in seq2:
                fill.append([t + 3, min(t + 11, nxt + 2), txt, f"e2_{j}"])
        step = (nm - 6) // max(len(dma), 1)
        for k, grp in enumerate(dma):
            fill.append([1 + k * step, 3 + k * step, grp, "dma"])
        for txt in pre:
            A(txt)
        for i, f in enumerate(fill):
            f.append(i)
        left = list(fill)
        A.prewait([mf[0]])
        for t in range(nm):
            A(mf[t])
            chosen = []
            for f in sorted([f for f in left if f[0] <= t], key=lambda f: (f[1], f[4])):
                if len(chosen) >= 2 and f[1] > t:
                    break
                if f[3] and any(g[3] == f[3] and g[4] < f[4] and g not in chosen for g in left):
                    continue
                mem = isinstance(f[2], tuple) or f[2].startswith("ds_")
                if mem and f[1] > t and any(g[3] == f[3] and f[3] for g in chosen):
                    continue
                chosen.append(f)
            memf = [f for f in chosen if (isinstance(f[2], tuple) or f[2].startswith("ds_")) and not any(g[3] == f[3] and f[3] and g[4] < f[4] for g in chosen)]
            rest = [f for f in chosen if f not in memf]
            A.prewait([f[2] for f in chosen if not isinstance(f[2], tuple)] + ([mf[t + 1]] if t + 1 < nm else []))
            for f in memf + rest:
                if isinstance(f[2], tuple):
                    A(f[2][0])
                    A(f[2][1], tag="dma")
                else:
                    A(f[2])
                left.remove(f)
        for f in sorted(left, key=lambda f: (f[1], f[4])):
            A(f[2])
        self.nmfma = getattr(self, "nmfma", []) + [nm]
        V.put(*acc.values(), *Wb, *Pb, *EU, *ED, EY, EZ)
        AC.put(*Fb, *Gb)

    def dma_setup_common(self):
        pass

    def dma_plan(self, A, role):
        V = self.V
        vL, sW = self.vL, self.sW
        t0, t1 = V.get(), V.get()
        if role == 0:
            self.vWa = [V.get(), V.get()]
            A(f"""
            s_mul_i32 {self.sWb}, {sW}, 4224
            s_add_u32 {self.sWb}, {self.sWb}, {L_STAGE}
            s_lshl_b32 s3, {sW}, 7
            v_add_u32 {t0}, s3, {vL}
            v_mul_u32_u24 {t0}, 3584, {t0}
            s_lshl_b32 s3, {self.sPhi}, 4
            v_add_u32 {self.vWa[0]}, s3, {t0}
            v_add_u32 {self.vWa[1]}, {64 * 3584}, {self.vWa[0]}
            """)
            plan = [(f"s_add_u32 m0, {self.sWb}, {(m // 2) * 2112 + (m % 2) * 1024}",
                     f"global_load_lds_dwordx4 {self.vWa[m % 2]}, s[{22 + 2 * (m // 2)}:{23 + 2 * (m // 2)}]") for m in range(4)]
        else:
            self.vWa = [V.get()]
            A(f"""
            s_mul_i32 {self.sWb}, {sW}, 14336
            s_add_u32 {self.sWb}, {self.sWb}, {L_STAGE}
            s_mul_i32 s3, {sW}, 448
            v_lshrrev_b32 {t0}, 1, {vL}
            v_add_u32 {t0}, s3, {t0}
            v_lshlrev_b32 {t0}, 10, {t0}
            v_and_b32 {t1}, 1, {vL}
            v_lshl_add_u32 {t0}, {t1}, 4, {t0}
            s_sub_u32 s3, {self.sPhi}, 224
            s_lshl_b32 s3, s3, 5
            v_add_u32 {self.vWa[0]}, s3, {t0}
            s_mov_b64 s[4:5], s[26:27]
            """)
            plan = [(f"s_add_u32 m0, {self.sWb}, {m * 1024}" + ("\ns_add_u32 s4, s4, 0x8000\ns_addc_u32 s5, s5, 0" if m else ""),
                     f"global_load_lds_dwordx4 {self.vWa[0]}, s[4:5]") for m in range(14)]
        V.put(t0, t1)
        return plan

    def conv_both(self, A, role):
        sfx = f"r{role}"
        plan = self.dma_plan(A, role)
        self.plan = plan
        if self.o["dma_at"] != "conv":
            plan = []
        self.s1_consume(A, sfx)
        A(f"s_cmp_eq_u32 {self.sH}, 0\ns_cbranch_scc0 L_conv_b{sfx}")
        B = A.fork()
        self.conv(A, [0, 1, 2, 3, 4], plan)
        A.wait(lg=0)
        A.flush()
        A(f"s_branch L_conv_done{sfx}")
        B.label(f"L_conv_b{sfx}")
        self.conv(B, [5, 6, 7], plan)
        B.wait(lg=0)
        B.flush()
        assert len(A.vm) == len(B.vm)
        A.lines += B.lines
        A.count += B.count
        A.nops += B.nops
        A.label(f"L_conv_done{sfx}")
        self.stamp("conv", A)
        A("s_barrier")
        self.stamp("b6", A)
        ZT = self.ZT
        A(f"ds_read_b128 {ZT[0:4]}, {self.vZr} offset:{L_Z}\nds_read_b128 {ZT[4:8]}, {self.vZr} offset:{L_Z + 4096}")
        A(f"global_store_dwordx4 {self.vS2o}, {ZT[0:4]}, s[30:31] sc1", tag="s2st")
        A(f"global_store_dwordx4 {self.vS2o2}, {ZT[4:8]}, s[30:31] sc1", tag="s2st")
        self.stamp("st2", A)

    def tail(self, A, role):
        V, S = self.V, self.S
        vL, vI, vG, sL, sW = self.vL, self.vI, self.vG, self.sL, self.sW
        sfx = f"r{role}"
        got = []

        def get(n=1, al=None):
            r = V.get(n, al)
            got.append(r)
            return r
        t0, t1, t2 = get(), get(), get()
        vTr = get()
        if role == 0:
            A(f"""
            v_bfe_u32 {t0}, {vI}, 1, 1
            v_mul_u32_u24 {t0}, 2112, {t0}
            v_and_b32 {t1}, 1, {vI}
            v_lshl_add_u32 {t0}, {t1}, 3, {t0}
            v_lshrrev_b32 {t1}, 2, {vI}
            v_lshl_add_u32 {t1}, {vG}, 3, {t1}
            v_lshl_add_u32 {t0}, {t1}, 4, {t0}
            v_add_u32 {vTr}, {self.sWb}, {t0}
            """)
        else:
            A(f"""
            v_and_b32 {t0}, 3, {vI}
            v_lshlrev_b32 {t0}, 3, {t0}
            v_lshrrev_b32 {t1}, 2, {vI}
            v_lshl_add_u32 {t1}, {vG}, 3, {t1}
            v_lshl_add_u32 {t0}, {t1}, 5, {t0}
            v_add_u32 {vTr}, {self.sWb}, {t0}
            """)
        self.stamp("dma", A)
        vSW, vHw, vHr, vKw, vS3o, vS3i, vRo = get(), get(), get(), get(), get(), get(), get()
        for k in range(8):
            A(f"v_dot2_f32_bf16 {vSW}, {self.WR[k]}, {self.sOnes}, {vSW if k else 0}")
        self.allreduce(A, "v_add_f32", [vSW], 32)
        A(f"""
        v_lshlrev_b32 {vHw}, 2, v0
        v_and_b32 {t0}, 31, v0
        v_lshlrev_b32 {t0}, 4, {t0}
        v_lshl_add_u32 {vHr}, {self.vTau}, 10, {t0}
        v_lshlrev_b32 {vKw}, 2, {self.vTau}
        s_lshl_b32 s3, {sW}, 13
        s_lshl_b32 s16, {sL}, 4
        s_add_u32 s3, s3, s16
        s_add_u32 s3, s3, {WS_S3}
        v_lshl_add_u32 {vS3o}, {vL}, 12, s3
        s_lshr_b32 s3, {sL}, 5
        s_lshl_b32 s3, s3, 12
        s_add_u32 s16, s3, {WS_S3}
        v_lshl_add_u32 {vS3i}, v0, 4, s16
        s_lshl_b32 s16, {sL}, 11
        s_add_u32 s16, s16, {WS_ROWS}
        v_add_u32 {vRo}, s16, {t0}
        """)
        A.wait_tag("s2st")
        self.stamp("ack2", A)
        ZT = self.ZT

        def s2_loads(C):
            C(f"global_load_dwordx4 {ZT[0:4]}, {self.vS2i}, s[30:31] sc1")
            C(f"global_load_dwordx4 {ZT[4:8]}, {self.vS2i2}, s[30:31] sc1")
        s2_loads(A)
        rest = [] if self.o["dma_at"] == "conv" else list(self.plan)

        def dma_some(n):
            for _ in range(min(n, len(rest))):
                a, b = rest.pop(0)
                A(a)
                A(b, tag="dma")
        dma_some(4)

        def poison_check(regs):
            def chk(C):
                r = list(regs)
                if len(r) == 1:
                    C(f"v_cmp_eq_u32 vcc, -1, {r[0]}")
                    return
                C(f"v_max3_u32 {t0}, {r[0]}, {r[1]}, {r[2] if len(r) > 2 else r[1]}")
                r = r[3:]
                while r:
                    C(f"v_max3_u32 {t0}, {t0}, {r[0]}, {r[1] if len(r) > 1 else r[0]}")
                    r = r[2:]
                C(f"v_cmp_eq_u32 vcc, -1, {t0}")
            return chk
        self.poll(A, "s2" + sfx, s2_loads, poison_check([ZT[k] for k in range(8)]))
        self.stamp("s2", A)
        HP = get(4)
        T = get(8)
        for grp in range(2):
            for jj in range(4):
                j = 4 * grp + jj
                sel = self.sHi if j % 2 else self.sLo
                A(f"v_dot2_f32_bf16 {T[2 * jj]}, {ZT[j // 2]}, {sel}, {self.XL[j]}")
                A(f"v_dot2_f32_bf16 {T[2 * jj + 1]}, {ZT[4 + j // 2]}, {sel}, {self.XH[j]}")
            for jj in range(4):
                j = 4 * grp + jj
                A(f"v_cvt_pk_bf16_f32 {HP[jj]}, {T[2 * jj]}, {T[2 * jj + 1]}")
                A(f"ds_write_b32 {vHw}, {HP[jj]} offset:{L_H + 1024 * j}")
        self.stamp("hw", A)
        A.barrier()
        self.stamp("b7", A)
        HB = get(8)
        A(f"ds_read_b128 {HB[0:4]}, {vHr} offset:{L_H}\nds_read_b128 {HB[4:8]}, {vHr} offset:{L_H + 512}")
        s1, s2, s3, NM, RS, key = get(), get(), get(), get(2), get(2), get()
        A(f"s_lshl_b32 s3, {sL}, 3\ns_sub_u32 s3, 2047, s3\nv_sub_u32 {t2}, s3, {self.vTau}")
        for k in range(8):
            A(f"v_dot2_f32_bf16 {s1}, {HB[k]}, {self.sOnes}, {s1 if k else 0}")
            A(f"v_dot2_f32_bf16 {s2}, {HB[k]}, {HB[k]}, {s2 if k else 0}")
            A(f"v_dot2_f32_bf16 {s3}, {HB[k]}, {self.WR[k]}, {s3 if k else 0}")
        self.allreduce(A, "v_add_f32", [s1, s2, s3], 32)
        self.ln_stats(A, s1, s2, NM[0], RS[0])
        A(f"v_fma_f32 {s3}, {NM[0]}, {vSW}, {s3}\nv_mul_f32 {s3}, {s3}, {RS[0]}")
        self.rnd(A, s3, s3)
        A(f"""
        v_ashrrev_i32 {t1}, 31, {s3}
        v_or_b32 {t1}, 0x80000000, {t1}
        v_xor_b32 {t1}, {s3}, {t1}
        v_and_b32 {t1}, 0xffff0000, {t1}
        v_or_b32 {key}, {t1}, {t2}
        s_mov_b64 exec, 1
        s_bitset1_b64 exec, 32
        ds_write_b32 {vKw}, {key} offset:{L_KEY}
        s_mov_b64 exec, -1
        v_mov_b32 {t1}, 0
        """)
        self.stamp("key", A)
        H32 = get(16)
        for k in range(8):
            A(f"v_lshlrev_b32 {H32[2 * k]}, 16, {HB[k]}\nv_and_b32 {H32[2 * k + 1]}, 0xffff0000, {HB[k]}")
        A.barrier()
        kmax = get()
        A(f"ds_read_b128 {T[0:4]}, {t1} offset:{L_KEY}\nds_read_b128 {T[4:8]}, {t1} offset:{L_KEY + 16}")
        A(f"v_max3_u32 {kmax}, {T[0]}, {T[1]}, {T[2]}\nv_max3_u32 {t0}, {T[3]}, {T[4]}, {T[5]}")
        A(f"v_max3_u32 {kmax}, {kmax}, {T[6]}, {T[7]}\nv_max_u32 {kmax}, {kmax}, {t0}")
        A("s_mov_b64 exec, 3")
        A(f"global_store_dword {vS3o}, {kmax}, s[30:31] sc1", tag="s3st")
        A("s_mov_b64 exec, -1")
        self.stamp("pub3", A)
        sC = self.sC
        A(f"v_cmp_eq_u32 {sC}, {key}, {kmax}")
        HN, D = get(8), get(16)
        A(f"v_mov_b32 {NM[1]}, {NM[0]}\nv_mov_b32 {RS[1]}, {RS[0]}")
        for k in range(8):
            A(f"v_pk_add_f32 {D[2 * k:2 * k + 2]}, {H32[2 * k:2 * k + 2]}, {NM}")
        for k in range(16):
            self.rnd(A, D[k], D[k])
        for k in range(8):
            A(f"v_pk_mul_f32 {D[2 * k:2 * k + 2]}, {D[2 * k:2 * k + 2]}, {RS}")
        for k in range(8):
            A(f"v_cvt_pk_bf16_f32 {HN[k]}, {D[2 * k]}, {D[2 * k + 1]}")
        A(f"s_mov_b64 exec, {sC}")
        A(f"global_store_dwordx4 {vRo}, {HN[0:4]}, s[30:31] sc1", tag="s3st")
        A(f"global_store_dwordx4 {vRo}, {HN[4:8]}, s[30:31] offset:512 sc1", tag="s3st")
        A(f"global_store_dwordx4 {vRo}, {HB[0:4]}, s[30:31] offset:1024 sc1", tag="s3st")
        A(f"global_store_dwordx4 {vRo}, {HB[4:8]}, s[30:31] offset:1536 sc1", tag="s3st")
        A("s_mov_b64 exec, -1")
        self.stamp("hn", A)
        O = get(8)
        for k in range(8):
            A(f"v_dot2_f32_bf16 {D[2 * k]}, {HN[k]}, {self.sLo}, {H32[2 * k]}")
            A(f"v_dot2_f32_bf16 {D[2 * k + 1]}, {HN[k]}, {self.sHi}, {H32[2 * k + 1]}")
        for k in range(8):
            A(f"v_cvt_pk_bf16_f32 {O[k]}, {D[2 * k]}, {D[2 * k + 1]}")
        self.stamp("outc", A)
        pol = self.o["out_pol"]

        def out_stores(C):
            C(f"global_store_dwordx4 {self.vRow}, {O[0:4]}, s[28:29] {pol}", tag="out")
            C(f"global_store_dwordx4 {self.vRow}, {O[4:8]}, s[28:29] offset:512 {pol}", tag="out")
        nw = 4 if role == 0 else 14
        WT = [self.AC.get(4, 4) for _ in range(nw)]

        def tr_reads():
            A.wait_tag("dma")
            for m in range(nw):
                for e2 in range(2):
                    off = (32 * m + 4 * e2) * (16 if role == 0 else 32)
                    A(f"ds_read_b64_tr_b16 {WT[m][2 * e2:2 * e2 + 2]}, {vTr} offset:{off}")
        if role == 0:
            tr_reads()
        A.wait(vm=0)
        self.stamp("ack3", A)
        kin = get()

        def s3_loads(C):
            C(f"global_load_dword {kin}, {vS3i}, s[30:31] sc1")
        s3_loads(A)
        dma_some(4)
        if role == 0:
            A(f"s_andn2_b64 exec, -1, {sC}")
            out_stores(A)
            A("s_mov_b64 exec, -1")
        A(f"v_lshlrev_b32 {t1}, 2, v0\nv_lshrrev_b32 {t1}, 6, {t1}\nv_and_b32 {t1}, 12, {t1}\nv_mov_b32 {t2}, 0")
        self.poll(A, "s3" + sfx, s3_loads, poison_check([kin]))
        self.stamp("s3p", A)
        self.allreduce(A, "v_max_u32", [kin], 64)
        self.stamp("s3w", A)
        A(f"s_mov_b64 exec, 1\nds_write_b32 {t1}, {kin} offset:{L_KEY2}\ns_mov_b64 exec, -1")
        A.barrier()
        A(f"ds_read_b128 {T[0:4]}, {t2} offset:{L_KEY2}")
        A(f"v_max3_u32 {kin}, {T[0]}, {T[1]}, {T[2]}\nv_max_u32 {kin}, {kin}, {T[3]}")
        sK, sT = self.sK, self.sT
        A(f"v_readfirstlane_b32 {sK}, {kin}")
        A(f"s_and_b32 {sT}, {sK}, 0x7ff\ns_sub_u32 {sT}, 2047, {sT}")
        self.stamp("s3", A)
        A(f"s_lshr_b32 s3, {sT}, 3\ns_lshl_b32 s3, s3, 11\ns_add_u32 s3, s3, {WS_ROWS}")
        XS = get(4)
        vRed = get()
        if role == 0:
            A(f"""
            s_lshl_b32 s16, {sW}, 8
            s_add_u32 s3, s3, s16
            v_and_b32 {t1}, 3, {vI}
            v_lshlrev_b32 {t1}, 6, {t1}
            v_lshl_add_u32 {t1}, {vG}, 4, {t1}
            v_add_u32 {t1}, s3, {t1}
            """)

            def row_loads(C):
                C(f"global_load_dwordx4 {XS}, {t1}, s[30:31] sc1")
            row_loads(A)
            A(f"v_cmp_ne_u32 vcc, {kin}, {kmax}\ns_and_b64 exec, vcc, {sC}")
            out_stores(A)
            A("s_mov_b64 exec, -1")
            A(f"s_lshl_b32 s3, {sW}, 2\nv_lshl_add_u32 {vRed}, {vI}, 4, s3")
            self.poll(A, "row" + sfx, row_loads, poison_check([XS[k] for k in range(4)]))
            self.stamp("row", A)
            for m in range(4):
                A(f"v_mfma_f32_16x16x32_bf16 {D[4 * m:4 * m + 4]}, {XS}, {WT[m]}, 0")
            A(f"""
            v_and_b32 {t1}, 7, {vL}
            v_lshlrev_b32 {t1}, 4, {t1}
            v_lshrrev_b32 {t2}, 3, {vL}
            s_lshl_b32 s3, {self.sPhi}, 4
            s_add_u32 s3, s3, {WS_S4}
            v_lshl_add_u32 {t2}, {t2}, 12, s3
            v_add_f32 {t0}, {D[0]}, {D[5]}
            v_add_f32 {t0}, {t0}, {D[10]}
            v_add_f32 {t0}, {t0}, {D[15]}
            s_mov_b64 exec, 0xffff
            ds_write_b32 {vRed}, {t0} offset:{L_RED}
            s_mov_b64 exec, -1
            """)
            self.stamp("g1m", A)
            A.barrier()
            self.stamp("g1b", A)
            A(f"s_cmp_eq_u32 {sW}, 0\ns_cbranch_scc0 L_fin_{sfx}")
            A(f"ds_read_b128 {T[0:4]}, {t1} offset:{L_RED}\nds_read_b128 {T[4:8]}, {t1} offset:{L_RED + 128}")
            A(f"v_pk_add_f32 {T[0:2]}, {T[0:2]}, {T[2:4]}\nv_pk_add_f32 {T[4:6]}, {T[4:6]}, {T[6:8]}")
            A(f"v_add_f32 {T[0]}, {T[0]}, {T[1]}\nv_add_f32 {T[4]}, {T[4]}, {T[5]}")
            self.rnd(A, T[0], T[0])
            self.rnd(A, T[4], T[4])
            A(f"v_mul_f32 {t0}, {LOG2E | 0x80000000}, {T[0]}\nv_exp_f32 {t0}, {t0}\nv_add_f32 {t0}, 1.0, {t0}")
            A(f"v_rcp_f32 {t0}, {t0}\nv_mul_f32 {t0}, {T[0]}, {t0}")
            self.rnd(A, t0, t0)
            A(f"v_mul_f32 {t0}, {t0}, {T[4]}")
            A(f"v_mov_b32_dpp {t1}, {t0} row_shl:1 row_mask:0xf bank_mask:0xf")
            A(f"v_cvt_pk_bf16_f32 {XS[0]}, {t0}, {t1}")
            for k in range(1, 4):
                A(f"v_mov_b32_dpp {XS[k]}, {XS[0]} row_shl:{2 * k} row_mask:0xf bank_mask:0xf")
            A("s_mov_b32 exec_lo, 0x01010101\ns_mov_b32 exec_hi, 0x01010101")
            A(f"global_store_dwordx4 {t2}, {XS}, s[30:31] sc1")
            self.stamp("g1", A)
        else:
            HH = get(2)
            A(f"""
            s_sub_u32 s16, {self.sPhi}, 224
            s_lshl_b32 s16, s16, 5
            s_add_u32 s3, s3, s16
            v_lshrrev_b32 {t1}, 1, {vI}
            v_lshl_add_u32 {t1}, {t1}, 2, s3
            """)

            def row_loads(C):
                C(f"global_load_dword {HH[0]}, {t1}, s[30:31] sc1")
                C(f"global_load_dword {HH[1]}, {t1}, s[30:31] offset:1024 sc1")
            row_loads(A)
            dma_some(6)
            self.poll(A, "row" + sfx, row_loads, poison_check([HH[0], HH[1]]))
            self.stamp("row", A)
            A(f"v_cmp_eq_u32 vcc, {kin}, {key}\ns_andn2_b64 exec, -1, vcc")
            out_stores(A)
            A("s_mov_b64 exec, 1")
            A(f"v_mov_b32 {t0}, {self.sE}\nv_mov_b32 {t2}, 0")
            A(f"global_store_dword {t2}, {t0}, s[30:31] offset:{WS_EPOCH}")
            A("s_mov_b64 exec, -1")
            self.stamp("r1o", A)
            tr_reads()
            self.stamp("r1t", A)
            vSig, vOut, vS4i = get(), get(), get()
            A(f"""
            s_and_b32 s16, {sK}, 0x7fff0000
            s_andn2_b32 s17, 0xffff0000, {sK}
            s_bitcmp1_b32 {sK}, 31
            s_cselect_b32 s16, s16, s17
            v_mov_b32 {t0}, s16
            v_mul_f32 {t0}, {LOG2E | 0x80000000}, {t0}
            v_exp_f32 {t0}, {t0}
            v_add_f32 {t0}, 1.0, {t0}
            v_rcp_f32 {t0}, {t0}
            """)
            self.rnd(A, vSig, t0)
            A(f"""
            v_and_b32 {t0}, 1, {vI}
            v_xor_b32 {t0}, 1, {t0}
            v_lshlrev_b32 {t0}, 4, {t0}
            v_lshlrev_b32 {HH[0]}, {t0}, {HH[0]}
            v_lshlrev_b32 {HH[1]}, {t0}, {HH[1]}
            v_and_b32 {HH[0]}, 0xffff0000, {HH[0]}
            v_and_b32 {HH[1]}, 0xffff0000, {HH[1]}
            s_lshl_b32 s3, {sT}, 10
            s_sub_u32 s16, {self.sPhi}, 224
            s_lshl_b32 s16, s16, 5
            s_add_u32 s3, s3, s16
            v_lshl_add_u32 {vOut}, {vI}, 1, s3
            s_lshr_b32 s3, {sL}, 5
            s_lshl_b32 s3, s3, 12
            s_mul_i32 s16, {sW}, {56 * 16}
            s_add_u32 s3, s3, s16
            s_add_u32 s3, s3, {WS_S4}
            v_min_u32 {t0}, 13, {vI}
            v_lshl_add_u32 {t0}, {t0}, 2, {vG}
            v_lshl_add_u32 {vS4i}, {t0}, 4, s3
            s_lshl_b32 s3, {sW}, 2
            v_lshl_add_u32 {vRed}, {vI}, 4, s3
            v_mov_b32 {t2}, 0
            """)
            A.wait(vm=0)
            self.stamp("r1a", A)

            def s4_loads(C):
                C(f"global_load_dwordx4 {XS}, {vS4i}, s[30:31] sc1")
            s4_loads(A)
            self.poll(A, "s4", s4_loads, poison_check([XS[k] for k in range(4)]))
            self.stamp("g1", A)
            DD = [get(4) for _ in range(6)]
            for m in range(14 + 3):
                if m < 14:
                    A(f"v_mfma_f32_16x16x32_bf16 {DD[m % 6]}, {XS}, {WT[m]}, 0")
                k = m - 3
                if k >= 0:
                    A(f"v_add_f32_dpp {t2}, {DD[k % 6][k % 4]}, {t2} quad_perm:[0,1,2,3] row_mask:{1 << (k // 4)} bank_mask:0xf")
            for sw in ("v_permlane16_swap_b32", "v_permlane32_swap_b32"):
                A(f"v_mov_b32 {t0}, {t2}\n{sw} {t2}, {t0}\nv_add_f32 {t2}, {t2}, {t0}")
            A(f"s_mov_b64 exec, 0xffff\nds_write_b32 {vRed}, {t2} offset:{L_RED}\ns_mov_b64 exec, -1")
            A(f"v_lshlrev_b32 {t1}, 4, {vI}")
            self.stamp("g2m", A)
            A.barrier()
            A(f"s_cmp_eq_u32 {sW}, 0\ns_cbranch_scc0 L_fin_{sfx}")
            A(f"ds_read_b128 {T[0:4]}, {t1} offset:{L_RED}")
            A(f"v_pk_add_f32 {T[0:2]}, {T[0:2]}, {T[2:4]}\nv_add_f32 {t0}, {T[0]}, {T[1]}")
            self.rnd(A, t0, t0)
            A(f"v_mul_f32 {t0}, {t0}, {vSig}")
            self.rnd(A, t0, t0)
            A(f"v_add_f32 {t0}, {t0}, {HH[0]}")
            self.rnd(A, t0, t0)
            A(f"v_add_f32 {t0}, {t0}, {HH[1]}")
            self.rnd(A, t0, t0)
            A("s_mov_b64 exec, 0xffff")
            A(f"global_store_short_d16_hi {vOut}, {t0}, s[28:29]")
            self.stamp("g2", A)
        A.flush()
        A.label(f"L_fin_{sfx}")
        if self.o["stamps"]:
            A.wait(vm=0)
            self.stamp("end", A)
            if self.o["clk"]:
                A("s_memtime s[96:97]")
                A.wait(lg=0)
                A("s_sub_u32 s100, s96, s100\ns_mov_b32 s101, 0")
            A("s_waitcnt vmcnt(0) lgkmcnt(0)")
            self.dump_stamps(A)
        A("s_endpgm")
        V.put(*got)
        self.AC.put(*WT)

    def build(self):
        A = self.A
        self.prologue()
        self.ln1()
        self.after_publish()
        self.stamp("warm")
        self.kgen()
        self.sWb, self.sC, self.sK, self.sT = self.S.get(), self.S.get(2), self.S.get(), self.S.get()
        self.ZT = self.V.get(8)
        A(f"s_cmp_eq_u32 {self.sRole}, 0\ns_cbranch_scc0 L_role1")
        B = A.fork()
        B.label("L_role1")
        vfree, afree = set(self.V.free), set(self.AC.free)
        for role, X in ((0, A), (1, B)):
            self.V.free, self.AC.free = set(vfree), set(afree)
            self.conv_both(X, role)
            self.V.put(*self.BAND.values(), self.vUf, self.vUe, self.vZw, self.vG16, self.vD16, self.UG, self.vUw,
                       self.vS1i, self.vS1i2, self.vZr, self.vS2o, self.vS2o2)
            self.AC.put(*self.KN, self.KX, *self.B2.values(), *self.B3.values())
            self.tail(X, role)
        body = A.text() + B.text() + "".join(c.text() for c in self.cold)
        nv = self.V.top + 1
        accum = (nv + 3) // 4 * 4
        total = max(accum + self.AC.top + 1, 264)
        head = open(f"cdna_kernels/{NAME}.s.ref").read().split("; Override launch geometry")[0]
        self.stats = dict(instr=A.count + B.count, nops=A.nops + B.nops, vgpr=nv, agpr=self.AC.top + 1, mfma=self.nmfma)
        return head + f"""; One persistent launch: 256 workgroups, one per CU, exchanging data through d_ws.
; @launch grid=(256,1,1) block=(256,1,1) lds={LDS_BYTES}
.amdgcn_target "amdgcn-amd-amdhsa--gfx950"
.text
.globl {NAME}_kernel
.p2align 8
.type {NAME}_kernel,@function
{NAME}_kernel:
{body}L_end:
    s_endpgm
L_code_end:
.section .rodata,"a"
.p2align 6
.amdhsa_kernel {NAME}_kernel
  .amdhsa_next_free_vgpr {total}
  .amdhsa_next_free_sgpr 102
  .amdhsa_accum_offset {accum}
  .amdhsa_group_segment_fixed_size 0
  .amdhsa_kernarg_size 120
  .amdhsa_user_sgpr_count 2
  .amdhsa_user_sgpr_kernarg_segment_ptr 1
  .amdhsa_system_sgpr_workgroup_id_x 1
  .amdhsa_float_denorm_mode_32 3
.end_amdhsa_kernel
"""


def generate(path, **opt):
    g = Gen(**opt)
    text = g.build()
    open(path, "w").write(text)
    return g.stats


if __name__ == "__main__":
    out = sys.argv[1] if len(sys.argv) > 1 else f"cdna_kernels/{NAME}.s"
    opts = {}
    for a in sys.argv[2:]:
        k, v = a.split("=")
        opts[k] = {"True": True, "False": False}.get(v, int(v) if v.isdigit() else v)
    print(generate(out, **opts))
```

```python
import sys
from asmdsl import Asm, Pool, R

NAME = "sequential_preLN__ssm_conv_s4d__moe_arch_mod__prompt"

WS_EPOCH = 0
WS_S3 = 0x8000
WS_S4 = 0x10000
WS_ROWS = 0x20000
WS_S1 = 0x100000
WS_S2 = 0x300000
WS_STAMP = 0x600000

ROWB = 544
STAGE_CH = 57 * ROWB
L_K = 0
KCOPY = 2112
KCH = 4 * KCOPY
L_U = L_K + 2 * KCH
UCH = 4672
L_Z = 26368
L_H = L_Z + 8192
L_ST = L_H + 8192
L_KEY = L_ST + 64
L_KEY2 = L_KEY + 32
L_RED = L_KEY2 + 32
L_STAGE = 43520
LDS_BYTES = L_STAGE + 2 * STAGE_CH
assert L_U + UCH + 4608 <= L_Z and L_RED + 512 <= L_STAGE and L_STAGE % 256 == 0

NX = 560
V2 = [608 + 64 * s for s in range(4)]
V3 = [864 + 80 * s for s in range(2)]
TAGMASK = 0x40074007
LOG2E = 0x3FB8AA3B
INV2PI = 0x3E22F983
SPIN_MAX = 1 << 14

STAMP_SETS = {
    True: ["start", "karg", "x", "pub1", "rec", "kmf", "frag", "s1", "conv", "ack2", "s2", "pub3", "ack3", "s3", "row", "g1", "g2", "end"],
    "a": ["start", "karg", "issued", "consts", "x", "stat", "b1", "norm", "pub1", "warm", "par", "ws", "recR", "rec", "b2", "kmf0", "kmf", "end"],
    "b": ["start", "kmf", "shift", "frag", "s1w", "s1", "b5", "conv", "b6", "st2", "dma", "ack2", "s2", "hw", "b7", "key", "pub3", "end"],
    "c": ["start", "pub3", "hn", "outc", "ack3", "s3p", "s3w", "s3", "row", "g1m", "g1b", "g1", "r1o", "r1t", "r1a", "g2m", "g2", "end"],
}
DEFAULTS = dict(stamps=False, s1_at="mfma", warm=True, out_pol="sc1", pf_code=True, pf_lines=8, dbg=False, poison_at="x", recb=4, warm_at="pub", xa_at="start", nf=7, ng=4, pe=14, pd=6, npre=6, clk=False, dma_at="conv", warm_mode="sect", far_span=(56, 40))


class Gen:
    def __init__(self, **opt):
        self.o = dict(DEFAULTS)
        self.o.update(opt)
        self.A = Asm()
        self.V = Pool("v", 1, 255)
        self.AC = Pool("a", 0, 255)
        self.S = Pool("s", 32, 63)
        self.cold = []
        self.nstamp = 0

    def stamp(self, name, A=None):
        sel = STAMP_SETS.get(self.o["stamps"])
        if sel and name in sel:
            i = sel.index(name)
            (A or self.A)(f"s_memrealtime s[{64 + 2 * i}:{65 + 2 * i}]")

    def dump_stamps(self, A):
        if not self.o["stamps"]:
            return
        if self.o["dbg"]:
            self.dump_debug(A)
            return
        a, d = self.V.get(), self.V.get(2)
        A("s_mov_b64 exec, 1")
        A.wait(lg=0)
        A(f"s_lshl_b32 s3, {self.sL}, 2\ns_add_u32 s3, s3, {self.sW}\ns_lshl_b32 s3, s3, 8\ns_add_u32 s3, s3, {WS_STAMP}")
        A(f"v_mov_b32 {a}, s3")
        for i in range(19):
            A(f"v_mov_b32 {d[0]}, s{64 + 2 * i}\nv_mov_b32 {d[1]}, s{65 + 2 * i}")
            A(f"global_store_dwordx2 {a}, {d}, s[30:31] offset:{8 * i}")
            A.wait(vm=0)
        self.V.put(a, d)

    def dump_debug(self, A):
        a, d = self.V.get(), self.V.get()
        n = getattr(self, "ndbg", 0)
        self.ndbg = n + 1
        A("s_mov_b64 exec, 1")
        A(f"s_cmp_eq_u32 {self.sL}, 255\ns_cbranch_scc0 L_dbg{n}\ns_cmp_eq_u32 {self.sW}, 0\ns_cbranch_scc0 L_dbg{n}")
        A("s_load_dwordx2 s[4:5], s[0:1], 104")
        A.wait(lg=0)
        A(f"v_mov_b32 {a}, 0")
        for i in range(1, 17):
            A(f"s_sub_u32 s3, s{64 + 2 * (i + 1)}, s64\nv_mov_b32 {d}, s3")
            A(f"global_store_dword {a}, {d}, s[4:5] offset:{4 * (i - 1)}")
        A.label(f"L_dbg{n}")
        self.V.put(a, d)

    def rnd(self, A, dst, src, neg=False):
        A(f"v_cvt_pk_bf16_f32 {dst}, 0, {'-' if neg else ''}{src}")

    def allreduce(self, A, op, regs, width):
        steps = ["quad_perm:[1,0,3,2]", "quad_perm:[2,3,0,1]", "row_half_mirror", "row_mirror"]
        for st in steps:
            for r in regs:
                A(f"{op}_dpp {r}, {r}, {r} {st} row_mask:0xf bank_mask:0xf")
        tmp = [self.V.get() for _ in regs]
        for w, sw in ((32, "v_permlane16_swap_b32"), (64, "v_permlane32_swap_b32")):
            if width >= w:
                for r, t in zip(regs, tmp):
                    A(f"v_mov_b32 {t}, {r}")
                for r, t in zip(regs, tmp):
                    A(f"{sw} {r}, {t}")
                for r, t in zip(regs, tmp):
                    A(f"{op} {r}, {r}, {t}")
        self.V.put(*tmp)

    def ln_stats(self, A, s1, s2, nm, rs):
        t = self.V.get()
        A(f"v_mul_f32 {s1}, 0x3b000000, {s1}")
        A(f"v_mul_f32 {s2}, 0x3b000000, {s2}")
        A(f"v_fma_f32 {t}, -{s1}, {s1}, {s2}")
        A(f"v_max_f32 {t}, 0, {t}")
        self.rnd(A, t, t)
        self.rnd(A, nm, s1, neg=True)
        A(f"v_add_f32 {t}, 0x3727c5ac, {t}")
        self.rnd(A, t, t)
        A(f"v_sqrt_f32 {t}, {t}")
        self.rnd(A, t, t)
        A(f"v_rcp_f32 {rs}, {t}")
        self.V.put(t)

    def poll(self, A, name, loads, check):
        check(A)
        A(f"s_cbranch_vccnz L_{name}_slow")
        A.label(f"L_{name}_ok")
        C = Asm()
        C.label(f"L_{name}_slow")
        C("s_mov_b32 s3, 0")
        C.label(f"L_{name}_loop")
        C("s_waitcnt vmcnt(0)")
        C("s_nop 1")
        loads(C)
        C(f"s_add_u32 s3, s3, 1\ns_cmp_ge_u32 s3, {SPIN_MAX}")
        C("s_cselect_b32 s18, 0, -1\ns_mov_b32 s19, s18")
        check(C)
        C.wait(vm=0)
        C("s_nop 1")
        C("s_and_b64 vcc, vcc, s[18:19]")
        C(f"s_cbranch_vccnz L_{name}_loop")
        C("s_nop 3")
        C(f"s_branch L_{name}_ok")
        self.cold.append(C)

    def prologue(self):
        A, V, S = self.A, self.V, self.S
        A("s_cmp_ge_u32 s2, 0x100\ns_cbranch_scc1 L_end")
        A("s_load_dwordx16 s[4:19], s[0:1], 0\ns_load_dwordx8 s[20:27], s[0:1], 64")
        A("s_load_dwordx2 s[28:29], s[0:1], 96\ns_load_dwordx2 s[30:31], s[0:1], 112")
        self.stamp("start")
        if self.o["clk"]:
            A("s_memtime s[100:101]")
        self.sL, self.sW, self.sTag, self.sE = S.get(), S.get(), S.get(), S.get()
        self.sOnes, self.sLo, self.sHi, self.sCh = S.get(), S.get(), S.get(), S.get()
        sL, sW = self.sL, self.sW
        self.vL = V.get()
        self.vI = V.get()
        self.vG = V.get()
        t0, t1, t2 = V.get(), V.get(), V.get()
        A(f"""
        s_and_b32 s3, s2, 7
        s_lshl_b32 s3, s3, 5
        s_lshr_b32 {sL}, s2, 3
        s_add_u32 {sL}, {sL}, s3
        v_lshrrev_b32 {t0}, 6, v0
        v_and_b32 {self.vL}, 63, v0
        v_readfirstlane_b32 {sW}, {t0}
        v_and_b32 {self.vI}, 15, v0
        v_bfe_u32 {self.vG}, v0, 4, 2
        """)
        self.vJunk = V.get(4)
        if self.o["pf_code"]:
            nl = self.o["pf_lines"]
            self.sPc = S.get(2)
            A(f"s_getpc_b64 {self.sPc}")
            A.label("L_pc")
            A(f"""
            s_lshr_b32 s3, s2, 3
            v_lshrrev_b32 {t0}, 6, v0
            v_lshl_add_u32 {t0}, s3, 2, {t0}
            v_and_b32 {t0}, {256 // nl - 1}, {t0}
            v_and_b32 {t1}, {nl - 1}, v0
            v_lshl_add_u32 {t0}, {t0}, {nl.bit_length() - 1}, {t1}
            v_lshlrev_b32 {t0}, 7, {t0}
            v_min_u32 {t0}, L_code_end-L_pc-4, {t0}
            global_load_dword {self.vJunk[0]}, {t0}, {self.sPc}
            """)
        self.vRow = V.get()
        vXa = V.get()
        A(f"""
        v_lshrrev_b32 {t0}, 5, v0
        v_and_b32 {t1}, 31, v0
        v_lshlrev_b32 {t0}, 10, {t0}
        s_lshl_b32 s3, {sL}, 13
        v_lshl_add_u32 {t0}, {t1}, 4, {t0}
        v_add_u32 {self.vRow}, s3, {t0}
        v_lshl_add_u32 {vXa}, v0, 2, s3
        """)
        A(f"""
        s_lshr_b32 s3, {sL}, 6
        s_lshl_b32 {self.sCh}, s3, 7
        s_and_b32 s3, {sL}, 31
        s_lshl_b32 s3, s3, 2
        s_add_u32 {self.sCh}, {self.sCh}, s3
        s_bfe_u32 s3, {sL}, 0x10005
        s_add_u32 {self.sCh}, {self.sCh}, s3
        s_and_b32 s3, {sW}, 2
        s_add_u32 {self.sCh}, {self.sCh}, s3
        """)
        vP, vC, vXb = V.get(), V.get(), V.get()
        A(f"""
        s_lshl_b32 s3, {self.sCh}, 8
        v_lshl_add_u32 {vP}, {self.vL}, 2, s3
        s_lshl_b32 s3, {self.sCh}, 1
        v_mov_b32 {vC}, s3
        v_add_u32 {vXb}, 0x1000, {vXa}
        v_lshlrev_b32 {t1}, 4, {t1}
        """)
        self.XB = V.get(8)
        self.XA = V.get(8)
        self.PAR = V.get(6)
        self.WR = V.get(8)
        A(f"global_load_dwordx4 {self.XB[0:4]}, {self.vRow}, s[4:5]")
        A(f"global_load_dwordx4 {self.XB[4:8]}, {self.vRow}, s[4:5] offset:512")
        A(f"s_load_dword {self.sE}, s[30:31], {WS_EPOCH}")
        self.stamp("karg")
        def late_loads():
            for j in range(8):
                A(f"global_load_dword {self.XA[j]}, {vXa if j < 4 else vXb}, s[4:5] offset:{1024 * (j % 4)}")
            for k in range(4):
                A(f"global_load_dword {self.PAR[k]}, {vP}, s[{6 + 2 * k}:{7 + 2 * k}]")
            A(f"global_load_ushort {self.PAR[4]}, {vC}, s[14:15]")
            A(f"global_load_ushort {self.PAR[5]}, {vC}, s[{self.sDs.b}:{self.sDs.b + 1}]")
            V.put(vXa, vXb, vP, vC)
            if self.o["poison_at"] == "xa":
                self.poison2()
        self.late_loads = late_loads
        self.sDs = S.get(2)
        A(f"s_mov_b64 {self.sDs}, s[16:17]")
        if self.o["xa_at"] == "start":
            late_loads()
        self.stamp("issued")
        self.vWr = V.get()
        A(f"v_mov_b32 {self.vWr}, {t1}")
        self.M1 = M1 = V.get(4)
        self.vS2o, self.vS2o2, self.vP2, self.vP3 = V.get(), V.get(), V.get(), V.get()
        for k in range(4):
            A(f"v_mov_b32 {M1[k]}, -1")
        A(f"""
        s_lshl_b32 s3, {sL}, 13
        s_add_u32 s3, s3, {WS_S2}
        v_lshl_add_u32 {self.vS2o}, v0, 4, s3
        v_add_u32 {self.vS2o2}, 0x1000, {self.vS2o}
        """)
        A(f"s_lshl_b32 s16, {sW}, 11\ns_add_u32 s3, s3, s16\nv_lshl_add_u32 {self.vP2}, {self.vL}, 4, s3")
        if self.o["poison_at"] == "start":
            self.poison2()
        self.sPhi, self.sRole = S.get(), S.get()
        A(f"""
        s_lshr_b32 s3, {sL}, 5
        s_and_b32 s16, {sL}, 31
        s_mul_i32 s17, s3, 28
        s_add_u32 s17, s17, s16
        s_lshl_b32 s3, s3, 2
        s_add_u32 s3, s3, s16
        s_add_u32 s3, s3, {224 - 28}
        s_cmp_ge_u32 s16, 28
        s_cselect_b32 {self.sPhi}, s3, s17
        s_cselect_b32 {self.sRole}, 1, 0
        """)
        A(f"""
        s_lshl_b32 s3, {sL}, 11
        s_add_u32 s3, s3, {WS_ROWS}
        v_lshl_add_u32 {t0}, v0, 4, s3
        s_lshl_b32 s16, {sL}, 4
        s_add_u32 s16, s16, {WS_S3}
        s_lshl_b32 s17, {self.sPhi}, 4
        s_add_u32 s17, s17, {WS_S4}
        s_cmp_eq_u32 {sW}, 2
        s_cselect_b32 s16, s16, s17
        v_lshl_add_u32 {t1}, {self.vL}, 12, s16
        s_cmp_lt_u32 {sW}, 2
        s_cselect_b64 vcc, -1, 0
        v_cndmask_b32 {self.vP3}, {t1}, {t0}, vcc
        """)
        Z = V.get(4)
        for k in range(4):
            A(f"v_mov_b32 {Z[k]}, 0")
        A(f"""
        v_lshrrev_b32 {t0}, 7, v0
        v_and_b32 {t1}, 127, v0
        v_mul_u32_u24 {t0}, {KCH}, {t0}
        v_lshl_add_u32 {t0}, {t1}, 4, {t0}
        ds_write_b128 {t0}, {Z} offset:{L_K}
        v_lshrrev_b32 {t2}, 7, v0
        v_mul_u32_u24 {t2}, {UCH}, {t2}
        v_lshl_add_u32 {t2}, {t1}, 2, {t2}
        ds_write_b32 {t2}, {Z[0]} offset:{L_U}
        """)
        self.vShift = V.get()
        A(f"v_mov_b32 {self.vShift}, {t0}")
        V.put(Z)
        A(f"s_mov_b32 {self.sOnes}, 0x3f803f80\ns_mov_b32 {self.sLo}, 0x3f80\ns_mov_b32 {self.sHi}, 0x3f800000")
        self.consts(t0, t1, t2)
        self.warm("consts")
        self.stamp("consts")
        V.put(t0, t1, t2)

    def poison2(self):
        A = self.A
        A(f"global_store_dwordx4 {self.vP2}, {self.M1}, s[30:31] sc1", tag="poison")
        A(f"global_store_dwordx4 {self.vP2}, {self.M1}, s[30:31] offset:1024 sc1", tag="poison")

    def after_publish(self):
        A, V = self.A, self.V
        A(f"s_cmp_lt_u32 {self.sW}, 2\ns_cselect_b64 exec, -1, 0xff")
        A(f"global_store_dwordx4 {self.vP3}, {self.M1}, s[30:31] sc1", tag="poison3")
        A("s_mov_b64 exec, -1")
        A(f"global_load_dwordx4 {self.WR[0:4]}, {self.vWr}, s[20:21]")
        A(f"global_load_dwordx4 {self.WR[4:8]}, {self.vWr}, s[20:21] offset:512")
        self.warm("pub")
        V.put(self.M1, self.vP2, self.vP3, self.vWr)

    def consts(self, t0, t1, t2):
        A, V, S = self.A, self.V, self.S
        vI, vG, vL, sW, sL = self.vI, self.vG, self.vL, self.sW, self.sL
        self.BAND = {}
        if self.o["xa_at"] == "pre":
            self.late_loads()
        A(f"v_lshlrev_b32 {t0}, 3, {vG}\nv_sub_u32 {t0}, {vI}, {t0}")
        for (delta, h) in ((12, 1), (8, 2), (4, 1), (8, 3), (8, 4)):
            B = V.get(4)
            self.BAND[(delta, h)] = B
            win = (1 << (2 * h + 1)) - 1
            A(f"v_add_u32 {t1}, {delta - h + 12}, {t0}")
            A(f"v_med3_i32 {t1}, {t1}, 0, 22")
            A(f"v_mov_b32 {t2}, {win}")
            A(f"v_lshlrev_b32 {t1}, {t1}, {t2}")
            for d in range(4):
                A(f"v_bfe_u32 {t2}, {t1}, {12 + 2 * d}, 2")
                A(f"v_mul_u32_u24 {t2}, 0x8001, {t2}")
                A(f"v_and_b32 {t2}, 0x10001, {t2}")
                A(f"v_mul_u32_u24 {B[d]}, 0x3c00, {t2}")
        if self.o["xa_at"] == "band":
            self.late_loads()
        sB, sH = S.get(), S.get()
        self.sB, self.sH = sB, sH
        A(f"s_lshr_b32 {sB}, {sW}, 1\ns_and_b32 {sH}, {sW}, 1")
        self.sStM = S.get()
        A(f"""
        s_mul_i32 s3, {sB}, {STAGE_CH}
        s_add_u32 s3, s3, {L_STAGE}
        s_lshl_b32 s16, {sH}, 8
        s_add_u32 s16, s16, s3
        s_sub_u32 {self.sStM}, s16, 0x8000
        """)
        self.vA1, self.vA2, self.vBm = V.get(), V.get(), V.get()
        A(f"""
        v_xor_b32 {t0}, 3, {vI}
        v_bfe_u32 {t1}, {t0}, 1, 1
        v_add_u32 {t1}, {t0}, {t1}
        v_lshrrev_b32 {t1}, 1, {t1}
        v_add_u32 {t1}, 32, {t1}
        s_cmp_eq_u32 {sH}, 0
        s_cselect_b64 vcc, -1, 0
        s_cselect_b32 s16, 16, 0
        s_cselect_b32 s17, 0, 41
        v_cndmask_b32 {t1}, {t0}, {t1}, vcc
        v_add_u32 {t0}, s16, {t0}
        v_add_u32 {t2}, s17, {vI}
        v_mul_u32_u24 {t0}, {ROWB}, {t0}
        v_mul_u32_u24 {t1}, {ROWB}, {t1}
        v_mul_u32_u24 {t2}, {ROWB}, {t2}
        v_lshl_add_u32 {t0}, {vG}, 4, {t0}
        v_lshl_add_u32 {t1}, {vG}, 4, {t1}
        v_lshl_add_u32 {t2}, {vG}, 4, {t2}
        v_add_u32 {self.vA1}, s3, {t0}
        v_add_u32 {self.vA2}, s3, {t1}
        v_add_u32 {self.vBm}, s3, {t2}
        """)
        self.vK1, self.vK2, self.vKs = V.get(), V.get(), V.get()
        t3 = V.get()
        A(f"""
        v_lshlrev_b32 {t0}, 4, {vI}
        v_sub_u32 {t0}, 540, {t0}
        v_and_b32 {t1}, 3, {vI}
        v_lshlrev_b32 {t1}, 6, {t1}
        v_lshrrev_b32 {t2}, 2, {vI}
        v_lshlrev_b32 {t2}, 4, {t2}
        v_sub_u32 {t1}, {t1}, {t2}
        v_add_u32 {t1}, {V2[0] + 44}, {t1}
        v_and_b32 {t2}, 1, {vI}
        v_mul_u32_u24 {t2}, 80, {t2}
        v_lshrrev_b32 {t3}, 1, {vI}
        v_lshlrev_b32 {t3}, 4, {t3}
        v_sub_u32 {t2}, {t2}, {t3}
        v_add_u32 {t2}, {V3[0] + 60 + 64}, {t2}
        v_cmp_gt_u32 s[16:17], 8, {vI}
        v_cndmask_b32 {t1}, {t2}, {t1}, s[16:17]
        v_cndmask_b32 {t2}, {t1}, {t0}, vcc
        v_subrev_u32 {t0}, 256, {t0}
        v_cndmask_b32 {t1}, {t1}, {t0}, vcc
        v_lshlrev_b32 {t3}, 2, {vG}
        v_sub_u32 {t2}, {t2}, {t3}
        v_sub_u32 {t1}, {t1}, {t3}
        s_mul_i32 s3, {sB}, {KCH}
        s_add_u32 s3, s3, {L_K}
        v_lshl_add_u32 {self.vK1}, {t2}, 1, s3
        v_lshl_add_u32 {self.vK2}, {t1}, 1, s3
        s_cmp_eq_u32 {sH}, 0
        s_cselect_b32 s16, {2 * 29}, {2 * (NX + 27)}
        s_add_u32 s16, s16, s3
        v_mov_b32 {self.vKs}, s16
        """)
        self.vN, self.vF = V.get(), V.get()
        A(f"""
        v_sub_u32 {t0}, 15, {vI}
        v_and_b32 {t1}, 3, {t0}
        v_and_b32 {t0}, 12, {t0}
        v_mul_u32_u24 {t1}, {KCOPY}, {t1}
        v_lshl_add_u32 {t0}, {t0}, 1, {t1}
        v_add_u32 {t0}, s3, {t0}
        v_lshl_add_u32 {self.vN}, {vG}, 4, {t0}
        v_lshl_add_u32 {self.vF}, {vG}, 3, {t0}
        """)
        self.vUf, self.vUe, self.vZw, self.vZr, self.vUw = V.get(), V.get(), V.get(), V.get(), V.get()
        A(f"""
        s_mul_i32 s3, {sB}, {UCH}
        s_add_u32 s3, s3, {L_U}
        v_lshl_add_u32 {t0}, {vI}, 5, s3
        v_lshl_add_u32 {self.vUf}, {vG}, 4, {t0}
        v_lshl_add_u32 {self.vUe}, {vG}, 3, {t0}
        v_and_b32 {t0}, 2, {vG}
        v_lshl_add_u32 {t0}, {vI}, 2, {t0}
        v_add_u32 {t0}, {sB}, {t0}
        v_lshrrev_b32 {t1}, 1, {vI}
        v_xor_b32 {t0}, {t0}, {t1}
        v_and_b32 {t1}, 1, {vG}
        v_lshlrev_b32 {t1}, 3, {t1}
        v_lshl_add_u32 {self.vZw}, {t0}, 4, {t1}
        v_bfe_u32 {t0}, v0, 3, 3
        v_xor_b32 {t0}, v0, {t0}
        v_lshlrev_b32 {self.vZr}, 4, {t0}
        v_and_b32 {t0}, 1, v0
        v_lshrrev_b32 {t1}, 1, v0
        v_mul_u32_u24 {t2}, {UCH}, {t0}
        v_lshl_add_u32 {self.vUw}, {t1}, 4, {t2}
        """)
        self.vS1o, self.vS1i, self.vS1i2, self.vS2i, self.vS2i2 = V.get(), V.get(), V.get(), V.get(), V.get()
        A(f"""
        s_lshl_b32 s3, {sL}, 13
        s_lshl_b32 s16, {sW}, 11
        s_add_u32 s3, s3, s16
        s_add_u32 s3, s3, {WS_S1}
        v_lshl_add_u32 {self.vS1o}, {vL}, 4, s3
        v_lshlrev_b32 {t0}, 4, {t0}
        s_lshl_b32 s3, {sL}, 5
        s_add_u32 s16, s3, {WS_S1}
        v_lshl_add_u32 {t2}, {t1}, 13, {t0}
        v_add_u32 {self.vS1i}, s16, {t2}
        v_add_u32 {self.vS1i2}, 0x100000, {self.vS1i}
        v_lshrrev_b32 {t1}, 1, {vL}
        v_lshl_add_u32 {t2}, {t1}, 13, {t0}
        s_lshl_b32 s16, {sW}, 19
        s_add_u32 s16, s16, s3
        s_add_u32 s16, s16, {WS_S2}
        v_add_u32 {self.vS2i}, s16, {t2}
        v_add_u32 {self.vS2i2}, 0x40000, {self.vS2i}
        """)
        self.vTau, self.vMask = V.get(), V.get()
        A(f"v_lshrrev_b32 {self.vTau}, 5, v0\nv_mov_b32 {self.vMask}, {0xFFFFFFFF ^ TAGMASK}")
        V.put(t3)

    def ln1(self):
        A, V = self.A, self.V
        s1, s2, nm, rs, ad = V.get(), V.get(), V.get(), V.get(), V.get()
        A(f"v_lshlrev_b32 {ad}, 2, {self.vTau}")
        for k in range(8):
            A(f"v_dot2_f32_bf16 {s1}, {self.XB[k]}, {self.sOnes}, {s1 if k else 0}")
            A(f"v_dot2_f32_bf16 {s2}, {self.XB[k]}, {self.XB[k]}, {s2 if k else 0}")
            if k == 0:
                self.stamp("x")
                if self.o["poison_at"] == "x":
                    self.poison2()
        self.allreduce(A, "v_add_f32", [s1, s2], 32)
        self.ln_stats(A, s1, s2, nm, rs)
        self.stamp("stat")
        A("s_mov_b64 exec, 1\ns_bitset1_b64 exec, 32")
        A(f"v_mul_f32 {rs}, 0x3d800000, {rs}")
        A(f"ds_write2_b32 {ad}, {nm}, {rs} offset0:0 offset1:8" if False else
          f"ds_write_b32 {ad}, {nm} offset:{L_ST}\nds_write_b32 {ad}, {rs} offset:{L_ST + 32}")
        A("s_mov_b64 exec, -1")
        V.put(self.XB)
        self.XL, self.XH = V.get(8), V.get(8)
        for j in range(8):
            A(f"v_lshlrev_b32 {self.XL[j]}, 16, {self.XA[j]}")
            A(f"v_and_b32 {self.XH[j]}, 0xffff0000, {self.XA[j]}")
        V.put(self.XA)
        A.barrier()
        self.stamp("b1")
        NM, RS = V.get(8), V.get(8)
        A(f"v_mov_b32 {ad}, 0")
        for k in range(2):
            A(f"ds_read_b128 {NM[4 * k:4 * k + 4]}, {ad} offset:{L_ST + 16 * k}")
        for k in range(2):
            A(f"ds_read_b128 {RS[4 * k:4 * k + 4]}, {ad} offset:{L_ST + 32 + 16 * k}")
        A(f"s_add_u32 {self.sE}, {self.sE}, 1\ns_and_b32 {self.sTag}, {self.sE}, {TAGMASK}")
        T = V.get(8)
        for e, X in enumerate((self.XL, self.XH)):
            G = V.get(4)
            for q in range(4):
                A(f"v_pk_add_f32 {T[2 * q:2 * q + 2]}, {X[2 * q:2 * q + 2]}, {NM[2 * q:2 * q + 2]}")
            for j in range(8):
                self.rnd(A, T[j], T[j])
            for q in range(4):
                A(f"v_pk_mul_f32 {T[2 * q:2 * q + 2]}, {T[2 * q:2 * q + 2]}, {RS[2 * q:2 * q + 2]}")
            for j in range(8):
                self.rnd(A, T[j], T[j])
            for q in range(4):
                A(f"v_cvt_pk_f16_f32 {G[q]}, {T[2 * q]}, {T[2 * q + 1]}")
            for q in range(4):
                A(f"v_and_or_b32 {G[q]}, {G[q]}, {self.vMask}, {self.sTag}")
            if e == 0:
                self.stamp("norm")
                A.wait_tag("poison")
            A(f"global_store_dwordx4 {self.vS1o}, {G}, s[30:31] offset:{1024 * e} sc1", tag="s1st")
            self.G = getattr(self, "G", []) + [G]
        self.stamp("pub1")
        V.put(T, NM, RS, s1, s2, nm, rs, ad, self.vS1o, self.vMask)

    def warm(self, where):
        if not self.o["warm"] or self.o["warm_at"] != where:
            return
        A, V = self.A, self.V
        t0, t1 = V.get(), V.get()
        if self.o["warm_mode"] == "line":
            A(f"""
            s_lshr_b32 s3, {self.sL}, 5
            s_and_b32 s16, {self.sL}, 31
            s_mul_i32 s17, s16, {16 * 3584}
            s_mul_i32 s18, s3, 448
            s_add_u32 s17, s17, s18
            v_lshrrev_b32 {t0}, 2, {self.vL}
            v_and_b32 {t1}, 3, v0
            v_mul_u32_u24 {t0}, 3584, {t0}
            v_lshl_add_u32 {t0}, {t1}, 7, {t0}
            v_add_u32 {t0}, s17, {t0}
            s_mul_i32 s17, s16, {56 * 1024}
            s_lshl_b32 s3, s3, 7
            s_add_u32 s17, s17, s3
            s_and_b32 s3, {self.sW}, 1
            s_mul_i32 s3, s3, {28 * 1024}
            s_add_u32 s17, s17, s3
            v_min_u32 {t1}, 27, {self.vL}
            v_lshl_add_u32 {t1}, {t1}, 10, s17
            s_cmp_eq_u32 {self.sW}, 0
            s_cselect_b32 s18, s22, s24
            s_cselect_b32 s19, s23, s25
            s_cmp_lt_u32 {self.sW}, 2
            s_cselect_b32 s18, s18, s26
            s_cselect_b32 s19, s19, s27
            s_cselect_b64 vcc, -1, 0
            v_cndmask_b32 {t0}, {t1}, {t0}, vcc
            global_load_dword {self.vJunk[1]}, {t0}, s[18:19]
            """)
            V.put(t0, t1)
            return
        A(f"""
        s_lshr_b32 s3, {self.sL}, 5
        s_and_b32 s16, {self.sL}, 31
        s_mul_i32 s17, s16, {16 * 3584}
        s_mul_i32 s18, s3, 448
        s_add_u32 s17, s17, s18
        v_bfe_u32 {t0}, v0, 3, 4
        v_and_b32 {t1}, 7, v0
        v_min_u32 {t1}, 6, {t1}
        v_mul_u32_u24 {t0}, 3584, {t0}
        v_lshl_add_u32 {t0}, {t1}, 6, {t0}
        v_add_u32 {t0}, s17, {t0}
        s_cmp_lt_u32 {self.sW}, 2
        s_cselect_b32 s18, s22, s24
        s_cselect_b32 s19, s23, s25
        global_load_dword {self.vJunk[1]}, {t0}, s[18:19]
        s_mul_i32 s17, s16, {56 * 1024}
        s_lshl_b32 s3, s3, 7
        s_add_u32 s17, s17, s3
        v_min_u32 {t0}, 111, v0
        v_and_b32 {t1}, 1, {t0}
        v_lshrrev_b32 {t0}, 1, {t0}
        v_lshlrev_b32 {t0}, 10, {t0}
        v_lshl_add_u32 {t0}, {t1}, 6, {t0}
        v_add_u32 {t0}, s17, {t0}
        global_load_dword {self.vJunk[2]}, {t0}, s[26:27]
        """)
        V.put(t0, t1)

    def s1_loads(self, A):
        A(f"global_load_dwordx4 {self.UG[0:4]}, {self.vS1i}, s[30:31] sc1")
        A(f"global_load_dwordx4 {self.UG[4:8]}, {self.vS1i2}, s[30:31] sc1")

    def maybe_s1(self, where):
        if self.o["s1_at"] == where:
            self.UG = self.V.get(8)
            self.s1_loads(self.A)

    def kgen(self):
        A, V = self.A, self.V
        P = self.PAR
        V.put(*self.G)
        t0, t1, dt = V.get(), V.get(), V.get()
        self.vG16, self.vD16 = V.get(), V.get()
        A(f"""
        v_and_b32 {t0}, 0x7fff7fff, {P[2]}
        v_and_b32 {t1}, 0x7fff7fff, {P[3]}
        v_pk_max_u16 {t0}, {t0}, {t1}
        v_lshrrev_b32 {t1}, 16, {t0}
        v_and_b32 {t0}, 0xffff, {t0}
        v_max_u32 {t0}, {t0}, {t1}
        v_lshlrev_b32 {dt}, 16, {P[4]}
        v_mul_f32 {dt}, {LOG2E}, {dt}
        v_exp_f32 {dt}, {dt}
        s_cmp_eq_u32 {self.sH}, 0
        s_cselect_b32 s3, 16, 0
        """)
        for k in range(4):
            A(f"v_lshlrev_b32 {P[k]}, s3, {P[k]}")
        for k in range(4):
            A(f"v_and_b32 {P[k]}, 0xffff0000, {P[k]}")
        self.rnd(A, dt, dt)
        self.stamp("par")
        A(f"v_mul_f32 {P[0]}, {LOG2E}, {P[0]}\nv_exp_f32 {P[0]}, {P[0]}")
        self.allreduce(A, "v_max_u32", [t0], 64)
        self.rnd(A, P[0], P[0])
        A(f"""
        v_lshlrev_b32 {self.vD16}, 16, {P[5]}
        v_mul_f32 {self.vD16}, 0x41800000, {self.vD16}
        v_mul_f32 {P[0]}, {P[0]}, {dt}
        v_mul_f32 {P[1]}, {P[1]}, {dt}
        v_mul_f32 {P[0]}, {LOG2E | 0x80000000}, {P[0]}
        v_mul_f32 {P[1]}, {INV2PI}, {P[1]}
        v_lshrrev_b32 {t0}, 7, {t0}
        v_max_u32 {t0}, 8, {t0}
        v_lshrrev_b32 {t1}, 23, {dt}
        v_add_u32 {t1}, {t1}, {t0}
        v_subrev_u32 {t1}, 127, {t1}
        v_max_i32 {t1}, 0, {t1}
        v_min_i32 {t1}, 254, {t1}
        v_lshlrev_b32 {self.vG16}, 23, {t1}
        v_sub_u32 {t0}, 259, {t0}
        v_and_b32 {dt}, 0x007fffff, {dt}
        v_lshl_or_b32 {dt}, {t0}, 23, {dt}
        """)
        W = {p: V.get(2) for p in (1, 16, 256)}
        for p, mul in ((1, None), (16, 0x41800000), (256, 0x43800000)):
            w = W[p]
            if mul:
                A(f"v_mul_f32 {t0}, {mul}, {P[0]}\nv_mul_f32 {t1}, {mul}, {P[1]}")
                A(f"v_exp_f32 {t0}, {t0}\nv_fract_f32 {t1}, {t1}")
            else:
                A(f"v_exp_f32 {t0}, {P[0]}\nv_fract_f32 {t1}, {P[1]}")
            A(f"v_cos_f32 {w[0]}, {t1}\nv_sin_f32 {w[1]}, {t1}")
            A(f"v_mul_f32 {w[0]}, {w[0]}, {t0}\nv_mul_f32 {w[1]}, {w[1]}, {t0}")
        L, M, Rr, T = V.get(2), V.get(2), V.get(2), V.get(2)
        A(f"v_mul_f32 {L[0]}, {P[2]}, {dt}\nv_mul_f32 {L[1]}, {P[3]}, {dt}")
        self.stamp("ws")
        NB_ = self.o["recb"]
        pk = [V.get() for _ in range(2 * NB_)]
        cnt = [0]
        queue = []
        A(f"s_mov_b32 m0, {self.sStM}")

        def cmul(d, a, b):
            A(f"v_pk_mul_f32 {T}, {a}, {b} op_sel_hi:[0,1]")
            A(f"v_pk_fma_f32 {d}, {a}, {b}, {T} op_sel:[1,1,0] op_sel_hi:[1,0,1] neg_lo:[0,1,0]")

        def flush_q():
            for row, r in queue:
                A(f"ds_write_addtid_b32 {r} offset:{32768 + row * ROWB}")
            queue.clear()

        def put(row, v, conj=False):
            r = pk[cnt[0] % (2 * NB_)]
            cnt[0] += 1
            A(f"v_cvt_pk_f16_f32 {r}, {v[0]}, {'-' if conj else ''}{v[1]}")
            queue.append((row, r))
            if len(queue) == NB_:
                flush_q()

        A(f"v_mov_b32 {t0}, 0x3c00")
        queue.append((0, t0))
        put(1, W[16], conj=True)
        cmul(Rr, W[16], W[16])
        put(2, Rr, conj=True)
        for j in range(3, 16):
            cmul(Rr, Rr, W[16])
            put(j, Rr, conj=True)
        self.maybe_s1("rec0")
        self.stamp("recR")
        for al in range(17):
            if al:
                cmul(L, L, W[1])
            if al < 16:
                put(16 + al, L)
            if al % 2 == 0:
                cmul(M, L, W[256])
                put(32 + al // 2, M)
                if al and al % 4 == 0:
                    for a in range(2):
                        cmul(M, M, W[256])
                        put(41 + 4 * a + al // 4 - 1, M)
                    if al % 8 == 0:
                        for a in range(4):
                            cmul(M, M, W[256])
                            put(49 + 2 * a + al // 8 - 1, M)
            if al == 8:
                self.maybe_s1("rec1")
        flush_q()
        V.put(L, M, Rr, T, *pk, *W.values(), t0, t1, dt, P)
        self.stamp("rec")
        self.maybe_s1("rec2")
        A.barrier()
        self.stamp("b2")
        NB = 4
        Bb = [V.get(4) for _ in range(NB)]
        A1 = [V.get(4) for _ in range(NB)]
        A2 = [V.get(4) for _ in range(NB)]
        D1, D2 = V.get(4), V.get(4)

        def rd(q):
            A(f"ds_read_b128 {Bb[q % NB]}, {self.vBm} offset:{64 * q}")
            A(f"ds_read_b128 {A1[q % NB]}, {self.vA1} offset:{64 * q}")
            A(f"ds_read_b128 {A2[q % NB]}, {self.vA2} offset:{64 * q}")
        for q in range(NB):
            rd(q)
        for q in range(8):
            A(f"v_mfma_f32_16x16x32_f16 {D1}, {A1[q % NB]}, {Bb[q % NB]}, {D1 if q else 0}")
            A(f"v_mfma_f32_16x16x32_f16 {D2}, {A2[q % NB]}, {Bb[q % NB]}, {D2 if q else 0}")
            if q + NB < 8:
                rd(q + NB)
        self.maybe_s1("mfma")
        self.stamp("kmf0")
        K1, K2 = V.get(2), V.get(2)
        A(f"s_cmp_eq_u32 {self.sH}, 0\ns_cselect_b32 s3, 63, 55\ns_cselect_b32 s16, 4, 2")
        t0 = V.get()
        A(f"v_add_u32 {t0}, s16, {self.vKs}")
        A(f"v_cvt_pk_f16_f32 {K1[0]}, {D1[0]}, {D1[1]}\nv_cvt_pk_f16_f32 {K1[1]}, {D1[2]}, {D1[3]}")
        A(f"v_cvt_pk_f16_f32 {K2[0]}, {D2[0]}, {D2[1]}\nv_cvt_pk_f16_f32 {K2[1]}, {D2[2]}, {D2[3]}")
        A(f"ds_write_b64 {self.vK1}, {K1}\nds_write_b64 {self.vK2}, {K2}")
        A("s_mov_b64 exec, 0\ns_bitset1_b64 exec, s3")
        A(f"ds_write_b16 {self.vKs}, {K2[0]}\nds_write_b16 {self.vKs}, {K2[0]} offset:2\nds_write_b16 {t0}, {K2[0]}")
        A("s_mov_b64 exec, -1")
        V.put(*Bb, *A1, *A2, D1, D2, self.vA1, self.vA2, self.vBm, self.vK1, self.vK2, self.vKs, t0)
        A.barrier()
        V.put(K1, K2)
        self.stamp("kmf")
        self.maybe_s1("shift")
        D, C1, C2, C3 = V.get(6), V.get(4), V.get(4), V.get(4)
        A(f"ds_read_b128 {D[0:4]}, {self.vShift} offset:{L_K}\nds_read_b64 {D[4:6]}, {self.vShift} offset:{L_K + 16}")
        for k in range(4):
            A(f"v_alignbit_b32 {C1[k]}, {D[k + 1]}, {D[k]}, 16")
        A(f"ds_write_b128 {self.vShift}, {C1} offset:{L_K + KCOPY}")
        for k in range(4):
            A(f"v_mov_b32 {C2[k]}, {D[k + 1]}")
        A(f"ds_write_b128 {self.vShift}, {C2} offset:{L_K + 2 * KCOPY}")
        for k in range(4):
            A(f"v_alignbit_b32 {C3[k]}, {D[k + 2]}, {D[k + 1]}, 16")
        A(f"ds_write_b128 {self.vShift}, {C3} offset:{L_K + 3 * KCOPY}")
        A.barrier()
        V.put(D, C1, C2, C3, self.vShift)
        self.stamp("shift")
        self.maybe_s1("frag")
        AC = self.AC
        self.KN = [AC.get(4, 4) for _ in range(17)]
        self.KX = AC.get(4, 4)
        self.B2 = {(k, d): AC.get(4, 4) for k in range(2) for d in (2, 3, 4)}
        self.B3 = {d: AC.get(4, 4) for d in (4, 5, 6, 7)}
        for q in range(17):
            for hf in range(2):
                A(f"ds_read_b64 {self.KN[q][2 * hf:2 * hf + 2]}, {self.vN} offset:{64 * (16 - q) + 8 * hf}")
        for hf in range(2):
            A(f"ds_read_b64 {self.KX[2 * hf:2 * hf + 2]}, {self.vN} offset:{2 * NX + 8 * hf}")
        for (k, d), r in self.B2.items():
            for hf in range(2):
                A(f"ds_read_b64 {r[2 * hf:2 * hf + 2]}, {self.vF} offset:{2 * (V2[2 * k + hf] + 32 - 16 * (d - 2))}")
        for d, r in self.B3.items():
            for hf in range(2):
                A(f"ds_read_b64 {r[2 * hf:2 * hf + 2]}, {self.vF} offset:{2 * (V3[hf] + 48 - 16 * (d - 4))}")
        V.put(self.vN, self.vF)
        self.maybe_s1("end")
        self.stamp("frag")

    def s1_consume(self, A, sfx):
        V = self.V
        UG = self.UG
        t0, t1 = V.get(), V.get()

        def check(C):
            for k in range(8):
                C(f"v_xor_b32 {UG[k]}, {self.sTag}, {UG[k]}")
            C(f"v_or3_b32 {t0}, {UG[0]}, {UG[1]}, {UG[2]}\nv_or3_b32 {t1}, {UG[3]}, {UG[4]}, {UG[5]}")
            C(f"v_or3_b32 {t0}, {t0}, {UG[6]}, {UG[7]}\nv_or_b32 {t0}, {t0}, {t1}")
            C(f"v_and_b32 {t0}, {TAGMASK}, {t0}\nv_cmp_ne_u32 vcc, 0, {t0}")
        self.poll(A, "s1" + sfx, self.s1_loads, check)
        self.stamp("s1w", A)
        A(f"ds_write_b128 {self.vUw}, {UG[0:4]} offset:{L_U + 512}")
        A(f"ds_write_b128 {self.vUw}, {UG[4:8]} offset:{L_U + 512 + 2048}")
        self.stamp("s1", A)
        A.barrier()
        self.stamp("b5", A)
        V.put(t0, t1)

    def conv(self, A, tiles, dma):
        V, AC = self.V, self.AC
        acc = {j: V.get(4) for j in tiles}
        NF, NG, NW, NP = self.o["nf"], self.o["ng"], 6, 6
        PE, PD, NPRE = self.o["pe"], self.o["pd"], self.o["npre"]
        Fb = [AC.get(4, 4) for _ in range(NF)]
        Gb = [AC.get(4, 4) for _ in range(NG)]
        Wb = [V.get(4) for _ in range(NW)]
        Pb = [V.get(4) for _ in range(NP)]
        EU = [V.get(2) for _ in range(2)]
        ED = [V.get(4) for _ in range(2)]
        EY, EZ = V.get(4), V.get(2)
        qmax = {0: 7, 1: 15}
        b2 = sorted({j - d for j in tiles for d in (2, 3, 4) if j - d >= 0})
        b3 = sorted({j - d for j in tiles for d in (4, 5, 6, 7) if j - d >= 0})
        nlo = min(8 * j - qmax.get(j, 16) for j in tiles)
        nhi = 8 * max(tiles)
        near = []
        for fi, n in enumerate(range(nlo, nhi + 1)):
            for j in tiles:
                q = 8 * j - n
                if 0 <= q <= qmax.get(j, 16):
                    near.append((j, self.KN[q], fi, q == 0))
        far = []
        gfr, pcount = [], 0
        for b in sorted(set(b2) | set(b3)):
            ga, gb = len(gfr), len(gfr) + 1
            gfr += [256 * b - 16, 256 * b - 24]
            mains = []
            if b in b2:
                pa, pb = pcount, pcount + 1
                pcount += 2
                far += [("band", ga, (12, 1), pa, 0), ("band", ga, (8, 2), pa, 1), ("band", ga, (4, 1), pb, 0), ("band", gb, (8, 2), pb, 1)]
                mains += [("main", b + d, pa, self.B2[(0, d)]) for d in (2, 3, 4) if b + d in tiles]
                mains += [("main", b + d, pb, self.B2[(1, d)]) for d in (2, 3, 4) if b + d in tiles]
            if b in b3:
                pc = pcount
                pcount += 1
                far += [("band", ga, (8, 3), pc, 0), ("band", gb, (8, 4), pc, 1)]
                mains += [("main", b + d, pc, self.B3[d]) for d in (4, 5, 6, 7) if b + d in tiles]
            if b + 4 in tiles:
                far.append(("x", b + 4, ga))
            far += mains
        LAT = 5
        mf, fill = [], []
        started, done_at = set(), {}
        fuse, guse, plast, pready = {}, {}, {}, {}
        wcount = 0
        ni = 0
        farleft = list(far)
        span = self.o["far_span"][0 if 0 in tiles else 1]
        credit = 0.0

        def acc_mf(j, a, b):
            mf.append(f"v_mfma_f32_16x16x32_f16 {acc[j]}, {a}, {b}, {acc[j] if j in started else 0}")
            started.add(j)

        def far_ok(it):
            t = len(mf)
            if it[0] == "main":
                return pready.get(it[2], 10 ** 6) <= t
            if it[0] == "band":
                prev = it[3] - NP
                return prev < 0 or not any(o[0] == "main" and o[2] == prev for o in farleft)
            return True

        while ni < len(near) or farleft:
            t = len(mf)
            want_far = farleft and (credit >= 1.0 or ni >= len(near))
            if ni < len(near) and near[ni][3] and any(o[0] in ("main", "x") and o[1] == near[ni][0] for o in farleft):
                want_far = True
            pick = None
            if want_far:
                for it in farleft[:8]:
                    if far_ok(it):
                        if it[0] == "band" and any(o[0] == "band" for o in farleft[:farleft.index(it)]):
                            continue
                        pick = it
                        break
            if pick is None and ni < len(near) and not (near[ni][3] and any(o[0] in ("main", "x") and o[1] == near[ni][0] for o in farleft)):
                j, a, fi, last = near[ni]
                ni += 1
                acc_mf(j, a, Fb[fi % NF])
                fuse.setdefault(fi, [t, t])[1] = t
                if last:
                    done_at[j] = t
                credit += len(far) / span
                continue
            assert pick is not None, "conv schedule is stuck"
            farleft.remove(pick)
            credit -= 1.0
            if pick[0] == "band":
                _, g, key, p, hf = pick
                w = Wb[wcount % NW]
                wcount += 1
                mf.append(f"v_mfma_f32_16x16x32_f16 {w}, {Gb[g % NG]}, {self.BAND[key]}, 0")
                guse.setdefault(g, [t, t])[1] = t
                for k in range(2):
                    fill.append([t + 3, t + LAT - 1, f"v_cvt_pk_f16_f32 {Pb[p % NP][2 * hf + k]}, {w[2 * k]}, {w[2 * k + 1]}", None])
                if hf == 1:
                    pready[p] = t + LAT
            elif pick[0] == "x":
                acc_mf(pick[1], self.KX, Gb[pick[2] % NG])
                guse.setdefault(pick[2], [t, t])[1] = t
            else:
                acc_mf(pick[1], Pb[pick[2] % NP], pick[3])
        nm = len(mf)
        pre = []
        reads = []
        for fi in sorted(fuse):
            txt = f"ds_read_b128 {Fb[fi % NF]}, {self.vUf} offset:{512 + 2 * (32 * (nlo + fi) - 16)}"
            reads.append((fuse[fi][0], fuse[fi - NF][1] if fi >= NF else -1, txt))
        for g in sorted(guse):
            txt = f"ds_read_b128 {Gb[g % NG]}, {self.vUf} offset:{512 + 2 * gfr[g]}"
            reads.append((guse[g][0], guse[g - NG][1] if g >= NG else -1, txt))
        reads.sort()
        for first, free, txt in reads:
            if free < 0 and first <= NPRE:
                pre.append(txt)
            else:
                assert free < first
                fill.append([max(free, first - PE, 0), max(free, first - PD, 0), txt, None])
        order_t = sorted(tiles, key=lambda j: done_at[j])
        for k, j in enumerate(order_t):
            eu, ed = EU[k % 2], ED[k % 2]
            t = done_at[j]
            nxt = done_at[order_t[k + 1]] if k + 1 < len(order_t) else nm + 100
            e0 = 2 if k < 2 else done_at[order_t[k - 2]] + 12
            assert e0 + 4 <= t + 2
            fill.append([e0, max(e0, t - 8), f"ds_read_b64 {eu}, {self.vUe} offset:{512 + 512 * j}", f"e1_{j}"])
            for r in range(4):
                fill.append([e0 + 4, t + 2, f"v_fma_mix_f32 {ed[r]}, {eu[r // 2]}, {self.vD16}, 0 op_sel:[{r % 2},0,0] op_sel_hi:[1,0,0]", f"e1_{j}"])
            for r in range(4):
                fill.append([e0 + 4, t + 2, f"v_cvt_pk_bf16_f32 {ed[r]}, 0, {ed[r]}", f"e1_{j}"])
            seq2 = [f"v_cvt_pk_bf16_f32 {EY[r]}, 0, {acc[j][r]}" for r in range(4)]
            seq2 += [f"v_fma_f32 {EY[r]}, {EY[r]}, {self.vG16}, {ed[r]}" for r in range(4)]
            seq2 += [f"v_cvt_pk_bf16_f32 {EZ[r]}, {EY[2 * r]}, {EY[2 * r + 1]}" for r in range(2)]
            seq2.append(f"ds_write_b64 {self.vZw}, {EZ} offset:{L_Z + 1024 * j}")
            for txt in seq2:
                fill.append([t + 3, min(t + 11, nxt + 2), txt, f"e2_{j}"])
        step = (nm - 6) // max(len(dma), 1)
        for k, grp in enumerate(dma):
            fill.append([1 + k * step, 3 + k * step, grp, "dma"])
        for txt in pre:
            A(txt)
        for i, f in enumerate(fill):
            f.append(i)
        left = list(fill)
        A.prewait([mf[0]])
        for t in range(nm):
            A(mf[t])
            chosen = []
            for f in sorted([f for f in left if f[0] <= t], key=lambda f: (f[1], f[4])):
                if len(chosen) >= 2 and f[1] > t:
                    break
                if f[3] and any(g[3] == f[3] and g[4] < f[4] and g not in chosen for g in left):
                    continue
                mem = isinstance(f[2], tuple) or f[2].startswith("ds_")
                if mem and f[1] > t and any(g[3] == f[3] and f[3] for g in chosen):
                    continue
                chosen.append(f)
            memf = [f for f in chosen if (isinstance(f[2], tuple) or f[2].startswith("ds_")) and not any(g[3] == f[3] and f[3] and g[4] < f[4] for g in chosen)]
            rest = [f for f in chosen if f not in memf]
            A.prewait([f[2] for f in chosen if not isinstance(f[2], tuple)] + ([mf[t + 1]] if t + 1 < nm else []))
            for f in memf + rest:
                if isinstance(f[2], tuple):
                    A(f[2][0])
                    A(f[2][1], tag="dma")
                else:
                    A(f[2])
                left.remove(f)
        for f in sorted(left, key=lambda f: (f[1], f[4])):
            A(f[2])
        self.nmfma = getattr(self, "nmfma", []) + [nm]
        V.put(*acc.values(), *Wb, *Pb, *EU, *ED, EY, EZ)
        AC.put(*Fb, *Gb)

    def dma_setup_common(self):
        pass

    def dma_plan(self, A, role):
        V = self.V
        vL, sW = self.vL, self.sW
        t0, t1 = V.get(), V.get()
        if role == 0:
            self.vWa = [V.get(), V.get()]
            A(f"""
            s_mul_i32 {self.sWb}, {sW}, 4224
            s_add_u32 {self.sWb}, {self.sWb}, {L_STAGE}
            s_lshl_b32 s3, {sW}, 7
            v_add_u32 {t0}, s3, {vL}
            v_mul_u32_u24 {t0}, 3584, {t0}
            s_lshl_b32 s3, {self.sPhi}, 4
            v_add_u32 {self.vWa[0]}, s3, {t0}
            v_add_u32 {self.vWa[1]}, {64 * 3584}, {self.vWa[0]}
            """)
            plan = [(f"s_add_u32 m0, {self.sWb}, {(m // 2) * 2112 + (m % 2) * 1024}",
                     f"global_load_lds_dwordx4 {self.vWa[m % 2]}, s[{22 + 2 * (m // 2)}:{23 + 2 * (m // 2)}]") for m in range(4)]
        else:
            self.vWa = [V.get()]
            A(f"""
            s_mul_i32 {self.sWb}, {sW}, 14336
            s_add_u32 {self.sWb}, {self.sWb}, {L_STAGE}
            s_mul_i32 s3, {sW}, 448
            v_lshrrev_b32 {t0}, 1, {vL}
            v_add_u32 {t0}, s3, {t0}
            v_lshlrev_b32 {t0}, 10, {t0}
            v_and_b32 {t1}, 1, {vL}
            v_lshl_add_u32 {t0}, {t1}, 4, {t0}
            s_sub_u32 s3, {self.sPhi}, 224
            s_lshl_b32 s3, s3, 5
            v_add_u32 {self.vWa[0]}, s3, {t0}
            s_mov_b64 s[4:5], s[26:27]
            """)
            plan = [(f"s_add_u32 m0, {self.sWb}, {m * 1024}" + ("\ns_add_u32 s4, s4, 0x8000\ns_addc_u32 s5, s5, 0" if m else ""),
                     f"global_load_lds_dwordx4 {self.vWa[0]}, s[4:5]") for m in range(14)]
        V.put(t0, t1)
        return plan

    def conv_both(self, A, role):
        sfx = f"r{role}"
        plan = self.dma_plan(A, role)
        self.plan = plan
        if self.o["dma_at"] != "conv":
            plan = []
        self.s1_consume(A, sfx)
        A(f"s_cmp_eq_u32 {self.sH}, 0\ns_cbranch_scc0 L_conv_b{sfx}")
        B = A.fork()
        self.conv(A, [0, 1, 2, 3, 4], plan)
        A.wait(lg=0)
        A.flush()
        A(f"s_branch L_conv_done{sfx}")
        B.label(f"L_conv_b{sfx}")
        self.conv(B, [5, 6, 7], plan)
        B.wait(lg=0)
        B.flush()
        assert len(A.vm) == len(B.vm)
        A.lines += B.lines
        A.count += B.count
        A.nops += B.nops
        A.label(f"L_conv_done{sfx}")
        self.stamp("conv", A)
        A("s_barrier")
        self.stamp("b6", A)
        ZT = self.ZT
        A(f"ds_read_b128 {ZT[0:4]}, {self.vZr} offset:{L_Z}\nds_read_b128 {ZT[4:8]}, {self.vZr} offset:{L_Z + 4096}")
        A(f"global_store_dwordx4 {self.vS2o}, {ZT[0:4]}, s[30:31] sc1", tag="s2st")
        A(f"global_store_dwordx4 {self.vS2o2}, {ZT[4:8]}, s[30:31] sc1", tag="s2st")
        self.stamp("st2", A)

    def tail(self, A, role):
        V, S = self.V, self.S
        vL, vI, vG, sL, sW = self.vL, self.vI, self.vG, self.sL, self.sW
        sfx = f"r{role}"
        got = []

        def get(n=1, al=None):
            r = V.get(n, al)
            got.append(r)
            return r
        t0, t1, t2 = get(), get(), get()
        vTr = get()
        if role == 0:
            A(f"""
            v_bfe_u32 {t0}, {vI}, 1, 1
            v_mul_u32_u24 {t0}, 2112, {t0}
            v_and_b32 {t1}, 1, {vI}
            v_lshl_add_u32 {t0}, {t1}, 3, {t0}
            v_lshrrev_b32 {t1}, 2, {vI}
            v_lshl_add_u32 {t1}, {vG}, 3, {t1}
            v_lshl_add_u32 {t0}, {t1}, 4, {t0}
            v_add_u32 {vTr}, {self.sWb}, {t0}
            """)
        else:
            A(f"""
            v_and_b32 {t0}, 3, {vI}
            v_lshlrev_b32 {t0}, 3, {t0}
            v_lshrrev_b32 {t1}, 2, {vI}
            v_lshl_add_u32 {t1}, {vG}, 3, {t1}
            v_lshl_add_u32 {t0}, {t1}, 5, {t0}
            v_add_u32 {vTr}, {self.sWb}, {t0}
            """)
        self.stamp("dma", A)
        vSW, vHw, vHr, vKw, vS3o, vS3i, vRo = get(), get(), get(), get(), get(), get(), get()
        for k in range(8):
            A(f"v_dot2_f32_bf16 {vSW}, {self.WR[k]}, {self.sOnes}, {vSW if k else 0}")
        self.allreduce(A, "v_add_f32", [vSW], 32)
        A(f"""
        v_lshlrev_b32 {vHw}, 2, v0
        v_and_b32 {t0}, 31, v0
        v_lshlrev_b32 {t0}, 4, {t0}
        v_lshl_add_u32 {vHr}, {self.vTau}, 10, {t0}
        v_lshlrev_b32 {vKw}, 2, {self.vTau}
        s_lshl_b32 s3, {sW}, 13
        s_lshl_b32 s16, {sL}, 4
        s_add_u32 s3, s3, s16
        s_add_u32 s3, s3, {WS_S3}
        v_lshl_add_u32 {vS3o}, {vL}, 12, s3
        s_lshr_b32 s3, {sL}, 5
        s_lshl_b32 s3, s3, 12
        s_add_u32 s16, s3, {WS_S3}
        v_lshl_add_u32 {vS3i}, v0, 4, s16
        s_lshl_b32 s16, {sL}, 11
        s_add_u32 s16, s16, {WS_ROWS}
        v_add_u32 {vRo}, s16, {t0}
        """)
        A.wait_tag("s2st")
        self.stamp("ack2", A)
        ZT = self.ZT

        def s2_loads(C):
            C(f"global_load_dwordx4 {ZT[0:4]}, {self.vS2i}, s[30:31] sc1")
            C(f"global_load_dwordx4 {ZT[4:8]}, {self.vS2i2}, s[30:31] sc1")
        s2_loads(A)
        rest = [] if self.o["dma_at"] == "conv" else list(self.plan)

        def dma_some(n):
            for _ in range(min(n, len(rest))):
                a, b = rest.pop(0)
                A(a)
                A(b, tag="dma")
        dma_some(4)

        def poison_check(regs):
            def chk(C):
                r = list(regs)
                if len(r) == 1:
                    C(f"v_cmp_eq_u32 vcc, -1, {r[0]}")
                    return
                C(f"v_max3_u32 {t0}, {r[0]}, {r[1]}, {r[2] if len(r) > 2 else r[1]}")
                r = r[3:]
                while r:
                    C(f"v_max3_u32 {t0}, {t0}, {r[0]}, {r[1] if len(r) > 1 else r[0]}")
                    r = r[2:]
                C(f"v_cmp_eq_u32 vcc, -1, {t0}")
            return chk
        self.poll(A, "s2" + sfx, s2_loads, poison_check([ZT[k] for k in range(8)]))
        self.stamp("s2", A)
        HP = get(4)
        T = get(8)
        for grp in range(2):
            for jj in range(4):
                j = 4 * grp + jj
                sel = self.sHi if j % 2 else self.sLo
                A(f"v_dot2_f32_bf16 {T[2 * jj]}, {ZT[j // 2]}, {sel}, {self.XL[j]}")
                A(f"v_dot2_f32_bf16 {T[2 * jj + 1]}, {ZT[4 + j // 2]}, {sel}, {self.XH[j]}")
            for jj in range(4):
                j = 4 * grp + jj
                A(f"v_cvt_pk_bf16_f32 {HP[jj]}, {T[2 * jj]}, {T[2 * jj + 1]}")
                A(f"ds_write_b32 {vHw}, {HP[jj]} offset:{L_H + 1024 * j}")
        self.stamp("hw", A)
        A.barrier()
        self.stamp("b7", A)
        HB = get(8)
        A(f"ds_read_b128 {HB[0:4]}, {vHr} offset:{L_H}\nds_read_b128 {HB[4:8]}, {vHr} offset:{L_H + 512}")
        s1, s2, s3, NM, RS, key = get(), get(), get(), get(2), get(2), get()
        A(f"s_lshl_b32 s3, {sL}, 3\ns_sub_u32 s3, 2047, s3\nv_sub_u32 {t2}, s3, {self.vTau}")
        for k in range(8):
            A(f"v_dot2_f32_bf16 {s1}, {HB[k]}, {self.sOnes}, {s1 if k else 0}")
            A(f"v_dot2_f32_bf16 {s2}, {HB[k]}, {HB[k]}, {s2 if k else 0}")
            A(f"v_dot2_f32_bf16 {s3}, {HB[k]}, {self.WR[k]}, {s3 if k else 0}")
        self.allreduce(A, "v_add_f32", [s1, s2, s3], 32)
        self.ln_stats(A, s1, s2, NM[0], RS[0])
        A(f"v_fma_f32 {s3}, {NM[0]}, {vSW}, {s3}\nv_mul_f32 {s3}, {s3}, {RS[0]}")
        self.rnd(A, s3, s3)
        A(f"""
        v_ashrrev_i32 {t1}, 31, {s3}
        v_or_b32 {t1}, 0x80000000, {t1}
        v_xor_b32 {t1}, {s3}, {t1}
        v_and_b32 {t1}, 0xffff0000, {t1}
        v_or_b32 {key}, {t1}, {t2}
        s_mov_b64 exec, 1
        s_bitset1_b64 exec, 32
        ds_write_b32 {vKw}, {key} offset:{L_KEY}
        s_mov_b64 exec, -1
        v_mov_b32 {t1}, 0
        """)
        self.stamp("key", A)
        H32 = get(16)
        for k in range(8):
            A(f"v_lshlrev_b32 {H32[2 * k]}, 16, {HB[k]}\nv_and_b32 {H32[2 * k + 1]}, 0xffff0000, {HB[k]}")
        A.barrier()
        kmax = get()
        A(f"ds_read_b128 {T[0:4]}, {t1} offset:{L_KEY}\nds_read_b128 {T[4:8]}, {t1} offset:{L_KEY + 16}")
        A(f"v_max3_u32 {kmax}, {T[0]}, {T[1]}, {T[2]}\nv_max3_u32 {t0}, {T[3]}, {T[4]}, {T[5]}")
        A(f"v_max3_u32 {kmax}, {kmax}, {T[6]}, {T[7]}\nv_max_u32 {kmax}, {kmax}, {t0}")
        A("s_mov_b64 exec, 3")
        A(f"global_store_dword {vS3o}, {kmax}, s[30:31] sc1", tag="s3st")
        A("s_mov_b64 exec, -1")
        self.stamp("pub3", A)
        sC = self.sC
        A(f"v_cmp_eq_u32 {sC}, {key}, {kmax}")
        HN, D = get(8), get(16)
        A(f"v_mov_b32 {NM[1]}, {NM[0]}\nv_mov_b32 {RS[1]}, {RS[0]}")
        for k in range(8):
            A(f"v_pk_add_f32 {D[2 * k:2 * k + 2]}, {H32[2 * k:2 * k + 2]}, {NM}")
        for k in range(16):
            self.rnd(A, D[k], D[k])
        for k in range(8):
            A(f"v_pk_mul_f32 {D[2 * k:2 * k + 2]}, {D[2 * k:2 * k + 2]}, {RS}")
        for k in range(8):
            A(f"v_cvt_pk_bf16_f32 {HN[k]}, {D[2 * k]}, {D[2 * k + 1]}")
        A(f"s_mov_b64 exec, {sC}")
        A(f"global_store_dwordx4 {vRo}, {HN[0:4]}, s[30:31] sc1", tag="s3st")
        A(f"global_store_dwordx4 {vRo}, {HN[4:8]}, s[30:31] offset:512 sc1", tag="s3st")
        A(f"global_store_dwordx4 {vRo}, {HB[0:4]}, s[30:31] offset:1024 sc1", tag="s3st")
        A(f"global_store_dwordx4 {vRo}, {HB[4:8]}, s[30:31] offset:1536 sc1", tag="s3st")
        A("s_mov_b64 exec, -1")
        self.stamp("hn", A)
        O = get(8)
        for k in range(8):
            A(f"v_dot2_f32_bf16 {D[2 * k]}, {HN[k]}, {self.sLo}, {H32[2 * k]}")
            A(f"v_dot2_f32_bf16 {D[2 * k + 1]}, {HN[k]}, {self.sHi}, {H32[2 * k + 1]}")
        for k in range(8):
            A(f"v_cvt_pk_bf16_f32 {O[k]}, {D[2 * k]}, {D[2 * k + 1]}")
        self.stamp("outc", A)
        pol = self.o["out_pol"]

        def out_stores(C):
            C(f"global_store_dwordx4 {self.vRow}, {O[0:4]}, s[28:29] {pol}", tag="out")
            C(f"global_store_dwordx4 {self.vRow}, {O[4:8]}, s[28:29] offset:512 {pol}", tag="out")
        nw = 4 if role == 0 else 14
        WT = [self.AC.get(4, 4) for _ in range(nw)]

        def tr_reads():
            A.wait_tag("dma")
            for m in range(nw):
                for e2 in range(2):
                    off = (32 * m + 4 * e2) * (16 if role == 0 else 32)
                    A(f"ds_read_b64_tr_b16 {WT[m][2 * e2:2 * e2 + 2]}, {vTr} offset:{off}")
        if role == 0:
            tr_reads()
        A.wait(vm=0)
        self.stamp("ack3", A)
        kin = get()

        def s3_loads(C):
            C(f"global_load_dword {kin}, {vS3i}, s[30:31] sc1")
        s3_loads(A)
        dma_some(4)
        if role == 0:
            A(f"s_andn2_b64 exec, -1, {sC}")
            out_stores(A)
            A("s_mov_b64 exec, -1")
        A(f"v_lshlrev_b32 {t1}, 2, v0\nv_lshrrev_b32 {t1}, 6, {t1}\nv_and_b32 {t1}, 12, {t1}\nv_mov_b32 {t2}, 0")
        self.poll(A, "s3" + sfx, s3_loads, poison_check([kin]))
        self.stamp("s3p", A)
        self.allreduce(A, "v_max_u32", [kin], 64)
        self.stamp("s3w", A)
        A(f"s_mov_b64 exec, 1\nds_write_b32 {t1}, {kin} offset:{L_KEY2}\ns_mov_b64 exec, -1")
        A.barrier()
        A(f"ds_read_b128 {T[0:4]}, {t2} offset:{L_KEY2}")
        A(f"v_max3_u32 {kin}, {T[0]}, {T[1]}, {T[2]}\nv_max_u32 {kin}, {kin}, {T[3]}")
        sK, sT = self.sK, self.sT
        A(f"v_readfirstlane_b32 {sK}, {kin}")
        A(f"s_and_b32 {sT}, {sK}, 0x7ff\ns_sub_u32 {sT}, 2047, {sT}")
        self.stamp("s3", A)
        A(f"s_lshr_b32 s3, {sT}, 3\ns_lshl_b32 s3, s3, 11\ns_add_u32 s3, s3, {WS_ROWS}")
        XS = get(4)
        vRed = get()
        if role == 0:
            A(f"""
            s_lshl_b32 s16, {sW}, 8
            s_add_u32 s3, s3, s16
            v_and_b32 {t1}, 3, {vI}
            v_lshlrev_b32 {t1}, 6, {t1}
            v_lshl_add_u32 {t1}, {vG}, 4, {t1}
            v_add_u32 {t1}, s3, {t1}
            """)

            def row_loads(C):
                C(f"global_load_dwordx4 {XS}, {t1}, s[30:31] sc1")
            row_loads(A)
            A(f"v_cmp_ne_u32 vcc, {kin}, {kmax}\ns_and_b64 exec, vcc, {sC}")
            out_stores(A)
            A("s_mov_b64 exec, -1")
            A(f"s_lshl_b32 s3, {sW}, 2\nv_lshl_add_u32 {vRed}, {vI}, 4, s3")
            self.poll(A, "row" + sfx, row_loads, poison_check([XS[k] for k in range(4)]))
            self.stamp("row", A)
            for m in range(4):
                A(f"v_mfma_f32_16x16x32_bf16 {D[4 * m:4 * m + 4]}, {XS}, {WT[m]}, 0")
            A(f"""
            v_and_b32 {t1}, 7, {vL}
            v_lshlrev_b32 {t1}, 4, {t1}
            v_lshrrev_b32 {t2}, 3, {vL}
            s_lshl_b32 s3, {self.sPhi}, 4
            s_add_u32 s3, s3, {WS_S4}
            v_lshl_add_u32 {t2}, {t2}, 12, s3
            v_add_f32 {t0}, {D[0]}, {D[5]}
            v_add_f32 {t0}, {t0}, {D[10]}
            v_add_f32 {t0}, {t0}, {D[15]}
            s_mov_b64 exec, 0xffff
            ds_write_b32 {vRed}, {t0} offset:{L_RED}
            s_mov_b64 exec, -1
            """)
            self.stamp("g1m", A)
            A.barrier()
            self.stamp("g1b", A)
            A(f"s_cmp_eq_u32 {sW}, 0\ns_cbranch_scc0 L_fin_{sfx}")
            A(f"ds_read_b128 {T[0:4]}, {t1} offset:{L_RED}\nds_read_b128 {T[4:8]}, {t1} offset:{L_RED + 128}")
            A(f"v_pk_add_f32 {T[0:2]}, {T[0:2]}, {T[2:4]}\nv_pk_add_f32 {T[4:6]}, {T[4:6]}, {T[6:8]}")
            A(f"v_add_f32 {T[0]}, {T[0]}, {T[1]}\nv_add_f32 {T[4]}, {T[4]}, {T[5]}")
            self.rnd(A, T[0], T[0])
            self.rnd(A, T[4], T[4])
            A(f"v_mul_f32 {t0}, {LOG2E | 0x80000000}, {T[0]}\nv_exp_f32 {t0}, {t0}\nv_add_f32 {t0}, 1.0, {t0}")
            A(f"v_rcp_f32 {t0}, {t0}\nv_mul_f32 {t0}, {T[0]}, {t0}")
            self.rnd(A, t0, t0)
            A(f"v_mul_f32 {t0}, {t0}, {T[4]}")
            A(f"v_mov_b32_dpp {t1}, {t0} row_shl:1 row_mask:0xf bank_mask:0xf")
            A(f"v_cvt_pk_bf16_f32 {XS[0]}, {t0}, {t1}")
            for k in range(1, 4):
                A(f"v_mov_b32_dpp {XS[k]}, {XS[0]} row_shl:{2 * k} row_mask:0xf bank_mask:0xf")
            A("s_mov_b32 exec_lo, 0x01010101\ns_mov_b32 exec_hi, 0x01010101")
            A(f"global_store_dwordx4 {t2}, {XS}, s[30:31] sc1")
            self.stamp("g1", A)
        else:
            HH = get(2)
            A(f"""
            s_sub_u32 s16, {self.sPhi}, 224
            s_lshl_b32 s16, s16, 5
            s_add_u32 s3, s3, s16
            v_lshrrev_b32 {t1}, 1, {vI}
            v_lshl_add_u32 {t1}, {t1}, 2, s3
            """)

            def row_loads(C):
                C(f"global_load_dword {HH[0]}, {t1}, s[30:31] sc1")
                C(f"global_load_dword {HH[1]}, {t1}, s[30:31] offset:1024 sc1")
            row_loads(A)
            dma_some(6)
            self.poll(A, "row" + sfx, row_loads, poison_check([HH[0], HH[1]]))
            self.stamp("row", A)
            A(f"v_cmp_eq_u32 vcc, {kin}, {key}\ns_andn2_b64 exec, -1, vcc")
            out_stores(A)
            A("s_mov_b64 exec, 1")
            A(f"v_mov_b32 {t0}, {self.sE}\nv_mov_b32 {t2}, 0")
            A(f"global_store_dword {t2}, {t0}, s[30:31] offset:{WS_EPOCH}")
            A("s_mov_b64 exec, -1")
            self.stamp("r1o", A)
            tr_reads()
            self.stamp("r1t", A)
            vSig, vOut, vS4i = get(), get(), get()
            A(f"""
            s_and_b32 s16, {sK}, 0x7fff0000
            s_andn2_b32 s17, 0xffff0000, {sK}
            s_bitcmp1_b32 {sK}, 31
            s_cselect_b32 s16, s16, s17
            v_mov_b32 {t0}, s16
            v_mul_f32 {t0}, {LOG2E | 0x80000000}, {t0}
            v_exp_f32 {t0}, {t0}
            v_add_f32 {t0}, 1.0, {t0}
            v_rcp_f32 {t0}, {t0}
            """)
            self.rnd(A, vSig, t0)
            A(f"""
            v_and_b32 {t0}, 1, {vI}
            v_xor_b32 {t0}, 1, {t0}
            v_lshlrev_b32 {t0}, 4, {t0}
            v_lshlrev_b32 {HH[0]}, {t0}, {HH[0]}
            v_lshlrev_b32 {HH[1]}, {t0}, {HH[1]}
            v_and_b32 {HH[0]}, 0xffff0000, {HH[0]}
            v_and_b32 {HH[1]}, 0xffff0000, {HH[1]}
            s_lshl_b32 s3, {sT}, 10
            s_sub_u32 s16, {self.sPhi}, 224
            s_lshl_b32 s16, s16, 5
            s_add_u32 s3, s3, s16
            v_lshl_add_u32 {vOut}, {vI}, 1, s3
            s_lshr_b32 s3, {sL}, 5
            s_lshl_b32 s3, s3, 12
            s_mul_i32 s16, {sW}, {56 * 16}
            s_add_u32 s3, s3, s16
            s_add_u32 s3, s3, {WS_S4}
            v_min_u32 {t0}, 13, {vI}
            v_lshl_add_u32 {t0}, {t0}, 2, {vG}
            v_lshl_add_u32 {vS4i}, {t0}, 4, s3
            s_lshl_b32 s3, {sW}, 2
            v_lshl_add_u32 {vRed}, {vI}, 4, s3
            v_mov_b32 {t2}, 0
            """)
            A.wait(vm=0)
            self.stamp("r1a", A)

            def s4_loads(C):
                C(f"global_load_dwordx4 {XS}, {vS4i}, s[30:31] sc1")
            s4_loads(A)
            self.poll(A, "s4", s4_loads, poison_check([XS[k] for k in range(4)]))
            self.stamp("g1", A)
            DD = [get(4) for _ in range(6)]
            for m in range(14 + 3):
                if m < 14:
                    A(f"v_mfma_f32_16x16x32_bf16 {DD[m % 6]}, {XS}, {WT[m]}, 0")
                k = m - 3
                if k >= 0:
                    A(f"v_add_f32_dpp {t2}, {DD[k % 6][k % 4]}, {t2} quad_perm:[0,1,2,3] row_mask:{1 << (k // 4)} bank_mask:0xf")
            for sw in ("v_permlane16_swap_b32", "v_permlane32_swap_b32"):
                A(f"v_mov_b32 {t0}, {t2}\n{sw} {t2}, {t0}\nv_add_f32 {t2}, {t2}, {t0}")
            A(f"s_mov_b64 exec, 0xffff\nds_write_b32 {vRed}, {t2} offset:{L_RED}\ns_mov_b64 exec, -1")
            A(f"v_lshlrev_b32 {t1}, 4, {vI}")
            self.stamp("g2m", A)
            A.barrier()
            A(f"s_cmp_eq_u32 {sW}, 0\ns_cbranch_scc0 L_fin_{sfx}")
            A(f"ds_read_b128 {T[0:4]}, {t1} offset:{L_RED}")
            A(f"v_pk_add_f32 {T[0:2]}, {T[0:2]}, {T[2:4]}\nv_add_f32 {t0}, {T[0]}, {T[1]}")
            self.rnd(A, t0, t0)
            A(f"v_mul_f32 {t0}, {t0}, {vSig}")
            self.rnd(A, t0, t0)
            A(f"v_add_f32 {t0}, {t0}, {HH[0]}")
            self.rnd(A, t0, t0)
            A(f"v_add_f32 {t0}, {t0}, {HH[1]}")
            self.rnd(A, t0, t0)
            A("s_mov_b64 exec, 0xffff")
            A(f"global_store_short_d16_hi {vOut}, {t0}, s[28:29]")
            self.stamp("g2", A)
        A.flush()
        A.label(f"L_fin_{sfx}")
        if self.o["stamps"]:
            A.wait(vm=0)
            self.stamp("end", A)
            if self.o["clk"]:
                A("s_memtime s[96:97]")
                A.wait(lg=0)
                A("s_sub_u32 s100, s96, s100\ns_mov_b32 s101, 0")
            A("s_waitcnt vmcnt(0) lgkmcnt(0)")
            self.dump_stamps(A)
        A("s_endpgm")
        V.put(*got)
        self.AC.put(*WT)

    def build(self):
        A = self.A
        self.prologue()
        self.ln1()
        self.after_publish()
        self.stamp("warm")
        self.kgen()
        self.sWb, self.sC, self.sK, self.sT = self.S.get(), self.S.get(2), self.S.get(), self.S.get()
        self.ZT = self.V.get(8)
        A(f"s_cmp_eq_u32 {self.sRole}, 0\ns_cbranch_scc0 L_role1")
        B = A.fork()
        B.label("L_role1")
        vfree, afree = set(self.V.free), set(self.AC.free)
        for role, X in ((0, A), (1, B)):
            self.V.free, self.AC.free = set(vfree), set(afree)
            self.conv_both(X, role)
            self.V.put(*self.BAND.values(), self.vUf, self.vUe, self.vZw, self.vG16, self.vD16, self.UG, self.vUw,
                       self.vS1i, self.vS1i2, self.vZr, self.vS2o, self.vS2o2)
            self.AC.put(*self.KN, self.KX, *self.B2.values(), *self.B3.values())
            self.tail(X, role)
        body = A.text() + B.text() + "".join(c.text() for c in self.cold)
        nv = self.V.top + 1
        accum = (nv + 3) // 4 * 4
        total = max(accum + self.AC.top + 1, 264)
        head = open(f"cdna_kernels/{NAME}.s.ref").read().split("; Override launch geometry")[0]
        self.stats = dict(instr=A.count + B.count, nops=A.nops + B.nops, vgpr=nv, agpr=self.AC.top + 1, mfma=self.nmfma)
        return head + f"""; One persistent launch: 256 workgroups, one per CU, exchanging data through d_ws.
; @launch grid=(256,1,1) block=(256,1,1) lds={LDS_BYTES}
.amdgcn_target "amdgcn-amd-amdhsa--gfx950"
.text
.globl {NAME}_kernel
.p2align 8
.type {NAME}_kernel,@function
{NAME}_kernel:
{body}L_end:
    s_endpgm
L_code_end:
.section .rodata,"a"
.p2align 6
.amdhsa_kernel {NAME}_kernel
  .amdhsa_next_free_vgpr {total}
  .amdhsa_next_free_sgpr 102
  .amdhsa_accum_offset {accum}
  .amdhsa_group_segment_fixed_size 0
  .amdhsa_kernarg_size 120
  .amdhsa_user_sgpr_count 2
  .amdhsa_user_sgpr_kernarg_segment_ptr 1
  .amdhsa_system_sgpr_workgroup_id_x 1
  .amdhsa_float_denorm_mode_32 3
.end_amdhsa_kernel
"""


def generate(path, **opt):
    g = Gen(**opt)
    text = g.build()
    open(path, "w").write(text)
    return g.stats


if __name__ == "__main__":
    out = sys.argv[1] if len(sys.argv) > 1 else f"cdna_kernels/{NAME}.s"
    opts = {}
    for a in sys.argv[2:]:
        k, v = a.split("=")
        opts[k] = {"True": True, "False": False}.get(v, int(v) if v.isdigit() else v)
    print(generate(out, **opts))
```

```python
import sys
from asmdsl import Asm, Pool, R

NAME = "sequential_preLN__ssm_conv_s4d__moe_arch_mod__prompt"

WS_EPOCH = 0
WS_S3 = 0x8000
WS_S4 = 0x10000
WS_ROWS = 0x20000
WS_S1 = 0x100000
WS_S2 = 0x300000
WS_STAMP = 0x600000

ROWB = 544
STAGE_CH = 57 * ROWB
L_K = 0
KCOPY = 2112
KCH = 4 * KCOPY
L_U = L_K + 2 * KCH
UCH = 4672
L_Z = 26368
L_H = L_Z + 8192
L_ST = L_H + 8192
L_KEY = L_ST + 64
L_KEY2 = L_KEY + 32
L_RED = L_KEY2 + 32
L_STAGE = 43520
LDS_BYTES = L_STAGE + 2 * STAGE_CH
assert L_U + UCH + 4608 <= L_Z and L_RED + 512 <= L_STAGE and L_STAGE % 256 == 0

NX = 560
V2 = [608 + 64 * s for s in range(4)]
V3 = [864 + 80 * s for s in range(2)]
TAGMASK = 0x40074007
LOG2E = 0x3FB8AA3B
INV2PI = 0x3E22F983
SPIN_MAX = 1 << 14

STAMP_SETS = {
    True: ["start", "karg", "x", "pub1", "rec", "kmf", "frag", "s1", "conv", "ack2", "s2", "pub3", "ack3", "s3", "row", "g1", "g2", "end"],
    "a": ["start", "karg", "issued", "consts", "x", "stat", "b1", "norm", "pub1", "warm", "par", "ws", "recR", "rec", "b2", "kmf0", "kmf", "end"],
    "b": ["start", "kmf", "shift", "frag", "s1w", "s1", "b5", "conv", "b6", "st2", "dma", "ack2", "s2", "hw", "b7", "key", "pub3", "end"],
    "c": ["start", "pub3", "hn", "outc", "ack3", "s3p", "s3w", "s3", "row", "g1m", "g1b", "g1", "r1o", "r1t", "r1a", "g2m", "g2", "end"],
}
DEFAULTS = dict(stamps=False, s1_at="mfma", warm=True, out_pol="sc1", pf_code=True, pf_lines=8, dbg=False, poison_at="x", recb=4, xa_glob=False, warm_at="pub", xa_at="start", nf=7, ng=4, pe=14, pd=6, npre=6, clk=False, dma_at="conv", warm_mode="sect", far_span=(56, 40))


class Gen:
    def __init__(self, **opt):
        self.o = dict(DEFAULTS)
        self.o.update(opt)
        self.A = Asm()
        self.V = Pool("v", 1, 255)
        self.AC = Pool("a", 0, 255)
        self.S = Pool("s", 32, 63)
        self.cold = []
        self.nstamp = 0

    def stamp(self, name, A=None):
        sel = STAMP_SETS.get(self.o["stamps"])
        if sel and name in sel:
            i = sel.index(name)
            (A or self.A)(f"s_memrealtime s[{64 + 2 * i}:{65 + 2 * i}]")

    def dump_stamps(self, A):
        if not self.o["stamps"]:
            return
        if self.o["dbg"]:
            self.dump_debug(A)
            return
        a, d = self.V.get(), self.V.get(2)
        A("s_mov_b64 exec, 1")
        A.wait(lg=0)
        A(f"s_lshl_b32 s3, {self.sL}, 2\ns_add_u32 s3, s3, {self.sW}\ns_lshl_b32 s3, s3, 8\ns_add_u32 s3, s3, {WS_STAMP}")
        A(f"v_mov_b32 {a}, s3")
        for i in range(19):
            A(f"v_mov_b32 {d[0]}, s{64 + 2 * i}\nv_mov_b32 {d[1]}, s{65 + 2 * i}")
            A(f"global_store_dwordx2 {a}, {d}, s[30:31] offset:{8 * i}")
            A.wait(vm=0)
        self.V.put(a, d)

    def dump_debug(self, A):
        a, d = self.V.get(), self.V.get()
        n = getattr(self, "ndbg", 0)
        self.ndbg = n + 1
        A("s_mov_b64 exec, 1")
        A(f"s_cmp_eq_u32 {self.sL}, 255\ns_cbranch_scc0 L_dbg{n}\ns_cmp_eq_u32 {self.sW}, 0\ns_cbranch_scc0 L_dbg{n}")
        A("s_load_dwordx2 s[4:5], s[0:1], 104")
        A.wait(lg=0)
        A(f"v_mov_b32 {a}, 0")
        for i in range(1, 17):
            A(f"s_sub_u32 s3, s{64 + 2 * (i + 1)}, s64\nv_mov_b32 {d}, s3")
            A(f"global_store_dword {a}, {d}, s[4:5] offset:{4 * (i - 1)}")
        A.label(f"L_dbg{n}")
        self.V.put(a, d)

    def rnd(self, A, dst, src, neg=False):
        A(f"v_cvt_pk_bf16_f32 {dst}, 0, {'-' if neg else ''}{src}")

    def allreduce(self, A, op, regs, width):
        steps = ["quad_perm:[1,0,3,2]", "quad_perm:[2,3,0,1]", "row_half_mirror", "row_mirror"]
        for st in steps:
            for r in regs:
                A(f"{op}_dpp {r}, {r}, {r} {st} row_mask:0xf bank_mask:0xf")
        tmp = [self.V.get() for _ in regs]
        for w, sw in ((32, "v_permlane16_swap_b32"), (64, "v_permlane32_swap_b32")):
            if width >= w:
                for r, t in zip(regs, tmp):
                    A(f"v_mov_b32 {t}, {r}")
                for r, t in zip(regs, tmp):
                    A(f"{sw} {r}, {t}")
                for r, t in zip(regs, tmp):
                    A(f"{op} {r}, {r}, {t}")
        self.V.put(*tmp)

    def ln_stats(self, A, s1, s2, nm, rs):
        t = self.V.get()
        A(f"v_mul_f32 {s1}, 0x3b000000, {s1}")
        A(f"v_mul_f32 {s2}, 0x3b000000, {s2}")
        A(f"v_fma_f32 {t}, -{s1}, {s1}, {s2}")
        A(f"v_max_f32 {t}, 0, {t}")
        self.rnd(A, t, t)
        self.rnd(A, nm, s1, neg=True)
        A(f"v_add_f32 {t}, 0x3727c5ac, {t}")
        self.rnd(A, t, t)
        A(f"v_sqrt_f32 {t}, {t}")
        self.rnd(A, t, t)
        A(f"v_rcp_f32 {rs}, {t}")
        self.V.put(t)

    def poll(self, A, name, loads, check):
        check(A)
        A(f"s_cbranch_vccnz L_{name}_slow")
        A.label(f"L_{name}_ok")
        C = Asm()
        C.label(f"L_{name}_slow")
        C("s_mov_b32 s3, 0")
        C.label(f"L_{name}_loop")
        C("s_waitcnt vmcnt(0)")
        C("s_nop 1")
        loads(C)
        C(f"s_add_u32 s3, s3, 1\ns_cmp_ge_u32 s3, {SPIN_MAX}")
        C("s_cselect_b32 s18, 0, -1\ns_mov_b32 s19, s18")
        check(C)
        C.wait(vm=0)
        C("s_nop 1")
        C("s_and_b64 vcc, vcc, s[18:19]")
        C(f"s_cbranch_vccnz L_{name}_loop")
        C("s_nop 3")
        C(f"s_branch L_{name}_ok")
        self.cold.append(C)

    def prologue(self):
        A, V, S = self.A, self.V, self.S
        A("s_cmp_ge_u32 s2, 0x100\ns_cbranch_scc1 L_end")
        A("s_load_dwordx16 s[4:19], s[0:1], 0\ns_load_dwordx8 s[20:27], s[0:1], 64")
        A("s_load_dwordx2 s[28:29], s[0:1], 96\ns_load_dwordx2 s[30:31], s[0:1], 112")
        self.stamp("start")
        if self.o["clk"]:
            A("s_memtime s[100:101]")
        self.sL, self.sW, self.sTag, self.sE = S.get(), S.get(), S.get(), S.get()
        self.sOnes, self.sLo, self.sHi, self.sCh = S.get(), S.get(), S.get(), S.get()
        sL, sW = self.sL, self.sW
        self.vL = V.get()
        self.vI = V.get()
        self.vG = V.get()
        t0, t1, t2 = V.get(), V.get(), V.get()
        A(f"""
        s_and_b32 s3, s2, 7
        s_lshl_b32 s3, s3, 5
        s_lshr_b32 {sL}, s2, 3
        s_add_u32 {sL}, {sL}, s3
        v_lshrrev_b32 {t0}, 6, v0
        v_and_b32 {self.vL}, 63, v0
        v_readfirstlane_b32 {sW}, {t0}
        v_and_b32 {self.vI}, 15, v0
        v_bfe_u32 {self.vG}, v0, 4, 2
        """)
        self.vJunk = V.get(4)
        if self.o["pf_code"]:
            nl = self.o["pf_lines"]
            self.sPc = S.get(2)
            A(f"s_getpc_b64 {self.sPc}")
            A.label("L_pc")
            A(f"""
            s_lshr_b32 s3, s2, 3
            v_lshrrev_b32 {t0}, 6, v0
            v_lshl_add_u32 {t0}, s3, 2, {t0}
            v_and_b32 {t0}, {256 // nl - 1}, {t0}
            v_and_b32 {t1}, {nl - 1}, v0
            v_lshl_add_u32 {t0}, {t0}, {nl.bit_length() - 1}, {t1}
            v_lshlrev_b32 {t0}, 7, {t0}
            v_min_u32 {t0}, L_code_end-L_pc-4, {t0}
            global_load_dword {self.vJunk[0]}, {t0}, {self.sPc}
            """)
        self.vRow = V.get()
        vXa = V.get()
        A(f"""
        v_lshrrev_b32 {t0}, 5, v0
        v_and_b32 {t1}, 31, v0
        v_lshlrev_b32 {t0}, 10, {t0}
        s_lshl_b32 s3, {sL}, 13
        v_lshl_add_u32 {t0}, {t1}, 4, {t0}
        v_add_u32 {self.vRow}, s3, {t0}
        v_lshl_add_u32 {vXa}, v0, 2, s3
        """)
        A(f"""
        s_lshr_b32 s3, {sL}, 6
        s_lshl_b32 {self.sCh}, s3, 7
        s_and_b32 s3, {sL}, 31
        s_lshl_b32 s3, s3, 2
        s_add_u32 {self.sCh}, {self.sCh}, s3
        s_bfe_u32 s3, {sL}, 0x10005
        s_add_u32 {self.sCh}, {self.sCh}, s3
        s_and_b32 s3, {sW}, 2
        s_add_u32 {self.sCh}, {self.sCh}, s3
        """)
        vP, vC, vXb = V.get(), V.get(), V.get()
        A(f"""
        s_lshl_b32 s3, {self.sCh}, 8
        v_lshl_add_u32 {vP}, {self.vL}, 2, s3
        s_lshl_b32 s3, {self.sCh}, 1
        v_mov_b32 {vC}, s3
        v_add_u32 {vXb}, 0x1000, {vXa}
        v_lshlrev_b32 {t1}, 4, {t1}
        """)
        self.XB = V.get(8)
        self.XA = V.get(8)
        self.PAR = V.get(6)
        self.WR = V.get(8)
        A(f"global_load_dwordx4 {self.XB[0:4]}, {self.vRow}, s[4:5]")
        A(f"global_load_dwordx4 {self.XB[4:8]}, {self.vRow}, s[4:5] offset:512")
        A(f"s_load_dword {self.sE}, s[30:31], {WS_EPOCH}")
        self.stamp("karg")
        def late_loads():
            for j in range(8 if self.o["xa_glob"] else 0):
                A(f"global_load_dword {self.XA[j]}, {vXa if j < 4 else vXb}, s[4:5] offset:{1024 * (j % 4)}")
            for k in range(4):
                A(f"global_load_dword {self.PAR[k]}, {vP}, s[{6 + 2 * k}:{7 + 2 * k}]")
            A(f"global_load_ushort {self.PAR[4]}, {vC}, s[14:15]")
            A(f"global_load_ushort {self.PAR[5]}, {vC}, s[{self.sDs.b}:{self.sDs.b + 1}]")
            V.put(vXa, vXb, vP, vC)
            if self.o["poison_at"] == "xa":
                self.poison2()
        self.late_loads = late_loads
        self.sDs = S.get(2)
        A(f"s_mov_b64 {self.sDs}, s[16:17]")
        if self.o["xa_at"] == "start":
            late_loads()
        self.stamp("issued")
        self.vWr = V.get()
        A(f"v_mov_b32 {self.vWr}, {t1}")
        self.M1 = M1 = V.get(4)
        self.vS2o, self.vS2o2, self.vP2, self.vP3 = V.get(), V.get(), V.get(), V.get()
        for k in range(4):
            A(f"v_mov_b32 {M1[k]}, -1")
        A(f"""
        s_lshl_b32 s3, {sL}, 13
        s_add_u32 s3, s3, {WS_S2}
        v_lshl_add_u32 {self.vS2o}, v0, 4, s3
        v_add_u32 {self.vS2o2}, 0x1000, {self.vS2o}
        """)
        A(f"s_lshl_b32 s16, {sW}, 11\ns_add_u32 s3, s3, s16\nv_lshl_add_u32 {self.vP2}, {self.vL}, 4, s3")
        if self.o["poison_at"] == "start":
            self.poison2()
        self.sPhi, self.sRole = S.get(), S.get()
        A(f"""
        s_lshr_b32 s3, {sL}, 5
        s_and_b32 s16, {sL}, 31
        s_mul_i32 s17, s3, 28
        s_add_u32 s17, s17, s16
        s_lshl_b32 s3, s3, 2
        s_add_u32 s3, s3, s16
        s_add_u32 s3, s3, {224 - 28}
        s_cmp_ge_u32 s16, 28
        s_cselect_b32 {self.sPhi}, s3, s17
        s_cselect_b32 {self.sRole}, 1, 0
        """)
        A(f"""
        s_lshl_b32 s3, {sL}, 11
        s_add_u32 s3, s3, {WS_ROWS}
        v_lshl_add_u32 {t0}, v0, 4, s3
        s_lshl_b32 s16, {sL}, 4
        s_add_u32 s16, s16, {WS_S3}
        s_lshl_b32 s17, {self.sPhi}, 4
        s_add_u32 s17, s17, {WS_S4}
        s_cmp_eq_u32 {sW}, 2
        s_cselect_b32 s16, s16, s17
        v_lshl_add_u32 {t1}, {self.vL}, 12, s16
        s_cmp_lt_u32 {sW}, 2
        s_cselect_b64 vcc, -1, 0
        v_cndmask_b32 {self.vP3}, {t1}, {t0}, vcc
        """)
        Z = V.get(4)
        for k in range(4):
            A(f"v_mov_b32 {Z[k]}, 0")
        A(f"""
        v_lshrrev_b32 {t0}, 7, v0
        v_and_b32 {t1}, 127, v0
        v_mul_u32_u24 {t0}, {KCH}, {t0}
        v_lshl_add_u32 {t0}, {t1}, 4, {t0}
        ds_write_b128 {t0}, {Z} offset:{L_K}
        v_lshrrev_b32 {t2}, 7, v0
        v_mul_u32_u24 {t2}, {UCH}, {t2}
        v_lshl_add_u32 {t2}, {t1}, 2, {t2}
        ds_write_b32 {t2}, {Z[0]} offset:{L_U}
        """)
        self.vShift = V.get()
        A(f"v_mov_b32 {self.vShift}, {t0}")
        V.put(Z)
        A(f"s_mov_b32 {self.sOnes}, 0x3f803f80\ns_mov_b32 {self.sLo}, 0x3f80\ns_mov_b32 {self.sHi}, 0x3f800000")
        self.consts(t0, t1, t2)
        if self.o["xa_at"] == "consts":
            self.late_loads()
        if self.o["poison_at"] == "consts":
            self.poison2()
        self.warm("consts")
        self.stamp("consts")
        V.put(t0, t1, t2)

    def poison2(self):
        A = self.A
        A(f"global_store_dwordx4 {self.vP2}, {self.M1}, s[30:31] sc1", tag="poison")
        A(f"global_store_dwordx4 {self.vP2}, {self.M1}, s[30:31] offset:1024 sc1", tag="poison")

    def after_publish(self):
        A, V = self.A, self.V
        A(f"s_cmp_lt_u32 {self.sW}, 2\ns_cselect_b64 exec, -1, 0xff")
        A(f"global_store_dwordx4 {self.vP3}, {self.M1}, s[30:31] sc1", tag="poison3")
        A("s_mov_b64 exec, -1")
        A(f"global_load_dwordx4 {self.WR[0:4]}, {self.vWr}, s[20:21]")
        A(f"global_load_dwordx4 {self.WR[4:8]}, {self.vWr}, s[20:21] offset:512")
        self.warm("pub")
        V.put(self.M1, self.vP2, self.vP3, self.vWr)

    def consts(self, t0, t1, t2):
        A, V, S = self.A, self.V, self.S
        vI, vG, vL, sW, sL = self.vI, self.vG, self.vL, self.sW, self.sL
        self.BAND = {}
        if self.o["xa_at"] == "pre":
            self.late_loads()
        A(f"v_lshlrev_b32 {t0}, 3, {vG}\nv_sub_u32 {t0}, {vI}, {t0}")
        for (delta, h) in ((12, 1), (8, 2), (8, 3), (8, 4)):
            B = V.get(4)
            self.BAND[(delta, h)] = B
            win = (1 << (2 * h + 1)) - 1
            A(f"v_add_u32 {t1}, {delta - h + 12}, {t0}")
            A(f"v_med3_i32 {t1}, {t1}, 0, 22")
            A(f"v_mov_b32 {t2}, {win}")
            A(f"v_lshlrev_b32 {t1}, {t1}, {t2}")
            for d in range(4):
                A(f"v_bfe_u32 {t2}, {t1}, {12 + 2 * d}, 2")
                A(f"v_mul_u32_u24 {t2}, 0x8001, {t2}")
                A(f"v_and_b32 {t2}, 0x10001, {t2}")
                A(f"v_mul_u32_u24 {B[d]}, 0x3c00, {t2}")
        if self.o["xa_at"] == "band":
            self.late_loads()
        if self.o["poison_at"] == "band":
            self.poison2()
        sB, sH = S.get(), S.get()
        self.sB, self.sH = sB, sH
        A(f"s_lshr_b32 {sB}, {sW}, 1\ns_and_b32 {sH}, {sW}, 1")
        self.sStM = S.get()
        A(f"""
        s_mul_i32 s3, {sB}, {STAGE_CH}
        s_add_u32 s3, s3, {L_STAGE}
        s_lshl_b32 s16, {sH}, 8
        s_add_u32 s16, s16, s3
        s_sub_u32 {self.sStM}, s16, 0x8000
        """)
        self.vA1, self.vA2, self.vBm = V.get(), V.get(), V.get()
        A(f"""
        v_xor_b32 {t0}, 3, {vI}
        v_bfe_u32 {t1}, {t0}, 1, 1
        v_add_u32 {t1}, {t0}, {t1}
        v_lshrrev_b32 {t1}, 1, {t1}
        v_add_u32 {t1}, 32, {t1}
        s_cmp_eq_u32 {sH}, 0
        s_cselect_b64 vcc, -1, 0
        s_cselect_b32 s16, 16, 0
        s_cselect_b32 s17, 0, 41
        v_cndmask_b32 {t1}, {t0}, {t1}, vcc
        v_add_u32 {t0}, s16, {t0}
        v_add_u32 {t2}, s17, {vI}
        v_mul_u32_u24 {t0}, {ROWB}, {t0}
        v_mul_u32_u24 {t1}, {ROWB}, {t1}
        v_mul_u32_u24 {t2}, {ROWB}, {t2}
        v_lshl_add_u32 {t0}, {vG}, 4, {t0}
        v_lshl_add_u32 {t1}, {vG}, 4, {t1}
        v_lshl_add_u32 {t2}, {vG}, 4, {t2}
        v_add_u32 {self.vA1}, s3, {t0}
        v_add_u32 {self.vA2}, s3, {t1}
        v_add_u32 {self.vBm}, s3, {t2}
        """)
        self.vK1, self.vK2, self.vKs = V.get(), V.get(), V.get()
        t3 = V.get()
        A(f"""
        v_lshlrev_b32 {t0}, 4, {vI}
        v_sub_u32 {t0}, 540, {t0}
        v_and_b32 {t1}, 3, {vI}
        v_lshlrev_b32 {t1}, 6, {t1}
        v_lshrrev_b32 {t2}, 2, {vI}
        v_lshlrev_b32 {t2}, 4, {t2}
        v_sub_u32 {t1}, {t1}, {t2}
        v_add_u32 {t1}, {V2[0] + 44}, {t1}
        v_and_b32 {t2}, 1, {vI}
        v_mul_u32_u24 {t2}, 80, {t2}
        v_lshrrev_b32 {t3}, 1, {vI}
        v_lshlrev_b32 {t3}, 4, {t3}
        v_sub_u32 {t2}, {t2}, {t3}
        v_add_u32 {t2}, {V3[0] + 60 + 64}, {t2}
        v_cmp_gt_u32 s[16:17], 8, {vI}
        v_cndmask_b32 {t1}, {t2}, {t1}, s[16:17]
        v_cndmask_b32 {t2}, {t1}, {t0}, vcc
        v_subrev_u32 {t0}, 256, {t0}
        v_cndmask_b32 {t1}, {t1}, {t0}, vcc
        v_lshlrev_b32 {t3}, 2, {vG}
        v_sub_u32 {t2}, {t2}, {t3}
        v_sub_u32 {t1}, {t1}, {t3}
        s_mul_i32 s3, {sB}, {KCH}
        s_add_u32 s3, s3, {L_K}
        v_lshl_add_u32 {self.vK1}, {t2}, 1, s3
        v_lshl_add_u32 {self.vK2}, {t1}, 1, s3
        s_cmp_eq_u32 {sH}, 0
        s_cselect_b32 s16, {2 * 29}, {2 * (NX + 27)}
        s_add_u32 s16, s16, s3
        v_mov_b32 {self.vKs}, s16
        """)
        self.vN, self.vF = V.get(), V.get()
        A(f"""
        v_sub_u32 {t0}, 15, {vI}
        v_and_b32 {t1}, 3, {t0}
        v_and_b32 {t0}, 12, {t0}
        v_mul_u32_u24 {t1}, {KCOPY}, {t1}
        v_lshl_add_u32 {t0}, {t0}, 1, {t1}
        v_add_u32 {t0}, s3, {t0}
        v_lshl_add_u32 {self.vN}, {vG}, 4, {t0}
        v_lshl_add_u32 {self.vF}, {vG}, 3, {t0}
        """)
        self.vUf, self.vUe, self.vZw, self.vZr, self.vUw = V.get(), V.get(), V.get(), V.get(), V.get()
        A(f"""
        s_mul_i32 s3, {sB}, {UCH}
        s_add_u32 s3, s3, {L_U}
        v_lshl_add_u32 {t0}, {vI}, 5, s3
        v_lshl_add_u32 {self.vUf}, {vG}, 4, {t0}
        v_lshl_add_u32 {self.vUe}, {vG}, 3, {t0}
        v_and_b32 {t0}, 2, {vG}
        v_lshl_add_u32 {t0}, {vI}, 2, {t0}
        v_add_u32 {t0}, {sB}, {t0}
        v_lshrrev_b32 {t1}, 1, {vI}
        v_xor_b32 {t0}, {t0}, {t1}
        v_and_b32 {t1}, 1, {vG}
        v_lshlrev_b32 {t1}, 3, {t1}
        v_lshl_add_u32 {self.vZw}, {t0}, 4, {t1}
        v_bfe_u32 {t0}, v0, 3, 3
        v_xor_b32 {t0}, v0, {t0}
        v_lshlrev_b32 {self.vZr}, 4, {t0}
        v_and_b32 {t0}, 1, v0
        v_lshrrev_b32 {t1}, 1, v0
        v_mul_u32_u24 {t2}, {UCH}, {t0}
        v_lshl_add_u32 {self.vUw}, {t1}, 4, {t2}
        """)
        self.vS1o, self.vS1i, self.vS1i2, self.vS2i, self.vS2i2 = V.get(), V.get(), V.get(), V.get(), V.get()
        A(f"""
        s_lshl_b32 s3, {sL}, 13
        s_lshl_b32 s16, {sW}, 11
        s_add_u32 s3, s3, s16
        s_add_u32 s3, s3, {WS_S1}
        v_lshl_add_u32 {self.vS1o}, {vL}, 4, s3
        v_lshlrev_b32 {t0}, 4, {t0}
        s_lshl_b32 s3, {sL}, 5
        s_add_u32 s16, s3, {WS_S1}
        v_lshl_add_u32 {t2}, {t1}, 13, {t0}
        v_add_u32 {self.vS1i}, s16, {t2}
        v_add_u32 {self.vS1i2}, 0x100000, {self.vS1i}
        v_lshrrev_b32 {t1}, 1, {vL}
        v_lshl_add_u32 {t2}, {t1}, 13, {t0}
        s_lshl_b32 s16, {sW}, 19
        s_add_u32 s16, s16, s3
        s_add_u32 s16, s16, {WS_S2}
        v_add_u32 {self.vS2i}, s16, {t2}
        v_add_u32 {self.vS2i2}, 0x40000, {self.vS2i}
        """)
        self.vTau, self.vMask = V.get(), V.get()
        self.vHr, self.vHw2 = V.get(), V.get()
        A(f"""
        v_lshrrev_b32 {t0}, 5, v0
        v_and_b32 {t1}, 31, v0
        v_lshlrev_b32 {t1}, 4, {t1}
        v_lshl_add_u32 {self.vHr}, {t0}, 10, {t1}
        v_lshlrev_b32 {t0}, 2, v0
        v_add_u32 {self.vHw2}, {L_H}, {t0}
        """)
        A(f"v_lshrrev_b32 {self.vTau}, 5, v0\nv_mov_b32 {self.vMask}, {0xFFFFFFFF ^ TAGMASK}")
        V.put(t3)

    def ln1(self):
        A, V = self.A, self.V
        glob = self.o["xa_glob"]
        s1, s2, nm, rs, ad = V.get(), V.get(), V.get(), V.get(), V.get()
        A(f"v_lshlrev_b32 {ad}, 2, {self.vTau}")
        for k in range(8):
            if not glob and k % 4 == 0:
                A(f"ds_write_b128 {self.vHr}, {self.XB[k:k + 4]} offset:{L_H + 128 * k}")
            A(f"v_dot2_f32_bf16 {s1}, {self.XB[k]}, {self.sOnes}, {s1 if k else 0}")
            A(f"v_dot2_f32_bf16 {s2}, {self.XB[k]}, {self.XB[k]}, {s2 if k else 0}")
            if k == 0:
                self.stamp("x")
                if self.o["xa_at"] == "x":
                    self.late_loads()
                if self.o["poison_at"] == "x":
                    self.poison2()
        self.allreduce(A, "v_add_f32", [s1, s2], 32)
        self.ln_stats(A, s1, s2, nm, rs)
        self.stamp("stat")
        A("s_mov_b64 exec, 1\ns_bitset1_b64 exec, 32")
        A(f"v_mul_f32 {rs}, 0x3d800000, {rs}")
        A(f"ds_write_b32 {ad}, {nm} offset:{L_ST}\nds_write_b32 {ad}, {rs} offset:{L_ST + 32}")
        A("s_mov_b64 exec, -1")
        A(f"v_mov_b32 {ad}, 0")
        V.put(self.XB)
        A.barrier()
        self.stamp("b1")
        NM, RS = V.get(8), V.get(8)
        XA = self.XA
        if not glob:
            for q in range(2):
                A(f"ds_read2st64_b32 {XA[2 * q:2 * q + 2]}, {self.vHw2} offset0:{8 * q} offset1:{8 * q + 4}")
        A(f"ds_read_b128 {NM[0:4]}, {ad} offset:{L_ST}")
        if not glob:
            for q in range(2, 4):
                A(f"ds_read2st64_b32 {XA[2 * q:2 * q + 2]}, {self.vHw2} offset0:{8 * q} offset1:{8 * q + 4}")
        A(f"ds_read_b128 {NM[4:8]}, {ad} offset:{L_ST + 16}")
        for k in range(2):
            A(f"ds_read_b128 {RS[4 * k:4 * k + 4]}, {ad} offset:{L_ST + 32 + 16 * k}")
        A(f"s_add_u32 {self.sE}, {self.sE}, 1\ns_and_b32 {self.sTag}, {self.sE}, {TAGMASK}")
        T = V.get(8)
        for e in range(2):
            G = V.get(4)
            for j in range(8):
                A(f"v_dot2_f32_bf16 {T[j]}, {XA[j]}, {self.sHi if e else self.sLo}, {NM[j]}")
            for j in range(8):
                self.rnd(A, T[j], T[j])
            for q in range(4):
                A(f"v_pk_mul_f32 {T[2 * q:2 * q + 2]}, {T[2 * q:2 * q + 2]}, {RS[2 * q:2 * q + 2]}")
            for j in range(8):
                self.rnd(A, T[j], T[j])
            for q in range(4):
                A(f"v_cvt_pk_f16_f32 {G[q]}, {T[2 * q]}, {T[2 * q + 1]}")
            for q in range(4):
                A(f"v_and_or_b32 {G[q]}, {G[q]}, {self.vMask}, {self.sTag}")
            if e == 0:
                self.stamp("norm")
                A.wait_tag("poison")
            A(f"global_store_dwordx4 {self.vS1o}, {G}, s[30:31] offset:{1024 * e} sc1", tag="s1st")
            self.G = getattr(self, "G", []) + [G]
        self.stamp("pub1")
        V.put(T, NM, RS, s1, s2, nm, rs, ad, self.vS1o, self.vMask)

    def warm(self, where):
        if not self.o["warm"] or self.o["warm_at"] != where:
            return
        A, V = self.A, self.V
        t0, t1 = V.get(), V.get()
        if self.o["warm_mode"] == "line":
            A(f"""
            s_lshr_b32 s3, {self.sL}, 5
            s_and_b32 s16, {self.sL}, 31
            s_mul_i32 s17, s16, {16 * 3584}
            s_mul_i32 s18, s3, 448
            s_add_u32 s17, s17, s18
            v_lshrrev_b32 {t0}, 2, {self.vL}
            v_and_b32 {t1}, 3, v0
            v_mul_u32_u24 {t0}, 3584, {t0}
            v_lshl_add_u32 {t0}, {t1}, 7, {t0}
            v_add_u32 {t0}, s17, {t0}
            s_mul_i32 s17, s16, {56 * 1024}
            s_lshl_b32 s3, s3, 7
            s_add_u32 s17, s17, s3
            s_and_b32 s3, {self.sW}, 1
            s_mul_i32 s3, s3, {28 * 1024}
            s_add_u32 s17, s17, s3
            v_min_u32 {t1}, 27, {self.vL}
            v_lshl_add_u32 {t1}, {t1}, 10, s17
            s_cmp_eq_u32 {self.sW}, 0
            s_cselect_b32 s18, s22, s24
            s_cselect_b32 s19, s23, s25
            s_cmp_lt_u32 {self.sW}, 2
            s_cselect_b32 s18, s18, s26
            s_cselect_b32 s19, s19, s27
            s_cselect_b64 vcc, -1, 0
            v_cndmask_b32 {t0}, {t1}, {t0}, vcc
            global_load_dword {self.vJunk[1]}, {t0}, s[18:19]
            """)
            V.put(t0, t1)
            return
        A(f"""
        s_lshr_b32 s3, {self.sL}, 5
        s_and_b32 s16, {self.sL}, 31
        s_mul_i32 s17, s16, {16 * 3584}
        s_mul_i32 s18, s3, 448
        s_add_u32 s17, s17, s18
        v_bfe_u32 {t0}, v0, 3, 4
        v_and_b32 {t1}, 7, v0
        v_min_u32 {t1}, 6, {t1}
        v_mul_u32_u24 {t0}, 3584, {t0}
        v_lshl_add_u32 {t0}, {t1}, 6, {t0}
        v_add_u32 {t0}, s17, {t0}
        s_cmp_lt_u32 {self.sW}, 2
        s_cselect_b32 s18, s22, s24
        s_cselect_b32 s19, s23, s25
        global_load_dword {self.vJunk[1]}, {t0}, s[18:19]
        s_mul_i32 s17, s16, {56 * 1024}
        s_lshl_b32 s3, s3, 7
        s_add_u32 s17, s17, s3
        v_min_u32 {t0}, 111, v0
        v_and_b32 {t1}, 1, {t0}
        v_lshrrev_b32 {t0}, 1, {t0}
        v_lshlrev_b32 {t0}, 10, {t0}
        v_lshl_add_u32 {t0}, {t1}, 6, {t0}
        v_add_u32 {t0}, s17, {t0}
        global_load_dword {self.vJunk[2]}, {t0}, s[26:27]
        """)
        V.put(t0, t1)

    def s1_loads(self, A):
        A(f"global_load_dwordx4 {self.UG[0:4]}, {self.vS1i}, s[30:31] sc1")
        A(f"global_load_dwordx4 {self.UG[4:8]}, {self.vS1i2}, s[30:31] sc1")

    def maybe_s1(self, where):
        if self.o["s1_at"] == where:
            self.UG = self.V.get(8)
            self.s1_loads(self.A)
            self.warm("s1")

    def kgen(self):
        A, V = self.A, self.V
        P = self.PAR
        V.put(*self.G)
        t0, t1, dt = V.get(), V.get(), V.get()
        self.vG16, self.vD16 = V.get(), V.get()
        A(f"""
        v_and_b32 {t0}, 0x7fff7fff, {P[2]}
        v_and_b32 {t1}, 0x7fff7fff, {P[3]}
        v_pk_max_u16 {t0}, {t0}, {t1}
        v_lshrrev_b32 {t1}, 16, {t0}
        v_and_b32 {t0}, 0xffff, {t0}
        v_max_u32 {t0}, {t0}, {t1}
        v_lshlrev_b32 {dt}, 16, {P[4]}
        v_mul_f32 {dt}, {LOG2E}, {dt}
        v_exp_f32 {dt}, {dt}
        s_cmp_eq_u32 {self.sH}, 0
        s_cselect_b32 s3, 16, 0
        """)
        for k in range(4):
            A(f"v_lshlrev_b32 {P[k]}, s3, {P[k]}")
        for k in range(4):
            A(f"v_and_b32 {P[k]}, 0xffff0000, {P[k]}")
        self.rnd(A, dt, dt)
        self.stamp("par")
        A(f"v_mul_f32 {P[0]}, {LOG2E}, {P[0]}\nv_exp_f32 {P[0]}, {P[0]}")
        self.allreduce(A, "v_max_u32", [t0], 64)
        self.rnd(A, P[0], P[0])
        A(f"""
        v_lshlrev_b32 {self.vD16}, 16, {P[5]}
        v_mul_f32 {self.vD16}, 0x41800000, {self.vD16}
        v_mul_f32 {P[0]}, {P[0]}, {dt}
        v_mul_f32 {P[1]}, {P[1]}, {dt}
        v_mul_f32 {P[0]}, {LOG2E | 0x80000000}, {P[0]}
        v_mul_f32 {P[1]}, {INV2PI}, {P[1]}
        v_lshrrev_b32 {t0}, 7, {t0}
        v_max_u32 {t0}, 8, {t0}
        v_lshrrev_b32 {t1}, 23, {dt}
        v_add_u32 {t1}, {t1}, {t0}
        v_subrev_u32 {t1}, 127, {t1}
        v_max_i32 {t1}, 0, {t1}
        v_min_i32 {t1}, 254, {t1}
        v_lshlrev_b32 {self.vG16}, 23, {t1}
        v_sub_u32 {t0}, 259, {t0}
        v_and_b32 {dt}, 0x007fffff, {dt}
        v_lshl_or_b32 {dt}, {t0}, 23, {dt}
        """)
        W = {p: V.get(2) for p in (1, 16, 256)}
        for p, mul in ((1, None), (16, 0x41800000), (256, 0x43800000)):
            w = W[p]
            if mul:
                A(f"v_mul_f32 {t0}, {mul}, {P[0]}\nv_mul_f32 {t1}, {mul}, {P[1]}")
                A(f"v_exp_f32 {t0}, {t0}\nv_fract_f32 {t1}, {t1}")
            else:
                A(f"v_exp_f32 {t0}, {P[0]}\nv_fract_f32 {t1}, {P[1]}")
            A(f"v_cos_f32 {w[0]}, {t1}\nv_sin_f32 {w[1]}, {t1}")
            A(f"v_mul_f32 {w[0]}, {w[0]}, {t0}\nv_mul_f32 {w[1]}, {w[1]}, {t0}")
        L, M, Rr, T = V.get(2), V.get(2), V.get(2), V.get(2)
        A(f"v_mul_f32 {L[0]}, {P[2]}, {dt}\nv_mul_f32 {L[1]}, {P[3]}, {dt}")
        self.stamp("ws")
        NB_ = self.o["recb"]
        pk = [V.get() for _ in range(2 * NB_)]
        cnt = [0]
        queue = []
        A(f"s_mov_b32 m0, {self.sStM}")

        def cmul(d, a, b):
            A(f"v_pk_mul_f32 {T}, {a}, {b} op_sel_hi:[0,1]")
            A(f"v_pk_fma_f32 {d}, {a}, {b}, {T} op_sel:[1,1,0] op_sel_hi:[1,0,1] neg_lo:[0,1,0]")

        def flush_q():
            for row, r in queue:
                A(f"ds_write_addtid_b32 {r} offset:{32768 + row * ROWB}")
            queue.clear()

        def put(row, v, conj=False):
            r = pk[cnt[0] % (2 * NB_)]
            cnt[0] += 1
            A(f"v_cvt_pk_f16_f32 {r}, {v[0]}, {'-' if conj else ''}{v[1]}")
            queue.append((row, r))
            if len(queue) == NB_:
                flush_q()

        A(f"v_mov_b32 {t0}, 0x3c00")
        queue.append((0, t0))
        put(1, W[16], conj=True)
        cmul(Rr, W[16], W[16])
        put(2, Rr, conj=True)
        for j in range(3, 16):
            cmul(Rr, Rr, W[16])
            put(j, Rr, conj=True)
        self.maybe_s1("rec0")
        self.stamp("recR")
        for al in range(17):
            if al:
                cmul(L, L, W[1])
            if al < 16:
                put(16 + al, L)
            if al % 2 == 0:
                cmul(M, L, W[256])
                put(32 + al // 2, M)
                if al and al % 4 == 0:
                    for a in range(2):
                        cmul(M, M, W[256])
                        put(41 + 4 * a + al // 4 - 1, M)
                    if al % 8 == 0:
                        for a in range(4):
                            cmul(M, M, W[256])
                            put(49 + 2 * a + al // 8 - 1, M)
            if al == 8:
                self.maybe_s1("rec1")
        flush_q()
        V.put(L, M, Rr, T, *pk, *W.values(), t0, t1, dt, P)
        self.stamp("rec")
        self.maybe_s1("rec2")
        A.barrier()
        self.stamp("b2")
        NB = 4
        Bb = [V.get(4) for _ in range(NB)]
        A1 = [V.get(4) for _ in range(NB)]
        A2 = [V.get(4) for _ in range(NB)]
        D1, D2 = V.get(4), V.get(4)

        def rd(q):
            A(f"ds_read_b128 {Bb[q % NB]}, {self.vBm} offset:{64 * q}")
            A(f"ds_read_b128 {A1[q % NB]}, {self.vA1} offset:{64 * q}")
            A(f"ds_read_b128 {A2[q % NB]}, {self.vA2} offset:{64 * q}")
        for q in range(NB):
            rd(q)
        for q in range(8):
            A(f"v_mfma_f32_16x16x32_f16 {D1}, {A1[q % NB]}, {Bb[q % NB]}, {D1 if q else 0}")
            A(f"v_mfma_f32_16x16x32_f16 {D2}, {A2[q % NB]}, {Bb[q % NB]}, {D2 if q else 0}")
            if q + NB < 8:
                rd(q + NB)
        self.maybe_s1("mfma")
        self.stamp("kmf0")
        K1, K2 = V.get(2), V.get(2)
        A(f"s_cmp_eq_u32 {self.sH}, 0\ns_cselect_b32 s3, 63, 55\ns_cselect_b32 s16, 4, 2")
        t0 = V.get()
        A(f"v_add_u32 {t0}, s16, {self.vKs}")
        A(f"v_cvt_pk_f16_f32 {K1[0]}, {D1[0]}, {D1[1]}\nv_cvt_pk_f16_f32 {K1[1]}, {D1[2]}, {D1[3]}")
        A(f"v_cvt_pk_f16_f32 {K2[0]}, {D2[0]}, {D2[1]}\nv_cvt_pk_f16_f32 {K2[1]}, {D2[2]}, {D2[3]}")
        A(f"ds_write_b64 {self.vK1}, {K1}\nds_write_b64 {self.vK2}, {K2}")
        A("s_mov_b64 exec, 0\ns_bitset1_b64 exec, s3")
        A(f"ds_write_b16 {self.vKs}, {K2[0]}\nds_write_b16 {self.vKs}, {K2[0]} offset:2\nds_write_b16 {t0}, {K2[0]}")
        A("s_mov_b64 exec, -1")
        V.put(*Bb, *A1, *A2, D1, D2, self.vA1, self.vA2, self.vBm, self.vK1, self.vK2, self.vKs, t0)
        A.barrier()
        V.put(K1, K2)
        self.stamp("kmf")
        self.maybe_s1("shift")
        D, C1, C2, C3 = V.get(6), V.get(4), V.get(4), V.get(4)
        A(f"ds_read_b128 {D[0:4]}, {self.vShift} offset:{L_K}\nds_read_b64 {D[4:6]}, {self.vShift} offset:{L_K + 16}")
        for k in range(4):
            A(f"v_alignbit_b32 {C1[k]}, {D[k + 1]}, {D[k]}, 16")
        A(f"ds_write_b128 {self.vShift}, {C1} offset:{L_K + KCOPY}")
        for k in range(4):
            A(f"v_mov_b32 {C2[k]}, {D[k + 1]}")
        A(f"ds_write_b128 {self.vShift}, {C2} offset:{L_K + 2 * KCOPY}")
        for k in range(4):
            A(f"v_alignbit_b32 {C3[k]}, {D[k + 2]}, {D[k + 1]}, 16")
        A(f"ds_write_b128 {self.vShift}, {C3} offset:{L_K + 3 * KCOPY}")
        A.barrier()
        V.put(D, C1, C2, C3, self.vShift)
        self.stamp("shift")
        self.maybe_s1("frag")
        AC = self.AC
        self.KN = [AC.get(4, 4) for _ in range(17)]
        self.KX = AC.get(4, 4)
        self.B2 = {(k, d): AC.get(4, 4) for k in range(2) for d in (2, 3, 4)}
        self.B3 = {d: AC.get(4, 4) for d in (4, 5, 6, 7)}
        for q in range(17):
            for hf in range(2):
                A(f"ds_read_b64 {self.KN[q][2 * hf:2 * hf + 2]}, {self.vN} offset:{64 * (16 - q) + 8 * hf}")
        for hf in range(2):
            A(f"ds_read_b64 {self.KX[2 * hf:2 * hf + 2]}, {self.vN} offset:{2 * NX + 8 * hf}")
        for (k, d), r in self.B2.items():
            for hf in range(2):
                A(f"ds_read_b64 {r[2 * hf:2 * hf + 2]}, {self.vF} offset:{2 * (V2[2 * k + hf] + 32 - 16 * (d - 2))}")
        for d, r in self.B3.items():
            for hf in range(2):
                A(f"ds_read_b64 {r[2 * hf:2 * hf + 2]}, {self.vF} offset:{2 * (V3[hf] + 48 - 16 * (d - 4))}")
        V.put(self.vN, self.vF)
        self.maybe_s1("end")
        self.warm("frag")
        self.stamp("frag")

    def s1_consume(self, A, sfx):
        V = self.V
        UG = self.UG
        t0, t1 = V.get(), V.get()

        def check(C):
            for k in range(8):
                C(f"v_xor_b32 {UG[k]}, {self.sTag}, {UG[k]}")
            C(f"v_or3_b32 {t0}, {UG[0]}, {UG[1]}, {UG[2]}\nv_or3_b32 {t1}, {UG[3]}, {UG[4]}, {UG[5]}")
            C(f"v_or3_b32 {t0}, {t0}, {UG[6]}, {UG[7]}\nv_or_b32 {t0}, {t0}, {t1}")
            C(f"v_and_b32 {t0}, {TAGMASK}, {t0}\nv_cmp_ne_u32 vcc, 0, {t0}")
        self.poll(A, "s1" + sfx, self.s1_loads, check)
        self.stamp("s1w", A)
        A(f"ds_write_b128 {self.vUw}, {UG[0:4]} offset:{L_U + 512}")
        A(f"ds_write_b128 {self.vUw}, {UG[4:8]} offset:{L_U + 512 + 2048}")
        self.stamp("s1", A)
        A.barrier()
        self.stamp("b5", A)
        V.put(t0, t1)

    def conv(self, A, tiles, dma):
        V, AC = self.V, self.AC
        acc = {j: V.get(4) for j in tiles}
        NF, NG, NW, NP = self.o["nf"], self.o["ng"], 6, 6
        PE, PD, NPRE = self.o["pe"], self.o["pd"], self.o["npre"]
        Fb = [AC.get(4, 4) for _ in range(NF)]
        Gb = [AC.get(4, 4) for _ in range(NG)]
        Wb = [V.get(4) for _ in range(NW)]
        Pb = [V.get(4) for _ in range(NP)]
        EU = [V.get(2) for _ in range(2)]
        ED = [V.get(4) for _ in range(2)]
        EY, EZ = V.get(4), V.get(2)
        qmax = {0: 7, 1: 15}
        b2 = sorted({j - d for j in tiles for d in (2, 3, 4) if j - d >= 0})
        b3 = sorted({j - d for j in tiles for d in (4, 5, 6, 7) if j - d >= 0})
        nlo = min(8 * j - qmax.get(j, 16) for j in tiles)
        nhi = 8 * max(tiles)
        near = []
        for fi, n in enumerate(range(nlo, nhi + 1)):
            for j in tiles:
                q = 8 * j - n
                if 0 <= q <= qmax.get(j, 16):
                    near.append((j, self.KN[q], fi, q == 0))
        far = []
        gfr, pcount = [], 0
        for b in sorted(set(b2) | set(b3)):
            ga, gb = len(gfr), len(gfr) + 1
            gfr += [256 * b - 16, 256 * b - 24]
            mains = []
            if b in b2:
                pa, pb = pcount, pcount + 1
                pcount += 2
                far += [("band", ga, (12, 1), pa, 0), ("band", ga, (8, 2), pa, 1), ("band", gb, (12, 1), pb, 0), ("band", gb, (8, 2), pb, 1)]
                mains += [("main", b + d, pa, self.B2[(0, d)]) for d in (2, 3, 4) if b + d in tiles]
                mains += [("main", b + d, pb, self.B2[(1, d)]) for d in (2, 3, 4) if b + d in tiles]
            if b in b3:
                pc = pcount
                pcount += 1
                far += [("band", ga, (8, 3), pc, 0), ("band", gb, (8, 4), pc, 1)]
                mains += [("main", b + d, pc, self.B3[d]) for d in (4, 5, 6, 7) if b + d in tiles]
            if b + 4 in tiles:
                far.append(("x", b + 4, ga))
            far += mains
        LAT = 5
        mf, fill = [], []
        started, done_at = set(), {}
        fuse, guse, plast, pready = {}, {}, {}, {}
        wcount = 0
        ni = 0
        farleft = list(far)
        span = self.o["far_span"][0 if 0 in tiles else 1]
        credit = 0.0

        def acc_mf(j, a, b):
            mf.append(f"v_mfma_f32_16x16x32_f16 {acc[j]}, {a}, {b}, {acc[j] if j in started else 0}")
            started.add(j)

        def far_ok(it):
            t = len(mf)
            if it[0] == "main":
                return pready.get(it[2], 10 ** 6) <= t
            if it[0] == "band":
                prev = it[3] - NP
                return prev < 0 or not any(o[0] == "main" and o[2] == prev for o in farleft)
            return True

        while ni < len(near) or farleft:
            t = len(mf)
            want_far = farleft and (credit >= 1.0 or ni >= len(near))
            if ni < len(near) and near[ni][3] and any(o[0] in ("main", "x") and o[1] == near[ni][0] for o in farleft):
                want_far = True
            pick = None
            if want_far:
                for it in farleft[:8]:
                    if far_ok(it):
                        if it[0] == "band" and any(o[0] == "band" for o in farleft[:farleft.index(it)]):
                            continue
                        pick = it
                        break
            if pick is None and ni < len(near) and not (near[ni][3] and any(o[0] in ("main", "x") and o[1] == near[ni][0] for o in farleft)):
                j, a, fi, last = near[ni]
                ni += 1
                acc_mf(j, a, Fb[fi % NF])
                fuse.setdefault(fi, [t, t])[1] = t
                if last:
                    done_at[j] = t
                credit += len(far) / span
                continue
            assert pick is not None, "conv schedule is stuck"
            farleft.remove(pick)
            credit -= 1.0
            if pick[0] == "band":
                _, g, key, p, hf = pick
                w = Wb[wcount % NW]
                wcount += 1
                mf.append(f"v_mfma_f32_16x16x32_f16 {w}, {Gb[g % NG]}, {self.BAND[key]}, 0")
                guse.setdefault(g, [t, t])[1] = t
                for k in range(2):
                    fill.append([t + 3, t + LAT - 1, f"v_cvt_pk_f16_f32 {Pb[p % NP][2 * hf + k]}, {w[2 * k]}, {w[2 * k + 1]}", None])
                if hf == 1:
                    pready[p] = t + LAT
            elif pick[0] == "x":
                acc_mf(pick[1], self.KX, Gb[pick[2] % NG])
                guse.setdefault(pick[2], [t, t])[1] = t
            else:
                acc_mf(pick[1], Pb[pick[2] % NP], pick[3])
        nm = len(mf)
        pre = []
        reads = []
        for fi in sorted(fuse):
            txt = f"ds_read_b128 {Fb[fi % NF]}, {self.vUf} offset:{512 + 2 * (32 * (nlo + fi) - 16)}"
            reads.append((fuse[fi][0], fuse[fi - NF][1] if fi >= NF else -1, txt))
        for g in sorted(guse):
            txt = f"ds_read_b128 {Gb[g % NG]}, {self.vUf} offset:{512 + 2 * gfr[g]}"
            reads.append((guse[g][0], guse[g - NG][1] if g >= NG else -1, txt))
        reads.sort()
        for first, free, txt in reads:
            if free < 0 and first <= NPRE:
                pre.append(txt)
            else:
                assert free < first
                fill.append([max(free, first - PE, 0), max(free, first - PD, 0), txt, None])
        order_t = sorted(tiles, key=lambda j: done_at[j])
        for k, j in enumerate(order_t):
            eu, ed = EU[k % 2], ED[k % 2]
            t = done_at[j]
            nxt = done_at[order_t[k + 1]] if k + 1 < len(order_t) else nm + 100
            e0 = 2 if k < 2 else done_at[order_t[k - 2]] + 12
            assert e0 + 4 <= t + 2
            fill.append([e0, max(e0, t - 8), f"ds_read_b64 {eu}, {self.vUe} offset:{512 + 512 * j}", f"e1_{j}"])
            for r in range(4):
                fill.append([e0 + 4, t + 2, f"v_fma_mix_f32 {ed[r]}, {eu[r // 2]}, {self.vD16}, 0 op_sel:[{r % 2},0,0] op_sel_hi:[1,0,0]", f"e1_{j}"])
            for r in range(4):
                fill.append([e0 + 4, t + 2, f"v_cvt_pk_bf16_f32 {ed[r]}, 0, {ed[r]}", f"e1_{j}"])
            seq2 = [f"v_cvt_pk_bf16_f32 {EY[r]}, 0, {acc[j][r]}" for r in range(4)]
            seq2 += [f"v_fma_f32 {EY[r]}, {EY[r]}, {self.vG16}, {ed[r]}" for r in range(4)]
            seq2 += [f"v_cvt_pk_bf16_f32 {EZ[r]}, {EY[2 * r]}, {EY[2 * r + 1]}" for r in range(2)]
            seq2.append(f"ds_write_b64 {self.vZw}, {EZ} offset:{L_Z + 1024 * j}")
            for txt in seq2:
                fill.append([t + 3, min(t + 11, nxt + 2), txt, f"e2_{j}"])
        step = (nm - 6) // max(len(dma), 1)
        for k, grp in enumerate(dma):
            fill.append([1 + k * step, 3 + k * step, grp, "dma"])
        for txt in pre:
            A(txt)
        for i, f in enumerate(fill):
            f.append(i)
        left = list(fill)
        A.prewait([mf[0]])
        for t in range(nm):
            A(mf[t])
            chosen = []
            for f in sorted([f for f in left if f[0] <= t], key=lambda f: (f[1], f[4])):
                if len(chosen) >= 2 and f[1] > t:
                    break
                if f[3] and any(g[3] == f[3] and g[4] < f[4] and g not in chosen for g in left):
                    continue
                mem = isinstance(f[2], tuple) or f[2].startswith("ds_")
                if mem and f[1] > t and any(g[3] == f[3] and f[3] for g in chosen):
                    continue
                chosen.append(f)
            memf = [f for f in chosen if (isinstance(f[2], tuple) or f[2].startswith("ds_")) and not any(g[3] == f[3] and f[3] and g[4] < f[4] for g in chosen)]
            rest = [f for f in chosen if f not in memf]
            A.prewait([f[2] for f in chosen if not isinstance(f[2], tuple)] + ([mf[t + 1]] if t + 1 < nm else []))
            for f in memf + rest:
                if isinstance(f[2], tuple):
                    A(f[2][0])
                    A(f[2][1], tag="dma")
                else:
                    A(f[2])
                left.remove(f)
        for f in sorted(left, key=lambda f: (f[1], f[4])):
            A(f[2])
        self.nmfma = getattr(self, "nmfma", []) + [nm]
        V.put(*acc.values(), *Wb, *Pb, *EU, *ED, EY, EZ)
        AC.put(*Fb, *Gb)

    def dma_setup_common(self):
        pass

    def dma_plan(self, A, role):
        V = self.V
        vL, sW = self.vL, self.sW
        t0, t1 = V.get(), V.get()
        if role == 0:
            self.vWa = [V.get(), V.get()]
            A(f"""
            s_mul_i32 {self.sWb}, {sW}, 4224
            s_add_u32 {self.sWb}, {self.sWb}, {L_STAGE}
            s_lshl_b32 s3, {sW}, 7
            v_add_u32 {t0}, s3, {vL}
            v_mul_u32_u24 {t0}, 3584, {t0}
            s_lshl_b32 s3, {self.sPhi}, 4
            v_add_u32 {self.vWa[0]}, s3, {t0}
            v_add_u32 {self.vWa[1]}, {64 * 3584}, {self.vWa[0]}
            """)
            plan = [(f"s_add_u32 m0, {self.sWb}, {(m // 2) * 2112 + (m % 2) * 1024}",
                     f"global_load_lds_dwordx4 {self.vWa[m % 2]}, s[{22 + 2 * (m // 2)}:{23 + 2 * (m // 2)}]") for m in range(4)]
        else:
            self.vWa = [V.get()]
            A(f"""
            s_mul_i32 {self.sWb}, {sW}, 14336
            s_add_u32 {self.sWb}, {self.sWb}, {L_STAGE}
            s_mul_i32 s3, {sW}, 448
            v_lshrrev_b32 {t0}, 1, {vL}
            v_add_u32 {t0}, s3, {t0}
            v_lshlrev_b32 {t0}, 10, {t0}
            v_and_b32 {t1}, 1, {vL}
            v_lshl_add_u32 {t0}, {t1}, 4, {t0}
            s_sub_u32 s3, {self.sPhi}, 224
            s_lshl_b32 s3, s3, 5
            v_add_u32 {self.vWa[0]}, s3, {t0}
            s_mov_b64 s[4:5], s[26:27]
            """)
            plan = [(f"s_add_u32 m0, {self.sWb}, {m * 1024}" + ("\ns_add_u32 s4, s4, 0x8000\ns_addc_u32 s5, s5, 0" if m else ""),
                     f"global_load_lds_dwordx4 {self.vWa[0]}, s[4:5]") for m in range(14)]
        V.put(t0, t1)
        return plan

    def conv_both(self, A, role):
        sfx = f"r{role}"
        plan = self.dma_plan(A, role)
        self.plan = plan
        if self.o["dma_at"] != "conv":
            plan = []
        self.s1_consume(A, sfx)
        A(f"s_cmp_eq_u32 {self.sH}, 0\ns_cbranch_scc0 L_conv_b{sfx}")
        B = A.fork()
        self.conv(A, [0, 1, 2, 3, 4], plan)
        A.wait(lg=0)
        A.flush()
        A(f"s_branch L_conv_done{sfx}")
        B.label(f"L_conv_b{sfx}")
        self.conv(B, [5, 6, 7], plan)
        B.wait(lg=0)
        B.flush()
        assert len(A.vm) == len(B.vm)
        A.lines += B.lines
        A.count += B.count
        A.nops += B.nops
        A.label(f"L_conv_done{sfx}")
        self.stamp("conv", A)
        A("s_barrier")
        self.stamp("b6", A)
        ZT = self.ZT
        A(f"ds_read_b128 {ZT[0:4]}, {self.vZr} offset:{L_Z}\nds_read_b128 {ZT[4:8]}, {self.vZr} offset:{L_Z + 4096}")
        A(f"global_store_dwordx4 {self.vS2o}, {ZT[0:4]}, s[30:31] sc1", tag="s2st")
        A(f"global_store_dwordx4 {self.vS2o2}, {ZT[4:8]}, s[30:31] sc1", tag="s2st")
        self.stamp("st2", A)

    def tail(self, A, role):
        V, S = self.V, self.S
        vL, vI, vG, sL, sW = self.vL, self.vI, self.vG, self.sL, self.sW
        sfx = f"r{role}"
        got = []

        def get(n=1, al=None):
            r = V.get(n, al)
            got.append(r)
            return r
        t0, t1, t2 = get(), get(), get()
        vTr = get()
        if role == 0:
            A(f"""
            v_bfe_u32 {t0}, {vI}, 1, 1
            v_mul_u32_u24 {t0}, 2112, {t0}
            v_and_b32 {t1}, 1, {vI}
            v_lshl_add_u32 {t0}, {t1}, 3, {t0}
            v_lshrrev_b32 {t1}, 2, {vI}
            v_lshl_add_u32 {t1}, {vG}, 3, {t1}
            v_lshl_add_u32 {t0}, {t1}, 4, {t0}
            v_add_u32 {vTr}, {self.sWb}, {t0}
            """)
        else:
            A(f"""
            v_and_b32 {t0}, 3, {vI}
            v_lshlrev_b32 {t0}, 3, {t0}
            v_lshrrev_b32 {t1}, 2, {vI}
            v_lshl_add_u32 {t1}, {vG}, 3, {t1}
            v_lshl_add_u32 {t0}, {t1}, 5, {t0}
            v_add_u32 {vTr}, {self.sWb}, {t0}
            """)
        self.stamp("dma", A)
        vSW, vKw, vS3o, vS3i, vRo = get(), get(), get(), get(), get()
        vHr = self.vHr
        self.XL, self.XH = get(8), get(8)
        for j in range(8):
            A(f"v_lshlrev_b32 {self.XL[j]}, 16, {self.XA[j]}")
            A(f"v_and_b32 {self.XH[j]}, 0xffff0000, {self.XA[j]}")
        for k in range(8):
            A(f"v_dot2_f32_bf16 {vSW}, {self.WR[k]}, {self.sOnes}, {vSW if k else 0}")
        self.allreduce(A, "v_add_f32", [vSW], 32)
        A(f"""
        v_and_b32 {t0}, 31, v0
        v_lshlrev_b32 {t0}, 4, {t0}
        v_lshlrev_b32 {vKw}, 2, {self.vTau}
        s_lshl_b32 s3, {sW}, 13
        s_lshl_b32 s16, {sL}, 4
        s_add_u32 s3, s3, s16
        s_add_u32 s3, s3, {WS_S3}
        v_lshl_add_u32 {vS3o}, {vL}, 12, s3
        s_lshr_b32 s3, {sL}, 5
        s_lshl_b32 s3, s3, 12
        s_add_u32 s16, s3, {WS_S3}
        v_lshl_add_u32 {vS3i}, v0, 4, s16
        s_lshl_b32 s16, {sL}, 11
        s_add_u32 s16, s16, {WS_ROWS}
        v_add_u32 {vRo}, s16, {t0}
        """)
        A.wait_tag("s2st")
        self.stamp("ack2", A)
        ZT = self.ZT

        def s2_loads(C):
            C(f"global_load_dwordx4 {ZT[0:4]}, {self.vS2i}, s[30:31] sc1")
            C(f"global_load_dwordx4 {ZT[4:8]}, {self.vS2i2}, s[30:31] sc1")
        s2_loads(A)
        rest = list(self.plan) if self.o["dma_at"] in ("late", "pub3", "s2") else []

        def dma_some(n):
            for _ in range(min(n, len(rest))):
                a, b = rest.pop(0)
                A(a)
                A(b, tag="dma")
        if self.o["dma_at"] == "late":
            dma_some(4)

        def poison_check(regs):
            def chk(C):
                r = list(regs)
                if len(r) == 1:
                    C(f"v_cmp_eq_u32 vcc, -1, {r[0]}")
                    return
                C(f"v_max3_u32 {t0}, {r[0]}, {r[1]}, {r[2] if len(r) > 2 else r[1]}")
                r = r[3:]
                while r:
                    C(f"v_max3_u32 {t0}, {t0}, {r[0]}, {r[1] if len(r) > 1 else r[0]}")
                    r = r[2:]
                C(f"v_cmp_eq_u32 vcc, -1, {t0}")
            return chk
        self.poll(A, "s2" + sfx, s2_loads, poison_check([ZT[k] for k in range(8)]))
        self.stamp("s2", A)
        if self.o["dma_at"] == "s2":
            dma_some(4)
        HP = get(4)
        T = get(8)
        for grp in range(2):
            for jj in range(4):
                j = 4 * grp + jj
                sel = self.sHi if j % 2 else self.sLo
                A(f"v_dot2_f32_bf16 {T[2 * jj]}, {ZT[j // 2]}, {sel}, {self.XL[j]}")
                A(f"v_dot2_f32_bf16 {T[2 * jj + 1]}, {ZT[4 + j // 2]}, {sel}, {self.XH[j]}")
            for jj in range(4):
                j = 4 * grp + jj
                A(f"v_cvt_pk_bf16_f32 {HP[jj]}, {T[2 * jj]}, {T[2 * jj + 1]}")
                A(f"ds_write_b32 {self.vHw2}, {HP[jj]} offset:{1024 * j}")
        self.stamp("hw", A)
        A.barrier()
        self.stamp("b7", A)
        HB = get(8)
        A(f"ds_read_b128 {HB[0:4]}, {vHr} offset:{L_H}\nds_read_b128 {HB[4:8]}, {vHr} offset:{L_H + 512}")
        s1, s2, s3, NM, RS, key = get(), get(), get(), get(2), get(2), get()
        A(f"s_lshl_b32 s3, {sL}, 3\ns_sub_u32 s3, 2047, s3\nv_sub_u32 {t2}, s3, {self.vTau}")
        for k in range(8):
            A(f"v_dot2_f32_bf16 {s1}, {HB[k]}, {self.sOnes}, {s1 if k else 0}")
            A(f"v_dot2_f32_bf16 {s2}, {HB[k]}, {HB[k]}, {s2 if k else 0}")
            A(f"v_dot2_f32_bf16 {s3}, {HB[k]}, {self.WR[k]}, {s3 if k else 0}")
        self.allreduce(A, "v_add_f32", [s1, s2, s3], 32)
        self.ln_stats(A, s1, s2, NM[0], RS[0])
        A(f"v_fma_f32 {s3}, {NM[0]}, {vSW}, {s3}\nv_mul_f32 {s3}, {s3}, {RS[0]}")
        self.rnd(A, s3, s3)
        A(f"""
        v_ashrrev_i32 {t1}, 31, {s3}
        v_or_b32 {t1}, 0x80000000, {t1}
        v_xor_b32 {t1}, {s3}, {t1}
        v_and_b32 {t1}, 0xffff0000, {t1}
        v_or_b32 {key}, {t1}, {t2}
        s_mov_b64 exec, 1
        s_bitset1_b64 exec, 32
        ds_write_b32 {vKw}, {key} offset:{L_KEY}
        s_mov_b64 exec, -1
        v_mov_b32 {t1}, 0
        """)
        self.stamp("key", A)
        H32 = get(16)
        for k in range(8):
            A(f"v_lshlrev_b32 {H32[2 * k]}, 16, {HB[k]}\nv_and_b32 {H32[2 * k + 1]}, 0xffff0000, {HB[k]}")
        A.barrier()
        kmax = get()
        A(f"ds_read_b128 {T[0:4]}, {t1} offset:{L_KEY}\nds_read_b128 {T[4:8]}, {t1} offset:{L_KEY + 16}")
        A(f"v_max3_u32 {kmax}, {T[0]}, {T[1]}, {T[2]}\nv_max3_u32 {t0}, {T[3]}, {T[4]}, {T[5]}")
        A(f"v_max3_u32 {kmax}, {kmax}, {T[6]}, {T[7]}\nv_max_u32 {kmax}, {kmax}, {t0}")
        A("s_mov_b64 exec, 3")
        A(f"global_store_dword {vS3o}, {kmax}, s[30:31] sc1", tag="s3st")
        A("s_mov_b64 exec, -1")
        self.stamp("pub3", A)
        if self.o["dma_at"] == "pub3":
            dma_some(4)
        sC = self.sC
        A(f"v_cmp_eq_u32 {sC}, {key}, {kmax}")
        HN, D = get(8), get(16)
        A(f"v_mov_b32 {NM[1]}, {NM[0]}\nv_mov_b32 {RS[1]}, {RS[0]}")
        for k in range(8):
            A(f"v_pk_add_f32 {D[2 * k:2 * k + 2]}, {H32[2 * k:2 * k + 2]}, {NM}")
        for k in range(16):
            self.rnd(A, D[k], D[k])
        for k in range(8):
            A(f"v_pk_mul_f32 {D[2 * k:2 * k + 2]}, {D[2 * k:2 * k + 2]}, {RS}")
        for k in range(8):
            A(f"v_cvt_pk_bf16_f32 {HN[k]}, {D[2 * k]}, {D[2 * k + 1]}")
        A(f"s_mov_b64 exec, {sC}")
        A(f"global_store_dwordx4 {vRo}, {HN[0:4]}, s[30:31] sc1", tag="s3st")
        A(f"global_store_dwordx4 {vRo}, {HN[4:8]}, s[30:31] offset:512 sc1", tag="s3st")
        A(f"global_store_dwordx4 {vRo}, {HB[0:4]}, s[30:31] offset:1024 sc1", tag="s3st")
        A(f"global_store_dwordx4 {vRo}, {HB[4:8]}, s[30:31] offset:1536 sc1", tag="s3st")
        A("s_mov_b64 exec, -1")
        self.stamp("hn", A)
        O = get(8)
        for k in range(8):
            A(f"v_dot2_f32_bf16 {D[2 * k]}, {HN[k]}, {self.sLo}, {H32[2 * k]}")
            A(f"v_dot2_f32_bf16 {D[2 * k + 1]}, {HN[k]}, {self.sHi}, {H32[2 * k + 1]}")
        for k in range(8):
            A(f"v_cvt_pk_bf16_f32 {O[k]}, {D[2 * k]}, {D[2 * k + 1]}")
        self.stamp("outc", A)
        pol = self.o["out_pol"]

        def out_stores(C):
            C(f"global_store_dwordx4 {self.vRow}, {O[0:4]}, s[28:29] {pol}", tag="out")
            C(f"global_store_dwordx4 {self.vRow}, {O[4:8]}, s[28:29] offset:512 {pol}", tag="out")
        nw = 4 if role == 0 else 14
        WT = [self.AC.get(4, 4) for _ in range(nw)]

        def tr_reads():
            A.wait_tag("dma")
            for m in range(nw):
                for e2 in range(2):
                    off = (32 * m + 4 * e2) * (16 if role == 0 else 32)
                    A(f"ds_read_b64_tr_b16 {WT[m][2 * e2:2 * e2 + 2]}, {vTr} offset:{off}")
        if role == 0:
            tr_reads()
        A.wait(vm=0)
        self.stamp("ack3", A)
        kin = get()

        def s3_loads(C):
            C(f"global_load_dword {kin}, {vS3i}, s[30:31] sc1")
        s3_loads(A)
        dma_some(4)
        if role == 0:
            A(f"s_andn2_b64 exec, -1, {sC}")
            out_stores(A)
            A("s_mov_b64 exec, -1")
        A(f"v_lshlrev_b32 {t1}, 2, v0\nv_lshrrev_b32 {t1}, 6, {t1}\nv_and_b32 {t1}, 12, {t1}\nv_mov_b32 {t2}, 0")
        self.poll(A, "s3" + sfx, s3_loads, poison_check([kin]))
        self.stamp("s3p", A)
        self.allreduce(A, "v_max_u32", [kin], 64)
        self.stamp("s3w", A)
        A(f"s_mov_b64 exec, 1\nds_write_b32 {t1}, {kin} offset:{L_KEY2}\ns_mov_b64 exec, -1")
        A.barrier()
        A(f"ds_read_b128 {T[0:4]}, {t2} offset:{L_KEY2}")
        A(f"v_max3_u32 {kin}, {T[0]}, {T[1]}, {T[2]}\nv_max_u32 {kin}, {kin}, {T[3]}")
        sK, sT = self.sK, self.sT
        A(f"v_readfirstlane_b32 {sK}, {kin}")
        A(f"s_and_b32 {sT}, {sK}, 0x7ff\ns_sub_u32 {sT}, 2047, {sT}")
        self.stamp("s3", A)
        A(f"s_lshr_b32 s3, {sT}, 3\ns_lshl_b32 s3, s3, 11\ns_add_u32 s3, s3, {WS_ROWS}")
        XS = get(4)
        vRed = get()
        if role == 0:
            A(f"""
            s_lshl_b32 s16, {sW}, 8
            s_add_u32 s3, s3, s16
            v_and_b32 {t1}, 3, {vI}
            v_lshlrev_b32 {t1}, 6, {t1}
            v_lshl_add_u32 {t1}, {vG}, 4, {t1}
            v_add_u32 {t1}, s3, {t1}
            """)

            def row_loads(C):
                C(f"global_load_dwordx4 {XS}, {t1}, s[30:31] sc1")
            row_loads(A)
            A(f"v_cmp_ne_u32 vcc, {kin}, {kmax}\ns_and_b64 exec, vcc, {sC}")
            out_stores(A)
            A("s_mov_b64 exec, -1")
            A(f"s_lshl_b32 s3, {sW}, 2\nv_lshl_add_u32 {vRed}, {vI}, 4, s3")
            self.poll(A, "row" + sfx, row_loads, poison_check([XS[k] for k in range(4)]))
            self.stamp("row", A)
            for m in range(4):
                A(f"v_mfma_f32_16x16x32_bf16 {D[4 * m:4 * m + 4]}, {XS}, {WT[m]}, 0")
            A(f"""
            v_and_b32 {t1}, 7, {vL}
            v_lshlrev_b32 {t1}, 4, {t1}
            v_lshrrev_b32 {t2}, 3, {vL}
            s_lshl_b32 s3, {self.sPhi}, 4
            s_add_u32 s3, s3, {WS_S4}
            v_lshl_add_u32 {t2}, {t2}, 12, s3
            v_add_f32 {t0}, {D[0]}, {D[5]}
            v_add_f32 {t0}, {t0}, {D[10]}
            v_add_f32 {t0}, {t0}, {D[15]}
            s_mov_b64 exec, 0xffff
            ds_write_b32 {vRed}, {t0} offset:{L_RED}
            s_mov_b64 exec, -1
            """)
            self.stamp("g1m", A)
            A.barrier()
            self.stamp("g1b", A)
            A(f"s_cmp_eq_u32 {sW}, 0\ns_cbranch_scc0 L_fin_{sfx}")
            A(f"ds_read_b128 {T[0:4]}, {t1} offset:{L_RED}\nds_read_b128 {T[4:8]}, {t1} offset:{L_RED + 128}")
            A(f"v_pk_add_f32 {T[0:2]}, {T[0:2]}, {T[2:4]}\nv_pk_add_f32 {T[4:6]}, {T[4:6]}, {T[6:8]}")
            A(f"v_add_f32 {T[0]}, {T[0]}, {T[1]}\nv_add_f32 {T[4]}, {T[4]}, {T[5]}")
            self.rnd(A, T[0], T[0])
            self.rnd(A, T[4], T[4])
            A(f"v_mul_f32 {t0}, {LOG2E | 0x80000000}, {T[0]}\nv_exp_f32 {t0}, {t0}\nv_add_f32 {t0}, 1.0, {t0}")
            A(f"v_rcp_f32 {t0}, {t0}\nv_mul_f32 {t0}, {T[0]}, {t0}")
            self.rnd(A, t0, t0)
            A(f"v_mul_f32 {t0}, {t0}, {T[4]}")
            A(f"v_mov_b32_dpp {t1}, {t0} row_shl:1 row_mask:0xf bank_mask:0xf")
            A(f"v_cvt_pk_bf16_f32 {XS[0]}, {t0}, {t1}")
            for k in range(1, 4):
                A(f"v_mov_b32_dpp {XS[k]}, {XS[0]} row_shl:{2 * k} row_mask:0xf bank_mask:0xf")
            A("s_mov_b32 exec_lo, 0x01010101\ns_mov_b32 exec_hi, 0x01010101")
            A(f"global_store_dwordx4 {t2}, {XS}, s[30:31] sc1")
            self.stamp("g1", A)
        else:
            HH = get(2)
            A(f"""
            s_sub_u32 s16, {self.sPhi}, 224
            s_lshl_b32 s16, s16, 5
            s_add_u32 s3, s3, s16
            v_lshrrev_b32 {t1}, 1, {vI}
            v_lshl_add_u32 {t1}, {t1}, 2, s3
            """)

            def row_loads(C):
                C(f"global_load_dword {HH[0]}, {t1}, s[30:31] sc1")
                C(f"global_load_dword {HH[1]}, {t1}, s[30:31] offset:1024 sc1")
            row_loads(A)
            dma_some(6)
            self.poll(A, "row" + sfx, row_loads, poison_check([HH[0], HH[1]]))
            self.stamp("row", A)
            A(f"v_cmp_eq_u32 vcc, {kin}, {key}\ns_andn2_b64 exec, -1, vcc")
            out_stores(A)
            A("s_mov_b64 exec, 1")
            A(f"v_mov_b32 {t0}, {self.sE}\nv_mov_b32 {t2}, 0")
            A(f"global_store_dword {t2}, {t0}, s[30:31] offset:{WS_EPOCH}")
            A("s_mov_b64 exec, -1")
            self.stamp("r1o", A)
            tr_reads()
            self.stamp("r1t", A)
            vSig, vOut, vS4i = get(), get(), get()
            A(f"""
            s_and_b32 s16, {sK}, 0x7fff0000
            s_andn2_b32 s17, 0xffff0000, {sK}
            s_bitcmp1_b32 {sK}, 31
            s_cselect_b32 s16, s16, s17
            v_mov_b32 {t0}, s16
            v_mul_f32 {t0}, {LOG2E | 0x80000000}, {t0}
            v_exp_f32 {t0}, {t0}
            v_add_f32 {t0}, 1.0, {t0}
            v_rcp_f32 {t0}, {t0}
            """)
            self.rnd(A, vSig, t0)
            A(f"""
            v_and_b32 {t0}, 1, {vI}
            v_xor_b32 {t0}, 1, {t0}
            v_lshlrev_b32 {t0}, 4, {t0}
            v_lshlrev_b32 {HH[0]}, {t0}, {HH[0]}
            v_lshlrev_b32 {HH[1]}, {t0}, {HH[1]}
            v_and_b32 {HH[0]}, 0xffff0000, {HH[0]}
            v_and_b32 {HH[1]}, 0xffff0000, {HH[1]}
            s_lshl_b32 s3, {sT}, 10
            s_sub_u32 s16, {self.sPhi}, 224
            s_lshl_b32 s16, s16, 5
            s_add_u32 s3, s3, s16
            v_lshl_add_u32 {vOut}, {vI}, 1, s3
            s_lshr_b32 s3, {sL}, 5
            s_lshl_b32 s3, s3, 12
            s_mul_i32 s16, {sW}, {56 * 16}
            s_add_u32 s3, s3, s16
            s_add_u32 s3, s3, {WS_S4}
            v_min_u32 {t0}, 13, {vI}
            v_lshl_add_u32 {t0}, {t0}, 2, {vG}
            v_lshl_add_u32 {vS4i}, {t0}, 4, s3
            s_lshl_b32 s3, {sW}, 2
            v_lshl_add_u32 {vRed}, {vI}, 4, s3
            v_mov_b32 {t2}, 0
            """)
            A.wait(vm=0)
            self.stamp("r1a", A)

            def s4_loads(C):
                C(f"global_load_dwordx4 {XS}, {vS4i}, s[30:31] sc1")
            s4_loads(A)
            self.poll(A, "s4", s4_loads, poison_check([XS[k] for k in range(4)]))
            self.stamp("g1", A)
            DD = [get(4) for _ in range(6)]
            for m in range(14 + 3):
                if m < 14:
                    A(f"v_mfma_f32_16x16x32_bf16 {DD[m % 6]}, {XS}, {WT[m]}, 0")
                k = m - 3
                if k >= 0:
                    A(f"v_add_f32_dpp {t2}, {DD[k % 6][k % 4]}, {t2} quad_perm:[0,1,2,3] row_mask:{1 << (k // 4)} bank_mask:0xf")
            for sw in ("v_permlane16_swap_b32", "v_permlane32_swap_b32"):
                A(f"v_mov_b32 {t0}, {t2}\n{sw} {t2}, {t0}\nv_add_f32 {t2}, {t2}, {t0}")
            A(f"s_mov_b64 exec, 0xffff\nds_write_b32 {vRed}, {t2} offset:{L_RED}\ns_mov_b64 exec, -1")
            A(f"v_lshlrev_b32 {t1}, 4, {vI}")
            self.stamp("g2m", A)
            A.barrier()
            A(f"s_cmp_eq_u32 {sW}, 0\ns_cbranch_scc0 L_fin_{sfx}")
            A(f"ds_read_b128 {T[0:4]}, {t1} offset:{L_RED}")
            A(f"v_pk_add_f32 {T[0:2]}, {T[0:2]}, {T[2:4]}\nv_add_f32 {t0}, {T[0]}, {T[1]}")
            self.rnd(A, t0, t0)
            A(f"v_mul_f32 {t0}, {t0}, {vSig}")
            self.rnd(A, t0, t0)
            A(f"v_add_f32 {t0}, {t0}, {HH[0]}")
            self.rnd(A, t0, t0)
            A(f"v_add_f32 {t0}, {t0}, {HH[1]}")
            self.rnd(A, t0, t0)
            A("s_mov_b64 exec, 0xffff")
            A(f"global_store_short_d16_hi {vOut}, {t0}, s[28:29]")
            self.stamp("g2", A)
        A.flush()
        A.label(f"L_fin_{sfx}")
        if self.o["stamps"]:
            A.wait(vm=0)
            self.stamp("end", A)
            if self.o["clk"]:
                A("s_memtime s[96:97]")
                A.wait(lg=0)
                A("s_sub_u32 s100, s96, s100\ns_mov_b32 s101, 0")
            A("s_waitcnt vmcnt(0) lgkmcnt(0)")
            self.dump_stamps(A)
        A("s_endpgm")
        V.put(*got)
        self.AC.put(*WT)

    def build(self):
        A = self.A
        self.prologue()
        self.ln1()
        self.after_publish()
        self.stamp("warm")
        self.kgen()
        self.sWb, self.sC, self.sK, self.sT = self.S.get(), self.S.get(2), self.S.get(), self.S.get()
        self.ZT = self.V.get(8)
        A(f"s_cmp_eq_u32 {self.sRole}, 0\ns_cbranch_scc0 L_role1")
        B = A.fork()
        B.label("L_role1")
        vfree, afree = set(self.V.free), set(self.AC.free)
        for role, X in ((0, A), (1, B)):
            self.V.free, self.AC.free = set(vfree), set(afree)
            self.conv_both(X, role)
            self.V.put(*self.BAND.values(), self.vUf, self.vUe, self.vZw, self.vG16, self.vD16, self.UG, self.vUw,
                       self.vS1i, self.vS1i2, self.vZr, self.vS2o, self.vS2o2)
            self.AC.put(*self.KN, self.KX, *self.B2.values(), *self.B3.values())
            self.tail(X, role)
        body = A.text() + B.text() + "".join(c.text() for c in self.cold)
        nv = self.V.top + 1
        accum = (nv + 3) // 4 * 4
        total = max(accum + self.AC.top + 1, 264)
        head = open(f"cdna_kernels/{NAME}.s.ref").read().split("; Override launch geometry")[0]
        self.stats = dict(instr=A.count + B.count, nops=A.nops + B.nops, vgpr=nv, agpr=self.AC.top + 1, mfma=self.nmfma)
        return head + f"""; One persistent launch: 256 workgroups, one per CU, exchanging data through d_ws.
; @launch grid=(256,1,1) block=(256,1,1) lds={LDS_BYTES}
.amdgcn_target "amdgcn-amd-amdhsa--gfx950"
.text
.globl {NAME}_kernel
.p2align 8
.type {NAME}_kernel,@function
{NAME}_kernel:
{body}L_end:
    s_endpgm
L_code_end:
.section .rodata,"a"
.p2align 6
.amdhsa_kernel {NAME}_kernel
  .amdhsa_next_free_vgpr {total}
  .amdhsa_next_free_sgpr 102
  .amdhsa_accum_offset {accum}
  .amdhsa_group_segment_fixed_size 0
  .amdhsa_kernarg_size 120
  .amdhsa_user_sgpr_count 2
  .amdhsa_user_sgpr_kernarg_segment_ptr 1
  .amdhsa_system_sgpr_workgroup_id_x 1
  .amdhsa_float_denorm_mode_32 3
.end_amdhsa_kernel
"""


def generate(path, **opt):
    g = Gen(**opt)
    text = g.build()
    open(path, "w").write(text)
    return g.stats


if __name__ == "__main__":
    out = sys.argv[1] if len(sys.argv) > 1 else f"cdna_kernels/{NAME}.s"
    opts = {}
    for a in sys.argv[2:]:
        k, v = a.split("=")
        opts[k] = {"True": True, "False": False}.get(v, int(v) if v.isdigit() else v)
    print(generate(out, **opts))
```

```python
import sys
from asmdsl import Asm, Pool, R

NAME = "sequential_preLN__ssm_conv_s4d__moe_arch_mod__prompt"

WS_EPOCH = 0
WS_S3 = 0x8000
WS_S4 = 0x10000
WS_ROWS = 0x20000
WS_S1 = 0x100000
WS_S2 = 0x300000
WS_STAMP = 0x600000

ROWB = 544
STAGE_CH = 57 * ROWB
L_K = 0
KCOPY = 2112
KCH = 4 * KCOPY
L_U = L_K + 2 * KCH
UCH = 4672
L_Z = 26368
L_H = L_Z + 8192
L_ST = L_H + 8192
L_KEY = L_ST + 64
L_KEY2 = L_KEY + 32
L_RED = L_KEY2 + 32
L_STAGE = 43520
LDS_BYTES = L_STAGE + 2 * STAGE_CH
assert L_U + UCH + 4608 <= L_Z and L_RED + 512 <= L_STAGE and L_STAGE % 256 == 0

NX = 560
V2 = [608 + 64 * s for s in range(4)]
V3 = [864 + 80 * s for s in range(2)]
TAGMASK = 0x40074007
LOG2E = 0x3FB8AA3B
INV2PI = 0x3E22F983
SPIN_MAX = 1 << 14

BANDS = ((12, 1), (8, 2), (8, 3), (8, 4))


def band_table():
    out = []
    for delta, h in BANDS:
        for lane in range(64):
            phi, g = lane & 15, lane >> 4
            bits = [0x3C00 if abs(8 * g + e - phi - delta) <= h else 0 for e in range(8)]
            out.append(".long " + ", ".join(hex(bits[2 * d] | bits[2 * d + 1] << 16) for d in range(4)))
    return "\n".join(out)


STAMP_SETS = {
    True: ["start", "karg", "x", "pub1", "rec", "kmf", "frag", "s1", "conv", "ack2", "s2", "pub3", "ack3", "s3", "row", "g1", "g2", "end"],
    "z": ["start"] + [f"unused{i}" for i in range(16)] + ["end"],
    "a": ["start", "karg", "issued", "consts", "x", "stat", "b1", "norm", "pub1", "warm", "par", "ws", "recR", "rec", "b2", "kmf0", "kmf", "end"],
    "b": ["start", "kmf", "shift", "frag", "s1w", "s1", "b5", "conv", "b6", "st2", "dma", "ack2", "s2", "hw", "b7", "key", "pub3", "end"],
    "c": ["start", "pub3", "hn", "outc", "ack3", "s3p", "s3w", "s3", "row", "g1m", "g1b", "g1", "r1o", "r1t", "r1a", "g2m", "g2", "end"],
}
DEFAULTS = dict(stamps=False, s1_at="mfma", warm=True, out_pol="sc1", pf_code=True, pf_lines=8, dbg=False, poison_at="start", recb=4, xmap=True, x_pol="", w_pol="", p_pol="sc1", mask_poll=True, warm_slot=30, kpre=0, par_first=True, band_tab=True, frag_in=False, dma_pre=0, r1_split=14, xa_glob=False, warm_at="s1w", xa_at="start", nf=7, ng=4, pe=14, pd=6, npre=6, clk=False, dma_at="conv", warm_mode="sect", far_span=(56, 40))


class Gen:
    def __init__(self, **opt):
        self.o = dict(DEFAULTS)
        self.o.update(opt)
        self.A = Asm()
        self.V = Pool("v", 1, 255)
        self.AC = Pool("a", 0, 255)
        self.S = Pool("s", 32, 63)
        self.cold = []
        self.nstamp = 0

    def stamp(self, name, A=None):
        sel = STAMP_SETS.get(self.o["stamps"])
        if sel and name in sel:
            i = sel.index(name)
            (A or self.A)(f"s_memrealtime s[{64 + 2 * i}:{65 + 2 * i}]")

    def dump_stamps(self, A):
        if not self.o["stamps"]:
            return
        if self.o["dbg"]:
            self.dump_debug(A)
            return
        a, d = self.V.get(), self.V.get(2)
        A("s_mov_b64 exec, 1")
        A.wait(lg=0)
        A(f"s_lshl_b32 s3, {self.sL}, 2\ns_add_u32 s3, s3, {self.sW}\ns_lshl_b32 s3, s3, 8\ns_add_u32 s3, s3, {WS_STAMP}")
        A(f"v_mov_b32 {a}, s3")
        for i in range(19):
            A(f"v_mov_b32 {d[0]}, s{64 + 2 * i}\nv_mov_b32 {d[1]}, s{65 + 2 * i}")
            A(f"global_store_dwordx2 {a}, {d}, s[30:31] offset:{8 * i}")
            A.wait(vm=0)
        self.V.put(a, d)

    def dump_debug(self, A):
        a, d = self.V.get(), self.V.get()
        n = getattr(self, "ndbg", 0)
        self.ndbg = n + 1
        A("s_mov_b64 exec, 1")
        A(f"s_cmp_eq_u32 {self.sL}, 255\ns_cbranch_scc0 L_dbg{n}\ns_cmp_eq_u32 {self.sW}, 0\ns_cbranch_scc0 L_dbg{n}")
        A("s_load_dwordx2 s[4:5], s[0:1], 104")
        A.wait(lg=0)
        A(f"v_mov_b32 {a}, 0")
        for i in range(1, 17):
            A(f"s_sub_u32 s3, s{64 + 2 * (i + 1)}, s64\nv_mov_b32 {d}, s3")
            A(f"global_store_dword {a}, {d}, s[4:5] offset:{4 * (i - 1)}")
        A.label(f"L_dbg{n}")
        self.V.put(a, d)

    def rnd(self, A, dst, src, neg=False):
        A(f"v_cvt_pk_bf16_f32 {dst}, 0, {'-' if neg else ''}{src}")

    def allreduce(self, A, op, regs, width, fill=()):
        fill = list(fill)

        def pad():
            for _ in range(max(0, 3 - len(regs))):
                if fill:
                    A(fill.pop(0))
        steps = ["quad_perm:[1,0,3,2]", "quad_perm:[2,3,0,1]", "row_half_mirror", "row_mirror"]
        for st in steps:
            pad()
            for r in regs:
                A(f"{op}_dpp {r}, {r}, {r} {st} row_mask:0xf bank_mask:0xf")
        tmp = [self.V.get() for _ in regs]
        for w, sw in ((32, "v_permlane16_swap_b32"), (64, "v_permlane32_swap_b32")):
            if width >= w:
                for r, t in zip(regs, tmp):
                    A(f"v_mov_b32 {t}, {r}")
                pad()
                for r, t in zip(regs, tmp):
                    A(f"{sw} {r}, {t}")
                for r, t in zip(regs, tmp):
                    A(f"{op} {r}, {r}, {t}")
        for f in fill:
            A(f)
        self.V.put(*tmp)

    def ln_stats(self, A, s1, s2, nm, rs):
        t = self.V.get()
        A(f"v_mul_f32 {s1}, 0x3b000000, {s1}")
        A(f"v_mul_f32 {s2}, 0x3b000000, {s2}")
        A(f"v_fma_f32 {t}, -{s1}, {s1}, {s2}")
        A(f"v_max_f32 {t}, 0, {t}")
        self.rnd(A, t, t)
        self.rnd(A, nm, s1, neg=True)
        A(f"v_add_f32 {t}, 0x3727c5ac, {t}")
        self.rnd(A, t, t)
        A(f"v_sqrt_f32 {t}, {t}")
        self.rnd(A, t, t)
        A(f"v_rcp_f32 {rs}, {t}")
        self.V.put(t)

    def poll(self, A, name, loads, check):
        check(A)
        A(f"s_cbranch_vccnz L_{name}_slow")
        A.label(f"L_{name}_ok")
        C = Asm()
        C.label(f"L_{name}_slow")
        C("s_mov_b32 s3, 0")
        C.label(f"L_{name}_loop")
        if self.o["mask_poll"]:
            C("s_mov_b64 exec, vcc")
        C("s_nop 1")
        loads(C)
        C(f"s_add_u32 s3, s3, 1\ns_cmp_ge_u32 s3, {SPIN_MAX}")
        C("s_cselect_b32 s18, 0, -1\ns_mov_b32 s19, s18")
        check(C)
        C.wait(vm=0)
        C("s_nop 1")
        C("s_and_b64 vcc, vcc, s[18:19]")
        C(f"s_cbranch_vccnz L_{name}_loop")
        C("s_mov_b64 exec, -1")
        C("s_nop 2")
        C(f"s_branch L_{name}_ok")
        self.cold.append(C)

    def prologue(self):
        A, V, S = self.A, self.V, self.S
        A("s_cmp_ge_u32 s2, 0x100\ns_cbranch_scc1 L_end")
        A("s_load_dwordx16 s[4:19], s[0:1], 0\ns_load_dwordx8 s[20:27], s[0:1], 64")
        A("s_load_dwordx2 s[28:29], s[0:1], 96\ns_load_dwordx2 s[30:31], s[0:1], 112")
        self.stamp("start")
        if self.o["clk"]:
            A("s_memtime s[100:101]")
        self.sL, self.sW, self.sTag, self.sE = S.get(), S.get(), S.get(), S.get()
        self.sOnes, self.sLo, self.sHi, self.sCh = S.get(), S.get(), S.get(), S.get()
        sL, sW = self.sL, self.sW
        self.vL = V.get()
        self.vI = V.get()
        self.vG = V.get()
        t0, t1, t2 = V.get(), V.get(), V.get()
        A(f"""
        s_and_b32 s3, s2, 7
        s_lshl_b32 s3, s3, 5
        s_lshr_b32 {sL}, s2, 3
        s_add_u32 {sL}, {sL}, s3
        {"" if self.o["xmap"] else f"s_mov_b32 {sL}, s2"}
        v_lshrrev_b32 {t0}, 6, v0
        v_and_b32 {self.vL}, 63, v0
        v_readfirstlane_b32 {sW}, {t0}
        v_and_b32 {self.vI}, 15, v0
        v_bfe_u32 {self.vG}, v0, 4, 2
        """)
        self.vJunk = V.get(4)
        if self.o["pf_code"]:
            nl = self.o["pf_lines"]
            self.sPc = S.get(2)
            A(f"s_getpc_b64 {self.sPc}")
            A.label("L_pc")
            A(f"""
            s_lshr_b32 s3, s2, 3
            v_lshrrev_b32 {t0}, 6, v0
            v_lshl_add_u32 {t0}, s3, 2, {t0}
            v_and_b32 {t0}, {256 // nl - 1}, {t0}
            v_and_b32 {t1}, {nl - 1}, v0
            v_lshl_add_u32 {t0}, {t0}, {nl.bit_length() - 1}, {t1}
            v_lshlrev_b32 {t0}, 7, {t0}
            v_min_u32 {t0}, L_code_end-L_pc-4, {t0}
            global_load_dword {self.vJunk[0]}, {t0}, {self.sPc}
            """)
        self.vRow = V.get()
        A(f"""
        v_lshrrev_b32 {t0}, 5, v0
        v_and_b32 {t1}, 31, v0
        v_lshlrev_b32 {t0}, 10, {t0}
        s_lshl_b32 s3, {sL}, 13
        v_lshl_add_u32 {t0}, {t1}, 4, {t0}
        v_add_u32 {self.vRow}, s3, {t0}
        """)
        A(f"""
        s_lshr_b32 s3, {sL}, 6
        s_lshl_b32 {self.sCh}, s3, 7
        s_and_b32 s3, {sL}, 31
        s_lshl_b32 s3, s3, 2
        s_add_u32 {self.sCh}, {self.sCh}, s3
        s_bfe_u32 s3, {sL}, 0x10005
        s_add_u32 {self.sCh}, {self.sCh}, s3
        s_and_b32 s3, {sW}, 2
        s_add_u32 {self.sCh}, {self.sCh}, s3
        """)
        vP = V.get()
        A(f"""
        s_lshl_b32 s3, {self.sCh}, 8
        v_lshl_add_u32 {vP}, {self.vL}, 2, s3
        s_lshl_b32 s3, {self.sCh}, 1
        s_and_b32 s3, s3, -4
        v_lshlrev_b32 {t1}, 4, {t1}
        """)
        self.XB = V.get(8)
        self.XA = V.get(8)
        self.PAR = V.get(4)
        self.WR = V.get(8)
        self.sDt, self.sDk = S.get(), S.get()

        def par_loads():
            for k in range(4):
                A(f"global_load_dword {self.PAR[k]}, {vP}, s[{6 + 2 * k}:{7 + 2 * k}] {self.o['x_pol']}")
        if self.o["par_first"]:
            par_loads()
        A(f"global_load_dwordx4 {self.XB[0:4]}, {self.vRow}, s[4:5] {self.o['x_pol']}")
        A(f"global_load_dwordx4 {self.XB[4:8]}, {self.vRow}, s[4:5] offset:512 {self.o['x_pol']}")
        if not self.o["par_first"]:
            par_loads()
        A(f"s_load_dword {self.sDt}, s[14:15], s3\ns_load_dword {self.sDk}, s[16:17], s3")
        A(f"s_load_dword {self.sE}, s[30:31], {WS_EPOCH}")
        self.stamp("karg")
        V.put(vP)
        self.stamp("issued")
        self.vWr = V.get()
        A(f"v_mov_b32 {self.vWr}, {t1}")
        self.M1 = M1 = V.get(4)
        self.vS2o, self.vS2o2, self.vP2, self.vP3 = V.get(), V.get(), V.get(), V.get()
        for k in range(4):
            A(f"v_mov_b32 {M1[k]}, -1")
        A(f"""
        s_lshl_b32 s3, {sL}, 13
        s_add_u32 s3, s3, {WS_S2}
        v_lshl_add_u32 {self.vS2o}, v0, 4, s3
        v_add_u32 {self.vS2o2}, 0x1000, {self.vS2o}
        """)
        A(f"s_lshl_b32 s16, {sW}, 11\ns_add_u32 s3, s3, s16\nv_lshl_add_u32 {self.vP2}, {self.vL}, 4, s3")
        if self.o["poison_at"] == "start":
            self.poison2()
        self.sBlk, self.sRole, self.sUp = S.get(), S.get(), S.get()
        A(f"""
        s_lshr_b32 s3, {sL}, 5
        s_and_b32 s16, {sL}, 31
        s_cmp_ge_u32 s16, 7
        s_cselect_b32 {self.sUp}, 1, 0
        s_cselect_b32 s17, 7, 0
        s_sub_u32 s17, s16, s17
        s_mul_i32 {self.sBlk}, s3, 7
        s_add_u32 {self.sBlk}, {self.sBlk}, s17
        s_cmp_ge_u32 s16, 14
        s_cselect_b32 {self.sRole}, 2, 0
        s_lshl_b32 s3, s3, 2
        s_add_u32 s3, s3, s16
        s_sub_u32 s3, s3, 28
        s_cmp_ge_u32 s16, 28
        s_cselect_b32 {self.sRole}, 1, {self.sRole}
        s_cselect_b32 {self.sBlk}, s3, {self.sBlk}
        """)
        self.sP3 = S.get(2)
        A(f"""
        s_lshl_b32 s3, {sL}, 11
        s_add_u32 s3, s3, {WS_ROWS}
        v_lshl_add_u32 {t0}, v0, 4, s3
        s_lshl_b32 s16, {sL}, 4
        s_add_u32 s16, s16, {WS_S3}
        v_lshl_add_u32 {t1}, {self.vL}, 12, s16
        s_lshl_b32 s17, {self.sUp}, 12
        s_lshl_b32 s3, {self.sBlk}, 6
        s_add_u32 s17, s17, s3
        s_add_u32 s17, s17, {WS_S4}
        v_bfe_u32 {t2}, v0, 2, 3
        v_lshlrev_b32 {t2}, 13, {t2}
        v_and_b32 {self.vP3}, 3, v0
        v_lshl_add_u32 {t2}, {self.vP3}, 4, {t2}
        v_add_u32 {t2}, s17, {t2}
        s_cmp_eq_u32 {self.sRole}, 0
        s_cselect_b32 s17, -1, 0
        s_cmp_eq_u32 {sW}, 2
        s_cselect_b64 vcc, -1, 0
        s_cselect_b32 s17, 0xff, s17
        v_cndmask_b32 {t1}, {t2}, {t1}, vcc
        s_cmp_lt_u32 {sW}, 2
        s_cselect_b64 vcc, -1, 0
        s_cselect_b32 {self.sP3[0]}, -1, s17
        s_cselect_b32 {self.sP3[1]}, -1, 0
        v_cndmask_b32 {self.vP3}, {t1}, {t0}, vcc
        """)
        Z = V.get(4)
        for k in range(4):
            A(f"v_mov_b32 {Z[k]}, 0")
        A(f"""
        v_lshrrev_b32 {t0}, 7, v0
        v_and_b32 {t1}, 127, v0
        v_mul_u32_u24 {t0}, {KCH}, {t0}
        v_lshl_add_u32 {t0}, {t1}, 4, {t0}
        ds_write_b128 {t0}, {Z} offset:{L_K}
        v_lshrrev_b32 {t2}, 7, v0
        v_mul_u32_u24 {t2}, {UCH}, {t2}
        v_lshl_add_u32 {t2}, {t1}, 2, {t2}
        ds_write_b32 {t2}, {Z[0]} offset:{L_U}
        """)
        self.vShift = V.get()
        A(f"v_mov_b32 {self.vShift}, {t0}")
        V.put(Z)
        A(f"s_mov_b32 {self.sOnes}, 0x3f803f80\ns_mov_b32 {self.sLo}, 0x3f80\ns_mov_b32 {self.sHi}, 0x3f800000")
        self.consts(t0, t1, t2)
        self.warm_addr()
        self.warm("consts")
        if self.o["poison_at"] == "consts":
            self.poison2()
        self.stamp("consts")
        V.put(t0, t1, t2)

    def poison2(self):
        A = self.A
        A(f"global_store_dwordx4 {self.vP2}, {self.M1}, s[30:31] {self.o['p_pol']}", tag="poison")
        A(f"global_store_dwordx4 {self.vP2}, {self.M1}, s[30:31] offset:1024 {self.o['p_pol']}", tag="poison")

    def after_publish(self):
        A, V = self.A, self.V
        A(f"s_mov_b64 exec, {self.sP3}")
        A(f"global_store_dwordx4 {self.vP3}, {self.M1}, s[30:31] sc1", tag="poison3")
        A("s_mov_b64 exec, -1")
        A(f"global_load_dwordx4 {self.WR[0:4]}, {self.vWr}, s[20:21]")
        A(f"global_load_dwordx4 {self.WR[4:8]}, {self.vWr}, s[20:21] offset:512")
        self.warm("pub")
        V.put(self.M1, self.vP2, self.vP3, self.vWr)

    def consts(self, t0, t1, t2):
        A, V, S = self.A, self.V, self.S
        vI, vG, vL, sW, sL = self.vI, self.vG, self.vL, self.sW, self.sL
        self.BAND = {key: V.get(4) for key in BANDS}
        if self.o["band_tab"]:
            A(f"v_lshlrev_b32 {t0}, 4, {vL}\nv_add_u32 {t0}, L_tab-L_pc, {t0}")
            for k, key in enumerate(BANDS):
                A(f"global_load_dwordx4 {self.BAND[key]}, {t0}, {self.sPc} offset:{1024 * k}")
        else:
            A(f"v_lshlrev_b32 {t0}, 3, {vG}\nv_sub_u32 {t0}, {vI}, {t0}")
            for (delta, h), B in self.BAND.items():
                win = (1 << (2 * h + 1)) - 1
                A(f"v_add_u32 {t1}, {delta - h + 12}, {t0}")
                A(f"v_med3_i32 {t1}, {t1}, 0, 22")
                A(f"v_mov_b32 {t2}, {win}")
                A(f"v_lshlrev_b32 {t1}, {t1}, {t2}")
                for d in range(4):
                    A(f"v_bfe_u32 {t2}, {t1}, {12 + 2 * d}, 2")
                    A(f"v_mul_u32_u24 {t2}, 0x8001, {t2}")
                    A(f"v_and_b32 {t2}, 0x10001, {t2}")
                    A(f"v_mul_u32_u24 {B[d]}, 0x3c00, {t2}")
        if self.o["poison_at"] == "band":
            self.poison2()
        sB, sH = S.get(), S.get()
        self.sB, self.sH = sB, sH
        A(f"s_lshr_b32 {sB}, {sW}, 1\ns_and_b32 {sH}, {sW}, 1")
        self.sStM = S.get()
        A(f"""
        s_mul_i32 s3, {sB}, {STAGE_CH}
        s_add_u32 s3, s3, {L_STAGE}
        s_lshl_b32 s16, {sH}, 8
        s_add_u32 s16, s16, s3
        s_sub_u32 {self.sStM}, s16, 0x8000
        """)
        self.vA1, self.vA2, self.vBm = V.get(), V.get(), V.get()
        A(f"""
        v_xor_b32 {t0}, 3, {vI}
        v_bfe_u32 {t1}, {t0}, 1, 1
        v_add_u32 {t1}, {t0}, {t1}
        v_lshrrev_b32 {t1}, 1, {t1}
        v_add_u32 {t1}, 32, {t1}
        s_cmp_eq_u32 {sH}, 0
        s_cselect_b64 vcc, -1, 0
        s_cselect_b32 s16, 16, 0
        s_cselect_b32 s17, 0, 41
        v_cndmask_b32 {t1}, {t0}, {t1}, vcc
        v_add_u32 {t0}, s16, {t0}
        v_add_u32 {t2}, s17, {vI}
        v_mul_u32_u24 {t0}, {ROWB}, {t0}
        v_mul_u32_u24 {t1}, {ROWB}, {t1}
        v_mul_u32_u24 {t2}, {ROWB}, {t2}
        v_lshl_add_u32 {t0}, {vG}, 4, {t0}
        v_lshl_add_u32 {t1}, {vG}, 4, {t1}
        v_lshl_add_u32 {t2}, {vG}, 4, {t2}
        v_add_u32 {self.vA1}, s3, {t0}
        v_add_u32 {self.vA2}, s3, {t1}
        v_add_u32 {self.vBm}, s3, {t2}
        """)
        self.vK1, self.vK2, self.vKs = V.get(), V.get(), V.get()
        t3 = V.get()
        A(f"""
        v_lshlrev_b32 {t0}, 4, {vI}
        v_sub_u32 {t0}, 540, {t0}
        v_and_b32 {t1}, 3, {vI}
        v_lshlrev_b32 {t1}, 6, {t1}
        v_lshrrev_b32 {t2}, 2, {vI}
        v_lshlrev_b32 {t2}, 4, {t2}
        v_sub_u32 {t1}, {t1}, {t2}
        v_add_u32 {t1}, {V2[0] + 44}, {t1}
        v_and_b32 {t2}, 1, {vI}
        v_mul_u32_u24 {t2}, 80, {t2}
        v_lshrrev_b32 {t3}, 1, {vI}
        v_lshlrev_b32 {t3}, 4, {t3}
        v_sub_u32 {t2}, {t2}, {t3}
        v_add_u32 {t2}, {V3[0] + 60 + 64}, {t2}
        v_cmp_gt_u32 s[16:17], 8, {vI}
        v_cndmask_b32 {t1}, {t2}, {t1}, s[16:17]
        v_cndmask_b32 {t2}, {t1}, {t0}, vcc
        v_subrev_u32 {t0}, 256, {t0}
        v_cndmask_b32 {t1}, {t1}, {t0}, vcc
        v_lshlrev_b32 {t3}, 2, {vG}
        v_sub_u32 {t2}, {t2}, {t3}
        v_sub_u32 {t1}, {t1}, {t3}
        s_mul_i32 s3, {sB}, {KCH}
        s_add_u32 s3, s3, {L_K}
        v_lshl_add_u32 {self.vK1}, {t2}, 1, s3
        v_lshl_add_u32 {self.vK2}, {t1}, 1, s3
        s_cmp_eq_u32 {sH}, 0
        s_cselect_b32 s16, {2 * 29}, {2 * (NX + 27)}
        s_add_u32 s16, s16, s3
        v_mov_b32 {self.vKs}, s16
        """)
        self.vN, self.vF = V.get(), V.get()
        A(f"""
        v_sub_u32 {t0}, 15, {vI}
        v_and_b32 {t1}, 3, {t0}
        v_and_b32 {t0}, 12, {t0}
        v_mul_u32_u24 {t1}, {KCOPY}, {t1}
        v_lshl_add_u32 {t0}, {t0}, 1, {t1}
        v_add_u32 {t0}, s3, {t0}
        v_lshl_add_u32 {self.vN}, {vG}, 4, {t0}
        v_lshl_add_u32 {self.vF}, {vG}, 3, {t0}
        """)
        self.vUf, self.vUe, self.vZw, self.vZr, self.vUw = V.get(), V.get(), V.get(), V.get(), V.get()
        A(f"""
        s_mul_i32 s3, {sB}, {UCH}
        s_add_u32 s3, s3, {L_U}
        v_lshl_add_u32 {t0}, {vI}, 5, s3
        v_lshl_add_u32 {self.vUf}, {vG}, 4, {t0}
        v_lshl_add_u32 {self.vUe}, {vG}, 3, {t0}
        v_and_b32 {t0}, 2, {vG}
        v_lshl_add_u32 {t0}, {vI}, 2, {t0}
        v_add_u32 {t0}, {sB}, {t0}
        v_lshrrev_b32 {t1}, 1, {vI}
        v_xor_b32 {t0}, {t0}, {t1}
        v_and_b32 {t1}, 1, {vG}
        v_lshlrev_b32 {t1}, 3, {t1}
        v_lshl_add_u32 {self.vZw}, {t0}, 4, {t1}
        v_bfe_u32 {t0}, v0, 3, 3
        v_xor_b32 {t0}, v0, {t0}
        v_lshlrev_b32 {self.vZr}, 4, {t0}
        v_and_b32 {t0}, 1, v0
        v_lshrrev_b32 {t1}, 1, v0
        v_mul_u32_u24 {t2}, {UCH}, {t0}
        v_lshl_add_u32 {self.vUw}, {t1}, 4, {t2}
        """)
        self.vS1o, self.vS1i, self.vS1i2, self.vS2i, self.vS2i2 = V.get(), V.get(), V.get(), V.get(), V.get()
        A(f"""
        s_lshl_b32 s3, {sL}, 13
        s_lshl_b32 s16, {sW}, 11
        s_add_u32 s3, s3, s16
        s_add_u32 s3, s3, {WS_S1}
        v_lshl_add_u32 {self.vS1o}, {vL}, 4, s3
        v_lshlrev_b32 {t0}, 4, {t0}
        s_lshl_b32 s3, {sL}, 5
        s_add_u32 s16, s3, {WS_S1}
        v_lshl_add_u32 {t2}, {t1}, 13, {t0}
        v_add_u32 {self.vS1i}, s16, {t2}
        v_add_u32 {self.vS1i2}, 0x100000, {self.vS1i}
        v_lshrrev_b32 {t1}, 1, {vL}
        v_lshl_add_u32 {t2}, {t1}, 13, {t0}
        s_lshl_b32 s16, {sW}, 19
        s_add_u32 s16, s16, s3
        s_add_u32 s16, s16, {WS_S2}
        v_add_u32 {self.vS2i}, s16, {t2}
        v_add_u32 {self.vS2i2}, 0x40000, {self.vS2i}
        """)
        self.vTau, self.vMask = V.get(), V.get()
        self.vHr, self.vHw2 = V.get(), V.get()
        A(f"""
        v_lshrrev_b32 {t0}, 5, v0
        v_and_b32 {t1}, 31, v0
        v_lshlrev_b32 {t1}, 4, {t1}
        v_lshl_add_u32 {self.vHr}, {t0}, 10, {t1}
        v_lshlrev_b32 {t0}, 2, v0
        v_add_u32 {self.vHw2}, {L_H}, {t0}
        """)
        A(f"v_lshrrev_b32 {self.vTau}, 5, v0\nv_mov_b32 {self.vMask}, {0xFFFFFFFF ^ TAGMASK}")
        V.put(t3)

    def ln1(self):
        A, V = self.A, self.V
        glob = False
        s1, s2, nm, rs, ad = V.get(), V.get(), V.get(), V.get(), V.get()
        A(f"v_lshlrev_b32 {ad}, 2, {self.vTau}")
        for k in range(8):
            if not glob and k % 4 == 0:
                A(f"ds_write_b128 {self.vHr}, {self.XB[k:k + 4]} offset:{L_H + 128 * k}")
            A(f"v_dot2_f32_bf16 {s1}, {self.XB[k]}, {self.sOnes}, {s1 if k else 0}")
            A(f"v_dot2_f32_bf16 {s2}, {self.XB[k]}, {self.XB[k]}, {s2 if k else 0}")
            if k == 0:
                self.stamp("x")
                if self.o["poison_at"] == "x":
                    self.poison2()
        self.allreduce(A, "v_add_f32", [s1, s2], 32)
        self.ln_stats(A, s1, s2, nm, rs)
        self.stamp("stat")
        A("s_mov_b64 exec, 1\ns_bitset1_b64 exec, 32")
        A(f"v_mul_f32 {rs}, 0x3d800000, {rs}")
        A(f"ds_write_b32 {ad}, {nm} offset:{L_ST}\nds_write_b32 {ad}, {rs} offset:{L_ST + 32}")
        A("s_mov_b64 exec, -1")
        A(f"v_mov_b32 {ad}, 0")
        V.put(self.XB)
        A.barrier()
        self.stamp("b1")
        NM, RS = V.get(8), V.get(8)
        XA = self.XA
        if not glob:
            for q in range(2):
                A(f"ds_read2st64_b32 {XA[2 * q:2 * q + 2]}, {self.vHw2} offset0:{8 * q} offset1:{8 * q + 4}")
        A(f"ds_read_b128 {NM[0:4]}, {ad} offset:{L_ST}")
        if not glob:
            for q in range(2, 4):
                A(f"ds_read2st64_b32 {XA[2 * q:2 * q + 2]}, {self.vHw2} offset0:{8 * q} offset1:{8 * q + 4}")
        A(f"ds_read_b128 {NM[4:8]}, {ad} offset:{L_ST + 16}")
        for k in range(2):
            A(f"ds_read_b128 {RS[4 * k:4 * k + 4]}, {ad} offset:{L_ST + 32 + 16 * k}")
        A(f"s_add_u32 {self.sE}, {self.sE}, 1\ns_and_b32 {self.sTag}, {self.sE}, {TAGMASK}")
        T = V.get(8)
        for e in range(2):
            G = V.get(4)
            for j in range(8):
                A(f"v_dot2_f32_bf16 {T[j]}, {XA[j]}, {self.sHi if e else self.sLo}, {NM[j]}")
            for j in range(8):
                self.rnd(A, T[j], T[j])
            for q in range(4):
                A(f"v_pk_mul_f32 {T[2 * q:2 * q + 2]}, {T[2 * q:2 * q + 2]}, {RS[2 * q:2 * q + 2]}")
            for j in range(8):
                self.rnd(A, T[j], T[j])
            for q in range(4):
                A(f"v_cvt_pk_f16_f32 {G[q]}, {T[2 * q]}, {T[2 * q + 1]}")
            for q in range(4):
                A(f"v_and_or_b32 {G[q]}, {G[q]}, {self.vMask}, {self.sTag}")
            if e == 0:
                self.stamp("norm")
                A.wait_tag("poison")
            A(f"global_store_dwordx4 {self.vS1o}, {G}, s[30:31] offset:{1024 * e} sc1", tag="s1st")
            self.G = getattr(self, "G", []) + [G]
        self.stamp("pub1")
        V.put(T, NM, RS, s1, s2, nm, rs, ad, self.vS1o, self.vMask)

    def s1_loads(self, A):
        A(f"global_load_dwordx4 {self.UG[0:4]}, {self.vS1i}, s[30:31] sc1")
        A(f"global_load_dwordx4 {self.UG[4:8]}, {self.vS1i2}, s[30:31] sc1")

    def maybe_s1(self, where):
        if self.o["s1_at"] == where:
            self.UG = self.V.get(8)
            self.s1_loads(self.A)
            self.warm("s1")

    def kgen_steps(self):
        A, V = self.A, self.V
        P = self.PAR
        t0, t1, dt = V.get(), V.get(), V.get()
        self.vG16, self.vD16 = V.get(), V.get()
        A(f"""
        s_and_b32 s3, {self.sCh}, 1
        s_xor_b32 s3, s3, 1
        s_lshl_b32 s3, s3, 4
        s_lshl_b32 {self.sDt}, {self.sDt}, s3
        s_and_b32 {self.sDt}, {self.sDt}, 0xffff0000
        s_lshl_b32 {self.sDk}, {self.sDk}, s3
        s_and_b32 {self.sDk}, {self.sDk}, 0xffff0000
        v_mov_b32 {dt}, {LOG2E}
        v_mul_f32 {dt}, {self.sDt}, {dt}
        v_exp_f32 {dt}, {dt}
        v_mov_b32 {self.vD16}, 0x41800000
        v_mul_f32 {self.vD16}, {self.sDk}, {self.vD16}
        s_cmp_eq_u32 {self.sH}, 0
        s_cselect_b32 s3, 16, 0
        """)
        self.rnd(A, dt, dt)
        A(f"""
        v_and_b32 {t0}, 0x7fff7fff, {P[2]}
        v_and_b32 {t1}, 0x7fff7fff, {P[3]}
        v_pk_max_u16 {t0}, {t0}, {t1}
        v_lshrrev_b32 {t1}, 16, {t0}
        v_and_b32 {t0}, 0xffff, {t0}
        v_max_u32 {t0}, {t0}, {t1}
        """)
        self.stamp("par")
        W = {p: V.get(2) for p in (1, 16, 256)}
        u0, u1 = V.get(), V.get()
        fill = [f"v_lshlrev_b32 {P[k]}, s3, {P[k]}" for k in range(4)]
        fill += [f"v_and_b32 {P[k]}, 0xffff0000, {P[k]}" for k in range(4)]
        fill += [f"v_mul_f32 {P[0]}, {LOG2E}, {P[0]}", f"v_exp_f32 {P[0]}, {P[0]}", f"v_mul_f32 {P[1]}, {P[1]}, {dt}",
                 f"v_cvt_pk_bf16_f32 {P[0]}, 0, {P[0]}", f"v_mul_f32 {P[1]}, {INV2PI}, {P[1]}", f"v_mul_f32 {P[0]}, {P[0]}, {dt}",
                 f"v_fract_f32 {u1}, {P[1]}", f"v_mul_f32 {P[0]}, {LOG2E | 0x80000000}, {P[0]}"]
        self.allreduce(A, "v_max_u32", [t0], 64, fill)
        A(f"v_exp_f32 {u0}, {P[0]}\nv_cos_f32 {W[1][0]}, {u1}\nv_sin_f32 {W[1][1]}, {u1}")
        A(f"""
        v_lshrrev_b32 {t0}, 7, {t0}
        v_mul_f32 {W[1][0]}, {W[1][0]}, {u0}
        v_mul_f32 {W[1][1]}, {W[1][1]}, {u0}
        v_max_u32 {t0}, 8, {t0}
        v_lshrrev_b32 {t1}, 23, {dt}
        v_add_u32 {t1}, {t1}, {t0}
        v_subrev_u32 {t1}, 127, {t1}
        v_max_i32 {t1}, 0, {t1}
        v_min_i32 {t1}, 254, {t1}
        v_lshlrev_b32 {self.vG16}, 23, {t1}
        v_sub_u32 {t0}, 259, {t0}
        v_and_b32 {dt}, 0x007fffff, {dt}
        v_lshl_or_b32 {dt}, {t0}, 23, {dt}
        """)
        L, M, Rr, T = V.get(2), V.get(2), V.get(2), V.get(2)
        for p, mul in ((16, 0x41800000), (256, 0x43800000)):
            w = W[p]
            A(f"v_mul_f32 {u0}, {mul}, {P[0]}\nv_mul_f32 {u1}, {mul}, {P[1]}")
            A(f"v_exp_f32 {u0}, {u0}\nv_fract_f32 {u1}, {u1}")
            A(f"v_cos_f32 {w[0]}, {u1}\nv_sin_f32 {w[1]}, {u1}")
            A(f"v_mul_f32 {L[p // 256]}, {P[2 + p // 256]}, {dt}")
            A(f"v_mul_f32 {w[0]}, {w[0]}, {u0}\nv_mul_f32 {w[1]}, {w[1]}, {u0}")
        V.put(u0, u1, t1, dt, P)
        self.stamp("ws")
        NB_ = self.o["recb"]
        pk = [V.get() for _ in range(2 * NB_)]
        cnt = [0]
        queue = []
        A(f"s_mov_b32 m0, {self.sStM}")

        def cmul(d, a, b):
            A(f"v_pk_mul_f32 {T}, {a}, {b} op_sel_hi:[0,1]")
            A(f"v_pk_fma_f32 {d}, {a}, {b}, {T} op_sel:[1,1,0] op_sel_hi:[1,0,1] neg_lo:[0,1,0]")

        def flush_q():
            for row, r in queue:
                A(f"ds_write_addtid_b32 {r} offset:{32768 + row * ROWB}")
            queue.clear()

        def put(row, v, conj=False):
            r = pk[cnt[0] % (2 * NB_)]
            cnt[0] += 1
            A(f"v_cvt_pk_f16_f32 {r}, {v[0]}, {'-' if conj else ''}{v[1]}")
            queue.append((row, r))
            if len(queue) == NB_:
                flush_q()

        A(f"v_mov_b32 {t0}, 0x3c00")
        queue.append((0, t0))
        yield
        put(1, W[16], conj=True)
        cmul(Rr, W[16], W[16])
        put(2, Rr, conj=True)
        for j in range(3, 16):
            yield
            cmul(Rr, Rr, W[16])
            put(j, Rr, conj=True)
        self.stamp("recR")
        for al in range(17):
            yield
            if al:
                cmul(L, L, W[1])
            if al < 16:
                put(16 + al, L)
            if al % 2 == 0:
                yield
                cmul(M, L, W[256])
                put(32 + al // 2, M)
                if al and al % 4 == 0:
                    for a in range(2):
                        yield
                        cmul(M, M, W[256])
                        put(41 + 4 * a + al // 4 - 1, M)
                    if al % 8 == 0:
                        for a in range(4):
                            yield
                            cmul(M, M, W[256])
                            put(49 + 2 * a + al // 8 - 1, M)
            if al == 8:
                self.maybe_s1("rec1")
        flush_q()
        V.put(L, M, Rr, T, *pk, *W.values(), t0)

    def kgen(self):
        A, V = self.A, self.V
        V.put(*self.G)
        for _ in self.ksteps:
            pass
        self.stamp("rec")
        self.maybe_s1("rec2")
        A.barrier()
        self.stamp("b2")
        NB = 4
        Bb = [V.get(4) for _ in range(NB)]
        A1 = [V.get(4) for _ in range(NB)]
        A2 = [V.get(4) for _ in range(NB)]
        D1, D2 = V.get(4), V.get(4)

        def rd(q):
            A(f"ds_read_b128 {Bb[q % NB]}, {self.vBm} offset:{64 * q}")
            A(f"ds_read_b128 {A1[q % NB]}, {self.vA1} offset:{64 * q}")
            A(f"ds_read_b128 {A2[q % NB]}, {self.vA2} offset:{64 * q}")
        for q in range(NB):
            rd(q)
        for q in range(8):
            A(f"v_mfma_f32_16x16x32_f16 {D1}, {A1[q % NB]}, {Bb[q % NB]}, {D1 if q else 0}")
            A(f"v_mfma_f32_16x16x32_f16 {D2}, {A2[q % NB]}, {Bb[q % NB]}, {D2 if q else 0}")
            if q + NB < 8:
                rd(q + NB)
        self.maybe_s1("mfma")
        self.stamp("kmf0")
        K1, K2 = V.get(2), V.get(2)
        A(f"s_cmp_eq_u32 {self.sH}, 0\ns_cselect_b32 s3, 63, 55\ns_cselect_b32 s16, 4, 2")
        t0 = V.get()
        A(f"v_add_u32 {t0}, s16, {self.vKs}")
        A(f"v_cvt_pk_f16_f32 {K1[0]}, {D1[0]}, {D1[1]}\nv_cvt_pk_f16_f32 {K1[1]}, {D1[2]}, {D1[3]}")
        A(f"v_cvt_pk_f16_f32 {K2[0]}, {D2[0]}, {D2[1]}\nv_cvt_pk_f16_f32 {K2[1]}, {D2[2]}, {D2[3]}")
        A(f"ds_write_b64 {self.vK1}, {K1}\nds_write_b64 {self.vK2}, {K2}")
        A("s_mov_b64 exec, 0\ns_bitset1_b64 exec, s3")
        A(f"ds_write_b16 {self.vKs}, {K2[0]}\nds_write_b16 {self.vKs}, {K2[0]} offset:2\nds_write_b16 {t0}, {K2[0]}")
        A("s_mov_b64 exec, -1")
        V.put(*Bb, *A1, *A2, D1, D2, self.vA1, self.vA2, self.vBm, self.vK1, self.vK2, self.vKs, t0)
        A.barrier()
        V.put(K1, K2)
        self.stamp("kmf")
        self.maybe_s1("shift")
        D, C1, C2, C3 = V.get(6), V.get(4), V.get(4), V.get(4)
        A(f"ds_read_b128 {D[0:4]}, {self.vShift} offset:{L_K}\nds_read_b64 {D[4:6]}, {self.vShift} offset:{L_K + 16}")
        for k in range(4):
            A(f"v_alignbit_b32 {C1[k]}, {D[k + 1]}, {D[k]}, 16")
        A(f"ds_write_b128 {self.vShift}, {C1} offset:{L_K + KCOPY}")
        for k in range(4):
            A(f"v_mov_b32 {C2[k]}, {D[k + 1]}")
        A(f"ds_write_b128 {self.vShift}, {C2} offset:{L_K + 2 * KCOPY}")
        for k in range(4):
            A(f"v_alignbit_b32 {C3[k]}, {D[k + 2]}, {D[k + 1]}, 16")
        A(f"ds_write_b128 {self.vShift}, {C3} offset:{L_K + 3 * KCOPY}")
        if not self.o["frag_in"]:
            A.barrier()
        self.shift_regs = (D, C1, C2, C3, self.vShift)
        self.stamp("shift")
        self.maybe_s1("frag")
        AC = self.AC
        self.KN = [AC.get(4, 4) for _ in range(17)]
        self.KX = AC.get(4, 4)
        self.B2 = {(k, d): AC.get(4, 4) for k in range(2) for d in (2, 3, 4)}
        self.B3 = {d: AC.get(4, 4) for d in (4, 5, 6, 7)}
        rd = {}
        for q in range(17):
            rd[str(self.KN[q])] = [f"ds_read_b64 {self.KN[q][2 * hf:2 * hf + 2]}, {self.vN} offset:{64 * (16 - q) + 8 * hf}" for hf in range(2)]
        rd[str(self.KX)] = [f"ds_read_b64 {self.KX[2 * hf:2 * hf + 2]}, {self.vN} offset:{2 * NX + 8 * hf}" for hf in range(2)]
        for (k, d), r in self.B2.items():
            rd[str(r)] = [f"ds_read_b64 {r[2 * hf:2 * hf + 2]}, {self.vF} offset:{2 * (V2[2 * k + hf] + 32 - 16 * (d - 2))}" for hf in range(2)]
        for d, r in self.B3.items():
            rd[str(r)] = [f"ds_read_b64 {r[2 * hf:2 * hf + 2]}, {self.vF} offset:{2 * (V3[hf] + 48 - 16 * (d - 4))}" for hf in range(2)]
        self.frag_reads = {}
        if self.o["frag_in"]:
            self.frag_reads = rd
        else:
            for v in rd.values():
                A("\n".join(v))
        self.maybe_s1("end")
        self.stamp("frag")

    def s1_consume(self, A, sfx):
        V = self.V
        UG = self.UG
        t0, t1 = V.get(), V.get()

        def check(C):
            for k in range(8):
                C(f"v_xor_b32 {UG[k]}, {self.sTag}, {UG[k]}")
            C(f"v_or3_b32 {t0}, {UG[0]}, {UG[1]}, {UG[2]}\nv_or3_b32 {t1}, {UG[3]}, {UG[4]}, {UG[5]}")
            C(f"v_or3_b32 {t0}, {t0}, {UG[6]}, {UG[7]}\nv_or_b32 {t0}, {t0}, {t1}")
            C(f"v_and_b32 {t0}, {TAGMASK}, {t0}\nv_cmp_ne_u32 vcc, 0, {t0}")
        self.poll(A, "s1" + sfx, self.s1_loads, check)
        self.stamp("s1w", A)
        self.warm("s1w", A)
        A(f"ds_write_b128 {self.vUw}, {UG[0:4]} offset:{L_U + 512}")
        A(f"ds_write_b128 {self.vUw}, {UG[4:8]} offset:{L_U + 512 + 2048}")
        self.stamp("s1", A)
        A.barrier()
        self.stamp("b5", A)
        V.put(t0, t1, *self.shift_regs)

    def conv(self, A, tiles, dma):
        V, AC = self.V, self.AC
        acc = {j: V.get(4) for j in tiles}
        NF, NG, NW, NP = self.o["nf"], self.o["ng"], 6, 6
        PE, PD, NPRE = self.o["pe"], self.o["pd"], self.o["npre"]
        Fb = [AC.get(4, 4) for _ in range(NF)]
        Gb = [AC.get(4, 4) for _ in range(NG)]
        Wb = [V.get(4) for _ in range(NW)]
        Pb = [V.get(4) for _ in range(NP)]
        EU = [V.get(2) for _ in range(2)]
        ED = [V.get(4) for _ in range(2)]
        EY, EZ = V.get(4), V.get(2)
        qmax = {0: 7, 1: 15}
        b2 = sorted({j - d for j in tiles for d in (2, 3, 4) if j - d >= 0})
        b3 = sorted({j - d for j in tiles for d in (4, 5, 6, 7) if j - d >= 0})
        nlo = min(8 * j - qmax.get(j, 16) for j in tiles)
        nhi = 8 * max(tiles)
        near = []
        for fi, n in enumerate(range(nlo, nhi + 1)):
            for j in tiles:
                q = 8 * j - n
                if 0 <= q <= qmax.get(j, 16):
                    near.append((j, self.KN[q], fi, q == 0))
        far = []
        gfr, pcount = [], 0
        for b in sorted(set(b2) | set(b3)):
            ga, gb = len(gfr), len(gfr) + 1
            gfr += [256 * b - 16, 256 * b - 24]
            mains = []
            if b in b2:
                pa, pb = pcount, pcount + 1
                pcount += 2
                far += [("band", ga, (12, 1), pa, 0), ("band", ga, (8, 2), pa, 1), ("band", gb, (12, 1), pb, 0), ("band", gb, (8, 2), pb, 1)]
                mains += [("main", b + d, pa, self.B2[(0, d)]) for d in (2, 3, 4) if b + d in tiles]
                mains += [("main", b + d, pb, self.B2[(1, d)]) for d in (2, 3, 4) if b + d in tiles]
            if b in b3:
                pc = pcount
                pcount += 1
                far += [("band", ga, (8, 3), pc, 0), ("band", gb, (8, 4), pc, 1)]
                mains += [("main", b + d, pc, self.B3[d]) for d in (4, 5, 6, 7) if b + d in tiles]
            if b + 4 in tiles:
                far.append(("x", b + 4, ga))
            far += mains
        LAT = 5
        mf, fill = [], []
        started, done_at = set(), {}
        fuse, guse, plast, pready = {}, {}, {}, {}
        wcount = 0
        ni = 0
        farleft = list(far)
        span = self.o["far_span"][0 if 0 in tiles else 1]
        credit = 0.0

        def acc_mf(j, a, b):
            mf.append(f"v_mfma_f32_16x16x32_f16 {acc[j]}, {a}, {b}, {acc[j] if j in started else 0}")
            started.add(j)

        def far_ok(it):
            t = len(mf)
            if it[0] == "main":
                return pready.get(it[2], 10 ** 6) <= t
            if it[0] == "band":
                prev = it[3] - NP
                return prev < 0 or not any(o[0] == "main" and o[2] == prev for o in farleft)
            return True

        while ni < len(near) or farleft:
            t = len(mf)
            want_far = farleft and (credit >= 1.0 or ni >= len(near))
            if ni < len(near) and near[ni][3] and any(o[0] in ("main", "x") and o[1] == near[ni][0] for o in farleft):
                want_far = True
            pick = None
            if want_far:
                for it in farleft[:8]:
                    if far_ok(it):
                        if it[0] == "band" and any(o[0] == "band" for o in farleft[:farleft.index(it)]):
                            continue
                        pick = it
                        break
            if pick is None and ni < len(near) and not (near[ni][3] and any(o[0] in ("main", "x") and o[1] == near[ni][0] for o in farleft)):
                j, a, fi, last = near[ni]
                ni += 1
                acc_mf(j, a, Fb[fi % NF])
                fuse.setdefault(fi, [t, t])[1] = t
                if last:
                    done_at[j] = t
                credit += len(far) / span
                continue
            assert pick is not None, "conv schedule is stuck"
            farleft.remove(pick)
            credit -= 1.0
            if pick[0] == "band":
                _, g, key, p, hf = pick
                w = Wb[wcount % NW]
                wcount += 1
                mf.append(f"v_mfma_f32_16x16x32_f16 {w}, {Gb[g % NG]}, {self.BAND[key]}, 0")
                guse.setdefault(g, [t, t])[1] = t
                for k in range(2):
                    fill.append([t + 3, t + LAT - 1, f"v_cvt_pk_f16_f32 {Pb[p % NP][2 * hf + k]}, {w[2 * k]}, {w[2 * k + 1]}", None])
                if hf == 1:
                    pready[p] = t + LAT
            elif pick[0] == "x":
                acc_mf(pick[1], self.KX, Gb[pick[2] % NG])
                guse.setdefault(pick[2], [t, t])[1] = t
            else:
                acc_mf(pick[1], Pb[pick[2] % NP], pick[3])
        nm = len(mf)
        pre = []
        reads = []
        for fi in sorted(fuse):
            txt = f"ds_read_b128 {Fb[fi % NF]}, {self.vUf} offset:{512 + 2 * (32 * (nlo + fi) - 16)}"
            reads.append((fuse[fi][0], fuse[fi - NF][1] if fi >= NF else -1, txt))
        for g in sorted(guse):
            txt = f"ds_read_b128 {Gb[g % NG]}, {self.vUf} offset:{512 + 2 * gfr[g]}"
            reads.append((guse[g][0], guse[g - NG][1] if g >= NG else -1, txt))
        seen = set()
        for t, txt in enumerate(mf):
            for name, two in self.frag_reads.items():
                if name not in seen and f" {name}," in txt:
                    seen.add(name)
                    reads += [(t, -1, two[0]), (t, -1, two[1])]
        reads.sort(key=lambda r: r[0])
        for first, free, txt in reads:
            if free < 0 and first <= NPRE:
                pre.append(txt)
            else:
                assert free < first
                fill.append([max(free, first - PE, 0), max(free, first - PD, 0), txt, None])
        order_t = sorted(tiles, key=lambda j: done_at[j])
        for k, j in enumerate(order_t):
            eu, ed = EU[k % 2], ED[k % 2]
            t = done_at[j]
            nxt = done_at[order_t[k + 1]] if k + 1 < len(order_t) else nm + 100
            e0 = 2 if k < 2 else done_at[order_t[k - 2]] + 12
            assert e0 + 4 <= t + 2
            fill.append([e0, max(e0, t - 8), f"ds_read_b64 {eu}, {self.vUe} offset:{512 + 512 * j}", f"e1_{j}"])
            for r in range(4):
                fill.append([e0 + 4, t + 2, f"v_fma_mix_f32 {ed[r]}, {eu[r // 2]}, {self.vD16}, 0 op_sel:[{r % 2},0,0] op_sel_hi:[1,0,0]", f"e1_{j}"])
            for r in range(4):
                fill.append([e0 + 4, t + 2, f"v_cvt_pk_bf16_f32 {ed[r]}, 0, {ed[r]}", f"e1_{j}"])
            seq2 = [f"v_cvt_pk_bf16_f32 {EY[r]}, 0, {acc[j][r]}" for r in range(4)]
            seq2 += [f"v_fma_f32 {EY[r]}, {EY[r]}, {self.vG16}, {ed[r]}" for r in range(4)]
            seq2 += [f"v_cvt_pk_bf16_f32 {EZ[r]}, {EY[2 * r]}, {EY[2 * r + 1]}" for r in range(2)]
            seq2.append(f"ds_write_b64 {self.vZw}, {EZ} offset:{L_Z + 1024 * j}")
            for txt in seq2:
                fill.append([t + 3, min(t + 11, nxt + 2), txt, f"e2_{j}"])
        if self.o["warm_at"] == "conv" and self.o["dma_at"] != "none":
            ws = self.o["warm_slot"]
            fill.append([ws, ws, ("s_nop 0", f"global_load_dword {self.vJunk[1]}, {self.vWm}, {self.sWm} {self.o['w_pol']}"), "warm"])
        step = (nm - 6) // max(len(dma), 1)
        for k, grp in enumerate(dma):
            fill.append([1 + k * step, 3 + k * step, grp, "dma"])
        for txt in pre:
            A(txt)
        for i, f in enumerate(fill):
            f.append(i)
        left = list(fill)
        A.prewait([mf[0]])
        for t in range(nm):
            A(mf[t])
            chosen = []
            for f in sorted([f for f in left if f[0] <= t], key=lambda f: (f[1], f[4])):
                if len(chosen) >= 2 and f[1] > t:
                    break
                if f[3] and any(g[3] == f[3] and g[4] < f[4] and g not in chosen for g in left):
                    continue
                mem = isinstance(f[2], tuple) or f[2].startswith("ds_")
                if mem and f[1] > t and any(g[3] == f[3] and f[3] for g in chosen):
                    continue
                chosen.append(f)
            memf = [f for f in chosen if (isinstance(f[2], tuple) or f[2].startswith("ds_")) and not any(g[3] == f[3] and f[3] and g[4] < f[4] for g in chosen)]
            rest = [f for f in chosen if f not in memf]
            A.prewait([f[2] for f in chosen if not isinstance(f[2], tuple)] + ([mf[t + 1]] if t + 1 < nm else []))
            for f in memf + rest:
                if isinstance(f[2], tuple):
                    A(f[2][0])
                    A(f[2][1], tag="dma")
                else:
                    A(f[2])
                left.remove(f)
        for f in sorted(left, key=lambda f: (f[1], f[4])):
            A(f[2])
        self.nmfma = getattr(self, "nmfma", []) + [nm]
        V.put(*acc.values(), *Wb, *Pb, *EU, *ED, EY, EZ)
        AC.put(*Fb, *Gb)

    def dma_plan(self, A, role):
        V = self.V
        vL, sW = self.vL, self.sW
        t0, t1 = V.get(), V.get()
        self.vWa = V.get()
        if role == 0:
            A(f"""
            s_lshl_b32 {self.sWb}, {sW}, 13
            s_add_u32 {self.sWb}, {self.sWb}, {L_STAGE}
            s_lshl_b32 s3, {sW}, 7
            v_lshrrev_b32 {t0}, 2, {vL}
            v_add_u32 {t0}, s3, {t0}
            v_mul_u32_u24 {t0}, 3584, {t0}
            v_and_b32 {t1}, 3, {vL}
            v_lshl_add_u32 {t0}, {t1}, 4, {t0}
            s_lshl_b32 s3, {self.sBlk}, 6
            v_add_u32 {self.vWa}, s3, {t0}
            s_cmp_eq_u32 {self.sUp}, 0
            s_cselect_b32 s4, s22, s24
            s_cselect_b32 s5, s23, s25
            """)
            n, step = 8, 16 * 3584
        else:
            A(f"""
            s_mul_i32 {self.sWb}, {sW}, 14336
            s_add_u32 {self.sWb}, {self.sWb}, {L_STAGE}
            s_mul_i32 s3, {sW}, 448
            v_lshrrev_b32 {t0}, 1, {vL}
            v_add_u32 {t0}, s3, {t0}
            v_lshlrev_b32 {t0}, 10, {t0}
            v_and_b32 {t1}, 1, {vL}
            v_lshl_add_u32 {t0}, {t1}, 4, {t0}
            s_lshl_b32 s3, {self.sBlk}, 5
            v_add_u32 {self.vWa}, s3, {t0}
            s_mov_b64 s[4:5], s[26:27]
            """)
            n, step = 14, 0x8000
        V.put(t0, t1)
        return [(f"s_add_u32 m0, {self.sWb}, {m * 1024}" + (f"\ns_add_u32 s4, s4, {step}\ns_addc_u32 s5, s5, 0" if m else ""),
                 f"global_load_lds_dwordx4 {self.vWa}, s[4:5]") for m in range(n)]

    def warm_addr(self):
        A, V = self.A, self.V
        t0, t1 = V.get(), V.get()
        self.vWm, self.sWm = V.get(), self.S.get(2)
        A(f"""
        s_lshr_b32 s3, {self.sL}, 5
        s_and_b32 s16, {self.sL}, 31
        s_mul_i32 s17, s16, {16 * 3584}
        s_mul_i32 s18, s3, 448
        s_add_u32 s17, s17, s18
        v_lshrrev_b32 {t0}, 2, {self.vL}
        v_and_b32 {t1}, 3, v0
        v_mul_u32_u24 {t0}, 3584, {t0}
        v_lshl_add_u32 {t0}, {t1}, 7, {t0}
        v_add_u32 {t0}, s17, {t0}
        s_mul_i32 s17, s16, {56 * 1024}
        s_lshl_b32 s3, s3, 7
        s_add_u32 s17, s17, s3
        s_and_b32 s3, {self.sW}, 1
        s_mul_i32 s3, s3, {28 * 1024}
        s_add_u32 s17, s17, s3
        v_min_u32 {t1}, 27, {self.vL}
        v_lshl_add_u32 {t1}, {t1}, 10, s17
        s_cmp_eq_u32 {self.sW}, 0
        s_cselect_b32 s18, s22, s24
        s_cselect_b32 s19, s23, s25
        s_cmp_lt_u32 {self.sW}, 2
        s_cselect_b32 {self.sWm[0]}, s18, s26
        s_cselect_b32 {self.sWm[1]}, s19, s27
        s_cselect_b64 vcc, -1, 0
        v_cndmask_b32 {self.vWm}, {t1}, {t0}, vcc
        """)
        V.put(t0, t1)

    def warm(self, where, A=None):
        if self.o["warm_at"] == where and self.o["dma_at"] != "none":
            (A or self.A)(f"global_load_dword {self.vJunk[1]}, {self.vWm}, {self.sWm} {self.o['w_pol']}")

    def conv_all(self):
        A = self.A
        self.s1_consume(A, "")
        A(f"s_cmp_eq_u32 {self.sH}, 0\ns_cbranch_scc0 L_conv_b")
        B = A.fork()
        self.conv(A, [0, 1, 2, 3, 4], [])
        A.wait(lg=0)
        A.flush()
        A("s_branch L_conv_done")
        B.label("L_conv_b")
        self.conv(B, [5, 6, 7], [])
        B.wait(lg=0)
        B.flush()
        A.lines += B.lines
        A.count += B.count
        A.nops += B.nops
        A.label("L_conv_done")
        self.V.put(self.vWm)
        self.V.put(*self.BAND.values(), self.vUf, self.vUe, self.vZw, self.vG16, self.vD16, self.UG, self.vUw,
                   self.vS1i, self.vS1i2, self.vN, self.vF)
        self.AC.put(*self.KN, self.KX, *self.B2.values(), *self.B3.values())
        self.stamp("conv", A)
        A("s_barrier")
        self.stamp("b6", A)
        self.ZT = ZT = self.V.get(8)
        A(f"ds_read_b128 {ZT[0:4]}, {self.vZr} offset:{L_Z}\nds_read_b128 {ZT[4:8]}, {self.vZr} offset:{L_Z + 4096}")
        A(f"global_store_dwordx4 {self.vS2o}, {ZT[0:4]}, s[30:31] sc1", tag="s2st")
        A(f"global_store_dwordx4 {self.vS2o2}, {ZT[4:8]}, s[30:31] sc1", tag="s2st")
        self.stamp("st2", A)
        self.V.put(self.vZr, self.vS2o, self.vS2o2)

    def poison_check(self, regs, t0):
        def chk(C):
            r = list(regs)
            if len(r) == 1:
                C(f"v_cmp_eq_u32 vcc, -1, {r[0]}")
                return
            C(f"v_max3_u32 {t0}, {r[0]}, {r[1]}, {r[2] if len(r) > 2 else r[1]}")
            r = r[3:]
            while r:
                C(f"v_max3_u32 {t0}, {t0}, {r[0]}, {r[1] if len(r) > 1 else r[0]}")
                r = r[2:]
            C(f"v_cmp_eq_u32 vcc, -1, {t0}")
        return chk

    def phase_c(self):
        A, V = self.A, self.V
        vL, vI, vG, sL, sW = self.vL, self.vI, self.vG, self.sL, self.sW
        get = V.get
        self.t = t0, t1, t2 = get(), get(), get()
        vSW, vKw, vS3o, vRo = get(), get(), get(), get()
        self.vS3i = get()
        vHr = self.vHr
        XL, XH = get(8), get(8)
        for j in range(8):
            A(f"v_lshlrev_b32 {XL[j]}, 16, {self.XA[j]}")
            A(f"v_and_b32 {XH[j]}, 0xffff0000, {self.XA[j]}")
        for k in range(8):
            A(f"v_dot2_f32_bf16 {vSW}, {self.WR[k]}, {self.sOnes}, {vSW if k else 0}")
        self.allreduce(A, "v_add_f32", [vSW], 32)
        A(f"""
        v_and_b32 {t0}, 31, v0
        v_lshlrev_b32 {t0}, 4, {t0}
        v_lshlrev_b32 {vKw}, 2, {self.vTau}
        s_lshl_b32 s3, {sW}, 13
        s_lshl_b32 s16, {sL}, 4
        s_add_u32 s3, s3, s16
        s_add_u32 s3, s3, {WS_S3}
        v_lshl_add_u32 {vS3o}, {vL}, 12, s3
        s_lshr_b32 s3, {sL}, 5
        s_lshl_b32 s3, s3, 12
        s_add_u32 s16, s3, {WS_S3}
        v_lshl_add_u32 {self.vS3i}, v0, 4, s16
        s_lshl_b32 s16, {sL}, 11
        s_add_u32 s16, s16, {WS_ROWS}
        v_add_u32 {vRo}, s16, {t0}
        s_lshl_b32 s3, {sL}, 3
        s_sub_u32 s3, 2047, s3
        v_sub_u32 {t2}, s3, {self.vTau}
        v_mov_b32 {t1}, 0
        """)
        self.stamp("dma", A)
        A.wait(vm=0)
        self.stamp("ack2", A)
        ZT = self.ZT

        def s2_loads(C):
            C(f"global_load_dwordx4 {ZT[0:4]}, {self.vS2i}, s[30:31] sc1")
            C(f"global_load_dwordx4 {ZT[4:8]}, {self.vS2i2}, s[30:31] sc1")
        s2_loads(A)
        self.poll(A, "s2", s2_loads, self.poison_check([ZT[k] for k in range(8)], t0))
        self.stamp("s2", A)
        HP = get(8)
        self.T = T = get(8)
        for grp in range(2):
            for jj in range(4):
                j = 4 * grp + jj
                sel = self.sHi if j % 2 else self.sLo
                A(f"v_dot2_f32_bf16 {T[2 * jj]}, {ZT[j // 2]}, {sel}, {XL[j]}")
                A(f"v_dot2_f32_bf16 {T[2 * jj + 1]}, {ZT[4 + j // 2]}, {sel}, {XH[j]}")
            for jj in range(4):
                A(f"v_cvt_pk_bf16_f32 {HP[4 * grp + jj]}, {T[2 * jj]}, {T[2 * jj + 1]}")
            for q in range(2):
                j = 4 * grp + 2 * q
                A(f"ds_write2st64_b32 {self.vHw2}, {HP[j]}, {HP[j + 1]} offset0:{4 * j} offset1:{4 * j + 4}")
        self.stamp("hw", A)
        A.barrier()
        self.stamp("b7", A)
        V.put(XL, XH, HP, ZT, self.vS2i, self.vS2i2, self.XA)
        HB = get(8)
        A(f"ds_read_b128 {HB[0:4]}, {vHr} offset:{L_H}\nds_read_b128 {HB[4:8]}, {vHr} offset:{L_H + 512}")
        s1, s2, s3, NM, RS = get(), get(), get(), get(2), get(2)
        self.key = key = get()
        for k in range(8):
            A(f"v_dot2_f32_bf16 {s1}, {HB[k]}, {self.sOnes}, {s1 if k else 0}")
            A(f"v_dot2_f32_bf16 {s2}, {HB[k]}, {HB[k]}, {s2 if k else 0}")
            A(f"v_dot2_f32_bf16 {s3}, {HB[k]}, {self.WR[k]}, {s3 if k else 0}")
        self.allreduce(A, "v_add_f32", [s1, s2, s3], 32)
        self.ln_stats(A, s1, s2, NM[0], RS[0])
        A(f"v_fma_f32 {s3}, {NM[0]}, {vSW}, {s3}\nv_mul_f32 {s3}, {s3}, {RS[0]}")
        self.rnd(A, s3, s3)
        A(f"""
        v_ashrrev_i32 {t0}, 31, {s3}
        v_or_b32 {t0}, 0x80000000, {t0}
        v_xor_b32 {t0}, {s3}, {t0}
        v_and_b32 {t0}, 0xffff0000, {t0}
        v_or_b32 {key}, {t0}, {t2}
        s_mov_b64 exec, 1
        s_bitset1_b64 exec, 32
        ds_write_b32 {vKw}, {key} offset:{L_KEY}
        s_mov_b64 exec, -1
        """)
        self.stamp("key", A)
        H32 = get(16)
        for k in range(8):
            A(f"v_lshlrev_b32 {H32[2 * k]}, 16, {HB[k]}\nv_and_b32 {H32[2 * k + 1]}, 0xffff0000, {HB[k]}")
        A.barrier()
        self.kmax = kmax = get()
        A(f"ds_read_b128 {T[0:4]}, {t1} offset:{L_KEY}\nds_read_b128 {T[4:8]}, {t1} offset:{L_KEY + 16}")
        HN = get(8)
        self.D = D = get(32)
        A(f"v_mov_b32 {NM[1]}, {NM[0]}\nv_mov_b32 {RS[1]}, {RS[0]}")
        for k in range(8):
            A(f"v_pk_add_f32 {D[2 * k:2 * k + 2]}, {H32[2 * k:2 * k + 2]}, {NM}")
        A(f"v_max3_u32 {kmax}, {T[0]}, {T[1]}, {T[2]}\nv_max3_u32 {t0}, {T[3]}, {T[4]}, {T[5]}")
        A(f"v_max3_u32 {kmax}, {kmax}, {T[6]}, {T[7]}\nv_max_u32 {kmax}, {kmax}, {t0}")
        A("s_mov_b64 exec, 3")
        A(f"global_store_dword {vS3o}, {kmax}, s[30:31] sc1", tag="s3st")
        A("s_mov_b64 exec, -1")
        self.stamp("pub3", A)
        sC = self.sC
        A(f"v_cmp_eq_u32 {sC}, {key}, {kmax}")
        for k in range(16):
            self.rnd(A, D[k], D[k])
        for k in range(8):
            A(f"v_pk_mul_f32 {D[2 * k:2 * k + 2]}, {D[2 * k:2 * k + 2]}, {RS}")
        for k in range(8):
            A(f"v_cvt_pk_bf16_f32 {HN[k]}, {D[2 * k]}, {D[2 * k + 1]}")
        A(f"s_mov_b64 exec, {sC}")
        A(f"global_store_dwordx4 {vRo}, {HN[0:4]}, s[30:31] sc1", tag="rowst")
        A(f"global_store_dwordx4 {vRo}, {HN[4:8]}, s[30:31] offset:512 sc1", tag="rowst")
        A(f"global_store_dwordx4 {vRo}, {HB[0:4]}, s[30:31] offset:1024 sc1", tag="rowst")
        A(f"global_store_dwordx4 {vRo}, {HB[4:8]}, s[30:31] offset:1536 sc1", tag="rowst")
        A("s_mov_b64 exec, -1")
        self.stamp("hn", A)
        self.O = O = get(8)
        for k in range(8):
            A(f"v_dot2_f32_bf16 {D[2 * k]}, {HN[k]}, {self.sLo}, {H32[2 * k]}")
            A(f"v_dot2_f32_bf16 {D[2 * k + 1]}, {HN[k]}, {self.sHi}, {H32[2 * k + 1]}")
        for k in range(8):
            A(f"v_cvt_pk_bf16_f32 {O[k]}, {D[2 * k]}, {D[2 * k + 1]}")
        self.stamp("outc", A)
        V.put(H32, s1, s2, s3, NM, RS, vSW, vKw, vS3o, vRo, self.WR)

    def out_stores(self, C):
        pol = self.o["out_pol"]
        C(f"global_store_dwordx4 {self.vRow}, {self.O[0:4]}, s[28:29] {pol}", tag="out")
        C(f"global_store_dwordx4 {self.vRow}, {self.O[4:8]}, s[28:29] offset:512 {pol}", tag="out")

    def resolve(self, A, sfx, between=None):
        t0, t1, t2 = self.t
        T, kin = self.T, self.kin

        def s3_loads(C):
            C(f"global_load_dword {kin}, {self.vS3i}, s[30:31] sc1")
        s3_loads(A)
        if between:
            between()
        A(f"v_lshrrev_b32 {t1}, 4, v0\nv_and_b32 {t1}, 12, {t1}\nv_mov_b32 {t2}, 0")
        self.poll(A, "s3" + sfx, s3_loads, self.poison_check([kin], t0))
        self.stamp("s3p", A)
        self.allreduce(A, "v_max_u32", [kin], 64)
        self.stamp("s3w", A)
        A(f"s_mov_b64 exec, 1\nds_write_b32 {t1}, {kin} offset:{L_KEY2}\ns_mov_b64 exec, -1")
        A.barrier()
        A(f"ds_read_b128 {T[0:4]}, {t2} offset:{L_KEY2}")
        A(f"v_max3_u32 {kin}, {T[0]}, {T[1]}, {T[2]}\nv_max_u32 {kin}, {kin}, {T[3]}")
        A(f"v_readfirstlane_b32 {self.sK}, {kin}")
        A(f"s_and_b32 {self.sT}, {self.sK}, 0x7ff\ns_sub_u32 {self.sT}, 2047, {self.sT}")
        self.stamp("s3", A)
        A(f"s_lshr_b32 s3, {self.sT}, 3\ns_lshl_b32 s3, s3, 11\ns_add_u32 s3, s3, {WS_ROWS}")

    def finish(self, A, sfx):
        A.flush()
        A.label(f"L_fin_{sfx}")
        if self.o["stamps"]:
            A.wait(vm=0)
            self.stamp("end", A)
            if self.o["clk"]:
                A("s_memtime s[96:97]")
                A.wait(lg=0)
                A("s_sub_u32 s100, s96, s100\ns_mov_b32 s101, 0")
            A("s_waitcnt vmcnt(0) lgkmcnt(0)")
            self.dump_stamps(A)
        A("s_endpgm")

    def tail0(self, A):
        V = self.V
        get = V.get
        vL, vI, vG, sL, sW, sC = self.vL, self.vI, self.vG, self.sL, self.sW, self.sC
        t0, t1, t2 = self.t
        T, D = self.T, self.D
        vTr, vRed, vXs, vPub, vRd = get(), get(), get(), get(), get()
        WT = [self.AC.get(4, 4) for _ in range(8)]
        plan = self.dma_plan(A, 0)
        for a, b in plan if self.o["dma_at"] != "none" else []:
            A(a)
            A(b, tag="dma")
        A(f"""
        v_and_b32 {t0}, 3, {vI}
        v_lshlrev_b32 {t0}, 3, {t0}
        v_lshrrev_b32 {t1}, 2, {vI}
        v_lshl_add_u32 {t1}, {vG}, 3, {t1}
        v_lshl_add_u32 {t0}, {t1}, 6, {t0}
        v_add_u32 {vTr}, {self.sWb}, {t0}
        """)

        def tr_reads():
            A.wait_tag("dma")
            for ct in range(2):
                for m in range(4):
                    for e2 in range(2):
                        A(f"ds_read_b64_tr_b16 {WT[4 * ct + m][2 * e2:2 * e2 + 2]}, {vTr} offset:{(32 * m + 4 * e2) * 64 + 32 * ct}")
        A(f"""
        s_lshl_b32 s3, {sW}, 2
        v_lshl_add_u32 {vRed}, {vI}, 4, s3
        v_and_b32 {t0}, 3, {vI}
        v_lshlrev_b32 {t0}, 6, {t0}
        v_lshl_add_u32 {t0}, {vG}, 4, {t0}
        s_lshl_b32 s3, {sW}, 8
        v_add_u32 {vXs}, s3, {t0}
        v_and_b32 {t0}, 31, {vL}
        v_lshlrev_b32 {vRd}, 4, {t0}
        v_lshrrev_b32 {t1}, 5, {vL}
        v_lshlrev_b32 {t1}, 13, {t1}
        v_lshl_add_u32 {t1}, {t0}, 1, {t1}
        s_lshl_b32 s3, {sW}, 14
        s_lshl_b32 s16, {self.sUp}, 12
        s_add_u32 s3, s3, s16
        s_lshl_b32 s16, {self.sBlk}, 6
        s_add_u32 s3, s3, s16
        s_add_u32 s3, s3, {WS_S4}
        v_add_u32 {vPub}, s3, {t1}
        """)
        A.wait_tag("s3st")
        self.stamp("ack3", A)

        def between():
            A(f"s_andn2_b64 exec, -1, {sC}")
            self.out_stores(A)
            A("s_mov_b64 exec, -1")
            tr_reads()
        self.resolve(A, "r0", between)
        XS = get(4)
        A(f"v_add_u32 {vXs}, s3, {vXs}")

        def row_loads(C):
            C(f"global_load_dwordx4 {XS}, {vXs}, s[30:31] sc1")
        row_loads(A)
        A(f"v_cmp_ne_u32 vcc, {self.kin}, {self.kmax}\ns_and_b64 exec, vcc, {sC}")
        self.out_stores(A)
        A("s_mov_b64 exec, -1")
        self.poll(A, "rowr0", row_loads, self.poison_check([XS[k] for k in range(4)], t0))
        self.stamp("row", A)
        for k in range(8):
            A(f"v_mfma_f32_16x16x32_bf16 {D[4 * k:4 * k + 4]}, {XS}, {WT[k]}, 0")
        A(f"s_cmp_eq_u32 {self.sUp}, 0\ns_cselect_b64 s[16:17], -1, 0")
        A(f"""
        v_add_f32 {t0}, {D[0]}, {D[5]}
        v_add_f32 {t1}, {D[10]}, {D[15]}
        v_add_f32 {t0}, {t0}, {t1}
        v_add_f32 {t1}, {D[16]}, {D[21]}
        v_add_f32 {t2}, {D[26]}, {D[31]}
        v_add_f32 {t1}, {t1}, {t2}
        s_mov_b64 exec, 0xffff
        ds_write_b32 {vRed}, {t0} offset:{L_RED}
        ds_write_b32 {vRed}, {t1} offset:{L_RED + 256}
        s_mov_b64 exec, -1
        """)
        self.stamp("g1m", A)
        A.barrier()
        self.stamp("g1b", A)
        A(f"ds_read_b128 {T[0:4]}, {vRd} offset:{L_RED}")
        A(f"v_pk_add_f32 {T[0:2]}, {T[0:2]}, {T[2:4]}\nv_add_f32 {T[0]}, {T[0]}, {T[1]}")
        self.rnd(A, T[0], T[0])
        A(f"v_mul_f32 {t0}, {LOG2E | 0x80000000}, {T[0]}\nv_exp_f32 {t0}, {t0}\nv_add_f32 {t0}, 1.0, {t0}")
        A(f"v_rcp_f32 {t0}, {t0}\nv_mul_f32 {t0}, {T[0]}, {t0}")
        A(f"v_cndmask_b32 {t0}, {T[0]}, {t0}, s[16:17]")
        A(f"v_mov_b32_dpp {t1}, {t0} row_shl:1 row_mask:0xf bank_mask:0xf")
        A(f"v_cvt_pk_bf16_f32 {XS[0]}, {t0}, {t1}")
        for k in range(1, 4):
            A(f"v_mov_b32_dpp {XS[k]}, {XS[0]} row_shl:{2 * k} row_mask:0xf bank_mask:0xf")
        A("s_mov_b32 exec_lo, 0x01010101\ns_mov_b32 exec_hi, 0x01010101")
        A(f"global_store_dwordx4 {vPub}, {XS}, s[30:31] sc1")
        self.stamp("g1", A)
        self.finish(A, "r0")

    def tail2(self, A):
        A.wait_tag("s3st")
        self.stamp("ack3", A)

        def between():
            A(f"s_andn2_b64 exec, -1, {self.sC}")
            self.out_stores(A)
            A("s_mov_b64 exec, -1")
        self.resolve(A, "r2", between)
        A(f"v_cmp_ne_u32 vcc, {self.kin}, {self.kmax}\ns_and_b64 exec, vcc, {self.sC}")
        self.out_stores(A)
        self.finish(A, "r2")

    def tail1(self, A):
        V = self.V
        get = V.get
        vL, vI, vG, sL, sW, sC = self.vL, self.vI, self.vG, self.sL, self.sW, self.sC
        t0, t1, t2 = self.t
        T, D = self.T, self.D
        plan = self.dma_plan(A, 1)
        if self.o["dma_at"] == "none":
            plan = []
        n1 = self.o["r1_split"]
        for a, b in plan[:n1]:
            A(a)
            A(b, tag="dma")
        self.stamp("ack3", A)

        def between():
            for a, b in plan[n1:]:
                A(a)
                A(b, tag="dma")
        self.resolve(A, "r1", between)
        vTr, vRed, vSig, vOut, vS4i = get(), get(), get(), get(), get()
        HH = get(2)
        A(f"""
        s_lshl_b32 s16, {self.sBlk}, 5
        s_add_u32 s3, s3, s16
        v_lshrrev_b32 {t1}, 1, {vI}
        v_lshl_add_u32 {t1}, {t1}, 2, s3
        """)

        def row_loads(C):
            C(f"global_load_dword {HH[0]}, {t1}, s[30:31] sc1")
            C(f"global_load_dword {HH[1]}, {t1}, s[30:31] offset:1024 sc1")
        row_loads(A)
        A(f"v_cmp_eq_u32 vcc, {self.kin}, {self.key}\ns_andn2_b64 exec, -1, vcc")
        self.out_stores(A)
        A("s_mov_b64 exec, 1")
        A(f"v_mov_b32 {t0}, {self.sE}\nv_mov_b32 {t2}, 0")
        A(f"global_store_dword {t2}, {t0}, s[30:31] offset:{WS_EPOCH}")
        A("s_mov_b64 exec, -1")
        A(f"""
        v_and_b32 {t0}, 3, {vI}
        v_lshlrev_b32 {t0}, 3, {t0}
        v_lshrrev_b32 {t2}, 2, {vI}
        v_lshl_add_u32 {t2}, {vG}, 3, {t2}
        v_lshl_add_u32 {t0}, {t2}, 5, {t0}
        v_add_u32 {vTr}, {self.sWb}, {t0}
        """)
        self.poll(A, "rowr1", row_loads, self.poison_check([HH[0], HH[1]], t0))
        self.stamp("row", A)
        WT = [self.AC.get(4, 4) for _ in range(14)]
        A.wait_tag("dma")
        self.stamp("r1o", A)
        for m in range(14):
            for e2 in range(2):
                A(f"ds_read_b64_tr_b16 {WT[m][2 * e2:2 * e2 + 2]}, {vTr} offset:{(32 * m + 4 * e2) * 32}")
        self.stamp("r1t", A)
        sK, sT = self.sK, self.sT
        A(f"""
        s_and_b32 s16, {sK}, 0x7fff0000
        s_andn2_b32 s17, 0xffff0000, {sK}
        s_bitcmp1_b32 {sK}, 31
        s_cselect_b32 s16, s16, s17
        v_mov_b32 {t0}, s16
        v_mul_f32 {t0}, {LOG2E | 0x80000000}, {t0}
        v_exp_f32 {t0}, {t0}
        v_add_f32 {t0}, 1.0, {t0}
        v_rcp_f32 {t0}, {t0}
        """)
        self.rnd(A, vSig, t0)
        vS4u = get()
        A(f"""
        v_and_b32 {t0}, 1, {vI}
        v_xor_b32 {t0}, 1, {t0}
        v_lshlrev_b32 {t0}, 4, {t0}
        v_lshlrev_b32 {HH[0]}, {t0}, {HH[0]}
        v_lshlrev_b32 {HH[1]}, {t0}, {HH[1]}
        v_and_b32 {HH[0]}, 0xffff0000, {HH[0]}
        v_and_b32 {HH[1]}, 0xffff0000, {HH[1]}
        s_lshl_b32 s3, {sT}, 10
        s_lshl_b32 s16, {self.sBlk}, 5
        s_add_u32 s3, s3, s16
        v_lshl_add_u32 {vOut}, {vI}, 1, s3
        s_lshr_b32 s3, {sL}, 5
        s_lshl_b32 s3, s3, 13
        s_mul_i32 s16, {sW}, {56 * 16}
        s_add_u32 s3, s3, s16
        s_add_u32 s3, s3, {WS_S4}
        v_min_u32 {t0}, 13, {vI}
        v_lshl_add_u32 {t0}, {t0}, 2, {vG}
        v_lshl_add_u32 {vS4i}, {t0}, 4, s3
        v_add_u32 {vS4u}, 0x1000, {vS4i}
        s_lshl_b32 s3, {sW}, 2
        v_lshl_add_u32 {vRed}, {vI}, 4, s3
        v_mov_b32 {t2}, 0
        v_lshlrev_b32 {t1}, 4, {vI}
        """)
        A.wait(vm=0)
        self.stamp("r1a", A)
        GU, XS = get(8), get(4)

        def s4_loads(C):
            C(f"global_load_dwordx4 {GU[0:4]}, {vS4i}, s[30:31] sc1")
            C(f"global_load_dwordx4 {GU[4:8]}, {vS4u}, s[30:31] sc1")
        s4_loads(A)
        self.poll(A, "s4", s4_loads, self.poison_check([GU[k] for k in range(8)], t0))
        self.stamp("g1", A)
        for k in range(4):
            A(f"v_and_b32 {T[2 * k]}, 0xffff, {GU[k]}\nv_and_b32 {T[2 * k + 1]}, 0xffff0000, {GU[k]}")
        for k in range(8):
            A(f"v_dot2_f32_bf16 {T[k]}, {T[k]}, {GU[4 + k // 2]}, 0")
        for k in range(4):
            A(f"v_cvt_pk_bf16_f32 {XS[k]}, {T[2 * k]}, {T[2 * k + 1]}")
        DD = [D[4 * k:4 * k + 4] for k in range(8)]
        acc = [t2, get()]
        A(f"v_mov_b32 {acc[1]}, 0")
        for m in range(14 + 4):
            if m < 14:
                A(f"v_mfma_f32_16x16x32_bf16 {DD[m % 8]}, {XS}, {WT[m]}, 0")
            k = m - 4
            if k >= 0:
                a = acc[k % 2]
                A(f"v_add_f32_dpp {a}, {DD[k % 8][k % 4]}, {a} quad_perm:[0,1,2,3] row_mask:{1 << (k // 4)} bank_mask:0xf")
        A(f"v_add_f32 {t2}, {t2}, {acc[1]}")
        for sw in ("v_permlane16_swap_b32", "v_permlane32_swap_b32"):
            A(f"v_mov_b32 {t0}, {t2}\n{sw} {t2}, {t0}\nv_add_f32 {t2}, {t2}, {t0}")
        A(f"s_mov_b64 exec, 0xffff\nds_write_b32 {vRed}, {t2} offset:{L_RED}\ns_mov_b64 exec, -1")
        self.stamp("g2m", A)
        A.barrier()
        A(f"s_cmp_eq_u32 {sW}, 0\ns_cbranch_scc0 L_fin_r1")
        A(f"ds_read_b128 {T[0:4]}, {t1} offset:{L_RED}")
        A(f"v_pk_add_f32 {T[0:2]}, {T[0:2]}, {T[2:4]}\nv_add_f32 {t0}, {T[0]}, {T[1]}")
        self.rnd(A, t0, t0)
        A(f"v_mul_f32 {t0}, {t0}, {vSig}")
        self.rnd(A, t0, t0)
        A(f"v_add_f32 {t0}, {t0}, {HH[0]}")
        self.rnd(A, t0, t0)
        A(f"v_add_f32 {t0}, {t0}, {HH[1]}")
        self.rnd(A, t0, t0)
        A("s_mov_b64 exec, 0xffff")
        A(f"global_store_short_d16_hi {vOut}, {t0}, s[28:29]")
        self.stamp("g2", A)
        self.finish(A, "r1")

    def build(self):
        A = self.A
        self.prologue()
        self.ksteps = self.kgen_steps()
        for _ in range(self.o["kpre"]):
            next(self.ksteps)
        self.ln1()
        self.after_publish()
        self.stamp("warm")
        self.kgen()
        self.sWb, self.sC, self.sK, self.sT = self.S.get(), self.S.get(2), self.S.get(), self.S.get()
        self.conv_all()
        self.phase_c()
        self.kin = self.V.get()
        A(f"s_cmp_eq_u32 {self.sRole}, 1\ns_cbranch_scc1 L_role1")
        B = A.fork()
        B.label("L_role1")
        A(f"s_cmp_eq_u32 {self.sRole}, 2\ns_cbranch_scc1 L_role2")
        C = A.fork()
        C.label("L_role2")
        vfree, afree = set(self.V.free), set(self.AC.free)
        self.tail0(A)
        self.V.free, self.AC.free = set(vfree), set(afree)
        self.tail1(B)
        self.V.free, self.AC.free = set(vfree), set(afree)
        self.tail2(C)
        B.lines += C.lines
        B.count += C.count
        body = A.text() + B.text() + "".join(c.text() for c in self.cold)
        nv = self.V.top + 1
        accum = (nv + 3) // 4 * 4
        total = max(accum + self.AC.top + 1, 264)
        head = open(f"cdna_kernels/{NAME}.s.ref").read().split("; Override launch geometry")[0]
        self.stats = dict(instr=A.count + B.count, nops=A.nops + B.nops, vgpr=nv, agpr=self.AC.top + 1, mfma=self.nmfma)
        tab = ""
        if self.o["band_tab"]:
            tab = f".p2align 7\n.type L_tab,@object\nL_tab:\n{band_table()}\n.size L_tab, 4096\n"
        return head + f"""; One persistent launch: 256 workgroups, one per CU, exchanging data through d_ws.
; @launch grid=(256,1,1) block=(256,1,1) lds={LDS_BYTES}
.amdgcn_target "amdgcn-amd-amdhsa--gfx950"
.text
.globl {NAME}_kernel
.p2align 8
.type {NAME}_kernel,@function
{NAME}_kernel:
{body}L_end:
    s_endpgm
L_code_end:
{tab}.section .rodata,"a"
.p2align 6
.amdhsa_kernel {NAME}_kernel
  .amdhsa_next_free_vgpr {total}
  .amdhsa_next_free_sgpr 102
  .amdhsa_accum_offset {accum}
  .amdhsa_group_segment_fixed_size 0
  .amdhsa_kernarg_size 120
  .amdhsa_user_sgpr_count 2
  .amdhsa_user_sgpr_kernarg_segment_ptr 1
  .amdhsa_system_sgpr_workgroup_id_x 1
  .amdhsa_float_denorm_mode_32 3
.end_amdhsa_kernel
"""


def generate(path, **opt):
    g = Gen(**opt)
    text = g.build()
    open(path, "w").write(text)
    return g.stats


if __name__ == "__main__":
    out = sys.argv[1] if len(sys.argv) > 1 else f"cdna_kernels/{NAME}.s"
    opts = {}
    for a in sys.argv[2:]:
        k, v = a.split("=")
        opts[k] = {"True": True, "False": False}.get(v, int(v) if v.isdigit() else v)
    print(generate(out, **opts))
```

```python
import sys
from asmdsl import Asm, Pool, R

NAME = "sequential_preLN__ssm_conv_s4d__moe_arch_mod__prompt"

WS_EPOCH = 0
WS_S3 = 0x8000
WS_S4 = 0x10000
WS_ROWS = 0x20000
WS_S1 = 0x100000
WS_S2 = 0x300000
WS_STAMP = 0x600000

ROWB = 544
STAGE_CH = 57 * ROWB
L_K = 0
KCOPY = 2112
KCH = 4 * KCOPY
L_U = L_K + 2 * KCH
UCH = 4672
L_Z = 26368
L_H = L_Z + 8192
L_ST = L_H + 8192
L_KEY = L_ST + 64
L_KEY2 = L_KEY + 32
L_RED = L_KEY2 + 32
L_STAGE = 43520
LDS_BYTES = L_STAGE + 2 * STAGE_CH
assert L_U + UCH + 4608 <= L_Z and L_RED + 512 <= L_STAGE and L_STAGE % 256 == 0

NX = 560
V2 = [608 + 64 * s for s in range(4)]
V3 = [864 + 80 * s for s in range(2)]
TAGMASK = 0x40074007
LOG2E = 0x3FB8AA3B
INV2PI = 0x3E22F983
SPIN_MAX = 1 << 14

BANDS = ((12, 1), (8, 2), (8, 3), (8, 4))


def band_table():
    out = []
    for delta, h in BANDS:
        for lane in range(64):
            phi, g = lane & 15, lane >> 4
            bits = [0x3C00 if abs(8 * g + e - phi - delta) <= h else 0 for e in range(8)]
            out.append(".long " + ", ".join(hex(bits[2 * d] | bits[2 * d + 1] << 16) for d in range(4)))
    return "\n".join(out)


STAMP_SETS = {
    True: ["start", "karg", "x", "pub1", "rec", "kmf", "frag", "s1", "conv", "ack2", "s2", "pub3", "ack3", "s3", "row", "g1", "g2", "end"],
    "z": ["start"] + [f"unused{i}" for i in range(16)] + ["end"],
    "a": ["start", "karg", "issued", "consts", "x", "stat", "b1", "norm", "pub1", "warm", "par", "ws", "recR", "rec", "b2", "kmf0", "kmf", "end"],
    "b": ["start", "kmf", "shift", "frag", "s1w", "s1", "b5", "conv", "b6", "st2", "dma", "ack2", "s2", "hw", "b7", "key", "pub3", "end"],
    "c": ["start", "pub3", "hn", "outc", "ack3", "s3p", "s3w", "s3", "row", "g1m", "g1b", "g1", "r1o", "r1t", "r1a", "g2m", "g2", "end"],
}
DEFAULTS = dict(stamps=False, s1_at="mfma", warm=True, out_pol="sc1", pf_code=True, pf_lines=8, dbg=False, poison_at="consts", recb=4, r0_late=2, r2_late=False, dma_ack2=0, xmap=True, x_pol="", w_pol="", p_pol="sc1", mask_poll=True, warm_slot=30, kpre=0, par_first=True, band_tab=False, frag_in=False, dma_pre=0, r1_split=4, xa_glob=False, warm_at="s1w", xa_at="start", nf=7, ng=4, pe=14, pd=6, npre=6, clk=False, dma_at="conv", warm_mode="sect", far_span=(56, 40))


class Gen:
    def __init__(self, **opt):
        self.o = dict(DEFAULTS)
        self.o.update(opt)
        self.A = Asm()
        self.V = Pool("v", 1, 255)
        self.AC = Pool("a", 0, 255)
        self.S = Pool("s", 32, 63)
        self.cold = []
        self.nstamp = 0

    def stamp(self, name, A=None):
        sel = STAMP_SETS.get(self.o["stamps"])
        if sel and name in sel:
            i = sel.index(name)
            (A or self.A)(f"s_memrealtime s[{64 + 2 * i}:{65 + 2 * i}]")

    def dump_stamps(self, A):
        if not self.o["stamps"]:
            return
        if self.o["dbg"]:
            self.dump_debug(A)
            return
        a, d = self.V.get(), self.V.get(2)
        A("s_mov_b64 exec, 1")
        A.wait(lg=0)
        A(f"s_lshl_b32 s3, {self.sL}, 2\ns_add_u32 s3, s3, {self.sW}\ns_lshl_b32 s3, s3, 8\ns_add_u32 s3, s3, {WS_STAMP}")
        A(f"v_mov_b32 {a}, s3")
        for i in range(19):
            A(f"v_mov_b32 {d[0]}, s{64 + 2 * i}\nv_mov_b32 {d[1]}, s{65 + 2 * i}")
            A(f"global_store_dwordx2 {a}, {d}, s[30:31] offset:{8 * i}")
            A.wait(vm=0)
        self.V.put(a, d)

    def dump_debug(self, A):
        a, d = self.V.get(), self.V.get()
        n = getattr(self, "ndbg", 0)
        self.ndbg = n + 1
        A("s_mov_b64 exec, 1")
        A(f"s_cmp_eq_u32 {self.sL}, 255\ns_cbranch_scc0 L_dbg{n}\ns_cmp_eq_u32 {self.sW}, 0\ns_cbranch_scc0 L_dbg{n}")
        A("s_load_dwordx2 s[4:5], s[0:1], 104")
        A.wait(lg=0)
        A(f"v_mov_b32 {a}, 0")
        for i in range(1, 17):
            A(f"s_sub_u32 s3, s{64 + 2 * (i + 1)}, s64\nv_mov_b32 {d}, s3")
            A(f"global_store_dword {a}, {d}, s[4:5] offset:{4 * (i - 1)}")
        A.label(f"L_dbg{n}")
        self.V.put(a, d)

    def rnd(self, A, dst, src, neg=False):
        A(f"v_cvt_pk_bf16_f32 {dst}, 0, {'-' if neg else ''}{src}")

    def allreduce(self, A, op, regs, width, fill=()):
        fill = list(fill)

        def pad():
            for _ in range(max(0, 3 - len(regs))):
                if fill:
                    A(fill.pop(0))
        steps = ["quad_perm:[1,0,3,2]", "quad_perm:[2,3,0,1]", "row_half_mirror", "row_mirror"]
        for st in steps:
            pad()
            for r in regs:
                A(f"{op}_dpp {r}, {r}, {r} {st} row_mask:0xf bank_mask:0xf")
        tmp = [self.V.get() for _ in regs]
        for w, sw in ((32, "v_permlane16_swap_b32"), (64, "v_permlane32_swap_b32")):
            if width >= w:
                for r, t in zip(regs, tmp):
                    A(f"v_mov_b32 {t}, {r}")
                pad()
                for r, t in zip(regs, tmp):
                    A(f"{sw} {r}, {t}")
                for r, t in zip(regs, tmp):
                    A(f"{op} {r}, {r}, {t}")
        for f in fill:
            A(f)
        self.V.put(*tmp)

    def ln_stats(self, A, s1, s2, nm, rs):
        t = self.V.get()
        A(f"v_mul_f32 {s1}, 0x3b000000, {s1}")
        A(f"v_mul_f32 {s2}, 0x3b000000, {s2}")
        A(f"v_fma_f32 {t}, -{s1}, {s1}, {s2}")
        A(f"v_max_f32 {t}, 0, {t}")
        self.rnd(A, t, t)
        self.rnd(A, nm, s1, neg=True)
        A(f"v_add_f32 {t}, 0x3727c5ac, {t}")
        self.rnd(A, t, t)
        A(f"v_sqrt_f32 {t}, {t}")
        self.rnd(A, t, t)
        A(f"v_rcp_f32 {rs}, {t}")
        self.V.put(t)

    def poll(self, A, name, loads, check):
        check(A)
        A(f"s_cbranch_vccnz L_{name}_slow")
        A.label(f"L_{name}_ok")
        C = Asm()
        C.label(f"L_{name}_slow")
        C("s_mov_b32 s3, 0")
        C.label(f"L_{name}_loop")
        if self.o["mask_poll"]:
            C("s_mov_b64 exec, vcc")
        C("s_nop 1")
        loads(C)
        C(f"s_add_u32 s3, s3, 1\ns_cmp_ge_u32 s3, {SPIN_MAX}")
        C("s_cselect_b32 s18, 0, -1\ns_mov_b32 s19, s18")
        check(C)
        C.wait(vm=0)
        C("s_nop 1")
        C("s_and_b64 vcc, vcc, s[18:19]")
        C(f"s_cbranch_vccnz L_{name}_loop")
        C("s_mov_b64 exec, -1")
        C("s_nop 2")
        C(f"s_branch L_{name}_ok")
        self.cold.append(C)

    def prologue(self):
        A, V, S = self.A, self.V, self.S
        A("s_cmp_ge_u32 s2, 0x100\ns_cbranch_scc1 L_end")
        A("s_load_dwordx16 s[4:19], s[0:1], 0\ns_load_dwordx8 s[20:27], s[0:1], 64")
        A("s_load_dwordx2 s[28:29], s[0:1], 96\ns_load_dwordx2 s[30:31], s[0:1], 112")
        self.stamp("start")
        if self.o["clk"]:
            A("s_memtime s[100:101]")
        self.sL, self.sW, self.sTag, self.sE = S.get(), S.get(), S.get(), S.get()
        self.sOnes, self.sLo, self.sHi, self.sCh = S.get(), S.get(), S.get(), S.get()
        sL, sW = self.sL, self.sW
        self.vL = V.get()
        self.vI = V.get()
        self.vG = V.get()
        t0, t1, t2 = V.get(), V.get(), V.get()
        A(f"""
        s_and_b32 s3, s2, 7
        s_lshl_b32 s3, s3, 5
        s_lshr_b32 {sL}, s2, 3
        s_add_u32 {sL}, {sL}, s3
        {"" if self.o["xmap"] else f"s_mov_b32 {sL}, s2"}
        v_lshrrev_b32 {t0}, 6, v0
        v_and_b32 {self.vL}, 63, v0
        v_readfirstlane_b32 {sW}, {t0}
        v_and_b32 {self.vI}, 15, v0
        v_bfe_u32 {self.vG}, v0, 4, 2
        """)
        self.vJunk = V.get(4)
        if self.o["pf_code"]:
            nl = self.o["pf_lines"]
            self.sPc = S.get(2)
            A(f"s_getpc_b64 {self.sPc}")
            A.label("L_pc")
            A(f"""
            s_lshr_b32 s3, s2, 3
            v_lshrrev_b32 {t0}, 6, v0
            v_lshl_add_u32 {t0}, s3, 2, {t0}
            v_and_b32 {t0}, {256 // nl - 1}, {t0}
            v_and_b32 {t1}, {nl - 1}, v0
            v_lshl_add_u32 {t0}, {t0}, {nl.bit_length() - 1}, {t1}
            v_lshlrev_b32 {t0}, 7, {t0}
            v_min_u32 {t0}, L_all_end-L_pc-4, {t0}
            global_load_dword {self.vJunk[0]}, {t0}, {self.sPc}
            """)
        self.vRow = V.get()
        A(f"""
        v_lshrrev_b32 {t0}, 5, v0
        v_and_b32 {t1}, 31, v0
        v_lshlrev_b32 {t0}, 10, {t0}
        s_lshl_b32 s3, {sL}, 13
        v_lshl_add_u32 {t0}, {t1}, 4, {t0}
        v_add_u32 {self.vRow}, s3, {t0}
        """)
        A(f"""
        s_lshr_b32 s3, {sL}, 6
        s_lshl_b32 {self.sCh}, s3, 7
        s_and_b32 s3, {sL}, 31
        s_lshl_b32 s3, s3, 2
        s_add_u32 {self.sCh}, {self.sCh}, s3
        s_bfe_u32 s3, {sL}, 0x10005
        s_add_u32 {self.sCh}, {self.sCh}, s3
        s_and_b32 s3, {sW}, 2
        s_add_u32 {self.sCh}, {self.sCh}, s3
        """)
        vP = V.get()
        A(f"""
        s_lshl_b32 s3, {self.sCh}, 8
        v_lshl_add_u32 {vP}, {self.vL}, 2, s3
        s_lshl_b32 s3, {self.sCh}, 1
        s_and_b32 s3, s3, -4
        v_lshlrev_b32 {t1}, 4, {t1}
        """)
        self.XB = V.get(8)
        self.XA = V.get(8)
        self.PAR = V.get(4)
        self.WR = V.get(8)
        self.sDt, self.sDk = S.get(), S.get()

        def par_loads():
            for k in range(4):
                A(f"global_load_dword {self.PAR[k]}, {vP}, s[{6 + 2 * k}:{7 + 2 * k}] {self.o['x_pol']}")
        if self.o["par_first"]:
            par_loads()
        A(f"global_load_dwordx4 {self.XB[0:4]}, {self.vRow}, s[4:5] {self.o['x_pol']}")
        A(f"global_load_dwordx4 {self.XB[4:8]}, {self.vRow}, s[4:5] offset:512 {self.o['x_pol']}")
        if not self.o["par_first"]:
            par_loads()
        A(f"s_load_dword {self.sDt}, s[14:15], s3\ns_load_dword {self.sDk}, s[16:17], s3")
        A(f"s_load_dword {self.sE}, s[30:31], {WS_EPOCH}")
        self.stamp("karg")
        V.put(vP)
        self.stamp("issued")
        self.vWr = V.get()
        A(f"v_mov_b32 {self.vWr}, {t1}")
        self.M1 = M1 = V.get(4)
        self.vS2o, self.vS2o2, self.vP2, self.vP3 = V.get(), V.get(), V.get(), V.get()
        for k in range(4):
            A(f"v_mov_b32 {M1[k]}, -1")
        A(f"""
        s_lshl_b32 s3, {sL}, 13
        s_add_u32 s3, s3, {WS_S2}
        v_lshl_add_u32 {self.vS2o}, v0, 4, s3
        v_add_u32 {self.vS2o2}, 0x1000, {self.vS2o}
        """)
        A(f"s_lshl_b32 s16, {sW}, 11\ns_add_u32 s3, s3, s16\nv_lshl_add_u32 {self.vP2}, {self.vL}, 4, s3")
        if self.o["poison_at"] == "start":
            self.poison2()
        self.sBlk, self.sRole, self.sUp = S.get(), S.get(), S.get()
        A(f"""
        s_lshr_b32 s3, {sL}, 5
        s_and_b32 s16, {sL}, 31
        s_cmp_ge_u32 s16, 7
        s_cselect_b32 {self.sUp}, 1, 0
        s_cselect_b32 s17, 7, 0
        s_sub_u32 s17, s16, s17
        s_mul_i32 {self.sBlk}, s3, 7
        s_add_u32 {self.sBlk}, {self.sBlk}, s17
        s_cmp_ge_u32 s16, 14
        s_cselect_b32 {self.sRole}, 2, 0
        s_lshl_b32 s3, s3, 2
        s_add_u32 s3, s3, s16
        s_sub_u32 s3, s3, 28
        s_cmp_ge_u32 s16, 28
        s_cselect_b32 {self.sRole}, 1, {self.sRole}
        s_cselect_b32 {self.sBlk}, s3, {self.sBlk}
        """)
        self.sP3 = S.get(2)
        A(f"""
        s_lshl_b32 s3, {sL}, 11
        s_add_u32 s3, s3, {WS_ROWS}
        v_lshl_add_u32 {t0}, v0, 4, s3
        s_lshl_b32 s16, {sL}, 4
        s_add_u32 s16, s16, {WS_S3}
        v_lshl_add_u32 {t1}, {self.vL}, 12, s16
        s_lshl_b32 s17, {self.sUp}, 12
        s_lshl_b32 s3, {self.sBlk}, 6
        s_add_u32 s17, s17, s3
        s_add_u32 s17, s17, {WS_S4}
        v_bfe_u32 {t2}, v0, 2, 3
        v_lshlrev_b32 {t2}, 13, {t2}
        v_and_b32 {self.vP3}, 3, v0
        v_lshl_add_u32 {t2}, {self.vP3}, 4, {t2}
        v_add_u32 {t2}, s17, {t2}
        s_cmp_eq_u32 {self.sRole}, 0
        s_cselect_b32 s17, -1, 0
        s_cmp_eq_u32 {sW}, 2
        s_cselect_b64 vcc, -1, 0
        s_cselect_b32 s17, 0xff, s17
        v_cndmask_b32 {t1}, {t2}, {t1}, vcc
        s_cmp_lt_u32 {sW}, 2
        s_cselect_b64 vcc, -1, 0
        s_cselect_b32 {self.sP3[0]}, -1, s17
        s_cselect_b32 {self.sP3[1]}, -1, 0
        v_cndmask_b32 {self.vP3}, {t1}, {t0}, vcc
        """)
        Z = V.get(4)
        for k in range(4):
            A(f"v_mov_b32 {Z[k]}, 0")
        A(f"""
        v_lshrrev_b32 {t0}, 7, v0
        v_and_b32 {t1}, 127, v0
        v_mul_u32_u24 {t0}, {KCH}, {t0}
        v_lshl_add_u32 {t0}, {t1}, 4, {t0}
        ds_write_b128 {t0}, {Z} offset:{L_K}
        v_lshrrev_b32 {t2}, 7, v0
        v_mul_u32_u24 {t2}, {UCH}, {t2}
        v_lshl_add_u32 {t2}, {t1}, 2, {t2}
        ds_write_b32 {t2}, {Z[0]} offset:{L_U}
        """)
        self.vShift = V.get()
        A(f"v_mov_b32 {self.vShift}, {t0}")
        V.put(Z)
        A(f"s_mov_b32 {self.sOnes}, 0x3f803f80\ns_mov_b32 {self.sLo}, 0x3f80\ns_mov_b32 {self.sHi}, 0x3f800000")
        self.consts(t0, t1, t2)
        self.warm_addr()
        self.warm("consts")
        if self.o["poison_at"] == "consts":
            self.poison2()
        self.stamp("consts")
        V.put(t0, t1, t2)

    def poison2(self):
        A = self.A
        A(f"global_store_dwordx4 {self.vP2}, {self.M1}, s[30:31] {self.o['p_pol']}", tag="poison")
        A(f"global_store_dwordx4 {self.vP2}, {self.M1}, s[30:31] offset:1024 {self.o['p_pol']}", tag="poison")

    def after_publish(self):
        A, V = self.A, self.V
        A(f"s_mov_b64 exec, {self.sP3}")
        A(f"global_store_dwordx4 {self.vP3}, {self.M1}, s[30:31] sc1", tag="poison3")
        A("s_mov_b64 exec, -1")
        A(f"global_load_dwordx4 {self.WR[0:4]}, {self.vWr}, s[20:21]")
        A(f"global_load_dwordx4 {self.WR[4:8]}, {self.vWr}, s[20:21] offset:512")
        if self.o["band_tab"]:
            for k, key in enumerate(BANDS):
                A(f"global_load_dwordx4 {self.BAND[key]}, {self.vTab}, {self.sPc} offset:{1024 * k}")
            V.put(self.vTab)
        self.warm("pub")
        V.put(self.M1, self.vP2, self.vP3, self.vWr)

    def consts(self, t0, t1, t2):
        A, V, S = self.A, self.V, self.S
        vI, vG, vL, sW, sL = self.vI, self.vG, self.vL, self.sW, self.sL
        self.BAND = {key: V.get(4) for key in BANDS}
        if self.o["band_tab"]:
            self.vTab = V.get()
            A(f"v_lshlrev_b32 {t0}, 4, {vL}\nv_add_u32 {self.vTab}, L_tab-L_pc, {t0}")
        else:
            A(f"v_lshlrev_b32 {t0}, 3, {vG}\nv_sub_u32 {t0}, {vI}, {t0}")
            for (delta, h), B in self.BAND.items():
                win = (1 << (2 * h + 1)) - 1
                A(f"v_add_u32 {t1}, {delta - h + 12}, {t0}")
                A(f"v_med3_i32 {t1}, {t1}, 0, 22")
                A(f"v_mov_b32 {t2}, {win}")
                A(f"v_lshlrev_b32 {t1}, {t1}, {t2}")
                for d in range(4):
                    A(f"v_bfe_u32 {t2}, {t1}, {12 + 2 * d}, 2")
                    A(f"v_mul_u32_u24 {t2}, 0x8001, {t2}")
                    A(f"v_and_b32 {t2}, 0x10001, {t2}")
                    A(f"v_mul_u32_u24 {B[d]}, 0x3c00, {t2}")
        if self.o["poison_at"] == "band":
            self.poison2()
        sB, sH = S.get(), S.get()
        self.sB, self.sH = sB, sH
        A(f"s_lshr_b32 {sB}, {sW}, 1\ns_and_b32 {sH}, {sW}, 1")
        self.sStM = S.get()
        A(f"""
        s_mul_i32 s3, {sB}, {STAGE_CH}
        s_add_u32 s3, s3, {L_STAGE}
        s_lshl_b32 s16, {sH}, 8
        s_add_u32 s16, s16, s3
        s_sub_u32 {self.sStM}, s16, 0x8000
        """)
        self.vA1, self.vA2, self.vBm = V.get(), V.get(), V.get()
        A(f"""
        v_xor_b32 {t0}, 3, {vI}
        v_bfe_u32 {t1}, {t0}, 1, 1
        v_add_u32 {t1}, {t0}, {t1}
        v_lshrrev_b32 {t1}, 1, {t1}
        v_add_u32 {t1}, 32, {t1}
        s_cmp_eq_u32 {sH}, 0
        s_cselect_b64 vcc, -1, 0
        s_cselect_b32 s16, 16, 0
        s_cselect_b32 s17, 0, 41
        v_cndmask_b32 {t1}, {t0}, {t1}, vcc
        v_add_u32 {t0}, s16, {t0}
        v_add_u32 {t2}, s17, {vI}
        v_mul_u32_u24 {t0}, {ROWB}, {t0}
        v_mul_u32_u24 {t1}, {ROWB}, {t1}
        v_mul_u32_u24 {t2}, {ROWB}, {t2}
        v_lshl_add_u32 {t0}, {vG}, 4, {t0}
        v_lshl_add_u32 {t1}, {vG}, 4, {t1}
        v_lshl_add_u32 {t2}, {vG}, 4, {t2}
        v_add_u32 {self.vA1}, s3, {t0}
        v_add_u32 {self.vA2}, s3, {t1}
        v_add_u32 {self.vBm}, s3, {t2}
        """)
        self.vK1, self.vK2, self.vKs = V.get(), V.get(), V.get()
        t3 = V.get()
        A(f"""
        v_lshlrev_b32 {t0}, 4, {vI}
        v_sub_u32 {t0}, 540, {t0}
        v_and_b32 {t1}, 3, {vI}
        v_lshlrev_b32 {t1}, 6, {t1}
        v_lshrrev_b32 {t2}, 2, {vI}
        v_lshlrev_b32 {t2}, 4, {t2}
        v_sub_u32 {t1}, {t1}, {t2}
        v_add_u32 {t1}, {V2[0] + 44}, {t1}
        v_and_b32 {t2}, 1, {vI}
        v_mul_u32_u24 {t2}, 80, {t2}
        v_lshrrev_b32 {t3}, 1, {vI}
        v_lshlrev_b32 {t3}, 4, {t3}
        v_sub_u32 {t2}, {t2}, {t3}
        v_add_u32 {t2}, {V3[0] + 60 + 64}, {t2}
        v_cmp_gt_u32 s[16:17], 8, {vI}
        v_cndmask_b32 {t1}, {t2}, {t1}, s[16:17]
        v_cndmask_b32 {t2}, {t1}, {t0}, vcc
        v_subrev_u32 {t0}, 256, {t0}
        v_cndmask_b32 {t1}, {t1}, {t0}, vcc
        v_lshlrev_b32 {t3}, 2, {vG}
        v_sub_u32 {t2}, {t2}, {t3}
        v_sub_u32 {t1}, {t1}, {t3}
        s_mul_i32 s3, {sB}, {KCH}
        s_add_u32 s3, s3, {L_K}
        v_lshl_add_u32 {self.vK1}, {t2}, 1, s3
        v_lshl_add_u32 {self.vK2}, {t1}, 1, s3
        s_cmp_eq_u32 {sH}, 0
        s_cselect_b32 s16, {2 * 29}, {2 * (NX + 27)}
        s_add_u32 s16, s16, s3
        v_mov_b32 {self.vKs}, s16
        """)
        self.vN, self.vF = V.get(), V.get()
        A(f"""
        v_sub_u32 {t0}, 15, {vI}
        v_and_b32 {t1}, 3, {t0}
        v_and_b32 {t0}, 12, {t0}
        v_mul_u32_u24 {t1}, {KCOPY}, {t1}
        v_lshl_add_u32 {t0}, {t0}, 1, {t1}
        v_add_u32 {t0}, s3, {t0}
        v_lshl_add_u32 {self.vN}, {vG}, 4, {t0}
        v_lshl_add_u32 {self.vF}, {vG}, 3, {t0}
        """)
        self.vUf, self.vUe, self.vZw, self.vZr, self.vUw = V.get(), V.get(), V.get(), V.get(), V.get()
        A(f"""
        s_mul_i32 s3, {sB}, {UCH}
        s_add_u32 s3, s3, {L_U}
        v_lshl_add_u32 {t0}, {vI}, 5, s3
        v_lshl_add_u32 {self.vUf}, {vG}, 4, {t0}
        v_lshl_add_u32 {self.vUe}, {vG}, 3, {t0}
        v_and_b32 {t0}, 2, {vG}
        v_lshl_add_u32 {t0}, {vI}, 2, {t0}
        v_add_u32 {t0}, {sB}, {t0}
        v_lshrrev_b32 {t1}, 1, {vI}
        v_xor_b32 {t0}, {t0}, {t1}
        v_and_b32 {t1}, 1, {vG}
        v_lshlrev_b32 {t1}, 3, {t1}
        v_lshl_add_u32 {self.vZw}, {t0}, 4, {t1}
        v_bfe_u32 {t0}, v0, 3, 3
        v_xor_b32 {t0}, v0, {t0}
        v_lshlrev_b32 {self.vZr}, 4, {t0}
        v_and_b32 {t0}, 1, v0
        v_lshrrev_b32 {t1}, 1, v0
        v_mul_u32_u24 {t2}, {UCH}, {t0}
        v_lshl_add_u32 {self.vUw}, {t1}, 4, {t2}
        """)
        self.vS1o, self.vS1i, self.vS1i2, self.vS2i, self.vS2i2 = V.get(), V.get(), V.get(), V.get(), V.get()
        A(f"""
        s_lshl_b32 s3, {sL}, 13
        s_lshl_b32 s16, {sW}, 11
        s_add_u32 s3, s3, s16
        s_add_u32 s3, s3, {WS_S1}
        v_lshl_add_u32 {self.vS1o}, {vL}, 4, s3
        v_lshlrev_b32 {t0}, 4, {t0}
        s_lshl_b32 s3, {sL}, 5
        s_add_u32 s16, s3, {WS_S1}
        v_lshl_add_u32 {t2}, {t1}, 13, {t0}
        v_add_u32 {self.vS1i}, s16, {t2}
        v_add_u32 {self.vS1i2}, 0x100000, {self.vS1i}
        v_lshrrev_b32 {t1}, 1, {vL}
        v_lshl_add_u32 {t2}, {t1}, 13, {t0}
        s_lshl_b32 s16, {sW}, 19
        s_add_u32 s16, s16, s3
        s_add_u32 s16, s16, {WS_S2}
        v_add_u32 {self.vS2i}, s16, {t2}
        v_add_u32 {self.vS2i2}, 0x40000, {self.vS2i}
        """)
        self.vTau, self.vMask = V.get(), V.get()
        self.vHr, self.vHw2 = V.get(), V.get()
        A(f"""
        v_lshrrev_b32 {t0}, 5, v0
        v_and_b32 {t1}, 31, v0
        v_lshlrev_b32 {t1}, 4, {t1}
        v_lshl_add_u32 {self.vHr}, {t0}, 10, {t1}
        v_lshlrev_b32 {t0}, 2, v0
        v_add_u32 {self.vHw2}, {L_H}, {t0}
        """)
        A(f"v_lshrrev_b32 {self.vTau}, 5, v0\nv_mov_b32 {self.vMask}, {0xFFFFFFFF ^ TAGMASK}")
        V.put(t3)

    def ln1(self):
        A, V = self.A, self.V
        glob = False
        s1, s2, nm, rs, ad = V.get(), V.get(), V.get(), V.get(), V.get()
        A(f"v_lshlrev_b32 {ad}, 2, {self.vTau}")
        for k in range(8):
            if not glob and k % 4 == 0:
                A(f"ds_write_b128 {self.vHr}, {self.XB[k:k + 4]} offset:{L_H + 128 * k}")
            A(f"v_dot2_f32_bf16 {s1}, {self.XB[k]}, {self.sOnes}, {s1 if k else 0}")
            A(f"v_dot2_f32_bf16 {s2}, {self.XB[k]}, {self.XB[k]}, {s2 if k else 0}")
            if k == 0:
                self.stamp("x")
                if self.o["poison_at"] == "x":
                    self.poison2()
        self.allreduce(A, "v_add_f32", [s1, s2], 32)
        self.ln_stats(A, s1, s2, nm, rs)
        self.stamp("stat")
        A("s_mov_b64 exec, 1\ns_bitset1_b64 exec, 32")
        A(f"v_mul_f32 {rs}, 0x3d800000, {rs}")
        A(f"ds_write_b32 {ad}, {nm} offset:{L_ST}\nds_write_b32 {ad}, {rs} offset:{L_ST + 32}")
        A("s_mov_b64 exec, -1")
        A(f"v_mov_b32 {ad}, 0")
        V.put(self.XB)
        A.barrier()
        self.stamp("b1")
        NM, RS = V.get(8), V.get(8)
        XA = self.XA
        if not glob:
            for q in range(2):
                A(f"ds_read2st64_b32 {XA[2 * q:2 * q + 2]}, {self.vHw2} offset0:{8 * q} offset1:{8 * q + 4}")
        A(f"ds_read_b128 {NM[0:4]}, {ad} offset:{L_ST}")
        if not glob:
            for q in range(2, 4):
                A(f"ds_read2st64_b32 {XA[2 * q:2 * q + 2]}, {self.vHw2} offset0:{8 * q} offset1:{8 * q + 4}")
        A(f"ds_read_b128 {NM[4:8]}, {ad} offset:{L_ST + 16}")
        for k in range(2):
            A(f"ds_read_b128 {RS[4 * k:4 * k + 4]}, {ad} offset:{L_ST + 32 + 16 * k}")
        A(f"s_add_u32 {self.sE}, {self.sE}, 1\ns_and_b32 {self.sTag}, {self.sE}, {TAGMASK}")
        T = V.get(8)
        for e in range(2):
            G = V.get(4)
            for j in range(8):
                A(f"v_dot2_f32_bf16 {T[j]}, {XA[j]}, {self.sHi if e else self.sLo}, {NM[j]}")
            for j in range(8):
                self.rnd(A, T[j], T[j])
            for q in range(4):
                A(f"v_pk_mul_f32 {T[2 * q:2 * q + 2]}, {T[2 * q:2 * q + 2]}, {RS[2 * q:2 * q + 2]}")
            for j in range(8):
                self.rnd(A, T[j], T[j])
            for q in range(4):
                A(f"v_cvt_pk_f16_f32 {G[q]}, {T[2 * q]}, {T[2 * q + 1]}")
            for q in range(4):
                A(f"v_and_or_b32 {G[q]}, {G[q]}, {self.vMask}, {self.sTag}")
            if e == 0:
                self.stamp("norm")
                A.wait_tag("poison")
            A(f"global_store_dwordx4 {self.vS1o}, {G}, s[30:31] offset:{1024 * e} sc1", tag="s1st")
            self.G = getattr(self, "G", []) + [G]
        self.stamp("pub1")
        V.put(T, NM, RS, s1, s2, nm, rs, ad, self.vS1o, self.vMask)

    def s1_loads(self, A):
        A(f"global_load_dwordx4 {self.UG[0:4]}, {self.vS1i}, s[30:31] sc1")
        A(f"global_load_dwordx4 {self.UG[4:8]}, {self.vS1i2}, s[30:31] sc1")

    def maybe_s1(self, where):
        if self.o["s1_at"] == where:
            self.UG = self.V.get(8)
            self.s1_loads(self.A)
            self.warm("s1")

    def kgen_steps(self):
        A, V = self.A, self.V
        P = self.PAR
        t0, t1, dt = V.get(), V.get(), V.get()
        self.vG16, self.vD16 = V.get(), V.get()
        A(f"""
        s_and_b32 s3, {self.sCh}, 1
        s_xor_b32 s3, s3, 1
        s_lshl_b32 s3, s3, 4
        s_lshl_b32 {self.sDt}, {self.sDt}, s3
        s_and_b32 {self.sDt}, {self.sDt}, 0xffff0000
        s_lshl_b32 {self.sDk}, {self.sDk}, s3
        s_and_b32 {self.sDk}, {self.sDk}, 0xffff0000
        v_mov_b32 {dt}, {LOG2E}
        v_mul_f32 {dt}, {self.sDt}, {dt}
        v_exp_f32 {dt}, {dt}
        v_mov_b32 {self.vD16}, 0x41800000
        v_mul_f32 {self.vD16}, {self.sDk}, {self.vD16}
        s_cmp_eq_u32 {self.sH}, 0
        s_cselect_b32 s3, 16, 0
        """)
        self.rnd(A, dt, dt)
        A(f"""
        v_and_b32 {t0}, 0x7fff7fff, {P[2]}
        v_and_b32 {t1}, 0x7fff7fff, {P[3]}
        v_pk_max_u16 {t0}, {t0}, {t1}
        v_lshrrev_b32 {t1}, 16, {t0}
        v_and_b32 {t0}, 0xffff, {t0}
        v_max_u32 {t0}, {t0}, {t1}
        """)
        self.stamp("par")
        W = {p: V.get(2) for p in (1, 16, 256)}
        u0, u1 = V.get(), V.get()
        fill = [f"v_lshlrev_b32 {P[k]}, s3, {P[k]}" for k in range(4)]
        fill += [f"v_and_b32 {P[k]}, 0xffff0000, {P[k]}" for k in range(4)]
        fill += [f"v_mul_f32 {P[0]}, {LOG2E}, {P[0]}", f"v_exp_f32 {P[0]}, {P[0]}", f"v_mul_f32 {P[1]}, {P[1]}, {dt}",
                 f"v_cvt_pk_bf16_f32 {P[0]}, 0, {P[0]}", f"v_mul_f32 {P[1]}, {INV2PI}, {P[1]}", f"v_mul_f32 {P[0]}, {P[0]}, {dt}",
                 f"v_fract_f32 {u1}, {P[1]}", f"v_mul_f32 {P[0]}, {LOG2E | 0x80000000}, {P[0]}"]
        self.allreduce(A, "v_max_u32", [t0], 64, fill)
        A(f"v_exp_f32 {u0}, {P[0]}\nv_cos_f32 {W[1][0]}, {u1}\nv_sin_f32 {W[1][1]}, {u1}")
        A(f"""
        v_lshrrev_b32 {t0}, 7, {t0}
        v_mul_f32 {W[1][0]}, {W[1][0]}, {u0}
        v_mul_f32 {W[1][1]}, {W[1][1]}, {u0}
        v_max_u32 {t0}, 8, {t0}
        v_lshrrev_b32 {t1}, 23, {dt}
        v_add_u32 {t1}, {t1}, {t0}
        v_subrev_u32 {t1}, 127, {t1}
        v_max_i32 {t1}, 0, {t1}
        v_min_i32 {t1}, 254, {t1}
        v_lshlrev_b32 {self.vG16}, 23, {t1}
        v_sub_u32 {t0}, 259, {t0}
        v_and_b32 {dt}, 0x007fffff, {dt}
        v_lshl_or_b32 {dt}, {t0}, 23, {dt}
        """)
        L, M, Rr, T = V.get(2), V.get(2), V.get(2), V.get(2)
        for p, mul in ((16, 0x41800000), (256, 0x43800000)):
            w = W[p]
            A(f"v_mul_f32 {u0}, {mul}, {P[0]}\nv_mul_f32 {u1}, {mul}, {P[1]}")
            A(f"v_exp_f32 {u0}, {u0}\nv_fract_f32 {u1}, {u1}")
            A(f"v_cos_f32 {w[0]}, {u1}\nv_sin_f32 {w[1]}, {u1}")
            A(f"v_mul_f32 {L[p // 256]}, {P[2 + p // 256]}, {dt}")
            A(f"v_mul_f32 {w[0]}, {w[0]}, {u0}\nv_mul_f32 {w[1]}, {w[1]}, {u0}")
        V.put(u0, u1, t1, dt, P)
        self.stamp("ws")
        NB_ = self.o["recb"]
        pk = [V.get() for _ in range(2 * NB_)]
        cnt = [0]
        queue = []
        A(f"s_mov_b32 m0, {self.sStM}")

        def cmul(d, a, b):
            A(f"v_pk_mul_f32 {T}, {a}, {b} op_sel_hi:[0,1]")
            A(f"v_pk_fma_f32 {d}, {a}, {b}, {T} op_sel:[1,1,0] op_sel_hi:[1,0,1] neg_lo:[0,1,0]")

        def flush_q():
            for row, r in queue:
                A(f"ds_write_addtid_b32 {r} offset:{32768 + row * ROWB}")
            queue.clear()

        def put(row, v, conj=False):
            r = pk[cnt[0] % (2 * NB_)]
            cnt[0] += 1
            A(f"v_cvt_pk_f16_f32 {r}, {v[0]}, {'-' if conj else ''}{v[1]}")
            queue.append((row, r))
            if len(queue) == NB_:
                flush_q()

        A(f"v_mov_b32 {t0}, 0x3c00")
        queue.append((0, t0))
        yield
        put(1, W[16], conj=True)
        cmul(Rr, W[16], W[16])
        put(2, Rr, conj=True)
        for j in range(3, 16):
            yield
            cmul(Rr, Rr, W[16])
            put(j, Rr, conj=True)
        self.stamp("recR")
        for al in range(17):
            yield
            if al:
                cmul(L, L, W[1])
            if al < 16:
                put(16 + al, L)
            if al % 2 == 0:
                yield
                cmul(M, L, W[256])
                put(32 + al // 2, M)
                if al and al % 4 == 0:
                    for a in range(2):
                        yield
                        cmul(M, M, W[256])
                        put(41 + 4 * a + al // 4 - 1, M)
                    if al % 8 == 0:
                        for a in range(4):
                            yield
                            cmul(M, M, W[256])
                            put(49 + 2 * a + al // 8 - 1, M)
            if al == 8:
                self.maybe_s1("rec1")
        flush_q()
        V.put(L, M, Rr, T, *pk, *W.values(), t0)

    def kgen(self):
        A, V = self.A, self.V
        V.put(*self.G)
        for _ in self.ksteps:
            pass
        self.stamp("rec")
        self.maybe_s1("rec2")
        A.barrier()
        self.stamp("b2")
        NB = 4
        Bb = [V.get(4) for _ in range(NB)]
        A1 = [V.get(4) for _ in range(NB)]
        A2 = [V.get(4) for _ in range(NB)]
        D1, D2 = V.get(4), V.get(4)

        def rd(q):
            A(f"ds_read_b128 {Bb[q % NB]}, {self.vBm} offset:{64 * q}")
            A(f"ds_read_b128 {A1[q % NB]}, {self.vA1} offset:{64 * q}")
            A(f"ds_read_b128 {A2[q % NB]}, {self.vA2} offset:{64 * q}")
        for q in range(NB):
            rd(q)
        for q in range(8):
            A(f"v_mfma_f32_16x16x32_f16 {D1}, {A1[q % NB]}, {Bb[q % NB]}, {D1 if q else 0}")
            A(f"v_mfma_f32_16x16x32_f16 {D2}, {A2[q % NB]}, {Bb[q % NB]}, {D2 if q else 0}")
            if q + NB < 8:
                rd(q + NB)
        self.maybe_s1("mfma")
        self.stamp("kmf0")
        K1, K2 = V.get(2), V.get(2)
        A(f"s_cmp_eq_u32 {self.sH}, 0\ns_cselect_b32 s3, 63, 55\ns_cselect_b32 s16, 4, 2")
        t0 = V.get()
        A(f"v_add_u32 {t0}, s16, {self.vKs}")
        A(f"v_cvt_pk_f16_f32 {K1[0]}, {D1[0]}, {D1[1]}\nv_cvt_pk_f16_f32 {K1[1]}, {D1[2]}, {D1[3]}")
        A(f"v_cvt_pk_f16_f32 {K2[0]}, {D2[0]}, {D2[1]}\nv_cvt_pk_f16_f32 {K2[1]}, {D2[2]}, {D2[3]}")
        A(f"ds_write_b64 {self.vK1}, {K1}\nds_write_b64 {self.vK2}, {K2}")
        A("s_mov_b64 exec, 0\ns_bitset1_b64 exec, s3")
        A(f"ds_write_b16 {self.vKs}, {K2[0]}\nds_write_b16 {self.vKs}, {K2[0]} offset:2\nds_write_b16 {t0}, {K2[0]}")
        A("s_mov_b64 exec, -1")
        V.put(*Bb, *A1, *A2, D1, D2, self.vA1, self.vA2, self.vBm, self.vK1, self.vK2, self.vKs, t0)
        A.barrier()
        V.put(K1, K2)
        self.stamp("kmf")
        self.maybe_s1("shift")
        D, C1, C2, C3 = V.get(6), V.get(4), V.get(4), V.get(4)
        A(f"ds_read_b128 {D[0:4]}, {self.vShift} offset:{L_K}\nds_read_b64 {D[4:6]}, {self.vShift} offset:{L_K + 16}")
        for k in range(4):
            A(f"v_alignbit_b32 {C1[k]}, {D[k + 1]}, {D[k]}, 16")
        A(f"ds_write_b128 {self.vShift}, {C1} offset:{L_K + KCOPY}")
        for k in range(4):
            A(f"v_mov_b32 {C2[k]}, {D[k + 1]}")
        A(f"ds_write_b128 {self.vShift}, {C2} offset:{L_K + 2 * KCOPY}")
        for k in range(4):
            A(f"v_alignbit_b32 {C3[k]}, {D[k + 2]}, {D[k + 1]}, 16")
        A(f"ds_write_b128 {self.vShift}, {C3} offset:{L_K + 3 * KCOPY}")
        if not self.o["frag_in"]:
            A.barrier()
        self.shift_regs = (D, C1, C2, C3, self.vShift)
        self.stamp("shift")
        self.maybe_s1("frag")
        AC = self.AC
        self.KN = [AC.get(4, 4) for _ in range(17)]
        self.KX = AC.get(4, 4)
        self.B2 = {(k, d): AC.get(4, 4) for k in range(2) for d in (2, 3, 4)}
        self.B3 = {d: AC.get(4, 4) for d in (4, 5, 6, 7)}
        rd = {}
        for q in range(17):
            rd[str(self.KN[q])] = [f"ds_read_b64 {self.KN[q][2 * hf:2 * hf + 2]}, {self.vN} offset:{64 * (16 - q) + 8 * hf}" for hf in range(2)]
        rd[str(self.KX)] = [f"ds_read_b64 {self.KX[2 * hf:2 * hf + 2]}, {self.vN} offset:{2 * NX + 8 * hf}" for hf in range(2)]
        for (k, d), r in self.B2.items():
            rd[str(r)] = [f"ds_read_b64 {r[2 * hf:2 * hf + 2]}, {self.vF} offset:{2 * (V2[2 * k + hf] + 32 - 16 * (d - 2))}" for hf in range(2)]
        for d, r in self.B3.items():
            rd[str(r)] = [f"ds_read_b64 {r[2 * hf:2 * hf + 2]}, {self.vF} offset:{2 * (V3[hf] + 48 - 16 * (d - 4))}" for hf in range(2)]
        self.frag_reads = {}
        if self.o["frag_in"]:
            self.frag_reads = rd
        else:
            for v in rd.values():
                A("\n".join(v))
        self.maybe_s1("end")
        self.stamp("frag")

    def s1_consume(self, A, sfx):
        V = self.V
        UG = self.UG
        t0, t1 = V.get(), V.get()

        def check(C):
            for k in range(8):
                C(f"v_xor_b32 {UG[k]}, {self.sTag}, {UG[k]}")
            C(f"v_or3_b32 {t0}, {UG[0]}, {UG[1]}, {UG[2]}\nv_or3_b32 {t1}, {UG[3]}, {UG[4]}, {UG[5]}")
            C(f"v_or3_b32 {t0}, {t0}, {UG[6]}, {UG[7]}\nv_or_b32 {t0}, {t0}, {t1}")
            C(f"v_and_b32 {t0}, {TAGMASK}, {t0}\nv_cmp_ne_u32 vcc, 0, {t0}")
        self.poll(A, "s1" + sfx, self.s1_loads, check)
        self.stamp("s1w", A)
        self.warm("s1w", A)
        A(f"ds_write_b128 {self.vUw}, {UG[0:4]} offset:{L_U + 512}")
        A(f"ds_write_b128 {self.vUw}, {UG[4:8]} offset:{L_U + 512 + 2048}")
        self.stamp("s1", A)
        A.barrier()
        self.stamp("b5", A)
        V.put(t0, t1, *self.shift_regs)

    def conv(self, A, tiles, dma):
        V, AC = self.V, self.AC
        acc = {j: V.get(4) for j in tiles}
        NF, NG, NW, NP = self.o["nf"], self.o["ng"], 6, 6
        PE, PD, NPRE = self.o["pe"], self.o["pd"], self.o["npre"]
        Fb = [AC.get(4, 4) for _ in range(NF)]
        Gb = [AC.get(4, 4) for _ in range(NG)]
        Wb = [V.get(4) for _ in range(NW)]
        Pb = [V.get(4) for _ in range(NP)]
        EU = [V.get(2) for _ in range(2)]
        ED = [V.get(4) for _ in range(2)]
        EY, EZ = V.get(4), V.get(2)
        qmax = {0: 7, 1: 15}
        b2 = sorted({j - d for j in tiles for d in (2, 3, 4) if j - d >= 0})
        b3 = sorted({j - d for j in tiles for d in (4, 5, 6, 7) if j - d >= 0})
        nlo = min(8 * j - qmax.get(j, 16) for j in tiles)
        nhi = 8 * max(tiles)
        near = []
        for fi, n in enumerate(range(nlo, nhi + 1)):
            for j in tiles:
                q = 8 * j - n
                if 0 <= q <= qmax.get(j, 16):
                    near.append((j, self.KN[q], fi, q == 0))
        far = []
        gfr, pcount = [], 0
        for b in sorted(set(b2) | set(b3)):
            ga, gb = len(gfr), len(gfr) + 1
            gfr += [256 * b - 16, 256 * b - 24]
            mains = []
            if b in b2:
                pa, pb = pcount, pcount + 1
                pcount += 2
                far += [("band", ga, (12, 1), pa, 0), ("band", ga, (8, 2), pa, 1), ("band", gb, (12, 1), pb, 0), ("band", gb, (8, 2), pb, 1)]
                mains += [("main", b + d, pa, self.B2[(0, d)]) for d in (2, 3, 4) if b + d in tiles]
                mains += [("main", b + d, pb, self.B2[(1, d)]) for d in (2, 3, 4) if b + d in tiles]
            if b in b3:
                pc = pcount
                pcount += 1
                far += [("band", ga, (8, 3), pc, 0), ("band", gb, (8, 4), pc, 1)]
                mains += [("main", b + d, pc, self.B3[d]) for d in (4, 5, 6, 7) if b + d in tiles]
            if b + 4 in tiles:
                far.append(("x", b + 4, ga))
            far += mains
        LAT = 5
        mf, fill = [], []
        started, done_at = set(), {}
        fuse, guse, plast, pready = {}, {}, {}, {}
        wcount = 0
        ni = 0
        farleft = list(far)
        span = self.o["far_span"][0 if 0 in tiles else 1]
        credit = 0.0

        def acc_mf(j, a, b):
            mf.append(f"v_mfma_f32_16x16x32_f16 {acc[j]}, {a}, {b}, {acc[j] if j in started else 0}")
            started.add(j)

        def far_ok(it):
            t = len(mf)
            if it[0] == "main":
                return pready.get(it[2], 10 ** 6) <= t
            if it[0] == "band":
                prev = it[3] - NP
                return prev < 0 or not any(o[0] == "main" and o[2] == prev for o in farleft)
            return True

        while ni < len(near) or farleft:
            t = len(mf)
            want_far = farleft and (credit >= 1.0 or ni >= len(near))
            if ni < len(near) and near[ni][3] and any(o[0] in ("main", "x") and o[1] == near[ni][0] for o in farleft):
                want_far = True
            pick = None
            if want_far:
                for it in farleft[:8]:
                    if far_ok(it):
                        if it[0] == "band" and any(o[0] == "band" for o in farleft[:farleft.index(it)]):
                            continue
                        pick = it
                        break
            if pick is None and ni < len(near) and not (near[ni][3] and any(o[0] in ("main", "x") and o[1] == near[ni][0] for o in farleft)):
                j, a, fi, last = near[ni]
                ni += 1
                acc_mf(j, a, Fb[fi % NF])
                fuse.setdefault(fi, [t, t])[1] = t
                if last:
                    done_at[j] = t
                credit += len(far) / span
                continue
            assert pick is not None, "conv schedule is stuck"
            farleft.remove(pick)
            credit -= 1.0
            if pick[0] == "band":
                _, g, key, p, hf = pick
                w = Wb[wcount % NW]
                wcount += 1
                mf.append(f"v_mfma_f32_16x16x32_f16 {w}, {Gb[g % NG]}, {self.BAND[key]}, 0")
                guse.setdefault(g, [t, t])[1] = t
                for k in range(2):
                    fill.append([t + 3, t + LAT - 1, f"v_cvt_pk_f16_f32 {Pb[p % NP][2 * hf + k]}, {w[2 * k]}, {w[2 * k + 1]}", None])
                if hf == 1:
                    pready[p] = t + LAT
            elif pick[0] == "x":
                acc_mf(pick[1], self.KX, Gb[pick[2] % NG])
                guse.setdefault(pick[2], [t, t])[1] = t
            else:
                acc_mf(pick[1], Pb[pick[2] % NP], pick[3])
        nm = len(mf)
        pre = []
        reads = []
        for fi in sorted(fuse):
            txt = f"ds_read_b128 {Fb[fi % NF]}, {self.vUf} offset:{512 + 2 * (32 * (nlo + fi) - 16)}"
            reads.append((fuse[fi][0], fuse[fi - NF][1] if fi >= NF else -1, txt))
        for g in sorted(guse):
            txt = f"ds_read_b128 {Gb[g % NG]}, {self.vUf} offset:{512 + 2 * gfr[g]}"
            reads.append((guse[g][0], guse[g - NG][1] if g >= NG else -1, txt))
        seen = set()
        for t, txt in enumerate(mf):
            for name, two in self.frag_reads.items():
                if name not in seen and f" {name}," in txt:
                    seen.add(name)
                    reads += [(t, -1, two[0]), (t, -1, two[1])]
        reads.sort(key=lambda r: r[0])
        for first, free, txt in reads:
            if free < 0 and first <= NPRE:
                pre.append(txt)
            else:
                assert free < first
                fill.append([max(free, first - PE, 0), max(free, first - PD, 0), txt, None])
        order_t = sorted(tiles, key=lambda j: done_at[j])
        for k, j in enumerate(order_t):
            eu, ed = EU[k % 2], ED[k % 2]
            t = done_at[j]
            nxt = done_at[order_t[k + 1]] if k + 1 < len(order_t) else nm + 100
            e0 = 2 if k < 2 else done_at[order_t[k - 2]] + 12
            assert e0 + 4 <= t + 2
            fill.append([e0, max(e0, t - 8), f"ds_read_b64 {eu}, {self.vUe} offset:{512 + 512 * j}", f"e1_{j}"])
            for r in range(4):
                fill.append([e0 + 4, t + 2, f"v_fma_mix_f32 {ed[r]}, {eu[r // 2]}, {self.vD16}, 0 op_sel:[{r % 2},0,0] op_sel_hi:[1,0,0]", f"e1_{j}"])
            for r in range(4):
                fill.append([e0 + 4, t + 2, f"v_cvt_pk_bf16_f32 {ed[r]}, 0, {ed[r]}", f"e1_{j}"])
            seq2 = [f"v_cvt_pk_bf16_f32 {EY[r]}, 0, {acc[j][r]}" for r in range(4)]
            seq2 += [f"v_fma_f32 {EY[r]}, {EY[r]}, {self.vG16}, {ed[r]}" for r in range(4)]
            seq2 += [f"v_cvt_pk_bf16_f32 {EZ[r]}, {EY[2 * r]}, {EY[2 * r + 1]}" for r in range(2)]
            seq2.append(f"ds_write_b64 {self.vZw}, {EZ} offset:{L_Z + 1024 * j}")
            for txt in seq2:
                fill.append([t + 3, min(t + 11, nxt + 2), txt, f"e2_{j}"])
        if self.o["warm_at"] == "conv" and self.o["dma_at"] != "none":
            ws = self.o["warm_slot"]
            fill.append([ws, ws, ("s_nop 0", f"global_load_dword {self.vJunk[1]}, {self.vWm}, {self.sWm} {self.o['w_pol']}"), "warm"])
        step = (nm - 6) // max(len(dma), 1)
        for k, grp in enumerate(dma):
            fill.append([1 + k * step, 3 + k * step, grp, "dma"])
        for txt in pre:
            A(txt)
        for i, f in enumerate(fill):
            f.append(i)
        left = list(fill)
        A.prewait([mf[0]])
        for t in range(nm):
            A(mf[t])
            chosen = []
            for f in sorted([f for f in left if f[0] <= t], key=lambda f: (f[1], f[4])):
                if len(chosen) >= 2 and f[1] > t:
                    break
                if f[3] and any(g[3] == f[3] and g[4] < f[4] and g not in chosen for g in left):
                    continue
                mem = isinstance(f[2], tuple) or f[2].startswith("ds_")
                if mem and f[1] > t and any(g[3] == f[3] and f[3] for g in chosen):
                    continue
                chosen.append(f)
            memf = [f for f in chosen if (isinstance(f[2], tuple) or f[2].startswith("ds_")) and not any(g[3] == f[3] and f[3] and g[4] < f[4] for g in chosen)]
            rest = [f for f in chosen if f not in memf]
            A.prewait([f[2] for f in chosen if not isinstance(f[2], tuple)] + ([mf[t + 1]] if t + 1 < nm else []))
            for f in memf + rest:
                if isinstance(f[2], tuple):
                    A(f[2][0])
                    A(f[2][1], tag="dma")
                else:
                    A(f[2])
                left.remove(f)
        for f in sorted(left, key=lambda f: (f[1], f[4])):
            A(f[2])
        self.nmfma = getattr(self, "nmfma", []) + [nm]
        V.put(*acc.values(), *Wb, *Pb, *EU, *ED, EY, EZ)
        AC.put(*Fb, *Gb)

    def dma_plan(self, A, role):
        V = self.V
        vL, sW = self.vL, self.sW
        t0, t1 = V.get(), V.get()
        self.vWa = V.get()
        if role == 0:
            A(f"""
            s_lshl_b32 {self.sWb}, {sW}, 13
            s_add_u32 {self.sWb}, {self.sWb}, {L_STAGE}
            s_lshl_b32 s3, {sW}, 7
            v_lshrrev_b32 {t0}, 2, {vL}
            v_add_u32 {t0}, s3, {t0}
            v_mul_u32_u24 {t0}, 3584, {t0}
            v_and_b32 {t1}, 3, {vL}
            v_lshl_add_u32 {t0}, {t1}, 4, {t0}
            s_lshl_b32 s3, {self.sBlk}, 6
            v_add_u32 {self.vWa}, s3, {t0}
            s_cmp_eq_u32 {self.sUp}, 0
            s_cselect_b32 s4, s22, s24
            s_cselect_b32 s5, s23, s25
            """)
            n, step = 8, 16 * 3584
        else:
            A(f"""
            s_mul_i32 {self.sWb}, {sW}, 14336
            s_add_u32 {self.sWb}, {self.sWb}, {L_STAGE}
            s_mul_i32 s3, {sW}, 448
            v_lshrrev_b32 {t0}, 1, {vL}
            v_add_u32 {t0}, s3, {t0}
            v_lshlrev_b32 {t0}, 10, {t0}
            v_and_b32 {t1}, 1, {vL}
            v_lshl_add_u32 {t0}, {t1}, 4, {t0}
            s_lshl_b32 s3, {self.sBlk}, 5
            v_add_u32 {self.vWa}, s3, {t0}
            s_mov_b64 s[4:5], s[26:27]
            """)
            n, step = 14, 0x8000
        V.put(t0, t1)
        return [(f"s_add_u32 m0, {self.sWb}, {m * 1024}" + (f"\ns_add_u32 s4, s4, {step}\ns_addc_u32 s5, s5, 0" if m else ""),
                 f"global_load_lds_dwordx4 {self.vWa}, s[4:5]") for m in range(n)]

    def warm_addr(self):
        A, V = self.A, self.V
        t0, t1 = V.get(), V.get()
        self.vWm, self.sWm = V.get(), self.S.get(2)
        A(f"""
        s_lshr_b32 s3, {self.sL}, 5
        s_and_b32 s16, {self.sL}, 31
        s_mul_i32 s17, s16, {16 * 3584}
        s_mul_i32 s18, s3, 448
        s_add_u32 s17, s17, s18
        v_lshrrev_b32 {t0}, 2, {self.vL}
        v_and_b32 {t1}, 3, v0
        v_mul_u32_u24 {t0}, 3584, {t0}
        v_lshl_add_u32 {t0}, {t1}, 7, {t0}
        v_add_u32 {t0}, s17, {t0}
        s_mul_i32 s17, s16, {56 * 1024}
        s_lshl_b32 s3, s3, 7
        s_add_u32 s17, s17, s3
        s_and_b32 s3, {self.sW}, 1
        s_mul_i32 s3, s3, {28 * 1024}
        s_add_u32 s17, s17, s3
        v_min_u32 {t1}, 27, {self.vL}
        v_lshl_add_u32 {t1}, {t1}, 10, s17
        s_cmp_eq_u32 {self.sW}, 0
        s_cselect_b32 s18, s22, s24
        s_cselect_b32 s19, s23, s25
        s_cmp_lt_u32 {self.sW}, 2
        s_cselect_b32 {self.sWm[0]}, s18, s26
        s_cselect_b32 {self.sWm[1]}, s19, s27
        s_cselect_b64 vcc, -1, 0
        v_cndmask_b32 {self.vWm}, {t1}, {t0}, vcc
        """)
        V.put(t0, t1)

    def warm(self, where, A=None):
        if self.o["warm_at"] == where and self.o["dma_at"] != "none":
            (A or self.A)(f"global_load_dword {self.vJunk[1]}, {self.vWm}, {self.sWm} {self.o['w_pol']}")

    def conv_all(self):
        A = self.A
        self.s1_consume(A, "")
        A(f"s_cmp_eq_u32 {self.sH}, 0\ns_cbranch_scc0 L_conv_b")
        B = A.fork()
        self.conv(A, [0, 1, 2, 3, 4], [])
        A.wait(lg=0)
        A.flush()
        A("s_branch L_conv_done")
        B.label("L_conv_b")
        self.conv(B, [5, 6, 7], [])
        B.wait(lg=0)
        B.flush()
        A.lines += B.lines
        A.count += B.count
        A.nops += B.nops
        A.label("L_conv_done")
        self.V.put(self.vWm)
        self.V.put(*self.BAND.values(), self.vUf, self.vUe, self.vZw, self.vG16, self.vD16, self.UG, self.vUw,
                   self.vS1i, self.vS1i2, self.vN, self.vF)
        self.AC.put(*self.KN, self.KX, *self.B2.values(), *self.B3.values())
        self.stamp("conv", A)
        A("s_barrier")
        self.stamp("b6", A)
        self.ZT = ZT = self.V.get(8)
        A(f"ds_read_b128 {ZT[0:4]}, {self.vZr} offset:{L_Z}\nds_read_b128 {ZT[4:8]}, {self.vZr} offset:{L_Z + 4096}")
        A(f"global_store_dwordx4 {self.vS2o}, {ZT[0:4]}, s[30:31] sc1", tag="s2st")
        A(f"global_store_dwordx4 {self.vS2o2}, {ZT[4:8]}, s[30:31] sc1", tag="s2st")
        self.stamp("st2", A)
        self.V.put(self.vZr, self.vS2o, self.vS2o2)

    def poison_check(self, regs, t0):
        def chk(C):
            r = list(regs)
            if len(r) == 1:
                C(f"v_cmp_eq_u32 vcc, -1, {r[0]}")
                return
            C(f"v_max3_u32 {t0}, {r[0]}, {r[1]}, {r[2] if len(r) > 2 else r[1]}")
            r = r[3:]
            while r:
                C(f"v_max3_u32 {t0}, {t0}, {r[0]}, {r[1] if len(r) > 1 else r[0]}")
                r = r[2:]
            C(f"v_cmp_eq_u32 vcc, -1, {t0}")
        return chk

    def phase_c(self):
        A, V = self.A, self.V
        vL, vI, vG, sL, sW = self.vL, self.vI, self.vG, self.sL, self.sW
        get = V.get
        self.t = t0, t1, t2 = get(), get(), get()
        vSW, vKw, vS3o, vRo = get(), get(), get(), get()
        self.vS3i = get()
        vHr = self.vHr
        XL, XH = get(8), get(8)
        for j in range(8):
            A(f"v_lshlrev_b32 {XL[j]}, 16, {self.XA[j]}")
            A(f"v_and_b32 {XH[j]}, 0xffff0000, {self.XA[j]}")
        for k in range(8):
            A(f"v_dot2_f32_bf16 {vSW}, {self.WR[k]}, {self.sOnes}, {vSW if k else 0}")
        self.allreduce(A, "v_add_f32", [vSW], 32)
        A(f"""
        v_and_b32 {t0}, 31, v0
        v_lshlrev_b32 {t0}, 4, {t0}
        v_lshlrev_b32 {vKw}, 2, {self.vTau}
        s_lshl_b32 s3, {sW}, 13
        s_lshl_b32 s16, {sL}, 4
        s_add_u32 s3, s3, s16
        s_add_u32 s3, s3, {WS_S3}
        v_lshl_add_u32 {vS3o}, {vL}, 12, s3
        s_lshr_b32 s3, {sL}, 5
        s_lshl_b32 s3, s3, 12
        s_add_u32 s16, s3, {WS_S3}
        v_lshl_add_u32 {self.vS3i}, v0, 4, s16
        s_lshl_b32 s16, {sL}, 11
        s_add_u32 s16, s16, {WS_ROWS}
        v_add_u32 {vRo}, s16, {t0}
        s_lshl_b32 s3, {sL}, 3
        s_sub_u32 s3, 2047, s3
        v_sub_u32 {t2}, s3, {self.vTau}
        v_mov_b32 {t1}, 0
        """)
        if self.o["dma_ack2"] and self.o["dma_at"] != "none":
            A(f"s_cmp_eq_u32 {self.sRole}, 2\ns_cbranch_scc1 L_dma_done")
            A(f"s_cmp_eq_u32 {self.sRole}, 1\ns_cbranch_scc1 L_dma_r1")
            keep = list(A.vm)
            for role in (0, 1):
                if role:
                    A.label("L_dma_r1")
                plan = self.dma_plan(A, role)
                n = len(plan) if role == 0 else self.o["dma_ack2"]
                for a, b in plan[:n]:
                    A(a)
                    A(b, tag="dma")
                if role == 0:
                    A("s_branch L_dma_done")
                    V.put(self.vWa)
                else:
                    self.plan1 = plan[n:]
            A.label("L_dma_done")
        self.stamp("dma", A)
        A.wait(vm=0)
        self.stamp("ack2", A)
        ZT = self.ZT

        def s2_loads(C):
            C(f"global_load_dwordx4 {ZT[0:4]}, {self.vS2i}, s[30:31] sc1")
            C(f"global_load_dwordx4 {ZT[4:8]}, {self.vS2i2}, s[30:31] sc1")
        s2_loads(A)
        self.poll(A, "s2", s2_loads, self.poison_check([ZT[k] for k in range(8)], t0))
        self.stamp("s2", A)
        HP = get(8)
        self.T = T = get(8)
        for grp in range(2):
            for jj in range(4):
                j = 4 * grp + jj
                sel = self.sHi if j % 2 else self.sLo
                A(f"v_dot2_f32_bf16 {T[2 * jj]}, {ZT[j // 2]}, {sel}, {XL[j]}")
                A(f"v_dot2_f32_bf16 {T[2 * jj + 1]}, {ZT[4 + j // 2]}, {sel}, {XH[j]}")
            for jj in range(4):
                A(f"v_cvt_pk_bf16_f32 {HP[4 * grp + jj]}, {T[2 * jj]}, {T[2 * jj + 1]}")
            for q in range(2):
                j = 4 * grp + 2 * q
                A(f"ds_write2st64_b32 {self.vHw2}, {HP[j]}, {HP[j + 1]} offset0:{4 * j} offset1:{4 * j + 4}")
        self.stamp("hw", A)
        A.barrier()
        self.stamp("b7", A)
        V.put(XL, XH, HP, ZT, self.vS2i, self.vS2i2, self.XA)
        HB = get(8)
        A(f"ds_read_b128 {HB[0:4]}, {vHr} offset:{L_H}\nds_read_b128 {HB[4:8]}, {vHr} offset:{L_H + 512}")
        s1, s2, s3, NM, RS = get(), get(), get(), get(2), get(2)
        self.key = key = get()
        for k in range(8):
            A(f"v_dot2_f32_bf16 {s1}, {HB[k]}, {self.sOnes}, {s1 if k else 0}")
            A(f"v_dot2_f32_bf16 {s2}, {HB[k]}, {HB[k]}, {s2 if k else 0}")
            A(f"v_dot2_f32_bf16 {s3}, {HB[k]}, {self.WR[k]}, {s3 if k else 0}")
        self.allreduce(A, "v_add_f32", [s1, s2, s3], 32)
        self.ln_stats(A, s1, s2, NM[0], RS[0])
        A(f"v_fma_f32 {s3}, {NM[0]}, {vSW}, {s3}\nv_mul_f32 {s3}, {s3}, {RS[0]}")
        self.rnd(A, s3, s3)
        A(f"""
        v_ashrrev_i32 {t0}, 31, {s3}
        v_or_b32 {t0}, 0x80000000, {t0}
        v_xor_b32 {t0}, {s3}, {t0}
        v_and_b32 {t0}, 0xffff0000, {t0}
        v_or_b32 {key}, {t0}, {t2}
        s_mov_b64 exec, 1
        s_bitset1_b64 exec, 32
        ds_write_b32 {vKw}, {key} offset:{L_KEY}
        s_mov_b64 exec, -1
        """)
        self.stamp("key", A)
        H32 = get(16)
        for k in range(8):
            A(f"v_lshlrev_b32 {H32[2 * k]}, 16, {HB[k]}\nv_and_b32 {H32[2 * k + 1]}, 0xffff0000, {HB[k]}")
        A.barrier()
        self.kmax = kmax = get()
        A(f"ds_read_b128 {T[0:4]}, {t1} offset:{L_KEY}\nds_read_b128 {T[4:8]}, {t1} offset:{L_KEY + 16}")
        HN = get(8)
        self.D = D = get(32)
        A(f"v_mov_b32 {NM[1]}, {NM[0]}\nv_mov_b32 {RS[1]}, {RS[0]}")
        for k in range(8):
            A(f"v_pk_add_f32 {D[2 * k:2 * k + 2]}, {H32[2 * k:2 * k + 2]}, {NM}")
        A(f"v_max3_u32 {kmax}, {T[0]}, {T[1]}, {T[2]}\nv_max3_u32 {t0}, {T[3]}, {T[4]}, {T[5]}")
        A(f"v_max3_u32 {kmax}, {kmax}, {T[6]}, {T[7]}\nv_max_u32 {kmax}, {kmax}, {t0}")
        A("s_mov_b64 exec, 3")
        A(f"global_store_dword {vS3o}, {kmax}, s[30:31] sc1", tag="s3st")
        A("s_mov_b64 exec, -1")
        self.stamp("pub3", A)
        sC = self.sC
        A(f"v_cmp_eq_u32 {sC}, {key}, {kmax}")
        for k in range(16):
            self.rnd(A, D[k], D[k])
        for k in range(8):
            A(f"v_pk_mul_f32 {D[2 * k:2 * k + 2]}, {D[2 * k:2 * k + 2]}, {RS}")
        for k in range(8):
            A(f"v_cvt_pk_bf16_f32 {HN[k]}, {D[2 * k]}, {D[2 * k + 1]}")
        A(f"s_mov_b64 exec, {sC}")
        A(f"global_store_dwordx4 {vRo}, {HN[0:4]}, s[30:31] sc1", tag="rowst")
        A(f"global_store_dwordx4 {vRo}, {HN[4:8]}, s[30:31] offset:512 sc1", tag="rowst")
        A(f"global_store_dwordx4 {vRo}, {HB[0:4]}, s[30:31] offset:1024 sc1", tag="rowst")
        A(f"global_store_dwordx4 {vRo}, {HB[4:8]}, s[30:31] offset:1536 sc1", tag="rowst")
        A("s_mov_b64 exec, -1")
        self.stamp("hn", A)
        self.O = O = get(8)
        for k in range(8):
            A(f"v_dot2_f32_bf16 {D[2 * k]}, {HN[k]}, {self.sLo}, {H32[2 * k]}")
            A(f"v_dot2_f32_bf16 {D[2 * k + 1]}, {HN[k]}, {self.sHi}, {H32[2 * k + 1]}")
        for k in range(8):
            A(f"v_cvt_pk_bf16_f32 {O[k]}, {D[2 * k]}, {D[2 * k + 1]}")
        self.stamp("outc", A)
        V.put(H32, s1, s2, s3, NM, RS, vSW, vKw, vS3o, vRo, self.WR)

    def out_stores(self, C):
        pol = self.o["out_pol"]
        C(f"global_store_dwordx4 {self.vRow}, {self.O[0:4]}, s[28:29] {pol}", tag="out")
        C(f"global_store_dwordx4 {self.vRow}, {self.O[4:8]}, s[28:29] offset:512 {pol}", tag="out")

    def resolve(self, A, sfx, between=None):
        t0, t1, t2 = self.t
        T, kin = self.T, self.kin

        def s3_loads(C):
            C(f"global_load_dword {kin}, {self.vS3i}, s[30:31] sc1")
        s3_loads(A)
        if between:
            between()
        A(f"v_lshrrev_b32 {t1}, 4, v0\nv_and_b32 {t1}, 12, {t1}\nv_mov_b32 {t2}, 0")
        self.poll(A, "s3" + sfx, s3_loads, self.poison_check([kin], t0))
        self.stamp("s3p", A)
        self.allreduce(A, "v_max_u32", [kin], 64)
        self.stamp("s3w", A)
        A(f"s_mov_b64 exec, 1\nds_write_b32 {t1}, {kin} offset:{L_KEY2}\ns_mov_b64 exec, -1")
        A.barrier()
        A(f"ds_read_b128 {T[0:4]}, {t2} offset:{L_KEY2}")
        A(f"v_max3_u32 {kin}, {T[0]}, {T[1]}, {T[2]}\nv_max_u32 {kin}, {kin}, {T[3]}")
        A(f"v_readfirstlane_b32 {self.sK}, {kin}")
        A(f"s_and_b32 {self.sT}, {self.sK}, 0x7ff\ns_sub_u32 {self.sT}, 2047, {self.sT}")
        self.stamp("s3", A)
        A(f"s_lshr_b32 s3, {self.sT}, 3\ns_lshl_b32 s3, s3, 11\ns_add_u32 s3, s3, {WS_ROWS}")

    def finish(self, A, sfx):
        A.flush()
        A.label(f"L_fin_{sfx}")
        if self.o["stamps"]:
            A.wait(vm=0)
            self.stamp("end", A)
            if self.o["clk"]:
                A("s_memtime s[96:97]")
                A.wait(lg=0)
                A("s_sub_u32 s100, s96, s100\ns_mov_b32 s101, 0")
            A("s_waitcnt vmcnt(0) lgkmcnt(0)")
            self.dump_stamps(A)
        A("s_endpgm")

    def tail0(self, A):
        V = self.V
        get = V.get
        vL, vI, vG, sL, sW, sC = self.vL, self.vI, self.vG, self.sL, self.sW, self.sC
        t0, t1, t2 = self.t
        T, D = self.T, self.D
        vTr, vRed, vXs, vPub, vRd = get(), get(), get(), get(), get()
        WT = [self.AC.get(4, 4) for _ in range(8)]
        plan = [] if self.o["dma_ack2"] else self.dma_plan(A, 0)
        if self.o["dma_at"] == "none":
            plan = []

        def dma():
            for a, b in plan:
                A(a)
                A(b, tag="dma")
        if not self.o["r0_late"]:
            dma()
        A(f"""
        v_and_b32 {t0}, 3, {vI}
        v_lshlrev_b32 {t0}, 3, {t0}
        v_lshrrev_b32 {t1}, 2, {vI}
        v_lshl_add_u32 {t1}, {vG}, 3, {t1}
        v_lshl_add_u32 {t0}, {t1}, 6, {t0}
        v_add_u32 {vTr}, {self.sWb}, {t0}
        """)

        def tr_reads():
            A.wait_tag("dma")
            for ct in range(2):
                for m in range(4):
                    for e2 in range(2):
                        A(f"ds_read_b64_tr_b16 {WT[4 * ct + m][2 * e2:2 * e2 + 2]}, {vTr} offset:{(32 * m + 4 * e2) * 64 + 32 * ct}")
        A(f"""
        s_lshl_b32 s3, {sW}, 2
        v_lshl_add_u32 {vRed}, {vI}, 4, s3
        v_and_b32 {t0}, 3, {vI}
        v_lshlrev_b32 {t0}, 6, {t0}
        v_lshl_add_u32 {t0}, {vG}, 4, {t0}
        s_lshl_b32 s3, {sW}, 8
        v_add_u32 {vXs}, s3, {t0}
        v_and_b32 {t0}, 31, {vL}
        v_lshlrev_b32 {vRd}, 4, {t0}
        v_lshrrev_b32 {t1}, 5, {vL}
        v_lshlrev_b32 {t1}, 13, {t1}
        v_lshl_add_u32 {t1}, {t0}, 1, {t1}
        s_lshl_b32 s3, {sW}, 14
        s_lshl_b32 s16, {self.sUp}, 12
        s_add_u32 s3, s3, s16
        s_lshl_b32 s16, {self.sBlk}, 6
        s_add_u32 s3, s3, s16
        s_add_u32 s3, s3, {WS_S4}
        v_add_u32 {vPub}, s3, {t1}
        """)
        A.wait_tag("s3st")
        self.stamp("ack3", A)

        late_out = self.o["r0_late"] == 2

        def between():
            if self.o["r0_late"]:
                dma()
            if not late_out:
                A(f"s_andn2_b64 exec, -1, {sC}")
                self.out_stores(A)
                A("s_mov_b64 exec, -1")
            if not self.o["r0_late"]:
                tr_reads()
        self.resolve(A, "r0", between)
        XS = get(4)
        A(f"v_add_u32 {vXs}, s3, {vXs}")

        def row_loads(C):
            C(f"global_load_dwordx4 {XS}, {vXs}, s[30:31] sc1")
        row_loads(A)
        if late_out:
            A(f"v_cmp_ne_u32 {sC}, {self.kin}, {self.key}")
        else:
            A(f"v_cmp_ne_u32 vcc, {self.kin}, {self.kmax}\ns_and_b64 exec, vcc, {sC}")
            self.out_stores(A)
            A("s_mov_b64 exec, -1")
        if self.o["r0_late"]:
            tr_reads()
        self.poll(A, "rowr0", row_loads, self.poison_check([XS[k] for k in range(4)], t0))
        self.stamp("row", A)
        for k in range(8):
            A(f"v_mfma_f32_16x16x32_bf16 {D[4 * k:4 * k + 4]}, {XS}, {WT[k]}, 0")
        A(f"s_cmp_eq_u32 {self.sUp}, 0\ns_cselect_b64 s[16:17], -1, 0")
        A(f"""
        v_add_f32 {t0}, {D[0]}, {D[5]}
        v_add_f32 {t1}, {D[10]}, {D[15]}
        v_add_f32 {t0}, {t0}, {t1}
        v_add_f32 {t1}, {D[16]}, {D[21]}
        v_add_f32 {t2}, {D[26]}, {D[31]}
        v_add_f32 {t1}, {t1}, {t2}
        s_mov_b64 exec, 0xffff
        ds_write_b32 {vRed}, {t0} offset:{L_RED}
        ds_write_b32 {vRed}, {t1} offset:{L_RED + 256}
        s_mov_b64 exec, -1
        """)
        self.stamp("g1m", A)
        A.barrier()
        self.stamp("g1b", A)
        A(f"ds_read_b128 {T[0:4]}, {vRd} offset:{L_RED}")
        A(f"v_pk_add_f32 {T[0:2]}, {T[0:2]}, {T[2:4]}\nv_add_f32 {T[0]}, {T[0]}, {T[1]}")
        self.rnd(A, T[0], T[0])
        A(f"v_mul_f32 {t0}, {LOG2E | 0x80000000}, {T[0]}\nv_exp_f32 {t0}, {t0}\nv_add_f32 {t0}, 1.0, {t0}")
        A(f"v_rcp_f32 {t0}, {t0}\nv_mul_f32 {t0}, {T[0]}, {t0}")
        A(f"v_cndmask_b32 {t0}, {T[0]}, {t0}, s[16:17]")
        A(f"v_mov_b32_dpp {t1}, {t0} row_shl:1 row_mask:0xf bank_mask:0xf")
        A(f"v_cvt_pk_bf16_f32 {XS[0]}, {t0}, {t1}")
        for k in range(1, 4):
            A(f"v_mov_b32_dpp {XS[k]}, {XS[0]} row_shl:{2 * k} row_mask:0xf bank_mask:0xf")
        A("s_mov_b32 exec_lo, 0x01010101\ns_mov_b32 exec_hi, 0x01010101")
        A(f"global_store_dwordx4 {vPub}, {XS}, s[30:31] sc1")
        self.stamp("g1", A)
        if late_out:
            A(f"s_mov_b64 exec, {sC}")
            self.out_stores(A)
        self.finish(A, "r0")

    def tail2(self, A):
        A.wait_tag("s3st")
        self.stamp("ack3", A)

        def between():
            A(f"s_andn2_b64 exec, -1, {self.sC}")
            self.out_stores(A)
            A("s_mov_b64 exec, -1")
        if self.o["r2_late"]:
            self.resolve(A, "r2")
            A(f"v_cmp_ne_u32 vcc, {self.kin}, {self.key}\ns_mov_b64 exec, vcc")
        else:
            self.resolve(A, "r2", between)
            A(f"v_cmp_ne_u32 vcc, {self.kin}, {self.kmax}\ns_and_b64 exec, vcc, {self.sC}")
        self.out_stores(A)
        self.finish(A, "r2")

    def tail1(self, A):
        V = self.V
        get = V.get
        vL, vI, vG, sL, sW, sC = self.vL, self.vI, self.vG, self.sL, self.sW, self.sC
        t0, t1, t2 = self.t
        T, D = self.T, self.D
        plan = self.plan1 if self.o["dma_ack2"] else self.dma_plan(A, 1)
        if self.o["dma_at"] == "none":
            plan = []
        n1 = self.o["r1_split"]
        for a, b in plan[:n1]:
            A(a)
            A(b, tag="dma")
        A.wait_tag("s3st")
        self.stamp("ack3", A)

        def between():
            for a, b in plan[n1:]:
                A(a)
                A(b, tag="dma")
        self.resolve(A, "r1", between)
        vTr, vRed, vSig, vOut, vS4i = get(), get(), get(), get(), get()
        HH = get(2)
        A(f"""
        s_lshl_b32 s16, {self.sBlk}, 5
        s_add_u32 s3, s3, s16
        v_lshrrev_b32 {t1}, 1, {vI}
        v_lshl_add_u32 {t1}, {t1}, 2, s3
        """)

        def row_loads(C):
            C(f"global_load_dword {HH[0]}, {t1}, s[30:31] sc1")
            C(f"global_load_dword {HH[1]}, {t1}, s[30:31] offset:1024 sc1")
        row_loads(A)
        A(f"v_cmp_eq_u32 vcc, {self.kin}, {self.key}\ns_andn2_b64 exec, -1, vcc")
        self.out_stores(A)
        A("s_mov_b64 exec, 1")
        A(f"v_mov_b32 {t0}, {self.sE}\nv_mov_b32 {t2}, 0")
        A(f"global_store_dword {t2}, {t0}, s[30:31] offset:{WS_EPOCH}")
        A("s_mov_b64 exec, -1")
        A(f"""
        v_and_b32 {t0}, 3, {vI}
        v_lshlrev_b32 {t0}, 3, {t0}
        v_lshrrev_b32 {t2}, 2, {vI}
        v_lshl_add_u32 {t2}, {vG}, 3, {t2}
        v_lshl_add_u32 {t0}, {t2}, 5, {t0}
        v_add_u32 {vTr}, {self.sWb}, {t0}
        """)
        self.poll(A, "rowr1", row_loads, self.poison_check([HH[0], HH[1]], t0))
        self.stamp("row", A)
        WT = [self.AC.get(4, 4) for _ in range(14)]
        A.wait_tag("dma")
        self.stamp("r1o", A)
        for m in range(14):
            for e2 in range(2):
                A(f"ds_read_b64_tr_b16 {WT[m][2 * e2:2 * e2 + 2]}, {vTr} offset:{(32 * m + 4 * e2) * 32}")
        self.stamp("r1t", A)
        sK, sT = self.sK, self.sT
        A(f"""
        s_and_b32 s16, {sK}, 0x7fff0000
        s_andn2_b32 s17, 0xffff0000, {sK}
        s_bitcmp1_b32 {sK}, 31
        s_cselect_b32 s16, s16, s17
        v_mov_b32 {t0}, s16
        v_mul_f32 {t0}, {LOG2E | 0x80000000}, {t0}
        v_exp_f32 {t0}, {t0}
        v_add_f32 {t0}, 1.0, {t0}
        v_rcp_f32 {t0}, {t0}
        """)
        self.rnd(A, vSig, t0)
        vS4u = get()
        A(f"""
        v_and_b32 {t0}, 1, {vI}
        v_xor_b32 {t0}, 1, {t0}
        v_lshlrev_b32 {t0}, 4, {t0}
        v_lshlrev_b32 {HH[0]}, {t0}, {HH[0]}
        v_lshlrev_b32 {HH[1]}, {t0}, {HH[1]}
        v_and_b32 {HH[0]}, 0xffff0000, {HH[0]}
        v_and_b32 {HH[1]}, 0xffff0000, {HH[1]}
        s_lshl_b32 s3, {sT}, 10
        s_lshl_b32 s16, {self.sBlk}, 5
        s_add_u32 s3, s3, s16
        v_lshl_add_u32 {vOut}, {vI}, 1, s3
        s_lshr_b32 s3, {sL}, 5
        s_lshl_b32 s3, s3, 13
        s_mul_i32 s16, {sW}, {56 * 16}
        s_add_u32 s3, s3, s16
        s_add_u32 s3, s3, {WS_S4}
        v_min_u32 {t0}, 13, {vI}
        v_lshl_add_u32 {t0}, {t0}, 2, {vG}
        v_lshl_add_u32 {vS4i}, {t0}, 4, s3
        v_add_u32 {vS4u}, 0x1000, {vS4i}
        s_lshl_b32 s3, {sW}, 2
        v_lshl_add_u32 {vRed}, {vI}, 4, s3
        v_mov_b32 {t2}, 0
        v_lshlrev_b32 {t1}, 4, {vI}
        """)
        A.wait(vm=0)
        self.stamp("r1a", A)
        GU, XS = get(8), get(4)

        def s4_loads(C):
            C(f"global_load_dwordx4 {GU[0:4]}, {vS4i}, s[30:31] sc1")
            C(f"global_load_dwordx4 {GU[4:8]}, {vS4u}, s[30:31] sc1")
        s4_loads(A)
        self.poll(A, "s4", s4_loads, self.poison_check([GU[k] for k in range(8)], t0))
        self.stamp("g1", A)
        for k in range(4):
            A(f"v_and_b32 {T[2 * k]}, 0xffff, {GU[k]}\nv_and_b32 {T[2 * k + 1]}, 0xffff0000, {GU[k]}")
        for k in range(8):
            A(f"v_dot2_f32_bf16 {T[k]}, {T[k]}, {GU[4 + k // 2]}, 0")
        for k in range(4):
            A(f"v_cvt_pk_bf16_f32 {XS[k]}, {T[2 * k]}, {T[2 * k + 1]}")
        DD = [D[4 * k:4 * k + 4] for k in range(8)]
        acc = [t2, get()]
        A(f"v_mov_b32 {acc[1]}, 0")
        for m in range(14 + 4):
            if m < 14:
                A(f"v_mfma_f32_16x16x32_bf16 {DD[m % 8]}, {XS}, {WT[m]}, 0")
            k = m - 4
            if k >= 0:
                a = acc[k % 2]
                A(f"v_add_f32_dpp {a}, {DD[k % 8][k % 4]}, {a} quad_perm:[0,1,2,3] row_mask:{1 << (k // 4)} bank_mask:0xf")
        A(f"v_add_f32 {t2}, {t2}, {acc[1]}")
        for sw in ("v_permlane16_swap_b32", "v_permlane32_swap_b32"):
            A(f"v_mov_b32 {t0}, {t2}\n{sw} {t2}, {t0}\nv_add_f32 {t2}, {t2}, {t0}")
        A(f"s_mov_b64 exec, 0xffff\nds_write_b32 {vRed}, {t2} offset:{L_RED}\ns_mov_b64 exec, -1")
        self.stamp("g2m", A)
        A.barrier()
        A(f"s_cmp_eq_u32 {sW}, 0\ns_cbranch_scc0 L_fin_r1")
        A(f"ds_read_b128 {T[0:4]}, {t1} offset:{L_RED}")
        A(f"v_pk_add_f32 {T[0:2]}, {T[0:2]}, {T[2:4]}\nv_add_f32 {t0}, {T[0]}, {T[1]}")
        self.rnd(A, t0, t0)
        A(f"v_mul_f32 {t0}, {t0}, {vSig}")
        self.rnd(A, t0, t0)
        A(f"v_add_f32 {t0}, {t0}, {HH[0]}")
        self.rnd(A, t0, t0)
        A(f"v_add_f32 {t0}, {t0}, {HH[1]}")
        self.rnd(A, t0, t0)
        A("s_mov_b64 exec, 0xffff")
        A(f"global_store_short_d16_hi {vOut}, {t0}, s[28:29]")
        self.stamp("g2", A)
        self.finish(A, "r1")

    def build(self):
        A = self.A
        self.prologue()
        self.ksteps = self.kgen_steps()
        for _ in range(self.o["kpre"]):
            next(self.ksteps)
        self.ln1()
        self.after_publish()
        self.stamp("warm")
        self.kgen()
        self.sWb, self.sC, self.sK, self.sT = self.S.get(), self.S.get(2), self.S.get(), self.S.get()
        self.conv_all()
        self.phase_c()
        self.kin = self.V.get()
        A(f"s_cmp_eq_u32 {self.sRole}, 1\ns_cbranch_scc1 L_role1")
        B = A.fork()
        B.label("L_role1")
        A(f"s_cmp_eq_u32 {self.sRole}, 2\ns_cbranch_scc1 L_role2")
        C = A.fork()
        C.label("L_role2")
        vfree, afree = set(self.V.free), set(self.AC.free)
        self.tail0(A)
        self.V.free, self.AC.free = set(vfree), set(afree)
        self.tail1(B)
        self.V.free, self.AC.free = set(vfree), set(afree)
        self.tail2(C)
        B.lines += C.lines
        B.count += C.count
        body = A.text() + B.text() + "".join(c.text() for c in self.cold)
        nv = self.V.top + 1
        accum = (nv + 3) // 4 * 4
        total = max(accum + self.AC.top + 1, 264)
        head = open(f"cdna_kernels/{NAME}.s.ref").read().split("; Override launch geometry")[0]
        self.stats = dict(instr=A.count + B.count, nops=A.nops + B.nops, vgpr=nv, agpr=self.AC.top + 1, mfma=self.nmfma)
        tab = ""
        if self.o["band_tab"]:
            tab = f".p2align 7\n.type L_tab,@object\nL_tab:\n{band_table()}\n.size L_tab, 4096\n"
        return head + f"""; One persistent launch: 256 workgroups, one per CU, exchanging data through d_ws.
; @launch grid=(256,1,1) block=(256,1,1) lds={LDS_BYTES}
.amdgcn_target "amdgcn-amd-amdhsa--gfx950"
.text
.globl {NAME}_kernel
.p2align 8
.type {NAME}_kernel,@function
{NAME}_kernel:
{body}L_end:
    s_endpgm
L_code_end:
{tab}L_all_end:
.section .rodata,"a"
.p2align 6
.amdhsa_kernel {NAME}_kernel
  .amdhsa_next_free_vgpr {total}
  .amdhsa_next_free_sgpr 102
  .amdhsa_accum_offset {accum}
  .amdhsa_group_segment_fixed_size 0
  .amdhsa_kernarg_size 120
  .amdhsa_user_sgpr_count 2
  .amdhsa_user_sgpr_kernarg_segment_ptr 1
  .amdhsa_system_sgpr_workgroup_id_x 1
  .amdhsa_float_denorm_mode_32 3
.end_amdhsa_kernel
"""


def generate(path, **opt):
    g = Gen(**opt)
    text = g.build()
    open(path, "w").write(text)
    return g.stats


if __name__ == "__main__":
    out = sys.argv[1] if len(sys.argv) > 1 else f"cdna_kernels/{NAME}.s"
    opts = {}
    for a in sys.argv[2:]:
        k, v = a.split("=")
        opts[k] = {"True": True, "False": False}.get(v, int(v) if v.isdigit() else v)
    print(generate(out, **opts))
```

```python
import sys
from asmdsl import Asm, Pool, R

NAME = "sequential_preLN__ssm_conv_s4d__moe_arch_mod__prompt"

WS_EPOCH = 0
WS_S3 = 0x8000
WS_S4 = 0x10000
WS_ROWS = 0x20000
WS_S1 = 0x100000
WS_S2 = 0x300000
WS_STAMP = 0x600000

ROWB = 544
STAGE_CH = 57 * ROWB
L_K = 0
KCOPY = 2112
KCH = 4 * KCOPY
L_U = L_K + 2 * KCH
UCH = 4672
L_Z = 26368
L_H = L_Z + 8192
L_ST = L_H + 8192
L_KEY = L_ST + 64
L_KEY2 = L_KEY + 32
L_RED = L_KEY2 + 32
L_P = 43520
PHALF = 4096 + 64
L_STAGE = 60416
LDS_BYTES = L_STAGE + 2 * STAGE_CH
assert L_U + UCH + 4608 <= L_Z and L_RED + 512 <= L_P and L_P + 4 * PHALF <= L_STAGE and L_STAGE % 256 == 0

NX = 560
V2 = [608 + 64 * s for s in range(4)]
V3 = [864 + 80 * s for s in range(2)]
TAGMASK = 0x40074007
LOG2E = 0x3FB8AA3B
INV2PI = 0x3E22F983
SPIN_MAX = 1 << 14

BANDS = ((12, 1), (8, 2), (8, 3), (8, 4))


def band_table():
    out = []
    for delta, h in BANDS:
        for lane in range(64):
            phi, g = lane & 15, lane >> 4
            bits = [0x3C00 if abs(8 * g + e - phi - delta) <= h else 0 for e in range(8)]
            out.append(".long " + ", ".join(hex(bits[2 * d] | bits[2 * d + 1] << 16) for d in range(4)))
    return "\n".join(out)


STAMP_SETS = {
    True: ["start", "karg", "x", "pub1", "rec", "kmf", "frag", "s1", "conv", "ack2", "s2", "pub3", "ack3", "s3", "row", "g1", "g2", "end"],
    "z": ["start"] + [f"unused{i}" for i in range(16)] + ["end"],
    "a": ["start", "karg", "issued", "consts", "x", "stat", "b1", "norm", "pub1", "warm", "par", "ws", "recR", "rec", "b2", "kmf0", "kmf", "end"],
    "b": ["start", "kmf", "shift", "frag", "s1w", "s1", "b5", "conv", "b6", "st2", "dma", "ack2", "s2", "hw", "b7", "key", "pub3", "end"],
    "c": ["start", "pub3", "hn", "outc", "ack3", "s3p", "s3w", "s3", "row", "g1m", "g1b", "g1", "r1o", "r1t", "r1a", "g2m", "g2", "end"],
}
DEFAULTS = dict(stamps=False, s1_at="mfma", warm=True, out_pol="sc1", pf_code=True, pf_lines=8, dbg=False, poison_at="consts", recb=4, fin_pol="sc1", r0_late=2, r2_late=False, dma_ack2=0, xmap=True, x_pol="", w_pol="", p_pol="sc1", mask_poll=True, warm_slot=30, kpre=0, par_first=True, band_tab=False, frag_in=False, dma_pre=0, r1_split=4, xa_glob=False, warm_at="s1w", xa_at="start", nf=7, ng=4, pe=14, pd=6, npre=6, clk=False, dma_at="conv", warm_mode="sect", far_span=(56, 40))


class Gen:
    def __init__(self, **opt):
        self.o = dict(DEFAULTS)
        self.o.update(opt)
        self.A = Asm()
        self.V = Pool("v", 1, 255)
        self.AC = Pool("a", 0, 255)
        self.S = Pool("s", 32, 63)
        self.cold = []
        self.nstamp = 0

    def stamp(self, name, A=None):
        sel = STAMP_SETS.get(self.o["stamps"])
        if sel and name in sel:
            i = sel.index(name)
            (A or self.A)(f"s_memrealtime s[{64 + 2 * i}:{65 + 2 * i}]")

    def dump_stamps(self, A):
        if not self.o["stamps"]:
            return
        if self.o["dbg"]:
            self.dump_debug(A)
            return
        a, d = self.V.get(), self.V.get(2)
        A("s_mov_b64 exec, 1")
        A.wait(lg=0)
        A(f"s_lshl_b32 s3, {self.sL}, 2\ns_add_u32 s3, s3, {self.sW}\ns_lshl_b32 s3, s3, 8\ns_add_u32 s3, s3, {WS_STAMP}")
        A(f"v_mov_b32 {a}, s3")
        for i in range(19):
            A(f"v_mov_b32 {d[0]}, s{64 + 2 * i}\nv_mov_b32 {d[1]}, s{65 + 2 * i}")
            A(f"global_store_dwordx2 {a}, {d}, s[30:31] offset:{8 * i}")
            A.wait(vm=0)
        self.V.put(a, d)

    def dump_debug(self, A):
        a, d = self.V.get(), self.V.get()
        n = getattr(self, "ndbg", 0)
        self.ndbg = n + 1
        A("s_mov_b64 exec, 1")
        A(f"s_cmp_eq_u32 {self.sL}, 255\ns_cbranch_scc0 L_dbg{n}\ns_cmp_eq_u32 {self.sW}, 0\ns_cbranch_scc0 L_dbg{n}")
        A("s_load_dwordx2 s[4:5], s[0:1], 104")
        A.wait(lg=0)
        A(f"v_mov_b32 {a}, 0")
        for i in range(1, 17):
            A(f"s_sub_u32 s3, s{64 + 2 * (i + 1)}, s64\nv_mov_b32 {d}, s3")
            A(f"global_store_dword {a}, {d}, s[4:5] offset:{4 * (i - 1)}")
        A.label(f"L_dbg{n}")
        self.V.put(a, d)

    def rnd(self, A, dst, src, neg=False):
        A(f"v_cvt_pk_bf16_f32 {dst}, 0, {'-' if neg else ''}{src}")

    def allreduce(self, A, op, regs, width, fill=()):
        fill = list(fill)

        def pad():
            for _ in range(max(0, 3 - len(regs))):
                if fill:
                    A(fill.pop(0))
        steps = ["quad_perm:[1,0,3,2]", "quad_perm:[2,3,0,1]", "row_half_mirror", "row_mirror"]
        for st in steps:
            pad()
            for r in regs:
                A(f"{op}_dpp {r}, {r}, {r} {st} row_mask:0xf bank_mask:0xf")
        tmp = [self.V.get() for _ in regs]
        for w, sw in ((32, "v_permlane16_swap_b32"), (64, "v_permlane32_swap_b32")):
            if width >= w:
                for r, t in zip(regs, tmp):
                    A(f"v_mov_b32 {t}, {r}")
                pad()
                for r, t in zip(regs, tmp):
                    A(f"{sw} {r}, {t}")
                for r, t in zip(regs, tmp):
                    A(f"{op} {r}, {r}, {t}")
        for f in fill:
            A(f)
        self.V.put(*tmp)

    def ln_stats(self, A, s1, s2, nm, rs):
        t = self.V.get()
        A(f"v_mul_f32 {s1}, 0x3b000000, {s1}")
        A(f"v_mul_f32 {s2}, 0x3b000000, {s2}")
        A(f"v_fma_f32 {t}, -{s1}, {s1}, {s2}")
        A(f"v_max_f32 {t}, 0, {t}")
        self.rnd(A, t, t)
        self.rnd(A, nm, s1, neg=True)
        A(f"v_add_f32 {t}, 0x3727c5ac, {t}")
        self.rnd(A, t, t)
        A(f"v_sqrt_f32 {t}, {t}")
        self.rnd(A, t, t)
        A(f"v_rcp_f32 {rs}, {t}")
        self.V.put(t)

    def poll(self, A, name, loads, check):
        check(A)
        A(f"s_cbranch_vccnz L_{name}_slow")
        A.label(f"L_{name}_ok")
        C = Asm()
        C.label(f"L_{name}_slow")
        C("s_mov_b32 s3, 0")
        C.label(f"L_{name}_loop")
        if self.o["mask_poll"]:
            C("s_mov_b64 exec, vcc")
        C("s_nop 1")
        loads(C)
        C(f"s_add_u32 s3, s3, 1\ns_cmp_ge_u32 s3, {SPIN_MAX}")
        C("s_cselect_b32 s18, 0, -1\ns_mov_b32 s19, s18")
        check(C)
        C.wait(vm=0)
        C("s_nop 1")
        C("s_and_b64 vcc, vcc, s[18:19]")
        C(f"s_cbranch_vccnz L_{name}_loop")
        C("s_mov_b64 exec, -1")
        C("s_nop 2")
        C(f"s_branch L_{name}_ok")
        self.cold.append(C)

    def prologue(self):
        A, V, S = self.A, self.V, self.S
        A("s_cmp_ge_u32 s2, 0x100\ns_cbranch_scc1 L_end")
        A("s_load_dwordx16 s[4:19], s[0:1], 0\ns_load_dwordx8 s[20:27], s[0:1], 64")
        A("s_load_dwordx2 s[28:29], s[0:1], 96\ns_load_dwordx2 s[30:31], s[0:1], 112")
        self.stamp("start")
        if self.o["clk"]:
            A("s_memtime s[100:101]")
        self.sL, self.sW, self.sTag, self.sE = S.get(), S.get(), S.get(), S.get()
        self.sOnes, self.sLo, self.sHi, self.sCh = S.get(), S.get(), S.get(), S.get()
        sL, sW = self.sL, self.sW
        self.vL = V.get()
        self.vI = V.get()
        self.vG = V.get()
        t0, t1, t2 = V.get(), V.get(), V.get()
        A(f"""
        s_and_b32 s3, s2, 7
        s_lshl_b32 s3, s3, 5
        s_lshr_b32 {sL}, s2, 3
        s_add_u32 {sL}, {sL}, s3
        {"" if self.o["xmap"] else f"s_mov_b32 {sL}, s2"}
        v_lshrrev_b32 {t0}, 6, v0
        v_and_b32 {self.vL}, 63, v0
        v_readfirstlane_b32 {sW}, {t0}
        v_and_b32 {self.vI}, 15, v0
        v_bfe_u32 {self.vG}, v0, 4, 2
        """)
        self.vJunk = V.get(4)
        if self.o["pf_code"]:
            nl = self.o["pf_lines"]
            self.sPc = S.get(2)
            A(f"s_getpc_b64 {self.sPc}")
            A.label("L_pc")
            A(f"""
            s_lshr_b32 s3, s2, 3
            v_lshrrev_b32 {t0}, 6, v0
            v_lshl_add_u32 {t0}, s3, 2, {t0}
            v_and_b32 {t0}, {256 // nl - 1}, {t0}
            v_and_b32 {t1}, {nl - 1}, v0
            v_lshl_add_u32 {t0}, {t0}, {nl.bit_length() - 1}, {t1}
            v_lshlrev_b32 {t0}, 7, {t0}
            v_min_u32 {t0}, L_all_end-L_pc-4, {t0}
            global_load_dword {self.vJunk[0]}, {t0}, {self.sPc}
            """)
        self.vRow = V.get()
        A(f"""
        v_lshrrev_b32 {t0}, 5, v0
        v_and_b32 {t1}, 31, v0
        v_lshlrev_b32 {t0}, 10, {t0}
        s_lshl_b32 s3, {sL}, 13
        v_lshl_add_u32 {t0}, {t1}, 4, {t0}
        v_add_u32 {self.vRow}, s3, {t0}
        """)
        A(f"""
        s_lshr_b32 s3, {sL}, 6
        s_lshl_b32 {self.sCh}, s3, 7
        s_and_b32 s3, {sL}, 31
        s_lshl_b32 s3, s3, 2
        s_add_u32 {self.sCh}, {self.sCh}, s3
        s_bfe_u32 s3, {sL}, 0x10005
        s_add_u32 {self.sCh}, {self.sCh}, s3
        s_and_b32 s3, {sW}, 2
        s_add_u32 {self.sCh}, {self.sCh}, s3
        """)
        vP = V.get()
        A(f"""
        s_lshl_b32 s3, {self.sCh}, 8
        v_lshl_add_u32 {vP}, {self.vL}, 2, s3
        s_lshl_b32 s3, {self.sCh}, 1
        s_and_b32 s3, s3, -4
        v_lshlrev_b32 {t1}, 4, {t1}
        """)
        self.XB = V.get(8)
        self.XA = V.get(8)
        self.PAR = V.get(4)
        self.WR = V.get(8)
        self.sDt, self.sDk = S.get(), S.get(2)

        def par_loads():
            for k in range(4):
                A(f"global_load_dword {self.PAR[k]}, {vP}, s[{6 + 2 * k}:{7 + 2 * k}] {self.o['x_pol']}")
        if self.o["par_first"]:
            par_loads()
        A(f"global_load_dwordx4 {self.XB[0:4]}, {self.vRow}, s[4:5] {self.o['x_pol']}")
        A(f"global_load_dwordx4 {self.XB[4:8]}, {self.vRow}, s[4:5] offset:512 {self.o['x_pol']}")
        if not self.o["par_first"]:
            par_loads()
        A(f"s_load_dword {self.sDt}, s[14:15], s3\ns_mov_b64 {self.sDk}, s[16:17]")
        A(f"s_load_dword {self.sE}, s[30:31], {WS_EPOCH}")
        self.stamp("karg")
        V.put(vP)
        self.stamp("issued")
        self.vWr = V.get()
        A(f"v_mov_b32 {self.vWr}, {t1}")
        self.M1 = M1 = V.get(4)
        self.vS2o, self.vS2o2, self.vP2, self.vP3 = V.get(), V.get(), V.get(), V.get()
        for k in range(4):
            A(f"v_mov_b32 {M1[k]}, -1")
        A(f"""
        s_lshl_b32 s3, {sL}, 13
        s_add_u32 s3, s3, {WS_S2}
        v_lshl_add_u32 {self.vS2o}, v0, 4, s3
        v_add_u32 {self.vS2o2}, 0x1000, {self.vS2o}
        """)
        A(f"s_lshl_b32 s16, {sW}, 11\ns_add_u32 s3, s3, s16\nv_lshl_add_u32 {self.vP2}, {self.vL}, 4, s3")
        if self.o["poison_at"] == "start":
            self.poison2()
        self.sBlk, self.sRole, self.sUp = S.get(), S.get(), S.get()
        A(f"""
        s_lshr_b32 s3, {sL}, 5
        s_and_b32 s16, {sL}, 31
        s_cmp_ge_u32 s16, 7
        s_cselect_b32 {self.sUp}, 1, 0
        s_cselect_b32 s17, 7, 0
        s_sub_u32 s17, s16, s17
        s_mul_i32 {self.sBlk}, s3, 7
        s_add_u32 {self.sBlk}, {self.sBlk}, s17
        s_cmp_ge_u32 s16, 14
        s_cselect_b32 {self.sRole}, 2, 0
        s_lshl_b32 s3, s3, 2
        s_add_u32 s3, s3, s16
        s_sub_u32 s3, s3, 28
        s_cmp_ge_u32 s16, 28
        s_cselect_b32 {self.sRole}, 1, {self.sRole}
        s_cselect_b32 {self.sBlk}, s3, {self.sBlk}
        """)
        self.sP3 = S.get(2)
        A(f"""
        s_lshl_b32 s3, {sL}, 11
        s_add_u32 s3, s3, {WS_ROWS}
        v_lshl_add_u32 {t0}, v0, 4, s3
        s_lshl_b32 s16, {sL}, 4
        s_add_u32 s16, s16, {WS_S3}
        v_lshl_add_u32 {t1}, {self.vL}, 12, s16
        s_lshl_b32 s17, {self.sUp}, 12
        s_lshl_b32 s3, {self.sBlk}, 6
        s_add_u32 s17, s17, s3
        s_add_u32 s17, s17, {WS_S4}
        v_bfe_u32 {t2}, v0, 2, 3
        v_lshlrev_b32 {t2}, 13, {t2}
        v_and_b32 {self.vP3}, 3, v0
        v_lshl_add_u32 {t2}, {self.vP3}, 4, {t2}
        v_add_u32 {t2}, s17, {t2}
        s_cmp_eq_u32 {self.sRole}, 0
        s_cselect_b32 s17, -1, 0
        s_cmp_eq_u32 {sW}, 2
        s_cselect_b64 vcc, -1, 0
        s_cselect_b32 s17, 0xff, s17
        v_cndmask_b32 {t1}, {t2}, {t1}, vcc
        s_cmp_lt_u32 {sW}, 2
        s_cselect_b64 vcc, -1, 0
        s_cselect_b32 {self.sP3[0]}, -1, s17
        s_cselect_b32 {self.sP3[1]}, -1, 0
        v_cndmask_b32 {self.vP3}, {t1}, {t0}, vcc
        """)
        Z = V.get(4)
        for k in range(4):
            A(f"v_mov_b32 {Z[k]}, 0")
        A(f"""
        v_lshlrev_b32 {t2}, 4, v0
        ds_write_b128 {t2}, {Z} offset:{L_P}
        ds_write_b128 {t2}, {Z} offset:{L_P + PHALF}
        ds_write_b128 {t2}, {Z} offset:{L_P + 2 * PHALF}
        ds_write_b128 {t2}, {Z} offset:{L_P + 3 * PHALF}
        v_lshrrev_b32 {t0}, 7, v0
        v_and_b32 {t1}, 127, v0
        v_mul_u32_u24 {t2}, {UCH}, {t0}
        v_lshl_add_u32 {t2}, {t1}, 2, {t2}
        ds_write_b32 {t2}, {Z[0]} offset:{L_U}
        """)
        self.vShift, self.vShiftR = V.get(), V.get()
        A(f"""
        v_mul_u32_u24 {t2}, {KCH}, {t0}
        v_lshl_add_u32 {self.vShift}, {t1}, 4, {t2}
        v_mul_u32_u24 {t2}, {2 * PHALF}, {t0}
        v_lshl_add_u32 {self.vShiftR}, {t1}, 5, {t2}
        """)
        V.put(Z)
        A(f"s_mov_b32 {self.sOnes}, 0x3f803f80\ns_mov_b32 {self.sLo}, 0x3f80\ns_mov_b32 {self.sHi}, 0x3f800000")
        self.consts(t0, t1, t2)
        self.warm_addr()
        self.warm("consts")
        if self.o["poison_at"] == "consts":
            self.poison2()
        self.stamp("consts")
        V.put(t0, t1, t2)

    def poison2(self):
        A = self.A
        A(f"global_store_dwordx4 {self.vP2}, {self.M1}, s[30:31] {self.o['p_pol']}", tag="poison")
        A(f"global_store_dwordx4 {self.vP2}, {self.M1}, s[30:31] offset:1024 {self.o['p_pol']}", tag="poison")

    def after_publish(self):
        A, V = self.A, self.V
        A(f"s_mov_b64 exec, {self.sP3}")
        A(f"global_store_dwordx4 {self.vP3}, {self.M1}, s[30:31] sc1", tag="poison3")
        A("s_mov_b64 exec, -1")
        A(f"global_load_dwordx4 {self.WR[0:4]}, {self.vWr}, s[20:21]")
        A(f"global_load_dwordx4 {self.WR[4:8]}, {self.vWr}, s[20:21] offset:512")
        self.vDk = V.get()
        A(f"v_lshlrev_b32 {self.vWr}, 2, v0\nglobal_load_dword {self.vDk}, {self.vWr}, {self.sDk}")
        if self.o["band_tab"]:
            for k, key in enumerate(BANDS):
                A(f"global_load_dwordx4 {self.BAND[key]}, {self.vTab}, {self.sPc} offset:{1024 * k}")
            V.put(self.vTab)
        self.warm("pub")
        V.put(self.M1, self.vP2, self.vP3, self.vWr)

    def consts(self, t0, t1, t2):
        A, V, S = self.A, self.V, self.S
        vI, vG, vL, sW, sL = self.vI, self.vG, self.vL, self.sW, self.sL
        self.BAND = {key: V.get(4) for key in BANDS}
        if self.o["band_tab"]:
            self.vTab = V.get()
            A(f"v_lshlrev_b32 {t0}, 4, {vL}\nv_add_u32 {self.vTab}, L_tab-L_pc, {t0}")
        else:
            A(f"v_lshlrev_b32 {t0}, 3, {vG}\nv_sub_u32 {t0}, {vI}, {t0}")
            for (delta, h), B in self.BAND.items():
                win = (1 << (2 * h + 1)) - 1
                A(f"v_add_u32 {t1}, {delta - h + 12}, {t0}")
                A(f"v_med3_i32 {t1}, {t1}, 0, 22")
                A(f"v_mov_b32 {t2}, {win}")
                A(f"v_lshlrev_b32 {t1}, {t1}, {t2}")
                for d in range(4):
                    A(f"v_bfe_u32 {t2}, {t1}, {12 + 2 * d}, 2")
                    A(f"v_mul_u32_u24 {t2}, 0x8001, {t2}")
                    A(f"v_and_b32 {t2}, 0x10001, {t2}")
                    A(f"v_mul_u32_u24 {B[d]}, 0x3c00, {t2}")
        if self.o["poison_at"] == "band":
            self.poison2()
        sB, sH = S.get(), S.get()
        self.sB, self.sH = sB, sH
        A(f"s_lshr_b32 {sB}, {sW}, 1\ns_and_b32 {sH}, {sW}, 1")
        self.sStM = S.get()
        A(f"""
        s_mul_i32 s3, {sB}, {STAGE_CH}
        s_add_u32 s3, s3, {L_STAGE}
        s_lshl_b32 s16, {sH}, 8
        s_add_u32 s16, s16, s3
        s_sub_u32 {self.sStM}, s16, 0x8000
        """)
        self.vR, self.vS0, self.vS1r = V.get(), V.get(), V.get()
        A(f"""
        v_lshl_add_u32 {t2}, {vG}, 4, s16
        v_xor_b32 {t0}, 3, {vI}
        v_bfe_u32 {t1}, {t0}, 1, 1
        v_add_u32 {t1}, {t0}, {t1}
        v_lshrrev_b32 {t1}, 1, {t1}
        s_movk_i32 s17, {ROWB}
        v_mad_u32_u24 {self.vR}, {vI}, s17, {t2}
        v_mad_u32_u24 {self.vS0}, {t0}, s17, {t2}
        v_mad_u32_u24 {self.vS1r}, {t1}, s17, {t2}
        """)
        self.vK1, self.vK3, self.vKs = V.get(), V.get(), V.get()
        t3 = V.get()
        A(f"""
        s_mul_i32 s3, {sW}, {PHALF}
        s_add_u32 s3, s3, {L_P}
        v_lshlrev_b32 {t3}, 4, {vG}
        v_sub_u32 {t3}, s3, {t3}
        v_lshlrev_b32 {t0}, 6, {vI}
        v_sub_u32 {t0}, {t3}, {t0}
        v_add_u32 {self.vK1}, {4 * (540 - 256)}, {t0}
        v_and_b32 {t1}, 3, {vI}
        v_lshlrev_b32 {t1}, 6, {t1}
        v_and_b32 {t2}, 4, {vI}
        v_lshlrev_b32 {t2}, 2, {t2}
        v_sub_u32 {t1}, {t1}, {t2}
        v_add_u32 {t1}, {V2[0] + 44}, {t1}
        v_and_b32 {t2}, 1, {vI}
        v_mul_u32_u24 {t2}, 80, {t2}
        v_and_b32 {t0}, 6, {vI}
        v_lshlrev_b32 {t0}, 3, {t0}
        v_sub_u32 {t2}, {t2}, {t0}
        v_add_u32 {t2}, {V3[0] + 60}, {t2}
        v_cmp_gt_u32 vcc, 8, {vI}
        v_mov_b32 {t0}, {4 * 29}
        v_cndmask_b32 {t1}, {t2}, {t1}, vcc
        v_mov_b32 {t2}, {4 * (NX + 27)}
        v_lshl_add_u32 {self.vK3}, {t1}, 2, {t3}
        v_cndmask_b32 {t0}, {t0}, {t2}, vcc
        v_add_u32 {self.vKs}, s3, {t0}
        s_mul_i32 s3, {sB}, {KCH}
        s_add_u32 s3, s3, {L_K}
        """)
        self.vN, self.vF = V.get(), V.get()
        A(f"""
        v_sub_u32 {t0}, 15, {vI}
        v_and_b32 {t1}, 3, {t0}
        v_and_b32 {t0}, 12, {t0}
        v_mul_u32_u24 {t1}, {KCOPY}, {t1}
        v_lshl_add_u32 {t0}, {t0}, 1, {t1}
        v_add_u32 {t0}, s3, {t0}
        v_lshl_add_u32 {self.vN}, {vG}, 4, {t0}
        v_lshl_add_u32 {self.vF}, {vG}, 3, {t0}
        """)
        self.vUf, self.vZw, self.vZr, self.vUw = V.get(), V.get(), V.get(), V.get()
        A(f"""
        s_mul_i32 s3, {sB}, {UCH}
        s_add_u32 s3, s3, {L_U}
        v_lshl_add_u32 {t0}, {vI}, 5, s3
        v_lshl_add_u32 {self.vUf}, {vG}, 4, {t0}
        v_and_b32 {t0}, 2, {vG}
        v_lshl_add_u32 {t0}, {vI}, 2, {t0}
        v_add_u32 {t0}, {sB}, {t0}
        v_lshrrev_b32 {t1}, 1, {vI}
        v_xor_b32 {t0}, {t0}, {t1}
        v_and_b32 {t1}, 1, {vG}
        v_lshlrev_b32 {t1}, 3, {t1}
        v_lshl_add_u32 {self.vZw}, {t0}, 4, {t1}
        v_bfe_u32 {t0}, v0, 3, 3
        v_xor_b32 {t0}, v0, {t0}
        v_lshlrev_b32 {self.vZr}, 4, {t0}
        v_and_b32 {t0}, 1, v0
        v_lshrrev_b32 {t1}, 1, v0
        v_mul_u32_u24 {t2}, {UCH}, {t0}
        v_lshl_add_u32 {self.vUw}, {t1}, 4, {t2}
        """)
        self.vS1o, self.vS1i, self.vS1i2, self.vS2i, self.vS2i2 = V.get(), V.get(), V.get(), V.get(), V.get()
        A(f"""
        s_lshl_b32 s3, {sL}, 13
        s_lshl_b32 s16, {sW}, 11
        s_add_u32 s3, s3, s16
        s_add_u32 s3, s3, {WS_S1}
        v_lshl_add_u32 {self.vS1o}, {vL}, 4, s3
        v_lshlrev_b32 {t0}, 4, {t0}
        s_lshl_b32 s3, {sL}, 5
        s_add_u32 s16, s3, {WS_S1}
        v_lshl_add_u32 {t2}, {t1}, 13, {t0}
        v_add_u32 {self.vS1i}, s16, {t2}
        v_add_u32 {self.vS1i2}, 0x100000, {self.vS1i}
        v_lshrrev_b32 {t1}, 1, {vL}
        v_lshl_add_u32 {t2}, {t1}, 13, {t0}
        s_lshl_b32 s16, {sW}, 19
        s_add_u32 s16, s16, s3
        s_add_u32 s16, s16, {WS_S2}
        v_add_u32 {self.vS2i}, s16, {t2}
        v_add_u32 {self.vS2i2}, 0x40000, {self.vS2i}
        """)
        self.vTau, self.vMask = V.get(), V.get()
        self.vHr, self.vHw2 = V.get(), V.get()
        A(f"""
        v_lshrrev_b32 {t0}, 5, v0
        v_and_b32 {t1}, 31, v0
        v_lshlrev_b32 {t1}, 4, {t1}
        v_lshl_add_u32 {self.vHr}, {t0}, 10, {t1}
        v_lshlrev_b32 {t0}, 2, v0
        v_add_u32 {self.vHw2}, {L_H}, {t0}
        """)
        A(f"v_lshrrev_b32 {self.vTau}, 5, v0\nv_mov_b32 {self.vMask}, {0xFFFFFFFF ^ TAGMASK}")
        V.put(t3)

    def ln1(self):
        A, V = self.A, self.V
        glob = False
        s1, s2, nm, rs, ad = V.get(), V.get(), V.get(), V.get(), V.get()
        A(f"v_lshlrev_b32 {ad}, 2, {self.vTau}")
        for k in range(8):
            if not glob and k % 4 == 0:
                A(f"ds_write_b128 {self.vHr}, {self.XB[k:k + 4]} offset:{L_H + 128 * k}")
            A(f"v_dot2_f32_bf16 {s1}, {self.XB[k]}, {self.sOnes}, {s1 if k else 0}")
            A(f"v_dot2_f32_bf16 {s2}, {self.XB[k]}, {self.XB[k]}, {s2 if k else 0}")
            if k == 0:
                self.stamp("x")
                if self.o["poison_at"] == "x":
                    self.poison2()
        self.allreduce(A, "v_add_f32", [s1, s2], 32)
        self.ln_stats(A, s1, s2, nm, rs)
        self.stamp("stat")
        A("s_mov_b64 exec, 1\ns_bitset1_b64 exec, 32")
        A(f"v_mul_f32 {rs}, 0x3d800000, {rs}")
        A(f"ds_write_b32 {ad}, {nm} offset:{L_ST}\nds_write_b32 {ad}, {rs} offset:{L_ST + 32}")
        A("s_mov_b64 exec, -1")
        A(f"v_mov_b32 {ad}, 0")
        V.put(self.XB)
        A.barrier()
        self.stamp("b1")
        NM, RS = V.get(8), V.get(8)
        XA = self.XA
        if not glob:
            for q in range(2):
                A(f"ds_read2st64_b32 {XA[2 * q:2 * q + 2]}, {self.vHw2} offset0:{8 * q} offset1:{8 * q + 4}")
        A(f"ds_read_b128 {NM[0:4]}, {ad} offset:{L_ST}")
        if not glob:
            for q in range(2, 4):
                A(f"ds_read2st64_b32 {XA[2 * q:2 * q + 2]}, {self.vHw2} offset0:{8 * q} offset1:{8 * q + 4}")
        A(f"ds_read_b128 {NM[4:8]}, {ad} offset:{L_ST + 16}")
        for k in range(2):
            A(f"ds_read_b128 {RS[4 * k:4 * k + 4]}, {ad} offset:{L_ST + 32 + 16 * k}")
        A(f"s_add_u32 {self.sE}, {self.sE}, 1\ns_and_b32 {self.sTag}, {self.sE}, {TAGMASK}")
        T = V.get(8)
        for e in range(2):
            G = V.get(4)
            for j in range(8):
                A(f"v_dot2_f32_bf16 {T[j]}, {XA[j]}, {self.sHi if e else self.sLo}, {NM[j]}")
            for j in range(8):
                self.rnd(A, T[j], T[j])
            for q in range(4):
                A(f"v_pk_mul_f32 {T[2 * q:2 * q + 2]}, {T[2 * q:2 * q + 2]}, {RS[2 * q:2 * q + 2]}")
            for j in range(8):
                self.rnd(A, T[j], T[j])
            for q in range(4):
                A(f"v_cvt_pk_f16_f32 {G[q]}, {T[2 * q]}, {T[2 * q + 1]}")
            for q in range(4):
                A(f"v_and_or_b32 {G[q]}, {G[q]}, {self.vMask}, {self.sTag}")
            if e == 0:
                self.stamp("norm")
                A.wait_tag("poison")
            A(f"global_store_dwordx4 {self.vS1o}, {G}, s[30:31] offset:{1024 * e} sc1", tag="s1st")
            self.G = getattr(self, "G", []) + [G]
        self.stamp("pub1")
        V.put(T, NM, RS, s1, s2, nm, rs, ad, self.vS1o)

    def s1_loads(self, A):
        A(f"global_load_dwordx4 {self.UG[0:4]}, {self.vS1i}, s[30:31] sc1")
        A(f"global_load_dwordx4 {self.UG[4:8]}, {self.vS1i2}, s[30:31] sc1")

    def maybe_s1(self, where):
        if self.o["s1_at"] == where:
            self.UG = self.V.get(8)
            self.s1_loads(self.A)
            self.warm("s1")

    def kgen_steps(self):
        A, V = self.A, self.V
        P = self.PAR
        t0, t1, dt = V.get(), V.get(), V.get()
        self.vG16 = V.get()
        A(f"""
        s_and_b32 s3, {self.sCh}, 1
        s_xor_b32 s3, s3, 1
        s_lshl_b32 s3, s3, 4
        s_lshl_b32 {self.sDt}, {self.sDt}, s3
        s_and_b32 {self.sDt}, {self.sDt}, 0xffff0000
        v_mov_b32 {dt}, {LOG2E}
        v_mul_f32 {dt}, {self.sDt}, {dt}
        v_exp_f32 {dt}, {dt}
        s_cmp_eq_u32 {self.sH}, 0
        s_cselect_b32 s3, 16, 0
        """)
        self.rnd(A, dt, dt)
        A(f"""
        v_and_b32 {t0}, 0x7fff7fff, {P[2]}
        v_and_b32 {t1}, 0x7fff7fff, {P[3]}
        v_pk_max_u16 {t0}, {t0}, {t1}
        v_lshrrev_b32 {t1}, 16, {t0}
        v_and_b32 {t0}, 0xffff, {t0}
        v_max_u32 {t0}, {t0}, {t1}
        """)
        self.stamp("par")
        W = {p: V.get(2) for p in (1, 16, 256)}
        u0, u1 = V.get(), V.get()
        fill = [f"v_lshlrev_b32 {P[k]}, s3, {P[k]}" for k in range(4)]
        fill += [f"v_and_b32 {P[k]}, 0xffff0000, {P[k]}" for k in range(4)]
        fill += [f"v_mul_f32 {P[0]}, {LOG2E}, {P[0]}", f"v_exp_f32 {P[0]}, {P[0]}", f"v_mul_f32 {P[1]}, {P[1]}, {dt}",
                 f"v_cvt_pk_bf16_f32 {P[0]}, 0, {P[0]}", f"v_mul_f32 {P[1]}, {INV2PI}, {P[1]}", f"v_mul_f32 {P[0]}, {P[0]}, {dt}",
                 f"v_fract_f32 {u1}, {P[1]}", f"v_mul_f32 {P[0]}, {LOG2E | 0x80000000}, {P[0]}"]
        self.allreduce(A, "v_max_u32", [t0], 64, fill)
        A(f"v_exp_f32 {u0}, {P[0]}\nv_cos_f32 {W[1][0]}, {u1}\nv_sin_f32 {W[1][1]}, {u1}")
        A(f"""
        v_lshrrev_b32 {t0}, 7, {t0}
        v_mul_f32 {W[1][0]}, {W[1][0]}, {u0}
        v_mul_f32 {W[1][1]}, {W[1][1]}, {u0}
        v_max_u32 {t0}, 8, {t0}
        v_lshrrev_b32 {t1}, 23, {dt}
        v_add_u32 {t1}, {t1}, {t0}
        v_subrev_u32 {t1}, 127, {t1}
        v_max_i32 {t1}, 0, {t1}
        v_min_i32 {t1}, 254, {t1}
        v_lshlrev_b32 {self.vG16}, 23, {t1}
        v_sub_u32 {t0}, 259, {t0}
        v_and_b32 {dt}, 0x007fffff, {dt}
        v_lshl_or_b32 {dt}, {t0}, 23, {dt}
        """)
        L, M, Rr, T = V.get(2), V.get(2), V.get(2), V.get(2)
        for p, mul in ((16, 0x41800000), (256, 0x43800000)):
            w = W[p]
            A(f"v_mul_f32 {u0}, {mul}, {P[0]}\nv_mul_f32 {u1}, {mul}, {P[1]}")
            A(f"v_exp_f32 {u0}, {u0}\nv_fract_f32 {u1}, {u1}")
            A(f"v_cos_f32 {w[0]}, {u1}\nv_sin_f32 {w[1]}, {u1}")
            A(f"v_mul_f32 {L[p // 256]}, {P[2 + p // 256]}, {dt}")
            A(f"v_mul_f32 {w[0]}, {w[0]}, {u0}\nv_mul_f32 {w[1]}, {w[1]}, {u0}")
        V.put(u0, u1, t1, dt, P)
        self.stamp("ws")
        NB_ = self.o["recb"]
        pk = [V.get() for _ in range(2 * NB_)]
        cnt = [0]
        queue = []
        A(f"s_mov_b32 m0, {self.sStM}")

        def cmul(d, a, b):
            A(f"v_pk_mul_f32 {T}, {a}, {b} op_sel_hi:[0,1]")
            A(f"v_pk_fma_f32 {d}, {a}, {b}, {T} op_sel:[1,1,0] op_sel_hi:[1,0,1] neg_lo:[0,1,0]")

        def flush_q():
            for row, r in queue:
                A(f"ds_write_addtid_b32 {r} offset:{32768 + row * ROWB}")
            queue.clear()

        def put(row, v, conj=False):
            r = pk[cnt[0] % (2 * NB_)]
            cnt[0] += 1
            A(f"v_cvt_pk_f16_f32 {r}, {v[0]}, {'-' if conj else ''}{v[1]}")
            queue.append((row, r))
            if len(queue) == NB_:
                flush_q()

        Rf, S0, S1, FA = ([self.AC.get(4, 4) for _ in range(4)] for _ in range(4))
        D1, D2, D3 = V.get(4), V.get(4), V.get(4)

        def frags(regs, addr, row0):
            flush_q()
            for q in range(4):
                A(f"ds_read_b128 {regs[q]}, {addr} offset:{row0 * ROWB + 64 * q}")

        def product(D, a, b):
            for q in range(4):
                A(f"v_mfma_f32_16x16x32_f16 {D}, {a[q]}, {b[q]}, {D if q else 0}")

        A(f"v_mov_b32 {t0}, 0x3c00")
        queue.append((0, t0))
        yield
        put(1, W[16], conj=True)
        cmul(Rr, W[16], W[16])
        put(2, Rr, conj=True)
        for j in range(3, 16):
            yield
            cmul(Rr, Rr, W[16])
            put(j, Rr, conj=True)
        frags(Rf, self.vR, 0)
        self.stamp("recR")
        LE = {0: L}
        cur = L
        for al in range(17):
            yield
            if al:
                nxt = V.get(2) if al % 2 == 0 else M
                cmul(nxt, cur, W[1])
                cur = nxt
                if al % 2 == 0:
                    LE[al] = cur
            if al < 16:
                put(16 + al, cur)
        frags(S0, self.vS0, 16)
        self.maybe_s1("rec1")
        for al in range(0, 17, 2):
            yield
            cmul(LE[al], LE[al], W[256])
            put(32 + al // 2, LE[al])
        frags(S1, self.vS1r, 32)
        product(D1, S0, Rf)
        for a in range(2):
            for al in (4, 8, 12, 16):
                yield
                cmul(LE[al], LE[al], W[256])
                put(41 + 4 * a + al // 4 - 1, LE[al])
        K3 = V.get(4)
        flush_q()
        A(f"ds_write_b128 {self.vK1}, {D1} offset:1024")
        product(D2, S1, Rf)
        for a in range(4):
            for al in (8, 16):
                yield
                cmul(LE[al], LE[al], W[256])
                put(49 + 2 * a + al // 8 - 1, LE[al])
        frags(FA, self.vR, 41)
        self.stamp("rec")
        self.maybe_s1("rec2")
        A(f"ds_write_b128 {self.vK1}, {D2}")
        A(f"v_cmp_gt_u32 vcc, 8, {self.vI}")
        product(D3, Rf, FA)
        self.maybe_s1("mfma")
        self.stamp("kmf0")
        A(f"v_cndmask_b32 {T[1]}, {D2[0]}, 0, vcc")
        for k in range(4):
            A(f"v_mov_b32 {K3[k]}, {D3[3 - k]}")
        A(f"v_cndmask_b32 {T[0]}, {D2[0]}, {D3[3]}, vcc")
        A(f"ds_write_b128 {self.vK3}, {K3}")
        A("s_mov_b32 exec_lo, 0\ns_mov_b32 exec_hi, 0x80800000")
        A(f"ds_write2_b32 {self.vKs}, {T[0]}, {T[0]} offset0:0 offset1:1\nds_write_b32 {self.vKs}, {T[1]} offset:8")
        A("s_mov_b64 exec, -1")
        A.barrier()
        V.put(M, Rr, T, *pk, *W.values(), t0, D1, D2, D3, K3, *LE.values(),
              self.vR, self.vS0, self.vS1r, self.vK1, self.vK3, self.vKs)
        self.AC.put(*Rf, *S0, *S1, *FA)

    def kgen(self):
        A, V = self.A, self.V
        for _ in self.ksteps:
            pass
        self.stamp("kmf")
        self.maybe_s1("shift")
        D, E = V.get(12), V.get(12)
        C = [V.get(4) for _ in range(4)]
        for k in range(3):
            A(f"ds_read_b128 {D[4 * k:4 * k + 4]}, {self.vShiftR} offset:{L_P + 16 * k}")
            A(f"ds_read_b128 {E[4 * k:4 * k + 4]}, {self.vShiftR} offset:{L_P + PHALF + 16 * k}")
        for k in range(6):
            A(f"v_pk_add_f32 {D[2 * k:2 * k + 2]}, {D[2 * k:2 * k + 2]}, {E[2 * k:2 * k + 2]}")
        for c in range(4):
            for k in range(4):
                A(f"v_cvt_pk_f16_f32 {C[c][k]}, {D[c + 2 * k]}, {D[c + 2 * k + 1]}")
            if c % 2:
                for cc in (c - 1, c):
                    A(f"ds_write_b128 {self.vShift}, {C[cc]} offset:{L_K + cc * KCOPY}")
        if not self.o["frag_in"]:
            A.barrier()
        self.shift_regs = (D, E, *C, self.vShift, self.vShiftR)
        self.stamp("shift")
        self.maybe_s1("frag")
        AC = self.AC
        self.KN = [AC.get(4, 4) for _ in range(17)]
        self.KX = AC.get(4, 4)
        self.B2 = {(k, d): AC.get(4, 4) for k in range(2) for d in (2, 3, 4)}
        self.B3 = {d: AC.get(4, 4) for d in (4, 5, 6, 7)}
        rd = {}
        for q in range(17):
            rd[str(self.KN[q])] = [f"ds_read_b64 {self.KN[q][2 * hf:2 * hf + 2]}, {self.vN} offset:{64 * (16 - q) + 8 * hf}" for hf in range(2)]
        rd[str(self.KX)] = [f"ds_read_b64 {self.KX[2 * hf:2 * hf + 2]}, {self.vN} offset:{2 * NX + 8 * hf}" for hf in range(2)]
        for (k, d), r in self.B2.items():
            rd[str(r)] = [f"ds_read_b64 {r[2 * hf:2 * hf + 2]}, {self.vF} offset:{2 * (V2[2 * k + hf] + 32 - 16 * (d - 2))}" for hf in range(2)]
        for d, r in self.B3.items():
            rd[str(r)] = [f"ds_read_b64 {r[2 * hf:2 * hf + 2]}, {self.vF} offset:{2 * (V3[hf] + 48 - 16 * (d - 4))}" for hf in range(2)]
        self.frag_reads = {}
        if self.o["frag_in"]:
            self.frag_reads = rd
        else:
            for v in rd.values():
                A("\n".join(v))
        self.maybe_s1("end")
        self.stamp("frag")

    def s1_consume(self, A, sfx):
        V = self.V
        UG = self.UG
        t0, t1 = V.get(), V.get()

        def check(C):
            for k in range(8):
                C(f"v_xor_b32 {UG[k]}, {self.sTag}, {UG[k]}")
            C(f"v_or3_b32 {t0}, {UG[0]}, {UG[1]}, {UG[2]}\nv_or3_b32 {t1}, {UG[3]}, {UG[4]}, {UG[5]}")
            C(f"v_or3_b32 {t0}, {t0}, {UG[6]}, {UG[7]}\nv_or_b32 {t0}, {t0}, {t1}")
            C(f"v_and_b32 {t0}, {TAGMASK}, {t0}\nv_cmp_ne_u32 vcc, 0, {t0}")
        self.poll(A, "s1" + sfx, self.s1_loads, check)
        self.stamp("s1w", A)
        self.warm("s1w", A)
        A(f"ds_write_b128 {self.vUw}, {UG[0:4]} offset:{L_U + 512}")
        A(f"ds_write_b128 {self.vUw}, {UG[4:8]} offset:{L_U + 512 + 2048}")
        self.stamp("s1", A)
        A.barrier()
        self.stamp("b5", A)
        V.put(t0, t1, *self.shift_regs)

    def conv(self, A, tiles, dma):
        V, AC = self.V, self.AC
        acc = {j: V.get(4) for j in tiles}
        NF, NG, NW, NP = self.o["nf"], self.o["ng"], 6, 6
        PE, PD, NPRE = self.o["pe"], self.o["pd"], self.o["npre"]
        Fb = [AC.get(4, 4) for _ in range(NF)]
        Gb = [AC.get(4, 4) for _ in range(NG)]
        Wb = [V.get(4) for _ in range(NW)]
        Pb = [V.get(4) for _ in range(NP)]
        EY, EZ = V.get(4), V.get(2)
        qmax = {0: 7, 1: 15}
        b2 = sorted({j - d for j in tiles for d in (2, 3, 4) if j - d >= 0})
        b3 = sorted({j - d for j in tiles for d in (4, 5, 6, 7) if j - d >= 0})
        nlo = min(8 * j - qmax.get(j, 16) for j in tiles)
        nhi = 8 * max(tiles)
        near = []
        for fi, n in enumerate(range(nlo, nhi + 1)):
            for j in tiles:
                q = 8 * j - n
                if 0 <= q <= qmax.get(j, 16):
                    near.append((j, self.KN[q], fi, q == 0))
        far = []
        gfr, pcount = [], 0
        for b in sorted(set(b2) | set(b3)):
            ga, gb = len(gfr), len(gfr) + 1
            gfr += [256 * b - 16, 256 * b - 24]
            mains = []
            if b in b2:
                pa, pb = pcount, pcount + 1
                pcount += 2
                far += [("band", ga, (12, 1), pa, 0), ("band", ga, (8, 2), pa, 1), ("band", gb, (12, 1), pb, 0), ("band", gb, (8, 2), pb, 1)]
                mains += [("main", b + d, pa, self.B2[(0, d)]) for d in (2, 3, 4) if b + d in tiles]
                mains += [("main", b + d, pb, self.B2[(1, d)]) for d in (2, 3, 4) if b + d in tiles]
            if b in b3:
                pc = pcount
                pcount += 1
                far += [("band", ga, (8, 3), pc, 0), ("band", gb, (8, 4), pc, 1)]
                mains += [("main", b + d, pc, self.B3[d]) for d in (4, 5, 6, 7) if b + d in tiles]
            if b + 4 in tiles:
                far.append(("x", b + 4, ga))
            far += mains
        LAT = 5
        mf, fill = [], []
        started, done_at = set(), {}
        fuse, guse, plast, pready = {}, {}, {}, {}
        wcount = 0
        ni = 0
        farleft = list(far)
        span = self.o["far_span"][0 if 0 in tiles else 1]
        credit = 0.0

        def acc_mf(j, a, b):
            mf.append(f"v_mfma_f32_16x16x32_f16 {acc[j]}, {a}, {b}, {acc[j] if j in started else 0}")
            started.add(j)

        def far_ok(it):
            t = len(mf)
            if it[0] == "main":
                return pready.get(it[2], 10 ** 6) <= t
            if it[0] == "band":
                prev = it[3] - NP
                return prev < 0 or not any(o[0] == "main" and o[2] == prev for o in farleft)
            return True

        while ni < len(near) or farleft:
            t = len(mf)
            want_far = farleft and (credit >= 1.0 or ni >= len(near))
            if ni < len(near) and near[ni][3] and any(o[0] in ("main", "x") and o[1] == near[ni][0] for o in farleft):
                want_far = True
            pick = None
            if want_far:
                for it in farleft[:8]:
                    if far_ok(it):
                        if it[0] == "band" and any(o[0] == "band" for o in farleft[:farleft.index(it)]):
                            continue
                        pick = it
                        break
            if pick is None and ni < len(near) and not (near[ni][3] and any(o[0] in ("main", "x") and o[1] == near[ni][0] for o in farleft)):
                j, a, fi, last = near[ni]
                ni += 1
                acc_mf(j, a, Fb[fi % NF])
                fuse.setdefault(fi, [t, t])[1] = t
                if last:
                    done_at[j] = t
                credit += len(far) / span
                continue
            assert pick is not None, "conv schedule is stuck"
            farleft.remove(pick)
            credit -= 1.0
            if pick[0] == "band":
                _, g, key, p, hf = pick
                w = Wb[wcount % NW]
                wcount += 1
                mf.append(f"v_mfma_f32_16x16x32_f16 {w}, {Gb[g % NG]}, {self.BAND[key]}, 0")
                guse.setdefault(g, [t, t])[1] = t
                for k in range(2):
                    fill.append([t + 3, t + LAT - 1, f"v_cvt_pk_f16_f32 {Pb[p % NP][2 * hf + k]}, {w[2 * k]}, {w[2 * k + 1]}", None])
                if hf == 1:
                    pready[p] = t + LAT
            elif pick[0] == "x":
                acc_mf(pick[1], self.KX, Gb[pick[2] % NG])
                guse.setdefault(pick[2], [t, t])[1] = t
            else:
                acc_mf(pick[1], Pb[pick[2] % NP], pick[3])
        nm = len(mf)
        pre = []
        reads = []
        for fi in sorted(fuse):
            txt = f"ds_read_b128 {Fb[fi % NF]}, {self.vUf} offset:{512 + 2 * (32 * (nlo + fi) - 16)}"
            reads.append((fuse[fi][0], fuse[fi - NF][1] if fi >= NF else -1, txt))
        for g in sorted(guse):
            txt = f"ds_read_b128 {Gb[g % NG]}, {self.vUf} offset:{512 + 2 * gfr[g]}"
            reads.append((guse[g][0], guse[g - NG][1] if g >= NG else -1, txt))
        seen = set()
        for t, txt in enumerate(mf):
            for name, two in self.frag_reads.items():
                if name not in seen and f" {name}," in txt:
                    seen.add(name)
                    reads += [(t, -1, two[0]), (t, -1, two[1])]
        reads.sort(key=lambda r: r[0])
        for first, free, txt in reads:
            if free < 0 and first <= NPRE:
                pre.append(txt)
            else:
                assert free < first
                fill.append([max(free, first - PE, 0), max(free, first - PD, 0), txt, None])
        order_t = sorted(tiles, key=lambda j: done_at[j])
        for k, j in enumerate(order_t):
            t = done_at[j]
            nxt = done_at[order_t[k + 1]] if k + 1 < len(order_t) else nm + 100
            seq2 = [f"v_mul_f32 {EY[r]}, {acc[j][r]}, {self.vG16}" for r in range(4)]
            seq2 += [f"v_cvt_pk_bf16_f32 {EZ[r]}, {EY[2 * r]}, {EY[2 * r + 1]}" for r in range(2)]
            seq2.append(f"ds_write_b64 {self.vZw}, {EZ} offset:{L_Z + 1024 * j}")
            for txt in seq2:
                fill.append([t + 3, min(t + 11, nxt + 2), txt, f"e2_{j}"])
        if self.o["warm_at"] == "conv" and self.o["dma_at"] != "none":
            ws = self.o["warm_slot"]
            fill.append([ws, ws, ("s_nop 0", f"global_load_dword {self.vJunk[1]}, {self.vWm}, {self.sWm} {self.o['w_pol']}"), "warm"])
        step = (nm - 6) // max(len(dma), 1)
        for k, grp in enumerate(dma):
            fill.append([1 + k * step, 3 + k * step, grp, "dma"])
        for txt in pre:
            A(txt)
        for i, f in enumerate(fill):
            f.append(i)
        left = list(fill)
        A.prewait([mf[0]])
        for t in range(nm):
            A(mf[t])
            chosen = []
            for f in sorted([f for f in left if f[0] <= t], key=lambda f: (f[1], f[4])):
                if len(chosen) >= 2 and f[1] > t:
                    break
                if f[3] and any(g[3] == f[3] and g[4] < f[4] and g not in chosen for g in left):
                    continue
                mem = isinstance(f[2], tuple) or f[2].startswith("ds_")
                if mem and f[1] > t and any(g[3] == f[3] and f[3] for g in chosen):
                    continue
                chosen.append(f)
            memf = [f for f in chosen if (isinstance(f[2], tuple) or f[2].startswith("ds_")) and not any(g[3] == f[3] and f[3] and g[4] < f[4] for g in chosen)]
            rest = [f for f in chosen if f not in memf]
            A.prewait([f[2] for f in chosen if not isinstance(f[2], tuple)] + ([mf[t + 1]] if t + 1 < nm else []))
            for f in memf + rest:
                if isinstance(f[2], tuple):
                    A(f[2][0])
                    A(f[2][1], tag="dma")
                else:
                    A(f[2])
                left.remove(f)
        for f in sorted(left, key=lambda f: (f[1], f[4])):
            A(f[2])
        self.nmfma = getattr(self, "nmfma", []) + [nm]
        V.put(*acc.values(), *Wb, *Pb, EY, EZ)
        AC.put(*Fb, *Gb)

    def dma_plan(self, A, role):
        V = self.V
        vL, sW = self.vL, self.sW
        t0, t1 = V.get(), V.get()
        self.vWa = V.get()
        if role == 0:
            A(f"""
            s_lshl_b32 {self.sWb}, {sW}, 13
            s_add_u32 {self.sWb}, {self.sWb}, {L_STAGE}
            s_lshl_b32 s3, {sW}, 7
            v_lshrrev_b32 {t0}, 2, {vL}
            v_add_u32 {t0}, s3, {t0}
            v_mul_u32_u24 {t0}, 3584, {t0}
            v_and_b32 {t1}, 3, {vL}
            v_lshl_add_u32 {t0}, {t1}, 4, {t0}
            s_lshl_b32 s3, {self.sBlk}, 6
            v_add_u32 {self.vWa}, s3, {t0}
            s_cmp_eq_u32 {self.sUp}, 0
            s_cselect_b32 s4, s22, s24
            s_cselect_b32 s5, s23, s25
            """)
            n, step = 8, 16 * 3584
        else:
            A(f"""
            s_mul_i32 {self.sWb}, {sW}, 14336
            s_add_u32 {self.sWb}, {self.sWb}, {L_STAGE}
            s_mul_i32 s3, {sW}, 448
            v_lshrrev_b32 {t0}, 1, {vL}
            v_add_u32 {t0}, s3, {t0}
            v_lshlrev_b32 {t0}, 10, {t0}
            v_and_b32 {t1}, 1, {vL}
            v_lshl_add_u32 {t0}, {t1}, 4, {t0}
            s_lshl_b32 s3, {self.sBlk}, 5
            v_add_u32 {self.vWa}, s3, {t0}
            s_mov_b64 s[4:5], s[26:27]
            """)
            n, step = 14, 0x8000
        V.put(t0, t1)
        return [(f"s_add_u32 m0, {self.sWb}, {m * 1024}" + (f"\ns_add_u32 s4, s4, {step}\ns_addc_u32 s5, s5, 0" if m else ""),
                 f"global_load_lds_dwordx4 {self.vWa}, s[4:5]") for m in range(n)]

    def warm_addr(self):
        A, V = self.A, self.V
        t0, t1 = V.get(), V.get()
        self.vWm, self.sWm = V.get(), self.S.get(2)
        A(f"""
        s_lshr_b32 s3, {self.sL}, 5
        s_and_b32 s16, {self.sL}, 31
        s_mul_i32 s17, s16, {16 * 3584}
        s_mul_i32 s18, s3, 448
        s_add_u32 s17, s17, s18
        v_lshrrev_b32 {t0}, 2, {self.vL}
        v_and_b32 {t1}, 3, v0
        v_mul_u32_u24 {t0}, 3584, {t0}
        v_lshl_add_u32 {t0}, {t1}, 7, {t0}
        v_add_u32 {t0}, s17, {t0}
        s_mul_i32 s17, s16, {56 * 1024}
        s_lshl_b32 s3, s3, 7
        s_add_u32 s17, s17, s3
        s_and_b32 s3, {self.sW}, 1
        s_mul_i32 s3, s3, {28 * 1024}
        s_add_u32 s17, s17, s3
        v_min_u32 {t1}, 27, {self.vL}
        v_lshl_add_u32 {t1}, {t1}, 10, s17
        s_cmp_eq_u32 {self.sW}, 0
        s_cselect_b32 s18, s22, s24
        s_cselect_b32 s19, s23, s25
        s_cmp_lt_u32 {self.sW}, 2
        s_cselect_b32 {self.sWm[0]}, s18, s26
        s_cselect_b32 {self.sWm[1]}, s19, s27
        s_cselect_b64 vcc, -1, 0
        v_cndmask_b32 {self.vWm}, {t1}, {t0}, vcc
        """)
        V.put(t0, t1)

    def warm(self, where, A=None):
        if self.o["warm_at"] == where and self.o["dma_at"] != "none":
            (A or self.A)(f"global_load_dword {self.vJunk[1]}, {self.vWm}, {self.sWm} {self.o['w_pol']}")

    def conv_all(self):
        A = self.A
        self.s1_consume(A, "")
        A(f"s_cmp_eq_u32 {self.sH}, 0\ns_cbranch_scc0 L_conv_b")
        B = A.fork()
        self.conv(A, [0, 1, 2, 3, 4], [])
        A.wait(lg=0)
        A.flush()
        A("s_branch L_conv_done")
        B.label("L_conv_b")
        self.conv(B, [5, 6, 7], [])
        B.wait(lg=0)
        B.flush()
        A.lines += B.lines
        A.count += B.count
        A.nops += B.nops
        A.label("L_conv_done")
        self.V.put(self.vWm)
        self.V.put(*self.BAND.values(), self.vUf, self.vZw, self.vG16, self.UG, self.vUw,
                   self.vS1i, self.vS1i2, self.vN, self.vF)
        self.AC.put(*self.KN, self.KX, *self.B2.values(), *self.B3.values())
        self.stamp("conv", A)
        A("s_barrier")
        self.stamp("b6", A)
        self.ZT = ZT = self.V.get(8)
        A(f"ds_read_b128 {ZT[0:4]}, {self.vZr} offset:{L_Z}\nds_read_b128 {ZT[4:8]}, {self.vZr} offset:{L_Z + 4096}")
        A(f"global_store_dwordx4 {self.vS2o}, {ZT[0:4]}, s[30:31] sc1", tag="s2st")
        A(f"global_store_dwordx4 {self.vS2o2}, {ZT[4:8]}, s[30:31] sc1", tag="s2st")
        self.stamp("st2", A)
        self.V.put(self.vZr, self.vS2o, self.vS2o2)

    def poison_check(self, regs, t0):
        def chk(C):
            r = list(regs)
            if len(r) == 1:
                C(f"v_cmp_eq_u32 vcc, -1, {r[0]}")
                return
            C(f"v_max3_u32 {t0}, {r[0]}, {r[1]}, {r[2] if len(r) > 2 else r[1]}")
            r = r[3:]
            while r:
                C(f"v_max3_u32 {t0}, {t0}, {r[0]}, {r[1] if len(r) > 1 else r[0]}")
                r = r[2:]
            C(f"v_cmp_eq_u32 vcc, -1, {t0}")
        return chk

    def phase_c(self):
        A, V = self.A, self.V
        vL, vI, vG, sL, sW = self.vL, self.vI, self.vG, self.sL, self.sW
        get = V.get
        self.t = t0, t1, t2 = get(), get(), get()
        vSW, vKw, vS3o, vRo = get(), get(), get(), get()
        self.vS3i = get()
        vHr = self.vHr
        XL, XH, UD = get(8), get(8), get(16)
        for j in range(8):
            A(f"v_lshlrev_b32 {XL[j]}, 16, {self.XA[j]}")
            A(f"v_and_b32 {XH[j]}, 0xffff0000, {self.XA[j]}")
        A(f"v_lshlrev_b32 {t0}, 16, {self.vDk}\nv_and_b32 {t1}, 0xffff0000, {self.vDk}")
        A(f"v_mul_f32 {t0}, 0x41800000, {t0}\nv_mul_f32 {t1}, 0x41800000, {t1}")
        for e in range(2):
            G = self.G[e]
            for q in range(4):
                A(f"v_and_b32 {G[q]}, {G[q]}, {self.vMask}")
            for j in range(8):
                A(f"v_fma_mix_f32 {UD[8 * e + j]}, {G[j // 2]}, {(t0, t1)[e]}, 0 op_sel:[{j % 2},0,0] op_sel_hi:[1,0,0]")
            for j in range(8):
                self.rnd(A, UD[8 * e + j], UD[8 * e + j])
        V.put(*self.G, self.vMask, self.vDk)
        for k in range(8):
            A(f"v_dot2_f32_bf16 {vSW}, {self.WR[k]}, {self.sOnes}, {vSW if k else 0}")
        self.allreduce(A, "v_add_f32", [vSW], 32)
        A(f"""
        v_and_b32 {t0}, 31, v0
        v_lshlrev_b32 {t0}, 4, {t0}
        v_lshlrev_b32 {vKw}, 2, {self.vTau}
        s_lshl_b32 s3, {sW}, 13
        s_lshl_b32 s16, {sL}, 4
        s_add_u32 s3, s3, s16
        s_add_u32 s3, s3, {WS_S3}
        v_lshl_add_u32 {vS3o}, {vL}, 12, s3
        s_lshr_b32 s3, {sL}, 5
        s_lshl_b32 s3, s3, 12
        s_add_u32 s16, s3, {WS_S3}
        v_lshl_add_u32 {self.vS3i}, v0, 4, s16
        s_lshl_b32 s16, {sL}, 11
        s_add_u32 s16, s16, {WS_ROWS}
        v_add_u32 {vRo}, s16, {t0}
        s_lshl_b32 s3, {sL}, 3
        s_sub_u32 s3, 2047, s3
        v_sub_u32 {t2}, s3, {self.vTau}
        v_mov_b32 {t1}, 0
        """)
        if self.o["dma_ack2"] and self.o["dma_at"] != "none":
            A(f"s_cmp_eq_u32 {self.sRole}, 2\ns_cbranch_scc1 L_dma_done")
            A(f"s_cmp_eq_u32 {self.sRole}, 1\ns_cbranch_scc1 L_dma_r1")
            keep = list(A.vm)
            for role in (0, 1):
                if role:
                    A.label("L_dma_r1")
                plan = self.dma_plan(A, role)
                n = len(plan) if role == 0 else self.o["dma_ack2"]
                for a, b in plan[:n]:
                    A(a)
                    A(b, tag="dma")
                if role == 0:
                    A("s_branch L_dma_done")
                    V.put(self.vWa)
                else:
                    self.plan1 = plan[n:]
            A.label("L_dma_done")
        self.stamp("dma", A)
        A.wait(vm=0)
        self.stamp("ack2", A)
        ZT = self.ZT

        def s2_loads(C):
            C(f"global_load_dwordx4 {ZT[0:4]}, {self.vS2i}, s[30:31] sc1")
            C(f"global_load_dwordx4 {ZT[4:8]}, {self.vS2i2}, s[30:31] sc1")
        s2_loads(A)
        self.poll(A, "s2", s2_loads, self.poison_check([ZT[k] for k in range(8)], t0))
        self.stamp("s2", A)
        HP = get(8)
        self.T = T = get(8)
        for grp in range(2):
            for jj in range(4):
                j = 4 * grp + jj
                sel = self.sHi if j % 2 else self.sLo
                A(f"v_dot2_f32_bf16 {T[jj]}, {ZT[j // 2]}, {sel}, {UD[j]}")
                A(f"v_dot2_f32_bf16 {T[4 + jj]}, {ZT[4 + j // 2]}, {sel}, {UD[8 + j]}")
            for k in range(8):
                self.rnd(A, T[k], T[k])
            for q in range(2):
                j = 4 * grp + 2 * q
                A(f"v_pk_add_f32 {T[2 * q:2 * q + 2]}, {T[2 * q:2 * q + 2]}, {XL[j:j + 2]}")
                A(f"v_pk_add_f32 {T[4 + 2 * q:6 + 2 * q]}, {T[4 + 2 * q:6 + 2 * q]}, {XH[j:j + 2]}")
            for jj in range(4):
                A(f"v_cvt_pk_bf16_f32 {HP[4 * grp + jj]}, {T[jj]}, {T[4 + jj]}")
            for q in range(2):
                j = 4 * grp + 2 * q
                A(f"ds_write2st64_b32 {self.vHw2}, {HP[j]}, {HP[j + 1]} offset0:{4 * j} offset1:{4 * j + 4}")
        self.stamp("hw", A)
        A.barrier()
        self.stamp("b7", A)
        V.put(XL, XH, UD, HP, ZT, self.vS2i, self.vS2i2, self.XA)
        HB = get(8)
        A(f"ds_read_b128 {HB[0:4]}, {vHr} offset:{L_H}\nds_read_b128 {HB[4:8]}, {vHr} offset:{L_H + 512}")
        s1, s2, s3, NM, RS = get(), get(), get(), get(2), get(2)
        self.key = key = get()
        for k in range(8):
            A(f"v_dot2_f32_bf16 {s1}, {HB[k]}, {self.sOnes}, {s1 if k else 0}")
            A(f"v_dot2_f32_bf16 {s2}, {HB[k]}, {HB[k]}, {s2 if k else 0}")
            A(f"v_dot2_f32_bf16 {s3}, {HB[k]}, {self.WR[k]}, {s3 if k else 0}")
        self.allreduce(A, "v_add_f32", [s1, s2, s3], 32)
        self.ln_stats(A, s1, s2, NM[0], RS[0])
        A(f"v_fma_f32 {s3}, {NM[0]}, {vSW}, {s3}\nv_mul_f32 {s3}, {s3}, {RS[0]}")
        self.rnd(A, s3, s3)
        A(f"""
        v_ashrrev_i32 {t0}, 31, {s3}
        v_or_b32 {t0}, 0x80000000, {t0}
        v_xor_b32 {t0}, {s3}, {t0}
        v_and_b32 {t0}, 0xffff0000, {t0}
        v_or_b32 {key}, {t0}, {t2}
        s_mov_b64 exec, 1
        s_bitset1_b64 exec, 32
        ds_write_b32 {vKw}, {key} offset:{L_KEY}
        s_mov_b64 exec, -1
        """)
        self.stamp("key", A)
        H32 = get(16)
        for k in range(8):
            A(f"v_lshlrev_b32 {H32[2 * k]}, 16, {HB[k]}\nv_and_b32 {H32[2 * k + 1]}, 0xffff0000, {HB[k]}")
        A.barrier()
        self.kmax = kmax = get()
        A(f"ds_read_b128 {T[0:4]}, {t1} offset:{L_KEY}\nds_read_b128 {T[4:8]}, {t1} offset:{L_KEY + 16}")
        HN = get(8)
        self.D = D = get(32)
        A(f"v_mov_b32 {NM[1]}, {NM[0]}\nv_mov_b32 {RS[1]}, {RS[0]}")
        for k in range(8):
            A(f"v_pk_add_f32 {D[2 * k:2 * k + 2]}, {H32[2 * k:2 * k + 2]}, {NM}")
        A(f"v_max3_u32 {kmax}, {T[0]}, {T[1]}, {T[2]}\nv_max3_u32 {t0}, {T[3]}, {T[4]}, {T[5]}")
        A(f"v_max3_u32 {kmax}, {kmax}, {T[6]}, {T[7]}\nv_max_u32 {kmax}, {kmax}, {t0}")
        A("s_mov_b64 exec, 3")
        A(f"global_store_dword {vS3o}, {kmax}, s[30:31] sc1", tag="s3st")
        A("s_mov_b64 exec, -1")
        self.stamp("pub3", A)
        sC = self.sC
        A(f"v_cmp_eq_u32 {sC}, {key}, {kmax}")
        for k in range(16):
            self.rnd(A, D[k], D[k])
        for k in range(8):
            A(f"v_pk_mul_f32 {D[2 * k:2 * k + 2]}, {D[2 * k:2 * k + 2]}, {RS}")
        for k in range(8):
            A(f"v_cvt_pk_bf16_f32 {HN[k]}, {D[2 * k]}, {D[2 * k + 1]}")
        A(f"s_mov_b64 exec, {sC}")
        A(f"global_store_dwordx4 {vRo}, {HN[0:4]}, s[30:31] sc1", tag="rowst")
        A(f"global_store_dwordx4 {vRo}, {HN[4:8]}, s[30:31] offset:512 sc1", tag="rowst")
        A(f"global_store_dwordx4 {vRo}, {HB[0:4]}, s[30:31] offset:1024 sc1", tag="rowst")
        A(f"global_store_dwordx4 {vRo}, {HB[4:8]}, s[30:31] offset:1536 sc1", tag="rowst")
        A("s_mov_b64 exec, -1")
        self.stamp("hn", A)
        self.O = O = get(8)
        for k in range(8):
            A(f"v_dot2_f32_bf16 {D[2 * k]}, {HN[k]}, {self.sLo}, {H32[2 * k]}")
            A(f"v_dot2_f32_bf16 {D[2 * k + 1]}, {HN[k]}, {self.sHi}, {H32[2 * k + 1]}")
        for k in range(8):
            A(f"v_cvt_pk_bf16_f32 {O[k]}, {D[2 * k]}, {D[2 * k + 1]}")
        self.stamp("outc", A)
        V.put(H32, s1, s2, s3, NM, RS, vSW, vKw, vS3o, vRo, self.WR)

    def out_stores(self, C):
        pol = self.o["out_pol"]
        C(f"global_store_dwordx4 {self.vRow}, {self.O[0:4]}, s[28:29] {pol}", tag="out")
        C(f"global_store_dwordx4 {self.vRow}, {self.O[4:8]}, s[28:29] offset:512 {pol}", tag="out")

    def resolve(self, A, sfx, between=None):
        t0, t1, t2 = self.t
        T, kin = self.T, self.kin

        def s3_loads(C):
            C(f"global_load_dword {kin}, {self.vS3i}, s[30:31] sc1")
        s3_loads(A)
        if between:
            between()
        A(f"v_lshrrev_b32 {t1}, 4, v0\nv_and_b32 {t1}, 12, {t1}\nv_mov_b32 {t2}, 0")
        self.poll(A, "s3" + sfx, s3_loads, self.poison_check([kin], t0))
        self.stamp("s3p", A)
        self.allreduce(A, "v_max_u32", [kin], 64)
        self.stamp("s3w", A)
        A(f"s_mov_b64 exec, 1\nds_write_b32 {t1}, {kin} offset:{L_KEY2}\ns_mov_b64 exec, -1")
        A.barrier()
        A(f"ds_read_b128 {T[0:4]}, {t2} offset:{L_KEY2}")
        A(f"v_max3_u32 {kin}, {T[0]}, {T[1]}, {T[2]}\nv_max_u32 {kin}, {kin}, {T[3]}")
        A(f"v_readfirstlane_b32 {self.sK}, {kin}")
        A(f"s_and_b32 {self.sT}, {self.sK}, 0x7ff\ns_sub_u32 {self.sT}, 2047, {self.sT}")
        self.stamp("s3", A)
        A(f"s_lshr_b32 s3, {self.sT}, 3\ns_lshl_b32 s3, s3, 11\ns_add_u32 s3, s3, {WS_ROWS}")

    def finish(self, A, sfx):
        A.flush()
        A.label(f"L_fin_{sfx}")
        if self.o["stamps"]:
            A.wait(vm=0)
            self.stamp("end", A)
            if self.o["clk"]:
                A("s_memtime s[96:97]")
                A.wait(lg=0)
                A("s_sub_u32 s100, s96, s100\ns_mov_b32 s101, 0")
            A("s_waitcnt vmcnt(0) lgkmcnt(0)")
            self.dump_stamps(A)
        A("s_endpgm")

    def tail0(self, A):
        V = self.V
        get = V.get
        vL, vI, vG, sL, sW, sC = self.vL, self.vI, self.vG, self.sL, self.sW, self.sC
        t0, t1, t2 = self.t
        T, D = self.T, self.D
        vTr, vRed, vXs, vPub, vRd = get(), get(), get(), get(), get()
        WT = [self.AC.get(4, 4) for _ in range(8)]
        plan = [] if self.o["dma_ack2"] else self.dma_plan(A, 0)
        if self.o["dma_at"] == "none":
            plan = []

        def dma():
            for a, b in plan:
                A(a)
                A(b, tag="dma")
        if not self.o["r0_late"]:
            dma()
        A(f"""
        v_and_b32 {t0}, 3, {vI}
        v_lshlrev_b32 {t0}, 3, {t0}
        v_lshrrev_b32 {t1}, 2, {vI}
        v_lshl_add_u32 {t1}, {vG}, 3, {t1}
        v_lshl_add_u32 {t0}, {t1}, 6, {t0}
        v_add_u32 {vTr}, {self.sWb}, {t0}
        """)

        def tr_reads():
            A.wait_tag("dma")
            for ct in range(2):
                for m in range(4):
                    for e2 in range(2):
                        A(f"ds_read_b64_tr_b16 {WT[4 * ct + m][2 * e2:2 * e2 + 2]}, {vTr} offset:{(32 * m + 4 * e2) * 64 + 32 * ct}")
        A(f"""
        s_lshl_b32 s3, {sW}, 2
        v_lshl_add_u32 {vRed}, {vI}, 4, s3
        v_and_b32 {t0}, 3, {vI}
        v_lshlrev_b32 {t0}, 6, {t0}
        v_lshl_add_u32 {t0}, {vG}, 4, {t0}
        s_lshl_b32 s3, {sW}, 8
        v_add_u32 {vXs}, s3, {t0}
        v_and_b32 {t0}, 31, {vL}
        v_lshlrev_b32 {vRd}, 4, {t0}
        v_lshrrev_b32 {t1}, 5, {vL}
        v_lshlrev_b32 {t1}, 13, {t1}
        v_lshl_add_u32 {t1}, {t0}, 1, {t1}
        s_lshl_b32 s3, {sW}, 14
        s_lshl_b32 s16, {self.sUp}, 12
        s_add_u32 s3, s3, s16
        s_lshl_b32 s16, {self.sBlk}, 6
        s_add_u32 s3, s3, s16
        s_add_u32 s3, s3, {WS_S4}
        v_add_u32 {vPub}, s3, {t1}
        """)
        A.wait_tag("s3st")
        self.stamp("ack3", A)

        late_out = self.o["r0_late"] == 2

        def between():
            if self.o["r0_late"]:
                dma()
            if not late_out:
                A(f"s_andn2_b64 exec, -1, {sC}")
                self.out_stores(A)
                A("s_mov_b64 exec, -1")
            if not self.o["r0_late"]:
                tr_reads()
        self.resolve(A, "r0", between)
        XS = get(4)
        A(f"v_add_u32 {vXs}, s3, {vXs}")

        def row_loads(C):
            C(f"global_load_dwordx4 {XS}, {vXs}, s[30:31] sc1")
        row_loads(A)
        if late_out:
            A(f"v_cmp_ne_u32 {sC}, {self.kin}, {self.key}")
        else:
            A(f"v_cmp_ne_u32 vcc, {self.kin}, {self.kmax}\ns_and_b64 exec, vcc, {sC}")
            self.out_stores(A)
            A("s_mov_b64 exec, -1")
        if self.o["r0_late"]:
            tr_reads()
        self.poll(A, "rowr0", row_loads, self.poison_check([XS[k] for k in range(4)], t0))
        self.stamp("row", A)
        for k in range(8):
            A(f"v_mfma_f32_16x16x32_bf16 {D[4 * k:4 * k + 4]}, {XS}, {WT[k]}, 0")
        A(f"s_cmp_eq_u32 {self.sUp}, 0\ns_cselect_b64 s[16:17], -1, 0")
        A(f"""
        v_add_f32 {t0}, {D[0]}, {D[5]}
        v_add_f32 {t1}, {D[10]}, {D[15]}
        v_add_f32 {t0}, {t0}, {t1}
        v_add_f32 {t1}, {D[16]}, {D[21]}
        v_add_f32 {t2}, {D[26]}, {D[31]}
        v_add_f32 {t1}, {t1}, {t2}
        s_mov_b64 exec, 0xffff
        ds_write_b32 {vRed}, {t0} offset:{L_RED}
        ds_write_b32 {vRed}, {t1} offset:{L_RED + 256}
        s_mov_b64 exec, -1
        """)
        self.stamp("g1m", A)
        A.barrier()
        self.stamp("g1b", A)
        A(f"ds_read_b128 {T[0:4]}, {vRd} offset:{L_RED}")
        A(f"v_pk_add_f32 {T[0:2]}, {T[0:2]}, {T[2:4]}\nv_add_f32 {T[0]}, {T[0]}, {T[1]}")
        self.rnd(A, T[0], T[0])
        A(f"v_mul_f32 {t0}, {LOG2E | 0x80000000}, {T[0]}\nv_exp_f32 {t0}, {t0}\nv_add_f32 {t0}, 1.0, {t0}")
        A(f"v_rcp_f32 {t0}, {t0}\nv_mul_f32 {t0}, {T[0]}, {t0}")
        A(f"v_cndmask_b32 {t0}, {T[0]}, {t0}, s[16:17]")
        A(f"v_mov_b32_dpp {t1}, {t0} row_shl:1 row_mask:0xf bank_mask:0xf")
        A(f"v_cvt_pk_bf16_f32 {XS[0]}, {t0}, {t1}")
        for k in range(1, 4):
            A(f"v_mov_b32_dpp {XS[k]}, {XS[0]} row_shl:{2 * k} row_mask:0xf bank_mask:0xf")
        A("s_mov_b32 exec_lo, 0x01010101\ns_mov_b32 exec_hi, 0x01010101")
        A(f"global_store_dwordx4 {vPub}, {XS}, s[30:31] sc1")
        self.stamp("g1", A)
        if late_out:
            A(f"s_mov_b64 exec, {sC}")
            self.out_stores(A)
        self.finish(A, "r0")

    def tail2(self, A):
        A.wait_tag("s3st")
        self.stamp("ack3", A)

        def between():
            A(f"s_andn2_b64 exec, -1, {self.sC}")
            self.out_stores(A)
            A("s_mov_b64 exec, -1")
        if self.o["r2_late"]:
            self.resolve(A, "r2")
            A(f"v_cmp_ne_u32 vcc, {self.kin}, {self.key}\ns_mov_b64 exec, vcc")
        else:
            self.resolve(A, "r2", between)
            A(f"v_cmp_ne_u32 vcc, {self.kin}, {self.kmax}\ns_and_b64 exec, vcc, {self.sC}")
        self.out_stores(A)
        self.finish(A, "r2")

    def tail1(self, A):
        V = self.V
        get = V.get
        vL, vI, vG, sL, sW, sC = self.vL, self.vI, self.vG, self.sL, self.sW, self.sC
        t0, t1, t2 = self.t
        T, D = self.T, self.D
        plan = self.plan1 if self.o["dma_ack2"] else self.dma_plan(A, 1)
        if self.o["dma_at"] == "none":
            plan = []
        n1 = self.o["r1_split"]
        for a, b in plan[:n1]:
            A(a)
            A(b, tag="dma")
        A.wait_tag("s3st")
        self.stamp("ack3", A)

        def between():
            for a, b in plan[n1:]:
                A(a)
                A(b, tag="dma")
        self.resolve(A, "r1", between)
        vTr, vRed, vSig, vOut, vS4i = get(), get(), get(), get(), get()
        HH = get(2)
        A(f"""
        s_lshl_b32 s16, {self.sBlk}, 5
        s_add_u32 s3, s3, s16
        v_lshrrev_b32 {t1}, 1, {vI}
        v_lshl_add_u32 {t1}, {t1}, 2, s3
        """)

        def row_loads(C):
            C(f"global_load_dword {HH[0]}, {t1}, s[30:31] sc1")
            C(f"global_load_dword {HH[1]}, {t1}, s[30:31] offset:1024 sc1")
        row_loads(A)
        A(f"v_cmp_eq_u32 vcc, {self.kin}, {self.key}\ns_andn2_b64 exec, -1, vcc")
        self.out_stores(A)
        A("s_mov_b64 exec, -1")
        A(f"""
        v_and_b32 {t0}, 3, {vI}
        v_lshlrev_b32 {t0}, 3, {t0}
        v_lshrrev_b32 {t2}, 2, {vI}
        v_lshl_add_u32 {t2}, {vG}, 3, {t2}
        v_lshl_add_u32 {t0}, {t2}, 5, {t0}
        v_add_u32 {vTr}, {self.sWb}, {t0}
        """)
        self.poll(A, "rowr1", row_loads, self.poison_check([HH[0], HH[1]], t0))
        self.stamp("row", A)
        WT = [self.AC.get(4, 4) for _ in range(14)]
        A.wait_tag("dma")
        self.stamp("r1o", A)
        for m in range(14):
            for e2 in range(2):
                A(f"ds_read_b64_tr_b16 {WT[m][2 * e2:2 * e2 + 2]}, {vTr} offset:{(32 * m + 4 * e2) * 32}")
        self.stamp("r1t", A)
        sK, sT = self.sK, self.sT
        A(f"""
        s_and_b32 s16, {sK}, 0x7fff0000
        s_andn2_b32 s17, 0xffff0000, {sK}
        s_bitcmp1_b32 {sK}, 31
        s_cselect_b32 s16, s16, s17
        v_mov_b32 {t0}, s16
        v_mul_f32 {t0}, {LOG2E | 0x80000000}, {t0}
        v_exp_f32 {t0}, {t0}
        v_add_f32 {t0}, 1.0, {t0}
        v_rcp_f32 {t0}, {t0}
        """)
        self.rnd(A, vSig, t0)
        vS4u = get()
        A(f"""
        v_and_b32 {t0}, 1, {vI}
        v_xor_b32 {t0}, 1, {t0}
        v_lshlrev_b32 {t0}, 4, {t0}
        v_lshlrev_b32 {HH[0]}, {t0}, {HH[0]}
        v_lshlrev_b32 {HH[1]}, {t0}, {HH[1]}
        v_and_b32 {HH[0]}, 0xffff0000, {HH[0]}
        v_and_b32 {HH[1]}, 0xffff0000, {HH[1]}
        s_lshl_b32 s3, {sT}, 10
        s_lshl_b32 s16, {self.sBlk}, 5
        s_add_u32 s3, s3, s16
        v_lshl_add_u32 {vOut}, {vI}, 1, s3
        s_lshr_b32 s3, {sL}, 5
        s_lshl_b32 s3, s3, 13
        s_mul_i32 s16, {sW}, {56 * 16}
        s_add_u32 s3, s3, s16
        s_add_u32 s3, s3, {WS_S4}
        v_min_u32 {t0}, 13, {vI}
        v_lshl_add_u32 {t0}, {t0}, 2, {vG}
        v_lshl_add_u32 {vS4i}, {t0}, 4, s3
        v_add_u32 {vS4u}, 0x1000, {vS4i}
        s_lshl_b32 s3, {sW}, 2
        v_lshl_add_u32 {vRed}, {vI}, 4, s3
        v_mov_b32 {t2}, 0
        v_lshlrev_b32 {t1}, 4, {vI}
        """)
        A.wait(vm=0)
        self.stamp("r1a", A)
        GU, XS = get(8), get(4)

        def s4_loads(C):
            C(f"global_load_dwordx4 {GU[0:4]}, {vS4i}, s[30:31] sc1")
            C(f"global_load_dwordx4 {GU[4:8]}, {vS4u}, s[30:31] sc1")
        s4_loads(A)
        self.poll(A, "s4", s4_loads, self.poison_check([GU[k] for k in range(8)], t0))
        self.stamp("g1", A)
        for k in range(4):
            A(f"v_and_b32 {T[2 * k]}, 0xffff, {GU[k]}\nv_and_b32 {T[2 * k + 1]}, 0xffff0000, {GU[k]}")
        for k in range(8):
            A(f"v_dot2_f32_bf16 {T[k]}, {T[k]}, {GU[4 + k // 2]}, 0")
        for k in range(4):
            A(f"v_cvt_pk_bf16_f32 {XS[k]}, {T[2 * k]}, {T[2 * k + 1]}")
        DD = [D[4 * k:4 * k + 4] for k in range(8)]
        acc = [t2, get()]
        A(f"v_mov_b32 {acc[1]}, 0")
        for m in range(14 + 4):
            if m < 14:
                A(f"v_mfma_f32_16x16x32_bf16 {DD[m % 8]}, {XS}, {WT[m]}, 0")
            k = m - 4
            if k >= 0:
                a = acc[k % 2]
                A(f"v_add_f32_dpp {a}, {DD[k % 8][k % 4]}, {a} quad_perm:[0,1,2,3] row_mask:{1 << (k // 4)} bank_mask:0xf")
        A(f"v_add_f32 {t2}, {t2}, {acc[1]}")
        for sw in ("v_permlane16_swap_b32", "v_permlane32_swap_b32"):
            A(f"v_mov_b32 {t0}, {t2}\n{sw} {t2}, {t0}\nv_add_f32 {t2}, {t2}, {t0}")
        A(f"s_mov_b64 exec, 0xffff\nds_write_b32 {vRed}, {t2} offset:{L_RED}\ns_mov_b64 exec, -1")
        self.stamp("g2m", A)
        A.barrier()
        A(f"s_cmp_eq_u32 {sW}, 0\ns_cbranch_scc0 L_fin_r1")
        A(f"ds_read_b128 {T[0:4]}, {t1} offset:{L_RED}")
        A(f"v_pk_add_f32 {T[0:2]}, {T[0:2]}, {T[2:4]}\nv_add_f32 {t0}, {T[0]}, {T[1]}")
        self.rnd(A, t0, t0)
        A(f"v_mul_f32 {t0}, {t0}, {vSig}")
        self.rnd(A, t0, t0)
        A(f"v_add_f32 {t0}, {t0}, {HH[0]}")
        self.rnd(A, t0, t0)
        A(f"v_add_f32 {t0}, {t0}, {HH[1]}")
        self.rnd(A, t0, t0)
        A("s_mov_b64 exec, 0xffff")
        A(f"global_store_short_d16_hi {vOut}, {t0}, s[28:29] {self.o['fin_pol']}")
        self.stamp("g2", A)
        A(f"s_cmp_eq_u32 {self.sBlk}, 0\ns_cbranch_scc0 L_fin_r1")
        A("s_mov_b64 exec, 1")
        A(f"v_mov_b32 {t0}, {self.sE}\nv_mov_b32 {t2}, 0")
        A(f"global_store_dword {t2}, {t0}, s[30:31] offset:{WS_EPOCH} {self.o['fin_pol']}")
        self.finish(A, "r1")

    def build(self):
        A = self.A
        self.prologue()
        self.ksteps = self.kgen_steps()
        for _ in range(self.o["kpre"]):
            next(self.ksteps)
        self.ln1()
        self.after_publish()
        self.stamp("warm")
        self.kgen()
        self.sWb, self.sC, self.sK, self.sT = self.S.get(), self.S.get(2), self.S.get(), self.S.get()
        self.conv_all()
        self.phase_c()
        self.kin = self.V.get()
        A(f"s_cmp_eq_u32 {self.sRole}, 1\ns_cbranch_scc1 L_role1")
        B = A.fork()
        B.label("L_role1")
        A(f"s_cmp_eq_u32 {self.sRole}, 2\ns_cbranch_scc1 L_role2")
        C = A.fork()
        C.label("L_role2")
        vfree, afree = set(self.V.free), set(self.AC.free)
        self.tail0(A)
        self.V.free, self.AC.free = set(vfree), set(afree)
        self.tail1(B)
        self.V.free, self.AC.free = set(vfree), set(afree)
        self.tail2(C)
        B.lines += C.lines
        B.count += C.count
        body = A.text() + B.text() + "".join(c.text() for c in self.cold)
        nv = self.V.top + 1
        accum = (nv + 3) // 4 * 4
        total = max(accum + self.AC.top + 1, 264)
        head = open(f"cdna_kernels/{NAME}.s.ref").read().split("; Override launch geometry")[0]
        self.stats = dict(instr=A.count + B.count, nops=A.nops + B.nops, vgpr=nv, agpr=self.AC.top + 1, mfma=self.nmfma)
        tab = ""
        if self.o["band_tab"]:
            tab = f".p2align 7\n.type L_tab,@object\nL_tab:\n{band_table()}\n.size L_tab, 4096\n"
        return head + f"""; One persistent launch: 256 workgroups, one per CU, exchanging data through d_ws.
; @launch grid=(256,1,1) block=(256,1,1) lds={LDS_BYTES}
.amdgcn_target "amdgcn-amd-amdhsa--gfx950"
.text
.globl {NAME}_kernel
.p2align 8
.type {NAME}_kernel,@function
{NAME}_kernel:
{body}L_end:
    s_endpgm
L_code_end:
{tab}L_all_end:
.section .rodata,"a"
.p2align 6
.amdhsa_kernel {NAME}_kernel
  .amdhsa_next_free_vgpr {total}
  .amdhsa_next_free_sgpr 102
  .amdhsa_accum_offset {accum}
  .amdhsa_group_segment_fixed_size 0
  .amdhsa_kernarg_size 120
  .amdhsa_user_sgpr_count 2
  .amdhsa_user_sgpr_kernarg_segment_ptr 1
  .amdhsa_system_sgpr_workgroup_id_x 1
  .amdhsa_float_denorm_mode_32 3
.end_amdhsa_kernel
"""


def generate(path, **opt):
    g = Gen(**opt)
    text = g.build()
    open(path, "w").write(text)
    return g.stats


if __name__ == "__main__":
    out = sys.argv[1] if len(sys.argv) > 1 else f"cdna_kernels/{NAME}.s"
    opts = {}
    for a in sys.argv[2:]:
        k, v = a.split("=")
        opts[k] = {"True": True, "False": False}.get(v, int(v) if v.isdigit() else v)
    print(generate(out, **opts))
```

```python
import sys
from asmdsl import Asm, Pool, R

NAME = "sequential_preLN__ssm_conv_s4d__moe_arch_mod__prompt"

WS_EPOCH = 0
WS_FLG = 0x4000
WS_S3 = 0x8000
WS_S4 = 0x10000
WS_ROWS = 0x20000
WS_S1 = 0x100000
WS_S2 = 0x300000
WS_STAMP = 0x600000

ROWB = 544
STAGE_CH = 57 * ROWB
L_K = 0
KCOPY = 2112
KCH = 4 * KCOPY
L_U = L_K + 2 * KCH
UCH = 4672
L_Z = 26368
L_H = L_Z + 8192
L_ST = L_H + 8192
L_KEY = L_ST + 64
L_KEY2 = L_KEY + 32
L_RED = L_KEY2 + 32
L_P = 43520
PHALF = 4096 + 64
L_STAGE = 60416
LDS_BYTES = L_STAGE + 2 * STAGE_CH
assert L_U + UCH + 4608 <= L_Z and L_RED + 512 <= L_P and L_P + 4 * PHALF <= L_STAGE and L_STAGE % 256 == 0

NX = 560
V2 = [608 + 64 * s for s in range(4)]
V3 = [864 + 80 * s for s in range(2)]
TAGMASK = 0x40074007
LOG2E = 0x3FB8AA3B
INV2PI = 0x3E22F983
SPIN_MAX = 1 << 14

BANDS = ((12, 1), (8, 2), (8, 3), (8, 4))


def band_table():
    out = []
    for delta, h in BANDS:
        for lane in range(64):
            phi, g = lane & 15, lane >> 4
            bits = [0x3C00 if abs(8 * g + e - phi - delta) <= h else 0 for e in range(8)]
            out.append(".long " + ", ".join(hex(bits[2 * d] | bits[2 * d + 1] << 16) for d in range(4)))
    return "\n".join(out)


STAMP_SETS = {
    True: ["start", "karg", "x", "pub1", "rec", "kmf", "frag", "s1", "conv", "ack2", "s2", "pub3", "ack3", "s3", "row", "g1", "g2", "end"],
    "z": ["start"] + [f"unused{i}" for i in range(16)] + ["end"],
    "a": ["start", "karg", "issued", "consts", "x", "stat", "b1", "norm", "pub1", "warm", "par", "ws", "recR", "rec", "b2", "kmf0", "kmf", "end"],
    "b": ["start", "kmf", "shift", "frag", "s1w", "s1", "b5", "conv", "b6", "st2", "dma", "ack2", "s2", "hw", "b7", "key", "pub3", "end"],
    "c": ["start", "pub3", "hn", "outc", "ack3", "s3p", "s3w", "s3", "row", "g1m", "g1b", "g1", "r1o", "r1t", "r1a", "g2m", "g2", "end"],
}
DEFAULTS = dict(stamps=False, s1_at="mfma", warm=True, out_pol="sc1", pf_code=True, pf_lines=8, dbg=False, poison_at="consts", recb=4, r1_at=28, b_first=False, dma0_ack2=False, p3_at="consts", cpre=0, bg_from=0, fin_pol="", r0_late=2, r2_late=False, dma_ack2=0, xmap=True, x_pol="", w_pol="", p_pol="sc1", mask_poll=True, warm_slot=30, kpre=0, par_first=True, band_tab=False, frag_in=True, dma_pre=0, r1_split=4, xa_glob=False, warm_at="bg", xa_at="start", nf=7, ng=4, pe=14, pd=6, npre=6, clk=False, dma_at="conv", warm_mode="sect", far_span=(56, 40))


class Gen:
    def __init__(self, **opt):
        self.o = dict(DEFAULTS)
        self.o.update(opt)
        self.A = Asm()
        self.V = Pool("v", 1, 255)
        self.AC = Pool("a", 0, 255)
        self.S = Pool("s", 32, 63)
        self.cold = []
        self.nstamp = 0

    def stamp(self, name, A=None):
        sel = STAMP_SETS.get(self.o["stamps"])
        if sel and name in sel:
            i = sel.index(name)
            (A or self.A)(f"{'s_memtime' if self.o.get('cyc') else 's_memrealtime'} s[{64 + 2 * i}:{65 + 2 * i}]")

    def dump_stamps(self, A):
        if not self.o["stamps"]:
            return
        if self.o["dbg"]:
            self.dump_debug(A)
            return
        a, d = self.V.get(), self.V.get(2)
        A("s_mov_b64 exec, 1")
        A.wait(lg=0)
        A(f"s_lshl_b32 s3, {self.sL}, 2\ns_add_u32 s3, s3, {self.sW}\ns_lshl_b32 s3, s3, 8\ns_add_u32 s3, s3, {WS_STAMP}")
        A(f"v_mov_b32 {a}, s3")
        for i in range(19):
            A(f"v_mov_b32 {d[0]}, s{64 + 2 * i}\nv_mov_b32 {d[1]}, s{65 + 2 * i}")
            A(f"global_store_dwordx2 {a}, {d}, s[30:31] offset:{8 * i}")
            A.wait(vm=0)
        self.V.put(a, d)

    def dump_debug(self, A):
        a, d = self.V.get(), self.V.get()
        n = getattr(self, "ndbg", 0)
        self.ndbg = n + 1
        A("s_mov_b64 exec, 1")
        A(f"s_cmp_eq_u32 {self.sL}, 255\ns_cbranch_scc0 L_dbg{n}\ns_cmp_eq_u32 {self.sW}, 0\ns_cbranch_scc0 L_dbg{n}")
        A("s_load_dwordx2 s[4:5], s[0:1], 104")
        A.wait(lg=0)
        A(f"v_mov_b32 {a}, 0")
        for i in range(1, 17):
            A(f"s_sub_u32 s3, s{64 + 2 * (i + 1)}, s64\nv_mov_b32 {d}, s3")
            A(f"global_store_dword {a}, {d}, s[4:5] offset:{4 * (i - 1)}")
        A.label(f"L_dbg{n}")
        self.V.put(a, d)

    def rnd(self, A, dst, src, neg=False):
        A(f"v_cvt_pk_bf16_f32 {dst}, 0, {'-' if neg else ''}{src}")

    def allreduce(self, A, op, regs, width, fill=()):
        fill = list(fill)

        def pad():
            for _ in range(max(0, 3 - len(regs))):
                if fill:
                    A(fill.pop(0))
        steps = ["quad_perm:[1,0,3,2]", "quad_perm:[2,3,0,1]", "row_half_mirror", "row_mirror"]
        for st in steps:
            pad()
            for r in regs:
                A(f"{op}_dpp {r}, {r}, {r} {st} row_mask:0xf bank_mask:0xf")
        tmp = [self.V.get() for _ in regs]
        for w, sw in ((32, "v_permlane16_swap_b32"), (64, "v_permlane32_swap_b32")):
            if width >= w:
                for r, t in zip(regs, tmp):
                    A(f"v_mov_b32 {t}, {r}")
                pad()
                for r, t in zip(regs, tmp):
                    A(f"{sw} {r}, {t}")
                for r, t in zip(regs, tmp):
                    A(f"{op} {r}, {r}, {t}")
        for f in fill:
            A(f)
        self.V.put(*tmp)

    def ln_stats(self, A, s1, s2, nm, rs):
        t = self.V.get()
        A(f"v_mul_f32 {s1}, 0x3b000000, {s1}")
        A(f"v_mul_f32 {s2}, 0x3b000000, {s2}")
        A(f"v_fma_f32 {t}, -{s1}, {s1}, {s2}")
        A(f"v_max_f32 {t}, 0, {t}")
        self.rnd(A, t, t)
        self.rnd(A, nm, s1, neg=True)
        A(f"v_add_f32 {t}, 0x3727c5ac, {t}")
        self.rnd(A, t, t)
        A(f"v_sqrt_f32 {t}, {t}")
        self.rnd(A, t, t)
        A(f"v_rcp_f32 {rs}, {t}")
        self.V.put(t)

    def poll(self, A, name, loads, check):
        check(A)
        A(f"s_cbranch_vccnz L_{name}_slow")
        A.label(f"L_{name}_ok")
        C = Asm()
        C.label(f"L_{name}_slow")
        C("s_mov_b32 s3, 0")
        C.label(f"L_{name}_loop")
        if self.o["mask_poll"]:
            C("s_mov_b64 exec, vcc")
        C("s_nop 1")
        loads(C)
        C(f"s_add_u32 s3, s3, 1\ns_cmp_ge_u32 s3, {SPIN_MAX}")
        C("s_cselect_b32 s18, 0, -1\ns_mov_b32 s19, s18")
        check(C)
        C.wait(vm=0)
        C("s_nop 1")
        C("s_and_b64 vcc, vcc, s[18:19]")
        C(f"s_cbranch_vccnz L_{name}_loop")
        C("s_mov_b64 exec, -1")
        C("s_nop 2")
        C(f"s_branch L_{name}_ok")
        self.cold.append(C)

    def prologue(self):
        A, V, S = self.A, self.V, self.S
        A("s_cmp_ge_u32 s2, 0x100\ns_cbranch_scc1 L_end")
        A("s_load_dwordx16 s[4:19], s[0:1], 0\ns_load_dwordx8 s[20:27], s[0:1], 64")
        A("s_load_dwordx2 s[28:29], s[0:1], 96\ns_load_dwordx2 s[30:31], s[0:1], 112")
        self.stamp("start")
        if self.o["clk"]:
            A("s_memtime s[100:101]")
        self.sL, self.sW, self.sTag, self.sE = S.get(), S.get(), S.get(), S.get()
        self.sOnes, self.sLo, self.sHi, self.sCh = S.get(), S.get(), S.get(), S.get()
        self.sB, self.sH, self.sa, self.sb = S.get(), S.get(), S.get(), S.get()
        sL, sW, sa, sb = self.sL, self.sW, self.sa, self.sb
        self.vL = V.get()
        self.vI = V.get()
        self.vG = V.get()
        t0, t1, t2, t3 = V.get(), V.get(), V.get(), V.get()
        self.vJunk = V.get(2)
        A(f"v_lshrrev_b32 {t0}, 6, v0\ns_lshr_b32 {sL}, s2, 3")
        if self.o["pf_code"]:
            nl = self.o["pf_lines"]
            self.sPc = S.get(2)
            A(f"s_getpc_b64 {self.sPc}")
            A.label("L_pc")
            A(f"""
            v_lshl_add_u32 {t2}, {sL}, 2, {t0}
            v_and_b32 {t2}, {256 // nl - 1}, {t2}
            v_and_b32 {t1}, {nl - 1}, v0
            v_lshl_add_u32 {t2}, {t2}, {nl.bit_length() - 1}, {t1}
            v_lshlrev_b32 {t2}, 7, {t2}
            v_min_u32 {t2}, L_all_end-L_pc-4, {t2}
            global_load_dword {self.vJunk[0]}, {t2}, {self.sPc}
            """)
        self.vTau, self.vHr, self.vRow, vP = V.get(), V.get(), V.get(), V.get()
        A(f"""
        v_readfirstlane_b32 {sW}, {t0}
        s_and_b32 s3, s2, 7
        s_lshl_b32 s3, s3, 5
        s_add_u32 {sL}, {sL}, s3
        {"" if self.o["xmap"] else f"s_mov_b32 {sL}, s2"}
        v_and_b32 {self.vL}, 63, v0
        v_lshrrev_b32 {self.vTau}, 5, v0
        v_and_b32 {t1}, 31, v0
        v_lshlrev_b32 {t1}, 4, {t1}
        v_lshl_add_u32 {self.vHr}, {self.vTau}, 10, {t1}
        s_lshl_b32 {sa}, {sL}, 13
        v_add_u32 {self.vRow}, {sa}, {self.vHr}
        s_lshr_b32 s3, {sL}, 6
        s_lshl_b32 {self.sCh}, s3, 7
        s_and_b32 s3, {sL}, 31
        s_lshl_b32 s3, s3, 2
        s_add_u32 {self.sCh}, {self.sCh}, s3
        s_bfe_u32 s3, {sL}, 0x10005
        s_add_u32 {self.sCh}, {self.sCh}, s3
        s_and_b32 s3, {sW}, 2
        s_add_u32 {self.sCh}, {self.sCh}, s3
        s_lshl_b32 s3, {self.sCh}, 8
        v_lshl_add_u32 {vP}, {self.vL}, 2, s3
        s_lshl_b32 {self.sE}, {self.sCh}, 1
        s_and_b32 {self.sE}, {self.sE}, -4
        v_and_b32 {self.vI}, 15, v0
        v_bfe_u32 {self.vG}, v0, 4, 2
        s_lshr_b32 {self.sB}, {sW}, 1
        s_and_b32 {self.sH}, {sW}, 1
        """)
        self.XB, self.XA, self.PAR, self.WR = V.get(8), V.get(8), V.get(4), V.get(8)
        self.sDt = S.get()
        lines = self.const_lines(t0, t1, t2, t3)
        npre = self.o["cpre"]
        for ln in lines[:npre]:
            A(ln)
        for k in range(4):
            A(f"global_load_dword {self.PAR[k]}, {vP}, s[{6 + 2 * k}:{7 + 2 * k}] {self.o['x_pol']}")
        A(f"global_load_dwordx4 {self.XB[0:4]}, {self.vRow}, s[4:5] {self.o['x_pol']}")
        A(f"global_load_dwordx4 {self.XB[4:8]}, {self.vRow}, s[4:5] offset:512 {self.o['x_pol']}")
        A(f"s_load_dword {self.sDt}, s[14:15], {self.sE}")
        A(f"s_load_dword {self.sE}, s[30:31], {WS_EPOCH}")
        self.stamp("karg")
        V.put(vP)
        for ln in lines[npre:]:
            A(ln)
        self.bg = self.background()
        if self.o["p3_at"] == "consts":
            for ln in self.p3_lines[:-1]:
                A(ln)
            self.p3_lines = self.p3_lines[-1:]
        if self.o["poison_at"] == "pub":
            self.vFo, self.vFi = V.get(), V.get()
            A(f"""
            s_lshl_b32 s3, {sW}, 12
            s_lshl_b32 {sb}, {sL}, 4
            s_add_u32 s3, s3, {sb}
            s_add_u32 s3, s3, {WS_FLG}
            v_mov_b32 {self.vFo}, s3
            s_lshr_b32 s3, {sL}, 6
            s_lshl_b32 s3, s3, 12
            s_add_u32 s3, s3, {WS_FLG}
            v_lshl_add_u32 {self.vFi}, v0, 4, s3
            """)
        if self.o["poison_at"] == "consts":
            self.poison2()
        self.stamp("consts")
        V.put(t0, t1, t2, t3, *self.ctmp)

    def poison2(self):
        A = self.A
        A(f"global_store_dwordx4 {self.vP2}, {self.M1}, s[30:31] sc1", tag="poison")
        A(f"global_store_dwordx4 {self.vP2}, {self.M1}, s[30:31] offset:1024 sc1", tag="poison")
        self.V.put(self.vP2)

    def const_lines(self, t0, t1, t2, t3):
        V, S = self.V, self.S
        vI, vG, vL, sW, sL, sB, sH, sa, sb = self.vI, self.vG, self.vL, self.sW, self.sL, self.sB, self.sH, self.sa, self.sb
        out = []

        def A(text):
            out.extend(x.strip() for x in text.strip().split("\n") if x.strip())
        self.BAND = {key: V.get(4) for key in BANDS}
        SEL = V.get(6)
        A(f"""
        v_lshlrev_b32 {t0}, 3, {vG}
        v_sub_u32 {t0}, {t0}, {vI}
        v_add_u32 {t0}, 20, {t0}
        v_mul_u32_u24 {t0}, 0x10001, {t0}
        v_mov_b32 {t3}, 0x70007
        s_mov_b32 {sb}, 0xc000c
        """)
        for k in range(6):
            c0, c1 = 32 - 2 * k, 31 - 2 * k
            A(f"""
            s_mov_b32 s3, {c0 | c1 << 16}
            v_pk_sub_i16 {t1}, {t0}, s3
            v_pk_sub_i16 {t2}, s3, {t0}
            v_pk_max_i16 {t1}, {t1}, {t2}
            v_pk_min_i16 {t1}, {t1}, {t3}
            v_lshl_or_b32 {SEL[k]}, {t1}, 8, {sb}
            """)
        for (delta, h), B in self.BAND.items():
            lut = sum(0x3C << (8 * i) for i in range(min(h + 1, 4)))
            A(f"s_mov_b32 s3, {lut}")
            for d in range(4):
                A(f"v_perm_b32 {B[d]}, {60 if h == 4 else 0}, s3, {SEL[d + (0 if delta == 12 else 2)]}")
        Z = SEL[0:4]
        for k in range(4):
            A(f"v_mov_b32 {Z[k]}, 0")
        self.vShift, self.vShiftR = V.get(), V.get()
        A(f"""
        v_lshlrev_b32 {t2}, 4, v0
        v_and_b32 {t1}, 127, v0
        s_mul_i32 s3, {sB}, {UCH}
        s_add_u32 {sb}, s3, {L_U}
        v_lshl_add_u32 {t0}, {t1}, 2, {sb}
        ds_write_b128 {t2}, {Z} offset:{L_P}
        ds_write_b128 {t2}, {Z} offset:{L_P + PHALF}
        ds_write_b128 {t2}, {Z} offset:{L_P + 2 * PHALF}
        ds_write_b128 {t2}, {Z} offset:{L_P + 3 * PHALF}
        ds_write_b32 {t0}, {Z[0]}
        s_mul_i32 s3, {sB}, {2 * PHALF}
        v_lshl_add_u32 {self.vShiftR}, {t1}, 5, s3
        """)
        self.vUf, self.vZw, self.vUw = V.get(), V.get(), V.get()
        self.vN, self.vF = V.get(), V.get()
        A(f"""
        v_lshl_add_u32 {t0}, {vI}, 5, {sb}
        v_lshl_add_u32 {self.vUf}, {vG}, 4, {t0}
        s_mul_i32 s3, {sB}, {KCH}
        v_lshl_add_u32 {self.vShift}, {t1}, 4, s3
        v_sub_u32 {t0}, 15, {vI}
        v_and_b32 {t1}, 3, {t0}
        v_and_b32 {t0}, 12, {t0}
        v_mul_u32_u24 {t1}, {KCOPY}, {t1}
        v_lshl_add_u32 {t0}, {t0}, 1, {t1}
        v_add_u32 {t0}, s3, {t0}
        v_lshl_add_u32 {self.vN}, {vG}, 4, {t0}
        v_lshl_add_u32 {self.vF}, {vG}, 3, {t0}
        v_and_b32 {t0}, 2, {vG}
        v_lshl_add_u32 {t0}, {vI}, 2, {t0}
        v_add_u32 {t0}, {sB}, {t0}
        v_lshrrev_b32 {t1}, 1, {vI}
        v_xor_b32 {t0}, {t0}, {t1}
        v_and_b32 {t1}, 1, {vG}
        v_lshlrev_b32 {t1}, 3, {t1}
        v_lshl_add_u32 {self.vZw}, {t0}, 4, {t1}
        """)
        self.sStM = S.get()
        self.vR, self.vS0, self.vS1r = V.get(), V.get(), V.get()
        A(f"""
        s_mul_i32 s3, {sB}, {STAGE_CH}
        s_lshl_b32 {sb}, {sH}, 8
        s_add_u32 s3, s3, {sb}
        s_add_u32 {self.sStM}, s3, {L_STAGE - 0x8000}
        s_add_u32 s3, s3, {L_STAGE}
        v_lshl_add_u32 {t2}, {vG}, 4, s3
        v_xor_b32 {t0}, 3, {vI}
        v_bfe_u32 {t1}, {t0}, 1, 1
        v_add_u32 {t1}, {t0}, {t1}
        v_lshrrev_b32 {t1}, 1, {t1}
        s_movk_i32 s3, {ROWB}
        v_mad_u32_u24 {self.vR}, {vI}, s3, {t2}
        v_mad_u32_u24 {self.vS0}, {t0}, s3, {t2}
        v_mad_u32_u24 {self.vS1r}, {t1}, s3, {t2}
        """)
        self.vK1, self.vK3, self.vKs = V.get(), V.get(), V.get()
        A(f"""
        s_mul_i32 s3, {sW}, {PHALF}
        s_add_u32 s3, s3, {L_P}
        v_lshlrev_b32 {t3}, 4, {vG}
        v_sub_u32 {t3}, s3, {t3}
        v_lshlrev_b32 {t0}, 6, {vI}
        v_sub_u32 {t0}, {t3}, {t0}
        v_add_u32 {self.vK1}, {4 * (540 - 256)}, {t0}
        v_and_b32 {t1}, 3, {vI}
        v_lshlrev_b32 {t1}, 6, {t1}
        v_and_b32 {t2}, 4, {vI}
        v_lshlrev_b32 {t2}, 2, {t2}
        v_sub_u32 {t1}, {t1}, {t2}
        v_add_u32 {t1}, {V2[0] + 44}, {t1}
        v_and_b32 {t2}, 1, {vI}
        v_mul_u32_u24 {t2}, 80, {t2}
        v_and_b32 {t0}, 6, {vI}
        v_lshlrev_b32 {t0}, 3, {t0}
        v_sub_u32 {t2}, {t2}, {t0}
        v_add_u32 {t2}, {V3[0] + 60}, {t2}
        v_cmp_gt_u32 vcc, 8, {vI}
        v_mov_b32 {t0}, {4 * 29}
        v_mov_b32 {self.vKs}, {4 * (NX + 27)}
        v_cndmask_b32 {t1}, {t2}, {t1}, vcc
        v_cndmask_b32 {t0}, {t0}, {self.vKs}, vcc
        v_lshl_add_u32 {self.vK3}, {t1}, 2, {t3}
        v_add_u32 {self.vKs}, s3, {t0}
        """)
        self.vS1o, self.vS1i, self.vS1i2, self.vP2 = V.get(), V.get(), V.get(), V.get()
        self.vMask, self.vHw2, self.M1 = V.get(), V.get(), V.get(4)
        A(f"""
        v_and_b32 {t0}, 1, v0
        v_lshrrev_b32 {t1}, 1, v0
        v_mul_u32_u24 {t2}, {UCH}, {t0}
        v_lshl_add_u32 {self.vUw}, {t1}, 4, {t2}
        v_lshlrev_b32 {t0}, 4, {t0}
        v_lshl_add_u32 {t2}, {t1}, 13, {t0}
        s_lshl_b32 s3, {sL}, 5
        s_add_u32 s3, s3, {WS_S1}
        v_add_u32 {self.vS1i}, s3, {t2}
        v_add_u32 {self.vS1i2}, 0x100000, {self.vS1i}
        s_lshl_b32 s3, {sW}, 11
        s_add_u32 s3, s3, {sa}
        s_add_u32 s3, s3, {WS_S1}
        v_lshl_add_u32 {self.vS1o}, {vL}, 4, s3
        v_add_u32 {self.vP2}, {WS_S2 - WS_S1}, {self.vS1o}
        s_mov_b32 s3, {L_H}
        v_lshl_add_u32 {self.vHw2}, v0, 2, s3
        v_mov_b32 {self.vMask}, {0xFFFFFFFF ^ TAGMASK}
        s_mov_b32 {self.sOnes}, 0x3f803f80
        s_mov_b32 {self.sLo}, 0x3f80
        s_mov_b32 {self.sHi}, 0x3f800000
        """)
        for k in range(4):
            A(f"v_mov_b32 {self.M1[k]}, -1")
        self.ctmp = [SEL]
        return out

    def background(self):
        V, S = self.V, self.S
        vL, sW, sL, sa, sb = self.vL, self.sW, self.sL, self.sa, self.sb
        t0, t1, t2 = V.get(), V.get(), V.get()
        out = []

        def A(text):
            out.extend(x.strip() for x in text.strip().split("\n") if x.strip())
        A(f"""
        s_lshr_b32 s3, {sL}, 5
        s_and_b32 {sb}, {sL}, 31
        s_mul_i32 s6, {sb}, {16 * 3584}
        s_mul_i32 s7, s3, 448
        s_add_u32 s6, s6, s7
        v_lshrrev_b32 {t0}, 2, {vL}
        v_and_b32 {t1}, 3, v0
        v_mul_u32_u24 {t0}, 3584, {t0}
        v_lshl_add_u32 {t0}, {t1}, 7, {t0}
        v_add_u32 {t0}, s6, {t0}
        s_mul_i32 s6, {sb}, {56 * 1024}
        s_lshl_b32 s7, s3, 7
        s_add_u32 s6, s6, s7
        s_mul_i32 s7, {self.sH}, {28 * 1024}
        s_add_u32 s6, s6, s7
        v_min_u32 {t1}, 27, {vL}
        v_lshl_add_u32 {t1}, {t1}, 10, s6
        s_cmp_eq_u32 {sW}, 0
        s_cselect_b32 s8, s22, s24
        s_cselect_b32 s9, s23, s25
        s_cmp_lt_u32 {sW}, 2
        s_cselect_b32 s8, s8, s26
        s_cselect_b32 s9, s9, s27
        s_cselect_b64 vcc, -1, 0
        v_cndmask_b32 {t0}, {t1}, {t0}, vcc
        """)
        if self.o["dma_at"] != "none":
            A(f"global_load_dword {self.vJunk[1]}, {t0}, s[8:9]")
        self.nwarm = len(out)
        warm_block = list(out)
        if self.o["warm_at"] == "bg":
            out.clear()
        nblock = len(out)
        A(f"s_lshr_b32 s3, {sL}, 5\ns_and_b32 {sb}, {sL}, 31")
        self.sBlk, self.sRole, self.sUp = S.get(), S.get(), S.get()
        A(f"""
        s_cmp_ge_u32 {sb}, 7
        s_cselect_b32 {self.sUp}, 1, 0
        s_cselect_b32 s6, 7, 0
        s_sub_u32 s6, {sb}, s6
        s_mul_i32 {self.sBlk}, s3, 7
        s_add_u32 {self.sBlk}, {self.sBlk}, s6
        s_cmp_ge_u32 {sb}, 14
        s_cselect_b32 {self.sRole}, 2, 0
        s_lshl_b32 s3, s3, 2
        s_sub_u32 s6, {sb}, {self.o["r1_at"]}
        s_add_u32 s3, s3, s6
        s_cmp_lt_u32 s6, 4
        s_cselect_b32 {self.sRole}, 1, {self.sRole}
        s_cselect_b32 {self.sBlk}, s3, {self.sBlk}
        """)
        A(f"""
        s_lshl_b32 s3, {sL}, 11
        s_add_u32 s3, s3, {WS_ROWS}
        v_lshl_add_u32 {t0}, v0, 4, s3
        s_lshl_b32 s6, {sL}, 4
        s_add_u32 s6, s6, {WS_S3}
        v_lshl_add_u32 {t1}, {vL}, 12, s6
        s_cmp_lt_u32 {sW}, 2
        s_cselect_b64 vcc, -1, 0
        v_cndmask_b32 {t0}, {t1}, {t0}, vcc
        s_lshl_b32 s7, {self.sUp}, 12
        s_lshl_b32 s3, {self.sBlk}, 6
        s_add_u32 s7, s7, s3
        s_add_u32 s7, s7, {WS_S4}
        v_bfe_u32 {t2}, v0, 2, 3
        v_and_b32 {t1}, 3, v0
        v_lshlrev_b32 {t1}, 4, {t1}
        v_lshl_add_u32 {t2}, {t2}, 13, {t1}
        v_add_u32 {t2}, s7, {t2}
        s_cmp_eq_u32 {self.sRole}, 0
        s_cselect_b32 s7, -1, 0
        s_cmp_eq_u32 {sW}, 3
        s_cselect_b64 vcc, -1, 0
        s_cselect_b32 s6, s7, 0xff
        v_cndmask_b32 {t0}, {t0}, {t2}, vcc
        s_cmp_lt_u32 {sW}, 2
        s_cselect_b32 s6, -1, s6
        s_cselect_b32 s7, -1, 0
        """)
        out.append(("s_mov_b64 exec, s[6:7]", f"global_store_dwordx4 {t0}, {self.M1}, s[30:31] sc1", "s_mov_b64 exec, -1"))
        self.p3_lines = []
        if self.o["p3_at"] != "bg":
            self.p3_lines = out[nblock:]
            del out[nblock:]
        if self.o["warm_at"] == "bg":
            out.extend(warm_block)
        self.vS2o, self.vS2o2, self.vS2i, self.vS2i2, self.vZr = V.get(), V.get(), V.get(), V.get(), V.get()
        A(f"""
        s_add_u32 s3, {sa}, {WS_S2}
        v_lshl_add_u32 {self.vS2o}, v0, 4, s3
        v_add_u32 {self.vS2o2}, 0x1000, {self.vS2o}
        v_bfe_u32 {t0}, v0, 3, 3
        v_xor_b32 {t0}, v0, {t0}
        v_lshlrev_b32 {self.vZr}, 4, {t0}
        s_lshl_b32 s3, {sW}, 18
        s_add_u32 s3, s3, {WS_S2 - WS_S1}
        v_add_u32 {self.vS2i}, s3, {self.vS1i}
        v_add_u32 {self.vS2i2}, 0x40000, {self.vS2i}
        """)
        self.bgtmp = [t0, t1, t2, self.M1]
        return out

    def ln1(self):
        A, V = self.A, self.V
        glob = False
        s1, s2, nm, rs, ad = V.get(), V.get(), V.get(), V.get(), V.get()
        A(f"v_lshlrev_b32 {ad}, 2, {self.vTau}")
        for k in range(8):
            if not glob and k % 4 == 0:
                A(f"ds_write_b128 {self.vHr}, {self.XB[k:k + 4]} offset:{L_H + 128 * k}")
            A(f"v_dot2_f32_bf16 {s1}, {self.XB[k]}, {self.sOnes}, {s1 if k else 0}")
            A(f"v_dot2_f32_bf16 {s2}, {self.XB[k]}, {self.XB[k]}, {s2 if k else 0}")
            if k == 0:
                self.stamp("x")
                if self.o["poison_at"] == "x":
                    self.poison2()
        self.allreduce(A, "v_add_f32", [s1, s2], 32)
        self.ln_stats(A, s1, s2, nm, rs)
        self.stamp("stat")
        A("s_mov_b64 exec, 1\ns_bitset1_b64 exec, 32")
        A(f"v_mul_f32 {rs}, 0x3d800000, {rs}")
        A(f"ds_write_b32 {ad}, {nm} offset:{L_ST}\nds_write_b32 {ad}, {rs} offset:{L_ST + 32}")
        A("s_mov_b64 exec, -1")
        A(f"v_mov_b32 {ad}, 0")
        V.put(self.XB)
        A.barrier()
        self.stamp("b1")
        NM, RS = V.get(8), V.get(8)
        XA = self.XA
        if not glob:
            for q in range(2):
                A(f"ds_read2st64_b32 {XA[2 * q:2 * q + 2]}, {self.vHw2} offset0:{8 * q} offset1:{8 * q + 4}")
        A(f"ds_read_b128 {NM[0:4]}, {ad} offset:{L_ST}")
        if not glob:
            for q in range(2, 4):
                A(f"ds_read2st64_b32 {XA[2 * q:2 * q + 2]}, {self.vHw2} offset0:{8 * q} offset1:{8 * q + 4}")
        A(f"ds_read_b128 {NM[4:8]}, {ad} offset:{L_ST + 16}")
        for k in range(2):
            A(f"ds_read_b128 {RS[4 * k:4 * k + 4]}, {ad} offset:{L_ST + 32 + 16 * k}")
        A(f"s_add_u32 {self.sE}, {self.sE}, 1\ns_and_b32 {self.sTag}, {self.sE}, {TAGMASK}")
        T = V.get(8)
        for e in range(2):
            G = V.get(4)
            for j in range(8):
                A(f"v_dot2_f32_bf16 {T[j]}, {XA[j]}, {self.sHi if e else self.sLo}, {NM[j]}")
            for j in range(8):
                self.rnd(A, T[j], T[j])
            for q in range(4):
                A(f"v_pk_mul_f32 {T[2 * q:2 * q + 2]}, {T[2 * q:2 * q + 2]}, {RS[2 * q:2 * q + 2]}")
            for j in range(8):
                self.rnd(A, T[j], T[j])
            for q in range(4):
                A(f"v_cvt_pk_f16_f32 {G[q]}, {T[2 * q]}, {T[2 * q + 1]}")
            for q in range(4):
                A(f"v_and_or_b32 {G[q]}, {G[q]}, {self.vMask}, {self.sTag}")
            if e == 0:
                self.stamp("norm")
                A.wait_tag("poison")
            A(f"global_store_dwordx4 {self.vS1o}, {G}, s[30:31] offset:{1024 * e} sc1", tag="s1st")
            self.G = getattr(self, "G", []) + [G]
        self.stamp("pub1")
        V.put(T, NM, RS, s1, s2, nm, rs, ad, self.vS1o)

    def s1_loads(self, A):
        A(f"global_load_dwordx4 {self.UG[0:4]}, {self.vS1i}, s[30:31] sc1")
        A(f"global_load_dwordx4 {self.UG[4:8]}, {self.vS1i2}, s[30:31] sc1")

    def maybe_s1(self, where):
        if self.o["s1_at"] == where:
            self.UG = self.V.get(8)
            if self.o["poison_at"] == "pub":
                A = self.A
                A(f"v_mov_b32 {self.UG[0]}, {self.sE}")
                A.wait_tag("poison")
                A(f"s_mov_b64 exec, 1\nglobal_store_dword {self.vFo}, {self.UG[0]}, s[30:31] sc1\ns_mov_b64 exec, -1")
                self.V.put(self.vFo)
            self.s1_loads(self.A)

    def kgen_steps(self):
        A, V = self.A, self.V
        P = self.PAR
        t0, t1, dt = V.get(), V.get(), V.get()
        self.vG16 = V.get()
        A(f"""
        s_and_b32 s3, {self.sCh}, 1
        s_xor_b32 s3, s3, 1
        s_lshl_b32 s3, s3, 4
        s_lshl_b32 {self.sDt}, {self.sDt}, s3
        s_and_b32 {self.sDt}, {self.sDt}, 0xffff0000
        v_mov_b32 {dt}, {LOG2E}
        v_mul_f32 {dt}, {self.sDt}, {dt}
        v_exp_f32 {dt}, {dt}
        s_cmp_eq_u32 {self.sH}, 0
        s_cselect_b32 s3, 16, 0
        """)
        self.rnd(A, dt, dt)
        A(f"""
        v_and_b32 {t0}, 0x7fff7fff, {P[2]}
        v_and_b32 {t1}, 0x7fff7fff, {P[3]}
        v_pk_max_u16 {t0}, {t0}, {t1}
        v_lshrrev_b32 {t1}, 16, {t0}
        v_and_b32 {t0}, 0xffff, {t0}
        v_max_u32 {t0}, {t0}, {t1}
        """)
        self.stamp("par")
        W = {p: V.get(2) for p in (1, 16, 256)}
        u0, u1 = V.get(), V.get()
        fill = [f"v_lshlrev_b32 {P[k]}, s3, {P[k]}" for k in range(4)]
        fill += [f"v_and_b32 {P[k]}, 0xffff0000, {P[k]}" for k in range(4)]
        fill += [f"v_mul_f32 {P[0]}, {LOG2E}, {P[0]}", f"v_exp_f32 {P[0]}, {P[0]}", f"v_mul_f32 {P[1]}, {P[1]}, {dt}",
                 f"v_cvt_pk_bf16_f32 {P[0]}, 0, {P[0]}", f"v_mul_f32 {P[1]}, {INV2PI}, {P[1]}", f"v_mul_f32 {P[0]}, {P[0]}, {dt}",
                 f"v_fract_f32 {u1}, {P[1]}", f"v_mul_f32 {P[0]}, {LOG2E | 0x80000000}, {P[0]}"]
        self.allreduce(A, "v_max_u32", [t0], 64, fill)
        A(f"v_exp_f32 {u0}, {P[0]}\nv_cos_f32 {W[1][0]}, {u1}\nv_sin_f32 {W[1][1]}, {u1}")
        A(f"""
        v_lshrrev_b32 {t0}, 7, {t0}
        v_mul_f32 {W[1][0]}, {W[1][0]}, {u0}
        v_mul_f32 {W[1][1]}, {W[1][1]}, {u0}
        v_max_u32 {t0}, 8, {t0}
        v_lshrrev_b32 {t1}, 23, {dt}
        v_add_u32 {t1}, {t1}, {t0}
        v_subrev_u32 {t1}, 127, {t1}
        v_max_i32 {t1}, 0, {t1}
        v_min_i32 {t1}, 254, {t1}
        v_lshlrev_b32 {self.vG16}, 23, {t1}
        v_sub_u32 {t0}, 259, {t0}
        v_and_b32 {dt}, 0x007fffff, {dt}
        v_lshl_or_b32 {dt}, {t0}, 23, {dt}
        """)
        L, M, Rr, T = V.get(2), V.get(2), V.get(2), V.get(2)
        for p, mul in ((16, 0x41800000), (256, 0x43800000)):
            w = W[p]
            A(f"v_mul_f32 {u0}, {mul}, {P[0]}\nv_mul_f32 {u1}, {mul}, {P[1]}")
            A(f"v_exp_f32 {u0}, {u0}\nv_fract_f32 {u1}, {u1}")
            A(f"v_cos_f32 {w[0]}, {u1}\nv_sin_f32 {w[1]}, {u1}")
            A(f"v_mul_f32 {L[p // 256]}, {P[2 + p // 256]}, {dt}")
            A(f"v_mul_f32 {w[0]}, {w[0]}, {u0}\nv_mul_f32 {w[1]}, {w[1]}, {u0}")
        V.put(u0, u1, t1, dt, P)
        self.stamp("ws")
        NB_ = self.o["recb"]
        pk = [V.get() for _ in range(2 * NB_)]
        cnt = [0]
        queue = []
        A(f"s_mov_b32 m0, {self.sStM}")

        def cmul(d, a, b):
            A(f"v_pk_mul_f32 {T}, {a}, {b} op_sel_hi:[0,1]")
            A(f"v_pk_fma_f32 {d}, {a}, {b}, {T} op_sel:[1,1,0] op_sel_hi:[1,0,1] neg_lo:[0,1,0]")

        def flush_q():
            for row, r in queue:
                A(f"ds_write_addtid_b32 {r} offset:{32768 + row * ROWB}")
            queue.clear()

        def put(row, v, conj=False):
            r = pk[cnt[0] % (2 * NB_)]
            cnt[0] += 1
            A(f"v_cvt_pk_f16_f32 {r}, {v[0]}, {'-' if conj else ''}{v[1]}")
            queue.append((row, r))
            if len(queue) == NB_:
                flush_q()

        Rf, S0, S1, FA = ([self.AC.get(4, 4) for _ in range(4)] for _ in range(4))
        D1, D2, D3 = V.get(4), V.get(4), V.get(4)

        def frags(regs, addr, row0):
            flush_q()
            for q in range(4):
                A(f"ds_read_b128 {regs[q]}, {addr} offset:{row0 * ROWB + 64 * q}")

        def product(D, a, b):
            for q in range(4):
                A(f"v_mfma_f32_16x16x32_f16 {D}, {a[q]}, {b[q]}, {D if q else 0}")

        A(f"v_mov_b32 {t0}, 0x3c00")
        queue.append((0, t0))
        yield
        put(1, W[16], conj=True)
        cmul(Rr, W[16], W[16])
        put(2, Rr, conj=True)
        for j in range(3, 16):
            yield
            cmul(Rr, Rr, W[16])
            put(j, Rr, conj=True)
        frags(Rf, self.vR, 0)
        self.stamp("recR")
        LE = {0: L}
        cur = L
        for al in range(17):
            yield
            if al:
                nxt = V.get(2) if al % 2 == 0 else M
                cmul(nxt, cur, W[1])
                cur = nxt
                if al % 2 == 0:
                    LE[al] = cur
            if al < 16:
                put(16 + al, cur)
        frags(S0, self.vS0, 16)
        self.maybe_s1("rec1")
        for al in range(0, 17, 2):
            yield
            cmul(LE[al], LE[al], W[256])
            put(32 + al // 2, LE[al])
        frags(S1, self.vS1r, 32)
        product(D1, S0, Rf)
        for a in range(2):
            for al in (4, 8, 12, 16):
                yield
                cmul(LE[al], LE[al], W[256])
                put(41 + 4 * a + al // 4 - 1, LE[al])
        K3 = V.get(4)
        flush_q()
        A(f"ds_write_b128 {self.vK1}, {D1} offset:1024")
        product(D2, S1, Rf)
        for a in range(4):
            for al in (8, 16):
                yield
                cmul(LE[al], LE[al], W[256])
                put(49 + 2 * a + al // 8 - 1, LE[al])
        frags(FA, self.vR, 41)
        self.stamp("rec")
        self.maybe_s1("rec2")
        A(f"ds_write_b128 {self.vK1}, {D2}")
        A(f"v_cmp_gt_u32 vcc, 8, {self.vI}")
        product(D3, Rf, FA)
        self.maybe_s1("mfma")
        self.stamp("kmf0")
        A(f"v_cndmask_b32 {T[1]}, {D2[0]}, 0, vcc")
        for k in range(4):
            A(f"v_mov_b32 {K3[k]}, {D3[3 - k]}")
        A(f"v_cndmask_b32 {T[0]}, {D2[0]}, {D3[3]}, vcc")
        A(f"ds_write_b128 {self.vK3}, {K3}")
        A("s_mov_b32 exec_lo, 0\ns_mov_b32 exec_hi, 0x80800000")
        A(f"ds_write2_b32 {self.vKs}, {T[0]}, {T[0]} offset0:0 offset1:1\nds_write_b32 {self.vKs}, {T[1]} offset:8")
        A("s_mov_b64 exec, -1")
        A.barrier()
        V.put(M, Rr, T, *pk, *W.values(), t0, D1, D2, D3, K3, *LE.values(),
              self.vR, self.vS0, self.vS1r, self.vK1, self.vK3, self.vKs)
        self.AC.put(*Rf, *S0, *S1, *FA)

    def row_params(self):
        A, V = self.A, self.V
        t1, t2 = V.get(), V.get()
        self.vDk = V.get()
        A(f"""
        v_and_b32 {t1}, 0x1ff, {self.vHr}
        v_lshlrev_b32 {t2}, 2, v0
        global_load_dwordx4 {self.WR[0:4]}, {t1}, s[20:21]
        global_load_dwordx4 {self.WR[4:8]}, {t1}, s[20:21] offset:512
        global_load_dword {self.vDk}, {t2}, s[16:17]
        """)
        V.put(t1, t2)

    def kgen(self):
        A, V = self.A, self.V
        if self.o["poison_at"] == "pub":
            self.poison2()
        for item in self.p3_lines:
            A("\n".join(item) if isinstance(item, tuple) else item, tag="poison3" if isinstance(item, tuple) else None)
        self.row_params()
        for _ in self.ksteps:
            pass
        self.stamp("kmf")
        self.maybe_s1("shift")
        D, E = V.get(12), V.get(12)
        C = [V.get(4) for _ in range(4)]
        for k in range(3):
            A(f"ds_read_b128 {D[4 * k:4 * k + 4]}, {self.vShiftR} offset:{L_P + 16 * k}")
            A(f"ds_read_b128 {E[4 * k:4 * k + 4]}, {self.vShiftR} offset:{L_P + PHALF + 16 * k}")
        for k in range(6):
            A(f"v_pk_add_f32 {D[2 * k:2 * k + 2]}, {D[2 * k:2 * k + 2]}, {E[2 * k:2 * k + 2]}")
        for c in range(4):
            for k in range(4):
                A(f"v_cvt_pk_f16_f32 {C[c][k]}, {D[c + 2 * k]}, {D[c + 2 * k + 1]}")
            if c % 2:
                for cc in (c - 1, c):
                    A(f"ds_write_b128 {self.vShift}, {C[cc]} offset:{L_K + cc * KCOPY}")
        if not self.o["frag_in"]:
            A.barrier()
        self.shift_regs = (D, E, *C, self.vShift, self.vShiftR)
        self.stamp("shift")
        self.maybe_s1("frag")
        AC = self.AC
        self.KN = [AC.get(4, 4) for _ in range(17)]
        self.KX = AC.get(4, 4)
        self.B2 = {(k, d): AC.get(4, 4) for k in range(2) for d in (2, 3, 4)}
        self.B3 = {d: AC.get(4, 4) for d in (4, 5, 6, 7)}
        rd = {}
        for q in range(17):
            rd[str(self.KN[q])] = [f"ds_read_b64 {self.KN[q][2 * hf:2 * hf + 2]}, {self.vN} offset:{64 * (16 - q) + 8 * hf}" for hf in range(2)]
        rd[str(self.KX)] = [f"ds_read_b64 {self.KX[2 * hf:2 * hf + 2]}, {self.vN} offset:{2 * NX + 8 * hf}" for hf in range(2)]
        for (k, d), r in self.B2.items():
            rd[str(r)] = [f"ds_read_b64 {r[2 * hf:2 * hf + 2]}, {self.vF} offset:{2 * (V2[2 * k + hf] + 32 - 16 * (d - 2))}" for hf in range(2)]
        for d, r in self.B3.items():
            rd[str(r)] = [f"ds_read_b64 {r[2 * hf:2 * hf + 2]}, {self.vF} offset:{2 * (V3[hf] + 48 - 16 * (d - 4))}" for hf in range(2)]
        self.frag_reads = {}
        if self.o["frag_in"]:
            self.frag_reads = rd
        else:
            for v in rd.values():
                A("\n".join(v))
        self.maybe_s1("end")
        self.stamp("frag")

    def s1_consume(self, A, sfx):
        V = self.V
        UG = self.UG
        t0, t1 = V.get(), V.get()

        def check(C):
            for k in range(8):
                C(f"v_xor_b32 {UG[k]}, {self.sTag}, {UG[k]}")
            C(f"v_or3_b32 {t0}, {UG[0]}, {UG[1]}, {UG[2]}\nv_or3_b32 {t1}, {UG[3]}, {UG[4]}, {UG[5]}")
            C(f"v_or3_b32 {t0}, {t0}, {UG[6]}, {UG[7]}\nv_or_b32 {t0}, {t0}, {t1}")
            C(f"v_and_b32 {t0}, {TAGMASK}, {t0}\nv_cmp_ne_u32 vcc, 0, {t0}")
        self.poll(A, "s1" + sfx, self.s1_loads, check)
        self.stamp("s1w", A)
        A(f"ds_write_b128 {self.vUw}, {UG[0:4]} offset:{L_U + 512}")
        A(f"ds_write_b128 {self.vUw}, {UG[4:8]} offset:{L_U + 512 + 2048}")
        self.stamp("s1", A)
        A.barrier()
        self.stamp("b5", A)
        V.put(t0, t1, *self.shift_regs)

    def conv(self, A, tiles, dma):
        V, AC = self.V, self.AC
        acc = {j: V.get(4) for j in tiles}
        NF, NG, NW, NP = self.o["nf"], self.o["ng"], 6, 6
        PE, PD, NPRE = self.o["pe"], self.o["pd"], self.o["npre"]
        Fb = [AC.get(4, 4) for _ in range(NF)]
        Gb = [AC.get(4, 4) for _ in range(NG)]
        Wb = [V.get(4) for _ in range(NW)]
        Pb = [V.get(4) for _ in range(NP)]
        EY, EZ = V.get(4), V.get(2)
        qmax = {0: 7, 1: 15}
        b2 = sorted({j - d for j in tiles for d in (2, 3, 4) if j - d >= 0})
        b3 = sorted({j - d for j in tiles for d in (4, 5, 6, 7) if j - d >= 0})
        nlo = min(8 * j - qmax.get(j, 16) for j in tiles)
        nhi = 8 * max(tiles)
        near = []
        for fi, n in enumerate(range(nlo, nhi + 1)):
            for j in tiles:
                q = 8 * j - n
                if 0 <= q <= qmax.get(j, 16):
                    near.append((j, self.KN[q], fi, q == 0))
        far = []
        gfr, pcount = [], 0
        for b in sorted(set(b2) | set(b3)):
            ga, gb = len(gfr), len(gfr) + 1
            gfr += [256 * b - 16, 256 * b - 24]
            mains = []
            if b in b2:
                pa, pb = pcount, pcount + 1
                pcount += 2
                far += [("band", ga, (12, 1), pa, 0), ("band", ga, (8, 2), pa, 1), ("band", gb, (12, 1), pb, 0), ("band", gb, (8, 2), pb, 1)]
                mains += [("main", b + d, pa, self.B2[(0, d)]) for d in (2, 3, 4) if b + d in tiles]
                mains += [("main", b + d, pb, self.B2[(1, d)]) for d in (2, 3, 4) if b + d in tiles]
            if b in b3:
                pc = pcount
                pcount += 1
                far += [("band", ga, (8, 3), pc, 0), ("band", gb, (8, 4), pc, 1)]
                mains += [("main", b + d, pc, self.B3[d]) for d in (4, 5, 6, 7) if b + d in tiles]
            if b + 4 in tiles:
                far.append(("x", b + 4, ga))
            far += mains
        LAT = 5
        mf, fill = [], []
        started, done_at = set(), {}
        fuse, guse, plast, pready = {}, {}, {}, {}
        wcount = 0
        ni = 0
        farleft = list(far)
        span = self.o["far_span"][0 if 0 in tiles else 1]
        credit = 0.0

        def acc_mf(j, a, b):
            mf.append(f"v_mfma_f32_16x16x32_f16 {acc[j]}, {a}, {b}, {acc[j] if j in started else 0}")
            started.add(j)

        def far_ok(it):
            t = len(mf)
            if it[0] == "main":
                return pready.get(it[2], 10 ** 6) <= t
            if it[0] == "band":
                prev = it[3] - NP
                return prev < 0 or not any(o[0] == "main" and o[2] == prev for o in farleft)
            return True

        while ni < len(near) or farleft:
            t = len(mf)
            want_far = farleft and (credit >= 1.0 or ni >= len(near))
            if ni < len(near) and near[ni][3] and any(o[0] in ("main", "x") and o[1] == near[ni][0] for o in farleft):
                want_far = True
            pick = None
            if want_far:
                for it in farleft[:8]:
                    if far_ok(it):
                        if it[0] == "band" and any(o[0] == "band" for o in farleft[:farleft.index(it)]):
                            continue
                        pick = it
                        break
            if pick is None and ni < len(near) and not (near[ni][3] and any(o[0] in ("main", "x") and o[1] == near[ni][0] for o in farleft)):
                j, a, fi, last = near[ni]
                ni += 1
                acc_mf(j, a, Fb[fi % NF])
                fuse.setdefault(fi, [t, t])[1] = t
                if last:
                    done_at[j] = t
                credit += len(far) / span
                continue
            assert pick is not None, "conv schedule is stuck"
            farleft.remove(pick)
            credit -= 1.0
            if pick[0] == "band":
                _, g, key, p, hf = pick
                w = Wb[wcount % NW]
                wcount += 1
                mf.append(f"v_mfma_f32_16x16x32_f16 {w}, {Gb[g % NG]}, {self.BAND[key]}, 0")
                guse.setdefault(g, [t, t])[1] = t
                for k in range(2):
                    fill.append([t + 3, t + LAT - 1, f"v_cvt_pk_f16_f32 {Pb[p % NP][2 * hf + k]}, {w[2 * k]}, {w[2 * k + 1]}", None])
                if hf == 1:
                    pready[p] = t + LAT
            elif pick[0] == "x":
                acc_mf(pick[1], self.KX, Gb[pick[2] % NG])
                guse.setdefault(pick[2], [t, t])[1] = t
            else:
                acc_mf(pick[1], Pb[pick[2] % NP], pick[3])
        nm = len(mf)
        pre = []
        reads = []
        for fi in sorted(fuse):
            txt = f"ds_read_b128 {Fb[fi % NF]}, {self.vUf} offset:{512 + 2 * (32 * (nlo + fi) - 16)}"
            reads.append((fuse[fi][0], fuse[fi - NF][1] if fi >= NF else -1, txt))
        for g in sorted(guse):
            txt = f"ds_read_b128 {Gb[g % NG]}, {self.vUf} offset:{512 + 2 * gfr[g]}"
            reads.append((guse[g][0], guse[g - NG][1] if g >= NG else -1, txt))
        seen = set()
        for t, txt in enumerate(mf):
            for name, two in self.frag_reads.items():
                if name not in seen and f" {name}," in txt:
                    seen.add(name)
                    reads += [(t, -1, two[0]), (t, -1, two[1])]
        reads.sort(key=lambda r: r[0])
        for first, free, txt in reads:
            if free < 0 and first <= NPRE:
                pre.append(txt)
            else:
                assert free < first
                fill.append([max(free, first - PE, 0), max(free, first - PD, 0), txt, None])
        order_t = sorted(tiles, key=lambda j: done_at[j])
        for k, j in enumerate(order_t):
            t = done_at[j]
            nxt = done_at[order_t[k + 1]] if k + 1 < len(order_t) else nm + 100
            seq2 = [f"v_mul_f32 {EY[r]}, {acc[j][r]}, {self.vG16}" for r in range(4)]
            seq2 += [f"v_cvt_pk_bf16_f32 {EZ[r]}, {EY[2 * r]}, {EY[2 * r + 1]}" for r in range(2)]
            seq2.append(f"ds_write_b64 {self.vZw}, {EZ} offset:{L_Z + 1024 * j}")
            for txt in seq2:
                fill.append([t + 3, min(t + 11, nxt + 2), txt, f"e2_{j}"])
        for txt in pre:
            A(txt)
        for i, f in enumerate(fill):
            f.append(i)
        left = list(fill)
        bg = list(self.bg)
        A.prewait([mf[0]])
        for t in range(nm):
            A(mf[t])
            chosen = []
            for f in sorted([f for f in left if f[0] <= t], key=lambda f: (f[1], f[4])):
                if len(chosen) >= 2 and f[1] > t:
                    break
                if f[3] and any(g[3] == f[3] and g[4] < f[4] and g not in chosen for g in left):
                    continue
                mem = isinstance(f[2], tuple) or f[2].startswith("ds_")
                if mem and f[1] > t and any(g[3] == f[3] and f[3] for g in chosen):
                    continue
                chosen.append(f)
            memf = [f for f in chosen if (isinstance(f[2], tuple) or f[2].startswith("ds_")) and not any(g[3] == f[3] and f[3] and g[4] < f[4] for g in chosen)]
            rest = [f for f in chosen if f not in memf]
            A.prewait([f[2] for f in chosen if not isinstance(f[2], tuple)] + ([mf[t + 1]] if t + 1 < nm else []))
            ns, nv = 0, len(chosen)
            while bg and isinstance(bg[0], str) and bg[0].startswith("s_") and ns < 2 and t >= self.o["bg_from"]:
                A(bg.pop(0))
                ns += 1
            if bg and not memf and nv < 2 and (isinstance(bg[0], tuple) or bg[0].startswith("global_")):
                item = bg.pop(0)
                A("\n".join(item) if isinstance(item, tuple) else item, tag="poison3" if isinstance(item, tuple) else None)
                nv += 1
            for f in memf + rest:
                A(f[2])
                left.remove(f)
            while bg and nv < 2 and isinstance(bg[0], str) and bg[0].startswith("v_") and t >= self.o["bg_from"]:
                A(bg.pop(0))
                nv += 1
        self.bg_left = max(getattr(self, "bg_left", 0), len(bg))
        tail_bg = bg
        for item in tail_bg:
            A("\n".join(item) if isinstance(item, tuple) else item, tag="poison3" if isinstance(item, tuple) else None)
        for f in sorted(left, key=lambda f: (f[1], f[4])):
            A(f[2])
        self.nmfma = getattr(self, "nmfma", []) + [nm]
        V.put(*acc.values(), *Wb, *Pb, EY, EZ)
        AC.put(*Fb, *Gb)

    def dma_plan(self, A, role):
        V = self.V
        vL, sW = self.vL, self.sW
        t0, t1 = V.get(), V.get()
        self.vWa = V.get()
        if role == 0:
            A(f"""
            s_lshl_b32 {self.sWb}, {sW}, 13
            s_add_u32 {self.sWb}, {self.sWb}, {L_STAGE}
            s_lshl_b32 s3, {sW}, 7
            v_lshrrev_b32 {t0}, 2, {vL}
            v_add_u32 {t0}, s3, {t0}
            v_mul_u32_u24 {t0}, 3584, {t0}
            v_and_b32 {t1}, 3, {vL}
            v_lshl_add_u32 {t0}, {t1}, 4, {t0}
            s_lshl_b32 s3, {self.sBlk}, 6
            v_add_u32 {self.vWa}, s3, {t0}
            s_cmp_eq_u32 {self.sUp}, 0
            s_cselect_b32 s4, s22, s24
            s_cselect_b32 s5, s23, s25
            """)
            n, step = 8, 16 * 3584
        else:
            A(f"""
            s_mul_i32 {self.sWb}, {sW}, 14336
            s_add_u32 {self.sWb}, {self.sWb}, {L_STAGE}
            s_mul_i32 s3, {sW}, 448
            v_lshrrev_b32 {t0}, 1, {vL}
            v_add_u32 {t0}, s3, {t0}
            v_lshlrev_b32 {t0}, 10, {t0}
            v_and_b32 {t1}, 1, {vL}
            v_lshl_add_u32 {t0}, {t1}, 4, {t0}
            s_lshl_b32 s3, {self.sBlk}, 5
            v_add_u32 {self.vWa}, s3, {t0}
            s_mov_b64 s[4:5], s[26:27]
            """)
            n, step = 14, 0x8000
        V.put(t0, t1)
        return [(f"s_add_u32 m0, {self.sWb}, {m * 1024}" + (f"\ns_add_u32 s4, s4, {step}\ns_addc_u32 s5, s5, 0" if m else ""),
                 f"global_load_lds_dwordx4 {self.vWa}, s[4:5]") for m in range(n)]

    def conv_all(self):
        A = self.A
        nb = self.nwarm if self.o["warm_at"] == "pre" else 0
        for ln in self.bg[:nb]:
            A(ln)
        self.bg = self.bg[nb:]
        self.s1_consume(A, "")
        first, second = ([5, 6, 7], [0, 1, 2, 3, 4]) if self.o["b_first"] else ([0, 1, 2, 3, 4], [5, 6, 7])
        A(f"s_cmp_eq_u32 {self.sH}, {int(self.o['b_first'])}\ns_cbranch_scc0 L_conv_b")
        B = A.fork()
        self.conv(A, first, [])
        A.wait_tag("poison3")
        A.wait(lg=0)
        A.flush()
        A("s_branch L_conv_done")
        B.label("L_conv_b")
        self.conv(B, second, [])
        B.wait_tag("poison3")
        B.wait(lg=0)
        assert [t for _, t in A.vm] == [t for _, t in B.vm]
        B.flush()
        A.lines += B.lines
        A.count += B.count
        A.nops += B.nops
        A.label("L_conv_done")
        self.V.put(*self.bgtmp)
        self.V.put(*self.BAND.values(), self.vUf, self.vZw, self.vG16, self.UG, self.vUw,
                   self.vS1i, self.vS1i2, self.vN, self.vF)
        self.AC.put(*self.KN, self.KX, *self.B2.values(), *self.B3.values())
        self.stamp("conv", A)
        A("s_barrier")
        self.stamp("b6", A)
        self.ZT = ZT = self.V.get(8)
        A(f"ds_read_b128 {ZT[0:4]}, {self.vZr} offset:{L_Z}\nds_read_b128 {ZT[4:8]}, {self.vZr} offset:{L_Z + 4096}")
        A(f"global_store_dwordx4 {self.vS2o}, {ZT[0:4]}, s[30:31] sc1", tag="s2st")
        A(f"global_store_dwordx4 {self.vS2o2}, {ZT[4:8]}, s[30:31] sc1", tag="s2st")
        if self.o["poison_at"] == "pub":
            self.vFl = self.V.get()
            A(f"global_load_dword {self.vFl}, {self.vFi}, s[30:31] sc1")
        self.stamp("st2", A)
        self.V.put(self.vZr, self.vS2o, self.vS2o2)

    def poison_check(self, regs, t0):
        def chk(C):
            r = list(regs)
            if len(r) == 1:
                C(f"v_cmp_eq_u32 vcc, -1, {r[0]}")
                return
            C(f"v_max3_u32 {t0}, {r[0]}, {r[1]}, {r[2] if len(r) > 2 else r[1]}")
            r = r[3:]
            while r:
                C(f"v_max3_u32 {t0}, {t0}, {r[0]}, {r[1] if len(r) > 1 else r[0]}")
                r = r[2:]
            C(f"v_cmp_eq_u32 vcc, -1, {t0}")
        return chk

    def phase_c(self):
        A, V = self.A, self.V
        vL, vI, vG, sL, sW = self.vL, self.vI, self.vG, self.sL, self.sW
        get = V.get
        self.t = t0, t1, t2 = get(), get(), get()
        vSW, vKw, vS3o, vRo = get(), get(), get(), get()
        self.vS3i = get()
        vHr = self.vHr
        XL, XH, UD = get(8), get(8), get(16)
        for j in range(8):
            A(f"v_lshlrev_b32 {XL[j]}, 16, {self.XA[j]}")
            A(f"v_and_b32 {XH[j]}, 0xffff0000, {self.XA[j]}")
        A(f"v_lshlrev_b32 {t0}, 16, {self.vDk}\nv_and_b32 {t1}, 0xffff0000, {self.vDk}")
        A(f"v_mul_f32 {t0}, 0x41800000, {t0}\nv_mul_f32 {t1}, 0x41800000, {t1}")
        for e in range(2):
            G = self.G[e]
            for q in range(4):
                A(f"v_and_b32 {G[q]}, {G[q]}, {self.vMask}")
            for j in range(8):
                A(f"v_fma_mix_f32 {UD[8 * e + j]}, {G[j // 2]}, {(t0, t1)[e]}, 0 op_sel:[{j % 2},0,0] op_sel_hi:[1,0,0]")
            for j in range(8):
                self.rnd(A, UD[8 * e + j], UD[8 * e + j])
        V.put(*self.G, self.vMask, self.vDk)
        for k in range(8):
            A(f"v_dot2_f32_bf16 {vSW}, {self.WR[k]}, {self.sOnes}, {vSW if k else 0}")
        self.allreduce(A, "v_add_f32", [vSW], 32)
        A(f"""
        v_and_b32 {t0}, 31, v0
        v_lshlrev_b32 {t0}, 4, {t0}
        v_lshlrev_b32 {vKw}, 2, {self.vTau}
        s_lshl_b32 s3, {sW}, 13
        s_lshl_b32 s16, {sL}, 4
        s_add_u32 s3, s3, s16
        s_add_u32 s3, s3, {WS_S3}
        v_lshl_add_u32 {vS3o}, {vL}, 12, s3
        s_lshr_b32 s3, {sL}, 5
        s_lshl_b32 s3, s3, 12
        s_add_u32 s16, s3, {WS_S3}
        v_lshl_add_u32 {self.vS3i}, v0, 4, s16
        s_lshl_b32 s16, {sL}, 11
        s_add_u32 s16, s16, {WS_ROWS}
        v_add_u32 {vRo}, s16, {t0}
        s_lshl_b32 s3, {sL}, 3
        s_sub_u32 s3, 2047, s3
        v_sub_u32 {t2}, s3, {self.vTau}
        v_mov_b32 {t1}, 0
        """)
        if self.o["dma_ack2"] and self.o["dma_at"] != "none":
            A(f"s_cmp_eq_u32 {self.sRole}, 2\ns_cbranch_scc1 L_dma_done")
            A(f"s_cmp_eq_u32 {self.sRole}, 1\ns_cbranch_scc1 L_dma_r1")
            keep = list(A.vm)
            for role in (0, 1):
                if role:
                    A.label("L_dma_r1")
                plan = self.dma_plan(A, role)
                n = len(plan) if role == 0 else self.o["dma_ack2"]
                for a, b in plan[:n]:
                    A(a)
                    A(b, tag="dma")
                if role == 0:
                    A("s_branch L_dma_done")
                    V.put(self.vWa)
                else:
                    self.plan1 = plan[n:]
            A.label("L_dma_done")
        if self.o["dma0_ack2"] and self.o["dma_at"] != "none":
            A(f"s_cmp_eq_u32 {self.sRole}, 0\ns_cbranch_scc0 L_dma0_done")
            for a, b in self.dma_plan(A, 0):
                A(a)
                A(b, tag="dma")
            V.put(self.vWa)
            A.label("L_dma0_done")
        self.stamp("dma", A)
        A.wait(vm=0)
        if self.o["poison_at"] == "pub":
            self.poll(A, "flg", lambda C: C(f"global_load_dword {self.vFl}, {self.vFi}, s[30:31] sc1"),
                      lambda C: C(f"v_cmp_ne_u32 vcc, {self.sE}, {self.vFl}"))
            V.put(self.vFl, self.vFi)
        self.stamp("ack2", A)
        ZT = self.ZT

        def s2_loads(C):
            C(f"global_load_dwordx4 {ZT[0:4]}, {self.vS2i}, s[30:31] sc1")
            C(f"global_load_dwordx4 {ZT[4:8]}, {self.vS2i2}, s[30:31] sc1")
        s2_loads(A)
        self.poll(A, "s2", s2_loads, self.poison_check([ZT[k] for k in range(8)], t0))
        self.stamp("s2", A)
        HP = get(8)
        self.T = T = get(8)
        for grp in range(2):
            for jj in range(4):
                j = 4 * grp + jj
                sel = self.sHi if j % 2 else self.sLo
                A(f"v_dot2_f32_bf16 {T[jj]}, {ZT[j // 2]}, {sel}, {UD[j]}")
                A(f"v_dot2_f32_bf16 {T[4 + jj]}, {ZT[4 + j // 2]}, {sel}, {UD[8 + j]}")
            for k in range(8):
                self.rnd(A, T[k], T[k])
            for q in range(2):
                j = 4 * grp + 2 * q
                A(f"v_pk_add_f32 {T[2 * q:2 * q + 2]}, {T[2 * q:2 * q + 2]}, {XL[j:j + 2]}")
                A(f"v_pk_add_f32 {T[4 + 2 * q:6 + 2 * q]}, {T[4 + 2 * q:6 + 2 * q]}, {XH[j:j + 2]}")
            for jj in range(4):
                A(f"v_cvt_pk_bf16_f32 {HP[4 * grp + jj]}, {T[jj]}, {T[4 + jj]}")
            for q in range(2):
                j = 4 * grp + 2 * q
                A(f"ds_write2st64_b32 {self.vHw2}, {HP[j]}, {HP[j + 1]} offset0:{4 * j} offset1:{4 * j + 4}")
        self.stamp("hw", A)
        A.barrier()
        self.stamp("b7", A)
        V.put(XL, XH, UD, HP, ZT, self.vS2i, self.vS2i2, self.XA)
        HB = get(8)
        A(f"ds_read_b128 {HB[0:4]}, {vHr} offset:{L_H}\nds_read_b128 {HB[4:8]}, {vHr} offset:{L_H + 512}")
        s1, s2, s3, NM, RS = get(), get(), get(), get(2), get(2)
        self.key = key = get()
        for k in range(8):
            A(f"v_dot2_f32_bf16 {s1}, {HB[k]}, {self.sOnes}, {s1 if k else 0}")
            A(f"v_dot2_f32_bf16 {s2}, {HB[k]}, {HB[k]}, {s2 if k else 0}")
            A(f"v_dot2_f32_bf16 {s3}, {HB[k]}, {self.WR[k]}, {s3 if k else 0}")
        self.allreduce(A, "v_add_f32", [s1, s2, s3], 32)
        self.ln_stats(A, s1, s2, NM[0], RS[0])
        A(f"v_fma_f32 {s3}, {NM[0]}, {vSW}, {s3}\nv_mul_f32 {s3}, {s3}, {RS[0]}")
        self.rnd(A, s3, s3)
        A(f"""
        v_ashrrev_i32 {t0}, 31, {s3}
        v_or_b32 {t0}, 0x80000000, {t0}
        v_xor_b32 {t0}, {s3}, {t0}
        v_and_b32 {t0}, 0xffff0000, {t0}
        v_or_b32 {key}, {t0}, {t2}
        s_mov_b64 exec, 1
        s_bitset1_b64 exec, 32
        ds_write_b32 {vKw}, {key} offset:{L_KEY}
        s_mov_b64 exec, -1
        """)
        self.stamp("key", A)
        H32 = get(16)
        for k in range(8):
            A(f"v_lshlrev_b32 {H32[2 * k]}, 16, {HB[k]}\nv_and_b32 {H32[2 * k + 1]}, 0xffff0000, {HB[k]}")
        A.barrier()
        self.kmax = kmax = get()
        A(f"ds_read_b128 {T[0:4]}, {t1} offset:{L_KEY}\nds_read_b128 {T[4:8]}, {t1} offset:{L_KEY + 16}")
        HN = get(8)
        self.D = D = get(32)
        A(f"v_mov_b32 {NM[1]}, {NM[0]}\nv_mov_b32 {RS[1]}, {RS[0]}")
        for k in range(8):
            A(f"v_pk_add_f32 {D[2 * k:2 * k + 2]}, {H32[2 * k:2 * k + 2]}, {NM}")
        A(f"v_max3_u32 {kmax}, {T[0]}, {T[1]}, {T[2]}\nv_max3_u32 {t0}, {T[3]}, {T[4]}, {T[5]}")
        A(f"v_max3_u32 {kmax}, {kmax}, {T[6]}, {T[7]}\nv_max_u32 {kmax}, {kmax}, {t0}")
        A("s_mov_b64 exec, 3")
        A(f"global_store_dword {vS3o}, {kmax}, s[30:31] sc1", tag="s3st")
        A("s_mov_b64 exec, -1")
        self.stamp("pub3", A)
        sC = self.sC
        A(f"v_cmp_eq_u32 {sC}, {key}, {kmax}")
        for k in range(16):
            self.rnd(A, D[k], D[k])
        for k in range(8):
            A(f"v_pk_mul_f32 {D[2 * k:2 * k + 2]}, {D[2 * k:2 * k + 2]}, {RS}")
        for k in range(8):
            A(f"v_cvt_pk_bf16_f32 {HN[k]}, {D[2 * k]}, {D[2 * k + 1]}")
        A(f"s_mov_b64 exec, {sC}")
        A(f"global_store_dwordx4 {vRo}, {HN[0:4]}, s[30:31] sc1", tag="rowst")
        A(f"global_store_dwordx4 {vRo}, {HN[4:8]}, s[30:31] offset:512 sc1", tag="rowst")
        A(f"global_store_dwordx4 {vRo}, {HB[0:4]}, s[30:31] offset:1024 sc1", tag="rowst")
        A(f"global_store_dwordx4 {vRo}, {HB[4:8]}, s[30:31] offset:1536 sc1", tag="rowst")
        A("s_mov_b64 exec, -1")
        self.stamp("hn", A)
        self.O = O = get(8)
        for k in range(8):
            A(f"v_dot2_f32_bf16 {D[2 * k]}, {HN[k]}, {self.sLo}, {H32[2 * k]}")
            A(f"v_dot2_f32_bf16 {D[2 * k + 1]}, {HN[k]}, {self.sHi}, {H32[2 * k + 1]}")
        for k in range(8):
            A(f"v_cvt_pk_bf16_f32 {O[k]}, {D[2 * k]}, {D[2 * k + 1]}")
        self.stamp("outc", A)
        V.put(H32, s1, s2, s3, NM, RS, vSW, vKw, vS3o, vRo, self.WR)

    def out_stores(self, C):
        pol = self.o["out_pol"]
        C(f"global_store_dwordx4 {self.vRow}, {self.O[0:4]}, s[28:29] {pol}", tag="out")
        C(f"global_store_dwordx4 {self.vRow}, {self.O[4:8]}, s[28:29] offset:512 {pol}", tag="out")

    def resolve(self, A, sfx, between=None):
        t0, t1, t2 = self.t
        T, kin = self.T, self.kin

        def s3_loads(C):
            C(f"global_load_dword {kin}, {self.vS3i}, s[30:31] sc1")
        s3_loads(A)
        if between:
            between()
        A(f"v_lshrrev_b32 {t1}, 4, v0\nv_and_b32 {t1}, 12, {t1}\nv_mov_b32 {t2}, 0")
        self.poll(A, "s3" + sfx, s3_loads, self.poison_check([kin], t0))
        self.stamp("s3p", A)
        self.allreduce(A, "v_max_u32", [kin], 64)
        self.stamp("s3w", A)
        A(f"s_mov_b64 exec, 1\nds_write_b32 {t1}, {kin} offset:{L_KEY2}\ns_mov_b64 exec, -1")
        A.barrier()
        A(f"ds_read_b128 {T[0:4]}, {t2} offset:{L_KEY2}")
        A(f"v_max3_u32 {kin}, {T[0]}, {T[1]}, {T[2]}\nv_max_u32 {kin}, {kin}, {T[3]}")
        A(f"v_readfirstlane_b32 {self.sK}, {kin}")
        A(f"s_and_b32 {self.sT}, {self.sK}, 0x7ff\ns_sub_u32 {self.sT}, 2047, {self.sT}")
        self.stamp("s3", A)
        A(f"s_lshr_b32 s3, {self.sT}, 3\ns_lshl_b32 s3, s3, 11\ns_add_u32 s3, s3, {WS_ROWS}")

    def finish(self, A, sfx):
        A.flush()
        A.label(f"L_fin_{sfx}")
        if self.o["stamps"]:
            A.wait(vm=0)
            self.stamp("end", A)
            if self.o["clk"]:
                A("s_memtime s[96:97]")
                A.wait(lg=0)
                A("s_sub_u32 s100, s96, s100\ns_mov_b32 s101, 0")
            A("s_waitcnt vmcnt(0) lgkmcnt(0)")
            self.dump_stamps(A)
        A("s_endpgm")

    def tail0(self, A):
        V = self.V
        get = V.get
        vL, vI, vG, sL, sW, sC = self.vL, self.vI, self.vG, self.sL, self.sW, self.sC
        t0, t1, t2 = self.t
        T, D = self.T, self.D
        vTr, vRed, vXs, vPub, vRd = get(), get(), get(), get(), get()
        WT = [self.AC.get(4, 4) for _ in range(8)]
        plan = [] if self.o["dma_ack2"] or self.o["dma0_ack2"] else self.dma_plan(A, 0)
        if self.o["dma_at"] == "none":
            plan = []

        def dma():
            for a, b in plan:
                A(a)
                A(b, tag="dma")
        if not self.o["r0_late"]:
            dma()
        A(f"""
        v_and_b32 {t0}, 3, {vI}
        v_lshlrev_b32 {t0}, 3, {t0}
        v_lshrrev_b32 {t1}, 2, {vI}
        v_lshl_add_u32 {t1}, {vG}, 3, {t1}
        v_lshl_add_u32 {t0}, {t1}, 6, {t0}
        v_add_u32 {vTr}, {self.sWb}, {t0}
        """)

        def tr_reads():
            A.wait_tag("dma")
            for ct in range(2):
                for m in range(4):
                    for e2 in range(2):
                        A(f"ds_read_b64_tr_b16 {WT[4 * ct + m][2 * e2:2 * e2 + 2]}, {vTr} offset:{(32 * m + 4 * e2) * 64 + 32 * ct}")
        A(f"""
        s_lshl_b32 s3, {sW}, 2
        v_lshl_add_u32 {vRed}, {vI}, 4, s3
        v_and_b32 {t0}, 3, {vI}
        v_lshlrev_b32 {t0}, 6, {t0}
        v_lshl_add_u32 {t0}, {vG}, 4, {t0}
        s_lshl_b32 s3, {sW}, 8
        v_add_u32 {vXs}, s3, {t0}
        v_and_b32 {t0}, 31, {vL}
        v_lshlrev_b32 {vRd}, 4, {t0}
        v_lshrrev_b32 {t1}, 5, {vL}
        v_lshlrev_b32 {t1}, 13, {t1}
        v_lshl_add_u32 {t1}, {t0}, 1, {t1}
        s_lshl_b32 s3, {sW}, 14
        s_lshl_b32 s16, {self.sUp}, 12
        s_add_u32 s3, s3, s16
        s_lshl_b32 s16, {self.sBlk}, 6
        s_add_u32 s3, s3, s16
        s_add_u32 s3, s3, {WS_S4}
        v_add_u32 {vPub}, s3, {t1}
        """)
        A.wait_tag("s3st")
        self.stamp("ack3", A)

        late_out = self.o["r0_late"] == 2

        def between():
            if self.o["r0_late"]:
                dma()
            if not late_out:
                A(f"s_andn2_b64 exec, -1, {sC}")
                self.out_stores(A)
                A("s_mov_b64 exec, -1")
            if not self.o["r0_late"]:
                tr_reads()
        self.resolve(A, "r0", between)
        XS = get(4)
        A(f"v_add_u32 {vXs}, s3, {vXs}")

        def row_loads(C):
            C(f"global_load_dwordx4 {XS}, {vXs}, s[30:31] sc1")
        row_loads(A)
        if late_out:
            A(f"v_cmp_ne_u32 {sC}, {self.kin}, {self.key}")
        else:
            A(f"v_cmp_ne_u32 vcc, {self.kin}, {self.kmax}\ns_and_b64 exec, vcc, {sC}")
            self.out_stores(A)
            A("s_mov_b64 exec, -1")
        if self.o["r0_late"]:
            tr_reads()
        self.poll(A, "rowr0", row_loads, self.poison_check([XS[k] for k in range(4)], t0))
        self.stamp("row", A)
        for k in range(8):
            A(f"v_mfma_f32_16x16x32_bf16 {D[4 * k:4 * k + 4]}, {XS}, {WT[k]}, 0")
        A(f"s_cmp_eq_u32 {self.sUp}, 0\ns_cselect_b64 s[16:17], -1, 0")
        A(f"""
        v_add_f32 {t0}, {D[0]}, {D[5]}
        v_add_f32 {t1}, {D[10]}, {D[15]}
        v_add_f32 {t0}, {t0}, {t1}
        v_add_f32 {t1}, {D[16]}, {D[21]}
        v_add_f32 {t2}, {D[26]}, {D[31]}
        v_add_f32 {t1}, {t1}, {t2}
        s_mov_b64 exec, 0xffff
        ds_write_b32 {vRed}, {t0} offset:{L_RED}
        ds_write_b32 {vRed}, {t1} offset:{L_RED + 256}
        s_mov_b64 exec, -1
        """)
        self.stamp("g1m", A)
        A.barrier()
        self.stamp("g1b", A)
        A(f"ds_read_b128 {T[0:4]}, {vRd} offset:{L_RED}")
        A(f"v_pk_add_f32 {T[0:2]}, {T[0:2]}, {T[2:4]}\nv_add_f32 {T[0]}, {T[0]}, {T[1]}")
        self.rnd(A, T[0], T[0])
        A(f"v_mul_f32 {t0}, {LOG2E | 0x80000000}, {T[0]}\nv_exp_f32 {t0}, {t0}\nv_add_f32 {t0}, 1.0, {t0}")
        A(f"v_rcp_f32 {t0}, {t0}\nv_mul_f32 {t0}, {T[0]}, {t0}")
        A(f"v_cndmask_b32 {t0}, {T[0]}, {t0}, s[16:17]")
        A(f"v_mov_b32_dpp {t1}, {t0} row_shl:1 row_mask:0xf bank_mask:0xf")
        A(f"v_cvt_pk_bf16_f32 {XS[0]}, {t0}, {t1}")
        for k in range(1, 4):
            A(f"v_mov_b32_dpp {XS[k]}, {XS[0]} row_shl:{2 * k} row_mask:0xf bank_mask:0xf")
        A("s_mov_b32 exec_lo, 0x01010101\ns_mov_b32 exec_hi, 0x01010101")
        A(f"global_store_dwordx4 {vPub}, {XS}, s[30:31] sc1")
        self.stamp("g1", A)
        if late_out:
            A(f"s_mov_b64 exec, {sC}")
            self.out_stores(A)
        self.finish(A, "r0")

    def tail2(self, A):
        A.wait_tag("s3st")
        self.stamp("ack3", A)

        def between():
            A(f"s_andn2_b64 exec, -1, {self.sC}")
            self.out_stores(A)
            A("s_mov_b64 exec, -1")
        if self.o["r2_late"]:
            self.resolve(A, "r2")
            A(f"v_cmp_ne_u32 vcc, {self.kin}, {self.key}\ns_mov_b64 exec, vcc")
        else:
            self.resolve(A, "r2", between)
            A(f"v_cmp_ne_u32 vcc, {self.kin}, {self.kmax}\ns_and_b64 exec, vcc, {self.sC}")
        self.out_stores(A)
        self.finish(A, "r2")

    def tail1(self, A):
        V = self.V
        get = V.get
        vL, vI, vG, sL, sW, sC = self.vL, self.vI, self.vG, self.sL, self.sW, self.sC
        t0, t1, t2 = self.t
        T, D = self.T, self.D
        plan = self.plan1 if self.o["dma_ack2"] else self.dma_plan(A, 1)
        if self.o["dma_at"] == "none":
            plan = []
        n1 = self.o["r1_split"]
        for a, b in plan[:n1]:
            A(a)
            A(b, tag="dma")
        A.wait_tag("s3st")
        self.stamp("ack3", A)

        def between():
            for a, b in plan[n1:]:
                A(a)
                A(b, tag="dma")
        self.resolve(A, "r1", between)
        vTr, vRed, vSig, vOut, vS4i = get(), get(), get(), get(), get()
        HH = get(2)
        A(f"""
        s_lshl_b32 s16, {self.sBlk}, 5
        s_add_u32 s3, s3, s16
        v_lshrrev_b32 {t1}, 1, {vI}
        v_lshl_add_u32 {t1}, {t1}, 2, s3
        """)

        def row_loads(C):
            C(f"global_load_dword {HH[0]}, {t1}, s[30:31] sc1")
            C(f"global_load_dword {HH[1]}, {t1}, s[30:31] offset:1024 sc1")
        row_loads(A)
        A(f"v_cmp_eq_u32 vcc, {self.kin}, {self.key}\ns_andn2_b64 exec, -1, vcc")
        self.out_stores(A)
        A("s_mov_b64 exec, -1")
        A(f"""
        v_and_b32 {t0}, 3, {vI}
        v_lshlrev_b32 {t0}, 3, {t0}
        v_lshrrev_b32 {t2}, 2, {vI}
        v_lshl_add_u32 {t2}, {vG}, 3, {t2}
        v_lshl_add_u32 {t0}, {t2}, 5, {t0}
        v_add_u32 {vTr}, {self.sWb}, {t0}
        """)
        self.poll(A, "rowr1", row_loads, self.poison_check([HH[0], HH[1]], t0))
        self.stamp("row", A)
        WT = [self.AC.get(4, 4) for _ in range(14)]
        A.wait_tag("dma")
        self.stamp("r1o", A)
        for m in range(14):
            for e2 in range(2):
                A(f"ds_read_b64_tr_b16 {WT[m][2 * e2:2 * e2 + 2]}, {vTr} offset:{(32 * m + 4 * e2) * 32}")
        self.stamp("r1t", A)
        sK, sT = self.sK, self.sT
        A(f"""
        s_and_b32 s16, {sK}, 0x7fff0000
        s_andn2_b32 s17, 0xffff0000, {sK}
        s_bitcmp1_b32 {sK}, 31
        s_cselect_b32 s16, s16, s17
        v_mov_b32 {t0}, s16
        v_mul_f32 {t0}, {LOG2E | 0x80000000}, {t0}
        v_exp_f32 {t0}, {t0}
        v_add_f32 {t0}, 1.0, {t0}
        v_rcp_f32 {t0}, {t0}
        """)
        self.rnd(A, vSig, t0)
        vS4u = get()
        A(f"""
        v_and_b32 {t0}, 1, {vI}
        v_xor_b32 {t0}, 1, {t0}
        v_lshlrev_b32 {t0}, 4, {t0}
        v_lshlrev_b32 {HH[0]}, {t0}, {HH[0]}
        v_lshlrev_b32 {HH[1]}, {t0}, {HH[1]}
        v_and_b32 {HH[0]}, 0xffff0000, {HH[0]}
        v_and_b32 {HH[1]}, 0xffff0000, {HH[1]}
        s_lshl_b32 s3, {sT}, 10
        s_lshl_b32 s16, {self.sBlk}, 5
        s_add_u32 s3, s3, s16
        v_lshl_add_u32 {vOut}, {vI}, 1, s3
        s_lshr_b32 s3, {sL}, 5
        s_lshl_b32 s3, s3, 13
        s_mul_i32 s16, {sW}, {56 * 16}
        s_add_u32 s3, s3, s16
        s_add_u32 s3, s3, {WS_S4}
        v_min_u32 {t0}, 13, {vI}
        v_lshl_add_u32 {t0}, {t0}, 2, {vG}
        v_lshl_add_u32 {vS4i}, {t0}, 4, s3
        v_add_u32 {vS4u}, 0x1000, {vS4i}
        s_lshl_b32 s3, {sW}, 2
        v_lshl_add_u32 {vRed}, {vI}, 4, s3
        v_mov_b32 {t2}, 0
        v_lshlrev_b32 {t1}, 4, {vI}
        """)
        A.wait(vm=0)
        self.stamp("r1a", A)
        GU, XS = get(8), get(4)

        def s4_loads(C):
            C(f"global_load_dwordx4 {GU[0:4]}, {vS4i}, s[30:31] sc1")
            C(f"global_load_dwordx4 {GU[4:8]}, {vS4u}, s[30:31] sc1")
        s4_loads(A)
        self.poll(A, "s4", s4_loads, self.poison_check([GU[k] for k in range(8)], t0))
        self.stamp("g1", A)
        for k in range(4):
            A(f"v_and_b32 {T[2 * k]}, 0xffff, {GU[k]}\nv_and_b32 {T[2 * k + 1]}, 0xffff0000, {GU[k]}")
        for k in range(8):
            A(f"v_dot2_f32_bf16 {T[k]}, {T[k]}, {GU[4 + k // 2]}, 0")
        for k in range(4):
            A(f"v_cvt_pk_bf16_f32 {XS[k]}, {T[2 * k]}, {T[2 * k + 1]}")
        DD = [D[4 * k:4 * k + 4] for k in range(8)]
        acc = [t2, get()]
        A(f"v_mov_b32 {acc[1]}, 0")
        for m in range(14 + 4):
            if m < 14:
                A(f"v_mfma_f32_16x16x32_bf16 {DD[m % 8]}, {XS}, {WT[m]}, 0")
            k = m - 4
            if k >= 0:
                a = acc[k % 2]
                A(f"v_add_f32_dpp {a}, {DD[k % 8][k % 4]}, {a} quad_perm:[0,1,2,3] row_mask:{1 << (k // 4)} bank_mask:0xf")
        A(f"v_add_f32 {t2}, {t2}, {acc[1]}")
        for sw in ("v_permlane16_swap_b32", "v_permlane32_swap_b32"):
            A(f"v_mov_b32 {t0}, {t2}\n{sw} {t2}, {t0}\nv_add_f32 {t2}, {t2}, {t0}")
        A(f"s_mov_b64 exec, 0xffff\nds_write_b32 {vRed}, {t2} offset:{L_RED}\ns_mov_b64 exec, -1")
        self.stamp("g2m", A)
        A.barrier()
        A(f"s_cmp_eq_u32 {sW}, 0\ns_cbranch_scc0 L_fin_r1")
        A(f"ds_read_b128 {T[0:4]}, {t1} offset:{L_RED}")
        A(f"v_pk_add_f32 {T[0:2]}, {T[0:2]}, {T[2:4]}\nv_add_f32 {t0}, {T[0]}, {T[1]}")
        self.rnd(A, t0, t0)
        A(f"v_mul_f32 {t0}, {t0}, {vSig}")
        self.rnd(A, t0, t0)
        A(f"v_add_f32 {t0}, {t0}, {HH[0]}")
        self.rnd(A, t0, t0)
        A(f"v_add_f32 {t0}, {t0}, {HH[1]}")
        self.rnd(A, t0, t0)
        A("s_mov_b64 exec, 0xffff")
        A(f"global_store_short_d16_hi {vOut}, {t0}, s[28:29] {self.o['fin_pol']}")
        self.stamp("g2", A)
        A(f"s_cmp_eq_u32 {self.sBlk}, 0\ns_cbranch_scc0 L_fin_r1")
        A("s_mov_b64 exec, 1")
        A(f"v_mov_b32 {t0}, {self.sE}\nv_mov_b32 {t2}, 0")
        A(f"global_store_dword {t2}, {t0}, s[30:31] offset:{WS_EPOCH} {self.o['fin_pol']}")
        self.finish(A, "r1")

    def build(self):
        A = self.A
        self.prologue()
        self.ksteps = self.kgen_steps()
        for _ in range(self.o["kpre"]):
            next(self.ksteps)
        self.ln1()
        self.kgen()
        self.sWb, self.sC, self.sK, self.sT = self.S.get(), self.S.get(2), self.S.get(), self.S.get()
        self.conv_all()
        self.phase_c()
        self.kin = self.V.get()
        A(f"s_cmp_eq_u32 {self.sRole}, 1\ns_cbranch_scc1 L_role1")
        B = A.fork()
        B.label("L_role1")
        A(f"s_cmp_eq_u32 {self.sRole}, 2\ns_cbranch_scc1 L_role2")
        C = A.fork()
        C.label("L_role2")
        vfree, afree = set(self.V.free), set(self.AC.free)
        self.tail0(A)
        self.V.free, self.AC.free = set(vfree), set(afree)
        self.tail1(B)
        self.V.free, self.AC.free = set(vfree), set(afree)
        self.tail2(C)
        B.lines += C.lines
        B.count += C.count
        body = A.text() + B.text() + "".join(c.text() for c in self.cold)
        nv = self.V.top + 1
        accum = (nv + 3) // 4 * 4
        total = max(accum + self.AC.top + 1, 264)
        head = open(f"cdna_kernels/{NAME}.s.ref").read().split("; Override launch geometry")[0]
        self.stats = dict(instr=A.count + B.count, nops=A.nops + B.nops, vgpr=nv, agpr=self.AC.top + 1, mfma=self.nmfma, bg_left=self.bg_left)
        tab = ""
        if self.o["band_tab"]:
            tab = f".p2align 7\n.type L_tab,@object\nL_tab:\n{band_table()}\n.size L_tab, 4096\n"
        return head + f"""; One persistent launch: 256 workgroups, one per CU, exchanging data through d_ws.
; @launch grid=(256,1,1) block=(256,1,1) lds={LDS_BYTES}
.amdgcn_target "amdgcn-amd-amdhsa--gfx950"
.text
.globl {NAME}_kernel
.p2align 8
.type {NAME}_kernel,@function
{NAME}_kernel:
{body}L_end:
    s_endpgm
L_code_end:
{tab}L_all_end:
.section .rodata,"a"
.p2align 6
.amdhsa_kernel {NAME}_kernel
  .amdhsa_next_free_vgpr {total}
  .amdhsa_next_free_sgpr 102
  .amdhsa_accum_offset {accum}
  .amdhsa_group_segment_fixed_size 0
  .amdhsa_kernarg_size 120
  .amdhsa_user_sgpr_count 2
  .amdhsa_user_sgpr_kernarg_segment_ptr 1
  .amdhsa_system_sgpr_workgroup_id_x 1
  .amdhsa_float_denorm_mode_32 3
.end_amdhsa_kernel
"""


def generate(path, **opt):
    g = Gen(**opt)
    text = g.build()
    open(path, "w").write(text)
    return g.stats


if __name__ == "__main__":
    out = sys.argv[1] if len(sys.argv) > 1 else f"cdna_kernels/{NAME}.s"
    opts = {}
    for a in sys.argv[2:]:
        k, v = a.split("=")
        opts[k] = {"True": True, "False": False}.get(v, int(v) if v.isdigit() else v)
    print(generate(out, **opts))
```

```python
import sys
from asmdsl import Asm, Pool, R

NAME = "sequential_preLN__ssm_conv_s4d__moe_arch_mod__prompt"

WS_EPOCH = 0
WS_FLG = 0x4000
WS_S3 = 0x8000
WS_S4 = 0x10000
WS_ROWS = 0x20000
WS_S1 = 0x100000
WS_S2 = 0x300000
WS_STAMP = 0x600000

ROWB = 544
STAGE_CH = 57 * ROWB
L_K = 0
KCOPY = 2112
KCH = 4 * KCOPY
L_U = L_K + 2 * KCH
UCH = 4672
L_Z = 26368
L_H = L_Z + 8192
L_ST = L_H + 8192
L_KEY = L_ST + 64
L_KEY2 = L_KEY + 32
L_RED = L_KEY2 + 32
L_P = 43520
PHALF = 4096 + 64
L_STAGE = 60416
LDS_BYTES = L_STAGE + 2 * STAGE_CH
assert L_U + UCH + 4608 <= L_Z and L_RED + 512 <= L_P and L_P + 4 * PHALF <= L_STAGE and L_STAGE % 256 == 0

NX = 560
V2 = [608 + 64 * s for s in range(4)]
V3 = [864 + 80 * s for s in range(2)]
TAGMASK = 0x40074007
LOG2E = 0x3FB8AA3B
INV2PI = 0x3E22F983
SPIN_MAX = 1 << 14

BANDS = ((12, 1), (8, 2), (8, 3), (8, 4))


def band_table():
    out = []
    for delta, h in BANDS:
        for lane in range(64):
            phi, g = lane & 15, lane >> 4
            bits = [0x3C00 if abs(8 * g + e - phi - delta) <= h else 0 for e in range(8)]
            out.append(".long " + ", ".join(hex(bits[2 * d] | bits[2 * d + 1] << 16) for d in range(4)))
    return "\n".join(out)


STAMP_SETS = {
    True: ["start", "karg", "x", "pub1", "rec", "kmf", "frag", "s1", "conv", "ack2", "s2", "pub3", "ack3", "s3", "row", "g1", "g2", "end"],
    "z": ["start"] + [f"unused{i}" for i in range(16)] + ["end"],
    "a": ["start", "karg", "issued", "consts", "x", "stat", "b1", "norm", "pub1", "warm", "par", "ws", "recR", "rec", "b2", "kmf0", "kmf", "end"],
    "b": ["start", "kmf", "shift", "frag", "s1w", "s1", "b5", "conv", "b6", "st2", "dma", "ack2", "s2", "hw", "b7", "key", "pub3", "end"],
    "c": ["start", "pub3", "hn", "outc", "ack3", "s3p", "s3w", "s3", "row", "g1m", "g1b", "g1", "r1o", "r1t", "r1a", "g2m", "g2", "end"],
}
DEFAULTS = dict(stamps=False, s1_at="mfma", warm=True, out_pol="sc1", pf_code=True, pf_lines=8, dbg=False, poison_at="consts", recb=4, addtid=True, r1_at=28, b_first=False, dma0_ack2=False, p3_at="consts", cpre=0, bg_from=0, fin_pol="", r0_late=2, r2_late=False, dma_ack2=0, xmap=True, x_pol="", w_pol="", p_pol="sc1", mask_poll=True, warm_slot=30, kpre=0, par_first=True, band_tab=False, frag_in=True, dma_pre=0, r1_split=4, xa_glob=False, warm_at="bg", xa_at="start", nf=7, ng=4, pe=14, pd=6, npre=6, clk=False, dma_at="conv", warm_mode="sect", far_span=(56, 40))


class Gen:
    def __init__(self, **opt):
        self.o = dict(DEFAULTS)
        self.o.update(opt)
        self.A = Asm()
        self.V = Pool("v", 1, 255)
        self.AC = Pool("a", 0, 255)
        self.S = Pool("s", 32, 63)
        self.cold = []
        self.nstamp = 0

    def stamp(self, name, A=None):
        sel = STAMP_SETS.get(self.o["stamps"])
        if sel and name in sel:
            i = sel.index(name)
            (A or self.A)(f"{'s_memtime' if self.o.get('cyc') else 's_memrealtime'} s[{64 + 2 * i}:{65 + 2 * i}]")

    def dump_stamps(self, A):
        if not self.o["stamps"]:
            return
        if self.o["dbg"]:
            self.dump_debug(A)
            return
        a, d = self.V.get(), self.V.get(2)
        A("s_mov_b64 exec, 1")
        A.wait(lg=0)
        A(f"s_lshl_b32 s3, {self.sL}, 2\ns_add_u32 s3, s3, {self.sW}\ns_lshl_b32 s3, s3, 8\ns_add_u32 s3, s3, {WS_STAMP}")
        A(f"v_mov_b32 {a}, s3")
        for i in range(19):
            A(f"v_mov_b32 {d[0]}, s{64 + 2 * i}\nv_mov_b32 {d[1]}, s{65 + 2 * i}")
            A(f"global_store_dwordx2 {a}, {d}, s[30:31] offset:{8 * i}")
            A.wait(vm=0)
        self.V.put(a, d)

    def dump_debug(self, A):
        a, d = self.V.get(), self.V.get()
        n = getattr(self, "ndbg", 0)
        self.ndbg = n + 1
        A("s_mov_b64 exec, 1")
        A(f"s_cmp_eq_u32 {self.sL}, 255\ns_cbranch_scc0 L_dbg{n}\ns_cmp_eq_u32 {self.sW}, 0\ns_cbranch_scc0 L_dbg{n}")
        A("s_load_dwordx2 s[4:5], s[0:1], 104")
        A.wait(lg=0)
        A(f"v_mov_b32 {a}, 0")
        for i in range(1, 17):
            A(f"s_sub_u32 s3, s{64 + 2 * (i + 1)}, s64\nv_mov_b32 {d}, s3")
            A(f"global_store_dword {a}, {d}, s[4:5] offset:{4 * (i - 1)}")
        A.label(f"L_dbg{n}")
        self.V.put(a, d)

    def rnd(self, A, dst, src, neg=False):
        A(f"v_cvt_pk_bf16_f32 {dst}, 0, {'-' if neg else ''}{src}")

    def allreduce(self, A, op, regs, width, fill=()):
        fill = list(fill)

        def pad():
            for _ in range(max(0, 3 - len(regs))):
                if fill:
                    A(fill.pop(0))
        steps = ["quad_perm:[1,0,3,2]", "quad_perm:[2,3,0,1]", "row_half_mirror", "row_mirror"]
        for st in steps:
            pad()
            for r in regs:
                A(f"{op}_dpp {r}, {r}, {r} {st} row_mask:0xf bank_mask:0xf")
        tmp = [self.V.get() for _ in regs]
        for w, sw in ((32, "v_permlane16_swap_b32"), (64, "v_permlane32_swap_b32")):
            if width >= w:
                for r, t in zip(regs, tmp):
                    A(f"v_mov_b32 {t}, {r}")
                pad()
                for r, t in zip(regs, tmp):
                    A(f"{sw} {r}, {t}")
                for r, t in zip(regs, tmp):
                    A(f"{op} {r}, {r}, {t}")
        for f in fill:
            A(f)
        self.V.put(*tmp)

    def ln_stats(self, A, s1, s2, nm, rs):
        t = self.V.get()
        A(f"v_mul_f32 {s1}, 0x3b000000, {s1}")
        A(f"v_mul_f32 {s2}, 0x3b000000, {s2}")
        A(f"v_fma_f32 {t}, -{s1}, {s1}, {s2}")
        A(f"v_max_f32 {t}, 0, {t}")
        self.rnd(A, t, t)
        self.rnd(A, nm, s1, neg=True)
        A(f"v_add_f32 {t}, 0x3727c5ac, {t}")
        self.rnd(A, t, t)
        A(f"v_sqrt_f32 {t}, {t}")
        self.rnd(A, t, t)
        A(f"v_rcp_f32 {rs}, {t}")
        self.V.put(t)

    def poll(self, A, name, loads, check):
        check(A)
        A(f"s_cbranch_vccnz L_{name}_slow")
        A.label(f"L_{name}_ok")
        C = Asm()
        C.label(f"L_{name}_slow")
        C("s_mov_b32 s3, 0")
        C.label(f"L_{name}_loop")
        if self.o["mask_poll"]:
            C("s_mov_b64 exec, vcc")
        C("s_nop 1")
        loads(C)
        C(f"s_add_u32 s3, s3, 1\ns_cmp_ge_u32 s3, {SPIN_MAX}")
        C("s_cselect_b32 s18, 0, -1\ns_mov_b32 s19, s18")
        check(C)
        C.wait(vm=0)
        C("s_nop 1")
        C("s_and_b64 vcc, vcc, s[18:19]")
        C(f"s_cbranch_vccnz L_{name}_loop")
        C("s_mov_b64 exec, -1")
        C("s_nop 2")
        C(f"s_branch L_{name}_ok")
        self.cold.append(C)

    def prologue(self):
        A, V, S = self.A, self.V, self.S
        A("s_cmp_ge_u32 s2, 0x100\ns_cbranch_scc1 L_end")
        A("s_load_dwordx16 s[4:19], s[0:1], 0\ns_load_dwordx8 s[20:27], s[0:1], 64")
        A("s_load_dwordx2 s[28:29], s[0:1], 96\ns_load_dwordx2 s[30:31], s[0:1], 112")
        self.stamp("start")
        if self.o["clk"]:
            A("s_memtime s[100:101]")
        self.sL, self.sW, self.sTag, self.sE = S.get(), S.get(), S.get(), S.get()
        self.sOnes, self.sLo, self.sHi, self.sCh = S.get(), S.get(), S.get(), S.get()
        self.sB, self.sH, self.sa, self.sb = S.get(), S.get(), S.get(), S.get()
        sL, sW, sa, sb = self.sL, self.sW, self.sa, self.sb
        self.vL = V.get()
        self.vI = V.get()
        self.vG = V.get()
        t0, t1, t2, t3 = V.get(), V.get(), V.get(), V.get()
        self.vJunk = V.get(2)
        A(f"v_lshrrev_b32 {t0}, 6, v0\ns_lshr_b32 {sL}, s2, 3")
        if self.o["pf_code"]:
            nl = self.o["pf_lines"]
            self.sPc = S.get(2)
            A(f"s_getpc_b64 {self.sPc}")
            A.label("L_pc")
            A(f"""
            v_lshl_add_u32 {t2}, {sL}, 2, {t0}
            v_and_b32 {t2}, {256 // nl - 1}, {t2}
            v_and_b32 {t1}, {nl - 1}, v0
            v_lshl_add_u32 {t2}, {t2}, {nl.bit_length() - 1}, {t1}
            v_lshlrev_b32 {t2}, 7, {t2}
            v_min_u32 {t2}, L_all_end-L_pc-4, {t2}
            global_load_dword {self.vJunk[0]}, {t2}, {self.sPc}
            """)
        self.vTau, self.vHr, self.vRow, vP = V.get(), V.get(), V.get(), V.get()
        A(f"""
        v_readfirstlane_b32 {sW}, {t0}
        s_and_b32 s3, s2, 7
        s_lshl_b32 s3, s3, 5
        s_add_u32 {sL}, {sL}, s3
        {"" if self.o["xmap"] else f"s_mov_b32 {sL}, s2"}
        v_and_b32 {self.vL}, 63, v0
        v_lshrrev_b32 {self.vTau}, 5, v0
        v_and_b32 {t1}, 31, v0
        v_lshlrev_b32 {t1}, 4, {t1}
        v_lshl_add_u32 {self.vHr}, {self.vTau}, 10, {t1}
        s_lshl_b32 {sa}, {sL}, 13
        v_add_u32 {self.vRow}, {sa}, {self.vHr}
        s_lshr_b32 s3, {sL}, 6
        s_lshl_b32 {self.sCh}, s3, 7
        s_and_b32 s3, {sL}, 31
        s_lshl_b32 s3, s3, 2
        s_add_u32 {self.sCh}, {self.sCh}, s3
        s_bfe_u32 s3, {sL}, 0x10005
        s_add_u32 {self.sCh}, {self.sCh}, s3
        s_and_b32 s3, {sW}, 2
        s_add_u32 {self.sCh}, {self.sCh}, s3
        s_lshl_b32 s3, {self.sCh}, 8
        v_lshl_add_u32 {vP}, {self.vL}, 2, s3
        s_lshl_b32 {self.sE}, {self.sCh}, 1
        s_and_b32 {self.sE}, {self.sE}, -4
        v_and_b32 {self.vI}, 15, v0
        v_bfe_u32 {self.vG}, v0, 4, 2
        s_lshr_b32 {self.sB}, {sW}, 1
        s_and_b32 {self.sH}, {sW}, 1
        """)
        self.XB, self.XA, self.PAR, self.WR = V.get(8), V.get(8), V.get(4), V.get(8)
        self.sDt = S.get()
        lines = self.const_lines(t0, t1, t2, t3)
        npre = self.o["cpre"]
        for ln in lines[:npre]:
            A(ln)
        for k in range(4):
            A(f"global_load_dword {self.PAR[k]}, {vP}, s[{6 + 2 * k}:{7 + 2 * k}] {self.o['x_pol']}")
        A(f"global_load_dwordx4 {self.XB[0:4]}, {self.vRow}, s[4:5] {self.o['x_pol']}")
        A(f"global_load_dwordx4 {self.XB[4:8]}, {self.vRow}, s[4:5] offset:512 {self.o['x_pol']}")
        A(f"s_load_dword {self.sDt}, s[14:15], {self.sE}")
        A(f"s_load_dword {self.sE}, s[30:31], {WS_EPOCH}")
        self.stamp("karg")
        V.put(vP)
        for ln in lines[npre:]:
            A(ln)
        self.bg = self.background()
        if self.o["p3_at"] == "consts":
            for ln in self.p3_lines[:-1]:
                A(ln)
            self.p3_lines = self.p3_lines[-1:]
        if self.o["poison_at"] == "pub":
            self.vFo, self.vFi = V.get(), V.get()
            A(f"""
            s_lshl_b32 s3, {sW}, 12
            s_lshl_b32 {sb}, {sL}, 4
            s_add_u32 s3, s3, {sb}
            s_add_u32 s3, s3, {WS_FLG}
            v_mov_b32 {self.vFo}, s3
            s_lshr_b32 s3, {sL}, 6
            s_lshl_b32 s3, s3, 12
            s_add_u32 s3, s3, {WS_FLG}
            v_lshl_add_u32 {self.vFi}, v0, 4, s3
            """)
        if self.o["poison_at"] == "consts":
            self.poison2()
        self.stamp("consts")
        V.put(t0, t1, t2, t3, *self.ctmp)

    def poison2(self):
        A = self.A
        A(f"global_store_dwordx4 {self.vP2}, {self.M1}, s[30:31] sc1", tag="poison")
        A(f"global_store_dwordx4 {self.vP2}, {self.M1}, s[30:31] offset:1024 sc1", tag="poison")
        self.V.put(self.vP2)

    def const_lines(self, t0, t1, t2, t3):
        V, S = self.V, self.S
        vI, vG, vL, sW, sL, sB, sH, sa, sb = self.vI, self.vG, self.vL, self.sW, self.sL, self.sB, self.sH, self.sa, self.sb
        out = []

        def A(text):
            out.extend(x.strip() for x in text.strip().split("\n") if x.strip())
        self.BAND = {key: V.get(4) for key in BANDS}
        SEL = V.get(6)
        A(f"""
        v_lshlrev_b32 {t0}, 3, {vG}
        v_sub_u32 {t0}, {t0}, {vI}
        v_add_u32 {t0}, 20, {t0}
        v_mul_u32_u24 {t0}, 0x10001, {t0}
        v_mov_b32 {t3}, 0x70007
        s_mov_b32 {sb}, 0xc000c
        """)
        for k in range(6):
            c0, c1 = 32 - 2 * k, 31 - 2 * k
            A(f"""
            s_mov_b32 s3, {c0 | c1 << 16}
            v_pk_sub_i16 {t1}, {t0}, s3
            v_pk_sub_i16 {t2}, s3, {t0}
            v_pk_max_i16 {t1}, {t1}, {t2}
            v_pk_min_i16 {t1}, {t1}, {t3}
            v_lshl_or_b32 {SEL[k]}, {t1}, 8, {sb}
            """)
        for (delta, h), B in self.BAND.items():
            lut = sum(0x3C << (8 * i) for i in range(min(h + 1, 4)))
            A(f"s_mov_b32 s3, {lut}")
            for d in range(4):
                A(f"v_perm_b32 {B[d]}, {60 if h == 4 else 0}, s3, {SEL[d + (0 if delta == 12 else 2)]}")
        Z = SEL[0:4]
        for k in range(4):
            A(f"v_mov_b32 {Z[k]}, 0")
        self.vShift, self.vShiftR = V.get(), V.get()
        A(f"""
        v_lshlrev_b32 {t2}, 4, v0
        v_and_b32 {t1}, 127, v0
        s_mul_i32 s3, {sB}, {UCH}
        s_add_u32 {sb}, s3, {L_U}
        v_lshl_add_u32 {t0}, {t1}, 2, {sb}
        ds_write_b128 {t2}, {Z} offset:{L_P}
        ds_write_b128 {t2}, {Z} offset:{L_P + PHALF}
        ds_write_b128 {t2}, {Z} offset:{L_P + 2 * PHALF}
        ds_write_b128 {t2}, {Z} offset:{L_P + 3 * PHALF}
        ds_write_b32 {t0}, {Z[0]}
        s_mul_i32 s3, {sB}, {2 * PHALF}
        v_lshl_add_u32 {self.vShiftR}, {t1}, 5, s3
        """)
        self.vUf, self.vZw, self.vUw = V.get(), V.get(), V.get()
        self.vN, self.vF = V.get(), V.get()
        A(f"""
        v_lshl_add_u32 {t0}, {vI}, 5, {sb}
        v_lshl_add_u32 {self.vUf}, {vG}, 4, {t0}
        s_mul_i32 s3, {sB}, {KCH}
        v_lshl_add_u32 {self.vShift}, {t1}, 4, s3
        v_sub_u32 {t0}, 15, {vI}
        v_and_b32 {t1}, 3, {t0}
        v_and_b32 {t0}, 12, {t0}
        v_mul_u32_u24 {t1}, {KCOPY}, {t1}
        v_lshl_add_u32 {t0}, {t0}, 1, {t1}
        v_add_u32 {t0}, s3, {t0}
        v_lshl_add_u32 {self.vN}, {vG}, 4, {t0}
        v_lshl_add_u32 {self.vF}, {vG}, 3, {t0}
        v_and_b32 {t0}, 2, {vG}
        v_lshl_add_u32 {t0}, {vI}, 2, {t0}
        v_add_u32 {t0}, {sB}, {t0}
        v_lshrrev_b32 {t1}, 1, {vI}
        v_xor_b32 {t0}, {t0}, {t1}
        v_and_b32 {t1}, 1, {vG}
        v_lshlrev_b32 {t1}, 3, {t1}
        v_lshl_add_u32 {self.vZw}, {t0}, 4, {t1}
        """)
        self.sStM = S.get()
        self.vR, self.vS0, self.vS1r = V.get(), V.get(), V.get()
        A(f"""
        s_mul_i32 s3, {sB}, {STAGE_CH}
        s_lshl_b32 {sb}, {sH}, 8
        s_add_u32 s3, s3, {sb}
        s_add_u32 {self.sStM}, s3, {L_STAGE - 0x8000}
        s_add_u32 s3, s3, {L_STAGE}
        v_lshl_add_u32 {t2}, {vG}, 4, s3
        v_xor_b32 {t0}, 3, {vI}
        v_bfe_u32 {t1}, {t0}, 1, 1
        v_add_u32 {t1}, {t0}, {t1}
        v_lshrrev_b32 {t1}, 1, {t1}
        s_movk_i32 s3, {ROWB}
        v_mad_u32_u24 {self.vR}, {vI}, s3, {t2}
        v_mad_u32_u24 {self.vS0}, {t0}, s3, {t2}
        v_mad_u32_u24 {self.vS1r}, {t1}, s3, {t2}
        """)
        self.vK1, self.vK3, self.vKs = V.get(), V.get(), V.get()
        A(f"""
        s_mul_i32 s3, {sW}, {PHALF}
        s_add_u32 s3, s3, {L_P}
        v_lshlrev_b32 {t3}, 4, {vG}
        v_sub_u32 {t3}, s3, {t3}
        v_lshlrev_b32 {t0}, 6, {vI}
        v_sub_u32 {t0}, {t3}, {t0}
        v_add_u32 {self.vK1}, {4 * (540 - 256)}, {t0}
        v_and_b32 {t1}, 3, {vI}
        v_lshlrev_b32 {t1}, 6, {t1}
        v_and_b32 {t2}, 4, {vI}
        v_lshlrev_b32 {t2}, 2, {t2}
        v_sub_u32 {t1}, {t1}, {t2}
        v_add_u32 {t1}, {V2[0] + 44}, {t1}
        v_and_b32 {t2}, 1, {vI}
        v_mul_u32_u24 {t2}, 80, {t2}
        v_and_b32 {t0}, 6, {vI}
        v_lshlrev_b32 {t0}, 3, {t0}
        v_sub_u32 {t2}, {t2}, {t0}
        v_add_u32 {t2}, {V3[0] + 60}, {t2}
        v_cmp_gt_u32 vcc, 8, {vI}
        v_mov_b32 {t0}, {4 * 29}
        v_mov_b32 {self.vKs}, {4 * (NX + 27)}
        v_cndmask_b32 {t1}, {t2}, {t1}, vcc
        v_cndmask_b32 {t0}, {t0}, {self.vKs}, vcc
        v_lshl_add_u32 {self.vK3}, {t1}, 2, {t3}
        v_add_u32 {self.vKs}, s3, {t0}
        """)
        self.vS1o, self.vS1i, self.vS1i2, self.vP2 = V.get(), V.get(), V.get(), V.get()
        self.vMask, self.vHw2, self.M1 = V.get(), V.get(), V.get(4)
        A(f"""
        v_and_b32 {t0}, 1, v0
        v_lshrrev_b32 {t1}, 1, v0
        v_mul_u32_u24 {t2}, {UCH}, {t0}
        v_lshl_add_u32 {self.vUw}, {t1}, 4, {t2}
        v_lshlrev_b32 {t0}, 4, {t0}
        v_lshl_add_u32 {t2}, {t1}, 13, {t0}
        s_lshl_b32 s3, {sL}, 5
        s_add_u32 s3, s3, {WS_S1}
        v_add_u32 {self.vS1i}, s3, {t2}
        v_add_u32 {self.vS1i2}, 0x100000, {self.vS1i}
        s_lshl_b32 s3, {sW}, 11
        s_add_u32 s3, s3, {sa}
        s_add_u32 s3, s3, {WS_S1}
        v_lshl_add_u32 {self.vS1o}, {vL}, 4, s3
        v_add_u32 {self.vP2}, {WS_S2 - WS_S1}, {self.vS1o}
        s_mov_b32 s3, {L_H}
        v_lshl_add_u32 {self.vHw2}, v0, 2, s3
        v_mov_b32 {self.vMask}, {0xFFFFFFFF ^ TAGMASK}
        s_mov_b32 {self.sOnes}, 0x3f803f80
        s_mov_b32 {self.sLo}, 0x3f80
        s_mov_b32 {self.sHi}, 0x3f800000
        """)
        for k in range(4):
            A(f"v_mov_b32 {self.M1[k]}, -1")
        self.ctmp = [SEL]
        return out

    def background(self):
        V, S = self.V, self.S
        vL, sW, sL, sa, sb = self.vL, self.sW, self.sL, self.sa, self.sb
        t0, t1, t2 = V.get(), V.get(), V.get()
        out = []

        def A(text):
            out.extend(x.strip() for x in text.strip().split("\n") if x.strip())
        A(f"""
        s_lshr_b32 s3, {sL}, 5
        s_and_b32 {sb}, {sL}, 31
        s_mul_i32 s6, {sb}, {16 * 3584}
        s_mul_i32 s7, s3, 448
        s_add_u32 s6, s6, s7
        v_lshrrev_b32 {t0}, 2, {vL}
        v_and_b32 {t1}, 3, v0
        v_mul_u32_u24 {t0}, 3584, {t0}
        v_lshl_add_u32 {t0}, {t1}, 7, {t0}
        v_add_u32 {t0}, s6, {t0}
        s_mul_i32 s6, {sb}, {56 * 1024}
        s_lshl_b32 s7, s3, 7
        s_add_u32 s6, s6, s7
        s_mul_i32 s7, {self.sH}, {28 * 1024}
        s_add_u32 s6, s6, s7
        v_min_u32 {t1}, 27, {vL}
        v_lshl_add_u32 {t1}, {t1}, 10, s6
        s_cmp_eq_u32 {sW}, 0
        s_cselect_b32 s8, s22, s24
        s_cselect_b32 s9, s23, s25
        s_cmp_lt_u32 {sW}, 2
        s_cselect_b32 s8, s8, s26
        s_cselect_b32 s9, s9, s27
        s_cselect_b64 vcc, -1, 0
        v_cndmask_b32 {t0}, {t1}, {t0}, vcc
        """)
        if self.o["dma_at"] != "none":
            A(f"global_load_dword {self.vJunk[1]}, {t0}, s[8:9]")
        self.nwarm = len(out)
        warm_block = list(out)
        if self.o["warm_at"] == "bg":
            out.clear()
        nblock = len(out)
        A(f"s_lshr_b32 s3, {sL}, 5\ns_and_b32 {sb}, {sL}, 31")
        self.sBlk, self.sRole, self.sUp = S.get(), S.get(), S.get()
        A(f"""
        s_cmp_ge_u32 {sb}, 7
        s_cselect_b32 {self.sUp}, 1, 0
        s_cselect_b32 s6, 7, 0
        s_sub_u32 s6, {sb}, s6
        s_mul_i32 {self.sBlk}, s3, 7
        s_add_u32 {self.sBlk}, {self.sBlk}, s6
        s_cmp_ge_u32 {sb}, 14
        s_cselect_b32 {self.sRole}, 2, 0
        s_lshl_b32 s3, s3, 2
        s_sub_u32 s6, {sb}, {self.o["r1_at"]}
        s_add_u32 s3, s3, s6
        s_cmp_lt_u32 s6, 4
        s_cselect_b32 {self.sRole}, 1, {self.sRole}
        s_cselect_b32 {self.sBlk}, s3, {self.sBlk}
        """)
        A(f"""
        s_lshl_b32 s3, {sL}, 11
        s_add_u32 s3, s3, {WS_ROWS}
        v_lshl_add_u32 {t0}, v0, 4, s3
        s_lshl_b32 s6, {sL}, 4
        s_add_u32 s6, s6, {WS_S3}
        v_lshl_add_u32 {t1}, {vL}, 12, s6
        s_cmp_lt_u32 {sW}, 2
        s_cselect_b64 vcc, -1, 0
        v_cndmask_b32 {t0}, {t1}, {t0}, vcc
        s_lshl_b32 s7, {self.sUp}, 12
        s_lshl_b32 s3, {self.sBlk}, 6
        s_add_u32 s7, s7, s3
        s_add_u32 s7, s7, {WS_S4}
        v_bfe_u32 {t2}, v0, 2, 3
        v_and_b32 {t1}, 3, v0
        v_lshlrev_b32 {t1}, 4, {t1}
        v_lshl_add_u32 {t2}, {t2}, 13, {t1}
        v_add_u32 {t2}, s7, {t2}
        s_cmp_eq_u32 {self.sRole}, 0
        s_cselect_b32 s7, -1, 0
        s_cmp_eq_u32 {sW}, 3
        s_cselect_b64 vcc, -1, 0
        s_cselect_b32 s6, s7, 0xff
        v_cndmask_b32 {t0}, {t0}, {t2}, vcc
        s_cmp_lt_u32 {sW}, 2
        s_cselect_b32 s6, -1, s6
        s_cselect_b32 s7, -1, 0
        """)
        out.append(("s_mov_b64 exec, s[6:7]", f"global_store_dwordx4 {t0}, {self.M1}, s[30:31] sc1", "s_mov_b64 exec, -1"))
        self.p3_lines = []
        if self.o["p3_at"] != "bg":
            self.p3_lines = out[nblock:]
            del out[nblock:]
        if self.o["warm_at"] == "bg":
            out.extend(warm_block)
        self.vS2o, self.vS2o2, self.vS2i, self.vS2i2, self.vZr = V.get(), V.get(), V.get(), V.get(), V.get()
        A(f"""
        s_add_u32 s3, {sa}, {WS_S2}
        v_lshl_add_u32 {self.vS2o}, v0, 4, s3
        v_add_u32 {self.vS2o2}, 0x1000, {self.vS2o}
        v_bfe_u32 {t0}, v0, 3, 3
        v_xor_b32 {t0}, v0, {t0}
        v_lshlrev_b32 {self.vZr}, 4, {t0}
        s_lshl_b32 s3, {sW}, 18
        s_add_u32 s3, s3, {WS_S2 - WS_S1}
        v_add_u32 {self.vS2i}, s3, {self.vS1i}
        v_add_u32 {self.vS2i2}, 0x40000, {self.vS2i}
        """)
        self.bgtmp = [t0, t1, t2, self.M1]
        return out

    def ln1(self):
        A, V = self.A, self.V
        glob = False
        s1, s2, nm, rs, ad = V.get(), V.get(), V.get(), V.get(), V.get()
        A(f"v_lshlrev_b32 {ad}, 2, {self.vTau}")
        for k in range(8):
            if not glob and k % 4 == 0:
                A(f"ds_write_b128 {self.vHr}, {self.XB[k:k + 4]} offset:{L_H + 128 * k}")
            A(f"v_dot2_f32_bf16 {s1}, {self.XB[k]}, {self.sOnes}, {s1 if k else 0}")
            A(f"v_dot2_f32_bf16 {s2}, {self.XB[k]}, {self.XB[k]}, {s2 if k else 0}")
            if k == 0:
                self.stamp("x")
                if self.o["poison_at"] == "x":
                    self.poison2()
        self.allreduce(A, "v_add_f32", [s1, s2], 32)
        self.ln_stats(A, s1, s2, nm, rs)
        self.stamp("stat")
        A("s_mov_b64 exec, 1\ns_bitset1_b64 exec, 32")
        A(f"v_mul_f32 {rs}, 0x3d800000, {rs}")
        A(f"ds_write_b32 {ad}, {nm} offset:{L_ST}\nds_write_b32 {ad}, {rs} offset:{L_ST + 32}")
        A("s_mov_b64 exec, -1")
        A(f"v_mov_b32 {ad}, 0")
        V.put(self.XB)
        A.barrier()
        self.stamp("b1")
        NM, RS = V.get(8), V.get(8)
        XA = self.XA
        if not glob:
            for q in range(2):
                A(f"ds_read2st64_b32 {XA[2 * q:2 * q + 2]}, {self.vHw2} offset0:{8 * q} offset1:{8 * q + 4}")
        A(f"ds_read_b128 {NM[0:4]}, {ad} offset:{L_ST}")
        if not glob:
            for q in range(2, 4):
                A(f"ds_read2st64_b32 {XA[2 * q:2 * q + 2]}, {self.vHw2} offset0:{8 * q} offset1:{8 * q + 4}")
        A(f"ds_read_b128 {NM[4:8]}, {ad} offset:{L_ST + 16}")
        for k in range(2):
            A(f"ds_read_b128 {RS[4 * k:4 * k + 4]}, {ad} offset:{L_ST + 32 + 16 * k}")
        A(f"s_add_u32 {self.sE}, {self.sE}, 1\ns_and_b32 {self.sTag}, {self.sE}, {TAGMASK}")
        T = V.get(8)
        for e in range(2):
            G = V.get(4)
            for j in range(8):
                A(f"v_dot2_f32_bf16 {T[j]}, {XA[j]}, {self.sHi if e else self.sLo}, {NM[j]}")
            for j in range(8):
                self.rnd(A, T[j], T[j])
            for q in range(4):
                A(f"v_pk_mul_f32 {T[2 * q:2 * q + 2]}, {T[2 * q:2 * q + 2]}, {RS[2 * q:2 * q + 2]}")
            for j in range(8):
                self.rnd(A, T[j], T[j])
            for q in range(4):
                A(f"v_cvt_pk_f16_f32 {G[q]}, {T[2 * q]}, {T[2 * q + 1]}")
            for q in range(4):
                A(f"v_and_or_b32 {G[q]}, {G[q]}, {self.vMask}, {self.sTag}")
            if e == 0:
                self.stamp("norm")
                A.wait_tag("poison")
            A(f"global_store_dwordx4 {self.vS1o}, {G}, s[30:31] offset:{1024 * e} sc1", tag="s1st")
            self.G = getattr(self, "G", []) + [G]
        self.stamp("pub1")
        V.put(T, NM, RS, s1, s2, nm, rs, ad, self.vS1o)

    def s1_loads(self, A):
        A(f"global_load_dwordx4 {self.UG[0:4]}, {self.vS1i}, s[30:31] sc1")
        A(f"global_load_dwordx4 {self.UG[4:8]}, {self.vS1i2}, s[30:31] sc1")

    def maybe_s1(self, where):
        if self.o["s1_at"] == where:
            self.UG = self.V.get(8)
            if self.o["poison_at"] == "pub":
                A = self.A
                A(f"v_mov_b32 {self.UG[0]}, {self.sE}")
                A.wait_tag("poison")
                A(f"s_mov_b64 exec, 1\nglobal_store_dword {self.vFo}, {self.UG[0]}, s[30:31] sc1\ns_mov_b64 exec, -1")
                self.V.put(self.vFo)
            self.s1_loads(self.A)

    def kgen_steps(self):
        A, V = self.A, self.V
        P = self.PAR
        t0, t1, dt = V.get(), V.get(), V.get()
        self.vG16 = V.get()
        A(f"""
        s_and_b32 s3, {self.sCh}, 1
        s_xor_b32 s3, s3, 1
        s_lshl_b32 s3, s3, 4
        s_lshl_b32 {self.sDt}, {self.sDt}, s3
        s_and_b32 {self.sDt}, {self.sDt}, 0xffff0000
        v_mov_b32 {dt}, {LOG2E}
        v_mul_f32 {dt}, {self.sDt}, {dt}
        v_exp_f32 {dt}, {dt}
        s_cmp_eq_u32 {self.sH}, 0
        s_cselect_b32 s3, 16, 0
        """)
        self.rnd(A, dt, dt)
        A(f"""
        v_and_b32 {t0}, 0x7fff7fff, {P[2]}
        v_and_b32 {t1}, 0x7fff7fff, {P[3]}
        v_pk_max_u16 {t0}, {t0}, {t1}
        v_lshrrev_b32 {t1}, 16, {t0}
        v_and_b32 {t0}, 0xffff, {t0}
        v_max_u32 {t0}, {t0}, {t1}
        """)
        self.stamp("par")
        W = {p: V.get(2) for p in (1, 16, 256)}
        u0, u1 = V.get(), V.get()
        fill = [f"v_lshlrev_b32 {P[k]}, s3, {P[k]}" for k in range(4)]
        fill += [f"v_and_b32 {P[k]}, 0xffff0000, {P[k]}" for k in range(4)]
        fill += [f"v_mul_f32 {P[0]}, {LOG2E}, {P[0]}", f"v_exp_f32 {P[0]}, {P[0]}", f"v_mul_f32 {P[1]}, {P[1]}, {dt}",
                 f"v_cvt_pk_bf16_f32 {P[0]}, 0, {P[0]}", f"v_mul_f32 {P[1]}, {INV2PI}, {P[1]}", f"v_mul_f32 {P[0]}, {P[0]}, {dt}",
                 f"v_fract_f32 {u1}, {P[1]}", f"v_mul_f32 {P[0]}, {LOG2E | 0x80000000}, {P[0]}"]
        self.allreduce(A, "v_max_u32", [t0], 64, fill)
        A(f"v_exp_f32 {u0}, {P[0]}\nv_cos_f32 {W[1][0]}, {u1}\nv_sin_f32 {W[1][1]}, {u1}")
        A(f"""
        v_lshrrev_b32 {t0}, 7, {t0}
        v_mul_f32 {W[1][0]}, {W[1][0]}, {u0}
        v_mul_f32 {W[1][1]}, {W[1][1]}, {u0}
        v_max_u32 {t0}, 8, {t0}
        v_lshrrev_b32 {t1}, 23, {dt}
        v_add_u32 {t1}, {t1}, {t0}
        v_subrev_u32 {t1}, 127, {t1}
        v_max_i32 {t1}, 0, {t1}
        v_min_i32 {t1}, 254, {t1}
        v_lshlrev_b32 {self.vG16}, 23, {t1}
        v_sub_u32 {t0}, 259, {t0}
        v_and_b32 {dt}, 0x007fffff, {dt}
        v_lshl_or_b32 {dt}, {t0}, 23, {dt}
        """)
        L, M, Rr, T = V.get(2), V.get(2), V.get(2), V.get(2)
        for p, mul in ((16, 0x41800000), (256, 0x43800000)):
            w = W[p]
            A(f"v_mul_f32 {u0}, {mul}, {P[0]}\nv_mul_f32 {u1}, {mul}, {P[1]}")
            A(f"v_exp_f32 {u0}, {u0}\nv_fract_f32 {u1}, {u1}")
            A(f"v_cos_f32 {w[0]}, {u1}\nv_sin_f32 {w[1]}, {u1}")
            A(f"v_mul_f32 {L[p // 256]}, {P[2 + p // 256]}, {dt}")
            A(f"v_mul_f32 {w[0]}, {w[0]}, {u0}\nv_mul_f32 {w[1]}, {w[1]}, {u0}")
        V.put(u0, u1, t1, dt, P)
        self.stamp("ws")
        NB_ = self.o["recb"]
        pk = [V.get() for _ in range(2 * NB_)]
        cnt = [0]
        queue = []
        A(f"s_mov_b32 m0, {self.sStM}")

        def cmul(d, a, b):
            A(f"v_pk_mul_f32 {T}, {a}, {b} op_sel_hi:[0,1]")
            A(f"v_pk_fma_f32 {d}, {a}, {b}, {T} op_sel:[1,1,0] op_sel_hi:[1,0,1] neg_lo:[0,1,0]")

        if not self.o["addtid"]:
            vSt = V.get()
            A(f"v_lshl_add_u32 {vSt}, {self.vL}, 2, {self.sStM}")

        def flush_q():
            for row, r in queue:
                if self.o["addtid"]:
                    A(f"ds_write_addtid_b32 {r} offset:{32768 + row * ROWB}")
                else:
                    A(f"ds_write_b32 {vSt}, {r} offset:{32768 + row * ROWB}")
            queue.clear()

        def put(row, v, conj=False):
            r = pk[cnt[0] % (2 * NB_)]
            cnt[0] += 1
            A(f"v_cvt_pk_f16_f32 {r}, {v[0]}, {'-' if conj else ''}{v[1]}")
            queue.append((row, r))
            if len(queue) >= NB_:
                flush_q()

        Rf, S0, S1, FA = ([self.AC.get(4, 4) for _ in range(4)] for _ in range(4))
        D1, D2, D3 = V.get(4), V.get(4), V.get(4)

        def frags(regs, addr, row0):
            flush_q()
            for q in range(4):
                A(f"ds_read_b128 {regs[q]}, {addr} offset:{row0 * ROWB + 64 * q}")

        def product(D, a, b):
            for q in range(4):
                A(f"v_mfma_f32_16x16x32_f16 {D}, {a[q]}, {b[q]}, {D if q else 0}")

        A(f"v_mov_b32 {t0}, 0x3c00")
        queue.append((0, t0))
        yield
        put(1, W[16], conj=True)
        cmul(Rr, W[16], W[16])
        put(2, Rr, conj=True)
        for j in range(3, 16):
            yield
            cmul(Rr, Rr, W[16])
            put(j, Rr, conj=True)
        frags(Rf, self.vR, 0)
        self.stamp("recR")
        LE = {0: L}
        cur = L
        for al in range(17):
            yield
            if al:
                nxt = V.get(2) if al % 2 == 0 else M
                cmul(nxt, cur, W[1])
                cur = nxt
                if al % 2 == 0:
                    LE[al] = cur
            if al < 16:
                put(16 + al, cur)
        frags(S0, self.vS0, 16)
        self.maybe_s1("rec1")
        for al in range(0, 17, 2):
            yield
            cmul(LE[al], LE[al], W[256])
            put(32 + al // 2, LE[al])
        frags(S1, self.vS1r, 32)
        product(D1, S0, Rf)
        for a in range(2):
            for al in (4, 8, 12, 16):
                yield
                cmul(LE[al], LE[al], W[256])
                put(41 + 4 * a + al // 4 - 1, LE[al])
        K3 = V.get(4)
        flush_q()
        A(f"ds_write_b128 {self.vK1}, {D1} offset:1024")
        product(D2, S1, Rf)
        for a in range(4):
            for al in (8, 16):
                yield
                cmul(LE[al], LE[al], W[256])
                put(49 + 2 * a + al // 8 - 1, LE[al])
        frags(FA, self.vR, 41)
        self.stamp("rec")
        self.maybe_s1("rec2")
        A(f"ds_write_b128 {self.vK1}, {D2}")
        A(f"v_cmp_gt_u32 vcc, 8, {self.vI}")
        product(D3, Rf, FA)
        self.maybe_s1("mfma")
        self.stamp("kmf0")
        A(f"v_cndmask_b32 {T[1]}, {D2[0]}, 0, vcc")
        for k in range(4):
            A(f"v_mov_b32 {K3[k]}, {D3[3 - k]}")
        A(f"v_cndmask_b32 {T[0]}, {D2[0]}, {D3[3]}, vcc")
        A(f"ds_write_b128 {self.vK3}, {K3}")
        A("s_mov_b32 exec_lo, 0\ns_mov_b32 exec_hi, 0x80800000")
        A(f"ds_write2_b32 {self.vKs}, {T[0]}, {T[0]} offset0:0 offset1:1\nds_write_b32 {self.vKs}, {T[1]} offset:8")
        A("s_mov_b64 exec, -1")
        A.barrier()
        V.put(M, Rr, T, *pk, *W.values(), t0, D1, D2, D3, K3, *LE.values(),
              self.vR, self.vS0, self.vS1r, self.vK1, self.vK3, self.vKs)
        self.AC.put(*Rf, *S0, *S1, *FA)

    def row_params(self):
        A, V = self.A, self.V
        t1, t2 = V.get(), V.get()
        self.vDk = V.get()
        A(f"""
        v_and_b32 {t1}, 0x1ff, {self.vHr}
        v_lshlrev_b32 {t2}, 2, v0
        global_load_dwordx4 {self.WR[0:4]}, {t1}, s[20:21]
        global_load_dwordx4 {self.WR[4:8]}, {t1}, s[20:21] offset:512
        global_load_dword {self.vDk}, {t2}, s[16:17]
        """)
        V.put(t1, t2)

    def kgen(self):
        A, V = self.A, self.V
        if self.o["poison_at"] == "pub":
            self.poison2()
        for item in self.p3_lines:
            A("\n".join(item) if isinstance(item, tuple) else item, tag="poison3" if isinstance(item, tuple) else None)
        self.row_params()
        for _ in self.ksteps:
            pass
        self.stamp("kmf")
        self.maybe_s1("shift")
        D, E = V.get(12), V.get(12)
        C = [V.get(4) for _ in range(4)]
        for k in range(3):
            A(f"ds_read_b128 {D[4 * k:4 * k + 4]}, {self.vShiftR} offset:{L_P + 16 * k}")
            A(f"ds_read_b128 {E[4 * k:4 * k + 4]}, {self.vShiftR} offset:{L_P + PHALF + 16 * k}")
        for k in range(6):
            A(f"v_pk_add_f32 {D[2 * k:2 * k + 2]}, {D[2 * k:2 * k + 2]}, {E[2 * k:2 * k + 2]}")
        for c in range(4):
            for k in range(4):
                A(f"v_cvt_pk_f16_f32 {C[c][k]}, {D[c + 2 * k]}, {D[c + 2 * k + 1]}")
            if c % 2:
                for cc in (c - 1, c):
                    A(f"ds_write_b128 {self.vShift}, {C[cc]} offset:{L_K + cc * KCOPY}")
        if not self.o["frag_in"]:
            A.barrier()
        self.shift_regs = (D, E, *C, self.vShift, self.vShiftR)
        self.stamp("shift")
        self.maybe_s1("frag")
        AC = self.AC
        self.KN = [AC.get(4, 4) for _ in range(17)]
        self.KX = AC.get(4, 4)
        self.B2 = {(k, d): AC.get(4, 4) for k in range(2) for d in (2, 3, 4)}
        self.B3 = {d: AC.get(4, 4) for d in (4, 5, 6, 7)}
        rd = {}
        for q in range(17):
            rd[str(self.KN[q])] = [f"ds_read_b64 {self.KN[q][2 * hf:2 * hf + 2]}, {self.vN} offset:{64 * (16 - q) + 8 * hf}" for hf in range(2)]
        rd[str(self.KX)] = [f"ds_read_b64 {self.KX[2 * hf:2 * hf + 2]}, {self.vN} offset:{2 * NX + 8 * hf}" for hf in range(2)]
        for (k, d), r in self.B2.items():
            rd[str(r)] = [f"ds_read_b64 {r[2 * hf:2 * hf + 2]}, {self.vF} offset:{2 * (V2[2 * k + hf] + 32 - 16 * (d - 2))}" for hf in range(2)]
        for d, r in self.B3.items():
            rd[str(r)] = [f"ds_read_b64 {r[2 * hf:2 * hf + 2]}, {self.vF} offset:{2 * (V3[hf] + 48 - 16 * (d - 4))}" for hf in range(2)]
        self.frag_reads = {}
        if self.o["frag_in"]:
            self.frag_reads = rd
        else:
            for v in rd.values():
                A("\n".join(v))
        self.maybe_s1("end")
        self.stamp("frag")

    def s1_consume(self, A, sfx):
        V = self.V
        UG = self.UG
        t0, t1 = V.get(), V.get()

        def check(C):
            for k in range(8):
                C(f"v_xor_b32 {UG[k]}, {self.sTag}, {UG[k]}")
            C(f"v_or3_b32 {t0}, {UG[0]}, {UG[1]}, {UG[2]}\nv_or3_b32 {t1}, {UG[3]}, {UG[4]}, {UG[5]}")
            C(f"v_or3_b32 {t0}, {t0}, {UG[6]}, {UG[7]}\nv_or_b32 {t0}, {t0}, {t1}")
            C(f"v_and_b32 {t0}, {TAGMASK}, {t0}\nv_cmp_ne_u32 vcc, 0, {t0}")
        self.poll(A, "s1" + sfx, self.s1_loads, check)
        self.stamp("s1w", A)
        A(f"ds_write_b128 {self.vUw}, {UG[0:4]} offset:{L_U + 512}")
        A(f"ds_write_b128 {self.vUw}, {UG[4:8]} offset:{L_U + 512 + 2048}")
        self.stamp("s1", A)
        A.barrier()
        self.stamp("b5", A)
        V.put(t0, t1, *self.shift_regs)

    def conv(self, A, tiles, dma):
        V, AC = self.V, self.AC
        acc = {j: V.get(4) for j in tiles}
        NF, NG, NW, NP = self.o["nf"], self.o["ng"], 6, 6
        PE, PD, NPRE = self.o["pe"], self.o["pd"], self.o["npre"]
        Fb = [AC.get(4, 4) for _ in range(NF)]
        Gb = [AC.get(4, 4) for _ in range(NG)]
        Wb = [V.get(4) for _ in range(NW)]
        Pb = [V.get(4) for _ in range(NP)]
        EY, EZ = V.get(4), V.get(2)
        qmax = {0: 7, 1: 15}
        b2 = sorted({j - d for j in tiles for d in (2, 3, 4) if j - d >= 0})
        b3 = sorted({j - d for j in tiles for d in (4, 5, 6, 7) if j - d >= 0})
        nlo = min(8 * j - qmax.get(j, 16) for j in tiles)
        nhi = 8 * max(tiles)
        near = []
        for fi, n in enumerate(range(nlo, nhi + 1)):
            for j in tiles:
                q = 8 * j - n
                if 0 <= q <= qmax.get(j, 16):
                    near.append((j, self.KN[q], fi, q == 0))
        far = []
        gfr, pcount = [], 0
        for b in sorted(set(b2) | set(b3)):
            ga, gb = len(gfr), len(gfr) + 1
            gfr += [256 * b - 16, 256 * b - 24]
            mains = []
            if b in b2:
                pa, pb = pcount, pcount + 1
                pcount += 2
                far += [("band", ga, (12, 1), pa, 0), ("band", ga, (8, 2), pa, 1), ("band", gb, (12, 1), pb, 0), ("band", gb, (8, 2), pb, 1)]
                mains += [("main", b + d, pa, self.B2[(0, d)]) for d in (2, 3, 4) if b + d in tiles]
                mains += [("main", b + d, pb, self.B2[(1, d)]) for d in (2, 3, 4) if b + d in tiles]
            if b in b3:
                pc = pcount
                pcount += 1
                far += [("band", ga, (8, 3), pc, 0), ("band", gb, (8, 4), pc, 1)]
                mains += [("main", b + d, pc, self.B3[d]) for d in (4, 5, 6, 7) if b + d in tiles]
            if b + 4 in tiles:
                far.append(("x", b + 4, ga))
            far += mains
        LAT = 5
        mf, fill = [], []
        started, done_at = set(), {}
        fuse, guse, plast, pready = {}, {}, {}, {}
        wcount = 0
        ni = 0
        farleft = list(far)
        span = self.o["far_span"][0 if 0 in tiles else 1]
        credit = 0.0

        def acc_mf(j, a, b):
            mf.append(f"v_mfma_f32_16x16x32_f16 {acc[j]}, {a}, {b}, {acc[j] if j in started else 0}")
            started.add(j)

        def far_ok(it):
            t = len(mf)
            if it[0] == "main":
                return pready.get(it[2], 10 ** 6) <= t
            if it[0] == "band":
                prev = it[3] - NP
                return prev < 0 or not any(o[0] == "main" and o[2] == prev for o in farleft)
            return True

        while ni < len(near) or farleft:
            t = len(mf)
            want_far = farleft and (credit >= 1.0 or ni >= len(near))
            if ni < len(near) and near[ni][3] and any(o[0] in ("main", "x") and o[1] == near[ni][0] for o in farleft):
                want_far = True
            pick = None
            if want_far:
                for it in farleft[:8]:
                    if far_ok(it):
                        if it[0] == "band" and any(o[0] == "band" for o in farleft[:farleft.index(it)]):
                            continue
                        pick = it
                        break
            if pick is None and ni < len(near) and not (near[ni][3] and any(o[0] in ("main", "x") and o[1] == near[ni][0] for o in farleft)):
                j, a, fi, last = near[ni]
                ni += 1
                acc_mf(j, a, Fb[fi % NF])
                fuse.setdefault(fi, [t, t])[1] = t
                if last:
                    done_at[j] = t
                credit += len(far) / span
                continue
            assert pick is not None, "conv schedule is stuck"
            farleft.remove(pick)
            credit -= 1.0
            if pick[0] == "band":
                _, g, key, p, hf = pick
                w = Wb[wcount % NW]
                wcount += 1
                mf.append(f"v_mfma_f32_16x16x32_f16 {w}, {Gb[g % NG]}, {self.BAND[key]}, 0")
                guse.setdefault(g, [t, t])[1] = t
                for k in range(2):
                    fill.append([t + 3, t + LAT - 1, f"v_cvt_pk_f16_f32 {Pb[p % NP][2 * hf + k]}, {w[2 * k]}, {w[2 * k + 1]}", None])
                if hf == 1:
                    pready[p] = t + LAT
            elif pick[0] == "x":
                acc_mf(pick[1], self.KX, Gb[pick[2] % NG])
                guse.setdefault(pick[2], [t, t])[1] = t
            else:
                acc_mf(pick[1], Pb[pick[2] % NP], pick[3])
        nm = len(mf)
        pre = []
        reads = []
        for fi in sorted(fuse):
            txt = f"ds_read_b128 {Fb[fi % NF]}, {self.vUf} offset:{512 + 2 * (32 * (nlo + fi) - 16)}"
            reads.append((fuse[fi][0], fuse[fi - NF][1] if fi >= NF else -1, txt))
        for g in sorted(guse):
            txt = f"ds_read_b128 {Gb[g % NG]}, {self.vUf} offset:{512 + 2 * gfr[g]}"
            reads.append((guse[g][0], guse[g - NG][1] if g >= NG else -1, txt))
        seen = set()
        for t, txt in enumerate(mf):
            for name, two in self.frag_reads.items():
                if name not in seen and f" {name}," in txt:
                    seen.add(name)
                    reads += [(t, -1, two[0]), (t, -1, two[1])]
        reads.sort(key=lambda r: r[0])
        for first, free, txt in reads:
            if free < 0 and first <= NPRE:
                pre.append(txt)
            else:
                assert free < first
                fill.append([max(free, first - PE, 0), max(free, first - PD, 0), txt, None])
        order_t = sorted(tiles, key=lambda j: done_at[j])
        for k, j in enumerate(order_t):
            t = done_at[j]
            nxt = done_at[order_t[k + 1]] if k + 1 < len(order_t) else nm + 100
            seq2 = [f"v_mul_f32 {EY[r]}, {acc[j][r]}, {self.vG16}" for r in range(4)]
            seq2 += [f"v_cvt_pk_bf16_f32 {EZ[r]}, {EY[2 * r]}, {EY[2 * r + 1]}" for r in range(2)]
            seq2.append(f"ds_write_b64 {self.vZw}, {EZ} offset:{L_Z + 1024 * j}")
            for txt in seq2:
                fill.append([t + 3, min(t + 11, nxt + 2), txt, f"e2_{j}"])
        for txt in pre:
            A(txt)
        for i, f in enumerate(fill):
            f.append(i)
        left = list(fill)
        bg = list(self.bg)
        A.prewait([mf[0]])
        for t in range(nm):
            A(mf[t])
            chosen = []
            for f in sorted([f for f in left if f[0] <= t], key=lambda f: (f[1], f[4])):
                if len(chosen) >= 2 and f[1] > t:
                    break
                if f[3] and any(g[3] == f[3] and g[4] < f[4] and g not in chosen for g in left):
                    continue
                mem = isinstance(f[2], tuple) or f[2].startswith("ds_")
                if mem and f[1] > t and any(g[3] == f[3] and f[3] for g in chosen):
                    continue
                chosen.append(f)
            memf = [f for f in chosen if (isinstance(f[2], tuple) or f[2].startswith("ds_")) and not any(g[3] == f[3] and f[3] and g[4] < f[4] for g in chosen)]
            rest = [f for f in chosen if f not in memf]
            A.prewait([f[2] for f in chosen if not isinstance(f[2], tuple)] + ([mf[t + 1]] if t + 1 < nm else []))
            ns, nv = 0, len(chosen)
            while bg and isinstance(bg[0], str) and bg[0].startswith("s_") and ns < 2 and t >= self.o["bg_from"]:
                A(bg.pop(0))
                ns += 1
            if bg and not memf and nv < 2 and (isinstance(bg[0], tuple) or bg[0].startswith("global_")):
                item = bg.pop(0)
                A("\n".join(item) if isinstance(item, tuple) else item, tag="poison3" if isinstance(item, tuple) else None)
                nv += 1
            for f in memf + rest:
                A(f[2])
                left.remove(f)
            while bg and nv < 2 and isinstance(bg[0], str) and bg[0].startswith("v_") and t >= self.o["bg_from"]:
                A(bg.pop(0))
                nv += 1
        self.bg_left = max(getattr(self, "bg_left", 0), len(bg))
        tail_bg = bg
        for item in tail_bg:
            A("\n".join(item) if isinstance(item, tuple) else item, tag="poison3" if isinstance(item, tuple) else None)
        for f in sorted(left, key=lambda f: (f[1], f[4])):
            A(f[2])
        self.nmfma = getattr(self, "nmfma", []) + [nm]
        V.put(*acc.values(), *Wb, *Pb, EY, EZ)
        AC.put(*Fb, *Gb)

    def dma_plan(self, A, role):
        V = self.V
        vL, sW = self.vL, self.sW
        t0, t1 = V.get(), V.get()
        self.vWa = V.get()
        if role == 0:
            A(f"""
            s_lshl_b32 {self.sWb}, {sW}, 13
            s_add_u32 {self.sWb}, {self.sWb}, {L_STAGE}
            s_lshl_b32 s3, {sW}, 7
            v_lshrrev_b32 {t0}, 2, {vL}
            v_add_u32 {t0}, s3, {t0}
            v_mul_u32_u24 {t0}, 3584, {t0}
            v_and_b32 {t1}, 3, {vL}
            v_lshl_add_u32 {t0}, {t1}, 4, {t0}
            s_lshl_b32 s3, {self.sBlk}, 6
            v_add_u32 {self.vWa}, s3, {t0}
            s_cmp_eq_u32 {self.sUp}, 0
            s_cselect_b32 s4, s22, s24
            s_cselect_b32 s5, s23, s25
            """)
            n, step = 8, 16 * 3584
        else:
            A(f"""
            s_mul_i32 {self.sWb}, {sW}, 14336
            s_add_u32 {self.sWb}, {self.sWb}, {L_STAGE}
            s_mul_i32 s3, {sW}, 448
            v_lshrrev_b32 {t0}, 1, {vL}
            v_add_u32 {t0}, s3, {t0}
            v_lshlrev_b32 {t0}, 10, {t0}
            v_and_b32 {t1}, 1, {vL}
            v_lshl_add_u32 {t0}, {t1}, 4, {t0}
            s_lshl_b32 s3, {self.sBlk}, 5
            v_add_u32 {self.vWa}, s3, {t0}
            s_mov_b64 s[4:5], s[26:27]
            """)
            n, step = 14, 0x8000
        V.put(t0, t1)
        return [(f"s_add_u32 m0, {self.sWb}, {m * 1024}" + (f"\ns_add_u32 s4, s4, {step}\ns_addc_u32 s5, s5, 0" if m else ""),
                 f"global_load_lds_dwordx4 {self.vWa}, s[4:5]") for m in range(n)]

    def conv_all(self):
        A = self.A
        nb = self.nwarm if self.o["warm_at"] == "pre" else 0
        for ln in self.bg[:nb]:
            A(ln)
        self.bg = self.bg[nb:]
        self.s1_consume(A, "")
        first, second = ([5, 6, 7], [0, 1, 2, 3, 4]) if self.o["b_first"] else ([0, 1, 2, 3, 4], [5, 6, 7])
        A(f"s_cmp_eq_u32 {self.sH}, {int(self.o['b_first'])}\ns_cbranch_scc0 L_conv_b")
        B = A.fork()
        self.conv(A, first, [])
        A.wait_tag("poison3")
        A.wait(lg=0)
        A.flush()
        A("s_branch L_conv_done")
        B.label("L_conv_b")
        self.conv(B, second, [])
        B.wait_tag("poison3")
        B.wait(lg=0)
        assert [t for _, t in A.vm] == [t for _, t in B.vm]
        B.flush()
        A.lines += B.lines
        A.count += B.count
        A.nops += B.nops
        A.label("L_conv_done")
        self.V.put(*self.bgtmp)
        self.V.put(*self.BAND.values(), self.vUf, self.vZw, self.vG16, self.UG, self.vUw,
                   self.vS1i, self.vS1i2, self.vN, self.vF)
        self.AC.put(*self.KN, self.KX, *self.B2.values(), *self.B3.values())
        self.stamp("conv", A)
        A("s_barrier")
        self.stamp("b6", A)
        self.ZT = ZT = self.V.get(8)
        A(f"ds_read_b128 {ZT[0:4]}, {self.vZr} offset:{L_Z}\nds_read_b128 {ZT[4:8]}, {self.vZr} offset:{L_Z + 4096}")
        A(f"global_store_dwordx4 {self.vS2o}, {ZT[0:4]}, s[30:31] sc1", tag="s2st")
        A(f"global_store_dwordx4 {self.vS2o2}, {ZT[4:8]}, s[30:31] sc1", tag="s2st")
        if self.o["poison_at"] == "pub":
            self.vFl = self.V.get()
            A(f"global_load_dword {self.vFl}, {self.vFi}, s[30:31] sc1")
        self.stamp("st2", A)
        self.V.put(self.vZr, self.vS2o, self.vS2o2)

    def poison_check(self, regs, t0):
        def chk(C):
            r = list(regs)
            if len(r) == 1:
                C(f"v_cmp_eq_u32 vcc, -1, {r[0]}")
                return
            C(f"v_max3_u32 {t0}, {r[0]}, {r[1]}, {r[2] if len(r) > 2 else r[1]}")
            r = r[3:]
            while r:
                C(f"v_max3_u32 {t0}, {t0}, {r[0]}, {r[1] if len(r) > 1 else r[0]}")
                r = r[2:]
            C(f"v_cmp_eq_u32 vcc, -1, {t0}")
        return chk

    def phase_c(self):
        A, V = self.A, self.V
        vL, vI, vG, sL, sW = self.vL, self.vI, self.vG, self.sL, self.sW
        get = V.get
        self.t = t0, t1, t2 = get(), get(), get()
        vSW, vKw, vS3o, vRo = get(), get(), get(), get()
        self.vS3i = get()
        vHr = self.vHr
        XL, XH, UD = get(8), get(8), get(16)
        for j in range(8):
            A(f"v_lshlrev_b32 {XL[j]}, 16, {self.XA[j]}")
            A(f"v_and_b32 {XH[j]}, 0xffff0000, {self.XA[j]}")
        A(f"v_lshlrev_b32 {t0}, 16, {self.vDk}\nv_and_b32 {t1}, 0xffff0000, {self.vDk}")
        A(f"v_mul_f32 {t0}, 0x41800000, {t0}\nv_mul_f32 {t1}, 0x41800000, {t1}")
        for e in range(2):
            G = self.G[e]
            for q in range(4):
                A(f"v_and_b32 {G[q]}, {G[q]}, {self.vMask}")
            for j in range(8):
                A(f"v_fma_mix_f32 {UD[8 * e + j]}, {G[j // 2]}, {(t0, t1)[e]}, 0 op_sel:[{j % 2},0,0] op_sel_hi:[1,0,0]")
            for j in range(8):
                self.rnd(A, UD[8 * e + j], UD[8 * e + j])
        V.put(*self.G, self.vMask, self.vDk)
        for k in range(8):
            A(f"v_dot2_f32_bf16 {vSW}, {self.WR[k]}, {self.sOnes}, {vSW if k else 0}")
        self.allreduce(A, "v_add_f32", [vSW], 32)
        A(f"""
        v_and_b32 {t0}, 31, v0
        v_lshlrev_b32 {t0}, 4, {t0}
        v_lshlrev_b32 {vKw}, 2, {self.vTau}
        s_lshl_b32 s3, {sW}, 13
        s_lshl_b32 s16, {sL}, 4
        s_add_u32 s3, s3, s16
        s_add_u32 s3, s3, {WS_S3}
        v_lshl_add_u32 {vS3o}, {vL}, 12, s3
        s_lshr_b32 s3, {sL}, 5
        s_lshl_b32 s3, s3, 12
        s_add_u32 s16, s3, {WS_S3}
        v_lshl_add_u32 {self.vS3i}, v0, 4, s16
        s_lshl_b32 s16, {sL}, 11
        s_add_u32 s16, s16, {WS_ROWS}
        v_add_u32 {vRo}, s16, {t0}
        s_lshl_b32 s3, {sL}, 3
        s_sub_u32 s3, 2047, s3
        v_sub_u32 {t2}, s3, {self.vTau}
        v_mov_b32 {t1}, 0
        """)
        if self.o["dma_ack2"] and self.o["dma_at"] != "none":
            A(f"s_cmp_eq_u32 {self.sRole}, 2\ns_cbranch_scc1 L_dma_done")
            A(f"s_cmp_eq_u32 {self.sRole}, 1\ns_cbranch_scc1 L_dma_r1")
            keep = list(A.vm)
            for role in (0, 1):
                if role:
                    A.label("L_dma_r1")
                plan = self.dma_plan(A, role)
                n = len(plan) if role == 0 else self.o["dma_ack2"]
                for a, b in plan[:n]:
                    A(a)
                    A(b, tag="dma")
                if role == 0:
                    A("s_branch L_dma_done")
                    V.put(self.vWa)
                else:
                    self.plan1 = plan[n:]
            A.label("L_dma_done")
        if self.o["dma0_ack2"] and self.o["dma_at"] != "none":
            A(f"s_cmp_eq_u32 {self.sRole}, 0\ns_cbranch_scc0 L_dma0_done")
            for a, b in self.dma_plan(A, 0):
                A(a)
                A(b, tag="dma")
            V.put(self.vWa)
            A.label("L_dma0_done")
        self.stamp("dma", A)
        A.wait(vm=0)
        if self.o["poison_at"] == "pub":
            self.poll(A, "flg", lambda C: C(f"global_load_dword {self.vFl}, {self.vFi}, s[30:31] sc1"),
                      lambda C: C(f"v_cmp_ne_u32 vcc, {self.sE}, {self.vFl}"))
            V.put(self.vFl, self.vFi)
        self.stamp("ack2", A)
        ZT = self.ZT

        def s2_loads(C):
            C(f"global_load_dwordx4 {ZT[0:4]}, {self.vS2i}, s[30:31] sc1")
            C(f"global_load_dwordx4 {ZT[4:8]}, {self.vS2i2}, s[30:31] sc1")
        s2_loads(A)
        self.poll(A, "s2", s2_loads, self.poison_check([ZT[k] for k in range(8)], t0))
        self.stamp("s2", A)
        HP = get(8)
        self.T = T = get(8)
        for grp in range(2):
            for jj in range(4):
                j = 4 * grp + jj
                sel = self.sHi if j % 2 else self.sLo
                A(f"v_dot2_f32_bf16 {T[jj]}, {ZT[j // 2]}, {sel}, {UD[j]}")
                A(f"v_dot2_f32_bf16 {T[4 + jj]}, {ZT[4 + j // 2]}, {sel}, {UD[8 + j]}")
            for k in range(8):
                self.rnd(A, T[k], T[k])
            for q in range(2):
                j = 4 * grp + 2 * q
                A(f"v_pk_add_f32 {T[2 * q:2 * q + 2]}, {T[2 * q:2 * q + 2]}, {XL[j:j + 2]}")
                A(f"v_pk_add_f32 {T[4 + 2 * q:6 + 2 * q]}, {T[4 + 2 * q:6 + 2 * q]}, {XH[j:j + 2]}")
            for jj in range(4):
                A(f"v_cvt_pk_bf16_f32 {HP[4 * grp + jj]}, {T[jj]}, {T[4 + jj]}")
            for q in range(2):
                j = 4 * grp + 2 * q
                A(f"ds_write2st64_b32 {self.vHw2}, {HP[j]}, {HP[j + 1]} offset0:{4 * j} offset1:{4 * j + 4}")
        self.stamp("hw", A)
        A.barrier()
        self.stamp("b7", A)
        V.put(XL, XH, UD, HP, ZT, self.vS2i, self.vS2i2, self.XA)
        HB = get(8)
        A(f"ds_read_b128 {HB[0:4]}, {vHr} offset:{L_H}\nds_read_b128 {HB[4:8]}, {vHr} offset:{L_H + 512}")
        s1, s2, s3, NM, RS = get(), get(), get(), get(2), get(2)
        self.key = key = get()
        for k in range(8):
            A(f"v_dot2_f32_bf16 {s1}, {HB[k]}, {self.sOnes}, {s1 if k else 0}")
            A(f"v_dot2_f32_bf16 {s2}, {HB[k]}, {HB[k]}, {s2 if k else 0}")
            A(f"v_dot2_f32_bf16 {s3}, {HB[k]}, {self.WR[k]}, {s3 if k else 0}")
        self.allreduce(A, "v_add_f32", [s1, s2, s3], 32)
        self.ln_stats(A, s1, s2, NM[0], RS[0])
        A(f"v_fma_f32 {s3}, {NM[0]}, {vSW}, {s3}\nv_mul_f32 {s3}, {s3}, {RS[0]}")
        self.rnd(A, s3, s3)
        A(f"""
        v_ashrrev_i32 {t0}, 31, {s3}
        v_or_b32 {t0}, 0x80000000, {t0}
        v_xor_b32 {t0}, {s3}, {t0}
        v_and_b32 {t0}, 0xffff0000, {t0}
        v_or_b32 {key}, {t0}, {t2}
        s_mov_b64 exec, 1
        s_bitset1_b64 exec, 32
        ds_write_b32 {vKw}, {key} offset:{L_KEY}
        s_mov_b64 exec, -1
        """)
        self.stamp("key", A)
        H32 = get(16)
        for k in range(8):
            A(f"v_lshlrev_b32 {H32[2 * k]}, 16, {HB[k]}\nv_and_b32 {H32[2 * k + 1]}, 0xffff0000, {HB[k]}")
        A.barrier()
        self.kmax = kmax = get()
        A(f"ds_read_b128 {T[0:4]}, {t1} offset:{L_KEY}\nds_read_b128 {T[4:8]}, {t1} offset:{L_KEY + 16}")
        HN = get(8)
        self.D = D = get(32)
        A(f"v_mov_b32 {NM[1]}, {NM[0]}\nv_mov_b32 {RS[1]}, {RS[0]}")
        for k in range(8):
            A(f"v_pk_add_f32 {D[2 * k:2 * k + 2]}, {H32[2 * k:2 * k + 2]}, {NM}")
        A(f"v_max3_u32 {kmax}, {T[0]}, {T[1]}, {T[2]}\nv_max3_u32 {t0}, {T[3]}, {T[4]}, {T[5]}")
        A(f"v_max3_u32 {kmax}, {kmax}, {T[6]}, {T[7]}\nv_max_u32 {kmax}, {kmax}, {t0}")
        A("s_mov_b64 exec, 3")
        A(f"global_store_dword {vS3o}, {kmax}, s[30:31] sc1", tag="s3st")
        A("s_mov_b64 exec, -1")
        self.stamp("pub3", A)
        sC = self.sC
        A(f"v_cmp_eq_u32 {sC}, {key}, {kmax}")
        for k in range(16):
            self.rnd(A, D[k], D[k])
        for k in range(8):
            A(f"v_pk_mul_f32 {D[2 * k:2 * k + 2]}, {D[2 * k:2 * k + 2]}, {RS}")
        for k in range(8):
            A(f"v_cvt_pk_bf16_f32 {HN[k]}, {D[2 * k]}, {D[2 * k + 1]}")
        A(f"s_mov_b64 exec, {sC}")
        A(f"global_store_dwordx4 {vRo}, {HN[0:4]}, s[30:31] sc1", tag="rowst")
        A(f"global_store_dwordx4 {vRo}, {HN[4:8]}, s[30:31] offset:512 sc1", tag="rowst")
        A(f"global_store_dwordx4 {vRo}, {HB[0:4]}, s[30:31] offset:1024 sc1", tag="rowst")
        A(f"global_store_dwordx4 {vRo}, {HB[4:8]}, s[30:31] offset:1536 sc1", tag="rowst")
        A("s_mov_b64 exec, -1")
        self.stamp("hn", A)
        self.O = O = get(8)
        for k in range(8):
            A(f"v_dot2_f32_bf16 {D[2 * k]}, {HN[k]}, {self.sLo}, {H32[2 * k]}")
            A(f"v_dot2_f32_bf16 {D[2 * k + 1]}, {HN[k]}, {self.sHi}, {H32[2 * k + 1]}")
        for k in range(8):
            A(f"v_cvt_pk_bf16_f32 {O[k]}, {D[2 * k]}, {D[2 * k + 1]}")
        self.stamp("outc", A)
        V.put(H32, s1, s2, s3, NM, RS, vSW, vKw, vS3o, vRo, self.WR)

    def out_stores(self, C):
        pol = self.o["out_pol"]
        C(f"global_store_dwordx4 {self.vRow}, {self.O[0:4]}, s[28:29] {pol}", tag="out")
        C(f"global_store_dwordx4 {self.vRow}, {self.O[4:8]}, s[28:29] offset:512 {pol}", tag="out")

    def resolve(self, A, sfx, between=None):
        t0, t1, t2 = self.t
        T, kin = self.T, self.kin

        def s3_loads(C):
            C(f"global_load_dword {kin}, {self.vS3i}, s[30:31] sc1")
        s3_loads(A)
        if between:
            between()
        A(f"v_lshrrev_b32 {t1}, 4, v0\nv_and_b32 {t1}, 12, {t1}\nv_mov_b32 {t2}, 0")
        self.poll(A, "s3" + sfx, s3_loads, self.poison_check([kin], t0))
        self.stamp("s3p", A)
        self.allreduce(A, "v_max_u32", [kin], 64)
        self.stamp("s3w", A)
        A(f"s_mov_b64 exec, 1\nds_write_b32 {t1}, {kin} offset:{L_KEY2}\ns_mov_b64 exec, -1")
        A.barrier()
        A(f"ds_read_b128 {T[0:4]}, {t2} offset:{L_KEY2}")
        A(f"v_max3_u32 {kin}, {T[0]}, {T[1]}, {T[2]}\nv_max_u32 {kin}, {kin}, {T[3]}")
        A(f"v_readfirstlane_b32 {self.sK}, {kin}")
        A(f"s_and_b32 {self.sT}, {self.sK}, 0x7ff\ns_sub_u32 {self.sT}, 2047, {self.sT}")
        self.stamp("s3", A)
        A(f"s_lshr_b32 s3, {self.sT}, 3\ns_lshl_b32 s3, s3, 11\ns_add_u32 s3, s3, {WS_ROWS}")

    def finish(self, A, sfx):
        A.flush()
        A.label(f"L_fin_{sfx}")
        if self.o["stamps"]:
            A.wait(vm=0)
            self.stamp("end", A)
            if self.o["clk"]:
                A("s_memtime s[96:97]")
                A.wait(lg=0)
                A("s_sub_u32 s100, s96, s100\ns_mov_b32 s101, 0")
            A("s_waitcnt vmcnt(0) lgkmcnt(0)")
            self.dump_stamps(A)
        A("s_endpgm")

    def tail0(self, A):
        V = self.V
        get = V.get
        vL, vI, vG, sL, sW, sC = self.vL, self.vI, self.vG, self.sL, self.sW, self.sC
        t0, t1, t2 = self.t
        T, D = self.T, self.D
        vTr, vRed, vXs, vPub, vRd = get(), get(), get(), get(), get()
        WT = [self.AC.get(4, 4) for _ in range(8)]
        plan = [] if self.o["dma_ack2"] or self.o["dma0_ack2"] else self.dma_plan(A, 0)
        if self.o["dma_at"] == "none":
            plan = []

        def dma():
            for a, b in plan:
                A(a)
                A(b, tag="dma")
        if not self.o["r0_late"]:
            dma()
        A(f"""
        v_and_b32 {t0}, 3, {vI}
        v_lshlrev_b32 {t0}, 3, {t0}
        v_lshrrev_b32 {t1}, 2, {vI}
        v_lshl_add_u32 {t1}, {vG}, 3, {t1}
        v_lshl_add_u32 {t0}, {t1}, 6, {t0}
        v_add_u32 {vTr}, {self.sWb}, {t0}
        """)

        def tr_reads():
            A.wait_tag("dma")
            for ct in range(2):
                for m in range(4):
                    for e2 in range(2):
                        A(f"ds_read_b64_tr_b16 {WT[4 * ct + m][2 * e2:2 * e2 + 2]}, {vTr} offset:{(32 * m + 4 * e2) * 64 + 32 * ct}")
        A(f"""
        s_lshl_b32 s3, {sW}, 2
        v_lshl_add_u32 {vRed}, {vI}, 4, s3
        v_and_b32 {t0}, 3, {vI}
        v_lshlrev_b32 {t0}, 6, {t0}
        v_lshl_add_u32 {t0}, {vG}, 4, {t0}
        s_lshl_b32 s3, {sW}, 8
        v_add_u32 {vXs}, s3, {t0}
        v_and_b32 {t0}, 31, {vL}
        v_lshlrev_b32 {vRd}, 4, {t0}
        v_lshrrev_b32 {t1}, 5, {vL}
        v_lshlrev_b32 {t1}, 13, {t1}
        v_lshl_add_u32 {t1}, {t0}, 1, {t1}
        s_lshl_b32 s3, {sW}, 14
        s_lshl_b32 s16, {self.sUp}, 12
        s_add_u32 s3, s3, s16
        s_lshl_b32 s16, {self.sBlk}, 6
        s_add_u32 s3, s3, s16
        s_add_u32 s3, s3, {WS_S4}
        v_add_u32 {vPub}, s3, {t1}
        """)
        A.wait_tag("s3st")
        self.stamp("ack3", A)

        late_out = self.o["r0_late"] == 2

        def between():
            if self.o["r0_late"]:
                dma()
            if not late_out:
                A(f"s_andn2_b64 exec, -1, {sC}")
                self.out_stores(A)
                A("s_mov_b64 exec, -1")
            if not self.o["r0_late"]:
                tr_reads()
        self.resolve(A, "r0", between)
        XS = get(4)
        A(f"v_add_u32 {vXs}, s3, {vXs}")

        def row_loads(C):
            C(f"global_load_dwordx4 {XS}, {vXs}, s[30:31] sc1")
        row_loads(A)
        if late_out:
            A(f"v_cmp_ne_u32 {sC}, {self.kin}, {self.key}")
        else:
            A(f"v_cmp_ne_u32 vcc, {self.kin}, {self.kmax}\ns_and_b64 exec, vcc, {sC}")
            self.out_stores(A)
            A("s_mov_b64 exec, -1")
        if self.o["r0_late"]:
            tr_reads()
        self.poll(A, "rowr0", row_loads, self.poison_check([XS[k] for k in range(4)], t0))
        self.stamp("row", A)
        for k in range(8):
            A(f"v_mfma_f32_16x16x32_bf16 {D[4 * k:4 * k + 4]}, {XS}, {WT[k]}, 0")
        A(f"s_cmp_eq_u32 {self.sUp}, 0\ns_cselect_b64 s[16:17], -1, 0")
        A(f"""
        v_add_f32 {t0}, {D[0]}, {D[5]}
        v_add_f32 {t1}, {D[10]}, {D[15]}
        v_add_f32 {t0}, {t0}, {t1}
        v_add_f32 {t1}, {D[16]}, {D[21]}
        v_add_f32 {t2}, {D[26]}, {D[31]}
        v_add_f32 {t1}, {t1}, {t2}
        s_mov_b64 exec, 0xffff
        ds_write_b32 {vRed}, {t0} offset:{L_RED}
        ds_write_b32 {vRed}, {t1} offset:{L_RED + 256}
        s_mov_b64 exec, -1
        """)
        self.stamp("g1m", A)
        A.barrier()
        self.stamp("g1b", A)
        A(f"ds_read_b128 {T[0:4]}, {vRd} offset:{L_RED}")
        A(f"v_pk_add_f32 {T[0:2]}, {T[0:2]}, {T[2:4]}\nv_add_f32 {T[0]}, {T[0]}, {T[1]}")
        self.rnd(A, T[0], T[0])
        A(f"v_mul_f32 {t0}, {LOG2E | 0x80000000}, {T[0]}\nv_exp_f32 {t0}, {t0}\nv_add_f32 {t0}, 1.0, {t0}")
        A(f"v_rcp_f32 {t0}, {t0}\nv_mul_f32 {t0}, {T[0]}, {t0}")
        A(f"v_cndmask_b32 {t0}, {T[0]}, {t0}, s[16:17]")
        A(f"v_mov_b32_dpp {t1}, {t0} row_shl:1 row_mask:0xf bank_mask:0xf")
        A(f"v_cvt_pk_bf16_f32 {XS[0]}, {t0}, {t1}")
        for k in range(1, 4):
            A(f"v_mov_b32_dpp {XS[k]}, {XS[0]} row_shl:{2 * k} row_mask:0xf bank_mask:0xf")
        A("s_mov_b32 exec_lo, 0x01010101\ns_mov_b32 exec_hi, 0x01010101")
        A(f"global_store_dwordx4 {vPub}, {XS}, s[30:31] sc1")
        self.stamp("g1", A)
        if late_out:
            A(f"s_mov_b64 exec, {sC}")
            self.out_stores(A)
        self.finish(A, "r0")

    def tail2(self, A):
        A.wait_tag("s3st")
        self.stamp("ack3", A)

        def between():
            A(f"s_andn2_b64 exec, -1, {self.sC}")
            self.out_stores(A)
            A("s_mov_b64 exec, -1")
        if self.o["r2_late"]:
            self.resolve(A, "r2")
            A(f"v_cmp_ne_u32 vcc, {self.kin}, {self.key}\ns_mov_b64 exec, vcc")
        else:
            self.resolve(A, "r2", between)
            A(f"v_cmp_ne_u32 vcc, {self.kin}, {self.kmax}\ns_and_b64 exec, vcc, {self.sC}")
        self.out_stores(A)
        self.finish(A, "r2")

    def tail1(self, A):
        V = self.V
        get = V.get
        vL, vI, vG, sL, sW, sC = self.vL, self.vI, self.vG, self.sL, self.sW, self.sC
        t0, t1, t2 = self.t
        T, D = self.T, self.D
        plan = self.plan1 if self.o["dma_ack2"] else self.dma_plan(A, 1)
        if self.o["dma_at"] == "none":
            plan = []
        n1 = self.o["r1_split"]
        for a, b in plan[:n1]:
            A(a)
            A(b, tag="dma")
        A.wait_tag("s3st")
        self.stamp("ack3", A)

        def between():
            for a, b in plan[n1:]:
                A(a)
                A(b, tag="dma")
        self.resolve(A, "r1", between)
        vTr, vRed, vSig, vOut, vS4i = get(), get(), get(), get(), get()
        HH = get(2)
        A(f"""
        s_lshl_b32 s16, {self.sBlk}, 5
        s_add_u32 s3, s3, s16
        v_lshrrev_b32 {t1}, 1, {vI}
        v_lshl_add_u32 {t1}, {t1}, 2, s3
        """)

        def row_loads(C):
            C(f"global_load_dword {HH[0]}, {t1}, s[30:31] sc1")
            C(f"global_load_dword {HH[1]}, {t1}, s[30:31] offset:1024 sc1")
        row_loads(A)
        A(f"v_cmp_eq_u32 vcc, {self.kin}, {self.key}\ns_andn2_b64 exec, -1, vcc")
        self.out_stores(A)
        A("s_mov_b64 exec, -1")
        A(f"""
        v_and_b32 {t0}, 3, {vI}
        v_lshlrev_b32 {t0}, 3, {t0}
        v_lshrrev_b32 {t2}, 2, {vI}
        v_lshl_add_u32 {t2}, {vG}, 3, {t2}
        v_lshl_add_u32 {t0}, {t2}, 5, {t0}
        v_add_u32 {vTr}, {self.sWb}, {t0}
        """)
        self.poll(A, "rowr1", row_loads, self.poison_check([HH[0], HH[1]], t0))
        self.stamp("row", A)
        WT = [self.AC.get(4, 4) for _ in range(14)]
        A.wait_tag("dma")
        self.stamp("r1o", A)
        for m in range(14):
            for e2 in range(2):
                A(f"ds_read_b64_tr_b16 {WT[m][2 * e2:2 * e2 + 2]}, {vTr} offset:{(32 * m + 4 * e2) * 32}")
        self.stamp("r1t", A)
        sK, sT = self.sK, self.sT
        A(f"""
        s_and_b32 s16, {sK}, 0x7fff0000
        s_andn2_b32 s17, 0xffff0000, {sK}
        s_bitcmp1_b32 {sK}, 31
        s_cselect_b32 s16, s16, s17
        v_mov_b32 {t0}, s16
        v_mul_f32 {t0}, {LOG2E | 0x80000000}, {t0}
        v_exp_f32 {t0}, {t0}
        v_add_f32 {t0}, 1.0, {t0}
        v_rcp_f32 {t0}, {t0}
        """)
        self.rnd(A, vSig, t0)
        vS4u = get()
        A(f"""
        v_and_b32 {t0}, 1, {vI}
        v_xor_b32 {t0}, 1, {t0}
        v_lshlrev_b32 {t0}, 4, {t0}
        v_lshlrev_b32 {HH[0]}, {t0}, {HH[0]}
        v_lshlrev_b32 {HH[1]}, {t0}, {HH[1]}
        v_and_b32 {HH[0]}, 0xffff0000, {HH[0]}
        v_and_b32 {HH[1]}, 0xffff0000, {HH[1]}
        s_lshl_b32 s3, {sT}, 10
        s_lshl_b32 s16, {self.sBlk}, 5
        s_add_u32 s3, s3, s16
        v_lshl_add_u32 {vOut}, {vI}, 1, s3
        s_lshr_b32 s3, {sL}, 5
        s_lshl_b32 s3, s3, 13
        s_mul_i32 s16, {sW}, {56 * 16}
        s_add_u32 s3, s3, s16
        s_add_u32 s3, s3, {WS_S4}
        v_min_u32 {t0}, 13, {vI}
        v_lshl_add_u32 {t0}, {t0}, 2, {vG}
        v_lshl_add_u32 {vS4i}, {t0}, 4, s3
        v_add_u32 {vS4u}, 0x1000, {vS4i}
        s_lshl_b32 s3, {sW}, 2
        v_lshl_add_u32 {vRed}, {vI}, 4, s3
        v_mov_b32 {t2}, 0
        v_lshlrev_b32 {t1}, 4, {vI}
        """)
        A.wait(vm=0)
        self.stamp("r1a", A)
        GU, XS = get(8), get(4)

        def s4_loads(C):
            C(f"global_load_dwordx4 {GU[0:4]}, {vS4i}, s[30:31] sc1")
            C(f"global_load_dwordx4 {GU[4:8]}, {vS4u}, s[30:31] sc1")
        s4_loads(A)
        self.poll(A, "s4", s4_loads, self.poison_check([GU[k] for k in range(8)], t0))
        self.stamp("g1", A)
        for k in range(4):
            A(f"v_and_b32 {T[2 * k]}, 0xffff, {GU[k]}\nv_and_b32 {T[2 * k + 1]}, 0xffff0000, {GU[k]}")
        for k in range(8):
            A(f"v_dot2_f32_bf16 {T[k]}, {T[k]}, {GU[4 + k // 2]}, 0")
        for k in range(4):
            A(f"v_cvt_pk_bf16_f32 {XS[k]}, {T[2 * k]}, {T[2 * k + 1]}")
        DD = [D[4 * k:4 * k + 4] for k in range(8)]
        acc = [t2, get()]
        A(f"v_mov_b32 {acc[1]}, 0")
        for m in range(14 + 4):
            if m < 14:
                A(f"v_mfma_f32_16x16x32_bf16 {DD[m % 8]}, {XS}, {WT[m]}, 0")
            k = m - 4
            if k >= 0:
                a = acc[k % 2]
                A(f"v_add_f32_dpp {a}, {DD[k % 8][k % 4]}, {a} quad_perm:[0,1,2,3] row_mask:{1 << (k // 4)} bank_mask:0xf")
        A(f"v_add_f32 {t2}, {t2}, {acc[1]}")
        for sw in ("v_permlane16_swap_b32", "v_permlane32_swap_b32"):
            A(f"v_mov_b32 {t0}, {t2}\n{sw} {t2}, {t0}\nv_add_f32 {t2}, {t2}, {t0}")
        A(f"s_mov_b64 exec, 0xffff\nds_write_b32 {vRed}, {t2} offset:{L_RED}\ns_mov_b64 exec, -1")
        self.stamp("g2m", A)
        A.barrier()
        A(f"s_cmp_eq_u32 {sW}, 0\ns_cbranch_scc0 L_fin_r1")
        A(f"ds_read_b128 {T[0:4]}, {t1} offset:{L_RED}")
        A(f"v_pk_add_f32 {T[0:2]}, {T[0:2]}, {T[2:4]}\nv_add_f32 {t0}, {T[0]}, {T[1]}")
        self.rnd(A, t0, t0)
        A(f"v_mul_f32 {t0}, {t0}, {vSig}")
        self.rnd(A, t0, t0)
        A(f"v_add_f32 {t0}, {t0}, {HH[0]}")
        self.rnd(A, t0, t0)
        A(f"v_add_f32 {t0}, {t0}, {HH[1]}")
        self.rnd(A, t0, t0)
        A("s_mov_b64 exec, 0xffff")
        A(f"global_store_short_d16_hi {vOut}, {t0}, s[28:29] {self.o['fin_pol']}")
        self.stamp("g2", A)
        A(f"s_cmp_eq_u32 {self.sBlk}, 0\ns_cbranch_scc0 L_fin_r1")
        A("s_mov_b64 exec, 1")
        A(f"v_mov_b32 {t0}, {self.sE}\nv_mov_b32 {t2}, 0")
        A(f"global_store_dword {t2}, {t0}, s[30:31] offset:{WS_EPOCH} {self.o['fin_pol']}")
        self.finish(A, "r1")

    def build(self):
        A = self.A
        self.prologue()
        self.ksteps = self.kgen_steps()
        for _ in range(self.o["kpre"]):
            next(self.ksteps)
        self.ln1()
        self.kgen()
        self.sWb, self.sC, self.sK, self.sT = self.S.get(), self.S.get(2), self.S.get(), self.S.get()
        self.conv_all()
        self.phase_c()
        self.kin = self.V.get()
        A(f"s_cmp_eq_u32 {self.sRole}, 1\ns_cbranch_scc1 L_role1")
        B = A.fork()
        B.label("L_role1")
        A(f"s_cmp_eq_u32 {self.sRole}, 2\ns_cbranch_scc1 L_role2")
        C = A.fork()
        C.label("L_role2")
        vfree, afree = set(self.V.free), set(self.AC.free)
        self.tail0(A)
        self.V.free, self.AC.free = set(vfree), set(afree)
        self.tail1(B)
        self.V.free, self.AC.free = set(vfree), set(afree)
        self.tail2(C)
        B.lines += C.lines
        B.count += C.count
        body = A.text() + B.text() + "".join(c.text() for c in self.cold)
        nv = self.V.top + 1
        accum = (nv + 3) // 4 * 4
        total = max(accum + self.AC.top + 1, 264)
        head = open(f"cdna_kernels/{NAME}.s.ref").read().split("; Override launch geometry")[0]
        self.stats = dict(instr=A.count + B.count, nops=A.nops + B.nops, vgpr=nv, agpr=self.AC.top + 1, mfma=self.nmfma, bg_left=self.bg_left)
        tab = ""
        if self.o["band_tab"]:
            tab = f".p2align 7\n.type L_tab,@object\nL_tab:\n{band_table()}\n.size L_tab, 4096\n"
        return head + f"""; One persistent launch: 256 workgroups, one per CU, exchanging data through d_ws.
; @launch grid=(256,1,1) block=(256,1,1) lds={LDS_BYTES}
.amdgcn_target "amdgcn-amd-amdhsa--gfx950"
.text
.globl {NAME}_kernel
.p2align 8
.type {NAME}_kernel,@function
{NAME}_kernel:
{body}L_end:
    s_endpgm
L_code_end:
{tab}L_all_end:
.section .rodata,"a"
.p2align 6
.amdhsa_kernel {NAME}_kernel
  .amdhsa_next_free_vgpr {total}
  .amdhsa_next_free_sgpr 102
  .amdhsa_accum_offset {accum}
  .amdhsa_group_segment_fixed_size 0
  .amdhsa_kernarg_size 120
  .amdhsa_user_sgpr_count 2
  .amdhsa_user_sgpr_kernarg_segment_ptr 1
  .amdhsa_system_sgpr_workgroup_id_x 1
  .amdhsa_float_denorm_mode_32 3
.end_amdhsa_kernel
"""


def generate(path, **opt):
    g = Gen(**opt)
    text = g.build()
    open(path, "w").write(text)
    return g.stats


if __name__ == "__main__":
    out = sys.argv[1] if len(sys.argv) > 1 else f"cdna_kernels/{NAME}.s"
    opts = {}
    for a in sys.argv[2:]:
        k, v = a.split("=")
        opts[k] = {"True": True, "False": False}.get(v, int(v) if v.isdigit() else v)
    print(generate(out, **opts))
```

```python
import sys
from asmdsl import Asm, Pool, R

NAME = "sequential_preLN__ssm_conv_s4d__moe_arch_mod__prompt"

WS_EPOCH = 0
WS_FLG = 0x4000
WS_S3 = 0x8000
WS_S4 = 0x10000
WS_ROWS = 0x20000
WS_S1 = 0x100000
WS_S2 = 0x300000
WS_STAMP = 0x600000

ROWB = 544
STAGE_CH = 57 * ROWB
L_K = 0
KCOPY = 2112
KCH = 4 * KCOPY
L_U = L_K + 2 * KCH
UCH = 4672
L_Z = 26368
L_H = L_Z + 8192
L_ST = L_H + 8192
L_KEY = L_ST + 64
L_KEY2 = L_KEY + 32
L_RED = L_KEY2 + 32
L_P = 43520
PPLANE = 2048 + 32
PHALF = 2 * PPLANE
L_STAGE = 60416
LDS_BYTES = L_STAGE + 2 * STAGE_CH
assert L_U + UCH + 4608 <= L_Z and L_RED + 512 <= L_P and L_P + 4 * PHALF <= L_STAGE and L_STAGE % 256 == 0

NX = 560
FAR = 608
V2 = [FAR + 48 * s for s in range(4)]
V3 = [FAR + 16 * 13 + 80 * s for s in range(2)]
TAGMASK = 0x40074007
LOG2E = 0x3FB8AA3B
INV2PI = 0x3E22F983
SPIN_MAX = 1 << 14

BANDS = ((12, 1), (8, 2), (8, 3), (8, 4))


def band_table():
    out = []
    for delta, h in BANDS:
        for lane in range(64):
            phi, g = lane & 15, lane >> 4
            bits = [0x3C00 if abs(8 * g + e - phi - delta) <= h else 0 for e in range(8)]
            out.append(".long " + ", ".join(hex(bits[2 * d] | bits[2 * d + 1] << 16) for d in range(4)))
    return "\n".join(out)


STAMP_SETS = {
    True: ["start", "karg", "x", "pub1", "rec", "kmf", "frag", "s1", "conv", "ack2", "s2", "pub3", "ack3", "s3", "row", "g1", "g2", "end"],
    "z": ["start"] + [f"unused{i}" for i in range(16)] + ["end"],
    "a": ["start", "karg", "issued", "consts", "x", "stat", "b1", "norm", "pub1", "warm", "par", "ws", "recR", "rec", "b2", "kmf0", "kmf", "end"],
    "b": ["start", "kmf", "shift", "frag", "s1w", "s1", "b5", "conv", "b6", "st2", "dma", "ack2", "s2", "hw", "b7", "key", "pub3", "end"],
    "c": ["start", "pub3", "hn", "outc", "ack3", "s3p", "s3w", "s3", "row", "g1m", "g1b", "g1", "r1o", "r1t", "r1a", "g2m", "g2", "end"],
}
DEFAULTS = dict(stamps=False, s1_at="mfma", warm=True, out_pol="sc1", pf_code=True, pf_lines=8, dbg=False, poison_at="x", recb=4, r1_out="row", dma_s2=0, st_late=False, early_br=True, addtid=True, r1_at=28, b_first=False, dma0_ack2=False, p3_at="consts", cpre=0, bg_from=0, fin_pol="", r0_late=2, r2_late=True, dma_ack2=0, xmap=True, x_pol="", w_pol="", p_pol="sc1", mask_poll=True, warm_slot=30, kpre=1, par_first=True, band_tab=False, frag_in=True, dma_pre=0, r1_split=2, xa_glob=False, warm_at="s1w", xa_at="start", nf=7, ng=4, pe=14, pd=6, npre=6, clk=False, dma_at="conv", warm_mode="sect", far_span=(56, 40))


class Gen:
    def __init__(self, **opt):
        self.o = dict(DEFAULTS)
        self.o.update(opt)
        self.A = Asm()
        self.V = Pool("v", 1, 255)
        self.AC = Pool("a", 0, 255)
        self.S = Pool("s", 32, 63)
        self.cold = []
        self.nstamp = 0

    def stamp(self, name, A=None):
        sel = STAMP_SETS.get(self.o["stamps"])
        if sel and name in sel:
            i = sel.index(name)
            (A or self.A)(f"{'s_memtime' if self.o.get('cyc') else 's_memrealtime'} s[{64 + 2 * i}:{65 + 2 * i}]")

    def dump_stamps(self, A):
        if not self.o["stamps"]:
            return
        if self.o["dbg"]:
            self.dump_debug(A)
            return
        a, d = self.V.get(), self.V.get(2)
        A("s_mov_b64 exec, 1")
        A.wait(lg=0)
        A(f"s_lshl_b32 s3, {self.sL}, 2\ns_add_u32 s3, s3, {self.sW}\ns_lshl_b32 s3, s3, 8\ns_add_u32 s3, s3, {WS_STAMP}")
        A(f"v_mov_b32 {a}, s3")
        for i in range(19):
            A(f"v_mov_b32 {d[0]}, s{64 + 2 * i}\nv_mov_b32 {d[1]}, s{65 + 2 * i}")
            A(f"global_store_dwordx2 {a}, {d}, s[30:31] offset:{8 * i}")
            A.wait(vm=0)
        self.V.put(a, d)

    def dump_debug(self, A):
        a, d = self.V.get(), self.V.get()
        n = getattr(self, "ndbg", 0)
        self.ndbg = n + 1
        A("s_mov_b64 exec, 1")
        A(f"s_cmp_eq_u32 {self.sL}, 255\ns_cbranch_scc0 L_dbg{n}\ns_cmp_eq_u32 {self.sW}, 0\ns_cbranch_scc0 L_dbg{n}")
        A("s_load_dwordx2 s[4:5], s[0:1], 104")
        A.wait(lg=0)
        A(f"v_mov_b32 {a}, 0")
        for i in range(1, 17):
            A(f"s_sub_u32 s3, s{64 + 2 * (i + 1)}, s64\nv_mov_b32 {d}, s3")
            A(f"global_store_dword {a}, {d}, s[4:5] offset:{4 * (i - 1)}")
        A.label(f"L_dbg{n}")
        self.V.put(a, d)

    def rnd(self, A, dst, src, neg=False):
        A(f"v_cvt_pk_bf16_f32 {dst}, 0, {'-' if neg else ''}{src}")

    def allreduce(self, A, op, regs, width, fill=()):
        fill = list(fill)

        def pad():
            for _ in range(max(0, 3 - len(regs))):
                if fill:
                    A(fill.pop(0))
        steps = ["quad_perm:[1,0,3,2]", "quad_perm:[2,3,0,1]", "row_half_mirror", "row_mirror"]
        for st in steps:
            pad()
            for r in regs:
                A(f"{op}_dpp {r}, {r}, {r} {st} row_mask:0xf bank_mask:0xf")
        tmp = [self.V.get() for _ in regs]
        for w, sw in ((32, "v_permlane16_swap_b32"), (64, "v_permlane32_swap_b32")):
            if width >= w:
                for r, t in zip(regs, tmp):
                    A(f"v_mov_b32 {t}, {r}")
                pad()
                for r, t in zip(regs, tmp):
                    A(f"{sw} {r}, {t}")
                for r, t in zip(regs, tmp):
                    A(f"{op} {r}, {r}, {t}")
        for f in fill:
            A(f)
        self.V.put(*tmp)

    def ln_stats(self, A, s1, s2, nm, rs):
        t = self.V.get()
        A(f"v_mul_f32 {s1}, 0x3b000000, {s1}")
        A(f"v_mul_f32 {s2}, 0x3b000000, {s2}")
        A(f"v_fma_f32 {t}, -{s1}, {s1}, {s2}")
        A(f"v_max_f32 {t}, 0, {t}")
        self.rnd(A, t, t)
        self.rnd(A, nm, s1, neg=True)
        A(f"v_add_f32 {t}, 0x3727c5ac, {t}")
        self.rnd(A, t, t)
        A(f"v_sqrt_f32 {t}, {t}")
        self.rnd(A, t, t)
        A(f"v_rcp_f32 {rs}, {t}")
        self.V.put(t)

    def poll(self, A, name, loads, check):
        check(A)
        A(f"s_cbranch_vccnz L_{name}_slow")
        A.label(f"L_{name}_ok")
        C = Asm()
        C.label(f"L_{name}_slow")
        C("s_mov_b32 s3, 0")
        C.label(f"L_{name}_loop")
        if self.o["mask_poll"]:
            C("s_mov_b64 exec, vcc")
        C("s_nop 1")
        loads(C)
        C(f"s_add_u32 s3, s3, 1\ns_cmp_ge_u32 s3, {SPIN_MAX}")
        C("s_cselect_b32 s18, 0, -1\ns_mov_b32 s19, s18")
        check(C)
        C.wait(vm=0)
        C("s_nop 1")
        C("s_and_b64 vcc, vcc, s[18:19]")
        C(f"s_cbranch_vccnz L_{name}_loop")
        C("s_mov_b64 exec, -1")
        C("s_nop 2")
        C(f"s_branch L_{name}_ok")
        self.cold.append(C)

    def prologue(self):
        A, V, S = self.A, self.V, self.S
        A("s_cmp_ge_u32 s2, 0x100\ns_cbranch_scc1 L_end")
        A("s_load_dwordx16 s[4:19], s[0:1], 0\ns_load_dwordx8 s[20:27], s[0:1], 64")
        A("s_load_dwordx2 s[28:29], s[0:1], 96\ns_load_dwordx2 s[30:31], s[0:1], 112")
        self.stamp("start")
        if self.o["clk"]:
            A("s_memtime s[100:101]")
        self.sL, self.sW, self.sTag, self.sE = S.get(), S.get(), S.get(), S.get()
        self.sOnes, self.sLo, self.sHi, self.sCh = S.get(), S.get(), S.get(), S.get()
        self.sB, self.sH, self.sa, self.sb = S.get(), S.get(), S.get(), S.get()
        sL, sW, sa, sb = self.sL, self.sW, self.sa, self.sb
        self.vL = V.get()
        self.vI = V.get()
        self.vG = V.get()
        t0, t1, t2, t3 = V.get(), V.get(), V.get(), V.get()
        self.vJunk = V.get(2)
        A(f"v_lshrrev_b32 {t0}, 6, v0\ns_lshr_b32 {sL}, s2, 3")
        if self.o["pf_code"]:
            nl = self.o["pf_lines"]
            self.sPc = S.get(2)
            A(f"s_getpc_b64 {self.sPc}")
            A.label("L_pc")
            A(f"""
            v_lshl_add_u32 {t2}, {sL}, 2, {t0}
            v_and_b32 {t2}, {256 // nl - 1}, {t2}
            v_and_b32 {t1}, {nl - 1}, v0
            v_lshl_add_u32 {t2}, {t2}, {nl.bit_length() - 1}, {t1}
            v_lshlrev_b32 {t2}, 7, {t2}
            v_min_u32 {t2}, L_all_end-L_pc-4, {t2}
            global_load_dword {self.vJunk[0]}, {t2}, {self.sPc}
            """)
        self.vTau, self.vHr, self.vRow, vP = V.get(), V.get(), V.get(), V.get()
        A(f"""
        v_readfirstlane_b32 {sW}, {t0}
        s_and_b32 s3, s2, 7
        s_lshl_b32 s3, s3, 5
        s_add_u32 {sL}, {sL}, s3
        {"" if self.o["xmap"] else f"s_mov_b32 {sL}, s2"}
        v_and_b32 {self.vL}, 63, v0
        v_lshrrev_b32 {self.vTau}, 5, v0
        v_and_b32 {t1}, 31, v0
        v_lshlrev_b32 {t1}, 4, {t1}
        v_lshl_add_u32 {self.vHr}, {self.vTau}, 10, {t1}
        s_lshl_b32 {sa}, {sL}, 13
        v_add_u32 {self.vRow}, {sa}, {self.vHr}
        s_lshr_b32 s3, {sL}, 6
        s_lshl_b32 {self.sCh}, s3, 7
        s_and_b32 s3, {sL}, 31
        s_lshl_b32 s3, s3, 2
        s_add_u32 {self.sCh}, {self.sCh}, s3
        s_bfe_u32 s3, {sL}, 0x10005
        s_add_u32 {self.sCh}, {self.sCh}, s3
        s_and_b32 s3, {sW}, 2
        s_add_u32 {self.sCh}, {self.sCh}, s3
        s_lshl_b32 s3, {self.sCh}, 8
        v_lshl_add_u32 {vP}, {self.vL}, 2, s3
        s_lshl_b32 {self.sE}, {self.sCh}, 1
        s_and_b32 {self.sE}, {self.sE}, -4
        v_and_b32 {self.vI}, 15, v0
        v_bfe_u32 {self.vG}, v0, 4, 2
        s_lshr_b32 {self.sB}, {sW}, 1
        s_and_b32 {self.sH}, {sW}, 1
        """)
        self.XB, self.XA, self.PAR, self.WR = V.get(8), V.get(8), V.get(4), V.get(8)
        self.sDt = S.get()
        lines = self.const_lines(t0, t1, t2, t3)
        npre = self.o["cpre"]
        for ln in lines[:npre]:
            A(ln)
        for k in range(4):
            A(f"global_load_dword {self.PAR[k]}, {vP}, s[{6 + 2 * k}:{7 + 2 * k}] {self.o['x_pol']}")
        A(f"global_load_dwordx4 {self.XB[0:4]}, {self.vRow}, s[4:5] {self.o['x_pol']}")
        A(f"global_load_dwordx4 {self.XB[4:8]}, {self.vRow}, s[4:5] offset:512 {self.o['x_pol']}")
        A(f"s_load_dword {self.sDt}, s[14:15], {self.sE}")
        A(f"s_load_dword {self.sE}, s[30:31], {WS_EPOCH}")
        self.stamp("karg")
        V.put(vP)
        for ln in lines[npre:]:
            A(ln)
        self.bg = self.background()
        if self.o["p3_at"] == "consts":
            for ln in self.p3_lines[:-1]:
                A(ln)
            self.p3_lines = self.p3_lines[-1:]
        if self.o["warm_at"] == "s1w":
            n = self.nwarm - (self.o["dma_at"] != "none")
            for ln in self.bg[:n]:
                A(ln)
            self.warm_line = self.bg[n:self.nwarm]
            self.bg = self.bg[self.nwarm:]
        if self.o["poison_at"] == "pub":
            self.vFo, self.vFi = V.get(), V.get()
            A(f"""
            s_lshl_b32 s3, {sW}, 12
            s_lshl_b32 {sb}, {sL}, 4
            s_add_u32 s3, s3, {sb}
            s_add_u32 s3, s3, {WS_FLG}
            v_mov_b32 {self.vFo}, s3
            s_lshr_b32 s3, {sL}, 6
            s_lshl_b32 s3, s3, 12
            s_add_u32 s3, s3, {WS_FLG}
            v_lshl_add_u32 {self.vFi}, v0, 4, s3
            """)
        if self.o["poison_at"] == "consts":
            self.poison2()
        self.stamp("consts")
        V.put(t0, t1, t2, t3, *self.ctmp)

    def poison2(self):
        A = self.A
        A(f"global_store_dwordx4 {self.vP2}, {self.M1}, s[30:31] sc1", tag="poison")
        A(f"global_store_dwordx4 {self.vP2}, {self.M1}, s[30:31] offset:1024 sc1", tag="poison")
        self.V.put(self.vP2)

    def const_lines(self, t0, t1, t2, t3):
        V, S = self.V, self.S
        vI, vG, vL, sW, sL, sB, sH, sa, sb = self.vI, self.vG, self.vL, self.sW, self.sL, self.sB, self.sH, self.sa, self.sb
        out = []

        def A(text):
            out.extend(x.strip() for x in text.strip().split("\n") if x.strip())
        self.BAND = {key: V.get(4) for key in BANDS}
        SEL = V.get(6)
        A(f"""
        v_lshlrev_b32 {t0}, 3, {vG}
        v_sub_u32 {t0}, {t0}, {vI}
        v_add_u32 {t0}, 20, {t0}
        v_mul_u32_u24 {t0}, 0x10001, {t0}
        v_mov_b32 {t3}, 0x70007
        s_mov_b32 {sb}, 0xc000c
        """)
        for k in range(6):
            c0, c1 = 32 - 2 * k, 31 - 2 * k
            A(f"""
            s_mov_b32 s3, {c0 | c1 << 16}
            v_pk_sub_i16 {t1}, {t0}, s3
            v_pk_sub_i16 {t2}, s3, {t0}
            v_pk_max_i16 {t1}, {t1}, {t2}
            v_pk_min_i16 {t1}, {t1}, {t3}
            v_lshl_or_b32 {SEL[k]}, {t1}, 8, {sb}
            """)
        for (delta, h), B in self.BAND.items():
            lut = sum(0x3C << (8 * i) for i in range(min(h + 1, 4)))
            A(f"s_mov_b32 s3, {lut}")
            for d in range(4):
                A(f"v_perm_b32 {B[d]}, {60 if h == 4 else 0}, s3, {SEL[d + (0 if delta == 12 else 2)]}")
        Z = SEL[0:4]
        for k in range(4):
            A(f"v_mov_b32 {Z[k]}, 0")
        self.vShift, self.vShiftR = V.get(), V.get()
        A(f"""
        v_lshlrev_b32 {t2}, 4, v0
        v_lshlrev_b32 {t3}, 2, {vL}
        v_and_b32 {t1}, 127, v0
        s_mul_i32 s3, {sB}, {UCH}
        s_add_u32 {sb}, s3, {L_U}
        v_lshl_add_u32 {t0}, {t1}, 2, {sb}
        ds_write_b128 {t2}, {Z} offset:{L_P}
        ds_write_b128 {t2}, {Z} offset:{L_P + 4096}
        ds_write_b128 {t2}, {Z} offset:{L_P + 8192}
        ds_write_b128 {t2}, {Z} offset:{L_P + 12288}
        ds_write_b32 {t3}, {Z[0]} offset:{L_P + 16384}
        ds_write_b32 {t0}, {Z[0]}
        s_mul_i32 s3, {sB}, {2 * PHALF}
        v_lshl_add_u32 {self.vShiftR}, {t1}, 4, s3
        """)
        self.vUf, self.vZw, self.vUw = V.get(), V.get(), V.get()
        self.vN, self.vF = V.get(), V.get()
        A(f"""
        v_lshl_add_u32 {t0}, {vI}, 5, {sb}
        v_lshl_add_u32 {self.vUf}, {vG}, 4, {t0}
        s_mul_i32 s3, {sB}, {KCH}
        v_lshl_add_u32 {self.vShift}, {t1}, 4, s3
        v_sub_u32 {t0}, 15, {vI}
        v_and_b32 {t1}, 3, {t0}
        v_and_b32 {t0}, 12, {t0}
        v_mul_u32_u24 {t1}, {KCOPY}, {t1}
        v_lshl_add_u32 {t0}, {t0}, 1, {t1}
        v_add_u32 {t0}, s3, {t0}
        v_lshl_add_u32 {self.vN}, {vG}, 4, {t0}
        v_lshl_add_u32 {self.vF}, {vG}, 3, {t0}
        v_and_b32 {t0}, 2, {vG}
        v_lshl_add_u32 {t0}, {vI}, 2, {t0}
        v_add_u32 {t0}, {sB}, {t0}
        v_lshrrev_b32 {t1}, 1, {vI}
        v_xor_b32 {t0}, {t0}, {t1}
        v_and_b32 {t1}, 1, {vG}
        v_lshlrev_b32 {t1}, 3, {t1}
        v_lshl_add_u32 {self.vZw}, {t0}, 4, {t1}
        """)
        self.sStM = S.get()
        self.vR, self.vS0, self.vS1r = V.get(), V.get(), V.get()
        A(f"""
        s_mul_i32 s3, {sB}, {STAGE_CH}
        s_lshl_b32 {sb}, {sH}, 8
        s_add_u32 s3, s3, {sb}
        s_add_u32 {self.sStM}, s3, {L_STAGE - 0x8000}
        s_add_u32 s3, s3, {L_STAGE}
        v_lshl_add_u32 {t2}, {vG}, 4, s3
        v_xor_b32 {t0}, 3, {vI}
        v_bfe_u32 {t1}, {t0}, 1, 1
        v_add_u32 {t1}, {t0}, {t1}
        v_lshrrev_b32 {t1}, 1, {t1}
        s_movk_i32 s3, {ROWB}
        v_mad_u32_u24 {self.vR}, {vI}, s3, {t2}
        v_mad_u32_u24 {self.vS0}, {t0}, s3, {t2}
        v_mad_u32_u24 {self.vS1r}, {t1}, s3, {t2}
        """)
        self.vK1, self.vK3, self.vKs = V.get(), V.get(), V.get()

        def pa(m):
            return ((m >> 2) & 1) * PPLANE + (m >> 3) * 16 + (m & 3) * 4
        A(f"""
        s_mul_i32 s3, {sW}, {PHALF}
        s_add_u32 s3, s3, {L_P}
        v_xor_b32 {t3}, 3, {vG}
        v_and_b32 {t0}, 1, {t3}
        v_mul_u32_u24 {t0}, {PPLANE}, {t0}
        v_lshrrev_b32 {t3}, 1, {t3}
        v_lshl_add_u32 {t3}, {t3}, 4, {t0}
        v_add_u32 {t3}, s3, {t3}
        v_lshlrev_b32 {t0}, 5, {vI}
        v_sub_u32 {t0}, {t3}, {t0}
        v_add_u32 {self.vK1}, {pa(528 - 256)}, {t0}
        v_lshrrev_b32 {t1}, 1, {vI}
        v_lshrrev_b32 {t2}, 2, {vI}
        v_add_u32 {t2}, 2, {t2}
        v_min_u32 {t1}, {t1}, {t2}
        v_add3_u32 {t1}, {t1}, {vI}, {FAR // 16 + 1}
        v_lshl_add_u32 {self.vK3}, {t1}, 5, {t3}
        v_cmp_gt_u32 vcc, 8, {vI}
        v_mov_b32 {t0}, {pa(28)}
        v_mov_b32 {t1}, {pa(NX + 24)}
        v_cndmask_b32 {t0}, {t0}, {t1}, vcc
        v_add_u32 {self.vKs}, s3, {t0}
        """)
        self.vS1o, self.vS1i, self.vS1i2, self.vP2 = V.get(), V.get(), V.get(), V.get()
        self.vMask, self.vHw2, self.M1 = V.get(), V.get(), V.get(4)
        A(f"""
        v_and_b32 {t0}, 1, v0
        v_lshrrev_b32 {t1}, 1, v0
        v_mul_u32_u24 {t2}, {UCH}, {t0}
        v_lshl_add_u32 {self.vUw}, {t1}, 4, {t2}
        v_lshlrev_b32 {t0}, 4, {t0}
        v_lshl_add_u32 {t2}, {t1}, 13, {t0}
        s_lshl_b32 s3, {sL}, 5
        s_add_u32 s3, s3, {WS_S1}
        v_add_u32 {self.vS1i}, s3, {t2}
        v_add_u32 {self.vS1i2}, 0x100000, {self.vS1i}
        s_lshl_b32 s3, {sW}, 11
        s_add_u32 s3, s3, {sa}
        s_add_u32 s3, s3, {WS_S1}
        v_lshl_add_u32 {self.vS1o}, {vL}, 4, s3
        v_add_u32 {self.vP2}, {WS_S2 - WS_S1}, {self.vS1o}
        s_mov_b32 s3, {L_H}
        v_lshl_add_u32 {self.vHw2}, v0, 2, s3
        v_mov_b32 {self.vMask}, {0xFFFFFFFF ^ TAGMASK}
        s_mov_b32 {self.sOnes}, 0x3f803f80
        s_mov_b32 {self.sLo}, 0x3f80
        s_mov_b32 {self.sHi}, 0x3f800000
        """)
        for k in range(4):
            A(f"v_mov_b32 {self.M1[k]}, -1")
        self.ctmp = [SEL]
        return out

    def background(self):
        V, S = self.V, self.S
        vL, sW, sL, sa, sb = self.vL, self.sW, self.sL, self.sa, self.sb
        t0, t1, t2 = V.get(), V.get(), V.get()
        out = []

        def A(text):
            out.extend(x.strip() for x in text.strip().split("\n") if x.strip())
        A(f"""
        s_lshr_b32 s3, {sL}, 5
        s_and_b32 {sb}, {sL}, 31
        s_mul_i32 s6, {sb}, {16 * 3584}
        s_mul_i32 s7, s3, 448
        s_add_u32 s6, s6, s7
        v_lshrrev_b32 {t0}, 2, {vL}
        v_and_b32 {t1}, 3, v0
        v_mul_u32_u24 {t0}, 3584, {t0}
        v_lshl_add_u32 {t0}, {t1}, 7, {t0}
        v_add_u32 {t0}, s6, {t0}
        s_mul_i32 s6, {sb}, {56 * 1024}
        s_lshl_b32 s7, s3, 7
        s_add_u32 s6, s6, s7
        s_mul_i32 s7, {self.sH}, {28 * 1024}
        s_add_u32 s6, s6, s7
        v_min_u32 {t1}, 27, {vL}
        v_lshl_add_u32 {t1}, {t1}, 10, s6
        s_cmp_eq_u32 {sW}, 0
        s_cselect_b32 s8, s22, s24
        s_cselect_b32 s9, s23, s25
        s_cmp_lt_u32 {sW}, 2
        s_cselect_b32 s8, s8, s26
        s_cselect_b32 s9, s9, s27
        s_cselect_b64 vcc, -1, 0
        v_cndmask_b32 {t0}, {t1}, {t0}, vcc
        """)
        if self.o["dma_at"] != "none":
            A(f"global_load_dword {self.vJunk[1]}, {t0}, s[8:9]")
        self.nwarm = len(out)
        warm_block = list(out)
        if self.o["warm_at"] == "bg":
            out.clear()
        A(f"s_lshr_b32 s3, {sL}, 5\ns_and_b32 {sb}, {sL}, 31")
        self.sBlk, self.sRole, self.sUp = S.get(), S.get(), S.get()
        A(f"""
        s_cmp_ge_u32 {sb}, 7
        s_cselect_b32 {self.sUp}, 1, 0
        s_cselect_b32 s6, 7, 0
        s_sub_u32 s6, {sb}, s6
        s_mul_i32 {self.sBlk}, s3, 7
        s_add_u32 {self.sBlk}, {self.sBlk}, s6
        s_cmp_ge_u32 {sb}, 14
        s_cselect_b32 {self.sRole}, 2, 0
        s_lshl_b32 s3, s3, 2
        s_sub_u32 s6, {sb}, {self.o["r1_at"]}
        s_add_u32 s3, s3, s6
        s_cmp_lt_u32 s6, 4
        s_cselect_b32 {self.sRole}, 1, {self.sRole}
        s_cselect_b32 {self.sBlk}, s3, {self.sBlk}
        """)
        self.p3_lines = [f"s_mul_i32 s3, {sL}, 2432", f"s_add_u32 s3, s3, {WS_S3}", f"v_lshl_add_u32 {t2}, v0, 4, s3",
                         f"v_cmp_gt_u32 s[10:11], {t1}, v0",
                         ("s_mov_b64 exec, s[10:11]", f"global_store_dwordx4 {t2}, {self.M1}, s[30:31] sc1", "s_mov_b64 exec, -1")]
        self.p3_lines.insert(0, f"v_mov_b32 {t1}, 152")
        if self.o["warm_at"] == "bg":
            out.extend(warm_block)
        self.vS2o, self.vS2o2, self.vS2i, self.vS2i2, self.vZr = V.get(), V.get(), V.get(), V.get(), V.get()
        A(f"""
        s_add_u32 s3, {sa}, {WS_S2}
        v_lshl_add_u32 {self.vS2o}, v0, 4, s3
        v_add_u32 {self.vS2o2}, 0x1000, {self.vS2o}
        v_bfe_u32 {t0}, v0, 3, 3
        v_xor_b32 {t0}, v0, {t0}
        v_lshlrev_b32 {self.vZr}, 4, {t0}
        s_lshl_b32 s3, {sW}, 18
        s_add_u32 s3, s3, {WS_S2 - WS_S1}
        v_add_u32 {self.vS2i}, s3, {self.vS1i}
        v_add_u32 {self.vS2i2}, 0x40000, {self.vS2i}
        """)
        self.bgtmp = [t0, t1, t2, self.M1]
        return out

    def ln1(self):
        A, V = self.A, self.V
        glob = False
        s1, s2, nm, rs, ad = V.get(), V.get(), V.get(), V.get(), V.get()
        A(f"v_lshlrev_b32 {ad}, 2, {self.vTau}")
        for k in range(8):
            if not glob and k % 4 == 0:
                A(f"ds_write_b128 {self.vHr}, {self.XB[k:k + 4]} offset:{L_H + 128 * k}")
            A(f"v_dot2_f32_bf16 {s1}, {self.XB[k]}, {self.sOnes}, {s1 if k else 0}")
            A(f"v_dot2_f32_bf16 {s2}, {self.XB[k]}, {self.XB[k]}, {s2 if k else 0}")
            if k == 0:
                self.stamp("x")
                if self.o["poison_at"] == "x":
                    self.poison2()
        self.allreduce(A, "v_add_f32", [s1, s2], 32)
        self.ln_stats(A, s1, s2, nm, rs)
        if self.o["poison_at"] == "stat":
            self.poison2()
        self.stamp("stat")
        A("s_mov_b64 exec, 1\ns_bitset1_b64 exec, 32")
        A(f"v_mul_f32 {rs}, 0x3d800000, {rs}")
        A(f"ds_write_b32 {ad}, {nm} offset:{L_ST}\nds_write_b32 {ad}, {rs} offset:{L_ST + 32}")
        A("s_mov_b64 exec, -1")
        A(f"v_mov_b32 {ad}, 0")
        V.put(self.XB)
        A.barrier()
        self.stamp("b1")
        NM, RS = V.get(8), V.get(8)
        XA = self.XA
        if not glob:
            for q in range(2):
                A(f"ds_read2st64_b32 {XA[2 * q:2 * q + 2]}, {self.vHw2} offset0:{8 * q} offset1:{8 * q + 4}")
        A(f"ds_read_b128 {NM[0:4]}, {ad} offset:{L_ST}")
        if not glob:
            for q in range(2, 4):
                A(f"ds_read2st64_b32 {XA[2 * q:2 * q + 2]}, {self.vHw2} offset0:{8 * q} offset1:{8 * q + 4}")
        A(f"ds_read_b128 {NM[4:8]}, {ad} offset:{L_ST + 16}")
        for k in range(2):
            A(f"ds_read_b128 {RS[4 * k:4 * k + 4]}, {ad} offset:{L_ST + 32 + 16 * k}")
        if self.o["poison_at"] == "b1":
            self.poison2()
        A(f"s_add_u32 {self.sE}, {self.sE}, 1\ns_and_b32 {self.sTag}, {self.sE}, {TAGMASK}")
        T = V.get(8)
        for e in range(2):
            G = V.get(4)
            for j in range(8):
                A(f"v_dot2_f32_bf16 {T[j]}, {XA[j]}, {self.sHi if e else self.sLo}, {NM[j]}")
            for j in range(8):
                self.rnd(A, T[j], T[j])
            for q in range(4):
                A(f"v_pk_mul_f32 {T[2 * q:2 * q + 2]}, {T[2 * q:2 * q + 2]}, {RS[2 * q:2 * q + 2]}")
            for j in range(8):
                self.rnd(A, T[j], T[j])
            for q in range(4):
                A(f"v_cvt_pk_f16_f32 {G[q]}, {T[2 * q]}, {T[2 * q + 1]}")
            for q in range(4):
                A(f"v_and_or_b32 {G[q]}, {G[q]}, {self.vMask}, {self.sTag}")
            self.G = getattr(self, "G", []) + [G]
            if e == 0:
                self.stamp("norm")
            if self.o["st_late"] and e == 0:
                continue
            A.wait_tag("poison")
            for ee in ((0, 1) if self.o["st_late"] else (e,)):
                A(f"global_store_dwordx4 {self.vS1o}, {self.G[ee]}, s[30:31] offset:{1024 * ee} sc1", tag="s1st")
        self.stamp("pub1")
        V.put(T, NM, RS, s1, s2, nm, rs, ad, self.vS1o)

    def s1_loads(self, A):
        A(f"global_load_dwordx4 {self.UG[0:4]}, {self.vS1i}, s[30:31] sc1")
        A(f"global_load_dwordx4 {self.UG[4:8]}, {self.vS1i2}, s[30:31] sc1")

    def maybe_s1(self, where):
        if self.o["s1_at"] == where:
            self.UG = self.V.get(8)
            if self.o["poison_at"] == "pub":
                A = self.A
                A(f"v_mov_b32 {self.UG[0]}, {self.sE}")
                A.wait_tag("poison")
                A(f"s_mov_b64 exec, 1\nglobal_store_dword {self.vFo}, {self.UG[0]}, s[30:31] sc1\ns_mov_b64 exec, -1")
                self.V.put(self.vFo)
            self.s1_loads(self.A)

    def kgen_steps(self):
        A, V = self.A, self.V
        P = self.PAR
        t0, t1, dt = V.get(), V.get(), V.get()
        self.vG16 = V.get()
        A(f"""
        s_and_b32 s3, {self.sCh}, 1
        s_xor_b32 s3, s3, 1
        s_lshl_b32 s3, s3, 4
        s_lshl_b32 {self.sDt}, {self.sDt}, s3
        s_and_b32 {self.sDt}, {self.sDt}, 0xffff0000
        v_mov_b32 {dt}, {LOG2E}
        v_mul_f32 {dt}, {self.sDt}, {dt}
        v_exp_f32 {dt}, {dt}
        s_cmp_eq_u32 {self.sH}, 0
        s_cselect_b32 s3, 16, 0
        """)
        self.rnd(A, dt, dt)
        A(f"""
        v_and_b32 {t0}, 0x7fff7fff, {P[2]}
        v_and_b32 {t1}, 0x7fff7fff, {P[3]}
        v_pk_max_u16 {t0}, {t0}, {t1}
        v_lshrrev_b32 {t1}, 16, {t0}
        v_and_b32 {t0}, 0xffff, {t0}
        v_max_u32 {t0}, {t0}, {t1}
        """)
        self.stamp("par")
        W = {p: V.get(2) for p in (1, 16, 256)}
        u0, u1 = V.get(), V.get()
        fill = [f"v_lshlrev_b32 {P[k]}, s3, {P[k]}" for k in range(4)]
        fill += [f"v_and_b32 {P[k]}, 0xffff0000, {P[k]}" for k in range(4)]
        fill += [f"v_mul_f32 {P[0]}, {LOG2E}, {P[0]}", f"v_exp_f32 {P[0]}, {P[0]}", f"v_mul_f32 {P[1]}, {P[1]}, {dt}",
                 f"v_cvt_pk_bf16_f32 {P[0]}, 0, {P[0]}", f"v_mul_f32 {P[1]}, {INV2PI}, {P[1]}", f"v_mul_f32 {P[0]}, {P[0]}, {dt}",
                 f"v_fract_f32 {u1}, {P[1]}", f"v_mul_f32 {P[0]}, {LOG2E | 0x80000000}, {P[0]}"]
        self.allreduce(A, "v_max_u32", [t0], 64, fill)
        A(f"v_exp_f32 {u0}, {P[0]}\nv_cos_f32 {W[1][0]}, {u1}\nv_sin_f32 {W[1][1]}, {u1}")
        A(f"""
        v_lshrrev_b32 {t0}, 7, {t0}
        v_mul_f32 {W[1][0]}, {W[1][0]}, {u0}
        v_mul_f32 {W[1][1]}, {W[1][1]}, {u0}
        v_max_u32 {t0}, 8, {t0}
        v_lshrrev_b32 {t1}, 23, {dt}
        v_add_u32 {t1}, {t1}, {t0}
        v_subrev_u32 {t1}, 127, {t1}
        v_max_i32 {t1}, 0, {t1}
        v_min_i32 {t1}, 254, {t1}
        v_lshlrev_b32 {self.vG16}, 23, {t1}
        v_sub_u32 {t0}, 259, {t0}
        v_and_b32 {dt}, 0x007fffff, {dt}
        v_lshl_or_b32 {dt}, {t0}, 23, {dt}
        """)
        L, M, Rr, T = V.get(2), V.get(2), V.get(2), V.get(2)
        for p, mul in ((16, 0x41800000), (256, 0x43800000)):
            w = W[p]
            A(f"v_mul_f32 {u0}, {mul}, {P[0]}\nv_mul_f32 {u1}, {mul}, {P[1]}")
            A(f"v_exp_f32 {u0}, {u0}\nv_fract_f32 {u1}, {u1}")
            A(f"v_cos_f32 {w[0]}, {u1}\nv_sin_f32 {w[1]}, {u1}")
            A(f"v_mul_f32 {L[p // 256]}, {P[2 + p // 256]}, {dt}")
            A(f"v_mul_f32 {w[0]}, {w[0]}, {u0}\nv_mul_f32 {w[1]}, {w[1]}, {u0}")
        V.put(u0, u1, t1, dt, P)
        self.stamp("ws")
        NB_ = self.o["recb"]
        pk = [V.get() for _ in range(2 * NB_)]
        cnt = [0]
        queue = []
        A(f"s_mov_b32 m0, {self.sStM}")

        def cmul(d, a, b):
            A(f"v_pk_mul_f32 {T}, {a}, {b} op_sel_hi:[0,1]")
            A(f"v_pk_fma_f32 {d}, {a}, {b}, {T} op_sel:[1,1,0] op_sel_hi:[1,0,1] neg_lo:[0,1,0]")

        if not self.o["addtid"]:
            vSt = V.get()
            A(f"v_lshl_add_u32 {vSt}, {self.vL}, 2, {self.sStM}")

        def flush_q():
            for row, r in queue:
                if self.o["addtid"]:
                    A(f"ds_write_addtid_b32 {r} offset:{32768 + row * ROWB}")
                else:
                    A(f"ds_write_b32 {vSt}, {r} offset:{32768 + row * ROWB}")
            queue.clear()

        def put(row, v, conj=False):
            r = pk[cnt[0] % (2 * NB_)]
            cnt[0] += 1
            A(f"v_cvt_pk_f16_f32 {r}, {v[0]}, {'-' if conj else ''}{v[1]}")
            queue.append((row, r))
            if len(queue) >= NB_:
                flush_q()

        Rf, S0, S1, FA = ([self.AC.get(4, 4) for _ in range(4)] for _ in range(4))
        D1, D2, D3 = V.get(4), V.get(4), V.get(4)

        def frags(regs, addr, row0):
            flush_q()
            for q in range(4):
                A(f"ds_read_b128 {regs[q]}, {addr} offset:{row0 * ROWB + 64 * q}")

        def product(D, a, b):
            for q in range(4):
                A(f"v_mfma_f32_16x16x32_f16 {D}, {a[q]}, {b[q]}, {D if q else 0}")

        A(f"v_mov_b32 {t0}, 0x3c00")
        queue.append((0, t0))
        yield
        put(1, W[16], conj=True)
        cmul(Rr, W[16], W[16])
        put(2, Rr, conj=True)
        for j in range(3, 16):
            yield
            cmul(Rr, Rr, W[16])
            put(j, Rr, conj=True)
        frags(Rf, self.vR, 0)
        self.stamp("recR")
        LE = {0: L}
        cur = L
        for al in range(17):
            yield
            if al:
                nxt = V.get(2) if al % 2 == 0 else M
                cmul(nxt, cur, W[1])
                cur = nxt
                if al % 2 == 0:
                    LE[al] = cur
            if al < 16:
                put(16 + al, cur)
        frags(S0, self.vS0, 16)
        self.maybe_s1("rec1")
        for al in range(0, 17, 2):
            yield
            cmul(LE[al], LE[al], W[256])
            put(32 + al // 2, LE[al])
        frags(S1, self.vS1r, 32)
        product(D1, S0, Rf)
        for a in range(2):
            for al in (4, 8, 12, 16):
                yield
                cmul(LE[al], LE[al], W[256])
                put(41 + 2 * (al // 4 - 1) + 1 - a, LE[al])
        K3 = V.get(4)
        flush_q()
        A(f"ds_write_b128 {self.vK1}, {D1} offset:512")
        product(D2, S1, Rf)
        for a in range(4):
            for al in (8, 16):
                yield
                cmul(LE[al], LE[al], W[256])
                put(49 + 4 * (al // 8 - 1) + 3 - a, LE[al])
        frags(FA, self.vR, 41)
        self.stamp("rec")
        self.maybe_s1("rec2")
        A(f"ds_write_b128 {self.vK1}, {D2}")
        A(f"v_cmp_gt_u32 vcc, 8, {self.vI}")
        product(D3, Rf, FA)
        self.maybe_s1("mfma")
        self.stamp("kmf0")
        A(f"v_cndmask_b32 {T[1]}, {D2[0]}, 0, vcc")
        for k in range(4):
            A(f"v_mov_b32 {K3[k]}, {D3[3 - k]}")
        A(f"v_cndmask_b32 {T[0]}, {D2[0]}, {D3[3]}, vcc")
        A(f"ds_write_b128 {self.vK3}, {K3}")
        A("s_mov_b32 exec_lo, 0\ns_mov_b32 exec_hi, 0x80400000")
        A(f"ds_write_b32 {self.vKs}, {T[0]} offset:12\nds_write2_b32 {self.vKs}, {T[1]}, {T[1]} offset0:1 offset1:2")
        A("s_mov_b32 exec_hi, 0x00400000")
        A(f"ds_write_b32 {self.vKs}, {T[0]} offset:{PPLANE}")
        A("s_mov_b64 exec, -1")
        A.barrier()
        V.put(M, Rr, T, *pk, *W.values(), t0, D1, D2, D3, K3, *LE.values(),
              self.vR, self.vS0, self.vS1r, self.vK1, self.vK3, self.vKs)
        self.AC.put(*Rf, *S0, *S1, *FA)

    def row_params(self):
        A, V = self.A, self.V
        t1, t2 = V.get(), V.get()
        self.vDk = V.get()
        A(f"""
        v_and_b32 {t1}, 0x1ff, {self.vHr}
        v_lshlrev_b32 {t2}, 2, v0
        global_load_dwordx4 {self.WR[0:4]}, {t1}, s[20:21]
        global_load_dwordx4 {self.WR[4:8]}, {t1}, s[20:21] offset:512
        global_load_dword {self.vDk}, {t2}, s[16:17]
        """)
        V.put(t1, t2)

    def kgen(self):
        A, V = self.A, self.V
        if self.o["poison_at"] == "pub":
            self.poison2()
        for item in self.p3_lines:
            A("\n".join(item) if isinstance(item, tuple) else item, tag="poison3" if isinstance(item, tuple) else None)
        self.row_params()
        for _ in self.ksteps:
            pass
        self.stamp("kmf")
        self.maybe_s1("shift")
        D, E = V.get(12), V.get(12)
        C = [V.get(4) for _ in range(4)]
        for k in range(3):
            off = L_P + (k & 1) * PPLANE + (k >> 1) * 16
            A(f"ds_read_b128 {D[4 * k:4 * k + 4]}, {self.vShiftR} offset:{off}")
            A(f"ds_read_b128 {E[4 * k:4 * k + 4]}, {self.vShiftR} offset:{off + PHALF}")
        for k in range(6):
            A(f"v_pk_add_f32 {D[2 * k:2 * k + 2]}, {D[2 * k:2 * k + 2]}, {E[2 * k:2 * k + 2]}")
        for c in range(4):
            for k in range(4):
                A(f"v_cvt_pk_f16_f32 {C[c][k]}, {D[c + 2 * k]}, {D[c + 2 * k + 1]}")
            if c % 2:
                for cc in (c - 1, c):
                    A(f"ds_write_b128 {self.vShift}, {C[cc]} offset:{L_K + cc * KCOPY}")
        if not self.o["frag_in"]:
            A.barrier()
        self.shift_regs = (D, E, *C, self.vShift, self.vShiftR)
        self.stamp("shift")
        self.maybe_s1("frag")
        AC = self.AC
        self.KN = [AC.get(4, 4) for _ in range(17)]
        self.KX = AC.get(4, 4)
        self.B2 = {(k, d): AC.get(4, 4) for k in range(2) for d in (2, 3, 4)}
        self.B3 = {d: AC.get(4, 4) for d in (4, 5, 6, 7)}
        rd = {}
        for q in range(17):
            rd[str(self.KN[q])] = [f"ds_read_b64 {self.KN[q][2 * hf:2 * hf + 2]}, {self.vN} offset:{64 * (16 - q) + 8 * hf}" for hf in range(2)]
        rd[str(self.KX)] = [f"ds_read_b64 {self.KX[2 * hf:2 * hf + 2]}, {self.vN} offset:{2 * NX + 8 * hf}" for hf in range(2)]
        for (k, d), r in self.B2.items():
            rd[str(r)] = [f"ds_read_b64 {r[2 * hf:2 * hf + 2]}, {self.vF} offset:{2 * (V2[2 * k + hf] + 32 - 16 * (d - 2))}" for hf in range(2)]
        for d, r in self.B3.items():
            rd[str(r)] = [f"ds_read_b64 {r[2 * hf:2 * hf + 2]}, {self.vF} offset:{2 * (V3[hf] + 48 - 16 * (d - 4))}" for hf in range(2)]
        self.frag_reads = {}
        if self.o["frag_in"]:
            self.frag_reads = rd
        else:
            for v in rd.values():
                A("\n".join(v))
        self.maybe_s1("end")
        self.stamp("frag")

    def s1_consume(self, A, sfx):
        V = self.V
        UG = self.UG
        t0, t1 = V.get(), V.get()

        def check(C):
            for k in range(8):
                C(f"v_xor_b32 {UG[k]}, {self.sTag}, {UG[k]}")
            C(f"v_or3_b32 {t0}, {UG[0]}, {UG[1]}, {UG[2]}\nv_or3_b32 {t1}, {UG[3]}, {UG[4]}, {UG[5]}")
            C(f"v_or3_b32 {t0}, {t0}, {UG[6]}, {UG[7]}\nv_or_b32 {t0}, {t0}, {t1}")
            C(f"v_and_b32 {t0}, {TAGMASK}, {t0}\nv_cmp_ne_u32 vcc, 0, {t0}")
        self.poll(A, "s1" + sfx, self.s1_loads, check)
        self.stamp("s1w", A)
        if self.o["warm_at"] == "s1w":
            for ln in self.warm_line:
                A(ln)
        A(f"ds_write_b128 {self.vUw}, {UG[0:4]} offset:{L_U + 512}")
        A(f"ds_write_b128 {self.vUw}, {UG[4:8]} offset:{L_U + 512 + 2048}")
        self.stamp("s1", A)
        if not self.o["early_br"]:
            A.barrier()
            self.stamp("b5", A)
        V.put(t0, t1, *self.shift_regs)

    def conv(self, A, tiles, dma):
        V, AC = self.V, self.AC
        acc = {j: V.get(4) for j in tiles}
        NF, NG, NW, NP = self.o["nf"], self.o["ng"], 6, 6
        PE, PD, NPRE = self.o["pe"], self.o["pd"], self.o["npre"]
        Fb = [AC.get(4, 4) for _ in range(NF)]
        Gb = [AC.get(4, 4) for _ in range(NG)]
        Wb = [V.get(4) for _ in range(NW)]
        Pb = [V.get(4) for _ in range(NP)]
        EY, EZ = V.get(4), V.get(2)
        qmax = {0: 7, 1: 15}
        b2 = sorted({j - d for j in tiles for d in (2, 3, 4) if j - d >= 0})
        b3 = sorted({j - d for j in tiles for d in (4, 5, 6, 7) if j - d >= 0})
        nlo = min(8 * j - qmax.get(j, 16) for j in tiles)
        nhi = 8 * max(tiles)
        near = []
        for fi, n in enumerate(range(nlo, nhi + 1)):
            for j in tiles:
                q = 8 * j - n
                if 0 <= q <= qmax.get(j, 16):
                    near.append((j, self.KN[q], fi, q == 0))
        far = []
        gfr, pcount = [], 0
        for b in sorted(set(b2) | set(b3)):
            ga, gb = len(gfr), len(gfr) + 1
            gfr += [256 * b - 16, 256 * b - 24]
            mains = []
            if b in b2:
                pa, pb = pcount, pcount + 1
                pcount += 2
                far += [("band", ga, (12, 1), pa, 0), ("band", ga, (8, 2), pa, 1), ("band", gb, (12, 1), pb, 0), ("band", gb, (8, 2), pb, 1)]
                mains += [("main", b + d, pa, self.B2[(0, d)]) for d in (2, 3, 4) if b + d in tiles]
                mains += [("main", b + d, pb, self.B2[(1, d)]) for d in (2, 3, 4) if b + d in tiles]
            if b in b3:
                pc = pcount
                pcount += 1
                far += [("band", ga, (8, 3), pc, 0), ("band", gb, (8, 4), pc, 1)]
                mains += [("main", b + d, pc, self.B3[d]) for d in (4, 5, 6, 7) if b + d in tiles]
            if b + 4 in tiles:
                far.append(("x", b + 4, ga))
            far += mains
        LAT = 5
        mf, fill = [], []
        started, done_at = set(), {}
        fuse, guse, plast, pready = {}, {}, {}, {}
        wcount = 0
        ni = 0
        farleft = list(far)
        span = self.o["far_span"][0 if 0 in tiles else 1]
        credit = 0.0

        def acc_mf(j, a, b):
            mf.append(f"v_mfma_f32_16x16x32_f16 {acc[j]}, {a}, {b}, {acc[j] if j in started else 0}")
            started.add(j)

        def far_ok(it):
            t = len(mf)
            if it[0] == "main":
                return pready.get(it[2], 10 ** 6) <= t
            if it[0] == "band":
                prev = it[3] - NP
                return prev < 0 or not any(o[0] == "main" and o[2] == prev for o in farleft)
            return True

        while ni < len(near) or farleft:
            t = len(mf)
            want_far = farleft and (credit >= 1.0 or ni >= len(near))
            if ni < len(near) and near[ni][3] and any(o[0] in ("main", "x") and o[1] == near[ni][0] for o in farleft):
                want_far = True
            pick = None
            if want_far:
                for it in farleft[:8]:
                    if far_ok(it):
                        if it[0] == "band" and any(o[0] == "band" for o in farleft[:farleft.index(it)]):
                            continue
                        pick = it
                        break
            if pick is None and ni < len(near) and not (near[ni][3] and any(o[0] in ("main", "x") and o[1] == near[ni][0] for o in farleft)):
                j, a, fi, last = near[ni]
                ni += 1
                acc_mf(j, a, Fb[fi % NF])
                fuse.setdefault(fi, [t, t])[1] = t
                if last:
                    done_at[j] = t
                credit += len(far) / span
                continue
            assert pick is not None, "conv schedule is stuck"
            farleft.remove(pick)
            credit -= 1.0
            if pick[0] == "band":
                _, g, key, p, hf = pick
                w = Wb[wcount % NW]
                wcount += 1
                mf.append(f"v_mfma_f32_16x16x32_f16 {w}, {Gb[g % NG]}, {self.BAND[key]}, 0")
                guse.setdefault(g, [t, t])[1] = t
                for k in range(2):
                    fill.append([t + 3, t + LAT - 1, f"v_cvt_pk_f16_f32 {Pb[p % NP][2 * hf + k]}, {w[2 * k]}, {w[2 * k + 1]}", None])
                if hf == 1:
                    pready[p] = t + LAT
            elif pick[0] == "x":
                acc_mf(pick[1], self.KX, Gb[pick[2] % NG])
                guse.setdefault(pick[2], [t, t])[1] = t
            else:
                acc_mf(pick[1], Pb[pick[2] % NP], pick[3])
        nm = len(mf)
        pre = []
        reads = []
        for fi in sorted(fuse):
            txt = f"ds_read_b128 {Fb[fi % NF]}, {self.vUf} offset:{512 + 2 * (32 * (nlo + fi) - 16)}"
            reads.append((fuse[fi][0], fuse[fi - NF][1] if fi >= NF else -1, txt))
        for g in sorted(guse):
            txt = f"ds_read_b128 {Gb[g % NG]}, {self.vUf} offset:{512 + 2 * gfr[g]}"
            reads.append((guse[g][0], guse[g - NG][1] if g >= NG else -1, txt))
        seen = set()
        for t, txt in enumerate(mf):
            for name, two in self.frag_reads.items():
                if name not in seen and f" {name}," in txt:
                    seen.add(name)
                    reads += [(t, -1, two[0]), (t, -1, two[1])]
        reads.sort(key=lambda r: r[0])
        for first, free, txt in reads:
            if free < 0 and first <= NPRE:
                pre.append(txt)
            else:
                assert free < first
                fill.append([max(free, first - PE, 0), max(free, first - PD, 0), txt, None])
        order_t = sorted(tiles, key=lambda j: done_at[j])
        for k, j in enumerate(order_t):
            t = done_at[j]
            nxt = done_at[order_t[k + 1]] if k + 1 < len(order_t) else nm + 100
            seq2 = [f"v_mul_f32 {EY[r]}, {acc[j][r]}, {self.vG16}" for r in range(4)]
            seq2 += [f"v_cvt_pk_bf16_f32 {EZ[r]}, {EY[2 * r]}, {EY[2 * r + 1]}" for r in range(2)]
            seq2.append(f"ds_write_b64 {self.vZw}, {EZ} offset:{L_Z + 1024 * j}")
            for txt in seq2:
                fill.append([t + 3, min(t + 11, nxt + 2), txt, f"e2_{j}"])
        for txt in pre:
            A(txt)
        for i, f in enumerate(fill):
            f.append(i)
        left = list(fill)
        bg = list(self.bg)
        A.prewait([mf[0]])
        for t in range(nm):
            A(mf[t])
            chosen = []
            for f in sorted([f for f in left if f[0] <= t], key=lambda f: (f[1], f[4])):
                if len(chosen) >= 2 and f[1] > t:
                    break
                if f[3] and any(g[3] == f[3] and g[4] < f[4] and g not in chosen for g in left):
                    continue
                mem = isinstance(f[2], tuple) or f[2].startswith("ds_")
                if mem and f[1] > t and any(g[3] == f[3] and f[3] for g in chosen):
                    continue
                chosen.append(f)
            memf = [f for f in chosen if (isinstance(f[2], tuple) or f[2].startswith("ds_")) and not any(g[3] == f[3] and f[3] and g[4] < f[4] for g in chosen)]
            rest = [f for f in chosen if f not in memf]
            A.prewait([f[2] for f in chosen if not isinstance(f[2], tuple)] + ([mf[t + 1]] if t + 1 < nm else []))
            ns, nv = 0, len(chosen)
            while bg and isinstance(bg[0], str) and bg[0].startswith("s_") and ns < 2 and t >= self.o["bg_from"]:
                A(bg.pop(0))
                ns += 1
            if bg and not memf and nv < 2 and (isinstance(bg[0], tuple) or bg[0].startswith("global_")):
                item = bg.pop(0)
                A("\n".join(item) if isinstance(item, tuple) else item, tag="poison3" if isinstance(item, tuple) else None)
                nv += 1
            for f in memf + rest:
                A(f[2])
                left.remove(f)
            while bg and nv < 2 and isinstance(bg[0], str) and bg[0].startswith("v_") and t >= self.o["bg_from"]:
                A(bg.pop(0))
                nv += 1
        self.bg_left = max(getattr(self, "bg_left", 0), len(bg))
        tail_bg = bg
        for item in tail_bg:
            A("\n".join(item) if isinstance(item, tuple) else item, tag="poison3" if isinstance(item, tuple) else None)
        for f in sorted(left, key=lambda f: (f[1], f[4])):
            A(f[2])
        self.nmfma = getattr(self, "nmfma", []) + [nm]
        V.put(*acc.values(), *Wb, *Pb, EY, EZ)
        AC.put(*Fb, *Gb)

    def dma_plan(self, A, role):
        V = self.V
        vL, sW = self.vL, self.sW
        t0, t1 = V.get(), V.get()
        self.vWa = V.get()
        if role == 0:
            A(f"""
            s_lshl_b32 {self.sWb}, {sW}, 13
            s_add_u32 {self.sWb}, {self.sWb}, {L_STAGE}
            s_lshl_b32 s3, {sW}, 7
            v_lshrrev_b32 {t0}, 2, {vL}
            v_add_u32 {t0}, s3, {t0}
            v_mul_u32_u24 {t0}, 3584, {t0}
            v_and_b32 {t1}, 3, {vL}
            v_lshl_add_u32 {t0}, {t1}, 4, {t0}
            s_lshl_b32 s3, {self.sBlk}, 6
            v_add_u32 {self.vWa}, s3, {t0}
            s_cmp_eq_u32 {self.sUp}, 0
            s_cselect_b32 s4, s22, s24
            s_cselect_b32 s5, s23, s25
            """)
            n, step = 8, 16 * 3584
        else:
            A(f"""
            s_mul_i32 {self.sWb}, {sW}, 14336
            s_add_u32 {self.sWb}, {self.sWb}, {L_STAGE}
            s_mul_i32 s3, {sW}, 448
            v_lshrrev_b32 {t0}, 1, {vL}
            v_add_u32 {t0}, s3, {t0}
            v_lshlrev_b32 {t0}, 10, {t0}
            v_and_b32 {t1}, 1, {vL}
            v_lshl_add_u32 {t0}, {t1}, 4, {t0}
            s_lshl_b32 s3, {self.sBlk}, 5
            v_add_u32 {self.vWa}, s3, {t0}
            s_mov_b64 s[4:5], s[26:27]
            """)
            n, step = 14, 0x8000
        V.put(t0, t1)
        return [(f"s_add_u32 m0, {self.sWb}, {m * 1024}" + (f"\ns_add_u32 s4, s4, {step}\ns_addc_u32 s5, s5, 0" if m else ""),
                 f"global_load_lds_dwordx4 {self.vWa}, s[4:5]") for m in range(n)]

    def conv_all(self):
        A = self.A
        nb = self.nwarm if self.o["warm_at"] == "pre" else 0
        for ln in self.bg[:nb]:
            A(ln)
        self.bg = self.bg[nb:]
        self.s1_consume(A, "")
        first, second = ([5, 6, 7], [0, 1, 2, 3, 4]) if self.o["b_first"] else ([0, 1, 2, 3, 4], [5, 6, 7])
        A(f"s_cmp_eq_u32 {self.sH}, {int(self.o['b_first'])}\ns_cbranch_scc0 L_conv_b")
        B = A.fork()
        if self.o["early_br"]:
            A.barrier()
            self.stamp("b5", A)
        self.conv(A, first, [])
        A.wait_tag("poison3")
        A.wait(lg=0)
        A.flush()
        A("s_branch L_conv_done")
        B.label("L_conv_b")
        if self.o["early_br"]:
            B.barrier()
            self.stamp("b5", B)
        self.conv(B, second, [])
        B.wait_tag("poison3")
        B.wait(lg=0)
        assert [t for _, t in A.vm] == [t for _, t in B.vm]
        B.flush()
        A.lines += B.lines
        A.count += B.count
        A.nops += B.nops
        A.label("L_conv_done")
        self.V.put(*self.bgtmp)
        self.V.put(*self.BAND.values(), self.vUf, self.vZw, self.vG16, self.UG, self.vUw,
                   self.vS1i, self.vS1i2, self.vN, self.vF)
        self.AC.put(*self.KN, self.KX, *self.B2.values(), *self.B3.values())
        self.stamp("conv", A)
        A("s_barrier")
        self.stamp("b6", A)
        self.ZT = ZT = self.V.get(8)
        A(f"ds_read_b128 {ZT[0:4]}, {self.vZr} offset:{L_Z}\nds_read_b128 {ZT[4:8]}, {self.vZr} offset:{L_Z + 4096}")
        A(f"global_store_dwordx4 {self.vS2o}, {ZT[0:4]}, s[30:31] sc1", tag="s2st")
        A(f"global_store_dwordx4 {self.vS2o2}, {ZT[4:8]}, s[30:31] sc1", tag="s2st")
        if self.o["poison_at"] == "pub":
            self.vFl = self.V.get()
            A(f"global_load_dword {self.vFl}, {self.vFi}, s[30:31] sc1")
        self.stamp("st2", A)
        self.V.put(self.vZr, self.vS2o, self.vS2o2)

    def poison_check(self, regs, t0):
        def chk(C):
            r = list(regs)
            if len(r) == 1:
                C(f"v_cmp_eq_u32 vcc, -1, {r[0]}")
                return
            C(f"v_max3_u32 {t0}, {r[0]}, {r[1]}, {r[2] if len(r) > 2 else r[1]}")
            r = r[3:]
            while r:
                C(f"v_max3_u32 {t0}, {t0}, {r[0]}, {r[1] if len(r) > 1 else r[0]}")
                r = r[2:]
            C(f"v_cmp_eq_u32 vcc, -1, {t0}")
        return chk

    def phase_c(self):
        A, V = self.A, self.V
        vL, vI, vG, sL, sW = self.vL, self.vI, self.vG, self.sL, self.sW
        get = V.get
        self.t = t0, t1, t2 = get(), get(), get()
        vSW, vKw, vS3o, vRo = get(), get(), get(), get()
        self.vS3i = get()
        vHr = self.vHr
        XL, XH, UD = get(8), get(8), get(16)
        for j in range(8):
            A(f"v_lshlrev_b32 {XL[j]}, 16, {self.XA[j]}")
            A(f"v_and_b32 {XH[j]}, 0xffff0000, {self.XA[j]}")
        A(f"v_lshlrev_b32 {t0}, 16, {self.vDk}\nv_and_b32 {t1}, 0xffff0000, {self.vDk}")
        A(f"v_mul_f32 {t0}, 0x41800000, {t0}\nv_mul_f32 {t1}, 0x41800000, {t1}")
        for e in range(2):
            G = self.G[e]
            for q in range(4):
                A(f"v_and_b32 {G[q]}, {G[q]}, {self.vMask}")
            for j in range(8):
                A(f"v_fma_mix_f32 {UD[8 * e + j]}, {G[j // 2]}, {(t0, t1)[e]}, 0 op_sel:[{j % 2},0,0] op_sel_hi:[1,0,0]")
            for j in range(8):
                self.rnd(A, UD[8 * e + j], UD[8 * e + j])
        V.put(*self.G, self.vMask, self.vDk)
        for k in range(8):
            A(f"v_dot2_f32_bf16 {vSW}, {self.WR[k]}, {self.sOnes}, {vSW if k else 0}")
        self.allreduce(A, "v_add_f32", [vSW], 32)
        A(f"""
        v_and_b32 {t0}, 31, v0
        v_lshlrev_b32 {t0}, 4, {t0}
        v_lshlrev_b32 {vKw}, 2, {self.vTau}
        s_lshl_b32 s3, {sW}, 13
        s_lshl_b32 s16, {sL}, 4
        s_add_u32 s3, s3, s16
        s_add_u32 s3, s3, {WS_S3}
        v_lshl_add_u32 {vS3o}, {vL}, 12, s3
        s_lshr_b32 s3, {sL}, 5
        s_lshl_b32 s3, s3, 12
        s_add_u32 s16, s3, {WS_S3}
        v_lshl_add_u32 {self.vS3i}, v0, 4, s16
        s_lshl_b32 s16, {sL}, 11
        s_add_u32 s16, s16, {WS_ROWS}
        v_add_u32 {vRo}, s16, {t0}
        s_lshl_b32 s3, {sL}, 3
        s_sub_u32 s3, 2047, s3
        v_sub_u32 {t2}, s3, {self.vTau}
        v_mov_b32 {t1}, 0
        """)
        if self.o["dma_ack2"] and self.o["dma_at"] != "none":
            A(f"s_cmp_eq_u32 {self.sRole}, 2\ns_cbranch_scc1 L_dma_done")
            A(f"s_cmp_eq_u32 {self.sRole}, 1\ns_cbranch_scc1 L_dma_r1")
            keep = list(A.vm)
            for role in (0, 1):
                if role:
                    A.label("L_dma_r1")
                plan = self.dma_plan(A, role)
                n = len(plan) if role == 0 else self.o["dma_ack2"]
                for a, b in plan[:n]:
                    A(a)
                    A(b, tag="dma")
                if role == 0:
                    A("s_branch L_dma_done")
                    V.put(self.vWa)
                else:
                    self.plan1 = plan[n:]
            A.label("L_dma_done")
        if self.o["dma0_ack2"] and self.o["dma_at"] != "none":
            A(f"s_cmp_eq_u32 {self.sRole}, 0\ns_cbranch_scc0 L_dma0_done")
            for a, b in self.dma_plan(A, 0):
                A(a)
                A(b, tag="dma")
            V.put(self.vWa)
            A.label("L_dma0_done")
        early = self.o["dma_s2"] and self.o["dma_at"] != "none"
        if early:
            A(f"s_cmp_eq_u32 {self.sRole}, 1\ns_cbranch_scc1 L_plan1")
            p0 = self.dma_plan(A, 0)
            keep = self.vWa
            A("s_branch L_plan_done")
            A.label("L_plan1")
            V.put(keep)
            p1 = self.dma_plan(A, 1)
            assert str(keep) == str(self.vWa)
            A.label("L_plan_done")
        self.stamp("dma", A)
        A.wait(vm=0)
        if self.o["poison_at"] == "pub":
            self.poll(A, "flg", lambda C: C(f"global_load_dword {self.vFl}, {self.vFi}, s[30:31] sc1"),
                      lambda C: C(f"v_cmp_ne_u32 vcc, {self.sE}, {self.vFl}"))
            V.put(self.vFl, self.vFi)
        self.stamp("ack2", A)
        ZT = self.ZT

        def s2_loads(C):
            C(f"global_load_dwordx4 {ZT[0:4]}, {self.vS2i}, s[30:31] sc1")
            C(f"global_load_dwordx4 {ZT[4:8]}, {self.vS2i2}, s[30:31] sc1")
        s2_loads(A)
        self.poll(A, "s2", s2_loads, self.poison_check([ZT[k] for k in range(8)], t0))
        self.stamp("s2", A)
        if early:
            n1 = self.o["dma_s2"] - 1
            A(f"s_cmp_eq_u32 {self.sRole}, 0\ns_cbranch_scc0 L_dma_n0")
            for a, b in p0:
                A(a)
                A(b)
            A.label("L_dma_n0")
            if n1:
                A(f"s_cmp_eq_u32 {self.sRole}, 1\ns_cbranch_scc0 L_dma_n1")
                for a, b in p1[:n1]:
                    A(a)
                    A(b)
                A.label("L_dma_n1")
            A.vm = []
            self.plan1 = p1[n1:]
        HP = get(8)
        self.T = T = get(8)
        for grp in range(2):
            for jj in range(4):
                j = 4 * grp + jj
                sel = self.sHi if j % 2 else self.sLo
                A(f"v_dot2_f32_bf16 {T[jj]}, {ZT[j // 2]}, {sel}, {UD[j]}")
                A(f"v_dot2_f32_bf16 {T[4 + jj]}, {ZT[4 + j // 2]}, {sel}, {UD[8 + j]}")
            for k in range(8):
                self.rnd(A, T[k], T[k])
            for q in range(2):
                j = 4 * grp + 2 * q
                A(f"v_pk_add_f32 {T[2 * q:2 * q + 2]}, {T[2 * q:2 * q + 2]}, {XL[j:j + 2]}")
                A(f"v_pk_add_f32 {T[4 + 2 * q:6 + 2 * q]}, {T[4 + 2 * q:6 + 2 * q]}, {XH[j:j + 2]}")
            for jj in range(4):
                A(f"v_cvt_pk_bf16_f32 {HP[4 * grp + jj]}, {T[jj]}, {T[4 + jj]}")
            for q in range(2):
                j = 4 * grp + 2 * q
                A(f"ds_write2st64_b32 {self.vHw2}, {HP[j]}, {HP[j + 1]} offset0:{4 * j} offset1:{4 * j + 4}")
        self.stamp("hw", A)
        A.barrier()
        self.stamp("b7", A)
        V.put(XL, XH, UD, HP, ZT, self.vS2i, self.vS2i2, self.XA)
        HB = get(8)
        A(f"ds_read_b128 {HB[0:4]}, {vHr} offset:{L_H}\nds_read_b128 {HB[4:8]}, {vHr} offset:{L_H + 512}")
        s1, s2, s3, NM, RS = get(), get(), get(), get(2), get(2)
        self.key = key = get()
        for k in range(8):
            A(f"v_dot2_f32_bf16 {s1}, {HB[k]}, {self.sOnes}, {s1 if k else 0}")
            A(f"v_dot2_f32_bf16 {s2}, {HB[k]}, {HB[k]}, {s2 if k else 0}")
            A(f"v_dot2_f32_bf16 {s3}, {HB[k]}, {self.WR[k]}, {s3 if k else 0}")
        self.allreduce(A, "v_add_f32", [s1, s2, s3], 32)
        self.ln_stats(A, s1, s2, NM[0], RS[0])
        A(f"v_fma_f32 {s3}, {NM[0]}, {vSW}, {s3}\nv_mul_f32 {s3}, {s3}, {RS[0]}")
        self.rnd(A, s3, s3)
        A(f"""
        v_ashrrev_i32 {t0}, 31, {s3}
        v_or_b32 {t0}, 0x80000000, {t0}
        v_xor_b32 {t0}, {s3}, {t0}
        v_and_b32 {t0}, 0xffff0000, {t0}
        v_or_b32 {key}, {t0}, {t2}
        s_mov_b64 exec, 1
        s_bitset1_b64 exec, 32
        ds_write_b32 {vKw}, {key} offset:{L_KEY}
        s_mov_b64 exec, -1
        """)
        self.stamp("key", A)
        H32 = get(16)
        for k in range(8):
            A(f"v_lshlrev_b32 {H32[2 * k]}, 16, {HB[k]}\nv_and_b32 {H32[2 * k + 1]}, 0xffff0000, {HB[k]}")
        A.barrier()
        self.kmax = kmax = get()
        A(f"ds_read_b128 {T[0:4]}, {t1} offset:{L_KEY}\nds_read_b128 {T[4:8]}, {t1} offset:{L_KEY + 16}")
        HN = get(8)
        self.D = D = get(32)
        A(f"v_mov_b32 {NM[1]}, {NM[0]}\nv_mov_b32 {RS[1]}, {RS[0]}")
        for k in range(8):
            A(f"v_pk_add_f32 {D[2 * k:2 * k + 2]}, {H32[2 * k:2 * k + 2]}, {NM}")
        A(f"v_max3_u32 {kmax}, {T[0]}, {T[1]}, {T[2]}\nv_max3_u32 {t0}, {T[3]}, {T[4]}, {T[5]}")
        A(f"v_max3_u32 {kmax}, {kmax}, {T[6]}, {T[7]}\nv_max_u32 {kmax}, {kmax}, {t0}")
        A("s_mov_b64 exec, 3")
        A(f"global_store_dword {vS3o}, {kmax}, s[30:31] sc1", tag="s3st")
        A("s_mov_b64 exec, -1")
        self.stamp("pub3", A)
        sC = self.sC
        A(f"v_cmp_eq_u32 {sC}, {key}, {kmax}")
        for k in range(16):
            self.rnd(A, D[k], D[k])
        for k in range(8):
            A(f"v_pk_mul_f32 {D[2 * k:2 * k + 2]}, {D[2 * k:2 * k + 2]}, {RS}")
        for k in range(8):
            A(f"v_cvt_pk_bf16_f32 {HN[k]}, {D[2 * k]}, {D[2 * k + 1]}")
        A(f"s_mov_b64 exec, {sC}")
        A(f"global_store_dwordx4 {vRo}, {HN[0:4]}, s[30:31] sc1", tag="rowst")
        A(f"global_store_dwordx4 {vRo}, {HN[4:8]}, s[30:31] offset:512 sc1", tag="rowst")
        A(f"global_store_dwordx4 {vRo}, {HB[0:4]}, s[30:31] offset:1024 sc1", tag="rowst")
        A(f"global_store_dwordx4 {vRo}, {HB[4:8]}, s[30:31] offset:1536 sc1", tag="rowst")
        A("s_mov_b64 exec, -1")
        self.stamp("hn", A)
        self.O = O = get(8)
        for k in range(8):
            A(f"v_dot2_f32_bf16 {D[2 * k]}, {HN[k]}, {self.sLo}, {H32[2 * k]}")
            A(f"v_dot2_f32_bf16 {D[2 * k + 1]}, {HN[k]}, {self.sHi}, {H32[2 * k + 1]}")
        for k in range(8):
            A(f"v_cvt_pk_bf16_f32 {O[k]}, {D[2 * k]}, {D[2 * k + 1]}")
        self.stamp("outc", A)
        V.put(H32, s1, s2, s3, NM, RS, vSW, vKw, vS3o, vRo, self.WR)

    def out_stores(self, C):
        pol = self.o["out_pol"]
        C(f"global_store_dwordx4 {self.vRow}, {self.O[0:4]}, s[28:29] {pol}", tag="out")
        C(f"global_store_dwordx4 {self.vRow}, {self.O[4:8]}, s[28:29] offset:512 {pol}", tag="out")

    def resolve(self, A, sfx, between=None):
        t0, t1, t2 = self.t
        T, kin = self.T, self.kin

        def s3_loads(C):
            C(f"global_load_dword {kin}, {self.vS3i}, s[30:31] sc1")
        s3_loads(A)
        if between:
            between()
        A(f"v_lshrrev_b32 {t1}, 4, v0\nv_and_b32 {t1}, 12, {t1}\nv_mov_b32 {t2}, 0")
        self.poll(A, "s3" + sfx, s3_loads, self.poison_check([kin], t0))
        self.stamp("s3p", A)
        self.allreduce(A, "v_max_u32", [kin], 64)
        self.stamp("s3w", A)
        A(f"s_mov_b64 exec, 1\nds_write_b32 {t1}, {kin} offset:{L_KEY2}\ns_mov_b64 exec, -1")
        A.barrier()
        A(f"ds_read_b128 {T[0:4]}, {t2} offset:{L_KEY2}")
        A(f"v_max3_u32 {kin}, {T[0]}, {T[1]}, {T[2]}\nv_max_u32 {kin}, {kin}, {T[3]}")
        A(f"v_readfirstlane_b32 {self.sK}, {kin}")
        A(f"s_and_b32 {self.sT}, {self.sK}, 0x7ff\ns_sub_u32 {self.sT}, 2047, {self.sT}")
        self.stamp("s3", A)
        A(f"s_lshr_b32 s3, {self.sT}, 3\ns_lshl_b32 s3, s3, 11\ns_add_u32 s3, s3, {WS_ROWS}")

    def finish(self, A, sfx):
        A.flush()
        A.label(f"L_fin_{sfx}")
        if self.o["stamps"]:
            A.wait(vm=0)
            self.stamp("end", A)
            if self.o["clk"]:
                A("s_memtime s[96:97]")
                A.wait(lg=0)
                A("s_sub_u32 s100, s96, s100\ns_mov_b32 s101, 0")
            A("s_waitcnt vmcnt(0) lgkmcnt(0)")
            self.dump_stamps(A)
        A("s_endpgm")

    def tail0(self, A):
        V = self.V
        get = V.get
        vL, vI, vG, sL, sW, sC = self.vL, self.vI, self.vG, self.sL, self.sW, self.sC
        t0, t1, t2 = self.t
        T, D = self.T, self.D
        vTr, vRed, vXs, vPub, vRd = get(), get(), get(), get(), get()
        WT = [self.AC.get(4, 4) for _ in range(8)]
        plan = [] if self.o["dma_ack2"] or self.o["dma0_ack2"] or self.o["dma_s2"] else self.dma_plan(A, 0)
        if self.o["dma_at"] == "none":
            plan = []

        def dma():
            for a, b in plan:
                A(a)
                A(b, tag="dma")
        if not self.o["r0_late"]:
            dma()
        A(f"""
        v_and_b32 {t0}, 3, {vI}
        v_lshlrev_b32 {t0}, 3, {t0}
        v_lshrrev_b32 {t1}, 2, {vI}
        v_lshl_add_u32 {t1}, {vG}, 3, {t1}
        v_lshl_add_u32 {t0}, {t1}, 6, {t0}
        v_add_u32 {vTr}, {self.sWb}, {t0}
        """)

        def tr_reads():
            A.wait_tag("dma")
            for ct in range(2):
                for m in range(4):
                    for e2 in range(2):
                        A(f"ds_read_b64_tr_b16 {WT[4 * ct + m][2 * e2:2 * e2 + 2]}, {vTr} offset:{(32 * m + 4 * e2) * 64 + 32 * ct}")
        A(f"""
        s_lshl_b32 s3, {sW}, 2
        v_lshl_add_u32 {vRed}, {vI}, 4, s3
        v_and_b32 {t0}, 3, {vI}
        v_lshlrev_b32 {t0}, 6, {t0}
        v_lshl_add_u32 {t0}, {vG}, 4, {t0}
        s_lshl_b32 s3, {sW}, 8
        v_add_u32 {vXs}, s3, {t0}
        v_and_b32 {t0}, 31, {vL}
        v_lshlrev_b32 {vRd}, 4, {t0}
        v_lshrrev_b32 {t1}, 5, {vL}
        v_lshlrev_b32 {t1}, 13, {t1}
        v_lshl_add_u32 {t1}, {t0}, 1, {t1}
        s_lshl_b32 s3, {sW}, 14
        s_lshl_b32 s16, {self.sUp}, 12
        s_add_u32 s3, s3, s16
        s_lshl_b32 s16, {self.sBlk}, 6
        s_add_u32 s3, s3, s16
        s_add_u32 s3, s3, {WS_S4}
        v_add_u32 {vPub}, s3, {t1}
        """)
        A.wait_tag("s3st")
        self.stamp("ack3", A)

        late_out = self.o["r0_late"] == 2

        def between():
            if self.o["r0_late"]:
                dma()
            if not late_out:
                A(f"s_andn2_b64 exec, -1, {sC}")
                self.out_stores(A)
                A("s_mov_b64 exec, -1")
            if not self.o["r0_late"]:
                tr_reads()
        self.resolve(A, "r0", between)
        XS = get(4)
        A(f"v_add_u32 {vXs}, s3, {vXs}")

        def row_loads(C):
            C(f"global_load_dwordx4 {XS}, {vXs}, s[30:31] sc1")
        row_loads(A)
        if late_out:
            A(f"v_cmp_ne_u32 {sC}, {self.kin}, {self.key}")
        else:
            A(f"v_cmp_ne_u32 vcc, {self.kin}, {self.kmax}\ns_and_b64 exec, vcc, {sC}")
            self.out_stores(A)
            A("s_mov_b64 exec, -1")
        if self.o["r0_late"]:
            tr_reads()
        self.poll(A, "rowr0", row_loads, self.poison_check([XS[k] for k in range(4)], t0))
        self.stamp("row", A)
        for k in range(8):
            A(f"v_mfma_f32_16x16x32_bf16 {D[4 * k:4 * k + 4]}, {XS}, {WT[k]}, 0")
        A(f"s_cmp_eq_u32 {self.sUp}, 0\ns_cselect_b64 s[16:17], -1, 0")
        A(f"""
        v_add_f32 {t0}, {D[0]}, {D[5]}
        v_add_f32 {t1}, {D[10]}, {D[15]}
        v_add_f32 {t0}, {t0}, {t1}
        v_add_f32 {t1}, {D[16]}, {D[21]}
        v_add_f32 {t2}, {D[26]}, {D[31]}
        v_add_f32 {t1}, {t1}, {t2}
        s_mov_b64 exec, 0xffff
        ds_write_b32 {vRed}, {t0} offset:{L_RED}
        ds_write_b32 {vRed}, {t1} offset:{L_RED + 256}
        s_mov_b64 exec, -1
        """)
        self.stamp("g1m", A)
        A.barrier()
        self.stamp("g1b", A)
        A(f"ds_read_b128 {T[0:4]}, {vRd} offset:{L_RED}")
        A(f"v_pk_add_f32 {T[0:2]}, {T[0:2]}, {T[2:4]}\nv_add_f32 {T[0]}, {T[0]}, {T[1]}")
        self.rnd(A, T[0], T[0])
        A(f"v_mul_f32 {t0}, {LOG2E | 0x80000000}, {T[0]}\nv_exp_f32 {t0}, {t0}\nv_add_f32 {t0}, 1.0, {t0}")
        A(f"v_rcp_f32 {t0}, {t0}\nv_mul_f32 {t0}, {T[0]}, {t0}")
        A(f"v_cndmask_b32 {t0}, {T[0]}, {t0}, s[16:17]")
        A(f"v_mov_b32_dpp {t1}, {t0} row_shl:1 row_mask:0xf bank_mask:0xf")
        A(f"v_cvt_pk_bf16_f32 {XS[0]}, {t0}, {t1}")
        for k in range(1, 4):
            A(f"v_mov_b32_dpp {XS[k]}, {XS[0]} row_shl:{2 * k} row_mask:0xf bank_mask:0xf")
        A("s_mov_b32 exec_lo, 0x01010101\ns_mov_b32 exec_hi, 0x01010101")
        A(f"global_store_dwordx4 {vPub}, {XS}, s[30:31] sc1")
        self.stamp("g1", A)
        if late_out:
            A(f"s_mov_b64 exec, {sC}")
            self.out_stores(A)
        self.finish(A, "r0")

    def tail2(self, A):
        A.wait_tag("s3st")
        self.stamp("ack3", A)

        def between():
            A(f"s_andn2_b64 exec, -1, {self.sC}")
            self.out_stores(A)
            A("s_mov_b64 exec, -1")
        if self.o["r2_late"]:
            self.resolve(A, "r2")
            A(f"v_cmp_ne_u32 vcc, {self.kin}, {self.key}\ns_mov_b64 exec, vcc")
        else:
            self.resolve(A, "r2", between)
            A(f"v_cmp_ne_u32 vcc, {self.kin}, {self.kmax}\ns_and_b64 exec, vcc, {self.sC}")
        self.out_stores(A)
        self.finish(A, "r2")

    def tail1(self, A):
        V = self.V
        get = V.get
        vL, vI, vG, sL, sW, sC = self.vL, self.vI, self.vG, self.sL, self.sW, self.sC
        t0, t1, t2 = self.t
        T, D = self.T, self.D
        plan = self.plan1 if self.o["dma_ack2"] or self.o["dma_s2"] else self.dma_plan(A, 1)
        if self.o["dma_at"] == "none":
            plan = []
        n1 = self.o["r1_split"]
        for a, b in plan[:n1]:
            A(a)
            A(b, tag="dma")
        A.wait_tag("s3st")
        self.stamp("ack3", A)

        def between():
            for a, b in plan[n1:]:
                A(a)
                A(b, tag="dma")
        self.resolve(A, "r1", between)
        vTr, vRed, vSig, vOut, vS4i = get(), get(), get(), get(), get()
        HH = get(2)
        A(f"""
        s_lshl_b32 s16, {self.sBlk}, 5
        s_add_u32 s3, s3, s16
        v_lshrrev_b32 {t1}, 1, {vI}
        v_lshl_add_u32 {t1}, {t1}, 2, s3
        """)

        def row_loads(C):
            C(f"global_load_dword {HH[0]}, {t1}, s[30:31] sc1")
            C(f"global_load_dword {HH[1]}, {t1}, s[30:31] offset:1024 sc1")
        row_loads(A)

        def own_rows():
            A(f"v_cmp_eq_u32 vcc, {self.kin}, {self.key}\ns_andn2_b64 exec, -1, vcc")
            self.out_stores(A)
            A("s_mov_b64 exec, -1")
        if self.o["r1_out"] == "row":
            own_rows()
        A(f"""
        v_and_b32 {t0}, 3, {vI}
        v_lshlrev_b32 {t0}, 3, {t0}
        v_lshrrev_b32 {t2}, 2, {vI}
        v_lshl_add_u32 {t2}, {vG}, 3, {t2}
        v_lshl_add_u32 {t0}, {t2}, 5, {t0}
        v_add_u32 {vTr}, {self.sWb}, {t0}
        """)
        self.poll(A, "rowr1", row_loads, self.poison_check([HH[0], HH[1]], t0))
        self.stamp("row", A)
        WT = [self.AC.get(4, 4) for _ in range(14)]
        A.wait_tag("dma")
        if self.o["r1_out"] == "tr":
            own_rows()
        self.stamp("r1o", A)
        for m in range(14):
            for e2 in range(2):
                A(f"ds_read_b64_tr_b16 {WT[m][2 * e2:2 * e2 + 2]}, {vTr} offset:{(32 * m + 4 * e2) * 32}")
        self.stamp("r1t", A)
        sK, sT = self.sK, self.sT
        A(f"""
        s_and_b32 s16, {sK}, 0x7fff0000
        s_andn2_b32 s17, 0xffff0000, {sK}
        s_bitcmp1_b32 {sK}, 31
        s_cselect_b32 s16, s16, s17
        v_mov_b32 {t0}, s16
        v_mul_f32 {t0}, {LOG2E | 0x80000000}, {t0}
        v_exp_f32 {t0}, {t0}
        v_add_f32 {t0}, 1.0, {t0}
        v_rcp_f32 {t0}, {t0}
        """)
        self.rnd(A, vSig, t0)
        vS4u = get()
        A(f"""
        v_and_b32 {t0}, 1, {vI}
        v_xor_b32 {t0}, 1, {t0}
        v_lshlrev_b32 {t0}, 4, {t0}
        v_lshlrev_b32 {HH[0]}, {t0}, {HH[0]}
        v_lshlrev_b32 {HH[1]}, {t0}, {HH[1]}
        v_and_b32 {HH[0]}, 0xffff0000, {HH[0]}
        v_and_b32 {HH[1]}, 0xffff0000, {HH[1]}
        s_lshl_b32 s3, {sT}, 10
        s_lshl_b32 s16, {self.sBlk}, 5
        s_add_u32 s3, s3, s16
        v_lshl_add_u32 {vOut}, {vI}, 1, s3
        s_lshr_b32 s3, {sL}, 5
        s_lshl_b32 s3, s3, 13
        s_mul_i32 s16, {sW}, {56 * 16}
        s_add_u32 s3, s3, s16
        s_add_u32 s3, s3, {WS_S4}
        v_min_u32 {t0}, 13, {vI}
        v_lshl_add_u32 {t0}, {t0}, 2, {vG}
        v_lshl_add_u32 {vS4i}, {t0}, 4, s3
        v_add_u32 {vS4u}, 0x1000, {vS4i}
        s_lshl_b32 s3, {sW}, 2
        v_lshl_add_u32 {vRed}, {vI}, 4, s3
        v_mov_b32 {t2}, 0
        v_lshlrev_b32 {t1}, 4, {vI}
        """)
        if self.o["r1_out"] == "late":
            own_rows()
        A.wait(vm=0)
        self.stamp("r1a", A)
        GU, XS = get(8), get(4)

        def s4_loads(C):
            C(f"global_load_dwordx4 {GU[0:4]}, {vS4i}, s[30:31] sc1")
            C(f"global_load_dwordx4 {GU[4:8]}, {vS4u}, s[30:31] sc1")
        s4_loads(A)
        self.poll(A, "s4", s4_loads, self.poison_check([GU[k] for k in range(8)], t0))
        self.stamp("g1", A)
        for k in range(4):
            A(f"v_and_b32 {T[2 * k]}, 0xffff, {GU[k]}\nv_and_b32 {T[2 * k + 1]}, 0xffff0000, {GU[k]}")
        for k in range(8):
            A(f"v_dot2_f32_bf16 {T[k]}, {T[k]}, {GU[4 + k // 2]}, 0")
        for k in range(4):
            A(f"v_cvt_pk_bf16_f32 {XS[k]}, {T[2 * k]}, {T[2 * k + 1]}")
        DD = [D[4 * k:4 * k + 4] for k in range(8)]
        acc = [t2, get()]
        A(f"v_mov_b32 {acc[1]}, 0")
        for m in range(14 + 4):
            if m < 14:
                A(f"v_mfma_f32_16x16x32_bf16 {DD[m % 8]}, {XS}, {WT[m]}, 0")
            k = m - 4
            if k >= 0:
                a = acc[k % 2]
                A(f"v_add_f32_dpp {a}, {DD[k % 8][k % 4]}, {a} quad_perm:[0,1,2,3] row_mask:{1 << (k // 4)} bank_mask:0xf")
        A(f"v_add_f32 {t2}, {t2}, {acc[1]}")
        for sw in ("v_permlane16_swap_b32", "v_permlane32_swap_b32"):
            A(f"v_mov_b32 {t0}, {t2}\n{sw} {t2}, {t0}\nv_add_f32 {t2}, {t2}, {t0}")
        A(f"s_mov_b64 exec, 0xffff\nds_write_b32 {vRed}, {t2} offset:{L_RED}\ns_mov_b64 exec, -1")
        self.stamp("g2m", A)
        if self.o["r1_out"] == "end":
            own_rows()
        A.barrier()
        A(f"s_cmp_eq_u32 {sW}, 0\ns_cbranch_scc0 L_fin_r1")
        A(f"ds_read_b128 {T[0:4]}, {t1} offset:{L_RED}")
        A(f"v_pk_add_f32 {T[0:2]}, {T[0:2]}, {T[2:4]}\nv_add_f32 {t0}, {T[0]}, {T[1]}")
        self.rnd(A, t0, t0)
        A(f"v_mul_f32 {t0}, {t0}, {vSig}")
        self.rnd(A, t0, t0)
        A(f"v_add_f32 {t0}, {t0}, {HH[0]}")
        self.rnd(A, t0, t0)
        A(f"v_add_f32 {t0}, {t0}, {HH[1]}")
        self.rnd(A, t0, t0)
        A("s_mov_b64 exec, 0xffff")
        A(f"global_store_short_d16_hi {vOut}, {t0}, s[28:29] {self.o['fin_pol']}")
        self.stamp("g2", A)
        A(f"s_cmp_eq_u32 {self.sBlk}, 0\ns_cbranch_scc0 L_fin_r1")
        A("s_mov_b64 exec, 1")
        A(f"v_mov_b32 {t0}, {self.sE}\nv_mov_b32 {t2}, 0")
        A(f"global_store_dword {t2}, {t0}, s[30:31] offset:{WS_EPOCH} {self.o['fin_pol']}")
        self.finish(A, "r1")

    def build(self):
        A = self.A
        self.prologue()
        self.ksteps = self.kgen_steps()
        for _ in range(self.o["kpre"]):
            next(self.ksteps)
        if self.o["poison_at"] == "kpre":
            self.poison2()
        self.ln1()
        self.kgen()
        self.sWb, self.sC, self.sK, self.sT = self.S.get(), self.S.get(2), self.S.get(), self.S.get()
        self.conv_all()
        self.phase_c()
        self.kin = self.V.get()
        A(f"s_cmp_eq_u32 {self.sRole}, 1\ns_cbranch_scc1 L_role1")
        B = A.fork()
        B.label("L_role1")
        A(f"s_cmp_eq_u32 {self.sRole}, 2\ns_cbranch_scc1 L_role2")
        C = A.fork()
        C.label("L_role2")
        vfree, afree = set(self.V.free), set(self.AC.free)
        self.tail0(A)
        self.V.free, self.AC.free = set(vfree), set(afree)
        self.tail1(B)
        self.V.free, self.AC.free = set(vfree), set(afree)
        self.tail2(C)
        B.lines += C.lines
        B.count += C.count
        body = A.text() + B.text() + "".join(c.text() for c in self.cold)
        nv = self.V.top + 1
        accum = (nv + 3) // 4 * 4
        total = max(accum + self.AC.top + 1, 264)
        head = open(f"cdna_kernels/{NAME}.s.ref").read().split("; Override launch geometry")[0]
        self.stats = dict(instr=A.count + B.count, nops=A.nops + B.nops, vgpr=nv, agpr=self.AC.top + 1, mfma=self.nmfma, bg_left=self.bg_left)
        tab = ""
        if self.o["band_tab"]:
            tab = f".p2align 7\n.type L_tab,@object\nL_tab:\n{band_table()}\n.size L_tab, 4096\n"
        return head + f"""; One persistent launch: 256 workgroups, one per CU, exchanging data through d_ws.
; @launch grid=(256,1,1) block=(256,1,1) lds={LDS_BYTES}
.amdgcn_target "amdgcn-amd-amdhsa--gfx950"
.text
.globl {NAME}_kernel
.p2align 8
.type {NAME}_kernel,@function
{NAME}_kernel:
{body}L_end:
    s_endpgm
L_code_end:
{tab}L_all_end:
.section .rodata,"a"
.p2align 6
.amdhsa_kernel {NAME}_kernel
  .amdhsa_next_free_vgpr {total}
  .amdhsa_next_free_sgpr 102
  .amdhsa_accum_offset {accum}
  .amdhsa_group_segment_fixed_size 0
  .amdhsa_kernarg_size 120
  .amdhsa_user_sgpr_count 2
  .amdhsa_user_sgpr_kernarg_segment_ptr 1
  .amdhsa_system_sgpr_workgroup_id_x 1
  .amdhsa_float_denorm_mode_32 3
.end_amdhsa_kernel
"""


def generate(path, **opt):
    g = Gen(**opt)
    text = g.build()
    open(path, "w").write(text)
    return g.stats


if __name__ == "__main__":
    out = sys.argv[1] if len(sys.argv) > 1 else f"cdna_kernels/{NAME}.s"
    opts = {}
    for a in sys.argv[2:]:
        k, v = a.split("=")
        opts[k] = {"True": True, "False": False}.get(v, int(v) if v.isdigit() else v)
    print(generate(out, **opts))
```

```python
import sys
from asmdsl import Asm, Pool, R

NAME = "sequential_preLN__ssm_conv_s4d__moe_arch_mod__prompt"

WS_EPOCH = 0
WS_FLG = 0x4000
WS_S3 = 0x8000
WS_S4 = 0x10000
WS_ROWS = 0x20000
WS_S1 = 0x100000
WS_S2 = 0x300000
WS_STAMP = 0x600000

ROWB = 544
STAGE_CH = 57 * ROWB
L_K = 0
KCOPY = 2112
KCH = 4 * KCOPY
L_U = L_K + 2 * KCH
UCH = 4672
L_Z = 26368
L_H = L_Z + 8192
L_ST = L_H + 8192
L_KEY = L_ST + 64
L_KEY2 = L_KEY + 32
L_RED = L_KEY2 + 32
L_P = 43520
PPLANE = 2048 + 32
PHALF = 2 * PPLANE
L_STAGE = 60416
LDS_BYTES = L_STAGE + 2 * STAGE_CH
assert L_U + UCH + 4608 <= L_Z and L_RED + 512 <= L_P and L_P + 4 * PHALF <= L_STAGE and L_STAGE % 256 == 0

NX = 560
FAR = 608
V2 = [FAR + 48 * s for s in range(4)]
V3 = [FAR + 16 * 13 + 80 * s for s in range(2)]
TAGMASK = 0x40074007
LOG2E = 0x3FB8AA3B
INV2PI = 0x3E22F983
SPIN_MAX = 1 << 14

BANDS = ((12, 1), (8, 2), (8, 3), (8, 4))


def band_table():
    out = []
    for delta, h in BANDS:
        for lane in range(64):
            phi, g = lane & 15, lane >> 4
            bits = [0x3C00 if abs(8 * g + e - phi - delta) <= h else 0 for e in range(8)]
            out.append(".long " + ", ".join(hex(bits[2 * d] | bits[2 * d + 1] << 16) for d in range(4)))
    return "\n".join(out)


STAMP_SETS = {
    True: ["start", "karg", "x", "pub1", "rec", "kmf", "frag", "s1", "conv", "ack2", "s2", "pub3", "ack3", "s3", "row", "g1", "g2", "end"],
    "z": ["start"] + [f"unused{i}" for i in range(16)] + ["end"],
    "a": ["start", "karg", "issued", "consts", "x", "stat", "b1", "norm", "pub1", "warm", "par", "ws", "recR", "rec", "b2", "kmf0", "kmf", "end"],
    "b": ["start", "kmf", "shift", "frag", "s1w", "s1", "b5", "conv", "b6", "st2", "dma", "ack2", "s2", "hw", "b7", "key", "pub3", "end"],
    "c": ["start", "pub3", "hn", "outc", "ack3", "s3p", "s3w", "s3", "row", "g1m", "g1b", "g1", "r1o", "r1t", "r1a", "g2m", "g2", "end"],
}
DEFAULTS = dict(stamps=False, s1_at="mfma", warm=True, out_pol="sc1", pf_code=True, pf_lines=8, dbg=False, poison_at="x", recb=4, lat=8, cvt0=4, nw=8, wv=(0, 0, 0, 0), r1_out="row", dma_s2=0, st_late=False, early_br=True, addtid=True, r1_at=28, b_first=False, dma0_ack2=False, p3_at="consts", cpre=0, bg_from=0, fin_pol="", r0_late=2, r2_late=True, dma_ack2=0, xmap=True, x_pol="", w_pol="", p_pol="sc1", mask_poll=True, warm_slot=30, kpre=1, par_first=True, band_tab=False, frag_in=True, dma_pre=0, r1_split=2, xa_glob=False, warm_at="s1w", xa_at="start", nf=7, ng=4, pe=16, pd=5, npre=3, clk=False, dma_at="conv", warm_mode="sect", far_span=(60, 48))


class Gen:
    def __init__(self, **opt):
        self.o = dict(DEFAULTS)
        self.o.update(opt)
        if isinstance(self.o["far_span"], str):
            self.o["far_span"] = tuple(int(x) for x in self.o["far_span"].split("_"))
        if isinstance(self.o["wv"], str):
            self.o["wv"] = tuple(int(x) for x in self.o["wv"].split("_"))
        self.A = Asm()
        self.V = Pool("v", 1, 255)
        self.AC = Pool("a", 0, 255)
        self.S = Pool("s", 32, 63)
        self.cold = []
        self.nstamp = 0

    def stamp(self, name, A=None):
        sel = STAMP_SETS.get(self.o["stamps"])
        if sel and name in sel:
            i = sel.index(name)
            (A or self.A)(f"{'s_memtime' if self.o.get('cyc') else 's_memrealtime'} s[{64 + 2 * i}:{65 + 2 * i}]")

    def dump_stamps(self, A):
        if not self.o["stamps"]:
            return
        if self.o["dbg"]:
            self.dump_debug(A)
            return
        a, d = self.V.get(), self.V.get(2)
        A("s_mov_b64 exec, 1")
        A.wait(lg=0)
        A(f"s_lshl_b32 s3, {self.sL}, 2\ns_add_u32 s3, s3, {self.sW}\ns_lshl_b32 s3, s3, 8\ns_add_u32 s3, s3, {WS_STAMP}")
        A(f"v_mov_b32 {a}, s3")
        for i in range(19):
            A(f"v_mov_b32 {d[0]}, s{64 + 2 * i}\nv_mov_b32 {d[1]}, s{65 + 2 * i}")
            A(f"global_store_dwordx2 {a}, {d}, s[30:31] offset:{8 * i}")
            A.wait(vm=0)
        self.V.put(a, d)

    def dump_debug(self, A):
        a, d = self.V.get(), self.V.get()
        n = getattr(self, "ndbg", 0)
        self.ndbg = n + 1
        A("s_mov_b64 exec, 1")
        A(f"s_cmp_eq_u32 {self.sL}, 255\ns_cbranch_scc0 L_dbg{n}\ns_cmp_eq_u32 {self.sW}, 0\ns_cbranch_scc0 L_dbg{n}")
        A("s_load_dwordx2 s[4:5], s[0:1], 104")
        A.wait(lg=0)
        A(f"v_mov_b32 {a}, 0")
        for i in range(1, 17):
            A(f"s_sub_u32 s3, s{64 + 2 * (i + 1)}, s64\nv_mov_b32 {d}, s3")
            A(f"global_store_dword {a}, {d}, s[4:5] offset:{4 * (i - 1)}")
        A.label(f"L_dbg{n}")
        self.V.put(a, d)

    def rnd(self, A, dst, src, neg=False):
        A(f"v_cvt_pk_bf16_f32 {dst}, 0, {'-' if neg else ''}{src}")

    def allreduce(self, A, op, regs, width, fill=()):
        fill = list(fill)

        def pad():
            for _ in range(max(0, 3 - len(regs))):
                if fill:
                    A(fill.pop(0))
        steps = ["quad_perm:[1,0,3,2]", "quad_perm:[2,3,0,1]", "row_half_mirror", "row_mirror"]
        for st in steps:
            pad()
            for r in regs:
                A(f"{op}_dpp {r}, {r}, {r} {st} row_mask:0xf bank_mask:0xf")
        tmp = [self.V.get() for _ in regs]
        for w, sw in ((32, "v_permlane16_swap_b32"), (64, "v_permlane32_swap_b32")):
            if width >= w:
                for r, t in zip(regs, tmp):
                    A(f"v_mov_b32 {t}, {r}")
                pad()
                for r, t in zip(regs, tmp):
                    A(f"{sw} {r}, {t}")
                for r, t in zip(regs, tmp):
                    A(f"{op} {r}, {r}, {t}")
        for f in fill:
            A(f)
        self.V.put(*tmp)

    def ln_stats(self, A, s1, s2, nm, rs):
        t = self.V.get()
        A(f"v_mul_f32 {s1}, 0x3b000000, {s1}")
        A(f"v_mul_f32 {s2}, 0x3b000000, {s2}")
        A(f"v_fma_f32 {t}, -{s1}, {s1}, {s2}")
        A(f"v_max_f32 {t}, 0, {t}")
        self.rnd(A, t, t)
        self.rnd(A, nm, s1, neg=True)
        A(f"v_add_f32 {t}, 0x3727c5ac, {t}")
        self.rnd(A, t, t)
        A(f"v_sqrt_f32 {t}, {t}")
        self.rnd(A, t, t)
        A(f"v_rcp_f32 {rs}, {t}")
        self.V.put(t)

    def poll(self, A, name, loads, check):
        check(A)
        A(f"s_cbranch_vccnz L_{name}_slow")
        A.label(f"L_{name}_ok")
        C = Asm()
        C.label(f"L_{name}_slow")
        C("s_mov_b32 s3, 0")
        C.label(f"L_{name}_loop")
        if self.o["mask_poll"]:
            C("s_mov_b64 exec, vcc")
        C("s_nop 1")
        loads(C)
        C(f"s_add_u32 s3, s3, 1\ns_cmp_ge_u32 s3, {SPIN_MAX}")
        C("s_cselect_b32 s18, 0, -1\ns_mov_b32 s19, s18")
        check(C)
        C.wait(vm=0)
        C("s_nop 1")
        C("s_and_b64 vcc, vcc, s[18:19]")
        C(f"s_cbranch_vccnz L_{name}_loop")
        C("s_mov_b64 exec, -1")
        C("s_nop 2")
        C(f"s_branch L_{name}_ok")
        self.cold.append(C)

    def prologue(self):
        A, V, S = self.A, self.V, self.S
        A("s_cmp_ge_u32 s2, 0x100\ns_cbranch_scc1 L_end")
        A("s_load_dwordx16 s[4:19], s[0:1], 0\ns_load_dwordx8 s[20:27], s[0:1], 64")
        A("s_load_dwordx2 s[28:29], s[0:1], 96\ns_load_dwordx2 s[30:31], s[0:1], 112")
        self.stamp("start")
        if self.o["clk"]:
            A("s_memtime s[100:101]")
        self.sL, self.sW, self.sTag, self.sE = S.get(), S.get(), S.get(), S.get()
        self.sOnes, self.sLo, self.sHi, self.sCh = S.get(), S.get(), S.get(), S.get()
        self.sB, self.sH, self.sa, self.sb = S.get(), S.get(), S.get(), S.get()
        sL, sW, sa, sb = self.sL, self.sW, self.sa, self.sb
        self.vL = V.get()
        self.vI = V.get()
        self.vG = V.get()
        t0, t1, t2, t3 = V.get(), V.get(), V.get(), V.get()
        self.vJunk = V.get(2)
        A(f"v_lshrrev_b32 {t0}, 6, v0\ns_lshr_b32 {sL}, s2, 3")
        if self.o["pf_code"]:
            nl = self.o["pf_lines"]
            self.sPc = S.get(2)
            A(f"s_getpc_b64 {self.sPc}")
            A.label("L_pc")
            A(f"""
            v_lshl_add_u32 {t2}, {sL}, 2, {t0}
            v_and_b32 {t2}, {256 // nl - 1}, {t2}
            v_and_b32 {t1}, {nl - 1}, v0
            v_lshl_add_u32 {t2}, {t2}, {nl.bit_length() - 1}, {t1}
            v_lshlrev_b32 {t2}, 7, {t2}
            v_min_u32 {t2}, L_all_end-L_pc-4, {t2}
            global_load_dword {self.vJunk[0]}, {t2}, {self.sPc}
            """)
        self.vTau, self.vHr, self.vRow, vP = V.get(), V.get(), V.get(), V.get()
        A(f"""
        v_readfirstlane_b32 {sW}, {t0}
        s_and_b32 s3, s2, 7
        s_lshl_b32 s3, s3, 5
        s_add_u32 {sL}, {sL}, s3
        {"" if self.o["xmap"] else f"s_mov_b32 {sL}, s2"}
        v_and_b32 {self.vL}, 63, v0
        v_lshrrev_b32 {self.vTau}, 5, v0
        v_and_b32 {t1}, 31, v0
        v_lshlrev_b32 {t1}, 4, {t1}
        v_lshl_add_u32 {self.vHr}, {self.vTau}, 10, {t1}
        s_lshl_b32 {sa}, {sL}, 13
        v_add_u32 {self.vRow}, {sa}, {self.vHr}
        s_lshr_b32 s3, {sL}, 6
        s_lshl_b32 {self.sCh}, s3, 7
        s_and_b32 s3, {sL}, 31
        s_lshl_b32 s3, s3, 2
        s_add_u32 {self.sCh}, {self.sCh}, s3
        s_bfe_u32 s3, {sL}, 0x10005
        s_add_u32 {self.sCh}, {self.sCh}, s3
        s_and_b32 s3, {sW}, 2
        s_add_u32 {self.sCh}, {self.sCh}, s3
        s_lshl_b32 s3, {self.sCh}, 8
        v_lshl_add_u32 {vP}, {self.vL}, 2, s3
        s_lshl_b32 {self.sE}, {self.sCh}, 1
        s_and_b32 {self.sE}, {self.sE}, -4
        v_and_b32 {self.vI}, 15, v0
        v_bfe_u32 {self.vG}, v0, 4, 2
        s_lshr_b32 {self.sB}, {sW}, 1
        s_and_b32 {self.sH}, {sW}, 1
        """)
        self.XB, self.XA, self.PAR, self.WR = V.get(8), V.get(8), V.get(4), V.get(8)
        self.sDt = S.get()
        lines = self.const_lines(t0, t1, t2, t3)
        npre = self.o["cpre"]
        for ln in lines[:npre]:
            A(ln)
        for k in range(4):
            A(f"global_load_dword {self.PAR[k]}, {vP}, s[{6 + 2 * k}:{7 + 2 * k}] {self.o['x_pol']}")
        A(f"global_load_dwordx4 {self.XB[0:4]}, {self.vRow}, s[4:5] {self.o['x_pol']}")
        A(f"global_load_dwordx4 {self.XB[4:8]}, {self.vRow}, s[4:5] offset:512 {self.o['x_pol']}")
        A(f"s_load_dword {self.sDt}, s[14:15], {self.sE}")
        A(f"s_load_dword {self.sE}, s[30:31], {WS_EPOCH}")
        self.stamp("karg")
        V.put(vP)
        for ln in lines[npre:]:
            A(ln)
        self.bg = self.background()
        if self.o["p3_at"] == "consts":
            for ln in self.p3_lines[:-1]:
                A(ln)
            self.p3_lines = self.p3_lines[-1:]
        if self.o["warm_at"] == "s1w":
            n = self.nwarm - (self.o["dma_at"] != "none")
            for ln in self.bg[:n]:
                A(ln)
            self.warm_line = self.bg[n:self.nwarm]
            self.bg = self.bg[self.nwarm:]
        if self.o["poison_at"] == "pub":
            self.vFo, self.vFi = V.get(), V.get()
            A(f"""
            s_lshl_b32 s3, {sW}, 12
            s_lshl_b32 {sb}, {sL}, 4
            s_add_u32 s3, s3, {sb}
            s_add_u32 s3, s3, {WS_FLG}
            v_mov_b32 {self.vFo}, s3
            s_lshr_b32 s3, {sL}, 6
            s_lshl_b32 s3, s3, 12
            s_add_u32 s3, s3, {WS_FLG}
            v_lshl_add_u32 {self.vFi}, v0, 4, s3
            """)
        if self.o["poison_at"] == "consts":
            self.poison2()
        self.stamp("consts")
        V.put(t0, t1, t2, t3, *self.ctmp)

    def poison2(self):
        A = self.A
        A(f"global_store_dwordx4 {self.vP2}, {self.M1}, s[30:31] sc1", tag="poison")
        A(f"global_store_dwordx4 {self.vP2}, {self.M1}, s[30:31] offset:1024 sc1", tag="poison")
        self.V.put(self.vP2)

    def const_lines(self, t0, t1, t2, t3):
        V, S = self.V, self.S
        vI, vG, vL, sW, sL, sB, sH, sa, sb = self.vI, self.vG, self.vL, self.sW, self.sL, self.sB, self.sH, self.sa, self.sb
        out = []

        def A(text):
            out.extend(x.strip() for x in text.strip().split("\n") if x.strip())
        self.BAND = {key: V.get(4) for key in BANDS}
        SEL = V.get(6)
        A(f"""
        v_lshlrev_b32 {t0}, 3, {vG}
        v_sub_u32 {t0}, {t0}, {vI}
        v_add_u32 {t0}, 20, {t0}
        v_mul_u32_u24 {t0}, 0x10001, {t0}
        v_mov_b32 {t3}, 0x70007
        s_mov_b32 {sb}, 0xc000c
        """)
        for k in range(6):
            c0, c1 = 32 - 2 * k, 31 - 2 * k
            A(f"""
            s_mov_b32 s3, {c0 | c1 << 16}
            v_pk_sub_i16 {t1}, {t0}, s3
            v_pk_sub_i16 {t2}, s3, {t0}
            v_pk_max_i16 {t1}, {t1}, {t2}
            v_pk_min_i16 {t1}, {t1}, {t3}
            v_lshl_or_b32 {SEL[k]}, {t1}, 8, {sb}
            """)
        for (delta, h), B in self.BAND.items():
            lut = sum(0x3C << (8 * i) for i in range(min(h + 1, 4)))
            A(f"s_mov_b32 s3, {lut}")
            for d in range(4):
                A(f"v_perm_b32 {B[d]}, {60 if h == 4 else 0}, s3, {SEL[d + (0 if delta == 12 else 2)]}")
        Z = SEL[0:4]
        for k in range(4):
            A(f"v_mov_b32 {Z[k]}, 0")
        self.vShift, self.vShiftR = V.get(), V.get()
        A(f"""
        v_lshlrev_b32 {t2}, 4, v0
        v_lshlrev_b32 {t3}, 2, {vL}
        v_and_b32 {t1}, 127, v0
        s_mul_i32 s3, {sB}, {UCH}
        s_add_u32 {sb}, s3, {L_U}
        v_lshl_add_u32 {t0}, {t1}, 2, {sb}
        ds_write_b128 {t2}, {Z} offset:{L_P}
        ds_write_b128 {t2}, {Z} offset:{L_P + 4096}
        ds_write_b128 {t2}, {Z} offset:{L_P + 8192}
        ds_write_b128 {t2}, {Z} offset:{L_P + 12288}
        ds_write_b32 {t3}, {Z[0]} offset:{L_P + 16384}
        ds_write_b32 {t0}, {Z[0]}
        s_mul_i32 s3, {sB}, {2 * PHALF}
        v_lshl_add_u32 {self.vShiftR}, {t1}, 4, s3
        """)
        self.vUf, self.vZw, self.vUw = V.get(), V.get(), V.get()
        self.vN, self.vF = V.get(), V.get()
        A(f"""
        v_lshl_add_u32 {t0}, {vI}, 5, {sb}
        v_lshl_add_u32 {self.vUf}, {vG}, 4, {t0}
        s_mul_i32 s3, {sB}, {KCH}
        v_lshl_add_u32 {self.vShift}, {t1}, 4, s3
        v_sub_u32 {t0}, 15, {vI}
        v_and_b32 {t1}, 3, {t0}
        v_and_b32 {t0}, 12, {t0}
        v_mul_u32_u24 {t1}, {KCOPY}, {t1}
        v_lshl_add_u32 {t0}, {t0}, 1, {t1}
        v_add_u32 {t0}, s3, {t0}
        v_lshl_add_u32 {self.vN}, {vG}, 4, {t0}
        v_lshl_add_u32 {self.vF}, {vG}, 3, {t0}
        v_and_b32 {t0}, 2, {vG}
        v_lshl_add_u32 {t0}, {vI}, 2, {t0}
        v_add_u32 {t0}, {sB}, {t0}
        v_lshrrev_b32 {t1}, 1, {vI}
        v_xor_b32 {t0}, {t0}, {t1}
        v_and_b32 {t1}, 1, {vG}
        v_lshlrev_b32 {t1}, 3, {t1}
        v_lshl_add_u32 {self.vZw}, {t0}, 4, {t1}
        """)
        self.sStM = S.get()
        self.vR, self.vS0, self.vS1r = V.get(), V.get(), V.get()
        A(f"""
        s_mul_i32 s3, {sB}, {STAGE_CH}
        s_lshl_b32 {sb}, {sH}, 8
        s_add_u32 s3, s3, {sb}
        s_add_u32 {self.sStM}, s3, {L_STAGE - 0x8000}
        s_add_u32 s3, s3, {L_STAGE}
        v_lshl_add_u32 {t2}, {vG}, 4, s3
        v_xor_b32 {t0}, 3, {vI}
        v_bfe_u32 {t1}, {t0}, 1, 1
        v_add_u32 {t1}, {t0}, {t1}
        v_lshrrev_b32 {t1}, 1, {t1}
        s_movk_i32 s3, {ROWB}
        v_mad_u32_u24 {self.vR}, {vI}, s3, {t2}
        v_mad_u32_u24 {self.vS0}, {t0}, s3, {t2}
        v_mad_u32_u24 {self.vS1r}, {t1}, s3, {t2}
        """)
        self.vK1, self.vK3, self.vKs = V.get(), V.get(), V.get()

        def pa(m):
            return ((m >> 2) & 1) * PPLANE + (m >> 3) * 16 + (m & 3) * 4
        A(f"""
        s_mul_i32 s3, {sW}, {PHALF}
        s_add_u32 s3, s3, {L_P}
        v_xor_b32 {t3}, 3, {vG}
        v_and_b32 {t0}, 1, {t3}
        v_mul_u32_u24 {t0}, {PPLANE}, {t0}
        v_lshrrev_b32 {t3}, 1, {t3}
        v_lshl_add_u32 {t3}, {t3}, 4, {t0}
        v_add_u32 {t3}, s3, {t3}
        v_lshlrev_b32 {t0}, 5, {vI}
        v_sub_u32 {t0}, {t3}, {t0}
        v_add_u32 {self.vK1}, {pa(528 - 256)}, {t0}
        v_lshrrev_b32 {t1}, 1, {vI}
        v_lshrrev_b32 {t2}, 2, {vI}
        v_add_u32 {t2}, 2, {t2}
        v_min_u32 {t1}, {t1}, {t2}
        v_add3_u32 {t1}, {t1}, {vI}, {FAR // 16 + 1}
        v_lshl_add_u32 {self.vK3}, {t1}, 5, {t3}
        v_cmp_gt_u32 vcc, 8, {vI}
        v_mov_b32 {t0}, {pa(28)}
        v_mov_b32 {t1}, {pa(NX + 24)}
        v_cndmask_b32 {t0}, {t0}, {t1}, vcc
        v_add_u32 {self.vKs}, s3, {t0}
        """)
        self.vS1o, self.vS1i, self.vS1i2, self.vP2 = V.get(), V.get(), V.get(), V.get()
        self.vMask, self.vHw2, self.M1 = V.get(), V.get(), V.get(4)
        A(f"""
        v_and_b32 {t0}, 1, v0
        v_lshrrev_b32 {t1}, 1, v0
        v_mul_u32_u24 {t2}, {UCH}, {t0}
        v_lshl_add_u32 {self.vUw}, {t1}, 4, {t2}
        v_lshlrev_b32 {t0}, 4, {t0}
        v_lshl_add_u32 {t2}, {t1}, 13, {t0}
        s_lshl_b32 s3, {sL}, 5
        s_add_u32 s3, s3, {WS_S1}
        v_add_u32 {self.vS1i}, s3, {t2}
        v_add_u32 {self.vS1i2}, 0x100000, {self.vS1i}
        s_lshl_b32 s3, {sW}, 11
        s_add_u32 s3, s3, {sa}
        s_add_u32 s3, s3, {WS_S1}
        v_lshl_add_u32 {self.vS1o}, {vL}, 4, s3
        v_add_u32 {self.vP2}, {WS_S2 - WS_S1}, {self.vS1o}
        s_mov_b32 s3, {L_H}
        v_lshl_add_u32 {self.vHw2}, v0, 2, s3
        v_mov_b32 {self.vMask}, {0xFFFFFFFF ^ TAGMASK}
        s_mov_b32 {self.sOnes}, 0x3f803f80
        s_mov_b32 {self.sLo}, 0x3f80
        s_mov_b32 {self.sHi}, 0x3f800000
        """)
        for k in range(4):
            A(f"v_mov_b32 {self.M1[k]}, -1")
        self.ctmp = [SEL]
        return out

    def background(self):
        V, S = self.V, self.S
        vL, sW, sL, sa, sb = self.vL, self.sW, self.sL, self.sa, self.sb
        t0, t1, t2 = V.get(), V.get(), V.get()
        out = []

        def A(text):
            out.extend(x.strip() for x in text.strip().split("\n") if x.strip())
        A(f"""
        s_lshr_b32 s3, {sL}, 5
        s_and_b32 {sb}, {sL}, 31
        s_mul_i32 s6, {sb}, {16 * 3584}
        s_mul_i32 s7, s3, 448
        s_add_u32 s6, s6, s7
        v_lshrrev_b32 {t0}, 2, {vL}
        v_and_b32 {t1}, 3, v0
        v_mul_u32_u24 {t0}, 3584, {t0}
        v_lshl_add_u32 {t0}, {t1}, 7, {t0}
        v_add_u32 {t0}, s6, {t0}
        s_mul_i32 s6, {sb}, {56 * 1024}
        s_lshl_b32 s7, s3, 7
        s_add_u32 s6, s6, s7
        s_mul_i32 s7, {self.sH}, {28 * 1024}
        s_add_u32 s6, s6, s7
        v_min_u32 {t1}, 27, {vL}
        v_lshl_add_u32 {t1}, {t1}, 10, s6
        s_cmp_eq_u32 {sW}, 0
        s_cselect_b32 s8, s22, s24
        s_cselect_b32 s9, s23, s25
        s_cmp_lt_u32 {sW}, 2
        s_cselect_b32 s8, s8, s26
        s_cselect_b32 s9, s9, s27
        s_cselect_b64 vcc, -1, 0
        v_cndmask_b32 {t0}, {t1}, {t0}, vcc
        """)
        if self.o["dma_at"] != "none":
            A(f"global_load_dword {self.vJunk[1]}, {t0}, s[8:9]")
        self.nwarm = len(out)
        warm_block = list(out)
        if self.o["warm_at"] == "bg":
            out.clear()
        A(f"s_lshr_b32 s3, {sL}, 5\ns_and_b32 {sb}, {sL}, 31")
        self.sBlk, self.sRole, self.sUp = S.get(), S.get(), S.get()
        A(f"""
        s_cmp_ge_u32 {sb}, 7
        s_cselect_b32 {self.sUp}, 1, 0
        s_cselect_b32 s6, 7, 0
        s_sub_u32 s6, {sb}, s6
        s_mul_i32 {self.sBlk}, s3, 7
        s_add_u32 {self.sBlk}, {self.sBlk}, s6
        s_cmp_ge_u32 {sb}, 14
        s_cselect_b32 {self.sRole}, 2, 0
        s_lshl_b32 s3, s3, 2
        s_sub_u32 s6, {sb}, {self.o["r1_at"]}
        s_add_u32 s3, s3, s6
        s_cmp_lt_u32 s6, 4
        s_cselect_b32 {self.sRole}, 1, {self.sRole}
        s_cselect_b32 {self.sBlk}, s3, {self.sBlk}
        """)
        self.p3_lines = [f"s_mul_i32 s3, {sL}, 2432", f"s_add_u32 s3, s3, {WS_S3}", f"v_lshl_add_u32 {t2}, v0, 4, s3",
                         f"v_cmp_gt_u32 s[10:11], {t1}, v0",
                         ("s_mov_b64 exec, s[10:11]", f"global_store_dwordx4 {t2}, {self.M1}, s[30:31] sc1", "s_mov_b64 exec, -1")]
        self.p3_lines.insert(0, f"v_mov_b32 {t1}, 152")
        if self.o["warm_at"] == "bg":
            out.extend(warm_block)
        self.vS2o, self.vS2o2, self.vS2i, self.vS2i2, self.vZr = V.get(), V.get(), V.get(), V.get(), V.get()
        A(f"""
        s_add_u32 s3, {sa}, {WS_S2}
        v_lshl_add_u32 {self.vS2o}, v0, 4, s3
        v_add_u32 {self.vS2o2}, 0x1000, {self.vS2o}
        v_bfe_u32 {t0}, v0, 3, 3
        v_xor_b32 {t0}, v0, {t0}
        v_lshlrev_b32 {self.vZr}, 4, {t0}
        s_lshl_b32 s3, {sW}, 18
        s_add_u32 s3, s3, {WS_S2 - WS_S1}
        v_add_u32 {self.vS2i}, s3, {self.vS1i}
        v_add_u32 {self.vS2i2}, 0x40000, {self.vS2i}
        """)
        self.bgtmp = [t0, t1, t2, self.M1]
        return out

    def ln1(self):
        A, V = self.A, self.V
        glob = False
        s1, s2, nm, rs, ad = V.get(), V.get(), V.get(), V.get(), V.get()
        A(f"v_lshlrev_b32 {ad}, 2, {self.vTau}")
        for k in range(8):
            if not glob and k % 4 == 0:
                A(f"ds_write_b128 {self.vHr}, {self.XB[k:k + 4]} offset:{L_H + 128 * k}")
            A(f"v_dot2_f32_bf16 {s1}, {self.XB[k]}, {self.sOnes}, {s1 if k else 0}")
            A(f"v_dot2_f32_bf16 {s2}, {self.XB[k]}, {self.XB[k]}, {s2 if k else 0}")
            if k == 0:
                self.stamp("x")
                if self.o["poison_at"] == "x":
                    self.poison2()
        wv = self.o["wv"]
        take, self.ksl = self.ksl[:wv[1]], self.ksl[wv[1]:]
        self.allreduce(A, "v_add_f32", [s1, s2], 32, take)
        self.ln_stats(A, s1, s2, nm, rs)
        if self.o["poison_at"] == "stat":
            self.poison2()
        self.stamp("stat")
        A("s_mov_b64 exec, 1\ns_bitset1_b64 exec, 32")
        A(f"v_mul_f32 {rs}, 0x3d800000, {rs}")
        A(f"ds_write_b32 {ad}, {nm} offset:{L_ST}\nds_write_b32 {ad}, {rs} offset:{L_ST + 32}")
        A("s_mov_b64 exec, -1")
        A(f"v_mov_b32 {ad}, 0")
        V.put(self.XB)
        self.weave(wv[2])
        A.barrier()
        self.stamp("b1")
        NM, RS = V.get(8), V.get(8)
        XA = self.XA
        if not glob:
            for q in range(2):
                A(f"ds_read2st64_b32 {XA[2 * q:2 * q + 2]}, {self.vHw2} offset0:{8 * q} offset1:{8 * q + 4}")
        A(f"ds_read_b128 {NM[0:4]}, {ad} offset:{L_ST}")
        if not glob:
            for q in range(2, 4):
                A(f"ds_read2st64_b32 {XA[2 * q:2 * q + 2]}, {self.vHw2} offset0:{8 * q} offset1:{8 * q + 4}")
        A(f"ds_read_b128 {NM[4:8]}, {ad} offset:{L_ST + 16}")
        for k in range(2):
            A(f"ds_read_b128 {RS[4 * k:4 * k + 4]}, {ad} offset:{L_ST + 32 + 16 * k}")
        self.weave(wv[3])
        if self.o["poison_at"] == "b1":
            self.poison2()
        A(f"s_add_u32 {self.sE}, {self.sE}, 1\ns_and_b32 {self.sTag}, {self.sE}, {TAGMASK}")
        T = V.get(8)
        for e in range(2):
            G = V.get(4)
            for j in range(8):
                A(f"v_dot2_f32_bf16 {T[j]}, {XA[j]}, {self.sHi if e else self.sLo}, {NM[j]}")
            for j in range(8):
                self.rnd(A, T[j], T[j])
            for q in range(4):
                A(f"v_pk_mul_f32 {T[2 * q:2 * q + 2]}, {T[2 * q:2 * q + 2]}, {RS[2 * q:2 * q + 2]}")
            for j in range(8):
                self.rnd(A, T[j], T[j])
            for q in range(4):
                A(f"v_cvt_pk_f16_f32 {G[q]}, {T[2 * q]}, {T[2 * q + 1]}")
            for q in range(4):
                A(f"v_and_or_b32 {G[q]}, {G[q]}, {self.vMask}, {self.sTag}")
            self.G = getattr(self, "G", []) + [G]
            if e == 0:
                self.stamp("norm")
            if self.o["st_late"] and e == 0:
                continue
            A.wait_tag("poison")
            for ee in ((0, 1) if self.o["st_late"] else (e,)):
                A(f"global_store_dwordx4 {self.vS1o}, {self.G[ee]}, s[30:31] offset:{1024 * ee} sc1", tag="s1st")
        self.stamp("pub1")
        V.put(T, NM, RS, s1, s2, nm, rs, ad, self.vS1o)

    def s1_loads(self, A):
        A(f"global_load_dwordx4 {self.UG[0:4]}, {self.vS1i}, s[30:31] sc1")
        A(f"global_load_dwordx4 {self.UG[4:8]}, {self.vS1i2}, s[30:31] sc1")

    def maybe_s1(self, where):
        if self.o["s1_at"] == where:
            self.UG = self.V.get(8)
            if self.o["poison_at"] == "pub":
                A = self.A
                A(f"v_mov_b32 {self.UG[0]}, {self.sE}")
                A.wait_tag("poison")
                A(f"s_mov_b64 exec, 1\nglobal_store_dword {self.vFo}, {self.UG[0]}, s[30:31] sc1\ns_mov_b64 exec, -1")
                self.V.put(self.vFo)
            self.s1_loads(self.A)

    def ksetup_lines(self):
        V = self.V
        P = self.PAR
        out = []

        class Rec:
            def __call__(self_, text):
                out.extend(x.strip() for x in text.strip().split("\n") if x.strip())
        A = Rec()
        t0, t1, dt = V.get(), V.get(), V.get()
        self.vG16 = V.get()
        sb = self.sb
        A(f"""
        s_and_b32 {sb}, {self.sCh}, 1
        s_xor_b32 {sb}, {sb}, 1
        s_lshl_b32 {sb}, {sb}, 4
        s_lshl_b32 {self.sDt}, {self.sDt}, {sb}
        s_and_b32 {self.sDt}, {self.sDt}, 0xffff0000
        v_mov_b32 {dt}, {LOG2E}
        v_mul_f32 {dt}, {self.sDt}, {dt}
        v_exp_f32 {dt}, {dt}
        s_cmp_eq_u32 {self.sH}, 0
        s_cselect_b32 {sb}, 16, 0
        """)
        self.rnd(A, dt, dt)
        A(f"""
        v_and_b32 {t0}, 0x7fff7fff, {P[2]}
        v_and_b32 {t1}, 0x7fff7fff, {P[3]}
        v_pk_max_u16 {t0}, {t0}, {t1}
        v_lshrrev_b32 {t1}, 16, {t0}
        v_and_b32 {t0}, 0xffff, {t0}
        v_max_u32 {t0}, {t0}, {t1}
        """)
        W = {p: V.get(2) for p in (1, 16, 256)}
        u0, u1 = V.get(), V.get()
        fill = [f"v_lshlrev_b32 {P[k]}, {sb}, {P[k]}" for k in range(4)]
        fill += [f"v_and_b32 {P[k]}, 0xffff0000, {P[k]}" for k in range(4)]
        fill += [f"v_mul_f32 {P[0]}, {LOG2E}, {P[0]}", f"v_exp_f32 {P[0]}, {P[0]}", f"v_mul_f32 {P[1]}, {P[1]}, {dt}",
                 f"v_cvt_pk_bf16_f32 {P[0]}, 0, {P[0]}", f"v_mul_f32 {P[1]}, {INV2PI}, {P[1]}", f"v_mul_f32 {P[0]}, {P[0]}, {dt}",
                 f"v_fract_f32 {u1}, {P[1]}", f"v_mul_f32 {P[0]}, {LOG2E | 0x80000000}, {P[0]}"]
        keep = V.get()
        V.put(keep)
        self.allreduce(A, "v_max_u32", [t0], 64, fill)
        again = V.get()
        assert str(again) == str(keep)
        A(f"v_exp_f32 {u0}, {P[0]}\nv_cos_f32 {W[1][0]}, {u1}\nv_sin_f32 {W[1][1]}, {u1}")
        A(f"""
        v_lshrrev_b32 {t0}, 7, {t0}
        v_mul_f32 {W[1][0]}, {W[1][0]}, {u0}
        v_mul_f32 {W[1][1]}, {W[1][1]}, {u0}
        v_max_u32 {t0}, 8, {t0}
        v_lshrrev_b32 {t1}, 23, {dt}
        v_add_u32 {t1}, {t1}, {t0}
        v_subrev_u32 {t1}, 127, {t1}
        v_max_i32 {t1}, 0, {t1}
        v_min_i32 {t1}, 254, {t1}
        v_lshlrev_b32 {self.vG16}, 23, {t1}
        v_sub_u32 {t0}, 259, {t0}
        v_and_b32 {dt}, 0x007fffff, {dt}
        v_lshl_or_b32 {dt}, {t0}, 23, {dt}
        """)
        L = V.get(2)
        for p, mul in ((16, 0x41800000), (256, 0x43800000)):
            w = W[p]
            A(f"v_mul_f32 {u0}, {mul}, {P[0]}\nv_mul_f32 {u1}, {mul}, {P[1]}")
            A(f"v_exp_f32 {u0}, {u0}\nv_fract_f32 {u1}, {u1}")
            A(f"v_cos_f32 {w[0]}, {u1}\nv_sin_f32 {w[1]}, {u1}")
            A(f"v_mul_f32 {L[p // 256]}, {P[2 + p // 256]}, {dt}")
            A(f"v_mul_f32 {w[0]}, {w[0]}, {u0}\nv_mul_f32 {w[1]}, {w[1]}, {u0}")
        self.ks = dict(W=W, L=L, t0=t0, tmp=[u0, u1, t1, dt, P, again])
        return out

    def weave(self, n):
        for _ in range(min(n, len(self.ksl))):
            self.A(self.ksl.pop(0))

    def kgen_steps(self):
        A, V = self.A, self.V
        self.weave(1000)
        W, L, t0 = self.ks["W"], self.ks["L"], self.ks["t0"]
        V.put(*self.ks["tmp"])
        M, Rr, T = V.get(2), V.get(2), V.get(2)
        self.stamp("ws")
        NB_ = self.o["recb"]
        pk = [V.get() for _ in range(2 * NB_)]
        cnt = [0]
        queue = []
        A(f"s_mov_b32 m0, {self.sStM}")

        def cmul(d, a, b):
            A(f"v_pk_mul_f32 {T}, {a}, {b} op_sel_hi:[0,1]")
            A(f"v_pk_fma_f32 {d}, {a}, {b}, {T} op_sel:[1,1,0] op_sel_hi:[1,0,1] neg_lo:[0,1,0]")

        if not self.o["addtid"]:
            vSt = V.get()
            A(f"v_lshl_add_u32 {vSt}, {self.vL}, 2, {self.sStM}")

        def flush_q():
            for row, r in queue:
                if self.o["addtid"]:
                    A(f"ds_write_addtid_b32 {r} offset:{32768 + row * ROWB}")
                else:
                    A(f"ds_write_b32 {vSt}, {r} offset:{32768 + row * ROWB}")
            queue.clear()

        def put(row, v, conj=False):
            r = pk[cnt[0] % (2 * NB_)]
            cnt[0] += 1
            A(f"v_cvt_pk_f16_f32 {r}, {v[0]}, {'-' if conj else ''}{v[1]}")
            queue.append((row, r))
            if len(queue) >= NB_:
                flush_q()

        Rf, S0, S1, FA = ([self.AC.get(4, 4) for _ in range(4)] for _ in range(4))
        D1, D2, D3 = V.get(4), V.get(4), V.get(4)

        def frags(regs, addr, row0):
            flush_q()
            for q in range(4):
                A(f"ds_read_b128 {regs[q]}, {addr} offset:{row0 * ROWB + 64 * q}")

        def product(D, a, b):
            for q in range(4):
                A(f"v_mfma_f32_16x16x32_f16 {D}, {a[q]}, {b[q]}, {D if q else 0}")

        A(f"v_mov_b32 {t0}, 0x3c00")
        queue.append((0, t0))
        yield
        put(1, W[16], conj=True)
        cmul(Rr, W[16], W[16])
        put(2, Rr, conj=True)
        for j in range(3, 16):
            yield
            cmul(Rr, Rr, W[16])
            put(j, Rr, conj=True)
        frags(Rf, self.vR, 0)
        self.stamp("recR")
        LE = {0: L}
        cur = L
        for al in range(17):
            yield
            if al:
                nxt = V.get(2) if al % 2 == 0 else M
                cmul(nxt, cur, W[1])
                cur = nxt
                if al % 2 == 0:
                    LE[al] = cur
            if al < 16:
                put(16 + al, cur)
        frags(S0, self.vS0, 16)
        self.maybe_s1("rec1")
        for al in range(0, 17, 2):
            yield
            cmul(LE[al], LE[al], W[256])
            put(32 + al // 2, LE[al])
        frags(S1, self.vS1r, 32)
        product(D1, S0, Rf)
        self.maybe_s1("seg1")
        for a in range(2):
            for al in (4, 8, 12, 16):
                yield
                cmul(LE[al], LE[al], W[256])
                put(41 + 2 * (al // 4 - 1) + 1 - a, LE[al])
        K3 = V.get(4)
        flush_q()
        A(f"ds_write_b128 {self.vK1}, {D1} offset:512")
        product(D2, S1, Rf)
        self.maybe_s1("far")
        for a in range(4):
            for al in (8, 16):
                yield
                cmul(LE[al], LE[al], W[256])
                put(49 + 4 * (al // 8 - 1) + 3 - a, LE[al])
        frags(FA, self.vR, 41)
        self.stamp("rec")
        self.maybe_s1("rec2")
        A(f"ds_write_b128 {self.vK1}, {D2}")
        A(f"v_cmp_gt_u32 vcc, 8, {self.vI}")
        product(D3, Rf, FA)
        self.maybe_s1("mfma")
        self.stamp("kmf0")
        A(f"v_cndmask_b32 {T[1]}, {D2[0]}, 0, vcc")
        for k in range(4):
            A(f"v_mov_b32 {K3[k]}, {D3[3 - k]}")
        A(f"v_cndmask_b32 {T[0]}, {D2[0]}, {D3[3]}, vcc")
        A(f"ds_write_b128 {self.vK3}, {K3}")
        A("s_mov_b32 exec_lo, 0\ns_mov_b32 exec_hi, 0x80400000")
        A(f"ds_write_b32 {self.vKs}, {T[0]} offset:12\nds_write2_b32 {self.vKs}, {T[1]}, {T[1]} offset0:1 offset1:2")
        A("s_mov_b32 exec_hi, 0x00400000")
        A(f"ds_write_b32 {self.vKs}, {T[0]} offset:{PPLANE}")
        A("s_mov_b64 exec, -1")
        A.barrier()
        V.put(M, Rr, T, *pk, *W.values(), t0, D1, D2, D3, K3, *LE.values(),
              self.vR, self.vS0, self.vS1r, self.vK1, self.vK3, self.vKs)
        self.AC.put(*Rf, *S0, *S1, *FA)

    def row_params(self):
        A, V = self.A, self.V
        t1, t2 = V.get(), V.get()
        self.vDk = V.get()
        A(f"""
        v_and_b32 {t1}, 0x1ff, {self.vHr}
        v_lshlrev_b32 {t2}, 2, v0
        global_load_dwordx4 {self.WR[0:4]}, {t1}, s[20:21]
        global_load_dwordx4 {self.WR[4:8]}, {t1}, s[20:21] offset:512
        global_load_dword {self.vDk}, {t2}, s[16:17]
        """)
        V.put(t1, t2)

    def kgen(self):
        A, V = self.A, self.V
        if self.o["poison_at"] == "pub":
            self.poison2()
        for item in self.p3_lines:
            A("\n".join(item) if isinstance(item, tuple) else item, tag="poison3" if isinstance(item, tuple) else None)
        self.row_params()
        for _ in self.ksteps:
            pass
        self.stamp("kmf")
        self.maybe_s1("shift")
        D, E = V.get(12), V.get(12)
        C = [V.get(4) for _ in range(4)]
        for k in range(3):
            off = L_P + (k & 1) * PPLANE + (k >> 1) * 16
            A(f"ds_read_b128 {D[4 * k:4 * k + 4]}, {self.vShiftR} offset:{off}")
            A(f"ds_read_b128 {E[4 * k:4 * k + 4]}, {self.vShiftR} offset:{off + PHALF}")
        for k in range(6):
            A(f"v_pk_add_f32 {D[2 * k:2 * k + 2]}, {D[2 * k:2 * k + 2]}, {E[2 * k:2 * k + 2]}")
        for c in range(4):
            for k in range(4):
                A(f"v_cvt_pk_f16_f32 {C[c][k]}, {D[c + 2 * k]}, {D[c + 2 * k + 1]}")
            if c % 2:
                for cc in (c - 1, c):
                    A(f"ds_write_b128 {self.vShift}, {C[cc]} offset:{L_K + cc * KCOPY}")
        if not self.o["frag_in"]:
            A.barrier()
        self.shift_regs = (D, E, *C, self.vShift, self.vShiftR)
        self.stamp("shift")
        self.maybe_s1("frag")
        AC = self.AC
        self.KN = [AC.get(4, 4) for _ in range(17)]
        self.KX = AC.get(4, 4)
        self.B2 = {(k, d): AC.get(4, 4) for k in range(2) for d in (2, 3, 4)}
        self.B3 = {d: AC.get(4, 4) for d in (4, 5, 6, 7)}
        rd = {}
        for q in range(17):
            rd[str(self.KN[q])] = [f"ds_read_b64 {self.KN[q][2 * hf:2 * hf + 2]}, {self.vN} offset:{64 * (16 - q) + 8 * hf}" for hf in range(2)]
        rd[str(self.KX)] = [f"ds_read_b64 {self.KX[2 * hf:2 * hf + 2]}, {self.vN} offset:{2 * NX + 8 * hf}" for hf in range(2)]
        for (k, d), r in self.B2.items():
            rd[str(r)] = [f"ds_read_b64 {r[2 * hf:2 * hf + 2]}, {self.vF} offset:{2 * (V2[2 * k + hf] + 32 - 16 * (d - 2))}" for hf in range(2)]
        for d, r in self.B3.items():
            rd[str(r)] = [f"ds_read_b64 {r[2 * hf:2 * hf + 2]}, {self.vF} offset:{2 * (V3[hf] + 48 - 16 * (d - 4))}" for hf in range(2)]
        self.frag_reads = {}
        if self.o["frag_in"]:
            self.frag_reads = rd
        else:
            for v in rd.values():
                A("\n".join(v))
        self.maybe_s1("end")
        self.stamp("frag")

    def s1_consume(self, A, sfx):
        V = self.V
        UG = self.UG
        t0, t1 = V.get(), V.get()

        def check(C):
            for k in range(8):
                C(f"v_xor_b32 {UG[k]}, {self.sTag}, {UG[k]}")
            C(f"v_or3_b32 {t0}, {UG[0]}, {UG[1]}, {UG[2]}\nv_or3_b32 {t1}, {UG[3]}, {UG[4]}, {UG[5]}")
            C(f"v_or3_b32 {t0}, {t0}, {UG[6]}, {UG[7]}\nv_or_b32 {t0}, {t0}, {t1}")
            C(f"v_and_b32 {t0}, {TAGMASK}, {t0}\nv_cmp_ne_u32 vcc, 0, {t0}")
        self.poll(A, "s1" + sfx, self.s1_loads, check)
        self.stamp("s1w", A)
        if self.o["warm_at"] == "s1w":
            for ln in self.warm_line:
                A(ln)
        A(f"ds_write_b128 {self.vUw}, {UG[0:4]} offset:{L_U + 512}")
        A(f"ds_write_b128 {self.vUw}, {UG[4:8]} offset:{L_U + 512 + 2048}")
        self.stamp("s1", A)
        if not self.o["early_br"]:
            A.barrier()
            self.stamp("b5", A)
        V.put(t0, t1, *self.shift_regs)

    def conv(self, A, tiles, dma):
        V, AC = self.V, self.AC
        acc = {j: V.get(4) for j in tiles}
        NF, NG, NW, NP = self.o["nf"], self.o["ng"], self.o["nw"], 6
        PE, PD, NPRE = self.o["pe"], self.o["pd"], self.o["npre"]
        Fb = [AC.get(4, 4) for _ in range(NF)]
        Gb = [AC.get(4, 4) for _ in range(NG)]
        Wb = [V.get(4) for _ in range(NW)]
        Pb = [V.get(4) for _ in range(NP)]
        EY, EZ = V.get(4), V.get(2)
        qmax = {0: 7, 1: 15}
        b2 = sorted({j - d for j in tiles for d in (2, 3, 4) if j - d >= 0})
        b3 = sorted({j - d for j in tiles for d in (4, 5, 6, 7) if j - d >= 0})
        nlo = min(8 * j - qmax.get(j, 16) for j in tiles)
        nhi = 8 * max(tiles)
        near = []
        for fi, n in enumerate(range(nlo, nhi + 1)):
            for j in tiles:
                q = 8 * j - n
                if 0 <= q <= qmax.get(j, 16):
                    near.append((j, self.KN[q], fi, q == 0))
        far = []
        gfr, pcount = [], 0
        for b in sorted(set(b2) | set(b3)):
            ga, gb = len(gfr), len(gfr) + 1
            gfr += [256 * b - 16, 256 * b - 24]
            mains = []
            if b in b2:
                pa, pb = pcount, pcount + 1
                pcount += 2
                far += [("band", ga, (12, 1), pa, 0), ("band", ga, (8, 2), pa, 1), ("band", gb, (12, 1), pb, 0), ("band", gb, (8, 2), pb, 1)]
                mains += [("main", b + d, pa, self.B2[(0, d)]) for d in (2, 3, 4) if b + d in tiles]
                mains += [("main", b + d, pb, self.B2[(1, d)]) for d in (2, 3, 4) if b + d in tiles]
            if b in b3:
                pc = pcount
                pcount += 1
                far += [("band", ga, (8, 3), pc, 0), ("band", gb, (8, 4), pc, 1)]
                mains += [("main", b + d, pc, self.B3[d]) for d in (4, 5, 6, 7) if b + d in tiles]
            if b + 4 in tiles:
                far.append(("x", b + 4, ga))
            far += mains
        LAT = self.o["lat"]
        mf, fill = [], []
        started, done_at = set(), {}
        fuse, guse, plast, pready = {}, {}, {}, {}
        wcount = 0
        ni = 0
        farleft = list(far)
        span = self.o["far_span"][0 if 0 in tiles else 1]
        credit = 0.0

        def acc_mf(j, a, b):
            mf.append(f"v_mfma_f32_16x16x32_f16 {acc[j]}, {a}, {b}, {acc[j] if j in started else 0}")
            started.add(j)

        def far_ok(it):
            t = len(mf)
            if it[0] == "main":
                return pready.get(it[2], 10 ** 6) <= t
            if it[0] == "band":
                prev = it[3] - NP
                return prev < 0 or not any(o[0] == "main" and o[2] == prev for o in farleft)
            return True

        while ni < len(near) or farleft:
            t = len(mf)
            want_far = farleft and (credit >= 1.0 or ni >= len(near))
            if ni < len(near) and near[ni][3] and any(o[0] in ("main", "x") and o[1] == near[ni][0] for o in farleft):
                want_far = True
            pick = None
            if want_far:
                for it in farleft[:8]:
                    if far_ok(it):
                        if it[0] == "band" and any(o[0] == "band" for o in farleft[:farleft.index(it)]):
                            continue
                        pick = it
                        break
            if pick is None and ni < len(near) and not (near[ni][3] and any(o[0] in ("main", "x") and o[1] == near[ni][0] for o in farleft)):
                j, a, fi, last = near[ni]
                ni += 1
                acc_mf(j, a, Fb[fi % NF])
                fuse.setdefault(fi, [t, t])[1] = t
                if last:
                    done_at[j] = t
                credit += len(far) / span
                continue
            assert pick is not None, "conv schedule is stuck"
            farleft.remove(pick)
            credit -= 1.0
            if pick[0] == "band":
                _, g, key, p, hf = pick
                w = Wb[wcount % NW]
                wcount += 1
                mf.append(f"v_mfma_f32_16x16x32_f16 {w}, {Gb[g % NG]}, {self.BAND[key]}, 0")
                guse.setdefault(g, [t, t])[1] = t
                for k in range(2):
                    fill.append([t + self.o["cvt0"], t + LAT - 1, f"v_cvt_pk_f16_f32 {Pb[p % NP][2 * hf + k]}, {w[2 * k]}, {w[2 * k + 1]}", None])
                if hf == 1:
                    pready[p] = t + LAT
            elif pick[0] == "x":
                acc_mf(pick[1], self.KX, Gb[pick[2] % NG])
                guse.setdefault(pick[2], [t, t])[1] = t
            else:
                acc_mf(pick[1], Pb[pick[2] % NP], pick[3])
        nm = len(mf)
        pre = []
        reads = []
        for fi in sorted(fuse):
            txt = f"ds_read_b128 {Fb[fi % NF]}, {self.vUf} offset:{512 + 2 * (32 * (nlo + fi) - 16)}"
            reads.append((fuse[fi][0], fuse[fi - NF][1] if fi >= NF else -1, txt))
        for g in sorted(guse):
            txt = f"ds_read_b128 {Gb[g % NG]}, {self.vUf} offset:{512 + 2 * gfr[g]}"
            reads.append((guse[g][0], guse[g - NG][1] if g >= NG else -1, txt))
        seen = set()
        for t, txt in enumerate(mf):
            for name, two in self.frag_reads.items():
                if name not in seen and f" {name}," in txt:
                    seen.add(name)
                    reads += [(t, -1, two[0]), (t, -1, two[1])]
        reads.sort(key=lambda r: r[0])
        for first, free, txt in reads:
            if free < 0 and first <= NPRE:
                pre.append(txt)
            else:
                assert free < first
                fill.append([max(free, first - PE, 0), max(free, first - PD, 0), txt, None])
        order_t = sorted(tiles, key=lambda j: done_at[j])
        for k, j in enumerate(order_t):
            t = done_at[j]
            nxt = done_at[order_t[k + 1]] if k + 1 < len(order_t) else nm + 100
            seq2 = [f"v_mul_f32 {EY[r]}, {acc[j][r]}, {self.vG16}" for r in range(4)]
            seq2 += [f"v_cvt_pk_bf16_f32 {EZ[r]}, {EY[2 * r]}, {EY[2 * r + 1]}" for r in range(2)]
            seq2.append(f"ds_write_b64 {self.vZw}, {EZ} offset:{L_Z + 1024 * j}")
            for txt in seq2:
                fill.append([t + self.o["cvt0"], min(t + 12, nxt + 2), txt, f"e2_{j}"])
        for txt in pre:
            A(txt)
        for i, f in enumerate(fill):
            f.append(i)
        left = list(fill)
        bg = list(self.bg)
        A.prewait([mf[0]])
        for t in range(nm):
            A(mf[t])
            chosen = []
            for f in sorted([f for f in left if f[0] <= t], key=lambda f: (f[1], f[4])):
                if len(chosen) >= 2 and f[1] > t:
                    break
                if f[3] and any(g[3] == f[3] and g[4] < f[4] and g not in chosen for g in left):
                    continue
                mem = isinstance(f[2], tuple) or f[2].startswith("ds_")
                if mem and f[1] > t and any(g[3] == f[3] and f[3] for g in chosen):
                    continue
                chosen.append(f)
            memf = [f for f in chosen if (isinstance(f[2], tuple) or f[2].startswith("ds_")) and not any(g[3] == f[3] and f[3] and g[4] < f[4] for g in chosen)]
            rest = [f for f in chosen if f not in memf]
            c0 = A.count
            A.prewait([f[2] for f in chosen if not isinstance(f[2], tuple)] + ([mf[t + 1]] if t + 1 < nm else []))
            ns, nv = A.count - c0, len(chosen)
            while bg and isinstance(bg[0], str) and bg[0].startswith("s_") and ns + nv < 3 and t >= self.o["bg_from"]:
                A(bg.pop(0))
                ns += 1
            nv += max(0, ns - 1)
            if bg and not memf and nv < 2 and (isinstance(bg[0], tuple) or bg[0].startswith("global_")):
                item = bg.pop(0)
                A("\n".join(item) if isinstance(item, tuple) else item, tag="poison3" if isinstance(item, tuple) else None)
                nv += 1
            for f in memf + rest:
                A(f[2])
                left.remove(f)
            while bg and nv < 2 and isinstance(bg[0], str) and bg[0].startswith("v_") and t >= self.o["bg_from"]:
                A(bg.pop(0))
                nv += 1
        self.bg_left = max(getattr(self, "bg_left", 0), len(bg))
        tail_bg = bg
        for item in tail_bg:
            A("\n".join(item) if isinstance(item, tuple) else item, tag="poison3" if isinstance(item, tuple) else None)
        for f in sorted(left, key=lambda f: (f[1], f[4])):
            A(f[2])
        self.nmfma = getattr(self, "nmfma", []) + [nm]
        V.put(*acc.values(), *Wb, *Pb, EY, EZ)
        AC.put(*Fb, *Gb)

    def dma_plan(self, A, role):
        V = self.V
        vL, sW = self.vL, self.sW
        t0, t1 = V.get(), V.get()
        self.vWa = V.get()
        if role == 0:
            A(f"""
            s_lshl_b32 {self.sWb}, {sW}, 13
            s_add_u32 {self.sWb}, {self.sWb}, {L_STAGE}
            s_lshl_b32 s3, {sW}, 7
            v_lshrrev_b32 {t0}, 2, {vL}
            v_add_u32 {t0}, s3, {t0}
            v_mul_u32_u24 {t0}, 3584, {t0}
            v_and_b32 {t1}, 3, {vL}
            v_lshl_add_u32 {t0}, {t1}, 4, {t0}
            s_lshl_b32 s3, {self.sBlk}, 6
            v_add_u32 {self.vWa}, s3, {t0}
            s_cmp_eq_u32 {self.sUp}, 0
            s_cselect_b32 s4, s22, s24
            s_cselect_b32 s5, s23, s25
            """)
            n, step = 8, 16 * 3584
        else:
            A(f"""
            s_mul_i32 {self.sWb}, {sW}, 14336
            s_add_u32 {self.sWb}, {self.sWb}, {L_STAGE}
            s_mul_i32 s3, {sW}, 448
            v_lshrrev_b32 {t0}, 1, {vL}
            v_add_u32 {t0}, s3, {t0}
            v_lshlrev_b32 {t0}, 10, {t0}
            v_and_b32 {t1}, 1, {vL}
            v_lshl_add_u32 {t0}, {t1}, 4, {t0}
            s_lshl_b32 s3, {self.sBlk}, 5
            v_add_u32 {self.vWa}, s3, {t0}
            s_mov_b64 s[4:5], s[26:27]
            """)
            n, step = 14, 0x8000
        V.put(t0, t1)
        return [(f"s_add_u32 m0, {self.sWb}, {m * 1024}" + (f"\ns_add_u32 s4, s4, {step}\ns_addc_u32 s5, s5, 0" if m else ""),
                 f"global_load_lds_dwordx4 {self.vWa}, s[4:5]") for m in range(n)]

    def conv_all(self):
        A = self.A
        nb = self.nwarm if self.o["warm_at"] == "pre" else 0
        for ln in self.bg[:nb]:
            A(ln)
        self.bg = self.bg[nb:]
        self.s1_consume(A, "")
        first, second = ([5, 6, 7], [0, 1, 2, 3, 4]) if self.o["b_first"] else ([0, 1, 2, 3, 4], [5, 6, 7])
        A(f"s_cmp_eq_u32 {self.sH}, {int(self.o['b_first'])}\ns_cbranch_scc0 L_conv_b")
        B = A.fork()
        if self.o["early_br"]:
            A.barrier()
            self.stamp("b5", A)
        self.conv(A, first, [])
        A.wait_tag("poison3")
        A.wait(lg=0)
        A.flush()
        A("s_branch L_conv_done")
        B.label("L_conv_b")
        if self.o["early_br"]:
            B.barrier()
            self.stamp("b5", B)
        self.conv(B, second, [])
        B.wait_tag("poison3")
        B.wait(lg=0)
        assert [t for _, t in A.vm] == [t for _, t in B.vm]
        B.flush()
        A.lines += B.lines
        A.count += B.count
        A.nops += B.nops
        A.label("L_conv_done")
        self.V.put(*self.bgtmp)
        self.V.put(*self.BAND.values(), self.vUf, self.vZw, self.vG16, self.UG, self.vUw,
                   self.vS1i, self.vS1i2, self.vN, self.vF)
        self.AC.put(*self.KN, self.KX, *self.B2.values(), *self.B3.values())
        self.stamp("conv", A)
        A("s_barrier")
        self.stamp("b6", A)
        self.ZT = ZT = self.V.get(8)
        A(f"ds_read_b128 {ZT[0:4]}, {self.vZr} offset:{L_Z}\nds_read_b128 {ZT[4:8]}, {self.vZr} offset:{L_Z + 4096}")
        A(f"global_store_dwordx4 {self.vS2o}, {ZT[0:4]}, s[30:31] sc1", tag="s2st")
        A(f"global_store_dwordx4 {self.vS2o2}, {ZT[4:8]}, s[30:31] sc1", tag="s2st")
        if self.o["poison_at"] == "pub":
            self.vFl = self.V.get()
            A(f"global_load_dword {self.vFl}, {self.vFi}, s[30:31] sc1")
        self.stamp("st2", A)
        self.V.put(self.vZr, self.vS2o, self.vS2o2)

    def poison_check(self, regs, t0):
        def chk(C):
            r = list(regs)
            if len(r) == 1:
                C(f"v_cmp_eq_u32 vcc, -1, {r[0]}")
                return
            C(f"v_max3_u32 {t0}, {r[0]}, {r[1]}, {r[2] if len(r) > 2 else r[1]}")
            r = r[3:]
            while r:
                C(f"v_max3_u32 {t0}, {t0}, {r[0]}, {r[1] if len(r) > 1 else r[0]}")
                r = r[2:]
            C(f"v_cmp_eq_u32 vcc, -1, {t0}")
        return chk

    def phase_c(self):
        A, V = self.A, self.V
        vL, vI, vG, sL, sW = self.vL, self.vI, self.vG, self.sL, self.sW
        get = V.get
        self.t = t0, t1, t2 = get(), get(), get()
        vSW, vKw, vS3o, vRo = get(), get(), get(), get()
        self.vS3i = get()
        vHr = self.vHr
        XL, XH, UD = get(8), get(8), get(16)
        for j in range(8):
            A(f"v_lshlrev_b32 {XL[j]}, 16, {self.XA[j]}")
            A(f"v_and_b32 {XH[j]}, 0xffff0000, {self.XA[j]}")
        A(f"v_lshlrev_b32 {t0}, 16, {self.vDk}\nv_and_b32 {t1}, 0xffff0000, {self.vDk}")
        A(f"v_mul_f32 {t0}, 0x41800000, {t0}\nv_mul_f32 {t1}, 0x41800000, {t1}")
        for e in range(2):
            G = self.G[e]
            for q in range(4):
                A(f"v_and_b32 {G[q]}, {G[q]}, {self.vMask}")
            for j in range(8):
                A(f"v_fma_mix_f32 {UD[8 * e + j]}, {G[j // 2]}, {(t0, t1)[e]}, 0 op_sel:[{j % 2},0,0] op_sel_hi:[1,0,0]")
            for j in range(8):
                self.rnd(A, UD[8 * e + j], UD[8 * e + j])
        V.put(*self.G, self.vMask, self.vDk)
        for k in range(8):
            A(f"v_dot2_f32_bf16 {vSW}, {self.WR[k]}, {self.sOnes}, {vSW if k else 0}")
        self.allreduce(A, "v_add_f32", [vSW], 32)
        A(f"""
        v_and_b32 {t0}, 31, v0
        v_lshlrev_b32 {t0}, 4, {t0}
        v_lshlrev_b32 {vKw}, 2, {self.vTau}
        s_lshl_b32 s3, {sW}, 13
        s_lshl_b32 s16, {sL}, 4
        s_add_u32 s3, s3, s16
        s_add_u32 s3, s3, {WS_S3}
        v_lshl_add_u32 {vS3o}, {vL}, 12, s3
        s_lshr_b32 s3, {sL}, 5
        s_lshl_b32 s3, s3, 12
        s_add_u32 s16, s3, {WS_S3}
        v_lshl_add_u32 {self.vS3i}, v0, 4, s16
        s_lshl_b32 s16, {sL}, 11
        s_add_u32 s16, s16, {WS_ROWS}
        v_add_u32 {vRo}, s16, {t0}
        s_lshl_b32 s3, {sL}, 3
        s_sub_u32 s3, 2047, s3
        v_sub_u32 {t2}, s3, {self.vTau}
        v_mov_b32 {t1}, 0
        """)
        if self.o["dma_ack2"] and self.o["dma_at"] != "none":
            A(f"s_cmp_eq_u32 {self.sRole}, 2\ns_cbranch_scc1 L_dma_done")
            A(f"s_cmp_eq_u32 {self.sRole}, 1\ns_cbranch_scc1 L_dma_r1")
            keep = list(A.vm)
            for role in (0, 1):
                if role:
                    A.label("L_dma_r1")
                plan = self.dma_plan(A, role)
                n = len(plan) if role == 0 else self.o["dma_ack2"]
                for a, b in plan[:n]:
                    A(a)
                    A(b, tag="dma")
                if role == 0:
                    A("s_branch L_dma_done")
                    V.put(self.vWa)
                else:
                    self.plan1 = plan[n:]
            A.label("L_dma_done")
        if self.o["dma0_ack2"] and self.o["dma_at"] != "none":
            A(f"s_cmp_eq_u32 {self.sRole}, 0\ns_cbranch_scc0 L_dma0_done")
            for a, b in self.dma_plan(A, 0):
                A(a)
                A(b, tag="dma")
            V.put(self.vWa)
            A.label("L_dma0_done")
        early = self.o["dma_s2"] and self.o["dma_at"] != "none"
        if early:
            A(f"s_cmp_eq_u32 {self.sRole}, 1\ns_cbranch_scc1 L_plan1")
            p0 = self.dma_plan(A, 0)
            keep = self.vWa
            A("s_branch L_plan_done")
            A.label("L_plan1")
            V.put(keep)
            p1 = self.dma_plan(A, 1)
            assert str(keep) == str(self.vWa)
            A.label("L_plan_done")
        self.stamp("dma", A)
        A.wait(vm=0)
        if self.o["poison_at"] == "pub":
            self.poll(A, "flg", lambda C: C(f"global_load_dword {self.vFl}, {self.vFi}, s[30:31] sc1"),
                      lambda C: C(f"v_cmp_ne_u32 vcc, {self.sE}, {self.vFl}"))
            V.put(self.vFl, self.vFi)
        self.stamp("ack2", A)
        ZT = self.ZT

        def s2_loads(C):
            C(f"global_load_dwordx4 {ZT[0:4]}, {self.vS2i}, s[30:31] sc1")
            C(f"global_load_dwordx4 {ZT[4:8]}, {self.vS2i2}, s[30:31] sc1")
        s2_loads(A)
        self.poll(A, "s2", s2_loads, self.poison_check([ZT[k] for k in range(8)], t0))
        self.stamp("s2", A)
        if early:
            n1 = self.o["dma_s2"] - 1
            A(f"s_cmp_eq_u32 {self.sRole}, 0\ns_cbranch_scc0 L_dma_n0")
            for a, b in p0:
                A(a)
                A(b)
            A.label("L_dma_n0")
            if n1:
                A(f"s_cmp_eq_u32 {self.sRole}, 1\ns_cbranch_scc0 L_dma_n1")
                for a, b in p1[:n1]:
                    A(a)
                    A(b)
                A.label("L_dma_n1")
            A.vm = []
            self.plan1 = p1[n1:]
        HP = get(8)
        self.T = T = get(8)
        for grp in range(2):
            for jj in range(4):
                j = 4 * grp + jj
                sel = self.sHi if j % 2 else self.sLo
                A(f"v_dot2_f32_bf16 {T[jj]}, {ZT[j // 2]}, {sel}, {UD[j]}")
                A(f"v_dot2_f32_bf16 {T[4 + jj]}, {ZT[4 + j // 2]}, {sel}, {UD[8 + j]}")
            for k in range(8):
                self.rnd(A, T[k], T[k])
            for q in range(2):
                j = 4 * grp + 2 * q
                A(f"v_pk_add_f32 {T[2 * q:2 * q + 2]}, {T[2 * q:2 * q + 2]}, {XL[j:j + 2]}")
                A(f"v_pk_add_f32 {T[4 + 2 * q:6 + 2 * q]}, {T[4 + 2 * q:6 + 2 * q]}, {XH[j:j + 2]}")
            for jj in range(4):
                A(f"v_cvt_pk_bf16_f32 {HP[4 * grp + jj]}, {T[jj]}, {T[4 + jj]}")
            for q in range(2):
                j = 4 * grp + 2 * q
                A(f"ds_write2st64_b32 {self.vHw2}, {HP[j]}, {HP[j + 1]} offset0:{4 * j} offset1:{4 * j + 4}")
        self.stamp("hw", A)
        A.barrier()
        self.stamp("b7", A)
        V.put(XL, XH, UD, HP, ZT, self.vS2i, self.vS2i2, self.XA)
        HB = get(8)
        A(f"ds_read_b128 {HB[0:4]}, {vHr} offset:{L_H}\nds_read_b128 {HB[4:8]}, {vHr} offset:{L_H + 512}")
        s1, s2, s3, NM, RS = get(), get(), get(), get(2), get(2)
        self.key = key = get()
        for k in range(8):
            A(f"v_dot2_f32_bf16 {s1}, {HB[k]}, {self.sOnes}, {s1 if k else 0}")
            A(f"v_dot2_f32_bf16 {s2}, {HB[k]}, {HB[k]}, {s2 if k else 0}")
            A(f"v_dot2_f32_bf16 {s3}, {HB[k]}, {self.WR[k]}, {s3 if k else 0}")
        self.allreduce(A, "v_add_f32", [s1, s2, s3], 32)
        self.ln_stats(A, s1, s2, NM[0], RS[0])
        A(f"v_fma_f32 {s3}, {NM[0]}, {vSW}, {s3}\nv_mul_f32 {s3}, {s3}, {RS[0]}")
        self.rnd(A, s3, s3)
        A(f"""
        v_ashrrev_i32 {t0}, 31, {s3}
        v_or_b32 {t0}, 0x80000000, {t0}
        v_xor_b32 {t0}, {s3}, {t0}
        v_and_b32 {t0}, 0xffff0000, {t0}
        v_or_b32 {key}, {t0}, {t2}
        s_mov_b64 exec, 1
        s_bitset1_b64 exec, 32
        ds_write_b32 {vKw}, {key} offset:{L_KEY}
        s_mov_b64 exec, -1
        """)
        self.stamp("key", A)
        H32 = get(16)
        for k in range(8):
            A(f"v_lshlrev_b32 {H32[2 * k]}, 16, {HB[k]}\nv_and_b32 {H32[2 * k + 1]}, 0xffff0000, {HB[k]}")
        A.barrier()
        self.kmax = kmax = get()
        A(f"ds_read_b128 {T[0:4]}, {t1} offset:{L_KEY}\nds_read_b128 {T[4:8]}, {t1} offset:{L_KEY + 16}")
        HN = get(8)
        self.D = D = get(32)
        A(f"v_mov_b32 {NM[1]}, {NM[0]}\nv_mov_b32 {RS[1]}, {RS[0]}")
        for k in range(8):
            A(f"v_pk_add_f32 {D[2 * k:2 * k + 2]}, {H32[2 * k:2 * k + 2]}, {NM}")
        A(f"v_max3_u32 {kmax}, {T[0]}, {T[1]}, {T[2]}\nv_max3_u32 {t0}, {T[3]}, {T[4]}, {T[5]}")
        A(f"v_max3_u32 {kmax}, {kmax}, {T[6]}, {T[7]}\nv_max_u32 {kmax}, {kmax}, {t0}")
        A("s_mov_b64 exec, 3")
        A(f"global_store_dword {vS3o}, {kmax}, s[30:31] sc1", tag="s3st")
        A("s_mov_b64 exec, -1")
        self.stamp("pub3", A)
        sC = self.sC
        A(f"v_cmp_eq_u32 {sC}, {key}, {kmax}")
        for k in range(16):
            self.rnd(A, D[k], D[k])
        for k in range(8):
            A(f"v_pk_mul_f32 {D[2 * k:2 * k + 2]}, {D[2 * k:2 * k + 2]}, {RS}")
        for k in range(8):
            A(f"v_cvt_pk_bf16_f32 {HN[k]}, {D[2 * k]}, {D[2 * k + 1]}")
        A(f"s_mov_b64 exec, {sC}")
        A(f"global_store_dwordx4 {vRo}, {HN[0:4]}, s[30:31] sc1", tag="rowst")
        A(f"global_store_dwordx4 {vRo}, {HN[4:8]}, s[30:31] offset:512 sc1", tag="rowst")
        A(f"global_store_dwordx4 {vRo}, {HB[0:4]}, s[30:31] offset:1024 sc1", tag="rowst")
        A(f"global_store_dwordx4 {vRo}, {HB[4:8]}, s[30:31] offset:1536 sc1", tag="rowst")
        A("s_mov_b64 exec, -1")
        self.stamp("hn", A)
        self.O = O = get(8)
        for k in range(8):
            A(f"v_dot2_f32_bf16 {D[2 * k]}, {HN[k]}, {self.sLo}, {H32[2 * k]}")
            A(f"v_dot2_f32_bf16 {D[2 * k + 1]}, {HN[k]}, {self.sHi}, {H32[2 * k + 1]}")
        for k in range(8):
            A(f"v_cvt_pk_bf16_f32 {O[k]}, {D[2 * k]}, {D[2 * k + 1]}")
        self.stamp("outc", A)
        V.put(H32, s1, s2, s3, NM, RS, vSW, vKw, vS3o, vRo, self.WR)

    def out_stores(self, C):
        pol = self.o["out_pol"]
        C(f"global_store_dwordx4 {self.vRow}, {self.O[0:4]}, s[28:29] {pol}", tag="out")
        C(f"global_store_dwordx4 {self.vRow}, {self.O[4:8]}, s[28:29] offset:512 {pol}", tag="out")

    def resolve(self, A, sfx, between=None):
        t0, t1, t2 = self.t
        T, kin = self.T, self.kin

        def s3_loads(C):
            C(f"global_load_dword {kin}, {self.vS3i}, s[30:31] sc1")
        s3_loads(A)
        if between:
            between()
        A(f"v_lshrrev_b32 {t1}, 4, v0\nv_and_b32 {t1}, 12, {t1}\nv_mov_b32 {t2}, 0")
        self.poll(A, "s3" + sfx, s3_loads, self.poison_check([kin], t0))
        self.stamp("s3p", A)
        self.allreduce(A, "v_max_u32", [kin], 64)
        self.stamp("s3w", A)
        A(f"s_mov_b64 exec, 1\nds_write_b32 {t1}, {kin} offset:{L_KEY2}\ns_mov_b64 exec, -1")
        A.barrier()
        A(f"ds_read_b128 {T[0:4]}, {t2} offset:{L_KEY2}")
        A(f"v_max3_u32 {kin}, {T[0]}, {T[1]}, {T[2]}\nv_max_u32 {kin}, {kin}, {T[3]}")
        A(f"v_readfirstlane_b32 {self.sK}, {kin}")
        A(f"s_and_b32 {self.sT}, {self.sK}, 0x7ff\ns_sub_u32 {self.sT}, 2047, {self.sT}")
        self.stamp("s3", A)
        A(f"s_lshr_b32 s3, {self.sT}, 3\ns_lshl_b32 s3, s3, 11\ns_add_u32 s3, s3, {WS_ROWS}")

    def finish(self, A, sfx):
        A.flush()
        A.label(f"L_fin_{sfx}")
        if self.o["stamps"]:
            A.wait(vm=0)
            self.stamp("end", A)
            if self.o["clk"]:
                A("s_memtime s[96:97]")
                A.wait(lg=0)
                A("s_sub_u32 s100, s96, s100\ns_mov_b32 s101, 0")
            A("s_waitcnt vmcnt(0) lgkmcnt(0)")
            self.dump_stamps(A)
        A("s_endpgm")

    def tail0(self, A):
        V = self.V
        get = V.get
        vL, vI, vG, sL, sW, sC = self.vL, self.vI, self.vG, self.sL, self.sW, self.sC
        t0, t1, t2 = self.t
        T, D = self.T, self.D
        vTr, vRed, vXs, vPub, vRd = get(), get(), get(), get(), get()
        WT = [self.AC.get(4, 4) for _ in range(8)]
        plan = [] if self.o["dma_ack2"] or self.o["dma0_ack2"] or self.o["dma_s2"] else self.dma_plan(A, 0)
        if self.o["dma_at"] == "none":
            plan = []

        def dma():
            for a, b in plan:
                A(a)
                A(b, tag="dma")
        if not self.o["r0_late"]:
            dma()
        A(f"""
        v_and_b32 {t0}, 3, {vI}
        v_lshlrev_b32 {t0}, 3, {t0}
        v_lshrrev_b32 {t1}, 2, {vI}
        v_lshl_add_u32 {t1}, {vG}, 3, {t1}
        v_lshl_add_u32 {t0}, {t1}, 6, {t0}
        v_add_u32 {vTr}, {self.sWb}, {t0}
        """)

        def tr_reads():
            A.wait_tag("dma")
            for ct in range(2):
                for m in range(4):
                    for e2 in range(2):
                        A(f"ds_read_b64_tr_b16 {WT[4 * ct + m][2 * e2:2 * e2 + 2]}, {vTr} offset:{(32 * m + 4 * e2) * 64 + 32 * ct}")
        A(f"""
        s_lshl_b32 s3, {sW}, 2
        v_lshl_add_u32 {vRed}, {vI}, 4, s3
        v_and_b32 {t0}, 3, {vI}
        v_lshlrev_b32 {t0}, 6, {t0}
        v_lshl_add_u32 {t0}, {vG}, 4, {t0}
        s_lshl_b32 s3, {sW}, 8
        v_add_u32 {vXs}, s3, {t0}
        v_and_b32 {t0}, 31, {vL}
        v_lshlrev_b32 {vRd}, 4, {t0}
        v_lshrrev_b32 {t1}, 5, {vL}
        v_lshlrev_b32 {t1}, 13, {t1}
        v_lshl_add_u32 {t1}, {t0}, 1, {t1}
        s_lshl_b32 s3, {sW}, 14
        s_lshl_b32 s16, {self.sUp}, 12
        s_add_u32 s3, s3, s16
        s_lshl_b32 s16, {self.sBlk}, 6
        s_add_u32 s3, s3, s16
        s_add_u32 s3, s3, {WS_S4}
        v_add_u32 {vPub}, s3, {t1}
        """)
        A.wait_tag("s3st")
        self.stamp("ack3", A)

        late_out = self.o["r0_late"] == 2

        def between():
            if self.o["r0_late"]:
                dma()
            if not late_out:
                A(f"s_andn2_b64 exec, -1, {sC}")
                self.out_stores(A)
                A("s_mov_b64 exec, -1")
            if not self.o["r0_late"]:
                tr_reads()
        self.resolve(A, "r0", between)
        XS = get(4)
        A(f"v_add_u32 {vXs}, s3, {vXs}")

        def row_loads(C):
            C(f"global_load_dwordx4 {XS}, {vXs}, s[30:31] sc1")
        row_loads(A)
        if late_out:
            A(f"v_cmp_ne_u32 {sC}, {self.kin}, {self.key}")
        else:
            A(f"v_cmp_ne_u32 vcc, {self.kin}, {self.kmax}\ns_and_b64 exec, vcc, {sC}")
            self.out_stores(A)
            A("s_mov_b64 exec, -1")
        if self.o["r0_late"]:
            tr_reads()
        self.poll(A, "rowr0", row_loads, self.poison_check([XS[k] for k in range(4)], t0))
        self.stamp("row", A)
        for k in range(8):
            A(f"v_mfma_f32_16x16x32_bf16 {D[4 * k:4 * k + 4]}, {XS}, {WT[k]}, 0")
        A(f"s_cmp_eq_u32 {self.sUp}, 0\ns_cselect_b64 s[16:17], -1, 0")
        A(f"""
        v_add_f32 {t0}, {D[0]}, {D[5]}
        v_add_f32 {t1}, {D[10]}, {D[15]}
        v_add_f32 {t0}, {t0}, {t1}
        v_add_f32 {t1}, {D[16]}, {D[21]}
        v_add_f32 {t2}, {D[26]}, {D[31]}
        v_add_f32 {t1}, {t1}, {t2}
        s_mov_b64 exec, 0xffff
        ds_write_b32 {vRed}, {t0} offset:{L_RED}
        ds_write_b32 {vRed}, {t1} offset:{L_RED + 256}
        s_mov_b64 exec, -1
        """)
        self.stamp("g1m", A)
        A.barrier()
        self.stamp("g1b", A)
        A(f"ds_read_b128 {T[0:4]}, {vRd} offset:{L_RED}")
        A(f"v_pk_add_f32 {T[0:2]}, {T[0:2]}, {T[2:4]}\nv_add_f32 {T[0]}, {T[0]}, {T[1]}")
        self.rnd(A, T[0], T[0])
        A(f"v_mul_f32 {t0}, {LOG2E | 0x80000000}, {T[0]}\nv_exp_f32 {t0}, {t0}\nv_add_f32 {t0}, 1.0, {t0}")
        A(f"v_rcp_f32 {t0}, {t0}\nv_mul_f32 {t0}, {T[0]}, {t0}")
        A(f"v_cndmask_b32 {t0}, {T[0]}, {t0}, s[16:17]")
        A(f"v_mov_b32_dpp {t1}, {t0} row_shl:1 row_mask:0xf bank_mask:0xf")
        A(f"v_cvt_pk_bf16_f32 {XS[0]}, {t0}, {t1}")
        for k in range(1, 4):
            A(f"v_mov_b32_dpp {XS[k]}, {XS[0]} row_shl:{2 * k} row_mask:0xf bank_mask:0xf")
        A("s_mov_b32 exec_lo, 0x01010101\ns_mov_b32 exec_hi, 0x01010101")
        A(f"global_store_dwordx4 {vPub}, {XS}, s[30:31] sc1")
        self.stamp("g1", A)
        if late_out:
            A(f"s_mov_b64 exec, {sC}")
            self.out_stores(A)
        self.finish(A, "r0")

    def tail2(self, A):
        A.wait_tag("s3st")
        self.stamp("ack3", A)

        def between():
            A(f"s_andn2_b64 exec, -1, {self.sC}")
            self.out_stores(A)
            A("s_mov_b64 exec, -1")
        if self.o["r2_late"]:
            self.resolve(A, "r2")
            A(f"v_cmp_ne_u32 vcc, {self.kin}, {self.key}\ns_mov_b64 exec, vcc")
        else:
            self.resolve(A, "r2", between)
            A(f"v_cmp_ne_u32 vcc, {self.kin}, {self.kmax}\ns_and_b64 exec, vcc, {self.sC}")
        self.out_stores(A)
        self.finish(A, "r2")

    def tail1(self, A):
        V = self.V
        get = V.get
        vL, vI, vG, sL, sW, sC = self.vL, self.vI, self.vG, self.sL, self.sW, self.sC
        t0, t1, t2 = self.t
        T, D = self.T, self.D
        plan = self.plan1 if self.o["dma_ack2"] or self.o["dma_s2"] else self.dma_plan(A, 1)
        if self.o["dma_at"] == "none":
            plan = []
        n1 = self.o["r1_split"]
        for a, b in plan[:n1]:
            A(a)
            A(b, tag="dma")
        A.wait_tag("s3st")
        self.stamp("ack3", A)

        def between():
            for a, b in plan[n1:]:
                A(a)
                A(b, tag="dma")
        self.resolve(A, "r1", between)
        vTr, vRed, vSig, vOut, vS4i = get(), get(), get(), get(), get()
        HH = get(2)
        A(f"""
        s_lshl_b32 s16, {self.sBlk}, 5
        s_add_u32 s3, s3, s16
        v_lshrrev_b32 {t1}, 1, {vI}
        v_lshl_add_u32 {t1}, {t1}, 2, s3
        """)

        def row_loads(C):
            C(f"global_load_dword {HH[0]}, {t1}, s[30:31] sc1")
            C(f"global_load_dword {HH[1]}, {t1}, s[30:31] offset:1024 sc1")
        row_loads(A)

        def own_rows():
            A(f"v_cmp_eq_u32 vcc, {self.kin}, {self.key}\ns_andn2_b64 exec, -1, vcc")
            self.out_stores(A)
            A("s_mov_b64 exec, -1")
        if self.o["r1_out"] == "row":
            own_rows()
        A(f"""
        v_and_b32 {t0}, 3, {vI}
        v_lshlrev_b32 {t0}, 3, {t0}
        v_lshrrev_b32 {t2}, 2, {vI}
        v_lshl_add_u32 {t2}, {vG}, 3, {t2}
        v_lshl_add_u32 {t0}, {t2}, 5, {t0}
        v_add_u32 {vTr}, {self.sWb}, {t0}
        """)
        self.poll(A, "rowr1", row_loads, self.poison_check([HH[0], HH[1]], t0))
        self.stamp("row", A)
        WT = [self.AC.get(4, 4) for _ in range(14)]
        A.wait_tag("dma")
        if self.o["r1_out"] == "tr":
            own_rows()
        self.stamp("r1o", A)
        for m in range(14):
            for e2 in range(2):
                A(f"ds_read_b64_tr_b16 {WT[m][2 * e2:2 * e2 + 2]}, {vTr} offset:{(32 * m + 4 * e2) * 32}")
        self.stamp("r1t", A)
        sK, sT = self.sK, self.sT
        A(f"""
        s_and_b32 s16, {sK}, 0x7fff0000
        s_andn2_b32 s17, 0xffff0000, {sK}
        s_bitcmp1_b32 {sK}, 31
        s_cselect_b32 s16, s16, s17
        v_mov_b32 {t0}, s16
        v_mul_f32 {t0}, {LOG2E | 0x80000000}, {t0}
        v_exp_f32 {t0}, {t0}
        v_add_f32 {t0}, 1.0, {t0}
        v_rcp_f32 {t0}, {t0}
        """)
        self.rnd(A, vSig, t0)
        vS4u = get()
        A(f"""
        v_and_b32 {t0}, 1, {vI}
        v_xor_b32 {t0}, 1, {t0}
        v_lshlrev_b32 {t0}, 4, {t0}
        v_lshlrev_b32 {HH[0]}, {t0}, {HH[0]}
        v_lshlrev_b32 {HH[1]}, {t0}, {HH[1]}
        v_and_b32 {HH[0]}, 0xffff0000, {HH[0]}
        v_and_b32 {HH[1]}, 0xffff0000, {HH[1]}
        s_lshl_b32 s3, {sT}, 10
        s_lshl_b32 s16, {self.sBlk}, 5
        s_add_u32 s3, s3, s16
        v_lshl_add_u32 {vOut}, {vI}, 1, s3
        s_lshr_b32 s3, {sL}, 5
        s_lshl_b32 s3, s3, 13
        s_mul_i32 s16, {sW}, {56 * 16}
        s_add_u32 s3, s3, s16
        s_add_u32 s3, s3, {WS_S4}
        v_min_u32 {t0}, 13, {vI}
        v_lshl_add_u32 {t0}, {t0}, 2, {vG}
        v_lshl_add_u32 {vS4i}, {t0}, 4, s3
        v_add_u32 {vS4u}, 0x1000, {vS4i}
        s_lshl_b32 s3, {sW}, 2
        v_lshl_add_u32 {vRed}, {vI}, 4, s3
        v_mov_b32 {t2}, 0
        v_lshlrev_b32 {t1}, 4, {vI}
        """)
        if self.o["r1_out"] == "late":
            own_rows()
        A.wait(vm=0)
        self.stamp("r1a", A)
        GU, XS = get(8), get(4)

        def s4_loads(C):
            C(f"global_load_dwordx4 {GU[0:4]}, {vS4i}, s[30:31] sc1")
            C(f"global_load_dwordx4 {GU[4:8]}, {vS4u}, s[30:31] sc1")
        s4_loads(A)
        self.poll(A, "s4", s4_loads, self.poison_check([GU[k] for k in range(8)], t0))
        self.stamp("g1", A)
        for k in range(4):
            A(f"v_and_b32 {T[2 * k]}, 0xffff, {GU[k]}\nv_and_b32 {T[2 * k + 1]}, 0xffff0000, {GU[k]}")
        for k in range(8):
            A(f"v_dot2_f32_bf16 {T[k]}, {T[k]}, {GU[4 + k // 2]}, 0")
        for k in range(4):
            A(f"v_cvt_pk_bf16_f32 {XS[k]}, {T[2 * k]}, {T[2 * k + 1]}")
        DD = [D[4 * k:4 * k + 4] for k in range(8)]
        acc = [t2, get()]
        A(f"v_mov_b32 {acc[1]}, 0")
        for m in range(14 + 4):
            if m < 14:
                A(f"v_mfma_f32_16x16x32_bf16 {DD[m % 8]}, {XS}, {WT[m]}, 0")
            k = m - 4
            if k >= 0:
                a = acc[k % 2]
                A(f"v_add_f32_dpp {a}, {DD[k % 8][k % 4]}, {a} quad_perm:[0,1,2,3] row_mask:{1 << (k // 4)} bank_mask:0xf")
        A(f"v_add_f32 {t2}, {t2}, {acc[1]}")
        for sw in ("v_permlane16_swap_b32", "v_permlane32_swap_b32"):
            A(f"v_mov_b32 {t0}, {t2}\n{sw} {t2}, {t0}\nv_add_f32 {t2}, {t2}, {t0}")
        A(f"s_mov_b64 exec, 0xffff\nds_write_b32 {vRed}, {t2} offset:{L_RED}\ns_mov_b64 exec, -1")
        self.stamp("g2m", A)
        if self.o["r1_out"] == "end":
            own_rows()
        A.barrier()
        A(f"s_cmp_eq_u32 {sW}, 0\ns_cbranch_scc0 L_fin_r1")
        A(f"ds_read_b128 {T[0:4]}, {t1} offset:{L_RED}")
        A(f"v_pk_add_f32 {T[0:2]}, {T[0:2]}, {T[2:4]}\nv_add_f32 {t0}, {T[0]}, {T[1]}")
        self.rnd(A, t0, t0)
        A(f"v_mul_f32 {t0}, {t0}, {vSig}")
        self.rnd(A, t0, t0)
        A(f"v_add_f32 {t0}, {t0}, {HH[0]}")
        self.rnd(A, t0, t0)
        A(f"v_add_f32 {t0}, {t0}, {HH[1]}")
        self.rnd(A, t0, t0)
        A("s_mov_b64 exec, 0xffff")
        A(f"global_store_short_d16_hi {vOut}, {t0}, s[28:29] {self.o['fin_pol']}")
        self.stamp("g2", A)
        A(f"s_cmp_eq_u32 {self.sBlk}, 0\ns_cbranch_scc0 L_fin_r1")
        A("s_mov_b64 exec, 1")
        A(f"v_mov_b32 {t0}, {self.sE}\nv_mov_b32 {t2}, 0")
        A(f"global_store_dword {t2}, {t0}, s[30:31] offset:{WS_EPOCH} {self.o['fin_pol']}")
        self.finish(A, "r1")

    def build(self):
        A = self.A
        self.prologue()
        self.ksl = self.ksetup_lines()
        self.ksteps = self.kgen_steps()
        self.weave(self.o["wv"][0])
        for _ in range(self.o["kpre"]):
            next(self.ksteps)
        if self.o["poison_at"] == "kpre":
            self.poison2()
        self.ln1()
        self.kgen()
        self.sWb, self.sC, self.sK, self.sT = self.S.get(), self.S.get(2), self.S.get(), self.S.get()
        self.conv_all()
        self.phase_c()
        self.kin = self.V.get()
        A(f"s_cmp_eq_u32 {self.sRole}, 1\ns_cbranch_scc1 L_role1")
        B = A.fork()
        B.label("L_role1")
        A(f"s_cmp_eq_u32 {self.sRole}, 2\ns_cbranch_scc1 L_role2")
        C = A.fork()
        C.label("L_role2")
        vfree, afree = set(self.V.free), set(self.AC.free)
        self.tail0(A)
        self.V.free, self.AC.free = set(vfree), set(afree)
        self.tail1(B)
        self.V.free, self.AC.free = set(vfree), set(afree)
        self.tail2(C)
        B.lines += C.lines
        B.count += C.count
        body = A.text() + B.text() + "".join(c.text() for c in self.cold)
        nv = self.V.top + 1
        accum = (nv + 3) // 4 * 4
        total = max(accum + self.AC.top + 1, 264)
        head = open(f"cdna_kernels/{NAME}.s.ref").read().split("; Override launch geometry")[0]
        self.stats = dict(instr=A.count + B.count, nops=A.nops + B.nops, vgpr=nv, agpr=self.AC.top + 1, mfma=self.nmfma, bg_left=self.bg_left)
        tab = ""
        if self.o["band_tab"]:
            tab = f".p2align 7\n.type L_tab,@object\nL_tab:\n{band_table()}\n.size L_tab, 4096\n"
        return head + f"""; One persistent launch: 256 workgroups, one per CU, exchanging data through d_ws.
; @launch grid=(256,1,1) block=(256,1,1) lds={LDS_BYTES}
.amdgcn_target "amdgcn-amd-amdhsa--gfx950"
.text
.globl {NAME}_kernel
.p2align 8
.type {NAME}_kernel,@function
{NAME}_kernel:
{body}L_end:
    s_endpgm
L_code_end:
{tab}L_all_end:
.section .rodata,"a"
.p2align 6
.amdhsa_kernel {NAME}_kernel
  .amdhsa_next_free_vgpr {total}
  .amdhsa_next_free_sgpr 102
  .amdhsa_accum_offset {accum}
  .amdhsa_group_segment_fixed_size 0
  .amdhsa_kernarg_size 120
  .amdhsa_user_sgpr_count 2
  .amdhsa_user_sgpr_kernarg_segment_ptr 1
  .amdhsa_system_sgpr_workgroup_id_x 1
  .amdhsa_float_denorm_mode_32 3
.end_amdhsa_kernel
"""


def generate(path, **opt):
    g = Gen(**opt)
    text = g.build()
    open(path, "w").write(text)
    return g.stats


if __name__ == "__main__":
    out = sys.argv[1] if len(sys.argv) > 1 else f"cdna_kernels/{NAME}.s"
    opts = {}
    for a in sys.argv[2:]:
        k, v = a.split("=")
        opts[k] = {"True": True, "False": False}.get(v, int(v) if v.isdigit() else v)
    print(generate(out, **opts))
```

```python
import re
import sys
from asmdsl import Asm, Pool, R
import gen_v9 as base
from gen_v9 import *

L_G = L_KEY2 + 16
VMAX = 116
EXTRA = dict(hb1=40, prio=2, hst=False, s1_go="ack", m_wait=True)


class Gen(base.Gen):
    def __init__(self, **opt):
        o = dict(EXTRA)
        o.update(opt)
        if isinstance(o.get("h_dma"), str):
            a = [int(x) for x in o["h_dma"].split("_")]
            o["h_dma"] = ((a[0], a[1]), (a[2], a[3]))
        super().__init__(**o)
        self.V = Pool("v", 1, VMAX - 1)
        self.AC = Pool("a", 0, 255 - VMAX)
        self.is_h = False

    def stamp(self, name, A=None):
        if self.is_h == bool(self.o["hst"]) or name == "start":
            super().stamp(name, A)

    def entry(self):
        A, V, S = self.A, self.V, self.S
        A("s_cmp_ge_u32 s2, 0x100\ns_cbranch_scc1 L_end")
        A("s_load_dwordx16 s[4:19], s[0:1], 0\ns_load_dwordx8 s[20:27], s[0:1], 64")
        A("s_load_dwordx2 s[28:29], s[0:1], 96\ns_load_dwordx2 s[30:31], s[0:1], 112")
        self.stamp("start")
        self.sL, self.sW, self.sTag, self.sE = S.get(), S.get(), S.get(), S.get()
        self.sOnes, self.sLo, self.sHi, self.sCh = S.get(), S.get(), S.get(), S.get()
        self.sB, self.sH, self.sa, self.sb = S.get(), S.get(), S.get(), S.get()
        sL, sW = self.sL, self.sW
        self.vL, self.vI, self.vG = V.get(), V.get(), V.get()
        self.vJunk = V.get(2)
        t0, t1, t2 = V.get(), V.get(), V.get()
        self.sPc = S.get(2)
        A(f"v_lshrrev_b32 {t0}, 6, v0\ns_lshr_b32 {sL}, s2, 3\ns_getpc_b64 {self.sPc}")
        A.label("L_pc")
        A(f"""
        v_lshl_add_u32 {t2}, {sL}, 3, {t0}
        v_and_b32 {t2}, 63, {t2}
        v_and_b32 {t1}, 3, v0
        v_lshl_add_u32 {t2}, {t2}, 2, {t1}
        v_lshlrev_b32 {t2}, 7, {t2}
        v_min_u32 {t2}, L_all_end-L_pc-4, {t2}
        global_load_dword {self.vJunk[0]}, {t2}, {self.sPc}
        v_readfirstlane_b32 {self.sb}, {t0}
        s_and_b32 s3, s2, 7
        s_lshl_b32 s3, s3, 5
        s_add_u32 {sL}, {sL}, s3
        v_and_b32 v0, 0xff, v0
        v_and_b32 {self.vL}, 63, v0
        s_and_b32 {sW}, {self.sb}, 3
        s_lshr_b32 {self.sB}, {sW}, 1
        s_and_b32 {self.sH}, {sW}, 1
        s_cmp_ge_u32 {self.sb}, 4
        s_cbranch_scc1 L_helper
        """)
        V.put(t0, t1, t2)

    def helper(self, A):
        self.A, self.is_h = A, True
        V, S = self.V, self.S
        sL, sW, sB, sH, sb, vL, vI, vG = self.sL, self.sW, self.sB, self.sH, self.sb, self.vL, self.vI, self.vG
        t0, t1, t2, t3, vP = V.get(), V.get(), V.get(), V.get(), V.get()
        self.PAR, self.sDt = V.get(4), S.get()
        A(f"""
        s_lshr_b32 s3, {sL}, 6
        s_lshl_b32 {self.sCh}, s3, 7
        s_and_b32 s3, {sL}, 31
        s_lshl_b32 s3, s3, 2
        s_add_u32 {self.sCh}, {self.sCh}, s3
        s_bfe_u32 s3, {sL}, 0x10005
        s_add_u32 {self.sCh}, {self.sCh}, s3
        s_and_b32 s3, {sW}, 2
        s_add_u32 {self.sCh}, {self.sCh}, s3
        s_lshl_b32 s3, {self.sCh}, 8
        v_lshl_add_u32 {vP}, {vL}, 2, s3
        s_lshl_b32 s3, {self.sCh}, 1
        s_and_b32 s3, s3, -4
        """)
        for k in range(4):
            A(f"global_load_dword {self.PAR[k]}, {vP}, s[{6 + 2 * k}:{7 + 2 * k}]")
        self.vDt = V.get()
        A(f"v_mov_b32 {self.vDt}, s3\nglobal_load_dword {self.vDt}, {self.vDt}, s[14:15]")
        self.stamp("karg")
        A.raw(";@cut")
        Z = V.get(4)
        self.vShift, self.vShiftR = V.get(), V.get()
        A(f"v_and_b32 {vI}, 15, v0\nv_bfe_u32 {vG}, v0, 4, 2")
        for k in range(4):
            A(f"v_mov_b32 {Z[k]}, 0")
        A(f"""
        v_lshlrev_b32 {t2}, 4, v0
        v_lshlrev_b32 {t3}, 2, {vL}
        v_and_b32 {t1}, 127, v0
        s_mul_i32 s3, {sB}, {UCH}
        s_add_u32 {sb}, s3, {L_U}
        v_lshl_add_u32 {t0}, {t1}, 2, {sb}
        ds_write_b128 {t2}, {Z} offset:{L_P}
        ds_write_b128 {t2}, {Z} offset:{L_P + 4096}
        ds_write_b128 {t2}, {Z} offset:{L_P + 8192}
        ds_write_b128 {t2}, {Z} offset:{L_P + 12288}
        ds_write_b32 {t3}, {Z[0]} offset:{L_P + 16384}
        ds_write_b32 {t0}, {Z[0]}
        s_mul_i32 s3, {sB}, {2 * PHALF}
        v_lshl_add_u32 {self.vShiftR}, {t1}, 4, s3
        s_mul_i32 s3, {sB}, {KCH}
        v_lshl_add_u32 {self.vShift}, {t1}, 4, s3
        """)
        self.sStM = S.get()
        self.vR, self.vS0, self.vS1r = V.get(), V.get(), V.get()
        self.vK1, self.vK3, self.vKs = V.get(), V.get(), V.get()

        def pa(m):
            return ((m >> 2) & 1) * PPLANE + (m >> 3) * 16 + (m & 3) * 4
        A(f"""
        s_mul_i32 s3, {sB}, {STAGE_CH}
        s_lshl_b32 {sb}, {sH}, 8
        s_add_u32 s3, s3, {sb}
        s_add_u32 {self.sStM}, s3, {L_STAGE - 0x8000}
        s_add_u32 s3, s3, {L_STAGE}
        v_lshl_add_u32 {t2}, {vG}, 4, s3
        v_xor_b32 {t0}, 3, {vI}
        v_bfe_u32 {t1}, {t0}, 1, 1
        v_add_u32 {t1}, {t0}, {t1}
        v_lshrrev_b32 {t1}, 1, {t1}
        s_movk_i32 s3, {ROWB}
        v_mad_u32_u24 {self.vR}, {vI}, s3, {t2}
        v_mad_u32_u24 {self.vS0}, {t0}, s3, {t2}
        v_mad_u32_u24 {self.vS1r}, {t1}, s3, {t2}
        s_mul_i32 s3, {sW}, {PHALF}
        s_add_u32 s3, s3, {L_P}
        v_xor_b32 {t3}, 3, {vG}
        v_and_b32 {t0}, 1, {t3}
        v_mul_u32_u24 {t0}, {PPLANE}, {t0}
        v_lshrrev_b32 {t3}, 1, {t3}
        v_lshl_add_u32 {t3}, {t3}, 4, {t0}
        v_add_u32 {t3}, s3, {t3}
        v_lshlrev_b32 {t0}, 5, {vI}
        v_sub_u32 {t0}, {t3}, {t0}
        v_add_u32 {self.vK1}, {pa(528 - 256)}, {t0}
        v_lshrrev_b32 {t1}, 1, {vI}
        v_lshrrev_b32 {t2}, 2, {vI}
        v_add_u32 {t2}, 2, {t2}
        v_min_u32 {t1}, {t1}, {t2}
        v_add3_u32 {t1}, {t1}, {vI}, {FAR // 16 + 1}
        v_lshl_add_u32 {self.vK3}, {t1}, 5, {t3}
        v_cmp_gt_u32 vcc, 8, {vI}
        v_mov_b32 {t0}, {pa(28)}
        v_mov_b32 {t1}, {pa(NX + 24)}
        v_cndmask_b32 {t0}, {t0}, {t1}, vcc
        v_add_u32 {self.vKs}, s3, {t0}
        s_lshl_b32 s3, {sB}, 2
        v_mov_b32 {t2}, s3
        """)
        self.stamp("consts")
        V.put(Z, vP, t0, t1, t3)
        self.ksl = [f"v_readfirstlane_b32 {self.sDt}, {self.vDt}"] + self.ksetup_lines()
        self.weave(self.o["hb1"])
        self.stamp("stat")
        A.barrier()
        self.stamp("b1")
        if self.o["poison_at"] == "h":
            A(f"s_load_dword {self.sE}, s[30:31], {WS_EPOCH}")
        self.weave(1000)
        A(f"ds_write_b32 {t2}, {self.vG16} offset:{L_G}")
        for _ in self.kgen_steps():
            pass
        self.stamp("kmf")
        D, E = V.get(12), V.get(12)
        C = [V.get(4) for _ in range(4)]
        for k in range(3):
            off = L_P + (k & 1) * PPLANE + (k >> 1) * 16
            A(f"ds_read_b128 {D[4 * k:4 * k + 4]}, {self.vShiftR} offset:{off}")
            A(f"ds_read_b128 {E[4 * k:4 * k + 4]}, {self.vShiftR} offset:{off + PHALF}")
        for k in range(6):
            A(f"v_pk_add_f32 {D[2 * k:2 * k + 2]}, {D[2 * k:2 * k + 2]}, {E[2 * k:2 * k + 2]}")
        for c in range(4):
            for k in range(4):
                A(f"v_cvt_pk_f16_f32 {C[c][k]}, {D[c + 2 * k]}, {D[c + 2 * k + 1]}")
            if c % 2:
                for cc in (c - 1, c):
                    A(f"ds_write_b128 {self.vShift}, {C[cc]} offset:{L_K + cc * KCOPY}")
        self.stamp("shift")
        A.barrier()
        if self.o["poison_at"] == "h":
            V.put(D, E)
            self.vP2, self.M1, vFo, vE = V.get(), V.get(4), V.get(), V.get()
            self.vHr = self.vS1i = vL
            bg = self.background()
            A(f"""
            s_lshl_b32 {self.sa}, {sL}, 13
            s_lshl_b32 s3, {sW}, 11
            s_add_u32 s3, s3, {self.sa}
            s_add_u32 s3, s3, {WS_S2}
            v_lshl_add_u32 {self.vP2}, {vL}, 4, s3
            s_lshl_b32 s3, {sW}, 12
            s_lshl_b32 {sb}, {sL}, 4
            s_add_u32 s3, s3, {sb}
            s_add_u32 s3, s3, {WS_FLG}
            v_mov_b32 {vFo}, s3
            s_add_u32 {self.sE}, {self.sE}, 1
            v_mov_b32 {vE}, {self.sE}
            """)
            for k in range(4):
                A(f"v_mov_b32 {self.M1[k]}, -1")
            for ln in self.p3_lines[:-1]:
                A(ln)
            n = self.nwarm - (self.o["dma_at"] != "none")
            for ln in bg[:n]:
                A(ln)
            order = self.o["h_order"]
            if order == "wp":
                for ln in bg[n:self.nwarm]:
                    A(ln)
            self.poison2()
            A("\n".join(self.p3_lines[-1]), tag="poison")
            if order == "pw":
                for ln in bg[n:self.nwarm]:
                    A(ln)
            A.wait_tag("poison")
            A(f"s_mov_b64 exec, 1\nglobal_store_dword {vFo}, {vE}, s[30:31] sc1\ns_mov_b64 exec, -1")
            if order == "pfw":
                for ln in bg[n:self.nwarm]:
                    A(ln)
            self.stamp("b2")
            A("s_barrier")
        if self.o["h_dma"]:
            self.helper_dma(A)
        if self.o["stamps"] and self.o["hst"]:
            self.stamp("end")
            A("s_waitcnt vmcnt(0) lgkmcnt(0)")
            self.dump_stamps(A)
        A("s_endpgm")
        self.is_h = False

    def helper_dma(self, A):
        S, sL, sb = self.S, self.sL, self.sb
        self.sBlk, self.sRole, self.sUp, self.sWb = S.get(), S.get(), S.get(), S.get()
        A(f"""
        s_lshr_b32 s3, {sL}, 5
        s_and_b32 {sb}, {sL}, 31
        s_cmp_ge_u32 {sb}, {self.o["r1_at"]}
        s_cbranch_scc1 L_h_role1
        s_cmp_ge_u32 {sb}, 14
        s_cbranch_scc1 L_h_done
        s_cmp_ge_u32 {sb}, 7
        s_cselect_b32 {self.sUp}, 1, 0
        s_cselect_b32 s6, 7, 0
        s_sub_u32 s6, {sb}, s6
        s_mul_i32 {self.sBlk}, s3, 7
        s_add_u32 {self.sBlk}, {self.sBlk}, s6
        """)
        for role in (0, 1):
            if role:
                A.label("L_h_role1")
                A(f"s_lshl_b32 s3, s3, 2\ns_sub_u32 s6, {sb}, {self.o['r1_at']}\ns_add_u32 {self.sBlk}, s3, s6")
            plan = self.dma_plan(A, role)
            self.V.put(self.vWa)
            if self.o["dma_at"] == "none":
                plan = []
            cuts = self.o["h_dma"][role]
            for k in range(3):
                A("s_barrier")
                n = cuts[k] if k < 2 else len(plan)
                for a, b in plan[:n]:
                    A(a)
                    A(b)
                plan = plan[n:]
            A("s_waitcnt vmcnt(0)")
            A.vm = []
            A("s_barrier")
            if role == 0:
                A("s_branch L_h_done")
        A.label("L_h_done")

    def dma_plan(self, A, role):
        plan = super().dma_plan(A, role)
        return [] if self.o["h_dma"] and not self.is_h else plan

    def maybe_s1(self, where):
        if where == self.o["s1_go"]:
            self.A("s_barrier")

    def dump_stamps(self, A):
        if self.is_h == bool(self.o["hst"]):
            super().dump_stamps(A)

    def prologue_m(self):
        A, V, S = self.A, self.V, self.S
        sL, sW, sa, vL = self.sL, self.sW, self.sa, self.vL
        t1 = V.get()
        self.vTau, self.vHr, self.vRow = V.get(), V.get(), V.get()
        self.XB, self.XA = V.get(8), V.get(8)
        if self.o["prio"]:
            A(f"s_setprio {self.o['prio']}")
        A(f"""
        v_lshrrev_b32 {self.vTau}, 5, v0
        v_and_b32 {t1}, 31, v0
        v_lshlrev_b32 {t1}, 4, {t1}
        v_lshl_add_u32 {self.vHr}, {self.vTau}, 10, {t1}
        s_lshl_b32 {sa}, {sL}, 13
        v_add_u32 {self.vRow}, {sa}, {self.vHr}
        """)
        A(f"global_load_dwordx4 {self.XB[0:4]}, {self.vRow}, s[4:5]")
        A(f"global_load_dwordx4 {self.XB[4:8]}, {self.vRow}, s[4:5] offset:512")
        A(f"s_load_dword {self.sE}, s[30:31], {WS_EPOCH}")
        self.stamp("karg")
        A.raw(";@cut")
        self.vS1o, self.vP2, self.vMask, self.vHw2, self.M1 = V.get(), V.get(), V.get(), V.get(), V.get(4)
        A(f"""
        s_lshl_b32 s3, {sW}, 11
        s_add_u32 s3, s3, {sa}
        s_add_u32 s3, s3, {WS_S1}
        v_lshl_add_u32 {self.vS1o}, {vL}, 4, s3
        v_add_u32 {self.vP2}, {WS_S2 - WS_S1}, {self.vS1o}
        s_mov_b32 s3, {L_H}
        v_lshl_add_u32 {self.vHw2}, v0, 2, s3
        v_mov_b32 {self.vMask}, {0xFFFFFFFF ^ TAGMASK}
        s_mov_b32 {self.sOnes}, 0x3f803f80
        s_mov_b32 {self.sLo}, 0x3f80
        s_mov_b32 {self.sHi}, 0x3f800000
        v_and_b32 {self.vI}, 15, v0
        v_bfe_u32 {self.vG}, v0, 4, 2
        """)
        for k in range(4):
            A(f"v_mov_b32 {self.M1[k]}, -1")
        V.put(t1)
        self.conv_consts()
        if self.o["poison_at"] == "consts":
            self.poison2()
        self.stamp("consts")
        self.ksl = []

    def conv_consts(self):
        A, V = self.A, self.V
        vI, vG, sB, sL, sb = self.vI, self.vG, self.sB, self.sL, self.sb
        t0, t1, t2, t3 = V.get(), V.get(), V.get(), V.get()
        self.BAND = {key: V.get(4) for key in BANDS}
        SEL = V.get(6)
        A(f"""
        v_lshlrev_b32 {t0}, 3, {vG}
        v_sub_u32 {t0}, {t0}, {vI}
        v_add_u32 {t0}, 20, {t0}
        v_mul_u32_u24 {t0}, 0x10001, {t0}
        v_mov_b32 {t3}, 0x70007
        s_mov_b32 {sb}, 0xc000c
        """)
        for k in range(6):
            c0, c1 = 32 - 2 * k, 31 - 2 * k
            A(f"""
            s_mov_b32 s3, {c0 | c1 << 16}
            v_pk_sub_i16 {t1}, {t0}, s3
            v_pk_sub_i16 {t2}, s3, {t0}
            v_pk_max_i16 {t1}, {t1}, {t2}
            v_pk_min_i16 {t1}, {t1}, {t3}
            v_lshl_or_b32 {SEL[k]}, {t1}, 8, {sb}
            """)
        for (delta, h), B in self.BAND.items():
            lut = sum(0x3C << (8 * i) for i in range(min(h + 1, 4)))
            A(f"s_mov_b32 s3, {lut}")
            for d in range(4):
                A(f"v_perm_b32 {B[d]}, {60 if h == 4 else 0}, s3, {SEL[d + (0 if delta == 12 else 2)]}")
        self.vUf, self.vZw, self.vUw, self.vN, self.vF = V.get(), V.get(), V.get(), V.get(), V.get()
        self.vS1i, self.vS1i2 = V.get(), V.get()
        A(f"""
        s_mul_i32 s3, {sB}, {UCH}
        s_add_u32 {sb}, s3, {L_U}
        v_lshl_add_u32 {t0}, {vI}, 5, {sb}
        v_lshl_add_u32 {self.vUf}, {vG}, 4, {t0}
        s_mul_i32 s3, {sB}, {KCH}
        v_sub_u32 {t0}, 15, {vI}
        v_and_b32 {t1}, 3, {t0}
        v_and_b32 {t0}, 12, {t0}
        v_mul_u32_u24 {t1}, {KCOPY}, {t1}
        v_lshl_add_u32 {t0}, {t0}, 1, {t1}
        v_add_u32 {t0}, s3, {t0}
        v_lshl_add_u32 {self.vN}, {vG}, 4, {t0}
        v_lshl_add_u32 {self.vF}, {vG}, 3, {t0}
        v_and_b32 {t0}, 2, {vG}
        v_lshl_add_u32 {t0}, {vI}, 2, {t0}
        v_add_u32 {t0}, {sB}, {t0}
        v_lshrrev_b32 {t1}, 1, {vI}
        v_xor_b32 {t0}, {t0}, {t1}
        v_and_b32 {t1}, 1, {vG}
        v_lshlrev_b32 {t1}, 3, {t1}
        v_lshl_add_u32 {self.vZw}, {t0}, 4, {t1}
        v_and_b32 {t0}, 1, v0
        v_lshrrev_b32 {t1}, 1, v0
        v_mul_u32_u24 {t2}, {UCH}, {t0}
        v_lshl_add_u32 {self.vUw}, {t1}, 4, {t2}
        v_lshlrev_b32 {t0}, 4, {t0}
        v_lshl_add_u32 {t2}, {t1}, 13, {t0}
        s_lshl_b32 s3, {sL}, 5
        s_add_u32 s3, s3, {WS_S1}
        v_add_u32 {self.vS1i}, s3, {t2}
        v_add_u32 {self.vS1i2}, 0x100000, {self.vS1i}
        """)
        V.put(t0, t1, t2, t3, SEL)

    def after_publish(self):
        A, V = self.A, self.V
        if self.o["prio"]:
            A("s_setprio 0")
        V.put(self.XA)
        self.WR = V.get(8)
        bg = self.background()
        hmode = self.o["poison_at"] == "h"
        for item in [] if hmode else self.p3_lines:
            A("\n".join(item) if isinstance(item, tuple) else item, tag="poison3" if isinstance(item, tuple) else None)
        self.row_params()
        n = self.nwarm - (self.o["dma_at"] != "none")
        self.warm_line = [] if hmode else bg[n:self.nwarm]
        keep = self.bgtmp[0]
        vW = V.get()
        if hmode:
            V.put(self.vP2)
            self.vFi = V.get()
            A(f"s_lshr_b32 s3, {self.sL}, 6\ns_lshl_b32 s3, s3, 12\ns_add_u32 s3, s3, {WS_FLG}\nv_lshl_add_u32 {self.vFi}, v0, 4, s3")
        else:
            for ln in bg[:n]:
                A(ln)
            A(f"v_mov_b32 {vW}, {keep}")
        self.warm_line = [ln.replace(f" {keep},", f" {vW},") for ln in self.warm_line]
        for ln in bg[self.nwarm:]:
            A(ln)
        V.put(*self.bgtmp)
        self.bg, self.bgtmp = [], [vW]
        self.UG = V.get(8)
        self.vG16 = V.get()
        A(f"s_lshl_b32 s3, {self.sB}, 2\nv_mov_b32 {self.vG16}, s3")
        if self.o["s1_go"] == "ack":
            A.wait_tag("s1st")
            self.s1_loads(A)
        elif self.o["s1_go"] != "b3":
            A("s_barrier")
            if self.o["s1_split"]:
                A(f"global_load_dwordx4 {self.UG[0:4]}, {self.vS1i}, s[30:31] sc1")
            else:
                self.s1_loads(A)
        self.stamp("rec")
        A.barrier()
        self.stamp("kmf")
        if self.o["s1_go"] == "b3":
            self.s1_loads(A)
        elif self.o["s1_split"]:
            A(f"global_load_dwordx4 {self.UG[4:8]}, {self.vS1i2}, s[30:31] sc1")
        A(f"ds_read_b32 {self.vG16}, {self.vG16} offset:{L_G}")
        self.shift_regs = ()
        rd = {}
        for q in range(17):
            rd[f"@K{q}"] = [f"ds_read_b64 @K{q}.{2 * hf}, {self.vN} offset:{64 * (16 - q) + 8 * hf}" for hf in range(2)]
        rd["@KX"] = [f"ds_read_b64 @KX.{2 * hf}, {self.vN} offset:{2 * NX + 8 * hf}" for hf in range(2)]
        for k in range(2):
            for d in (2, 3, 4):
                rd[f"@B{k}{d}"] = [f"ds_read_b64 @B{k}{d}.{2 * hf}, {self.vF} offset:{2 * (V2[2 * k + hf] + 32 - 16 * (d - 2))}" for hf in range(2)]
        for d in (4, 5, 6, 7):
            rd[f"@C{d}"] = [f"ds_read_b64 @C{d}.{2 * hf}, {self.vF} offset:{2 * (V3[hf] + 48 - 16 * (d - 4))}" for hf in range(2)]
        self.frag_reads = rd

    def conv(self, A, tiles, dma):
        V, AC = self.V, self.AC
        PE, PD, NPRE, LAT = self.o["pe"], self.o["pd"], self.o["npre"], self.o["lat"]
        EY, EZ = V.get(4), V.get(2)
        qmax = {0: 7, 1: 15}
        b2 = sorted({j - d for j in tiles for d in (2, 3, 4) if j - d >= 0})
        b3 = sorted({j - d for j in tiles for d in (4, 5, 6, 7) if j - d >= 0})
        nlo = min(8 * j - qmax.get(j, 16) for j in tiles)
        nhi = 8 * max(tiles)
        near = []
        for fi, n in enumerate(range(nlo, nhi + 1)):
            for j in tiles:
                q = 8 * j - n
                if 0 <= q <= qmax.get(j, 16):
                    near.append((j, f"@K{q}", fi, q == 0))
        far, gfr, pcount = [], [], 0
        for b in sorted(set(b2) | set(b3)):
            ga, gb = len(gfr), len(gfr) + 1
            gfr += [256 * b - 16, 256 * b - 24]
            mains = []
            if b in b2:
                pa, pb = pcount, pcount + 1
                pcount += 2
                far += [("band", ga, (12, 1), pa, 0), ("band", ga, (8, 2), pa, 1), ("band", gb, (12, 1), pb, 0), ("band", gb, (8, 2), pb, 1)]
                mains += [("main", b + d, pa, f"@B0{d}") for d in (2, 3, 4) if b + d in tiles]
                mains += [("main", b + d, pb, f"@B1{d}") for d in (2, 3, 4) if b + d in tiles]
            if b in b3:
                pc = pcount
                pcount += 1
                far += [("band", ga, (8, 3), pc, 0), ("band", gb, (8, 4), pc, 1)]
                mains += [("main", b + d, pc, f"@C{d}") for d in (4, 5, 6, 7) if b + d in tiles]
            if b + 4 in tiles:
                far.append(("x", b + 4, ga))
            far += mains
        mf, fill = [], []
        started, done_at, first_use, pready = set(), {}, {}, {}
        wcount, ni, credit = 0, 0, 0.0
        farleft = list(far)
        span = self.o["far_span"][0 if 0 in tiles else 1]
        NP = self.o["np"]

        def acc_mf(j, a, b):
            mf.append(f"v_mfma_f32_16x16x32_f16 @acc{j}, {a}, {b}, {f'@acc{j}' if j in started else 0}")
            started.add(j)

        def far_ok(it):
            if it[0] == "main":
                return pready.get(it[2], 10 ** 6) <= len(mf)
            if it[0] == "band":
                return not any(o[0] == "main" and o[2] <= it[3] - NP for o in farleft)
            return True

        def blocked(k):
            return near[k][3] and any(o[0] in ("main", "x") and o[1] == near[k][0] for o in farleft)
        while ni < len(near) or farleft:
            t = len(mf)
            want_far = farleft and (credit >= 1.0 or ni >= len(near) or blocked(ni))
            pick = None
            if want_far:
                for it in farleft[:10]:
                    if far_ok(it) and not (it[0] == "band" and any(o[0] == "band" for o in farleft[:farleft.index(it)])):
                        pick = it
                        break
            if pick is None and ni < len(near) and not blocked(ni):
                j, a, fi, last = near[ni]
                ni += 1
                acc_mf(j, a, f"@F{fi}")
                if last:
                    done_at[j] = t
                credit += len(far) / span
                continue
            assert pick is not None, "conv schedule is stuck"
            farleft.remove(pick)
            credit -= 1.0
            if pick[0] == "band":
                _, g, key, p, hf = pick
                w = f"@W{wcount}"
                wcount += 1
                mf.append(f"v_mfma_f32_16x16x32_f16 {w}, @G{g}, {self.BAND[key]}, 0")
                for k in range(2):
                    fill.append([t + self.o["cvt0"], t + LAT - 1, f"v_cvt_pk_f16_f32 @P{p}:{2 * hf + k}, {w}:{2 * k}, {w}:{2 * k + 1}", None])
                if hf == 1:
                    pready[p] = t + LAT
            elif pick[0] == "x":
                acc_mf(pick[1], "@KX", f"@G{pick[2]}")
            else:
                acc_mf(pick[1], f"@P{pick[2]}", pick[3])
        nm = len(mf)
        tok = re.compile(r"@[A-Za-z]+\d*X?")
        for t, txt in enumerate(mf):
            for name in tok.findall(txt):
                first_use.setdefault(name, t)
        reads = []
        for name, t in first_use.items():
            if name[1] == "F":
                reads.append((t, f"ds_read_b128 {name}, {self.vUf} offset:{512 + 2 * (32 * (nlo + int(name[2:])) - 16)}"))
            elif name[1] == "G":
                reads.append((t, f"ds_read_b128 {name}, {self.vUf} offset:{512 + 2 * gfr[int(name[2:])]}"))
            elif name in self.frag_reads:
                reads += [(t, x) for x in self.frag_reads[name]]
        reads.sort(key=lambda r: r[0])
        pre = [txt for t, txt in reads if t <= NPRE]
        fill += [[max(t - PE, 0), max(t - PD, 0), txt, None] for t, txt in reads if t > NPRE]
        order_t = sorted(tiles, key=lambda j: done_at[j])
        for k, j in enumerate(order_t):
            t = done_at[j]
            nxt = done_at[order_t[k + 1]] if k + 1 < len(order_t) else nm + 100
            seq2 = [f"v_mul_f32 {EY[r]}, @acc{j}:{r}, {self.vG16}" for r in range(4)]
            seq2 += [f"v_cvt_pk_bf16_f32 {EZ[r]}, {EY[2 * r]}, {EY[2 * r + 1]}" for r in range(2)]
            seq2.append(f"ds_write_b64 {self.vZw}, {EZ} offset:{L_Z + 1024 * j}")
            for txt in seq2:
                fill.append([t + self.o["cvt0"], min(t + 12, nxt + 2), txt, f"e2_{j}"])
        for ln in self.late_warm:
            fill.append([self.o["warm_slot"], self.o["warm_slot"] + 2, ln, None])
        uses = {}
        for txt in mf + pre + [f[2] for f in fill]:
            for name in set(tok.findall(txt)):
                uses[name] = uses.get(name, 0) + 1
        vq, aq, held = [], [], []
        while True:
            try:
                vq.append(V.get(4))
            except RuntimeError:
                break
        while True:
            try:
                aq.append(AC.get(4, 4))
            except RuntimeError:
                break
        allv, alla = list(vq), list(aq)
        phys = {}
        low = [len(vq), len(aq)]

        def subst(txt, alloc):
            def rep(m):
                name, part = m.group(1), m.group(2) or ""
                if name not in phys:
                    if not alloc:
                        return "null"
                    vonly = name[1] in "WP" or name.startswith("@acc")
                    if not vonly and aq:
                        phys[name] = aq.pop(0)
                    else:
                        assert vq, f"out of registers at {name}"
                        phys[name] = vq.pop(0)
                    low[0], low[1] = min(low[0], len(vq)), min(low[1], len(aq))
                r = phys[name]
                if part.startswith("."):
                    return str(r[int(part[1:]):int(part[1:]) + 2])
                if part.startswith(":"):
                    return str(r[int(part[1:])])
                return str(r)
            return re.sub(r"(@[A-Za-z]+\d*X?)([.:]\d)?", rep, txt)

        def emit(txt):
            names = set(tok.findall(txt))
            A(subst(txt, True))
            for name in names:
                uses[name] -= 1
                if uses[name] == 0:
                    r = phys.pop(name)
                    (vq if r.kind == "v" else aq).append(r)
        for txt in pre:
            emit(txt)
        for i, f in enumerate(fill):
            f.append(i)
        left = list(fill)
        A.prewait([subst(mf[0], False)])
        for t in range(nm):
            emit(mf[t])
            chosen = []
            for f in sorted([f for f in left if f[0] <= t], key=lambda f: (f[1], f[4])):
                if len(chosen) >= 2 and f[1] > t:
                    break
                if f[3] and any(g[3] == f[3] and g[4] < f[4] and g not in chosen for g in left):
                    continue
                mem = f[2].startswith(("ds_", "global_"))
                if mem and f[1] > t and any(g[3] == f[3] and f[3] for g in chosen):
                    continue
                if f[2].startswith("ds_read") and f[1] > t and len(aq) + len(vq) < 4 and tok.findall(f[2])[0] not in phys:
                    continue
                chosen.append(f)
            memf = [f for f in chosen if f[2].startswith(("ds_", "global_")) and not any(g[3] == f[3] and f[3] and g[4] < f[4] for g in chosen)]
            rest = [f for f in chosen if f not in memf]
            A.prewait([subst(f[2], False) for f in chosen] + ([subst(mf[t + 1], False)] if t + 1 < nm else []))
            for f in memf + rest:
                emit(f[2])
                left.remove(f)
        for f in sorted(left, key=lambda f: (f[1], f[4])):
            emit(f[2])
        assert not phys
        self.nmfma = getattr(self, "nmfma", []) + [nm]
        self.bg_left = getattr(self, "bg_left", []) + [tuple(low)]
        V.put(EY, EZ, *allv)
        AC.put(*alla)

    def conv_all(self):
        A = self.A
        self.late_warm = []
        if self.o["warm_in"]:
            self.late_warm, self.warm_line = self.warm_line, []
        self.s1_consume(A, "")
        self.V.put(self.UG, self.vUw, self.vS1i, self.vS1i2)
        A(f"s_cmp_eq_u32 {self.sH}, 0\ns_cbranch_scc0 L_conv_b")
        B = A.fork()
        A.barrier()
        self.stamp("b5", A)
        self.conv(A, [0, 1, 2, 3, 4], [])
        A.wait(lg=0)
        A.flush()
        A("s_branch L_conv_done")
        B.label("L_conv_b")
        B.barrier()
        self.stamp("b5", B)
        self.conv(B, [5, 6, 7], [])
        B.wait(lg=0)
        B.flush()
        A.lines += B.lines
        A.count += B.count
        A.nops += B.nops
        A.label("L_conv_done")
        self.V.put(*self.BAND.values(), self.vUf, self.vZw, self.vG16, self.vN, self.vF, *self.bgtmp)
        self.stamp("conv", A)
        A("s_barrier")
        self.stamp("b6", A)
        self.ZT = ZT = self.V.get(8)
        A(f"ds_read_b128 {ZT[0:4]}, {self.vZr} offset:{L_Z}\nds_read_b128 {ZT[4:8]}, {self.vZr} offset:{L_Z + 4096}")
        A(f"global_store_dwordx4 {self.vS2o}, {ZT[0:4]}, s[30:31] sc1", tag="s2st")
        A(f"global_store_dwordx4 {self.vS2o2}, {ZT[4:8]}, s[30:31] sc1", tag="s2st")
        if self.o["poison_at"] == "h":
            self.vFl = self.V.get()
            A(f"global_load_dword {self.vFl}, {self.vFi}, s[30:31] sc1")
            self.o["poison_at"] = "pub"
        self.stamp("st2", A)
        self.V.put(self.vZr, self.vS2o, self.vS2o2)
        self.XA = XA = self.V.get(8)
        for q in range(4):
            A(f"ds_read2st64_b32 {XA[2 * q:2 * q + 2]}, {self.vHw2} offset0:{8 * q} offset1:{8 * q + 4}")

    def build(self):
        A = self.A
        self.entry()
        H = A.fork()
        H.label("L_helper")
        vfree, afree, sfree = set(self.V.free), set(self.AC.free), set(self.S.free)
        self.helper(H)
        self.A = A
        self.V.free, self.AC.free, self.S.free = set(vfree), set(afree), set(sfree)
        self.prologue_m()
        self.ln1()
        self.after_publish()
        self.sWb, self.sC, self.sK, self.sT = self.S.get(), self.S.get(2), self.S.get(), self.S.get()
        self.conv_all()
        self.phase_c()
        self.kin = self.V.get()
        A(f"s_cmp_eq_u32 {self.sRole}, 1\ns_cbranch_scc1 L_role1")
        B = A.fork()
        B.label("L_role1")
        A(f"s_cmp_eq_u32 {self.sRole}, 2\ns_cbranch_scc1 L_role2")
        C = A.fork()
        C.label("L_role2")
        vfree, afree = set(self.V.free), set(self.AC.free)
        self.tail0(A)
        self.V.free, self.AC.free = set(vfree), set(afree)
        self.tail1(B)
        self.V.free, self.AC.free = set(vfree), set(afree)
        self.tail2(C)
        cut = A.lines.index(";@cut")
        if self.o["h_first"]:
            body = "\n".join(A.lines[:cut]) + "\n    s_branch L_main\n" + H.text() + "L_main:\n" + "\n".join(A.lines[cut + 1:]) + "\n"
        else:
            hcut = H.lines.index(";@cut")
            body = "\n".join(A.lines[:cut]) + "\n    s_branch L_main\n" + "\n".join(H.lines[:hcut]) + "\n    s_branch L_helper2\nL_main:\n"
            body += "\n".join(A.lines[cut + 1:]) + "\n"
            H.lines = ["L_helper2:"] + H.lines[hcut + 1:]
        body += B.text() + C.text() + ("" if self.o["h_first"] else H.text()) + "".join(c.text() for c in self.cold)
        body = body.replace(";@cut\n", "")
        head = open(f"cdna_kernels/{NAME}.s.ref").read().split("; Override launch geometry")[0]
        self.stats = dict(instr=A.count + B.count + C.count + H.count, nops=A.nops + B.nops + H.nops, vgpr=self.V.top + 1,
                          agpr=self.AC.top + 1, mfma=self.nmfma, spare=self.bg_left)
        return head + f"""; One persistent launch: 256 workgroups, one per CU, exchanging data through d_ws.
; @launch grid=(256,1,1) block=(512,1,1) lds={LDS_BYTES}
.amdgcn_target "amdgcn-amd-amdhsa--gfx950"
.text
.globl {NAME}_kernel
.p2align 8
.type {NAME}_kernel,@function
{NAME}_kernel:
{body}L_end:
    s_endpgm
L_all_end:
.section .rodata,"a"
.p2align 6
.amdhsa_kernel {NAME}_kernel
  .amdhsa_next_free_vgpr 256
  .amdhsa_next_free_sgpr 102
  .amdhsa_accum_offset {VMAX}
  .amdhsa_group_segment_fixed_size 0
  .amdhsa_kernarg_size 120
  .amdhsa_user_sgpr_count 2
  .amdhsa_user_sgpr_kernarg_segment_ptr 1
  .amdhsa_system_sgpr_workgroup_id_x 1
  .amdhsa_float_denorm_mode_32 3
.end_amdhsa_kernel
"""


EXTRA.update(np=4, h_first=True, h_order="pw", s1_split=False, warm_in=True, warm_slot=20, h_dma=None, hb1=0, s1_go="rec2", poison_at="b1", st_late=True)


def generate(path, **opt):
    g = Gen(**opt)
    text = g.build()
    open(path, "w").write(text)
    return g.stats


if __name__ == "__main__":
    out = sys.argv[1] if len(sys.argv) > 1 else f"cdna_kernels/{NAME}.s"
    opts = {}
    for a in sys.argv[2:]:
        k, v = a.split("=")
        opts[k] = {"True": True, "False": False}.get(v, int(v) if v.isdigit() else v)
    print(generate(out, **opts))
```

```python
import copy
import re

REG = re.compile(r"^(-|\|)?(abs\()?([vas])(\d+|\[(\d+):(\d+)\])\)?\|?$")
TRANS = ("v_exp_f32", "v_log_f32", "v_rcp_f32", "v_rsq_f32", "v_sqrt_f32", "v_sin_f32", "v_cos_f32")
NODST = ("global_store", "ds_write", "ds_pk_add", "ds_max", "global_load_lds", "s_cmp", "s_waitcnt", "s_nop", "s_barrier", "s_branch",
         "s_cbranch", "s_endpgm", "s_setprio", "s_sleep", "s_bitcmp", "buffer_inv", "buffer_wbl2")


def regs_of(tok):
    tok = tok.strip()
    if tok in ("vcc",):
        return [("s", 106), ("s", 107)]
    if tok == "vcc_lo":
        return [("s", 106)]
    if tok == "vcc_hi":
        return [("s", 107)]
    if tok == "exec":
        return [("s", 126), ("s", 127)]
    if tok == "exec_lo":
        return [("s", 126)]
    if tok == "exec_hi":
        return [("s", 127)]
    if tok == "m0":
        return [("s", 124)]
    m = REG.match(tok)
    if not m:
        return []
    f = m.group(3)
    if m.group(5) is not None:
        return [(f, i) for i in range(int(m.group(5)), int(m.group(6)) + 1)]
    return [(f, int(m.group(4)))]


def split_ops(s):
    out, depth, cur = [], 0, ""
    for ch in s:
        if ch == "[":
            depth += 1
        if ch == "]":
            depth -= 1
        if ch == "," and depth == 0:
            out.append(cur.strip())
            cur = ""
        else:
            cur += ch
    if cur.strip():
        out.append(cur.strip())
    return out


class Ins:
    def __init__(self, text):
        self.text = text.strip()
        parts = self.text.split(None, 1)
        self.op = parts[0]
        ops = split_ops(parts[1]) if len(parts) > 1 else []
        self.mods = ""
        if ops:
            last = ops[-1].split(None, 1)
            if len(last) > 1:
                ops[-1] = last[0]
                self.mods = last[1]
        self.ops = ops
        op = self.op
        self.is_mfma = op.startswith("v_mfma")
        self.is_valu = op.startswith("v_") and not self.is_mfma
        self.is_trans = op.replace("_e32", "").replace("_e64", "") in TRANS
        self.is_dot = op.startswith("v_dot")
        self.is_dpp = op.endswith("_dpp")
        self.is_perm = op.startswith("v_permlane")
        self.is_rdlane = op.startswith("v_readlane") or op.startswith("v_readfirstlane")
        self.is_ds = op.startswith("ds_")
        self.is_vmem = op.startswith("global_") or op.startswith("buffer_")
        self.is_smem = op.startswith("s_load") or op.startswith("s_memtime") or op.startswith("s_memrealtime")
        self.is_salu = op.startswith("s_") and not self.is_smem
        ndst = 1
        if op.startswith(NODST):
            ndst = 0
        if op.startswith(("v_add_co", "v_addc_co", "v_sub_co", "v_subb_co")):
            ndst = 2
        self.dst, self.src = [], []
        for i, o in enumerate(ops):
            (self.dst if i < ndst else self.src).extend(regs_of(o))
        if self.is_perm:
            self.dst = regs_of(ops[0]) + regs_of(ops[1])
            self.src = list(self.dst)
        if op.startswith(("v_fmac", "v_dot2c", "s_bitset", "s_addk", "s_mulk", "v_writelane")) or self.is_dpp \
                or "d16" in op and ndst:
            self.src = self.src + self.dst
        if "saveexec" in op:
            self.dst = self.dst + regs_of("exec")
        if op.startswith("v_cndmask") and len(ops) == 3:
            self.src = self.src + regs_of("vcc")
        if op.startswith("s_cbranch_vcc"):
            self.src = regs_of("vcc")
        if op.startswith("global_load_lds") or "addtid" in op:
            self.src = self.src + regs_of("m0")
        if self.is_mfma:
            self.srcAB = regs_of(ops[1]) + regs_of(ops[2])
            self.srcC = regs_of(ops[3])
            self.passes = 8 if "32x32" in op else 4
        self.wide_store = (op.startswith("global_store_dwordx") and op[-1] in "34") or op in ("ds_write_b128", "ds_write_b96")
        self.store_data = []
        if self.wide_store:
            self.store_data = regs_of(ops[1])
        self.states = 1
        if op == "s_nop":
            self.states = int(ops[0]) + 1


def ov(a, b):
    return bool(set(a) & set(b))


def need_states(p, c):
    n = 0
    pv = [r for r in p.dst if r[0] != "s"]
    ps = [r for r in p.dst if r[0] == "s"]
    if p.is_valu:
        if c.is_dpp and ov(pv, c.src):
            n = max(n, 2)
        if c.is_perm and ov(pv, c.src):
            n = max(n, 2)
        if c.is_rdlane and ov(pv, c.src):
            n = max(n, 1)
        if c.is_mfma and ov(pv, c.src):
            n = max(n, 3 if p.is_dot else 2)
        if p.is_trans and c.is_valu and not c.is_trans and ov(pv, c.src):
            n = max(n, 1)
        if p.is_dot and (ov(pv, c.src) or ov(pv, c.dst)):
            same_c = c.op == p.op and len(c.ops) == 4 and not ov(pv, regs_of(c.ops[1]) + regs_of(c.ops[2]))
            if not same_c:
                n = max(n, 3)
        if ps:
            if c.is_valu and ov(ps, c.src):
                n = max(n, 4 if c.op.startswith(("v_readlane", "v_writelane")) else 2)
            if c.is_vmem and ov(ps, c.src):
                n = max(n, 5)
            if (c.is_salu or c.is_smem) and ov(ps, c.src) and not c.op.startswith("s_cbranch"):
                n = max(n, 1)
        if "op_sel" in p.mods and not p.op.startswith("v_pk") and (c.is_valu or c.is_mfma) and ov(pv, c.src + c.dst):
            n = max(n, 1)
    if p.is_mfma:
        lat = {4: 8, 8: 12}[p.passes]
        if c.is_mfma:
            if ov(p.dst, c.srcAB):
                n = max(n, lat)
            if ov(p.dst, c.srcC) and not (c.srcC == p.dst and c.passes == p.passes):
                n = max(n, lat - 2)
            if ov(p.dst, c.dst) and c.srcC != p.dst:
                n = max(n, lat)
        elif (c.is_valu or c.is_vmem or c.is_ds) and (ov(p.dst, c.src) or ov(p.dst, c.dst)):
            n = max(n, lat)
        if (c.is_valu or c.is_ds or c.is_vmem) and ov(p.srcC, c.dst):
            n = max(n, {4: 3, 8: 7}[p.passes])
    if p.wide_store and ov(p.store_data, c.dst):
        n = max(n, 2)
    if p.is_salu and ("s", 124) in p.dst and (c.op.startswith("global_load_lds") or "addtid" in c.op):
        n = max(n, 1)
    return n


class Asm:
    def __init__(self):
        self.lines = []
        self.hist = []
        self.vm = []
        self.lg = []
        self.sm = []
        self.nops = 0
        self.count = 0

    def fork(self):
        o = Asm()
        o.hist = list(self.hist)
        o.vm = list(self.vm)
        o.lg = list(self.lg)
        o.sm = list(self.sm)
        return o

    def raw(self, text):
        self.lines.append(text)

    def comment(self, text):
        self.lines.append("; " + text)

    def label(self, name):
        self.lines.append(name + ":")

    def _push(self, ins):
        self.lines.append("    " + ins.text)
        self.hist.append(ins)
        self.hist = self.hist[-24:]
        self.count += 1

    def wait(self, vm=None, lg=None):
        parts = []
        if vm is not None and vm < len(self.vm):
            assert vm <= 63
            parts.append(f"vmcnt({vm})")
            self.vm = self.vm[len(self.vm) - vm:] if vm else []
        if lg is not None and (lg < len(self.lg) or (lg == 0 and self.sm)):
            if self.sm:
                lg = 0
            lg = min(lg, 15)
            parts.append(f"lgkmcnt({lg})")
            self.lg = self.lg[len(self.lg) - lg:] if lg else []
            if lg == 0:
                self.sm = []
        if parts:
            self._push(Ins("s_waitcnt " + " ".join(parts)))

    def wait_tag(self, tag):
        idx = [i for i, (_, t) in enumerate(self.vm) if t == tag]
        if idx:
            self.wait(vm=len(self.vm) - 1 - idx[-1])

    def prewait(self, texts):
        touched = set()
        for t in texts:
            c = Ins(t)
            touched |= set(c.src) | set(c.dst)
        vm = lg = None
        for i, (regs, _) in enumerate(self.vm):
            if regs and touched & set(regs):
                vm = len(self.vm) - 1 - i
        for i, (regs, _) in enumerate(self.lg):
            if regs and touched & set(regs):
                lg = len(self.lg) - 1 - i
        if vm is not None or lg is not None:
            self.wait(vm=vm, lg=lg)

    def barrier(self):
        self.wait(lg=0)
        self("s_barrier")

    def flush(self):
        need = 0
        dist = 0
        for p in reversed(self.hist):
            w = 0
            if p.is_mfma:
                w = {4: 8, 8: 12}[p.passes]
            elif p.is_valu:
                w = 5 if any(r[0] == "s" for r in p.dst) else 3
            elif p.wide_store:
                w = 2
            need = max(need, w - dist)
            dist += p.states
        while need > 0:
            k = min(need, 16)
            self._push(Ins(f"s_nop {k - 1}"))
            self.nops += k
            need -= k

    def __call__(self, text, tag=None):
        for line in text.strip().split("\n"):
            line = line.split(";")[0].strip()
            if line:
                self._emit(Ins(line), tag)

    def _emit(self, c, tag):
        touched = set(c.src) | set(c.dst)
        vm = lg = None
        for i, (regs, _) in enumerate(self.vm):
            if regs and touched & set(regs):
                vm = len(self.vm) - 1 - i
        for i, (regs, _) in enumerate(self.lg):
            if regs and touched & set(regs):
                lg = len(self.lg) - 1 - i
        if any(touched & set(r) for r in self.sm):
            lg = 0
        if c.is_ds and len(self.lg) >= 15 and lg is None:
            pass
        if vm is not None or lg is not None:
            self.wait(vm=vm, lg=lg)
        need, dist = 0, 0
        for p in reversed(self.hist):
            need = max(need, need_states(p, c) - dist)
            dist += p.states
            if dist > 20:
                break
        while need > 0:
            k = min(need, 16)
            self._push(Ins(f"s_nop {k - 1}"))
            self.nops += k
            need -= k
        self._push(c)
        if c.is_vmem and not c.op.startswith(("buffer_inv", "buffer_wbl2")):
            self.vm.append((c.dst, tag))
            assert len(self.vm) <= 63, "vmcnt overflow"
        if c.is_ds:
            self.lg.append((c.dst, tag))
        if c.is_smem:
            self.sm.append(c.dst)

    def text(self):
        return "\n".join(self.lines) + "\n"


class Pool:
    def __init__(self, kind, lo, hi):
        self.kind, self.free = kind, set(range(lo, hi + 1))
        self.top = lo - 1

    def get(self, n=1, align=None):
        align = align or (2 if n > 1 else 1)
        for b in sorted(self.free):
            if b % align == 0 and all(b + i in self.free for i in range(n)):
                for i in range(n):
                    self.free.discard(b + i)
                self.top = max(self.top, b + n - 1)
                return R(self.kind, b, n)
        raise RuntimeError(f"out of {self.kind} registers for {n}")

    def put(self, *rs):
        for r in rs:
            for i in range(r.n):
                assert r.b + i not in self.free
                self.free.add(r.b + i)


class R:
    def __init__(self, kind, b, n):
        self.kind, self.b, self.n = kind, b, n

    def __getitem__(self, i):
        if isinstance(i, slice):
            lo, hi = i.start or 0, i.stop if i.stop is not None else self.n
            assert 0 <= lo < hi <= self.n
            return R(self.kind, self.b + lo, hi - lo)
        assert 0 <= i < self.n
        return R(self.kind, self.b + i, 1)

    def __str__(self):
        return f"{self.kind}{self.b}" if self.n == 1 else f"{self.kind}[{self.b}:{self.b + self.n - 1}]"

    __repr__ = __str__


class Multi:
    def __init__(self, groups):
        self.groups = groups
        self.n = 4 * len(groups)

    def __getitem__(self, i):
        if isinstance(i, slice):
            g, lo, hi = i.start // 4, i.start % 4, i.stop - 4 * (i.start // 4)
            assert hi <= 4
            return self.groups[g][lo:hi]
        return self.groups[i // 4][i % 4]
```

```python
import sys
from asmdsl import Asm, Pool, R, Multi

NAME = "sequential_preLN__ssm_conv_s4d__moe_arch_mod__prompt"

WS_EPOCH = 0
WS_FLG = 0x4000
WS_S3 = 0x8000
WS_S4 = 0x10000
WS_ROWS = 0x20000
WS_S1 = 0x100000
WS_S2 = 0x300000
WS_STAMP = 0x600000

ROWB = 544
STAGE_CH = 57 * ROWB
L_K = 0
KCOPY = 2112
KCH = 4 * KCOPY
L_U = L_K + 2 * KCH
UCH = 4672
L_Z = 26368
L_H = L_Z + 8192
L_ST = L_H + 8192
L_KEY = L_ST + 64
L_KEY2 = L_KEY + 32
L_RED = L_KEY2 + 32
L_P = 43520
PPLANE = 2048 + 32
PHALF = 2 * PPLANE
L_STAGE = 60416
LDS_BYTES = L_STAGE + 2 * STAGE_CH
assert L_U + UCH + 4608 <= L_Z and L_RED + 512 <= L_P and L_P + 4 * PHALF <= L_STAGE and L_STAGE % 256 == 0

NX = 560
FAR = 608
V2 = [FAR + 48 * s for s in range(4)]
V3 = [FAR + 16 * 13 + 80 * s for s in range(2)]
TAGMASK = 0x40074007
LOG2E = 0x3FB8AA3B
INV2PI = 0x3E22F983
SPIN_MAX = 1 << 14

BANDS = ((12, 1), (8, 2), (8, 3), (8, 4))


def band_table():
    out = []
    for delta, h in BANDS:
        for lane in range(64):
            phi, g = lane & 15, lane >> 4
            bits = [0x3C00 if abs(8 * g + e - phi - delta) <= h else 0 for e in range(8)]
            out.append(".long " + ", ".join(hex(bits[2 * d] | bits[2 * d + 1] << 16) for d in range(4)))
    return "\n".join(out)


STAMP_SETS = {
    True: ["start", "karg", "x", "pub1", "rec", "kmf", "frag", "s1", "conv", "ack2", "s2", "pub3", "ack3", "s3", "row", "g1", "g2", "end"],
    "z": ["start"] + [f"unused{i}" for i in range(16)] + ["end"],
    "a": ["start", "karg", "issued", "consts", "x", "stat", "b1", "norm", "pub1", "warm", "par", "ws", "recR", "rec", "b2", "kmf0", "kmf", "end"],
    "b": ["start", "kmf", "shift", "frag", "s1w", "s1", "b5", "conv", "b6", "st2", "dma", "ack2", "s2", "hw", "b7", "key", "pub3", "end"],
    "c": ["start", "pub3", "hn", "outc", "ack3", "s3p", "s3w", "s3", "row", "g1m", "g1b", "g1", "r1o", "r1t", "r1a", "g2m", "g2", "end"],
}
DEFAULTS = dict(stamps=False, s1_at="mfma", warm=True, out_pol="sc1", pf_code=True, pf_lines=8, dbg=False, poison_at="x", recb=4, lat=8, cvt0=4, nw=8, wv=(0, 0, 0, 0), r1_out="row", dma_s2=0, st_late=False, early_br=True, addtid=True, r1_at=28, b_first=False, dma0_ack2=False, p3_at="consts", cpre=0, bg_from=0, fin_pol="", r0_late=2, r2_late=True, dma_ack2=0, xmap=True, x_pol="", w_pol="", p_pol="sc1", mask_poll=True, warm_slot=30, kpre=1, par_first=True, band_tab=False, frag_in=True, dma_pre=0, r1_split=2, xa_glob=False, warm_at="s1w", xa_at="start", nf=7, ng=4, pe=16, pd=5, npre=3, clk=False, dma_at="conv", warm_mode="sect", far_span=(60, 48))


class Gen:
    def __init__(self, **opt):
        self.o = dict(DEFAULTS)
        self.o.update(opt)
        if isinstance(self.o["far_span"], str):
            self.o["far_span"] = tuple(int(x) for x in self.o["far_span"].split("_"))
        if isinstance(self.o["wv"], str):
            self.o["wv"] = tuple(int(x) for x in self.o["wv"].split("_"))
        self.A = Asm()
        self.V = Pool("v", 1, 255)
        self.AC = Pool("a", 0, 255)
        self.S = Pool("s", 32, 63)
        self.cold = []
        self.nstamp = 0

    def stamp(self, name, A=None):
        sel = STAMP_SETS.get(self.o["stamps"])
        if sel and name in sel:
            i = sel.index(name)
            (A or self.A)(f"{'s_memtime' if self.o.get('cyc') else 's_memrealtime'} s[{64 + 2 * i}:{65 + 2 * i}]")

    def dump_stamps(self, A):
        if not self.o["stamps"]:
            return
        if self.o["dbg"]:
            self.dump_debug(A)
            return
        a, d = self.V.get(), self.V.get(2)
        A("s_mov_b64 exec, 1")
        A.wait(lg=0)
        A(f"s_lshl_b32 s3, {self.sL}, 2\ns_add_u32 s3, s3, {self.sW}\ns_lshl_b32 s3, s3, 8\ns_add_u32 s3, s3, {WS_STAMP}")
        A(f"v_mov_b32 {a}, s3")
        for i in range(19):
            A(f"v_mov_b32 {d[0]}, s{64 + 2 * i}\nv_mov_b32 {d[1]}, s{65 + 2 * i}")
            A(f"global_store_dwordx2 {a}, {d}, s[30:31] offset:{8 * i}")
            A.wait(vm=0)
        self.V.put(a, d)

    def dump_debug(self, A):
        a, d = self.V.get(), self.V.get()
        n = getattr(self, "ndbg", 0)
        self.ndbg = n + 1
        A("s_mov_b64 exec, 1")
        A(f"s_cmp_eq_u32 {self.sL}, 255\ns_cbranch_scc0 L_dbg{n}\ns_cmp_eq_u32 {self.sW}, 0\ns_cbranch_scc0 L_dbg{n}")
        A("s_load_dwordx2 s[4:5], s[0:1], 104")
        A.wait(lg=0)
        A(f"v_mov_b32 {a}, 0")
        for i in range(1, 17):
            A(f"s_sub_u32 s3, s{64 + 2 * (i + 1)}, s64\nv_mov_b32 {d}, s3")
            A(f"global_store_dword {a}, {d}, s[4:5] offset:{4 * (i - 1)}")
        A.label(f"L_dbg{n}")
        self.V.put(a, d)

    def rnd(self, A, dst, src, neg=False):
        A(f"v_cvt_pk_bf16_f32 {dst}, 0, {'-' if neg else ''}{src}")

    def allreduce(self, A, op, regs, width, fill=()):
        fill = list(fill)

        def pad():
            for _ in range(max(0, 3 - len(regs))):
                if fill:
                    A(fill.pop(0))
        steps = ["quad_perm:[1,0,3,2]", "quad_perm:[2,3,0,1]", "row_half_mirror", "row_mirror"]
        for st in steps:
            pad()
            for r in regs:
                A(f"{op}_dpp {r}, {r}, {r} {st} row_mask:0xf bank_mask:0xf")
        tmp = [self.V.get() for _ in regs]
        for w, sw in ((32, "v_permlane16_swap_b32"), (64, "v_permlane32_swap_b32")):
            if width >= w:
                for r, t in zip(regs, tmp):
                    A(f"v_mov_b32 {t}, {r}")
                pad()
                for r, t in zip(regs, tmp):
                    A(f"{sw} {r}, {t}")
                for r, t in zip(regs, tmp):
                    A(f"{op} {r}, {r}, {t}")
        for f in fill:
            A(f)
        self.V.put(*tmp)

    def ln_stats(self, A, s1, s2, nm, rs):
        t = self.V.get()
        A(f"v_mul_f32 {s1}, 0x3b000000, {s1}")
        A(f"v_mul_f32 {s2}, 0x3b000000, {s2}")
        A(f"v_fma_f32 {t}, -{s1}, {s1}, {s2}")
        A(f"v_max_f32 {t}, 0, {t}")
        self.rnd(A, t, t)
        self.rnd(A, nm, s1, neg=True)
        A(f"v_add_f32 {t}, 0x3727c5ac, {t}")
        self.rnd(A, t, t)
        A(f"v_sqrt_f32 {t}, {t}")
        self.rnd(A, t, t)
        A(f"v_rcp_f32 {rs}, {t}")
        self.V.put(t)

    def poll(self, A, name, loads, check):
        check(A)
        A(f"s_cbranch_vccnz L_{name}_slow")
        A.label(f"L_{name}_ok")
        C = Asm()
        C.label(f"L_{name}_slow")
        C("s_mov_b32 s3, 0")
        C.label(f"L_{name}_loop")
        if self.o["mask_poll"]:
            C("s_mov_b64 exec, vcc")
        C("s_nop 1")
        loads(C)
        C(f"s_add_u32 s3, s3, 1\ns_cmp_ge_u32 s3, {SPIN_MAX}")
        C("s_cselect_b32 s18, 0, -1\ns_mov_b32 s19, s18")
        check(C)
        C.wait(vm=0)
        C("s_nop 1")
        C("s_and_b64 vcc, vcc, s[18:19]")
        C(f"s_cbranch_vccnz L_{name}_loop")
        C("s_mov_b64 exec, -1")
        C("s_nop 2")
        C(f"s_branch L_{name}_ok")
        self.cold.append(C)

    def prologue(self):
        A, V, S = self.A, self.V, self.S
        A("s_cmp_ge_u32 s2, 0x100\ns_cbranch_scc1 L_end")
        A("s_load_dwordx16 s[4:19], s[0:1], 0\ns_load_dwordx8 s[20:27], s[0:1], 64")
        A("s_load_dwordx2 s[28:29], s[0:1], 96\ns_load_dwordx2 s[30:31], s[0:1], 112")
        self.stamp("start")
        if self.o["clk"]:
            A("s_memtime s[100:101]")
        self.sL, self.sW, self.sTag, self.sE = S.get(), S.get(), S.get(), S.get()
        self.sOnes, self.sLo, self.sHi, self.sCh = S.get(), S.get(), S.get(), S.get()
        self.sB, self.sH, self.sa, self.sb = S.get(), S.get(), S.get(), S.get()
        sL, sW, sa, sb = self.sL, self.sW, self.sa, self.sb
        self.vL = V.get()
        self.vI = V.get()
        self.vG = V.get()
        t0, t1, t2, t3 = V.get(), V.get(), V.get(), V.get()
        self.vJunk = V.get(2)
        A(f"v_lshrrev_b32 {t0}, 6, v0\ns_lshr_b32 {sL}, s2, 3")
        if self.o["pf_code"]:
            nl = self.o["pf_lines"]
            self.sPc = S.get(2)
            A(f"s_getpc_b64 {self.sPc}")
            A.label("L_pc")
            A(f"""
            v_lshl_add_u32 {t2}, {sL}, 2, {t0}
            v_and_b32 {t2}, {256 // nl - 1}, {t2}
            v_and_b32 {t1}, {nl - 1}, v0
            v_lshl_add_u32 {t2}, {t2}, {nl.bit_length() - 1}, {t1}
            v_lshlrev_b32 {t2}, 7, {t2}
            v_min_u32 {t2}, L_all_end-L_pc-4, {t2}
            global_load_dword {self.vJunk[0]}, {t2}, {self.sPc}
            """)
        self.vTau, self.vHr, self.vRow, vP = V.get(), V.get(), V.get(), V.get()
        A(f"""
        v_readfirstlane_b32 {sW}, {t0}
        s_and_b32 s3, s2, 7
        s_lshl_b32 s3, s3, 5
        s_add_u32 {sL}, {sL}, s3
        {"" if self.o["xmap"] else f"s_mov_b32 {sL}, s2"}
        v_and_b32 {self.vL}, 63, v0
        v_lshrrev_b32 {self.vTau}, 5, v0
        v_and_b32 {t1}, 31, v0
        v_lshlrev_b32 {t1}, 4, {t1}
        v_lshl_add_u32 {self.vHr}, {self.vTau}, 10, {t1}
        s_lshl_b32 {sa}, {sL}, 13
        v_add_u32 {self.vRow}, {sa}, {self.vHr}
        s_lshr_b32 s3, {sL}, 6
        s_lshl_b32 {self.sCh}, s3, 7
        s_and_b32 s3, {sL}, 31
        s_lshl_b32 s3, s3, 2
        s_add_u32 {self.sCh}, {self.sCh}, s3
        s_bfe_u32 s3, {sL}, 0x10005
        s_add_u32 {self.sCh}, {self.sCh}, s3
        s_and_b32 s3, {sW}, 2
        s_add_u32 {self.sCh}, {self.sCh}, s3
        s_lshl_b32 s3, {self.sCh}, 8
        v_lshl_add_u32 {vP}, {self.vL}, 2, s3
        s_lshl_b32 {self.sE}, {self.sCh}, 1
        s_and_b32 {self.sE}, {self.sE}, -4
        v_and_b32 {self.vI}, 15, v0
        v_bfe_u32 {self.vG}, v0, 4, 2
        s_lshr_b32 {self.sB}, {sW}, 1
        s_and_b32 {self.sH}, {sW}, 1
        """)
        self.XB, self.XA, self.PAR, self.WR = V.get(8), V.get(8), V.get(4), V.get(8)
        self.sDt = S.get()
        lines = self.const_lines(t0, t1, t2, t3)
        npre = self.o["cpre"]
        for ln in lines[:npre]:
            A(ln)
        for k in range(4):
            A(f"global_load_dword {self.PAR[k]}, {vP}, s[{6 + 2 * k}:{7 + 2 * k}] {self.o['x_pol']}")
        A(f"global_load_dwordx4 {self.XB[0:4]}, {self.vRow}, s[4:5] {self.o['x_pol']}")
        A(f"global_load_dwordx4 {self.XB[4:8]}, {self.vRow}, s[4:5] offset:512 {self.o['x_pol']}")
        A(f"s_load_dword {self.sDt}, s[14:15], {self.sE}")
        A(f"s_load_dword {self.sE}, s[30:31], {WS_EPOCH}")
        self.stamp("karg")
        V.put(vP)
        for ln in lines[npre:]:
            A(ln)
        self.bg = self.background()
        if self.o["p3_at"] == "consts":
            for ln in self.p3_lines[:-1]:
                A(ln)
            self.p3_lines = self.p3_lines[-1:]
        if self.o["warm_at"] == "s1w":
            n = self.nwarm - (self.o["dma_at"] != "none")
            for ln in self.bg[:n]:
                A(ln)
            self.warm_line = self.bg[n:self.nwarm]
            self.bg = self.bg[self.nwarm:]
        if self.o["poison_at"] == "pub":
            self.vFo, self.vFi = V.get(), V.get()
            A(f"""
            s_lshl_b32 s3, {sW}, 12
            s_lshl_b32 {sb}, {sL}, 4
            s_add_u32 s3, s3, {sb}
            s_add_u32 s3, s3, {WS_FLG}
            v_mov_b32 {self.vFo}, s3
            s_lshr_b32 s3, {sL}, 6
            s_lshl_b32 s3, s3, 12
            s_add_u32 s3, s3, {WS_FLG}
            v_lshl_add_u32 {self.vFi}, v0, 4, s3
            """)
        if self.o["poison_at"] == "consts":
            self.poison2()
        self.stamp("consts")
        V.put(t0, t1, t2, t3, *self.ctmp)

    def poison2(self):
        A = self.A
        A(f"global_store_dwordx4 {self.vP2}, {self.M1}, s[30:31] sc1", tag="poison")
        A(f"global_store_dwordx4 {self.vP2}, {self.M1}, s[30:31] offset:1024 sc1", tag="poison")
        self.V.put(self.vP2)

    def const_lines(self, t0, t1, t2, t3):
        V, S = self.V, self.S
        vI, vG, vL, sW, sL, sB, sH, sa, sb = self.vI, self.vG, self.vL, self.sW, self.sL, self.sB, self.sH, self.sa, self.sb
        out = []

        def A(text):
            out.extend(x.strip() for x in text.strip().split("\n") if x.strip())
        self.BAND = {key: V.get(4) for key in BANDS}
        SEL = V.get(6)
        A(f"""
        v_lshlrev_b32 {t0}, 3, {vG}
        v_sub_u32 {t0}, {t0}, {vI}
        v_add_u32 {t0}, 20, {t0}
        v_mul_u32_u24 {t0}, 0x10001, {t0}
        v_mov_b32 {t3}, 0x70007
        s_mov_b32 {sb}, 0xc000c
        """)
        for k in range(6):
            c0, c1 = 32 - 2 * k, 31 - 2 * k
            A(f"""
            s_mov_b32 s3, {c0 | c1 << 16}
            v_pk_sub_i16 {t1}, {t0}, s3
            v_pk_sub_i16 {t2}, s3, {t0}
            v_pk_max_i16 {t1}, {t1}, {t2}
            v_pk_min_i16 {t1}, {t1}, {t3}
            v_lshl_or_b32 {SEL[k]}, {t1}, 8, {sb}
            """)
        for (delta, h), B in self.BAND.items():
            lut = sum(0x3C << (8 * i) for i in range(min(h + 1, 4)))
            A(f"s_mov_b32 s3, {lut}")
            for d in range(4):
                A(f"v_perm_b32 {B[d]}, {60 if h == 4 else 0}, s3, {SEL[d + (0 if delta == 12 else 2)]}")
        Z = SEL[0:4]
        for k in range(4):
            A(f"v_mov_b32 {Z[k]}, 0")
        self.vShift, self.vShiftR = V.get(), V.get()
        A(f"""
        v_lshlrev_b32 {t2}, 4, v0
        v_lshlrev_b32 {t3}, 2, {vL}
        v_and_b32 {t1}, 127, v0
        s_mul_i32 s3, {sB}, {UCH}
        s_add_u32 {sb}, s3, {L_U}
        v_lshl_add_u32 {t0}, {t1}, 2, {sb}
        ds_write_b128 {t2}, {Z} offset:{L_P}
        ds_write_b128 {t2}, {Z} offset:{L_P + 4096}
        ds_write_b128 {t2}, {Z} offset:{L_P + 8192}
        ds_write_b128 {t2}, {Z} offset:{L_P + 12288}
        ds_write_b32 {t3}, {Z[0]} offset:{L_P + 16384}
        ds_write_b32 {t0}, {Z[0]}
        s_mul_i32 s3, {sB}, {2 * PHALF}
        v_lshl_add_u32 {self.vShiftR}, {t1}, 4, s3
        """)
        self.vUf, self.vZw, self.vUw = V.get(), V.get(), V.get()
        self.vN, self.vF = V.get(), V.get()
        A(f"""
        v_lshl_add_u32 {t0}, {vI}, 5, {sb}
        v_lshl_add_u32 {self.vUf}, {vG}, 4, {t0}
        s_mul_i32 s3, {sB}, {KCH}
        v_lshl_add_u32 {self.vShift}, {t1}, 4, s3
        v_sub_u32 {t0}, 15, {vI}
        v_and_b32 {t1}, 3, {t0}
        v_and_b32 {t0}, 12, {t0}
        v_mul_u32_u24 {t1}, {KCOPY}, {t1}
        v_lshl_add_u32 {t0}, {t0}, 1, {t1}
        v_add_u32 {t0}, s3, {t0}
        v_lshl_add_u32 {self.vN}, {vG}, 4, {t0}
        v_lshl_add_u32 {self.vF}, {vG}, 3, {t0}
        v_and_b32 {t0}, 2, {vG}
        v_lshl_add_u32 {t0}, {vI}, 2, {t0}
        v_add_u32 {t0}, {sB}, {t0}
        v_lshrrev_b32 {t1}, 1, {vI}
        v_xor_b32 {t0}, {t0}, {t1}
        v_and_b32 {t1}, 1, {vG}
        v_lshlrev_b32 {t1}, 3, {t1}
        v_lshl_add_u32 {self.vZw}, {t0}, 4, {t1}
        """)
        self.sStM = S.get()
        self.vR, self.vS0, self.vS1r = V.get(), V.get(), V.get()
        A(f"""
        s_mul_i32 s3, {sB}, {STAGE_CH}
        s_lshl_b32 {sb}, {sH}, 8
        s_add_u32 s3, s3, {sb}
        s_add_u32 {self.sStM}, s3, {L_STAGE - 0x8000}
        s_add_u32 s3, s3, {L_STAGE}
        v_lshl_add_u32 {t2}, {vG}, 4, s3
        v_xor_b32 {t0}, 3, {vI}
        v_bfe_u32 {t1}, {t0}, 1, 1
        v_add_u32 {t1}, {t0}, {t1}
        v_lshrrev_b32 {t1}, 1, {t1}
        s_movk_i32 s3, {ROWB}
        v_mad_u32_u24 {self.vR}, {vI}, s3, {t2}
        v_mad_u32_u24 {self.vS0}, {t0}, s3, {t2}
        v_mad_u32_u24 {self.vS1r}, {t1}, s3, {t2}
        """)
        self.vK1, self.vK3, self.vKs = V.get(), V.get(), V.get()

        def pa(m):
            return ((m >> 2) & 1) * PPLANE + (m >> 3) * 16 + (m & 3) * 4
        A(f"""
        s_mul_i32 s3, {sW}, {PHALF}
        s_add_u32 s3, s3, {L_P}
        v_xor_b32 {t3}, 3, {vG}
        v_and_b32 {t0}, 1, {t3}
        v_mul_u32_u24 {t0}, {PPLANE}, {t0}
        v_lshrrev_b32 {t3}, 1, {t3}
        v_lshl_add_u32 {t3}, {t3}, 4, {t0}
        v_add_u32 {t3}, s3, {t3}
        v_lshlrev_b32 {t0}, 5, {vI}
        v_sub_u32 {t0}, {t3}, {t0}
        v_add_u32 {self.vK1}, {pa(528 - 256)}, {t0}
        v_lshrrev_b32 {t1}, 1, {vI}
        v_lshrrev_b32 {t2}, 2, {vI}
        v_add_u32 {t2}, 2, {t2}
        v_min_u32 {t1}, {t1}, {t2}
        v_add3_u32 {t1}, {t1}, {vI}, {FAR // 16 + 1}
        v_lshl_add_u32 {self.vK3}, {t1}, 5, {t3}
        v_cmp_gt_u32 vcc, 8, {vI}
        v_mov_b32 {t0}, {pa(28)}
        v_mov_b32 {t1}, {pa(NX + 24)}
        v_cndmask_b32 {t0}, {t0}, {t1}, vcc
        v_add_u32 {self.vKs}, s3, {t0}
        """)
        self.vS1o, self.vS1i, self.vS1i2, self.vP2 = V.get(), V.get(), V.get(), V.get()
        self.vMask, self.vHw2, self.M1 = V.get(), V.get(), V.get(4)
        A(f"""
        v_and_b32 {t0}, 1, v0
        v_lshrrev_b32 {t1}, 1, v0
        v_mul_u32_u24 {t2}, {UCH}, {t0}
        v_lshl_add_u32 {self.vUw}, {t1}, 4, {t2}
        v_lshlrev_b32 {t0}, 4, {t0}
        v_lshl_add_u32 {t2}, {t1}, 13, {t0}
        s_lshl_b32 s3, {sL}, 5
        s_add_u32 s3, s3, {WS_S1}
        v_add_u32 {self.vS1i}, s3, {t2}
        v_add_u32 {self.vS1i2}, 0x100000, {self.vS1i}
        s_lshl_b32 s3, {sW}, 11
        s_add_u32 s3, s3, {sa}
        s_add_u32 s3, s3, {WS_S1}
        v_lshl_add_u32 {self.vS1o}, {vL}, 4, s3
        v_add_u32 {self.vP2}, {WS_S2 - WS_S1}, {self.vS1o}
        s_mov_b32 s3, {L_H}
        v_lshl_add_u32 {self.vHw2}, v0, 2, s3
        v_mov_b32 {self.vMask}, {0xFFFFFFFF ^ TAGMASK}
        s_mov_b32 {self.sOnes}, 0x3f803f80
        s_mov_b32 {self.sLo}, 0x3f80
        s_mov_b32 {self.sHi}, 0x3f800000
        """)
        for k in range(4):
            A(f"v_mov_b32 {self.M1[k]}, -1")
        self.ctmp = [SEL]
        return out

    def background(self):
        V, S = self.V, self.S
        vL, sW, sL, sa, sb = self.vL, self.sW, self.sL, self.sa, self.sb
        t0, t1, t2 = V.get(), V.get(), V.get()
        out = []

        def A(text):
            out.extend(x.strip() for x in text.strip().split("\n") if x.strip())
        A(f"""
        s_lshr_b32 s3, {sL}, 5
        s_and_b32 {sb}, {sL}, 31
        s_mul_i32 s6, {sb}, {16 * 3584}
        s_mul_i32 s7, s3, 448
        s_add_u32 s6, s6, s7
        v_lshrrev_b32 {t0}, 2, {vL}
        v_and_b32 {t1}, 3, v0
        v_mul_u32_u24 {t0}, 3584, {t0}
        v_lshl_add_u32 {t0}, {t1}, 7, {t0}
        v_add_u32 {t0}, s6, {t0}
        s_mul_i32 s6, {sb}, {56 * 1024}
        s_lshl_b32 s7, s3, 7
        s_add_u32 s6, s6, s7
        s_mul_i32 s7, {self.sH}, {28 * 1024}
        s_add_u32 s6, s6, s7
        v_min_u32 {t1}, 27, {vL}
        v_lshl_add_u32 {t1}, {t1}, 10, s6
        s_cmp_eq_u32 {sW}, 0
        s_cselect_b32 s8, s22, s24
        s_cselect_b32 s9, s23, s25
        s_cmp_lt_u32 {sW}, 2
        s_cselect_b32 s8, s8, s26
        s_cselect_b32 s9, s9, s27
        s_cselect_b64 vcc, -1, 0
        v_cndmask_b32 {t0}, {t1}, {t0}, vcc
        """)
        if self.o["dma_at"] != "none":
            A(f"global_load_dword {self.vJunk[1]}, {t0}, s[8:9]")
        self.nwarm = len(out)
        warm_block = list(out)
        if self.o["warm_at"] == "bg":
            out.clear()
        A(f"s_lshr_b32 s3, {sL}, 5\ns_and_b32 {sb}, {sL}, 31")
        self.sBlk, self.sRole, self.sUp = S.get(), S.get(), S.get()
        A(f"""
        s_cmp_ge_u32 {sb}, 7
        s_cselect_b32 {self.sUp}, 1, 0
        s_cselect_b32 s6, 7, 0
        s_sub_u32 s6, {sb}, s6
        s_mul_i32 {self.sBlk}, s3, 7
        s_add_u32 {self.sBlk}, {self.sBlk}, s6
        s_cmp_ge_u32 {sb}, 14
        s_cselect_b32 {self.sRole}, 2, 0
        s_lshl_b32 s3, s3, 2
        s_sub_u32 s6, {sb}, {self.o["r1_at"]}
        s_add_u32 s3, s3, s6
        s_cmp_lt_u32 s6, 4
        s_cselect_b32 {self.sRole}, 1, {self.sRole}
        s_cselect_b32 {self.sBlk}, s3, {self.sBlk}
        """)
        self.p3_lines = [f"s_mul_i32 s3, {sL}, 2432", f"s_add_u32 s3, s3, {WS_S3}", f"v_lshl_add_u32 {t2}, v0, 4, s3",
                         f"v_cmp_gt_u32 s[10:11], {t1}, v0",
                         ("s_mov_b64 exec, s[10:11]", f"global_store_dwordx4 {t2}, {self.M1}, s[30:31] sc1", "s_mov_b64 exec, -1")]
        self.p3_lines.insert(0, f"v_mov_b32 {t1}, 152")
        if self.o["warm_at"] == "bg":
            out.extend(warm_block)
        self.vS2o, self.vS2o2, self.vS2i, self.vS2i2, self.vZr = V.get(), V.get(), V.get(), V.get(), V.get()
        A(f"""
        s_add_u32 s3, {sa}, {WS_S2}
        v_lshl_add_u32 {self.vS2o}, v0, 4, s3
        v_add_u32 {self.vS2o2}, 0x1000, {self.vS2o}
        v_bfe_u32 {t0}, v0, 3, 3
        v_xor_b32 {t0}, v0, {t0}
        v_lshlrev_b32 {self.vZr}, 4, {t0}
        s_lshl_b32 s3, {sW}, 18
        s_add_u32 s3, s3, {WS_S2 - WS_S1}
        v_add_u32 {self.vS2i}, s3, {self.vS1i}
        v_add_u32 {self.vS2i2}, 0x40000, {self.vS2i}
        """)
        self.bgtmp = [t0, t1, t2, self.M1]
        return out

    def ln1(self):
        A, V = self.A, self.V
        glob = False
        s1, s2, nm, rs, ad = V.get(), V.get(), V.get(), V.get(), V.get()
        A(f"v_lshlrev_b32 {ad}, 2, {self.vTau}")
        for k in range(8):
            if not glob and k % 4 == 0:
                A(f"ds_write_b128 {self.vHr}, {self.XB[k:k + 4]} offset:{L_H + 128 * k}")
            A(f"v_dot2_f32_bf16 {s1}, {self.XB[k]}, {self.sOnes}, {s1 if k else 0}")
            A(f"v_dot2_f32_bf16 {s2}, {self.XB[k]}, {self.XB[k]}, {s2 if k else 0}")
            if k == 0:
                self.stamp("x")
                if self.o["poison_at"] == "x":
                    self.poison2()
        wv = self.o["wv"]
        take, self.ksl = self.ksl[:wv[1]], self.ksl[wv[1]:]
        self.allreduce(A, "v_add_f32", [s1, s2], 32, take)
        self.ln_stats(A, s1, s2, nm, rs)
        if self.o["poison_at"] == "stat":
            self.poison2()
        self.stamp("stat")
        A("s_mov_b64 exec, 1\ns_bitset1_b64 exec, 32")
        A(f"v_mul_f32 {rs}, 0x3d800000, {rs}")
        A(f"ds_write_b32 {ad}, {nm} offset:{L_ST}\nds_write_b32 {ad}, {rs} offset:{L_ST + 32}")
        A("s_mov_b64 exec, -1")
        A(f"v_mov_b32 {ad}, 0")
        V.put(self.XB)
        self.weave(wv[2])
        A.barrier()
        self.stamp("b1")
        NM, RS = V.get(8), V.get(8)
        XA = self.XA
        if not glob:
            for q in range(2):
                A(f"ds_read2st64_b32 {XA[2 * q:2 * q + 2]}, {self.vHw2} offset0:{8 * q} offset1:{8 * q + 4}")
        A(f"ds_read_b128 {NM[0:4]}, {ad} offset:{L_ST}")
        if not glob:
            for q in range(2, 4):
                A(f"ds_read2st64_b32 {XA[2 * q:2 * q + 2]}, {self.vHw2} offset0:{8 * q} offset1:{8 * q + 4}")
        A(f"ds_read_b128 {NM[4:8]}, {ad} offset:{L_ST + 16}")
        for k in range(2):
            A(f"ds_read_b128 {RS[4 * k:4 * k + 4]}, {ad} offset:{L_ST + 32 + 16 * k}")
        self.weave(wv[3])
        if self.o["poison_at"] == "b1":
            self.poison2()
        A(f"s_add_u32 {self.sE}, {self.sE}, 1\ns_and_b32 {self.sTag}, {self.sE}, {TAGMASK}")
        T = V.get(8)
        for e in range(2):
            G = V.get(4)
            for j in range(8):
                A(f"v_dot2_f32_bf16 {T[j]}, {XA[j]}, {self.sHi if e else self.sLo}, {NM[j]}")
            for j in range(8):
                self.rnd(A, T[j], T[j])
            for q in range(4):
                A(f"v_pk_mul_f32 {T[2 * q:2 * q + 2]}, {T[2 * q:2 * q + 2]}, {RS[2 * q:2 * q + 2]}")
            for j in range(8):
                self.rnd(A, T[j], T[j])
            for q in range(4):
                A(f"v_cvt_pk_f16_f32 {G[q]}, {T[2 * q]}, {T[2 * q + 1]}")
            for q in range(4):
                A(f"v_and_or_b32 {G[q]}, {G[q]}, {self.vMask}, {self.sTag}")
            self.G = getattr(self, "G", []) + [G]
            if e == 0:
                self.stamp("norm")
            if self.o["st_late"] and e == 0:
                continue
            A.wait_tag("poison")
            for ee in ((0, 1) if self.o["st_late"] else (e,)):
                A(f"global_store_dwordx4 {self.vS1o}, {self.G[ee]}, s[30:31] offset:{1024 * ee} sc1", tag="s1st")
        self.stamp("pub1")
        V.put(T, NM, RS, s1, s2, nm, rs, ad, self.vS1o)

    def s1_loads(self, A):
        A(f"global_load_dwordx4 {self.UG[0:4]}, {self.vS1i}, s[30:31] sc1")
        A(f"global_load_dwordx4 {self.UG[4:8]}, {self.vS1i2}, s[30:31] sc1")

    def maybe_s1(self, where):
        if self.o["s1_at"] == where:
            self.UG = self.V.get(8)
            if self.o["poison_at"] == "pub":
                A = self.A
                A(f"v_mov_b32 {self.UG[0]}, {self.sE}")
                A.wait_tag("poison")
                A(f"s_mov_b64 exec, 1\nglobal_store_dword {self.vFo}, {self.UG[0]}, s[30:31] sc1\ns_mov_b64 exec, -1")
                self.V.put(self.vFo)
            self.s1_loads(self.A)

    def ksetup_lines(self):
        V = self.V
        P = self.PAR
        out = []

        class Rec:
            def __call__(self_, text):
                out.extend(x.strip() for x in text.strip().split("\n") if x.strip())
        A = Rec()
        t0, t1, dt = V.get(), V.get(), V.get()
        self.vG16 = V.get()
        sb = self.sb
        A(f"""
        s_and_b32 {sb}, {self.sCh}, 1
        s_xor_b32 {sb}, {sb}, 1
        s_lshl_b32 {sb}, {sb}, 4
        s_lshl_b32 {self.sDt}, {self.sDt}, {sb}
        s_and_b32 {self.sDt}, {self.sDt}, 0xffff0000
        v_mov_b32 {dt}, {LOG2E}
        v_mul_f32 {dt}, {self.sDt}, {dt}
        v_exp_f32 {dt}, {dt}
        s_cmp_eq_u32 {self.sH}, 0
        s_cselect_b32 {sb}, 16, 0
        """)
        self.rnd(A, dt, dt)
        A(f"""
        v_and_b32 {t0}, 0x7fff7fff, {P[2]}
        v_and_b32 {t1}, 0x7fff7fff, {P[3]}
        v_pk_max_u16 {t0}, {t0}, {t1}
        v_lshrrev_b32 {t1}, 16, {t0}
        v_and_b32 {t0}, 0xffff, {t0}
        v_max_u32 {t0}, {t0}, {t1}
        """)
        W = {p: V.get(2) for p in (1, 16, 256)}
        u0, u1 = V.get(), V.get()
        fill = [f"v_lshlrev_b32 {P[k]}, {sb}, {P[k]}" for k in range(4)]
        fill += [f"v_and_b32 {P[k]}, 0xffff0000, {P[k]}" for k in range(4)]
        fill += [f"v_mul_f32 {P[0]}, {LOG2E}, {P[0]}", f"v_exp_f32 {P[0]}, {P[0]}", f"v_mul_f32 {P[1]}, {P[1]}, {dt}",
                 f"v_cvt_pk_bf16_f32 {P[0]}, 0, {P[0]}", f"v_mul_f32 {P[1]}, {INV2PI}, {P[1]}", f"v_mul_f32 {P[0]}, {P[0]}, {dt}",
                 f"v_fract_f32 {u1}, {P[1]}", f"v_mul_f32 {P[0]}, {LOG2E | 0x80000000}, {P[0]}"]
        keep = V.get()
        V.put(keep)
        self.allreduce(A, "v_max_u32", [t0], 64, fill)
        again = V.get()
        assert str(again) == str(keep)
        A(f"v_exp_f32 {u0}, {P[0]}\nv_cos_f32 {W[1][0]}, {u1}\nv_sin_f32 {W[1][1]}, {u1}")
        A(f"""
        v_lshrrev_b32 {t0}, 7, {t0}
        v_mul_f32 {W[1][0]}, {W[1][0]}, {u0}
        v_mul_f32 {W[1][1]}, {W[1][1]}, {u0}
        v_max_u32 {t0}, 8, {t0}
        v_lshrrev_b32 {t1}, 23, {dt}
        v_add_u32 {t1}, {t1}, {t0}
        v_subrev_u32 {t1}, 127, {t1}
        v_max_i32 {t1}, 0, {t1}
        v_min_i32 {t1}, 254, {t1}
        v_lshlrev_b32 {self.vG16}, 23, {t1}
        v_sub_u32 {t0}, 259, {t0}
        v_and_b32 {dt}, 0x007fffff, {dt}
        v_lshl_or_b32 {dt}, {t0}, 23, {dt}
        """)
        L = V.get(2)
        for p, mul in ((16, 0x41800000), (256, 0x43800000)):
            w = W[p]
            A(f"v_mul_f32 {u0}, {mul}, {P[0]}\nv_mul_f32 {u1}, {mul}, {P[1]}")
            A(f"v_exp_f32 {u0}, {u0}\nv_fract_f32 {u1}, {u1}")
            A(f"v_cos_f32 {w[0]}, {u1}\nv_sin_f32 {w[1]}, {u1}")
            A(f"v_mul_f32 {L[p // 256]}, {P[2 + p // 256]}, {dt}")
            A(f"v_mul_f32 {w[0]}, {w[0]}, {u0}\nv_mul_f32 {w[1]}, {w[1]}, {u0}")
        self.ks = dict(W=W, L=L, t0=t0, tmp=[u0, u1, t1, dt, P, again])
        return out

    def weave(self, n):
        for _ in range(min(n, len(self.ksl))):
            self.A(self.ksl.pop(0))

    def kgen_steps(self):
        A, V = self.A, self.V
        self.weave(1000)
        W, L, t0 = self.ks["W"], self.ks["L"], self.ks["t0"]
        V.put(*self.ks["tmp"])
        M, Rr, T = V.get(2), V.get(2), V.get(2)
        self.stamp("ws")
        NB_ = self.o["recb"]
        pk = [V.get() for _ in range(2 * NB_)]
        cnt = [0]
        queue = []
        A(f"s_mov_b32 m0, {self.sStM}")

        def cmul(d, a, b):
            A(f"v_pk_mul_f32 {T}, {a}, {b} op_sel_hi:[0,1]")
            A(f"v_pk_fma_f32 {d}, {a}, {b}, {T} op_sel:[1,1,0] op_sel_hi:[1,0,1] neg_lo:[0,1,0]")

        if not self.o["addtid"]:
            vSt = V.get()
            A(f"v_lshl_add_u32 {vSt}, {self.vL}, 2, {self.sStM}")

        def flush_q():
            for row, r in queue:
                if self.o["addtid"]:
                    A(f"ds_write_addtid_b32 {r} offset:{32768 + row * ROWB}")
                else:
                    A(f"ds_write_b32 {vSt}, {r} offset:{32768 + row * ROWB}")
            queue.clear()

        def put(row, v, conj=False):
            r = pk[cnt[0] % (2 * NB_)]
            cnt[0] += 1
            A(f"v_cvt_pk_f16_f32 {r}, {v[0]}, {'-' if conj else ''}{v[1]}")
            queue.append((row, r))
            if len(queue) >= NB_:
                flush_q()

        Rf, S0, S1, FA = ([self.AC.get(4, 4) for _ in range(4)] for _ in range(4))
        D1, D2, D3 = V.get(4), V.get(4), V.get(4)

        def frags(regs, addr, row0):
            flush_q()
            for q in range(4):
                A(f"ds_read_b128 {regs[q]}, {addr} offset:{row0 * ROWB + 64 * q}")

        def product(D, a, b):
            for q in range(4):
                A(f"v_mfma_f32_16x16x32_f16 {D}, {a[q]}, {b[q]}, {D if q else 0}")

        A(f"v_mov_b32 {t0}, 0x3c00")
        queue.append((0, t0))
        yield
        put(1, W[16], conj=True)
        cmul(Rr, W[16], W[16])
        put(2, Rr, conj=True)
        for j in range(3, 16):
            yield
            cmul(Rr, Rr, W[16])
            put(j, Rr, conj=True)
        frags(Rf, self.vR, 0)
        self.stamp("recR")
        LE = {0: L}
        cur = L
        for al in range(17):
            yield
            if al:
                nxt = V.get(2) if al % 2 == 0 else M
                cmul(nxt, cur, W[1])
                cur = nxt
                if al % 2 == 0:
                    LE[al] = cur
            if al < 16:
                put(16 + al, cur)
        frags(S0, self.vS0, 16)
        self.maybe_s1("rec1")
        for al in range(0, 17, 2):
            yield
            cmul(LE[al], LE[al], W[256])
            put(32 + al // 2, LE[al])
        frags(S1, self.vS1r, 32)
        product(D1, S0, Rf)
        self.maybe_s1("seg1")
        for a in range(2):
            for al in (4, 8, 12, 16):
                yield
                cmul(LE[al], LE[al], W[256])
                put(41 + 2 * (al // 4 - 1) + 1 - a, LE[al])
        K3 = V.get(4)
        flush_q()
        A(f"ds_write_b128 {self.vK1}, {D1} offset:512")
        product(D2, S1, Rf)
        self.maybe_s1("far")
        for a in range(4):
            for al in (8, 16):
                yield
                cmul(LE[al], LE[al], W[256])
                put(49 + 4 * (al // 8 - 1) + 3 - a, LE[al])
        frags(FA, self.vR, 41)
        self.stamp("rec")
        self.maybe_s1("rec2")
        A(f"ds_write_b128 {self.vK1}, {D2}")
        A(f"v_cmp_gt_u32 vcc, 8, {self.vI}")
        product(D3, Rf, FA)
        self.maybe_s1("mfma")
        self.stamp("kmf0")
        A(f"v_cndmask_b32 {T[1]}, {D2[0]}, 0, vcc")
        for k in range(4):
            A(f"v_mov_b32 {K3[k]}, {D3[3 - k]}")
        A(f"v_cndmask_b32 {T[0]}, {D2[0]}, {D3[3]}, vcc")
        A(f"ds_write_b128 {self.vK3}, {K3}")
        A("s_mov_b32 exec_lo, 0\ns_mov_b32 exec_hi, 0x80400000")
        A(f"ds_write_b32 {self.vKs}, {T[0]} offset:12\nds_write2_b32 {self.vKs}, {T[1]}, {T[1]} offset0:1 offset1:2")
        A("s_mov_b32 exec_hi, 0x00400000")
        A(f"ds_write_b32 {self.vKs}, {T[0]} offset:{PPLANE}")
        A("s_mov_b64 exec, -1")
        A.barrier()
        V.put(M, Rr, T, *pk, *W.values(), t0, D1, D2, D3, K3, *LE.values(),
              self.vR, self.vS0, self.vS1r, self.vK1, self.vK3, self.vKs)
        self.AC.put(*Rf, *S0, *S1, *FA)

    def row_params(self):
        A, V = self.A, self.V
        t1, t2 = V.get(), V.get()
        self.vDk = V.get()
        A(f"""
        v_and_b32 {t1}, 0x1ff, {self.vHr}
        v_lshlrev_b32 {t2}, 2, v0
        global_load_dwordx4 {self.WR[0:4]}, {t1}, s[20:21]
        global_load_dwordx4 {self.WR[4:8]}, {t1}, s[20:21] offset:512
        global_load_dword {self.vDk}, {t2}, s[16:17]
        """)
        V.put(t1, t2)

    def kgen(self):
        A, V = self.A, self.V
        if self.o["poison_at"] == "pub":
            self.poison2()
        for item in self.p3_lines:
            A("\n".join(item) if isinstance(item, tuple) else item, tag="poison3" if isinstance(item, tuple) else None)
        self.row_params()
        for _ in self.ksteps:
            pass
        self.stamp("kmf")
        self.maybe_s1("shift")
        D, E = V.get(12), V.get(12)
        C = [V.get(4) for _ in range(4)]
        for k in range(3):
            off = L_P + (k & 1) * PPLANE + (k >> 1) * 16
            A(f"ds_read_b128 {D[4 * k:4 * k + 4]}, {self.vShiftR} offset:{off}")
            A(f"ds_read_b128 {E[4 * k:4 * k + 4]}, {self.vShiftR} offset:{off + PHALF}")
        for k in range(6):
            A(f"v_pk_add_f32 {D[2 * k:2 * k + 2]}, {D[2 * k:2 * k + 2]}, {E[2 * k:2 * k + 2]}")
        for c in range(4):
            for k in range(4):
                A(f"v_cvt_pk_f16_f32 {C[c][k]}, {D[c + 2 * k]}, {D[c + 2 * k + 1]}")
            if c % 2:
                for cc in (c - 1, c):
                    A(f"ds_write_b128 {self.vShift}, {C[cc]} offset:{L_K + cc * KCOPY}")
        if not self.o["frag_in"]:
            A.barrier()
        self.shift_regs = (D, E, *C, self.vShift, self.vShiftR)
        self.stamp("shift")
        self.maybe_s1("frag")
        AC = self.AC
        self.KN = [AC.get(4, 4) for _ in range(17)]
        self.KX = AC.get(4, 4)
        self.B2 = {(k, d): AC.get(4, 4) for k in range(2) for d in (2, 3, 4)}
        self.B3 = {d: AC.get(4, 4) for d in (4, 5, 6, 7)}
        rd = {}
        for q in range(17):
            rd[str(self.KN[q])] = [f"ds_read_b64 {self.KN[q][2 * hf:2 * hf + 2]}, {self.vN} offset:{64 * (16 - q) + 8 * hf}" for hf in range(2)]
        rd[str(self.KX)] = [f"ds_read_b64 {self.KX[2 * hf:2 * hf + 2]}, {self.vN} offset:{2 * NX + 8 * hf}" for hf in range(2)]
        for (k, d), r in self.B2.items():
            rd[str(r)] = [f"ds_read_b64 {r[2 * hf:2 * hf + 2]}, {self.vF} offset:{2 * (V2[2 * k + hf] + 32 - 16 * (d - 2))}" for hf in range(2)]
        for d, r in self.B3.items():
            rd[str(r)] = [f"ds_read_b64 {r[2 * hf:2 * hf + 2]}, {self.vF} offset:{2 * (V3[hf] + 48 - 16 * (d - 4))}" for hf in range(2)]
        self.frag_reads = {}
        if self.o["frag_in"]:
            self.frag_reads = rd
        else:
            for v in rd.values():
                A("\n".join(v))
        self.maybe_s1("end")
        self.stamp("frag")

    def s1_consume(self, A, sfx):
        V = self.V
        UG = self.UG
        t0, t1 = V.get(), V.get()

        def check(C):
            for k in range(8):
                C(f"v_xor_b32 {UG[k]}, {self.sTag}, {UG[k]}")
            C(f"v_or3_b32 {t0}, {UG[0]}, {UG[1]}, {UG[2]}\nv_or3_b32 {t1}, {UG[3]}, {UG[4]}, {UG[5]}")
            C(f"v_or3_b32 {t0}, {t0}, {UG[6]}, {UG[7]}\nv_or_b32 {t0}, {t0}, {t1}")
            C(f"v_and_b32 {t0}, {TAGMASK}, {t0}\nv_cmp_ne_u32 vcc, 0, {t0}")
        self.poll(A, "s1" + sfx, self.s1_loads, check)
        self.stamp("s1w", A)
        if self.o["warm_at"] == "s1w":
            for ln in self.warm_line:
                A(ln)
        A(f"ds_write_b128 {self.vUw}, {UG[0:4]} offset:{L_U + 512}")
        A(f"ds_write_b128 {self.vUw}, {UG[4:8]} offset:{L_U + 512 + 2048}")
        self.stamp("s1", A)
        if not self.o["early_br"]:
            A.barrier()
            self.stamp("b5", A)
        V.put(t0, t1, *self.shift_regs)

    def conv(self, A, tiles, dma):
        V, AC = self.V, self.AC
        acc = {j: V.get(4) for j in tiles}
        NF, NG, NW, NP = self.o["nf"], self.o["ng"], self.o["nw"], 6
        PE, PD, NPRE = self.o["pe"], self.o["pd"], self.o["npre"]
        Fb = [AC.get(4, 4) for _ in range(NF)]
        Gb = [AC.get(4, 4) for _ in range(NG)]
        Wb = [V.get(4) for _ in range(NW)]
        Pb = [V.get(4) for _ in range(NP)]
        EY, EZ = V.get(4), V.get(2)
        qmax = {0: 7, 1: 15}
        b2 = sorted({j - d for j in tiles for d in (2, 3, 4) if j - d >= 0})
        b3 = sorted({j - d for j in tiles for d in (4, 5, 6, 7) if j - d >= 0})
        nlo = min(8 * j - qmax.get(j, 16) for j in tiles)
        nhi = 8 * max(tiles)
        near = []
        for fi, n in enumerate(range(nlo, nhi + 1)):
            for j in tiles:
                q = 8 * j - n
                if 0 <= q <= qmax.get(j, 16):
                    near.append((j, self.KN[q], fi, q == 0))
        far = []
        gfr, pcount = [], 0
        for b in sorted(set(b2) | set(b3)):
            ga, gb = len(gfr), len(gfr) + 1
            gfr += [256 * b - 16, 256 * b - 24]
            mains = []
            if b in b2:
                pa, pb = pcount, pcount + 1
                pcount += 2
                far += [("band", ga, (12, 1), pa, 0), ("band", ga, (8, 2), pa, 1), ("band", gb, (12, 1), pb, 0), ("band", gb, (8, 2), pb, 1)]
                mains += [("main", b + d, pa, self.B2[(0, d)]) for d in (2, 3, 4) if b + d in tiles]
                mains += [("main", b + d, pb, self.B2[(1, d)]) for d in (2, 3, 4) if b + d in tiles]
            if b in b3:
                pc = pcount
                pcount += 1
                far += [("band", ga, (8, 3), pc, 0), ("band", gb, (8, 4), pc, 1)]
                mains += [("main", b + d, pc, self.B3[d]) for d in (4, 5, 6, 7) if b + d in tiles]
            if b + 4 in tiles:
                far.append(("x", b + 4, ga))
            far += mains
        LAT = self.o["lat"]
        mf, fill = [], []
        started, done_at = set(), {}
        fuse, guse, plast, pready = {}, {}, {}, {}
        wcount = 0
        ni = 0
        farleft = list(far)
        span = self.o["far_span"][0 if 0 in tiles else 1]
        credit = 0.0

        def acc_mf(j, a, b):
            mf.append(f"v_mfma_f32_16x16x32_f16 {acc[j]}, {a}, {b}, {acc[j] if j in started else 0}")
            started.add(j)

        def far_ok(it):
            t = len(mf)
            if it[0] == "main":
                return pready.get(it[2], 10 ** 6) <= t
            if it[0] == "band":
                prev = it[3] - NP
                return prev < 0 or not any(o[0] == "main" and o[2] == prev for o in farleft)
            return True

        while ni < len(near) or farleft:
            t = len(mf)
            want_far = farleft and (credit >= 1.0 or ni >= len(near))
            if ni < len(near) and near[ni][3] and any(o[0] in ("main", "x") and o[1] == near[ni][0] for o in farleft):
                want_far = True
            pick = None
            if want_far:
                for it in farleft[:8]:
                    if far_ok(it):
                        if it[0] == "band" and any(o[0] == "band" for o in farleft[:farleft.index(it)]):
                            continue
                        pick = it
                        break
            if pick is None and ni < len(near) and not (near[ni][3] and any(o[0] in ("main", "x") and o[1] == near[ni][0] for o in farleft)):
                j, a, fi, last = near[ni]
                ni += 1
                acc_mf(j, a, Fb[fi % NF])
                fuse.setdefault(fi, [t, t])[1] = t
                if last:
                    done_at[j] = t
                credit += len(far) / span
                continue
            assert pick is not None, "conv schedule is stuck"
            farleft.remove(pick)
            credit -= 1.0
            if pick[0] == "band":
                _, g, key, p, hf = pick
                w = Wb[wcount % NW]
                wcount += 1
                mf.append(f"v_mfma_f32_16x16x32_f16 {w}, {Gb[g % NG]}, {self.BAND[key]}, 0")
                guse.setdefault(g, [t, t])[1] = t
                for k in range(2):
                    fill.append([t + self.o["cvt0"], t + LAT - 1, f"v_cvt_pk_f16_f32 {Pb[p % NP][2 * hf + k]}, {w[2 * k]}, {w[2 * k + 1]}", None])
                if hf == 1:
                    pready[p] = t + LAT
            elif pick[0] == "x":
                acc_mf(pick[1], self.KX, Gb[pick[2] % NG])
                guse.setdefault(pick[2], [t, t])[1] = t
            else:
                acc_mf(pick[1], Pb[pick[2] % NP], pick[3])
        nm = len(mf)
        pre = []
        reads = []
        for fi in sorted(fuse):
            txt = f"ds_read_b128 {Fb[fi % NF]}, {self.vUf} offset:{512 + 2 * (32 * (nlo + fi) - 16)}"
            reads.append((fuse[fi][0], fuse[fi - NF][1] if fi >= NF else -1, txt))
        for g in sorted(guse):
            txt = f"ds_read_b128 {Gb[g % NG]}, {self.vUf} offset:{512 + 2 * gfr[g]}"
            reads.append((guse[g][0], guse[g - NG][1] if g >= NG else -1, txt))
        seen = set()
        for t, txt in enumerate(mf):
            for name, two in self.frag_reads.items():
                if name not in seen and f" {name}," in txt:
                    seen.add(name)
                    reads += [(t, -1, two[0]), (t, -1, two[1])]
        reads.sort(key=lambda r: r[0])
        for first, free, txt in reads:
            if free < 0 and first <= NPRE:
                pre.append(txt)
            else:
                assert free < first
                fill.append([max(free, first - PE, 0), max(free, first - PD, 0), txt, None])
        order_t = sorted(tiles, key=lambda j: done_at[j])
        for k, j in enumerate(order_t):
            t = done_at[j]
            nxt = done_at[order_t[k + 1]] if k + 1 < len(order_t) else nm + 100
            seq2 = [f"v_mul_f32 {EY[r]}, {acc[j][r]}, {self.vG16}" for r in range(4)]
            seq2 += [f"v_cvt_pk_bf16_f32 {EZ[r]}, {EY[2 * r]}, {EY[2 * r + 1]}" for r in range(2)]
            seq2.append(f"ds_write_b64 {self.vZw}, {EZ} offset:{L_Z + 1024 * j}")
            for txt in seq2:
                fill.append([t + self.o["cvt0"], min(t + 12, nxt + 2), txt, f"e2_{j}"])
        for txt in pre:
            A(txt)
        for i, f in enumerate(fill):
            f.append(i)
        left = list(fill)
        bg = list(self.bg)
        A.prewait([mf[0]])
        for t in range(nm):
            A(mf[t])
            chosen = []
            for f in sorted([f for f in left if f[0] <= t], key=lambda f: (f[1], f[4])):
                if len(chosen) >= 2 and f[1] > t:
                    break
                if f[3] and any(g[3] == f[3] and g[4] < f[4] and g not in chosen for g in left):
                    continue
                mem = isinstance(f[2], tuple) or f[2].startswith("ds_")
                if mem and f[1] > t and any(g[3] == f[3] and f[3] for g in chosen):
                    continue
                chosen.append(f)
            memf = [f for f in chosen if (isinstance(f[2], tuple) or f[2].startswith("ds_")) and not any(g[3] == f[3] and f[3] and g[4] < f[4] for g in chosen)]
            rest = [f for f in chosen if f not in memf]
            c0 = A.count
            A.prewait([f[2] for f in chosen if not isinstance(f[2], tuple)] + ([mf[t + 1]] if t + 1 < nm else []))
            ns, nv = A.count - c0, len(chosen)
            while bg and isinstance(bg[0], str) and bg[0].startswith("s_") and ns + nv < 3 and t >= self.o["bg_from"]:
                A(bg.pop(0))
                ns += 1
            nv += max(0, ns - 1)
            if bg and not memf and nv < 2 and (isinstance(bg[0], tuple) or bg[0].startswith("global_")):
                item = bg.pop(0)
                A("\n".join(item) if isinstance(item, tuple) else item, tag="poison3" if isinstance(item, tuple) else None)
                nv += 1
            for f in memf + rest:
                A(f[2])
                left.remove(f)
            while bg and nv < 2 and isinstance(bg[0], str) and bg[0].startswith("v_") and t >= self.o["bg_from"]:
                A(bg.pop(0))
                nv += 1
        self.bg_left = max(getattr(self, "bg_left", 0), len(bg))
        tail_bg = bg
        for item in tail_bg:
            A("\n".join(item) if isinstance(item, tuple) else item, tag="poison3" if isinstance(item, tuple) else None)
        for f in sorted(left, key=lambda f: (f[1], f[4])):
            A(f[2])
        self.nmfma = getattr(self, "nmfma", []) + [nm]
        V.put(*acc.values(), *Wb, *Pb, EY, EZ)
        AC.put(*Fb, *Gb)

    def dma_plan(self, A, role):
        V = self.V
        vL, sW = self.vL, self.sW
        t0, t1 = V.get(), V.get()
        self.vWa = V.get()
        if role == 0:
            A(f"""
            s_lshl_b32 {self.sWb}, {sW}, 13
            s_add_u32 {self.sWb}, {self.sWb}, {L_STAGE}
            s_lshl_b32 s3, {sW}, 7
            v_lshrrev_b32 {t0}, 2, {vL}
            v_add_u32 {t0}, s3, {t0}
            v_mul_u32_u24 {t0}, 3584, {t0}
            v_and_b32 {t1}, 3, {vL}
            v_lshl_add_u32 {t0}, {t1}, 4, {t0}
            s_lshl_b32 s3, {self.sBlk}, 6
            v_add_u32 {self.vWa}, s3, {t0}
            s_cmp_eq_u32 {self.sUp}, 0
            s_cselect_b32 s4, s22, s24
            s_cselect_b32 s5, s23, s25
            """)
            n, step = 8, 16 * 3584
        else:
            A(f"""
            s_mul_i32 {self.sWb}, {sW}, 14336
            s_add_u32 {self.sWb}, {self.sWb}, {L_STAGE}
            s_mul_i32 s3, {sW}, 448
            v_lshrrev_b32 {t0}, 1, {vL}
            v_add_u32 {t0}, s3, {t0}
            v_lshlrev_b32 {t0}, 10, {t0}
            v_and_b32 {t1}, 1, {vL}
            v_lshl_add_u32 {t0}, {t1}, 4, {t0}
            s_lshl_b32 s3, {self.sBlk}, 5
            v_add_u32 {self.vWa}, s3, {t0}
            s_mov_b64 s[4:5], s[26:27]
            """)
            n, step = 14, 0x8000
        V.put(t0, t1)
        return [(f"s_add_u32 m0, {self.sWb}, {m * 1024}" + (f"\ns_add_u32 s4, s4, {step}\ns_addc_u32 s5, s5, 0" if m else ""),
                 f"global_load_lds_dwordx4 {self.vWa}, s[4:5]") for m in range(n)]

    def conv_all(self):
        A = self.A
        nb = self.nwarm if self.o["warm_at"] == "pre" else 0
        for ln in self.bg[:nb]:
            A(ln)
        self.bg = self.bg[nb:]
        self.s1_consume(A, "")
        first, second = ([5, 6, 7], [0, 1, 2, 3, 4]) if self.o["b_first"] else ([0, 1, 2, 3, 4], [5, 6, 7])
        A(f"s_cmp_eq_u32 {self.sH}, {int(self.o['b_first'])}\ns_cbranch_scc0 L_conv_b")
        B = A.fork()
        if self.o["early_br"]:
            A.barrier()
            self.stamp("b5", A)
        self.conv(A, first, [])
        A.wait_tag("poison3")
        A.wait(lg=0)
        A.flush()
        A("s_branch L_conv_done")
        B.label("L_conv_b")
        if self.o["early_br"]:
            B.barrier()
            self.stamp("b5", B)
        self.conv(B, second, [])
        B.wait_tag("poison3")
        B.wait(lg=0)
        assert [t for _, t in A.vm] == [t for _, t in B.vm]
        B.flush()
        A.lines += B.lines
        A.count += B.count
        A.nops += B.nops
        A.label("L_conv_done")
        self.V.put(*self.bgtmp)
        self.V.put(*self.BAND.values(), self.vUf, self.vZw, self.vG16, self.UG, self.vUw,
                   self.vS1i, self.vS1i2, self.vN, self.vF)
        self.AC.put(*self.KN, self.KX, *self.B2.values(), *self.B3.values())
        self.stamp("conv", A)
        A("s_barrier")
        self.stamp("b6", A)
        self.ZT = ZT = self.V.get(8)
        A(f"ds_read_b128 {ZT[0:4]}, {self.vZr} offset:{L_Z}\nds_read_b128 {ZT[4:8]}, {self.vZr} offset:{L_Z + 4096}")
        A(f"global_store_dwordx4 {self.vS2o}, {ZT[0:4]}, s[30:31] sc1", tag="s2st")
        A(f"global_store_dwordx4 {self.vS2o2}, {ZT[4:8]}, s[30:31] sc1", tag="s2st")
        if self.o["poison_at"] == "pub":
            self.vFl = self.V.get()
            A(f"global_load_dword {self.vFl}, {self.vFi}, s[30:31] sc1")
        self.stamp("st2", A)
        self.V.put(self.vZr, self.vS2o, self.vS2o2)

    def poison_check(self, regs, t0):
        def chk(C):
            r = list(regs)
            if len(r) == 1:
                C(f"v_cmp_eq_u32 vcc, -1, {r[0]}")
                return
            C(f"v_max3_u32 {t0}, {r[0]}, {r[1]}, {r[2] if len(r) > 2 else r[1]}")
            r = r[3:]
            while r:
                C(f"v_max3_u32 {t0}, {t0}, {r[0]}, {r[1] if len(r) > 1 else r[0]}")
                r = r[2:]
            C(f"v_cmp_eq_u32 vcc, -1, {t0}")
        return chk

    def phase_c(self):
        A, V = self.A, self.V
        vL, vI, vG, sL, sW = self.vL, self.vI, self.vG, self.sL, self.sW
        get = V.get
        self.t = t0, t1, t2 = get(), get(), get()
        vSW, vKw, vS3o, vRo = get(), get(), get(), get()
        self.vS3i = get()
        vHr = self.vHr
        XL, XH, UD = get(8), get(8), Multi([get(4) for _ in range(4)])
        for j in range(8):
            A(f"v_lshlrev_b32 {XL[j]}, 16, {self.XA[j]}")
            A(f"v_and_b32 {XH[j]}, 0xffff0000, {self.XA[j]}")
        A(f"v_lshlrev_b32 {t0}, 16, {self.vDk}\nv_and_b32 {t1}, 0xffff0000, {self.vDk}")
        A(f"v_mul_f32 {t0}, 0x41800000, {t0}\nv_mul_f32 {t1}, 0x41800000, {t1}")
        for e in range(2):
            G = self.G[e]
            for q in range(4):
                A(f"v_and_b32 {G[q]}, {G[q]}, {self.vMask}")
            for j in range(8):
                A(f"v_fma_mix_f32 {UD[8 * e + j]}, {G[j // 2]}, {(t0, t1)[e]}, 0 op_sel:[{j % 2},0,0] op_sel_hi:[1,0,0]")
            for j in range(8):
                self.rnd(A, UD[8 * e + j], UD[8 * e + j])
        V.put(*self.G, self.vMask, self.vDk)
        for k in range(8):
            A(f"v_dot2_f32_bf16 {vSW}, {self.WR[k]}, {self.sOnes}, {vSW if k else 0}")
        self.allreduce(A, "v_add_f32", [vSW], 32)
        A(f"""
        v_and_b32 {t0}, 31, v0
        v_lshlrev_b32 {t0}, 4, {t0}
        v_lshlrev_b32 {vKw}, 2, {self.vTau}
        s_lshl_b32 s3, {sW}, 13
        s_lshl_b32 s16, {sL}, 4
        s_add_u32 s3, s3, s16
        s_add_u32 s3, s3, {WS_S3}
        v_lshl_add_u32 {vS3o}, {vL}, 12, s3
        s_lshr_b32 s3, {sL}, 5
        s_lshl_b32 s3, s3, 12
        s_add_u32 s16, s3, {WS_S3}
        v_lshl_add_u32 {self.vS3i}, v0, 4, s16
        s_lshl_b32 s16, {sL}, 11
        s_add_u32 s16, s16, {WS_ROWS}
        v_add_u32 {vRo}, s16, {t0}
        s_lshl_b32 s3, {sL}, 3
        s_sub_u32 s3, 2047, s3
        v_sub_u32 {t2}, s3, {self.vTau}
        v_mov_b32 {t1}, 0
        """)
        if self.o["dma_ack2"] and self.o["dma_at"] != "none":
            A(f"s_cmp_eq_u32 {self.sRole}, 2\ns_cbranch_scc1 L_dma_done")
            A(f"s_cmp_eq_u32 {self.sRole}, 1\ns_cbranch_scc1 L_dma_r1")
            keep = list(A.vm)
            for role in (0, 1):
                if role:
                    A.label("L_dma_r1")
                plan = self.dma_plan(A, role)
                n = len(plan) if role == 0 else self.o["dma_ack2"]
                for a, b in plan[:n]:
                    A(a)
                    A(b, tag="dma")
                if role == 0:
                    A("s_branch L_dma_done")
                    V.put(self.vWa)
                else:
                    self.plan1 = plan[n:]
            A.label("L_dma_done")
        if self.o["dma0_ack2"] and self.o["dma_at"] != "none":
            A(f"s_cmp_eq_u32 {self.sRole}, 0\ns_cbranch_scc0 L_dma0_done")
            for a, b in self.dma_plan(A, 0):
                A(a)
                A(b, tag="dma")
            V.put(self.vWa)
            A.label("L_dma0_done")
        early = self.o["dma_s2"] and self.o["dma_at"] != "none"
        if early:
            A(f"s_cmp_eq_u32 {self.sRole}, 1\ns_cbranch_scc1 L_plan1")
            p0 = self.dma_plan(A, 0)
            keep = self.vWa
            A("s_branch L_plan_done")
            A.label("L_plan1")
            V.put(keep)
            p1 = self.dma_plan(A, 1)
            assert str(keep) == str(self.vWa)
            A.label("L_plan_done")
        self.stamp("dma", A)
        A.wait(vm=0)
        if self.o["poison_at"] == "pub":
            self.poll(A, "flg", lambda C: C(f"global_load_dword {self.vFl}, {self.vFi}, s[30:31] sc1"),
                      lambda C: C(f"v_cmp_ne_u32 vcc, {self.sE}, {self.vFl}"))
            V.put(self.vFl, self.vFi)
        self.stamp("ack2", A)
        ZT = self.ZT

        def s2_loads(C):
            C(f"global_load_dwordx4 {ZT[0:4]}, {self.vS2i}, s[30:31] sc1")
            C(f"global_load_dwordx4 {ZT[4:8]}, {self.vS2i2}, s[30:31] sc1")
        s2_loads(A)
        self.poll(A, "s2", s2_loads, self.poison_check([ZT[k] for k in range(8)], t0))
        self.stamp("s2", A)
        if early:
            n1 = self.o["dma_s2"] - 1
            A(f"s_cmp_eq_u32 {self.sRole}, 0\ns_cbranch_scc0 L_dma_n0")
            for a, b in p0:
                A(a)
                A(b)
            A.label("L_dma_n0")
            if n1:
                A(f"s_cmp_eq_u32 {self.sRole}, 1\ns_cbranch_scc0 L_dma_n1")
                for a, b in p1[:n1]:
                    A(a)
                    A(b)
                A.label("L_dma_n1")
            A.vm = []
            self.plan1 = p1[n1:]
        HP = get(8)
        self.T = T = get(8)
        for grp in range(2):
            for jj in range(4):
                j = 4 * grp + jj
                sel = self.sHi if j % 2 else self.sLo
                A(f"v_dot2_f32_bf16 {T[jj]}, {ZT[j // 2]}, {sel}, {UD[j]}")
                A(f"v_dot2_f32_bf16 {T[4 + jj]}, {ZT[4 + j // 2]}, {sel}, {UD[8 + j]}")
            for k in range(8):
                self.rnd(A, T[k], T[k])
            for q in range(2):
                j = 4 * grp + 2 * q
                A(f"v_pk_add_f32 {T[2 * q:2 * q + 2]}, {T[2 * q:2 * q + 2]}, {XL[j:j + 2]}")
                A(f"v_pk_add_f32 {T[4 + 2 * q:6 + 2 * q]}, {T[4 + 2 * q:6 + 2 * q]}, {XH[j:j + 2]}")
            for jj in range(4):
                A(f"v_cvt_pk_bf16_f32 {HP[4 * grp + jj]}, {T[jj]}, {T[4 + jj]}")
            for q in range(2):
                j = 4 * grp + 2 * q
                A(f"ds_write2st64_b32 {self.vHw2}, {HP[j]}, {HP[j + 1]} offset0:{4 * j} offset1:{4 * j + 4}")
        self.stamp("hw", A)
        A.barrier()
        self.stamp("b7", A)
        V.put(XL, XH, *UD.groups, HP, ZT, self.vS2i, self.vS2i2, self.XA)
        HB = get(8)
        A(f"ds_read_b128 {HB[0:4]}, {vHr} offset:{L_H}\nds_read_b128 {HB[4:8]}, {vHr} offset:{L_H + 512}")
        s1, s2, s3, NM, RS = get(), get(), get(), get(2), get(2)
        self.key = key = get()
        for k in range(8):
            A(f"v_dot2_f32_bf16 {s1}, {HB[k]}, {self.sOnes}, {s1 if k else 0}")
            A(f"v_dot2_f32_bf16 {s2}, {HB[k]}, {HB[k]}, {s2 if k else 0}")
            A(f"v_dot2_f32_bf16 {s3}, {HB[k]}, {self.WR[k]}, {s3 if k else 0}")
        self.allreduce(A, "v_add_f32", [s1, s2, s3], 32)
        self.ln_stats(A, s1, s2, NM[0], RS[0])
        A(f"v_fma_f32 {s3}, {NM[0]}, {vSW}, {s3}\nv_mul_f32 {s3}, {s3}, {RS[0]}")
        self.rnd(A, s3, s3)
        A(f"""
        v_ashrrev_i32 {t0}, 31, {s3}
        v_or_b32 {t0}, 0x80000000, {t0}
        v_xor_b32 {t0}, {s3}, {t0}
        v_and_b32 {t0}, 0xffff0000, {t0}
        v_or_b32 {key}, {t0}, {t2}
        s_mov_b64 exec, 1
        s_bitset1_b64 exec, 32
        ds_write_b32 {vKw}, {key} offset:{L_KEY}
        s_mov_b64 exec, -1
        """)
        self.stamp("key", A)
        V.put(self.WR, vSW, s1, s2, s3, vKw)
        H32 = Multi([get(4) for _ in range(4)])
        for k in range(8):
            A(f"v_lshlrev_b32 {H32[2 * k]}, 16, {HB[k]}\nv_and_b32 {H32[2 * k + 1]}, 0xffff0000, {HB[k]}")
        A.barrier()
        self.kmax = kmax = get()
        A(f"ds_read_b128 {T[0:4]}, {t1} offset:{L_KEY}\nds_read_b128 {T[4:8]}, {t1} offset:{L_KEY + 16}")
        HN = Multi([get(4) for _ in range(2)])
        self.D = D = Multi([get(4) for _ in range(8)])
        A(f"v_mov_b32 {NM[1]}, {NM[0]}\nv_mov_b32 {RS[1]}, {RS[0]}")
        for k in range(8):
            A(f"v_pk_add_f32 {D[2 * k:2 * k + 2]}, {H32[2 * k:2 * k + 2]}, {NM}")
        A(f"v_max3_u32 {kmax}, {T[0]}, {T[1]}, {T[2]}\nv_max3_u32 {t0}, {T[3]}, {T[4]}, {T[5]}")
        A(f"v_max3_u32 {kmax}, {kmax}, {T[6]}, {T[7]}\nv_max_u32 {kmax}, {kmax}, {t0}")
        A("s_mov_b64 exec, 3")
        A(f"global_store_dword {vS3o}, {kmax}, s[30:31] sc1", tag="s3st")
        A("s_mov_b64 exec, -1")
        self.stamp("pub3", A)
        sC = self.sC
        A(f"v_cmp_eq_u32 {sC}, {key}, {kmax}")
        for k in range(16):
            self.rnd(A, D[k], D[k])
        for k in range(8):
            A(f"v_pk_mul_f32 {D[2 * k:2 * k + 2]}, {D[2 * k:2 * k + 2]}, {RS}")
        for k in range(8):
            A(f"v_cvt_pk_bf16_f32 {HN[k]}, {D[2 * k]}, {D[2 * k + 1]}")
        A(f"s_mov_b64 exec, {sC}")
        A(f"global_store_dwordx4 {vRo}, {HN[0:4]}, s[30:31] sc1", tag="rowst")
        A(f"global_store_dwordx4 {vRo}, {HN[4:8]}, s[30:31] offset:512 sc1", tag="rowst")
        A(f"global_store_dwordx4 {vRo}, {HB[0:4]}, s[30:31] offset:1024 sc1", tag="rowst")
        A(f"global_store_dwordx4 {vRo}, {HB[4:8]}, s[30:31] offset:1536 sc1", tag="rowst")
        A("s_mov_b64 exec, -1")
        self.stamp("hn", A)
        self.O = O = Multi([get(4) for _ in range(2)])
        for k in range(8):
            A(f"v_dot2_f32_bf16 {D[2 * k]}, {HN[k]}, {self.sLo}, {H32[2 * k]}")
            A(f"v_dot2_f32_bf16 {D[2 * k + 1]}, {HN[k]}, {self.sHi}, {H32[2 * k + 1]}")
        for k in range(8):
            A(f"v_cvt_pk_bf16_f32 {O[k]}, {D[2 * k]}, {D[2 * k + 1]}")
        self.stamp("outc", A)
        V.put(*H32.groups, NM, RS, vS3o, vRo)

    def out_stores(self, C):
        pol = self.o["out_pol"]
        C(f"global_store_dwordx4 {self.vRow}, {self.O[0:4]}, s[28:29] {pol}", tag="out")
        C(f"global_store_dwordx4 {self.vRow}, {self.O[4:8]}, s[28:29] offset:512 {pol}", tag="out")

    def resolve(self, A, sfx, between=None):
        t0, t1, t2 = self.t
        T, kin = self.T, self.kin

        def s3_loads(C):
            C(f"global_load_dword {kin}, {self.vS3i}, s[30:31] sc1")
        s3_loads(A)
        if between:
            between()
        A(f"v_lshrrev_b32 {t1}, 4, v0\nv_and_b32 {t1}, 12, {t1}\nv_mov_b32 {t2}, 0")
        self.poll(A, "s3" + sfx, s3_loads, self.poison_check([kin], t0))
        self.stamp("s3p", A)
        self.allreduce(A, "v_max_u32", [kin], 64)
        self.stamp("s3w", A)
        A(f"s_mov_b64 exec, 1\nds_write_b32 {t1}, {kin} offset:{L_KEY2}\ns_mov_b64 exec, -1")
        A.barrier()
        A(f"ds_read_b128 {T[0:4]}, {t2} offset:{L_KEY2}")
        A(f"v_max3_u32 {kin}, {T[0]}, {T[1]}, {T[2]}\nv_max_u32 {kin}, {kin}, {T[3]}")
        A(f"v_readfirstlane_b32 {self.sK}, {kin}")
        A(f"s_and_b32 {self.sT}, {self.sK}, 0x7ff\ns_sub_u32 {self.sT}, 2047, {self.sT}")
        self.stamp("s3", A)
        A(f"s_lshr_b32 s3, {self.sT}, 3\ns_lshl_b32 s3, s3, 11\ns_add_u32 s3, s3, {WS_ROWS}")

    def finish(self, A, sfx):
        A.flush()
        A.label(f"L_fin_{sfx}")
        if self.o["stamps"]:
            A.wait(vm=0)
            self.stamp("end", A)
            if self.o["clk"]:
                A("s_memtime s[96:97]")
                A.wait(lg=0)
                A("s_sub_u32 s100, s96, s100\ns_mov_b32 s101, 0")
            A("s_waitcnt vmcnt(0) lgkmcnt(0)")
            self.dump_stamps(A)
        A("s_endpgm")

    def tail0(self, A):
        V = self.V
        get = V.get
        vL, vI, vG, sL, sW, sC = self.vL, self.vI, self.vG, self.sL, self.sW, self.sC
        t0, t1, t2 = self.t
        T, D = self.T, self.D
        vTr, vRed, vXs, vPub, vRd = get(), get(), get(), get(), get()
        WT = [self.AC.get(4, 4) for _ in range(8)]
        plan = [] if self.o["dma_ack2"] or self.o["dma0_ack2"] or self.o["dma_s2"] else self.dma_plan(A, 0)
        if self.o["dma_at"] == "none":
            plan = []

        def dma():
            for a, b in plan:
                A(a)
                A(b, tag="dma")
        if not self.o["r0_late"]:
            dma()
        A(f"""
        v_and_b32 {t0}, 3, {vI}
        v_lshlrev_b32 {t0}, 3, {t0}
        v_lshrrev_b32 {t1}, 2, {vI}
        v_lshl_add_u32 {t1}, {vG}, 3, {t1}
        v_lshl_add_u32 {t0}, {t1}, 6, {t0}
        v_add_u32 {vTr}, {self.sWb}, {t0}
        """)

        def tr_reads():
            A.wait_tag("dma")
            for ct in range(2):
                for m in range(4):
                    for e2 in range(2):
                        A(f"ds_read_b64_tr_b16 {WT[4 * ct + m][2 * e2:2 * e2 + 2]}, {vTr} offset:{(32 * m + 4 * e2) * 64 + 32 * ct}")
        A(f"""
        s_lshl_b32 s3, {sW}, 2
        v_lshl_add_u32 {vRed}, {vI}, 4, s3
        v_and_b32 {t0}, 3, {vI}
        v_lshlrev_b32 {t0}, 6, {t0}
        v_lshl_add_u32 {t0}, {vG}, 4, {t0}
        s_lshl_b32 s3, {sW}, 8
        v_add_u32 {vXs}, s3, {t0}
        v_and_b32 {t0}, 31, {vL}
        v_lshlrev_b32 {vRd}, 4, {t0}
        v_lshrrev_b32 {t1}, 5, {vL}
        v_lshlrev_b32 {t1}, 13, {t1}
        v_lshl_add_u32 {t1}, {t0}, 1, {t1}
        s_lshl_b32 s3, {sW}, 14
        s_lshl_b32 s16, {self.sUp}, 12
        s_add_u32 s3, s3, s16
        s_lshl_b32 s16, {self.sBlk}, 6
        s_add_u32 s3, s3, s16
        s_add_u32 s3, s3, {WS_S4}
        v_add_u32 {vPub}, s3, {t1}
        """)
        A.wait_tag("s3st")
        self.stamp("ack3", A)

        late_out = self.o["r0_late"] == 2

        def between():
            if self.o["r0_late"]:
                dma()
            if not late_out:
                A(f"s_andn2_b64 exec, -1, {sC}")
                self.out_stores(A)
                A("s_mov_b64 exec, -1")
            if not self.o["r0_late"]:
                tr_reads()
        self.resolve(A, "r0", between)
        XS = get(4)
        A(f"v_add_u32 {vXs}, s3, {vXs}")

        def row_loads(C):
            C(f"global_load_dwordx4 {XS}, {vXs}, s[30:31] sc1")
        row_loads(A)
        if late_out:
            A(f"v_cmp_ne_u32 {sC}, {self.kin}, {self.key}")
        else:
            A(f"v_cmp_ne_u32 vcc, {self.kin}, {self.kmax}\ns_and_b64 exec, vcc, {sC}")
            self.out_stores(A)
            A("s_mov_b64 exec, -1")
        if self.o["r0_late"]:
            tr_reads()
        self.poll(A, "rowr0", row_loads, self.poison_check([XS[k] for k in range(4)], t0))
        self.stamp("row", A)
        for k in range(8):
            A(f"v_mfma_f32_16x16x32_bf16 {D[4 * k:4 * k + 4]}, {XS}, {WT[k]}, 0")
        A(f"s_cmp_eq_u32 {self.sUp}, 0\ns_cselect_b64 s[16:17], -1, 0")
        A(f"""
        v_add_f32 {t0}, {D[0]}, {D[5]}
        v_add_f32 {t1}, {D[10]}, {D[15]}
        v_add_f32 {t0}, {t0}, {t1}
        v_add_f32 {t1}, {D[16]}, {D[21]}
        v_add_f32 {t2}, {D[26]}, {D[31]}
        v_add_f32 {t1}, {t1}, {t2}
        s_mov_b64 exec, 0xffff
        ds_write_b32 {vRed}, {t0} offset:{L_RED}
        ds_write_b32 {vRed}, {t1} offset:{L_RED + 256}
        s_mov_b64 exec, -1
        """)
        self.stamp("g1m", A)
        A.barrier()
        self.stamp("g1b", A)
        A(f"ds_read_b128 {T[0:4]}, {vRd} offset:{L_RED}")
        A(f"v_pk_add_f32 {T[0:2]}, {T[0:2]}, {T[2:4]}\nv_add_f32 {T[0]}, {T[0]}, {T[1]}")
        self.rnd(A, T[0], T[0])
        A(f"v_mul_f32 {t0}, {LOG2E | 0x80000000}, {T[0]}\nv_exp_f32 {t0}, {t0}\nv_add_f32 {t0}, 1.0, {t0}")
        A(f"v_rcp_f32 {t0}, {t0}\nv_mul_f32 {t0}, {T[0]}, {t0}")
        A(f"v_cndmask_b32 {t0}, {T[0]}, {t0}, s[16:17]")
        A(f"v_mov_b32_dpp {t1}, {t0} row_shl:1 row_mask:0xf bank_mask:0xf")
        A(f"v_cvt_pk_bf16_f32 {XS[0]}, {t0}, {t1}")
        for k in range(1, 4):
            A(f"v_mov_b32_dpp {XS[k]}, {XS[0]} row_shl:{2 * k} row_mask:0xf bank_mask:0xf")
        A("s_mov_b32 exec_lo, 0x01010101\ns_mov_b32 exec_hi, 0x01010101")
        A(f"global_store_dwordx4 {vPub}, {XS}, s[30:31] sc1")
        self.stamp("g1", A)
        if late_out:
            A(f"s_mov_b64 exec, {sC}")
            self.out_stores(A)
        self.finish(A, "r0")

    def tail2(self, A):
        A.wait_tag("s3st")
        self.stamp("ack3", A)

        def between():
            A(f"s_andn2_b64 exec, -1, {self.sC}")
            self.out_stores(A)
            A("s_mov_b64 exec, -1")
        if self.o["r2_late"]:
            self.resolve(A, "r2")
            A(f"v_cmp_ne_u32 vcc, {self.kin}, {self.key}\ns_mov_b64 exec, vcc")
        else:
            self.resolve(A, "r2", between)
            A(f"v_cmp_ne_u32 vcc, {self.kin}, {self.kmax}\ns_and_b64 exec, vcc, {self.sC}")
        self.out_stores(A)
        self.finish(A, "r2")

    def tail1(self, A):
        V = self.V
        get = V.get
        vL, vI, vG, sL, sW, sC = self.vL, self.vI, self.vG, self.sL, self.sW, self.sC
        t0, t1, t2 = self.t
        T, D = self.T, self.D
        plan = self.plan1 if self.o["dma_ack2"] or self.o["dma_s2"] else self.dma_plan(A, 1)
        if self.o["dma_at"] == "none":
            plan = []
        n1 = self.o["r1_split"]
        for a, b in plan[:n1]:
            A(a)
            A(b, tag="dma")
        A.wait_tag("s3st")
        self.stamp("ack3", A)

        def between():
            for a, b in plan[n1:]:
                A(a)
                A(b, tag="dma")
        self.resolve(A, "r1", between)
        vTr, vRed, vSig, vOut, vS4i = get(), get(), get(), get(), get()
        HH = get(2)
        A(f"""
        s_lshl_b32 s16, {self.sBlk}, 5
        s_add_u32 s3, s3, s16
        v_lshrrev_b32 {t1}, 1, {vI}
        v_lshl_add_u32 {t1}, {t1}, 2, s3
        """)

        def row_loads(C):
            C(f"global_load_dword {HH[0]}, {t1}, s[30:31] sc1")
            C(f"global_load_dword {HH[1]}, {t1}, s[30:31] offset:1024 sc1")
        row_loads(A)

        def own_rows():
            A(f"v_cmp_eq_u32 vcc, {self.kin}, {self.key}\ns_andn2_b64 exec, -1, vcc")
            self.out_stores(A)
            A("s_mov_b64 exec, -1")
        if self.o["r1_out"] == "row":
            own_rows()
        A(f"""
        v_and_b32 {t0}, 3, {vI}
        v_lshlrev_b32 {t0}, 3, {t0}
        v_lshrrev_b32 {t2}, 2, {vI}
        v_lshl_add_u32 {t2}, {vG}, 3, {t2}
        v_lshl_add_u32 {t0}, {t2}, 5, {t0}
        v_add_u32 {vTr}, {self.sWb}, {t0}
        """)
        self.poll(A, "rowr1", row_loads, self.poison_check([HH[0], HH[1]], t0))
        self.stamp("row", A)
        WT = [self.AC.get(4, 4) for _ in range(14)]
        A.wait_tag("dma")
        if self.o["r1_out"] == "tr":
            own_rows()
        self.stamp("r1o", A)
        for m in range(14):
            for e2 in range(2):
                A(f"ds_read_b64_tr_b16 {WT[m][2 * e2:2 * e2 + 2]}, {vTr} offset:{(32 * m + 4 * e2) * 32}")
        self.stamp("r1t", A)
        sK, sT = self.sK, self.sT
        A(f"""
        s_and_b32 s16, {sK}, 0x7fff0000
        s_andn2_b32 s17, 0xffff0000, {sK}
        s_bitcmp1_b32 {sK}, 31
        s_cselect_b32 s16, s16, s17
        v_mov_b32 {t0}, s16
        v_mul_f32 {t0}, {LOG2E | 0x80000000}, {t0}
        v_exp_f32 {t0}, {t0}
        v_add_f32 {t0}, 1.0, {t0}
        v_rcp_f32 {t0}, {t0}
        """)
        self.rnd(A, vSig, t0)
        vS4u = get()
        A(f"""
        v_and_b32 {t0}, 1, {vI}
        v_xor_b32 {t0}, 1, {t0}
        v_lshlrev_b32 {t0}, 4, {t0}
        v_lshlrev_b32 {HH[0]}, {t0}, {HH[0]}
        v_lshlrev_b32 {HH[1]}, {t0}, {HH[1]}
        v_and_b32 {HH[0]}, 0xffff0000, {HH[0]}
        v_and_b32 {HH[1]}, 0xffff0000, {HH[1]}
        s_lshl_b32 s3, {sT}, 10
        s_lshl_b32 s16, {self.sBlk}, 5
        s_add_u32 s3, s3, s16
        v_lshl_add_u32 {vOut}, {vI}, 1, s3
        s_lshr_b32 s3, {sL}, 5
        s_lshl_b32 s3, s3, 13
        s_mul_i32 s16, {sW}, {56 * 16}
        s_add_u32 s3, s3, s16
        s_add_u32 s3, s3, {WS_S4}
        v_min_u32 {t0}, 13, {vI}
        v_lshl_add_u32 {t0}, {t0}, 2, {vG}
        v_lshl_add_u32 {vS4i}, {t0}, 4, s3
        v_add_u32 {vS4u}, 0x1000, {vS4i}
        s_lshl_b32 s3, {sW}, 2
        v_lshl_add_u32 {vRed}, {vI}, 4, s3
        v_mov_b32 {t2}, 0
        v_lshlrev_b32 {t1}, 4, {vI}
        """)
        if self.o["r1_out"] == "late":
            own_rows()
        A.wait(vm=0)
        self.stamp("r1a", A)
        GU, XS = Multi([get(4) for _ in range(2)]), get(4)

        def s4_loads(C):
            C(f"global_load_dwordx4 {GU[0:4]}, {vS4i}, s[30:31] sc1")
            C(f"global_load_dwordx4 {GU[4:8]}, {vS4u}, s[30:31] sc1")
        s4_loads(A)
        self.poll(A, "s4", s4_loads, self.poison_check([GU[k] for k in range(8)], t0))
        self.stamp("g1", A)
        for k in range(4):
            A(f"v_and_b32 {T[2 * k]}, 0xffff, {GU[k]}\nv_and_b32 {T[2 * k + 1]}, 0xffff0000, {GU[k]}")
        for k in range(8):
            A(f"v_dot2_f32_bf16 {T[k]}, {T[k]}, {GU[4 + k // 2]}, 0")
        for k in range(4):
            A(f"v_cvt_pk_bf16_f32 {XS[k]}, {T[2 * k]}, {T[2 * k + 1]}")
        DD = [D[4 * k:4 * k + 4] for k in range(8)]
        acc = [t2, get()]
        A(f"v_mov_b32 {acc[1]}, 0")
        for m in range(14 + 4):
            if m < 14:
                A(f"v_mfma_f32_16x16x32_bf16 {DD[m % 8]}, {XS}, {WT[m]}, 0")
            k = m - 4
            if k >= 0:
                a = acc[k % 2]
                A(f"v_add_f32_dpp {a}, {DD[k % 8][k % 4]}, {a} quad_perm:[0,1,2,3] row_mask:{1 << (k // 4)} bank_mask:0xf")
        A(f"v_add_f32 {t2}, {t2}, {acc[1]}")
        for sw in ("v_permlane16_swap_b32", "v_permlane32_swap_b32"):
            A(f"v_mov_b32 {t0}, {t2}\n{sw} {t2}, {t0}\nv_add_f32 {t2}, {t2}, {t0}")
        A(f"s_mov_b64 exec, 0xffff\nds_write_b32 {vRed}, {t2} offset:{L_RED}\ns_mov_b64 exec, -1")
        self.stamp("g2m", A)
        if self.o["r1_out"] == "end":
            own_rows()
        A.barrier()
        A(f"s_cmp_eq_u32 {sW}, 0\ns_cbranch_scc0 L_fin_r1")
        A(f"ds_read_b128 {T[0:4]}, {t1} offset:{L_RED}")
        A(f"v_pk_add_f32 {T[0:2]}, {T[0:2]}, {T[2:4]}\nv_add_f32 {t0}, {T[0]}, {T[1]}")
        self.rnd(A, t0, t0)
        A(f"v_mul_f32 {t0}, {t0}, {vSig}")
        self.rnd(A, t0, t0)
        A(f"v_add_f32 {t0}, {t0}, {HH[0]}")
        self.rnd(A, t0, t0)
        A(f"v_add_f32 {t0}, {t0}, {HH[1]}")
        self.rnd(A, t0, t0)
        A("s_mov_b64 exec, 0xffff")
        A(f"global_store_short_d16_hi {vOut}, {t0}, s[28:29] {self.o['fin_pol']}")
        self.stamp("g2", A)
        A(f"s_cmp_eq_u32 {self.sBlk}, 0\ns_cbranch_scc0 L_fin_r1")
        A("s_mov_b64 exec, 1")
        A(f"v_mov_b32 {t0}, {self.sE}\nv_mov_b32 {t2}, 0")
        A(f"global_store_dword {t2}, {t0}, s[30:31] offset:{WS_EPOCH} {self.o['fin_pol']}")
        self.finish(A, "r1")

    def build(self):
        A = self.A
        self.prologue()
        self.ksl = self.ksetup_lines()
        self.ksteps = self.kgen_steps()
        self.weave(self.o["wv"][0])
        for _ in range(self.o["kpre"]):
            next(self.ksteps)
        if self.o["poison_at"] == "kpre":
            self.poison2()
        self.ln1()
        self.kgen()
        self.sWb, self.sC, self.sK, self.sT = self.S.get(), self.S.get(2), self.S.get(), self.S.get()
        self.conv_all()
        self.phase_c()
        self.kin = self.V.get()
        A(f"s_cmp_eq_u32 {self.sRole}, 1\ns_cbranch_scc1 L_role1")
        B = A.fork()
        B.label("L_role1")
        A(f"s_cmp_eq_u32 {self.sRole}, 2\ns_cbranch_scc1 L_role2")
        C = A.fork()
        C.label("L_role2")
        vfree, afree = set(self.V.free), set(self.AC.free)
        self.tail0(A)
        self.V.free, self.AC.free = set(vfree), set(afree)
        self.tail1(B)
        self.V.free, self.AC.free = set(vfree), set(afree)
        self.tail2(C)
        B.lines += C.lines
        B.count += C.count
        body = A.text() + B.text() + "".join(c.text() for c in self.cold)
        nv = self.V.top + 1
        accum = (nv + 3) // 4 * 4
        total = max(accum + self.AC.top + 1, 264)
        head = open(f"cdna_kernels/{NAME}.s.ref").read().split("; Override launch geometry")[0]
        self.stats = dict(instr=A.count + B.count, nops=A.nops + B.nops, vgpr=nv, agpr=self.AC.top + 1, mfma=self.nmfma, bg_left=self.bg_left)
        tab = ""
        if self.o["band_tab"]:
            tab = f".p2align 7\n.type L_tab,@object\nL_tab:\n{band_table()}\n.size L_tab, 4096\n"
        return head + f"""; One persistent launch: 256 workgroups, one per CU, exchanging data through d_ws.
; @launch grid=(256,1,1) block=(256,1,1) lds={LDS_BYTES}
.amdgcn_target "amdgcn-amd-amdhsa--gfx950"
.text
.globl {NAME}_kernel
.p2align 8
.type {NAME}_kernel,@function
{NAME}_kernel:
{body}L_end:
    s_endpgm
L_code_end:
{tab}L_all_end:
.section .rodata,"a"
.p2align 6
.amdhsa_kernel {NAME}_kernel
  .amdhsa_next_free_vgpr {total}
  .amdhsa_next_free_sgpr 102
  .amdhsa_accum_offset {accum}
  .amdhsa_group_segment_fixed_size 0
  .amdhsa_kernarg_size 120
  .amdhsa_user_sgpr_count 2
  .amdhsa_user_sgpr_kernarg_segment_ptr 1
  .amdhsa_system_sgpr_workgroup_id_x 1
  .amdhsa_float_denorm_mode_32 3
.end_amdhsa_kernel
"""


def generate(path, **opt):
    g = Gen(**opt)
    text = g.build()
    open(path, "w").write(text)
    return g.stats


if __name__ == "__main__":
    out = sys.argv[1] if len(sys.argv) > 1 else f"cdna_kernels/{NAME}.s"
    opts = {}
    for a in sys.argv[2:]:
        k, v = a.split("=")
        opts[k] = {"True": True, "False": False}.get(v, int(v) if v.isdigit() else v)
    print(generate(out, **opts))
```

```python
import re
import sys
from asmdsl import Asm, Pool, R
import gen_v9 as base
from gen_v9 import *

L_G = L_KEY2 + 16
VMAX = 116
EXTRA = dict(hb1=40, prio=2, hst=False, s1_go="ack", m_wait=True)


class Gen(base.Gen):
    def __init__(self, **opt):
        o = dict(EXTRA)
        o.update(opt)
        if isinstance(o.get("h_dma"), str):
            a = [int(x) for x in o["h_dma"].split("_")]
            o["h_dma"] = ((a[0], a[1]), (a[2], a[3]))
        super().__init__(**o)
        self.V = Pool("v", 1, VMAX - 1)
        self.AC = Pool("a", 0, 255 - VMAX)
        self.is_h = False

    def stamp(self, name, A=None):
        if name == self.o["b8b"] and not self.is_h:
            (A or self.A)("s_barrier")
        if name == "r1o" and self.o["b9b"]:
            (A or self.A)("s_barrier")
        if self.is_h == bool(self.o["hst"]) or name == "start":
            super().stamp(name, A)

    def entry(self):
        A, V, S = self.A, self.V, self.S
        A("s_cmp_ge_u32 s2, 0x100\ns_cbranch_scc1 L_end")
        A("s_load_dwordx16 s[4:19], s[0:1], 0\ns_load_dwordx8 s[20:27], s[0:1], 64")
        A("s_load_dwordx2 s[28:29], s[0:1], 96\ns_load_dwordx2 s[30:31], s[0:1], 112")
        self.stamp("start")
        self.sL, self.sW, self.sTag, self.sE = S.get(), S.get(), S.get(), S.get()
        self.sOnes, self.sLo, self.sHi, self.sCh = S.get(), S.get(), S.get(), S.get()
        self.sB, self.sH, self.sa, self.sb = S.get(), S.get(), S.get(), S.get()
        sL, sW = self.sL, self.sW
        self.vL, self.vI, self.vG = V.get(), V.get(), V.get()
        self.vJunk = V.get(2)
        t0, t1, t2 = V.get(), V.get(), V.get()
        self.sPc = S.get(2)
        A(f"v_lshrrev_b32 {t0}, 6, v0\ns_lshr_b32 {sL}, s2, 3\ns_getpc_b64 {self.sPc}")
        A.label("L_pc")
        A(f"""
        v_lshl_add_u32 {t2}, {sL}, 3, {t0}
        v_and_b32 {t2}, 63, {t2}
        v_and_b32 {t1}, 3, v0
        v_lshl_add_u32 {t2}, {t2}, 2, {t1}
        v_lshlrev_b32 {t2}, 7, {t2}
        v_min_u32 {t2}, L_all_end-L_pc-4, {t2}
        global_load_dword {self.vJunk[0]}, {t2}, {self.sPc}
        v_readfirstlane_b32 {self.sb}, {t0}
        s_and_b32 s3, s2, 7
        s_lshl_b32 s3, s3, 5
        s_add_u32 {sL}, {sL}, s3
        v_and_b32 v0, 0xff, v0
        v_and_b32 {self.vL}, 63, v0
        s_and_b32 {sW}, {self.sb}, 3
        s_lshr_b32 {self.sB}, {sW}, 1
        s_and_b32 {self.sH}, {sW}, 1
        s_cmp_ge_u32 {self.sb}, 4
        s_cbranch_scc1 L_helper
        """)
        V.put(t0, t1, t2)

    def helper(self, A):
        self.A, self.is_h = A, True
        if self.o["hprio"]:
            A(f"s_setprio {self.o['hprio']}")
        V, S = self.V, self.S
        sL, sW, sB, sH, sb, vL, vI, vG = self.sL, self.sW, self.sB, self.sH, self.sb, self.vL, self.vI, self.vG
        t0, t1, t2, t3, vP = V.get(), V.get(), V.get(), V.get(), V.get()
        self.PAR, self.sDt = V.get(4), S.get()
        A(f"""
        s_lshr_b32 s3, {sL}, 6
        s_lshl_b32 {self.sCh}, s3, 7
        s_and_b32 s3, {sL}, 31
        s_lshl_b32 s3, s3, 2
        s_add_u32 {self.sCh}, {self.sCh}, s3
        s_bfe_u32 s3, {sL}, 0x10005
        s_add_u32 {self.sCh}, {self.sCh}, s3
        s_and_b32 s3, {sW}, 2
        s_add_u32 {self.sCh}, {self.sCh}, s3
        s_lshl_b32 s3, {self.sCh}, 8
        v_lshl_add_u32 {vP}, {vL}, 2, s3
        s_lshl_b32 s3, {self.sCh}, 1
        s_and_b32 s3, s3, -4
        """)
        for k in range(4):
            A(f"global_load_dword {self.PAR[k]}, {vP}, s[{6 + 2 * k}:{7 + 2 * k}]")
        self.vDt = V.get()
        A(f"v_mov_b32 {self.vDt}, s3\nglobal_load_dword {self.vDt}, {self.vDt}, s[14:15]")
        self.stamp("karg")
        A.raw(";@cut")
        Z = V.get(4)
        self.vShift, self.vShiftR = V.get(), V.get()
        A(f"v_and_b32 {vI}, 15, v0\nv_bfe_u32 {vG}, v0, 4, 2")
        for k in range(4):
            A(f"v_mov_b32 {Z[k]}, 0")
        A(f"""
        v_lshlrev_b32 {t2}, 4, v0
        v_lshlrev_b32 {t3}, 2, {vL}
        v_and_b32 {t1}, 127, v0
        s_mul_i32 s3, {sB}, {UCH}
        s_add_u32 {sb}, s3, {L_U}
        v_lshl_add_u32 {t0}, {t1}, 2, {sb}
        ds_write_b128 {t2}, {Z} offset:{L_P}
        ds_write_b128 {t2}, {Z} offset:{L_P + 4096}
        ds_write_b128 {t2}, {Z} offset:{L_P + 8192}
        ds_write_b128 {t2}, {Z} offset:{L_P + 12288}
        ds_write_b32 {t3}, {Z[0]} offset:{L_P + 16384}
        ds_write_b32 {t0}, {Z[0]}
        s_mul_i32 s3, {sB}, {2 * PHALF}
        v_lshl_add_u32 {self.vShiftR}, {t1}, 4, s3
        s_mul_i32 s3, {sB}, {KCH}
        v_lshl_add_u32 {self.vShift}, {t1}, 4, s3
        """)
        self.sStM = S.get()
        self.vR, self.vS0, self.vS1r = V.get(), V.get(), V.get()
        self.vK1, self.vK3, self.vKs = V.get(), V.get(), V.get()

        def pa(m):
            return ((m >> 2) & 1) * PPLANE + (m >> 3) * 16 + (m & 3) * 4
        A(f"""
        s_mul_i32 s3, {sB}, {STAGE_CH}
        s_lshl_b32 {sb}, {sH}, 8
        s_add_u32 s3, s3, {sb}
        s_add_u32 {self.sStM}, s3, {L_STAGE - 0x8000}
        s_add_u32 s3, s3, {L_STAGE}
        v_lshl_add_u32 {t2}, {vG}, 4, s3
        v_xor_b32 {t0}, 3, {vI}
        v_bfe_u32 {t1}, {t0}, 1, 1
        v_add_u32 {t1}, {t0}, {t1}
        v_lshrrev_b32 {t1}, 1, {t1}
        s_movk_i32 s3, {ROWB}
        v_mad_u32_u24 {self.vR}, {vI}, s3, {t2}
        v_mad_u32_u24 {self.vS0}, {t0}, s3, {t2}
        v_mad_u32_u24 {self.vS1r}, {t1}, s3, {t2}
        s_mul_i32 s3, {sW}, {PHALF}
        s_add_u32 s3, s3, {L_P}
        v_xor_b32 {t3}, 3, {vG}
        v_and_b32 {t0}, 1, {t3}
        v_mul_u32_u24 {t0}, {PPLANE}, {t0}
        v_lshrrev_b32 {t3}, 1, {t3}
        v_lshl_add_u32 {t3}, {t3}, 4, {t0}
        v_add_u32 {t3}, s3, {t3}
        v_lshlrev_b32 {t0}, 5, {vI}
        v_sub_u32 {t0}, {t3}, {t0}
        v_add_u32 {self.vK1}, {pa(528 - 256)}, {t0}
        v_lshrrev_b32 {t1}, 1, {vI}
        v_lshrrev_b32 {t2}, 2, {vI}
        v_add_u32 {t2}, 2, {t2}
        v_min_u32 {t1}, {t1}, {t2}
        v_add3_u32 {t1}, {t1}, {vI}, {FAR // 16 + 1}
        v_lshl_add_u32 {self.vK3}, {t1}, 5, {t3}
        v_cmp_gt_u32 vcc, 8, {vI}
        v_mov_b32 {t0}, {pa(28)}
        v_mov_b32 {t1}, {pa(NX + 24)}
        v_cndmask_b32 {t0}, {t0}, {t1}, vcc
        v_add_u32 {self.vKs}, s3, {t0}
        s_lshl_b32 s3, {sB}, 2
        v_mov_b32 {t2}, s3
        """)
        hp = self.o["poison_at"] in ("h", "h1")
        self.hw = self.o["h_warm"]
        if hp or self.hw:
            self.helper_prep(A, hp)
        self.stamp("consts")
        V.put(Z, vP, t0, t1, t3)
        self.ksl = [f"v_readfirstlane_b32 {self.sDt}, {self.vDt}"] + self.ksetup_lines()
        if self.o["b0"]:
            A.barrier()
            self.weave(self.o["hb1"])
        else:
            self.weave(self.o["hb1"])
            self.stamp("stat")
            A.barrier()
        self.stamp("b1")
        if self.o["poison_at"] == "h1":
            self.helper_mark(A)
        self.helper_hook("b1")
        if hp:
            A(f"s_load_dword {self.sE}, s[30:31], {WS_EPOCH}")
        self.weave(1000)
        A(f"ds_write_b32 {t2}, {self.vG16} offset:{L_G}")
        for _ in self.kgen_steps():
            pass
        self.stamp("kmf")
        self.helper_hook("b3")
        D, E = V.get(12), V.get(12)
        C = [V.get(4) for _ in range(4)]
        for k in range(3):
            off = L_P + (k & 1) * PPLANE + (k >> 1) * 16
            A(f"ds_read_b128 {D[4 * k:4 * k + 4]}, {self.vShiftR} offset:{off}")
            A(f"ds_read_b128 {E[4 * k:4 * k + 4]}, {self.vShiftR} offset:{off + PHALF}")
        for k in range(6):
            A(f"v_pk_add_f32 {D[2 * k:2 * k + 2]}, {D[2 * k:2 * k + 2]}, {E[2 * k:2 * k + 2]}")
        for c in range(4):
            for k in range(4):
                A(f"v_cvt_pk_f16_f32 {C[c][k]}, {D[c + 2 * k]}, {D[c + 2 * k + 1]}")
            if c % 2:
                for cc in (c - 1, c):
                    A(f"ds_write_b128 {self.vShift}, {C[cc]} offset:{L_K + cc * KCOPY}")
        self.stamp("shift")
        A.barrier()
        if self.o["hprio"]:
            A("s_setprio 0")
        self.helper_hook("b5")
        if self.o["poison_at"] == "h":
            self.helper_mark(A)
            self.helper_flag(A)
            A("s_barrier")
        if self.o["h_dma"]:
            self.helper_dma(A)
        if self.o["stamps"] and self.o["hst"]:
            self.stamp("end")
            A("s_waitcnt vmcnt(0) lgkmcnt(0)")
            self.dump_stamps(A)
        A("s_endpgm")
        self.is_h = False

    def helper_prep(self, A, hp):
        V, sL, sW, sb, vL = self.V, self.sL, self.sW, self.sb, self.vL
        self.vP2, self.M1, self.vFo = V.get(), V.get(4), V.get()
        self.vHr = self.vS1i = vL
        bg = self.background()
        V.put(self.vS2o, self.vS2o2, self.vS2i, self.vS2i2, self.vZr)
        if hp:
            A(f"""
            s_lshl_b32 {self.sa}, {sL}, 13
            s_lshl_b32 s3, {sW}, 11
            s_add_u32 s3, s3, {self.sa}
            s_add_u32 s3, s3, {WS_S2}
            v_lshl_add_u32 {self.vP2}, {vL}, 4, s3
            s_lshl_b32 s3, {sW}, 12
            s_lshl_b32 {sb}, {sL}, 4
            s_add_u32 s3, s3, {sb}
            s_add_u32 s3, s3, {WS_FLG}
            v_mov_b32 {self.vFo}, s3
            """)
            for k in range(4):
                A(f"v_mov_b32 {self.M1[k]}, -1")
            for ln in self.p3_lines[:-1]:
                A(ln)
        n = self.nwarm - (self.o["dma_at"] != "none")
        self.h_warm_line = bg[n:self.nwarm]
        if self.hw:
            for ln in bg[:n]:
                A(ln)

    def helper_mark(self, A):
        self.poison2()
        A("\n".join(self.p3_lines[-1]), tag="poison")

    def helper_flag(self, A):
        A(f"s_add_u32 {self.sE}, {self.sE}, 1\nv_mov_b32 {self.M1[0]}, {self.sE}")
        A.wait_tag("poison")
        A(f"s_mov_b64 exec, 1\nglobal_store_dword {self.vFo}, {self.M1[0]}, s[30:31] sc1\ns_mov_b64 exec, -1")

    def helper_hook(self, where):
        if self.o["poison_at"] == "h1" and where == self.o["flag_at"]:
            self.helper_flag(self.A)
        if where == self.hw:
            for ln in self.h_warm_line:
                self.A(ln)

    def helper_dma(self, A):
        S, sL, sb = self.S, self.sL, self.sb
        self.sBlk, self.sRole, self.sUp, self.sWb = S.get(), S.get(), S.get(), S.get()
        A(f"""
        s_lshr_b32 s3, {sL}, 5
        s_and_b32 {sb}, {sL}, 31
        s_cmp_ge_u32 {sb}, {self.o["r1_at"]}
        s_cbranch_scc1 L_h_role1
        s_cmp_ge_u32 {sb}, {14 if self.o["h_roles"] == "both" else 0}
        s_cbranch_scc1 L_h_done
        s_cmp_ge_u32 {sb}, 7
        s_cselect_b32 {self.sUp}, 1, 0
        s_cselect_b32 s6, 7, 0
        s_sub_u32 s6, {sb}, s6
        s_mul_i32 {self.sBlk}, s3, 7
        s_add_u32 {self.sBlk}, {self.sBlk}, s6
        """)
        for role in (0, 1):
            if role:
                A.label("L_h_role1")
                A(f"s_lshl_b32 s3, s3, 2\ns_sub_u32 s6, {sb}, {self.o['r1_at']}\ns_add_u32 {self.sBlk}, s3, s6")
            plan = self.dma_plan(A, role)
            self.V.put(self.vWa)
            if self.o["dma_at"] == "none":
                plan = []
            cuts = self.o["h_dma"][role]
            if self.o["h_conv"]:
                A("s_waitcnt vmcnt(0)")
                n = self.o["h_conv"] if role else len(plan)
                for a, b in plan[:n]:
                    A(a)
                    A(b)
                plan = plan[n:]
            nb = 4 if self.o["b8b"] else 3
            for k in range(nb):
                A("s_barrier")
                n = (cuts[k] if k < 2 else 0) if k < nb - 1 else len(plan)
                for a, b in plan[:n]:
                    A(a)
                    A(b)
                plan = plan[n:]
            if role == 1 and self.o["b9b"]:
                A("s_barrier")
            A("s_waitcnt vmcnt(0)")
            A.vm = []
            A("s_barrier")
            if role == 0:
                A("s_branch L_h_done")
        A.label("L_h_done")

    def dma_plan(self, A, role):
        plan = super().dma_plan(A, role)
        mine = self.o["h_dma"] and (role == 1 or self.o["h_roles"] == "both")
        return [] if mine and not self.is_h else plan

    def maybe_s1(self, where):
        if where == self.o["s1_go"]:
            self.A("s_barrier")
        self.helper_hook(where)

    def dump_stamps(self, A):
        if self.is_h == bool(self.o["hst"]):
            super().dump_stamps(A)

    def prologue_m(self):
        A, V, S = self.A, self.V, self.S
        sL, sW, sa, vL = self.sL, self.sW, self.sa, self.vL
        t1 = V.get()
        self.vTau, self.vHr, self.vRow = V.get(), V.get(), V.get()
        self.XB, self.XA = V.get(8), V.get(8)
        if self.o["prio"]:
            A(f"s_setprio {self.o['prio']}")
        A(f"""
        v_lshrrev_b32 {self.vTau}, 5, v0
        v_and_b32 {t1}, 31, v0
        v_lshlrev_b32 {t1}, 4, {t1}
        v_lshl_add_u32 {self.vHr}, {self.vTau}, 10, {t1}
        s_lshl_b32 {sa}, {sL}, 13
        v_add_u32 {self.vRow}, {sa}, {self.vHr}
        """)
        A(f"global_load_dwordx4 {self.XB[0:4]}, {self.vRow}, s[4:5]")
        A(f"global_load_dwordx4 {self.XB[4:8]}, {self.vRow}, s[4:5] offset:512")
        if self.o["b0"]:
            self.vE = V.get()
            A(f"v_mov_b32 {self.vE}, 0\nglobal_load_dword {self.vE}, {self.vE}, s[30:31] offset:{WS_EPOCH}")
        else:
            A(f"s_load_dword {self.sE}, s[30:31], {WS_EPOCH}")
        self.stamp("karg")
        A.raw(";@cut")
        self.vS1o, self.vP2, self.vMask, self.vHw2, self.M1 = V.get(), V.get(), V.get(), V.get(), V.get(4)
        A(f"""
        s_lshl_b32 s3, {sW}, 11
        s_add_u32 s3, s3, {sa}
        s_add_u32 s3, s3, {WS_S1}
        v_lshl_add_u32 {self.vS1o}, {vL}, 4, s3
        v_add_u32 {self.vP2}, {WS_S2 - WS_S1}, {self.vS1o}
        s_mov_b32 s3, {L_H}
        v_lshl_add_u32 {self.vHw2}, v0, 2, s3
        v_mov_b32 {self.vMask}, {0xFFFFFFFF ^ TAGMASK}
        s_mov_b32 {self.sOnes}, 0x3f803f80
        s_mov_b32 {self.sLo}, 0x3f80
        s_mov_b32 {self.sHi}, 0x3f800000
        v_and_b32 {self.vI}, 15, v0
        v_bfe_u32 {self.vG}, v0, 4, 2
        """)
        for k in range(4):
            A(f"v_mov_b32 {self.M1[k]}, -1")
        V.put(t1)
        self.conv_consts()
        if self.o["poison_at"] == "consts":
            self.poison2()
        if self.o["b0"]:
            t = V.get()
            A(f"v_lshlrev_b32 {t}, 2, {self.vTau}\nds_write_b32 {t}, {self.M1[0]} offset:{L_ST + 32}")
            A("s_waitcnt lgkmcnt(0)")
            A.lg, A.sm = [], []
            A("s_barrier")
            V.put(t)
        self.stamp("consts")
        self.ksl = []

    def conv_consts(self):
        A, V = self.A, self.V
        vI, vG, sB, sL, sb = self.vI, self.vG, self.sB, self.sL, self.sb
        t0, t1, t2, t3 = V.get(), V.get(), V.get(), V.get()
        self.BAND = {key: V.get(4) for key in BANDS}
        SEL = V.get(6)
        A(f"""
        v_lshlrev_b32 {t0}, 3, {vG}
        v_sub_u32 {t0}, {t0}, {vI}
        v_add_u32 {t0}, 20, {t0}
        v_mul_u32_u24 {t0}, 0x10001, {t0}
        v_mov_b32 {t3}, 0x70007
        s_mov_b32 {sb}, 0xc000c
        """)
        for k in range(6):
            c0, c1 = 32 - 2 * k, 31 - 2 * k
            A(f"""
            s_mov_b32 s3, {c0 | c1 << 16}
            v_pk_sub_i16 {t1}, {t0}, s3
            v_pk_sub_i16 {t2}, s3, {t0}
            v_pk_max_i16 {t1}, {t1}, {t2}
            v_pk_min_i16 {t1}, {t1}, {t3}
            v_lshl_or_b32 {SEL[k]}, {t1}, 8, {sb}
            """)
        for (delta, h), B in self.BAND.items():
            lut = sum(0x3C << (8 * i) for i in range(min(h + 1, 4)))
            A(f"s_mov_b32 s3, {lut}")
            for d in range(4):
                A(f"v_perm_b32 {B[d]}, {60 if h == 4 else 0}, s3, {SEL[d + (0 if delta == 12 else 2)]}")
        self.vUf, self.vZw, self.vUw, self.vN, self.vF = V.get(), V.get(), V.get(), V.get(), V.get()
        self.vS1i, self.vS1i2 = V.get(), V.get()
        A(f"""
        s_mul_i32 s3, {sB}, {UCH}
        s_add_u32 {sb}, s3, {L_U}
        v_lshl_add_u32 {t0}, {vI}, 5, {sb}
        v_lshl_add_u32 {self.vUf}, {vG}, 4, {t0}
        s_mul_i32 s3, {sB}, {KCH}
        v_sub_u32 {t0}, 15, {vI}
        v_and_b32 {t1}, 3, {t0}
        v_and_b32 {t0}, 12, {t0}
        v_mul_u32_u24 {t1}, {KCOPY}, {t1}
        v_lshl_add_u32 {t0}, {t0}, 1, {t1}
        v_add_u32 {t0}, s3, {t0}
        v_lshl_add_u32 {self.vN}, {vG}, 4, {t0}
        v_lshl_add_u32 {self.vF}, {vG}, 3, {t0}
        v_and_b32 {t0}, 2, {vG}
        v_lshl_add_u32 {t0}, {vI}, 2, {t0}
        v_add_u32 {t0}, {sB}, {t0}
        v_lshrrev_b32 {t1}, 1, {vI}
        v_xor_b32 {t0}, {t0}, {t1}
        v_and_b32 {t1}, 1, {vG}
        v_lshlrev_b32 {t1}, 3, {t1}
        v_lshl_add_u32 {self.vZw}, {t0}, 4, {t1}
        v_and_b32 {t0}, 1, v0
        v_lshrrev_b32 {t1}, 1, v0
        v_mul_u32_u24 {t2}, {UCH}, {t0}
        v_lshl_add_u32 {self.vUw}, {t1}, 4, {t2}
        v_lshlrev_b32 {t0}, 4, {t0}
        v_lshl_add_u32 {t2}, {t1}, 13, {t0}
        s_lshl_b32 s3, {sL}, 5
        s_add_u32 s3, s3, {WS_S1}
        v_add_u32 {self.vS1i}, s3, {t2}
        v_add_u32 {self.vS1i2}, 0x100000, {self.vS1i}
        """)
        V.put(t0, t1, t2, t3, SEL)

    def ln1(self):
        if not self.o["b0"]:
            return super().ln1()
        A, V = self.A, self.V
        s1, s2, nm, rs, ad = V.get(), V.get(), V.get(), V.get(), V.get()
        A(f"v_lshlrev_b32 {ad}, 2, {self.vTau}")
        for k in range(8):
            if k % 4 == 0:
                A(f"ds_write_b128 {self.vHr}, {self.XB[k:k + 4]} offset:{L_H + 128 * k}")
            A(f"v_dot2_f32_bf16 {s1}, {self.XB[k]}, {self.sOnes}, {s1 if k else 0}")
            A(f"v_dot2_f32_bf16 {s2}, {self.XB[k]}, {self.XB[k]}, {s2 if k else 0}")
            if k == 0:
                self.stamp("x")
                if self.o["poison_at"] == "x":
                    self.poison2()
        self.allreduce(A, "v_add_f32", [s1, s2], 32)
        self.ln_stats(A, s1, s2, nm, rs)
        if self.o["poison_at"] == "stat":
            self.poison2()
        self.stamp("stat")
        A("s_mov_b64 exec, 1\ns_bitset1_b64 exec, 32")
        A(f"v_mul_f32 {rs}, 0x3d800000, {rs}")
        A(f"ds_write_b32 {ad}, {nm} offset:{L_ST}\nds_write_b32 {ad}, {rs} offset:{L_ST + 32}")
        A("s_mov_b64 exec, -1")
        A(f"v_mov_b32 {ad}, 0\ns_mov_b32 s3, 0")
        V.put(self.XB)
        NM, RS, XA = V.get(8), V.get(8), self.XA
        A.flush()
        A.label("L_stat")
        for k in range(2):
            A(f"ds_read_b128 {RS[4 * k:4 * k + 4]}, {ad} offset:{L_ST + 32 + 16 * k}")
        for q in range(2):
            A(f"ds_read2st64_b32 {XA[2 * q:2 * q + 2]}, {self.vHw2} offset0:{8 * q} offset1:{8 * q + 4}")
        A(f"ds_read_b128 {NM[0:4]}, {ad} offset:{L_ST}")
        for q in range(2, 4):
            A(f"ds_read2st64_b32 {XA[2 * q:2 * q + 2]}, {self.vHw2} offset0:{8 * q} offset1:{8 * q + 4}")
        A(f"ds_read_b128 {NM[4:8]}, {ad} offset:{L_ST + 16}")
        A(f"s_add_u32 s3, s3, 1\ns_cmp_lt_u32 s3, {SPIN_MAX}\ns_cselect_b64 s[18:19], -1, 0")
        self.poison_check([RS[k] for k in range(8)], s1)(A)
        A("s_and_b64 vcc, vcc, s[18:19]")
        A("s_cbranch_vccnz L_stat")
        self.stamp("b1")
        A(f"v_readfirstlane_b32 {self.sE}, {self.vE}")
        V.put(self.vE)
        if self.o["poison_at"] == "b1":
            self.poison2()
        A(f"s_add_u32 {self.sE}, {self.sE}, 1\ns_and_b32 {self.sTag}, {self.sE}, {TAGMASK}")
        T = V.get(8)
        self.G = []
        for e in range(2):
            G = V.get(4)
            for j in range(8):
                A(f"v_dot2_f32_bf16 {T[j]}, {XA[j]}, {self.sHi if e else self.sLo}, {NM[j]}")
            for j in range(8):
                self.rnd(A, T[j], T[j])
            for q in range(4):
                A(f"v_pk_mul_f32 {T[2 * q:2 * q + 2]}, {T[2 * q:2 * q + 2]}, {RS[2 * q:2 * q + 2]}")
            for j in range(8):
                self.rnd(A, T[j], T[j])
            for q in range(4):
                A(f"v_cvt_pk_f16_f32 {G[q]}, {T[2 * q]}, {T[2 * q + 1]}")
            for q in range(4):
                A(f"v_and_or_b32 {G[q]}, {G[q]}, {self.vMask}, {self.sTag}")
            self.G.append(G)
            if e == 0:
                self.stamp("norm")
            if self.o["st_late"] and e == 0:
                continue
            A.wait_tag("poison")
            for ee in ((0, 1) if self.o["st_late"] else (e,)):
                A(f"global_store_dwordx4 {self.vS1o}, {self.G[ee]}, s[30:31] offset:{1024 * ee} sc1", tag="s1st")
        self.stamp("pub1")
        V.put(T, NM, RS, s1, s2, nm, rs, ad, self.vS1o)

    def after_publish(self):
        A, V = self.A, self.V
        if self.o["prio"]:
            A("s_setprio 0")
        V.put(self.XA)
        self.WR = V.get(8)
        bg = self.background()
        hmode = self.o["poison_at"] in ("h", "h1")
        for item in [] if hmode else self.p3_lines:
            A("\n".join(item) if isinstance(item, tuple) else item, tag="poison3" if isinstance(item, tuple) else None)
        self.row_params()
        n = self.nwarm - (self.o["dma_at"] != "none")
        mwarm = not self.o["h_warm"]
        self.warm_line = bg[n:self.nwarm] if mwarm else []
        keep = self.bgtmp[0]
        vW = V.get()
        if hmode:
            V.put(self.vP2)
            self.vFi = V.get()
            A(f"s_lshr_b32 s3, {self.sL}, 6\ns_lshl_b32 s3, s3, 12\ns_add_u32 s3, s3, {WS_FLG}\nv_lshl_add_u32 {self.vFi}, v0, 4, s3")
        if mwarm:
            for ln in bg[:n]:
                A(ln)
            A(f"v_mov_b32 {vW}, {keep}")
        self.warm_line = [ln.replace(f" {keep},", f" {vW},") for ln in self.warm_line]
        for ln in bg[self.nwarm:]:
            A(ln)
        V.put(*self.bgtmp)
        self.bg, self.bgtmp = [], [vW]
        self.UG = V.get(8)
        self.vG16 = V.get()
        A(f"s_lshl_b32 s3, {self.sB}, 2\nv_mov_b32 {self.vG16}, s3")
        if self.o["s1_go"] == "ack":
            A.wait_tag("s1st")
            self.s1_loads(A)
        elif self.o["s1_go"] != "b3":
            A("s_barrier")
            if self.o["s1_split"]:
                A(f"global_load_dwordx4 {self.UG[0:4]}, {self.vS1i}, s[30:31] sc1")
            else:
                self.s1_loads(A)
        self.stamp("rec")
        A.barrier()
        self.stamp("kmf")
        if self.o["mprio2"]:
            A(f"s_setprio {self.o['mprio2']}")
        if self.o["s1_go"] == "b3":
            self.s1_loads(A)
        elif self.o["s1_split"]:
            A(f"global_load_dwordx4 {self.UG[4:8]}, {self.vS1i2}, s[30:31] sc1")
        A(f"ds_read_b32 {self.vG16}, {self.vG16} offset:{L_G}")
        self.shift_regs = ()
        rd = {}
        for q in range(17):
            rd[f"@K{q}"] = [f"ds_read_b64 @K{q}.{2 * hf}, {self.vN} offset:{64 * (16 - q) + 8 * hf}" for hf in range(2)]
        rd["@KX"] = [f"ds_read_b64 @KX.{2 * hf}, {self.vN} offset:{2 * NX + 8 * hf}" for hf in range(2)]
        for k in range(2):
            for d in (2, 3, 4):
                rd[f"@B{k}{d}"] = [f"ds_read_b64 @B{k}{d}.{2 * hf}, {self.vF} offset:{2 * (V2[2 * k + hf] + 32 - 16 * (d - 2))}" for hf in range(2)]
        for d in (4, 5, 6, 7):
            rd[f"@C{d}"] = [f"ds_read_b64 @C{d}.{2 * hf}, {self.vF} offset:{2 * (V3[hf] + 48 - 16 * (d - 4))}" for hf in range(2)]
        self.frag_reads = rd

    def conv(self, A, tiles, dma):
        V, AC = self.V, self.AC
        PE, PD, NPRE, LAT = self.o["pe"], self.o["pd"], self.o["npre"], self.o["lat"]
        EY, EZ = V.get(4), V.get(2)
        qmax = {0: 7, 1: 15}
        b2 = sorted({j - d for j in tiles for d in (2, 3, 4) if j - d >= 0})
        b3 = sorted({j - d for j in tiles for d in (4, 5, 6, 7) if j - d >= 0})
        nlo = min(8 * j - qmax.get(j, 16) for j in tiles)
        nhi = 8 * max(tiles)
        near = []
        for fi, n in enumerate(range(nlo, nhi + 1)):
            for j in tiles:
                q = 8 * j - n
                if 0 <= q <= qmax.get(j, 16):
                    near.append((j, f"@K{q}", fi, q == 0))
        far, gfr, pcount = [], [], 0
        for b in sorted(set(b2) | set(b3)):
            ga, gb = len(gfr), len(gfr) + 1
            gfr += [256 * b - 16, 256 * b - 24]
            mains = []
            if b in b2:
                pa, pb = pcount, pcount + 1
                pcount += 2
                far += [("band", ga, (12, 1), pa, 0), ("band", ga, (8, 2), pa, 1), ("band", gb, (12, 1), pb, 0), ("band", gb, (8, 2), pb, 1)]
                mains += [("main", b + d, pa, f"@B0{d}") for d in (2, 3, 4) if b + d in tiles]
                mains += [("main", b + d, pb, f"@B1{d}") for d in (2, 3, 4) if b + d in tiles]
            if b in b3:
                pc = pcount
                pcount += 1
                far += [("band", ga, (8, 3), pc, 0), ("band", gb, (8, 4), pc, 1)]
                mains += [("main", b + d, pc, f"@C{d}") for d in (4, 5, 6, 7) if b + d in tiles]
            if b + 4 in tiles:
                far.append(("x", b + 4, ga))
            far += mains
        mf, fill = [], []
        started, done_at, first_use, pready = set(), {}, {}, {}
        wcount, ni, credit = 0, 0, 0.0
        farleft = list(far)
        span = self.o["far_span"][0 if 0 in tiles else 1]
        NP = self.o["np"]

        def acc_mf(j, a, b):
            mf.append(f"v_mfma_f32_16x16x32_f16 @acc{j}, {a}, {b}, {f'@acc{j}' if j in started else 0}")
            started.add(j)

        def far_ok(it):
            if it[0] == "main":
                return pready.get(it[2], 10 ** 6) <= len(mf)
            if it[0] == "band":
                return not any(o[0] == "main" and o[2] <= it[3] - NP for o in farleft)
            return True

        def blocked(k):
            return near[k][3] and any(o[0] in ("main", "x") and o[1] == near[k][0] for o in farleft)
        while ni < len(near) or farleft:
            t = len(mf)
            want_far = farleft and (credit >= 1.0 or ni >= len(near) or blocked(ni))
            pick = None
            if want_far:
                for it in farleft[:10]:
                    if far_ok(it) and not (it[0] == "band" and any(o[0] == "band" for o in farleft[:farleft.index(it)])):
                        pick = it
                        break
            if pick is None and ni < len(near) and not blocked(ni):
                j, a, fi, last = near[ni]
                ni += 1
                acc_mf(j, a, f"@F{fi}")
                if last:
                    done_at[j] = t
                credit += len(far) / span
                continue
            assert pick is not None, "conv schedule is stuck"
            farleft.remove(pick)
            credit -= 1.0
            if pick[0] == "band":
                _, g, key, p, hf = pick
                w = f"@W{wcount}"
                wcount += 1
                mf.append(f"v_mfma_f32_16x16x32_f16 {w}, @G{g}, {self.BAND[key]}, 0")
                for k in range(2):
                    fill.append([t + self.o["cvt0"], t + LAT - 1, f"v_cvt_pk_f16_f32 @P{p}:{2 * hf + k}, {w}:{2 * k}, {w}:{2 * k + 1}", None])
                if hf == 1:
                    pready[p] = t + LAT
            elif pick[0] == "x":
                acc_mf(pick[1], "@KX", f"@G{pick[2]}")
            else:
                acc_mf(pick[1], f"@P{pick[2]}", pick[3])
        nm = len(mf)
        tok = re.compile(r"@[A-Za-z]+\d*X?")
        for t, txt in enumerate(mf):
            for name in tok.findall(txt):
                first_use.setdefault(name, t)
        reads = []
        for name, t in first_use.items():
            if name[1] == "F":
                reads.append((t, f"ds_read_b128 {name}, {self.vUf} offset:{512 + 2 * (32 * (nlo + int(name[2:])) - 16)}"))
            elif name[1] == "G":
                reads.append((t, f"ds_read_b128 {name}, {self.vUf} offset:{512 + 2 * gfr[int(name[2:])]}"))
            elif name in self.frag_reads:
                reads += [(t, x) for x in self.frag_reads[name]]
        reads.sort(key=lambda r: r[0])
        pre = [txt for t, txt in reads if t <= NPRE]
        fill += [[max(t - PE, 0), max(t - PD, 0), txt, None] for t, txt in reads if t > NPRE]
        order_t = sorted(tiles, key=lambda j: done_at[j])
        for k, j in enumerate(order_t):
            t = done_at[j]
            nxt = done_at[order_t[k + 1]] if k + 1 < len(order_t) else nm + 100
            seq2 = [f"v_mul_f32 {EY[r]}, @acc{j}:{r}, {self.vG16}" for r in range(4)]
            seq2 += [f"v_cvt_pk_bf16_f32 {EZ[r]}, {EY[2 * r]}, {EY[2 * r + 1]}" for r in range(2)]
            seq2.append(f"ds_write_b64 {self.vZw}, {EZ} offset:{L_Z + 1024 * j}")
            for txt in seq2:
                fill.append([t + self.o["cvt0"], min(t + 12, nxt + 2), txt, f"e2_{j}"])
        for ln in self.late_warm:
            fill.append([self.o["warm_slot"], self.o["warm_slot"] + 2, ln, None])
        uses = {}
        for txt in mf + pre + [f[2] for f in fill]:
            for name in set(tok.findall(txt)):
                uses[name] = uses.get(name, 0) + 1
        vq, aq, held = [], [], []
        while True:
            try:
                vq.append(V.get(4))
            except RuntimeError:
                break
        while True:
            try:
                aq.append(AC.get(4, 4))
            except RuntimeError:
                break
        allv, alla = list(vq), list(aq)
        phys = {}
        low = [len(vq), len(aq)]

        def subst(txt, alloc):
            def rep(m):
                name, part = m.group(1), m.group(2) or ""
                if name not in phys:
                    if not alloc:
                        return "null"
                    vonly = name[1] in "WP" or name.startswith("@acc")
                    if not vonly and aq:
                        phys[name] = aq.pop(0)
                    else:
                        assert vq, f"out of registers at {name}"
                        phys[name] = vq.pop(0)
                    low[0], low[1] = min(low[0], len(vq)), min(low[1], len(aq))
                r = phys[name]
                if part.startswith("."):
                    return str(r[int(part[1:]):int(part[1:]) + 2])
                if part.startswith(":"):
                    return str(r[int(part[1:])])
                return str(r)
            return re.sub(r"(@[A-Za-z]+\d*X?)([.:]\d)?", rep, txt)

        def emit(txt):
            names = set(tok.findall(txt))
            A(subst(txt, True))
            for name in names:
                uses[name] -= 1
                if uses[name] == 0:
                    r = phys.pop(name)
                    (vq if r.kind == "v" else aq).append(r)
        for txt in pre:
            emit(txt)
        for i, f in enumerate(fill):
            f.append(i)
        left = list(fill)
        A.prewait([subst(mf[0], False)])
        for t in range(nm):
            emit(mf[t])
            chosen = []
            for f in sorted([f for f in left if f[0] <= t], key=lambda f: (f[1], f[4])):
                if len(chosen) >= 2 and f[1] > t:
                    break
                if f[3] and any(g[3] == f[3] and g[4] < f[4] and g not in chosen for g in left):
                    continue
                mem = f[2].startswith(("ds_", "global_"))
                if mem and f[1] > t and any(g[3] == f[3] and f[3] for g in chosen):
                    continue
                if f[2].startswith("ds_read") and f[1] > t and len(aq) + len(vq) < 4 and tok.findall(f[2])[0] not in phys:
                    continue
                chosen.append(f)
            memf = [f for f in chosen if f[2].startswith(("ds_", "global_")) and not any(g[3] == f[3] and f[3] and g[4] < f[4] for g in chosen)]
            rest = [f for f in chosen if f not in memf]
            A.prewait([subst(f[2], False) for f in chosen] + ([subst(mf[t + 1], False)] if t + 1 < nm else []))
            for f in memf + rest:
                emit(f[2])
                left.remove(f)
        for f in sorted(left, key=lambda f: (f[1], f[4])):
            emit(f[2])
        assert not phys
        self.nmfma = getattr(self, "nmfma", []) + [nm]
        self.bg_left = getattr(self, "bg_left", []) + [tuple(low)]
        V.put(EY, EZ, *allv)
        AC.put(*alla)

    def conv_all(self):
        A = self.A
        self.late_warm = []
        if self.o["warm_in"]:
            self.late_warm, self.warm_line = self.warm_line, []
        self.s1_consume(A, "")
        self.V.put(self.UG, self.vUw, self.vS1i, self.vS1i2)
        A(f"s_cmp_eq_u32 {self.sH}, 0\ns_cbranch_scc0 L_conv_b")
        B = A.fork()
        A.barrier()
        self.stamp("b5", A)
        self.conv(A, [0, 1, 2, 3, 4], [])
        A.wait(lg=0)
        A.flush()
        A("s_branch L_conv_done")
        B.label("L_conv_b")
        B.barrier()
        self.stamp("b5", B)
        self.conv(B, [5, 6, 7], [])
        B.wait(lg=0)
        B.flush()
        A.lines += B.lines
        A.count += B.count
        A.nops += B.nops
        A.label("L_conv_done")
        self.V.put(*self.BAND.values(), self.vUf, self.vZw, self.vG16, self.vN, self.vF, *self.bgtmp)
        self.stamp("conv", A)
        A("s_barrier")
        self.stamp("b6", A)
        self.ZT = ZT = self.V.get(8)
        A(f"ds_read_b128 {ZT[0:4]}, {self.vZr} offset:{L_Z}\nds_read_b128 {ZT[4:8]}, {self.vZr} offset:{L_Z + 4096}")
        A(f"global_store_dwordx4 {self.vS2o}, {ZT[0:4]}, s[30:31] sc1", tag="s2st")
        A(f"global_store_dwordx4 {self.vS2o2}, {ZT[4:8]}, s[30:31] sc1", tag="s2st")
        if self.o["poison_at"] in ("h", "h1"):
            self.vFl = self.V.get()
            A(f"global_load_dword {self.vFl}, {self.vFi}, s[30:31] sc1")
            self.o["poison_at"] = "pub"
        self.stamp("st2", A)
        self.V.put(self.vZr, self.vS2o, self.vS2o2)
        self.XA = XA = self.V.get(8)
        for q in range(4):
            A(f"ds_read2st64_b32 {XA[2 * q:2 * q + 2]}, {self.vHw2} offset0:{8 * q} offset1:{8 * q + 4}")

    def build(self):
        A = self.A
        self.entry()
        H = A.fork()
        H.label("L_helper")
        vfree, afree, sfree = set(self.V.free), set(self.AC.free), set(self.S.free)
        self.helper(H)
        self.A = A
        self.V.free, self.AC.free, self.S.free = set(vfree), set(afree), set(sfree)
        self.prologue_m()
        self.ln1()
        self.after_publish()
        self.sWb, self.sC, self.sK, self.sT = self.S.get(), self.S.get(2), self.S.get(), self.S.get()
        self.conv_all()
        self.phase_c()
        self.kin = self.V.get()
        A(f"s_cmp_eq_u32 {self.sRole}, 1\ns_cbranch_scc1 L_role1")
        B = A.fork()
        B.label("L_role1")
        A(f"s_cmp_eq_u32 {self.sRole}, 2\ns_cbranch_scc1 L_role2")
        C = A.fork()
        C.label("L_role2")
        vfree, afree = set(self.V.free), set(self.AC.free)
        self.tail0(A)
        self.V.free, self.AC.free = set(vfree), set(afree)
        self.tail1(B)
        self.V.free, self.AC.free = set(vfree), set(afree)
        self.tail2(C)
        cut = A.lines.index(";@cut")
        if self.o["h_first"]:
            body = "\n".join(A.lines[:cut]) + "\n    s_branch L_main\n" + H.text() + "L_main:\n" + "\n".join(A.lines[cut + 1:]) + "\n"
        else:
            hcut = H.lines.index(";@cut")
            body = "\n".join(A.lines[:cut]) + "\n    s_branch L_main\n" + "\n".join(H.lines[:hcut]) + "\n    s_branch L_helper2\nL_main:\n"
            body += "\n".join(A.lines[cut + 1:]) + "\n"
            H.lines = ["L_helper2:"] + H.lines[hcut + 1:]
        body += B.text() + C.text() + ("" if self.o["h_first"] else H.text()) + "".join(c.text() for c in self.cold)
        body = body.replace(";@cut\n", "")
        astat = None
        if self.o["align"]:
            import align
            body, astat = align.align(body, self.o["align"])
        head = open(f"cdna_kernels/{NAME}.s.ref").read().split("; Override launch geometry")[0]
        self.stats = dict(instr=A.count + B.count + C.count + H.count, nops=A.nops + B.nops + H.nops, vgpr=self.V.top + 1,
                          agpr=self.AC.top + 1, mfma=self.nmfma, spare=self.bg_left, align=astat)
        return head + f"""; One persistent launch: 256 workgroups, one per CU, exchanging data through d_ws.
; @launch grid=(256,1,1) block=(512,1,1) lds={LDS_BYTES}
.amdgcn_target "amdgcn-amd-amdhsa--gfx950"
.text
.globl {NAME}_kernel
.p2align 8
.type {NAME}_kernel,@function
{NAME}_kernel:
{body}L_end:
    s_endpgm
L_all_end:
.section .rodata,"a"
.p2align 6
.amdhsa_kernel {NAME}_kernel
  .amdhsa_next_free_vgpr 256
  .amdhsa_next_free_sgpr 102
  .amdhsa_accum_offset {VMAX}
  .amdhsa_group_segment_fixed_size 0
  .amdhsa_kernarg_size 120
  .amdhsa_user_sgpr_count 2
  .amdhsa_user_sgpr_kernarg_segment_ptr 1
  .amdhsa_system_sgpr_workgroup_id_x 1
  .amdhsa_float_denorm_mode_32 3
.end_amdhsa_kernel
"""


EXTRA.update(np=4, h_first=False, align=0, mprio2=0, h_order="pw", s1_split=False, warm_in=True, warm_slot=20, h_dma="0_0_0_0", b8b="hn", b9b=True, h_roles="both", b0=False, h_warm=None, h_conv=0, flag_at="far", hprio=0, hb1=0, s1_go="rec2", poison_at="b1", st_late=True)


def generate(path, **opt):
    g = Gen(**opt)
    text = g.build()
    open(path, "w").write(text)
    return g.stats


if __name__ == "__main__":
    out = sys.argv[1] if len(sys.argv) > 1 else f"cdna_kernels/{NAME}.s"
    opts = {}
    for a in sys.argv[2:]:
        k, v = a.split("=")
        opts[k] = {"True": True, "False": False}.get(v, int(v) if v.isdigit() else v)
    print(generate(out, **opts))
```

```python
import sys
from asmdsl import Asm, Pool, R, Multi

NAME = "sequential_preLN__ssm_conv_s4d__moe_arch_mod__prompt"

WS_EPOCH = 0
WS_FLG = 0x4000
WS_S3 = 0x8000
WS_S4 = 0x10000
WS_ROWS = 0x20000
WS_S1 = 0x100000
WS_S2 = 0x300000
WS_STAMP = 0x600000

ROWB = 544
STAGE_CH = 57 * ROWB
L_K = 0
KCOPY = 2112
KCH = 4 * KCOPY
L_U = L_K + 2 * KCH
UCH = 4672
L_Z = 26368
L_H = L_Z + 8192
L_ST = L_H + 8192
L_KEY = L_ST + 64
L_KEY2 = L_KEY + 32
L_RED = L_KEY2 + 32
L_P = 43520
PPLANE = 2048 + 32
PHALF = 2 * PPLANE
L_STAGE = 60416
LDS_BYTES = L_STAGE + 2 * STAGE_CH
assert L_U + UCH + 4608 <= L_Z and L_RED + 512 <= L_P and L_P + 4 * PHALF <= L_STAGE and L_STAGE % 256 == 0

NX = 560
FAR = 608
V2 = [FAR + 48 * s for s in range(4)]
V3 = [FAR + 16 * 13 + 80 * s for s in range(2)]
TAGMASK = 0x40074007
LOG2E = 0x3FB8AA3B
INV2PI = 0x3E22F983
SPIN_MAX = 1 << 14

BANDS = ((12, 1), (8, 2), (8, 3), (8, 4))


def band_table():
    out = []
    for delta, h in BANDS:
        for lane in range(64):
            phi, g = lane & 15, lane >> 4
            bits = [0x3C00 if abs(8 * g + e - phi - delta) <= h else 0 for e in range(8)]
            out.append(".long " + ", ".join(hex(bits[2 * d] | bits[2 * d + 1] << 16) for d in range(4)))
    return "\n".join(out)


STAMP_SETS = {
    True: ["start", "karg", "x", "pub1", "rec", "kmf", "frag", "s1", "conv", "ack2", "s2", "pub3", "ack3", "s3", "row", "g1", "g2", "end"],
    "z": ["start"] + [f"unused{i}" for i in range(16)] + ["end"],
    "a": ["start", "karg", "issued", "consts", "x", "stat", "b1", "norm", "pub1", "warm", "par", "ws", "recR", "rec", "b2", "kmf0", "kmf", "end"],
    "b": ["start", "kmf", "shift", "frag", "s1w", "s1", "b5", "conv", "b6", "st2", "dma", "ack2", "s2", "hw", "b7", "key", "pub3", "end"],
    "c": ["start", "pub3", "hn", "outc", "ack3", "s3p", "s3w", "s3", "row", "g1m", "g1b", "g1", "r1o", "r1t", "r1a", "g2m", "g2", "end"],
}
DEFAULTS = dict(stamps=False, s1_at="mfma", warm=True, out_pol="sc1", pf_code=True, pf_lines=8, dbg=False, poison_at="x", recb=4, lat=8, cvt0=4, nw=8, wv=(0, 0, 0, 0), r1_out="row", dma_s2=0, st_late=False, early_br=True, addtid=True, r1_at=28, b_first=False, dma0_ack2=False, p3_at="consts", cpre=0, bg_from=0, fin_pol="", r0_late=2, r2_late=True, dma_ack2=0, xmap=True, x_pol="", w_pol="", p_pol="sc1", mask_poll=True, warm_slot=30, kpre=1, par_first=True, band_tab=False, frag_in=True, dma_pre=0, r1_split=2, xa_glob=False, warm_at="s1w", xa_at="start", nf=7, ng=4, pe=16, pd=5, npre=3, clk=False, dma_at="conv", warm_mode="sect", far_span=(60, 48))


class Gen:
    def __init__(self, **opt):
        self.o = dict(DEFAULTS)
        self.o.update(opt)
        if isinstance(self.o["far_span"], str):
            self.o["far_span"] = tuple(int(x) for x in self.o["far_span"].split("_"))
        if isinstance(self.o["wv"], str):
            self.o["wv"] = tuple(int(x) for x in self.o["wv"].split("_"))
        self.A = Asm()
        self.V = Pool("v", 1, 255)
        self.AC = Pool("a", 0, 255)
        self.S = Pool("s", 32, 63)
        self.cold = []
        self.nstamp = 0

    def stamp(self, name, A=None):
        sel = STAMP_SETS.get(self.o["stamps"])
        if sel and name in sel:
            i = sel.index(name)
            (A or self.A)(f"{'s_memtime' if self.o.get('cyc') else 's_memrealtime'} s[{64 + 2 * i}:{65 + 2 * i}]")

    def dump_stamps(self, A):
        if not self.o["stamps"]:
            return
        if self.o["dbg"]:
            self.dump_debug(A)
            return
        a, d = self.V.get(), self.V.get(2)
        A("s_mov_b64 exec, 1")
        A.wait(lg=0)
        A(f"s_lshl_b32 s3, {self.sL}, 2\ns_add_u32 s3, s3, {self.sW}\ns_lshl_b32 s3, s3, 8\ns_add_u32 s3, s3, {WS_STAMP}")
        A(f"v_mov_b32 {a}, s3")
        for i in range(19):
            A(f"v_mov_b32 {d[0]}, s{64 + 2 * i}\nv_mov_b32 {d[1]}, s{65 + 2 * i}")
            A(f"global_store_dwordx2 {a}, {d}, s[30:31] offset:{8 * i}")
            A.wait(vm=0)
        self.V.put(a, d)

    def dump_debug(self, A):
        a, d = self.V.get(), self.V.get()
        n = getattr(self, "ndbg", 0)
        self.ndbg = n + 1
        A("s_mov_b64 exec, 1")
        A(f"s_cmp_eq_u32 {self.sL}, 255\ns_cbranch_scc0 L_dbg{n}\ns_cmp_eq_u32 {self.sW}, 0\ns_cbranch_scc0 L_dbg{n}")
        A("s_load_dwordx2 s[4:5], s[0:1], 104")
        A.wait(lg=0)
        A(f"v_mov_b32 {a}, 0")
        for i in range(1, 17):
            A(f"s_sub_u32 s3, s{64 + 2 * (i + 1)}, s64\nv_mov_b32 {d}, s3")
            A(f"global_store_dword {a}, {d}, s[4:5] offset:{4 * (i - 1)}")
        A.label(f"L_dbg{n}")
        self.V.put(a, d)

    def rnd(self, A, dst, src, neg=False):
        A(f"v_cvt_pk_bf16_f32 {dst}, 0, {'-' if neg else ''}{src}")

    def allreduce(self, A, op, regs, width, fill=()):
        fill = list(fill)

        def pad():
            for _ in range(max(0, 3 - len(regs))):
                if fill:
                    A(fill.pop(0))
        steps = ["quad_perm:[1,0,3,2]", "quad_perm:[2,3,0,1]", "row_half_mirror", "row_mirror"]
        for st in steps:
            pad()
            for r in regs:
                A(f"{op}_dpp {r}, {r}, {r} {st} row_mask:0xf bank_mask:0xf")
        tmp = [self.V.get() for _ in regs]
        for w, sw in ((32, "v_permlane16_swap_b32"), (64, "v_permlane32_swap_b32")):
            if width >= w:
                for r, t in zip(regs, tmp):
                    A(f"v_mov_b32 {t}, {r}")
                pad()
                for r, t in zip(regs, tmp):
                    A(f"{sw} {r}, {t}")
                for r, t in zip(regs, tmp):
                    A(f"{op} {r}, {r}, {t}")
        for f in fill:
            A(f)
        self.V.put(*tmp)

    def ln_stats(self, A, s1, s2, nm, rs):
        t = self.V.get()
        A(f"v_mul_f32 {s1}, 0x3b000000, {s1}")
        A(f"v_mul_f32 {s2}, 0x3b000000, {s2}")
        A(f"v_fma_f32 {t}, -{s1}, {s1}, {s2}")
        A(f"v_max_f32 {t}, 0, {t}")
        self.rnd(A, t, t)
        self.rnd(A, nm, s1, neg=True)
        A(f"v_add_f32 {t}, 0x3727c5ac, {t}")
        self.rnd(A, t, t)
        A(f"v_sqrt_f32 {t}, {t}")
        self.rnd(A, t, t)
        A(f"v_rcp_f32 {rs}, {t}")
        self.V.put(t)

    def poll(self, A, name, loads, check):
        check(A)
        A(f"s_cbranch_vccnz L_{name}_slow")
        A.label(f"L_{name}_ok")
        C = Asm()
        C.label(f"L_{name}_slow")
        C("s_mov_b32 s3, 0")
        C.label(f"L_{name}_loop")
        if self.o["mask_poll"]:
            C("s_mov_b64 exec, vcc")
        C("s_nop 1")
        loads(C)
        C(f"s_add_u32 s3, s3, 1\ns_cmp_ge_u32 s3, {SPIN_MAX}")
        C("s_cselect_b32 s18, 0, -1\ns_mov_b32 s19, s18")
        check(C)
        C.wait(vm=0)
        C("s_nop 1")
        C("s_and_b64 vcc, vcc, s[18:19]")
        C(f"s_cbranch_vccnz L_{name}_loop")
        C("s_mov_b64 exec, -1")
        C("s_nop 2")
        C(f"s_branch L_{name}_ok")
        self.cold.append(C)

    def prologue(self):
        A, V, S = self.A, self.V, self.S
        A("s_cmp_ge_u32 s2, 0x100\ns_cbranch_scc1 L_end")
        A("s_load_dwordx16 s[4:19], s[0:1], 0\ns_load_dwordx8 s[20:27], s[0:1], 64")
        A("s_load_dwordx2 s[28:29], s[0:1], 96\ns_load_dwordx2 s[30:31], s[0:1], 112")
        self.stamp("start")
        if self.o["clk"]:
            A("s_memtime s[100:101]")
        self.sL, self.sW, self.sTag, self.sE = S.get(), S.get(), S.get(), S.get()
        self.sOnes, self.sLo, self.sHi, self.sCh = S.get(), S.get(), S.get(), S.get()
        self.sB, self.sH, self.sa, self.sb = S.get(), S.get(), S.get(), S.get()
        sL, sW, sa, sb = self.sL, self.sW, self.sa, self.sb
        self.vL = V.get()
        self.vI = V.get()
        self.vG = V.get()
        t0, t1, t2, t3 = V.get(), V.get(), V.get(), V.get()
        self.vJunk = V.get(2)
        A(f"v_lshrrev_b32 {t0}, 6, v0\ns_lshr_b32 {sL}, s2, 3")
        if self.o["pf_code"]:
            nl = self.o["pf_lines"]
            self.sPc = S.get(2)
            A(f"s_getpc_b64 {self.sPc}")
            A.label("L_pc")
            A(f"""
            v_lshl_add_u32 {t2}, {sL}, 2, {t0}
            v_and_b32 {t2}, {256 // nl - 1}, {t2}
            v_and_b32 {t1}, {nl - 1}, v0
            v_lshl_add_u32 {t2}, {t2}, {nl.bit_length() - 1}, {t1}
            v_lshlrev_b32 {t2}, 7, {t2}
            v_min_u32 {t2}, L_all_end-L_pc-4, {t2}
            global_load_dword {self.vJunk[0]}, {t2}, {self.sPc}
            """)
        self.vTau, self.vHr, self.vRow, vP = V.get(), V.get(), V.get(), V.get()
        A(f"""
        v_readfirstlane_b32 {sW}, {t0}
        s_and_b32 s3, s2, 7
        s_lshl_b32 s3, s3, 5
        s_add_u32 {sL}, {sL}, s3
        {"" if self.o["xmap"] else f"s_mov_b32 {sL}, s2"}
        v_and_b32 {self.vL}, 63, v0
        v_lshrrev_b32 {self.vTau}, 5, v0
        v_and_b32 {t1}, 31, v0
        v_lshlrev_b32 {t1}, 4, {t1}
        v_lshl_add_u32 {self.vHr}, {self.vTau}, 10, {t1}
        s_lshl_b32 {sa}, {sL}, 13
        v_add_u32 {self.vRow}, {sa}, {self.vHr}
        s_lshr_b32 s3, {sL}, 6
        s_lshl_b32 {self.sCh}, s3, 7
        s_and_b32 s3, {sL}, 31
        s_lshl_b32 s3, s3, 2
        s_add_u32 {self.sCh}, {self.sCh}, s3
        s_bfe_u32 s3, {sL}, 0x10005
        s_add_u32 {self.sCh}, {self.sCh}, s3
        s_and_b32 s3, {sW}, 2
        s_add_u32 {self.sCh}, {self.sCh}, s3
        s_lshl_b32 s3, {self.sCh}, 8
        v_lshl_add_u32 {vP}, {self.vL}, 2, s3
        s_lshl_b32 {self.sE}, {self.sCh}, 1
        s_and_b32 {self.sE}, {self.sE}, -4
        v_and_b32 {self.vI}, 15, v0
        v_bfe_u32 {self.vG}, v0, 4, 2
        s_lshr_b32 {self.sB}, {sW}, 1
        s_and_b32 {self.sH}, {sW}, 1
        """)
        self.XB, self.XA, self.PAR, self.WR = V.get(8), V.get(8), V.get(4), V.get(8)
        self.sDt = S.get()
        lines = self.const_lines(t0, t1, t2, t3)
        npre = self.o["cpre"]
        for ln in lines[:npre]:
            A(ln)
        for k in range(4):
            A(f"global_load_dword {self.PAR[k]}, {vP}, s[{6 + 2 * k}:{7 + 2 * k}] {self.o['x_pol']}")
        A(f"global_load_dwordx4 {self.XB[0:4]}, {self.vRow}, s[4:5] {self.o['x_pol']}")
        A(f"global_load_dwordx4 {self.XB[4:8]}, {self.vRow}, s[4:5] offset:512 {self.o['x_pol']}")
        A(f"s_load_dword {self.sDt}, s[14:15], {self.sE}")
        A(f"s_load_dword {self.sE}, s[30:31], {WS_EPOCH}")
        self.stamp("karg")
        V.put(vP)
        for ln in lines[npre:]:
            A(ln)
        self.bg = self.background()
        if self.o["p3_at"] == "consts":
            for ln in self.p3_lines[:-1]:
                A(ln)
            self.p3_lines = self.p3_lines[-1:]
        if self.o["warm_at"] == "s1w":
            n = self.nwarm - (self.o["dma_at"] != "none")
            for ln in self.bg[:n]:
                A(ln)
            self.warm_line = self.bg[n:self.nwarm]
            self.bg = self.bg[self.nwarm:]
        if self.o["poison_at"] == "pub":
            self.vFo, self.vFi = V.get(), V.get()
            A(f"""
            s_lshl_b32 s3, {sW}, 12
            s_lshl_b32 {sb}, {sL}, 4
            s_add_u32 s3, s3, {sb}
            s_add_u32 s3, s3, {WS_FLG}
            v_mov_b32 {self.vFo}, s3
            s_lshr_b32 s3, {sL}, 6
            s_lshl_b32 s3, s3, 12
            s_add_u32 s3, s3, {WS_FLG}
            v_lshl_add_u32 {self.vFi}, v0, 4, s3
            """)
        if self.o["poison_at"] == "consts":
            self.poison2()
        self.stamp("consts")
        V.put(t0, t1, t2, t3, *self.ctmp)

    def poison2(self):
        A = self.A
        A(f"global_store_dwordx4 {self.vP2}, {self.M1}, s[30:31] sc1", tag="poison")
        A(f"global_store_dwordx4 {self.vP2}, {self.M1}, s[30:31] offset:1024 sc1", tag="poison")
        self.V.put(self.vP2)

    def const_lines(self, t0, t1, t2, t3):
        V, S = self.V, self.S
        vI, vG, vL, sW, sL, sB, sH, sa, sb = self.vI, self.vG, self.vL, self.sW, self.sL, self.sB, self.sH, self.sa, self.sb
        out = []

        def A(text):
            out.extend(x.strip() for x in text.strip().split("\n") if x.strip())
        self.BAND = {key: V.get(4) for key in BANDS}
        SEL = V.get(6)
        A(f"""
        v_lshlrev_b32 {t0}, 3, {vG}
        v_sub_u32 {t0}, {t0}, {vI}
        v_add_u32 {t0}, 20, {t0}
        v_mul_u32_u24 {t0}, 0x10001, {t0}
        v_mov_b32 {t3}, 0x70007
        s_mov_b32 {sb}, 0xc000c
        """)
        for k in range(6):
            c0, c1 = 32 - 2 * k, 31 - 2 * k
            A(f"""
            s_mov_b32 s3, {c0 | c1 << 16}
            v_pk_sub_i16 {t1}, {t0}, s3
            v_pk_sub_i16 {t2}, s3, {t0}
            v_pk_max_i16 {t1}, {t1}, {t2}
            v_pk_min_i16 {t1}, {t1}, {t3}
            v_lshl_or_b32 {SEL[k]}, {t1}, 8, {sb}
            """)
        for (delta, h), B in self.BAND.items():
            lut = sum(0x3C << (8 * i) for i in range(min(h + 1, 4)))
            A(f"s_mov_b32 s3, {lut}")
            for d in range(4):
                A(f"v_perm_b32 {B[d]}, {60 if h == 4 else 0}, s3, {SEL[d + (0 if delta == 12 else 2)]}")
        Z = SEL[0:4]
        for k in range(4):
            A(f"v_mov_b32 {Z[k]}, 0")
        self.vShift, self.vShiftR = V.get(), V.get()
        A(f"""
        v_lshlrev_b32 {t2}, 4, v0
        v_lshlrev_b32 {t3}, 2, {vL}
        v_and_b32 {t1}, 127, v0
        s_mul_i32 s3, {sB}, {UCH}
        s_add_u32 {sb}, s3, {L_U}
        v_lshl_add_u32 {t0}, {t1}, 2, {sb}
        ds_write_b128 {t2}, {Z} offset:{L_P}
        ds_write_b128 {t2}, {Z} offset:{L_P + 4096}
        ds_write_b128 {t2}, {Z} offset:{L_P + 8192}
        ds_write_b128 {t2}, {Z} offset:{L_P + 12288}
        ds_write_b32 {t3}, {Z[0]} offset:{L_P + 16384}
        ds_write_b32 {t0}, {Z[0]}
        s_mul_i32 s3, {sB}, {2 * PHALF}
        v_lshl_add_u32 {self.vShiftR}, {t1}, 4, s3
        """)
        self.vUf, self.vZw, self.vUw = V.get(), V.get(), V.get()
        self.vN, self.vF = V.get(), V.get()
        A(f"""
        v_lshl_add_u32 {t0}, {vI}, 5, {sb}
        v_lshl_add_u32 {self.vUf}, {vG}, 4, {t0}
        s_mul_i32 s3, {sB}, {KCH}
        v_lshl_add_u32 {self.vShift}, {t1}, 4, s3
        v_sub_u32 {t0}, 15, {vI}
        v_and_b32 {t1}, 3, {t0}
        v_and_b32 {t0}, 12, {t0}
        v_mul_u32_u24 {t1}, {KCOPY}, {t1}
        v_lshl_add_u32 {t0}, {t0}, 1, {t1}
        v_add_u32 {t0}, s3, {t0}
        v_lshl_add_u32 {self.vN}, {vG}, 4, {t0}
        v_lshl_add_u32 {self.vF}, {vG}, 3, {t0}
        v_and_b32 {t0}, 2, {vG}
        v_lshl_add_u32 {t0}, {vI}, 2, {t0}
        v_add_u32 {t0}, {sB}, {t0}
        v_lshrrev_b32 {t1}, 1, {vI}
        v_xor_b32 {t0}, {t0}, {t1}
        v_and_b32 {t1}, 1, {vG}
        v_lshlrev_b32 {t1}, 3, {t1}
        v_lshl_add_u32 {self.vZw}, {t0}, 4, {t1}
        """)
        self.sStM = S.get()
        self.vR, self.vS0, self.vS1r = V.get(), V.get(), V.get()
        A(f"""
        s_mul_i32 s3, {sB}, {STAGE_CH}
        s_lshl_b32 {sb}, {sH}, 8
        s_add_u32 s3, s3, {sb}
        s_add_u32 {self.sStM}, s3, {L_STAGE - 0x8000}
        s_add_u32 s3, s3, {L_STAGE}
        v_lshl_add_u32 {t2}, {vG}, 4, s3
        v_xor_b32 {t0}, 3, {vI}
        v_bfe_u32 {t1}, {t0}, 1, 1
        v_add_u32 {t1}, {t0}, {t1}
        v_lshrrev_b32 {t1}, 1, {t1}
        s_movk_i32 s3, {ROWB}
        v_mad_u32_u24 {self.vR}, {vI}, s3, {t2}
        v_mad_u32_u24 {self.vS0}, {t0}, s3, {t2}
        v_mad_u32_u24 {self.vS1r}, {t1}, s3, {t2}
        """)
        self.vK1, self.vK3, self.vKs = V.get(), V.get(), V.get()

        def pa(m):
            return ((m >> 2) & 1) * PPLANE + (m >> 3) * 16 + (m & 3) * 4
        A(f"""
        s_mul_i32 s3, {sW}, {PHALF}
        s_add_u32 s3, s3, {L_P}
        v_xor_b32 {t3}, 3, {vG}
        v_and_b32 {t0}, 1, {t3}
        v_mul_u32_u24 {t0}, {PPLANE}, {t0}
        v_lshrrev_b32 {t3}, 1, {t3}
        v_lshl_add_u32 {t3}, {t3}, 4, {t0}
        v_add_u32 {t3}, s3, {t3}
        v_lshlrev_b32 {t0}, 5, {vI}
        v_sub_u32 {t0}, {t3}, {t0}
        v_add_u32 {self.vK1}, {pa(528 - 256)}, {t0}
        v_lshrrev_b32 {t1}, 1, {vI}
        v_lshrrev_b32 {t2}, 2, {vI}
        v_add_u32 {t2}, 2, {t2}
        v_min_u32 {t1}, {t1}, {t2}
        v_add3_u32 {t1}, {t1}, {vI}, {FAR // 16 + 1}
        v_lshl_add_u32 {self.vK3}, {t1}, 5, {t3}
        v_cmp_gt_u32 vcc, 8, {vI}
        v_mov_b32 {t0}, {pa(28)}
        v_mov_b32 {t1}, {pa(NX + 24)}
        v_cndmask_b32 {t0}, {t0}, {t1}, vcc
        v_add_u32 {self.vKs}, s3, {t0}
        """)
        self.vS1o, self.vS1i, self.vS1i2, self.vP2 = V.get(), V.get(), V.get(), V.get()
        self.vMask, self.vHw2, self.M1 = V.get(), V.get(), V.get(4)
        A(f"""
        v_and_b32 {t0}, 1, v0
        v_lshrrev_b32 {t1}, 1, v0
        v_mul_u32_u24 {t2}, {UCH}, {t0}
        v_lshl_add_u32 {self.vUw}, {t1}, 4, {t2}
        v_lshlrev_b32 {t0}, 4, {t0}
        v_lshl_add_u32 {t2}, {t1}, 13, {t0}
        s_lshl_b32 s3, {sL}, 5
        s_add_u32 s3, s3, {WS_S1}
        v_add_u32 {self.vS1i}, s3, {t2}
        v_add_u32 {self.vS1i2}, 0x100000, {self.vS1i}
        s_lshl_b32 s3, {sW}, 11
        s_add_u32 s3, s3, {sa}
        s_add_u32 s3, s3, {WS_S1}
        v_lshl_add_u32 {self.vS1o}, {vL}, 4, s3
        v_add_u32 {self.vP2}, {WS_S2 - WS_S1}, {self.vS1o}
        s_mov_b32 s3, {L_H}
        v_lshl_add_u32 {self.vHw2}, v0, 2, s3
        v_mov_b32 {self.vMask}, {0xFFFFFFFF ^ TAGMASK}
        s_mov_b32 {self.sOnes}, 0x3f803f80
        s_mov_b32 {self.sLo}, 0x3f80
        s_mov_b32 {self.sHi}, 0x3f800000
        """)
        for k in range(4):
            A(f"v_mov_b32 {self.M1[k]}, -1")
        self.ctmp = [SEL]
        return out

    def background(self):
        V, S = self.V, self.S
        vL, sW, sL, sa, sb = self.vL, self.sW, self.sL, self.sa, self.sb
        t0, t1, t2 = V.get(), V.get(), V.get()
        out = []

        def A(text):
            out.extend(x.strip() for x in text.strip().split("\n") if x.strip())
        A(f"""
        s_lshr_b32 s3, {sL}, 5
        s_and_b32 {sb}, {sL}, 31
        s_mul_i32 s6, {sb}, {16 * 3584}
        s_mul_i32 s7, s3, 448
        s_add_u32 s6, s6, s7
        v_lshrrev_b32 {t0}, 2, {vL}
        v_and_b32 {t1}, 3, v0
        v_mul_u32_u24 {t0}, 3584, {t0}
        v_lshl_add_u32 {t0}, {t1}, 7, {t0}
        v_add_u32 {t0}, s6, {t0}
        s_mul_i32 s6, {sb}, {56 * 1024}
        s_lshl_b32 s7, s3, 7
        s_add_u32 s6, s6, s7
        s_mul_i32 s7, {self.sH}, {28 * 1024}
        s_add_u32 s6, s6, s7
        v_min_u32 {t1}, 27, {vL}
        v_lshl_add_u32 {t1}, {t1}, 10, s6
        s_cmp_eq_u32 {sW}, 0
        s_cselect_b32 s8, s22, s24
        s_cselect_b32 s9, s23, s25
        s_cmp_lt_u32 {sW}, 2
        s_cselect_b32 s8, s8, s26
        s_cselect_b32 s9, s9, s27
        s_cselect_b64 vcc, -1, 0
        v_cndmask_b32 {t0}, {t1}, {t0}, vcc
        """)
        if self.o["dma_at"] != "none":
            A(f"global_load_dword {self.vJunk[1]}, {t0}, s[8:9]")
        self.nwarm = len(out)
        warm_block = list(out)
        if self.o["warm_at"] == "bg":
            out.clear()
        A(f"s_lshr_b32 s3, {sL}, 5\ns_and_b32 {sb}, {sL}, 31")
        self.sBlk, self.sRole, self.sUp = S.get(), S.get(), S.get()
        A(f"""
        s_cmp_ge_u32 {sb}, 7
        s_cselect_b32 {self.sUp}, 1, 0
        s_cselect_b32 s6, 7, 0
        s_sub_u32 s6, {sb}, s6
        s_mul_i32 {self.sBlk}, s3, 7
        s_add_u32 {self.sBlk}, {self.sBlk}, s6
        s_cmp_ge_u32 {sb}, 14
        s_cselect_b32 {self.sRole}, 2, 0
        s_lshl_b32 s3, s3, 2
        s_sub_u32 s6, {sb}, {self.o["r1_at"]}
        s_add_u32 s3, s3, s6
        s_cmp_lt_u32 s6, 4
        s_cselect_b32 {self.sRole}, 1, {self.sRole}
        s_cselect_b32 {self.sBlk}, s3, {self.sBlk}
        """)
        self.p3_lines = [f"s_mul_i32 s3, {sL}, 2432", f"s_add_u32 s3, s3, {WS_S3}", f"v_lshl_add_u32 {t2}, v0, 4, s3",
                         f"v_cmp_gt_u32 s[10:11], {t1}, v0",
                         ("s_mov_b64 exec, s[10:11]", f"global_store_dwordx4 {t2}, {self.M1}, s[30:31] sc1", "s_mov_b64 exec, -1")]
        self.p3_lines.insert(0, f"v_mov_b32 {t1}, 152")
        if self.o["warm_at"] == "bg":
            out.extend(warm_block)
        self.vS2o, self.vS2o2, self.vS2i, self.vS2i2, self.vZr = V.get(), V.get(), V.get(), V.get(), V.get()
        A(f"""
        s_add_u32 s3, {sa}, {WS_S2}
        v_lshl_add_u32 {self.vS2o}, v0, 4, s3
        v_add_u32 {self.vS2o2}, 0x1000, {self.vS2o}
        v_bfe_u32 {t0}, v0, 3, 3
        v_xor_b32 {t0}, v0, {t0}
        v_lshlrev_b32 {self.vZr}, 4, {t0}
        s_lshl_b32 s3, {sW}, 18
        s_add_u32 s3, s3, {WS_S2 - WS_S1}
        v_add_u32 {self.vS2i}, s3, {self.vS1i}
        v_add_u32 {self.vS2i2}, 0x40000, {self.vS2i}
        """)
        self.bgtmp = [t0, t1, t2, self.M1]
        return out

    def ln1(self):
        A, V = self.A, self.V
        glob = False
        s1, s2, nm, rs, ad = V.get(), V.get(), V.get(), V.get(), V.get()
        A(f"v_lshlrev_b32 {ad}, 2, {self.vTau}")
        for k in range(8):
            if not glob and k % 4 == 0:
                A(f"ds_write_b128 {self.vHr}, {self.XB[k:k + 4]} offset:{L_H + 128 * k}")
            A(f"v_dot2_f32_bf16 {s1}, {self.XB[k]}, {self.sOnes}, {s1 if k else 0}")
            A(f"v_dot2_f32_bf16 {s2}, {self.XB[k]}, {self.XB[k]}, {s2 if k else 0}")
            if k == 0:
                self.stamp("x")
                if self.o["poison_at"] == "x":
                    self.poison2()
        wv = self.o["wv"]
        take, self.ksl = self.ksl[:wv[1]], self.ksl[wv[1]:]
        self.allreduce(A, "v_add_f32", [s1, s2], 32, take)
        self.ln_stats(A, s1, s2, nm, rs)
        if self.o["poison_at"] == "stat":
            self.poison2()
        self.stamp("stat")
        A("s_mov_b64 exec, 1\ns_bitset1_b64 exec, 32")
        A(f"v_mul_f32 {rs}, 0x3d800000, {rs}")
        A(f"ds_write_b32 {ad}, {nm} offset:{L_ST}\nds_write_b32 {ad}, {rs} offset:{L_ST + 32}")
        A("s_mov_b64 exec, -1")
        A(f"v_mov_b32 {ad}, 0")
        V.put(self.XB)
        self.weave(wv[2])
        A.barrier()
        self.stamp("b1")
        NM, RS = V.get(8), V.get(8)
        XA = self.XA
        if not glob:
            for q in range(2):
                A(f"ds_read2st64_b32 {XA[2 * q:2 * q + 2]}, {self.vHw2} offset0:{8 * q} offset1:{8 * q + 4}")
        A(f"ds_read_b128 {NM[0:4]}, {ad} offset:{L_ST}")
        if not glob:
            for q in range(2, 4):
                A(f"ds_read2st64_b32 {XA[2 * q:2 * q + 2]}, {self.vHw2} offset0:{8 * q} offset1:{8 * q + 4}")
        A(f"ds_read_b128 {NM[4:8]}, {ad} offset:{L_ST + 16}")
        for k in range(2):
            A(f"ds_read_b128 {RS[4 * k:4 * k + 4]}, {ad} offset:{L_ST + 32 + 16 * k}")
        self.weave(wv[3])
        if self.o["poison_at"] == "b1":
            self.poison2()
        A(f"s_add_u32 {self.sE}, {self.sE}, 1\ns_and_b32 {self.sTag}, {self.sE}, {TAGMASK}")
        T = V.get(8)
        for e in range(2):
            G = V.get(4)
            for j in range(8):
                A(f"v_dot2_f32_bf16 {T[j]}, {XA[j]}, {self.sHi if e else self.sLo}, {NM[j]}")
            for j in range(8):
                self.rnd(A, T[j], T[j])
            for q in range(4):
                A(f"v_pk_mul_f32 {T[2 * q:2 * q + 2]}, {T[2 * q:2 * q + 2]}, {RS[2 * q:2 * q + 2]}")
            for j in range(8):
                self.rnd(A, T[j], T[j])
            for q in range(4):
                A(f"v_cvt_pk_f16_f32 {G[q]}, {T[2 * q]}, {T[2 * q + 1]}")
            for q in range(4):
                A(f"v_and_or_b32 {G[q]}, {G[q]}, {self.vMask}, {self.sTag}")
            self.G = getattr(self, "G", []) + [G]
            if e == 0:
                self.stamp("norm")
            if self.o["st_late"] and e == 0:
                continue
            A.wait_tag("poison")
            for ee in ((0, 1) if self.o["st_late"] else (e,)):
                A(f"global_store_dwordx4 {self.vS1o}, {self.G[ee]}, s[30:31] offset:{1024 * ee} sc1", tag="s1st")
        self.stamp("pub1")
        V.put(T, NM, RS, s1, s2, nm, rs, ad, self.vS1o)

    def s1_loads(self, A):
        A(f"global_load_dwordx4 {self.UG[0:4]}, {self.vS1i}, s[30:31] sc1")
        A(f"global_load_dwordx4 {self.UG[4:8]}, {self.vS1i2}, s[30:31] sc1")

    def maybe_s1(self, where):
        if self.o["s1_at"] == where:
            self.UG = self.V.get(8)
            if self.o["poison_at"] == "pub":
                A = self.A
                A(f"v_mov_b32 {self.UG[0]}, {self.sE}")
                A.wait_tag("poison")
                A(f"s_mov_b64 exec, 1\nglobal_store_dword {self.vFo}, {self.UG[0]}, s[30:31] sc1\ns_mov_b64 exec, -1")
                self.V.put(self.vFo)
            self.s1_loads(self.A)

    def ksetup_lines(self):
        V = self.V
        P = self.PAR
        out = []

        class Rec:
            def __call__(self_, text):
                out.extend(x.strip() for x in text.strip().split("\n") if x.strip())
        A = Rec()
        t0, t1, dt = V.get(), V.get(), V.get()
        self.vG16 = V.get()
        sb = self.sb
        A(f"""
        s_and_b32 {sb}, {self.sCh}, 1
        s_xor_b32 {sb}, {sb}, 1
        s_lshl_b32 {sb}, {sb}, 4
        s_lshl_b32 {self.sDt}, {self.sDt}, {sb}
        s_and_b32 {self.sDt}, {self.sDt}, 0xffff0000
        v_mov_b32 {dt}, {LOG2E}
        v_mul_f32 {dt}, {self.sDt}, {dt}
        v_exp_f32 {dt}, {dt}
        s_cmp_eq_u32 {self.sH}, 0
        s_cselect_b32 {sb}, 16, 0
        """)
        self.rnd(A, dt, dt)
        A(f"""
        v_and_b32 {t0}, 0x7fff7fff, {P[2]}
        v_and_b32 {t1}, 0x7fff7fff, {P[3]}
        v_pk_max_u16 {t0}, {t0}, {t1}
        v_lshrrev_b32 {t1}, 16, {t0}
        v_and_b32 {t0}, 0xffff, {t0}
        v_max_u32 {t0}, {t0}, {t1}
        """)
        W = {p: V.get(2) for p in (1, 16, 256)}
        u0, u1 = V.get(), V.get()
        fill = [f"v_lshlrev_b32 {P[k]}, {sb}, {P[k]}" for k in range(4)]
        fill += [f"v_and_b32 {P[k]}, 0xffff0000, {P[k]}" for k in range(4)]
        fill += [f"v_mul_f32 {P[0]}, {LOG2E}, {P[0]}", f"v_exp_f32 {P[0]}, {P[0]}", f"v_mul_f32 {P[1]}, {P[1]}, {dt}",
                 f"v_cvt_pk_bf16_f32 {P[0]}, 0, {P[0]}", f"v_mul_f32 {P[1]}, {INV2PI}, {P[1]}", f"v_mul_f32 {P[0]}, {P[0]}, {dt}",
                 f"v_fract_f32 {u1}, {P[1]}", f"v_mul_f32 {P[0]}, {LOG2E | 0x80000000}, {P[0]}"]
        keep = V.get()
        V.put(keep)
        self.allreduce(A, "v_max_u32", [t0], 64, fill)
        again = V.get()
        assert str(again) == str(keep)
        A(f"v_exp_f32 {u0}, {P[0]}\nv_cos_f32 {W[1][0]}, {u1}\nv_sin_f32 {W[1][1]}, {u1}")
        A(f"""
        v_lshrrev_b32 {t0}, 7, {t0}
        v_mul_f32 {W[1][0]}, {W[1][0]}, {u0}
        v_mul_f32 {W[1][1]}, {W[1][1]}, {u0}
        v_max_u32 {t0}, 8, {t0}
        v_lshrrev_b32 {t1}, 23, {dt}
        v_add_u32 {t1}, {t1}, {t0}
        v_subrev_u32 {t1}, 127, {t1}
        v_max_i32 {t1}, 0, {t1}
        v_min_i32 {t1}, 254, {t1}
        v_lshlrev_b32 {self.vG16}, 23, {t1}
        v_sub_u32 {t0}, 259, {t0}
        v_and_b32 {dt}, 0x007fffff, {dt}
        v_lshl_or_b32 {dt}, {t0}, 23, {dt}
        """)
        L = V.get(2)
        for p, mul in ((16, 0x41800000), (256, 0x43800000)):
            w = W[p]
            A(f"v_mul_f32 {u0}, {mul}, {P[0]}\nv_mul_f32 {u1}, {mul}, {P[1]}")
            A(f"v_exp_f32 {u0}, {u0}\nv_fract_f32 {u1}, {u1}")
            A(f"v_cos_f32 {w[0]}, {u1}\nv_sin_f32 {w[1]}, {u1}")
            A(f"v_mul_f32 {L[p // 256]}, {P[2 + p // 256]}, {dt}")
            A(f"v_mul_f32 {w[0]}, {w[0]}, {u0}\nv_mul_f32 {w[1]}, {w[1]}, {u0}")
        self.ks = dict(W=W, L=L, t0=t0, tmp=[u0, u1, t1, dt, P, again])
        return out

    def weave(self, n):
        for _ in range(min(n, len(self.ksl))):
            self.A(self.ksl.pop(0))

    def kgen_steps(self):
        A, V = self.A, self.V
        self.weave(1000)
        W, L, t0 = self.ks["W"], self.ks["L"], self.ks["t0"]
        V.put(*self.ks["tmp"])
        M, Rr, T = V.get(2), V.get(2), V.get(2)
        self.stamp("ws")
        NB_ = self.o["recb"]
        pk = [V.get() for _ in range(2 * NB_)]
        cnt = [0]
        queue = []
        A(f"s_mov_b32 m0, {self.sStM}")

        def cmul(d, a, b):
            A(f"v_pk_mul_f32 {T}, {a}, {b} op_sel_hi:[0,1]")
            A(f"v_pk_fma_f32 {d}, {a}, {b}, {T} op_sel:[1,1,0] op_sel_hi:[1,0,1] neg_lo:[0,1,0]")

        if not self.o["addtid"]:
            vSt = V.get()
            A(f"v_lshl_add_u32 {vSt}, {self.vL}, 2, {self.sStM}")

        def flush_q():
            for row, r in queue:
                if self.o["addtid"]:
                    A(f"ds_write_addtid_b32 {r} offset:{32768 + row * ROWB}")
                else:
                    A(f"ds_write_b32 {vSt}, {r} offset:{32768 + row * ROWB}")
            queue.clear()

        def put(row, v, conj=False):
            r = pk[cnt[0] % (2 * NB_)]
            cnt[0] += 1
            A(f"v_cvt_pk_f16_f32 {r}, {v[0]}, {'-' if conj else ''}{v[1]}")
            queue.append((row, r))
            if len(queue) >= NB_:
                flush_q()

        Rf, S0, S1, FA = ([self.AC.get(4, 4) for _ in range(4)] for _ in range(4))
        D1, D2, D3 = V.get(4), V.get(4), V.get(4)

        def frags(regs, addr, row0):
            flush_q()
            for q in range(4):
                A(f"ds_read_b128 {regs[q]}, {addr} offset:{row0 * ROWB + 64 * q}")

        def product(D, a, b):
            for q in range(4):
                A(f"v_mfma_f32_16x16x32_f16 {D}, {a[q]}, {b[q]}, {D if q else 0}")

        A(f"v_mov_b32 {t0}, 0x3c00")
        queue.append((0, t0))
        yield
        put(1, W[16], conj=True)
        cmul(Rr, W[16], W[16])
        put(2, Rr, conj=True)
        for j in range(3, 16):
            yield
            cmul(Rr, Rr, W[16])
            put(j, Rr, conj=True)
        frags(Rf, self.vR, 0)
        self.stamp("recR")
        LE = {0: L}
        cur = L
        for al in range(17):
            yield
            if al:
                nxt = V.get(2) if al % 2 == 0 else M
                cmul(nxt, cur, W[1])
                cur = nxt
                if al % 2 == 0:
                    LE[al] = cur
            if al < 16:
                put(16 + al, cur)
        frags(S0, self.vS0, 16)
        self.maybe_s1("rec1")
        for al in range(0, 17, 2):
            yield
            cmul(LE[al], LE[al], W[256])
            put(32 + al // 2, LE[al])
        frags(S1, self.vS1r, 32)
        product(D1, S0, Rf)
        self.maybe_s1("seg1")
        for a in range(2):
            for al in (4, 8, 12, 16):
                yield
                cmul(LE[al], LE[al], W[256])
                put(41 + 2 * (al // 4 - 1) + 1 - a, LE[al])
        K3 = V.get(4)
        flush_q()
        A(f"ds_write_b128 {self.vK1}, {D1} offset:512")
        product(D2, S1, Rf)
        self.maybe_s1("far")
        for a in range(4):
            for al in (8, 16):
                yield
                cmul(LE[al], LE[al], W[256])
                put(49 + 4 * (al // 8 - 1) + 3 - a, LE[al])
        frags(FA, self.vR, 41)
        self.stamp("rec")
        self.maybe_s1("rec2")
        A(f"ds_write_b128 {self.vK1}, {D2}")
        A(f"v_cmp_gt_u32 vcc, 8, {self.vI}")
        product(D3, Rf, FA)
        self.maybe_s1("mfma")
        self.stamp("kmf0")
        A(f"v_cndmask_b32 {T[1]}, {D2[0]}, 0, vcc")
        for k in range(4):
            A(f"v_mov_b32 {K3[k]}, {D3[3 - k]}")
        A(f"v_cndmask_b32 {T[0]}, {D2[0]}, {D3[3]}, vcc")
        A(f"ds_write_b128 {self.vK3}, {K3}")
        A("s_mov_b32 exec_lo, 0\ns_mov_b32 exec_hi, 0x80400000")
        A(f"ds_write_b32 {self.vKs}, {T[0]} offset:12\nds_write2_b32 {self.vKs}, {T[1]}, {T[1]} offset0:1 offset1:2")
        A("s_mov_b32 exec_hi, 0x00400000")
        A(f"ds_write_b32 {self.vKs}, {T[0]} offset:{PPLANE}")
        A("s_mov_b64 exec, -1")
        A.barrier()
        V.put(M, Rr, T, *pk, *W.values(), t0, D1, D2, D3, K3, *LE.values(),
              self.vR, self.vS0, self.vS1r, self.vK1, self.vK3, self.vKs)
        self.AC.put(*Rf, *S0, *S1, *FA)

    def row_params(self):
        A, V = self.A, self.V
        t1, t2 = V.get(), V.get()
        self.vDk = V.get()
        A(f"""
        v_and_b32 {t1}, 0x1ff, {self.vHr}
        v_lshlrev_b32 {t2}, 2, v0
        global_load_dwordx4 {self.WR[0:4]}, {t1}, s[20:21]
        global_load_dwordx4 {self.WR[4:8]}, {t1}, s[20:21] offset:512
        global_load_dword {self.vDk}, {t2}, s[16:17]
        """)
        V.put(t1, t2)

    def kgen(self):
        A, V = self.A, self.V
        if self.o["poison_at"] == "pub":
            self.poison2()
        for item in self.p3_lines:
            A("\n".join(item) if isinstance(item, tuple) else item, tag="poison3" if isinstance(item, tuple) else None)
        self.row_params()
        for _ in self.ksteps:
            pass
        self.stamp("kmf")
        self.maybe_s1("shift")
        D, E = V.get(12), V.get(12)
        C = [V.get(4) for _ in range(4)]
        for k in range(3):
            off = L_P + (k & 1) * PPLANE + (k >> 1) * 16
            A(f"ds_read_b128 {D[4 * k:4 * k + 4]}, {self.vShiftR} offset:{off}")
            A(f"ds_read_b128 {E[4 * k:4 * k + 4]}, {self.vShiftR} offset:{off + PHALF}")
        for k in range(6):
            A(f"v_pk_add_f32 {D[2 * k:2 * k + 2]}, {D[2 * k:2 * k + 2]}, {E[2 * k:2 * k + 2]}")
        for c in range(4):
            for k in range(4):
                A(f"v_cvt_pk_f16_f32 {C[c][k]}, {D[c + 2 * k]}, {D[c + 2 * k + 1]}")
            if c % 2:
                for cc in (c - 1, c):
                    A(f"ds_write_b128 {self.vShift}, {C[cc]} offset:{L_K + cc * KCOPY}")
        if not self.o["frag_in"]:
            A.barrier()
        self.shift_regs = (D, E, *C, self.vShift, self.vShiftR)
        self.stamp("shift")
        self.maybe_s1("frag")
        AC = self.AC
        self.KN = [AC.get(4, 4) for _ in range(17)]
        self.KX = AC.get(4, 4)
        self.B2 = {(k, d): AC.get(4, 4) for k in range(2) for d in (2, 3, 4)}
        self.B3 = {d: AC.get(4, 4) for d in (4, 5, 6, 7)}
        rd = {}
        for q in range(17):
            rd[str(self.KN[q])] = [f"ds_read_b64 {self.KN[q][2 * hf:2 * hf + 2]}, {self.vN} offset:{64 * (16 - q) + 8 * hf}" for hf in range(2)]
        rd[str(self.KX)] = [f"ds_read_b64 {self.KX[2 * hf:2 * hf + 2]}, {self.vN} offset:{2 * NX + 8 * hf}" for hf in range(2)]
        for (k, d), r in self.B2.items():
            rd[str(r)] = [f"ds_read_b64 {r[2 * hf:2 * hf + 2]}, {self.vF} offset:{2 * (V2[2 * k + hf] + 32 - 16 * (d - 2))}" for hf in range(2)]
        for d, r in self.B3.items():
            rd[str(r)] = [f"ds_read_b64 {r[2 * hf:2 * hf + 2]}, {self.vF} offset:{2 * (V3[hf] + 48 - 16 * (d - 4))}" for hf in range(2)]
        self.frag_reads = {}
        if self.o["frag_in"]:
            self.frag_reads = rd
        else:
            for v in rd.values():
                A("\n".join(v))
        self.maybe_s1("end")
        self.stamp("frag")

    def s1_consume(self, A, sfx):
        V = self.V
        UG = self.UG
        t0, t1 = V.get(), V.get()

        def check(C):
            for k in range(8):
                C(f"v_xor_b32 {UG[k]}, {self.sTag}, {UG[k]}")
            C(f"v_or3_b32 {t0}, {UG[0]}, {UG[1]}, {UG[2]}\nv_or3_b32 {t1}, {UG[3]}, {UG[4]}, {UG[5]}")
            C(f"v_or3_b32 {t0}, {t0}, {UG[6]}, {UG[7]}\nv_or_b32 {t0}, {t0}, {t1}")
            C(f"v_and_b32 {t0}, {TAGMASK}, {t0}\nv_cmp_ne_u32 vcc, 0, {t0}")
        self.poll(A, "s1" + sfx, self.s1_loads, check)
        self.stamp("s1w", A)
        if self.o["warm_at"] == "s1w":
            for ln in self.warm_line:
                A(ln)
        A(f"ds_write_b128 {self.vUw}, {UG[0:4]} offset:{L_U + 512}")
        A(f"ds_write_b128 {self.vUw}, {UG[4:8]} offset:{L_U + 512 + 2048}")
        self.stamp("s1", A)
        if not self.o["early_br"]:
            A.barrier()
            self.stamp("b5", A)
        V.put(t0, t1, *self.shift_regs)

    def conv(self, A, tiles, dma):
        V, AC = self.V, self.AC
        acc = {j: V.get(4) for j in tiles}
        NF, NG, NW, NP = self.o["nf"], self.o["ng"], self.o["nw"], 6
        PE, PD, NPRE = self.o["pe"], self.o["pd"], self.o["npre"]
        Fb = [AC.get(4, 4) for _ in range(NF)]
        Gb = [AC.get(4, 4) for _ in range(NG)]
        Wb = [V.get(4) for _ in range(NW)]
        Pb = [V.get(4) for _ in range(NP)]
        EY, EZ = V.get(4), V.get(2)
        qmax = {0: 7, 1: 15}
        b2 = sorted({j - d for j in tiles for d in (2, 3, 4) if j - d >= 0})
        b3 = sorted({j - d for j in tiles for d in (4, 5, 6, 7) if j - d >= 0})
        nlo = min(8 * j - qmax.get(j, 16) for j in tiles)
        nhi = 8 * max(tiles)
        near = []
        for fi, n in enumerate(range(nlo, nhi + 1)):
            for j in tiles:
                q = 8 * j - n
                if 0 <= q <= qmax.get(j, 16):
                    near.append((j, self.KN[q], fi, q == 0))
        far = []
        gfr, pcount = [], 0
        for b in sorted(set(b2) | set(b3)):
            ga, gb = len(gfr), len(gfr) + 1
            gfr += [256 * b - 16, 256 * b - 24]
            mains = []
            if b in b2:
                pa, pb = pcount, pcount + 1
                pcount += 2
                far += [("band", ga, (12, 1), pa, 0), ("band", ga, (8, 2), pa, 1), ("band", gb, (12, 1), pb, 0), ("band", gb, (8, 2), pb, 1)]
                mains += [("main", b + d, pa, self.B2[(0, d)]) for d in (2, 3, 4) if b + d in tiles]
                mains += [("main", b + d, pb, self.B2[(1, d)]) for d in (2, 3, 4) if b + d in tiles]
            if b in b3:
                pc = pcount
                pcount += 1
                far += [("band", ga, (8, 3), pc, 0), ("band", gb, (8, 4), pc, 1)]
                mains += [("main", b + d, pc, self.B3[d]) for d in (4, 5, 6, 7) if b + d in tiles]
            if b + 4 in tiles:
                far.append(("x", b + 4, ga))
            far += mains
        LAT = self.o["lat"]
        mf, fill = [], []
        started, done_at = set(), {}
        fuse, guse, plast, pready = {}, {}, {}, {}
        wcount = 0
        ni = 0
        farleft = list(far)
        span = self.o["far_span"][0 if 0 in tiles else 1]
        credit = 0.0

        def acc_mf(j, a, b):
            mf.append(f"v_mfma_f32_16x16x32_f16 {acc[j]}, {a}, {b}, {acc[j] if j in started else 0}")
            started.add(j)

        def far_ok(it):
            t = len(mf)
            if it[0] == "main":
                return pready.get(it[2], 10 ** 6) <= t
            if it[0] == "band":
                prev = it[3] - NP
                return prev < 0 or not any(o[0] == "main" and o[2] == prev for o in farleft)
            return True

        while ni < len(near) or farleft:
            t = len(mf)
            want_far = farleft and (credit >= 1.0 or ni >= len(near))
            if ni < len(near) and near[ni][3] and any(o[0] in ("main", "x") and o[1] == near[ni][0] for o in farleft):
                want_far = True
            pick = None
            if want_far:
                for it in farleft[:8]:
                    if far_ok(it):
                        if it[0] == "band" and any(o[0] == "band" for o in farleft[:farleft.index(it)]):
                            continue
                        pick = it
                        break
            if pick is None and ni < len(near) and not (near[ni][3] and any(o[0] in ("main", "x") and o[1] == near[ni][0] for o in farleft)):
                j, a, fi, last = near[ni]
                ni += 1
                acc_mf(j, a, Fb[fi % NF])
                fuse.setdefault(fi, [t, t])[1] = t
                if last:
                    done_at[j] = t
                credit += len(far) / span
                continue
            assert pick is not None, "conv schedule is stuck"
            farleft.remove(pick)
            credit -= 1.0
            if pick[0] == "band":
                _, g, key, p, hf = pick
                w = Wb[wcount % NW]
                wcount += 1
                mf.append(f"v_mfma_f32_16x16x32_f16 {w}, {Gb[g % NG]}, {self.BAND[key]}, 0")
                guse.setdefault(g, [t, t])[1] = t
                for k in range(2):
                    fill.append([t + self.o["cvt0"], t + LAT - 1, f"v_cvt_pk_f16_f32 {Pb[p % NP][2 * hf + k]}, {w[2 * k]}, {w[2 * k + 1]}", None])
                if hf == 1:
                    pready[p] = t + LAT
            elif pick[0] == "x":
                acc_mf(pick[1], self.KX, Gb[pick[2] % NG])
                guse.setdefault(pick[2], [t, t])[1] = t
            else:
                acc_mf(pick[1], Pb[pick[2] % NP], pick[3])
        nm = len(mf)
        pre = []
        reads = []
        for fi in sorted(fuse):
            txt = f"ds_read_b128 {Fb[fi % NF]}, {self.vUf} offset:{512 + 2 * (32 * (nlo + fi) - 16)}"
            reads.append((fuse[fi][0], fuse[fi - NF][1] if fi >= NF else -1, txt))
        for g in sorted(guse):
            txt = f"ds_read_b128 {Gb[g % NG]}, {self.vUf} offset:{512 + 2 * gfr[g]}"
            reads.append((guse[g][0], guse[g - NG][1] if g >= NG else -1, txt))
        seen = set()
        for t, txt in enumerate(mf):
            for name, two in self.frag_reads.items():
                if name not in seen and f" {name}," in txt:
                    seen.add(name)
                    reads += [(t, -1, two[0]), (t, -1, two[1])]
        reads.sort(key=lambda r: r[0])
        for first, free, txt in reads:
            if free < 0 and first <= NPRE:
                pre.append(txt)
            else:
                assert free < first
                fill.append([max(free, first - PE, 0), max(free, first - PD, 0), txt, None])
        order_t = sorted(tiles, key=lambda j: done_at[j])
        for k, j in enumerate(order_t):
            t = done_at[j]
            nxt = done_at[order_t[k + 1]] if k + 1 < len(order_t) else nm + 100
            seq2 = [f"v_mul_f32 {EY[r]}, {acc[j][r]}, {self.vG16}" for r in range(4)]
            seq2 += [f"v_cvt_pk_bf16_f32 {EZ[r]}, {EY[2 * r]}, {EY[2 * r + 1]}" for r in range(2)]
            seq2.append(f"ds_write_b64 {self.vZw}, {EZ} offset:{L_Z + 1024 * j}")
            for txt in seq2:
                fill.append([t + self.o["cvt0"], min(t + 12, nxt + 2), txt, f"e2_{j}"])
        for txt in pre:
            A(txt)
        for i, f in enumerate(fill):
            f.append(i)
        left = list(fill)
        bg = list(self.bg)
        A.prewait([mf[0]])
        for t in range(nm):
            A(mf[t])
            chosen = []
            for f in sorted([f for f in left if f[0] <= t], key=lambda f: (f[1], f[4])):
                if len(chosen) >= 2 and f[1] > t:
                    break
                if f[3] and any(g[3] == f[3] and g[4] < f[4] and g not in chosen for g in left):
                    continue
                mem = isinstance(f[2], tuple) or f[2].startswith("ds_")
                if mem and f[1] > t and any(g[3] == f[3] and f[3] for g in chosen):
                    continue
                chosen.append(f)
            memf = [f for f in chosen if (isinstance(f[2], tuple) or f[2].startswith("ds_")) and not any(g[3] == f[3] and f[3] and g[4] < f[4] for g in chosen)]
            rest = [f for f in chosen if f not in memf]
            c0 = A.count
            A.prewait([f[2] for f in chosen if not isinstance(f[2], tuple)] + ([mf[t + 1]] if t + 1 < nm else []))
            ns, nv = A.count - c0, len(chosen)
            while bg and isinstance(bg[0], str) and bg[0].startswith("s_") and ns + nv < 3 and t >= self.o["bg_from"]:
                A(bg.pop(0))
                ns += 1
            nv += max(0, ns - 1)
            if bg and not memf and nv < 2 and (isinstance(bg[0], tuple) or bg[0].startswith("global_")):
                item = bg.pop(0)
                A("\n".join(item) if isinstance(item, tuple) else item, tag="poison3" if isinstance(item, tuple) else None)
                nv += 1
            for f in memf + rest:
                A(f[2])
                left.remove(f)
            while bg and nv < 2 and isinstance(bg[0], str) and bg[0].startswith("v_") and t >= self.o["bg_from"]:
                A(bg.pop(0))
                nv += 1
        self.bg_left = max(getattr(self, "bg_left", 0), len(bg))
        tail_bg = bg
        for item in tail_bg:
            A("\n".join(item) if isinstance(item, tuple) else item, tag="poison3" if isinstance(item, tuple) else None)
        for f in sorted(left, key=lambda f: (f[1], f[4])):
            A(f[2])
        self.nmfma = getattr(self, "nmfma", []) + [nm]
        V.put(*acc.values(), *Wb, *Pb, EY, EZ)
        AC.put(*Fb, *Gb)

    def dma_plan(self, A, role):
        V = self.V
        vL, sW = self.vL, self.sW
        t0, t1 = V.get(), V.get()
        self.vWa = V.get()
        if role == 0:
            A(f"""
            s_lshl_b32 {self.sWb}, {sW}, 13
            s_add_u32 {self.sWb}, {self.sWb}, {L_STAGE}
            s_lshl_b32 s3, {sW}, 7
            v_lshrrev_b32 {t0}, 2, {vL}
            v_add_u32 {t0}, s3, {t0}
            v_mul_u32_u24 {t0}, 3584, {t0}
            v_and_b32 {t1}, 3, {vL}
            v_lshl_add_u32 {t0}, {t1}, 4, {t0}
            s_lshl_b32 s3, {self.sBlk}, 6
            v_add_u32 {self.vWa}, s3, {t0}
            s_cmp_eq_u32 {self.sUp}, 0
            s_cselect_b32 s4, s22, s24
            s_cselect_b32 s5, s23, s25
            """)
            n, step = 8, 16 * 3584
        else:
            A(f"""
            s_mul_i32 {self.sWb}, {sW}, 14336
            s_add_u32 {self.sWb}, {self.sWb}, {L_STAGE}
            s_mul_i32 s3, {sW}, 448
            v_lshrrev_b32 {t0}, 1, {vL}
            v_add_u32 {t0}, s3, {t0}
            v_lshlrev_b32 {t0}, 10, {t0}
            v_and_b32 {t1}, 1, {vL}
            v_lshl_add_u32 {t0}, {t1}, 4, {t0}
            s_lshl_b32 s3, {self.sBlk}, 5
            v_add_u32 {self.vWa}, s3, {t0}
            s_mov_b64 s[4:5], s[26:27]
            """)
            n, step = 14, 0x8000
        V.put(t0, t1)
        return [(f"s_add_u32 m0, {self.sWb}, {m * 1024}" + (f"\ns_add_u32 s4, s4, {step}\ns_addc_u32 s5, s5, 0" if m else ""),
                 f"global_load_lds_dwordx4 {self.vWa}, s[4:5]") for m in range(n)]

    def conv_all(self):
        A = self.A
        nb = self.nwarm if self.o["warm_at"] == "pre" else 0
        for ln in self.bg[:nb]:
            A(ln)
        self.bg = self.bg[nb:]
        self.s1_consume(A, "")
        first, second = ([5, 6, 7], [0, 1, 2, 3, 4]) if self.o["b_first"] else ([0, 1, 2, 3, 4], [5, 6, 7])
        A(f"s_cmp_eq_u32 {self.sH}, {int(self.o['b_first'])}\ns_cbranch_scc0 L_conv_b")
        B = A.fork()
        if self.o["early_br"]:
            A.barrier()
            self.stamp("b5", A)
        self.conv(A, first, [])
        A.wait_tag("poison3")
        A.wait(lg=0)
        A.flush()
        A("s_branch L_conv_done")
        B.label("L_conv_b")
        if self.o["early_br"]:
            B.barrier()
            self.stamp("b5", B)
        self.conv(B, second, [])
        B.wait_tag("poison3")
        B.wait(lg=0)
        assert [t for _, t in A.vm] == [t for _, t in B.vm]
        B.flush()
        A.lines += B.lines
        A.count += B.count
        A.nops += B.nops
        A.label("L_conv_done")
        self.V.put(*self.bgtmp)
        self.V.put(*self.BAND.values(), self.vUf, self.vZw, self.vG16, self.UG, self.vUw,
                   self.vS1i, self.vS1i2, self.vN, self.vF)
        self.AC.put(*self.KN, self.KX, *self.B2.values(), *self.B3.values())
        self.stamp("conv", A)
        A("s_barrier")
        self.stamp("b6", A)
        self.ZT = ZT = self.V.get(8)
        A(f"ds_read_b128 {ZT[0:4]}, {self.vZr} offset:{L_Z}\nds_read_b128 {ZT[4:8]}, {self.vZr} offset:{L_Z + 4096}")
        A(f"global_store_dwordx4 {self.vS2o}, {ZT[0:4]}, s[30:31] sc1", tag="s2st")
        A(f"global_store_dwordx4 {self.vS2o2}, {ZT[4:8]}, s[30:31] sc1", tag="s2st")
        if self.o["poison_at"] == "pub":
            self.vFl = self.V.get()
            A(f"global_load_dword {self.vFl}, {self.vFi}, s[30:31] sc1")
        self.stamp("st2", A)
        self.V.put(self.vZr, self.vS2o, self.vS2o2)

    def poison_check(self, regs, t0):
        def chk(C):
            r = list(regs)
            if len(r) == 1:
                C(f"v_cmp_eq_u32 vcc, -1, {r[0]}")
                return
            C(f"v_max3_u32 {t0}, {r[0]}, {r[1]}, {r[2] if len(r) > 2 else r[1]}")
            r = r[3:]
            while r:
                C(f"v_max3_u32 {t0}, {t0}, {r[0]}, {r[1] if len(r) > 1 else r[0]}")
                r = r[2:]
            C(f"v_cmp_eq_u32 vcc, -1, {t0}")
        return chk

    def phase_c(self):
        A, V = self.A, self.V
        vL, vI, vG, sL, sW = self.vL, self.vI, self.vG, self.sL, self.sW
        get = V.get
        self.t = t0, t1, t2 = get(), get(), get()
        vSW, vKw, vS3o, vRo = get(), get(), get(), get()
        self.vS3i = get()
        vHr = self.vHr
        XL, XH, UD = get(8), get(8), Multi([get(4) for _ in range(4)])
        for j in range(8):
            A(f"v_lshlrev_b32 {XL[j]}, 16, {self.XA[j]}")
            A(f"v_and_b32 {XH[j]}, 0xffff0000, {self.XA[j]}")
        A(f"v_lshlrev_b32 {t0}, 16, {self.vDk}\nv_and_b32 {t1}, 0xffff0000, {self.vDk}")
        A(f"v_mul_f32 {t0}, 0x41800000, {t0}\nv_mul_f32 {t1}, 0x41800000, {t1}")
        for e in range(2):
            G = self.G[e]
            for q in range(4):
                A(f"v_and_b32 {G[q]}, {G[q]}, {self.vMask}")
            for j in range(8):
                A(f"v_fma_mix_f32 {UD[8 * e + j]}, {G[j // 2]}, {(t0, t1)[e]}, 0 op_sel:[{j % 2},0,0] op_sel_hi:[1,0,0]")
            for j in range(8):
                self.rnd(A, UD[8 * e + j], UD[8 * e + j])
        V.put(*self.G, self.vMask, self.vDk)
        for k in range(8):
            A(f"v_dot2_f32_bf16 {vSW}, {self.WR[k]}, {self.sOnes}, {vSW if k else 0}")
        self.allreduce(A, "v_add_f32", [vSW], 32)
        A(f"""
        v_and_b32 {t0}, 31, v0
        v_lshlrev_b32 {t0}, 4, {t0}
        v_lshlrev_b32 {vKw}, 2, {self.vTau}
        s_lshl_b32 s3, {sW}, 13
        s_lshl_b32 s16, {sL}, 4
        s_add_u32 s3, s3, s16
        s_add_u32 s3, s3, {WS_S3}
        v_lshl_add_u32 {vS3o}, {vL}, 12, s3
        s_lshr_b32 s3, {sL}, 5
        s_lshl_b32 s3, s3, 12
        s_add_u32 s16, s3, {WS_S3}
        v_lshl_add_u32 {self.vS3i}, v0, 4, s16
        s_lshl_b32 s16, {sL}, 11
        s_add_u32 s16, s16, {WS_ROWS}
        v_add_u32 {vRo}, s16, {t0}
        s_lshl_b32 s3, {sL}, 3
        s_sub_u32 s3, 2047, s3
        v_sub_u32 {t2}, s3, {self.vTau}
        v_mov_b32 {t1}, 0
        """)
        if self.o["dma_ack2"] and self.o["dma_at"] != "none":
            A(f"s_cmp_eq_u32 {self.sRole}, 2\ns_cbranch_scc1 L_dma_done")
            A(f"s_cmp_eq_u32 {self.sRole}, 1\ns_cbranch_scc1 L_dma_r1")
            keep = list(A.vm)
            for role in (0, 1):
                if role:
                    A.label("L_dma_r1")
                plan = self.dma_plan(A, role)
                n = len(plan) if role == 0 else self.o["dma_ack2"]
                for a, b in plan[:n]:
                    A(a)
                    A(b, tag="dma")
                if role == 0:
                    A("s_branch L_dma_done")
                    V.put(self.vWa)
                else:
                    self.plan1 = plan[n:]
            A.label("L_dma_done")
        if self.o["dma0_ack2"] and self.o["dma_at"] != "none":
            A(f"s_cmp_eq_u32 {self.sRole}, 0\ns_cbranch_scc0 L_dma0_done")
            for a, b in self.dma_plan(A, 0):
                A(a)
                A(b, tag="dma")
            V.put(self.vWa)
            A.label("L_dma0_done")
        early = self.o["dma_s2"] and self.o["dma_at"] != "none"
        if early:
            A(f"s_cmp_eq_u32 {self.sRole}, 1\ns_cbranch_scc1 L_plan1")
            p0 = self.dma_plan(A, 0)
            keep = self.vWa
            A("s_branch L_plan_done")
            A.label("L_plan1")
            V.put(keep)
            p1 = self.dma_plan(A, 1)
            assert str(keep) == str(self.vWa)
            A.label("L_plan_done")
        self.stamp("dma", A)
        A.wait(vm=0)
        if self.o["poison_at"] == "pub":
            self.poll(A, "flg", lambda C: C(f"global_load_dword {self.vFl}, {self.vFi}, s[30:31] sc1"),
                      lambda C: C(f"v_cmp_ne_u32 vcc, {self.sE}, {self.vFl}"))
            V.put(self.vFl, self.vFi)
        self.stamp("ack2", A)
        ZT = self.ZT

        def s2_loads(C):
            C(f"global_load_dwordx4 {ZT[0:4]}, {self.vS2i}, s[30:31] sc1")
            C(f"global_load_dwordx4 {ZT[4:8]}, {self.vS2i2}, s[30:31] sc1")
        s2_loads(A)
        self.poll(A, "s2", s2_loads, self.poison_check([ZT[k] for k in range(8)], t0))
        self.stamp("s2", A)
        if early:
            n1 = self.o["dma_s2"] - 1
            A(f"s_cmp_eq_u32 {self.sRole}, 0\ns_cbranch_scc0 L_dma_n0")
            for a, b in p0:
                A(a)
                A(b)
            A.label("L_dma_n0")
            if n1:
                A(f"s_cmp_eq_u32 {self.sRole}, 1\ns_cbranch_scc0 L_dma_n1")
                for a, b in p1[:n1]:
                    A(a)
                    A(b)
                A.label("L_dma_n1")
            A.vm = []
            self.plan1 = p1[n1:]
        HP = get(8)
        self.T = T = get(8)
        for grp in range(2):
            for jj in range(4):
                j = 4 * grp + jj
                sel = self.sHi if j % 2 else self.sLo
                A(f"v_dot2_f32_bf16 {T[jj]}, {ZT[j // 2]}, {sel}, {UD[j]}")
                A(f"v_dot2_f32_bf16 {T[4 + jj]}, {ZT[4 + j // 2]}, {sel}, {UD[8 + j]}")
            for k in range(8):
                self.rnd(A, T[k], T[k])
            for q in range(2):
                j = 4 * grp + 2 * q
                A(f"v_pk_add_f32 {T[2 * q:2 * q + 2]}, {T[2 * q:2 * q + 2]}, {XL[j:j + 2]}")
                A(f"v_pk_add_f32 {T[4 + 2 * q:6 + 2 * q]}, {T[4 + 2 * q:6 + 2 * q]}, {XH[j:j + 2]}")
            for jj in range(4):
                A(f"v_cvt_pk_bf16_f32 {HP[4 * grp + jj]}, {T[jj]}, {T[4 + jj]}")
            for q in range(2):
                j = 4 * grp + 2 * q
                A(f"ds_write2st64_b32 {self.vHw2}, {HP[j]}, {HP[j + 1]} offset0:{4 * j} offset1:{4 * j + 4}")
        self.stamp("hw", A)
        A.barrier()
        self.stamp("b7", A)
        V.put(XL, XH, *UD.groups, HP, ZT, self.vS2i, self.vS2i2, self.XA)
        HB = get(8)
        A(f"ds_read_b128 {HB[0:4]}, {vHr} offset:{L_H}\nds_read_b128 {HB[4:8]}, {vHr} offset:{L_H + 512}")
        s1, s2, s3, NM, RS = get(), get(), get(), get(2), get(2)
        self.key = key = get()
        for k in range(8):
            A(f"v_dot2_f32_bf16 {s1}, {HB[k]}, {self.sOnes}, {s1 if k else 0}")
            A(f"v_dot2_f32_bf16 {s2}, {HB[k]}, {HB[k]}, {s2 if k else 0}")
            A(f"v_dot2_f32_bf16 {s3}, {HB[k]}, {self.WR[k]}, {s3 if k else 0}")
        self.allreduce(A, "v_add_f32", [s1, s2, s3], 32)
        self.ln_stats(A, s1, s2, NM[0], RS[0])
        A(f"v_fma_f32 {s3}, {NM[0]}, {vSW}, {s3}\nv_mul_f32 {s3}, {s3}, {RS[0]}")
        self.rnd(A, s3, s3)
        A(f"""
        v_ashrrev_i32 {t0}, 31, {s3}
        v_or_b32 {t0}, 0x80000000, {t0}
        v_xor_b32 {t0}, {s3}, {t0}
        v_and_b32 {t0}, 0xffff0000, {t0}
        v_or_b32 {key}, {t0}, {t2}
        s_mov_b64 exec, 1
        s_bitset1_b64 exec, 32
        ds_write_b32 {vKw}, {key} offset:{L_KEY}
        s_mov_b64 exec, -1
        """)
        self.stamp("key", A)
        V.put(self.WR, vSW, s1, s2, s3, vKw)
        H32 = Multi([get(4) for _ in range(4)])
        late = self.o.get("late_unpack")
        for k in range(0 if late else 8):
            A(f"v_lshlrev_b32 {H32[2 * k]}, 16, {HB[k]}\nv_and_b32 {H32[2 * k + 1]}, 0xffff0000, {HB[k]}")
        A.barrier()
        self.kmax = kmax = get()
        A(f"ds_read_b128 {T[0:4]}, {t1} offset:{L_KEY}\nds_read_b128 {T[4:8]}, {t1} offset:{L_KEY + 16}")
        HN = Multi([get(4) for _ in range(2)])
        self.D = D = Multi([get(4) for _ in range(8)])
        A(f"v_mov_b32 {NM[1]}, {NM[0]}\nv_mov_b32 {RS[1]}, {RS[0]}")
        for k in range(8):
            if not late:
                A(f"v_pk_add_f32 {D[2 * k:2 * k + 2]}, {H32[2 * k:2 * k + 2]}, {NM}")
            elif k < 5:
                A(f"v_lshlrev_b32 {H32[2 * k]}, 16, {HB[k]}\nv_and_b32 {H32[2 * k + 1]}, 0xffff0000, {HB[k]}")
        A(f"v_max3_u32 {kmax}, {T[0]}, {T[1]}, {T[2]}\nv_max3_u32 {t0}, {T[3]}, {T[4]}, {T[5]}")
        A(f"v_max3_u32 {kmax}, {kmax}, {T[6]}, {T[7]}\nv_max_u32 {kmax}, {kmax}, {t0}")
        A("s_mov_b64 exec, 3")
        A(f"global_store_dword {vS3o}, {kmax}, s[30:31] sc1", tag="s3st")
        A("s_mov_b64 exec, -1")
        self.stamp("pub3", A)
        sC = self.sC
        A(f"v_cmp_eq_u32 {sC}, {key}, {kmax}")
        if late:
            for k in range(5, 8):
                A(f"v_lshlrev_b32 {H32[2 * k]}, 16, {HB[k]}\nv_and_b32 {H32[2 * k + 1]}, 0xffff0000, {HB[k]}")
            for k in range(8):
                A(f"v_pk_add_f32 {D[2 * k:2 * k + 2]}, {H32[2 * k:2 * k + 2]}, {NM}")
        for k in range(16):
            self.rnd(A, D[k], D[k])
        for k in range(8):
            A(f"v_pk_mul_f32 {D[2 * k:2 * k + 2]}, {D[2 * k:2 * k + 2]}, {RS}")
        for k in range(8):
            A(f"v_cvt_pk_bf16_f32 {HN[k]}, {D[2 * k]}, {D[2 * k + 1]}")
        A(f"s_mov_b64 exec, {sC}")
        A(f"global_store_dwordx4 {vRo}, {HN[0:4]}, s[30:31] sc1", tag="rowst")
        A(f"global_store_dwordx4 {vRo}, {HN[4:8]}, s[30:31] offset:512 sc1", tag="rowst")
        A(f"global_store_dwordx4 {vRo}, {HB[0:4]}, s[30:31] offset:1024 sc1", tag="rowst")
        A(f"global_store_dwordx4 {vRo}, {HB[4:8]}, s[30:31] offset:1536 sc1", tag="rowst")
        A("s_mov_b64 exec, -1")
        self.stamp("hn", A)
        self.O = O = Multi([get(4) for _ in range(2)])
        for k in range(8):
            A(f"v_dot2_f32_bf16 {D[2 * k]}, {HN[k]}, {self.sLo}, {H32[2 * k]}")
            A(f"v_dot2_f32_bf16 {D[2 * k + 1]}, {HN[k]}, {self.sHi}, {H32[2 * k + 1]}")
        for k in range(8):
            A(f"v_cvt_pk_bf16_f32 {O[k]}, {D[2 * k]}, {D[2 * k + 1]}")
        self.stamp("outc", A)
        V.put(*H32.groups, NM, RS, vS3o, vRo)

    def out_stores(self, C):
        pol = self.o["out_pol"]
        C(f"global_store_dwordx4 {self.vRow}, {self.O[0:4]}, s[28:29] {pol}", tag="out")
        C(f"global_store_dwordx4 {self.vRow}, {self.O[4:8]}, s[28:29] offset:512 {pol}", tag="out")

    def resolve(self, A, sfx, between=None):
        t0, t1, t2 = self.t
        T, kin = self.T, self.kin

        def s3_loads(C):
            C(f"global_load_dword {kin}, {self.vS3i}, s[30:31] sc1")
        s3_loads(A)
        if between:
            between()
        A(f"v_lshrrev_b32 {t1}, 4, v0\nv_and_b32 {t1}, 12, {t1}\nv_mov_b32 {t2}, 0")
        self.poll(A, "s3" + sfx, s3_loads, self.poison_check([kin], t0))
        self.stamp("s3p", A)
        self.allreduce(A, "v_max_u32", [kin], 64)
        self.stamp("s3w", A)
        A(f"s_mov_b64 exec, 1\nds_write_b32 {t1}, {kin} offset:{L_KEY2}\ns_mov_b64 exec, -1")
        A.barrier()
        A(f"ds_read_b128 {T[0:4]}, {t2} offset:{L_KEY2}")
        A(f"v_max3_u32 {kin}, {T[0]}, {T[1]}, {T[2]}\nv_max_u32 {kin}, {kin}, {T[3]}")
        A(f"v_readfirstlane_b32 {self.sK}, {kin}")
        A(f"s_and_b32 {self.sT}, {self.sK}, 0x7ff\ns_sub_u32 {self.sT}, 2047, {self.sT}")
        self.stamp("s3", A)
        A(f"s_lshr_b32 s3, {self.sT}, 3\ns_lshl_b32 s3, s3, 11\ns_add_u32 s3, s3, {WS_ROWS}")

    def finish(self, A, sfx):
        A.flush()
        A.label(f"L_fin_{sfx}")
        if self.o["stamps"]:
            A.wait(vm=0)
            self.stamp("end", A)
            if self.o["clk"]:
                A("s_memtime s[96:97]")
                A.wait(lg=0)
                A("s_sub_u32 s100, s96, s100\ns_mov_b32 s101, 0")
            A("s_waitcnt vmcnt(0) lgkmcnt(0)")
            self.dump_stamps(A)
        A("s_endpgm")

    def tail0(self, A):
        V = self.V
        get = V.get
        vL, vI, vG, sL, sW, sC = self.vL, self.vI, self.vG, self.sL, self.sW, self.sC
        t0, t1, t2 = self.t
        T, D = self.T, self.D
        vTr, vRed, vXs, vPub, vRd = get(), get(), get(), get(), get()
        WT = [self.AC.get(4, 4) for _ in range(8)]
        plan = [] if self.o["dma_ack2"] or self.o["dma0_ack2"] or self.o["dma_s2"] else self.dma_plan(A, 0)
        if self.o["dma_at"] == "none":
            plan = []

        def dma():
            for a, b in plan:
                A(a)
                A(b, tag="dma")
        if not self.o["r0_late"]:
            dma()
        A(f"""
        v_and_b32 {t0}, 3, {vI}
        v_lshlrev_b32 {t0}, 3, {t0}
        v_lshrrev_b32 {t1}, 2, {vI}
        v_lshl_add_u32 {t1}, {vG}, 3, {t1}
        v_lshl_add_u32 {t0}, {t1}, 6, {t0}
        v_add_u32 {vTr}, {self.sWb}, {t0}
        """)

        def tr_reads():
            A.wait_tag("dma")
            for ct in range(2):
                for m in range(4):
                    for e2 in range(2):
                        A(f"ds_read_b64_tr_b16 {WT[4 * ct + m][2 * e2:2 * e2 + 2]}, {vTr} offset:{(32 * m + 4 * e2) * 64 + 32 * ct}")
        A(f"""
        s_lshl_b32 s3, {sW}, 2
        v_lshl_add_u32 {vRed}, {vI}, 4, s3
        v_and_b32 {t0}, 3, {vI}
        v_lshlrev_b32 {t0}, 6, {t0}
        v_lshl_add_u32 {t0}, {vG}, 4, {t0}
        s_lshl_b32 s3, {sW}, 8
        v_add_u32 {vXs}, s3, {t0}
        v_and_b32 {t0}, 31, {vL}
        v_lshlrev_b32 {vRd}, 4, {t0}
        v_lshrrev_b32 {t1}, 5, {vL}
        v_lshlrev_b32 {t1}, 13, {t1}
        v_lshl_add_u32 {t1}, {t0}, 1, {t1}
        s_lshl_b32 s3, {sW}, 14
        s_lshl_b32 s16, {self.sUp}, 12
        s_add_u32 s3, s3, s16
        s_lshl_b32 s16, {self.sBlk}, 6
        s_add_u32 s3, s3, s16
        s_add_u32 s3, s3, {WS_S4}
        v_add_u32 {vPub}, s3, {t1}
        """)
        A.wait_tag("s3st")
        self.stamp("ack3", A)

        late_out = self.o["r0_late"] == 2

        def between():
            if self.o["r0_late"]:
                dma()
            if not late_out:
                A(f"s_andn2_b64 exec, -1, {sC}")
                self.out_stores(A)
                A("s_mov_b64 exec, -1")
            if not self.o["r0_late"]:
                tr_reads()
        self.resolve(A, "r0", between)
        XS = get(4)
        A(f"v_add_u32 {vXs}, s3, {vXs}")

        def row_loads(C):
            C(f"global_load_dwordx4 {XS}, {vXs}, s[30:31] sc1")
        row_loads(A)
        if late_out:
            A(f"v_cmp_ne_u32 {sC}, {self.kin}, {self.key}")
        else:
            A(f"v_cmp_ne_u32 vcc, {self.kin}, {self.kmax}\ns_and_b64 exec, vcc, {sC}")
            self.out_stores(A)
            A("s_mov_b64 exec, -1")
        if getattr(self, "late_barrier", False):
            A("s_barrier")
            self.late_barrier = False
        if self.o["r0_late"]:
            tr_reads()
        self.poll(A, "rowr0", row_loads, self.poison_check([XS[k] for k in range(4)], t0))
        self.stamp("row", A)
        for k in range(8):
            A(f"v_mfma_f32_16x16x32_bf16 {D[4 * k:4 * k + 4]}, {XS}, {WT[k]}, 0")
        A(f"s_cmp_eq_u32 {self.sUp}, 0\ns_cselect_b64 s[16:17], -1, 0")
        A(f"""
        v_add_f32 {t0}, {D[0]}, {D[5]}
        v_add_f32 {t1}, {D[10]}, {D[15]}
        v_add_f32 {t0}, {t0}, {t1}
        v_add_f32 {t1}, {D[16]}, {D[21]}
        v_add_f32 {t2}, {D[26]}, {D[31]}
        v_add_f32 {t1}, {t1}, {t2}
        s_mov_b64 exec, 0xffff
        ds_write_b32 {vRed}, {t0} offset:{L_RED}
        ds_write_b32 {vRed}, {t1} offset:{L_RED + 256}
        s_mov_b64 exec, -1
        """)
        self.stamp("g1m", A)
        A.barrier()
        self.stamp("g1b", A)
        A(f"ds_read_b128 {T[0:4]}, {vRd} offset:{L_RED}")
        A(f"v_pk_add_f32 {T[0:2]}, {T[0:2]}, {T[2:4]}\nv_add_f32 {T[0]}, {T[0]}, {T[1]}")
        self.rnd(A, T[0], T[0])
        A(f"v_mul_f32 {t0}, {LOG2E | 0x80000000}, {T[0]}\nv_exp_f32 {t0}, {t0}\nv_add_f32 {t0}, 1.0, {t0}")
        A(f"v_rcp_f32 {t0}, {t0}\nv_mul_f32 {t0}, {T[0]}, {t0}")
        A(f"v_cndmask_b32 {t0}, {T[0]}, {t0}, s[16:17]")
        A(f"v_mov_b32_dpp {t1}, {t0} row_shl:1 row_mask:0xf bank_mask:0xf")
        A(f"v_cvt_pk_bf16_f32 {XS[0]}, {t0}, {t1}")
        for k in range(1, 4):
            A(f"v_mov_b32_dpp {XS[k]}, {XS[0]} row_shl:{2 * k} row_mask:0xf bank_mask:0xf")
        A("s_mov_b32 exec_lo, 0x01010101\ns_mov_b32 exec_hi, 0x01010101")
        A(f"global_store_dwordx4 {vPub}, {XS}, s[30:31] sc1")
        self.stamp("g1", A)
        if late_out:
            if self.o.get("r0_ackout"):
                A.wait(vm=0)
            A(f"s_mov_b64 exec, {sC}")
            self.out_stores(A)
        self.finish(A, "r0")

    def tail2(self, A):
        if self.o.get("r2_mode") == 2:
            A.wait_tag("s3st")
            A(f"s_andn2_b64 exec, -1, {self.sC}")
            self.out_stores(A)
            A("s_mov_b64 exec, -1")
            A.wait(vm=0)
            self.resolve(A, "r2")
            A(f"v_cmp_ne_u32 vcc, {self.kin}, {self.kmax}\ns_and_b64 exec, vcc, {self.sC}")
            self.out_stores(A)
            self.finish(A, "r2")
            return
        A.wait_tag("rowst" if self.o.get("r2_mode") == 1 else "s3st")
        self.stamp("ack3", A)

        def between():
            A(f"s_andn2_b64 exec, -1, {self.sC}")
            self.out_stores(A)
            A("s_mov_b64 exec, -1")
        if self.o["r2_late"]:
            self.resolve(A, "r2")
            A(f"v_cmp_ne_u32 vcc, {self.kin}, {self.key}\ns_mov_b64 exec, vcc")
        else:
            self.resolve(A, "r2", between)
            A(f"v_cmp_ne_u32 vcc, {self.kin}, {self.kmax}\ns_and_b64 exec, vcc, {self.sC}")
        self.out_stores(A)
        self.finish(A, "r2")

    def tail1(self, A):
        V = self.V
        get = V.get
        vL, vI, vG, sL, sW, sC = self.vL, self.vI, self.vG, self.sL, self.sW, self.sC
        t0, t1, t2 = self.t
        T, D = self.T, self.D
        plan = self.plan1 if self.o["dma_ack2"] or self.o["dma_s2"] else self.dma_plan(A, 1)
        if self.o["dma_at"] == "none":
            plan = []
        n1 = self.o["r1_split"]
        for a, b in plan[:n1]:
            A(a)
            A(b, tag="dma")
        A.wait_tag("s3st")
        self.stamp("ack3", A)

        def between():
            for a, b in plan[n1:]:
                A(a)
                A(b, tag="dma")
        self.resolve(A, "r1", between)
        vTr, vRed, vSig, vOut, vS4i = get(), get(), get(), get(), get()
        HH = get(2)
        A(f"""
        s_lshl_b32 s16, {self.sBlk}, 5
        s_add_u32 s3, s3, s16
        v_lshrrev_b32 {t1}, 1, {vI}
        v_lshl_add_u32 {t1}, {t1}, 2, s3
        """)

        def row_loads(C):
            C(f"global_load_dword {HH[0]}, {t1}, s[30:31] sc1")
            C(f"global_load_dword {HH[1]}, {t1}, s[30:31] offset:1024 sc1")
        row_loads(A)

        if getattr(self, "late_barrier", False):
            A("s_barrier")
            self.late_barrier = False

        def own_rows():
            A(f"v_cmp_eq_u32 vcc, {self.kin}, {self.key}\ns_andn2_b64 exec, -1, vcc")
            self.out_stores(A)
            A("s_mov_b64 exec, -1")
        if self.o["r1_out"] == "row":
            own_rows()
        A(f"""
        v_and_b32 {t0}, 3, {vI}
        v_lshlrev_b32 {t0}, 3, {t0}
        v_lshrrev_b32 {t2}, 2, {vI}
        v_lshl_add_u32 {t2}, {vG}, 3, {t2}
        v_lshl_add_u32 {t0}, {t2}, 5, {t0}
        v_add_u32 {vTr}, {self.sWb}, {t0}
        """)
        self.poll(A, "rowr1", row_loads, self.poison_check([HH[0], HH[1]], t0))
        self.stamp("row", A)
        WT = [self.AC.get(4, 4) for _ in range(14)]
        A.wait_tag("dma")
        if self.o["r1_out"] == "tr":
            own_rows()
        self.stamp("r1o", A)
        for m in range(14):
            for e2 in range(2):
                A(f"ds_read_b64_tr_b16 {WT[m][2 * e2:2 * e2 + 2]}, {vTr} offset:{(32 * m + 4 * e2) * 32}")
        self.stamp("r1t", A)
        sK, sT = self.sK, self.sT
        A(f"""
        s_and_b32 s16, {sK}, 0x7fff0000
        s_andn2_b32 s17, 0xffff0000, {sK}
        s_bitcmp1_b32 {sK}, 31
        s_cselect_b32 s16, s16, s17
        v_mov_b32 {t0}, s16
        v_mul_f32 {t0}, {LOG2E | 0x80000000}, {t0}
        v_exp_f32 {t0}, {t0}
        v_add_f32 {t0}, 1.0, {t0}
        v_rcp_f32 {t0}, {t0}
        """)
        self.rnd(A, vSig, t0)
        vS4u = get()
        A(f"""
        v_and_b32 {t0}, 1, {vI}
        v_xor_b32 {t0}, 1, {t0}
        v_lshlrev_b32 {t0}, 4, {t0}
        v_lshlrev_b32 {HH[0]}, {t0}, {HH[0]}
        v_lshlrev_b32 {HH[1]}, {t0}, {HH[1]}
        v_and_b32 {HH[0]}, 0xffff0000, {HH[0]}
        v_and_b32 {HH[1]}, 0xffff0000, {HH[1]}
        s_lshl_b32 s3, {sT}, 10
        s_lshl_b32 s16, {self.sBlk}, 5
        s_add_u32 s3, s3, s16
        v_lshl_add_u32 {vOut}, {vI}, 1, s3
        s_lshr_b32 s3, {sL}, 5
        s_lshl_b32 s3, s3, 13
        s_mul_i32 s16, {sW}, {56 * 16}
        s_add_u32 s3, s3, s16
        s_add_u32 s3, s3, {WS_S4}
        v_min_u32 {t0}, 13, {vI}
        v_lshl_add_u32 {t0}, {t0}, 2, {vG}
        v_lshl_add_u32 {vS4i}, {t0}, 4, s3
        v_add_u32 {vS4u}, 0x1000, {vS4i}
        s_lshl_b32 s3, {sW}, 2
        v_lshl_add_u32 {vRed}, {vI}, 4, s3
        v_mov_b32 {t2}, 0
        v_lshlrev_b32 {t1}, 4, {vI}
        """)
        if self.o["r1_out"] == "late":
            own_rows()
        A.wait(vm=0)
        self.stamp("r1a", A)
        GU, XS = Multi([get(4) for _ in range(2)]), get(4)

        def s4_loads(C):
            C(f"global_load_dwordx4 {GU[0:4]}, {vS4i}, s[30:31] sc1")
            C(f"global_load_dwordx4 {GU[4:8]}, {vS4u}, s[30:31] sc1")
        s4_loads(A)
        self.poll(A, "s4", s4_loads, self.poison_check([GU[k] for k in range(8)], t0))
        self.stamp("g1", A)
        for k in range(4):
            A(f"v_and_b32 {T[2 * k]}, 0xffff, {GU[k]}\nv_and_b32 {T[2 * k + 1]}, 0xffff0000, {GU[k]}")
        for k in range(8):
            A(f"v_dot2_f32_bf16 {T[k]}, {T[k]}, {GU[4 + k // 2]}, 0")
        for k in range(4):
            A(f"v_cvt_pk_bf16_f32 {XS[k]}, {T[2 * k]}, {T[2 * k + 1]}")
        DD = [D[4 * k:4 * k + 4] for k in range(8)]
        acc = [t2, get()]
        A(f"v_mov_b32 {acc[1]}, 0")
        for m in range(14 + 4):
            if m < 14:
                A(f"v_mfma_f32_16x16x32_bf16 {DD[m % 8]}, {XS}, {WT[m]}, 0")
            k = m - 4
            if k >= 0:
                a = acc[k % 2]
                A(f"v_add_f32_dpp {a}, {DD[k % 8][k % 4]}, {a} quad_perm:[0,1,2,3] row_mask:{1 << (k // 4)} bank_mask:0xf")
        A(f"v_add_f32 {t2}, {t2}, {acc[1]}")
        for sw in ("v_permlane16_swap_b32", "v_permlane32_swap_b32"):
            A(f"v_mov_b32 {t0}, {t2}\n{sw} {t2}, {t0}\nv_add_f32 {t2}, {t2}, {t0}")
        A(f"s_mov_b64 exec, 0xffff\nds_write_b32 {vRed}, {t2} offset:{L_RED}\ns_mov_b64 exec, -1")
        self.stamp("g2m", A)
        if self.o["r1_out"] == "end":
            own_rows()
        A.barrier()
        A(f"s_cmp_eq_u32 {sW}, 0\ns_cbranch_scc0 L_fin_r1")
        A(f"ds_read_b128 {T[0:4]}, {t1} offset:{L_RED}")
        A(f"v_pk_add_f32 {T[0:2]}, {T[0:2]}, {T[2:4]}\nv_add_f32 {t0}, {T[0]}, {T[1]}")
        self.rnd(A, t0, t0)
        A(f"v_mul_f32 {t0}, {t0}, {vSig}")
        self.rnd(A, t0, t0)
        A(f"v_add_f32 {t0}, {t0}, {HH[0]}")
        self.rnd(A, t0, t0)
        A(f"v_add_f32 {t0}, {t0}, {HH[1]}")
        self.rnd(A, t0, t0)
        A("s_mov_b64 exec, 0xffff")
        A(f"global_store_short_d16_hi {vOut}, {t0}, s[28:29] {self.o['fin_pol']}")
        self.stamp("g2", A)
        A(f"s_cmp_eq_u32 {self.sBlk}, 0\ns_cbranch_scc0 L_fin_r1")
        A("s_mov_b64 exec, 1")
        A(f"v_mov_b32 {t0}, {self.sE}\nv_mov_b32 {t2}, 0")
        A(f"global_store_dword {t2}, {t0}, s[30:31] offset:{WS_EPOCH} {self.o['fin_pol']}")
        self.finish(A, "r1")

    def build(self):
        A = self.A
        self.prologue()
        self.ksl = self.ksetup_lines()
        self.ksteps = self.kgen_steps()
        self.weave(self.o["wv"][0])
        for _ in range(self.o["kpre"]):
            next(self.ksteps)
        if self.o["poison_at"] == "kpre":
            self.poison2()
        self.ln1()
        self.kgen()
        self.sWb, self.sC, self.sK, self.sT = self.S.get(), self.S.get(2), self.S.get(), self.S.get()
        self.conv_all()
        self.phase_c()
        self.kin = self.V.get()
        A(f"s_cmp_eq_u32 {self.sRole}, 1\ns_cbranch_scc1 L_role1")
        B = A.fork()
        B.label("L_role1")
        A(f"s_cmp_eq_u32 {self.sRole}, 2\ns_cbranch_scc1 L_role2")
        C = A.fork()
        C.label("L_role2")
        vfree, afree = set(self.V.free), set(self.AC.free)
        self.tail0(A)
        self.V.free, self.AC.free = set(vfree), set(afree)
        self.tail1(B)
        self.V.free, self.AC.free = set(vfree), set(afree)
        self.tail2(C)
        B.lines += C.lines
        B.count += C.count
        body = A.text() + B.text() + "".join(c.text() for c in self.cold)
        nv = self.V.top + 1
        accum = (nv + 3) // 4 * 4
        total = max(accum + self.AC.top + 1, 264)
        head = open(f"cdna_kernels/{NAME}.s.ref").read().split("; Override launch geometry")[0]
        self.stats = dict(instr=A.count + B.count, nops=A.nops + B.nops, vgpr=nv, agpr=self.AC.top + 1, mfma=self.nmfma, bg_left=self.bg_left)
        tab = ""
        if self.o["band_tab"]:
            tab = f".p2align 7\n.type L_tab,@object\nL_tab:\n{band_table()}\n.size L_tab, 4096\n"
        return head + f"""; One persistent launch: 256 workgroups, one per CU, exchanging data through d_ws.
; @launch grid=(256,1,1) block=(256,1,1) lds={LDS_BYTES}
.amdgcn_target "amdgcn-amd-amdhsa--gfx950"
.text
.globl {NAME}_kernel
.p2align 8
.type {NAME}_kernel,@function
{NAME}_kernel:
{body}L_end:
    s_endpgm
L_code_end:
{tab}L_all_end:
.section .rodata,"a"
.p2align 6
.amdhsa_kernel {NAME}_kernel
  .amdhsa_next_free_vgpr {total}
  .amdhsa_next_free_sgpr 102
  .amdhsa_accum_offset {accum}
  .amdhsa_group_segment_fixed_size 0
  .amdhsa_kernarg_size 120
  .amdhsa_user_sgpr_count 2
  .amdhsa_user_sgpr_kernarg_segment_ptr 1
  .amdhsa_system_sgpr_workgroup_id_x 1
  .amdhsa_float_denorm_mode_32 3
.end_amdhsa_kernel
"""


def generate(path, **opt):
    g = Gen(**opt)
    text = g.build()
    open(path, "w").write(text)
    return g.stats


if __name__ == "__main__":
    out = sys.argv[1] if len(sys.argv) > 1 else f"cdna_kernels/{NAME}.s"
    opts = {}
    for a in sys.argv[2:]:
        k, v = a.split("=")
        opts[k] = {"True": True, "False": False}.get(v, int(v) if v.isdigit() else v)
    print(generate(out, **opts))
```

```python
import re
import sys
from asmdsl import Asm, Pool, R
import gen_v9 as base
from gen_v9 import *

L_G = L_KEY2 + 16
VMAX = 116
EXTRA = dict(hb1=40, prio=2, hst=False, s1_go="ack", m_wait=True)


class Gen(base.Gen):
    def __init__(self, **opt):
        o = dict(EXTRA)
        o.update(opt)
        if isinstance(o.get("h_dma"), str):
            a = [int(x) for x in o["h_dma"].split("_")]
            o["h_dma"] = ((a[0], a[1]), (a[2], a[3]))
        super().__init__(**o)
        self.V = Pool("v", 1, VMAX - 1)
        self.AC = Pool("a", 0, 255 - VMAX)
        self.is_h = False

    def stamp(self, name, A=None):
        if name == self.o["b8b"] and not self.is_h:
            (A or self.A)("s_barrier")
        if name == "r1o" and self.o["b9b"]:
            (A or self.A)("s_barrier")
        if self.is_h == bool(self.o["hst"]) or name == "start":
            super().stamp(name, A)

    def entry(self):
        A, V, S = self.A, self.V, self.S
        A("s_cmp_ge_u32 s2, 0x100\ns_cbranch_scc1 L_end")
        A("s_load_dwordx16 s[4:19], s[0:1], 0\ns_load_dwordx8 s[20:27], s[0:1], 64")
        A("s_load_dwordx2 s[28:29], s[0:1], 96\ns_load_dwordx2 s[30:31], s[0:1], 112")
        self.stamp("start")
        self.sL, self.sW, self.sTag, self.sE = S.get(), S.get(), S.get(), S.get()
        self.sOnes, self.sLo, self.sHi, self.sCh = S.get(), S.get(), S.get(), S.get()
        self.sB, self.sH, self.sa, self.sb = S.get(), S.get(), S.get(), S.get()
        sL, sW = self.sL, self.sW
        self.vL, self.vI, self.vG = V.get(), V.get(), V.get()
        self.vJunk = V.get(2)
        t0, t1, t2 = V.get(), V.get(), V.get()
        self.sPc = S.get(2)
        A(f"v_lshrrev_b32 {t0}, 6, v0\ns_lshr_b32 {sL}, s2, 3\ns_getpc_b64 {self.sPc}")
        A.label("L_pc")
        A(f"""
        v_lshl_add_u32 {t2}, {sL}, 3, {t0}
        v_and_b32 {t2}, 63, {t2}
        v_and_b32 {t1}, 3, v0
        v_lshl_add_u32 {t2}, {t2}, 2, {t1}
        v_lshlrev_b32 {t2}, 7, {t2}
        v_min_u32 {t2}, L_all_end-L_pc-4, {t2}
        global_load_dword {self.vJunk[0]}, {t2}, {self.sPc}
        v_readfirstlane_b32 {self.sb}, {t0}
        s_and_b32 s3, s2, 7
        s_lshl_b32 s3, s3, 5
        s_add_u32 {sL}, {sL}, s3
        v_and_b32 v0, 0xff, v0
        v_and_b32 {self.vL}, 63, v0
        s_and_b32 {sW}, {self.sb}, 3
        s_lshr_b32 {self.sB}, {sW}, 1
        s_and_b32 {self.sH}, {sW}, 1
        s_cmp_ge_u32 {self.sb}, 4
        s_cbranch_scc1 L_helper
        """)
        V.put(t0, t1, t2)

    def helper(self, A):
        self.A, self.is_h = A, True
        if self.o["hprio"]:
            A(f"s_setprio {self.o['hprio']}")
        V, S = self.V, self.S
        sL, sW, sB, sH, sb, vL, vI, vG = self.sL, self.sW, self.sB, self.sH, self.sb, self.vL, self.vI, self.vG
        t0, t1, t2, t3, vP = V.get(), V.get(), V.get(), V.get(), V.get()
        self.PAR, self.sDt = V.get(4), S.get()
        A(f"""
        s_lshr_b32 s3, {sL}, 6
        s_lshl_b32 {self.sCh}, s3, 7
        s_and_b32 s3, {sL}, 31
        s_lshl_b32 s3, s3, 2
        s_add_u32 {self.sCh}, {self.sCh}, s3
        s_bfe_u32 s3, {sL}, 0x10005
        s_add_u32 {self.sCh}, {self.sCh}, s3
        s_and_b32 s3, {sW}, 2
        s_add_u32 {self.sCh}, {self.sCh}, s3
        s_lshl_b32 s3, {self.sCh}, 8
        v_lshl_add_u32 {vP}, {vL}, 2, s3
        s_lshl_b32 s3, {self.sCh}, 1
        s_and_b32 s3, s3, -4
        """)
        for k in range(4):
            A(f"global_load_dword {self.PAR[k]}, {vP}, s[{6 + 2 * k}:{7 + 2 * k}]")
        self.vDt = V.get()
        A(f"v_mov_b32 {self.vDt}, s3\nglobal_load_dword {self.vDt}, {self.vDt}, s[14:15]")
        self.stamp("karg")
        A.raw(";@cut")
        Z = V.get(4)
        self.vShift, self.vShiftR = V.get(), V.get()
        A(f"v_and_b32 {vI}, 15, v0\nv_bfe_u32 {vG}, v0, 4, 2")
        for k in range(4):
            A(f"v_mov_b32 {Z[k]}, 0")
        A(f"""
        v_lshlrev_b32 {t2}, 4, v0
        v_lshlrev_b32 {t3}, 2, {vL}
        v_and_b32 {t1}, 127, v0
        s_mul_i32 s3, {sB}, {UCH}
        s_add_u32 {sb}, s3, {L_U}
        v_lshl_add_u32 {t0}, {t1}, 2, {sb}
        ds_write_b128 {t2}, {Z} offset:{L_P}
        ds_write_b128 {t2}, {Z} offset:{L_P + 4096}
        ds_write_b128 {t2}, {Z} offset:{L_P + 8192}
        ds_write_b128 {t2}, {Z} offset:{L_P + 12288}
        ds_write_b32 {t3}, {Z[0]} offset:{L_P + 16384}
        ds_write_b32 {t0}, {Z[0]}
        s_mul_i32 s3, {sB}, {2 * PHALF}
        v_lshl_add_u32 {self.vShiftR}, {t1}, 4, s3
        s_mul_i32 s3, {sB}, {KCH}
        v_lshl_add_u32 {self.vShift}, {t1}, 4, s3
        """)
        self.sStM = S.get()
        self.vR, self.vS0, self.vS1r = V.get(), V.get(), V.get()
        self.vK1, self.vK3, self.vKs = V.get(), V.get(), V.get()

        def pa(m):
            return ((m >> 2) & 1) * PPLANE + (m >> 3) * 16 + (m & 3) * 4
        A(f"""
        s_mul_i32 s3, {sB}, {STAGE_CH}
        s_lshl_b32 {sb}, {sH}, 8
        s_add_u32 s3, s3, {sb}
        s_add_u32 {self.sStM}, s3, {L_STAGE - 0x8000}
        s_add_u32 s3, s3, {L_STAGE}
        v_lshl_add_u32 {t2}, {vG}, 4, s3
        v_xor_b32 {t0}, 3, {vI}
        v_bfe_u32 {t1}, {t0}, 1, 1
        v_add_u32 {t1}, {t0}, {t1}
        v_lshrrev_b32 {t1}, 1, {t1}
        s_movk_i32 s3, {ROWB}
        v_mad_u32_u24 {self.vR}, {vI}, s3, {t2}
        v_mad_u32_u24 {self.vS0}, {t0}, s3, {t2}
        v_mad_u32_u24 {self.vS1r}, {t1}, s3, {t2}
        s_mul_i32 s3, {sW}, {PHALF}
        s_add_u32 s3, s3, {L_P}
        v_xor_b32 {t3}, 3, {vG}
        v_and_b32 {t0}, 1, {t3}
        v_mul_u32_u24 {t0}, {PPLANE}, {t0}
        v_lshrrev_b32 {t3}, 1, {t3}
        v_lshl_add_u32 {t3}, {t3}, 4, {t0}
        v_add_u32 {t3}, s3, {t3}
        v_lshlrev_b32 {t0}, 5, {vI}
        v_sub_u32 {t0}, {t3}, {t0}
        v_add_u32 {self.vK1}, {pa(528 - 256)}, {t0}
        v_lshrrev_b32 {t1}, 1, {vI}
        v_lshrrev_b32 {t2}, 2, {vI}
        v_add_u32 {t2}, 2, {t2}
        v_min_u32 {t1}, {t1}, {t2}
        v_add3_u32 {t1}, {t1}, {vI}, {FAR // 16 + 1}
        v_lshl_add_u32 {self.vK3}, {t1}, 5, {t3}
        v_cmp_gt_u32 vcc, 8, {vI}
        v_mov_b32 {t0}, {pa(28)}
        v_mov_b32 {t1}, {pa(NX + 24)}
        v_cndmask_b32 {t0}, {t0}, {t1}, vcc
        v_add_u32 {self.vKs}, s3, {t0}
        s_lshl_b32 s3, {sB}, 2
        v_mov_b32 {t2}, s3
        """)
        hp = self.o["poison_at"] in ("h", "h1")
        self.hw = self.o["h_warm"]
        if hp or self.hw:
            self.helper_prep(A, hp)
        self.stamp("consts")
        V.put(Z, vP, t0, t1, t3)
        self.ksl = [f"v_readfirstlane_b32 {self.sDt}, {self.vDt}"] + self.ksetup_lines()
        if self.o["b0"]:
            A.barrier()
            self.weave(self.o["hb1"])
        else:
            self.weave(self.o["hb1"])
            self.stamp("stat")
            A.barrier()
        self.stamp("b1")
        if self.o["poison_at"] == "h1":
            self.helper_mark(A)
        self.helper_hook("b1")
        if hp:
            A(f"s_load_dword {self.sE}, s[30:31], {WS_EPOCH}")
        self.weave(1000)
        A(f"ds_write_b32 {t2}, {self.vG16} offset:{L_G}")
        for _ in self.kgen_steps():
            pass
        self.stamp("kmf")
        self.helper_hook("b3")
        D, E = V.get(12), V.get(12)
        C = [V.get(4) for _ in range(4)]
        for k in range(3):
            off = L_P + (k & 1) * PPLANE + (k >> 1) * 16
            A(f"ds_read_b128 {D[4 * k:4 * k + 4]}, {self.vShiftR} offset:{off}")
            A(f"ds_read_b128 {E[4 * k:4 * k + 4]}, {self.vShiftR} offset:{off + PHALF}")
        for k in range(6):
            A(f"v_pk_add_f32 {D[2 * k:2 * k + 2]}, {D[2 * k:2 * k + 2]}, {E[2 * k:2 * k + 2]}")
        for c in range(4):
            for k in range(4):
                A(f"v_cvt_pk_f16_f32 {C[c][k]}, {D[c + 2 * k]}, {D[c + 2 * k + 1]}")
            if c % 2:
                for cc in (c - 1, c):
                    A(f"ds_write_b128 {self.vShift}, {C[cc]} offset:{L_K + cc * KCOPY}")
        self.stamp("shift")
        A.barrier()
        if self.o["hprio"]:
            A("s_setprio 0")
        self.helper_hook("b5")
        if self.o["poison_at"] == "h":
            self.helper_mark(A)
            self.helper_flag(A)
            A("s_barrier")
        if self.o["h_dma"]:
            self.helper_dma(A)
        if self.o["stamps"] and self.o["hst"]:
            self.stamp("end")
            A("s_waitcnt vmcnt(0) lgkmcnt(0)")
            self.dump_stamps(A)
        A("s_endpgm")
        self.is_h = False

    def helper_prep(self, A, hp):
        V, sL, sW, sb, vL = self.V, self.sL, self.sW, self.sb, self.vL
        self.vP2, self.M1, self.vFo = V.get(), V.get(4), V.get()
        self.vHr = self.vS1i = vL
        bg = self.background()
        V.put(self.vS2o, self.vS2o2, self.vS2i, self.vS2i2, self.vZr)
        if hp:
            A(f"""
            s_lshl_b32 {self.sa}, {sL}, 13
            s_lshl_b32 s3, {sW}, 11
            s_add_u32 s3, s3, {self.sa}
            s_add_u32 s3, s3, {WS_S2}
            v_lshl_add_u32 {self.vP2}, {vL}, 4, s3
            s_lshl_b32 s3, {sW}, 12
            s_lshl_b32 {sb}, {sL}, 4
            s_add_u32 s3, s3, {sb}
            s_add_u32 s3, s3, {WS_FLG}
            v_mov_b32 {self.vFo}, s3
            """)
            for k in range(4):
                A(f"v_mov_b32 {self.M1[k]}, -1")
            for ln in self.p3_lines[:-1]:
                A(ln)
        n = self.nwarm - (self.o["dma_at"] != "none")
        self.h_warm_line = bg[n:self.nwarm]
        if self.hw:
            for ln in bg[:n]:
                A(ln)

    def helper_mark(self, A):
        self.poison2()
        A("\n".join(self.p3_lines[-1]), tag="poison")

    def helper_flag(self, A):
        A(f"s_add_u32 {self.sE}, {self.sE}, 1\nv_mov_b32 {self.M1[0]}, {self.sE}")
        A.wait_tag("poison")
        A(f"s_mov_b64 exec, 1\nglobal_store_dword {self.vFo}, {self.M1[0]}, s[30:31] sc1\ns_mov_b64 exec, -1")

    def helper_hook(self, where):
        if self.o["poison_at"] == "h1" and where == self.o["flag_at"]:
            self.helper_flag(self.A)
        if where == self.hw:
            for ln in self.h_warm_line:
                self.A(ln)

    def helper_dma(self, A):
        S, sL, sb = self.S, self.sL, self.sb
        self.sBlk, self.sRole, self.sUp, self.sWb = S.get(), S.get(), S.get(), S.get()
        A(f"""
        s_lshr_b32 s3, {sL}, 5
        s_and_b32 {sb}, {sL}, 31
        s_cmp_ge_u32 {sb}, {self.o["r1_at"]}
        s_cbranch_scc1 L_h_role1
        s_cmp_ge_u32 {sb}, {14 if self.o["h_roles"] == "both" else 0}
        s_cbranch_scc1 L_h_done
        s_cmp_ge_u32 {sb}, 7
        s_cselect_b32 {self.sUp}, 1, 0
        s_cselect_b32 s6, 7, 0
        s_sub_u32 s6, {sb}, s6
        s_mul_i32 {self.sBlk}, s3, 7
        s_add_u32 {self.sBlk}, {self.sBlk}, s6
        """)
        for role in (0, 1):
            if role:
                A.label("L_h_role1")
                A(f"s_lshl_b32 s3, s3, 2\ns_sub_u32 s6, {sb}, {self.o['r1_at']}\ns_add_u32 {self.sBlk}, s3, s6")
            plan = self.dma_plan(A, role)
            self.V.put(self.vWa)
            if self.o["dma_at"] == "none":
                plan = []
            cuts = self.o["h_dma"][role]
            if self.o["h_conv"]:
                A("s_waitcnt vmcnt(0)")
                n = self.o["h_conv"] if role else len(plan)
                for a, b in plan[:n]:
                    A(a)
                    A(b)
                plan = plan[n:]
            nb = 4 if self.o["b8b"] else 3
            for k in range(nb):
                A("s_barrier")
                n = (cuts[k] if k < 2 else 0) if k < nb - 1 else len(plan)
                for a, b in plan[:n]:
                    A(a)
                    A(b)
                plan = plan[n:]
            if role == 1 and self.o["b9b"]:
                A("s_barrier")
            A("s_waitcnt vmcnt(0)")
            A.vm = []
            A("s_barrier")
            if role == 0:
                A("s_branch L_h_done")
        A.label("L_h_done")

    def dma_plan(self, A, role):
        plan = super().dma_plan(A, role)
        mine = self.o["h_dma"] and (role == 1 or self.o["h_roles"] == "both")
        return [] if mine and not self.is_h else plan

    def maybe_s1(self, where):
        if where == self.o["s1_go"]:
            self.A("s_barrier")
        self.helper_hook(where)

    def dump_stamps(self, A):
        if self.is_h == bool(self.o["hst"]):
            super().dump_stamps(A)

    def prologue_m(self):
        A, V, S = self.A, self.V, self.S
        sL, sW, sa, vL = self.sL, self.sW, self.sa, self.vL
        t1 = V.get()
        self.vTau, self.vHr, self.vRow = V.get(), V.get(), V.get()
        self.XB, self.XA = V.get(8), V.get(8)
        if self.o["prio"]:
            A(f"s_setprio {self.o['prio']}")
        A(f"""
        v_lshrrev_b32 {self.vTau}, 5, v0
        v_and_b32 {t1}, 31, v0
        v_lshlrev_b32 {t1}, 4, {t1}
        v_lshl_add_u32 {self.vHr}, {self.vTau}, 10, {t1}
        s_lshl_b32 {sa}, {sL}, 13
        v_add_u32 {self.vRow}, {sa}, {self.vHr}
        """)
        A(f"global_load_dwordx4 {self.XB[0:4]}, {self.vRow}, s[4:5]")
        A(f"global_load_dwordx4 {self.XB[4:8]}, {self.vRow}, s[4:5] offset:512")
        if self.o["b0"]:
            self.vE = V.get()
            A(f"v_mov_b32 {self.vE}, 0\nglobal_load_dword {self.vE}, {self.vE}, s[30:31] offset:{WS_EPOCH}")
        else:
            A(f"s_load_dword {self.sE}, s[30:31], {WS_EPOCH}")
        self.stamp("karg")
        A.raw(";@cut")
        self.vS1o, self.vP2, self.vMask, self.vHw2, self.M1 = V.get(), V.get(), V.get(), V.get(), V.get(4)
        A(f"""
        s_lshl_b32 s3, {sW}, 11
        s_add_u32 s3, s3, {sa}
        s_add_u32 s3, s3, {WS_S1}
        v_lshl_add_u32 {self.vS1o}, {vL}, 4, s3
        v_add_u32 {self.vP2}, {WS_S2 - WS_S1}, {self.vS1o}
        s_mov_b32 s3, {L_H}
        v_lshl_add_u32 {self.vHw2}, v0, 2, s3
        v_mov_b32 {self.vMask}, {0xFFFFFFFF ^ TAGMASK}
        s_mov_b32 {self.sOnes}, 0x3f803f80
        s_mov_b32 {self.sLo}, 0x3f80
        s_mov_b32 {self.sHi}, 0x3f800000
        v_and_b32 {self.vI}, 15, v0
        v_bfe_u32 {self.vG}, v0, 4, 2
        """)
        for k in range(4):
            A(f"v_mov_b32 {self.M1[k]}, -1")
        V.put(t1)
        self.conv_consts()
        if self.o["poison_at"] == "consts":
            self.poison2()
        if self.o["b0"]:
            t = V.get()
            A(f"v_lshlrev_b32 {t}, 2, {self.vTau}\nds_write_b32 {t}, {self.M1[0]} offset:{L_ST + 32}")
            A("s_waitcnt lgkmcnt(0)")
            A.lg, A.sm = [], []
            A("s_barrier")
            V.put(t)
        self.stamp("consts")
        self.ksl = []

    def conv_consts(self):
        A, V = self.A, self.V
        vI, vG, sB, sL, sb = self.vI, self.vG, self.sB, self.sL, self.sb
        t0, t1, t2, t3 = V.get(), V.get(), V.get(), V.get()
        self.BAND = {key: V.get(4) for key in BANDS}
        SEL = V.get(6)
        A(f"""
        v_lshlrev_b32 {t0}, 3, {vG}
        v_sub_u32 {t0}, {t0}, {vI}
        v_add_u32 {t0}, 20, {t0}
        v_mul_u32_u24 {t0}, 0x10001, {t0}
        v_mov_b32 {t3}, 0x70007
        s_mov_b32 {sb}, 0xc000c
        """)
        for k in range(6):
            c0, c1 = 32 - 2 * k, 31 - 2 * k
            A(f"""
            s_mov_b32 s3, {c0 | c1 << 16}
            v_pk_sub_i16 {t1}, {t0}, s3
            v_pk_sub_i16 {t2}, s3, {t0}
            v_pk_max_i16 {t1}, {t1}, {t2}
            v_pk_min_i16 {t1}, {t1}, {t3}
            v_lshl_or_b32 {SEL[k]}, {t1}, 8, {sb}
            """)
        for (delta, h), B in self.BAND.items():
            lut = sum(0x3C << (8 * i) for i in range(min(h + 1, 4)))
            A(f"s_mov_b32 s3, {lut}")
            for d in range(4):
                A(f"v_perm_b32 {B[d]}, {60 if h == 4 else 0}, s3, {SEL[d + (0 if delta == 12 else 2)]}")
        self.vUf, self.vZw, self.vUw, self.vN, self.vF = V.get(), V.get(), V.get(), V.get(), V.get()
        self.vS1i, self.vS1i2 = V.get(), V.get()
        A(f"""
        s_mul_i32 s3, {sB}, {UCH}
        s_add_u32 {sb}, s3, {L_U}
        v_lshl_add_u32 {t0}, {vI}, 5, {sb}
        v_lshl_add_u32 {self.vUf}, {vG}, 4, {t0}
        s_mul_i32 s3, {sB}, {KCH}
        v_sub_u32 {t0}, 15, {vI}
        v_and_b32 {t1}, 3, {t0}
        v_and_b32 {t0}, 12, {t0}
        v_mul_u32_u24 {t1}, {KCOPY}, {t1}
        v_lshl_add_u32 {t0}, {t0}, 1, {t1}
        v_add_u32 {t0}, s3, {t0}
        v_lshl_add_u32 {self.vN}, {vG}, 4, {t0}
        v_lshl_add_u32 {self.vF}, {vG}, 3, {t0}
        v_and_b32 {t0}, 2, {vG}
        v_lshl_add_u32 {t0}, {vI}, 2, {t0}
        v_add_u32 {t0}, {sB}, {t0}
        v_lshrrev_b32 {t1}, 1, {vI}
        v_xor_b32 {t0}, {t0}, {t1}
        v_and_b32 {t1}, 1, {vG}
        v_lshlrev_b32 {t1}, 3, {t1}
        v_lshl_add_u32 {self.vZw}, {t0}, 4, {t1}
        v_and_b32 {t0}, 1, v0
        v_lshrrev_b32 {t1}, 1, v0
        v_mul_u32_u24 {t2}, {UCH}, {t0}
        v_lshl_add_u32 {self.vUw}, {t1}, 4, {t2}
        v_lshlrev_b32 {t0}, 4, {t0}
        v_lshl_add_u32 {t2}, {t1}, 13, {t0}
        s_lshl_b32 s3, {sL}, 5
        s_add_u32 s3, s3, {WS_S1}
        v_add_u32 {self.vS1i}, s3, {t2}
        v_add_u32 {self.vS1i2}, 0x100000, {self.vS1i}
        """)
        V.put(t0, t1, t2, t3, SEL)

    def ln1(self):
        if not self.o["b0"]:
            return super().ln1()
        A, V = self.A, self.V
        s1, s2, nm, rs, ad = V.get(), V.get(), V.get(), V.get(), V.get()
        A(f"v_lshlrev_b32 {ad}, 2, {self.vTau}")
        for k in range(8):
            if k % 4 == 0:
                A(f"ds_write_b128 {self.vHr}, {self.XB[k:k + 4]} offset:{L_H + 128 * k}")
            A(f"v_dot2_f32_bf16 {s1}, {self.XB[k]}, {self.sOnes}, {s1 if k else 0}")
            A(f"v_dot2_f32_bf16 {s2}, {self.XB[k]}, {self.XB[k]}, {s2 if k else 0}")
            if k == 0:
                self.stamp("x")
                if self.o["poison_at"] == "x":
                    self.poison2()
        self.allreduce(A, "v_add_f32", [s1, s2], 32)
        self.ln_stats(A, s1, s2, nm, rs)
        if self.o["poison_at"] == "stat":
            self.poison2()
        self.stamp("stat")
        A("s_mov_b64 exec, 1\ns_bitset1_b64 exec, 32")
        A(f"v_mul_f32 {rs}, 0x3d800000, {rs}")
        A(f"ds_write_b32 {ad}, {nm} offset:{L_ST}\nds_write_b32 {ad}, {rs} offset:{L_ST + 32}")
        A("s_mov_b64 exec, -1")
        A(f"v_mov_b32 {ad}, 0\ns_mov_b32 s3, 0")
        V.put(self.XB)
        NM, RS, XA = V.get(8), V.get(8), self.XA
        A.flush()
        A.label("L_stat")
        for k in range(2):
            A(f"ds_read_b128 {RS[4 * k:4 * k + 4]}, {ad} offset:{L_ST + 32 + 16 * k}")
        for q in range(2):
            A(f"ds_read2st64_b32 {XA[2 * q:2 * q + 2]}, {self.vHw2} offset0:{8 * q} offset1:{8 * q + 4}")
        A(f"ds_read_b128 {NM[0:4]}, {ad} offset:{L_ST}")
        for q in range(2, 4):
            A(f"ds_read2st64_b32 {XA[2 * q:2 * q + 2]}, {self.vHw2} offset0:{8 * q} offset1:{8 * q + 4}")
        A(f"ds_read_b128 {NM[4:8]}, {ad} offset:{L_ST + 16}")
        A(f"s_add_u32 s3, s3, 1\ns_cmp_lt_u32 s3, {SPIN_MAX}\ns_cselect_b64 s[18:19], -1, 0")
        self.poison_check([RS[k] for k in range(8)], s1)(A)
        A("s_and_b64 vcc, vcc, s[18:19]")
        A("s_cbranch_vccnz L_stat")
        self.stamp("b1")
        A(f"v_readfirstlane_b32 {self.sE}, {self.vE}")
        V.put(self.vE)
        if self.o["poison_at"] == "b1":
            self.poison2()
        A(f"s_add_u32 {self.sE}, {self.sE}, 1\ns_and_b32 {self.sTag}, {self.sE}, {TAGMASK}")
        T = V.get(8)
        self.G = []
        for e in range(2):
            G = V.get(4)
            for j in range(8):
                A(f"v_dot2_f32_bf16 {T[j]}, {XA[j]}, {self.sHi if e else self.sLo}, {NM[j]}")
            for j in range(8):
                self.rnd(A, T[j], T[j])
            for q in range(4):
                A(f"v_pk_mul_f32 {T[2 * q:2 * q + 2]}, {T[2 * q:2 * q + 2]}, {RS[2 * q:2 * q + 2]}")
            for j in range(8):
                self.rnd(A, T[j], T[j])
            for q in range(4):
                A(f"v_cvt_pk_f16_f32 {G[q]}, {T[2 * q]}, {T[2 * q + 1]}")
            for q in range(4):
                A(f"v_and_or_b32 {G[q]}, {G[q]}, {self.vMask}, {self.sTag}")
            self.G.append(G)
            if e == 0:
                self.stamp("norm")
            if self.o["st_late"] and e == 0:
                continue
            A.wait_tag("poison")
            for ee in ((0, 1) if self.o["st_late"] else (e,)):
                A(f"global_store_dwordx4 {self.vS1o}, {self.G[ee]}, s[30:31] offset:{1024 * ee} sc1", tag="s1st")
        self.stamp("pub1")
        V.put(T, NM, RS, s1, s2, nm, rs, ad, self.vS1o)

    def after_publish(self):
        A, V = self.A, self.V
        if self.o["prio"]:
            A("s_setprio 0")
        V.put(self.XA)
        self.WR = V.get(8)
        bg = self.background()
        hmode = self.o["poison_at"] in ("h", "h1")
        for item in [] if hmode else self.p3_lines:
            A("\n".join(item) if isinstance(item, tuple) else item, tag="poison3" if isinstance(item, tuple) else None)
        self.row_params()
        n = self.nwarm - (self.o["dma_at"] != "none")
        mwarm = not self.o["h_warm"]
        self.warm_line = bg[n:self.nwarm] if mwarm else []
        keep = self.bgtmp[0]
        vW = V.get()
        if hmode:
            V.put(self.vP2)
            self.vFi = V.get()
            A(f"s_lshr_b32 s3, {self.sL}, 6\ns_lshl_b32 s3, s3, 12\ns_add_u32 s3, s3, {WS_FLG}\nv_lshl_add_u32 {self.vFi}, v0, 4, s3")
        if mwarm:
            for ln in bg[:n]:
                A(ln)
            A(f"v_mov_b32 {vW}, {keep}")
        self.warm_line = [ln.replace(f" {keep},", f" {vW},") for ln in self.warm_line]
        for ln in bg[self.nwarm:]:
            A(ln)
        V.put(*self.bgtmp)
        self.bg, self.bgtmp = [], [vW]
        self.UG = V.get(8)
        self.vG16 = V.get()
        A(f"s_lshl_b32 s3, {self.sB}, 2\nv_mov_b32 {self.vG16}, s3")
        if self.o["s1_go"] == "ack":
            A.wait_tag("s1st")
            self.s1_loads(A)
        elif self.o["s1_go"] != "b3":
            A("s_barrier")
            if self.o["s1_split"]:
                A(f"global_load_dwordx4 {self.UG[0:4]}, {self.vS1i}, s[30:31] sc1")
            else:
                self.s1_loads(A)
        self.stamp("rec")
        A.barrier()
        self.stamp("kmf")
        if self.o["mprio2"]:
            A(f"s_setprio {self.o['mprio2']}")
        if self.o["s1_go"] == "b3":
            self.s1_loads(A)
        elif self.o["s1_split"]:
            A(f"global_load_dwordx4 {self.UG[4:8]}, {self.vS1i2}, s[30:31] sc1")
        A(f"ds_read_b32 {self.vG16}, {self.vG16} offset:{L_G}")
        self.shift_regs = ()
        rd = {}
        for q in range(17):
            rd[f"@K{q}"] = [f"ds_read_b64 @K{q}.{2 * hf}, {self.vN} offset:{64 * (16 - q) + 8 * hf}" for hf in range(2)]
        rd["@KX"] = [f"ds_read_b64 @KX.{2 * hf}, {self.vN} offset:{2 * NX + 8 * hf}" for hf in range(2)]
        for k in range(2):
            for d in (2, 3, 4):
                rd[f"@B{k}{d}"] = [f"ds_read_b64 @B{k}{d}.{2 * hf}, {self.vF} offset:{2 * (V2[2 * k + hf] + 32 - 16 * (d - 2))}" for hf in range(2)]
        for d in (4, 5, 6, 7):
            rd[f"@C{d}"] = [f"ds_read_b64 @C{d}.{2 * hf}, {self.vF} offset:{2 * (V3[hf] + 48 - 16 * (d - 4))}" for hf in range(2)]
        self.frag_reads = rd

    def conv(self, A, tiles, dma):
        V, AC = self.V, self.AC
        PE, PD, NPRE, LAT = self.o["pe"], self.o["pd"], self.o["npre"], self.o["lat"]
        EY, EZ = V.get(4), V.get(2)
        qmax = {0: 7, 1: 15}
        b2 = sorted({j - d for j in tiles for d in (2, 3, 4) if j - d >= 0})
        b3 = sorted({j - d for j in tiles for d in (4, 5, 6, 7) if j - d >= 0})
        nlo = min(8 * j - qmax.get(j, 16) for j in tiles)
        nhi = 8 * max(tiles)
        near = []
        for fi, n in enumerate(range(nlo, nhi + 1)):
            for j in tiles:
                q = 8 * j - n
                if 0 <= q <= qmax.get(j, 16):
                    near.append((j, f"@K{q}", fi, q == 0))
        far, gfr, pcount = [], [], 0
        for b in sorted(set(b2) | set(b3)):
            ga, gb = len(gfr), len(gfr) + 1
            gfr += [256 * b - 16, 256 * b - 24]
            mains = []
            if b in b2:
                pa, pb = pcount, pcount + 1
                pcount += 2
                far += [("band", ga, (12, 1), pa, 0), ("band", ga, (8, 2), pa, 1), ("band", gb, (12, 1), pb, 0), ("band", gb, (8, 2), pb, 1)]
                mains += [("main", b + d, pa, f"@B0{d}") for d in (2, 3, 4) if b + d in tiles]
                mains += [("main", b + d, pb, f"@B1{d}") for d in (2, 3, 4) if b + d in tiles]
            if b in b3:
                pc = pcount
                pcount += 1
                far += [("band", ga, (8, 3), pc, 0), ("band", gb, (8, 4), pc, 1)]
                mains += [("main", b + d, pc, f"@C{d}") for d in (4, 5, 6, 7) if b + d in tiles]
            if b + 4 in tiles:
                far.append(("x", b + 4, ga))
            far += mains
        mf, fill = [], []
        started, done_at, first_use, pready = set(), {}, {}, {}
        wcount, ni, credit = 0, 0, 0.0
        farleft = list(far)
        span = self.o["far_span"][0 if 0 in tiles else 1]
        NP = self.o["np"]

        def acc_mf(j, a, b):
            mf.append(f"v_mfma_f32_16x16x32_f16 @acc{j}, {a}, {b}, {f'@acc{j}' if j in started else 0}")
            started.add(j)

        def far_ok(it):
            if it[0] == "main":
                return pready.get(it[2], 10 ** 6) <= len(mf)
            if it[0] == "band":
                return not any(o[0] == "main" and o[2] <= it[3] - NP for o in farleft)
            return True

        def blocked(k):
            return near[k][3] and any(o[0] in ("main", "x") and o[1] == near[k][0] for o in farleft)
        while ni < len(near) or farleft:
            t = len(mf)
            want_far = farleft and (credit >= 1.0 or ni >= len(near) or blocked(ni))
            pick = None
            if want_far:
                for it in farleft[:10]:
                    if far_ok(it) and not (it[0] == "band" and any(o[0] == "band" for o in farleft[:farleft.index(it)])):
                        pick = it
                        break
            if pick is None and ni < len(near) and not blocked(ni):
                j, a, fi, last = near[ni]
                ni += 1
                acc_mf(j, a, f"@F{fi}")
                if last:
                    done_at[j] = t
                credit += len(far) / span
                continue
            assert pick is not None, "conv schedule is stuck"
            farleft.remove(pick)
            credit -= 1.0
            if pick[0] == "band":
                _, g, key, p, hf = pick
                w = f"@W{wcount}"
                wcount += 1
                mf.append(f"v_mfma_f32_16x16x32_f16 {w}, @G{g}, {self.BAND[key]}, 0")
                for k in range(2):
                    fill.append([t + self.o["cvt0"], t + LAT - 1, f"v_cvt_pk_f16_f32 @P{p}:{2 * hf + k}, {w}:{2 * k}, {w}:{2 * k + 1}", None])
                if hf == 1:
                    pready[p] = t + LAT
            elif pick[0] == "x":
                acc_mf(pick[1], "@KX", f"@G{pick[2]}")
            else:
                acc_mf(pick[1], f"@P{pick[2]}", pick[3])
        nm = len(mf)
        tok = re.compile(r"@[A-Za-z]+\d*X?")
        for t, txt in enumerate(mf):
            for name in tok.findall(txt):
                first_use.setdefault(name, t)
        reads = []
        for name, t in first_use.items():
            if name[1] == "F":
                reads.append((t, f"ds_read_b128 {name}, {self.vUf} offset:{512 + 2 * (32 * (nlo + int(name[2:])) - 16)}"))
            elif name[1] == "G":
                reads.append((t, f"ds_read_b128 {name}, {self.vUf} offset:{512 + 2 * gfr[int(name[2:])]}"))
            elif name in self.frag_reads:
                reads += [(t, x) for x in self.frag_reads[name]]
        reads.sort(key=lambda r: r[0])
        pre = [txt for t, txt in reads if t <= NPRE]
        fill += [[max(t - PE, 0), max(t - PD, 0), txt, None] for t, txt in reads if t > NPRE]
        order_t = sorted(tiles, key=lambda j: done_at[j])
        for k, j in enumerate(order_t):
            t = done_at[j]
            nxt = done_at[order_t[k + 1]] if k + 1 < len(order_t) else nm + 100
            seq2 = [f"v_mul_f32 {EY[r]}, @acc{j}:{r}, {self.vG16}" for r in range(4)]
            seq2 += [f"v_cvt_pk_bf16_f32 {EZ[r]}, {EY[2 * r]}, {EY[2 * r + 1]}" for r in range(2)]
            seq2.append(f"ds_write_b64 {self.vZw}, {EZ} offset:{L_Z + 1024 * j}")
            for txt in seq2:
                fill.append([t + self.o["cvt0"], min(t + 12, nxt + 2), txt, f"e2_{j}"])
        for ln in self.late_warm:
            fill.append([self.o["warm_slot"], self.o["warm_slot"] + 2, ln, None])
        uses = {}
        for txt in mf + pre + [f[2] for f in fill]:
            for name in set(tok.findall(txt)):
                uses[name] = uses.get(name, 0) + 1
        vq, aq, held = [], [], []
        while True:
            try:
                vq.append(V.get(4))
            except RuntimeError:
                break
        while True:
            try:
                aq.append(AC.get(4, 4))
            except RuntimeError:
                break
        allv, alla = list(vq), list(aq)
        phys = {}
        low = [len(vq), len(aq)]

        def subst(txt, alloc):
            def rep(m):
                name, part = m.group(1), m.group(2) or ""
                if name not in phys:
                    if not alloc:
                        return "null"
                    vonly = name[1] in "WP" or name.startswith("@acc")
                    if not vonly and aq:
                        phys[name] = aq.pop(0)
                    else:
                        assert vq, f"out of registers at {name}"
                        phys[name] = vq.pop(0)
                    low[0], low[1] = min(low[0], len(vq)), min(low[1], len(aq))
                r = phys[name]
                if part.startswith("."):
                    return str(r[int(part[1:]):int(part[1:]) + 2])
                if part.startswith(":"):
                    return str(r[int(part[1:])])
                return str(r)
            return re.sub(r"(@[A-Za-z]+\d*X?)([.:]\d)?", rep, txt)

        def emit(txt):
            names = set(tok.findall(txt))
            A(subst(txt, True))
            for name in names:
                uses[name] -= 1
                if uses[name] == 0:
                    r = phys.pop(name)
                    (vq if r.kind == "v" else aq).append(r)
        for txt in pre:
            emit(txt)
        for i, f in enumerate(fill):
            f.append(i)
        left = list(fill)
        A.prewait([subst(mf[0], False)])
        for t in range(nm):
            emit(mf[t])
            chosen = []
            for f in sorted([f for f in left if f[0] <= t], key=lambda f: (f[1], f[4])):
                if len(chosen) >= 2 and f[1] > t:
                    break
                if f[3] and any(g[3] == f[3] and g[4] < f[4] and g not in chosen for g in left):
                    continue
                mem = f[2].startswith(("ds_", "global_"))
                if mem and f[1] > t and any(g[3] == f[3] and f[3] for g in chosen):
                    continue
                if f[2].startswith("ds_read") and f[1] > t and len(aq) + len(vq) < 4 and tok.findall(f[2])[0] not in phys:
                    continue
                chosen.append(f)
            memf = [f for f in chosen if f[2].startswith(("ds_", "global_")) and not any(g[3] == f[3] and f[3] and g[4] < f[4] for g in chosen)]
            rest = [f for f in chosen if f not in memf]
            A.prewait([subst(f[2], False) for f in chosen] + ([subst(mf[t + 1], False)] if t + 1 < nm else []))
            for f in memf + rest:
                emit(f[2])
                left.remove(f)
        for f in sorted(left, key=lambda f: (f[1], f[4])):
            emit(f[2])
        assert not phys
        self.nmfma = getattr(self, "nmfma", []) + [nm]
        self.bg_left = getattr(self, "bg_left", []) + [tuple(low)]
        V.put(EY, EZ, *allv)
        AC.put(*alla)

    def conv_all(self):
        A = self.A
        self.late_warm = []
        if self.o["warm_in"]:
            self.late_warm, self.warm_line = self.warm_line, []
        self.s1_consume(A, "")
        self.V.put(self.UG, self.vUw, self.vS1i, self.vS1i2)
        A(f"s_cmp_eq_u32 {self.sH}, 0\ns_cbranch_scc0 L_conv_b")
        B = A.fork()
        A.barrier()
        self.stamp("b5", A)
        self.conv(A, [0, 1, 2, 3, 4], [])
        A.wait(lg=0)
        A.flush()
        A("s_branch L_conv_done")
        B.label("L_conv_b")
        B.barrier()
        self.stamp("b5", B)
        self.conv(B, [5, 6, 7], [])
        B.wait(lg=0)
        B.flush()
        A.lines += B.lines
        A.count += B.count
        A.nops += B.nops
        A.label("L_conv_done")
        self.V.put(*self.BAND.values(), self.vUf, self.vZw, self.vG16, self.vN, self.vF, *self.bgtmp)
        self.stamp("conv", A)
        A("s_barrier")
        self.stamp("b6", A)
        self.ZT = ZT = self.V.get(8)
        A(f"ds_read_b128 {ZT[0:4]}, {self.vZr} offset:{L_Z}\nds_read_b128 {ZT[4:8]}, {self.vZr} offset:{L_Z + 4096}")
        A(f"global_store_dwordx4 {self.vS2o}, {ZT[0:4]}, s[30:31] sc1", tag="s2st")
        A(f"global_store_dwordx4 {self.vS2o2}, {ZT[4:8]}, s[30:31] sc1", tag="s2st")
        if self.o["poison_at"] in ("h", "h1"):
            self.vFl = self.V.get()
            A(f"global_load_dword {self.vFl}, {self.vFi}, s[30:31] sc1")
            self.o["poison_at"] = "pub"
        self.stamp("st2", A)
        self.V.put(self.vZr, self.vS2o, self.vS2o2)
        self.XA = XA = self.V.get(8)
        for q in range(4):
            A(f"ds_read2st64_b32 {XA[2 * q:2 * q + 2]}, {self.vHw2} offset0:{8 * q} offset1:{8 * q + 4}")

    def resolve(self, A, sfx, between=None):
        if not self.o["s3_full"] or sfx == "r2":
            return super().resolve(A, sfx, between)
        t0, t1, t2 = self.t
        T, kin = self.T, self.kin
        A(f"s_lshl_b32 s3, {self.sW}, 10\nv_subrev_u32 {t1}, s3, {self.vS3i}")

        def s3_loads(C):
            for k in range(4):
                C(f"global_load_dword {T[k]}, {t1}, s[30:31] offset:{1024 * k} sc1")

        def check(C):
            C(f"v_max3_u32 {kin}, {T[0]}, {T[1]}, {T[2]}\nv_max_u32 {kin}, {kin}, {T[3]}\nv_cmp_eq_u32 vcc, -1, {kin}")
        s3_loads(A)
        if between:
            between()
        self.poll(A, "s3" + sfx, s3_loads, check)
        self.stamp("s3p", A)
        self.allreduce(A, "v_max_u32", [kin], 64)
        self.stamp("s3w", A)
        A(f"v_readfirstlane_b32 {self.sK}, {kin}")
        A(f"s_and_b32 {self.sT}, {self.sK}, 0x7ff\ns_sub_u32 {self.sT}, 2047, {self.sT}")
        self.stamp("s3", A)
        A(f"s_lshr_b32 s3, {self.sT}, 3\ns_lshl_b32 s3, s3, 11\ns_add_u32 s3, s3, {WS_ROWS}")
        self.late_barrier = True

    def build(self):
        A = self.A
        self.entry()
        H = A.fork()
        H.label("L_helper")
        vfree, afree, sfree = set(self.V.free), set(self.AC.free), set(self.S.free)
        self.helper(H)
        self.A = A
        self.V.free, self.AC.free, self.S.free = set(vfree), set(afree), set(sfree)
        self.prologue_m()
        self.ln1()
        self.after_publish()
        self.sWb, self.sC, self.sK, self.sT = self.S.get(), self.S.get(2), self.S.get(), self.S.get()
        self.conv_all()
        self.phase_c()
        self.kin = self.V.get()
        A(f"s_cmp_eq_u32 {self.sRole}, 1\ns_cbranch_scc1 L_role1")
        B = A.fork()
        B.label("L_role1")
        A(f"s_cmp_eq_u32 {self.sRole}, 2\ns_cbranch_scc1 L_role2")
        C = A.fork()
        C.label("L_role2")
        vfree, afree = set(self.V.free), set(self.AC.free)
        self.tail0(A)
        self.V.free, self.AC.free = set(vfree), set(afree)
        self.tail1(B)
        self.V.free, self.AC.free = set(vfree), set(afree)
        self.tail2(C)
        cut = A.lines.index(";@cut")
        if self.o["h_first"]:
            body = "\n".join(A.lines[:cut]) + "\n    s_branch L_main\n" + H.text() + "L_main:\n" + "\n".join(A.lines[cut + 1:]) + "\n"
        else:
            hcut = H.lines.index(";@cut")
            body = "\n".join(A.lines[:cut]) + "\n    s_branch L_main\n" + "\n".join(H.lines[:hcut]) + "\n    s_branch L_helper2\nL_main:\n"
            body += "\n".join(A.lines[cut + 1:]) + "\n"
            H.lines = ["L_helper2:"] + H.lines[hcut + 1:]
        body += B.text() + C.text() + ("" if self.o["h_first"] else H.text()) + "".join(c.text() for c in self.cold)
        body = body.replace(";@cut\n", "")
        astat = None
        if self.o["align"]:
            import align
            body, astat = align.align(body, self.o["align"])
        head = open(f"cdna_kernels/{NAME}.s.ref").read().split("; Override launch geometry")[0]
        self.stats = dict(instr=A.count + B.count + C.count + H.count, nops=A.nops + B.nops + H.nops, vgpr=self.V.top + 1,
                          agpr=self.AC.top + 1, mfma=self.nmfma, spare=self.bg_left, align=astat)
        return head + f"""; One persistent launch: 256 workgroups, one per CU, exchanging data through d_ws.
; @launch grid=(256,1,1) block=(512,1,1) lds={LDS_BYTES}
.amdgcn_target "amdgcn-amd-amdhsa--gfx950"
.text
.globl {NAME}_kernel
.p2align 8
.type {NAME}_kernel,@function
{NAME}_kernel:
{body}L_end:
    s_endpgm
L_all_end:
.section .rodata,"a"
.p2align 6
.amdhsa_kernel {NAME}_kernel
  .amdhsa_next_free_vgpr 256
  .amdhsa_next_free_sgpr 102
  .amdhsa_accum_offset {VMAX}
  .amdhsa_group_segment_fixed_size 0
  .amdhsa_kernarg_size 120
  .amdhsa_user_sgpr_count 2
  .amdhsa_user_sgpr_kernarg_segment_ptr 1
  .amdhsa_system_sgpr_workgroup_id_x 1
  .amdhsa_float_denorm_mode_32 3
.end_amdhsa_kernel
"""


EXTRA.update(np=4, h_first=False, s3_full=True, late_unpack=True, r0_ackout=True, r2_mode=2, align=0, mprio2=0, h_order="pw", s1_split=False, warm_in=True, warm_slot=20, h_dma="0_4_0_4", b8b="hn", b9b=True, h_roles="both", b0=False, h_warm=None, h_conv=0, flag_at="far", hprio=0, hb1=0, s1_go="rec2", poison_at="b1", st_late=True)


def generate(path, **opt):
    g = Gen(**opt)
    text = g.build()
    open(path, "w").write(text)
    return g.stats


if __name__ == "__main__":
    out = sys.argv[1] if len(sys.argv) > 1 else f"cdna_kernels/{NAME}.s"
    opts = {}
    for a in sys.argv[2:]:
        k, v = a.split("=")
        opts[k] = {"True": True, "False": False}.get(v, int(v) if v.isdigit() else v)
    print(generate(out, **opts))
```

```python
import sys
from asmdsl import Asm, Pool, R, Multi

NAME = "sequential_preLN__ssm_conv_s4d__moe_arch_mod__prompt"

WS_EPOCH = 0
WS_FLG = 0x4000
WS_S3 = 0x8000
WS_S4 = 0x10000
WS_ROWS = 0x20000
WS_S1 = 0x100000
WS_S2 = 0x380000
WS_STAMP = 0x600000

ROWB = 544
STAGE_CH = 57 * ROWB
L_K = 0
KCOPY = 2112
KCH = 4 * KCOPY
L_U = L_K + 2 * KCH
UCH = 4672
L_Z = 26368
L_H = L_Z + 8192
L_ST = L_H + 8192
L_KEY = L_ST + 64
L_KEY2 = L_KEY + 32
L_RED = L_KEY2 + 32
L_P = 43520
PPLANE = 2048 + 32
PHALF = 2 * PPLANE
L_STAGE = 60416
LDS_BYTES = L_STAGE + 2 * STAGE_CH
assert L_U + UCH + 4608 <= L_Z and L_RED + 512 <= L_P and L_P + 4 * PHALF <= L_STAGE and L_STAGE % 256 == 0

NX = 560
FAR = 608
V2 = [FAR + 48 * s for s in range(4)]
V3 = [FAR + 16 * 13 + 80 * s for s in range(2)]
TAGMASK = 0x40074007
LOG2E = 0x3FB8AA3B
INV2PI = 0x3E22F983
SPIN_MAX = 1 << 14

BANDS = ((12, 1), (8, 2), (8, 3), (8, 4))


def band_table():
    out = []
    for delta, h in BANDS:
        for lane in range(64):
            phi, g = lane & 15, lane >> 4
            bits = [0x3C00 if abs(8 * g + e - phi - delta) <= h else 0 for e in range(8)]
            out.append(".long " + ", ".join(hex(bits[2 * d] | bits[2 * d + 1] << 16) for d in range(4)))
    return "\n".join(out)


STAMP_SETS = {
    True: ["start", "karg", "x", "pub1", "rec", "kmf", "frag", "s1", "conv", "ack2", "s2", "pub3", "ack3", "s3", "row", "g1", "g2", "end"],
    "z": ["start"] + [f"unused{i}" for i in range(16)] + ["end"],
    "a": ["start", "karg", "issued", "consts", "x", "stat", "b1", "norm", "pub1", "warm", "par", "ws", "recR", "rec", "b2", "kmf0", "kmf", "end"],
    "b": ["start", "kmf", "shift", "frag", "s1w", "s1", "b5", "conv", "b6", "st2", "dma", "ack2", "s2", "hw", "b7", "key", "pub3", "end"],
    "c": ["start", "pub3", "hn", "outc", "ack3", "s3p", "s3w", "s3", "row", "g1m", "g1b", "g1", "r1o", "r1t", "r1a", "g2m", "g2", "end"],
}
DEFAULTS = dict(stamps=False, s1_at="mfma", warm=True, out_pol="sc1", pf_code=True, pf_lines=8, dbg=False, poison_at="x", recb=4, lat=8, cvt0=4, nw=8, wv=(0, 0, 0, 0), r1_out="row", dma_s2=0, st_late=False, early_br=True, addtid=True, r1_at=28, b_first=False, dma0_ack2=False, p3_at="consts", cpre=0, bg_from=0, fin_pol="", r0_late=2, r2_late=True, dma_ack2=0, xmap=True, x_pol="", w_pol="", p_pol="sc1", mask_poll=True, warm_slot=30, kpre=1, par_first=True, band_tab=False, frag_in=True, dma_pre=0, r1_split=2, xa_glob=False, warm_at="s1w", xa_at="start", nf=7, ng=4, pe=16, pd=5, npre=3, clk=False, dma_at="conv", warm_mode="sect", far_span=(60, 48))


class Gen:
    def __init__(self, **opt):
        self.o = dict(DEFAULTS)
        self.o.update(opt)
        if isinstance(self.o["far_span"], str):
            self.o["far_span"] = tuple(int(x) for x in self.o["far_span"].split("_"))
        if isinstance(self.o["wv"], str):
            self.o["wv"] = tuple(int(x) for x in self.o["wv"].split("_"))
        self.A = Asm()
        self.V = Pool("v", 1, 255)
        self.AC = Pool("a", 0, 255)
        self.S = Pool("s", 32, 63)
        self.cold = []
        self.nstamp = 0

    def stamp(self, name, A=None):
        sel = STAMP_SETS.get(self.o["stamps"])
        if sel and name in sel:
            i = sel.index(name)
            (A or self.A)(f"{'s_memtime' if self.o.get('cyc') else 's_memrealtime'} s[{64 + 2 * i}:{65 + 2 * i}]")

    def dump_stamps(self, A):
        if not self.o["stamps"]:
            return
        if self.o["dbg"]:
            self.dump_debug(A)
            return
        a, d = self.V.get(), self.V.get(2)
        A("s_mov_b64 exec, 1")
        A.wait(lg=0)
        A(f"s_lshl_b32 s3, {self.sL}, 2\ns_add_u32 s3, s3, {self.sW}\ns_lshl_b32 s3, s3, 8\ns_add_u32 s3, s3, {WS_STAMP}")
        A(f"v_mov_b32 {a}, s3")
        for i in range(19):
            A(f"v_mov_b32 {d[0]}, s{64 + 2 * i}\nv_mov_b32 {d[1]}, s{65 + 2 * i}")
            A(f"global_store_dwordx2 {a}, {d}, s[30:31] offset:{8 * i}")
            A.wait(vm=0)
        self.V.put(a, d)

    def dump_debug(self, A):
        a, d = self.V.get(), self.V.get()
        n = getattr(self, "ndbg", 0)
        self.ndbg = n + 1
        A("s_mov_b64 exec, 1")
        A(f"s_cmp_eq_u32 {self.sL}, 255\ns_cbranch_scc0 L_dbg{n}\ns_cmp_eq_u32 {self.sW}, 0\ns_cbranch_scc0 L_dbg{n}")
        A("s_load_dwordx2 s[4:5], s[0:1], 104")
        A.wait(lg=0)
        A(f"v_mov_b32 {a}, 0")
        for i in range(1, 17):
            A(f"s_sub_u32 s3, s{64 + 2 * (i + 1)}, s64\nv_mov_b32 {d}, s3")
            A(f"global_store_dword {a}, {d}, s[4:5] offset:{4 * (i - 1)}")
        A.label(f"L_dbg{n}")
        self.V.put(a, d)

    def rnd(self, A, dst, src, neg=False):
        A(f"v_cvt_pk_bf16_f32 {dst}, 0, {'-' if neg else ''}{src}")

    def allreduce(self, A, op, regs, width, fill=()):
        fill = list(fill)

        def pad():
            for _ in range(max(0, 3 - len(regs))):
                if fill:
                    A(fill.pop(0))
        steps = ["quad_perm:[1,0,3,2]", "quad_perm:[2,3,0,1]", "row_half_mirror", "row_mirror"]
        for st in steps:
            pad()
            for r in regs:
                A(f"{op}_dpp {r}, {r}, {r} {st} row_mask:0xf bank_mask:0xf")
        tmp = [self.V.get() for _ in regs]
        for w, sw in ((32, "v_permlane16_swap_b32"), (64, "v_permlane32_swap_b32")):
            if width >= w:
                for r, t in zip(regs, tmp):
                    A(f"v_mov_b32 {t}, {r}")
                pad()
                for r, t in zip(regs, tmp):
                    A(f"{sw} {r}, {t}")
                for r, t in zip(regs, tmp):
                    A(f"{op} {r}, {r}, {t}")
        for f in fill:
            A(f)
        self.V.put(*tmp)

    def ln_stats(self, A, s1, s2, nm, rs):
        t = self.V.get()
        A(f"v_mul_f32 {s1}, 0x3b000000, {s1}")
        A(f"v_mul_f32 {s2}, 0x3b000000, {s2}")
        A(f"v_fma_f32 {t}, -{s1}, {s1}, {s2}")
        A(f"v_max_f32 {t}, 0, {t}")
        self.rnd(A, t, t)
        self.rnd(A, nm, s1, neg=True)
        A(f"v_add_f32 {t}, 0x3727c5ac, {t}")
        self.rnd(A, t, t)
        A(f"v_sqrt_f32 {t}, {t}")
        self.rnd(A, t, t)
        A(f"v_rcp_f32 {rs}, {t}")
        self.V.put(t)

    def poll(self, A, name, loads, check):
        check(A)
        A(f"s_cbranch_vccnz L_{name}_slow")
        A.label(f"L_{name}_ok")
        C = Asm()
        C.label(f"L_{name}_slow")
        C("s_mov_b32 s3, 0")
        C.label(f"L_{name}_loop")
        if self.o["mask_poll"]:
            C("s_mov_b64 exec, vcc")
        C("s_nop 1")
        loads(C)
        C(f"s_add_u32 s3, s3, 1\ns_cmp_ge_u32 s3, {SPIN_MAX}")
        C("s_cselect_b32 s18, 0, -1\ns_mov_b32 s19, s18")
        check(C)
        C.wait(vm=0)
        C("s_nop 1")
        C("s_and_b64 vcc, vcc, s[18:19]")
        C(f"s_cbranch_vccnz L_{name}_loop")
        C("s_mov_b64 exec, -1")
        C("s_nop 2")
        C(f"s_branch L_{name}_ok")
        self.cold.append(C)

    def prologue(self):
        A, V, S = self.A, self.V, self.S
        A("s_cmp_ge_u32 s2, 0x100\ns_cbranch_scc1 L_end")
        A("s_load_dwordx16 s[4:19], s[0:1], 0\ns_load_dwordx8 s[20:27], s[0:1], 64")
        A("s_load_dwordx2 s[28:29], s[0:1], 96\ns_load_dwordx2 s[30:31], s[0:1], 112")
        self.stamp("start")
        if self.o["clk"]:
            A("s_memtime s[100:101]")
        self.sL, self.sW, self.sTag, self.sE = S.get(), S.get(), S.get(), S.get()
        self.sOnes, self.sLo, self.sHi, self.sCh = S.get(), S.get(), S.get(), S.get()
        self.sB, self.sH, self.sa, self.sb = S.get(), S.get(), S.get(), S.get()
        sL, sW, sa, sb = self.sL, self.sW, self.sa, self.sb
        self.vL = V.get()
        self.vI = V.get()
        self.vG = V.get()
        t0, t1, t2, t3 = V.get(), V.get(), V.get(), V.get()
        self.vJunk = V.get(2)
        A(f"v_lshrrev_b32 {t0}, 6, v0\ns_lshr_b32 {sL}, s2, 3")
        if self.o["pf_code"]:
            nl = self.o["pf_lines"]
            self.sPc = S.get(2)
            A(f"s_getpc_b64 {self.sPc}")
            A.label("L_pc")
            A(f"""
            v_lshl_add_u32 {t2}, {sL}, 2, {t0}
            v_and_b32 {t2}, {256 // nl - 1}, {t2}
            v_and_b32 {t1}, {nl - 1}, v0
            v_lshl_add_u32 {t2}, {t2}, {nl.bit_length() - 1}, {t1}
            v_lshlrev_b32 {t2}, 7, {t2}
            v_min_u32 {t2}, L_all_end-L_pc-4, {t2}
            global_load_dword {self.vJunk[0]}, {t2}, {self.sPc}
            """)
        self.vTau, self.vHr, self.vRow, vP = V.get(), V.get(), V.get(), V.get()
        A(f"""
        v_readfirstlane_b32 {sW}, {t0}
        s_and_b32 s3, s2, 7
        s_lshl_b32 s3, s3, 5
        s_add_u32 {sL}, {sL}, s3
        {"" if self.o["xmap"] else f"s_mov_b32 {sL}, s2"}
        v_and_b32 {self.vL}, 63, v0
        v_lshrrev_b32 {self.vTau}, 5, v0
        v_and_b32 {t1}, 31, v0
        v_lshlrev_b32 {t1}, 4, {t1}
        v_lshl_add_u32 {self.vHr}, {self.vTau}, 10, {t1}
        s_lshl_b32 {sa}, {sL}, 13
        v_add_u32 {self.vRow}, {sa}, {self.vHr}
        s_lshr_b32 s3, {sL}, 6
        s_lshl_b32 {self.sCh}, s3, 7
        s_and_b32 s3, {sL}, 31
        s_lshl_b32 s3, s3, 2
        s_add_u32 {self.sCh}, {self.sCh}, s3
        s_bfe_u32 s3, {sL}, 0x10005
        s_add_u32 {self.sCh}, {self.sCh}, s3
        s_and_b32 s3, {sW}, 2
        s_add_u32 {self.sCh}, {self.sCh}, s3
        s_lshl_b32 s3, {self.sCh}, 8
        v_lshl_add_u32 {vP}, {self.vL}, 2, s3
        s_lshl_b32 {self.sE}, {self.sCh}, 1
        s_and_b32 {self.sE}, {self.sE}, -4
        v_and_b32 {self.vI}, 15, v0
        v_bfe_u32 {self.vG}, v0, 4, 2
        s_lshr_b32 {self.sB}, {sW}, 1
        s_and_b32 {self.sH}, {sW}, 1
        """)
        self.XB, self.XA, self.PAR, self.WR = V.get(8), V.get(8), V.get(4), V.get(8)
        self.sDt = S.get()
        lines = self.const_lines(t0, t1, t2, t3)
        npre = self.o["cpre"]
        for ln in lines[:npre]:
            A(ln)
        for k in range(4):
            A(f"global_load_dword {self.PAR[k]}, {vP}, s[{6 + 2 * k}:{7 + 2 * k}] {self.o['x_pol']}")
        A(f"global_load_dwordx4 {self.XB[0:4]}, {self.vRow}, s[4:5] {self.o['x_pol']}")
        A(f"global_load_dwordx4 {self.XB[4:8]}, {self.vRow}, s[4:5] offset:512 {self.o['x_pol']}")
        A(f"s_load_dword {self.sDt}, s[14:15], {self.sE}")
        A(f"s_load_dword {self.sE}, s[30:31], {WS_EPOCH}")
        self.stamp("karg")
        V.put(vP)
        for ln in lines[npre:]:
            A(ln)
        self.bg = self.background()
        if self.o["p3_at"] == "consts":
            for ln in self.p3_lines[:-1]:
                A(ln)
            self.p3_lines = self.p3_lines[-1:]
        if self.o["warm_at"] == "s1w":
            n = self.nwarm - (self.o["dma_at"] != "none")
            for ln in self.bg[:n]:
                A(ln)
            self.warm_line = self.bg[n:self.nwarm]
            self.bg = self.bg[self.nwarm:]
        if self.o["poison_at"] == "pub":
            self.vFo, self.vFi = V.get(), V.get()
            A(f"""
            s_lshl_b32 s3, {sW}, 12
            s_lshl_b32 {sb}, {sL}, 4
            s_add_u32 s3, s3, {sb}
            s_add_u32 s3, s3, {WS_FLG}
            v_mov_b32 {self.vFo}, s3
            s_lshr_b32 s3, {sL}, 6
            s_lshl_b32 s3, s3, 12
            s_add_u32 s3, s3, {WS_FLG}
            v_lshl_add_u32 {self.vFi}, v0, 4, s3
            """)
        if self.o["poison_at"] == "consts":
            self.poison2()
        self.stamp("consts")
        V.put(t0, t1, t2, t3, *self.ctmp)

    def poison2(self):
        A = self.A
        A(f"global_store_dwordx4 {self.vP2}, {self.M1}, s[30:31] sc1", tag="poison")
        A(f"global_store_dwordx4 {self.vP2}, {self.M1}, s[30:31] offset:1024 sc1", tag="poison")
        self.V.put(self.vP2)

    def const_lines(self, t0, t1, t2, t3):
        V, S = self.V, self.S
        vI, vG, vL, sW, sL, sB, sH, sa, sb = self.vI, self.vG, self.vL, self.sW, self.sL, self.sB, self.sH, self.sa, self.sb
        out = []

        def A(text):
            out.extend(x.strip() for x in text.strip().split("\n") if x.strip())
        self.BAND = {key: V.get(4) for key in BANDS}
        SEL = V.get(6)
        A(f"""
        v_lshlrev_b32 {t0}, 3, {vG}
        v_sub_u32 {t0}, {t0}, {vI}
        v_add_u32 {t0}, 20, {t0}
        v_mul_u32_u24 {t0}, 0x10001, {t0}
        v_mov_b32 {t3}, 0x70007
        s_mov_b32 {sb}, 0xc000c
        """)
        for k in range(6):
            c0, c1 = 32 - 2 * k, 31 - 2 * k
            A(f"""
            s_mov_b32 s3, {c0 | c1 << 16}
            v_pk_sub_i16 {t1}, {t0}, s3
            v_pk_sub_i16 {t2}, s3, {t0}
            v_pk_max_i16 {t1}, {t1}, {t2}
            v_pk_min_i16 {t1}, {t1}, {t3}
            v_lshl_or_b32 {SEL[k]}, {t1}, 8, {sb}
            """)
        for (delta, h), B in self.BAND.items():
            lut = sum(0x3C << (8 * i) for i in range(min(h + 1, 4)))
            A(f"s_mov_b32 s3, {lut}")
            for d in range(4):
                A(f"v_perm_b32 {B[d]}, {60 if h == 4 else 0}, s3, {SEL[d + (0 if delta == 12 else 2)]}")
        Z = SEL[0:4]
        for k in range(4):
            A(f"v_mov_b32 {Z[k]}, 0")
        self.vShift, self.vShiftR = V.get(), V.get()
        A(f"""
        v_lshlrev_b32 {t2}, 4, v0
        v_lshlrev_b32 {t3}, 2, {vL}
        v_and_b32 {t1}, 127, v0
        s_mul_i32 s3, {sB}, {UCH}
        s_add_u32 {sb}, s3, {L_U}
        v_lshl_add_u32 {t0}, {t1}, 2, {sb}
        ds_write_b128 {t2}, {Z} offset:{L_P}
        ds_write_b128 {t2}, {Z} offset:{L_P + 4096}
        ds_write_b128 {t2}, {Z} offset:{L_P + 8192}
        ds_write_b128 {t2}, {Z} offset:{L_P + 12288}
        ds_write_b32 {t3}, {Z[0]} offset:{L_P + 16384}
        ds_write_b32 {t0}, {Z[0]}
        s_mul_i32 s3, {sB}, {2 * PHALF}
        v_lshl_add_u32 {self.vShiftR}, {t1}, 4, s3
        """)
        self.vUf, self.vZw, self.vUw = V.get(), V.get(), V.get()
        self.vN, self.vF = V.get(), V.get()
        A(f"""
        v_lshl_add_u32 {t0}, {vI}, 5, {sb}
        v_lshl_add_u32 {self.vUf}, {vG}, 4, {t0}
        s_mul_i32 s3, {sB}, {KCH}
        v_lshl_add_u32 {self.vShift}, {t1}, 4, s3
        v_sub_u32 {t0}, 15, {vI}
        v_and_b32 {t1}, 3, {t0}
        v_and_b32 {t0}, 12, {t0}
        v_mul_u32_u24 {t1}, {KCOPY}, {t1}
        v_lshl_add_u32 {t0}, {t0}, 1, {t1}
        v_add_u32 {t0}, s3, {t0}
        v_lshl_add_u32 {self.vN}, {vG}, 4, {t0}
        v_lshl_add_u32 {self.vF}, {vG}, 3, {t0}
        v_and_b32 {t0}, 2, {vG}
        v_lshl_add_u32 {t0}, {vI}, 2, {t0}
        v_add_u32 {t0}, {sB}, {t0}
        v_lshrrev_b32 {t1}, 1, {vI}
        v_xor_b32 {t0}, {t0}, {t1}
        v_and_b32 {t1}, 1, {vG}
        v_lshlrev_b32 {t1}, 3, {t1}
        v_lshl_add_u32 {self.vZw}, {t0}, 4, {t1}
        """)
        self.sStM = S.get()
        self.vR, self.vS0, self.vS1r = V.get(), V.get(), V.get()
        A(f"""
        s_mul_i32 s3, {sB}, {STAGE_CH}
        s_lshl_b32 {sb}, {sH}, 8
        s_add_u32 s3, s3, {sb}
        s_add_u32 {self.sStM}, s3, {L_STAGE - 0x8000}
        s_add_u32 s3, s3, {L_STAGE}
        v_lshl_add_u32 {t2}, {vG}, 4, s3
        v_xor_b32 {t0}, 3, {vI}
        v_bfe_u32 {t1}, {t0}, 1, 1
        v_add_u32 {t1}, {t0}, {t1}
        v_lshrrev_b32 {t1}, 1, {t1}
        s_movk_i32 s3, {ROWB}
        v_mad_u32_u24 {self.vR}, {vI}, s3, {t2}
        v_mad_u32_u24 {self.vS0}, {t0}, s3, {t2}
        v_mad_u32_u24 {self.vS1r}, {t1}, s3, {t2}
        """)
        self.vK1, self.vK3, self.vKs = V.get(), V.get(), V.get()

        def pa(m):
            return ((m >> 2) & 1) * PPLANE + (m >> 3) * 16 + (m & 3) * 4
        A(f"""
        s_mul_i32 s3, {sW}, {PHALF}
        s_add_u32 s3, s3, {L_P}
        v_xor_b32 {t3}, 3, {vG}
        v_and_b32 {t0}, 1, {t3}
        v_mul_u32_u24 {t0}, {PPLANE}, {t0}
        v_lshrrev_b32 {t3}, 1, {t3}
        v_lshl_add_u32 {t3}, {t3}, 4, {t0}
        v_add_u32 {t3}, s3, {t3}
        v_lshlrev_b32 {t0}, 5, {vI}
        v_sub_u32 {t0}, {t3}, {t0}
        v_add_u32 {self.vK1}, {pa(528 - 256)}, {t0}
        v_lshrrev_b32 {t1}, 1, {vI}
        v_lshrrev_b32 {t2}, 2, {vI}
        v_add_u32 {t2}, 2, {t2}
        v_min_u32 {t1}, {t1}, {t2}
        v_add3_u32 {t1}, {t1}, {vI}, {FAR // 16 + 1}
        v_lshl_add_u32 {self.vK3}, {t1}, 5, {t3}
        v_cmp_gt_u32 vcc, 8, {vI}
        v_mov_b32 {t0}, {pa(28)}
        v_mov_b32 {t1}, {pa(NX + 24)}
        v_cndmask_b32 {t0}, {t0}, {t1}, vcc
        v_add_u32 {self.vKs}, s3, {t0}
        """)
        self.vS1o, self.vS1i, self.vS1i2, self.vP2 = V.get(), V.get(), V.get(), V.get()
        self.vMask, self.vHw2, self.M1 = V.get(), V.get(), V.get(4)
        A(f"""
        v_and_b32 {t0}, 1, v0
        v_lshrrev_b32 {t1}, 1, v0
        v_mul_u32_u24 {t2}, {UCH}, {t0}
        v_lshl_add_u32 {self.vUw}, {t1}, 4, {t2}
        v_lshlrev_b32 {t0}, 4, {t0}
        v_lshl_add_u32 {t2}, {t1}, 13, {t0}
        s_lshl_b32 s3, {sL}, 5
        s_add_u32 s3, s3, {WS_S1}
        v_add_u32 {self.vS1i}, s3, {t2}
        v_add_u32 {self.vS1i2}, 0x100000, {self.vS1i}
        s_lshl_b32 s3, {sW}, 11
        s_add_u32 s3, s3, {sa}
        s_add_u32 s3, s3, {WS_S1}
        v_lshl_add_u32 {self.vS1o}, {vL}, 4, s3
        v_add_u32 {self.vP2}, {WS_S2 - WS_S1}, {self.vS1o}
        s_mov_b32 s3, {L_H}
        v_lshl_add_u32 {self.vHw2}, v0, 2, s3
        v_mov_b32 {self.vMask}, {0xFFFFFFFF ^ TAGMASK}
        s_mov_b32 {self.sOnes}, 0x3f803f80
        s_mov_b32 {self.sLo}, 0x3f80
        s_mov_b32 {self.sHi}, 0x3f800000
        """)
        for k in range(4):
            A(f"v_mov_b32 {self.M1[k]}, -1")
        self.ctmp = [SEL]
        return out

    def background(self):
        V, S = self.V, self.S
        vL, sW, sL, sa, sb = self.vL, self.sW, self.sL, self.sa, self.sb
        t0, t1, t2 = V.get(), V.get(), V.get()
        out = []

        def A(text):
            out.extend(x.strip() for x in text.strip().split("\n") if x.strip())
        A(f"""
        s_lshr_b32 s3, {sL}, 5
        s_and_b32 {sb}, {sL}, 31
        s_mul_i32 s6, {sb}, {16 * 3584}
        s_mul_i32 s7, s3, 448
        s_add_u32 s6, s6, s7
        v_lshrrev_b32 {t0}, 2, {vL}
        v_and_b32 {t1}, 3, v0
        v_mul_u32_u24 {t0}, 3584, {t0}
        v_lshl_add_u32 {t0}, {t1}, 7, {t0}
        v_add_u32 {t0}, s6, {t0}
        s_mul_i32 s6, {sb}, {56 * 1024}
        s_lshl_b32 s7, s3, 7
        s_add_u32 s6, s6, s7
        s_mul_i32 s7, {self.sH}, {28 * 1024}
        s_add_u32 s6, s6, s7
        v_min_u32 {t1}, 27, {vL}
        v_lshl_add_u32 {t1}, {t1}, 10, s6
        s_cmp_eq_u32 {sW}, 0
        s_cselect_b32 s8, s22, s24
        s_cselect_b32 s9, s23, s25
        s_cmp_lt_u32 {sW}, 2
        s_cselect_b32 s8, s8, s26
        s_cselect_b32 s9, s9, s27
        s_cselect_b64 vcc, -1, 0
        v_cndmask_b32 {t0}, {t1}, {t0}, vcc
        """)
        if self.o["dma_at"] != "none":
            A(f"global_load_dword {self.vJunk[1]}, {t0}, s[8:9]")
        self.nwarm = len(out)
        warm_block = list(out)
        if self.o["warm_at"] == "bg":
            out.clear()
        A(f"s_lshr_b32 s3, {sL}, 5\ns_and_b32 {sb}, {sL}, 31")
        self.sBlk, self.sRole, self.sUp = S.get(), S.get(), S.get()
        A(f"""
        s_cmp_ge_u32 {sb}, 7
        s_cselect_b32 {self.sUp}, 1, 0
        s_cselect_b32 s6, 7, 0
        s_sub_u32 s6, {sb}, s6
        s_mul_i32 {self.sBlk}, s3, 7
        s_add_u32 {self.sBlk}, {self.sBlk}, s6
        s_cmp_ge_u32 {sb}, 14
        s_cselect_b32 {self.sRole}, 2, 0
        s_lshl_b32 s3, s3, 2
        s_sub_u32 s6, {sb}, {self.o["r1_at"]}
        s_add_u32 s3, s3, s6
        s_cmp_lt_u32 s6, 4
        s_cselect_b32 {self.sRole}, 1, {self.sRole}
        s_cselect_b32 {self.sBlk}, s3, {self.sBlk}
        """)
        self.p3_lines = [f"s_mul_i32 s3, {sL}, 2432", f"s_add_u32 s3, s3, {WS_S3}", f"v_lshl_add_u32 {t2}, v0, 4, s3",
                         f"v_cmp_gt_u32 s[10:11], {t1}, v0",
                         ("s_mov_b64 exec, s[10:11]", f"global_store_dwordx4 {t2}, {self.M1}, s[30:31] sc1", "s_mov_b64 exec, -1")]
        self.p3_lines.insert(0, f"v_mov_b32 {t1}, 152")
        if self.o["warm_at"] == "bg":
            out.extend(warm_block)
        self.vS2o, self.vS2o2, self.vS2i, self.vS2i2, self.vZr = V.get(), V.get(), V.get(), V.get(), V.get()
        A(f"""
        s_add_u32 s3, {sa}, {WS_S2}
        v_lshl_add_u32 {self.vS2o}, v0, 4, s3
        v_add_u32 {self.vS2o2}, 0x1000, {self.vS2o}
        v_bfe_u32 {t0}, v0, 3, 3
        v_xor_b32 {t0}, v0, {t0}
        v_lshlrev_b32 {self.vZr}, 4, {t0}
        s_lshl_b32 s3, {sW}, 18
        s_add_u32 s3, s3, {WS_S2 - WS_S1}
        v_add_u32 {self.vS2i}, s3, {self.vS1i}
        v_add_u32 {self.vS2i2}, 0x40000, {self.vS2i}
        """)
        self.bgtmp = [t0, t1, t2, self.M1]
        return out

    def make_tags(self, A):
        self.tags = [self.sTag, self.S.get(), self.S.get(), self.S.get()]
        A(f"s_add_u32 {self.sE}, {self.sE}, 1\ns_and_b32 {self.sTag}, {self.sE}, {TAGMASK}")
        for q in range(1, 4):
            A(f"s_lshr_b32 {self.tags[q]}, {self.sE}, {3 * q}\ns_and_b32 {self.tags[q]}, {self.tags[q]}, {TAGMASK}")

    def ln1(self):
        A, V = self.A, self.V
        glob = False
        s1, s2, nm, rs, ad = V.get(), V.get(), V.get(), V.get(), V.get()
        A(f"v_lshlrev_b32 {ad}, 2, {self.vTau}")
        for k in range(8):
            if not glob and k % 4 == 0:
                A(f"ds_write_b128 {self.vHr}, {self.XB[k:k + 4]} offset:{L_H + 128 * k}")
            A(f"v_dot2_f32_bf16 {s1}, {self.XB[k]}, {self.sOnes}, {s1 if k else 0}")
            A(f"v_dot2_f32_bf16 {s2}, {self.XB[k]}, {self.XB[k]}, {s2 if k else 0}")
            if k == 0:
                self.stamp("x")
                if self.o["poison_at"] == "x":
                    self.poison2()
        wv = self.o["wv"]
        take, self.ksl = self.ksl[:wv[1]], self.ksl[wv[1]:]
        self.allreduce(A, "v_add_f32", [s1, s2], 32, take)
        self.ln_stats(A, s1, s2, nm, rs)
        if self.o["poison_at"] == "stat":
            self.poison2()
        self.stamp("stat")
        A("s_mov_b64 exec, 1\ns_bitset1_b64 exec, 32")
        A(f"v_mul_f32 {rs}, 0x3d800000, {rs}")
        A(f"ds_write_b32 {ad}, {nm} offset:{L_ST}\nds_write_b32 {ad}, {rs} offset:{L_ST + 32}")
        A("s_mov_b64 exec, -1")
        A(f"v_mov_b32 {ad}, 0")
        V.put(self.XB)
        self.weave(wv[2])
        A.barrier()
        self.stamp("b1")
        NM, RS = V.get(8), V.get(8)
        XA = self.XA
        if not glob:
            for q in range(2):
                A(f"ds_read2st64_b32 {XA[2 * q:2 * q + 2]}, {self.vHw2} offset0:{8 * q} offset1:{8 * q + 4}")
        A(f"ds_read_b128 {NM[0:4]}, {ad} offset:{L_ST}")
        if not glob:
            for q in range(2, 4):
                A(f"ds_read2st64_b32 {XA[2 * q:2 * q + 2]}, {self.vHw2} offset0:{8 * q} offset1:{8 * q + 4}")
        A(f"ds_read_b128 {NM[4:8]}, {ad} offset:{L_ST + 16}")
        for k in range(2):
            A(f"ds_read_b128 {RS[4 * k:4 * k + 4]}, {ad} offset:{L_ST + 32 + 16 * k}")
        self.weave(wv[3])
        if self.o["poison_at"] == "b1":
            self.poison2()
        self.make_tags(A)
        T = V.get(8)
        for e in range(2):
            G = V.get(4)
            for j in range(8):
                A(f"v_dot2_f32_bf16 {T[j]}, {XA[j]}, {self.sHi if e else self.sLo}, {NM[j]}")
            for j in range(8):
                self.rnd(A, T[j], T[j])
            for q in range(4):
                A(f"v_pk_mul_f32 {T[2 * q:2 * q + 2]}, {T[2 * q:2 * q + 2]}, {RS[2 * q:2 * q + 2]}")
            for j in range(8):
                self.rnd(A, T[j], T[j])
            for q in range(4):
                A(f"v_cvt_pk_f16_f32 {G[q]}, {T[2 * q]}, {T[2 * q + 1]}")
            for q in range(4):
                A(f"v_and_or_b32 {G[q]}, {G[q]}, {self.vMask}, {self.tags[q]}")
            self.G = getattr(self, "G", []) + [G]
            if e == 0:
                self.stamp("norm")
            if self.o["st_late"] and e == 0:
                continue
            A.wait_tag("poison")
            for ee in ((0, 1) if self.o["st_late"] else (e,)):
                A(f"global_store_dwordx4 {self.vS1o}, {self.G[ee]}, s[30:31] offset:{1024 * ee} sc1", tag="s1st")
        self.stamp("pub1")
        V.put(T, NM, RS, s1, s2, nm, rs, ad, self.vS1o)

    def s1_loads(self, A):
        A(f"global_load_dwordx4 {self.UG[0:4]}, {self.vS1i}, s[30:31] sc1")
        A(f"global_load_dwordx4 {self.UG[4:8]}, {self.vS1i2}, s[30:31] sc1")

    def maybe_s1(self, where):
        if self.o["s1_at"] == where:
            self.UG = self.V.get(8)
            if self.o["poison_at"] == "pub":
                A = self.A
                A(f"v_mov_b32 {self.UG[0]}, {self.sE}")
                A.wait_tag("poison")
                A(f"s_mov_b64 exec, 1\nglobal_store_dword {self.vFo}, {self.UG[0]}, s[30:31] sc1\ns_mov_b64 exec, -1")
                self.V.put(self.vFo)
            self.s1_loads(self.A)

    def ksetup_lines(self):
        V = self.V
        P = self.PAR
        out = []

        class Rec:
            def __call__(self_, text):
                out.extend(x.strip() for x in text.strip().split("\n") if x.strip())
        A = Rec()
        t0, t1, dt = V.get(), V.get(), V.get()
        self.vG16 = V.get()
        sb = self.sb
        A(f"""
        s_and_b32 {sb}, {self.sCh}, 1
        s_xor_b32 {sb}, {sb}, 1
        s_lshl_b32 {sb}, {sb}, 4
        s_lshl_b32 {self.sDt}, {self.sDt}, {sb}
        s_and_b32 {self.sDt}, {self.sDt}, 0xffff0000
        v_mov_b32 {dt}, {LOG2E}
        v_mul_f32 {dt}, {self.sDt}, {dt}
        v_exp_f32 {dt}, {dt}
        s_cmp_eq_u32 {self.sH}, 0
        s_cselect_b32 {sb}, 16, 0
        """)
        self.rnd(A, dt, dt)
        A(f"""
        v_and_b32 {t0}, 0x7fff7fff, {P[2]}
        v_and_b32 {t1}, 0x7fff7fff, {P[3]}
        v_pk_max_u16 {t0}, {t0}, {t1}
        v_lshrrev_b32 {t1}, 16, {t0}
        v_and_b32 {t0}, 0xffff, {t0}
        v_max_u32 {t0}, {t0}, {t1}
        """)
        W = {p: V.get(2) for p in (1, 16, 256)}
        u0, u1 = V.get(), V.get()
        fill = [f"v_lshlrev_b32 {P[k]}, {sb}, {P[k]}" for k in range(4)]
        fill += [f"v_and_b32 {P[k]}, 0xffff0000, {P[k]}" for k in range(4)]
        fill += [f"v_mul_f32 {P[0]}, {LOG2E}, {P[0]}", f"v_exp_f32 {P[0]}, {P[0]}", f"v_mul_f32 {P[1]}, {P[1]}, {dt}",
                 f"v_cvt_pk_bf16_f32 {P[0]}, 0, {P[0]}", f"v_mul_f32 {P[1]}, {INV2PI}, {P[1]}", f"v_mul_f32 {P[0]}, {P[0]}, {dt}",
                 f"v_fract_f32 {u1}, {P[1]}", f"v_mul_f32 {P[0]}, {LOG2E | 0x80000000}, {P[0]}"]
        keep = V.get()
        V.put(keep)
        self.allreduce(A, "v_max_u32", [t0], 64, fill)
        again = V.get()
        assert str(again) == str(keep)
        A(f"v_exp_f32 {u0}, {P[0]}\nv_cos_f32 {W[1][0]}, {u1}\nv_sin_f32 {W[1][1]}, {u1}")
        A(f"""
        v_lshrrev_b32 {t0}, 7, {t0}
        v_mul_f32 {W[1][0]}, {W[1][0]}, {u0}
        v_mul_f32 {W[1][1]}, {W[1][1]}, {u0}
        v_max_u32 {t0}, 8, {t0}
        v_lshrrev_b32 {t1}, 23, {dt}
        v_add_u32 {t1}, {t1}, {t0}
        v_subrev_u32 {t1}, 127, {t1}
        v_max_i32 {t1}, 0, {t1}
        v_min_i32 {t1}, 254, {t1}
        v_lshlrev_b32 {self.vG16}, 23, {t1}
        v_sub_u32 {t0}, 259, {t0}
        v_and_b32 {dt}, 0x007fffff, {dt}
        v_lshl_or_b32 {dt}, {t0}, 23, {dt}
        """)
        L = V.get(2)
        for p, mul in ((16, 0x41800000), (256, 0x43800000)):
            w = W[p]
            A(f"v_mul_f32 {u0}, {mul}, {P[0]}\nv_mul_f32 {u1}, {mul}, {P[1]}")
            A(f"v_exp_f32 {u0}, {u0}\nv_fract_f32 {u1}, {u1}")
            A(f"v_cos_f32 {w[0]}, {u1}\nv_sin_f32 {w[1]}, {u1}")
            A(f"v_mul_f32 {L[p // 256]}, {P[2 + p // 256]}, {dt}")
            A(f"v_mul_f32 {w[0]}, {w[0]}, {u0}\nv_mul_f32 {w[1]}, {w[1]}, {u0}")
        self.ks = dict(W=W, L=L, t0=t0, tmp=[u0, u1, t1, dt, P, again])
        return out

    def weave(self, n):
        for _ in range(min(n, len(self.ksl))):
            self.A(self.ksl.pop(0))

    def kgen_steps(self):
        A, V = self.A, self.V
        self.weave(1000)
        W, L, t0 = self.ks["W"], self.ks["L"], self.ks["t0"]
        V.put(*self.ks["tmp"])
        M, Rr, T = V.get(2), V.get(2), V.get(2)
        self.stamp("ws")
        NB_ = self.o["recb"]
        pk = [V.get() for _ in range(2 * NB_)]
        cnt = [0]
        queue = []
        A(f"s_mov_b32 m0, {self.sStM}")

        def cmul(d, a, b):
            A(f"v_pk_mul_f32 {T}, {a}, {b} op_sel_hi:[0,1]")
            A(f"v_pk_fma_f32 {d}, {a}, {b}, {T} op_sel:[1,1,0] op_sel_hi:[1,0,1] neg_lo:[0,1,0]")

        if not self.o["addtid"]:
            vSt = V.get()
            A(f"v_lshl_add_u32 {vSt}, {self.vL}, 2, {self.sStM}")

        def flush_q():
            for row, r in queue:
                if self.o["addtid"]:
                    A(f"ds_write_addtid_b32 {r} offset:{32768 + row * ROWB}")
                else:
                    A(f"ds_write_b32 {vSt}, {r} offset:{32768 + row * ROWB}")
            queue.clear()

        def put(row, v, conj=False):
            r = pk[cnt[0] % (2 * NB_)]
            cnt[0] += 1
            A(f"v_cvt_pk_f16_f32 {r}, {v[0]}, {'-' if conj else ''}{v[1]}")
            queue.append((row, r))
            if len(queue) >= NB_:
                flush_q()

        Rf, S0, S1, FA = ([self.AC.get(4, 4) for _ in range(4)] for _ in range(4))
        D1, D2, D3 = V.get(4), V.get(4), V.get(4)

        def frags(regs, addr, row0):
            flush_q()
            for q in range(4):
                A(f"ds_read_b128 {regs[q]}, {addr} offset:{row0 * ROWB + 64 * q}")

        def product(D, a, b):
            for q in range(4):
                A(f"v_mfma_f32_16x16x32_f16 {D}, {a[q]}, {b[q]}, {D if q else 0}")

        A(f"v_mov_b32 {t0}, 0x3c00")
        queue.append((0, t0))
        yield
        put(1, W[16], conj=True)
        cmul(Rr, W[16], W[16])
        put(2, Rr, conj=True)
        for j in range(3, 16):
            yield
            cmul(Rr, Rr, W[16])
            put(j, Rr, conj=True)
        frags(Rf, self.vR, 0)
        self.stamp("recR")
        LE = {0: L}
        cur = L
        for al in range(17):
            yield
            if al:
                nxt = V.get(2) if al % 2 == 0 else M
                cmul(nxt, cur, W[1])
                cur = nxt
                if al % 2 == 0:
                    LE[al] = cur
            if al < 16:
                put(16 + al, cur)
        frags(S0, self.vS0, 16)
        self.maybe_s1("rec1")
        for al in range(0, 17, 2):
            yield
            cmul(LE[al], LE[al], W[256])
            put(32 + al // 2, LE[al])
        frags(S1, self.vS1r, 32)
        product(D1, S0, Rf)
        self.maybe_s1("seg1")
        for a in range(2):
            for al in (4, 8, 12, 16):
                yield
                cmul(LE[al], LE[al], W[256])
                put(41 + 2 * (al // 4 - 1) + 1 - a, LE[al])
        K3 = V.get(4)
        flush_q()
        A(f"ds_write_b128 {self.vK1}, {D1} offset:512")
        product(D2, S1, Rf)
        self.maybe_s1("far")
        for a in range(4):
            for al in (8, 16):
                yield
                cmul(LE[al], LE[al], W[256])
                put(49 + 4 * (al // 8 - 1) + 3 - a, LE[al])
        frags(FA, self.vR, 41)
        self.stamp("rec")
        self.maybe_s1("rec2")
        A(f"ds_write_b128 {self.vK1}, {D2}")
        A(f"v_cmp_gt_u32 vcc, 8, {self.vI}")
        product(D3, Rf, FA)
        self.maybe_s1("mfma")
        self.stamp("kmf0")
        A(f"v_cndmask_b32 {T[1]}, {D2[0]}, 0, vcc")
        for k in range(4):
            A(f"v_mov_b32 {K3[k]}, {D3[3 - k]}")
        A(f"v_cndmask_b32 {T[0]}, {D2[0]}, {D3[3]}, vcc")
        A(f"ds_write_b128 {self.vK3}, {K3}")
        A("s_mov_b32 exec_lo, 0\ns_mov_b32 exec_hi, 0x80400000")
        A(f"ds_write_b32 {self.vKs}, {T[0]} offset:12\nds_write2_b32 {self.vKs}, {T[1]}, {T[1]} offset0:1 offset1:2")
        A("s_mov_b32 exec_hi, 0x00400000")
        A(f"ds_write_b32 {self.vKs}, {T[0]} offset:{PPLANE}")
        A("s_mov_b64 exec, -1")
        A.barrier()
        V.put(M, Rr, T, *pk, *W.values(), t0, D1, D2, D3, K3, *LE.values(),
              self.vR, self.vS0, self.vS1r, self.vK1, self.vK3, self.vKs)
        self.AC.put(*Rf, *S0, *S1, *FA)

    def row_params(self):
        A, V = self.A, self.V
        t1, t2 = V.get(), V.get()
        self.vDk = V.get()
        A(f"""
        v_and_b32 {t1}, 0x1ff, {self.vHr}
        v_lshlrev_b32 {t2}, 2, v0
        global_load_dwordx4 {self.WR[0:4]}, {t1}, s[20:21]
        global_load_dwordx4 {self.WR[4:8]}, {t1}, s[20:21] offset:512
        global_load_dword {self.vDk}, {t2}, s[16:17]
        """)
        V.put(t1, t2)

    def kgen(self):
        A, V = self.A, self.V
        if self.o["poison_at"] == "pub":
            self.poison2()
        for item in self.p3_lines:
            A("\n".join(item) if isinstance(item, tuple) else item, tag="poison3" if isinstance(item, tuple) else None)
        self.row_params()
        for _ in self.ksteps:
            pass
        self.stamp("kmf")
        self.maybe_s1("shift")
        D, E = V.get(12), V.get(12)
        C = [V.get(4) for _ in range(4)]
        for k in range(3):
            off = L_P + (k & 1) * PPLANE + (k >> 1) * 16
            A(f"ds_read_b128 {D[4 * k:4 * k + 4]}, {self.vShiftR} offset:{off}")
            A(f"ds_read_b128 {E[4 * k:4 * k + 4]}, {self.vShiftR} offset:{off + PHALF}")
        for k in range(6):
            A(f"v_pk_add_f32 {D[2 * k:2 * k + 2]}, {D[2 * k:2 * k + 2]}, {E[2 * k:2 * k + 2]}")
        for c in range(4):
            for k in range(4):
                A(f"v_cvt_pk_f16_f32 {C[c][k]}, {D[c + 2 * k]}, {D[c + 2 * k + 1]}")
            if c % 2:
                for cc in (c - 1, c):
                    A(f"ds_write_b128 {self.vShift}, {C[cc]} offset:{L_K + cc * KCOPY}")
        if not self.o["frag_in"]:
            A.barrier()
        self.shift_regs = (D, E, *C, self.vShift, self.vShiftR)
        self.stamp("shift")
        self.maybe_s1("frag")
        AC = self.AC
        self.KN = [AC.get(4, 4) for _ in range(17)]
        self.KX = AC.get(4, 4)
        self.B2 = {(k, d): AC.get(4, 4) for k in range(2) for d in (2, 3, 4)}
        self.B3 = {d: AC.get(4, 4) for d in (4, 5, 6, 7)}
        rd = {}
        for q in range(17):
            rd[str(self.KN[q])] = [f"ds_read_b64 {self.KN[q][2 * hf:2 * hf + 2]}, {self.vN} offset:{64 * (16 - q) + 8 * hf}" for hf in range(2)]
        rd[str(self.KX)] = [f"ds_read_b64 {self.KX[2 * hf:2 * hf + 2]}, {self.vN} offset:{2 * NX + 8 * hf}" for hf in range(2)]
        for (k, d), r in self.B2.items():
            rd[str(r)] = [f"ds_read_b64 {r[2 * hf:2 * hf + 2]}, {self.vF} offset:{2 * (V2[2 * k + hf] + 32 - 16 * (d - 2))}" for hf in range(2)]
        for d, r in self.B3.items():
            rd[str(r)] = [f"ds_read_b64 {r[2 * hf:2 * hf + 2]}, {self.vF} offset:{2 * (V3[hf] + 48 - 16 * (d - 4))}" for hf in range(2)]
        self.frag_reads = {}
        if self.o["frag_in"]:
            self.frag_reads = rd
        else:
            for v in rd.values():
                A("\n".join(v))
        self.maybe_s1("end")
        self.stamp("frag")

    def s1_consume(self, A, sfx):
        V = self.V
        UG = self.UG
        t0, t1 = V.get(), V.get()

        def check(C):
            for k in range(8):
                C(f"v_xor_b32 {UG[k]}, {self.tags[k % 4]}, {UG[k]}")
            C(f"v_or3_b32 {t0}, {UG[0]}, {UG[1]}, {UG[2]}\nv_or3_b32 {t1}, {UG[3]}, {UG[4]}, {UG[5]}")
            C(f"v_or3_b32 {t0}, {t0}, {UG[6]}, {UG[7]}\nv_or_b32 {t0}, {t0}, {t1}")
            C(f"v_and_b32 {t0}, {TAGMASK}, {t0}\nv_cmp_ne_u32 vcc, 0, {t0}")
        self.poll(A, "s1" + sfx, self.s1_loads, check)
        self.stamp("s1w", A)
        if self.o["warm_at"] == "s1w":
            for ln in self.warm_line:
                A(ln)
        A(f"ds_write_b128 {self.vUw}, {UG[0:4]} offset:{L_U + 512}")
        A(f"ds_write_b128 {self.vUw}, {UG[4:8]} offset:{L_U + 512 + 2048}")
        self.stamp("s1", A)
        if not self.o["early_br"]:
            A.barrier()
            self.stamp("b5", A)
        V.put(t0, t1, *self.shift_regs)

    def conv(self, A, tiles, dma):
        V, AC = self.V, self.AC
        acc = {j: V.get(4) for j in tiles}
        NF, NG, NW, NP = self.o["nf"], self.o["ng"], self.o["nw"], 6
        PE, PD, NPRE = self.o["pe"], self.o["pd"], self.o["npre"]
        Fb = [AC.get(4, 4) for _ in range(NF)]
        Gb = [AC.get(4, 4) for _ in range(NG)]
        Wb = [V.get(4) for _ in range(NW)]
        Pb = [V.get(4) for _ in range(NP)]
        EY, EZ = V.get(4), V.get(2)
        qmax = {0: 7, 1: 15}
        b2 = sorted({j - d for j in tiles for d in (2, 3, 4) if j - d >= 0})
        b3 = sorted({j - d for j in tiles for d in (4, 5, 6, 7) if j - d >= 0})
        nlo = min(8 * j - qmax.get(j, 16) for j in tiles)
        nhi = 8 * max(tiles)
        near = []
        for fi, n in enumerate(range(nlo, nhi + 1)):
            for j in tiles:
                q = 8 * j - n
                if 0 <= q <= qmax.get(j, 16):
                    near.append((j, self.KN[q], fi, q == 0))
        far = []
        gfr, pcount = [], 0
        for b in sorted(set(b2) | set(b3)):
            ga, gb = len(gfr), len(gfr) + 1
            gfr += [256 * b - 16, 256 * b - 24]
            mains = []
            if b in b2:
                pa, pb = pcount, pcount + 1
                pcount += 2
                far += [("band", ga, (12, 1), pa, 0), ("band", ga, (8, 2), pa, 1), ("band", gb, (12, 1), pb, 0), ("band", gb, (8, 2), pb, 1)]
                mains += [("main", b + d, pa, self.B2[(0, d)]) for d in (2, 3, 4) if b + d in tiles]
                mains += [("main", b + d, pb, self.B2[(1, d)]) for d in (2, 3, 4) if b + d in tiles]
            if b in b3:
                pc = pcount
                pcount += 1
                far += [("band", ga, (8, 3), pc, 0), ("band", gb, (8, 4), pc, 1)]
                mains += [("main", b + d, pc, self.B3[d]) for d in (4, 5, 6, 7) if b + d in tiles]
            if b + 4 in tiles:
                far.append(("x", b + 4, ga))
            far += mains
        LAT = self.o["lat"]
        mf, fill = [], []
        started, done_at = set(), {}
        fuse, guse, plast, pready = {}, {}, {}, {}
        wcount = 0
        ni = 0
        farleft = list(far)
        span = self.o["far_span"][0 if 0 in tiles else 1]
        credit = 0.0

        def acc_mf(j, a, b):
            mf.append(f"v_mfma_f32_16x16x32_f16 {acc[j]}, {a}, {b}, {acc[j] if j in started else 0}")
            started.add(j)

        def far_ok(it):
            t = len(mf)
            if it[0] == "main":
                return pready.get(it[2], 10 ** 6) <= t
            if it[0] == "band":
                prev = it[3] - NP
                return prev < 0 or not any(o[0] == "main" and o[2] == prev for o in farleft)
            return True

        while ni < len(near) or farleft:
            t = len(mf)
            want_far = farleft and (credit >= 1.0 or ni >= len(near))
            if ni < len(near) and near[ni][3] and any(o[0] in ("main", "x") and o[1] == near[ni][0] for o in farleft):
                want_far = True
            pick = None
            if want_far:
                for it in farleft[:8]:
                    if far_ok(it):
                        if it[0] == "band" and any(o[0] == "band" for o in farleft[:farleft.index(it)]):
                            continue
                        pick = it
                        break
            if pick is None and ni < len(near) and not (near[ni][3] and any(o[0] in ("main", "x") and o[1] == near[ni][0] for o in farleft)):
                j, a, fi, last = near[ni]
                ni += 1
                acc_mf(j, a, Fb[fi % NF])
                fuse.setdefault(fi, [t, t])[1] = t
                if last:
                    done_at[j] = t
                credit += len(far) / span
                continue
            assert pick is not None, "conv schedule is stuck"
            farleft.remove(pick)
            credit -= 1.0
            if pick[0] == "band":
                _, g, key, p, hf = pick
                w = Wb[wcount % NW]
                wcount += 1
                mf.append(f"v_mfma_f32_16x16x32_f16 {w}, {Gb[g % NG]}, {self.BAND[key]}, 0")
                guse.setdefault(g, [t, t])[1] = t
                for k in range(2):
                    fill.append([t + self.o["cvt0"], t + LAT - 1, f"v_cvt_pk_f16_f32 {Pb[p % NP][2 * hf + k]}, {w[2 * k]}, {w[2 * k + 1]}", None])
                if hf == 1:
                    pready[p] = t + LAT
            elif pick[0] == "x":
                acc_mf(pick[1], self.KX, Gb[pick[2] % NG])
                guse.setdefault(pick[2], [t, t])[1] = t
            else:
                acc_mf(pick[1], Pb[pick[2] % NP], pick[3])
        nm = len(mf)
        pre = []
        reads = []
        for fi in sorted(fuse):
            txt = f"ds_read_b128 {Fb[fi % NF]}, {self.vUf} offset:{512 + 2 * (32 * (nlo + fi) - 16)}"
            reads.append((fuse[fi][0], fuse[fi - NF][1] if fi >= NF else -1, txt))
        for g in sorted(guse):
            txt = f"ds_read_b128 {Gb[g % NG]}, {self.vUf} offset:{512 + 2 * gfr[g]}"
            reads.append((guse[g][0], guse[g - NG][1] if g >= NG else -1, txt))
        seen = set()
        for t, txt in enumerate(mf):
            for name, two in self.frag_reads.items():
                if name not in seen and f" {name}," in txt:
                    seen.add(name)
                    reads += [(t, -1, two[0]), (t, -1, two[1])]
        reads.sort(key=lambda r: r[0])
        for first, free, txt in reads:
            if free < 0 and first <= NPRE:
                pre.append(txt)
            else:
                assert free < first
                fill.append([max(free, first - PE, 0), max(free, first - PD, 0), txt, None])
        order_t = sorted(tiles, key=lambda j: done_at[j])
        for k, j in enumerate(order_t):
            t = done_at[j]
            nxt = done_at[order_t[k + 1]] if k + 1 < len(order_t) else nm + 100
            seq2 = [f"v_mul_f32 {EY[r]}, {acc[j][r]}, {self.vG16}" for r in range(4)]
            seq2 += [f"v_cvt_pk_bf16_f32 {EZ[r]}, {EY[2 * r]}, {EY[2 * r + 1]}" for r in range(2)]
            seq2.append(f"ds_write_b64 {self.vZw}, {EZ} offset:{L_Z + 1024 * j}")
            for txt in seq2:
                fill.append([t + self.o["cvt0"], min(t + 12, nxt + 2), txt, f"e2_{j}"])
        for txt in pre:
            A(txt)
        for i, f in enumerate(fill):
            f.append(i)
        left = list(fill)
        bg = list(self.bg)
        A.prewait([mf[0]])
        for t in range(nm):
            A(mf[t])
            chosen = []
            for f in sorted([f for f in left if f[0] <= t], key=lambda f: (f[1], f[4])):
                if len(chosen) >= 2 and f[1] > t:
                    break
                if f[3] and any(g[3] == f[3] and g[4] < f[4] and g not in chosen for g in left):
                    continue
                mem = isinstance(f[2], tuple) or f[2].startswith("ds_")
                if mem and f[1] > t and any(g[3] == f[3] and f[3] for g in chosen):
                    continue
                chosen.append(f)
            memf = [f for f in chosen if (isinstance(f[2], tuple) or f[2].startswith("ds_")) and not any(g[3] == f[3] and f[3] and g[4] < f[4] for g in chosen)]
            rest = [f for f in chosen if f not in memf]
            c0 = A.count
            A.prewait([f[2] for f in chosen if not isinstance(f[2], tuple)] + ([mf[t + 1]] if t + 1 < nm else []))
            ns, nv = A.count - c0, len(chosen)
            while bg and isinstance(bg[0], str) and bg[0].startswith("s_") and ns + nv < 3 and t >= self.o["bg_from"]:
                A(bg.pop(0))
                ns += 1
            nv += max(0, ns - 1)
            if bg and not memf and nv < 2 and (isinstance(bg[0], tuple) or bg[0].startswith("global_")):
                item = bg.pop(0)
                A("\n".join(item) if isinstance(item, tuple) else item, tag="poison3" if isinstance(item, tuple) else None)
                nv += 1
            for f in memf + rest:
                A(f[2])
                left.remove(f)
            while bg and nv < 2 and isinstance(bg[0], str) and bg[0].startswith("v_") and t >= self.o["bg_from"]:
                A(bg.pop(0))
                nv += 1
        self.bg_left = max(getattr(self, "bg_left", 0), len(bg))
        tail_bg = bg
        for item in tail_bg:
            A("\n".join(item) if isinstance(item, tuple) else item, tag="poison3" if isinstance(item, tuple) else None)
        for f in sorted(left, key=lambda f: (f[1], f[4])):
            A(f[2])
        self.nmfma = getattr(self, "nmfma", []) + [nm]
        V.put(*acc.values(), *Wb, *Pb, EY, EZ)
        AC.put(*Fb, *Gb)

    def dma_plan(self, A, role):
        V = self.V
        vL, sW = self.vL, self.sW
        t0, t1 = V.get(), V.get()
        self.vWa = V.get()
        if role == 0:
            A(f"""
            s_lshl_b32 {self.sWb}, {sW}, 13
            s_add_u32 {self.sWb}, {self.sWb}, {L_STAGE}
            s_lshl_b32 s3, {sW}, 7
            v_lshrrev_b32 {t0}, 2, {vL}
            v_add_u32 {t0}, s3, {t0}
            v_mul_u32_u24 {t0}, 3584, {t0}
            v_and_b32 {t1}, 3, {vL}
            v_lshl_add_u32 {t0}, {t1}, 4, {t0}
            s_lshl_b32 s3, {self.sBlk}, 6
            v_add_u32 {self.vWa}, s3, {t0}
            s_cmp_eq_u32 {self.sUp}, 0
            s_cselect_b32 s4, s22, s24
            s_cselect_b32 s5, s23, s25
            """)
            n, step = 8, 16 * 3584
        else:
            A(f"""
            s_mul_i32 {self.sWb}, {sW}, 14336
            s_add_u32 {self.sWb}, {self.sWb}, {L_STAGE}
            s_mul_i32 s3, {sW}, 448
            v_lshrrev_b32 {t0}, 1, {vL}
            v_add_u32 {t0}, s3, {t0}
            v_lshlrev_b32 {t0}, 10, {t0}
            v_and_b32 {t1}, 1, {vL}
            v_lshl_add_u32 {t0}, {t1}, 4, {t0}
            s_lshl_b32 s3, {self.sBlk}, 5
            v_add_u32 {self.vWa}, s3, {t0}
            s_mov_b64 s[4:5], s[26:27]
            """)
            n, step = 14, 0x8000
        V.put(t0, t1)
        return [(f"s_add_u32 m0, {self.sWb}, {m * 1024}" + (f"\ns_add_u32 s4, s4, {step}\ns_addc_u32 s5, s5, 0" if m else ""),
                 f"global_load_lds_dwordx4 {self.vWa}, s[4:5]") for m in range(n)]

    def conv_all(self):
        A = self.A
        nb = self.nwarm if self.o["warm_at"] == "pre" else 0
        for ln in self.bg[:nb]:
            A(ln)
        self.bg = self.bg[nb:]
        self.s1_consume(A, "")
        first, second = ([5, 6, 7], [0, 1, 2, 3, 4]) if self.o["b_first"] else ([0, 1, 2, 3, 4], [5, 6, 7])
        A(f"s_cmp_eq_u32 {self.sH}, {int(self.o['b_first'])}\ns_cbranch_scc0 L_conv_b")
        B = A.fork()
        if self.o["early_br"]:
            A.barrier()
            self.stamp("b5", A)
        self.conv(A, first, [])
        A.wait_tag("poison3")
        A.wait(lg=0)
        A.flush()
        A("s_branch L_conv_done")
        B.label("L_conv_b")
        if self.o["early_br"]:
            B.barrier()
            self.stamp("b5", B)
        self.conv(B, second, [])
        B.wait_tag("poison3")
        B.wait(lg=0)
        assert [t for _, t in A.vm] == [t for _, t in B.vm]
        B.flush()
        A.lines += B.lines
        A.count += B.count
        A.nops += B.nops
        A.label("L_conv_done")
        self.V.put(*self.bgtmp)
        self.V.put(*self.BAND.values(), self.vUf, self.vZw, self.vG16, self.UG, self.vUw,
                   self.vS1i, self.vS1i2, self.vN, self.vF)
        self.AC.put(*self.KN, self.KX, *self.B2.values(), *self.B3.values())
        self.stamp("conv", A)
        A("s_barrier")
        self.stamp("b6", A)
        self.ZT = ZT = self.V.get(8)
        A(f"ds_read_b128 {ZT[0:4]}, {self.vZr} offset:{L_Z}\nds_read_b128 {ZT[4:8]}, {self.vZr} offset:{L_Z + 4096}")
        A(f"global_store_dwordx4 {self.vS2o}, {ZT[0:4]}, s[30:31] sc1", tag="s2st")
        A(f"global_store_dwordx4 {self.vS2o2}, {ZT[4:8]}, s[30:31] sc1", tag="s2st")
        if self.o["poison_at"] == "pub":
            self.vFl = self.V.get()
            A(f"global_load_dword {self.vFl}, {self.vFi}, s[30:31] sc1")
        self.stamp("st2", A)
        self.V.put(self.vZr, self.vS2o, self.vS2o2)

    def poison_check(self, regs, t0):
        def chk(C):
            r = list(regs)
            if len(r) == 1:
                C(f"v_cmp_eq_u32 vcc, -1, {r[0]}")
                return
            C(f"v_max3_u32 {t0}, {r[0]}, {r[1]}, {r[2] if len(r) > 2 else r[1]}")
            r = r[3:]
            while r:
                C(f"v_max3_u32 {t0}, {t0}, {r[0]}, {r[1] if len(r) > 1 else r[0]}")
                r = r[2:]
            C(f"v_cmp_eq_u32 vcc, -1, {t0}")
        return chk

    def phase_c(self):
        A, V = self.A, self.V
        vL, vI, vG, sL, sW = self.vL, self.vI, self.vG, self.sL, self.sW
        get = V.get
        self.t = t0, t1, t2 = get(), get(), get()
        vSW, vKw, vS3o, vRo = get(), get(), get(), get()
        self.vS3i = get()
        vHr = self.vHr
        XL, XH, UD = get(8), get(8), Multi([get(4) for _ in range(4)])
        if self.o.get("s2_order") == 0:
            A.wait(vm=0)
        for j in range(8):
            A(f"v_lshlrev_b32 {XL[j]}, 16, {self.XA[j]}")
            A(f"v_and_b32 {XH[j]}, 0xffff0000, {self.XA[j]}")
        A(f"v_lshlrev_b32 {t0}, 16, {self.vDk}\nv_and_b32 {t1}, 0xffff0000, {self.vDk}")
        A(f"v_mul_f32 {t0}, 0x41800000, {t0}\nv_mul_f32 {t1}, 0x41800000, {t1}")
        for e in range(2):
            G = self.G[e]
            if e == 1 and self.o.get("s2_order") == 1:
                A.wait(vm=0)
            for q in range(4):
                A(f"v_and_b32 {G[q]}, {G[q]}, {self.vMask}")
            for j in range(8):
                A(f"v_fma_mix_f32 {UD[8 * e + j]}, {G[j // 2]}, {(t0, t1)[e]}, 0 op_sel:[{j % 2},0,0] op_sel_hi:[1,0,0]")
            for j in range(8):
                self.rnd(A, UD[8 * e + j], UD[8 * e + j])
        V.put(*self.G, self.vMask, self.vDk)
        if self.o.get("s2_order") == 2:
            A.wait(vm=0)
        for k in range(8):
            A(f"v_dot2_f32_bf16 {vSW}, {self.WR[k]}, {self.sOnes}, {vSW if k else 0}")
        self.allreduce(A, "v_add_f32", [vSW], 32)
        A(f"""
        v_and_b32 {t0}, 31, v0
        v_lshlrev_b32 {t0}, 4, {t0}
        v_lshlrev_b32 {vKw}, 2, {self.vTau}
        s_lshl_b32 s3, {sW}, 13
        s_lshl_b32 s16, {sL}, 4
        s_add_u32 s3, s3, s16
        s_add_u32 s3, s3, {WS_S3}
        v_lshl_add_u32 {vS3o}, {vL}, 12, s3
        s_lshr_b32 s3, {sL}, 5
        s_lshl_b32 s3, s3, 12
        s_add_u32 s16, s3, {WS_S3}
        v_lshl_add_u32 {self.vS3i}, v0, 4, s16
        s_lshl_b32 s16, {sL}, 11
        s_add_u32 s16, s16, {WS_ROWS}
        v_add_u32 {vRo}, s16, {t0}
        s_lshl_b32 s3, {sL}, 3
        s_sub_u32 s3, 2047, s3
        v_sub_u32 {t2}, s3, {self.vTau}
        v_mov_b32 {t1}, 0
        """)
        if self.o["dma_ack2"] and self.o["dma_at"] != "none":
            A(f"s_cmp_eq_u32 {self.sRole}, 2\ns_cbranch_scc1 L_dma_done")
            A(f"s_cmp_eq_u32 {self.sRole}, 1\ns_cbranch_scc1 L_dma_r1")
            keep = list(A.vm)
            for role in (0, 1):
                if role:
                    A.label("L_dma_r1")
                plan = self.dma_plan(A, role)
                n = len(plan) if role == 0 else self.o["dma_ack2"]
                for a, b in plan[:n]:
                    A(a)
                    A(b, tag="dma")
                if role == 0:
                    A("s_branch L_dma_done")
                    V.put(self.vWa)
                else:
                    self.plan1 = plan[n:]
            A.label("L_dma_done")
        if self.o["dma0_ack2"] and self.o["dma_at"] != "none":
            A(f"s_cmp_eq_u32 {self.sRole}, 0\ns_cbranch_scc0 L_dma0_done")
            for a, b in self.dma_plan(A, 0):
                A(a)
                A(b, tag="dma")
            V.put(self.vWa)
            A.label("L_dma0_done")
        early = self.o["dma_s2"] and self.o["dma_at"] != "none"
        if early:
            A(f"s_cmp_eq_u32 {self.sRole}, 1\ns_cbranch_scc1 L_plan1")
            p0 = self.dma_plan(A, 0)
            keep = self.vWa
            A("s_branch L_plan_done")
            A.label("L_plan1")
            V.put(keep)
            p1 = self.dma_plan(A, 1)
            assert str(keep) == str(self.vWa)
            A.label("L_plan_done")
        self.stamp("dma", A)
        if not self.o.get("s2_noack"):
            A.wait(vm=0)
        if self.o["poison_at"] == "pub":
            self.poll(A, "flg", lambda C: C(f"global_load_dword {self.vFl}, {self.vFi}, s[30:31] sc1"),
                      lambda C: C(f"v_cmp_ne_u32 vcc, {self.sE}, {self.vFl}"))
            V.put(self.vFl, self.vFi)
        self.stamp("ack2", A)
        ZT = self.ZT

        def s2_loads(C):
            C(f"global_load_dwordx4 {ZT[0:4]}, {self.vS2i}, s[30:31] sc1")
            C(f"global_load_dwordx4 {ZT[4:8]}, {self.vS2i2}, s[30:31] sc1")
        s2_loads(A)
        self.poll(A, "s2", s2_loads, self.poison_check([ZT[k] for k in range(8)], t0))
        self.stamp("s2", A)
        if early:
            n1 = self.o["dma_s2"] - 1
            A(f"s_cmp_eq_u32 {self.sRole}, 0\ns_cbranch_scc0 L_dma_n0")
            for a, b in p0:
                A(a)
                A(b)
            A.label("L_dma_n0")
            if n1:
                A(f"s_cmp_eq_u32 {self.sRole}, 1\ns_cbranch_scc0 L_dma_n1")
                for a, b in p1[:n1]:
                    A(a)
                    A(b)
                A.label("L_dma_n1")
            A.vm = []
            self.plan1 = p1[n1:]
        HP = get(8)
        self.T = T = get(8)
        for grp in range(2):
            for jj in range(4):
                j = 4 * grp + jj
                sel = self.sHi if j % 2 else self.sLo
                A(f"v_dot2_f32_bf16 {T[jj]}, {ZT[j // 2]}, {sel}, {UD[j]}")
                A(f"v_dot2_f32_bf16 {T[4 + jj]}, {ZT[4 + j // 2]}, {sel}, {UD[8 + j]}")
            for k in range(8):
                self.rnd(A, T[k], T[k])
            for q in range(2):
                j = 4 * grp + 2 * q
                A(f"v_pk_add_f32 {T[2 * q:2 * q + 2]}, {T[2 * q:2 * q + 2]}, {XL[j:j + 2]}")
                A(f"v_pk_add_f32 {T[4 + 2 * q:6 + 2 * q]}, {T[4 + 2 * q:6 + 2 * q]}, {XH[j:j + 2]}")
            for jj in range(4):
                A(f"v_cvt_pk_bf16_f32 {HP[4 * grp + jj]}, {T[jj]}, {T[4 + jj]}")
            for q in range(2):
                j = 4 * grp + 2 * q
                A(f"ds_write2st64_b32 {self.vHw2}, {HP[j]}, {HP[j + 1]} offset0:{4 * j} offset1:{4 * j + 4}")
        self.stamp("hw", A)
        A.barrier()
        self.stamp("b7", A)
        V.put(XL, XH, *UD.groups, HP, ZT, self.vS2i, self.vS2i2, self.XA)
        HB = get(8)
        A(f"ds_read_b128 {HB[0:4]}, {vHr} offset:{L_H}\nds_read_b128 {HB[4:8]}, {vHr} offset:{L_H + 512}")
        s1, s2, s3, NM, RS = get(), get(), get(), get(2), get(2)
        self.key = key = get()
        for k in range(8):
            A(f"v_dot2_f32_bf16 {s1}, {HB[k]}, {self.sOnes}, {s1 if k else 0}")
            A(f"v_dot2_f32_bf16 {s2}, {HB[k]}, {HB[k]}, {s2 if k else 0}")
            A(f"v_dot2_f32_bf16 {s3}, {HB[k]}, {self.WR[k]}, {s3 if k else 0}")
        self.allreduce(A, "v_add_f32", [s1, s2, s3], 32)
        self.ln_stats(A, s1, s2, NM[0], RS[0])
        A(f"v_fma_f32 {s3}, {NM[0]}, {vSW}, {s3}\nv_mul_f32 {s3}, {s3}, {RS[0]}")
        self.rnd(A, s3, s3)
        A(f"""
        v_ashrrev_i32 {t0}, 31, {s3}
        v_or_b32 {t0}, 0x80000000, {t0}
        v_xor_b32 {t0}, {s3}, {t0}
        v_and_b32 {t0}, 0xffff0000, {t0}
        v_or_b32 {key}, {t0}, {t2}
        s_mov_b64 exec, 1
        s_bitset1_b64 exec, 32
        ds_write_b32 {vKw}, {key} offset:{L_KEY}
        s_mov_b64 exec, -1
        """)
        self.stamp("key", A)
        V.put(self.WR, vSW, s1, s2, s3, vKw)
        H32 = Multi([get(4) for _ in range(4)])
        late = self.o.get("late_unpack")
        for k in range(0 if late else 8):
            A(f"v_lshlrev_b32 {H32[2 * k]}, 16, {HB[k]}\nv_and_b32 {H32[2 * k + 1]}, 0xffff0000, {HB[k]}")
        A.barrier()
        self.kmax = kmax = get()
        A(f"ds_read_b128 {T[0:4]}, {t1} offset:{L_KEY}\nds_read_b128 {T[4:8]}, {t1} offset:{L_KEY + 16}")
        HN = Multi([get(4) for _ in range(2)])
        self.D = D = Multi([get(4) for _ in range(8)])
        A(f"v_mov_b32 {NM[1]}, {NM[0]}\nv_mov_b32 {RS[1]}, {RS[0]}")
        for k in range(8):
            if not late:
                A(f"v_pk_add_f32 {D[2 * k:2 * k + 2]}, {H32[2 * k:2 * k + 2]}, {NM}")
            elif k < 5:
                A(f"v_lshlrev_b32 {H32[2 * k]}, 16, {HB[k]}\nv_and_b32 {H32[2 * k + 1]}, 0xffff0000, {HB[k]}")
        A(f"v_max3_u32 {kmax}, {T[0]}, {T[1]}, {T[2]}\nv_max3_u32 {t0}, {T[3]}, {T[4]}, {T[5]}")
        A(f"v_max3_u32 {kmax}, {kmax}, {T[6]}, {T[7]}\nv_max_u32 {kmax}, {kmax}, {t0}")
        A("s_mov_b64 exec, 3")
        A(f"global_store_dword {vS3o}, {kmax}, s[30:31] sc1", tag="s3st")
        A("s_mov_b64 exec, -1")
        self.stamp("pub3", A)
        sC = self.sC
        A(f"v_cmp_eq_u32 {sC}, {key}, {kmax}")
        if late:
            for k in range(5, 8):
                A(f"v_lshlrev_b32 {H32[2 * k]}, 16, {HB[k]}\nv_and_b32 {H32[2 * k + 1]}, 0xffff0000, {HB[k]}")
            for k in range(8):
                A(f"v_pk_add_f32 {D[2 * k:2 * k + 2]}, {H32[2 * k:2 * k + 2]}, {NM}")
        for k in range(16):
            self.rnd(A, D[k], D[k])
        for k in range(8):
            A(f"v_pk_mul_f32 {D[2 * k:2 * k + 2]}, {D[2 * k:2 * k + 2]}, {RS}")
        for k in range(8):
            A(f"v_cvt_pk_bf16_f32 {HN[k]}, {D[2 * k]}, {D[2 * k + 1]}")
        A(f"s_mov_b64 exec, {sC}")
        A(f"global_store_dwordx4 {vRo}, {HN[0:4]}, s[30:31] sc1", tag="rowst")
        A(f"global_store_dwordx4 {vRo}, {HN[4:8]}, s[30:31] offset:512 sc1", tag="rowst")
        A(f"global_store_dwordx4 {vRo}, {HB[0:4]}, s[30:31] offset:1024 sc1", tag="rowst")
        A(f"global_store_dwordx4 {vRo}, {HB[4:8]}, s[30:31] offset:1536 sc1", tag="rowst")
        A("s_mov_b64 exec, -1")
        self.stamp("hn", A)
        self.O = O = Multi([get(4) for _ in range(2)])
        for k in range(8):
            A(f"v_dot2_f32_bf16 {D[2 * k]}, {HN[k]}, {self.sLo}, {H32[2 * k]}")
            A(f"v_dot2_f32_bf16 {D[2 * k + 1]}, {HN[k]}, {self.sHi}, {H32[2 * k + 1]}")
        for k in range(8):
            A(f"v_cvt_pk_bf16_f32 {O[k]}, {D[2 * k]}, {D[2 * k + 1]}")
        self.stamp("outc", A)
        V.put(*H32.groups, NM, RS, vS3o, vRo)

    def out_stores(self, C):
        pol = self.o["out_pol"]
        C(f"global_store_dwordx4 {self.vRow}, {self.O[0:4]}, s[28:29] {pol}", tag="out")
        C(f"global_store_dwordx4 {self.vRow}, {self.O[4:8]}, s[28:29] offset:512 {pol}", tag="out")

    def resolve(self, A, sfx, between=None):
        t0, t1, t2 = self.t
        T, kin = self.T, self.kin

        def s3_loads(C):
            C(f"global_load_dword {kin}, {self.vS3i}, s[30:31] sc1")
        s3_loads(A)
        if between:
            between()
        A(f"v_lshrrev_b32 {t1}, 4, v0\nv_and_b32 {t1}, 12, {t1}\nv_mov_b32 {t2}, 0")
        self.poll(A, "s3" + sfx, s3_loads, self.poison_check([kin], t0))
        self.stamp("s3p", A)
        self.allreduce(A, "v_max_u32", [kin], 64)
        self.stamp("s3w", A)
        A(f"s_mov_b64 exec, 1\nds_write_b32 {t1}, {kin} offset:{L_KEY2}\ns_mov_b64 exec, -1")
        A.barrier()
        A(f"ds_read_b128 {T[0:4]}, {t2} offset:{L_KEY2}")
        A(f"v_max3_u32 {kin}, {T[0]}, {T[1]}, {T[2]}\nv_max_u32 {kin}, {kin}, {T[3]}")
        A(f"v_readfirstlane_b32 {self.sK}, {kin}")
        A(f"s_and_b32 {self.sT}, {self.sK}, 0x7ff\ns_sub_u32 {self.sT}, 2047, {self.sT}")
        self.stamp("s3", A)
        A(f"s_lshr_b32 s3, {self.sT}, 3\ns_lshl_b32 s3, s3, 11\ns_add_u32 s3, s3, {WS_ROWS}")

    def finish(self, A, sfx):
        A.flush()
        A.label(f"L_fin_{sfx}")
        if self.o["stamps"]:
            A.wait(vm=0)
            self.stamp("end", A)
            if self.o["clk"]:
                A("s_memtime s[96:97]")
                A.wait(lg=0)
                A("s_sub_u32 s100, s96, s100\ns_mov_b32 s101, 0")
            A("s_waitcnt vmcnt(0) lgkmcnt(0)")
            self.dump_stamps(A)
        A("s_endpgm")

    def tail0(self, A):
        V = self.V
        get = V.get
        vL, vI, vG, sL, sW, sC = self.vL, self.vI, self.vG, self.sL, self.sW, self.sC
        t0, t1, t2 = self.t
        T, D = self.T, self.D
        vTr, vRed, vXs, vPub, vRd = get(), get(), get(), get(), get()
        WT = [self.AC.get(4, 4) for _ in range(8)]
        plan = [] if self.o["dma_ack2"] or self.o["dma0_ack2"] or self.o["dma_s2"] else self.dma_plan(A, 0)
        if self.o["dma_at"] == "none":
            plan = []

        def dma():
            for a, b in plan:
                A(a)
                A(b, tag="dma")
        if not self.o["r0_late"]:
            dma()
        A(f"""
        v_and_b32 {t0}, 3, {vI}
        v_lshlrev_b32 {t0}, 3, {t0}
        v_lshrrev_b32 {t1}, 2, {vI}
        v_lshl_add_u32 {t1}, {vG}, 3, {t1}
        v_lshl_add_u32 {t0}, {t1}, 6, {t0}
        v_add_u32 {vTr}, {self.sWb}, {t0}
        """)

        def tr_reads():
            A.wait_tag("dma")
            for ct in range(2):
                for m in range(4):
                    for e2 in range(2):
                        A(f"ds_read_b64_tr_b16 {WT[4 * ct + m][2 * e2:2 * e2 + 2]}, {vTr} offset:{(32 * m + 4 * e2) * 64 + 32 * ct}")
        A(f"""
        s_lshl_b32 s3, {sW}, 2
        v_lshl_add_u32 {vRed}, {vI}, 4, s3
        v_and_b32 {t0}, 3, {vI}
        v_lshlrev_b32 {t0}, 6, {t0}
        v_lshl_add_u32 {t0}, {vG}, 4, {t0}
        s_lshl_b32 s3, {sW}, 8
        v_add_u32 {vXs}, s3, {t0}
        v_and_b32 {t0}, 31, {vL}
        v_lshlrev_b32 {vRd}, 4, {t0}
        v_lshrrev_b32 {t1}, 5, {vL}
        v_lshlrev_b32 {t1}, 13, {t1}
        v_lshl_add_u32 {t1}, {t0}, 1, {t1}
        s_lshl_b32 s3, {sW}, 14
        s_lshl_b32 s16, {self.sUp}, 12
        s_add_u32 s3, s3, s16
        s_lshl_b32 s16, {self.sBlk}, 6
        s_add_u32 s3, s3, s16
        s_add_u32 s3, s3, {WS_S4}
        v_add_u32 {vPub}, s3, {t1}
        """)
        A.wait_tag("s3st")
        self.stamp("ack3", A)

        late_out = self.o["r0_late"] == 2

        def between():
            if self.o["r0_late"]:
                dma()
            if not late_out:
                A(f"s_andn2_b64 exec, -1, {sC}")
                self.out_stores(A)
                A("s_mov_b64 exec, -1")
            if not self.o["r0_late"]:
                tr_reads()
        self.resolve(A, "r0", between)
        XS = get(4)
        A(f"v_add_u32 {vXs}, s3, {vXs}")

        def row_loads(C):
            C(f"global_load_dwordx4 {XS}, {vXs}, s[30:31] sc1")
        row_loads(A)
        if late_out:
            A(f"v_cmp_ne_u32 {sC}, {self.kin}, {self.key}")
        else:
            A(f"v_cmp_ne_u32 vcc, {self.kin}, {self.kmax}\ns_and_b64 exec, vcc, {sC}")
            self.out_stores(A)
            A("s_mov_b64 exec, -1")
        if getattr(self, "late_barrier", False):
            A("s_barrier")
            self.late_barrier = False
        if self.o["r0_late"]:
            tr_reads()
        self.poll(A, "rowr0", row_loads, self.poison_check([XS[k] for k in range(4)], t0))
        self.stamp("row", A)
        for k in range(8):
            A(f"v_mfma_f32_16x16x32_bf16 {D[4 * k:4 * k + 4]}, {XS}, {WT[k]}, 0")
        A(f"s_cmp_eq_u32 {self.sUp}, 0\ns_cselect_b64 s[16:17], -1, 0")
        A(f"""
        v_add_f32 {t0}, {D[0]}, {D[5]}
        v_add_f32 {t1}, {D[10]}, {D[15]}
        v_add_f32 {t0}, {t0}, {t1}
        v_add_f32 {t1}, {D[16]}, {D[21]}
        v_add_f32 {t2}, {D[26]}, {D[31]}
        v_add_f32 {t1}, {t1}, {t2}
        s_mov_b64 exec, 0xffff
        ds_write_b32 {vRed}, {t0} offset:{L_RED}
        ds_write_b32 {vRed}, {t1} offset:{L_RED + 256}
        s_mov_b64 exec, -1
        """)
        self.stamp("g1m", A)
        A.barrier()
        self.stamp("g1b", A)
        A(f"ds_read_b128 {T[0:4]}, {vRd} offset:{L_RED}")
        A(f"v_pk_add_f32 {T[0:2]}, {T[0:2]}, {T[2:4]}\nv_add_f32 {T[0]}, {T[0]}, {T[1]}")
        self.rnd(A, T[0], T[0])
        A(f"v_mul_f32 {t0}, {LOG2E | 0x80000000}, {T[0]}\nv_exp_f32 {t0}, {t0}\nv_add_f32 {t0}, 1.0, {t0}")
        A(f"v_rcp_f32 {t0}, {t0}\nv_mul_f32 {t0}, {T[0]}, {t0}")
        A(f"v_cndmask_b32 {t0}, {T[0]}, {t0}, s[16:17]")
        A(f"v_mov_b32_dpp {t1}, {t0} row_shl:1 row_mask:0xf bank_mask:0xf")
        A(f"v_cvt_pk_bf16_f32 {XS[0]}, {t0}, {t1}")
        for k in range(1, 4):
            A(f"v_mov_b32_dpp {XS[k]}, {XS[0]} row_shl:{2 * k} row_mask:0xf bank_mask:0xf")
        A("s_mov_b32 exec_lo, 0x01010101\ns_mov_b32 exec_hi, 0x01010101")
        A(f"global_store_dwordx4 {vPub}, {XS}, s[30:31] sc1")
        self.stamp("g1", A)
        if late_out:
            if self.o.get("r0_ackout"):
                A.wait(vm=0)
            A(f"s_mov_b64 exec, {sC}")
            self.out_stores(A)
        self.finish(A, "r0")

    def tail2(self, A):
        if self.o.get("r2_mode") == 2:
            A.wait_tag("s3st")
            A(f"s_andn2_b64 exec, -1, {self.sC}")
            self.out_stores(A)
            A("s_mov_b64 exec, -1")
            A.wait(vm=0)
            self.resolve(A, "r2")
            A(f"v_cmp_ne_u32 vcc, {self.kin}, {self.kmax}\ns_and_b64 exec, vcc, {self.sC}")
            self.out_stores(A)
            self.finish(A, "r2")
            return
        A.wait_tag("rowst" if self.o.get("r2_mode") == 1 else "s3st")
        self.stamp("ack3", A)

        def between():
            A(f"s_andn2_b64 exec, -1, {self.sC}")
            self.out_stores(A)
            A("s_mov_b64 exec, -1")
        if self.o["r2_late"]:
            self.resolve(A, "r2")
            A(f"v_cmp_ne_u32 vcc, {self.kin}, {self.key}\ns_mov_b64 exec, vcc")
        else:
            self.resolve(A, "r2", between)
            A(f"v_cmp_ne_u32 vcc, {self.kin}, {self.kmax}\ns_and_b64 exec, vcc, {self.sC}")
        self.out_stores(A)
        self.finish(A, "r2")

    def tail1(self, A):
        V = self.V
        get = V.get
        vL, vI, vG, sL, sW, sC = self.vL, self.vI, self.vG, self.sL, self.sW, self.sC
        t0, t1, t2 = self.t
        T, D = self.T, self.D
        plan = self.plan1 if self.o["dma_ack2"] or self.o["dma_s2"] else self.dma_plan(A, 1)
        if self.o["dma_at"] == "none":
            plan = []
        n1 = self.o["r1_split"]
        for a, b in plan[:n1]:
            A(a)
            A(b, tag="dma")
        A.wait_tag("s3st")
        self.stamp("ack3", A)

        def between():
            for a, b in plan[n1:]:
                A(a)
                A(b, tag="dma")
        self.resolve(A, "r1", between)
        vTr, vRed, vSig, vOut, vS4i = get(), get(), get(), get(), get()
        HH = get(2)
        A(f"""
        s_lshl_b32 s16, {self.sBlk}, 5
        s_add_u32 s3, s3, s16
        v_lshrrev_b32 {t1}, 1, {vI}
        v_lshl_add_u32 {t1}, {t1}, 2, s3
        """)

        def row_loads(C):
            C(f"global_load_dword {HH[0]}, {t1}, s[30:31] sc1")
            C(f"global_load_dword {HH[1]}, {t1}, s[30:31] offset:1024 sc1")
        row_loads(A)

        if getattr(self, "late_barrier", False):
            A("s_barrier")
            self.late_barrier = False

        def own_rows():
            A(f"v_cmp_eq_u32 vcc, {self.kin}, {self.key}\ns_andn2_b64 exec, -1, vcc")
            self.out_stores(A)
            A("s_mov_b64 exec, -1")
        if self.o["r1_out"] == "row":
            own_rows()
        A(f"""
        v_and_b32 {t0}, 3, {vI}
        v_lshlrev_b32 {t0}, 3, {t0}
        v_lshrrev_b32 {t2}, 2, {vI}
        v_lshl_add_u32 {t2}, {vG}, 3, {t2}
        v_lshl_add_u32 {t0}, {t2}, 5, {t0}
        v_add_u32 {vTr}, {self.sWb}, {t0}
        """)
        self.poll(A, "rowr1", row_loads, self.poison_check([HH[0], HH[1]], t0))
        self.stamp("row", A)
        WT = [self.AC.get(4, 4) for _ in range(14)]
        A.wait_tag("dma")
        if self.o["r1_out"] == "tr":
            own_rows()
        self.stamp("r1o", A)
        for m in range(14):
            for e2 in range(2):
                A(f"ds_read_b64_tr_b16 {WT[m][2 * e2:2 * e2 + 2]}, {vTr} offset:{(32 * m + 4 * e2) * 32}")
        self.stamp("r1t", A)
        sK, sT = self.sK, self.sT
        A(f"""
        s_and_b32 s16, {sK}, 0x7fff0000
        s_andn2_b32 s17, 0xffff0000, {sK}
        s_bitcmp1_b32 {sK}, 31
        s_cselect_b32 s16, s16, s17
        v_mov_b32 {t0}, s16
        v_mul_f32 {t0}, {LOG2E | 0x80000000}, {t0}
        v_exp_f32 {t0}, {t0}
        v_add_f32 {t0}, 1.0, {t0}
        v_rcp_f32 {t0}, {t0}
        """)
        self.rnd(A, vSig, t0)
        vS4u = get()
        A(f"""
        v_and_b32 {t0}, 1, {vI}
        v_xor_b32 {t0}, 1, {t0}
        v_lshlrev_b32 {t0}, 4, {t0}
        v_lshlrev_b32 {HH[0]}, {t0}, {HH[0]}
        v_lshlrev_b32 {HH[1]}, {t0}, {HH[1]}
        v_and_b32 {HH[0]}, 0xffff0000, {HH[0]}
        v_and_b32 {HH[1]}, 0xffff0000, {HH[1]}
        s_lshl_b32 s3, {sT}, 10
        s_lshl_b32 s16, {self.sBlk}, 5
        s_add_u32 s3, s3, s16
        v_lshl_add_u32 {vOut}, {vI}, 1, s3
        s_lshr_b32 s3, {sL}, 5
        s_lshl_b32 s3, s3, 13
        s_mul_i32 s16, {sW}, {56 * 16}
        s_add_u32 s3, s3, s16
        s_add_u32 s3, s3, {WS_S4}
        v_min_u32 {t0}, 13, {vI}
        v_lshl_add_u32 {t0}, {t0}, 2, {vG}
        v_lshl_add_u32 {vS4i}, {t0}, 4, s3
        v_add_u32 {vS4u}, 0x1000, {vS4i}
        s_lshl_b32 s3, {sW}, 2
        v_lshl_add_u32 {vRed}, {vI}, 4, s3
        v_mov_b32 {t2}, 0
        v_lshlrev_b32 {t1}, 4, {vI}
        """)
        if self.o["r1_out"] == "late":
            own_rows()
        A.wait(vm=0)
        self.stamp("r1a", A)
        GU, XS = Multi([get(4) for _ in range(2)]), get(4)

        def s4_loads(C):
            C(f"global_load_dwordx4 {GU[0:4]}, {vS4i}, s[30:31] sc1")
            C(f"global_load_dwordx4 {GU[4:8]}, {vS4u}, s[30:31] sc1")
        s4_loads(A)
        self.poll(A, "s4", s4_loads, self.poison_check([GU[k] for k in range(8)], t0))
        self.stamp("g1", A)
        for k in range(4):
            A(f"v_and_b32 {T[2 * k]}, 0xffff, {GU[k]}\nv_and_b32 {T[2 * k + 1]}, 0xffff0000, {GU[k]}")
        for k in range(8):
            A(f"v_dot2_f32_bf16 {T[k]}, {T[k]}, {GU[4 + k // 2]}, 0")
        for k in range(4):
            A(f"v_cvt_pk_bf16_f32 {XS[k]}, {T[2 * k]}, {T[2 * k + 1]}")
        DD = [D[4 * k:4 * k + 4] for k in range(8)]
        acc = [t2, get()]
        A(f"v_mov_b32 {acc[1]}, 0")
        for m in range(14 + 4):
            if m < 14:
                A(f"v_mfma_f32_16x16x32_bf16 {DD[m % 8]}, {XS}, {WT[m]}, 0")
            k = m - 4
            if k >= 0:
                a = acc[k % 2]
                A(f"v_add_f32_dpp {a}, {DD[k % 8][k % 4]}, {a} quad_perm:[0,1,2,3] row_mask:{1 << (k // 4)} bank_mask:0xf")
        A(f"v_add_f32 {t2}, {t2}, {acc[1]}")
        for sw in ("v_permlane16_swap_b32", "v_permlane32_swap_b32"):
            A(f"v_mov_b32 {t0}, {t2}\n{sw} {t2}, {t0}\nv_add_f32 {t2}, {t2}, {t0}")
        A(f"s_mov_b64 exec, 0xffff\nds_write_b32 {vRed}, {t2} offset:{L_RED}\ns_mov_b64 exec, -1")
        self.stamp("g2m", A)
        if self.o["r1_out"] == "end":
            own_rows()
        A.barrier()
        A(f"s_cmp_eq_u32 {sW}, 0\ns_cbranch_scc0 L_fin_r1")
        A(f"ds_read_b128 {T[0:4]}, {t1} offset:{L_RED}")
        A(f"v_pk_add_f32 {T[0:2]}, {T[0:2]}, {T[2:4]}\nv_add_f32 {t0}, {T[0]}, {T[1]}")
        self.rnd(A, t0, t0)
        A(f"v_mul_f32 {t0}, {t0}, {vSig}")
        self.rnd(A, t0, t0)
        A(f"v_add_f32 {t0}, {t0}, {HH[0]}")
        self.rnd(A, t0, t0)
        A(f"v_add_f32 {t0}, {t0}, {HH[1]}")
        self.rnd(A, t0, t0)
        A("s_mov_b64 exec, 0xffff")
        A(f"global_store_short_d16_hi {vOut}, {t0}, s[28:29] {self.o['fin_pol']}")
        self.stamp("g2", A)
        A(f"s_cmp_eq_u32 {self.sBlk}, 0\ns_cbranch_scc0 L_fin_r1")
        A("s_mov_b64 exec, 1")
        A(f"v_mov_b32 {t0}, {self.sE}\nv_mov_b32 {t2}, 0")
        A(f"global_store_dword {t2}, {t0}, s[30:31] offset:{WS_EPOCH} {self.o['fin_pol']}")
        self.finish(A, "r1")

    def build(self):
        A = self.A
        self.prologue()
        self.ksl = self.ksetup_lines()
        self.ksteps = self.kgen_steps()
        self.weave(self.o["wv"][0])
        for _ in range(self.o["kpre"]):
            next(self.ksteps)
        if self.o["poison_at"] == "kpre":
            self.poison2()
        self.ln1()
        self.kgen()
        self.sWb, self.sC, self.sK, self.sT = self.S.get(), self.S.get(2), self.S.get(), self.S.get()
        self.conv_all()
        self.phase_c()
        self.kin = self.V.get()
        A(f"s_cmp_eq_u32 {self.sRole}, 1\ns_cbranch_scc1 L_role1")
        B = A.fork()
        B.label("L_role1")
        A(f"s_cmp_eq_u32 {self.sRole}, 2\ns_cbranch_scc1 L_role2")
        C = A.fork()
        C.label("L_role2")
        vfree, afree = set(self.V.free), set(self.AC.free)
        self.tail0(A)
        self.V.free, self.AC.free = set(vfree), set(afree)
        self.tail1(B)
        self.V.free, self.AC.free = set(vfree), set(afree)
        self.tail2(C)
        B.lines += C.lines
        B.count += C.count
        body = A.text() + B.text() + "".join(c.text() for c in self.cold)
        nv = self.V.top + 1
        accum = (nv + 3) // 4 * 4
        total = max(accum + self.AC.top + 1, 264)
        head = open(f"cdna_kernels/{NAME}.s.ref").read().split("; Override launch geometry")[0]
        self.stats = dict(instr=A.count + B.count, nops=A.nops + B.nops, vgpr=nv, agpr=self.AC.top + 1, mfma=self.nmfma, bg_left=self.bg_left)
        tab = ""
        if self.o["band_tab"]:
            tab = f".p2align 7\n.type L_tab,@object\nL_tab:\n{band_table()}\n.size L_tab, 4096\n"
        return head + f"""; One persistent launch: 256 workgroups, one per CU, exchanging data through d_ws.
; @launch grid=(256,1,1) block=(256,1,1) lds={LDS_BYTES}
.amdgcn_target "amdgcn-amd-amdhsa--gfx950"
.text
.globl {NAME}_kernel
.p2align 8
.type {NAME}_kernel,@function
{NAME}_kernel:
{body}L_end:
    s_endpgm
L_code_end:
{tab}L_all_end:
.section .rodata,"a"
.p2align 6
.amdhsa_kernel {NAME}_kernel
  .amdhsa_next_free_vgpr {total}
  .amdhsa_next_free_sgpr 102
  .amdhsa_accum_offset {accum}
  .amdhsa_group_segment_fixed_size 0
  .amdhsa_kernarg_size 120
  .amdhsa_user_sgpr_count 2
  .amdhsa_user_sgpr_kernarg_segment_ptr 1
  .amdhsa_system_sgpr_workgroup_id_x 1
  .amdhsa_float_denorm_mode_32 3
.end_amdhsa_kernel
"""


def generate(path, **opt):
    g = Gen(**opt)
    text = g.build()
    open(path, "w").write(text)
    return g.stats


if __name__ == "__main__":
    out = sys.argv[1] if len(sys.argv) > 1 else f"cdna_kernels/{NAME}.s"
    opts = {}
    for a in sys.argv[2:]:
        k, v = a.split("=")
        opts[k] = {"True": True, "False": False}.get(v, int(v) if v.isdigit() else v)
    print(generate(out, **opts))
```

```python
import re
import sys
from asmdsl import Asm, Pool, R
import gen_v9 as base
from gen_v9 import *

L_G = L_KEY2 + 16
VMAX = 116
EXTRA = dict(hb1=40, prio=2, hst=False, s1_go="ack", m_wait=True)


class Gen(base.Gen):
    def __init__(self, **opt):
        o = dict(EXTRA)
        o.update(opt)
        if isinstance(o.get("h_dma"), str):
            a = [int(x) for x in o["h_dma"].split("_")]
            o["h_dma"] = ((a[0], a[1]), (a[2], a[3]))
        o["pad"] = o["pad"].replace(" ", "+")
        if o["pages"]:
            o["pad"] = "rec+dma"
        super().__init__(**o)
        self.V = Pool("v", 1, VMAX - 1)
        self.AC = Pool("a", 0, 255 - VMAX)
        self.is_h = False

    def stamp(self, name, A=None):
        if name == self.o["b8b"] and not self.is_h:
            (A or self.A)("s_barrier")
        if name in self.o["pad"].split("+") and not self.is_h:
            X = A or self.A
            X(f"s_branch L_pad_{name}")
            X.raw(".p2align 12")
            X.label(f"L_pad_{name}")
        if name == "r1o" and self.o["b9b"]:
            (A or self.A)("s_barrier")
        if self.is_h == bool(self.o["hst"]) or name == "start":
            super().stamp(name, A)

    def entry(self):
        A, V, S = self.A, self.V, self.S
        A("s_cmp_ge_u32 s2, 0x100\ns_cbranch_scc1 L_end")
        A("s_load_dwordx16 s[4:19], s[0:1], 0")
        if not self.o["karg2"]:
            self.rest_args(A)
        self.stamp("start")
        self.sL, self.sW, self.sTag, self.sE = S.get(), S.get(), S.get(), S.get()
        self.sOnes, self.sLo, self.sHi, self.sCh = S.get(), S.get(), S.get(), S.get()
        self.sB, self.sH, self.sa, self.sb = S.get(), S.get(), S.get(), S.get()
        sL, sW = self.sL, self.sW
        self.vL, self.vI, self.vG = V.get(), V.get(), V.get()
        self.vJunk = V.get(2)
        t0, t1, t2 = V.get(), V.get(), V.get()
        self.sPc = S.get(2)
        A(f"v_lshrrev_b32 {t0}, 6, v0\ns_lshr_b32 {sL}, s2, 3\ns_getpc_b64 {self.sPc}")
        A.label("L_pc")
        A(f"""
        v_lshl_add_u32 {t2}, {sL}, 3, {t0}
        v_and_b32 {t2}, 63, {t2}
        v_and_b32 {t1}, 3, v0
        v_lshl_add_u32 {t2}, {t2}, 2, {t1}
        v_lshlrev_b32 {t2}, 7, {t2}
        v_min_u32 {t2}, L_all_end-L_pc-4, {t2}
        global_load_dword {self.vJunk[0]}, {t2}, {self.sPc}
        v_readfirstlane_b32 {self.sb}, {t0}
        s_and_b32 s3, s2, 7
        s_lshl_b32 s3, s3, 5
        s_add_u32 {sL}, {sL}, s3
        v_and_b32 v0, 0xff, v0
        v_and_b32 {self.vL}, 63, v0
        s_and_b32 {sW}, {self.sb}, 3
        s_lshr_b32 {self.sB}, {sW}, 1
        s_and_b32 {self.sH}, {sW}, 1
        s_cmp_ge_u32 {self.sb}, 4
        s_cbranch_scc1 L_helper
        """)
        V.put(t0, t1, t2)

    def rest_args(self, A):
        A("s_load_dwordx8 s[20:27], s[0:1], 64\ns_load_dwordx2 s[28:29], s[0:1], 96\ns_load_dwordx2 s[30:31], s[0:1], 112")

    def helper(self, A):
        self.A, self.is_h = A, True
        if self.o["hprio"]:
            A(f"s_setprio {self.o['hprio']}")
        V, S = self.V, self.S
        sL, sW, sB, sH, sb, vL, vI, vG = self.sL, self.sW, self.sB, self.sH, self.sb, self.vL, self.vI, self.vG
        t0, t1, t2, t3, vP = V.get(), V.get(), V.get(), V.get(), V.get()
        self.PAR, self.sDt = V.get(4), S.get()
        A(f"""
        s_lshr_b32 s3, {sL}, 6
        s_lshl_b32 {self.sCh}, s3, 7
        s_and_b32 s3, {sL}, 31
        s_lshl_b32 s3, s3, 2
        s_add_u32 {self.sCh}, {self.sCh}, s3
        s_bfe_u32 s3, {sL}, 0x10005
        s_add_u32 {self.sCh}, {self.sCh}, s3
        s_and_b32 s3, {sW}, 2
        s_add_u32 {self.sCh}, {self.sCh}, s3
        s_lshl_b32 s3, {self.sCh}, 8
        v_lshl_add_u32 {vP}, {vL}, 2, s3
        s_lshl_b32 s3, {self.sCh}, 1
        s_and_b32 s3, s3, -4
        """)
        for k in range(4):
            A(f"global_load_dword {self.PAR[k]}, {vP}, s[{6 + 2 * k}:{7 + 2 * k}]")
        self.vDt = V.get()
        A(f"v_mov_b32 {self.vDt}, s3\nglobal_load_dword {self.vDt}, {self.vDt}, s[14:15]")
        if self.o["karg2"]:
            self.rest_args(A)
        self.stamp("karg")
        A.raw(";@cut")
        Z = V.get(4)
        self.vShift, self.vShiftR = V.get(), V.get()
        A(f"v_and_b32 {vI}, 15, v0\nv_bfe_u32 {vG}, v0, 4, 2")
        for k in range(4):
            A(f"v_mov_b32 {Z[k]}, 0")
        A(f"""
        v_lshlrev_b32 {t2}, 4, v0
        v_lshlrev_b32 {t3}, 2, {vL}
        v_and_b32 {t1}, 127, v0
        s_mul_i32 s3, {sB}, {UCH}
        s_add_u32 {sb}, s3, {L_U}
        v_lshl_add_u32 {t0}, {t1}, 2, {sb}
        ds_write_b128 {t2}, {Z} offset:{L_P}
        ds_write_b128 {t2}, {Z} offset:{L_P + 4096}
        ds_write_b128 {t2}, {Z} offset:{L_P + 8192}
        ds_write_b128 {t2}, {Z} offset:{L_P + 12288}
        ds_write_b32 {t3}, {Z[0]} offset:{L_P + 16384}
        ds_write_b32 {t0}, {Z[0]}
        s_mul_i32 s3, {sB}, {2 * PHALF}
        v_lshl_add_u32 {self.vShiftR}, {t1}, 4, s3
        s_mul_i32 s3, {sB}, {KCH}
        v_lshl_add_u32 {self.vShift}, {t1}, 4, s3
        """)
        self.sStM = S.get()
        self.vR, self.vS0, self.vS1r = V.get(), V.get(), V.get()
        self.vK1, self.vK3, self.vKs = V.get(), V.get(), V.get()

        def pa(m):
            return ((m >> 2) & 1) * PPLANE + (m >> 3) * 16 + (m & 3) * 4
        A(f"""
        s_mul_i32 s3, {sB}, {STAGE_CH}
        s_lshl_b32 {sb}, {sH}, 8
        s_add_u32 s3, s3, {sb}
        s_add_u32 {self.sStM}, s3, {L_STAGE - 0x8000}
        s_add_u32 s3, s3, {L_STAGE}
        v_lshl_add_u32 {t2}, {vG}, 4, s3
        v_xor_b32 {t0}, 3, {vI}
        v_bfe_u32 {t1}, {t0}, 1, 1
        v_add_u32 {t1}, {t0}, {t1}
        v_lshrrev_b32 {t1}, 1, {t1}
        s_movk_i32 s3, {ROWB}
        v_mad_u32_u24 {self.vR}, {vI}, s3, {t2}
        v_mad_u32_u24 {self.vS0}, {t0}, s3, {t2}
        v_mad_u32_u24 {self.vS1r}, {t1}, s3, {t2}
        s_mul_i32 s3, {sW}, {PHALF}
        s_add_u32 s3, s3, {L_P}
        v_xor_b32 {t3}, 3, {vG}
        v_and_b32 {t0}, 1, {t3}
        v_mul_u32_u24 {t0}, {PPLANE}, {t0}
        v_lshrrev_b32 {t3}, 1, {t3}
        v_lshl_add_u32 {t3}, {t3}, 4, {t0}
        v_add_u32 {t3}, s3, {t3}
        v_lshlrev_b32 {t0}, 5, {vI}
        v_sub_u32 {t0}, {t3}, {t0}
        v_add_u32 {self.vK1}, {pa(528 - 256)}, {t0}
        v_lshrrev_b32 {t1}, 1, {vI}
        v_lshrrev_b32 {t2}, 2, {vI}
        v_add_u32 {t2}, 2, {t2}
        v_min_u32 {t1}, {t1}, {t2}
        v_add3_u32 {t1}, {t1}, {vI}, {FAR // 16 + 1}
        v_lshl_add_u32 {self.vK3}, {t1}, 5, {t3}
        v_cmp_gt_u32 vcc, 8, {vI}
        v_mov_b32 {t0}, {pa(28)}
        v_mov_b32 {t1}, {pa(NX + 24)}
        v_cndmask_b32 {t0}, {t0}, {t1}, vcc
        v_add_u32 {self.vKs}, s3, {t0}
        s_lshl_b32 s3, {sB}, 2
        v_mov_b32 {t2}, s3
        """)
        hp = self.o["poison_at"] in ("h", "h1")
        self.hw = self.o["h_warm"]
        if hp or self.hw:
            self.helper_prep(A, hp)
        if self.o["h_p3"]:
            self.hM1, self.hta = V.get(4), V.get()
            for k in range(4):
                A(f"v_mov_b32 {self.hM1[k]}, -1")
            A(f"""
            v_mov_b32 {t0}, 152
            s_mul_i32 s3, {sL}, 2432
            s_add_u32 s3, s3, {WS_S3}
            v_lshl_add_u32 {self.hta}, v0, 4, s3
            v_cmp_gt_u32 s[10:11], {t0}, v0
            """)
        self.stamp("consts")
        V.put(Z, vP, t0, t1, t3)
        self.ksl = [f"v_readfirstlane_b32 {self.sDt}, {self.vDt}"] + self.ksetup_lines()
        if self.o["b0"]:
            A.barrier()
            self.weave(self.o["hb1"])
        else:
            self.weave(self.o["hb1"])
            self.stamp("stat")
            A.barrier()
        self.stamp("b1")
        if self.o["poison_at"] == "h1":
            self.helper_mark(A)
        self.helper_hook("b1")
        if hp:
            A(f"s_load_dword {self.sE}, s[30:31], {WS_EPOCH}")
        self.weave(1000)
        A(f"ds_write_b32 {t2}, {self.vG16} offset:{L_G}")
        for _ in self.kgen_steps():
            pass
        self.stamp("kmf")
        self.helper_hook("b3")
        D, E = V.get(12), V.get(12)
        C = [V.get(4) for _ in range(4)]
        for k in range(3):
            off = L_P + (k & 1) * PPLANE + (k >> 1) * 16
            A(f"ds_read_b128 {D[4 * k:4 * k + 4]}, {self.vShiftR} offset:{off}")
            A(f"ds_read_b128 {E[4 * k:4 * k + 4]}, {self.vShiftR} offset:{off + PHALF}")
        for k in range(6):
            A(f"v_pk_add_f32 {D[2 * k:2 * k + 2]}, {D[2 * k:2 * k + 2]}, {E[2 * k:2 * k + 2]}")
        for c in range(4):
            for k in range(4):
                A(f"v_cvt_pk_f16_f32 {C[c][k]}, {D[c + 2 * k]}, {D[c + 2 * k + 1]}")
            if c % 2:
                for cc in (c - 1, c):
                    A(f"ds_write_b128 {self.vShift}, {C[cc]} offset:{L_K + cc * KCOPY}")
        self.stamp("shift")
        A.barrier()
        if self.o["hprio"]:
            A("s_setprio 0")
        self.helper_hook("b5")
        if self.o["poison_at"] == "h":
            self.helper_mark(A)
            self.helper_flag(A)
            A("s_barrier")
        if self.o["h_p3"]:
            A.wait(vm=0)
        if self.o["h_z"]:
            ZT, vZr, vS2o, vS2o2 = V.get(8), V.get(), V.get(), V.get()
            A(f"""
            s_lshl_b32 s3, {sL}, 13
            s_add_u32 s3, s3, {WS_S2}
            v_lshl_add_u32 {vS2o}, v0, 4, s3
            v_add_u32 {vS2o2}, 0x1000, {vS2o}
            v_bfe_u32 {vZr}, v0, 3, 3
            v_xor_b32 {vZr}, v0, {vZr}
            v_lshlrev_b32 {vZr}, 4, {vZr}
            s_barrier
            ds_read_b128 {ZT[0:4]}, {vZr} offset:{L_Z}
            ds_read_b128 {ZT[4:8]}, {vZr} offset:{L_Z + 4096}
            global_store_dwordx4 {vS2o}, {ZT[0:4]}, s[30:31] sc1
            global_store_dwordx4 {vS2o2}, {ZT[4:8]}, s[30:31] sc1
            """)
        if self.o["h_dma"]:
            self.helper_dma(A)
        if self.o["stamps"] and self.o["hst"]:
            self.stamp("end")
            A("s_waitcnt vmcnt(0) lgkmcnt(0)")
            self.dump_stamps(A)
        A("s_endpgm")
        self.is_h = False

    def helper_prep(self, A, hp):
        V, sL, sW, sb, vL = self.V, self.sL, self.sW, self.sb, self.vL
        self.vP2, self.M1, self.vFo = V.get(), V.get(4), V.get()
        self.vHr = self.vS1i = vL
        bg = self.background()
        V.put(self.vS2o, self.vS2o2, self.vS2i, self.vS2i2, self.vZr)
        if hp:
            A(f"""
            s_lshl_b32 {self.sa}, {sL}, 13
            s_lshl_b32 s3, {sW}, 11
            s_add_u32 s3, s3, {self.sa}
            s_add_u32 s3, s3, {WS_S2}
            v_lshl_add_u32 {self.vP2}, {vL}, 4, s3
            s_lshl_b32 s3, {sW}, 12
            s_lshl_b32 {sb}, {sL}, 4
            s_add_u32 s3, s3, {sb}
            s_add_u32 s3, s3, {WS_FLG}
            v_mov_b32 {self.vFo}, s3
            """)
            for k in range(4):
                A(f"v_mov_b32 {self.M1[k]}, -1")
            for ln in self.p3_lines[:-1]:
                A(ln)
        n = self.nwarm - (self.o["dma_at"] != "none")
        self.h_warm_line = bg[n:self.nwarm]
        if self.hw:
            for ln in bg[:n]:
                A(ln)

    def helper_mark(self, A):
        self.poison2()
        A("\n".join(self.p3_lines[-1]), tag="poison")

    def helper_flag(self, A):
        A(f"s_add_u32 {self.sE}, {self.sE}, 1\nv_mov_b32 {self.M1[0]}, {self.sE}")
        A.wait_tag("poison")
        A(f"s_mov_b64 exec, 1\nglobal_store_dword {self.vFo}, {self.M1[0]}, s[30:31] sc1\ns_mov_b64 exec, -1")

    def helper_hook(self, where):
        if where == self.o["h_p3"]:
            self.A(f"s_mov_b64 exec, s[10:11]\nglobal_store_dwordx4 {self.hta}, {self.hM1}, s[30:31] sc1\ns_mov_b64 exec, -1")
        if self.o["poison_at"] == "h1" and where == self.o["flag_at"]:
            self.helper_flag(self.A)
        if where == self.hw:
            for ln in self.h_warm_line:
                self.A(ln)

    def helper_dma(self, A):
        S, sL, sb = self.S, self.sL, self.sb
        self.sBlk, self.sRole, self.sUp, self.sWb = S.get(), S.get(), S.get(), S.get()
        A(f"""
        s_lshr_b32 s3, {sL}, 5
        s_and_b32 {sb}, {sL}, 31
        s_cmp_ge_u32 {sb}, {self.o["r1_at"]}
        s_cbranch_scc1 L_h_role1
        s_cmp_ge_u32 {sb}, {14 if self.o["h_roles"] == "both" else 0}
        s_cbranch_scc1 L_h_role2
        s_cmp_ge_u32 {sb}, 7
        s_cselect_b32 {self.sUp}, 1, 0
        s_cselect_b32 s6, 7, 0
        s_sub_u32 s6, {sb}, s6
        s_mul_i32 {self.sBlk}, s3, 7
        s_add_u32 {self.sBlk}, {self.sBlk}, s6
        """)
        for role in (0, 1):
            if role:
                A.label("L_h_role1")
                A(f"s_lshl_b32 s3, s3, 2\ns_sub_u32 s6, {sb}, {self.o['r1_at']}\ns_add_u32 {self.sBlk}, s3, s6")
            plan = self.dma_plan(A, role)
            self.V.put(self.vWa)
            if self.o["dma_at"] == "none":
                plan = []
            cuts = self.o["h_dma"][role]
            if self.o["h_conv"]:
                A("s_waitcnt vmcnt(0)")
                n = self.o["h_conv"] if role else len(plan)
                for a, b in plan[:n]:
                    A(a)
                    A(b)
                plan = plan[n:]
            nb = 4 if self.o["b8b"] else 3
            for k in range(nb):
                if k or not self.o["h_z"]:
                    A("s_barrier")
                n = (cuts[k] if k < 2 else 0) if k < nb - 1 else len(plan)
                for a, b in plan[:n]:
                    A(a)
                    A(b)
                plan = plan[n:]
            if role == 1 and self.o["b9b"]:
                A("s_barrier")
            A("s_waitcnt vmcnt(0)")
            A.vm = []
            A("s_barrier")
            A("s_branch L_h_done")
        A.label("L_h_role2")
        if self.o["h_z"]:
            A("s_barrier")
        A.label("L_h_done")

    def dma_plan(self, A, role):
        plan = super().dma_plan(A, role)
        mine = self.o["h_dma"] and (role == 1 or self.o["h_roles"] == "both")
        return [] if mine and not self.is_h else plan

    def maybe_s1(self, where):
        if where == self.o["s1_go"]:
            self.A("s_barrier")
        self.helper_hook(where)

    def dump_stamps(self, A):
        if self.is_h == bool(self.o["hst"]):
            super().dump_stamps(A)

    def prologue_m(self):
        A, V, S = self.A, self.V, self.S
        sL, sW, sa, vL = self.sL, self.sW, self.sa, self.vL
        t1 = V.get()
        self.vTau, self.vHr, self.vRow = V.get(), V.get(), V.get()
        self.XB, self.XA = V.get(8), V.get(8)
        if self.o["prio"]:
            A(f"s_setprio {self.o['prio']}")
        A(f"""
        v_lshrrev_b32 {self.vTau}, 5, v0
        v_and_b32 {t1}, 31, v0
        v_lshlrev_b32 {t1}, 4, {t1}
        v_lshl_add_u32 {self.vHr}, {self.vTau}, 10, {t1}
        s_lshl_b32 {sa}, {sL}, 13
        v_add_u32 {self.vRow}, {sa}, {self.vHr}
        """)
        A(f"global_load_dwordx4 {self.XB[0:4]}, {self.vRow}, s[4:5]")
        A(f"global_load_dwordx4 {self.XB[4:8]}, {self.vRow}, s[4:5] offset:512")
        if self.o["karg2"]:
            self.rest_args(A)
        if self.o["b0"]:
            self.vE = V.get()
            A(f"v_mov_b32 {self.vE}, 0\nglobal_load_dword {self.vE}, {self.vE}, s[30:31] offset:{WS_EPOCH}")
        else:
            A(f"s_load_dword {self.sE}, s[30:31], {WS_EPOCH}")
        self.stamp("karg")
        A.raw(";@cut")
        self.vS1o, self.vP2, self.vMask, self.vHw2, self.M1 = V.get(), V.get(), V.get(), V.get(), V.get(4)
        A(f"""
        s_lshl_b32 s3, {sW}, 11
        s_add_u32 s3, s3, {sa}
        s_add_u32 s3, s3, {WS_S1}
        v_lshl_add_u32 {self.vS1o}, {vL}, 4, s3
        v_add_u32 {self.vP2}, {WS_S2 - WS_S1}, {self.vS1o}
        s_mov_b32 s3, {L_H}
        v_lshl_add_u32 {self.vHw2}, v0, 2, s3
        v_mov_b32 {self.vMask}, {0xFFFFFFFF ^ TAGMASK}
        s_mov_b32 {self.sOnes}, 0x3f803f80
        s_mov_b32 {self.sLo}, 0x3f80
        s_mov_b32 {self.sHi}, 0x3f800000
        v_and_b32 {self.vI}, 15, v0
        v_bfe_u32 {self.vG}, v0, 4, 2
        """)
        for k in range(4):
            A(f"v_mov_b32 {self.M1[k]}, -1")
        V.put(t1)
        if not self.o["cc_late"]:
            self.conv_consts()
        if self.o["ch_early"]:
            self.chores()
        if self.o["poison_at"] == "consts":
            self.poison2()
        if self.o["b0"]:
            t = V.get()
            A(f"v_lshlrev_b32 {t}, 2, {self.vTau}\nds_write_b32 {t}, {self.M1[0]} offset:{L_ST + 32}")
            A("s_waitcnt lgkmcnt(0)")
            A.lg, A.sm = [], []
            A("s_barrier")
            V.put(t)
        self.stamp("consts")
        self.ksl = []

    def conv_consts(self):
        A, V = self.A, self.V
        vI, vG, sB, sL, sb = self.vI, self.vG, self.sB, self.sL, self.sb
        t0, t1, t2, t3 = V.get(), V.get(), V.get(), V.get()
        self.BAND = {key: V.get(4) for key in BANDS}
        SEL = V.get(6)
        A(f"""
        v_lshlrev_b32 {t0}, 3, {vG}
        v_sub_u32 {t0}, {t0}, {vI}
        v_add_u32 {t0}, 20, {t0}
        v_mul_u32_u24 {t0}, 0x10001, {t0}
        v_mov_b32 {t3}, 0x70007
        s_mov_b32 {sb}, 0xc000c
        """)
        for k in range(6):
            c0, c1 = 32 - 2 * k, 31 - 2 * k
            A(f"""
            s_mov_b32 s3, {c0 | c1 << 16}
            v_pk_sub_i16 {t1}, {t0}, s3
            v_pk_sub_i16 {t2}, s3, {t0}
            v_pk_max_i16 {t1}, {t1}, {t2}
            v_pk_min_i16 {t1}, {t1}, {t3}
            v_lshl_or_b32 {SEL[k]}, {t1}, 8, {sb}
            """)
        for (delta, h), B in self.BAND.items():
            lut = sum(0x3C << (8 * i) for i in range(min(h + 1, 4)))
            A(f"s_mov_b32 s3, {lut}")
            for d in range(4):
                A(f"v_perm_b32 {B[d]}, {60 if h == 4 else 0}, s3, {SEL[d + (0 if delta == 12 else 2)]}")
        self.vUf, self.vZw, self.vUw, self.vN, self.vF = V.get(), V.get(), V.get(), V.get(), V.get()
        self.vS1i, self.vS1i2 = V.get(), V.get()
        A(f"""
        s_mul_i32 s3, {sB}, {UCH}
        s_add_u32 {sb}, s3, {L_U}
        v_lshl_add_u32 {t0}, {vI}, 5, {sb}
        v_lshl_add_u32 {self.vUf}, {vG}, 4, {t0}
        s_mul_i32 s3, {sB}, {KCH}
        v_sub_u32 {t0}, 15, {vI}
        v_and_b32 {t1}, 3, {t0}
        v_and_b32 {t0}, 12, {t0}
        v_mul_u32_u24 {t1}, {KCOPY}, {t1}
        v_lshl_add_u32 {t0}, {t0}, 1, {t1}
        v_add_u32 {t0}, s3, {t0}
        v_lshl_add_u32 {self.vN}, {vG}, 4, {t0}
        v_lshl_add_u32 {self.vF}, {vG}, 3, {t0}
        v_and_b32 {t0}, 2, {vG}
        v_lshl_add_u32 {t0}, {vI}, 2, {t0}
        v_add_u32 {t0}, {sB}, {t0}
        v_lshrrev_b32 {t1}, 1, {vI}
        v_xor_b32 {t0}, {t0}, {t1}
        v_and_b32 {t1}, 1, {vG}
        v_lshlrev_b32 {t1}, 3, {t1}
        v_lshl_add_u32 {self.vZw}, {t0}, 4, {t1}
        v_and_b32 {t0}, 1, v0
        v_lshrrev_b32 {t1}, 1, v0
        v_mul_u32_u24 {t2}, {UCH}, {t0}
        v_lshl_add_u32 {self.vUw}, {t1}, 4, {t2}
        v_lshlrev_b32 {t0}, 4, {t0}
        v_lshl_add_u32 {t2}, {t1}, 13, {t0}
        s_lshl_b32 s3, {sL}, 5
        s_add_u32 s3, s3, {WS_S1}
        v_add_u32 {self.vS1i}, s3, {t2}
        v_add_u32 {self.vS1i2}, 0x100000, {self.vS1i}
        """)
        V.put(t0, t1, t2, t3, SEL)

    def ln1(self):
        if not self.o["b0"]:
            return super().ln1()
        A, V = self.A, self.V
        s1, s2, nm, rs, ad = V.get(), V.get(), V.get(), V.get(), V.get()
        A(f"v_lshlrev_b32 {ad}, 2, {self.vTau}")
        for k in range(8):
            if k % 4 == 0:
                A(f"ds_write_b128 {self.vHr}, {self.XB[k:k + 4]} offset:{L_H + 128 * k}")
            A(f"v_dot2_f32_bf16 {s1}, {self.XB[k]}, {self.sOnes}, {s1 if k else 0}")
            A(f"v_dot2_f32_bf16 {s2}, {self.XB[k]}, {self.XB[k]}, {s2 if k else 0}")
            if k == 0:
                self.stamp("x")
                if self.o["poison_at"] == "x":
                    self.poison2()
        self.allreduce(A, "v_add_f32", [s1, s2], 32)
        self.ln_stats(A, s1, s2, nm, rs)
        if self.o["poison_at"] == "stat":
            self.poison2()
        self.stamp("stat")
        A("s_mov_b64 exec, 1\ns_bitset1_b64 exec, 32")
        A(f"v_mul_f32 {rs}, 0x3d800000, {rs}")
        A(f"ds_write_b32 {ad}, {nm} offset:{L_ST}\nds_write_b32 {ad}, {rs} offset:{L_ST + 32}")
        A("s_mov_b64 exec, -1")
        A(f"v_mov_b32 {ad}, 0\ns_mov_b32 s3, 0")
        V.put(self.XB)
        NM, RS, XA = V.get(8), V.get(8), self.XA
        A.flush()
        A.label("L_stat")
        for k in range(2):
            A(f"ds_read_b128 {RS[4 * k:4 * k + 4]}, {ad} offset:{L_ST + 32 + 16 * k}")
        for q in range(2):
            A(f"ds_read2st64_b32 {XA[2 * q:2 * q + 2]}, {self.vHw2} offset0:{8 * q} offset1:{8 * q + 4}")
        A(f"ds_read_b128 {NM[0:4]}, {ad} offset:{L_ST}")
        for q in range(2, 4):
            A(f"ds_read2st64_b32 {XA[2 * q:2 * q + 2]}, {self.vHw2} offset0:{8 * q} offset1:{8 * q + 4}")
        A(f"ds_read_b128 {NM[4:8]}, {ad} offset:{L_ST + 16}")
        A(f"s_add_u32 s3, s3, 1\ns_cmp_lt_u32 s3, {SPIN_MAX}\ns_cselect_b64 s[18:19], -1, 0")
        self.poison_check([RS[k] for k in range(8)], s1)(A)
        A("s_and_b64 vcc, vcc, s[18:19]")
        A("s_cbranch_vccnz L_stat")
        self.stamp("b1")
        A(f"v_readfirstlane_b32 {self.sE}, {self.vE}")
        V.put(self.vE)
        if self.o["poison_at"] == "b1":
            self.poison2()
        self.make_tags(A)
        T = V.get(8)
        self.G = []
        for e in range(2):
            G = V.get(4)
            for j in range(8):
                A(f"v_dot2_f32_bf16 {T[j]}, {XA[j]}, {self.sHi if e else self.sLo}, {NM[j]}")
            for j in range(8):
                self.rnd(A, T[j], T[j])
            for q in range(4):
                A(f"v_pk_mul_f32 {T[2 * q:2 * q + 2]}, {T[2 * q:2 * q + 2]}, {RS[2 * q:2 * q + 2]}")
            for j in range(8):
                self.rnd(A, T[j], T[j])
            for q in range(4):
                A(f"v_cvt_pk_f16_f32 {G[q]}, {T[2 * q]}, {T[2 * q + 1]}")
            for q in range(4):
                A(f"v_and_or_b32 {G[q]}, {G[q]}, {self.vMask}, {self.tags[q]}")
            self.G.append(G)
            if e == 0:
                self.stamp("norm")
            if self.o["st_late"] and e == 0:
                continue
            A.wait_tag("poison")
            for ee in ((0, 1) if self.o["st_late"] else (e,)):
                A(f"global_store_dwordx4 {self.vS1o}, {self.G[ee]}, s[30:31] offset:{1024 * ee} sc1", tag="s1st")
        self.stamp("pub1")
        V.put(T, NM, RS, s1, s2, nm, rs, ad, self.vS1o)

    def chores(self):
        A, V = self.A, self.V
        bg = self.background()
        hmode = self.o["poison_at"] in ("h", "h1")
        self.late_mem = []
        vP3 = V.get()
        if not hmode and not self.o["h_p3"]:
            for item in self.p3_lines[:-1]:
                A(item)
            A(f"v_mov_b32 {vP3}, {self.bgtmp[2]}")
            self.late_mem.append(tuple(x.replace(f" {self.bgtmp[2]},", f" {vP3},") for x in self.p3_lines[-1]))
        n = self.nwarm - (self.o["dma_at"] != "none")
        mwarm = not self.o["h_warm"]
        self.warm_line = bg[n:self.nwarm] if mwarm else []
        keep = self.bgtmp[0]
        vW = V.get()
        if hmode:
            self.vFi = V.get()
            A(f"s_lshr_b32 s3, {self.sL}, 6\ns_lshl_b32 s3, s3, 12\ns_add_u32 s3, s3, {WS_FLG}\nv_lshl_add_u32 {self.vFi}, v0, 4, s3")
        if mwarm:
            for ln in bg[:n]:
                A(ln)
            A(f"v_mov_b32 {vW}, {keep}")
        self.warm_line = [ln.replace(f" {keep},", f" {vW},") for ln in self.warm_line]
        for ln in bg[self.nwarm:]:
            A(ln)
        V.put(*self.bgtmp[:3])
        self.late_free = [vP3, self.M1]
        self.bg, self.bgtmp = [], [vW]

    def after_publish(self):
        A, V = self.A, self.V
        if self.o["prio"]:
            A("s_setprio 0")
        V.put(self.XA)
        if self.o["cc_late"]:
            self.conv_consts()
        if not self.o["ch_early"]:
            self.chores()
        if self.o["poison_at"] in ("h", "h1"):
            V.put(self.vP2)
        for item in self.late_mem:
            A("\n".join(item), tag="poison3")
        self.WR = V.get(8)
        self.row_params()
        V.put(*self.late_free)
        self.UG = V.get(8)
        self.vG16 = V.get()
        A(f"s_lshl_b32 s3, {self.sB}, 2\nv_mov_b32 {self.vG16}, s3")
        if self.o["s1_go"] == "ack":
            A.wait_tag("s1st")
            self.s1_loads(A)
        elif self.o["s1_go"] != "b3":
            A("s_barrier")
            if self.o["s1_split"]:
                A(f"global_load_dwordx4 {self.UG[0:4]}, {self.vS1i}, s[30:31] sc1")
            else:
                self.s1_loads(A)
        self.stamp("rec")
        A.barrier()
        self.stamp("kmf")
        if self.o["mprio2"]:
            A(f"s_setprio {self.o['mprio2']}")
        if self.o["s1_go"] == "b3":
            self.s1_loads(A)
        elif self.o["s1_split"]:
            A(f"global_load_dwordx4 {self.UG[4:8]}, {self.vS1i2}, s[30:31] sc1")
        A(f"ds_read_b32 {self.vG16}, {self.vG16} offset:{L_G}")
        self.shift_regs = ()
        rd = {}
        for q in range(17):
            rd[f"@K{q}"] = [f"ds_read_b64 @K{q}.{2 * hf}, {self.vN} offset:{64 * (16 - q) + 8 * hf}" for hf in range(2)]
        rd["@KX"] = [f"ds_read_b64 @KX.{2 * hf}, {self.vN} offset:{2 * NX + 8 * hf}" for hf in range(2)]
        for k in range(2):
            for d in (2, 3, 4):
                rd[f"@B{k}{d}"] = [f"ds_read_b64 @B{k}{d}.{2 * hf}, {self.vF} offset:{2 * (V2[2 * k + hf] + 32 - 16 * (d - 2))}" for hf in range(2)]
        for d in (4, 5, 6, 7):
            rd[f"@C{d}"] = [f"ds_read_b64 @C{d}.{2 * hf}, {self.vF} offset:{2 * (V3[hf] + 48 - 16 * (d - 4))}" for hf in range(2)]
        self.frag_reads = rd

    def conv(self, A, tiles, dma):
        V, AC = self.V, self.AC
        PE, PD, NPRE, LAT = self.o["pe"], self.o["pd"], self.o["npre"], self.o["lat"]
        EY, EZ = V.get(4), V.get(2)
        qmax = {0: 7, 1: 15}
        b2 = sorted({j - d for j in tiles for d in (2, 3, 4) if j - d >= 0})
        b3 = sorted({j - d for j in tiles for d in (4, 5, 6, 7) if j - d >= 0})
        nlo = min(8 * j - qmax.get(j, 16) for j in tiles)
        nhi = 8 * max(tiles)
        near = []
        for fi, n in enumerate(range(nlo, nhi + 1)):
            for j in tiles:
                q = 8 * j - n
                if 0 <= q <= qmax.get(j, 16):
                    near.append((j, f"@K{q}", fi, q == 0))
        far, gfr, pcount = [], [], 0
        for b in sorted(set(b2) | set(b3)):
            ga, gb = len(gfr), len(gfr) + 1
            gfr += [256 * b - 16, 256 * b - 24]
            mains = []
            if b in b2:
                pa, pb = pcount, pcount + 1
                pcount += 2
                far += [("band", ga, (12, 1), pa, 0), ("band", ga, (8, 2), pa, 1), ("band", gb, (12, 1), pb, 0), ("band", gb, (8, 2), pb, 1)]
                mains += [("main", b + d, pa, f"@B0{d}") for d in (2, 3, 4) if b + d in tiles]
                mains += [("main", b + d, pb, f"@B1{d}") for d in (2, 3, 4) if b + d in tiles]
            if b in b3:
                pc = pcount
                pcount += 1
                far += [("band", ga, (8, 3), pc, 0), ("band", gb, (8, 4), pc, 1)]
                mains += [("main", b + d, pc, f"@C{d}") for d in (4, 5, 6, 7) if b + d in tiles]
            if b + 4 in tiles:
                far.append(("x", b + 4, ga))
            far += mains
        mf, fill = [], []
        started, done_at, first_use, pready = set(), {}, {}, {}
        wcount, ni, credit = 0, 0, 0.0
        farleft = list(far)
        span = self.o["far_span"][0 if 0 in tiles else 1]
        NP = self.o["np"]

        def acc_mf(j, a, b):
            mf.append(f"v_mfma_f32_16x16x32_f16 @acc{j}, {a}, {b}, {f'@acc{j}' if j in started else 0}")
            started.add(j)

        def far_ok(it):
            if it[0] == "main":
                return pready.get(it[2], 10 ** 6) <= len(mf)
            if it[0] == "band":
                return not any(o[0] == "main" and o[2] <= it[3] - NP for o in farleft)
            return True

        def blocked(k):
            return near[k][3] and any(o[0] in ("main", "x") and o[1] == near[k][0] for o in farleft)
        while ni < len(near) or farleft:
            t = len(mf)
            want_far = farleft and (credit >= 1.0 or ni >= len(near) or blocked(ni))
            pick = None
            if want_far:
                for it in farleft[:10]:
                    if far_ok(it) and not (it[0] == "band" and any(o[0] == "band" for o in farleft[:farleft.index(it)])):
                        pick = it
                        break
            if pick is None and ni < len(near) and not blocked(ni):
                j, a, fi, last = near[ni]
                ni += 1
                acc_mf(j, a, f"@F{fi}")
                if last:
                    done_at[j] = t
                credit += len(far) / span
                continue
            assert pick is not None, "conv schedule is stuck"
            farleft.remove(pick)
            credit -= 1.0
            if pick[0] == "band":
                _, g, key, p, hf = pick
                w = f"@W{wcount}"
                wcount += 1
                mf.append(f"v_mfma_f32_16x16x32_f16 {w}, @G{g}, {self.BAND[key]}, 0")
                for k in range(2):
                    fill.append([t + self.o["cvt0"], t + LAT - 1, f"v_cvt_pk_f16_f32 @P{p}:{2 * hf + k}, {w}:{2 * k}, {w}:{2 * k + 1}", None])
                if hf == 1:
                    pready[p] = t + LAT
            elif pick[0] == "x":
                acc_mf(pick[1], "@KX", f"@G{pick[2]}")
            else:
                acc_mf(pick[1], f"@P{pick[2]}", pick[3])
        nm = len(mf)
        tok = re.compile(r"@[A-Za-z]+\d*X?")
        for t, txt in enumerate(mf):
            for name in tok.findall(txt):
                first_use.setdefault(name, t)
        reads = []
        for name, t in first_use.items():
            if name[1] == "F":
                reads.append((t, f"ds_read_b128 {name}, {self.vUf} offset:{512 + 2 * (32 * (nlo + int(name[2:])) - 16)}"))
            elif name[1] == "G":
                reads.append((t, f"ds_read_b128 {name}, {self.vUf} offset:{512 + 2 * gfr[int(name[2:])]}"))
            elif name in self.frag_reads:
                reads += [(t, x) for x in self.frag_reads[name]]
        reads.sort(key=lambda r: r[0])
        pre = [txt for t, txt in reads if t <= NPRE]
        fill += [[max(t - PE, 0), max(t - PD, 0), txt, None] for t, txt in reads if t > NPRE]
        order_t = sorted(tiles, key=lambda j: done_at[j])
        for k, j in enumerate(order_t):
            t = done_at[j]
            nxt = done_at[order_t[k + 1]] if k + 1 < len(order_t) else nm + 100
            seq2 = [f"v_mul_f32 {EY[r]}, @acc{j}:{r}, {self.vG16}" for r in range(4)]
            seq2 += [f"v_cvt_pk_bf16_f32 {EZ[r]}, {EY[2 * r]}, {EY[2 * r + 1]}" for r in range(2)]
            seq2.append(f"ds_write_b64 {self.vZw}, {EZ} offset:{L_Z + 1024 * j}")
            for txt in seq2:
                fill.append([t + self.o["cvt0"], min(t + 12, nxt + 2), txt, f"e2_{j}"])
        for ln in self.late_warm:
            fill.append([self.o["warm_slot"], self.o["warm_slot"] + 2, ln, None])
        uses = {}
        for txt in mf + pre + [f[2] for f in fill]:
            for name in set(tok.findall(txt)):
                uses[name] = uses.get(name, 0) + 1
        vq, aq, held = [], [], []
        while True:
            try:
                vq.append(V.get(4))
            except RuntimeError:
                break
        while True:
            try:
                aq.append(AC.get(4, 4))
            except RuntimeError:
                break
        allv, alla = list(vq), list(aq)
        phys = {}
        low = [len(vq), len(aq)]

        def subst(txt, alloc):
            def rep(m):
                name, part = m.group(1), m.group(2) or ""
                if name not in phys:
                    if not alloc:
                        return "null"
                    vonly = name[1] in "WP" or name.startswith("@acc")
                    if not vonly and aq:
                        phys[name] = aq.pop(0)
                    else:
                        assert vq, f"out of registers at {name}"
                        phys[name] = vq.pop(0)
                    low[0], low[1] = min(low[0], len(vq)), min(low[1], len(aq))
                r = phys[name]
                if part.startswith("."):
                    return str(r[int(part[1:]):int(part[1:]) + 2])
                if part.startswith(":"):
                    return str(r[int(part[1:])])
                return str(r)
            return re.sub(r"(@[A-Za-z]+\d*X?)([.:]\d)?", rep, txt)

        def emit(txt):
            names = set(tok.findall(txt))
            A(subst(txt, True))
            for name in names:
                uses[name] -= 1
                if uses[name] == 0:
                    r = phys.pop(name)
                    (vq if r.kind == "v" else aq).append(r)
        for txt in pre:
            emit(txt)
        for i, f in enumerate(fill):
            f.append(i)
        left = list(fill)
        A.prewait([subst(mf[0], False)])
        for t in range(nm):
            emit(mf[t])
            chosen = []
            for f in sorted([f for f in left if f[0] <= t], key=lambda f: (f[1], f[4])):
                if len(chosen) >= 2 and f[1] > t:
                    break
                if f[3] and any(g[3] == f[3] and g[4] < f[4] and g not in chosen for g in left):
                    continue
                mem = f[2].startswith(("ds_", "global_"))
                if mem and f[1] > t and any(g[3] == f[3] and f[3] for g in chosen):
                    continue
                if f[2].startswith("ds_read") and f[1] > t and len(aq) + len(vq) < 4 and tok.findall(f[2])[0] not in phys:
                    continue
                chosen.append(f)
            memf = [f for f in chosen if f[2].startswith(("ds_", "global_")) and not any(g[3] == f[3] and f[3] and g[4] < f[4] for g in chosen)]
            rest = [f for f in chosen if f not in memf]
            A.prewait([subst(f[2], False) for f in chosen] + ([subst(mf[t + 1], False)] if t + 1 < nm else []))
            for f in memf + rest:
                emit(f[2])
                left.remove(f)
        for f in sorted(left, key=lambda f: (f[1], f[4])):
            emit(f[2])
        assert not phys
        self.nmfma = getattr(self, "nmfma", []) + [nm]
        self.bg_left = getattr(self, "bg_left", []) + [tuple(low)]
        V.put(EY, EZ, *allv)
        AC.put(*alla)

    def conv_all(self):
        A = self.A
        self.late_warm = []
        if self.o["warm_in"]:
            self.late_warm, self.warm_line = self.warm_line, []
        self.s1_consume(A, "")
        self.V.put(self.UG, self.vUw, self.vS1i, self.vS1i2)
        A(f"s_cmp_eq_u32 {self.sH}, 0\ns_cbranch_scc0 L_conv_b")
        B = A.fork()
        A.barrier()
        self.stamp("b5", A)
        self.conv(A, [0, 1, 2, 3, 4], [])
        A.wait(lg=0)
        A.flush()
        A("s_branch L_conv_done")
        if self.o["pages"]:
            B.raw(".p2align 12")
        B.label("L_conv_b")
        B.barrier()
        self.stamp("b5", B)
        self.conv(B, [5, 6, 7], [])
        B.wait(lg=0)
        B.flush()
        A.lines += B.lines
        A.count += B.count
        A.nops += B.nops
        A.label("L_conv_done")
        self.V.put(*self.BAND.values(), self.vUf, self.vZw, self.vG16, self.vN, self.vF, *self.bgtmp)
        self.stamp("conv", A)
        A("s_barrier")
        self.stamp("b6", A)
        self.ZT = ZT = self.V.get(8)
        if not self.o["h_z"]:
            A(f"ds_read_b128 {ZT[0:4]}, {self.vZr} offset:{L_Z}\nds_read_b128 {ZT[4:8]}, {self.vZr} offset:{L_Z + 4096}")
            A(f"global_store_dwordx4 {self.vS2o}, {ZT[0:4]}, s[30:31] sc1", tag="s2st")
            A(f"global_store_dwordx4 {self.vS2o2}, {ZT[4:8]}, s[30:31] sc1", tag="s2st")
        if self.o["poison_at"] in ("h", "h1"):
            self.vFl = self.V.get()
            A(f"global_load_dword {self.vFl}, {self.vFi}, s[30:31] sc1")
            self.o["poison_at"] = "pub"
        self.stamp("st2", A)
        self.V.put(self.vZr, self.vS2o, self.vS2o2)
        self.XA = XA = self.V.get(8)
        for q in range(4):
            A(f"ds_read2st64_b32 {XA[2 * q:2 * q + 2]}, {self.vHw2} offset0:{8 * q} offset1:{8 * q + 4}")

    def resolve(self, A, sfx, between=None):
        if not self.o["s3_full"] or sfx == "r2":
            return super().resolve(A, sfx, between)
        t0, t1, t2 = self.t
        T, kin = self.T, self.kin
        A(f"s_lshl_b32 s3, {self.sW}, 10\nv_subrev_u32 {t1}, s3, {self.vS3i}")

        def s3_loads(C):
            for k in range(4):
                C(f"global_load_dword {T[k]}, {t1}, s[30:31] offset:{1024 * k} sc1")

        def check(C):
            C(f"v_max3_u32 {kin}, {T[0]}, {T[1]}, {T[2]}\nv_max_u32 {kin}, {kin}, {T[3]}\nv_cmp_eq_u32 vcc, -1, {kin}")
        s3_loads(A)
        if between:
            between()
        self.poll(A, "s3" + sfx, s3_loads, check)
        self.stamp("s3p", A)
        self.allreduce(A, "v_max_u32", [kin], 64)
        self.stamp("s3w", A)
        A(f"v_readfirstlane_b32 {self.sK}, {kin}")
        A(f"s_and_b32 {self.sT}, {self.sK}, 0x7ff\ns_sub_u32 {self.sT}, 2047, {self.sT}")
        self.stamp("s3", A)
        A(f"s_lshr_b32 s3, {self.sT}, 3\ns_lshl_b32 s3, s3, 11\ns_add_u32 s3, s3, {WS_ROWS}")
        self.late_barrier = True

    def build(self):
        A = self.A
        self.entry()
        H = A.fork()
        H.label("L_helper")
        vfree, afree, sfree = set(self.V.free), set(self.AC.free), set(self.S.free)
        self.helper(H)
        self.A = A
        self.V.free, self.AC.free, self.S.free = set(vfree), set(afree), set(sfree)
        self.prologue_m()
        self.ln1()
        self.after_publish()
        self.sWb, self.sC, self.sK, self.sT = self.S.get(), self.S.get(2), self.S.get(), self.S.get()
        self.conv_all()
        self.phase_c()
        self.kin = self.V.get()
        A(f"s_cmp_eq_u32 {self.sRole}, 1\ns_cbranch_scc1 L_role1")
        B = A.fork()
        B.label("L_role1")
        A(f"s_cmp_eq_u32 {self.sRole}, 2\ns_cbranch_scc1 L_role2")
        C = A.fork()
        C.label("L_role2")
        vfree, afree = set(self.V.free), set(self.AC.free)
        self.tail0(A)
        self.V.free, self.AC.free = set(vfree), set(afree)
        self.tail1(B)
        self.V.free, self.AC.free = set(vfree), set(afree)
        self.tail2(C)
        cut = A.lines.index(";@cut")
        if self.o["h_first"]:
            body = "\n".join(A.lines[:cut]) + "\n    s_branch L_main\n" + H.text() + "L_main:\n" + "\n".join(A.lines[cut + 1:]) + "\n"
        else:
            hcut = H.lines.index(";@cut")
            body = "\n".join(A.lines[:cut]) + "\n    s_branch L_main\n" + "\n".join(H.lines[:hcut]) + "\n    s_branch L_helper2\nL_main:\n"
            body += "\n".join(A.lines[cut + 1:]) + "\n"
            H.lines = ["L_helper2:"] + H.lines[hcut + 1:]
        if self.o["pages"]:
            body += C.text() + ".p2align 12\n" + B.text() + "".join(c.text() for c in self.cold) + ".p2align 12\n" + H.text()
        else:
            body += B.text() + C.text() + ("" if self.o["h_first"] else H.text()) + "".join(c.text() for c in self.cold)
        body = body.replace(";@cut\n", "")
        astat = None
        if self.o["align"]:
            import align
            body, astat = align.align(body, self.o["align"])
        head = open(f"cdna_kernels/{NAME}.s.ref").read().split("; Override launch geometry")[0]
        self.stats = dict(instr=A.count + B.count + C.count + H.count, nops=A.nops + B.nops + H.nops, vgpr=self.V.top + 1,
                          agpr=self.AC.top + 1, mfma=self.nmfma, spare=self.bg_left, align=astat)
        return head + f"""; One persistent launch: 256 workgroups, one per CU, exchanging data through d_ws.
; @launch grid=(256,1,1) block=(512,1,1) lds={LDS_BYTES}
.amdgcn_target "amdgcn-amd-amdhsa--gfx950"
.text
.globl {NAME}_kernel
.p2align 8
.type {NAME}_kernel,@function
{NAME}_kernel:
{body}L_end:
    s_endpgm
L_all_end:
.section .rodata,"a"
.p2align 6
.amdhsa_kernel {NAME}_kernel
  .amdhsa_next_free_vgpr 256
  .amdhsa_next_free_sgpr 102
  .amdhsa_accum_offset {VMAX}
  .amdhsa_group_segment_fixed_size 0
  .amdhsa_kernarg_size 120
  .amdhsa_user_sgpr_count 2
  .amdhsa_user_sgpr_kernarg_segment_ptr 1
  .amdhsa_system_sgpr_workgroup_id_x 1
  .amdhsa_float_denorm_mode_32 3
.end_amdhsa_kernel
"""


EXTRA.update(np=4, h_first=False, pages=True, pad="", h_p3=False, ch_early=False, cc_late=False, karg2=False, h_z=False, s3_full=True, late_unpack=True, r0_ackout=True, r2_mode=2, align=0, mprio2=0, h_order="pw", s1_split=False, warm_in=True, warm_slot=20, h_dma="0_4_0_4", b8b="hn", b9b=True, h_roles="both", b0=False, h_warm=None, h_conv=0, flag_at="far", hprio=0, hb1=0, s1_go="rec2", poison_at="b1", st_late=True)


def generate(path, **opt):
    g = Gen(**opt)
    text = g.build()
    open(path, "w").write(text)
    return g.stats


if __name__ == "__main__":
    out = sys.argv[1] if len(sys.argv) > 1 else f"cdna_kernels/{NAME}.s"
    opts = {}
    for a in sys.argv[2:]:
        k, v = a.split("=")
        opts[k] = {"True": True, "False": False}.get(v, int(v) if v.isdigit() else v)
    print(generate(out, **opts))
```

```python
import re
import sys
from asmdsl import Asm, Pool, R
import gen_v9 as base
from gen_v9 import *

L_G = L_KEY2 + 16
VMAX = 116
EXTRA = dict(hb1=40, prio=2, hst=False, s1_go="ack", m_wait=True)


class Gen(base.Gen):
    def __init__(self, **opt):
        o = dict(EXTRA)
        o.update(opt)
        if isinstance(o.get("h_dma"), str):
            a = [int(x) for x in o["h_dma"].split("_")]
            o["h_dma"] = ((a[0], a[1]), (a[2], a[3]))
        o["pad"] = o["pad"].replace(" ", "+")
        if o["pages"]:
            o["pad"] = "rec+dma"
        super().__init__(**o)
        self.V = Pool("v", 1, VMAX - 1)
        self.AC = Pool("a", 0, 255 - VMAX)
        self.is_h = False

    def stamp(self, name, A=None):
        if name == self.o["b8b"] and not self.is_h:
            (A or self.A)("s_barrier")
        if name in self.o["pad"].split("+") and not self.is_h:
            X = A or self.A
            X(f"s_branch L_pad_{name}")
            X.raw(".p2align 12")
            X.label(f"L_pad_{name}")
        if name == "r1o" and self.o["b9b"]:
            (A or self.A)("s_barrier")
        if self.is_h == bool(self.o["hst"]) or name == "start":
            super().stamp(name, A)

    def entry(self):
        A, V, S = self.A, self.V, self.S
        A("s_cmp_ge_u32 s2, 0x100\ns_cbranch_scc1 L_end")
        A("s_load_dwordx16 s[4:19], s[0:1], 0")
        if not self.o["karg2"]:
            self.rest_args(A)
        self.stamp("start")
        self.sL, self.sW, self.sTag, self.sE = S.get(), S.get(), S.get(), S.get()
        self.sOnes, self.sLo, self.sHi, self.sCh = S.get(), S.get(), S.get(), S.get()
        self.sB, self.sH, self.sa, self.sb = S.get(), S.get(), S.get(), S.get()
        sL, sW = self.sL, self.sW
        self.vL, self.vI, self.vG = V.get(), V.get(), V.get()
        self.vJunk = V.get(2)
        t0, t1, t2 = V.get(), V.get(), V.get()
        self.sPc = S.get(2)
        A(f"v_lshrrev_b32 {t0}, 6, v0\ns_lshr_b32 {sL}, s2, 3\ns_getpc_b64 {self.sPc}")
        A.label("L_pc")
        A(f"""
        v_lshl_add_u32 {t2}, {sL}, 3, {t0}
        v_and_b32 {t2}, 63, {t2}
        v_and_b32 {t1}, 3, v0
        v_lshl_add_u32 {t2}, {t2}, 2, {t1}
        v_lshlrev_b32 {t2}, 7, {t2}
        v_min_u32 {t2}, L_all_end-L_pc-4, {t2}
        global_load_dword {self.vJunk[0]}, {t2}, {self.sPc}
        v_readfirstlane_b32 {self.sb}, {t0}
        s_and_b32 s3, s2, 7
        s_lshl_b32 s3, s3, 5
        s_add_u32 {sL}, {sL}, s3
        v_and_b32 v0, 0xff, v0
        v_and_b32 {self.vL}, 63, v0
        s_and_b32 {sW}, {self.sb}, 3
        s_lshr_b32 {self.sB}, {sW}, 1
        s_and_b32 {self.sH}, {sW}, 1
        s_cmp_ge_u32 {self.sb}, 4
        s_cbranch_scc1 L_helper
        """)
        V.put(t0, t1, t2)

    def rest_args(self, A):
        A("s_load_dwordx8 s[20:27], s[0:1], 64\ns_load_dwordx2 s[28:29], s[0:1], 96\ns_load_dwordx2 s[30:31], s[0:1], 112")

    def helper(self, A):
        self.A, self.is_h = A, True
        if self.o["hprio"]:
            A(f"s_setprio {self.o['hprio']}")
        V, S = self.V, self.S
        sL, sW, sB, sH, sb, vL, vI, vG = self.sL, self.sW, self.sB, self.sH, self.sb, self.vL, self.vI, self.vG
        t0, t1, t2, t3, vP = V.get(), V.get(), V.get(), V.get(), V.get()
        self.PAR, self.sDt = V.get(4), S.get()
        A(f"""
        s_lshr_b32 s3, {sL}, 6
        s_lshl_b32 {self.sCh}, s3, 7
        s_and_b32 s3, {sL}, 31
        s_lshl_b32 s3, s3, 2
        s_add_u32 {self.sCh}, {self.sCh}, s3
        s_bfe_u32 s3, {sL}, 0x10005
        s_add_u32 {self.sCh}, {self.sCh}, s3
        s_and_b32 s3, {sW}, 2
        s_add_u32 {self.sCh}, {self.sCh}, s3
        s_lshl_b32 s3, {self.sCh}, 8
        v_lshl_add_u32 {vP}, {vL}, 2, s3
        s_lshl_b32 s3, {self.sCh}, 1
        s_and_b32 s3, s3, -4
        """)
        for k in range(4):
            A(f"global_load_dword {self.PAR[k]}, {vP}, s[{6 + 2 * k}:{7 + 2 * k}]")
        self.vDt = V.get()
        A(f"v_mov_b32 {self.vDt}, s3\nglobal_load_dword {self.vDt}, {self.vDt}, s[14:15]")
        if self.o["karg2"]:
            self.rest_args(A)
        self.stamp("karg")
        A.raw(";@cut")
        if self.o["touch"]:
            ta, tz, J = V.get(), V.get(), V.get(6)
            A(f"v_min_u32 {ta}, 2, {vL}\nv_mul_u32_u24 {ta}, 0x260000, {ta}\nv_add_u32 {ta}, 0xf0000, {ta}\nv_mov_b32 {tz}, 0")
            A(f"global_load_dword {J[0]}, {ta}, s[30:31]")
            for k, base in enumerate(("s[20:21]", "s[16:17]", "s[22:23]", "s[24:25]", "s[26:27]")[:self.o["touch"] - 1]):
                A(f"global_load_dword {J[k + 1]}, {tz}, {base}")
            V.put(ta, tz)
        Z = V.get(4)
        self.vShift, self.vShiftR = V.get(), V.get()
        A(f"v_and_b32 {vI}, 15, v0\nv_bfe_u32 {vG}, v0, 4, 2")
        for k in range(4):
            A(f"v_mov_b32 {Z[k]}, 0")
        A(f"""
        v_lshlrev_b32 {t2}, 4, v0
        v_lshlrev_b32 {t3}, 2, {vL}
        v_and_b32 {t1}, 127, v0
        s_mul_i32 s3, {sB}, {UCH}
        s_add_u32 {sb}, s3, {L_U}
        v_lshl_add_u32 {t0}, {t1}, 2, {sb}
        ds_write_b128 {t2}, {Z} offset:{L_P}
        ds_write_b128 {t2}, {Z} offset:{L_P + 4096}
        ds_write_b128 {t2}, {Z} offset:{L_P + 8192}
        ds_write_b128 {t2}, {Z} offset:{L_P + 12288}
        ds_write_b32 {t3}, {Z[0]} offset:{L_P + 16384}
        ds_write_b32 {t0}, {Z[0]}
        s_mul_i32 s3, {sB}, {2 * PHALF}
        v_lshl_add_u32 {self.vShiftR}, {t1}, 4, s3
        s_mul_i32 s3, {sB}, {KCH}
        v_lshl_add_u32 {self.vShift}, {t1}, 4, s3
        """)
        self.sStM = S.get()
        self.vR, self.vS0, self.vS1r = V.get(), V.get(), V.get()
        self.vK1, self.vK3, self.vKs = V.get(), V.get(), V.get()

        def pa(m):
            return ((m >> 2) & 1) * PPLANE + (m >> 3) * 16 + (m & 3) * 4
        A(f"""
        s_mul_i32 s3, {sB}, {STAGE_CH}
        s_lshl_b32 {sb}, {sH}, 8
        s_add_u32 s3, s3, {sb}
        s_add_u32 {self.sStM}, s3, {L_STAGE - 0x8000}
        s_add_u32 s3, s3, {L_STAGE}
        v_lshl_add_u32 {t2}, {vG}, 4, s3
        v_xor_b32 {t0}, 3, {vI}
        v_bfe_u32 {t1}, {t0}, 1, 1
        v_add_u32 {t1}, {t0}, {t1}
        v_lshrrev_b32 {t1}, 1, {t1}
        s_movk_i32 s3, {ROWB}
        v_mad_u32_u24 {self.vR}, {vI}, s3, {t2}
        v_mad_u32_u24 {self.vS0}, {t0}, s3, {t2}
        v_mad_u32_u24 {self.vS1r}, {t1}, s3, {t2}
        s_mul_i32 s3, {sW}, {PHALF}
        s_add_u32 s3, s3, {L_P}
        v_xor_b32 {t3}, 3, {vG}
        v_and_b32 {t0}, 1, {t3}
        v_mul_u32_u24 {t0}, {PPLANE}, {t0}
        v_lshrrev_b32 {t3}, 1, {t3}
        v_lshl_add_u32 {t3}, {t3}, 4, {t0}
        v_add_u32 {t3}, s3, {t3}
        v_lshlrev_b32 {t0}, 5, {vI}
        v_sub_u32 {t0}, {t3}, {t0}
        v_add_u32 {self.vK1}, {pa(528 - 256)}, {t0}
        v_lshrrev_b32 {t1}, 1, {vI}
        v_lshrrev_b32 {t2}, 2, {vI}
        v_add_u32 {t2}, 2, {t2}
        v_min_u32 {t1}, {t1}, {t2}
        v_add3_u32 {t1}, {t1}, {vI}, {FAR // 16 + 1}
        v_lshl_add_u32 {self.vK3}, {t1}, 5, {t3}
        v_cmp_gt_u32 vcc, 8, {vI}
        v_mov_b32 {t0}, {pa(28)}
        v_mov_b32 {t1}, {pa(NX + 24)}
        v_cndmask_b32 {t0}, {t0}, {t1}, vcc
        v_add_u32 {self.vKs}, s3, {t0}
        s_lshl_b32 s3, {sB}, 2
        v_mov_b32 {t2}, s3
        """)
        hp = self.o["poison_at"] in ("h", "h1")
        self.hw = self.o["h_warm"]
        if hp or self.hw:
            self.helper_prep(A, hp)
        if self.o["h_p3"]:
            self.hM1, self.hta = V.get(4), V.get()
            for k in range(4):
                A(f"v_mov_b32 {self.hM1[k]}, -1")
            A(f"""
            v_mov_b32 {t0}, 152
            s_mul_i32 s3, {sL}, 2432
            s_add_u32 s3, s3, {WS_S3}
            v_lshl_add_u32 {self.hta}, v0, 4, s3
            v_cmp_gt_u32 s[10:11], {t0}, v0
            """)
        self.stamp("consts")
        V.put(Z, vP, t0, t1, t3)
        self.ksl = [f"v_readfirstlane_b32 {self.sDt}, {self.vDt}"] + self.ksetup_lines()
        if self.o["b0"]:
            A.barrier()
            self.weave(self.o["hb1"])
        else:
            self.weave(self.o["hb1"])
            self.stamp("stat")
            A.barrier()
        self.stamp("b1")
        if self.o["poison_at"] == "h1":
            self.helper_mark(A)
        self.helper_hook("b1")
        if hp:
            A(f"s_load_dword {self.sE}, s[30:31], {WS_EPOCH}")
        self.weave(1000)
        A(f"ds_write_b32 {t2}, {self.vG16} offset:{L_G}")
        for _ in self.kgen_steps():
            pass
        self.stamp("kmf")
        self.helper_hook("b3")
        D, E = V.get(12), V.get(12)
        C = [V.get(4) for _ in range(4)]
        for k in range(3):
            off = L_P + (k & 1) * PPLANE + (k >> 1) * 16
            A(f"ds_read_b128 {D[4 * k:4 * k + 4]}, {self.vShiftR} offset:{off}")
            A(f"ds_read_b128 {E[4 * k:4 * k + 4]}, {self.vShiftR} offset:{off + PHALF}")
        for k in range(6):
            A(f"v_pk_add_f32 {D[2 * k:2 * k + 2]}, {D[2 * k:2 * k + 2]}, {E[2 * k:2 * k + 2]}")
        for c in range(4):
            for k in range(4):
                A(f"v_cvt_pk_f16_f32 {C[c][k]}, {D[c + 2 * k]}, {D[c + 2 * k + 1]}")
            if c % 2:
                for cc in (c - 1, c):
                    A(f"ds_write_b128 {self.vShift}, {C[cc]} offset:{L_K + cc * KCOPY}")
        self.stamp("shift")
        A.barrier()
        if self.o["hprio"]:
            A("s_setprio 0")
        self.helper_hook("b5")
        if self.o["poison_at"] == "h":
            self.helper_mark(A)
            self.helper_flag(A)
            A("s_barrier")
        if self.o["h_p3"]:
            A.wait(vm=0)
        if self.o["h_z"]:
            ZT, vZr, vS2o, vS2o2 = V.get(8), V.get(), V.get(), V.get()
            A(f"""
            s_lshl_b32 s3, {sL}, 13
            s_add_u32 s3, s3, {WS_S2}
            v_lshl_add_u32 {vS2o}, v0, 4, s3
            v_add_u32 {vS2o2}, 0x1000, {vS2o}
            v_bfe_u32 {vZr}, v0, 3, 3
            v_xor_b32 {vZr}, v0, {vZr}
            v_lshlrev_b32 {vZr}, 4, {vZr}
            s_barrier
            ds_read_b128 {ZT[0:4]}, {vZr} offset:{L_Z}
            ds_read_b128 {ZT[4:8]}, {vZr} offset:{L_Z + 4096}
            global_store_dwordx4 {vS2o}, {ZT[0:4]}, s[30:31] sc1
            global_store_dwordx4 {vS2o2}, {ZT[4:8]}, s[30:31] sc1
            """)
        if self.o["h_dma"]:
            self.helper_dma(A)
        if self.o["stamps"] and self.o["hst"]:
            self.stamp("end")
            A("s_waitcnt vmcnt(0) lgkmcnt(0)")
            self.dump_stamps(A)
        A("s_endpgm")
        self.is_h = False

    def helper_prep(self, A, hp):
        V, sL, sW, sb, vL = self.V, self.sL, self.sW, self.sb, self.vL
        self.vP2, self.M1, self.vFo = V.get(), V.get(4), V.get()
        self.vHr = self.vS1i = vL
        bg = self.background()
        V.put(self.vS2o, self.vS2o2, self.vS2i, self.vS2i2, self.vZr)
        if hp:
            A(f"""
            s_lshl_b32 {self.sa}, {sL}, 13
            s_lshl_b32 s3, {sW}, 11
            s_add_u32 s3, s3, {self.sa}
            s_add_u32 s3, s3, {WS_S2}
            v_lshl_add_u32 {self.vP2}, {vL}, 4, s3
            s_lshl_b32 s3, {sW}, 12
            s_lshl_b32 {sb}, {sL}, 4
            s_add_u32 s3, s3, {sb}
            s_add_u32 s3, s3, {WS_FLG}
            v_mov_b32 {self.vFo}, s3
            """)
            for k in range(4):
                A(f"v_mov_b32 {self.M1[k]}, -1")
            for ln in self.p3_lines[:-1]:
                A(ln)
        n = self.nwarm - (self.o["dma_at"] != "none")
        self.h_warm_line = bg[n:self.nwarm]
        if self.hw:
            for ln in bg[:n]:
                A(ln)

    def helper_mark(self, A):
        self.poison2()
        A("\n".join(self.p3_lines[-1]), tag="poison")

    def helper_flag(self, A):
        A(f"s_add_u32 {self.sE}, {self.sE}, 1\nv_mov_b32 {self.M1[0]}, {self.sE}")
        A.wait_tag("poison")
        A(f"s_mov_b64 exec, 1\nglobal_store_dword {self.vFo}, {self.M1[0]}, s[30:31] sc1\ns_mov_b64 exec, -1")

    def helper_hook(self, where):
        if where == self.o["h_p3"]:
            self.A(f"s_mov_b64 exec, s[10:11]\nglobal_store_dwordx4 {self.hta}, {self.hM1}, s[30:31] sc1\ns_mov_b64 exec, -1")
        if self.o["poison_at"] == "h1" and where == self.o["flag_at"]:
            self.helper_flag(self.A)
        if where == self.hw:
            for ln in self.h_warm_line:
                self.A(ln)

    def helper_dma(self, A):
        S, sL, sb = self.S, self.sL, self.sb
        self.sBlk, self.sRole, self.sUp, self.sWb = S.get(), S.get(), S.get(), S.get()
        A(f"""
        s_lshr_b32 s3, {sL}, 5
        s_and_b32 {sb}, {sL}, 31
        s_cmp_ge_u32 {sb}, {self.o["r1_at"]}
        s_cbranch_scc1 L_h_role1
        s_cmp_ge_u32 {sb}, {14 if self.o["h_roles"] == "both" else 0}
        s_cbranch_scc1 L_h_role2
        s_cmp_ge_u32 {sb}, 7
        s_cselect_b32 {self.sUp}, 1, 0
        s_cselect_b32 s6, 7, 0
        s_sub_u32 s6, {sb}, s6
        s_mul_i32 {self.sBlk}, s3, 7
        s_add_u32 {self.sBlk}, {self.sBlk}, s6
        """)
        for role in (0, 1):
            if role:
                A.label("L_h_role1")
                A(f"s_lshl_b32 s3, s3, 2\ns_sub_u32 s6, {sb}, {self.o['r1_at']}\ns_add_u32 {self.sBlk}, s3, s6")
            plan = self.dma_plan(A, role)
            self.V.put(self.vWa)
            if self.o["dma_at"] == "none":
                plan = []
            cuts = self.o["h_dma"][role]
            if self.o["h_conv"]:
                A("s_waitcnt vmcnt(0)")
                n = self.o["h_conv"] if role else len(plan)
                for a, b in plan[:n]:
                    A(a)
                    A(b)
                plan = plan[n:]
            nb = 4 if self.o["b8b"] else 3
            for k in range(nb):
                if k or not self.o["h_z"]:
                    A("s_barrier")
                n = (cuts[k] if k < 2 else 0) if k < nb - 1 else len(plan)
                for a, b in plan[:n]:
                    A(a)
                    A(b)
                plan = plan[n:]
            if role == 1 and self.o["b9b"]:
                A("s_barrier")
            A("s_waitcnt vmcnt(0)")
            A.vm = []
            A("s_barrier")
            A("s_branch L_h_done")
        A.label("L_h_role2")
        if self.o["h_z"]:
            A("s_barrier")
        A.label("L_h_done")

    def dma_plan(self, A, role):
        plan = super().dma_plan(A, role)
        mine = self.o["h_dma"] and (role == 1 or self.o["h_roles"] == "both")
        return [] if mine and not self.is_h else plan

    def maybe_s1(self, where):
        if where == self.o["s1_go"]:
            self.A("s_barrier")
        self.helper_hook(where)

    def dump_stamps(self, A):
        if self.is_h == bool(self.o["hst"]):
            super().dump_stamps(A)

    def prologue_m(self):
        A, V, S = self.A, self.V, self.S
        sL, sW, sa, vL = self.sL, self.sW, self.sa, self.vL
        t1 = V.get()
        self.vTau, self.vHr, self.vRow = V.get(), V.get(), V.get()
        self.XB, self.XA = V.get(8), V.get(8)
        if self.o["prio"]:
            A(f"s_setprio {self.o['prio']}")
        A(f"""
        v_lshrrev_b32 {self.vTau}, 5, v0
        v_and_b32 {t1}, 31, v0
        v_lshlrev_b32 {t1}, 4, {t1}
        v_lshl_add_u32 {self.vHr}, {self.vTau}, 10, {t1}
        s_lshl_b32 {sa}, {sL}, 13
        v_add_u32 {self.vRow}, {sa}, {self.vHr}
        """)
        A(f"global_load_dwordx4 {self.XB[0:4]}, {self.vRow}, s[4:5]")
        A(f"global_load_dwordx4 {self.XB[4:8]}, {self.vRow}, s[4:5] offset:512")
        if self.o["karg2"]:
            self.rest_args(A)
        if self.o["b0"]:
            self.vE = V.get()
            A(f"v_mov_b32 {self.vE}, 0\nglobal_load_dword {self.vE}, {self.vE}, s[30:31] offset:{WS_EPOCH}")
        else:
            A(f"s_load_dword {self.sE}, s[30:31], {WS_EPOCH}")
        self.stamp("karg")
        A.raw(";@cut")
        self.vS1o, self.vP2, self.vMask, self.vHw2, self.M1 = V.get(), V.get(), V.get(), V.get(), V.get(4)
        A(f"""
        s_lshl_b32 s3, {sW}, 11
        s_add_u32 s3, s3, {sa}
        s_add_u32 s3, s3, {WS_S1}
        v_lshl_add_u32 {self.vS1o}, {vL}, 4, s3
        v_add_u32 {self.vP2}, {WS_S2 - WS_S1}, {self.vS1o}
        s_mov_b32 s3, {L_H}
        v_lshl_add_u32 {self.vHw2}, v0, 2, s3
        v_mov_b32 {self.vMask}, {0xFFFFFFFF ^ TAGMASK}
        s_mov_b32 {self.sOnes}, 0x3f803f80
        s_mov_b32 {self.sLo}, 0x3f80
        s_mov_b32 {self.sHi}, 0x3f800000
        v_and_b32 {self.vI}, 15, v0
        v_bfe_u32 {self.vG}, v0, 4, 2
        """)
        for k in range(4):
            A(f"v_mov_b32 {self.M1[k]}, -1")
        V.put(t1)
        if not self.o["cc_late"]:
            self.conv_consts()
        if self.o["ch_early"]:
            self.chores()
        if self.o["poison_at"] == "consts":
            self.poison2()
        if self.o["b0"]:
            t = V.get()
            A(f"v_lshlrev_b32 {t}, 2, {self.vTau}\nds_write_b32 {t}, {self.M1[0]} offset:{L_ST + 32}")
            A("s_waitcnt lgkmcnt(0)")
            A.lg, A.sm = [], []
            A("s_barrier")
            V.put(t)
        self.stamp("consts")
        self.ksl = []

    def conv_consts(self):
        A, V = self.A, self.V
        vI, vG, sB, sL, sb = self.vI, self.vG, self.sB, self.sL, self.sb
        t0, t1, t2, t3 = V.get(), V.get(), V.get(), V.get()
        self.BAND = {key: V.get(4) for key in BANDS}
        SEL = V.get(6)
        A(f"""
        v_lshlrev_b32 {t0}, 3, {vG}
        v_sub_u32 {t0}, {t0}, {vI}
        v_add_u32 {t0}, 20, {t0}
        v_mul_u32_u24 {t0}, 0x10001, {t0}
        v_mov_b32 {t3}, 0x70007
        s_mov_b32 {sb}, 0xc000c
        """)
        for k in range(6):
            c0, c1 = 32 - 2 * k, 31 - 2 * k
            A(f"""
            s_mov_b32 s3, {c0 | c1 << 16}
            v_pk_sub_i16 {t1}, {t0}, s3
            v_pk_sub_i16 {t2}, s3, {t0}
            v_pk_max_i16 {t1}, {t1}, {t2}
            v_pk_min_i16 {t1}, {t1}, {t3}
            v_lshl_or_b32 {SEL[k]}, {t1}, 8, {sb}
            """)
        for (delta, h), B in self.BAND.items():
            lut = sum(0x3C << (8 * i) for i in range(min(h + 1, 4)))
            A(f"s_mov_b32 s3, {lut}")
            for d in range(4):
                A(f"v_perm_b32 {B[d]}, {60 if h == 4 else 0}, s3, {SEL[d + (0 if delta == 12 else 2)]}")
        self.vUf, self.vZw, self.vUw, self.vN, self.vF = V.get(), V.get(), V.get(), V.get(), V.get()
        self.vS1i, self.vS1i2 = V.get(), V.get()
        A(f"""
        s_mul_i32 s3, {sB}, {UCH}
        s_add_u32 {sb}, s3, {L_U}
        v_lshl_add_u32 {t0}, {vI}, 5, {sb}
        v_lshl_add_u32 {self.vUf}, {vG}, 4, {t0}
        s_mul_i32 s3, {sB}, {KCH}
        v_sub_u32 {t0}, 15, {vI}
        v_and_b32 {t1}, 3, {t0}
        v_and_b32 {t0}, 12, {t0}
        v_mul_u32_u24 {t1}, {KCOPY}, {t1}
        v_lshl_add_u32 {t0}, {t0}, 1, {t1}
        v_add_u32 {t0}, s3, {t0}
        v_lshl_add_u32 {self.vN}, {vG}, 4, {t0}
        v_lshl_add_u32 {self.vF}, {vG}, 3, {t0}
        v_and_b32 {t0}, 2, {vG}
        v_lshl_add_u32 {t0}, {vI}, 2, {t0}
        v_add_u32 {t0}, {sB}, {t0}
        v_lshrrev_b32 {t1}, 1, {vI}
        v_xor_b32 {t0}, {t0}, {t1}
        v_and_b32 {t1}, 1, {vG}
        v_lshlrev_b32 {t1}, 3, {t1}
        v_lshl_add_u32 {self.vZw}, {t0}, 4, {t1}
        v_and_b32 {t0}, 1, v0
        v_lshrrev_b32 {t1}, 1, v0
        v_mul_u32_u24 {t2}, {UCH}, {t0}
        v_lshl_add_u32 {self.vUw}, {t1}, 4, {t2}
        v_lshlrev_b32 {t0}, 4, {t0}
        v_lshl_add_u32 {t2}, {t1}, 13, {t0}
        s_lshl_b32 s3, {sL}, 5
        s_add_u32 s3, s3, {WS_S1}
        v_add_u32 {self.vS1i}, s3, {t2}
        v_add_u32 {self.vS1i2}, 0x100000, {self.vS1i}
        """)
        V.put(t0, t1, t2, t3, SEL)

    def ln1(self):
        if not self.o["b0"]:
            return super().ln1()
        A, V = self.A, self.V
        s1, s2, nm, rs, ad = V.get(), V.get(), V.get(), V.get(), V.get()
        A(f"v_lshlrev_b32 {ad}, 2, {self.vTau}")
        for k in range(8):
            if k % 4 == 0:
                A(f"ds_write_b128 {self.vHr}, {self.XB[k:k + 4]} offset:{L_H + 128 * k}")
            A(f"v_dot2_f32_bf16 {s1}, {self.XB[k]}, {self.sOnes}, {s1 if k else 0}")
            A(f"v_dot2_f32_bf16 {s2}, {self.XB[k]}, {self.XB[k]}, {s2 if k else 0}")
            if k == 0:
                self.stamp("x")
                if self.o["poison_at"] == "x":
                    self.poison2()
        self.allreduce(A, "v_add_f32", [s1, s2], 32)
        self.ln_stats(A, s1, s2, nm, rs)
        if self.o["poison_at"] == "stat":
            self.poison2()
        self.stamp("stat")
        A("s_mov_b64 exec, 1\ns_bitset1_b64 exec, 32")
        A(f"v_mul_f32 {rs}, 0x3d800000, {rs}")
        A(f"ds_write_b32 {ad}, {nm} offset:{L_ST}\nds_write_b32 {ad}, {rs} offset:{L_ST + 32}")
        A("s_mov_b64 exec, -1")
        A(f"v_mov_b32 {ad}, 0\ns_mov_b32 s3, 0")
        V.put(self.XB)
        NM, RS, XA = V.get(8), V.get(8), self.XA
        A.flush()
        A.label("L_stat")
        for k in range(2):
            A(f"ds_read_b128 {RS[4 * k:4 * k + 4]}, {ad} offset:{L_ST + 32 + 16 * k}")
        for q in range(2):
            A(f"ds_read2st64_b32 {XA[2 * q:2 * q + 2]}, {self.vHw2} offset0:{8 * q} offset1:{8 * q + 4}")
        A(f"ds_read_b128 {NM[0:4]}, {ad} offset:{L_ST}")
        for q in range(2, 4):
            A(f"ds_read2st64_b32 {XA[2 * q:2 * q + 2]}, {self.vHw2} offset0:{8 * q} offset1:{8 * q + 4}")
        A(f"ds_read_b128 {NM[4:8]}, {ad} offset:{L_ST + 16}")
        A(f"s_add_u32 s3, s3, 1\ns_cmp_lt_u32 s3, {SPIN_MAX}\ns_cselect_b64 s[18:19], -1, 0")
        self.poison_check([RS[k] for k in range(8)], s1)(A)
        A("s_and_b64 vcc, vcc, s[18:19]")
        A("s_cbranch_vccnz L_stat")
        self.stamp("b1")
        A(f"v_readfirstlane_b32 {self.sE}, {self.vE}")
        V.put(self.vE)
        if self.o["poison_at"] == "b1":
            self.poison2()
        self.make_tags(A)
        T = V.get(8)
        self.G = []
        for e in range(2):
            G = V.get(4)
            for j in range(8):
                A(f"v_dot2_f32_bf16 {T[j]}, {XA[j]}, {self.sHi if e else self.sLo}, {NM[j]}")
            for j in range(8):
                self.rnd(A, T[j], T[j])
            for q in range(4):
                A(f"v_pk_mul_f32 {T[2 * q:2 * q + 2]}, {T[2 * q:2 * q + 2]}, {RS[2 * q:2 * q + 2]}")
            for j in range(8):
                self.rnd(A, T[j], T[j])
            for q in range(4):
                A(f"v_cvt_pk_f16_f32 {G[q]}, {T[2 * q]}, {T[2 * q + 1]}")
            for q in range(4):
                A(f"v_and_or_b32 {G[q]}, {G[q]}, {self.vMask}, {self.tags[q]}")
            self.G.append(G)
            if e == 0:
                self.stamp("norm")
            if self.o["st_late"] and e == 0:
                continue
            A.wait_tag("poison")
            for ee in ((0, 1) if self.o["st_late"] else (e,)):
                A(f"global_store_dwordx4 {self.vS1o}, {self.G[ee]}, s[30:31] offset:{1024 * ee} sc1", tag="s1st")
        self.stamp("pub1")
        V.put(T, NM, RS, s1, s2, nm, rs, ad, self.vS1o)

    def chores(self):
        A, V = self.A, self.V
        bg = self.background()
        hmode = self.o["poison_at"] in ("h", "h1")
        self.late_mem = []
        vP3 = V.get()
        if not hmode and not self.o["h_p3"]:
            for item in self.p3_lines[:-1]:
                A(item)
            A(f"v_mov_b32 {vP3}, {self.bgtmp[2]}")
            self.late_mem.append(tuple(x.replace(f" {self.bgtmp[2]},", f" {vP3},") for x in self.p3_lines[-1]))
        n = self.nwarm - (self.o["dma_at"] != "none")
        mwarm = not self.o["h_warm"]
        self.warm_line = bg[n:self.nwarm] if mwarm else []
        keep = self.bgtmp[0]
        vW = V.get()
        if hmode:
            self.vFi = V.get()
            A(f"s_lshr_b32 s3, {self.sL}, 6\ns_lshl_b32 s3, s3, 12\ns_add_u32 s3, s3, {WS_FLG}\nv_lshl_add_u32 {self.vFi}, v0, 4, s3")
        if mwarm:
            for ln in bg[:n]:
                A(ln)
            A(f"v_mov_b32 {vW}, {keep}")
        self.warm_line = [ln.replace(f" {keep},", f" {vW},") for ln in self.warm_line]
        for ln in bg[self.nwarm:]:
            A(ln)
        V.put(*self.bgtmp[:3])
        self.late_free = [vP3, self.M1]
        self.bg, self.bgtmp = [], [vW]

    def after_publish(self):
        A, V = self.A, self.V
        if self.o["prio"]:
            A("s_setprio 0")
        V.put(self.XA)
        if self.o["cc_late"]:
            self.conv_consts()
        if not self.o["ch_early"]:
            self.chores()
        if self.o["poison_at"] in ("h", "h1"):
            V.put(self.vP2)
        for item in self.late_mem:
            A("\n".join(item), tag="poison3")
        self.WR = V.get(8)
        self.row_params()
        V.put(*self.late_free)
        self.UG = V.get(8)
        self.vG16 = V.get()
        A(f"s_lshl_b32 s3, {self.sB}, 2\nv_mov_b32 {self.vG16}, s3")
        if self.o["s1_go"] == "ack":
            A.wait_tag("s1st")
            self.s1_loads(A)
        elif self.o["s1_go"] != "b3":
            A("s_barrier")
            if self.o["s1_split"]:
                A(f"global_load_dwordx4 {self.UG[0:4]}, {self.vS1i}, s[30:31] sc1")
            else:
                self.s1_loads(A)
        self.stamp("rec")
        A.barrier()
        self.stamp("kmf")
        if self.o["mprio2"]:
            A(f"s_setprio {self.o['mprio2']}")
        if self.o["s1_go"] == "b3":
            self.s1_loads(A)
        elif self.o["s1_split"]:
            A(f"global_load_dwordx4 {self.UG[4:8]}, {self.vS1i2}, s[30:31] sc1")
        A(f"ds_read_b32 {self.vG16}, {self.vG16} offset:{L_G}")
        self.shift_regs = ()
        rd = {}
        for q in range(17):
            rd[f"@K{q}"] = [f"ds_read_b64 @K{q}.{2 * hf}, {self.vN} offset:{64 * (16 - q) + 8 * hf}" for hf in range(2)]
        rd["@KX"] = [f"ds_read_b64 @KX.{2 * hf}, {self.vN} offset:{2 * NX + 8 * hf}" for hf in range(2)]
        for k in range(2):
            for d in (2, 3, 4):
                rd[f"@B{k}{d}"] = [f"ds_read_b64 @B{k}{d}.{2 * hf}, {self.vF} offset:{2 * (V2[2 * k + hf] + 32 - 16 * (d - 2))}" for hf in range(2)]
        for d in (4, 5, 6, 7):
            rd[f"@C{d}"] = [f"ds_read_b64 @C{d}.{2 * hf}, {self.vF} offset:{2 * (V3[hf] + 48 - 16 * (d - 4))}" for hf in range(2)]
        self.frag_reads = rd

    def conv(self, A, tiles, dma):
        V, AC = self.V, self.AC
        PE, PD, NPRE, LAT = self.o["pe"], self.o["pd"], self.o["npre"], self.o["lat"]
        EY, EZ = V.get(4), V.get(2)
        qmax = {0: 7, 1: 15}
        b2 = sorted({j - d for j in tiles for d in (2, 3, 4) if j - d >= 0})
        b3 = sorted({j - d for j in tiles for d in (4, 5, 6, 7) if j - d >= 0})
        nlo = min(8 * j - qmax.get(j, 16) for j in tiles)
        nhi = 8 * max(tiles)
        near = []
        for fi, n in enumerate(range(nlo, nhi + 1)):
            for j in tiles:
                q = 8 * j - n
                if 0 <= q <= qmax.get(j, 16):
                    near.append((j, f"@K{q}", fi, q == 0))
        far, gfr, pcount = [], [], 0
        for b in sorted(set(b2) | set(b3)):
            ga, gb = len(gfr), len(gfr) + 1
            gfr += [256 * b - 16, 256 * b - 24]
            mains = []
            if b in b2:
                pa, pb = pcount, pcount + 1
                pcount += 2
                far += [("band", ga, (12, 1), pa, 0), ("band", ga, (8, 2), pa, 1), ("band", gb, (12, 1), pb, 0), ("band", gb, (8, 2), pb, 1)]
                mains += [("main", b + d, pa, f"@B0{d}") for d in (2, 3, 4) if b + d in tiles]
                mains += [("main", b + d, pb, f"@B1{d}") for d in (2, 3, 4) if b + d in tiles]
            if b in b3:
                pc = pcount
                pcount += 1
                far += [("band", ga, (8, 3), pc, 0), ("band", gb, (8, 4), pc, 1)]
                mains += [("main", b + d, pc, f"@C{d}") for d in (4, 5, 6, 7) if b + d in tiles]
            if b + 4 in tiles:
                far.append(("x", b + 4, ga))
            far += mains
        mf, fill = [], []
        started, done_at, first_use, pready = set(), {}, {}, {}
        wcount, ni, credit = 0, 0, 0.0
        farleft = list(far)
        span = self.o["far_span"][0 if 0 in tiles else 1]
        NP = self.o["np"]

        def acc_mf(j, a, b):
            mf.append(f"v_mfma_f32_16x16x32_f16 @acc{j}, {a}, {b}, {f'@acc{j}' if j in started else 0}")
            started.add(j)

        def far_ok(it):
            if it[0] == "main":
                return pready.get(it[2], 10 ** 6) <= len(mf)
            if it[0] == "band":
                return not any(o[0] == "main" and o[2] <= it[3] - NP for o in farleft)
            return True

        def blocked(k):
            return near[k][3] and any(o[0] in ("main", "x") and o[1] == near[k][0] for o in farleft)
        while ni < len(near) or farleft:
            t = len(mf)
            want_far = farleft and (credit >= 1.0 or ni >= len(near) or blocked(ni))
            pick = None
            if want_far:
                for it in farleft[:10]:
                    if far_ok(it) and not (it[0] == "band" and any(o[0] == "band" for o in farleft[:farleft.index(it)])):
                        pick = it
                        break
            if pick is None and ni < len(near) and not blocked(ni):
                j, a, fi, last = near[ni]
                ni += 1
                acc_mf(j, a, f"@F{fi}")
                if last:
                    done_at[j] = t
                credit += len(far) / span
                continue
            assert pick is not None, "conv schedule is stuck"
            farleft.remove(pick)
            credit -= 1.0
            if pick[0] == "band":
                _, g, key, p, hf = pick
                w = f"@W{wcount}"
                wcount += 1
                mf.append(f"v_mfma_f32_16x16x32_f16 {w}, @G{g}, {self.BAND[key]}, 0")
                for k in range(2):
                    fill.append([t + self.o["cvt0"], t + LAT - 1, f"v_cvt_pk_f16_f32 @P{p}:{2 * hf + k}, {w}:{2 * k}, {w}:{2 * k + 1}", None])
                if hf == 1:
                    pready[p] = t + LAT
            elif pick[0] == "x":
                acc_mf(pick[1], "@KX", f"@G{pick[2]}")
            else:
                acc_mf(pick[1], f"@P{pick[2]}", pick[3])
        nm = len(mf)
        tok = re.compile(r"@[A-Za-z]+\d*X?")
        for t, txt in enumerate(mf):
            for name in tok.findall(txt):
                first_use.setdefault(name, t)
        reads = []
        for name, t in first_use.items():
            if name[1] == "F":
                reads.append((t, f"ds_read_b128 {name}, {self.vUf} offset:{512 + 2 * (32 * (nlo + int(name[2:])) - 16)}"))
            elif name[1] == "G":
                reads.append((t, f"ds_read_b128 {name}, {self.vUf} offset:{512 + 2 * gfr[int(name[2:])]}"))
            elif name in self.frag_reads:
                reads += [(t, x) for x in self.frag_reads[name]]
        reads.sort(key=lambda r: r[0])
        pre = [txt for t, txt in reads if t <= NPRE]
        fill += [[max(t - PE, 0), max(t - PD, 0), txt, None] for t, txt in reads if t > NPRE]
        order_t = sorted(tiles, key=lambda j: done_at[j])
        for k, j in enumerate(order_t):
            t = done_at[j]
            nxt = done_at[order_t[k + 1]] if k + 1 < len(order_t) else nm + 100
            seq2 = [f"v_mul_f32 {EY[r]}, @acc{j}:{r}, {self.vG16}" for r in range(4)]
            seq2 += [f"v_cvt_pk_bf16_f32 {EZ[r]}, {EY[2 * r]}, {EY[2 * r + 1]}" for r in range(2)]
            seq2.append(f"ds_write_b64 {self.vZw}, {EZ} offset:{L_Z + 1024 * j}")
            for txt in seq2:
                fill.append([t + self.o["cvt0"], min(t + 12, nxt + 2), txt, f"e2_{j}"])
        for ln in self.late_warm:
            fill.append([self.o["warm_slot"], self.o["warm_slot"] + 2, ln, None])
        uses = {}
        for txt in mf + pre + [f[2] for f in fill]:
            for name in set(tok.findall(txt)):
                uses[name] = uses.get(name, 0) + 1
        vq, aq, held = [], [], []
        while True:
            try:
                vq.append(V.get(4))
            except RuntimeError:
                break
        while True:
            try:
                aq.append(AC.get(4, 4))
            except RuntimeError:
                break
        allv, alla = list(vq), list(aq)
        phys = {}
        low = [len(vq), len(aq)]

        def subst(txt, alloc):
            def rep(m):
                name, part = m.group(1), m.group(2) or ""
                if name not in phys:
                    if not alloc:
                        return "null"
                    vonly = name[1] in "WP" or name.startswith("@acc")
                    if not vonly and aq:
                        phys[name] = aq.pop(0)
                    else:
                        assert vq, f"out of registers at {name}"
                        phys[name] = vq.pop(0)
                    low[0], low[1] = min(low[0], len(vq)), min(low[1], len(aq))
                r = phys[name]
                if part.startswith("."):
                    return str(r[int(part[1:]):int(part[1:]) + 2])
                if part.startswith(":"):
                    return str(r[int(part[1:])])
                return str(r)
            return re.sub(r"(@[A-Za-z]+\d*X?)([.:]\d)?", rep, txt)

        def emit(txt):
            names = set(tok.findall(txt))
            A(subst(txt, True))
            for name in names:
                uses[name] -= 1
                if uses[name] == 0:
                    r = phys.pop(name)
                    (vq if r.kind == "v" else aq).append(r)
        for txt in pre:
            emit(txt)
        for i, f in enumerate(fill):
            f.append(i)
        left = list(fill)
        A.prewait([subst(mf[0], False)])
        for t in range(nm):
            emit(mf[t])
            chosen = []
            for f in sorted([f for f in left if f[0] <= t], key=lambda f: (f[1], f[4])):
                if len(chosen) >= 2 and f[1] > t:
                    break
                if f[3] and any(g[3] == f[3] and g[4] < f[4] and g not in chosen for g in left):
                    continue
                mem = f[2].startswith(("ds_", "global_"))
                if mem and f[1] > t and any(g[3] == f[3] and f[3] for g in chosen):
                    continue
                if f[2].startswith("ds_read") and f[1] > t and len(aq) + len(vq) < 4 and tok.findall(f[2])[0] not in phys:
                    continue
                chosen.append(f)
            memf = [f for f in chosen if f[2].startswith(("ds_", "global_")) and not any(g[3] == f[3] and f[3] and g[4] < f[4] for g in chosen)]
            rest = [f for f in chosen if f not in memf]
            A.prewait([subst(f[2], False) for f in chosen] + ([subst(mf[t + 1], False)] if t + 1 < nm else []))
            for f in memf + rest:
                emit(f[2])
                left.remove(f)
        for f in sorted(left, key=lambda f: (f[1], f[4])):
            emit(f[2])
        assert not phys
        self.nmfma = getattr(self, "nmfma", []) + [nm]
        self.bg_left = getattr(self, "bg_left", []) + [tuple(low)]
        V.put(EY, EZ, *allv)
        AC.put(*alla)

    def conv_all(self):
        A = self.A
        self.late_warm = []
        if self.o["warm_in"]:
            self.late_warm, self.warm_line = self.warm_line, []
        self.s1_consume(A, "")
        self.V.put(self.UG, self.vUw, self.vS1i, self.vS1i2)
        A(f"s_cmp_eq_u32 {self.sH}, 0\ns_cbranch_scc0 L_conv_b")
        B = A.fork()
        A.barrier()
        self.stamp("b5", A)
        self.conv(A, [0, 1, 2, 3, 4], [])
        A.wait(lg=0)
        A.flush()
        A("s_branch L_conv_done")
        if self.o["pages"]:
            B.raw(".p2align 12")
        B.label("L_conv_b")
        B.barrier()
        self.stamp("b5", B)
        self.conv(B, [5, 6, 7], [])
        B.wait(lg=0)
        B.flush()
        A.lines += B.lines
        A.count += B.count
        A.nops += B.nops
        A.label("L_conv_done")
        self.V.put(*self.BAND.values(), self.vUf, self.vZw, self.vG16, self.vN, self.vF, *self.bgtmp)
        self.stamp("conv", A)
        A("s_barrier")
        self.stamp("b6", A)
        self.ZT = ZT = self.V.get(8)
        if not self.o["h_z"]:
            A(f"ds_read_b128 {ZT[0:4]}, {self.vZr} offset:{L_Z}\nds_read_b128 {ZT[4:8]}, {self.vZr} offset:{L_Z + 4096}")
            A(f"global_store_dwordx4 {self.vS2o}, {ZT[0:4]}, s[30:31] sc1", tag="s2st")
            A(f"global_store_dwordx4 {self.vS2o2}, {ZT[4:8]}, s[30:31] sc1", tag="s2st")
        if self.o["poison_at"] in ("h", "h1"):
            self.vFl = self.V.get()
            A(f"global_load_dword {self.vFl}, {self.vFi}, s[30:31] sc1")
            self.o["poison_at"] = "pub"
        self.stamp("st2", A)
        self.V.put(self.vZr, self.vS2o, self.vS2o2)
        self.XA = XA = self.V.get(8)
        for q in range(4):
            A(f"ds_read2st64_b32 {XA[2 * q:2 * q + 2]}, {self.vHw2} offset0:{8 * q} offset1:{8 * q + 4}")

    def resolve(self, A, sfx, between=None):
        if not self.o["s3_full"] or sfx == "r2":
            return super().resolve(A, sfx, between)
        t0, t1, t2 = self.t
        T, kin = self.T, self.kin
        A(f"s_lshl_b32 s3, {self.sW}, 10\nv_subrev_u32 {t1}, s3, {self.vS3i}")

        def s3_loads(C):
            for k in range(4):
                C(f"global_load_dword {T[k]}, {t1}, s[30:31] offset:{1024 * k} sc1")

        def check(C):
            C(f"v_max3_u32 {kin}, {T[0]}, {T[1]}, {T[2]}\nv_max_u32 {kin}, {kin}, {T[3]}\nv_cmp_eq_u32 vcc, -1, {kin}")
        s3_loads(A)
        if between:
            between()
        self.poll(A, "s3" + sfx, s3_loads, check)
        self.stamp("s3p", A)
        self.allreduce(A, "v_max_u32", [kin], 64)
        self.stamp("s3w", A)
        A(f"v_readfirstlane_b32 {self.sK}, {kin}")
        A(f"s_and_b32 {self.sT}, {self.sK}, 0x7ff\ns_sub_u32 {self.sT}, 2047, {self.sT}")
        self.stamp("s3", A)
        A(f"s_lshr_b32 s3, {self.sT}, 3\ns_lshl_b32 s3, s3, 11\ns_add_u32 s3, s3, {WS_ROWS}")
        self.late_barrier = True

    def build(self):
        A = self.A
        self.entry()
        H = A.fork()
        H.label("L_helper")
        vfree, afree, sfree = set(self.V.free), set(self.AC.free), set(self.S.free)
        self.helper(H)
        self.A = A
        self.V.free, self.AC.free, self.S.free = set(vfree), set(afree), set(sfree)
        self.prologue_m()
        self.ln1()
        self.after_publish()
        self.sWb, self.sC, self.sK, self.sT = self.S.get(), self.S.get(2), self.S.get(), self.S.get()
        self.conv_all()
        self.phase_c()
        self.kin = self.V.get()
        A(f"s_cmp_eq_u32 {self.sRole}, 1\ns_cbranch_scc1 L_role1")
        B = A.fork()
        B.label("L_role1")
        A(f"s_cmp_eq_u32 {self.sRole}, 2\ns_cbranch_scc1 L_role2")
        C = A.fork()
        C.label("L_role2")
        vfree, afree = set(self.V.free), set(self.AC.free)
        self.tail0(A)
        self.V.free, self.AC.free = set(vfree), set(afree)
        self.tail1(B)
        self.V.free, self.AC.free = set(vfree), set(afree)
        self.tail2(C)
        cut = A.lines.index(";@cut")
        if self.o["h_first"]:
            body = "\n".join(A.lines[:cut]) + "\n    s_branch L_main\n" + H.text() + "L_main:\n" + "\n".join(A.lines[cut + 1:]) + "\n"
        else:
            hcut = H.lines.index(";@cut")
            body = "\n".join(A.lines[:cut]) + "\n    s_branch L_main\n" + "\n".join(H.lines[:hcut]) + "\n    s_branch L_helper2\nL_main:\n"
            body += "\n".join(A.lines[cut + 1:]) + "\n"
            H.lines = ["L_helper2:"] + H.lines[hcut + 1:]
        if self.o["pages"]:
            body += C.text() + ".p2align 12\n" + B.text() + "".join(c.text() for c in self.cold) + ".p2align 12\n" + H.text()
        else:
            body += B.text() + C.text() + ("" if self.o["h_first"] else H.text()) + "".join(c.text() for c in self.cold)
        body = body.replace(";@cut\n", "")
        astat = None
        if self.o["align"]:
            import align
            body, astat = align.align(body, self.o["align"])
        head = open(f"cdna_kernels/{NAME}.s.ref").read().split("; Override launch geometry")[0]
        self.stats = dict(instr=A.count + B.count + C.count + H.count, nops=A.nops + B.nops + H.nops, vgpr=self.V.top + 1,
                          agpr=self.AC.top + 1, mfma=self.nmfma, spare=self.bg_left, align=astat)
        return head + f"""; One persistent launch: 256 workgroups, one per CU, exchanging data through d_ws.
; @launch grid=(256,1,1) block=(512,1,1) lds={LDS_BYTES}
.amdgcn_target "amdgcn-amd-amdhsa--gfx950"
.text
.globl {NAME}_kernel
.p2align 8
.type {NAME}_kernel,@function
{NAME}_kernel:
{body}L_end:
    s_endpgm
L_all_end:
.section .rodata,"a"
.p2align 6
.amdhsa_kernel {NAME}_kernel
  .amdhsa_next_free_vgpr 256
  .amdhsa_next_free_sgpr 102
  .amdhsa_accum_offset {VMAX}
  .amdhsa_group_segment_fixed_size 0
  .amdhsa_kernarg_size 120
  .amdhsa_user_sgpr_count 2
  .amdhsa_user_sgpr_kernarg_segment_ptr 1
  .amdhsa_system_sgpr_workgroup_id_x 1
  .amdhsa_float_denorm_mode_32 3
.end_amdhsa_kernel
"""


EXTRA.update(np=4, h_first=False, touch=0, pages=True, pad="", h_p3=False, ch_early=False, cc_late=False, karg2=False, h_z=False, s3_full=True, late_unpack=True, r0_ackout=True, r2_mode=2, align=0, mprio2=0, h_order="pw", s1_split=False, warm_in=True, warm_slot=20, h_dma="0_4_0_4", b8b="hn", b9b=True, h_roles="both", b0=False, h_warm=None, h_conv=0, flag_at="far", hprio=0, hb1=0, s1_go="rec2", poison_at="b1", st_late=True)


def generate(path, **opt):
    g = Gen(**opt)
    text = g.build()
    open(path, "w").write(text)
    return g.stats


if __name__ == "__main__":
    out = sys.argv[1] if len(sys.argv) > 1 else f"cdna_kernels/{NAME}.s"
    opts = {}
    for a in sys.argv[2:]:
        k, v = a.split("=")
        opts[k] = {"True": True, "False": False}.get(v, int(v) if v.isdigit() else v)
    print(generate(out, **opts))
```

```python
import sys
from asmdsl import Asm, Pool, R, Multi

NAME = "sequential_preLN__ssm_conv_s4d__moe_arch_mod__prompt"

WS_EPOCH = 0
WS_FLG = 0x4000
WS_S3 = 0x8000
WS_S4 = 0x10000
WS_ROWS = 0x20000
WS_S1 = 0x100000
WS_S2 = 0x380000
WS_STAMP = 0x600000

ROWB = 544
STAGE_CH = 57 * ROWB
L_K = 0
KCOPY = 2112
KCH = 4 * KCOPY
L_U = L_K + 2 * KCH
UCH = 4672
L_Z = 26368
L_H = L_Z + 8192
L_ST = L_H + 8192
L_KEY = L_ST + 64
L_KEY2 = L_KEY + 32
L_RED = L_KEY2 + 32
L_P = 43520
PPLANE = 2048 + 32
PHALF = 2 * PPLANE
L_STAGE = 60416
LDS_BYTES = L_STAGE + 2 * STAGE_CH
assert L_U + UCH + 4608 <= L_Z and L_RED + 512 <= L_P and L_P + 4 * PHALF <= L_STAGE and L_STAGE % 256 == 0

NX = 560
FAR = 608
V2 = [FAR + 48 * s for s in range(4)]
V3 = [FAR + 16 * 13 + 80 * s for s in range(2)]
TAGMASK = 0x40074007
LOG2E = 0x3FB8AA3B
INV2PI = 0x3E22F983
SPIN_MAX = 1 << 14

BANDS = ((12, 1), (8, 2), (8, 3), (8, 4))


def band_table():
    out = []
    for delta, h in BANDS:
        for lane in range(64):
            phi, g = lane & 15, lane >> 4
            bits = [0x3C00 if abs(8 * g + e - phi - delta) <= h else 0 for e in range(8)]
            out.append(".long " + ", ".join(hex(bits[2 * d] | bits[2 * d + 1] << 16) for d in range(4)))
    return "\n".join(out)


STAMP_SETS = {
    True: ["start", "karg", "x", "pub1", "rec", "kmf", "frag", "s1", "conv", "ack2", "s2", "pub3", "ack3", "s3", "row", "g1", "g2", "end"],
    "z": ["start"] + [f"unused{i}" for i in range(16)] + ["end"],
    "a": ["start", "karg", "issued", "consts", "x", "stat", "b1", "norm", "pub1", "warm", "par", "ws", "recR", "rec", "b2", "kmf0", "kmf", "end"],
    "b": ["start", "kmf", "shift", "frag", "s1w", "s1", "b5", "conv", "b6", "st2", "dma", "ack2", "s2", "hw", "b7", "key", "pub3", "end"],
    "c": ["start", "pub3", "hn", "outc", "ack3", "s3p", "s3w", "s3", "row", "g1m", "g1b", "g1", "r1o", "r1t", "r1a", "g2m", "g2", "end"],
}
DEFAULTS = dict(stamps=False, s1_at="mfma", warm=True, out_pol="sc1", pf_code=True, pf_lines=8, dbg=False, poison_at="x", recb=4, lat=8, cvt0=4, nw=8, wv=(0, 0, 0, 0), r1_out="row", dma_s2=0, st_late=False, early_br=True, addtid=True, r1_at=28, b_first=False, dma0_ack2=False, p3_at="consts", cpre=0, bg_from=0, fin_pol="", r0_late=2, r2_late=True, dma_ack2=0, xmap=True, x_pol="", w_pol="", p_pol="sc1", mask_poll=True, warm_slot=30, kpre=1, par_first=True, band_tab=False, frag_in=True, dma_pre=0, r1_split=2, xa_glob=False, warm_at="s1w", xa_at="start", nf=7, ng=4, pe=16, pd=5, npre=3, clk=False, dma_at="conv", warm_mode="sect", far_span=(60, 48))


class Gen:
    def __init__(self, **opt):
        self.o = dict(DEFAULTS)
        self.o.update(opt)
        if isinstance(self.o["far_span"], str):
            self.o["far_span"] = tuple(int(x) for x in self.o["far_span"].split("_"))
        if isinstance(self.o["wv"], str):
            self.o["wv"] = tuple(int(x) for x in self.o["wv"].split("_"))
        self.A = Asm()
        self.V = Pool("v", 1, 255)
        self.AC = Pool("a", 0, 255)
        self.S = Pool("s", 32, 63)
        self.cold = []
        self.nstamp = 0

    def stamp(self, name, A=None):
        sel = STAMP_SETS.get(self.o["stamps"])
        if sel and name in sel:
            i = sel.index(name)
            (A or self.A)(f"{'s_memtime' if self.o.get('cyc') else 's_memrealtime'} s[{64 + 2 * i}:{65 + 2 * i}]")

    def dump_stamps(self, A):
        if not self.o["stamps"]:
            return
        if self.o["dbg"]:
            self.dump_debug(A)
            return
        a, d = self.V.get(), self.V.get(2)
        A("s_mov_b64 exec, 1")
        A.wait(lg=0)
        A(f"s_lshl_b32 s3, {self.sL}, 2\ns_add_u32 s3, s3, {self.sW}\ns_lshl_b32 s3, s3, 8\ns_add_u32 s3, s3, {WS_STAMP}")
        A(f"v_mov_b32 {a}, s3")
        for i in range(19):
            A(f"v_mov_b32 {d[0]}, s{64 + 2 * i}\nv_mov_b32 {d[1]}, s{65 + 2 * i}")
            A(f"global_store_dwordx2 {a}, {d}, s[30:31] offset:{8 * i}")
            A.wait(vm=0)
        self.V.put(a, d)

    def dump_debug(self, A):
        a, d = self.V.get(), self.V.get()
        n = getattr(self, "ndbg", 0)
        self.ndbg = n + 1
        A("s_mov_b64 exec, 1")
        A(f"s_cmp_eq_u32 {self.sL}, 255\ns_cbranch_scc0 L_dbg{n}\ns_cmp_eq_u32 {self.sW}, 0\ns_cbranch_scc0 L_dbg{n}")
        A("s_load_dwordx2 s[4:5], s[0:1], 104")
        A.wait(lg=0)
        A(f"v_mov_b32 {a}, 0")
        for i in range(1, 17):
            A(f"s_sub_u32 s3, s{64 + 2 * (i + 1)}, s64\nv_mov_b32 {d}, s3")
            A(f"global_store_dword {a}, {d}, s[4:5] offset:{4 * (i - 1)}")
        A.label(f"L_dbg{n}")
        self.V.put(a, d)

    def rnd(self, A, dst, src, neg=False):
        A(f"v_cvt_pk_bf16_f32 {dst}, 0, {'-' if neg else ''}{src}")

    def allreduce(self, A, op, regs, width, fill=()):
        fill = list(fill)

        def pad():
            for _ in range(max(0, 3 - len(regs))):
                if fill:
                    A(fill.pop(0))
        steps = ["quad_perm:[1,0,3,2]", "quad_perm:[2,3,0,1]", "row_half_mirror", "row_mirror"]
        for st in steps:
            pad()
            for r in regs:
                A(f"{op}_dpp {r}, {r}, {r} {st} row_mask:0xf bank_mask:0xf")
        tmp = [self.V.get() for _ in regs]
        for w, sw in ((32, "v_permlane16_swap_b32"), (64, "v_permlane32_swap_b32")):
            if width >= w:
                for r, t in zip(regs, tmp):
                    A(f"v_mov_b32 {t}, {r}")
                pad()
                for r, t in zip(regs, tmp):
                    A(f"{sw} {r}, {t}")
                for r, t in zip(regs, tmp):
                    A(f"{op} {r}, {r}, {t}")
        for f in fill:
            A(f)
        self.V.put(*tmp)

    def ln_stats(self, A, s1, s2, nm, rs):
        t = self.V.get()
        A(f"v_mul_f32 {s1}, 0x3b000000, {s1}")
        A(f"v_mul_f32 {s2}, 0x3b000000, {s2}")
        A(f"v_fma_f32 {t}, -{s1}, {s1}, {s2}")
        A(f"v_max_f32 {t}, 0, {t}")
        self.rnd(A, t, t)
        self.rnd(A, nm, s1, neg=True)
        A(f"v_add_f32 {t}, 0x3727c5ac, {t}")
        self.rnd(A, t, t)
        A(f"v_sqrt_f32 {t}, {t}")
        self.rnd(A, t, t)
        A(f"v_rcp_f32 {rs}, {t}")
        self.V.put(t)

    def poll(self, A, name, loads, check):
        check(A)
        A(f"s_cbranch_vccnz L_{name}_slow")
        A.label(f"L_{name}_ok")
        C = Asm()
        C.label(f"L_{name}_slow")
        C("s_mov_b32 s3, 0")
        C.label(f"L_{name}_loop")
        if self.o["mask_poll"]:
            C("s_mov_b64 exec, vcc")
        C("s_nop 1")
        loads(C)
        C(f"s_add_u32 s3, s3, 1\ns_cmp_ge_u32 s3, {SPIN_MAX}")
        C("s_cselect_b32 s18, 0, -1\ns_mov_b32 s19, s18")
        check(C)
        C.wait(vm=0)
        C("s_nop 1")
        C("s_and_b64 vcc, vcc, s[18:19]")
        C(f"s_cbranch_vccnz L_{name}_loop")
        C("s_mov_b64 exec, -1")
        C("s_nop 2")
        C(f"s_branch L_{name}_ok")
        self.cold.append(C)

    def prologue(self):
        A, V, S = self.A, self.V, self.S
        A("s_cmp_ge_u32 s2, 0x100\ns_cbranch_scc1 L_end")
        A("s_load_dwordx16 s[4:19], s[0:1], 0\ns_load_dwordx8 s[20:27], s[0:1], 64")
        A("s_load_dwordx2 s[28:29], s[0:1], 96\ns_load_dwordx2 s[30:31], s[0:1], 112")
        self.stamp("start")
        if self.o["clk"]:
            A("s_memtime s[100:101]")
        self.sL, self.sW, self.sTag, self.sE = S.get(), S.get(), S.get(), S.get()
        self.sOnes, self.sLo, self.sHi, self.sCh = S.get(), S.get(), S.get(), S.get()
        self.sB, self.sH, self.sa, self.sb = S.get(), S.get(), S.get(), S.get()
        sL, sW, sa, sb = self.sL, self.sW, self.sa, self.sb
        self.vL = V.get()
        self.vI = V.get()
        self.vG = V.get()
        t0, t1, t2, t3 = V.get(), V.get(), V.get(), V.get()
        self.vJunk = V.get(2)
        A(f"v_lshrrev_b32 {t0}, 6, v0\ns_lshr_b32 {sL}, s2, 3")
        if self.o["pf_code"]:
            nl = self.o["pf_lines"]
            self.sPc = S.get(2)
            A(f"s_getpc_b64 {self.sPc}")
            A.label("L_pc")
            A(f"""
            v_lshl_add_u32 {t2}, {sL}, 2, {t0}
            v_and_b32 {t2}, {256 // nl - 1}, {t2}
            v_and_b32 {t1}, {nl - 1}, v0
            v_lshl_add_u32 {t2}, {t2}, {nl.bit_length() - 1}, {t1}
            v_lshlrev_b32 {t2}, 7, {t2}
            v_min_u32 {t2}, L_all_end-L_pc-4, {t2}
            global_load_dword {self.vJunk[0]}, {t2}, {self.sPc}
            """)
        self.vTau, self.vHr, self.vRow, vP = V.get(), V.get(), V.get(), V.get()
        A(f"""
        v_readfirstlane_b32 {sW}, {t0}
        s_and_b32 s3, s2, 7
        s_lshl_b32 s3, s3, 5
        s_add_u32 {sL}, {sL}, s3
        {"" if self.o["xmap"] else f"s_mov_b32 {sL}, s2"}
        v_and_b32 {self.vL}, 63, v0
        v_lshrrev_b32 {self.vTau}, 5, v0
        v_and_b32 {t1}, 31, v0
        v_lshlrev_b32 {t1}, 4, {t1}
        v_lshl_add_u32 {self.vHr}, {self.vTau}, 10, {t1}
        s_lshl_b32 {sa}, {sL}, 13
        v_add_u32 {self.vRow}, {sa}, {self.vHr}
        s_lshr_b32 s3, {sL}, 6
        s_lshl_b32 {self.sCh}, s3, 7
        s_and_b32 s3, {sL}, 31
        s_lshl_b32 s3, s3, 2
        s_add_u32 {self.sCh}, {self.sCh}, s3
        s_bfe_u32 s3, {sL}, 0x10005
        s_add_u32 {self.sCh}, {self.sCh}, s3
        s_and_b32 s3, {sW}, 2
        s_add_u32 {self.sCh}, {self.sCh}, s3
        s_lshl_b32 s3, {self.sCh}, 8
        v_lshl_add_u32 {vP}, {self.vL}, 2, s3
        s_lshl_b32 {self.sE}, {self.sCh}, 1
        s_and_b32 {self.sE}, {self.sE}, -4
        v_and_b32 {self.vI}, 15, v0
        v_bfe_u32 {self.vG}, v0, 4, 2
        s_lshr_b32 {self.sB}, {sW}, 1
        s_and_b32 {self.sH}, {sW}, 1
        """)
        self.XB, self.XA, self.PAR, self.WR = V.get(8), V.get(8), V.get(4), V.get(8)
        self.sDt = S.get()
        lines = self.const_lines(t0, t1, t2, t3)
        npre = self.o["cpre"]
        for ln in lines[:npre]:
            A(ln)
        for k in range(4):
            A(f"global_load_dword {self.PAR[k]}, {vP}, s[{6 + 2 * k}:{7 + 2 * k}] {self.o['x_pol']}")
        A(f"global_load_dwordx4 {self.XB[0:4]}, {self.vRow}, s[4:5] {self.o['x_pol']}")
        A(f"global_load_dwordx4 {self.XB[4:8]}, {self.vRow}, s[4:5] offset:512 {self.o['x_pol']}")
        A(f"s_load_dword {self.sDt}, s[14:15], {self.sE}")
        A(f"s_load_dword {self.sE}, s[30:31], {WS_EPOCH}")
        self.stamp("karg")
        V.put(vP)
        for ln in lines[npre:]:
            A(ln)
        self.bg = self.background()
        if self.o["p3_at"] == "consts":
            for ln in self.p3_lines[:-1]:
                A(ln)
            self.p3_lines = self.p3_lines[-1:]
        if self.o["warm_at"] == "s1w":
            n = self.nwarm - (self.o["dma_at"] != "none")
            for ln in self.bg[:n]:
                A(ln)
            self.warm_line = self.bg[n:self.nwarm]
            self.bg = self.bg[self.nwarm:]
        if self.o["poison_at"] == "pub":
            self.vFo, self.vFi = V.get(), V.get()
            A(f"""
            s_lshl_b32 s3, {sW}, 12
            s_lshl_b32 {sb}, {sL}, 4
            s_add_u32 s3, s3, {sb}
            s_add_u32 s3, s3, {WS_FLG}
            v_mov_b32 {self.vFo}, s3
            s_lshr_b32 s3, {sL}, 6
            s_lshl_b32 s3, s3, 12
            s_add_u32 s3, s3, {WS_FLG}
            v_lshl_add_u32 {self.vFi}, v0, 4, s3
            """)
        if self.o["poison_at"] == "consts":
            self.poison2()
        self.stamp("consts")
        V.put(t0, t1, t2, t3, *self.ctmp)

    def poison2(self):
        A = self.A
        A(f"global_store_dwordx4 {self.vP2}, {self.M1}, s[30:31] sc1", tag="poison")
        A(f"global_store_dwordx4 {self.vP2}, {self.M1}, s[30:31] offset:1024 sc1", tag="poison")
        self.V.put(self.vP2)

    def const_lines(self, t0, t1, t2, t3):
        V, S = self.V, self.S
        vI, vG, vL, sW, sL, sB, sH, sa, sb = self.vI, self.vG, self.vL, self.sW, self.sL, self.sB, self.sH, self.sa, self.sb
        out = []

        def A(text):
            out.extend(x.strip() for x in text.strip().split("\n") if x.strip())
        self.BAND = {key: V.get(4) for key in BANDS}
        SEL = V.get(6)
        A(f"""
        v_lshlrev_b32 {t0}, 3, {vG}
        v_sub_u32 {t0}, {t0}, {vI}
        v_add_u32 {t0}, 20, {t0}
        v_mul_u32_u24 {t0}, 0x10001, {t0}
        v_mov_b32 {t3}, 0x70007
        s_mov_b32 {sb}, 0xc000c
        """)
        for k in range(6):
            c0, c1 = 32 - 2 * k, 31 - 2 * k
            A(f"""
            s_mov_b32 s3, {c0 | c1 << 16}
            v_pk_sub_i16 {t1}, {t0}, s3
            v_pk_sub_i16 {t2}, s3, {t0}
            v_pk_max_i16 {t1}, {t1}, {t2}
            v_pk_min_i16 {t1}, {t1}, {t3}
            v_lshl_or_b32 {SEL[k]}, {t1}, 8, {sb}
            """)
        for (delta, h), B in self.BAND.items():
            lut = sum(0x3C << (8 * i) for i in range(min(h + 1, 4)))
            A(f"s_mov_b32 s3, {lut}")
            for d in range(4):
                A(f"v_perm_b32 {B[d]}, {60 if h == 4 else 0}, s3, {SEL[d + (0 if delta == 12 else 2)]}")
        Z = SEL[0:4]
        for k in range(4):
            A(f"v_mov_b32 {Z[k]}, 0")
        self.vShift, self.vShiftR = V.get(), V.get()
        A(f"""
        v_lshlrev_b32 {t2}, 4, v0
        v_lshlrev_b32 {t3}, 2, {vL}
        v_and_b32 {t1}, 127, v0
        s_mul_i32 s3, {sB}, {UCH}
        s_add_u32 {sb}, s3, {L_U}
        v_lshl_add_u32 {t0}, {t1}, 2, {sb}
        ds_write_b128 {t2}, {Z} offset:{L_P}
        ds_write_b128 {t2}, {Z} offset:{L_P + 4096}
        ds_write_b128 {t2}, {Z} offset:{L_P + 8192}
        ds_write_b128 {t2}, {Z} offset:{L_P + 12288}
        ds_write_b32 {t3}, {Z[0]} offset:{L_P + 16384}
        ds_write_b32 {t0}, {Z[0]}
        s_mul_i32 s3, {sB}, {2 * PHALF}
        v_lshl_add_u32 {self.vShiftR}, {t1}, 4, s3
        """)
        self.vUf, self.vZw, self.vUw = V.get(), V.get(), V.get()
        self.vN, self.vF = V.get(), V.get()
        A(f"""
        v_lshl_add_u32 {t0}, {vI}, 5, {sb}
        v_lshl_add_u32 {self.vUf}, {vG}, 4, {t0}
        s_mul_i32 s3, {sB}, {KCH}
        v_lshl_add_u32 {self.vShift}, {t1}, 4, s3
        v_sub_u32 {t0}, 15, {vI}
        v_and_b32 {t1}, 3, {t0}
        v_and_b32 {t0}, 12, {t0}
        v_mul_u32_u24 {t1}, {KCOPY}, {t1}
        v_lshl_add_u32 {t0}, {t0}, 1, {t1}
        v_add_u32 {t0}, s3, {t0}
        v_lshl_add_u32 {self.vN}, {vG}, 4, {t0}
        v_lshl_add_u32 {self.vF}, {vG}, 3, {t0}
        v_and_b32 {t0}, 2, {vG}
        v_lshl_add_u32 {t0}, {vI}, 2, {t0}
        v_add_u32 {t0}, {sB}, {t0}
        v_lshrrev_b32 {t1}, 1, {vI}
        v_xor_b32 {t0}, {t0}, {t1}
        v_and_b32 {t1}, 1, {vG}
        v_lshlrev_b32 {t1}, 3, {t1}
        v_lshl_add_u32 {self.vZw}, {t0}, 4, {t1}
        """)
        self.sStM = S.get()
        self.vR, self.vS0, self.vS1r = V.get(), V.get(), V.get()
        A(f"""
        s_mul_i32 s3, {sB}, {STAGE_CH}
        s_lshl_b32 {sb}, {sH}, 8
        s_add_u32 s3, s3, {sb}
        s_add_u32 {self.sStM}, s3, {L_STAGE - 0x8000}
        s_add_u32 s3, s3, {L_STAGE}
        v_lshl_add_u32 {t2}, {vG}, 4, s3
        v_xor_b32 {t0}, 3, {vI}
        v_bfe_u32 {t1}, {t0}, 1, 1
        v_add_u32 {t1}, {t0}, {t1}
        v_lshrrev_b32 {t1}, 1, {t1}
        s_movk_i32 s3, {ROWB}
        v_mad_u32_u24 {self.vR}, {vI}, s3, {t2}
        v_mad_u32_u24 {self.vS0}, {t0}, s3, {t2}
        v_mad_u32_u24 {self.vS1r}, {t1}, s3, {t2}
        """)
        self.vK1, self.vK3, self.vKs = V.get(), V.get(), V.get()

        def pa(m):
            return ((m >> 2) & 1) * PPLANE + (m >> 3) * 16 + (m & 3) * 4
        A(f"""
        s_mul_i32 s3, {sW}, {PHALF}
        s_add_u32 s3, s3, {L_P}
        v_xor_b32 {t3}, 3, {vG}
        v_and_b32 {t0}, 1, {t3}
        v_mul_u32_u24 {t0}, {PPLANE}, {t0}
        v_lshrrev_b32 {t3}, 1, {t3}
        v_lshl_add_u32 {t3}, {t3}, 4, {t0}
        v_add_u32 {t3}, s3, {t3}
        v_lshlrev_b32 {t0}, 5, {vI}
        v_sub_u32 {t0}, {t3}, {t0}
        v_add_u32 {self.vK1}, {pa(528 - 256)}, {t0}
        v_lshrrev_b32 {t1}, 1, {vI}
        v_lshrrev_b32 {t2}, 2, {vI}
        v_add_u32 {t2}, 2, {t2}
        v_min_u32 {t1}, {t1}, {t2}
        v_add3_u32 {t1}, {t1}, {vI}, {FAR // 16 + 1}
        v_lshl_add_u32 {self.vK3}, {t1}, 5, {t3}
        v_cmp_gt_u32 vcc, 8, {vI}
        v_mov_b32 {t0}, {pa(28)}
        v_mov_b32 {t1}, {pa(NX + 24)}
        v_cndmask_b32 {t0}, {t0}, {t1}, vcc
        v_add_u32 {self.vKs}, s3, {t0}
        """)
        self.vS1o, self.vS1i, self.vS1i2, self.vP2 = V.get(), V.get(), V.get(), V.get()
        self.vMask, self.vHw2, self.M1 = V.get(), V.get(), V.get(4)
        A(f"""
        v_and_b32 {t0}, 1, v0
        v_lshrrev_b32 {t1}, 1, v0
        v_mul_u32_u24 {t2}, {UCH}, {t0}
        v_lshl_add_u32 {self.vUw}, {t1}, 4, {t2}
        v_lshlrev_b32 {t0}, 4, {t0}
        v_lshl_add_u32 {t2}, {t1}, 13, {t0}
        s_lshl_b32 s3, {sL}, 5
        s_add_u32 s3, s3, {WS_S1}
        v_add_u32 {self.vS1i}, s3, {t2}
        v_add_u32 {self.vS1i2}, 0x100000, {self.vS1i}
        s_lshl_b32 s3, {sW}, 11
        s_add_u32 s3, s3, {sa}
        s_add_u32 s3, s3, {WS_S1}
        v_lshl_add_u32 {self.vS1o}, {vL}, 4, s3
        v_add_u32 {self.vP2}, {WS_S2 - WS_S1}, {self.vS1o}
        s_mov_b32 s3, {L_H}
        v_lshl_add_u32 {self.vHw2}, v0, 2, s3
        v_mov_b32 {self.vMask}, {0xFFFFFFFF ^ TAGMASK}
        s_mov_b32 {self.sOnes}, 0x3f803f80
        s_mov_b32 {self.sLo}, 0x3f80
        s_mov_b32 {self.sHi}, 0x3f800000
        """)
        for k in range(4):
            A(f"v_mov_b32 {self.M1[k]}, -1")
        self.ctmp = [SEL]
        return out

    def background(self):
        V, S = self.V, self.S
        vL, sW, sL, sa, sb = self.vL, self.sW, self.sL, self.sa, self.sb
        t0, t1, t2 = V.get(), V.get(), V.get()
        out = []

        def A(text):
            out.extend(x.strip() for x in text.strip().split("\n") if x.strip())
        A(f"""
        s_lshr_b32 s3, {sL}, 5
        s_and_b32 {sb}, {sL}, 31
        s_mul_i32 s6, {sb}, {16 * 3584}
        s_mul_i32 s7, s3, 448
        s_add_u32 s6, s6, s7
        v_lshrrev_b32 {t0}, 2, {vL}
        v_and_b32 {t1}, 3, v0
        v_mul_u32_u24 {t0}, 3584, {t0}
        v_lshl_add_u32 {t0}, {t1}, 7, {t0}
        v_add_u32 {t0}, s6, {t0}
        s_mul_i32 s6, {sb}, {56 * 1024}
        s_lshl_b32 s7, s3, 7
        s_add_u32 s6, s6, s7
        s_mul_i32 s7, {self.sH}, {28 * 1024}
        s_add_u32 s6, s6, s7
        v_min_u32 {t1}, 27, {vL}
        v_lshl_add_u32 {t1}, {t1}, 10, s6
        s_cmp_eq_u32 {sW}, 0
        s_cselect_b32 s8, s22, s24
        s_cselect_b32 s9, s23, s25
        s_cmp_lt_u32 {sW}, 2
        s_cselect_b32 s8, s8, s26
        s_cselect_b32 s9, s9, s27
        s_cselect_b64 vcc, -1, 0
        v_cndmask_b32 {t0}, {t1}, {t0}, vcc
        """)
        if self.o["dma_at"] != "none":
            A(f"global_load_dword {self.vJunk[1]}, {t0}, s[8:9]")
        self.nwarm = len(out)
        warm_block = list(out)
        if self.o["warm_at"] == "bg":
            out.clear()
        A(f"s_lshr_b32 s3, {sL}, 5\ns_and_b32 {sb}, {sL}, 31")
        self.sBlk, self.sRole, self.sUp = S.get(), S.get(), S.get()
        A(f"""
        s_cmp_ge_u32 {sb}, 7
        s_cselect_b32 {self.sUp}, 1, 0
        s_cselect_b32 s6, 7, 0
        s_sub_u32 s6, {sb}, s6
        s_mul_i32 {self.sBlk}, s3, 7
        s_add_u32 {self.sBlk}, {self.sBlk}, s6
        s_cmp_ge_u32 {sb}, 14
        s_cselect_b32 {self.sRole}, 2, 0
        s_lshl_b32 s3, s3, 2
        s_sub_u32 s6, {sb}, {self.o["r1_at"]}
        s_add_u32 s3, s3, s6
        s_cmp_lt_u32 s6, 4
        s_cselect_b32 {self.sRole}, 1, {self.sRole}
        s_cselect_b32 {self.sBlk}, s3, {self.sBlk}
        """)
        self.p3_lines = [f"s_mul_i32 s3, {sL}, 2432", f"s_add_u32 s3, s3, {WS_S3}", f"v_lshl_add_u32 {t2}, v0, 4, s3",
                         f"v_cmp_gt_u32 s[10:11], {t1}, v0",
                         ("s_mov_b64 exec, s[10:11]", f"global_store_dwordx4 {t2}, {self.M1}, s[30:31] sc1", "s_mov_b64 exec, -1")]
        self.p3_lines.insert(0, f"v_mov_b32 {t1}, 152")
        if self.o["warm_at"] == "bg":
            out.extend(warm_block)
        self.vS2o, self.vS2o2, self.vS2i, self.vS2i2, self.vZr = V.get(), V.get(), V.get(), V.get(), V.get()
        A(f"""
        s_lshl_b32 s3, {sL}, 13
        s_add_u32 s3, s3, {WS_S2}
        v_lshl_add_u32 {self.vS2o}, v0, 4, s3
        v_add_u32 {self.vS2o2}, 0x1000, {self.vS2o}
        v_bfe_u32 {t0}, v0, 3, 3
        v_xor_b32 {t0}, v0, {t0}
        v_lshlrev_b32 {self.vZr}, 4, {t0}
        s_lshl_b32 s3, {sW}, 13
        s_add_u32 s3, s3, {self.rowid()}
        s_sub_u32 s3, s3, {sL}
        s_lshl_b32 s3, s3, 5
        s_add_u32 s3, s3, {WS_S2 - WS_S1}
        v_add_u32 {self.vS2i}, s3, {self.vS1i}
        v_add_u32 {self.vS2i2}, 0x40000, {self.vS2i}
        """)
        self.bgtmp = [t0, t1, t2, self.M1]
        return out

    def rowid(self):
        return getattr(self, "sR", self.sL)

    def make_tags(self, A):
        self.tags = [self.sTag, self.S.get(), self.S.get(), self.S.get()]
        A(f"s_add_u32 {self.sE}, {self.sE}, 1\ns_and_b32 {self.sTag}, {self.sE}, {TAGMASK}")
        for q in range(1, 4):
            A(f"s_lshr_b32 {self.tags[q]}, {self.sE}, {3 * q}\ns_and_b32 {self.tags[q]}, {self.tags[q]}, {TAGMASK}")

    def ln1(self):
        A, V = self.A, self.V
        glob = False
        s1, s2, nm, rs, ad = V.get(), V.get(), V.get(), V.get(), V.get()
        A(f"v_lshlrev_b32 {ad}, 2, {self.vTau}")
        for k in range(8):
            if not glob and k % 4 == 0:
                A(f"ds_write_b128 {self.vHr}, {self.XB[k:k + 4]} offset:{L_H + 128 * k}")
            A(f"v_dot2_f32_bf16 {s1}, {self.XB[k]}, {self.sOnes}, {s1 if k else 0}")
            A(f"v_dot2_f32_bf16 {s2}, {self.XB[k]}, {self.XB[k]}, {s2 if k else 0}")
            if k == 0:
                self.stamp("x")
                if self.o["poison_at"] == "x":
                    self.poison2()
        wv = self.o["wv"]
        take, self.ksl = self.ksl[:wv[1]], self.ksl[wv[1]:]
        self.allreduce(A, "v_add_f32", [s1, s2], 32, take)
        self.ln_stats(A, s1, s2, nm, rs)
        if self.o["poison_at"] == "stat":
            self.poison2()
        self.stamp("stat")
        A("s_mov_b64 exec, 1\ns_bitset1_b64 exec, 32")
        A(f"v_mul_f32 {rs}, 0x3d800000, {rs}")
        A(f"ds_write_b32 {ad}, {nm} offset:{L_ST}\nds_write_b32 {ad}, {rs} offset:{L_ST + 32}")
        A("s_mov_b64 exec, -1")
        A(f"v_mov_b32 {ad}, 0")
        V.put(self.XB)
        self.weave(wv[2])
        A.barrier()
        self.stamp("b1")
        NM, RS = V.get(8), V.get(8)
        XA = self.XA
        if not glob:
            for q in range(2):
                A(f"ds_read2st64_b32 {XA[2 * q:2 * q + 2]}, {self.vHw2} offset0:{8 * q} offset1:{8 * q + 4}")
        A(f"ds_read_b128 {NM[0:4]}, {ad} offset:{L_ST}")
        if not glob:
            for q in range(2, 4):
                A(f"ds_read2st64_b32 {XA[2 * q:2 * q + 2]}, {self.vHw2} offset0:{8 * q} offset1:{8 * q + 4}")
        A(f"ds_read_b128 {NM[4:8]}, {ad} offset:{L_ST + 16}")
        for k in range(2):
            A(f"ds_read_b128 {RS[4 * k:4 * k + 4]}, {ad} offset:{L_ST + 32 + 16 * k}")
        self.weave(wv[3])
        if self.o["poison_at"] == "b1":
            self.poison2()
        self.make_tags(A)
        T = V.get(8)
        for e in range(2):
            G = V.get(4)
            for j in range(8):
                A(f"v_dot2_f32_bf16 {T[j]}, {XA[j]}, {self.sHi if e else self.sLo}, {NM[j]}")
            for j in range(8):
                self.rnd(A, T[j], T[j])
            for q in range(4):
                A(f"v_pk_mul_f32 {T[2 * q:2 * q + 2]}, {T[2 * q:2 * q + 2]}, {RS[2 * q:2 * q + 2]}")
            for j in range(8):
                self.rnd(A, T[j], T[j])
            for q in range(4):
                A(f"v_cvt_pk_f16_f32 {G[q]}, {T[2 * q]}, {T[2 * q + 1]}")
            for q in range(4):
                A(f"v_and_or_b32 {G[q]}, {G[q]}, {self.vMask}, {self.tags[q]}")
            self.G = getattr(self, "G", []) + [G]
            if e == 0:
                self.stamp("norm")
            if self.o["st_late"] and e == 0:
                continue
            A.wait_tag("poison")
            for ee in ((0, 1) if self.o["st_late"] else (e,)):
                A(f"global_store_dwordx4 {self.vS1o}, {self.G[ee]}, s[30:31] offset:{1024 * ee} sc1", tag="s1st")
        self.stamp("pub1")
        V.put(T, NM, RS, s1, s2, nm, rs, ad, self.vS1o)

    def s1_loads(self, A):
        A(f"global_load_dwordx4 {self.UG[0:4]}, {self.vS1i}, s[30:31] sc1")
        A(f"global_load_dwordx4 {self.UG[4:8]}, {self.vS1i2}, s[30:31] sc1")

    def maybe_s1(self, where):
        if self.o["s1_at"] == where:
            self.UG = self.V.get(8)
            if self.o["poison_at"] == "pub":
                A = self.A
                A(f"v_mov_b32 {self.UG[0]}, {self.sE}")
                A.wait_tag("poison")
                A(f"s_mov_b64 exec, 1\nglobal_store_dword {self.vFo}, {self.UG[0]}, s[30:31] sc1\ns_mov_b64 exec, -1")
                self.V.put(self.vFo)
            self.s1_loads(self.A)

    def ksetup_lines(self):
        V = self.V
        P = self.PAR
        out = []

        class Rec:
            def __call__(self_, text):
                out.extend(x.strip() for x in text.strip().split("\n") if x.strip())
        A = Rec()
        t0, t1, dt = V.get(), V.get(), V.get()
        self.vG16 = V.get()
        sb = self.sb
        A(f"""
        s_and_b32 {sb}, {self.sCh}, 1
        s_xor_b32 {sb}, {sb}, 1
        s_lshl_b32 {sb}, {sb}, 4
        s_lshl_b32 {self.sDt}, {self.sDt}, {sb}
        s_and_b32 {self.sDt}, {self.sDt}, 0xffff0000
        v_mov_b32 {dt}, {LOG2E}
        v_mul_f32 {dt}, {self.sDt}, {dt}
        v_exp_f32 {dt}, {dt}
        s_cmp_eq_u32 {self.sH}, 0
        s_cselect_b32 {sb}, 16, 0
        """)
        self.rnd(A, dt, dt)
        A(f"""
        v_and_b32 {t0}, 0x7fff7fff, {P[2]}
        v_and_b32 {t1}, 0x7fff7fff, {P[3]}
        v_pk_max_u16 {t0}, {t0}, {t1}
        v_lshrrev_b32 {t1}, 16, {t0}
        v_and_b32 {t0}, 0xffff, {t0}
        v_max_u32 {t0}, {t0}, {t1}
        """)
        W = {p: V.get(2) for p in (1, 16, 256)}
        u0, u1 = V.get(), V.get()
        fill = [f"v_lshlrev_b32 {P[k]}, {sb}, {P[k]}" for k in range(4)]
        fill += [f"v_and_b32 {P[k]}, 0xffff0000, {P[k]}" for k in range(4)]
        fill += [f"v_mul_f32 {P[0]}, {LOG2E}, {P[0]}", f"v_exp_f32 {P[0]}, {P[0]}", f"v_mul_f32 {P[1]}, {P[1]}, {dt}",
                 f"v_cvt_pk_bf16_f32 {P[0]}, 0, {P[0]}", f"v_mul_f32 {P[1]}, {INV2PI}, {P[1]}", f"v_mul_f32 {P[0]}, {P[0]}, {dt}",
                 f"v_fract_f32 {u1}, {P[1]}", f"v_mul_f32 {P[0]}, {LOG2E | 0x80000000}, {P[0]}"]
        keep = V.get()
        V.put(keep)
        self.allreduce(A, "v_max_u32", [t0], 64, fill)
        again = V.get()
        assert str(again) == str(keep)
        A(f"v_exp_f32 {u0}, {P[0]}\nv_cos_f32 {W[1][0]}, {u1}\nv_sin_f32 {W[1][1]}, {u1}")
        A(f"""
        v_lshrrev_b32 {t0}, 7, {t0}
        v_mul_f32 {W[1][0]}, {W[1][0]}, {u0}
        v_mul_f32 {W[1][1]}, {W[1][1]}, {u0}
        v_max_u32 {t0}, 8, {t0}
        v_lshrrev_b32 {t1}, 23, {dt}
        v_add_u32 {t1}, {t1}, {t0}
        v_subrev_u32 {t1}, 127, {t1}
        v_max_i32 {t1}, 0, {t1}
        v_min_i32 {t1}, 254, {t1}
        v_lshlrev_b32 {self.vG16}, 23, {t1}
        v_sub_u32 {t0}, 259, {t0}
        v_and_b32 {dt}, 0x007fffff, {dt}
        v_lshl_or_b32 {dt}, {t0}, 23, {dt}
        """)
        L = V.get(2)
        for p, mul in ((16, 0x41800000), (256, 0x43800000)):
            w = W[p]
            A(f"v_mul_f32 {u0}, {mul}, {P[0]}\nv_mul_f32 {u1}, {mul}, {P[1]}")
            A(f"v_exp_f32 {u0}, {u0}\nv_fract_f32 {u1}, {u1}")
            A(f"v_cos_f32 {w[0]}, {u1}\nv_sin_f32 {w[1]}, {u1}")
            A(f"v_mul_f32 {L[p // 256]}, {P[2 + p // 256]}, {dt}")
            A(f"v_mul_f32 {w[0]}, {w[0]}, {u0}\nv_mul_f32 {w[1]}, {w[1]}, {u0}")
        self.ks = dict(W=W, L=L, t0=t0, tmp=[u0, u1, t1, dt, P, again])
        return out

    def weave(self, n):
        for _ in range(min(n, len(self.ksl))):
            self.A(self.ksl.pop(0))

    def kgen_steps(self):
        A, V = self.A, self.V
        self.weave(1000)
        W, L, t0 = self.ks["W"], self.ks["L"], self.ks["t0"]
        V.put(*self.ks["tmp"])
        M, Rr, T = V.get(2), V.get(2), V.get(2)
        self.stamp("ws")
        NB_ = self.o["recb"]
        pk = [V.get() for _ in range(2 * NB_)]
        cnt = [0]
        queue = []
        A(f"s_mov_b32 m0, {self.sStM}")

        def cmul(d, a, b):
            A(f"v_pk_mul_f32 {T}, {a}, {b} op_sel_hi:[0,1]")
            A(f"v_pk_fma_f32 {d}, {a}, {b}, {T} op_sel:[1,1,0] op_sel_hi:[1,0,1] neg_lo:[0,1,0]")

        if not self.o["addtid"]:
            vSt = V.get()
            A(f"v_lshl_add_u32 {vSt}, {self.vL}, 2, {self.sStM}")

        def flush_q():
            for row, r in queue:
                if self.o["addtid"]:
                    A(f"ds_write_addtid_b32 {r} offset:{32768 + row * ROWB}")
                else:
                    A(f"ds_write_b32 {vSt}, {r} offset:{32768 + row * ROWB}")
            queue.clear()

        def put(row, v, conj=False):
            r = pk[cnt[0] % (2 * NB_)]
            cnt[0] += 1
            A(f"v_cvt_pk_f16_f32 {r}, {v[0]}, {'-' if conj else ''}{v[1]}")
            queue.append((row, r))
            if len(queue) >= NB_:
                flush_q()

        Rf, S0, S1, FA = ([self.AC.get(4, 4) for _ in range(4)] for _ in range(4))
        D1, D2, D3 = V.get(4), V.get(4), V.get(4)

        def frags(regs, addr, row0):
            flush_q()
            for q in range(4):
                A(f"ds_read_b128 {regs[q]}, {addr} offset:{row0 * ROWB + 64 * q}")

        def product(D, a, b):
            for q in range(4):
                A(f"v_mfma_f32_16x16x32_f16 {D}, {a[q]}, {b[q]}, {D if q else 0}")

        A(f"v_mov_b32 {t0}, 0x3c00")
        queue.append((0, t0))
        yield
        put(1, W[16], conj=True)
        cmul(Rr, W[16], W[16])
        put(2, Rr, conj=True)
        for j in range(3, 16):
            yield
            cmul(Rr, Rr, W[16])
            put(j, Rr, conj=True)
        frags(Rf, self.vR, 0)
        self.stamp("recR")
        LE = {0: L}
        cur = L
        for al in range(17):
            yield
            if al:
                nxt = V.get(2) if al % 2 == 0 else M
                cmul(nxt, cur, W[1])
                cur = nxt
                if al % 2 == 0:
                    LE[al] = cur
            if al < 16:
                put(16 + al, cur)
        frags(S0, self.vS0, 16)
        self.maybe_s1("rec1")
        for al in range(0, 17, 2):
            yield
            cmul(LE[al], LE[al], W[256])
            put(32 + al // 2, LE[al])
        frags(S1, self.vS1r, 32)
        product(D1, S0, Rf)
        self.maybe_s1("seg1")
        for a in range(2):
            for al in (4, 8, 12, 16):
                yield
                cmul(LE[al], LE[al], W[256])
                put(41 + 2 * (al // 4 - 1) + 1 - a, LE[al])
        K3 = V.get(4)
        flush_q()
        A(f"ds_write_b128 {self.vK1}, {D1} offset:512")
        product(D2, S1, Rf)
        self.maybe_s1("far")
        for a in range(4):
            for al in (8, 16):
                yield
                cmul(LE[al], LE[al], W[256])
                put(49 + 4 * (al // 8 - 1) + 3 - a, LE[al])
        frags(FA, self.vR, 41)
        self.stamp("rec")
        self.maybe_s1("rec2")
        A(f"ds_write_b128 {self.vK1}, {D2}")
        A(f"v_cmp_gt_u32 vcc, 8, {self.vI}")
        product(D3, Rf, FA)
        self.maybe_s1("mfma")
        self.stamp("kmf0")
        A(f"v_cndmask_b32 {T[1]}, {D2[0]}, 0, vcc")
        for k in range(4):
            A(f"v_mov_b32 {K3[k]}, {D3[3 - k]}")
        A(f"v_cndmask_b32 {T[0]}, {D2[0]}, {D3[3]}, vcc")
        A(f"ds_write_b128 {self.vK3}, {K3}")
        A("s_mov_b32 exec_lo, 0\ns_mov_b32 exec_hi, 0x80400000")
        A(f"ds_write_b32 {self.vKs}, {T[0]} offset:12\nds_write2_b32 {self.vKs}, {T[1]}, {T[1]} offset0:1 offset1:2")
        A("s_mov_b32 exec_hi, 0x00400000")
        A(f"ds_write_b32 {self.vKs}, {T[0]} offset:{PPLANE}")
        A("s_mov_b64 exec, -1")
        A.barrier()
        V.put(M, Rr, T, *pk, *W.values(), t0, D1, D2, D3, K3, *LE.values(),
              self.vR, self.vS0, self.vS1r, self.vK1, self.vK3, self.vKs)
        self.AC.put(*Rf, *S0, *S1, *FA)

    def row_params(self):
        A, V = self.A, self.V
        t1, t2 = V.get(), V.get()
        self.vDk = V.get()
        A(f"""
        v_and_b32 {t1}, 0x1ff, {self.vHr}
        v_lshlrev_b32 {t2}, 2, v0
        global_load_dwordx4 {self.WR[0:4]}, {t1}, s[20:21]
        global_load_dwordx4 {self.WR[4:8]}, {t1}, s[20:21] offset:512
        global_load_dword {self.vDk}, {t2}, s[16:17]
        """)
        V.put(t1, t2)

    def kgen(self):
        A, V = self.A, self.V
        if self.o["poison_at"] == "pub":
            self.poison2()
        for item in self.p3_lines:
            A("\n".join(item) if isinstance(item, tuple) else item, tag="poison3" if isinstance(item, tuple) else None)
        self.row_params()
        for _ in self.ksteps:
            pass
        self.stamp("kmf")
        self.maybe_s1("shift")
        D, E = V.get(12), V.get(12)
        C = [V.get(4) for _ in range(4)]
        for k in range(3):
            off = L_P + (k & 1) * PPLANE + (k >> 1) * 16
            A(f"ds_read_b128 {D[4 * k:4 * k + 4]}, {self.vShiftR} offset:{off}")
            A(f"ds_read_b128 {E[4 * k:4 * k + 4]}, {self.vShiftR} offset:{off + PHALF}")
        for k in range(6):
            A(f"v_pk_add_f32 {D[2 * k:2 * k + 2]}, {D[2 * k:2 * k + 2]}, {E[2 * k:2 * k + 2]}")
        for c in range(4):
            for k in range(4):
                A(f"v_cvt_pk_f16_f32 {C[c][k]}, {D[c + 2 * k]}, {D[c + 2 * k + 1]}")
            if c % 2:
                for cc in (c - 1, c):
                    A(f"ds_write_b128 {self.vShift}, {C[cc]} offset:{L_K + cc * KCOPY}")
        if not self.o["frag_in"]:
            A.barrier()
        self.shift_regs = (D, E, *C, self.vShift, self.vShiftR)
        self.stamp("shift")
        self.maybe_s1("frag")
        AC = self.AC
        self.KN = [AC.get(4, 4) for _ in range(17)]
        self.KX = AC.get(4, 4)
        self.B2 = {(k, d): AC.get(4, 4) for k in range(2) for d in (2, 3, 4)}
        self.B3 = {d: AC.get(4, 4) for d in (4, 5, 6, 7)}
        rd = {}
        for q in range(17):
            rd[str(self.KN[q])] = [f"ds_read_b64 {self.KN[q][2 * hf:2 * hf + 2]}, {self.vN} offset:{64 * (16 - q) + 8 * hf}" for hf in range(2)]
        rd[str(self.KX)] = [f"ds_read_b64 {self.KX[2 * hf:2 * hf + 2]}, {self.vN} offset:{2 * NX + 8 * hf}" for hf in range(2)]
        for (k, d), r in self.B2.items():
            rd[str(r)] = [f"ds_read_b64 {r[2 * hf:2 * hf + 2]}, {self.vF} offset:{2 * (V2[2 * k + hf] + 32 - 16 * (d - 2))}" for hf in range(2)]
        for d, r in self.B3.items():
            rd[str(r)] = [f"ds_read_b64 {r[2 * hf:2 * hf + 2]}, {self.vF} offset:{2 * (V3[hf] + 48 - 16 * (d - 4))}" for hf in range(2)]
        self.frag_reads = {}
        if self.o["frag_in"]:
            self.frag_reads = rd
        else:
            for v in rd.values():
                A("\n".join(v))
        self.maybe_s1("end")
        self.stamp("frag")

    def s1_consume(self, A, sfx):
        V = self.V
        UG = self.UG
        t0, t1 = V.get(), V.get()

        def check(C):
            for k in range(8):
                C(f"v_xor_b32 {UG[k]}, {self.tags[k % 4]}, {UG[k]}")
            C(f"v_or3_b32 {t0}, {UG[0]}, {UG[1]}, {UG[2]}\nv_or3_b32 {t1}, {UG[3]}, {UG[4]}, {UG[5]}")
            C(f"v_or3_b32 {t0}, {t0}, {UG[6]}, {UG[7]}\nv_or_b32 {t0}, {t0}, {t1}")
            C(f"v_and_b32 {t0}, {TAGMASK}, {t0}\nv_cmp_ne_u32 vcc, 0, {t0}")
        self.poll(A, "s1" + sfx, self.s1_loads, check)
        self.stamp("s1w", A)
        if self.o["warm_at"] == "s1w":
            for ln in self.warm_line:
                A(ln)
        A(f"ds_write_b128 {self.vUw}, {UG[0:4]} offset:{L_U + 512}")
        A(f"ds_write_b128 {self.vUw}, {UG[4:8]} offset:{L_U + 512 + 2048}")
        self.stamp("s1", A)
        if not self.o["early_br"]:
            A.barrier()
            self.stamp("b5", A)
        V.put(t0, t1, *self.shift_regs)

    def conv(self, A, tiles, dma):
        V, AC = self.V, self.AC
        acc = {j: V.get(4) for j in tiles}
        NF, NG, NW, NP = self.o["nf"], self.o["ng"], self.o["nw"], 6
        PE, PD, NPRE = self.o["pe"], self.o["pd"], self.o["npre"]
        Fb = [AC.get(4, 4) for _ in range(NF)]
        Gb = [AC.get(4, 4) for _ in range(NG)]
        Wb = [V.get(4) for _ in range(NW)]
        Pb = [V.get(4) for _ in range(NP)]
        EY, EZ = V.get(4), V.get(2)
        qmax = {0: 7, 1: 15}
        b2 = sorted({j - d for j in tiles for d in (2, 3, 4) if j - d >= 0})
        b3 = sorted({j - d for j in tiles for d in (4, 5, 6, 7) if j - d >= 0})
        nlo = min(8 * j - qmax.get(j, 16) for j in tiles)
        nhi = 8 * max(tiles)
        near = []
        for fi, n in enumerate(range(nlo, nhi + 1)):
            for j in tiles:
                q = 8 * j - n
                if 0 <= q <= qmax.get(j, 16):
                    near.append((j, self.KN[q], fi, q == 0))
        far = []
        gfr, pcount = [], 0
        for b in sorted(set(b2) | set(b3)):
            ga, gb = len(gfr), len(gfr) + 1
            gfr += [256 * b - 16, 256 * b - 24]
            mains = []
            if b in b2:
                pa, pb = pcount, pcount + 1
                pcount += 2
                far += [("band", ga, (12, 1), pa, 0), ("band", ga, (8, 2), pa, 1), ("band", gb, (12, 1), pb, 0), ("band", gb, (8, 2), pb, 1)]
                mains += [("main", b + d, pa, self.B2[(0, d)]) for d in (2, 3, 4) if b + d in tiles]
                mains += [("main", b + d, pb, self.B2[(1, d)]) for d in (2, 3, 4) if b + d in tiles]
            if b in b3:
                pc = pcount
                pcount += 1
                far += [("band", ga, (8, 3), pc, 0), ("band", gb, (8, 4), pc, 1)]
                mains += [("main", b + d, pc, self.B3[d]) for d in (4, 5, 6, 7) if b + d in tiles]
            if b + 4 in tiles:
                far.append(("x", b + 4, ga))
            far += mains
        LAT = self.o["lat"]
        mf, fill = [], []
        started, done_at = set(), {}
        fuse, guse, plast, pready = {}, {}, {}, {}
        wcount = 0
        ni = 0
        farleft = list(far)
        span = self.o["far_span"][0 if 0 in tiles else 1]
        credit = 0.0

        def acc_mf(j, a, b):
            mf.append(f"v_mfma_f32_16x16x32_f16 {acc[j]}, {a}, {b}, {acc[j] if j in started else 0}")
            started.add(j)

        def far_ok(it):
            t = len(mf)
            if it[0] == "main":
                return pready.get(it[2], 10 ** 6) <= t
            if it[0] == "band":
                prev = it[3] - NP
                return prev < 0 or not any(o[0] == "main" and o[2] == prev for o in farleft)
            return True

        while ni < len(near) or farleft:
            t = len(mf)
            want_far = farleft and (credit >= 1.0 or ni >= len(near))
            if ni < len(near) and near[ni][3] and any(o[0] in ("main", "x") and o[1] == near[ni][0] for o in farleft):
                want_far = True
            pick = None
            if want_far:
                for it in farleft[:8]:
                    if far_ok(it):
                        if it[0] == "band" and any(o[0] == "band" for o in farleft[:farleft.index(it)]):
                            continue
                        pick = it
                        break
            if pick is None and ni < len(near) and not (near[ni][3] and any(o[0] in ("main", "x") and o[1] == near[ni][0] for o in farleft)):
                j, a, fi, last = near[ni]
                ni += 1
                acc_mf(j, a, Fb[fi % NF])
                fuse.setdefault(fi, [t, t])[1] = t
                if last:
                    done_at[j] = t
                credit += len(far) / span
                continue
            assert pick is not None, "conv schedule is stuck"
            farleft.remove(pick)
            credit -= 1.0
            if pick[0] == "band":
                _, g, key, p, hf = pick
                w = Wb[wcount % NW]
                wcount += 1
                mf.append(f"v_mfma_f32_16x16x32_f16 {w}, {Gb[g % NG]}, {self.BAND[key]}, 0")
                guse.setdefault(g, [t, t])[1] = t
                for k in range(2):
                    fill.append([t + self.o["cvt0"], t + LAT - 1, f"v_cvt_pk_f16_f32 {Pb[p % NP][2 * hf + k]}, {w[2 * k]}, {w[2 * k + 1]}", None])
                if hf == 1:
                    pready[p] = t + LAT
            elif pick[0] == "x":
                acc_mf(pick[1], self.KX, Gb[pick[2] % NG])
                guse.setdefault(pick[2], [t, t])[1] = t
            else:
                acc_mf(pick[1], Pb[pick[2] % NP], pick[3])
        nm = len(mf)
        pre = []
        reads = []
        for fi in sorted(fuse):
            txt = f"ds_read_b128 {Fb[fi % NF]}, {self.vUf} offset:{512 + 2 * (32 * (nlo + fi) - 16)}"
            reads.append((fuse[fi][0], fuse[fi - NF][1] if fi >= NF else -1, txt))
        for g in sorted(guse):
            txt = f"ds_read_b128 {Gb[g % NG]}, {self.vUf} offset:{512 + 2 * gfr[g]}"
            reads.append((guse[g][0], guse[g - NG][1] if g >= NG else -1, txt))
        seen = set()
        for t, txt in enumerate(mf):
            for name, two in self.frag_reads.items():
                if name not in seen and f" {name}," in txt:
                    seen.add(name)
                    reads += [(t, -1, two[0]), (t, -1, two[1])]
        reads.sort(key=lambda r: r[0])
        for first, free, txt in reads:
            if free < 0 and first <= NPRE:
                pre.append(txt)
            else:
                assert free < first
                fill.append([max(free, first - PE, 0), max(free, first - PD, 0), txt, None])
        order_t = sorted(tiles, key=lambda j: done_at[j])
        for k, j in enumerate(order_t):
            t = done_at[j]
            nxt = done_at[order_t[k + 1]] if k + 1 < len(order_t) else nm + 100
            seq2 = [f"v_mul_f32 {EY[r]}, {acc[j][r]}, {self.vG16}" for r in range(4)]
            seq2 += [f"v_cvt_pk_bf16_f32 {EZ[r]}, {EY[2 * r]}, {EY[2 * r + 1]}" for r in range(2)]
            seq2.append(f"ds_write_b64 {self.vZw}, {EZ} offset:{L_Z + 1024 * j}")
            for txt in seq2:
                fill.append([t + self.o["cvt0"], min(t + 12, nxt + 2), txt, f"e2_{j}"])
        for txt in pre:
            A(txt)
        for i, f in enumerate(fill):
            f.append(i)
        left = list(fill)
        bg = list(self.bg)
        A.prewait([mf[0]])
        for t in range(nm):
            A(mf[t])
            chosen = []
            for f in sorted([f for f in left if f[0] <= t], key=lambda f: (f[1], f[4])):
                if len(chosen) >= 2 and f[1] > t:
                    break
                if f[3] and any(g[3] == f[3] and g[4] < f[4] and g not in chosen for g in left):
                    continue
                mem = isinstance(f[2], tuple) or f[2].startswith("ds_")
                if mem and f[1] > t and any(g[3] == f[3] and f[3] for g in chosen):
                    continue
                chosen.append(f)
            memf = [f for f in chosen if (isinstance(f[2], tuple) or f[2].startswith("ds_")) and not any(g[3] == f[3] and f[3] and g[4] < f[4] for g in chosen)]
            rest = [f for f in chosen if f not in memf]
            c0 = A.count
            A.prewait([f[2] for f in chosen if not isinstance(f[2], tuple)] + ([mf[t + 1]] if t + 1 < nm else []))
            ns, nv = A.count - c0, len(chosen)
            while bg and isinstance(bg[0], str) and bg[0].startswith("s_") and ns + nv < 3 and t >= self.o["bg_from"]:
                A(bg.pop(0))
                ns += 1
            nv += max(0, ns - 1)
            if bg and not memf and nv < 2 and (isinstance(bg[0], tuple) or bg[0].startswith("global_")):
                item = bg.pop(0)
                A("\n".join(item) if isinstance(item, tuple) else item, tag="poison3" if isinstance(item, tuple) else None)
                nv += 1
            for f in memf + rest:
                A(f[2])
                left.remove(f)
            while bg and nv < 2 and isinstance(bg[0], str) and bg[0].startswith("v_") and t >= self.o["bg_from"]:
                A(bg.pop(0))
                nv += 1
        self.bg_left = max(getattr(self, "bg_left", 0), len(bg))
        tail_bg = bg
        for item in tail_bg:
            A("\n".join(item) if isinstance(item, tuple) else item, tag="poison3" if isinstance(item, tuple) else None)
        for f in sorted(left, key=lambda f: (f[1], f[4])):
            A(f[2])
        self.nmfma = getattr(self, "nmfma", []) + [nm]
        V.put(*acc.values(), *Wb, *Pb, EY, EZ)
        AC.put(*Fb, *Gb)

    def dma_plan(self, A, role):
        V = self.V
        vL, sW = self.vL, self.sW
        t0, t1 = V.get(), V.get()
        self.vWa = V.get()
        if role == 0:
            A(f"""
            s_lshl_b32 {self.sWb}, {sW}, 13
            s_add_u32 {self.sWb}, {self.sWb}, {L_STAGE}
            s_lshl_b32 s3, {sW}, 7
            v_lshrrev_b32 {t0}, 2, {vL}
            v_add_u32 {t0}, s3, {t0}
            v_mul_u32_u24 {t0}, 3584, {t0}
            v_and_b32 {t1}, 3, {vL}
            v_lshl_add_u32 {t0}, {t1}, 4, {t0}
            s_lshl_b32 s3, {self.sBlk}, 6
            v_add_u32 {self.vWa}, s3, {t0}
            s_cmp_eq_u32 {self.sUp}, 0
            s_cselect_b32 s4, s22, s24
            s_cselect_b32 s5, s23, s25
            """)
            n, step = 8, 16 * 3584
        else:
            A(f"""
            s_mul_i32 {self.sWb}, {sW}, 14336
            s_add_u32 {self.sWb}, {self.sWb}, {L_STAGE}
            s_mul_i32 s3, {sW}, 448
            v_lshrrev_b32 {t0}, 1, {vL}
            v_add_u32 {t0}, s3, {t0}
            v_lshlrev_b32 {t0}, 10, {t0}
            v_and_b32 {t1}, 1, {vL}
            v_lshl_add_u32 {t0}, {t1}, 4, {t0}
            s_lshl_b32 s3, {self.sBlk}, 5
            v_add_u32 {self.vWa}, s3, {t0}
            s_mov_b64 s[4:5], s[26:27]
            """)
            n, step = 14, 0x8000
        V.put(t0, t1)
        return [(f"s_add_u32 m0, {self.sWb}, {m * 1024}" + (f"\ns_add_u32 s4, s4, {step}\ns_addc_u32 s5, s5, 0" if m else ""),
                 f"global_load_lds_dwordx4 {self.vWa}, s[4:5]") for m in range(n)]

    def conv_all(self):
        A = self.A
        nb = self.nwarm if self.o["warm_at"] == "pre" else 0
        for ln in self.bg[:nb]:
            A(ln)
        self.bg = self.bg[nb:]
        self.s1_consume(A, "")
        first, second = ([5, 6, 7], [0, 1, 2, 3, 4]) if self.o["b_first"] else ([0, 1, 2, 3, 4], [5, 6, 7])
        A(f"s_cmp_eq_u32 {self.sH}, {int(self.o['b_first'])}\ns_cbranch_scc0 L_conv_b")
        B = A.fork()
        if self.o["early_br"]:
            A.barrier()
            self.stamp("b5", A)
        self.conv(A, first, [])
        A.wait_tag("poison3")
        A.wait(lg=0)
        A.flush()
        A("s_branch L_conv_done")
        B.label("L_conv_b")
        if self.o["early_br"]:
            B.barrier()
            self.stamp("b5", B)
        self.conv(B, second, [])
        B.wait_tag("poison3")
        B.wait(lg=0)
        assert [t for _, t in A.vm] == [t for _, t in B.vm]
        B.flush()
        A.lines += B.lines
        A.count += B.count
        A.nops += B.nops
        A.label("L_conv_done")
        self.V.put(*self.bgtmp)
        self.V.put(*self.BAND.values(), self.vUf, self.vZw, self.vG16, self.UG, self.vUw,
                   self.vS1i, self.vS1i2, self.vN, self.vF)
        self.AC.put(*self.KN, self.KX, *self.B2.values(), *self.B3.values())
        self.stamp("conv", A)
        A("s_barrier")
        self.stamp("b6", A)
        self.ZT = ZT = self.V.get(8)
        A(f"ds_read_b128 {ZT[0:4]}, {self.vZr} offset:{L_Z}\nds_read_b128 {ZT[4:8]}, {self.vZr} offset:{L_Z + 4096}")
        A(f"global_store_dwordx4 {self.vS2o}, {ZT[0:4]}, s[30:31] sc1", tag="s2st")
        A(f"global_store_dwordx4 {self.vS2o2}, {ZT[4:8]}, s[30:31] sc1", tag="s2st")
        if self.o["poison_at"] == "pub":
            self.vFl = self.V.get()
            A(f"global_load_dword {self.vFl}, {self.vFi}, s[30:31] sc1")
        self.stamp("st2", A)
        self.V.put(self.vZr, self.vS2o, self.vS2o2)

    def poison_check(self, regs, t0):
        def chk(C):
            r = list(regs)
            if len(r) == 1:
                C(f"v_cmp_eq_u32 vcc, -1, {r[0]}")
                return
            C(f"v_max3_u32 {t0}, {r[0]}, {r[1]}, {r[2] if len(r) > 2 else r[1]}")
            r = r[3:]
            while r:
                C(f"v_max3_u32 {t0}, {t0}, {r[0]}, {r[1] if len(r) > 1 else r[0]}")
                r = r[2:]
            C(f"v_cmp_eq_u32 vcc, -1, {t0}")
        return chk

    def phase_c(self):
        A, V = self.A, self.V
        vL, vI, vG, sL, sW = self.vL, self.vI, self.vG, self.sL, self.sW
        get = V.get
        self.t = t0, t1, t2 = get(), get(), get()
        vSW, vKw, vS3o, vRo = get(), get(), get(), get()
        self.vS3i = get()
        vHr = self.vHr
        XL, XH, UD = get(8), get(8), Multi([get(4) for _ in range(4)])
        if self.o.get("s2_order") == 0:
            A.wait(vm=0)
        for j in range(8):
            A(f"v_lshlrev_b32 {XL[j]}, 16, {self.XA[j]}")
            A(f"v_and_b32 {XH[j]}, 0xffff0000, {self.XA[j]}")
        A(f"v_lshlrev_b32 {t0}, 16, {self.vDk}\nv_and_b32 {t1}, 0xffff0000, {self.vDk}")
        A(f"v_mul_f32 {t0}, 0x41800000, {t0}\nv_mul_f32 {t1}, 0x41800000, {t1}")
        for e in range(2):
            G = self.G[e]
            if e == 1 and self.o.get("s2_order") == 1:
                A.wait(vm=0)
            for q in range(4):
                A(f"v_and_b32 {G[q]}, {G[q]}, {self.vMask}")
            for j in range(8):
                A(f"v_fma_mix_f32 {UD[8 * e + j]}, {G[j // 2]}, {(t0, t1)[e]}, 0 op_sel:[{j % 2},0,0] op_sel_hi:[1,0,0]")
            for j in range(8):
                self.rnd(A, UD[8 * e + j], UD[8 * e + j])
        V.put(*self.G, self.vMask, self.vDk)
        if self.o.get("s2_order") == 2:
            A.wait(vm=0)
        for k in range(8):
            A(f"v_dot2_f32_bf16 {vSW}, {self.WR[k]}, {self.sOnes}, {vSW if k else 0}")
        self.allreduce(A, "v_add_f32", [vSW], 32)
        A(f"""
        v_and_b32 {t0}, 31, v0
        v_lshlrev_b32 {t0}, 4, {t0}
        v_lshlrev_b32 {vKw}, 2, {self.vTau}
        s_lshl_b32 s3, {sW}, 13
        s_lshl_b32 s16, {self.rowid()}, 4
        s_add_u32 s3, s3, s16
        s_add_u32 s3, s3, {WS_S3}
        v_lshl_add_u32 {vS3o}, {vL}, 12, s3
        s_lshr_b32 s3, {sL}, 5
        s_lshl_b32 s3, s3, 12
        s_add_u32 s16, s3, {WS_S3}
        v_lshl_add_u32 {self.vS3i}, v0, 4, s16
        s_lshl_b32 s16, {self.rowid()}, 11
        s_add_u32 s16, s16, {WS_ROWS}
        v_add_u32 {vRo}, s16, {t0}
        s_lshl_b32 s3, {self.rowid()}, 3
        s_sub_u32 s3, 2047, s3
        v_sub_u32 {t2}, s3, {self.vTau}
        v_mov_b32 {t1}, 0
        """)
        if self.o["dma_ack2"] and self.o["dma_at"] != "none":
            A(f"s_cmp_eq_u32 {self.sRole}, 2\ns_cbranch_scc1 L_dma_done")
            A(f"s_cmp_eq_u32 {self.sRole}, 1\ns_cbranch_scc1 L_dma_r1")
            keep = list(A.vm)
            for role in (0, 1):
                if role:
                    A.label("L_dma_r1")
                plan = self.dma_plan(A, role)
                n = len(plan) if role == 0 else self.o["dma_ack2"]
                for a, b in plan[:n]:
                    A(a)
                    A(b, tag="dma")
                if role == 0:
                    A("s_branch L_dma_done")
                    V.put(self.vWa)
                else:
                    self.plan1 = plan[n:]
            A.label("L_dma_done")
        if self.o["dma0_ack2"] and self.o["dma_at"] != "none":
            A(f"s_cmp_eq_u32 {self.sRole}, 0\ns_cbranch_scc0 L_dma0_done")
            for a, b in self.dma_plan(A, 0):
                A(a)
                A(b, tag="dma")
            V.put(self.vWa)
            A.label("L_dma0_done")
        early = self.o["dma_s2"] and self.o["dma_at"] != "none"
        if early:
            A(f"s_cmp_eq_u32 {self.sRole}, 1\ns_cbranch_scc1 L_plan1")
            p0 = self.dma_plan(A, 0)
            keep = self.vWa
            A("s_branch L_plan_done")
            A.label("L_plan1")
            V.put(keep)
            p1 = self.dma_plan(A, 1)
            assert str(keep) == str(self.vWa)
            A.label("L_plan_done")
        self.stamp("dma", A)
        if self.o.get("early_z"):
            A(f"s_lshr_b32 s3, {self.sR}, 5\ns_lshr_b32 s3, {sum(1 << j for j in self.o['early_z'])}, s3\ns_bitcmp1_b32 s3, 0")
            A("s_cbranch_scc1 L_noack\ns_waitcnt vmcnt(0)")
            A.label("L_noack")
        elif not self.o.get("s2_noack"):
            A.wait(vm=0)
        if self.o["poison_at"] == "pub":
            self.poll(A, "flg", lambda C: C(f"global_load_dword {self.vFl}, {self.vFi}, s[30:31] sc1"),
                      lambda C: C(f"v_cmp_ne_u32 vcc, {self.sE}, {self.vFl}"))
            V.put(self.vFl, self.vFi)
        self.stamp("ack2", A)
        ZT = self.ZT

        def s2_loads(C):
            C(f"global_load_dwordx4 {ZT[0:4]}, {self.vS2i}, s[30:31] sc1")
            C(f"global_load_dwordx4 {ZT[4:8]}, {self.vS2i2}, s[30:31] sc1")
        s2_loads(A)
        self.poll(A, "s2", s2_loads, self.poison_check([ZT[k] for k in range(8)], t0))
        self.stamp("s2", A)
        if early:
            n1 = self.o["dma_s2"] - 1
            A(f"s_cmp_eq_u32 {self.sRole}, 0\ns_cbranch_scc0 L_dma_n0")
            for a, b in p0:
                A(a)
                A(b)
            A.label("L_dma_n0")
            if n1:
                A(f"s_cmp_eq_u32 {self.sRole}, 1\ns_cbranch_scc0 L_dma_n1")
                for a, b in p1[:n1]:
                    A(a)
                    A(b)
                A.label("L_dma_n1")
            A.vm = []
            self.plan1 = p1[n1:]
        HP = get(8)
        self.T = T = get(8)
        for grp in range(2):
            for jj in range(4):
                j = 4 * grp + jj
                sel = self.sHi if j % 2 else self.sLo
                A(f"v_dot2_f32_bf16 {T[jj]}, {ZT[j // 2]}, {sel}, {UD[j]}")
                A(f"v_dot2_f32_bf16 {T[4 + jj]}, {ZT[4 + j // 2]}, {sel}, {UD[8 + j]}")
            for k in range(8):
                self.rnd(A, T[k], T[k])
            for q in range(2):
                j = 4 * grp + 2 * q
                A(f"v_pk_add_f32 {T[2 * q:2 * q + 2]}, {T[2 * q:2 * q + 2]}, {XL[j:j + 2]}")
                A(f"v_pk_add_f32 {T[4 + 2 * q:6 + 2 * q]}, {T[4 + 2 * q:6 + 2 * q]}, {XH[j:j + 2]}")
            for jj in range(4):
                A(f"v_cvt_pk_bf16_f32 {HP[4 * grp + jj]}, {T[jj]}, {T[4 + jj]}")
            for q in range(2):
                j = 4 * grp + 2 * q
                A(f"ds_write2st64_b32 {self.vHw2}, {HP[j]}, {HP[j + 1]} offset0:{4 * j} offset1:{4 * j + 4}")
        self.stamp("hw", A)
        A.barrier()
        self.stamp("b7", A)
        V.put(XL, XH, *UD.groups, HP, ZT, self.vS2i, self.vS2i2, self.XA)
        HB = get(8)
        A(f"ds_read_b128 {HB[0:4]}, {vHr} offset:{L_H}\nds_read_b128 {HB[4:8]}, {vHr} offset:{L_H + 512}")
        s1, s2, s3, NM, RS = get(), get(), get(), get(2), get(2)
        self.key = key = get()
        for k in range(8):
            A(f"v_dot2_f32_bf16 {s1}, {HB[k]}, {self.sOnes}, {s1 if k else 0}")
            A(f"v_dot2_f32_bf16 {s2}, {HB[k]}, {HB[k]}, {s2 if k else 0}")
            A(f"v_dot2_f32_bf16 {s3}, {HB[k]}, {self.WR[k]}, {s3 if k else 0}")
        self.allreduce(A, "v_add_f32", [s1, s2, s3], 32)
        self.ln_stats(A, s1, s2, NM[0], RS[0])
        A(f"v_fma_f32 {s3}, {NM[0]}, {vSW}, {s3}\nv_mul_f32 {s3}, {s3}, {RS[0]}")
        self.rnd(A, s3, s3)
        A(f"""
        v_ashrrev_i32 {t0}, 31, {s3}
        v_or_b32 {t0}, 0x80000000, {t0}
        v_xor_b32 {t0}, {s3}, {t0}
        v_and_b32 {t0}, 0xffff0000, {t0}
        v_or_b32 {key}, {t0}, {t2}
        s_mov_b64 exec, 1
        s_bitset1_b64 exec, 32
        ds_write_b32 {vKw}, {key} offset:{L_KEY}
        s_mov_b64 exec, -1
        """)
        self.stamp("key", A)
        V.put(self.WR, vSW, s1, s2, s3, vKw)
        H32 = Multi([get(4) for _ in range(4)])
        late = self.o.get("late_unpack")
        for k in range(0 if late else 8):
            A(f"v_lshlrev_b32 {H32[2 * k]}, 16, {HB[k]}\nv_and_b32 {H32[2 * k + 1]}, 0xffff0000, {HB[k]}")
        A.barrier()
        self.kmax = kmax = get()
        A(f"ds_read_b128 {T[0:4]}, {t1} offset:{L_KEY}\nds_read_b128 {T[4:8]}, {t1} offset:{L_KEY + 16}")
        HN = Multi([get(4) for _ in range(2)])
        self.D = D = Multi([get(4) for _ in range(8)])
        A(f"v_mov_b32 {NM[1]}, {NM[0]}\nv_mov_b32 {RS[1]}, {RS[0]}")
        for k in range(8):
            if not late:
                A(f"v_pk_add_f32 {D[2 * k:2 * k + 2]}, {H32[2 * k:2 * k + 2]}, {NM}")
            elif k < 5:
                A(f"v_lshlrev_b32 {H32[2 * k]}, 16, {HB[k]}\nv_and_b32 {H32[2 * k + 1]}, 0xffff0000, {HB[k]}")
        A(f"v_max3_u32 {kmax}, {T[0]}, {T[1]}, {T[2]}\nv_max3_u32 {t0}, {T[3]}, {T[4]}, {T[5]}")
        A(f"v_max3_u32 {kmax}, {kmax}, {T[6]}, {T[7]}\nv_max_u32 {kmax}, {kmax}, {t0}")
        A("s_mov_b64 exec, 3")
        A(f"global_store_dword {vS3o}, {kmax}, s[30:31] sc1", tag="s3st")
        A("s_mov_b64 exec, -1")
        self.stamp("pub3", A)
        sC = self.sC
        A(f"v_cmp_eq_u32 {sC}, {key}, {kmax}")
        if late:
            for k in range(5, 8):
                A(f"v_lshlrev_b32 {H32[2 * k]}, 16, {HB[k]}\nv_and_b32 {H32[2 * k + 1]}, 0xffff0000, {HB[k]}")
            for k in range(8):
                A(f"v_pk_add_f32 {D[2 * k:2 * k + 2]}, {H32[2 * k:2 * k + 2]}, {NM}")
        for k in range(16):
            self.rnd(A, D[k], D[k])
        for k in range(8):
            A(f"v_pk_mul_f32 {D[2 * k:2 * k + 2]}, {D[2 * k:2 * k + 2]}, {RS}")
        for k in range(8):
            A(f"v_cvt_pk_bf16_f32 {HN[k]}, {D[2 * k]}, {D[2 * k + 1]}")
        A(f"s_mov_b64 exec, {sC}")
        A(f"global_store_dwordx4 {vRo}, {HN[0:4]}, s[30:31] sc1", tag="rowst")
        A(f"global_store_dwordx4 {vRo}, {HN[4:8]}, s[30:31] offset:512 sc1", tag="rowst")
        A(f"global_store_dwordx4 {vRo}, {HB[0:4]}, s[30:31] offset:1024 sc1", tag="rowst")
        A(f"global_store_dwordx4 {vRo}, {HB[4:8]}, s[30:31] offset:1536 sc1", tag="rowst")
        A("s_mov_b64 exec, -1")
        self.stamp("hn", A)
        self.O = O = Multi([get(4) for _ in range(2)])
        for k in range(8):
            A(f"v_dot2_f32_bf16 {D[2 * k]}, {HN[k]}, {self.sLo}, {H32[2 * k]}")
            A(f"v_dot2_f32_bf16 {D[2 * k + 1]}, {HN[k]}, {self.sHi}, {H32[2 * k + 1]}")
        for k in range(8):
            A(f"v_cvt_pk_bf16_f32 {O[k]}, {D[2 * k]}, {D[2 * k + 1]}")
        self.stamp("outc", A)
        V.put(*H32.groups, NM, RS, vS3o, vRo)

    def out_stores(self, C):
        pol = self.o["out_pol"]
        C(f"global_store_dwordx4 {self.vRow}, {self.O[0:4]}, s[28:29] {pol}", tag="out")
        C(f"global_store_dwordx4 {self.vRow}, {self.O[4:8]}, s[28:29] offset:512 {pol}", tag="out")

    def resolve(self, A, sfx, between=None):
        t0, t1, t2 = self.t
        T, kin = self.T, self.kin

        def s3_loads(C):
            C(f"global_load_dword {kin}, {self.vS3i}, s[30:31] sc1")
        s3_loads(A)
        if between:
            between()
        A(f"v_lshrrev_b32 {t1}, 4, v0\nv_and_b32 {t1}, 12, {t1}\nv_mov_b32 {t2}, 0")
        self.poll(A, "s3" + sfx, s3_loads, self.poison_check([kin], t0))
        self.stamp("s3p", A)
        self.allreduce(A, "v_max_u32", [kin], 64)
        self.stamp("s3w", A)
        A(f"s_mov_b64 exec, 1\nds_write_b32 {t1}, {kin} offset:{L_KEY2}\ns_mov_b64 exec, -1")
        A.barrier()
        A(f"ds_read_b128 {T[0:4]}, {t2} offset:{L_KEY2}")
        A(f"v_max3_u32 {kin}, {T[0]}, {T[1]}, {T[2]}\nv_max_u32 {kin}, {kin}, {T[3]}")
        A(f"v_readfirstlane_b32 {self.sK}, {kin}")
        A(f"s_and_b32 {self.sT}, {self.sK}, 0x7ff\ns_sub_u32 {self.sT}, 2047, {self.sT}")
        self.stamp("s3", A)
        A(f"s_lshr_b32 s3, {self.sT}, 3\ns_lshl_b32 s3, s3, 11\ns_add_u32 s3, s3, {WS_ROWS}")

    def finish(self, A, sfx):
        A.flush()
        A.label(f"L_fin_{sfx}")
        if self.o["stamps"]:
            A.wait(vm=0)
            self.stamp("end", A)
            if self.o["clk"]:
                A("s_memtime s[96:97]")
                A.wait(lg=0)
                A("s_sub_u32 s100, s96, s100\ns_mov_b32 s101, 0")
            A("s_waitcnt vmcnt(0) lgkmcnt(0)")
            self.dump_stamps(A)
        A("s_endpgm")

    def tail0(self, A):
        V = self.V
        get = V.get
        vL, vI, vG, sL, sW, sC = self.vL, self.vI, self.vG, self.sL, self.sW, self.sC
        t0, t1, t2 = self.t
        T, D = self.T, self.D
        vTr, vRed, vXs, vPub, vRd = get(), get(), get(), get(), get()
        WT = [self.AC.get(4, 4) for _ in range(8)]
        plan = [] if self.o["dma_ack2"] or self.o["dma0_ack2"] or self.o["dma_s2"] else self.dma_plan(A, 0)
        if self.o["dma_at"] == "none":
            plan = []

        def dma():
            for a, b in plan:
                A(a)
                A(b, tag="dma")
        if not self.o["r0_late"]:
            dma()
        A(f"""
        v_and_b32 {t0}, 3, {vI}
        v_lshlrev_b32 {t0}, 3, {t0}
        v_lshrrev_b32 {t1}, 2, {vI}
        v_lshl_add_u32 {t1}, {vG}, 3, {t1}
        v_lshl_add_u32 {t0}, {t1}, 6, {t0}
        v_add_u32 {vTr}, {self.sWb}, {t0}
        """)

        def tr_reads():
            A.wait_tag("dma")
            for ct in range(2):
                for m in range(4):
                    for e2 in range(2):
                        A(f"ds_read_b64_tr_b16 {WT[4 * ct + m][2 * e2:2 * e2 + 2]}, {vTr} offset:{(32 * m + 4 * e2) * 64 + 32 * ct}")
        A(f"""
        s_lshl_b32 s3, {sW}, 2
        v_lshl_add_u32 {vRed}, {vI}, 4, s3
        v_and_b32 {t0}, 3, {vI}
        v_lshlrev_b32 {t0}, 6, {t0}
        v_lshl_add_u32 {t0}, {vG}, 4, {t0}
        s_lshl_b32 s3, {sW}, 8
        v_add_u32 {vXs}, s3, {t0}
        v_and_b32 {t0}, 31, {vL}
        v_lshlrev_b32 {vRd}, 4, {t0}
        v_lshrrev_b32 {t1}, 5, {vL}
        v_lshlrev_b32 {t1}, 13, {t1}
        v_lshl_add_u32 {t1}, {t0}, 1, {t1}
        s_lshl_b32 s3, {sW}, 14
        s_lshl_b32 s16, {self.sUp}, 12
        s_add_u32 s3, s3, s16
        s_lshl_b32 s16, {self.sBlk}, 6
        s_add_u32 s3, s3, s16
        s_add_u32 s3, s3, {WS_S4}
        v_add_u32 {vPub}, s3, {t1}
        """)
        A.wait_tag("s3st")
        self.stamp("ack3", A)

        late_out = self.o["r0_late"] == 2

        def between():
            if self.o["r0_late"]:
                dma()
            if not late_out:
                A(f"s_andn2_b64 exec, -1, {sC}")
                self.out_stores(A)
                A("s_mov_b64 exec, -1")
            if not self.o["r0_late"]:
                tr_reads()
        self.resolve(A, "r0", between)
        XS = get(4)
        A(f"v_add_u32 {vXs}, s3, {vXs}")

        def row_loads(C):
            C(f"global_load_dwordx4 {XS}, {vXs}, s[30:31] sc1")
        row_loads(A)
        if late_out:
            A(f"v_cmp_ne_u32 {sC}, {self.kin}, {self.key}")
        else:
            A(f"v_cmp_ne_u32 vcc, {self.kin}, {self.kmax}\ns_and_b64 exec, vcc, {sC}")
            self.out_stores(A)
            A("s_mov_b64 exec, -1")
        if getattr(self, "late_barrier", False):
            A("s_barrier")
            self.late_barrier = False
        if self.o["r0_late"]:
            tr_reads()
        self.poll(A, "rowr0", row_loads, self.poison_check([XS[k] for k in range(4)], t0))
        self.stamp("row", A)
        for k in range(8):
            A(f"v_mfma_f32_16x16x32_bf16 {D[4 * k:4 * k + 4]}, {XS}, {WT[k]}, 0")
        A(f"s_cmp_eq_u32 {self.sUp}, 0\ns_cselect_b64 s[16:17], -1, 0")
        A(f"""
        v_add_f32 {t0}, {D[0]}, {D[5]}
        v_add_f32 {t1}, {D[10]}, {D[15]}
        v_add_f32 {t0}, {t0}, {t1}
        v_add_f32 {t1}, {D[16]}, {D[21]}
        v_add_f32 {t2}, {D[26]}, {D[31]}
        v_add_f32 {t1}, {t1}, {t2}
        s_mov_b64 exec, 0xffff
        ds_write_b32 {vRed}, {t0} offset:{L_RED}
        ds_write_b32 {vRed}, {t1} offset:{L_RED + 256}
        s_mov_b64 exec, -1
        """)
        self.stamp("g1m", A)
        A.barrier()
        self.stamp("g1b", A)
        A(f"ds_read_b128 {T[0:4]}, {vRd} offset:{L_RED}")
        A(f"v_pk_add_f32 {T[0:2]}, {T[0:2]}, {T[2:4]}\nv_add_f32 {T[0]}, {T[0]}, {T[1]}")
        self.rnd(A, T[0], T[0])
        A(f"v_mul_f32 {t0}, {LOG2E | 0x80000000}, {T[0]}\nv_exp_f32 {t0}, {t0}\nv_add_f32 {t0}, 1.0, {t0}")
        A(f"v_rcp_f32 {t0}, {t0}\nv_mul_f32 {t0}, {T[0]}, {t0}")
        A(f"v_cndmask_b32 {t0}, {T[0]}, {t0}, s[16:17]")
        A(f"v_mov_b32_dpp {t1}, {t0} row_shl:1 row_mask:0xf bank_mask:0xf")
        A(f"v_cvt_pk_bf16_f32 {XS[0]}, {t0}, {t1}")
        for k in range(1, 4):
            A(f"v_mov_b32_dpp {XS[k]}, {XS[0]} row_shl:{2 * k} row_mask:0xf bank_mask:0xf")
        A("s_mov_b32 exec_lo, 0x01010101\ns_mov_b32 exec_hi, 0x01010101")
        A(f"global_store_dwordx4 {vPub}, {XS}, s[30:31] sc1")
        self.stamp("g1", A)
        if late_out:
            if self.o.get("r0_ackout"):
                A.wait(vm=0)
            A(f"s_mov_b64 exec, {sC}")
            self.out_stores(A)
        self.finish(A, "r0")

    def tail2(self, A):
        if self.o.get("r2_mode") == 2:
            A.wait_tag("s3st")
            A(f"s_andn2_b64 exec, -1, {self.sC}")
            self.out_stores(A)
            A("s_mov_b64 exec, -1")
            A.wait(vm=0)
            self.resolve(A, "r2")
            A(f"v_cmp_ne_u32 vcc, {self.kin}, {self.kmax}\ns_and_b64 exec, vcc, {self.sC}")
            self.out_stores(A)
            self.finish(A, "r2")
            return
        A.wait_tag("rowst" if self.o.get("r2_mode") == 1 else "s3st")
        self.stamp("ack3", A)

        def between():
            A(f"s_andn2_b64 exec, -1, {self.sC}")
            self.out_stores(A)
            A("s_mov_b64 exec, -1")
        if self.o["r2_late"]:
            self.resolve(A, "r2")
            A(f"v_cmp_ne_u32 vcc, {self.kin}, {self.key}\ns_mov_b64 exec, vcc")
        else:
            self.resolve(A, "r2", between)
            A(f"v_cmp_ne_u32 vcc, {self.kin}, {self.kmax}\ns_and_b64 exec, vcc, {self.sC}")
        self.out_stores(A)
        self.finish(A, "r2")

    def tail1(self, A):
        V = self.V
        get = V.get
        vL, vI, vG, sL, sW, sC = self.vL, self.vI, self.vG, self.sL, self.sW, self.sC
        t0, t1, t2 = self.t
        T, D = self.T, self.D
        plan = self.plan1 if self.o["dma_ack2"] or self.o["dma_s2"] else self.dma_plan(A, 1)
        if self.o["dma_at"] == "none":
            plan = []
        n1 = self.o["r1_split"]
        for a, b in plan[:n1]:
            A(a)
            A(b, tag="dma")
        A.wait_tag("s3st")
        self.stamp("ack3", A)

        def between():
            for a, b in plan[n1:]:
                A(a)
                A(b, tag="dma")
        self.resolve(A, "r1", between)
        vTr, vRed, vSig, vOut, vS4i = get(), get(), get(), get(), get()
        HH = get(2)
        A(f"""
        s_lshl_b32 s16, {self.sBlk}, 5
        s_add_u32 s3, s3, s16
        v_lshrrev_b32 {t1}, 1, {vI}
        v_lshl_add_u32 {t1}, {t1}, 2, s3
        """)

        def row_loads(C):
            C(f"global_load_dword {HH[0]}, {t1}, s[30:31] sc1")
            C(f"global_load_dword {HH[1]}, {t1}, s[30:31] offset:1024 sc1")
        row_loads(A)

        if getattr(self, "late_barrier", False):
            A("s_barrier")
            self.late_barrier = False

        def own_rows():
            A(f"v_cmp_eq_u32 vcc, {self.kin}, {self.key}\ns_andn2_b64 exec, -1, vcc")
            self.out_stores(A)
            A("s_mov_b64 exec, -1")
        if self.o["r1_out"] == "row":
            own_rows()
        A(f"""
        v_and_b32 {t0}, 3, {vI}
        v_lshlrev_b32 {t0}, 3, {t0}
        v_lshrrev_b32 {t2}, 2, {vI}
        v_lshl_add_u32 {t2}, {vG}, 3, {t2}
        v_lshl_add_u32 {t0}, {t2}, 5, {t0}
        v_add_u32 {vTr}, {self.sWb}, {t0}
        """)
        self.poll(A, "rowr1", row_loads, self.poison_check([HH[0], HH[1]], t0))
        self.stamp("row", A)
        WT = [self.AC.get(4, 4) for _ in range(14)]
        A.wait_tag("dma")
        if self.o["r1_out"] == "tr":
            own_rows()
        self.stamp("r1o", A)
        for m in range(14):
            for e2 in range(2):
                A(f"ds_read_b64_tr_b16 {WT[m][2 * e2:2 * e2 + 2]}, {vTr} offset:{(32 * m + 4 * e2) * 32}")
        self.stamp("r1t", A)
        sK, sT = self.sK, self.sT
        A(f"""
        s_and_b32 s16, {sK}, 0x7fff0000
        s_andn2_b32 s17, 0xffff0000, {sK}
        s_bitcmp1_b32 {sK}, 31
        s_cselect_b32 s16, s16, s17
        v_mov_b32 {t0}, s16
        v_mul_f32 {t0}, {LOG2E | 0x80000000}, {t0}
        v_exp_f32 {t0}, {t0}
        v_add_f32 {t0}, 1.0, {t0}
        v_rcp_f32 {t0}, {t0}
        """)
        self.rnd(A, vSig, t0)
        vS4u = get()
        A(f"""
        v_and_b32 {t0}, 1, {vI}
        v_xor_b32 {t0}, 1, {t0}
        v_lshlrev_b32 {t0}, 4, {t0}
        v_lshlrev_b32 {HH[0]}, {t0}, {HH[0]}
        v_lshlrev_b32 {HH[1]}, {t0}, {HH[1]}
        v_and_b32 {HH[0]}, 0xffff0000, {HH[0]}
        v_and_b32 {HH[1]}, 0xffff0000, {HH[1]}
        s_lshl_b32 s3, {sT}, 10
        s_lshl_b32 s16, {self.sBlk}, 5
        s_add_u32 s3, s3, s16
        v_lshl_add_u32 {vOut}, {vI}, 1, s3
        s_lshr_b32 s3, {sL}, 5
        s_lshl_b32 s3, s3, 13
        s_mul_i32 s16, {sW}, {56 * 16}
        s_add_u32 s3, s3, s16
        s_add_u32 s3, s3, {WS_S4}
        v_min_u32 {t0}, 13, {vI}
        v_lshl_add_u32 {t0}, {t0}, 2, {vG}
        v_lshl_add_u32 {vS4i}, {t0}, 4, s3
        v_add_u32 {vS4u}, 0x1000, {vS4i}
        s_lshl_b32 s3, {sW}, 2
        v_lshl_add_u32 {vRed}, {vI}, 4, s3
        v_mov_b32 {t2}, 0
        v_lshlrev_b32 {t1}, 4, {vI}
        """)
        if self.o["r1_out"] == "late":
            own_rows()
        A.wait(vm=0)
        self.stamp("r1a", A)
        GU, XS = Multi([get(4) for _ in range(2)]), get(4)

        def s4_loads(C):
            C(f"global_load_dwordx4 {GU[0:4]}, {vS4i}, s[30:31] sc1")
            C(f"global_load_dwordx4 {GU[4:8]}, {vS4u}, s[30:31] sc1")
        s4_loads(A)
        self.poll(A, "s4", s4_loads, self.poison_check([GU[k] for k in range(8)], t0))
        self.stamp("g1", A)
        for k in range(4):
            A(f"v_and_b32 {T[2 * k]}, 0xffff, {GU[k]}\nv_and_b32 {T[2 * k + 1]}, 0xffff0000, {GU[k]}")
        for k in range(8):
            A(f"v_dot2_f32_bf16 {T[k]}, {T[k]}, {GU[4 + k // 2]}, 0")
        for k in range(4):
            A(f"v_cvt_pk_bf16_f32 {XS[k]}, {T[2 * k]}, {T[2 * k + 1]}")
        DD = [D[4 * k:4 * k + 4] for k in range(8)]
        acc = [t2, get()]
        A(f"v_mov_b32 {acc[1]}, 0")
        for m in range(14 + 4):
            if m < 14:
                A(f"v_mfma_f32_16x16x32_bf16 {DD[m % 8]}, {XS}, {WT[m]}, 0")
            k = m - 4
            if k >= 0:
                a = acc[k % 2]
                A(f"v_add_f32_dpp {a}, {DD[k % 8][k % 4]}, {a} quad_perm:[0,1,2,3] row_mask:{1 << (k // 4)} bank_mask:0xf")
        A(f"v_add_f32 {t2}, {t2}, {acc[1]}")
        for sw in ("v_permlane16_swap_b32", "v_permlane32_swap_b32"):
            A(f"v_mov_b32 {t0}, {t2}\n{sw} {t2}, {t0}\nv_add_f32 {t2}, {t2}, {t0}")
        A(f"s_mov_b64 exec, 0xffff\nds_write_b32 {vRed}, {t2} offset:{L_RED}\ns_mov_b64 exec, -1")
        self.stamp("g2m", A)
        if self.o["r1_out"] == "end":
            own_rows()
        A.barrier()
        A(f"s_cmp_eq_u32 {sW}, 0\ns_cbranch_scc0 L_fin_r1")
        A(f"ds_read_b128 {T[0:4]}, {t1} offset:{L_RED}")
        A(f"v_pk_add_f32 {T[0:2]}, {T[0:2]}, {T[2:4]}\nv_add_f32 {t0}, {T[0]}, {T[1]}")
        self.rnd(A, t0, t0)
        A(f"v_mul_f32 {t0}, {t0}, {vSig}")
        self.rnd(A, t0, t0)
        A(f"v_add_f32 {t0}, {t0}, {HH[0]}")
        self.rnd(A, t0, t0)
        A(f"v_add_f32 {t0}, {t0}, {HH[1]}")
        self.rnd(A, t0, t0)
        A("s_mov_b64 exec, 0xffff")
        A(f"global_store_short_d16_hi {vOut}, {t0}, s[28:29] {self.o['fin_pol']}")
        self.stamp("g2", A)
        A(f"s_cmp_eq_u32 {self.sBlk}, 0\ns_cbranch_scc0 L_fin_r1")
        A("s_mov_b64 exec, 1")
        A(f"v_mov_b32 {t0}, {self.sE}\nv_mov_b32 {t2}, 0")
        A(f"global_store_dword {t2}, {t0}, s[30:31] offset:{WS_EPOCH} {self.o['fin_pol']}")
        self.finish(A, "r1")

    def build(self):
        A = self.A
        self.prologue()
        self.ksl = self.ksetup_lines()
        self.ksteps = self.kgen_steps()
        self.weave(self.o["wv"][0])
        for _ in range(self.o["kpre"]):
            next(self.ksteps)
        if self.o["poison_at"] == "kpre":
            self.poison2()
        self.ln1()
        self.kgen()
        self.sWb, self.sC, self.sK, self.sT = self.S.get(), self.S.get(2), self.S.get(), self.S.get()
        self.conv_all()
        self.phase_c()
        self.kin = self.V.get()
        A(f"s_cmp_eq_u32 {self.sRole}, 1\ns_cbranch_scc1 L_role1")
        B = A.fork()
        B.label("L_role1")
        A(f"s_cmp_eq_u32 {self.sRole}, 2\ns_cbranch_scc1 L_role2")
        C = A.fork()
        C.label("L_role2")
        vfree, afree = set(self.V.free), set(self.AC.free)
        self.tail0(A)
        self.V.free, self.AC.free = set(vfree), set(afree)
        self.tail1(B)
        self.V.free, self.AC.free = set(vfree), set(afree)
        self.tail2(C)
        B.lines += C.lines
        B.count += C.count
        body = A.text() + B.text() + "".join(c.text() for c in self.cold)
        nv = self.V.top + 1
        accum = (nv + 3) // 4 * 4
        total = max(accum + self.AC.top + 1, 264)
        head = open(f"cdna_kernels/{NAME}.s.ref").read().split("; Override launch geometry")[0]
        self.stats = dict(instr=A.count + B.count, nops=A.nops + B.nops, vgpr=nv, agpr=self.AC.top + 1, mfma=self.nmfma, bg_left=self.bg_left)
        tab = ""
        if self.o["band_tab"]:
            tab = f".p2align 7\n.type L_tab,@object\nL_tab:\n{band_table()}\n.size L_tab, 4096\n"
        return head + f"""; One persistent launch: 256 workgroups, one per CU, exchanging data through d_ws.
; @launch grid=(256,1,1) block=(256,1,1) lds={LDS_BYTES}
.amdgcn_target "amdgcn-amd-amdhsa--gfx950"
.text
.globl {NAME}_kernel
.p2align 8
.type {NAME}_kernel,@function
{NAME}_kernel:
{body}L_end:
    s_endpgm
L_code_end:
{tab}L_all_end:
.section .rodata,"a"
.p2align 6
.amdhsa_kernel {NAME}_kernel
  .amdhsa_next_free_vgpr {total}
  .amdhsa_next_free_sgpr 102
  .amdhsa_accum_offset {accum}
  .amdhsa_group_segment_fixed_size 0
  .amdhsa_kernarg_size 120
  .amdhsa_user_sgpr_count 2
  .amdhsa_user_sgpr_kernarg_segment_ptr 1
  .amdhsa_system_sgpr_workgroup_id_x 1
  .amdhsa_float_denorm_mode_32 3
.end_amdhsa_kernel
"""


def generate(path, **opt):
    g = Gen(**opt)
    text = g.build()
    open(path, "w").write(text)
    return g.stats


if __name__ == "__main__":
    out = sys.argv[1] if len(sys.argv) > 1 else f"cdna_kernels/{NAME}.s"
    opts = {}
    for a in sys.argv[2:]:
        k, v = a.split("=")
        opts[k] = {"True": True, "False": False}.get(v, int(v) if v.isdigit() else v)
    print(generate(out, **opts))
```

```python
import re
import sys
from asmdsl import Asm, Pool, R
import gen_v9 as base
from gen_v9 import *

L_G = L_KEY2 + 16
VMAX = 116
EXTRA = dict(hb1=40, prio=2, hst=False, s1_go="ack", m_wait=True)


class Gen(base.Gen):
    def __init__(self, **opt):
        o = dict(EXTRA)
        o.update(opt)
        if isinstance(o.get("h_dma"), str):
            a = [int(x) for x in o["h_dma"].split("_")]
            o["h_dma"] = ((a[0], a[1]), (a[2], a[3]))
        if isinstance(o["early_z"], (str, int)) and o["early_z"]:
            o["early_z"] = [int(c) for c in str(o["early_z"]).lstrip("t")]
        o["pad"] = o["pad"].replace(" ", "+")
        if o["pages"]:
            o["pad"] = "rec+dma"
        super().__init__(**o)
        self.V = Pool("v", 1, VMAX - 1)
        self.AC = Pool("a", 0, 255 - VMAX)
        self.is_h = False

    NOTES = {"x": "first LayerNorm: row statistics", "b1": "normalise, tag and publish u",
             "pub1": "chores while the helpers finish K", "s1w": "u into LDS", "b5": "convolution",
             "conv": "publish y", "st2": "operands of the row phase", "s2": "h = x + (y + u * D)",
             "b7": "second LayerNorm and router score", "pub3": "LN(h) and the candidate row", "hn": "plain output rows",
             "ack3": "gather the keys", "s3": "row of the chosen token", "r1a": "gather the activations",
             "g1b": "activation", "g2m": "final row"}
    HNOTES = {"karg": "helper: LDS set-up and addresses", "b1": "helper: per-mode constants", "ws": "helper: mode factors and products",
              "kmf": "helper: four shifted copies of the K arrays", "shift": "helper: FFN weight slabs"}

    def stamp(self, name, A=None):
        note = (self.HNOTES if self.is_h else self.NOTES).get(name)
        if note:
            (A or self.A).comment(note)
        if name == self.o["b8b"] and not self.is_h:
            (A or self.A)("s_barrier")
        if name in self.o["pad"].split("+") and not self.is_h:
            X = A or self.A
            X(f"s_branch L_pad_{name}")
            X.raw(".p2align 12")
            X.label(f"L_pad_{name}")
        if name == "r1o" and self.o["b9b"]:
            (A or self.A)("s_barrier")
        if self.is_h == bool(self.o["hst"]) or name == "start":
            super().stamp(name, A)

    def entry(self):
        A, V, S = self.A, self.V, self.S
        A("s_cmp_ge_u32 s2, 0x100\ns_cbranch_scc1 L_end")
        A("s_load_dwordx16 s[4:19], s[0:1], 0")
        if not self.o["karg2"]:
            self.rest_args(A)
        self.stamp("start")
        self.sL, self.sW, self.sTag, self.sE = S.get(), S.get(), S.get(), S.get()
        self.sOnes, self.sLo, self.sHi, self.sCh = S.get(), S.get(), S.get(), S.get()
        self.sB, self.sH, self.sa, self.sb = S.get(), S.get(), S.get(), S.get()
        sL, sW = self.sL, self.sW
        self.vL, self.vI, self.vG = V.get(), V.get(), V.get()
        self.vJunk = V.get(2)
        t0, t1, t2 = V.get(), V.get(), V.get()
        self.sPc = S.get(2)
        A(f"v_lshrrev_b32 {t0}, 6, v0\ns_lshr_b32 {sL}, s2, 3\ns_getpc_b64 {self.sPc}")
        A.label("L_pc")
        A(f"""
        v_lshl_add_u32 {t2}, {sL}, 3, {t0}
        v_and_b32 {t2}, 63, {t2}
        v_and_b32 {t1}, 3, v0
        v_lshl_add_u32 {t2}, {t2}, 2, {t1}
        v_lshlrev_b32 {t2}, 7, {t2}
        v_min_u32 {t2}, L_all_end-L_pc-4, {t2}
        global_load_dword {self.vJunk[0]}, {t2}, {self.sPc}
        v_readfirstlane_b32 {self.sb}, {t0}
        s_and_b32 s3, s2, 7
        s_lshl_b32 s3, s3, 5
        s_add_u32 {sL}, {sL}, s3
        v_and_b32 v0, 0xff, v0
        v_and_b32 {self.vL}, 63, v0
        s_and_b32 {sW}, {self.sb}, 3
        s_lshr_b32 {self.sB}, {sW}, 1
        s_and_b32 {self.sH}, {sW}, 1
        s_cmp_ge_u32 {self.sb}, 4
        s_cbranch_scc1 L_helper
        """)
        V.put(t0, t1, t2)

    def rest_args(self, A):
        A("s_load_dwordx8 s[20:27], s[0:1], 64\ns_load_dwordx2 s[28:29], s[0:1], 96\ns_load_dwordx2 s[30:31], s[0:1], 112")

    def helper(self, A):
        self.A, self.is_h = A, True
        if self.o["hprio"]:
            A(f"s_setprio {self.o['hprio']}")
        V, S = self.V, self.S
        sL, sW, sB, sH, sb, vL, vI, vG = self.sL, self.sW, self.sB, self.sH, self.sb, self.vL, self.vI, self.vG
        t0, t1, t2, t3, vP = V.get(), V.get(), V.get(), V.get(), V.get()
        self.PAR, self.sDt = V.get(4), S.get()
        A(f"""
        s_lshr_b32 s3, {sL}, 6
        s_lshl_b32 {self.sCh}, s3, 7
        s_and_b32 s3, {sL}, 31
        s_lshl_b32 s3, s3, 2
        s_add_u32 {self.sCh}, {self.sCh}, s3
        s_bfe_u32 s3, {sL}, 0x10005
        s_add_u32 {self.sCh}, {self.sCh}, s3
        s_and_b32 s3, {sW}, 2
        s_add_u32 {self.sCh}, {self.sCh}, s3
        s_lshl_b32 s3, {self.sCh}, 8
        v_lshl_add_u32 {vP}, {vL}, 2, s3
        s_lshl_b32 s3, {self.sCh}, 1
        s_and_b32 s3, s3, -4
        """)
        for k in range(4):
            A(f"global_load_dword {self.PAR[k]}, {vP}, s[{6 + 2 * k}:{7 + 2 * k}]")
        self.vDt = V.get()
        A(f"v_mov_b32 {self.vDt}, s3\nglobal_load_dword {self.vDt}, {self.vDt}, s[14:15]")
        if self.o["karg2"]:
            self.rest_args(A)
        self.stamp("karg")
        A.raw(";@cut")
        if self.o["touch"]:
            ta, tz, J = V.get(), V.get(), V.get(6)
            A(f"v_min_u32 {ta}, 2, {vL}\nv_mul_u32_u24 {ta}, 0x260000, {ta}\nv_add_u32 {ta}, 0xf0000, {ta}\nv_mov_b32 {tz}, 0")
            A(f"global_load_dword {J[0]}, {ta}, s[30:31]")
            for k, base in enumerate(("s[20:21]", "s[16:17]", "s[22:23]", "s[24:25]", "s[26:27]")[:self.o["touch"] - 1]):
                A(f"global_load_dword {J[k + 1]}, {tz}, {base}")
            V.put(ta, tz)
        Z = V.get(4)
        self.vShift, self.vShiftR = V.get(), V.get()
        A(f"v_and_b32 {vI}, 15, v0\nv_bfe_u32 {vG}, v0, 4, 2")
        for k in range(4):
            A(f"v_mov_b32 {Z[k]}, 0")
        A(f"""
        v_lshlrev_b32 {t2}, 4, v0
        v_lshlrev_b32 {t3}, 2, {vL}
        v_and_b32 {t1}, 127, v0
        s_mul_i32 s3, {sB}, {UCH}
        s_add_u32 {sb}, s3, {L_U}
        v_lshl_add_u32 {t0}, {t1}, 2, {sb}
        ds_write_b128 {t2}, {Z} offset:{L_P}
        ds_write_b128 {t2}, {Z} offset:{L_P + 4096}
        ds_write_b128 {t2}, {Z} offset:{L_P + 8192}
        ds_write_b128 {t2}, {Z} offset:{L_P + 12288}
        ds_write_b32 {t3}, {Z[0]} offset:{L_P + 16384}
        ds_write_b32 {t0}, {Z[0]}
        s_mul_i32 s3, {sB}, {2 * PHALF}
        v_lshl_add_u32 {self.vShiftR}, {t1}, 4, s3
        s_mul_i32 s3, {sB}, {KCH}
        v_lshl_add_u32 {self.vShift}, {t1}, 4, s3
        """)
        self.sStM = S.get()
        self.vR, self.vS0, self.vS1r = V.get(), V.get(), V.get()
        self.vK1, self.vK3, self.vKs = V.get(), V.get(), V.get()

        def pa(m):
            return ((m >> 2) & 1) * PPLANE + (m >> 3) * 16 + (m & 3) * 4
        A(f"""
        s_mul_i32 s3, {sB}, {STAGE_CH}
        s_lshl_b32 {sb}, {sH}, 8
        s_add_u32 s3, s3, {sb}
        s_add_u32 {self.sStM}, s3, {L_STAGE - 0x8000}
        s_add_u32 s3, s3, {L_STAGE}
        v_lshl_add_u32 {t2}, {vG}, 4, s3
        v_xor_b32 {t0}, 3, {vI}
        v_bfe_u32 {t1}, {t0}, 1, 1
        v_add_u32 {t1}, {t0}, {t1}
        v_lshrrev_b32 {t1}, 1, {t1}
        s_movk_i32 s3, {ROWB}
        v_mad_u32_u24 {self.vR}, {vI}, s3, {t2}
        v_mad_u32_u24 {self.vS0}, {t0}, s3, {t2}
        v_mad_u32_u24 {self.vS1r}, {t1}, s3, {t2}
        s_mul_i32 s3, {sW}, {PHALF}
        s_add_u32 s3, s3, {L_P}
        v_xor_b32 {t3}, 3, {vG}
        v_and_b32 {t0}, 1, {t3}
        v_mul_u32_u24 {t0}, {PPLANE}, {t0}
        v_lshrrev_b32 {t3}, 1, {t3}
        v_lshl_add_u32 {t3}, {t3}, 4, {t0}
        v_add_u32 {t3}, s3, {t3}
        v_lshlrev_b32 {t0}, 5, {vI}
        v_sub_u32 {t0}, {t3}, {t0}
        v_add_u32 {self.vK1}, {pa(528 - 256)}, {t0}
        v_lshrrev_b32 {t1}, 1, {vI}
        v_lshrrev_b32 {t2}, 2, {vI}
        v_add_u32 {t2}, 2, {t2}
        v_min_u32 {t1}, {t1}, {t2}
        v_add3_u32 {t1}, {t1}, {vI}, {FAR // 16 + 1}
        v_lshl_add_u32 {self.vK3}, {t1}, 5, {t3}
        v_cmp_gt_u32 vcc, 8, {vI}
        v_mov_b32 {t0}, {pa(28)}
        v_mov_b32 {t1}, {pa(NX + 24)}
        v_cndmask_b32 {t0}, {t0}, {t1}, vcc
        v_add_u32 {self.vKs}, s3, {t0}
        s_lshl_b32 s3, {sB}, 2
        v_mov_b32 {t2}, s3
        """)
        hp = self.o["poison_at"] in ("h", "h1")
        self.hw = self.o["h_warm"]
        if hp or self.hw:
            self.helper_prep(A, hp)
        if self.o["h_p3"]:
            self.hM1, self.hta = V.get(4), V.get()
            for k in range(4):
                A(f"v_mov_b32 {self.hM1[k]}, -1")
            A(f"""
            v_mov_b32 {t0}, 152
            s_mul_i32 s3, {sL}, 2432
            s_add_u32 s3, s3, {WS_S3}
            v_lshl_add_u32 {self.hta}, v0, 4, s3
            v_cmp_gt_u32 s[10:11], {t0}, v0
            """)
        self.stamp("consts")
        V.put(Z, vP, t0, t1, t3)
        self.ksl = [f"v_readfirstlane_b32 {self.sDt}, {self.vDt}"] + self.ksetup_lines()
        if self.o["b0"]:
            A.barrier()
            self.weave(self.o["hb1"])
        else:
            self.weave(self.o["hb1"])
            self.stamp("stat")
            A.barrier()
        self.stamp("b1")
        if self.o["poison_at"] == "h1":
            self.helper_mark(A)
        self.helper_hook("b1")
        if hp:
            A(f"s_load_dword {self.sE}, s[30:31], {WS_EPOCH}")
        self.weave(1000)
        A(f"ds_write_b32 {t2}, {self.vG16} offset:{L_G}")
        for _ in self.kgen_steps():
            pass
        self.stamp("kmf")
        self.helper_hook("b3")
        D, E = V.get(12), V.get(12)
        C = [V.get(4) for _ in range(4)]
        for k in range(3):
            off = L_P + (k & 1) * PPLANE + (k >> 1) * 16
            A(f"ds_read_b128 {D[4 * k:4 * k + 4]}, {self.vShiftR} offset:{off}")
            A(f"ds_read_b128 {E[4 * k:4 * k + 4]}, {self.vShiftR} offset:{off + PHALF}")
        for k in range(6):
            A(f"v_pk_add_f32 {D[2 * k:2 * k + 2]}, {D[2 * k:2 * k + 2]}, {E[2 * k:2 * k + 2]}")
        for c in range(4):
            for k in range(4):
                A(f"v_cvt_pk_f16_f32 {C[c][k]}, {D[c + 2 * k]}, {D[c + 2 * k + 1]}")
            if c % 2:
                for cc in (c - 1, c):
                    A(f"ds_write_b128 {self.vShift}, {C[cc]} offset:{L_K + cc * KCOPY}")
        self.stamp("shift")
        A.barrier()
        if self.o["hprio"]:
            A("s_setprio 0")
        self.helper_hook("b5")
        if self.o["poison_at"] == "h":
            self.helper_mark(A)
            self.helper_flag(A)
            A("s_barrier")
        if self.o["h_p3"]:
            A.wait(vm=0)
        if self.o["early_z"]:
            ZE, vz, vo, tmp = V.get(4), V.get(), V.get(), V.get()
            self.z_addr(A, self.o["early_z"], vz, vo, tmp)
            A(f"s_barrier\nds_read_b128 {ZE}, {vz} offset:{L_Z}\nglobal_store_dwordx4 {vo}, {ZE}, s[30:31] sc1")
        if self.o["h_z"]:
            ZT, vZr, vS2o, vS2o2 = V.get(8), V.get(), V.get(), V.get()
            A(f"""
            s_lshl_b32 s3, {sL}, 13
            s_add_u32 s3, s3, {WS_S2}
            v_lshl_add_u32 {vS2o}, v0, 4, s3
            v_add_u32 {vS2o2}, 0x1000, {vS2o}
            v_bfe_u32 {vZr}, v0, 3, 3
            v_xor_b32 {vZr}, v0, {vZr}
            v_lshlrev_b32 {vZr}, 4, {vZr}
            s_barrier
            ds_read_b128 {ZT[0:4]}, {vZr} offset:{L_Z}
            ds_read_b128 {ZT[4:8]}, {vZr} offset:{L_Z + 4096}
            global_store_dwordx4 {vS2o}, {ZT[0:4]}, s[30:31] sc1
            global_store_dwordx4 {vS2o2}, {ZT[4:8]}, s[30:31] sc1
            """)
        if self.o["h_dma"]:
            self.helper_dma(A)
        if self.o["stamps"] and self.o["hst"]:
            self.stamp("end")
            A("s_waitcnt vmcnt(0) lgkmcnt(0)")
            self.dump_stamps(A)
        A("s_endpgm")
        self.is_h = False

    def helper_prep(self, A, hp):
        V, sL, sW, sb, vL = self.V, self.sL, self.sW, self.sb, self.vL
        self.vP2, self.M1, self.vFo = V.get(), V.get(4), V.get()
        self.vHr = self.vS1i = vL
        bg = self.background()
        V.put(self.vS2o, self.vS2o2, self.vS2i, self.vS2i2, self.vZr)
        if hp:
            A(f"""
            s_lshl_b32 {self.sa}, {sL}, 13
            s_lshl_b32 s3, {sW}, 11
            s_add_u32 s3, s3, {self.sa}
            s_add_u32 s3, s3, {WS_S2}
            v_lshl_add_u32 {self.vP2}, {vL}, 4, s3
            s_lshl_b32 s3, {sW}, 12
            s_lshl_b32 {sb}, {sL}, 4
            s_add_u32 s3, s3, {sb}
            s_add_u32 s3, s3, {WS_FLG}
            v_mov_b32 {self.vFo}, s3
            """)
            for k in range(4):
                A(f"v_mov_b32 {self.M1[k]}, -1")
            for ln in self.p3_lines[:-1]:
                A(ln)
        n = self.nwarm - (self.o["dma_at"] != "none")
        self.h_warm_line = bg[n:self.nwarm]
        if self.hw:
            for ln in bg[:n]:
                A(ln)

    def helper_mark(self, A):
        self.poison2()
        A("\n".join(self.p3_lines[-1]), tag="poison")

    def helper_flag(self, A):
        A(f"s_add_u32 {self.sE}, {self.sE}, 1\nv_mov_b32 {self.M1[0]}, {self.sE}")
        A.wait_tag("poison")
        A(f"s_mov_b64 exec, 1\nglobal_store_dword {self.vFo}, {self.M1[0]}, s[30:31] sc1\ns_mov_b64 exec, -1")

    def helper_hook(self, where):
        if where == self.o["h_p3"]:
            self.A(f"s_mov_b64 exec, s[10:11]\nglobal_store_dwordx4 {self.hta}, {self.hM1}, s[30:31] sc1\ns_mov_b64 exec, -1")
        if self.o["poison_at"] == "h1" and where == self.o["flag_at"]:
            self.helper_flag(self.A)
        if where == self.hw:
            for ln in self.h_warm_line:
                self.A(ln)

    def helper_dma(self, A):
        S, sL, sb = self.S, self.sL, self.sb
        self.sBlk, self.sRole, self.sUp, self.sWb = S.get(), S.get(), S.get(), S.get()
        A(f"""
        s_lshr_b32 s3, {sL}, 5
        s_and_b32 {sb}, {sL}, 31
        s_cmp_ge_u32 {sb}, {self.o["r1_at"]}
        s_cbranch_scc1 L_h_role1
        s_cmp_ge_u32 {sb}, {14 if self.o["h_roles"] == "both" else 0}
        s_cbranch_scc1 L_h_role2
        s_cmp_ge_u32 {sb}, 7
        s_cselect_b32 {self.sUp}, 1, 0
        s_cselect_b32 s6, 7, 0
        s_sub_u32 s6, {sb}, s6
        s_mul_i32 {self.sBlk}, s3, 7
        s_add_u32 {self.sBlk}, {self.sBlk}, s6
        """)
        for role in (0, 1):
            if role:
                A.label("L_h_role1")
                A(f"s_lshl_b32 s3, s3, 2\ns_sub_u32 s6, {sb}, {self.o['r1_at']}\ns_add_u32 {self.sBlk}, s3, s6")
            plan = self.dma_plan(A, role)
            self.V.put(self.vWa)
            if self.o["dma_at"] == "none":
                plan = []
            cuts = self.o["h_dma"][role]
            if self.o["h_conv"]:
                A("s_waitcnt vmcnt(0)")
                n = self.o["h_conv"] if role else len(plan)
                for a, b in plan[:n]:
                    A(a)
                    A(b)
                plan = plan[n:]
            nb = 4 if self.o["b8b"] else 3
            for k in range(nb):
                if k or not self.o["h_z"]:
                    A("s_barrier")
                n = (cuts[k] if k < 2 else 0) if k < nb - 1 else len(plan)
                for a, b in plan[:n]:
                    A(a)
                    A(b)
                plan = plan[n:]
            if role == 1 and self.o["b9b"]:
                A("s_barrier")
            A("s_waitcnt vmcnt(0)")
            A.vm = []
            A("s_barrier")
            A("s_branch L_h_done")
        A.label("L_h_role2")
        if self.o["h_z"] or self.o["early_z"]:
            A("s_barrier")
        A.label("L_h_done")

    def dma_plan(self, A, role):
        plan = super().dma_plan(A, role)
        mine = self.o["h_dma"] and (role == 1 or self.o["h_roles"] == "both")
        return [] if mine and not self.is_h else plan

    def maybe_s1(self, where):
        if where == self.o["s1_go"]:
            self.A("s_barrier")
        self.helper_hook(where)

    def dump_stamps(self, A):
        if self.is_h == bool(self.o["hst"]):
            super().dump_stamps(A)

    def prologue_m(self):
        A, V, S = self.A, self.V, self.S
        sL, sW, sa, vL = self.sL, self.sW, self.sa, self.vL
        t1 = V.get()
        self.vTau, self.vHr, self.vRow = V.get(), V.get(), V.get()
        self.XB, self.XA = V.get(8), V.get(8)
        if self.o["prio"]:
            A(f"s_setprio {self.o['prio']}")
        A(f"""
        v_lshrrev_b32 {self.vTau}, 5, v0
        v_and_b32 {t1}, 31, v0
        v_lshlrev_b32 {t1}, 4, {t1}
        v_lshl_add_u32 {self.vHr}, {self.vTau}, 10, {t1}
        """)
        if self.o["rmap"]:
            self.sR = S.get()
            A(f"""
            s_and_b32 s3, {sL}, 28
            s_lshr_b32 s3, {sum(int(c) << (4 * k) for k, c in enumerate(self.o["rperm"][1:]))}, s3
            s_and_b32 s3, s3, 7
            s_lshl_b32 s3, s3, 5
            s_lshr_b32 {self.sR}, {sL}, 5
            s_lshl_b32 {self.sR}, {self.sR}, 2
            s_add_u32 {self.sR}, {self.sR}, s3
            s_and_b32 s3, {sL}, 3
            s_add_u32 {self.sR}, {self.sR}, s3
            """)
        A(f"""
        s_lshl_b32 {sa}, {self.rowid()}, 13
        v_add_u32 {self.vRow}, {sa}, {self.vHr}
        """)
        A(f"global_load_dwordx4 {self.XB[0:4]}, {self.vRow}, s[4:5]")
        A(f"global_load_dwordx4 {self.XB[4:8]}, {self.vRow}, s[4:5] offset:512")
        if self.o["karg2"]:
            self.rest_args(A)
        if self.o["b0"]:
            self.vE = V.get()
            A(f"v_mov_b32 {self.vE}, 0\nglobal_load_dword {self.vE}, {self.vE}, s[30:31] offset:{WS_EPOCH}")
        else:
            A(f"s_load_dword {self.sE}, s[30:31], {WS_EPOCH}")
        self.stamp("karg")
        A.raw(";@cut")
        self.vS1o, self.vP2, self.vMask, self.vHw2, self.M1 = V.get(), V.get(), V.get(), V.get(), V.get(4)
        A(f"""
        s_lshl_b32 s3, {sW}, 11
        s_add_u32 s3, s3, {sa}
        s_add_u32 s3, s3, {WS_S1}
        v_lshl_add_u32 {self.vS1o}, {vL}, 4, s3
        s_mov_b32 s3, {L_H}
        v_lshl_add_u32 {self.vHw2}, v0, 2, s3
        v_mov_b32 {self.vMask}, {0xFFFFFFFF ^ TAGMASK}
        s_mov_b32 {self.sOnes}, 0x3f803f80
        s_mov_b32 {self.sLo}, 0x3f80
        s_mov_b32 {self.sHi}, 0x3f800000
        v_and_b32 {self.vI}, 15, v0
        v_bfe_u32 {self.vG}, v0, 4, 2
        """)
        for k in range(4):
            A(f"v_mov_b32 {self.M1[k]}, -1")
        A(f"s_lshl_b32 s3, {sL}, 13\ns_add_u32 s3, s3, {WS_S2}")
        if self.o["rmap"]:
            self.vP2b = V.get()
            A(f"""
            s_lshl_b32 {self.sb}, {sW}, 8
            s_add_u32 s3, s3, {self.sb}
            v_lshl_add_u32 {t1}, {self.vI}, 4, s3
            v_lshl_add_u32 {self.vP2}, {self.vG}, 10, {t1}
            v_add_u32 {self.vP2b}, 0x1000, {self.vP2}
            """)
        else:
            A(f"s_lshl_b32 {self.sb}, {sW}, 11\ns_add_u32 s3, s3, {self.sb}\nv_lshl_add_u32 {self.vP2}, {vL}, 4, s3")
        V.put(t1)
        if not self.o["cc_late"]:
            self.conv_consts()
        if self.o["ch_early"]:
            self.chores()
        if self.o["poison_at"] == "consts":
            self.poison2()
        if self.o["b0"]:
            t = V.get()
            A(f"v_lshlrev_b32 {t}, 2, {self.vTau}\nds_write_b32 {t}, {self.M1[0]} offset:{L_ST + 32}")
            A("s_waitcnt lgkmcnt(0)")
            A.lg, A.sm = [], []
            A("s_barrier")
            V.put(t)
        self.stamp("consts")
        self.ksl = []

    def poison2(self):
        if not self.o["rmap"] or self.is_h:
            return super().poison2()
        A = self.A
        A(f"global_store_dwordx4 {self.vP2}, {self.M1}, s[30:31] sc1", tag="poison")
        A(f"global_store_dwordx4 {self.vP2b}, {self.M1}, s[30:31] sc1", tag="poison")
        self.V.put(self.vP2, self.vP2b)

    def z_addr(self, A, tiles, vz, vo, tmp):
        lut = sum(j << (4 * k) for k, j in enumerate(tiles))
        A(f"""
        s_lshl_b32 s3, {self.sW}, 2
        s_lshr_b32 s3, {lut}, s3
        s_and_b32 s3, s3, 7
        s_lshl_b32 s3, s3, 10
        v_lshrrev_b32 {tmp}, 3, {self.vL}
        v_xor_b32 {tmp}, {self.vL}, {tmp}
        v_lshl_add_u32 {vz}, {tmp}, 4, s3
        s_lshl_b32 {self.sb}, {self.sL}, 13
        s_add_u32 s3, s3, {self.sb}
        s_add_u32 s3, s3, {WS_S2}
        v_lshl_add_u32 {vo}, {self.vL}, 4, s3
        """)

    def conv_consts(self):
        A, V = self.A, self.V
        vI, vG, sB, sL, sb = self.vI, self.vG, self.sB, self.sL, self.sb
        t0, t1, t2, t3 = V.get(), V.get(), V.get(), V.get()
        self.BAND = {key: V.get(4) for key in BANDS}
        SEL = V.get(6)
        A(f"""
        v_lshlrev_b32 {t0}, 3, {vG}
        v_sub_u32 {t0}, {t0}, {vI}
        v_add_u32 {t0}, 20, {t0}
        v_mul_u32_u24 {t0}, 0x10001, {t0}
        v_mov_b32 {t3}, 0x70007
        s_mov_b32 {sb}, 0xc000c
        """)
        for k in range(6):
            c0, c1 = 32 - 2 * k, 31 - 2 * k
            A(f"""
            s_mov_b32 s3, {c0 | c1 << 16}
            v_pk_sub_i16 {t1}, {t0}, s3
            v_pk_sub_i16 {t2}, s3, {t0}
            v_pk_max_i16 {t1}, {t1}, {t2}
            v_pk_min_i16 {t1}, {t1}, {t3}
            v_lshl_or_b32 {SEL[k]}, {t1}, 8, {sb}
            """)
        for (delta, h), B in self.BAND.items():
            lut = sum(0x3C << (8 * i) for i in range(min(h + 1, 4)))
            A(f"s_mov_b32 s3, {lut}")
            for d in range(4):
                A(f"v_perm_b32 {B[d]}, {60 if h == 4 else 0}, s3, {SEL[d + (0 if delta == 12 else 2)]}")
        self.vUf, self.vZw, self.vUw, self.vN, self.vF = V.get(), V.get(), V.get(), V.get(), V.get()
        self.vS1i, self.vS1i2 = V.get(), V.get()
        A(f"""
        s_mul_i32 s3, {sB}, {UCH}
        s_add_u32 {sb}, s3, {L_U}
        v_lshl_add_u32 {t0}, {vI}, 5, {sb}
        v_lshl_add_u32 {self.vUf}, {vG}, 4, {t0}
        s_mul_i32 s3, {sB}, {KCH}
        v_sub_u32 {t0}, 15, {vI}
        v_and_b32 {t1}, 3, {t0}
        v_and_b32 {t0}, 12, {t0}
        v_mul_u32_u24 {t1}, {KCOPY}, {t1}
        v_lshl_add_u32 {t0}, {t0}, 1, {t1}
        v_add_u32 {t0}, s3, {t0}
        v_lshl_add_u32 {self.vN}, {vG}, 4, {t0}
        v_lshl_add_u32 {self.vF}, {vG}, 3, {t0}
        v_and_b32 {t0}, 2, {vG}
        v_lshl_add_u32 {t0}, {vI}, 2, {t0}
        v_add_u32 {t0}, {sB}, {t0}
        v_lshrrev_b32 {t1}, 1, {vI}
        v_xor_b32 {t0}, {t0}, {t1}
        v_and_b32 {t1}, 1, {vG}
        v_lshlrev_b32 {t1}, 3, {t1}
        v_lshl_add_u32 {self.vZw}, {t0}, 4, {t1}
        v_and_b32 {t0}, 1, v0
        v_lshrrev_b32 {t1}, 1, v0
        v_mul_u32_u24 {t2}, {UCH}, {t0}
        v_lshl_add_u32 {self.vUw}, {t1}, 4, {t2}
        v_lshlrev_b32 {t0}, 4, {t0}
        v_lshl_add_u32 {t2}, {t1}, 13, {t0}
        s_lshl_b32 s3, {sL}, 5
        s_add_u32 s3, s3, {WS_S1}
        v_add_u32 {self.vS1i}, s3, {t2}
        v_add_u32 {self.vS1i2}, 0x100000, {self.vS1i}
        """)
        V.put(t0, t1, t2, t3, SEL)

    def ln1(self):
        if not self.o["b0"]:
            return super().ln1()
        A, V = self.A, self.V
        s1, s2, nm, rs, ad = V.get(), V.get(), V.get(), V.get(), V.get()
        A(f"v_lshlrev_b32 {ad}, 2, {self.vTau}")
        for k in range(8):
            if k % 4 == 0:
                A(f"ds_write_b128 {self.vHr}, {self.XB[k:k + 4]} offset:{L_H + 128 * k}")
            A(f"v_dot2_f32_bf16 {s1}, {self.XB[k]}, {self.sOnes}, {s1 if k else 0}")
            A(f"v_dot2_f32_bf16 {s2}, {self.XB[k]}, {self.XB[k]}, {s2 if k else 0}")
            if k == 0:
                self.stamp("x")
                if self.o["poison_at"] == "x":
                    self.poison2()
        self.allreduce(A, "v_add_f32", [s1, s2], 32)
        self.ln_stats(A, s1, s2, nm, rs)
        if self.o["poison_at"] == "stat":
            self.poison2()
        self.stamp("stat")
        A("s_mov_b64 exec, 1\ns_bitset1_b64 exec, 32")
        A(f"v_mul_f32 {rs}, 0x3d800000, {rs}")
        A(f"ds_write_b32 {ad}, {nm} offset:{L_ST}\nds_write_b32 {ad}, {rs} offset:{L_ST + 32}")
        A("s_mov_b64 exec, -1")
        A(f"v_mov_b32 {ad}, 0\ns_mov_b32 s3, 0")
        V.put(self.XB)
        NM, RS, XA = V.get(8), V.get(8), self.XA
        A.flush()
        A.label("L_stat")
        for k in range(2):
            A(f"ds_read_b128 {RS[4 * k:4 * k + 4]}, {ad} offset:{L_ST + 32 + 16 * k}")
        for q in range(2):
            A(f"ds_read2st64_b32 {XA[2 * q:2 * q + 2]}, {self.vHw2} offset0:{8 * q} offset1:{8 * q + 4}")
        A(f"ds_read_b128 {NM[0:4]}, {ad} offset:{L_ST}")
        for q in range(2, 4):
            A(f"ds_read2st64_b32 {XA[2 * q:2 * q + 2]}, {self.vHw2} offset0:{8 * q} offset1:{8 * q + 4}")
        A(f"ds_read_b128 {NM[4:8]}, {ad} offset:{L_ST + 16}")
        A(f"s_add_u32 s3, s3, 1\ns_cmp_lt_u32 s3, {SPIN_MAX}\ns_cselect_b64 s[18:19], -1, 0")
        self.poison_check([RS[k] for k in range(8)], s1)(A)
        A("s_and_b64 vcc, vcc, s[18:19]")
        A("s_cbranch_vccnz L_stat")
        self.stamp("b1")
        A(f"v_readfirstlane_b32 {self.sE}, {self.vE}")
        V.put(self.vE)
        if self.o["poison_at"] == "b1":
            self.poison2()
        self.make_tags(A)
        T = V.get(8)
        self.G = []
        for e in range(2):
            G = V.get(4)
            for j in range(8):
                A(f"v_dot2_f32_bf16 {T[j]}, {XA[j]}, {self.sHi if e else self.sLo}, {NM[j]}")
            for j in range(8):
                self.rnd(A, T[j], T[j])
            for q in range(4):
                A(f"v_pk_mul_f32 {T[2 * q:2 * q + 2]}, {T[2 * q:2 * q + 2]}, {RS[2 * q:2 * q + 2]}")
            for j in range(8):
                self.rnd(A, T[j], T[j])
            for q in range(4):
                A(f"v_cvt_pk_f16_f32 {G[q]}, {T[2 * q]}, {T[2 * q + 1]}")
            for q in range(4):
                A(f"v_and_or_b32 {G[q]}, {G[q]}, {self.vMask}, {self.tags[q]}")
            self.G.append(G)
            if e == 0:
                self.stamp("norm")
            if self.o["st_late"] and e == 0:
                continue
            A.wait_tag("poison")
            for ee in ((0, 1) if self.o["st_late"] else (e,)):
                A(f"global_store_dwordx4 {self.vS1o}, {self.G[ee]}, s[30:31] offset:{1024 * ee} sc1", tag="s1st")
        self.stamp("pub1")
        V.put(T, NM, RS, s1, s2, nm, rs, ad, self.vS1o)

    def chores(self):
        A, V = self.A, self.V
        bg = self.background()
        hmode = self.o["poison_at"] in ("h", "h1")
        self.late_mem = []
        vP3 = V.get()
        if not hmode and not self.o["h_p3"]:
            for item in self.p3_lines[:-1]:
                A(item)
            A(f"v_mov_b32 {vP3}, {self.bgtmp[2]}")
            self.late_mem.append(tuple(x.replace(f" {self.bgtmp[2]},", f" {vP3},") for x in self.p3_lines[-1]))
        n = self.nwarm - (self.o["dma_at"] != "none")
        mwarm = not self.o["h_warm"]
        self.warm_line = bg[n:self.nwarm] if mwarm else []
        keep = self.bgtmp[0]
        vW = V.get()
        if hmode:
            self.vFi = V.get()
            A(f"s_lshr_b32 s3, {self.sL}, 6\ns_lshl_b32 s3, s3, 12\ns_add_u32 s3, s3, {WS_FLG}\nv_lshl_add_u32 {self.vFi}, v0, 4, s3")
        if mwarm:
            for ln in bg[:n]:
                A(ln)
            A(f"v_mov_b32 {vW}, {keep}")
        self.warm_line = [ln.replace(f" {keep},", f" {vW},") for ln in self.warm_line]
        for ln in bg[self.nwarm:]:
            A(ln)
        V.put(*self.bgtmp[:3])
        self.late_free = [vP3, self.M1]
        if self.o["early_z"]:
            late = [j for j in range(8) if j not in self.o["early_z"]]
            self.z_addr(A, late, self.vZr, self.vS2o, self.vS2o2)
        self.bg, self.bgtmp = [], [vW]

    def after_publish(self):
        A, V = self.A, self.V
        if self.o["prio"]:
            A("s_setprio 0")
        V.put(self.XA)
        if self.o["cc_late"]:
            self.conv_consts()
        if not self.o["ch_early"]:
            self.chores()
        if self.o["poison_at"] in ("h", "h1"):
            V.put(self.vP2)
        for item in self.late_mem:
            A("\n".join(item), tag="poison3")
        self.WR = V.get(8)
        self.row_params()
        V.put(*self.late_free)
        self.UG = V.get(8)
        self.vG16 = V.get()
        A(f"s_lshl_b32 s3, {self.sB}, 2\nv_mov_b32 {self.vG16}, s3")
        if self.o["s1_go"] == "ack":
            A.wait_tag("s1st")
            self.s1_loads(A)
        elif self.o["s1_go"] != "b3":
            A("s_barrier")
            if self.o["s1_split"]:
                A(f"global_load_dwordx4 {self.UG[0:4]}, {self.vS1i}, s[30:31] sc1")
            else:
                self.s1_loads(A)
        self.stamp("rec")
        A.barrier()
        self.stamp("kmf")
        if self.o["mprio2"]:
            A(f"s_setprio {self.o['mprio2']}")
        if self.o["s1_go"] == "b3":
            self.s1_loads(A)
        elif self.o["s1_split"]:
            A(f"global_load_dwordx4 {self.UG[4:8]}, {self.vS1i2}, s[30:31] sc1")
        A(f"ds_read_b32 {self.vG16}, {self.vG16} offset:{L_G}")
        self.shift_regs = ()
        rd = {}
        for q in range(17):
            rd[f"@K{q}"] = [f"ds_read_b64 @K{q}.{2 * hf}, {self.vN} offset:{64 * (16 - q) + 8 * hf}" for hf in range(2)]
        rd["@KX"] = [f"ds_read_b64 @KX.{2 * hf}, {self.vN} offset:{2 * NX + 8 * hf}" for hf in range(2)]
        for k in range(2):
            for d in (2, 3, 4):
                rd[f"@B{k}{d}"] = [f"ds_read_b64 @B{k}{d}.{2 * hf}, {self.vF} offset:{2 * (V2[2 * k + hf] + 32 - 16 * (d - 2))}" for hf in range(2)]
        for d in (4, 5, 6, 7):
            rd[f"@C{d}"] = [f"ds_read_b64 @C{d}.{2 * hf}, {self.vF} offset:{2 * (V3[hf] + 48 - 16 * (d - 4))}" for hf in range(2)]
        self.frag_reads = rd

    def conv(self, A, tiles, dma):
        V, AC = self.V, self.AC
        PE, PD, NPRE, LAT = self.o["pe"], self.o["pd"], self.o["npre"], self.o["lat"]
        EY, EZ = V.get(4), V.get(2)
        qmax = {0: 7, 1: 15}
        b2 = sorted({j - d for j in tiles for d in (2, 3, 4) if j - d >= 0})
        b3 = sorted({j - d for j in tiles for d in (4, 5, 6, 7) if j - d >= 0})
        nlo = min(8 * j - qmax.get(j, 16) for j in tiles)
        nhi = 8 * max(tiles)
        near = []
        for fi, n in enumerate(range(nlo, nhi + 1)):
            for j in tiles:
                q = 8 * j - n
                if 0 <= q <= qmax.get(j, 16):
                    near.append((j, f"@K{q}", fi, q == 0))
        far, gfr, pcount = [], [], 0
        for b in sorted(set(b2) | set(b3)):
            ga, gb = len(gfr), len(gfr) + 1
            gfr += [256 * b - 16, 256 * b - 24]
            mains = []
            if b in b2:
                pa, pb = pcount, pcount + 1
                pcount += 2
                far += [("band", ga, (12, 1), pa, 0), ("band", ga, (8, 2), pa, 1), ("band", gb, (12, 1), pb, 0), ("band", gb, (8, 2), pb, 1)]
                mains += [("main", b + d, pa, f"@B0{d}") for d in (2, 3, 4) if b + d in tiles]
                mains += [("main", b + d, pb, f"@B1{d}") for d in (2, 3, 4) if b + d in tiles]
            if b in b3:
                pc = pcount
                pcount += 1
                far += [("band", ga, (8, 3), pc, 0), ("band", gb, (8, 4), pc, 1)]
                mains += [("main", b + d, pc, f"@C{d}") for d in (4, 5, 6, 7) if b + d in tiles]
            if b + 4 in tiles:
                far.append(("x", b + 4, ga))
            far += mains
        mf, fill = [], []
        started, done_at, first_use, pready = set(), {}, {}, {}
        wcount, ni, credit = 0, 0, 0.0
        farleft = list(far)
        span = self.o["far_span"][0 if 0 in tiles else 1]
        NP = self.o["np"]

        def acc_mf(j, a, b):
            mf.append(f"v_mfma_f32_16x16x32_f16 @acc{j}, {a}, {b}, {f'@acc{j}' if j in started else 0}")
            started.add(j)

        def far_ok(it):
            if it[0] == "main":
                return pready.get(it[2], 10 ** 6) <= len(mf)
            if it[0] == "band":
                return not any(o[0] == "main" and o[2] <= it[3] - NP for o in farleft)
            return True

        def blocked(k):
            return near[k][3] and any(o[0] in ("main", "x") and o[1] == near[k][0] for o in farleft)
        while ni < len(near) or farleft:
            t = len(mf)
            want_far = farleft and (credit >= 1.0 or ni >= len(near) or blocked(ni))
            pick = None
            if want_far:
                for it in farleft[:10]:
                    if far_ok(it) and not (it[0] == "band" and any(o[0] == "band" for o in farleft[:farleft.index(it)])):
                        pick = it
                        break
            if pick is None and ni < len(near) and not blocked(ni):
                j, a, fi, last = near[ni]
                ni += 1
                acc_mf(j, a, f"@F{fi}")
                if last:
                    done_at[j] = t
                credit += len(far) / span
                continue
            assert pick is not None, "conv schedule is stuck"
            farleft.remove(pick)
            credit -= 1.0
            if pick[0] == "band":
                _, g, key, p, hf = pick
                w = f"@W{wcount}"
                wcount += 1
                mf.append(f"v_mfma_f32_16x16x32_f16 {w}, @G{g}, {self.BAND[key]}, 0")
                for k in range(2):
                    fill.append([t + self.o["cvt0"], t + LAT - 1, f"v_cvt_pk_f16_f32 @P{p}:{2 * hf + k}, {w}:{2 * k}, {w}:{2 * k + 1}", None])
                if hf == 1:
                    pready[p] = t + LAT
            elif pick[0] == "x":
                acc_mf(pick[1], "@KX", f"@G{pick[2]}")
            else:
                acc_mf(pick[1], f"@P{pick[2]}", pick[3])
        nm = len(mf)
        tok = re.compile(r"@[A-Za-z]+\d*X?")
        for t, txt in enumerate(mf):
            for name in tok.findall(txt):
                first_use.setdefault(name, t)
        reads = []
        for name, t in first_use.items():
            if name[1] == "F":
                reads.append((t, f"ds_read_b128 {name}, {self.vUf} offset:{512 + 2 * (32 * (nlo + int(name[2:])) - 16)}"))
            elif name[1] == "G":
                reads.append((t, f"ds_read_b128 {name}, {self.vUf} offset:{512 + 2 * gfr[int(name[2:])]}"))
            elif name in self.frag_reads:
                reads += [(t, x) for x in self.frag_reads[name]]
        reads.sort(key=lambda r: r[0])
        pre = [txt for t, txt in reads if t <= NPRE]
        fill += [[max(t - PE, 0), max(t - PD, 0), txt, None] for t, txt in reads if t > NPRE]
        order_t = sorted(tiles, key=lambda j: done_at[j])
        for k, j in enumerate(order_t):
            t = done_at[j]
            nxt = done_at[order_t[k + 1]] if k + 1 < len(order_t) else nm + 100
            seq2 = [f"v_mul_f32 {EY[r]}, @acc{j}:{r}, {self.vG16}" for r in range(4)]
            seq2 += [f"v_cvt_pk_bf16_f32 {EZ[r]}, {EY[2 * r]}, {EY[2 * r + 1]}" for r in range(2)]
            seq2.append(f"ds_write_b64 {self.vZw}, {EZ} offset:{L_Z + 1024 * j}")
            for txt in seq2:
                fill.append([t + self.o["cvt0"], min(t + 12, nxt + 2), txt, f"e2_{j}"])
        for ln in self.late_warm:
            fill.append([self.o["warm_slot"], self.o["warm_slot"] + 2, ln, None])
        uses = {}
        for txt in mf + pre + [f[2] for f in fill]:
            for name in set(tok.findall(txt)):
                uses[name] = uses.get(name, 0) + 1
        vq, aq, held = [], [], []
        while True:
            try:
                vq.append(V.get(4))
            except RuntimeError:
                break
        while True:
            try:
                aq.append(AC.get(4, 4))
            except RuntimeError:
                break
        allv, alla = list(vq), list(aq)
        phys = {}
        low = [len(vq), len(aq)]

        def subst(txt, alloc):
            def rep(m):
                name, part = m.group(1), m.group(2) or ""
                if name not in phys:
                    if not alloc:
                        return "null"
                    vonly = name[1] in "WP" or name.startswith("@acc")
                    if not vonly and aq:
                        phys[name] = aq.pop(0)
                    else:
                        assert vq, f"out of registers at {name}"
                        phys[name] = vq.pop(0)
                    low[0], low[1] = min(low[0], len(vq)), min(low[1], len(aq))
                r = phys[name]
                if part.startswith("."):
                    return str(r[int(part[1:]):int(part[1:]) + 2])
                if part.startswith(":"):
                    return str(r[int(part[1:])])
                return str(r)
            return re.sub(r"(@[A-Za-z]+\d*X?)([.:]\d)?", rep, txt)

        def emit(txt):
            names = set(tok.findall(txt))
            A(subst(txt, True))
            for name in names:
                uses[name] -= 1
                if uses[name] == 0:
                    r = phys.pop(name)
                    (vq if r.kind == "v" else aq).append(r)
        for txt in pre:
            emit(txt)
        for i, f in enumerate(fill):
            f.append(i)
        left = list(fill)
        zsent = False
        A.prewait([subst(mf[0], False)])
        for t in range(nm):
            emit(mf[t])
            chosen = []
            for f in sorted([f for f in left if f[0] <= t], key=lambda f: (f[1], f[4])):
                if len(chosen) >= 2 and f[1] > t:
                    break
                if f[3] and any(g[3] == f[3] and g[4] < f[4] and g not in chosen for g in left):
                    continue
                mem = f[2].startswith(("ds_", "global_"))
                if mem and f[1] > t and any(g[3] == f[3] and f[3] for g in chosen):
                    continue
                if f[2].startswith("ds_read") and f[1] > t and len(aq) + len(vq) < 4 and tok.findall(f[2])[0] not in phys:
                    continue
                chosen.append(f)
            memf = [f for f in chosen if f[2].startswith(("ds_", "global_")) and not any(g[3] == f[3] and f[3] and g[4] < f[4] for g in chosen)]
            rest = [f for f in chosen if f not in memf]
            A.prewait([subst(f[2], False) for f in chosen] + ([subst(mf[t + 1], False)] if t + 1 < nm else []))
            for f in memf + rest:
                emit(f[2])
                left.remove(f)
            if self.o["early_z"] and not zsent and t >= self.o["z_slot"]:
                if not any(f[3] == f"e2_{j}" for f in left for j in self.o["early_z"]):
                    wr = [i for i, (regs, _) in enumerate(A.lg) if not regs]
                    if wr:
                        A.wait(lg=len(A.lg) - 1 - wr[-1])
                    A("s_barrier")
                    zsent = True
                    self.zslots = getattr(self, "zslots", []) + [t]
        for f in sorted(left, key=lambda f: (f[1], f[4])):
            emit(f[2])
        assert not phys
        self.nmfma = getattr(self, "nmfma", []) + [nm]
        self.bg_left = getattr(self, "bg_left", []) + [tuple(low)]
        V.put(EY, EZ, *allv)
        AC.put(*alla)

    def conv_all(self):
        A = self.A
        self.late_warm = []
        if self.o["warm_in"]:
            self.late_warm, self.warm_line = self.warm_line, []
        self.s1_consume(A, "")
        self.V.put(self.UG, self.vUw, self.vS1i, self.vS1i2)
        A(f"s_cmp_eq_u32 {self.sH}, 0\ns_cbranch_scc0 L_conv_b")
        B = A.fork()
        A.barrier()
        self.stamp("b5", A)
        self.conv(A, [0, 1, 2, 3, 4], [])
        A.wait(lg=0)
        A.flush()
        A("s_branch L_conv_done")
        if self.o["pages"]:
            B.raw(".p2align 12")
        B.label("L_conv_b")
        B.barrier()
        self.stamp("b5", B)
        self.conv(B, [5, 6, 7], [])
        B.wait(lg=0)
        B.flush()
        A.lines += B.lines
        A.count += B.count
        A.nops += B.nops
        A.label("L_conv_done")
        self.V.put(*self.BAND.values(), self.vUf, self.vZw, self.vG16, self.vN, self.vF, *self.bgtmp)
        self.stamp("conv", A)
        A("s_barrier")
        self.stamp("b6", A)
        self.ZT = ZT = self.V.get(8)
        if self.o["early_z"]:
            A(f"ds_read_b128 {ZT[0:4]}, {self.vZr} offset:{L_Z}")
            A(f"global_store_dwordx4 {self.vS2o}, {ZT[0:4]}, s[30:31] sc1", tag="s2st")
        elif not self.o["h_z"]:
            A(f"ds_read_b128 {ZT[0:4]}, {self.vZr} offset:{L_Z}\nds_read_b128 {ZT[4:8]}, {self.vZr} offset:{L_Z + 4096}")
            A(f"global_store_dwordx4 {self.vS2o}, {ZT[0:4]}, s[30:31] sc1", tag="s2st")
            A(f"global_store_dwordx4 {self.vS2o2}, {ZT[4:8]}, s[30:31] sc1", tag="s2st")
        if self.o["poison_at"] in ("h", "h1"):
            self.vFl = self.V.get()
            A(f"global_load_dword {self.vFl}, {self.vFi}, s[30:31] sc1")
            self.o["poison_at"] = "pub"
        self.stamp("st2", A)
        self.V.put(self.vZr, self.vS2o, self.vS2o2)
        self.XA = XA = self.V.get(8)
        for q in range(4):
            A(f"ds_read2st64_b32 {XA[2 * q:2 * q + 2]}, {self.vHw2} offset0:{8 * q} offset1:{8 * q + 4}")

    def resolve(self, A, sfx, between=None):
        if not self.o["s3_full"] or sfx == "r2":
            return super().resolve(A, sfx, between)
        t0, t1, t2 = self.t
        T, kin = self.T, self.kin
        A(f"s_lshl_b32 s3, {self.sW}, 10\nv_subrev_u32 {t1}, s3, {self.vS3i}")

        def s3_loads(C):
            for k in range(4):
                C(f"global_load_dword {T[k]}, {t1}, s[30:31] offset:{1024 * k} sc1")

        def check(C):
            C(f"v_max3_u32 {kin}, {T[0]}, {T[1]}, {T[2]}\nv_max_u32 {kin}, {kin}, {T[3]}\nv_cmp_eq_u32 vcc, -1, {kin}")
        s3_loads(A)
        if between:
            between()
        self.poll(A, "s3" + sfx, s3_loads, check)
        self.stamp("s3p", A)
        self.allreduce(A, "v_max_u32", [kin], 64)
        self.stamp("s3w", A)
        A(f"v_readfirstlane_b32 {self.sK}, {kin}")
        A(f"s_and_b32 {self.sT}, {self.sK}, 0x7ff\ns_sub_u32 {self.sT}, 2047, {self.sT}")
        self.stamp("s3", A)
        A(f"s_lshr_b32 s3, {self.sT}, 3\ns_lshl_b32 s3, s3, 11\ns_add_u32 s3, s3, {WS_ROWS}")
        self.late_barrier = True

    def build(self):
        A = self.A
        self.entry()
        H = A.fork()
        H.label("L_helper")
        vfree, afree, sfree = set(self.V.free), set(self.AC.free), set(self.S.free)
        self.helper(H)
        self.A = A
        self.V.free, self.AC.free, self.S.free = set(vfree), set(afree), set(sfree)
        self.prologue_m()
        self.ln1()
        self.after_publish()
        self.sWb, self.sC, self.sK, self.sT = self.S.get(), self.S.get(2), self.S.get(), self.S.get()
        self.conv_all()
        self.phase_c()
        self.kin = self.V.get()
        A(f"s_cmp_eq_u32 {self.sRole}, 1\ns_cbranch_scc1 L_role1")
        B = A.fork()
        B.label("L_role1")
        A(f"s_cmp_eq_u32 {self.sRole}, 2\ns_cbranch_scc1 L_role2")
        C = A.fork()
        C.label("L_role2")
        vfree, afree = set(self.V.free), set(self.AC.free)
        self.tail0(A)
        self.V.free, self.AC.free = set(vfree), set(afree)
        self.tail1(B)
        self.V.free, self.AC.free = set(vfree), set(afree)
        self.tail2(C)
        cut = A.lines.index(";@cut")
        if self.o["h_first"]:
            body = "\n".join(A.lines[:cut]) + "\n    s_branch L_main\n" + H.text() + "L_main:\n" + "\n".join(A.lines[cut + 1:]) + "\n"
        else:
            hcut = H.lines.index(";@cut")
            body = "\n".join(A.lines[:cut]) + "\n    s_branch L_main\n" + "\n".join(H.lines[:hcut]) + "\n    s_branch L_helper2\nL_main:\n"
            body += "\n".join(A.lines[cut + 1:]) + "\n"
            H.lines = ["L_helper2:"] + H.lines[hcut + 1:]
        if self.o["pages"]:
            body += C.text() + ".p2align 12\n" + B.text() + "".join(c.text() for c in self.cold) + ".p2align 12\n" + H.text()
        else:
            body += B.text() + C.text() + ("" if self.o["h_first"] else H.text()) + "".join(c.text() for c in self.cold)
        body = body.replace(";@cut\n", "")
        astat = None
        if self.o["align"]:
            import align
            body, astat = align.align(body, self.o["align"])
        head = open(f"cdna_kernels/{NAME}.s.ref").read().split("; Override launch geometry")[0]
        self.stats = dict(instr=A.count + B.count + C.count + H.count, nops=A.nops + B.nops + H.nops, vgpr=self.V.top + 1,
                          agpr=self.AC.top + 1, mfma=self.nmfma, spare=self.bg_left, zslots=getattr(self, 'zslots', None), align=astat)
        return head + f"""; One launch of 256 co-resident workgroups (one per CU, 8 waves) that exchange data through d_ws.
; Workgroup L owns tokens 8L..8L+7 (row phases) and two channels (convolution).
;   main waves 0-3:   LN(x) -> u hand-off -> causal convolution on the matrix cores -> y hand-off
;                     -> h, LN(h), router key, output rows -> key all-gather -> FFN of the chosen token
;   helper waves 4-7: S4D kernel K from its 128 modes (factored as a matrix product), later the FFN weight slabs
; The reference rounds the positions to bf16, so K is piecewise constant beyond lag 256; lags >= 515 are
; applied to window sums of u at dilation 16, lags below as Toeplitz blocks.
; Hand-offs use write-through stores and cache-bypassing loads. u carries tag bits taken from an epoch word in
; d_ws; the later slots are first filled with all-ones by this launch and polled until overwritten.
; @launch grid=(256,1,1) block=(512,1,1) lds={LDS_BYTES}
.amdgcn_target "amdgcn-amd-amdhsa--gfx950"
.text
.globl {NAME}_kernel
.p2align 8
.type {NAME}_kernel,@function
{NAME}_kernel:
{body}L_end:
    s_endpgm
L_all_end:
.section .rodata,"a"
.p2align 6
.amdhsa_kernel {NAME}_kernel
  .amdhsa_next_free_vgpr 256
  .amdhsa_next_free_sgpr 102
  .amdhsa_accum_offset {VMAX}
  .amdhsa_group_segment_fixed_size 0
  .amdhsa_kernarg_size 120
  .amdhsa_user_sgpr_count 2
  .amdhsa_user_sgpr_kernarg_segment_ptr 1
  .amdhsa_system_sgpr_workgroup_id_x 1
  .amdhsa_float_denorm_mode_32 3
.end_amdhsa_kernel
"""


EXTRA.update(np=4, h_first=False, rmap=False, rperm="p01234567", early_z=None, z_slot=0, touch=0, pages=True, pad="", h_p3=False, ch_early=False, cc_late=False, karg2=False, h_z=False, s3_full=True, late_unpack=True, r0_ackout=True, r2_mode=2, align=0, mprio2=0, h_order="pw", s1_split=False, warm_in=True, warm_slot=20, h_dma="0_4_0_4", b8b="hn", b9b=True, h_roles="both", b0=False, h_warm=None, h_conv=0, flag_at="far", hprio=0, hb1=0, s1_go="rec2", poison_at="b1", st_late=True)


def generate(path, **opt):
    g = Gen(**opt)
    text = g.build()
    open(path, "w").write(text)
    return g.stats


if __name__ == "__main__":
    out = sys.argv[1] if len(sys.argv) > 1 else f"cdna_kernels/{NAME}.s"
    opts = {}
    for a in sys.argv[2:]:
        k, v = a.split("=")
        opts[k] = {"True": True, "False": False}.get(v, int(v) if v.isdigit() else v)
    print(generate(out, **opts))
```

```python
import sys
from asmdsl import Asm, Pool, R, Multi

NAME = "sequential_preLN__ssm_conv_s4d__moe_arch_mod__prompt"

WS_EPOCH = 0
WS_FLG = 0x4000
WS_S3 = 0x8000
WS_S4 = 0x10000
WS_ROWS = 0x20000
WS_S1 = 0x100000
WS_S2 = 0x380000
WS_STAMP = 0x600000

ROWB = 544
STAGE_CH = 57 * ROWB
L_K = 0
KCOPY = 2112
KCH = 4 * KCOPY
L_U = L_K + 2 * KCH
UCH = 4672
L_Z = 26368
L_H = L_Z + 8192
L_ST = L_H + 8192
L_KEY = L_ST + 64
L_KEY2 = L_KEY + 32
L_RED = L_KEY2 + 32
L_P = 43520
PPLANE = 2048 + 32
PHALF = 2 * PPLANE
L_STAGE = 60416
LDS_BYTES = L_STAGE + 2 * STAGE_CH
assert L_U + UCH + 4608 <= L_Z and L_RED + 512 <= L_P and L_P + 4 * PHALF <= L_STAGE and L_STAGE % 256 == 0

NX = 560
FAR = 608
V2 = [FAR + 48 * s for s in range(4)]
V3 = [FAR + 16 * 13 + 80 * s for s in range(2)]
TAGMASK = 0x40074007
LOG2E = 0x3FB8AA3B
INV2PI = 0x3E22F983
SPIN_MAX = 1 << 14

BANDS = ((12, 1), (8, 2), (8, 3), (8, 4))


def band_table():
    out = []
    for delta, h in BANDS:
        for lane in range(64):
            phi, g = lane & 15, lane >> 4
            bits = [0x3C00 if abs(8 * g + e - phi - delta) <= h else 0 for e in range(8)]
            out.append(".long " + ", ".join(hex(bits[2 * d] | bits[2 * d + 1] << 16) for d in range(4)))
    return "\n".join(out)


STAMP_SETS = {
    True: ["start", "karg", "x", "pub1", "rec", "kmf", "frag", "s1", "conv", "ack2", "s2", "pub3", "ack3", "s3", "row", "g1", "g2", "end"],
    "z": ["start"] + [f"unused{i}" for i in range(16)] + ["end"],
    "a": ["start", "karg", "issued", "consts", "x", "stat", "b1", "norm", "pub1", "warm", "par", "ws", "recR", "rec", "b2", "kmf0", "kmf", "end"],
    "b": ["start", "kmf", "shift", "frag", "s1w", "s1", "b5", "conv", "b6", "st2", "dma", "ack2", "s2", "hw", "b7", "key", "pub3", "end"],
    "c": ["start", "pub3", "hn", "outc", "ack3", "s3p", "s3w", "s3", "row", "g1m", "g1b", "g1", "r1o", "r1t", "r1a", "g2m", "g2", "end"],
}
DEFAULTS = dict(stamps=False, s1_at="mfma", warm=True, out_pol="sc1", pf_code=True, pf_lines=8, dbg=False, poison_at="x", recb=4, lat=8, cvt0=4, nw=8, wv=(0, 0, 0, 0), r1_out="row", dma_s2=0, st_late=False, early_br=True, addtid=True, r1_at=28, b_first=False, dma0_ack2=False, p3_at="consts", cpre=0, bg_from=0, fin_pol="", r0_late=2, r2_late=True, dma_ack2=0, xmap=True, x_pol="", w_pol="", p_pol="sc1", mask_poll=True, warm_slot=30, kpre=1, par_first=True, band_tab=False, frag_in=True, dma_pre=0, r1_split=2, xa_glob=False, warm_at="s1w", xa_at="start", nf=7, ng=4, pe=16, pd=5, npre=3, clk=False, dma_at="conv", warm_mode="sect", far_span=(60, 48))


class Gen:
    def __init__(self, **opt):
        self.o = dict(DEFAULTS)
        self.o.update(opt)
        if isinstance(self.o["far_span"], str):
            self.o["far_span"] = tuple(int(x) for x in self.o["far_span"].split("_"))
        if isinstance(self.o["wv"], str):
            self.o["wv"] = tuple(int(x) for x in self.o["wv"].split("_"))
        self.A = Asm()
        self.V = Pool("v", 1, 255)
        self.AC = Pool("a", 0, 255)
        self.S = Pool("s", 32, 63)
        self.cold = []
        self.nstamp = 0

    def stamp(self, name, A=None):
        sel = STAMP_SETS.get(self.o["stamps"])
        if sel and name in sel:
            i = sel.index(name)
            (A or self.A)(f"{'s_memtime' if self.o.get('cyc') else 's_memrealtime'} s[{64 + 2 * i}:{65 + 2 * i}]")

    def dump_stamps(self, A):
        if not self.o["stamps"]:
            return
        if self.o["dbg"]:
            self.dump_debug(A)
            return
        a, d = self.V.get(), self.V.get(2)
        A("s_mov_b64 exec, 1")
        A.wait(lg=0)
        A(f"s_lshl_b32 s3, {self.sL}, 2\ns_add_u32 s3, s3, {self.sW}\ns_lshl_b32 s3, s3, 8\ns_add_u32 s3, s3, {WS_STAMP}")
        A(f"v_mov_b32 {a}, s3")
        for i in range(19):
            A(f"v_mov_b32 {d[0]}, s{64 + 2 * i}\nv_mov_b32 {d[1]}, s{65 + 2 * i}")
            A(f"global_store_dwordx2 {a}, {d}, s[30:31] offset:{8 * i}")
            A.wait(vm=0)
        self.V.put(a, d)

    def dump_debug(self, A):
        a, d = self.V.get(), self.V.get()
        n = getattr(self, "ndbg", 0)
        self.ndbg = n + 1
        A("s_mov_b64 exec, 1")
        A(f"s_cmp_eq_u32 {self.sL}, 255\ns_cbranch_scc0 L_dbg{n}\ns_cmp_eq_u32 {self.sW}, 0\ns_cbranch_scc0 L_dbg{n}")
        A("s_load_dwordx2 s[4:5], s[0:1], 104")
        A.wait(lg=0)
        A(f"v_mov_b32 {a}, 0")
        for i in range(1, 17):
            A(f"s_sub_u32 s3, s{64 + 2 * (i + 1)}, s64\nv_mov_b32 {d}, s3")
            A(f"global_store_dword {a}, {d}, s[4:5] offset:{4 * (i - 1)}")
        A.label(f"L_dbg{n}")
        self.V.put(a, d)

    def rnd(self, A, dst, src, neg=False):
        A(f"v_cvt_pk_bf16_f32 {dst}, 0, {'-' if neg else ''}{src}")

    def allreduce(self, A, op, regs, width, fill=()):
        fill = list(fill)

        def pad():
            for _ in range(max(0, 3 - len(regs))):
                if fill:
                    A(fill.pop(0))
        steps = ["quad_perm:[1,0,3,2]", "quad_perm:[2,3,0,1]", "row_half_mirror", "row_mirror"]
        for st in steps:
            pad()
            for r in regs:
                A(f"{op}_dpp {r}, {r}, {r} {st} row_mask:0xf bank_mask:0xf")
        tmp = [self.V.get() for _ in regs]
        for w, sw in ((32, "v_permlane16_swap_b32"), (64, "v_permlane32_swap_b32")):
            if width >= w:
                for r, t in zip(regs, tmp):
                    A(f"v_mov_b32 {t}, {r}")
                pad()
                for r, t in zip(regs, tmp):
                    A(f"{sw} {r}, {t}")
                for r, t in zip(regs, tmp):
                    A(f"{op} {r}, {r}, {t}")
        for f in fill:
            A(f)
        self.V.put(*tmp)

    def ln_stats(self, A, s1, s2, nm, rs):
        t = self.V.get()
        A(f"v_mul_f32 {s1}, 0x3b000000, {s1}")
        A(f"v_mul_f32 {s2}, 0x3b000000, {s2}")
        A(f"v_fma_f32 {t}, -{s1}, {s1}, {s2}")
        A(f"v_max_f32 {t}, 0, {t}")
        self.rnd(A, t, t)
        self.rnd(A, nm, s1, neg=True)
        A(f"v_add_f32 {t}, 0x3727c5ac, {t}")
        self.rnd(A, t, t)
        A(f"v_sqrt_f32 {t}, {t}")
        self.rnd(A, t, t)
        A(f"v_rcp_f32 {rs}, {t}")
        self.V.put(t)

    def poll(self, A, name, loads, check):
        check(A)
        A(f"s_cbranch_vccnz L_{name}_slow")
        A.label(f"L_{name}_ok")
        C = Asm()
        C.label(f"L_{name}_slow")
        C("s_mov_b32 s3, 0")
        C.label(f"L_{name}_loop")
        if self.o["mask_poll"]:
            C("s_mov_b64 exec, vcc")
        C("s_nop 1")
        loads(C)
        C(f"s_add_u32 s3, s3, 1\ns_cmp_ge_u32 s3, {SPIN_MAX}")
        C("s_cselect_b32 s18, 0, -1\ns_mov_b32 s19, s18")
        check(C)
        C.wait(vm=0)
        C("s_nop 1")
        C("s_and_b64 vcc, vcc, s[18:19]")
        C(f"s_cbranch_vccnz L_{name}_loop")
        C("s_mov_b64 exec, -1")
        C("s_nop 2")
        C(f"s_branch L_{name}_ok")
        self.cold.append(C)

    def prologue(self):
        A, V, S = self.A, self.V, self.S
        A("s_cmp_ge_u32 s2, 0x100\ns_cbranch_scc1 L_end")
        A("s_load_dwordx16 s[4:19], s[0:1], 0\ns_load_dwordx8 s[20:27], s[0:1], 64")
        A("s_load_dwordx2 s[28:29], s[0:1], 96\ns_load_dwordx2 s[30:31], s[0:1], 112")
        self.stamp("start")
        if self.o["clk"]:
            A("s_memtime s[100:101]")
        self.sL, self.sW, self.sTag, self.sE = S.get(), S.get(), S.get(), S.get()
        self.sOnes, self.sLo, self.sHi, self.sCh = S.get(), S.get(), S.get(), S.get()
        self.sB, self.sH, self.sa, self.sb = S.get(), S.get(), S.get(), S.get()
        sL, sW, sa, sb = self.sL, self.sW, self.sa, self.sb
        self.vL = V.get()
        self.vI = V.get()
        self.vG = V.get()
        t0, t1, t2, t3 = V.get(), V.get(), V.get(), V.get()
        self.vJunk = V.get(2)
        A(f"v_lshrrev_b32 {t0}, 6, v0\ns_lshr_b32 {sL}, s2, 3")
        if self.o["pf_code"]:
            nl = self.o["pf_lines"]
            self.sPc = S.get(2)
            A(f"s_getpc_b64 {self.sPc}")
            A.label("L_pc")
            A(f"""
            v_lshl_add_u32 {t2}, {sL}, 2, {t0}
            v_and_b32 {t2}, {256 // nl - 1}, {t2}
            v_and_b32 {t1}, {nl - 1}, v0
            v_lshl_add_u32 {t2}, {t2}, {nl.bit_length() - 1}, {t1}
            v_lshlrev_b32 {t2}, 7, {t2}
            v_min_u32 {t2}, L_all_end-L_pc-4, {t2}
            global_load_dword {self.vJunk[0]}, {t2}, {self.sPc}
            """)
        self.vTau, self.vHr, self.vRow, vP = V.get(), V.get(), V.get(), V.get()
        A(f"""
        v_readfirstlane_b32 {sW}, {t0}
        s_and_b32 s3, s2, 7
        s_lshl_b32 s3, s3, 5
        s_add_u32 {sL}, {sL}, s3
        {"" if self.o["xmap"] else f"s_mov_b32 {sL}, s2"}
        v_and_b32 {self.vL}, 63, v0
        v_lshrrev_b32 {self.vTau}, 5, v0
        v_and_b32 {t1}, 31, v0
        v_lshlrev_b32 {t1}, 4, {t1}
        v_lshl_add_u32 {self.vHr}, {self.vTau}, 10, {t1}
        s_lshl_b32 {sa}, {sL}, 13
        v_add_u32 {self.vRow}, {sa}, {self.vHr}
        s_lshr_b32 s3, {sL}, 6
        s_lshl_b32 {self.sCh}, s3, 7
        s_and_b32 s3, {sL}, 31
        s_lshl_b32 s3, s3, 2
        s_add_u32 {self.sCh}, {self.sCh}, s3
        s_bfe_u32 s3, {sL}, 0x10005
        s_add_u32 {self.sCh}, {self.sCh}, s3
        s_and_b32 s3, {sW}, 2
        s_add_u32 {self.sCh}, {self.sCh}, s3
        s_lshl_b32 s3, {self.sCh}, 8
        v_lshl_add_u32 {vP}, {self.vL}, 2, s3
        s_lshl_b32 {self.sE}, {self.sCh}, 1
        s_and_b32 {self.sE}, {self.sE}, -4
        v_and_b32 {self.vI}, 15, v0
        v_bfe_u32 {self.vG}, v0, 4, 2
        s_lshr_b32 {self.sB}, {sW}, 1
        s_and_b32 {self.sH}, {sW}, 1
        """)
        self.XB, self.XA, self.PAR, self.WR = V.get(8), V.get(8), V.get(4), V.get(8)
        self.sDt = S.get()
        lines = self.const_lines(t0, t1, t2, t3)
        npre = self.o["cpre"]
        for ln in lines[:npre]:
            A(ln)
        for k in range(4):
            A(f"global_load_dword {self.PAR[k]}, {vP}, s[{6 + 2 * k}:{7 + 2 * k}] {self.o['x_pol']}")
        A(f"global_load_dwordx4 {self.XB[0:4]}, {self.vRow}, s[4:5] {self.o['x_pol']}")
        A(f"global_load_dwordx4 {self.XB[4:8]}, {self.vRow}, s[4:5] offset:512 {self.o['x_pol']}")
        A(f"s_load_dword {self.sDt}, s[14:15], {self.sE}")
        A(f"s_load_dword {self.sE}, s[30:31], {WS_EPOCH}")
        self.stamp("karg")
        V.put(vP)
        for ln in lines[npre:]:
            A(ln)
        self.bg = self.background()
        if self.o["p3_at"] == "consts":
            for ln in self.p3_lines[:-1]:
                A(ln)
            self.p3_lines = self.p3_lines[-1:]
        if self.o["warm_at"] == "s1w":
            n = self.nwarm - (self.o["dma_at"] != "none")
            for ln in self.bg[:n]:
                A(ln)
            self.warm_line = self.bg[n:self.nwarm]
            self.bg = self.bg[self.nwarm:]
        if self.o["poison_at"] == "pub":
            self.vFo, self.vFi = V.get(), V.get()
            A(f"""
            s_lshl_b32 s3, {sW}, 12
            s_lshl_b32 {sb}, {sL}, 4
            s_add_u32 s3, s3, {sb}
            s_add_u32 s3, s3, {WS_FLG}
            v_mov_b32 {self.vFo}, s3
            s_lshr_b32 s3, {sL}, 6
            s_lshl_b32 s3, s3, 12
            s_add_u32 s3, s3, {WS_FLG}
            v_lshl_add_u32 {self.vFi}, v0, 4, s3
            """)
        if self.o["poison_at"] == "consts":
            self.poison2()
        self.stamp("consts")
        V.put(t0, t1, t2, t3, *self.ctmp)

    def poison2(self):
        A = self.A
        A(f"global_store_dwordx4 {self.vP2}, {self.M1}, s[30:31] sc1", tag="poison")
        A(f"global_store_dwordx4 {self.vP2}, {self.M1}, s[30:31] offset:1024 sc1", tag="poison")
        self.V.put(self.vP2)

    def const_lines(self, t0, t1, t2, t3):
        V, S = self.V, self.S
        vI, vG, vL, sW, sL, sB, sH, sa, sb = self.vI, self.vG, self.vL, self.sW, self.sL, self.sB, self.sH, self.sa, self.sb
        out = []

        def A(text):
            out.extend(x.strip() for x in text.strip().split("\n") if x.strip())
        self.BAND = {key: V.get(4) for key in BANDS}
        SEL = V.get(6)
        A(f"""
        v_lshlrev_b32 {t0}, 3, {vG}
        v_sub_u32 {t0}, {t0}, {vI}
        v_add_u32 {t0}, 20, {t0}
        v_mul_u32_u24 {t0}, 0x10001, {t0}
        v_mov_b32 {t3}, 0x70007
        s_mov_b32 {sb}, 0xc000c
        """)
        for k in range(6):
            c0, c1 = 32 - 2 * k, 31 - 2 * k
            A(f"""
            s_mov_b32 s3, {c0 | c1 << 16}
            v_pk_sub_i16 {t1}, {t0}, s3
            v_pk_sub_i16 {t2}, s3, {t0}
            v_pk_max_i16 {t1}, {t1}, {t2}
            v_pk_min_i16 {t1}, {t1}, {t3}
            v_lshl_or_b32 {SEL[k]}, {t1}, 8, {sb}
            """)
        for (delta, h), B in self.BAND.items():
            lut = sum(0x3C << (8 * i) for i in range(min(h + 1, 4)))
            A(f"s_mov_b32 s3, {lut}")
            for d in range(4):
                A(f"v_perm_b32 {B[d]}, {60 if h == 4 else 0}, s3, {SEL[d + (0 if delta == 12 else 2)]}")
        Z = SEL[0:4]
        for k in range(4):
            A(f"v_mov_b32 {Z[k]}, 0")
        self.vShift, self.vShiftR = V.get(), V.get()
        A(f"""
        v_lshlrev_b32 {t2}, 4, v0
        v_lshlrev_b32 {t3}, 2, {vL}
        v_and_b32 {t1}, 127, v0
        s_mul_i32 s3, {sB}, {UCH}
        s_add_u32 {sb}, s3, {L_U}
        v_lshl_add_u32 {t0}, {t1}, 2, {sb}
        ds_write_b128 {t2}, {Z} offset:{L_P}
        ds_write_b128 {t2}, {Z} offset:{L_P + 4096}
        ds_write_b128 {t2}, {Z} offset:{L_P + 8192}
        ds_write_b128 {t2}, {Z} offset:{L_P + 12288}
        ds_write_b32 {t3}, {Z[0]} offset:{L_P + 16384}
        ds_write_b32 {t0}, {Z[0]}
        s_mul_i32 s3, {sB}, {2 * PHALF}
        v_lshl_add_u32 {self.vShiftR}, {t1}, 4, s3
        """)
        self.vUf, self.vZw, self.vUw = V.get(), V.get(), V.get()
        self.vN, self.vF = V.get(), V.get()
        A(f"""
        v_lshl_add_u32 {t0}, {vI}, 5, {sb}
        v_lshl_add_u32 {self.vUf}, {vG}, 4, {t0}
        s_mul_i32 s3, {sB}, {KCH}
        v_lshl_add_u32 {self.vShift}, {t1}, 4, s3
        v_sub_u32 {t0}, 15, {vI}
        v_and_b32 {t1}, 3, {t0}
        v_and_b32 {t0}, 12, {t0}
        v_mul_u32_u24 {t1}, {KCOPY}, {t1}
        v_lshl_add_u32 {t0}, {t0}, 1, {t1}
        v_add_u32 {t0}, s3, {t0}
        v_lshl_add_u32 {self.vN}, {vG}, 4, {t0}
        v_lshl_add_u32 {self.vF}, {vG}, 3, {t0}
        v_and_b32 {t0}, 2, {vG}
        v_lshl_add_u32 {t0}, {vI}, 2, {t0}
        v_add_u32 {t0}, {sB}, {t0}
        v_lshrrev_b32 {t1}, 1, {vI}
        v_xor_b32 {t0}, {t0}, {t1}
        v_and_b32 {t1}, 1, {vG}
        v_lshlrev_b32 {t1}, 3, {t1}
        v_lshl_add_u32 {self.vZw}, {t0}, 4, {t1}
        """)
        self.sStM = S.get()
        self.vR, self.vS0, self.vS1r = V.get(), V.get(), V.get()
        A(f"""
        s_mul_i32 s3, {sB}, {STAGE_CH}
        s_lshl_b32 {sb}, {sH}, 8
        s_add_u32 s3, s3, {sb}
        s_add_u32 {self.sStM}, s3, {L_STAGE - 0x8000}
        s_add_u32 s3, s3, {L_STAGE}
        v_lshl_add_u32 {t2}, {vG}, 4, s3
        v_xor_b32 {t0}, 3, {vI}
        v_bfe_u32 {t1}, {t0}, 1, 1
        v_add_u32 {t1}, {t0}, {t1}
        v_lshrrev_b32 {t1}, 1, {t1}
        s_movk_i32 s3, {ROWB}
        v_mad_u32_u24 {self.vR}, {vI}, s3, {t2}
        v_mad_u32_u24 {self.vS0}, {t0}, s3, {t2}
        v_mad_u32_u24 {self.vS1r}, {t1}, s3, {t2}
        """)
        self.vK1, self.vK3, self.vKs = V.get(), V.get(), V.get()

        def pa(m):
            return ((m >> 2) & 1) * PPLANE + (m >> 3) * 16 + (m & 3) * 4
        A(f"""
        s_mul_i32 s3, {sW}, {PHALF}
        s_add_u32 s3, s3, {L_P}
        v_xor_b32 {t3}, 3, {vG}
        v_and_b32 {t0}, 1, {t3}
        v_mul_u32_u24 {t0}, {PPLANE}, {t0}
        v_lshrrev_b32 {t3}, 1, {t3}
        v_lshl_add_u32 {t3}, {t3}, 4, {t0}
        v_add_u32 {t3}, s3, {t3}
        v_lshlrev_b32 {t0}, 5, {vI}
        v_sub_u32 {t0}, {t3}, {t0}
        v_add_u32 {self.vK1}, {pa(528 - 256)}, {t0}
        v_lshrrev_b32 {t1}, 1, {vI}
        v_lshrrev_b32 {t2}, 2, {vI}
        v_add_u32 {t2}, 2, {t2}
        v_min_u32 {t1}, {t1}, {t2}
        v_add3_u32 {t1}, {t1}, {vI}, {FAR // 16 + 1}
        v_lshl_add_u32 {self.vK3}, {t1}, 5, {t3}
        v_cmp_gt_u32 vcc, 8, {vI}
        v_mov_b32 {t0}, {pa(28)}
        v_mov_b32 {t1}, {pa(NX + 24)}
        v_cndmask_b32 {t0}, {t0}, {t1}, vcc
        v_add_u32 {self.vKs}, s3, {t0}
        """)
        self.vS1o, self.vS1i, self.vS1i2, self.vP2 = V.get(), V.get(), V.get(), V.get()
        self.vMask, self.vHw2, self.M1 = V.get(), V.get(), V.get(4)
        A(f"""
        v_and_b32 {t0}, 1, v0
        v_lshrrev_b32 {t1}, 1, v0
        v_mul_u32_u24 {t2}, {UCH}, {t0}
        v_lshl_add_u32 {self.vUw}, {t1}, 4, {t2}
        v_lshlrev_b32 {t0}, 4, {t0}
        v_lshl_add_u32 {t2}, {t1}, 13, {t0}
        s_lshl_b32 s3, {sL}, 5
        s_add_u32 s3, s3, {WS_S1}
        v_add_u32 {self.vS1i}, s3, {t2}
        v_add_u32 {self.vS1i2}, 0x100000, {self.vS1i}
        s_lshl_b32 s3, {sW}, 11
        s_add_u32 s3, s3, {sa}
        s_add_u32 s3, s3, {WS_S1}
        v_lshl_add_u32 {self.vS1o}, {vL}, 4, s3
        v_add_u32 {self.vP2}, {WS_S2 - WS_S1}, {self.vS1o}
        s_mov_b32 s3, {L_H}
        v_lshl_add_u32 {self.vHw2}, v0, 2, s3
        v_mov_b32 {self.vMask}, {0xFFFFFFFF ^ TAGMASK}
        s_mov_b32 {self.sOnes}, 0x3f803f80
        s_mov_b32 {self.sLo}, 0x3f80
        s_mov_b32 {self.sHi}, 0x3f800000
        """)
        for k in range(4):
            A(f"v_mov_b32 {self.M1[k]}, -1")
        self.ctmp = [SEL]
        return out

    def background(self):
        V, S = self.V, self.S
        vL, sW, sL, sa, sb = self.vL, self.sW, self.sL, self.sa, self.sb
        t0, t1, t2 = V.get(), V.get(), V.get()
        out = []

        def A(text):
            out.extend(x.strip() for x in text.strip().split("\n") if x.strip())
        A(f"""
        s_lshr_b32 s3, {sL}, 5
        s_and_b32 {sb}, {sL}, 31
        s_mul_i32 s6, {sb}, {16 * 3584}
        s_mul_i32 s7, s3, 448
        s_add_u32 s6, s6, s7
        v_lshrrev_b32 {t0}, 2, {vL}
        v_and_b32 {t1}, 3, v0
        v_mul_u32_u24 {t0}, 3584, {t0}
        v_lshl_add_u32 {t0}, {t1}, 7, {t0}
        v_add_u32 {t0}, s6, {t0}
        s_mul_i32 s6, {sb}, {56 * 1024}
        s_lshl_b32 s7, s3, 7
        s_add_u32 s6, s6, s7
        s_mul_i32 s7, {self.sH}, {28 * 1024}
        s_add_u32 s6, s6, s7
        v_min_u32 {t1}, 27, {vL}
        v_lshl_add_u32 {t1}, {t1}, 10, s6
        s_cmp_eq_u32 {sW}, 0
        s_cselect_b32 s8, s22, s24
        s_cselect_b32 s9, s23, s25
        s_cmp_lt_u32 {sW}, 2
        s_cselect_b32 s8, s8, s26
        s_cselect_b32 s9, s9, s27
        s_cselect_b64 vcc, -1, 0
        v_cndmask_b32 {t0}, {t1}, {t0}, vcc
        """)
        if self.o["dma_at"] != "none":
            A(f"global_load_dword {self.vJunk[1]}, {t0}, s[8:9]")
        self.nwarm = len(out)
        warm_block = list(out)
        if self.o["warm_at"] == "bg":
            out.clear()
        A(f"s_lshr_b32 s3, {sL}, 5\ns_and_b32 {sb}, {sL}, 31")
        self.sBlk, self.sRole, self.sUp = S.get(), S.get(), S.get()
        A(f"""
        s_cmp_ge_u32 {sb}, 7
        s_cselect_b32 {self.sUp}, 1, 0
        s_cselect_b32 s6, 7, 0
        s_sub_u32 s6, {sb}, s6
        s_mul_i32 {self.sBlk}, s3, 7
        s_add_u32 {self.sBlk}, {self.sBlk}, s6
        s_cmp_ge_u32 {sb}, 14
        s_cselect_b32 {self.sRole}, 2, 0
        s_lshl_b32 s3, s3, 2
        s_sub_u32 s6, {sb}, {self.o["r1_at"]}
        s_add_u32 s3, s3, s6
        s_cmp_lt_u32 s6, 4
        s_cselect_b32 {self.sRole}, 1, {self.sRole}
        s_cselect_b32 {self.sBlk}, s3, {self.sBlk}
        """)
        self.p3_lines = [f"s_mul_i32 s3, {sL}, 2432", f"s_add_u32 s3, s3, {WS_S3}", f"v_lshl_add_u32 {t2}, v0, 4, s3",
                         f"v_cmp_gt_u32 s[10:11], {t1}, v0",
                         ("s_mov_b64 exec, s[10:11]", f"global_store_dwordx4 {t2}, {self.M1}, s[30:31] sc1", "s_mov_b64 exec, -1")]
        self.p3_lines.insert(0, f"v_mov_b32 {t1}, 152")
        if self.o["warm_at"] == "bg":
            out.extend(warm_block)
        self.vS2o, self.vS2o2, self.vS2i, self.vS2i2, self.vZr = V.get(), V.get(), V.get(), V.get(), V.get()
        A(f"""
        s_lshl_b32 s3, {sL}, 13
        s_add_u32 s3, s3, {WS_S2}
        v_lshl_add_u32 {self.vS2o}, v0, 4, s3
        v_add_u32 {self.vS2o2}, 0x1000, {self.vS2o}
        v_bfe_u32 {t0}, v0, 3, 3
        v_xor_b32 {t0}, v0, {t0}
        v_lshlrev_b32 {self.vZr}, 4, {t0}
        s_lshl_b32 s3, {sW}, 13
        s_add_u32 s3, s3, {self.rowid()}
        s_sub_u32 s3, s3, {sL}
        s_lshl_b32 s3, s3, 5
        s_add_u32 s3, s3, {WS_S2 - WS_S1}
        v_add_u32 {self.vS2i}, s3, {self.vS1i}
        v_add_u32 {self.vS2i2}, 0x40000, {self.vS2i}
        """)
        self.bgtmp = [t0, t1, t2, self.M1]
        return out

    def rowid(self):
        return getattr(self, "sR", self.sL)

    def make_tags(self, A):
        self.tags = [self.sTag, self.S.get(), self.S.get(), self.S.get()]
        A(f"s_add_u32 {self.sE}, {self.sE}, 1\ns_and_b32 {self.sTag}, {self.sE}, {TAGMASK}")
        for q in range(1, 4):
            A(f"s_lshr_b32 {self.tags[q]}, {self.sE}, {3 * q}\ns_and_b32 {self.tags[q]}, {self.tags[q]}, {TAGMASK}")

    def ln1(self):
        A, V = self.A, self.V
        glob = False
        s1, s2, nm, rs, ad = V.get(), V.get(), V.get(), V.get(), V.get()
        A(f"v_lshlrev_b32 {ad}, 2, {self.vTau}")
        for k in range(8):
            if not glob and k % 4 == 0:
                A(f"ds_write_b128 {self.vHr}, {self.XB[k:k + 4]} offset:{L_H + 128 * k}")
            A(f"v_dot2_f32_bf16 {s1}, {self.XB[k]}, {self.sOnes}, {s1 if k else 0}")
            A(f"v_dot2_f32_bf16 {s2}, {self.XB[k]}, {self.XB[k]}, {s2 if k else 0}")
            if k == 0:
                self.stamp("x")
                if self.o["poison_at"] == "x":
                    self.poison2()
        wv = self.o["wv"]
        take, self.ksl = self.ksl[:wv[1]], self.ksl[wv[1]:]
        self.allreduce(A, "v_add_f32", [s1, s2], 32, take)
        self.ln_stats(A, s1, s2, nm, rs)
        if self.o["poison_at"] == "stat":
            self.poison2()
        self.stamp("stat")
        A("s_mov_b64 exec, 1\ns_bitset1_b64 exec, 32")
        A(f"v_mul_f32 {rs}, 0x3d800000, {rs}")
        A(f"ds_write_b32 {ad}, {nm} offset:{L_ST}\nds_write_b32 {ad}, {rs} offset:{L_ST + 32}")
        A("s_mov_b64 exec, -1")
        A(f"v_mov_b32 {ad}, 0")
        V.put(self.XB)
        self.weave(wv[2])
        A.barrier()
        self.stamp("b1")
        NM, RS = V.get(8), V.get(8)
        XA = self.XA
        if not glob:
            for q in range(2):
                A(f"ds_read2st64_b32 {XA[2 * q:2 * q + 2]}, {self.vHw2} offset0:{8 * q} offset1:{8 * q + 4}")
        A(f"ds_read_b128 {NM[0:4]}, {ad} offset:{L_ST}")
        if not glob:
            for q in range(2, 4):
                A(f"ds_read2st64_b32 {XA[2 * q:2 * q + 2]}, {self.vHw2} offset0:{8 * q} offset1:{8 * q + 4}")
        A(f"ds_read_b128 {NM[4:8]}, {ad} offset:{L_ST + 16}")
        for k in range(2):
            A(f"ds_read_b128 {RS[4 * k:4 * k + 4]}, {ad} offset:{L_ST + 32 + 16 * k}")
        self.weave(wv[3])
        if self.o["poison_at"] == "b1":
            self.poison2()
        self.make_tags(A)
        T = V.get(8)
        for e in range(2):
            G = V.get(4)
            for j in range(8):
                A(f"v_dot2_f32_bf16 {T[j]}, {XA[j]}, {self.sHi if e else self.sLo}, {NM[j]}")
            for j in range(8):
                self.rnd(A, T[j], T[j])
            for q in range(4):
                A(f"v_pk_mul_f32 {T[2 * q:2 * q + 2]}, {T[2 * q:2 * q + 2]}, {RS[2 * q:2 * q + 2]}")
            for j in range(8):
                self.rnd(A, T[j], T[j])
            for q in range(4):
                A(f"v_cvt_pk_f16_f32 {G[q]}, {T[2 * q]}, {T[2 * q + 1]}")
            for q in range(4):
                A(f"v_and_or_b32 {G[q]}, {G[q]}, {self.vMask}, {self.tags[q]}")
            self.G = getattr(self, "G", []) + [G]
            if e == 0:
                self.stamp("norm")
            if self.o["st_late"] and e == 0:
                continue
            A.wait_tag("poison")
            for ee in ((0, 1) if self.o["st_late"] else (e,)):
                A(f"global_store_dwordx4 {self.vS1o}, {self.G[ee]}, s[30:31] offset:{1024 * ee} sc1", tag="s1st")
        self.stamp("pub1")
        V.put(T, NM, RS, s1, s2, nm, rs, ad, self.vS1o)

    def s1_loads(self, A):
        A(f"global_load_dwordx4 {self.UG[0:4]}, {self.vS1i}, s[30:31] sc1")
        A(f"global_load_dwordx4 {self.UG[4:8]}, {self.vS1i2}, s[30:31] sc1")

    def maybe_s1(self, where):
        if self.o["s1_at"] == where:
            self.UG = self.V.get(8)
            if self.o["poison_at"] == "pub":
                A = self.A
                A(f"v_mov_b32 {self.UG[0]}, {self.sE}")
                A.wait_tag("poison")
                A(f"s_mov_b64 exec, 1\nglobal_store_dword {self.vFo}, {self.UG[0]}, s[30:31] sc1\ns_mov_b64 exec, -1")
                self.V.put(self.vFo)
            self.s1_loads(self.A)

    def ksetup_lines(self):
        V = self.V
        P = self.PAR
        out = []

        class Rec:
            def __call__(self_, text):
                out.extend(x.strip() for x in text.strip().split("\n") if x.strip())
        A = Rec()
        t0, t1, dt = V.get(), V.get(), V.get()
        self.vG16 = V.get()
        sb = self.sb
        A(f"""
        s_and_b32 {sb}, {self.sCh}, 1
        s_xor_b32 {sb}, {sb}, 1
        s_lshl_b32 {sb}, {sb}, 4
        s_lshl_b32 {self.sDt}, {self.sDt}, {sb}
        s_and_b32 {self.sDt}, {self.sDt}, 0xffff0000
        v_mov_b32 {dt}, {LOG2E}
        v_mul_f32 {dt}, {self.sDt}, {dt}
        v_exp_f32 {dt}, {dt}
        s_cmp_eq_u32 {self.sH}, 0
        s_cselect_b32 {sb}, 16, 0
        """)
        self.rnd(A, dt, dt)
        A(f"""
        v_and_b32 {t0}, 0x7fff7fff, {P[2]}
        v_and_b32 {t1}, 0x7fff7fff, {P[3]}
        v_pk_max_u16 {t0}, {t0}, {t1}
        v_lshrrev_b32 {t1}, 16, {t0}
        v_and_b32 {t0}, 0xffff, {t0}
        v_max_u32 {t0}, {t0}, {t1}
        """)
        W = {p: V.get(2) for p in (1, 16, 256)}
        u0, u1 = V.get(), V.get()
        fill = [f"v_lshlrev_b32 {P[k]}, {sb}, {P[k]}" for k in range(4)]
        fill += [f"v_and_b32 {P[k]}, 0xffff0000, {P[k]}" for k in range(4)]
        fill += [f"v_mul_f32 {P[0]}, {LOG2E}, {P[0]}", f"v_exp_f32 {P[0]}, {P[0]}", f"v_mul_f32 {P[1]}, {P[1]}, {dt}",
                 f"v_cvt_pk_bf16_f32 {P[0]}, 0, {P[0]}", f"v_mul_f32 {P[1]}, {INV2PI}, {P[1]}", f"v_mul_f32 {P[0]}, {P[0]}, {dt}",
                 f"v_fract_f32 {u1}, {P[1]}", f"v_mul_f32 {P[0]}, {LOG2E | 0x80000000}, {P[0]}"]
        keep = V.get()
        V.put(keep)
        self.allreduce(A, "v_max_u32", [t0], 64, fill)
        again = V.get()
        assert str(again) == str(keep)
        A(f"v_exp_f32 {u0}, {P[0]}\nv_cos_f32 {W[1][0]}, {u1}\nv_sin_f32 {W[1][1]}, {u1}")
        A(f"""
        v_lshrrev_b32 {t0}, 7, {t0}
        v_mul_f32 {W[1][0]}, {W[1][0]}, {u0}
        v_mul_f32 {W[1][1]}, {W[1][1]}, {u0}
        v_max_u32 {t0}, 8, {t0}
        v_lshrrev_b32 {t1}, 23, {dt}
        v_add_u32 {t1}, {t1}, {t0}
        v_subrev_u32 {t1}, 127, {t1}
        v_max_i32 {t1}, 0, {t1}
        v_min_i32 {t1}, 254, {t1}
        v_lshlrev_b32 {self.vG16}, 23, {t1}
        v_sub_u32 {t0}, 259, {t0}
        v_and_b32 {dt}, 0x007fffff, {dt}
        v_lshl_or_b32 {dt}, {t0}, 23, {dt}
        """)
        L = V.get(2)
        for p, mul in ((16, 0x41800000), (256, 0x43800000)):
            w = W[p]
            A(f"v_mul_f32 {u0}, {mul}, {P[0]}\nv_mul_f32 {u1}, {mul}, {P[1]}")
            A(f"v_exp_f32 {u0}, {u0}\nv_fract_f32 {u1}, {u1}")
            A(f"v_cos_f32 {w[0]}, {u1}\nv_sin_f32 {w[1]}, {u1}")
            A(f"v_mul_f32 {L[p // 256]}, {P[2 + p // 256]}, {dt}")
            A(f"v_mul_f32 {w[0]}, {w[0]}, {u0}\nv_mul_f32 {w[1]}, {w[1]}, {u0}")
        self.ks = dict(W=W, L=L, t0=t0, tmp=[u0, u1, t1, dt, P, again])
        return out

    def weave(self, n):
        for _ in range(min(n, len(self.ksl))):
            self.A(self.ksl.pop(0))

    def kgen_steps(self):
        A, V = self.A, self.V
        self.weave(1000)
        W, L, t0 = self.ks["W"], self.ks["L"], self.ks["t0"]
        V.put(*self.ks["tmp"])
        M, Rr, T = V.get(2), V.get(2), V.get(2)
        self.stamp("ws")
        NB_ = self.o["recb"]
        pk = [V.get() for _ in range(2 * NB_)]
        cnt = [0]
        queue = []
        A(f"s_mov_b32 m0, {self.sStM}")

        def cmul(d, a, b):
            A(f"v_pk_mul_f32 {T}, {a}, {b} op_sel_hi:[0,1]")
            A(f"v_pk_fma_f32 {d}, {a}, {b}, {T} op_sel:[1,1,0] op_sel_hi:[1,0,1] neg_lo:[0,1,0]")

        if not self.o["addtid"]:
            vSt = V.get()
            A(f"v_lshl_add_u32 {vSt}, {self.vL}, 2, {self.sStM}")

        def flush_q():
            for row, r in queue:
                if self.o["addtid"]:
                    A(f"ds_write_addtid_b32 {r} offset:{32768 + row * ROWB}")
                else:
                    A(f"ds_write_b32 {vSt}, {r} offset:{32768 + row * ROWB}")
            queue.clear()

        def put(row, v, conj=False):
            r = pk[cnt[0] % (2 * NB_)]
            cnt[0] += 1
            A(f"v_cvt_pk_f16_f32 {r}, {v[0]}, {'-' if conj else ''}{v[1]}")
            queue.append((row, r))
            if len(queue) >= NB_:
                flush_q()

        Rf, S0, S1, FA = ([self.AC.get(4, 4) for _ in range(4)] for _ in range(4))
        D1, D2, D3 = V.get(4), V.get(4), V.get(4)

        def frags(regs, addr, row0):
            flush_q()
            for q in range(4):
                A(f"ds_read_b128 {regs[q]}, {addr} offset:{row0 * ROWB + 64 * q}")

        def product(D, a, b):
            for q in range(4):
                A(f"v_mfma_f32_16x16x32_f16 {D}, {a[q]}, {b[q]}, {D if q else 0}")

        A(f"v_mov_b32 {t0}, 0x3c00")
        queue.append((0, t0))
        yield
        put(1, W[16], conj=True)
        cmul(Rr, W[16], W[16])
        put(2, Rr, conj=True)
        for j in range(3, 16):
            yield
            cmul(Rr, Rr, W[16])
            put(j, Rr, conj=True)
        frags(Rf, self.vR, 0)
        self.stamp("recR")
        LE = {0: L}
        cur = L
        for al in range(17):
            yield
            if al:
                nxt = V.get(2) if al % 2 == 0 else M
                cmul(nxt, cur, W[1])
                cur = nxt
                if al % 2 == 0:
                    LE[al] = cur
            if al < 16:
                put(16 + al, cur)
        frags(S0, self.vS0, 16)
        self.maybe_s1("rec1")
        for al in range(0, 17, 2):
            yield
            cmul(LE[al], LE[al], W[256])
            put(32 + al // 2, LE[al])
        frags(S1, self.vS1r, 32)
        product(D1, S0, Rf)
        self.maybe_s1("seg1")
        for a in range(2):
            for al in (4, 8, 12, 16):
                yield
                cmul(LE[al], LE[al], W[256])
                put(41 + 2 * (al // 4 - 1) + 1 - a, LE[al])
        K3 = V.get(4)
        flush_q()
        A(f"ds_write_b128 {self.vK1}, {D1} offset:512")
        product(D2, S1, Rf)
        self.maybe_s1("far")
        for a in range(4):
            for al in (8, 16):
                yield
                cmul(LE[al], LE[al], W[256])
                put(49 + 4 * (al // 8 - 1) + 3 - a, LE[al])
        frags(FA, self.vR, 41)
        self.stamp("rec")
        self.maybe_s1("rec2")
        A(f"ds_write_b128 {self.vK1}, {D2}")
        A(f"v_cmp_gt_u32 vcc, 8, {self.vI}")
        product(D3, Rf, FA)
        self.maybe_s1("mfma")
        self.stamp("kmf0")
        A(f"v_cndmask_b32 {T[1]}, {D2[0]}, 0, vcc")
        for k in range(4):
            A(f"v_mov_b32 {K3[k]}, {D3[3 - k]}")
        A(f"v_cndmask_b32 {T[0]}, {D2[0]}, {D3[3]}, vcc")
        A(f"ds_write_b128 {self.vK3}, {K3}")
        A("s_mov_b32 exec_lo, 0\ns_mov_b32 exec_hi, 0x80400000")
        A(f"ds_write_b32 {self.vKs}, {T[0]} offset:12\nds_write2_b32 {self.vKs}, {T[1]}, {T[1]} offset0:1 offset1:2")
        A("s_mov_b32 exec_hi, 0x00400000")
        A(f"ds_write_b32 {self.vKs}, {T[0]} offset:{PPLANE}")
        A("s_mov_b64 exec, -1")
        A.barrier()
        V.put(M, Rr, T, *pk, *W.values(), t0, D1, D2, D3, K3, *LE.values(),
              self.vR, self.vS0, self.vS1r, self.vK1, self.vK3, self.vKs)
        self.AC.put(*Rf, *S0, *S1, *FA)

    def row_params(self):
        A, V = self.A, self.V
        t1, t2 = V.get(), V.get()
        self.vDk = V.get()
        A(f"""
        v_and_b32 {t1}, 0x1ff, {self.vHr}
        v_lshlrev_b32 {t2}, 2, v0
        global_load_dwordx4 {self.WR[0:4]}, {t1}, s[20:21]
        global_load_dwordx4 {self.WR[4:8]}, {t1}, s[20:21] offset:512
        global_load_dword {self.vDk}, {t2}, s[16:17]
        """)
        V.put(t1, t2)

    def kgen(self):
        A, V = self.A, self.V
        if self.o["poison_at"] == "pub":
            self.poison2()
        for item in self.p3_lines:
            A("\n".join(item) if isinstance(item, tuple) else item, tag="poison3" if isinstance(item, tuple) else None)
        self.row_params()
        for _ in self.ksteps:
            pass
        self.stamp("kmf")
        self.maybe_s1("shift")
        D, E = V.get(12), V.get(12)
        C = [V.get(4) for _ in range(4)]
        for k in range(3):
            off = L_P + (k & 1) * PPLANE + (k >> 1) * 16
            A(f"ds_read_b128 {D[4 * k:4 * k + 4]}, {self.vShiftR} offset:{off}")
            A(f"ds_read_b128 {E[4 * k:4 * k + 4]}, {self.vShiftR} offset:{off + PHALF}")
        for k in range(6):
            A(f"v_pk_add_f32 {D[2 * k:2 * k + 2]}, {D[2 * k:2 * k + 2]}, {E[2 * k:2 * k + 2]}")
        for c in range(4):
            for k in range(4):
                A(f"v_cvt_pk_f16_f32 {C[c][k]}, {D[c + 2 * k]}, {D[c + 2 * k + 1]}")
            if c % 2:
                for cc in (c - 1, c):
                    A(f"ds_write_b128 {self.vShift}, {C[cc]} offset:{L_K + cc * KCOPY}")
        if not self.o["frag_in"]:
            A.barrier()
        self.shift_regs = (D, E, *C, self.vShift, self.vShiftR)
        self.stamp("shift")
        self.maybe_s1("frag")
        AC = self.AC
        self.KN = [AC.get(4, 4) for _ in range(17)]
        self.KX = AC.get(4, 4)
        self.B2 = {(k, d): AC.get(4, 4) for k in range(2) for d in (2, 3, 4)}
        self.B3 = {d: AC.get(4, 4) for d in (4, 5, 6, 7)}
        rd = {}
        for q in range(17):
            rd[str(self.KN[q])] = [f"ds_read_b64 {self.KN[q][2 * hf:2 * hf + 2]}, {self.vN} offset:{64 * (16 - q) + 8 * hf}" for hf in range(2)]
        rd[str(self.KX)] = [f"ds_read_b64 {self.KX[2 * hf:2 * hf + 2]}, {self.vN} offset:{2 * NX + 8 * hf}" for hf in range(2)]
        for (k, d), r in self.B2.items():
            rd[str(r)] = [f"ds_read_b64 {r[2 * hf:2 * hf + 2]}, {self.vF} offset:{2 * (V2[2 * k + hf] + 32 - 16 * (d - 2))}" for hf in range(2)]
        for d, r in self.B3.items():
            rd[str(r)] = [f"ds_read_b64 {r[2 * hf:2 * hf + 2]}, {self.vF} offset:{2 * (V3[hf] + 48 - 16 * (d - 4))}" for hf in range(2)]
        self.frag_reads = {}
        if self.o["frag_in"]:
            self.frag_reads = rd
        else:
            for v in rd.values():
                A("\n".join(v))
        self.maybe_s1("end")
        self.stamp("frag")

    def s1_consume(self, A, sfx):
        V = self.V
        UG = self.UG
        t0, t1 = V.get(), V.get()

        def check(C):
            for k in range(8):
                C(f"v_xor_b32 {UG[k]}, {self.tags[k % 4]}, {UG[k]}")
            C(f"v_or3_b32 {t0}, {UG[0]}, {UG[1]}, {UG[2]}\nv_or3_b32 {t1}, {UG[3]}, {UG[4]}, {UG[5]}")
            C(f"v_or3_b32 {t0}, {t0}, {UG[6]}, {UG[7]}\nv_or_b32 {t0}, {t0}, {t1}")
            C(f"v_and_b32 {t0}, {TAGMASK}, {t0}\nv_cmp_ne_u32 vcc, 0, {t0}")
        self.poll(A, "s1" + sfx, self.s1_loads, check)
        self.stamp("s1w", A)
        if self.o["warm_at"] == "s1w":
            for ln in self.warm_line:
                A(ln)
        A(f"ds_write_b128 {self.vUw}, {UG[0:4]} offset:{L_U + 512}")
        A(f"ds_write_b128 {self.vUw}, {UG[4:8]} offset:{L_U + 512 + 2048}")
        self.stamp("s1", A)
        if not self.o["early_br"]:
            A.barrier()
            self.stamp("b5", A)
        V.put(t0, t1, *self.shift_regs)

    def conv(self, A, tiles, dma):
        V, AC = self.V, self.AC
        acc = {j: V.get(4) for j in tiles}
        NF, NG, NW, NP = self.o["nf"], self.o["ng"], self.o["nw"], 6
        PE, PD, NPRE = self.o["pe"], self.o["pd"], self.o["npre"]
        Fb = [AC.get(4, 4) for _ in range(NF)]
        Gb = [AC.get(4, 4) for _ in range(NG)]
        Wb = [V.get(4) for _ in range(NW)]
        Pb = [V.get(4) for _ in range(NP)]
        EY, EZ = V.get(4), V.get(2)
        qmax = {0: 7, 1: 15}
        b2 = sorted({j - d for j in tiles for d in (2, 3, 4) if j - d >= 0})
        b3 = sorted({j - d for j in tiles for d in (4, 5, 6, 7) if j - d >= 0})
        nlo = min(8 * j - qmax.get(j, 16) for j in tiles)
        nhi = 8 * max(tiles)
        near = []
        for fi, n in enumerate(range(nlo, nhi + 1)):
            for j in tiles:
                q = 8 * j - n
                if 0 <= q <= qmax.get(j, 16):
                    near.append((j, self.KN[q], fi, q == 0))
        far = []
        gfr, pcount = [], 0
        for b in sorted(set(b2) | set(b3)):
            ga, gb = len(gfr), len(gfr) + 1
            gfr += [256 * b - 16, 256 * b - 24]
            mains = []
            if b in b2:
                pa, pb = pcount, pcount + 1
                pcount += 2
                far += [("band", ga, (12, 1), pa, 0), ("band", ga, (8, 2), pa, 1), ("band", gb, (12, 1), pb, 0), ("band", gb, (8, 2), pb, 1)]
                mains += [("main", b + d, pa, self.B2[(0, d)]) for d in (2, 3, 4) if b + d in tiles]
                mains += [("main", b + d, pb, self.B2[(1, d)]) for d in (2, 3, 4) if b + d in tiles]
            if b in b3:
                pc = pcount
                pcount += 1
                far += [("band", ga, (8, 3), pc, 0), ("band", gb, (8, 4), pc, 1)]
                mains += [("main", b + d, pc, self.B3[d]) for d in (4, 5, 6, 7) if b + d in tiles]
            if b + 4 in tiles:
                far.append(("x", b + 4, ga))
            far += mains
        LAT = self.o["lat"]
        mf, fill = [], []
        started, done_at = set(), {}
        fuse, guse, plast, pready = {}, {}, {}, {}
        wcount = 0
        ni = 0
        farleft = list(far)
        span = self.o["far_span"][0 if 0 in tiles else 1]
        credit = 0.0

        def acc_mf(j, a, b):
            mf.append(f"v_mfma_f32_16x16x32_f16 {acc[j]}, {a}, {b}, {acc[j] if j in started else 0}")
            started.add(j)

        def far_ok(it):
            t = len(mf)
            if it[0] == "main":
                return pready.get(it[2], 10 ** 6) <= t
            if it[0] == "band":
                prev = it[3] - NP
                return prev < 0 or not any(o[0] == "main" and o[2] == prev for o in farleft)
            return True

        while ni < len(near) or farleft:
            t = len(mf)
            want_far = farleft and (credit >= 1.0 or ni >= len(near))
            if ni < len(near) and near[ni][3] and any(o[0] in ("main", "x") and o[1] == near[ni][0] for o in farleft):
                want_far = True
            pick = None
            if want_far:
                for it in farleft[:8]:
                    if far_ok(it):
                        if it[0] == "band" and any(o[0] == "band" for o in farleft[:farleft.index(it)]):
                            continue
                        pick = it
                        break
            if pick is None and ni < len(near) and not (near[ni][3] and any(o[0] in ("main", "x") and o[1] == near[ni][0] for o in farleft)):
                j, a, fi, last = near[ni]
                ni += 1
                acc_mf(j, a, Fb[fi % NF])
                fuse.setdefault(fi, [t, t])[1] = t
                if last:
                    done_at[j] = t
                credit += len(far) / span
                continue
            assert pick is not None, "conv schedule is stuck"
            farleft.remove(pick)
            credit -= 1.0
            if pick[0] == "band":
                _, g, key, p, hf = pick
                w = Wb[wcount % NW]
                wcount += 1
                mf.append(f"v_mfma_f32_16x16x32_f16 {w}, {Gb[g % NG]}, {self.BAND[key]}, 0")
                guse.setdefault(g, [t, t])[1] = t
                for k in range(2):
                    fill.append([t + self.o["cvt0"], t + LAT - 1, f"v_cvt_pk_f16_f32 {Pb[p % NP][2 * hf + k]}, {w[2 * k]}, {w[2 * k + 1]}", None])
                if hf == 1:
                    pready[p] = t + LAT
            elif pick[0] == "x":
                acc_mf(pick[1], self.KX, Gb[pick[2] % NG])
                guse.setdefault(pick[2], [t, t])[1] = t
            else:
                acc_mf(pick[1], Pb[pick[2] % NP], pick[3])
        nm = len(mf)
        pre = []
        reads = []
        for fi in sorted(fuse):
            txt = f"ds_read_b128 {Fb[fi % NF]}, {self.vUf} offset:{512 + 2 * (32 * (nlo + fi) - 16)}"
            reads.append((fuse[fi][0], fuse[fi - NF][1] if fi >= NF else -1, txt))
        for g in sorted(guse):
            txt = f"ds_read_b128 {Gb[g % NG]}, {self.vUf} offset:{512 + 2 * gfr[g]}"
            reads.append((guse[g][0], guse[g - NG][1] if g >= NG else -1, txt))
        seen = set()
        for t, txt in enumerate(mf):
            for name, two in self.frag_reads.items():
                if name not in seen and f" {name}," in txt:
                    seen.add(name)
                    reads += [(t, -1, two[0]), (t, -1, two[1])]
        reads.sort(key=lambda r: r[0])
        for first, free, txt in reads:
            if free < 0 and first <= NPRE:
                pre.append(txt)
            else:
                assert free < first
                fill.append([max(free, first - PE, 0), max(free, first - PD, 0), txt, None])
        order_t = sorted(tiles, key=lambda j: done_at[j])
        for k, j in enumerate(order_t):
            t = done_at[j]
            nxt = done_at[order_t[k + 1]] if k + 1 < len(order_t) else nm + 100
            seq2 = [f"v_mul_f32 {EY[r]}, {acc[j][r]}, {self.vG16}" for r in range(4)]
            seq2 += [f"v_cvt_pk_bf16_f32 {EZ[r]}, {EY[2 * r]}, {EY[2 * r + 1]}" for r in range(2)]
            seq2.append(f"ds_write_b64 {self.vZw}, {EZ} offset:{L_Z + 1024 * j}")
            for txt in seq2:
                fill.append([t + self.o["cvt0"], min(t + 12, nxt + 2), txt, f"e2_{j}"])
        for txt in pre:
            A(txt)
        for i, f in enumerate(fill):
            f.append(i)
        left = list(fill)
        bg = list(self.bg)
        A.prewait([mf[0]])
        for t in range(nm):
            A(mf[t])
            chosen = []
            for f in sorted([f for f in left if f[0] <= t], key=lambda f: (f[1], f[4])):
                if len(chosen) >= 2 and f[1] > t:
                    break
                if f[3] and any(g[3] == f[3] and g[4] < f[4] and g not in chosen for g in left):
                    continue
                mem = isinstance(f[2], tuple) or f[2].startswith("ds_")
                if mem and f[1] > t and any(g[3] == f[3] and f[3] for g in chosen):
                    continue
                chosen.append(f)
            memf = [f for f in chosen if (isinstance(f[2], tuple) or f[2].startswith("ds_")) and not any(g[3] == f[3] and f[3] and g[4] < f[4] for g in chosen)]
            rest = [f for f in chosen if f not in memf]
            c0 = A.count
            A.prewait([f[2] for f in chosen if not isinstance(f[2], tuple)] + ([mf[t + 1]] if t + 1 < nm else []))
            ns, nv = A.count - c0, len(chosen)
            while bg and isinstance(bg[0], str) and bg[0].startswith("s_") and ns + nv < 3 and t >= self.o["bg_from"]:
                A(bg.pop(0))
                ns += 1
            nv += max(0, ns - 1)
            if bg and not memf and nv < 2 and (isinstance(bg[0], tuple) or bg[0].startswith("global_")):
                item = bg.pop(0)
                A("\n".join(item) if isinstance(item, tuple) else item, tag="poison3" if isinstance(item, tuple) else None)
                nv += 1
            for f in memf + rest:
                A(f[2])
                left.remove(f)
            while bg and nv < 2 and isinstance(bg[0], str) and bg[0].startswith("v_") and t >= self.o["bg_from"]:
                A(bg.pop(0))
                nv += 1
        self.bg_left = max(getattr(self, "bg_left", 0), len(bg))
        tail_bg = bg
        for item in tail_bg:
            A("\n".join(item) if isinstance(item, tuple) else item, tag="poison3" if isinstance(item, tuple) else None)
        for f in sorted(left, key=lambda f: (f[1], f[4])):
            A(f[2])
        self.nmfma = getattr(self, "nmfma", []) + [nm]
        V.put(*acc.values(), *Wb, *Pb, EY, EZ)
        AC.put(*Fb, *Gb)

    def dma_plan(self, A, role):
        V = self.V
        vL, sW = self.vL, self.sW
        t0, t1 = V.get(), V.get()
        self.vWa = V.get()
        if role == 0:
            A(f"""
            s_lshl_b32 {self.sWb}, {sW}, 13
            s_add_u32 {self.sWb}, {self.sWb}, {L_STAGE}
            s_lshl_b32 s3, {sW}, 7
            v_lshrrev_b32 {t0}, 2, {vL}
            v_add_u32 {t0}, s3, {t0}
            v_mul_u32_u24 {t0}, 3584, {t0}
            v_and_b32 {t1}, 3, {vL}
            v_lshl_add_u32 {t0}, {t1}, 4, {t0}
            s_lshl_b32 s3, {self.sBlk}, 6
            v_add_u32 {self.vWa}, s3, {t0}
            s_cmp_eq_u32 {self.sUp}, 0
            s_cselect_b32 s4, s22, s24
            s_cselect_b32 s5, s23, s25
            """)
            n, step = 8, 16 * 3584
        else:
            A(f"""
            s_mul_i32 {self.sWb}, {sW}, 14336
            s_add_u32 {self.sWb}, {self.sWb}, {L_STAGE}
            s_mul_i32 s3, {sW}, 448
            v_lshrrev_b32 {t0}, 1, {vL}
            v_add_u32 {t0}, s3, {t0}
            v_lshlrev_b32 {t0}, 10, {t0}
            v_and_b32 {t1}, 1, {vL}
            v_lshl_add_u32 {t0}, {t1}, 4, {t0}
            s_lshl_b32 s3, {self.sBlk}, 5
            v_add_u32 {self.vWa}, s3, {t0}
            s_mov_b64 s[4:5], s[26:27]
            """)
            n, step = 14, 0x8000
        V.put(t0, t1)
        return [(f"s_add_u32 m0, {self.sWb}, {m * 1024}" + (f"\ns_add_u32 s4, s4, {step}\ns_addc_u32 s5, s5, 0" if m else ""),
                 f"global_load_lds_dwordx4 {self.vWa}, s[4:5]") for m in range(n)]

    def conv_all(self):
        A = self.A
        nb = self.nwarm if self.o["warm_at"] == "pre" else 0
        for ln in self.bg[:nb]:
            A(ln)
        self.bg = self.bg[nb:]
        self.s1_consume(A, "")
        first, second = ([5, 6, 7], [0, 1, 2, 3, 4]) if self.o["b_first"] else ([0, 1, 2, 3, 4], [5, 6, 7])
        A(f"s_cmp_eq_u32 {self.sH}, {int(self.o['b_first'])}\ns_cbranch_scc0 L_conv_b")
        B = A.fork()
        if self.o["early_br"]:
            A.barrier()
            self.stamp("b5", A)
        self.conv(A, first, [])
        A.wait_tag("poison3")
        A.wait(lg=0)
        A.flush()
        A("s_branch L_conv_done")
        B.label("L_conv_b")
        if self.o["early_br"]:
            B.barrier()
            self.stamp("b5", B)
        self.conv(B, second, [])
        B.wait_tag("poison3")
        B.wait(lg=0)
        assert [t for _, t in A.vm] == [t for _, t in B.vm]
        B.flush()
        A.lines += B.lines
        A.count += B.count
        A.nops += B.nops
        A.label("L_conv_done")
        self.V.put(*self.bgtmp)
        self.V.put(*self.BAND.values(), self.vUf, self.vZw, self.vG16, self.UG, self.vUw,
                   self.vS1i, self.vS1i2, self.vN, self.vF)
        self.AC.put(*self.KN, self.KX, *self.B2.values(), *self.B3.values())
        self.stamp("conv", A)
        A("s_barrier")
        self.stamp("b6", A)
        self.ZT = ZT = self.V.get(8)
        A(f"ds_read_b128 {ZT[0:4]}, {self.vZr} offset:{L_Z}\nds_read_b128 {ZT[4:8]}, {self.vZr} offset:{L_Z + 4096}")
        A(f"global_store_dwordx4 {self.vS2o}, {ZT[0:4]}, s[30:31] sc1", tag="s2st")
        A(f"global_store_dwordx4 {self.vS2o2}, {ZT[4:8]}, s[30:31] sc1", tag="s2st")
        if self.o["poison_at"] == "pub":
            self.vFl = self.V.get()
            A(f"global_load_dword {self.vFl}, {self.vFi}, s[30:31] sc1")
        self.stamp("st2", A)
        self.V.put(self.vZr, self.vS2o, self.vS2o2)

    def poison_check(self, regs, t0):
        def chk(C):
            r = list(regs)
            if len(r) == 1:
                C(f"v_cmp_eq_u32 vcc, -1, {r[0]}")
                return
            C(f"v_max3_u32 {t0}, {r[0]}, {r[1]}, {r[2] if len(r) > 2 else r[1]}")
            r = r[3:]
            while r:
                C(f"v_max3_u32 {t0}, {t0}, {r[0]}, {r[1] if len(r) > 1 else r[0]}")
                r = r[2:]
            C(f"v_cmp_eq_u32 vcc, -1, {t0}")
        return chk

    def phase_c(self):
        A, V = self.A, self.V
        vL, vI, vG, sL, sW = self.vL, self.vI, self.vG, self.sL, self.sW
        get = V.get
        self.t = t0, t1, t2 = get(), get(), get()
        vSW, vKw, vS3o, vRo = get(), get(), get(), get()
        self.vS3i = get()
        vHr = self.vHr
        XL, XH, UD = get(8), get(8), Multi([get(4) for _ in range(4)])
        if self.o.get("s2_order") == 0:
            A.wait(vm=0)
        for j in range(8):
            A(f"v_lshlrev_b32 {XL[j]}, 16, {self.XA[j]}")
            A(f"v_and_b32 {XH[j]}, 0xffff0000, {self.XA[j]}")
        A(f"v_lshlrev_b32 {t0}, 16, {self.vDk}\nv_and_b32 {t1}, 0xffff0000, {self.vDk}")
        A(f"v_mul_f32 {t0}, 0x41800000, {t0}\nv_mul_f32 {t1}, 0x41800000, {t1}")
        for e in range(2):
            G = self.G[e]
            if e == 1 and self.o.get("s2_order") == 1:
                A.wait(vm=0)
            for q in range(4):
                A(f"v_and_b32 {G[q]}, {G[q]}, {self.vMask}")
            for j in range(8):
                A(f"v_fma_mix_f32 {UD[8 * e + j]}, {G[j // 2]}, {(t0, t1)[e]}, 0 op_sel:[{j % 2},0,0] op_sel_hi:[1,0,0]")
            for j in range(8):
                self.rnd(A, UD[8 * e + j], UD[8 * e + j])
        V.put(*self.G, self.vMask, self.vDk)
        if self.o.get("s2_order") == 2:
            A.wait(vm=0)
        for k in range(8):
            A(f"v_dot2_f32_bf16 {vSW}, {self.WR[k]}, {self.sOnes}, {vSW if k else 0}")
        self.allreduce(A, "v_add_f32", [vSW], 32)
        A(f"""
        v_and_b32 {t0}, 31, v0
        v_lshlrev_b32 {t0}, 4, {t0}
        v_lshlrev_b32 {vKw}, 2, {self.vTau}
        s_lshl_b32 s3, {sW}, 13
        s_lshl_b32 s16, {self.rowid()}, 4
        s_add_u32 s3, s3, s16
        s_add_u32 s3, s3, {WS_S3}
        v_lshl_add_u32 {vS3o}, {vL}, 12, s3
        s_lshr_b32 s3, {sL}, {5 + (8 // self.o.get("s3_rep", 8)).bit_length() - 1}
        s_lshl_b32 s3, s3, 12
        s_add_u32 s16, s3, {WS_S3}
        v_lshl_add_u32 {self.vS3i}, v0, 4, s16
        s_lshl_b32 s16, {self.rowid()}, 11
        s_add_u32 s16, s16, {WS_ROWS}
        v_add_u32 {vRo}, s16, {t0}
        s_lshl_b32 s3, {self.rowid()}, 3
        s_sub_u32 s3, 2047, s3
        v_sub_u32 {t2}, s3, {self.vTau}
        v_mov_b32 {t1}, 0
        """)
        if self.o["dma_ack2"] and self.o["dma_at"] != "none":
            A(f"s_cmp_eq_u32 {self.sRole}, 2\ns_cbranch_scc1 L_dma_done")
            A(f"s_cmp_eq_u32 {self.sRole}, 1\ns_cbranch_scc1 L_dma_r1")
            keep = list(A.vm)
            for role in (0, 1):
                if role:
                    A.label("L_dma_r1")
                plan = self.dma_plan(A, role)
                n = len(plan) if role == 0 else self.o["dma_ack2"]
                for a, b in plan[:n]:
                    A(a)
                    A(b, tag="dma")
                if role == 0:
                    A("s_branch L_dma_done")
                    V.put(self.vWa)
                else:
                    self.plan1 = plan[n:]
            A.label("L_dma_done")
        if self.o["dma0_ack2"] and self.o["dma_at"] != "none":
            A(f"s_cmp_eq_u32 {self.sRole}, 0\ns_cbranch_scc0 L_dma0_done")
            for a, b in self.dma_plan(A, 0):
                A(a)
                A(b, tag="dma")
            V.put(self.vWa)
            A.label("L_dma0_done")
        early = self.o["dma_s2"] and self.o["dma_at"] != "none"
        if early:
            A(f"s_cmp_eq_u32 {self.sRole}, 1\ns_cbranch_scc1 L_plan1")
            p0 = self.dma_plan(A, 0)
            keep = self.vWa
            A("s_branch L_plan_done")
            A.label("L_plan1")
            V.put(keep)
            p1 = self.dma_plan(A, 1)
            assert str(keep) == str(self.vWa)
            A.label("L_plan_done")
        self.stamp("dma", A)
        if self.o.get("early_z"):
            self.sEarly = self.S.get(2)
            A(f"s_lshr_b32 s3, {self.rowid()}, 5\ns_lshr_b32 s3, {sum(1 << j for j in self.o['early_z'])}, s3\ns_bitcmp1_b32 s3, 0")
            A(f"s_cselect_b64 {self.sEarly}, -1, 0")
            A("s_cbranch_scc1 L_noack\ns_waitcnt vmcnt(0)")
            A.label("L_noack")
        elif not self.o.get("s2_noack"):
            A.wait(vm=0)
        if self.o["poison_at"] == "pub":
            self.poll(A, "flg", lambda C: C(f"global_load_dword {self.vFl}, {self.vFi}, s[30:31] sc1"),
                      lambda C: C(f"v_cmp_ne_u32 vcc, {self.sE}, {self.vFl}"))
            V.put(self.vFl, self.vFi)
        self.stamp("ack2", A)
        ZT = self.ZT

        def s2_loads(C):
            C(f"global_load_dwordx4 {ZT[0:4]}, {self.vS2i}, s[30:31] sc1")
            C(f"global_load_dwordx4 {ZT[4:8]}, {self.vS2i2}, s[30:31] sc1")
        s2_loads(A)
        self.poll(A, "s2", s2_loads, self.poison_check([ZT[k] for k in range(8)], t0))
        self.stamp("s2", A)
        if early:
            n1 = self.o["dma_s2"] - 1
            A(f"s_cmp_eq_u32 {self.sRole}, 0\ns_cbranch_scc0 L_dma_n0")
            for a, b in p0:
                A(a)
                A(b)
            A.label("L_dma_n0")
            if n1:
                A(f"s_cmp_eq_u32 {self.sRole}, 1\ns_cbranch_scc0 L_dma_n1")
                for a, b in p1[:n1]:
                    A(a)
                    A(b)
                A.label("L_dma_n1")
            A.vm = []
            self.plan1 = p1[n1:]
        HP = get(8)
        self.T = T = get(8)
        for grp in range(2):
            for jj in range(4):
                j = 4 * grp + jj
                sel = self.sHi if j % 2 else self.sLo
                A(f"v_dot2_f32_bf16 {T[jj]}, {ZT[j // 2]}, {sel}, {UD[j]}")
                A(f"v_dot2_f32_bf16 {T[4 + jj]}, {ZT[4 + j // 2]}, {sel}, {UD[8 + j]}")
            for k in range(8):
                self.rnd(A, T[k], T[k])
            for q in range(2):
                j = 4 * grp + 2 * q
                A(f"v_pk_add_f32 {T[2 * q:2 * q + 2]}, {T[2 * q:2 * q + 2]}, {XL[j:j + 2]}")
                A(f"v_pk_add_f32 {T[4 + 2 * q:6 + 2 * q]}, {T[4 + 2 * q:6 + 2 * q]}, {XH[j:j + 2]}")
            for jj in range(4):
                A(f"v_cvt_pk_bf16_f32 {HP[4 * grp + jj]}, {T[jj]}, {T[4 + jj]}")
            for q in range(2):
                j = 4 * grp + 2 * q
                A(f"ds_write2st64_b32 {self.vHw2}, {HP[j]}, {HP[j + 1]} offset0:{4 * j} offset1:{4 * j + 4}")
        self.stamp("hw", A)
        A.barrier()
        self.stamp("b7", A)
        V.put(XL, XH, *UD.groups, HP, ZT, self.vS2i, self.vS2i2, self.XA)
        HB = get(8)
        A(f"ds_read_b128 {HB[0:4]}, {vHr} offset:{L_H}\nds_read_b128 {HB[4:8]}, {vHr} offset:{L_H + 512}")
        s1, s2, s3, NM, RS = get(), get(), get(), get(2), get(2)
        self.key = key = get()
        for k in range(8):
            A(f"v_dot2_f32_bf16 {s1}, {HB[k]}, {self.sOnes}, {s1 if k else 0}")
            A(f"v_dot2_f32_bf16 {s2}, {HB[k]}, {HB[k]}, {s2 if k else 0}")
            A(f"v_dot2_f32_bf16 {s3}, {HB[k]}, {self.WR[k]}, {s3 if k else 0}")
        self.allreduce(A, "v_add_f32", [s1, s2, s3], 32)
        self.ln_stats(A, s1, s2, NM[0], RS[0])
        A(f"v_fma_f32 {s3}, {NM[0]}, {vSW}, {s3}\nv_mul_f32 {s3}, {s3}, {RS[0]}")
        self.rnd(A, s3, s3)
        A(f"""
        v_ashrrev_i32 {t0}, 31, {s3}
        v_or_b32 {t0}, 0x80000000, {t0}
        v_xor_b32 {t0}, {s3}, {t0}
        v_and_b32 {t0}, 0xffff0000, {t0}
        v_or_b32 {key}, {t0}, {t2}
        s_mov_b64 exec, 1
        s_bitset1_b64 exec, 32
        ds_write_b32 {vKw}, {key} offset:{L_KEY}
        s_mov_b64 exec, -1
        """)
        self.stamp("key", A)
        V.put(self.WR, vSW, s1, s2, s3, vKw)
        H32 = Multi([get(4) for _ in range(4)])
        late = self.o.get("late_unpack")
        for k in range(0 if late else 8):
            A(f"v_lshlrev_b32 {H32[2 * k]}, 16, {HB[k]}\nv_and_b32 {H32[2 * k + 1]}, 0xffff0000, {HB[k]}")
        A.barrier()
        self.kmax = kmax = get()
        A(f"ds_read_b128 {T[0:4]}, {t1} offset:{L_KEY}\nds_read_b128 {T[4:8]}, {t1} offset:{L_KEY + 16}")
        HN = Multi([get(4) for _ in range(2)])
        self.D = D = Multi([get(4) for _ in range(8)])
        A(f"v_mov_b32 {NM[1]}, {NM[0]}\nv_mov_b32 {RS[1]}, {RS[0]}")
        for k in range(8):
            if not late:
                A(f"v_pk_add_f32 {D[2 * k:2 * k + 2]}, {H32[2 * k:2 * k + 2]}, {NM}")
            elif k < 5:
                A(f"v_lshlrev_b32 {H32[2 * k]}, 16, {HB[k]}\nv_and_b32 {H32[2 * k + 1]}, 0xffff0000, {HB[k]}")
        A(f"v_max3_u32 {kmax}, {T[0]}, {T[1]}, {T[2]}\nv_max3_u32 {t0}, {T[3]}, {T[4]}, {T[5]}")
        A(f"v_max3_u32 {kmax}, {kmax}, {T[6]}, {T[7]}\nv_max_u32 {kmax}, {kmax}, {t0}")
        rep = self.o.get("s3_rep", 8)
        if rep == 8:
            A("s_mov_b64 exec, 3")
        else:
            A(f"s_cmp_lt_u32 {sW}, {max(rep // 2, 1)}\ns_cselect_b64 exec, {3 if rep > 1 else 1}, 0")
        A(f"global_store_dword {vS3o}, {kmax}, s[30:31] sc1", tag="s3st")
        A("s_mov_b64 exec, -1")
        self.stamp("pub3", A)
        sC = self.sC
        A(f"v_cmp_eq_u32 {sC}, {key}, {kmax}")
        if late:
            for k in range(5, 8):
                A(f"v_lshlrev_b32 {H32[2 * k]}, 16, {HB[k]}\nv_and_b32 {H32[2 * k + 1]}, 0xffff0000, {HB[k]}")
            for k in range(8):
                A(f"v_pk_add_f32 {D[2 * k:2 * k + 2]}, {H32[2 * k:2 * k + 2]}, {NM}")
        for k in range(16):
            self.rnd(A, D[k], D[k])
        for k in range(8):
            A(f"v_pk_mul_f32 {D[2 * k:2 * k + 2]}, {D[2 * k:2 * k + 2]}, {RS}")
        for k in range(8):
            A(f"v_cvt_pk_bf16_f32 {HN[k]}, {D[2 * k]}, {D[2 * k + 1]}")
        A(f"s_mov_b64 exec, {sC}")
        A(f"global_store_dwordx4 {vRo}, {HN[0:4]}, s[30:31] sc1", tag="rowst")
        A(f"global_store_dwordx4 {vRo}, {HN[4:8]}, s[30:31] offset:512 sc1", tag="rowst")
        A(f"global_store_dwordx4 {vRo}, {HB[0:4]}, s[30:31] offset:1024 sc1", tag="rowst")
        A(f"global_store_dwordx4 {vRo}, {HB[4:8]}, s[30:31] offset:1536 sc1", tag="rowst")
        A("s_mov_b64 exec, -1")
        self.stamp("hn", A)
        self.O = O = Multi([get(4) for _ in range(2)])

        def outc(X):
            for k in range(8):
                X(f"v_dot2_f32_bf16 {D[2 * k]}, {HN[k]}, {self.sLo}, {H32[2 * k]}")
                X(f"v_dot2_f32_bf16 {D[2 * k + 1]}, {HN[k]}, {self.sHi}, {H32[2 * k + 1]}")
            for k in range(8):
                X(f"v_cvt_pk_bf16_f32 {O[k]}, {D[2 * k]}, {D[2 * k + 1]}")
            V.put(*H32.groups)
        V.put(NM, RS, vS3o, vRo)
        self.outc = outc
        if not self.o.get("early_poll"):
            outc(A)
            self.outc = lambda X: None
        self.stamp("outc", A)

    def out_stores(self, C):
        pol = self.o["out_pol"]
        C(f"global_store_dwordx4 {self.vRow}, {self.O[0:4]}, s[28:29] {pol}", tag="out")
        C(f"global_store_dwordx4 {self.vRow}, {self.O[4:8]}, s[28:29] offset:512 {pol}", tag="out")

    def resolve(self, A, sfx, between=None):
        t0, t1, t2 = self.t
        T, kin = self.T, self.kin

        def s3_loads(C):
            C(f"global_load_dword {kin}, {self.vS3i}, s[30:31] sc1")
        s3_loads(A)
        if between:
            between()
        A(f"v_lshrrev_b32 {t1}, 4, v0\nv_and_b32 {t1}, 12, {t1}\nv_mov_b32 {t2}, 0")
        self.poll(A, "s3" + sfx, s3_loads, self.poison_check([kin], t0))
        self.stamp("s3p", A)
        self.allreduce(A, "v_max_u32", [kin], 64)
        self.stamp("s3w", A)
        A(f"s_mov_b64 exec, 1\nds_write_b32 {t1}, {kin} offset:{L_KEY2}\ns_mov_b64 exec, -1")
        A.barrier()
        A(f"ds_read_b128 {T[0:4]}, {t2} offset:{L_KEY2}")
        A(f"v_max3_u32 {kin}, {T[0]}, {T[1]}, {T[2]}\nv_max_u32 {kin}, {kin}, {T[3]}")
        A(f"v_readfirstlane_b32 {self.sK}, {kin}")
        A(f"s_and_b32 {self.sT}, {self.sK}, 0x7ff\ns_sub_u32 {self.sT}, 2047, {self.sT}")
        self.stamp("s3", A)
        A(f"s_lshr_b32 s3, {self.sT}, 3\ns_lshl_b32 s3, s3, 11\ns_add_u32 s3, s3, {WS_ROWS}")

    def finish(self, A, sfx):
        A.flush()
        A.label(f"L_fin_{sfx}")
        if self.o["stamps"]:
            A.wait(vm=0)
            self.stamp("end", A)
            if self.o["clk"]:
                A("s_memtime s[96:97]")
                A.wait(lg=0)
                A("s_sub_u32 s100, s96, s100\ns_mov_b32 s101, 0")
            A("s_waitcnt vmcnt(0) lgkmcnt(0)")
            self.dump_stamps(A)
        A("s_endpgm")

    def early_rows(self, A):
        if self.o.get("early_pace"):
            A(f"s_andn2_b64 {self.sEarly}, {self.sEarly}, {self.sC}\ns_mov_b64 exec, {self.sEarly}")
            self.out_stores(A)
            A("s_mov_b64 exec, -1")
            A.wait(vm=0)

    def tail0(self, A):
        V = self.V
        get = V.get
        vL, vI, vG, sL, sW, sC = self.vL, self.vI, self.vG, self.sL, self.sW, self.sC
        t0, t1, t2 = self.t
        T, D = self.T, self.D
        vTr, vRed, vXs, vPub, vRd = get(), get(), get(), get(), get()
        WT = [self.AC.get(4, 4) for _ in range(8)]
        plan = [] if self.o["dma_ack2"] or self.o["dma0_ack2"] or self.o["dma_s2"] else self.dma_plan(A, 0)
        if self.o["dma_at"] == "none":
            plan = []

        def dma():
            for a, b in plan:
                A(a)
                A(b, tag="dma")
        if not self.o["r0_late"]:
            dma()

        def tr_reads():
            A.wait_tag("dma")
            for ct in range(2):
                for m in range(4):
                    for e2 in range(2):
                        A(f"ds_read_b64_tr_b16 {WT[4 * ct + m][2 * e2:2 * e2 + 2]}, {vTr} offset:{(32 * m + 4 * e2) * 64 + 32 * ct}")

        def setup():
            A(f"""
            v_and_b32 {t0}, 3, {vI}
            v_lshlrev_b32 {t0}, 3, {t0}
            v_lshrrev_b32 {t2}, 2, {vI}
            v_lshl_add_u32 {t2}, {vG}, 3, {t2}
            v_lshl_add_u32 {t0}, {t2}, 6, {t0}
            v_add_u32 {vTr}, {self.sWb}, {t0}
            s_lshl_b32 s3, {sW}, 2
            v_lshl_add_u32 {vRed}, {vI}, 4, s3
            v_and_b32 {t0}, 3, {vI}
            v_lshlrev_b32 {t0}, 6, {t0}
            v_lshl_add_u32 {t0}, {vG}, 4, {t0}
            s_lshl_b32 s3, {sW}, 8
            v_add_u32 {vXs}, s3, {t0}
            v_and_b32 {t0}, 31, {vL}
            v_lshlrev_b32 {vRd}, 4, {t0}
            v_lshrrev_b32 {t2}, 5, {vL}
            v_lshlrev_b32 {t2}, 13, {t2}
            v_lshl_add_u32 {t2}, {t0}, 1, {t2}
            s_lshl_b32 s3, {sW}, 14
            s_lshl_b32 s16, {self.sUp}, 12
            s_add_u32 s3, s3, s16
            s_lshl_b32 s16, {self.sBlk}, 6
            s_add_u32 s3, s3, s16
            s_add_u32 s3, s3, {WS_S4}
            v_add_u32 {vPub}, s3, {t2}
            """)
        ep = self.o.get("early_poll")
        if ep == 2:
            self.outc(A)
        if not ep:
            setup()
        self.early_rows(A)
        A.wait_tag("s3st")
        self.stamp("ack3", A)

        late_out = self.o["r0_late"] == 2

        def between():
            if ep:
                setup()
            if ep == 1:
                self.outc(A)
            if self.o["r0_late"]:
                dma()
            if not late_out:
                A(f"s_andn2_b64 exec, -1, {sC}")
                self.out_stores(A)
                A("s_mov_b64 exec, -1")
            if not self.o["r0_late"]:
                tr_reads()
        self.resolve(A, "r0", between)
        XS = get(4)
        A(f"v_add_u32 {vXs}, s3, {vXs}")

        def row_loads(C):
            C(f"global_load_dwordx4 {XS}, {vXs}, s[30:31] sc1")
        row_loads(A)
        if late_out:
            A(f"v_cmp_ne_u32 {sC}, {self.kin}, {self.key}")
        else:
            A(f"v_cmp_ne_u32 vcc, {self.kin}, {self.kmax}\ns_and_b64 exec, vcc, {sC}")
            self.out_stores(A)
            A("s_mov_b64 exec, -1")
        if getattr(self, "late_barrier", False):
            A("s_barrier")
            self.late_barrier = False
        if self.o["r0_late"]:
            tr_reads()
        self.poll(A, "rowr0", row_loads, self.poison_check([XS[k] for k in range(4)], t0))
        self.stamp("row", A)
        for k in range(8):
            A(f"v_mfma_f32_16x16x32_bf16 {D[4 * k:4 * k + 4]}, {XS}, {WT[k]}, 0")
        A(f"s_cmp_eq_u32 {self.sUp}, 0\ns_cselect_b64 s[16:17], -1, 0")
        A(f"""
        v_add_f32 {t0}, {D[0]}, {D[5]}
        v_add_f32 {t1}, {D[10]}, {D[15]}
        v_add_f32 {t0}, {t0}, {t1}
        v_add_f32 {t1}, {D[16]}, {D[21]}
        v_add_f32 {t2}, {D[26]}, {D[31]}
        v_add_f32 {t1}, {t1}, {t2}
        s_mov_b64 exec, 0xffff
        ds_write_b32 {vRed}, {t0} offset:{L_RED}
        ds_write_b32 {vRed}, {t1} offset:{L_RED + 256}
        s_mov_b64 exec, -1
        """)
        self.stamp("g1m", A)
        A.barrier()
        self.stamp("g1b", A)
        A(f"ds_read_b128 {T[0:4]}, {vRd} offset:{L_RED}")
        A(f"v_pk_add_f32 {T[0:2]}, {T[0:2]}, {T[2:4]}\nv_add_f32 {T[0]}, {T[0]}, {T[1]}")
        self.rnd(A, T[0], T[0])
        A(f"v_mul_f32 {t0}, {LOG2E | 0x80000000}, {T[0]}\nv_exp_f32 {t0}, {t0}\nv_add_f32 {t0}, 1.0, {t0}")
        A(f"v_rcp_f32 {t0}, {t0}\nv_mul_f32 {t0}, {T[0]}, {t0}")
        A(f"v_cndmask_b32 {t0}, {T[0]}, {t0}, s[16:17]")
        A(f"v_mov_b32_dpp {t1}, {t0} row_shl:1 row_mask:0xf bank_mask:0xf")
        A(f"v_cvt_pk_bf16_f32 {XS[0]}, {t0}, {t1}")
        for k in range(1, 4):
            A(f"v_mov_b32_dpp {XS[k]}, {XS[0]} row_shl:{2 * k} row_mask:0xf bank_mask:0xf")
        A("s_mov_b32 exec_lo, 0x01010101\ns_mov_b32 exec_hi, 0x01010101")
        A(f"global_store_dwordx4 {vPub}, {XS}, s[30:31] sc1")
        self.stamp("g1", A)
        if late_out:
            if self.o.get("r0_ackout"):
                A.wait(vm=0)
            A(f"s_andn2_b64 exec, {sC}, {self.sEarly}" if self.o.get("early_pace") else f"s_mov_b64 exec, {sC}")
            self.out_stores(A)
        self.finish(A, "r0")

    def tail2(self, A):
        self.outc(A)
        if self.o.get("r2_mode") == 2:
            A.wait_tag("s3st")
            A(f"s_andn2_b64 exec, -1, {self.sC}")
            self.out_stores(A)
            A("s_mov_b64 exec, -1")
            A.wait(vm=0)
            self.resolve(A, "r2")
            A(f"v_cmp_ne_u32 vcc, {self.kin}, {self.kmax}\ns_and_b64 exec, vcc, {self.sC}")
            self.out_stores(A)
            self.finish(A, "r2")
            return
        A.wait_tag("rowst" if self.o.get("r2_mode") == 1 else "s3st")
        self.stamp("ack3", A)

        def between():
            A(f"s_andn2_b64 exec, -1, {self.sC}")
            self.out_stores(A)
            A("s_mov_b64 exec, -1")
        if self.o["r2_late"]:
            self.resolve(A, "r2")
            A(f"v_cmp_ne_u32 vcc, {self.kin}, {self.key}\ns_mov_b64 exec, vcc")
        else:
            self.resolve(A, "r2", between)
            A(f"v_cmp_ne_u32 vcc, {self.kin}, {self.kmax}\ns_and_b64 exec, vcc, {self.sC}")
        self.out_stores(A)
        self.finish(A, "r2")

    def tail1(self, A):
        V = self.V
        get = V.get
        vL, vI, vG, sL, sW, sC = self.vL, self.vI, self.vG, self.sL, self.sW, self.sC
        t0, t1, t2 = self.t
        T, D = self.T, self.D
        plan = self.plan1 if self.o["dma_ack2"] or self.o["dma_s2"] else self.dma_plan(A, 1)
        if self.o["dma_at"] == "none":
            plan = []
        n1 = self.o["r1_split"]
        for a, b in plan[:n1]:
            A(a)
            A(b, tag="dma")
        self.early_rows(A)
        A.wait_tag("s3st")
        self.stamp("ack3", A)

        def between():
            self.outc(A)
            for a, b in plan[n1:]:
                A(a)
                A(b, tag="dma")
        self.resolve(A, "r1", between)
        vTr, vRed, vSig, vOut, vS4i = get(), get(), get(), get(), get()
        HH = get(2)
        A(f"""
        s_lshl_b32 s16, {self.sBlk}, 5
        s_add_u32 s3, s3, s16
        v_lshrrev_b32 {t1}, 1, {vI}
        v_lshl_add_u32 {t1}, {t1}, 2, s3
        """)

        def row_loads(C):
            C(f"global_load_dword {HH[0]}, {t1}, s[30:31] sc1")
            C(f"global_load_dword {HH[1]}, {t1}, s[30:31] offset:1024 sc1")
        row_loads(A)

        if getattr(self, "late_barrier", False):
            A("s_barrier")
            self.late_barrier = False

        def own_rows():
            A(f"v_cmp_eq_u32 vcc, {self.kin}, {self.key}\ns_andn2_b64 exec, -1, vcc")
            if self.o.get("early_pace"):
                A(f"s_andn2_b64 exec, exec, {self.sEarly}")
            self.out_stores(A)
            A("s_mov_b64 exec, -1")
        if self.o["r1_out"] == "row":
            own_rows()
        A(f"""
        v_and_b32 {t0}, 3, {vI}
        v_lshlrev_b32 {t0}, 3, {t0}
        v_lshrrev_b32 {t2}, 2, {vI}
        v_lshl_add_u32 {t2}, {vG}, 3, {t2}
        v_lshl_add_u32 {t0}, {t2}, 5, {t0}
        v_add_u32 {vTr}, {self.sWb}, {t0}
        """)
        self.poll(A, "rowr1", row_loads, self.poison_check([HH[0], HH[1]], t0))
        self.stamp("row", A)
        WT = [self.AC.get(4, 4) for _ in range(14)]
        A.wait_tag("dma")
        if self.o["r1_out"] == "tr":
            own_rows()
        self.stamp("r1o", A)
        for m in range(14):
            for e2 in range(2):
                A(f"ds_read_b64_tr_b16 {WT[m][2 * e2:2 * e2 + 2]}, {vTr} offset:{(32 * m + 4 * e2) * 32}")
        self.stamp("r1t", A)
        sK, sT = self.sK, self.sT
        A(f"""
        s_and_b32 s16, {sK}, 0x7fff0000
        s_andn2_b32 s17, 0xffff0000, {sK}
        s_bitcmp1_b32 {sK}, 31
        s_cselect_b32 s16, s16, s17
        v_mov_b32 {t0}, s16
        v_mul_f32 {t0}, {LOG2E | 0x80000000}, {t0}
        v_exp_f32 {t0}, {t0}
        v_add_f32 {t0}, 1.0, {t0}
        v_rcp_f32 {t0}, {t0}
        """)
        self.rnd(A, vSig, t0)
        vS4u = get()
        A(f"""
        v_and_b32 {t0}, 1, {vI}
        v_xor_b32 {t0}, 1, {t0}
        v_lshlrev_b32 {t0}, 4, {t0}
        v_lshlrev_b32 {HH[0]}, {t0}, {HH[0]}
        v_lshlrev_b32 {HH[1]}, {t0}, {HH[1]}
        v_and_b32 {HH[0]}, 0xffff0000, {HH[0]}
        v_and_b32 {HH[1]}, 0xffff0000, {HH[1]}
        s_lshl_b32 s3, {sT}, 10
        s_lshl_b32 s16, {self.sBlk}, 5
        s_add_u32 s3, s3, s16
        v_lshl_add_u32 {vOut}, {vI}, 1, s3
        s_lshr_b32 s3, {sL}, 5
        s_lshl_b32 s3, s3, 13
        s_mul_i32 s16, {sW}, {56 * 16}
        s_add_u32 s3, s3, s16
        s_add_u32 s3, s3, {WS_S4}
        v_min_u32 {t0}, 13, {vI}
        v_lshl_add_u32 {t0}, {t0}, 2, {vG}
        v_lshl_add_u32 {vS4i}, {t0}, 4, s3
        v_add_u32 {vS4u}, 0x1000, {vS4i}
        s_lshl_b32 s3, {sW}, 2
        v_lshl_add_u32 {vRed}, {vI}, 4, s3
        v_mov_b32 {t2}, 0
        v_lshlrev_b32 {t1}, 4, {vI}
        """)
        if self.o["r1_out"] == "late":
            own_rows()
        A.wait(vm=0)
        self.stamp("r1a", A)
        GU, XS = Multi([get(4) for _ in range(2)]), get(4)

        def s4_loads(C):
            C(f"global_load_dwordx4 {GU[0:4]}, {vS4i}, s[30:31] sc1")
            C(f"global_load_dwordx4 {GU[4:8]}, {vS4u}, s[30:31] sc1")
        s4_loads(A)
        self.poll(A, "s4", s4_loads, self.poison_check([GU[k] for k in range(8)], t0))
        self.stamp("g1", A)
        for k in range(4):
            A(f"v_and_b32 {T[2 * k]}, 0xffff, {GU[k]}\nv_and_b32 {T[2 * k + 1]}, 0xffff0000, {GU[k]}")
        for k in range(8):
            A(f"v_dot2_f32_bf16 {T[k]}, {T[k]}, {GU[4 + k // 2]}, 0")
        for k in range(4):
            A(f"v_cvt_pk_bf16_f32 {XS[k]}, {T[2 * k]}, {T[2 * k + 1]}")
        DD = [D[4 * k:4 * k + 4] for k in range(8)]
        acc = [t2, get()]
        A(f"v_mov_b32 {acc[1]}, 0")
        for m in range(14 + 4):
            if m < 14:
                A(f"v_mfma_f32_16x16x32_bf16 {DD[m % 8]}, {XS}, {WT[m]}, 0")
            k = m - 4
            if k >= 0:
                a = acc[k % 2]
                A(f"v_add_f32_dpp {a}, {DD[k % 8][k % 4]}, {a} quad_perm:[0,1,2,3] row_mask:{1 << (k // 4)} bank_mask:0xf")
        A(f"v_add_f32 {t2}, {t2}, {acc[1]}")
        for sw in ("v_permlane16_swap_b32", "v_permlane32_swap_b32"):
            A(f"v_mov_b32 {t0}, {t2}\n{sw} {t2}, {t0}\nv_add_f32 {t2}, {t2}, {t0}")
        A(f"s_mov_b64 exec, 0xffff\nds_write_b32 {vRed}, {t2} offset:{L_RED}\ns_mov_b64 exec, -1")
        self.stamp("g2m", A)
        if self.o["r1_out"] == "end":
            own_rows()
        A.barrier()
        A(f"s_cmp_eq_u32 {sW}, 0\ns_cbranch_scc0 L_fin_r1")
        A(f"ds_read_b128 {T[0:4]}, {t1} offset:{L_RED}")
        A(f"v_pk_add_f32 {T[0:2]}, {T[0:2]}, {T[2:4]}\nv_add_f32 {t0}, {T[0]}, {T[1]}")
        self.rnd(A, t0, t0)
        A(f"v_mul_f32 {t0}, {t0}, {vSig}")
        self.rnd(A, t0, t0)
        A(f"v_add_f32 {t0}, {t0}, {HH[0]}")
        self.rnd(A, t0, t0)
        A(f"v_add_f32 {t0}, {t0}, {HH[1]}")
        self.rnd(A, t0, t0)
        A("s_mov_b64 exec, 0xffff")
        A(f"global_store_short_d16_hi {vOut}, {t0}, s[28:29] {self.o['fin_pol']}")
        self.stamp("g2", A)
        A(f"s_cmp_eq_u32 {self.sBlk}, 0\ns_cbranch_scc0 L_fin_r1")
        A("s_mov_b64 exec, 1")
        A(f"v_mov_b32 {t0}, {self.sE}\nv_mov_b32 {t2}, 0")
        A(f"global_store_dword {t2}, {t0}, s[30:31] offset:{WS_EPOCH} {self.o['fin_pol']}")
        self.finish(A, "r1")

    def build(self):
        A = self.A
        self.prologue()
        self.ksl = self.ksetup_lines()
        self.ksteps = self.kgen_steps()
        self.weave(self.o["wv"][0])
        for _ in range(self.o["kpre"]):
            next(self.ksteps)
        if self.o["poison_at"] == "kpre":
            self.poison2()
        self.ln1()
        self.kgen()
        self.sWb, self.sC, self.sK, self.sT = self.S.get(), self.S.get(2), self.S.get(), self.S.get()
        self.conv_all()
        self.phase_c()
        self.kin = self.V.get()
        A(f"s_cmp_eq_u32 {self.sRole}, 1\ns_cbranch_scc1 L_role1")
        B = A.fork()
        B.label("L_role1")
        A(f"s_cmp_eq_u32 {self.sRole}, 2\ns_cbranch_scc1 L_role2")
        C = A.fork()
        C.label("L_role2")
        vfree, afree = set(self.V.free), set(self.AC.free)
        self.tail0(A)
        self.V.free, self.AC.free = set(vfree), set(afree)
        self.tail1(B)
        self.V.free, self.AC.free = set(vfree), set(afree)
        self.tail2(C)
        B.lines += C.lines
        B.count += C.count
        body = A.text() + B.text() + "".join(c.text() for c in self.cold)
        nv = self.V.top + 1
        accum = (nv + 3) // 4 * 4
        total = max(accum + self.AC.top + 1, 264)
        head = open(f"cdna_kernels/{NAME}.s.ref").read().split("; Override launch geometry")[0]
        self.stats = dict(instr=A.count + B.count, nops=A.nops + B.nops, vgpr=nv, agpr=self.AC.top + 1, mfma=self.nmfma, bg_left=self.bg_left)
        tab = ""
        if self.o["band_tab"]:
            tab = f".p2align 7\n.type L_tab,@object\nL_tab:\n{band_table()}\n.size L_tab, 4096\n"
        return head + f"""; One persistent launch: 256 workgroups, one per CU, exchanging data through d_ws.
; @launch grid=(256,1,1) block=(256,1,1) lds={LDS_BYTES}
.amdgcn_target "amdgcn-amd-amdhsa--gfx950"
.text
.globl {NAME}_kernel
.p2align 8
.type {NAME}_kernel,@function
{NAME}_kernel:
{body}L_end:
    s_endpgm
L_code_end:
{tab}L_all_end:
.section .rodata,"a"
.p2align 6
.amdhsa_kernel {NAME}_kernel
  .amdhsa_next_free_vgpr {total}
  .amdhsa_next_free_sgpr 102
  .amdhsa_accum_offset {accum}
  .amdhsa_group_segment_fixed_size 0
  .amdhsa_kernarg_size 120
  .amdhsa_user_sgpr_count 2
  .amdhsa_user_sgpr_kernarg_segment_ptr 1
  .amdhsa_system_sgpr_workgroup_id_x 1
  .amdhsa_float_denorm_mode_32 3
.end_amdhsa_kernel
"""


def generate(path, **opt):
    g = Gen(**opt)
    text = g.build()
    open(path, "w").write(text)
    return g.stats


if __name__ == "__main__":
    out = sys.argv[1] if len(sys.argv) > 1 else f"cdna_kernels/{NAME}.s"
    opts = {}
    for a in sys.argv[2:]:
        k, v = a.split("=")
        opts[k] = {"True": True, "False": False}.get(v, int(v) if v.isdigit() else v)
    print(generate(out, **opts))
```

```python
import re
import sys
from asmdsl import Asm, Pool, R
import gen_v9 as base
from gen_v9 import *

L_G = L_KEY2 + 16
VMAX = 116
EXTRA = dict(hb1=40, prio=2, hst=False, s1_go="ack", m_wait=True)


class Gen(base.Gen):
    def __init__(self, **opt):
        o = dict(EXTRA)
        o.update(opt)
        if isinstance(o.get("h_dma"), str):
            a = [int(x) for x in o["h_dma"].split("_")]
            o["h_dma"] = ((a[0], a[1]), (a[2], a[3]))
        if isinstance(o["early_z"], (str, int)) and o["early_z"]:
            o["early_z"] = [int(c) for c in str(o["early_z"]).lstrip("t")]
        o["pad"] = o["pad"].replace(" ", "+")
        if o["pages"]:
            o["pad"] = "rec+dma"
        super().__init__(**o)
        self.V = Pool("v", 1, VMAX - 1)
        self.AC = Pool("a", 0, 255 - VMAX)
        self.is_h = False

    NOTES = {"x": "first LayerNorm: row statistics", "b1": "normalise, tag and publish u",
             "pub1": "chores while the helpers finish K", "s1w": "u into LDS", "b5": "convolution",
             "conv": "publish y", "st2": "operands of the row phase", "s2": "h = x + (y + u * D)",
             "b7": "second LayerNorm and router score", "pub3": "LN(h) and the candidate row", "hn": "plain output rows",
             "ack3": "gather the keys", "s3": "row of the chosen token", "r1a": "gather the activations",
             "g1b": "activation", "g2m": "final row"}
    HNOTES = {"karg": "helper: LDS set-up and addresses", "b1": "helper: per-mode constants", "ws": "helper: mode factors and products",
              "kmf": "helper: four shifted copies of the K arrays", "shift": "helper: FFN weight slabs"}

    def stamp(self, name, A=None):
        note = (self.HNOTES if self.is_h else self.NOTES).get(name)
        if note:
            (A or self.A).comment(note)
        if name == self.o["b8b"] and not self.is_h:
            (A or self.A)("s_barrier")
        if name in self.o["pad"].split("+") and not self.is_h:
            X = A or self.A
            X(f"s_branch L_pad_{name}")
            X.raw(".p2alignl 12, 0xbf810000")
            X.label(f"L_pad_{name}")
        if name == "r1o" and self.o["b9b"]:
            (A or self.A)("s_barrier")
        if self.is_h == bool(self.o["hst"]) or name == "start":
            super().stamp(name, A)

    def entry(self):
        A, V, S = self.A, self.V, self.S
        A("s_cmp_ge_u32 s2, 0x100\ns_cbranch_scc1 L_end")
        A("s_load_dwordx16 s[4:19], s[0:1], 0")
        if not self.o["karg2"]:
            self.rest_args(A)
        self.stamp("start")
        self.sL, self.sW, self.sTag, self.sE = S.get(), S.get(), S.get(), S.get()
        self.sOnes, self.sLo, self.sHi, self.sCh = S.get(), S.get(), S.get(), S.get()
        self.sB, self.sH, self.sa, self.sb = S.get(), S.get(), S.get(), S.get()
        sL, sW = self.sL, self.sW
        self.vL, self.vI, self.vG = V.get(), V.get(), V.get()
        self.vJunk = V.get(2)
        t0, t1, t2 = V.get(), V.get(), V.get()
        self.sPc = S.get(2)
        A(f"v_lshrrev_b32 {t0}, 6, v0\ns_lshr_b32 {sL}, s2, 3\ns_getpc_b64 {self.sPc}")
        A.label("L_pc")
        A(f"""
        v_lshl_add_u32 {t2}, {sL}, 3, {t0}
        v_and_b32 {t2}, 63, {t2}
        v_and_b32 {t1}, 3, v0
        v_lshl_add_u32 {t2}, {t2}, 2, {t1}
        v_lshlrev_b32 {t2}, 7, {t2}
        v_min_u32 {t2}, L_all_end-L_pc-4, {t2}
        global_load_dword {self.vJunk[0]}, {t2}, {self.sPc}
        v_readfirstlane_b32 {self.sb}, {t0}
        s_and_b32 s3, s2, 7
        s_lshl_b32 s3, s3, 5
        s_add_u32 {sL}, {sL}, s3
        v_and_b32 v0, 0xff, v0
        v_and_b32 {self.vL}, 63, v0
        s_and_b32 {sW}, {self.sb}, 3
        s_lshr_b32 {self.sB}, {sW}, 1
        s_and_b32 {self.sH}, {sW}, 1
        s_cmp_ge_u32 {self.sb}, 4
        s_cbranch_scc1 L_helper
        """)
        V.put(t0, t1, t2)

    def rest_args(self, A):
        A("s_load_dwordx8 s[20:27], s[0:1], 64\ns_load_dwordx2 s[28:29], s[0:1], 96\ns_load_dwordx2 s[30:31], s[0:1], 112")

    def helper(self, A):
        self.A, self.is_h = A, True
        if self.o["hprio"]:
            A(f"s_setprio {self.o['hprio']}")
        V, S = self.V, self.S
        sL, sW, sB, sH, sb, vL, vI, vG = self.sL, self.sW, self.sB, self.sH, self.sb, self.vL, self.vI, self.vG
        t0, t1, t2, t3, vP = V.get(), V.get(), V.get(), V.get(), V.get()
        self.PAR, self.sDt = V.get(4), S.get()
        A(f"""
        s_lshr_b32 s3, {sL}, 6
        s_lshl_b32 {self.sCh}, s3, 7
        s_and_b32 s3, {sL}, 31
        s_lshl_b32 s3, s3, 2
        s_add_u32 {self.sCh}, {self.sCh}, s3
        s_bfe_u32 s3, {sL}, 0x10005
        s_add_u32 {self.sCh}, {self.sCh}, s3
        s_and_b32 s3, {sW}, 2
        s_add_u32 {self.sCh}, {self.sCh}, s3
        s_lshl_b32 s3, {self.sCh}, 8
        v_lshl_add_u32 {vP}, {vL}, 2, s3
        s_lshl_b32 s3, {self.sCh}, 1
        s_and_b32 s3, s3, -4
        """)
        for k in range(4):
            A(f"global_load_dword {self.PAR[k]}, {vP}, s[{6 + 2 * k}:{7 + 2 * k}]")
        self.vDt = V.get()
        A(f"v_mov_b32 {self.vDt}, s3\nglobal_load_dword {self.vDt}, {self.vDt}, s[14:15]")
        if self.o["karg2"]:
            self.rest_args(A)
        self.stamp("karg")
        A.raw(";@cut")
        if self.o["s1_touch"]:
            self.vT1 = V.get()
            A(f"""
            s_lshl_b32 s3, {sL}, 2
            s_add_u32 s3, s3, {sW}
            s_lshl_b32 s3, s3, 11
            s_add_u32 s3, s3, {WS_S1}
            v_and_b32 {self.vT1}, 15, {vL}
            v_lshl_add_u32 {self.vT1}, {self.vT1}, 7, s3
            """)
            self.hw = None
            self.helper_hook("start")
        if self.o["touch"]:
            ta, tz, J = V.get(), V.get(), V.get(6)
            A(f"v_min_u32 {ta}, 2, {vL}\nv_mul_u32_u24 {ta}, 0x260000, {ta}\nv_add_u32 {ta}, 0xf0000, {ta}\nv_mov_b32 {tz}, 0")
            A(f"global_load_dword {J[0]}, {ta}, s[30:31]")
            for k, base in enumerate(("s[20:21]", "s[16:17]", "s[22:23]", "s[24:25]", "s[26:27]")[:self.o["touch"] - 1]):
                A(f"global_load_dword {J[k + 1]}, {tz}, {base}")
            V.put(ta, tz)
        Z = V.get(4)
        self.vShift, self.vShiftR = V.get(), V.get()
        A(f"v_and_b32 {vI}, 15, v0\nv_bfe_u32 {vG}, v0, 4, 2")
        for k in range(4):
            A(f"v_mov_b32 {Z[k]}, 0")
        A(f"""
        v_lshlrev_b32 {t2}, 4, v0
        v_lshlrev_b32 {t3}, 2, {vL}
        v_and_b32 {t1}, 127, v0
        s_mul_i32 s3, {sB}, {UCH}
        s_add_u32 {sb}, s3, {L_U}
        v_lshl_add_u32 {t0}, {t1}, 2, {sb}
        ds_write_b128 {t2}, {Z} offset:{L_P}
        ds_write_b128 {t2}, {Z} offset:{L_P + 4096}
        ds_write_b128 {t2}, {Z} offset:{L_P + 8192}
        ds_write_b128 {t2}, {Z} offset:{L_P + 12288}
        ds_write_b32 {t3}, {Z[0]} offset:{L_P + 16384}
        ds_write_b32 {t0}, {Z[0]}
        s_mul_i32 s3, {sB}, {2 * PHALF}
        v_lshl_add_u32 {self.vShiftR}, {t1}, 4, s3
        s_mul_i32 s3, {sB}, {KCH}
        v_lshl_add_u32 {self.vShift}, {t1}, 4, s3
        """)
        self.sStM = S.get()
        self.vR, self.vS0, self.vS1r = V.get(), V.get(), V.get()
        self.vK1, self.vK3, self.vKs = V.get(), V.get(), V.get()

        def pa(m):
            return ((m >> 2) & 1) * PPLANE + (m >> 3) * 16 + (m & 3) * 4
        A(f"""
        s_mul_i32 s3, {sB}, {STAGE_CH}
        s_lshl_b32 {sb}, {sH}, 8
        s_add_u32 s3, s3, {sb}
        s_add_u32 {self.sStM}, s3, {L_STAGE - 0x8000}
        s_add_u32 s3, s3, {L_STAGE}
        v_lshl_add_u32 {t2}, {vG}, 4, s3
        v_xor_b32 {t0}, 3, {vI}
        v_bfe_u32 {t1}, {t0}, 1, 1
        v_add_u32 {t1}, {t0}, {t1}
        v_lshrrev_b32 {t1}, 1, {t1}
        s_movk_i32 s3, {ROWB}
        v_mad_u32_u24 {self.vR}, {vI}, s3, {t2}
        v_mad_u32_u24 {self.vS0}, {t0}, s3, {t2}
        v_mad_u32_u24 {self.vS1r}, {t1}, s3, {t2}
        s_mul_i32 s3, {sW}, {PHALF}
        s_add_u32 s3, s3, {L_P}
        v_xor_b32 {t3}, 3, {vG}
        v_and_b32 {t0}, 1, {t3}
        v_mul_u32_u24 {t0}, {PPLANE}, {t0}
        v_lshrrev_b32 {t3}, 1, {t3}
        v_lshl_add_u32 {t3}, {t3}, 4, {t0}
        v_add_u32 {t3}, s3, {t3}
        v_lshlrev_b32 {t0}, 5, {vI}
        v_sub_u32 {t0}, {t3}, {t0}
        v_add_u32 {self.vK1}, {pa(528 - 256)}, {t0}
        v_lshrrev_b32 {t1}, 1, {vI}
        v_lshrrev_b32 {t2}, 2, {vI}
        v_add_u32 {t2}, 2, {t2}
        v_min_u32 {t1}, {t1}, {t2}
        v_add3_u32 {t1}, {t1}, {vI}, {FAR // 16 + 1}
        v_lshl_add_u32 {self.vK3}, {t1}, 5, {t3}
        v_cmp_gt_u32 vcc, 8, {vI}
        v_mov_b32 {t0}, {pa(28)}
        v_mov_b32 {t1}, {pa(NX + 24)}
        v_cndmask_b32 {t0}, {t0}, {t1}, vcc
        v_add_u32 {self.vKs}, s3, {t0}
        s_lshl_b32 s3, {sB}, 2
        v_mov_b32 {t2}, s3
        """)
        hp = self.o["poison_at"] in ("h", "h1")
        self.hw = self.o["h_warm"]
        if hp or self.hw:
            self.helper_prep(A, hp)
        if self.o["h_p3"]:
            self.hM1, self.hta = V.get(4), V.get()
            for k in range(4):
                A(f"v_mov_b32 {self.hM1[k]}, -1")
            A(f"""
            v_mov_b32 {t0}, 152
            s_mul_i32 s3, {sL}, 2432
            s_add_u32 s3, s3, {WS_S3}
            v_lshl_add_u32 {self.hta}, v0, 4, s3
            v_cmp_gt_u32 s[10:11], {t0}, v0
            """)
        self.helper_hook("consts")
        self.stamp("consts")
        V.put(Z, vP, t0, t1, t3)
        self.ksl = [f"v_readfirstlane_b32 {self.sDt}, {self.vDt}"] + self.ksetup_lines()
        if self.o["b0"]:
            A.barrier()
            self.weave(self.o["hb1"])
        else:
            self.weave(self.o["hb1"])
            self.stamp("stat")
            A.barrier()
        self.stamp("b1")
        if self.o["poison_at"] == "h1":
            self.helper_mark(A)
        self.helper_hook("b1")
        if hp:
            A(f"s_load_dword {self.sE}, s[30:31], {WS_EPOCH}")
        self.weave(1000)
        A(f"ds_write_b32 {t2}, {self.vG16} offset:{L_G}")
        for _ in self.kgen_steps():
            pass
        self.stamp("kmf")
        self.helper_hook("b3")
        D, E = V.get(12), V.get(12)
        C = [V.get(4) for _ in range(4)]
        for k in range(3):
            off = L_P + (k & 1) * PPLANE + (k >> 1) * 16
            A(f"ds_read_b128 {D[4 * k:4 * k + 4]}, {self.vShiftR} offset:{off}")
            A(f"ds_read_b128 {E[4 * k:4 * k + 4]}, {self.vShiftR} offset:{off + PHALF}")
        for k in range(6):
            A(f"v_pk_add_f32 {D[2 * k:2 * k + 2]}, {D[2 * k:2 * k + 2]}, {E[2 * k:2 * k + 2]}")
        for c in range(4):
            for k in range(4):
                A(f"v_cvt_pk_f16_f32 {C[c][k]}, {D[c + 2 * k]}, {D[c + 2 * k + 1]}")
            if c % 2:
                for cc in (c - 1, c):
                    A(f"ds_write_b128 {self.vShift}, {C[cc]} offset:{L_K + cc * KCOPY}")
        self.stamp("shift")
        A.barrier()
        if self.o["hprio"]:
            A("s_setprio 0")
        self.helper_hook("b5")
        if self.o["poison_at"] == "h":
            self.helper_mark(A)
            self.helper_flag(A)
            A("s_barrier")
        if self.o["h_p3"]:
            A.wait(vm=0)
        if self.o["early_z"]:
            ZE, vz, vo, tmp = V.get(4), V.get(), V.get(), V.get()
            self.z_addr(A, self.o["early_z"], vz, vo, tmp)
            A(f"s_barrier\nds_read_b128 {ZE}, {vz} offset:{L_Z}\nglobal_store_dwordx4 {vo}, {ZE}, s[30:31] sc1")
        if self.o["h_z"]:
            ZT, vZr, vS2o, vS2o2 = V.get(8), V.get(), V.get(), V.get()
            A(f"""
            s_lshl_b32 s3, {sL}, 13
            s_add_u32 s3, s3, {WS_S2}
            v_lshl_add_u32 {vS2o}, v0, 4, s3
            v_add_u32 {vS2o2}, 0x1000, {vS2o}
            v_bfe_u32 {vZr}, v0, 3, 3
            v_xor_b32 {vZr}, v0, {vZr}
            v_lshlrev_b32 {vZr}, 4, {vZr}
            s_barrier
            ds_read_b128 {ZT[0:4]}, {vZr} offset:{L_Z}
            ds_read_b128 {ZT[4:8]}, {vZr} offset:{L_Z + 4096}
            global_store_dwordx4 {vS2o}, {ZT[0:4]}, s[30:31] sc1
            global_store_dwordx4 {vS2o2}, {ZT[4:8]}, s[30:31] sc1
            """)
        if self.o["h_dma"]:
            self.helper_dma(A)
        if self.o["stamps"] and self.o["hst"]:
            self.stamp("end")
            A("s_waitcnt vmcnt(0) lgkmcnt(0)")
            self.dump_stamps(A)
        A("s_endpgm")
        self.is_h = False

    def helper_prep(self, A, hp):
        V, sL, sW, sb, vL = self.V, self.sL, self.sW, self.sb, self.vL
        self.vP2, self.M1, self.vFo = V.get(), V.get(4), V.get()
        self.vHr = self.vS1i = vL
        bg = self.background()
        V.put(self.vS2o, self.vS2o2, self.vS2i, self.vS2i2, self.vZr)
        if hp:
            A(f"""
            s_lshl_b32 {self.sa}, {sL}, 13
            s_lshl_b32 s3, {sW}, 11
            s_add_u32 s3, s3, {self.sa}
            s_add_u32 s3, s3, {WS_S2}
            v_lshl_add_u32 {self.vP2}, {vL}, 4, s3
            s_lshl_b32 s3, {sW}, 12
            s_lshl_b32 {sb}, {sL}, 4
            s_add_u32 s3, s3, {sb}
            s_add_u32 s3, s3, {WS_FLG}
            v_mov_b32 {self.vFo}, s3
            """)
            for k in range(4):
                A(f"v_mov_b32 {self.M1[k]}, -1")
            for ln in self.p3_lines[:-1]:
                A(ln)
        n = self.nwarm - (self.o["dma_at"] != "none")
        self.h_warm_line = bg[n:self.nwarm]
        if self.hw:
            for ln in bg[:n]:
                A(ln)

    def helper_mark(self, A):
        self.poison2()
        A("\n".join(self.p3_lines[-1]), tag="poison")

    def helper_flag(self, A):
        A(f"s_add_u32 {self.sE}, {self.sE}, 1\nv_mov_b32 {self.M1[0]}, {self.sE}")
        A.wait_tag("poison")
        A(f"s_mov_b64 exec, 1\nglobal_store_dword {self.vFo}, {self.M1[0]}, s[30:31] sc1\ns_mov_b64 exec, -1")

    def helper_hook(self, where):
        if where == self.o["s1_touch"]:
            self.A(f"global_load_dword {self.vJunk[1]}, {self.vT1}, s[30:31] {self.o['t_pol']}")
        if where == self.o["h_p3"]:
            self.A(f"s_mov_b64 exec, s[10:11]\nglobal_store_dwordx4 {self.hta}, {self.hM1}, s[30:31] sc1\ns_mov_b64 exec, -1")
        if self.o["poison_at"] == "h1" and where == self.o["flag_at"]:
            self.helper_flag(self.A)
        if where == self.hw:
            for ln in self.h_warm_line:
                self.A(ln)

    def helper_dma(self, A):
        S, sL, sb = self.S, self.sL, self.sb
        self.sBlk, self.sRole, self.sUp, self.sWb = S.get(), S.get(), S.get(), S.get()
        A(f"""
        s_lshr_b32 s3, {sL}, 5
        s_and_b32 {sb}, {sL}, 31
        s_cmp_ge_u32 {sb}, {self.o["r1_at"]}
        s_cbranch_scc1 L_h_role1
        s_cmp_ge_u32 {sb}, {14 if self.o["h_roles"] == "both" else 0}
        s_cbranch_scc1 L_h_role2
        s_cmp_ge_u32 {sb}, 7
        s_cselect_b32 {self.sUp}, 1, 0
        s_cselect_b32 s6, 7, 0
        s_sub_u32 s6, {sb}, s6
        s_mul_i32 {self.sBlk}, s3, 7
        s_add_u32 {self.sBlk}, {self.sBlk}, s6
        """)
        for role in (0, 1):
            if role:
                A.label("L_h_role1")
                A(f"s_lshl_b32 s3, s3, 2\ns_sub_u32 s6, {sb}, {self.o['r1_at']}\ns_add_u32 {self.sBlk}, s3, s6")
            plan = self.dma_plan(A, role)
            self.V.put(self.vWa)
            if self.o["dma_at"] == "none":
                plan = []
            cuts = self.o["h_dma"][role]
            if self.o["h_conv"]:
                A("s_waitcnt vmcnt(0)")
                n = self.o["h_conv"] if role else len(plan)
                for a, b in plan[:n]:
                    A(a)
                    A(b)
                plan = plan[n:]
            nb = 4 if self.o["b8b"] else 3
            for k in range(nb):
                if k or not self.o["h_z"]:
                    A("s_barrier")
                n = (cuts[k] if k < 2 else 0) if k < nb - 1 else len(plan)
                for a, b in plan[:n]:
                    A(a)
                    A(b)
                plan = plan[n:]
            if role == 1 and self.o["b9b"]:
                A("s_barrier")
            A("s_waitcnt vmcnt(0)")
            A.vm = []
            A("s_barrier")
            A("s_branch L_h_done")
        A.label("L_h_role2")
        if self.o["h_z"] or self.o["early_z"]:
            A("s_barrier")
        A.label("L_h_done")

    def dma_plan(self, A, role):
        mine = self.o["h_dma"] and (role == 1 or self.o["h_roles"] == "both")
        if mine and not self.is_h:
            A(f"s_mul_i32 {self.sWb}, {self.sW}, {14336 if role else 8192}\ns_add_u32 {self.sWb}, {self.sWb}, {L_STAGE}")
            return []
        return super().dma_plan(A, role)

    def maybe_s1(self, where):
        if where == self.o["s1_go"]:
            self.A("s_barrier")
        self.helper_hook(where)

    def dump_stamps(self, A):
        if self.is_h == bool(self.o["hst"]):
            super().dump_stamps(A)

    def prologue_m(self):
        A, V, S = self.A, self.V, self.S
        sL, sW, sa, vL = self.sL, self.sW, self.sa, self.vL
        t1 = V.get()
        self.vTau, self.vHr, self.vRow = V.get(), V.get(), V.get()
        self.XB, self.XA = V.get(8), V.get(8)
        if self.o["prio"]:
            A(f"s_setprio {self.o['prio']}")
        A(f"""
        v_lshrrev_b32 {self.vTau}, 5, v0
        v_and_b32 {t1}, 31, v0
        v_lshlrev_b32 {t1}, 4, {t1}
        v_lshl_add_u32 {self.vHr}, {self.vTau}, 10, {t1}
        """)
        if self.o["rmap"]:
            self.sR = S.get()
            A(f"""
            s_and_b32 s3, {sL}, 28
            s_lshr_b32 s3, {sum(int(c) << (4 * k) for k, c in enumerate(self.o["rperm"][1:]))}, s3
            s_and_b32 s3, s3, 7
            s_lshl_b32 s3, s3, 5
            s_lshr_b32 {self.sR}, {sL}, 5
            s_lshl_b32 {self.sR}, {self.sR}, 2
            s_add_u32 {self.sR}, {self.sR}, s3
            s_and_b32 s3, {sL}, 3
            s_add_u32 {self.sR}, {self.sR}, s3
            """)
        A(f"""
        s_lshl_b32 {sa}, {self.rowid()}, 13
        v_add_u32 {self.vRow}, {sa}, {self.vHr}
        """)
        A(f"global_load_dwordx4 {self.XB[0:4]}, {self.vRow}, s[4:5]")
        A(f"global_load_dwordx4 {self.XB[4:8]}, {self.vRow}, s[4:5] offset:512")
        if self.o["karg2"]:
            self.rest_args(A)
        if self.o["b0"]:
            self.vE = V.get()
            A(f"v_mov_b32 {self.vE}, 0\nglobal_load_dword {self.vE}, {self.vE}, s[30:31] offset:{WS_EPOCH}")
        else:
            A(f"s_load_dword {self.sE}, s[30:31], {WS_EPOCH}")
        self.stamp("karg")
        A.raw(";@cut")
        self.vS1o, self.vP2, self.vMask, self.vHw2, self.M1 = V.get(), V.get(), V.get(), V.get(), V.get(4)
        A(f"""
        s_lshl_b32 s3, {sW}, 11
        s_add_u32 s3, s3, {sa}
        s_add_u32 s3, s3, {WS_S1}
        v_lshl_add_u32 {self.vS1o}, {vL}, 4, s3
        s_mov_b32 s3, {L_H}
        v_lshl_add_u32 {self.vHw2}, v0, 2, s3
        v_mov_b32 {self.vMask}, {0xFFFFFFFF ^ TAGMASK}
        s_mov_b32 {self.sOnes}, 0x3f803f80
        s_mov_b32 {self.sLo}, 0x3f80
        s_mov_b32 {self.sHi}, 0x3f800000
        v_and_b32 {self.vI}, 15, v0
        v_bfe_u32 {self.vG}, v0, 4, 2
        """)
        for k in range(4):
            A(f"v_mov_b32 {self.M1[k]}, -1")
        A(f"s_lshl_b32 s3, {sL}, 13\ns_add_u32 s3, s3, {WS_S2 + self.o['p_off']}")
        if self.o["rmap"]:
            self.vP2b = V.get()
            A(f"""
            s_lshl_b32 {self.sb}, {sW}, 8
            s_add_u32 s3, s3, {self.sb}
            v_lshl_add_u32 {t1}, {self.vI}, 4, s3
            v_lshl_add_u32 {self.vP2}, {self.vG}, 10, {t1}
            v_add_u32 {self.vP2b}, 0x1000, {self.vP2}
            """)
        else:
            A(f"s_lshl_b32 {self.sb}, {sW}, 11\ns_add_u32 s3, s3, {self.sb}\nv_lshl_add_u32 {self.vP2}, {vL}, 4, s3")
        V.put(t1)
        if not self.o["cc_late"]:
            self.conv_consts()
        if self.o["ch_early"]:
            self.chores()
        if self.o["poison_at"] == "consts":
            self.poison2()
        if self.o["b0"]:
            t = V.get()
            A(f"v_lshlrev_b32 {t}, 2, {self.vTau}\nds_write_b32 {t}, {self.M1[0]} offset:{L_ST + 32}")
            A("s_waitcnt lgkmcnt(0)")
            A.lg, A.sm = [], []
            A("s_barrier")
            V.put(t)
        self.stamp("consts")
        self.ksl = []

    def poison2(self):
        if not self.o["rmap"] or self.is_h:
            return super().poison2()
        A = self.A
        A(f"global_store_dwordx4 {self.vP2}, {self.M1}, s[30:31] sc1", tag="poison")
        A(f"global_store_dwordx4 {self.vP2b}, {self.M1}, s[30:31] sc1", tag="poison")
        self.V.put(self.vP2, self.vP2b)

    def z_addr(self, A, tiles, vz, vo, tmp):
        lut = sum(j << (4 * k) for k, j in enumerate(tiles))
        A(f"""
        s_lshl_b32 s3, {self.sW}, 2
        s_lshr_b32 s3, {lut}, s3
        s_and_b32 s3, s3, 7
        s_lshl_b32 s3, s3, 10
        v_lshrrev_b32 {tmp}, 3, {self.vL}
        v_xor_b32 {tmp}, {self.vL}, {tmp}
        v_lshl_add_u32 {vz}, {tmp}, 4, s3
        s_lshl_b32 {self.sb}, {self.sL}, 13
        s_add_u32 s3, s3, {self.sb}
        s_add_u32 s3, s3, {WS_S2}
        v_lshl_add_u32 {vo}, {self.vL}, 4, s3
        """)

    def conv_consts(self):
        A, V = self.A, self.V
        vI, vG, sB, sL, sb = self.vI, self.vG, self.sB, self.sL, self.sb
        t0, t1, t2, t3 = V.get(), V.get(), V.get(), V.get()
        self.BAND = {key: V.get(4) for key in BANDS}
        SEL = V.get(6)
        A(f"""
        v_lshlrev_b32 {t0}, 3, {vG}
        v_sub_u32 {t0}, {t0}, {vI}
        v_add_u32 {t0}, 20, {t0}
        v_mul_u32_u24 {t0}, 0x10001, {t0}
        v_mov_b32 {t3}, 0x70007
        s_mov_b32 {sb}, 0xc000c
        """)
        for k in range(6):
            c0, c1 = 32 - 2 * k, 31 - 2 * k
            A(f"""
            s_mov_b32 s3, {c0 | c1 << 16}
            v_pk_sub_i16 {t1}, {t0}, s3
            v_pk_sub_i16 {t2}, s3, {t0}
            v_pk_max_i16 {t1}, {t1}, {t2}
            v_pk_min_i16 {t1}, {t1}, {t3}
            v_lshl_or_b32 {SEL[k]}, {t1}, 8, {sb}
            """)
        for (delta, h), B in self.BAND.items():
            lut = sum(0x3C << (8 * i) for i in range(min(h + 1, 4)))
            A(f"s_mov_b32 s3, {lut}")
            for d in range(4):
                A(f"v_perm_b32 {B[d]}, {60 if h == 4 else 0}, s3, {SEL[d + (0 if delta == 12 else 2)]}")
        self.vUf, self.vZw, self.vUw, self.vN, self.vF = V.get(), V.get(), V.get(), V.get(), V.get()
        self.vS1i, self.vS1i2 = V.get(), V.get()
        A(f"""
        s_mul_i32 s3, {sB}, {UCH}
        s_add_u32 {sb}, s3, {L_U}
        v_lshl_add_u32 {t0}, {vI}, 5, {sb}
        v_lshl_add_u32 {self.vUf}, {vG}, 4, {t0}
        s_mul_i32 s3, {sB}, {KCH}
        v_sub_u32 {t0}, 15, {vI}
        v_and_b32 {t1}, 3, {t0}
        v_and_b32 {t0}, 12, {t0}
        v_mul_u32_u24 {t1}, {KCOPY}, {t1}
        v_lshl_add_u32 {t0}, {t0}, 1, {t1}
        v_add_u32 {t0}, s3, {t0}
        v_lshl_add_u32 {self.vN}, {vG}, 4, {t0}
        v_lshl_add_u32 {self.vF}, {vG}, 3, {t0}
        v_and_b32 {t0}, 2, {vG}
        v_lshl_add_u32 {t0}, {vI}, 2, {t0}
        v_add_u32 {t0}, {sB}, {t0}
        v_lshrrev_b32 {t1}, 1, {vI}
        v_xor_b32 {t0}, {t0}, {t1}
        v_and_b32 {t1}, 1, {vG}
        v_lshlrev_b32 {t1}, 3, {t1}
        v_lshl_add_u32 {self.vZw}, {t0}, 4, {t1}
        v_and_b32 {t0}, 1, v0
        v_lshrrev_b32 {t1}, 1, v0
        v_mul_u32_u24 {t2}, {UCH}, {t0}
        v_lshl_add_u32 {self.vUw}, {t1}, 4, {t2}
        v_lshlrev_b32 {t0}, 4, {t0}
        v_lshl_add_u32 {t2}, {t1}, 13, {t0}
        s_lshl_b32 s3, {sL}, 5
        s_add_u32 s3, s3, {WS_S1}
        v_add_u32 {self.vS1i}, s3, {t2}
        v_add_u32 {self.vS1i2}, 0x100000, {self.vS1i}
        """)
        V.put(t0, t1, t2, t3, SEL)

    def ln1(self):
        if not self.o["b0"]:
            return super().ln1()
        A, V = self.A, self.V
        s1, s2, nm, rs, ad = V.get(), V.get(), V.get(), V.get(), V.get()
        A(f"v_lshlrev_b32 {ad}, 2, {self.vTau}")
        for k in range(8):
            if k % 4 == 0:
                A(f"ds_write_b128 {self.vHr}, {self.XB[k:k + 4]} offset:{L_H + 128 * k}")
            A(f"v_dot2_f32_bf16 {s1}, {self.XB[k]}, {self.sOnes}, {s1 if k else 0}")
            A(f"v_dot2_f32_bf16 {s2}, {self.XB[k]}, {self.XB[k]}, {s2 if k else 0}")
            if k == 0:
                self.stamp("x")
                if self.o["poison_at"] == "x":
                    self.poison2()
        self.allreduce(A, "v_add_f32", [s1, s2], 32)
        self.ln_stats(A, s1, s2, nm, rs)
        if self.o["poison_at"] == "stat":
            self.poison2()
        self.stamp("stat")
        A("s_mov_b64 exec, 1\ns_bitset1_b64 exec, 32")
        A(f"v_mul_f32 {rs}, 0x3d800000, {rs}")
        A(f"ds_write_b32 {ad}, {nm} offset:{L_ST}\nds_write_b32 {ad}, {rs} offset:{L_ST + 32}")
        A("s_mov_b64 exec, -1")
        A(f"v_mov_b32 {ad}, 0\ns_mov_b32 s3, 0")
        V.put(self.XB)
        NM, RS, XA = V.get(8), V.get(8), self.XA
        A.flush()
        A.label("L_stat")
        for k in range(2):
            A(f"ds_read_b128 {RS[4 * k:4 * k + 4]}, {ad} offset:{L_ST + 32 + 16 * k}")
        for q in range(2):
            A(f"ds_read2st64_b32 {XA[2 * q:2 * q + 2]}, {self.vHw2} offset0:{8 * q} offset1:{8 * q + 4}")
        A(f"ds_read_b128 {NM[0:4]}, {ad} offset:{L_ST}")
        for q in range(2, 4):
            A(f"ds_read2st64_b32 {XA[2 * q:2 * q + 2]}, {self.vHw2} offset0:{8 * q} offset1:{8 * q + 4}")
        A(f"ds_read_b128 {NM[4:8]}, {ad} offset:{L_ST + 16}")
        A(f"s_add_u32 s3, s3, 1\ns_cmp_lt_u32 s3, {SPIN_MAX}\ns_cselect_b64 s[18:19], -1, 0")
        self.poison_check([RS[k] for k in range(8)], s1)(A)
        A("s_and_b64 vcc, vcc, s[18:19]")
        A("s_cbranch_vccnz L_stat")
        self.stamp("b1")
        A(f"v_readfirstlane_b32 {self.sE}, {self.vE}")
        V.put(self.vE)
        if self.o["poison_at"] == "b1":
            self.poison2()
        self.make_tags(A)
        T = V.get(8)
        self.G = []
        for e in range(2):
            G = V.get(4)
            for j in range(8):
                A(f"v_dot2_f32_bf16 {T[j]}, {XA[j]}, {self.sHi if e else self.sLo}, {NM[j]}")
            for j in range(8):
                self.rnd(A, T[j], T[j])
            for q in range(4):
                A(f"v_pk_mul_f32 {T[2 * q:2 * q + 2]}, {T[2 * q:2 * q + 2]}, {RS[2 * q:2 * q + 2]}")
            for j in range(8):
                self.rnd(A, T[j], T[j])
            for q in range(4):
                A(f"v_cvt_pk_f16_f32 {G[q]}, {T[2 * q]}, {T[2 * q + 1]}")
            for q in range(4):
                A(f"v_and_or_b32 {G[q]}, {G[q]}, {self.vMask}, {self.tags[q]}")
            self.G.append(G)
            if e == 0:
                self.stamp("norm")
            if self.o["st_late"] and e == 0:
                continue
            A.wait_tag("poison")
            for ee in ((0, 1) if self.o["st_late"] else (e,)):
                A(f"global_store_dwordx4 {self.vS1o}, {self.G[ee]}, s[30:31] offset:{1024 * ee} sc1", tag="s1st")
        self.stamp("pub1")
        V.put(T, NM, RS, s1, s2, nm, rs, ad, self.vS1o)

    def chores(self):
        A, V = self.A, self.V
        bg = self.background()
        hmode = self.o["poison_at"] in ("h", "h1")
        self.late_mem = []
        vP3 = V.get()
        if not hmode and not self.o["h_p3"]:
            for item in self.p3_lines[:-1]:
                A(item)
            A(f"v_mov_b32 {vP3}, {self.bgtmp[2]}")
            self.late_mem.append(tuple(x.replace(f" {self.bgtmp[2]},", f" {vP3},") for x in self.p3_lines[-1]))
        n = self.nwarm - (self.o["dma_at"] != "none")
        mwarm = not self.o["h_warm"]
        self.warm_line = bg[n:self.nwarm] if mwarm else []
        keep = self.bgtmp[0]
        vW = V.get()
        if hmode:
            self.vFi = V.get()
            A(f"s_lshr_b32 s3, {self.sL}, 6\ns_lshl_b32 s3, s3, 12\ns_add_u32 s3, s3, {WS_FLG}\nv_lshl_add_u32 {self.vFi}, v0, 4, s3")
        if mwarm:
            for ln in bg[:n]:
                A(ln)
            A(f"v_mov_b32 {vW}, {keep}")
        self.warm_line = [ln.replace(f" {keep},", f" {vW},") for ln in self.warm_line]
        for ln in bg[self.nwarm:]:
            A(ln)
        V.put(*self.bgtmp[:3])
        self.late_free = [vP3, self.M1]
        if self.o["early_z"]:
            late = [j for j in range(8) if j not in self.o["early_z"]]
            self.z_addr(A, late, self.vZr, self.vS2o, self.vS2o2)
        self.bg, self.bgtmp = [], [vW]

    def after_publish(self):
        A, V = self.A, self.V
        if self.o["prio"]:
            A("s_setprio 0")
        V.put(self.XA)
        if self.o["cc_late"]:
            self.conv_consts()
        if not self.o["ch_early"]:
            self.chores()
        if self.o["poison_at"] in ("h", "h1"):
            V.put(self.vP2)
        for item in self.late_mem:
            A("\n".join(item), tag="poison3")
        self.WR = V.get(8)
        self.row_params()
        V.put(*self.late_free)
        self.UG = V.get(8)
        self.vG16 = V.get()
        A(f"s_lshl_b32 s3, {self.sB}, 2\nv_mov_b32 {self.vG16}, s3")
        if self.o["s1_go"] == "ack":
            A.wait_tag("s1st")
            self.s1_loads(A)
        elif self.o["s1_go"] != "b3":
            A("s_barrier")
            if self.o["s1_split"]:
                A(f"global_load_dwordx4 {self.UG[0:4]}, {self.vS1i}, s[30:31] sc1")
            else:
                self.s1_loads(A)
        self.stamp("rec")
        A.barrier()
        self.stamp("kmf")
        if self.o["mprio2"]:
            A(f"s_setprio {self.o['mprio2']}")
        if self.o["s1_go"] == "b3":
            self.s1_loads(A)
        elif self.o["s1_split"]:
            A(f"global_load_dwordx4 {self.UG[4:8]}, {self.vS1i2}, s[30:31] sc1")
        A(f"ds_read_b32 {self.vG16}, {self.vG16} offset:{L_G}")
        self.shift_regs = ()
        rd = {}
        for q in range(17):
            rd[f"@K{q}"] = [f"ds_read_b64 @K{q}.{2 * hf}, {self.vN} offset:{64 * (16 - q) + 8 * hf}" for hf in range(2)]
        rd["@KX"] = [f"ds_read_b64 @KX.{2 * hf}, {self.vN} offset:{2 * NX + 8 * hf}" for hf in range(2)]
        for k in range(2):
            for d in (2, 3, 4):
                rd[f"@B{k}{d}"] = [f"ds_read_b64 @B{k}{d}.{2 * hf}, {self.vF} offset:{2 * (V2[2 * k + hf] + 32 - 16 * (d - 2))}" for hf in range(2)]
        for d in (4, 5, 6, 7):
            rd[f"@C{d}"] = [f"ds_read_b64 @C{d}.{2 * hf}, {self.vF} offset:{2 * (V3[hf] + 48 - 16 * (d - 4))}" for hf in range(2)]
        self.frag_reads = rd

    def conv(self, A, tiles, dma):
        V, AC = self.V, self.AC
        PE, PD, NPRE, LAT = self.o["pe"], self.o["pd"], self.o["npre"], self.o["lat"]
        EY, EZ = V.get(4), V.get(2)
        qmax = {0: 7, 1: 15}
        b2 = sorted({j - d for j in tiles for d in (2, 3, 4) if j - d >= 0})
        b3 = sorted({j - d for j in tiles for d in (4, 5, 6, 7) if j - d >= 0})
        nlo = min(8 * j - qmax.get(j, 16) for j in tiles)
        nhi = 8 * max(tiles)
        near = []
        for fi, n in enumerate(range(nlo, nhi + 1)):
            for j in tiles:
                q = 8 * j - n
                if 0 <= q <= qmax.get(j, 16):
                    near.append((j, f"@K{q}", fi, q == 0))
        far, gfr, pcount = [], [], 0
        for b in sorted(set(b2) | set(b3)):
            ga, gb = len(gfr), len(gfr) + 1
            gfr += [256 * b - 16, 256 * b - 24]
            mains = []
            if b in b2:
                pa, pb = pcount, pcount + 1
                pcount += 2
                far += [("band", ga, (12, 1), pa, 0), ("band", ga, (8, 2), pa, 1), ("band", gb, (12, 1), pb, 0), ("band", gb, (8, 2), pb, 1)]
                mains += [("main", b + d, pa, f"@B0{d}") for d in (2, 3, 4) if b + d in tiles]
                mains += [("main", b + d, pb, f"@B1{d}") for d in (2, 3, 4) if b + d in tiles]
            if b in b3:
                pc = pcount
                pcount += 1
                far += [("band", ga, (8, 3), pc, 0), ("band", gb, (8, 4), pc, 1)]
                mains += [("main", b + d, pc, f"@C{d}") for d in (4, 5, 6, 7) if b + d in tiles]
            if b + 4 in tiles:
                far.append(("x", b + 4, ga))
            far += mains
        mf, fill = [], []
        started, done_at, first_use, pready = set(), {}, {}, {}
        wcount, ni, credit = 0, 0, 0.0
        farleft = list(far)
        span = self.o["far_span"][0 if 0 in tiles else 1]
        NP = self.o["np"]

        def acc_mf(j, a, b):
            mf.append(f"v_mfma_f32_16x16x32_f16 @acc{j}, {a}, {b}, {f'@acc{j}' if j in started else 0}")
            started.add(j)

        def far_ok(it):
            if it[0] == "main":
                return pready.get(it[2], 10 ** 6) <= len(mf)
            if it[0] == "band":
                return not any(o[0] == "main" and o[2] <= it[3] - NP for o in farleft)
            return True

        def blocked(k):
            return near[k][3] and any(o[0] in ("main", "x") and o[1] == near[k][0] for o in farleft)
        while ni < len(near) or farleft:
            t = len(mf)
            want_far = farleft and (credit >= 1.0 or ni >= len(near) or blocked(ni))
            pick = None
            if want_far:
                for it in farleft[:10]:
                    if far_ok(it) and not (it[0] == "band" and any(o[0] == "band" for o in farleft[:farleft.index(it)])):
                        pick = it
                        break
            if pick is None and ni < len(near) and not blocked(ni):
                j, a, fi, last = near[ni]
                ni += 1
                acc_mf(j, a, f"@F{fi}")
                if last:
                    done_at[j] = t
                credit += len(far) / span
                continue
            assert pick is not None, "conv schedule is stuck"
            farleft.remove(pick)
            credit -= 1.0
            if pick[0] == "band":
                _, g, key, p, hf = pick
                w = f"@W{wcount}"
                wcount += 1
                mf.append(f"v_mfma_f32_16x16x32_f16 {w}, @G{g}, {self.BAND[key]}, 0")
                for k in range(2):
                    fill.append([t + self.o["cvt0"], t + LAT - 1, f"v_cvt_pk_f16_f32 @P{p}:{2 * hf + k}, {w}:{2 * k}, {w}:{2 * k + 1}", None])
                if hf == 1:
                    pready[p] = t + LAT
            elif pick[0] == "x":
                acc_mf(pick[1], "@KX", f"@G{pick[2]}")
            else:
                acc_mf(pick[1], f"@P{pick[2]}", pick[3])
        nm = len(mf)
        tok = re.compile(r"@[A-Za-z]+\d*X?")
        for t, txt in enumerate(mf):
            for name in tok.findall(txt):
                first_use.setdefault(name, t)
        reads = []
        for name, t in first_use.items():
            if name[1] == "F":
                reads.append((t, f"ds_read_b128 {name}, {self.vUf} offset:{512 + 2 * (32 * (nlo + int(name[2:])) - 16)}"))
            elif name[1] == "G":
                reads.append((t, f"ds_read_b128 {name}, {self.vUf} offset:{512 + 2 * gfr[int(name[2:])]}"))
            elif name in self.frag_reads:
                reads += [(t, x) for x in self.frag_reads[name]]
        reads.sort(key=lambda r: r[0])
        pre = [txt for t, txt in reads if t <= NPRE]
        fill += [[max(t - PE, 0), max(t - PD, 0), txt, None] for t, txt in reads if t > NPRE]
        order_t = sorted(tiles, key=lambda j: done_at[j])
        for k, j in enumerate(order_t):
            t = done_at[j]
            nxt = done_at[order_t[k + 1]] if k + 1 < len(order_t) else nm + 100
            seq2 = [f"v_mul_f32 {EY[r]}, @acc{j}:{r}, {self.vG16}" for r in range(4)]
            seq2 += [f"v_cvt_pk_bf16_f32 {EZ[r]}, {EY[2 * r]}, {EY[2 * r + 1]}" for r in range(2)]
            seq2.append(f"ds_write_b64 {self.vZw}, {EZ} offset:{L_Z + 1024 * j}")
            for txt in seq2:
                fill.append([t + self.o["cvt0"], min(t + 12, nxt + 2), txt, f"e2_{j}"])
        for ln in self.late_warm:
            fill.append([self.o["warm_slot"], self.o["warm_slot"] + 2, ln, None])
        uses = {}
        for txt in mf + pre + [f[2] for f in fill]:
            for name in set(tok.findall(txt)):
                uses[name] = uses.get(name, 0) + 1
        vq, aq, held = [], [], []
        while True:
            try:
                vq.append(V.get(4))
            except RuntimeError:
                break
        while True:
            try:
                aq.append(AC.get(4, 4))
            except RuntimeError:
                break
        allv, alla = list(vq), list(aq)
        phys = {}
        low = [len(vq), len(aq)]

        def subst(txt, alloc):
            def rep(m):
                name, part = m.group(1), m.group(2) or ""
                if name not in phys:
                    if not alloc:
                        return "null"
                    vonly = name[1] in "WP" or name.startswith("@acc")
                    if not vonly and aq:
                        phys[name] = aq.pop(0)
                    else:
                        assert vq, f"out of registers at {name}"
                        phys[name] = vq.pop(0)
                    low[0], low[1] = min(low[0], len(vq)), min(low[1], len(aq))
                r = phys[name]
                if part.startswith("."):
                    return str(r[int(part[1:]):int(part[1:]) + 2])
                if part.startswith(":"):
                    return str(r[int(part[1:])])
                return str(r)
            return re.sub(r"(@[A-Za-z]+\d*X?)([.:]\d)?", rep, txt)

        def emit(txt):
            names = set(tok.findall(txt))
            A(subst(txt, True))
            for name in names:
                uses[name] -= 1
                if uses[name] == 0:
                    r = phys.pop(name)
                    (vq if r.kind == "v" else aq).append(r)
        for txt in pre:
            emit(txt)
        for i, f in enumerate(fill):
            f.append(i)
        left = list(fill)
        zsent = False
        A.prewait([subst(mf[0], False)])
        for t in range(nm):
            emit(mf[t])
            chosen = []
            for f in sorted([f for f in left if f[0] <= t], key=lambda f: (f[1], f[4])):
                if len(chosen) >= 2 and f[1] > t:
                    break
                if f[3] and any(g[3] == f[3] and g[4] < f[4] and g not in chosen for g in left):
                    continue
                mem = f[2].startswith(("ds_", "global_"))
                if mem and f[1] > t and any(g[3] == f[3] and f[3] for g in chosen):
                    continue
                if f[2].startswith("ds_read") and f[1] > t and len(aq) + len(vq) < 4 and tok.findall(f[2])[0] not in phys:
                    continue
                chosen.append(f)
            memf = [f for f in chosen if f[2].startswith(("ds_", "global_")) and not any(g[3] == f[3] and f[3] and g[4] < f[4] for g in chosen)]
            rest = [f for f in chosen if f not in memf]
            A.prewait([subst(f[2], False) for f in chosen] + ([subst(mf[t + 1], False)] if t + 1 < nm else []))
            for f in memf + rest:
                emit(f[2])
                left.remove(f)
            if self.o["early_z"] and not zsent and t >= self.o["z_slot"]:
                if not any(f[3] == f"e2_{j}" for f in left for j in self.o["early_z"]):
                    wr = [i for i, (regs, _) in enumerate(A.lg) if not regs]
                    if wr:
                        A.wait(lg=len(A.lg) - 1 - wr[-1])
                    A("s_barrier")
                    zsent = True
                    self.zslots = getattr(self, "zslots", []) + [t]
        for f in sorted(left, key=lambda f: (f[1], f[4])):
            emit(f[2])
        assert not phys
        self.nmfma = getattr(self, "nmfma", []) + [nm]
        self.bg_left = getattr(self, "bg_left", []) + [tuple(low)]
        V.put(EY, EZ, *allv)
        AC.put(*alla)

    def conv_all(self):
        A = self.A
        self.late_warm = []
        if self.o["warm_in"]:
            self.late_warm, self.warm_line = self.warm_line, []
        self.s1_consume(A, "")
        self.V.put(self.UG, self.vUw, self.vS1i, self.vS1i2)
        A(f"s_cmp_eq_u32 {self.sH}, 0\ns_cbranch_scc0 L_conv_b")
        B = A.fork()
        A.barrier()
        self.stamp("b5", A)
        self.conv(A, [0, 1, 2, 3, 4], [])
        A.wait(lg=0)
        A.flush()
        A("s_branch L_conv_done")
        if self.o["pages"]:
            B.raw(".p2alignl 12, 0xbf810000")
        B.label("L_conv_b")
        B.barrier()
        self.stamp("b5", B)
        self.conv(B, [5, 6, 7], [])
        B.wait(lg=0)
        B.flush()
        A.lines += B.lines
        A.count += B.count
        A.nops += B.nops
        A.label("L_conv_done")
        self.V.put(*self.BAND.values(), self.vUf, self.vZw, self.vG16, self.vN, self.vF, *self.bgtmp)
        self.stamp("conv", A)
        A("s_barrier")
        self.stamp("b6", A)
        self.ZT = ZT = self.V.get(8)
        if self.o["early_z"]:
            A(f"ds_read_b128 {ZT[0:4]}, {self.vZr} offset:{L_Z}")
            A(f"global_store_dwordx4 {self.vS2o}, {ZT[0:4]}, s[30:31] sc1", tag="s2st")
        elif not self.o["h_z"]:
            A(f"ds_read_b128 {ZT[0:4]}, {self.vZr} offset:{L_Z}\nds_read_b128 {ZT[4:8]}, {self.vZr} offset:{L_Z + 4096}")
            A(f"global_store_dwordx4 {self.vS2o}, {ZT[0:4]}, s[30:31] sc1", tag="s2st")
            A(f"global_store_dwordx4 {self.vS2o2}, {ZT[4:8]}, s[30:31] sc1", tag="s2st")
        if self.o["poison_at"] in ("h", "h1"):
            self.vFl = self.V.get()
            A(f"global_load_dword {self.vFl}, {self.vFi}, s[30:31] sc1")
            self.o["poison_at"] = "pub"
        self.stamp("st2", A)
        self.V.put(self.vZr, self.vS2o, self.vS2o2)
        self.XA = XA = self.V.get(8)
        for q in range(4):
            A(f"ds_read2st64_b32 {XA[2 * q:2 * q + 2]}, {self.vHw2} offset0:{8 * q} offset1:{8 * q + 4}")

    def resolve(self, A, sfx, between=None):
        if not self.o["s3_full"] or sfx == "r2":
            return super().resolve(A, sfx, between)
        t0, t1, t2 = self.t
        T, kin = self.T, self.kin
        A(f"s_lshl_b32 s3, {self.sW}, 10\nv_subrev_u32 {t1}, s3, {self.vS3i}")

        def s3_loads(C):
            for k in range(4):
                C(f"global_load_dword {T[k]}, {t1}, s[30:31] offset:{1024 * k} sc1")

        def check(C):
            C(f"v_max3_u32 {kin}, {T[0]}, {T[1]}, {T[2]}\nv_max_u32 {kin}, {kin}, {T[3]}\nv_cmp_eq_u32 vcc, -1, {kin}")
        mode = self.o["s3_wait"]
        if mode in ("rowst", "both"):
            A.wait_tag("rowst")
        if mode in ("b9", "both") and sfx == "r0":
            A("s_barrier")
        s3_loads(A)
        if between:
            between()
        self.poll(A, "s3" + sfx, s3_loads, check)
        self.stamp("s3p", A)
        self.allreduce(A, "v_max_u32", [kin], 64)
        self.stamp("s3w", A)
        A(f"v_readfirstlane_b32 {self.sK}, {kin}")
        A(f"s_and_b32 {self.sT}, {self.sK}, 0x7ff\ns_sub_u32 {self.sT}, 2047, {self.sT}")
        self.stamp("s3", A)
        A(f"s_lshr_b32 s3, {self.sT}, 3\ns_lshl_b32 s3, s3, 11\ns_add_u32 s3, s3, {WS_ROWS}")
        self.late_barrier = not (mode in ("b9", "both") and sfx == "r0")

    def build(self):
        A = self.A
        self.entry()
        H = A.fork()
        H.label("L_helper")
        vfree, afree, sfree = set(self.V.free), set(self.AC.free), set(self.S.free)
        self.helper(H)
        self.A = A
        self.V.free, self.AC.free, self.S.free = set(vfree), set(afree), set(sfree)
        self.prologue_m()
        self.ln1()
        self.after_publish()
        self.sWb, self.sC, self.sK, self.sT = self.S.get(), self.S.get(2), self.S.get(), self.S.get()
        self.conv_all()
        self.phase_c()
        self.kin = self.V.get()
        A(f"s_cmp_eq_u32 {self.sRole}, 1\ns_cbranch_scc1 L_role1")
        B = A.fork()
        B.label("L_role1")
        A(f"s_cmp_eq_u32 {self.sRole}, 2\ns_cbranch_scc1 L_role2")
        C = A.fork()
        C.label("L_role2")
        vfree, afree = set(self.V.free), set(self.AC.free)
        self.tail0(A)
        self.V.free, self.AC.free = set(vfree), set(afree)
        self.tail1(B)
        self.V.free, self.AC.free = set(vfree), set(afree)
        self.tail2(C)
        cut = A.lines.index(";@cut")
        if self.o["h_first"]:
            body = "\n".join(A.lines[:cut]) + "\n    s_branch L_main\n" + H.text() + "L_main:\n" + "\n".join(A.lines[cut + 1:]) + "\n"
        else:
            hcut = H.lines.index(";@cut")
            body = "\n".join(A.lines[:cut]) + "\n    s_branch L_main\n" + "\n".join(H.lines[:hcut]) + "\n    s_branch L_helper2\nL_main:\n"
            body += "\n".join(A.lines[cut + 1:]) + "\n"
            H.lines = ["L_helper2:"] + H.lines[hcut + 1:]
        if self.o["pages"]:
            body += C.text() + ".p2alignl 12, 0xbf810000\n" + B.text() + "".join(c.text() for c in self.cold) + ".p2alignl 12, 0xbf810000\n" + H.text()
        else:
            body += B.text() + C.text() + ("" if self.o["h_first"] else H.text()) + "".join(c.text() for c in self.cold)
        body = body.replace(";@cut\n", "")
        astat = None
        if self.o["align"]:
            import align
            body, astat = align.align(body, self.o["align"])
        head = open(f"cdna_kernels/{NAME}.s.ref").read().split("; Override launch geometry")[0]
        self.stats = dict(instr=A.count + B.count + C.count + H.count, nops=A.nops + B.nops + H.nops, vgpr=self.V.top + 1,
                          agpr=self.AC.top + 1, mfma=self.nmfma, spare=self.bg_left, zslots=getattr(self, 'zslots', None), align=astat)
        return head + f"""; One launch of 256 co-resident workgroups (one per CU, 8 waves) that exchange data through d_ws.
; Workgroup L owns tokens 8L..8L+7 (row phases) and two channels (convolution).
;   main waves 0-3:   LN(x) -> u hand-off -> causal convolution on the matrix cores -> y hand-off
;                     -> h, LN(h), router key, output rows -> key all-gather -> FFN of the chosen token
;   helper waves 4-7: S4D kernel K from its 128 modes (factored as a matrix product), later the FFN weight slabs
; The reference rounds the positions to bf16, so K is piecewise constant beyond lag 256; lags >= 515 are
; applied to window sums of u at dilation 16, lags below as Toeplitz blocks.
; Hand-offs use write-through stores and cache-bypassing loads. u carries tag bits taken from an epoch word in
; d_ws; the later slots are first filled with all-ones by this launch and polled until overwritten.
; @launch grid=(256,1,1) block=(512,1,1) lds={LDS_BYTES}
.amdgcn_target "amdgcn-amd-amdhsa--gfx950"
.text
.globl {NAME}_kernel
.p2align 8
.type {NAME}_kernel,@function
{NAME}_kernel:
{body}L_end:
    s_endpgm
L_all_end:
.section .rodata,"a"
.p2align 6
.amdhsa_kernel {NAME}_kernel
  .amdhsa_next_free_vgpr 256
  .amdhsa_next_free_sgpr 102
  .amdhsa_accum_offset {VMAX}
  .amdhsa_group_segment_fixed_size 0
  .amdhsa_kernarg_size 120
  .amdhsa_user_sgpr_count 2
  .amdhsa_user_sgpr_kernarg_segment_ptr 1
  .amdhsa_system_sgpr_workgroup_id_x 1
  .amdhsa_float_denorm_mode_32 3
.end_amdhsa_kernel
"""


EXTRA.update(np=4, h_first=False, s3_wait="key", s1_touch=None, t_pol="sc1", p_off=0, rmap=False, rperm="p01234567", early_z=None, z_slot=0, touch=0, pages=True, pad="", h_p3=False, ch_early=False, cc_late=False, karg2=False, h_z=False, s3_full=True, g1v2=True, late_unpack=True, r0_ackout=True, r2_mode=2, align=0, mprio2=0, h_order="pw", s1_split=False, warm_in=True, warm_slot=20, h_dma="0_4_0_4", b8b="hn", b9b=True, h_roles="both", b0=False, h_warm=None, h_conv=0, flag_at="far", hprio=0, hb1=0, s1_go="rec2", poison_at="b1", st_late=True)


def generate(path, **opt):
    g = Gen(**opt)
    text = g.build()
    open(path, "w").write(text)
    return g.stats


if __name__ == "__main__":
    out = sys.argv[1] if len(sys.argv) > 1 else f"cdna_kernels/{NAME}.s"
    opts = {}
    for a in sys.argv[2:]:
        k, v = a.split("=")
        opts[k] = {"True": True, "False": False}.get(v, int(v) if v.isdigit() else v)
    print(generate(out, **opts))
```

```python
import sys
from asmdsl import Asm, Pool, R, Multi

NAME = "sequential_preLN__ssm_conv_s4d__moe_arch_mod__prompt"

WS_EPOCH = 0
WS_FLG = 0x4000
WS_S3 = 0x8000
WS_S4 = 0x10000
WS_ROWS = 0x20000
WS_S1 = 0x100000
WS_S2 = 0x380000
WS_STAMP = 0x600000

ROWB = 544
STAGE_CH = 57 * ROWB
L_K = 0
KCOPY = 2112
KCH = 4 * KCOPY
L_U = L_K + 2 * KCH
UCH = 4672
L_Z = 26368
L_H = L_Z + 8192
L_ST = L_H + 8192
L_KEY = L_ST + 64
L_KEY2 = L_KEY + 32
L_RED = L_KEY2 + 32
L_P = 43520
PPLANE = 2048 + 32
PHALF = 2 * PPLANE
L_STAGE = 60416
LDS_BYTES = L_STAGE + 2 * STAGE_CH
assert L_U + UCH + 4608 <= L_Z and L_RED + 512 <= L_P and L_P + 4 * PHALF <= L_STAGE and L_STAGE % 256 == 0

NX = 560
FAR = 608
V2 = [FAR + 48 * s for s in range(4)]
V3 = [FAR + 16 * 13 + 80 * s for s in range(2)]
TAGMASK = 0x40074007
LOG2E = 0x3FB8AA3B
INV2PI = 0x3E22F983
SPIN_MAX = 1 << 14

BANDS = ((12, 1), (8, 2), (8, 3), (8, 4))


def band_table():
    out = []
    for delta, h in BANDS:
        for lane in range(64):
            phi, g = lane & 15, lane >> 4
            bits = [0x3C00 if abs(8 * g + e - phi - delta) <= h else 0 for e in range(8)]
            out.append(".long " + ", ".join(hex(bits[2 * d] | bits[2 * d + 1] << 16) for d in range(4)))
    return "\n".join(out)


STAMP_SETS = {
    True: ["start", "karg", "x", "pub1", "rec", "kmf", "frag", "s1", "conv", "ack2", "s2", "pub3", "ack3", "s3", "row", "g1", "g2", "end"],
    "z": ["start"] + [f"unused{i}" for i in range(16)] + ["end"],
    "a": ["start", "karg", "issued", "consts", "x", "stat", "b1", "norm", "pub1", "warm", "par", "ws", "recR", "rec", "b2", "kmf0", "kmf", "end"],
    "b": ["start", "kmf", "shift", "frag", "s1w", "s1", "b5", "conv", "b6", "st2", "dma", "ack2", "s2", "hw", "b7", "key", "pub3", "end"],
    "c": ["start", "pub3", "hn", "outc", "ack3", "s3p", "s3w", "s3", "row", "g1m", "g1b", "g1", "r1o", "r1t", "r1a", "g2m", "g2", "end"],
}
DEFAULTS = dict(stamps=False, s1_at="mfma", warm=True, out_pol="sc1", pf_code=True, pf_lines=8, dbg=False, poison_at="x", recb=4, lat=8, cvt0=4, nw=8, wv=(0, 0, 0, 0), r1_out="row", dma_s2=0, st_late=False, early_br=True, addtid=True, r1_at=28, b_first=False, dma0_ack2=False, p3_at="consts", cpre=0, bg_from=0, fin_pol="", r0_late=2, r2_late=True, dma_ack2=0, xmap=True, x_pol="", w_pol="", p_pol="sc1", mask_poll=True, warm_slot=30, kpre=1, par_first=True, band_tab=False, frag_in=True, dma_pre=0, r1_split=2, xa_glob=False, warm_at="s1w", xa_at="start", nf=7, ng=4, pe=16, pd=5, npre=3, clk=False, dma_at="conv", warm_mode="sect", far_span=(60, 48))


class Gen:
    def __init__(self, **opt):
        self.o = dict(DEFAULTS)
        self.o.update(opt)
        if isinstance(self.o["far_span"], str):
            self.o["far_span"] = tuple(int(x) for x in self.o["far_span"].split("_"))
        if isinstance(self.o["wv"], str):
            self.o["wv"] = tuple(int(x) for x in self.o["wv"].split("_"))
        self.A = Asm()
        self.V = Pool("v", 1, 255)
        self.AC = Pool("a", 0, 255)
        self.S = Pool("s", 32, 63)
        self.cold = []
        self.nstamp = 0

    def stamp(self, name, A=None):
        sel = STAMP_SETS.get(self.o["stamps"])
        if sel and name in sel:
            i = sel.index(name)
            (A or self.A)(f"{'s_memtime' if self.o.get('cyc') else 's_memrealtime'} s[{64 + 2 * i}:{65 + 2 * i}]")

    def dump_stamps(self, A):
        if not self.o["stamps"]:
            return
        if self.o["dbg"]:
            self.dump_debug(A)
            return
        a, d = self.V.get(), self.V.get(2)
        A("s_mov_b64 exec, 1")
        A.wait(lg=0)
        A(f"s_lshl_b32 s3, {self.sL}, 2\ns_add_u32 s3, s3, {self.sW}\ns_lshl_b32 s3, s3, 8\ns_add_u32 s3, s3, {WS_STAMP}")
        A(f"v_mov_b32 {a}, s3")
        for i in range(19):
            A(f"v_mov_b32 {d[0]}, s{64 + 2 * i}\nv_mov_b32 {d[1]}, s{65 + 2 * i}")
            A(f"global_store_dwordx2 {a}, {d}, s[30:31] offset:{8 * i}")
            A.wait(vm=0)
        self.V.put(a, d)

    def dump_debug(self, A):
        a, d = self.V.get(), self.V.get()
        n = getattr(self, "ndbg", 0)
        self.ndbg = n + 1
        A("s_mov_b64 exec, 1")
        A(f"s_cmp_eq_u32 {self.sL}, 255\ns_cbranch_scc0 L_dbg{n}\ns_cmp_eq_u32 {self.sW}, 0\ns_cbranch_scc0 L_dbg{n}")
        A("s_load_dwordx2 s[4:5], s[0:1], 104")
        A.wait(lg=0)
        A(f"v_mov_b32 {a}, 0")
        for i in range(1, 17):
            A(f"s_sub_u32 s3, s{64 + 2 * (i + 1)}, s64\nv_mov_b32 {d}, s3")
            A(f"global_store_dword {a}, {d}, s[4:5] offset:{4 * (i - 1)}")
        A.label(f"L_dbg{n}")
        self.V.put(a, d)

    def rnd(self, A, dst, src, neg=False):
        A(f"v_cvt_pk_bf16_f32 {dst}, 0, {'-' if neg else ''}{src}")

    def allreduce(self, A, op, regs, width, fill=()):
        fill = list(fill)

        def pad():
            for _ in range(max(0, 3 - len(regs))):
                if fill:
                    A(fill.pop(0))
        steps = ["quad_perm:[1,0,3,2]", "quad_perm:[2,3,0,1]", "row_half_mirror", "row_mirror"]
        for st in steps:
            pad()
            for r in regs:
                A(f"{op}_dpp {r}, {r}, {r} {st} row_mask:0xf bank_mask:0xf")
        tmp = [self.V.get() for _ in regs]
        for w, sw in ((32, "v_permlane16_swap_b32"), (64, "v_permlane32_swap_b32")):
            if width >= w:
                for r, t in zip(regs, tmp):
                    A(f"v_mov_b32 {t}, {r}")
                pad()
                for r, t in zip(regs, tmp):
                    A(f"{sw} {r}, {t}")
                for r, t in zip(regs, tmp):
                    A(f"{op} {r}, {r}, {t}")
        for f in fill:
            A(f)
        self.V.put(*tmp)

    def ln_stats(self, A, s1, s2, nm, rs):
        t = self.V.get()
        A(f"v_mul_f32 {s1}, 0x3b000000, {s1}")
        A(f"v_mul_f32 {s2}, 0x3b000000, {s2}")
        A(f"v_fma_f32 {t}, -{s1}, {s1}, {s2}")
        A(f"v_max_f32 {t}, 0, {t}")
        self.rnd(A, t, t)
        self.rnd(A, nm, s1, neg=True)
        A(f"v_add_f32 {t}, 0x3727c5ac, {t}")
        self.rnd(A, t, t)
        A(f"v_sqrt_f32 {t}, {t}")
        self.rnd(A, t, t)
        A(f"v_rcp_f32 {rs}, {t}")
        self.V.put(t)

    def poll(self, A, name, loads, check):
        check(A)
        A(f"s_cbranch_vccnz L_{name}_slow")
        A.label(f"L_{name}_ok")
        C = Asm()
        C.label(f"L_{name}_slow")
        C("s_mov_b32 s3, 0")
        C.label(f"L_{name}_loop")
        if self.o["mask_poll"]:
            C("s_mov_b64 exec, vcc")
        C("s_nop 1")
        loads(C)
        C(f"s_add_u32 s3, s3, 1\ns_cmp_ge_u32 s3, {SPIN_MAX}")
        C("s_cselect_b32 s18, 0, -1\ns_mov_b32 s19, s18")
        check(C)
        C.wait(vm=0)
        C("s_nop 1")
        C("s_and_b64 vcc, vcc, s[18:19]")
        C(f"s_cbranch_vccnz L_{name}_loop")
        C("s_mov_b64 exec, -1")
        C("s_nop 2")
        C(f"s_branch L_{name}_ok")
        self.cold.append(C)

    def prologue(self):
        A, V, S = self.A, self.V, self.S
        A("s_cmp_ge_u32 s2, 0x100\ns_cbranch_scc1 L_end")
        A("s_load_dwordx16 s[4:19], s[0:1], 0\ns_load_dwordx8 s[20:27], s[0:1], 64")
        A("s_load_dwordx2 s[28:29], s[0:1], 96\ns_load_dwordx2 s[30:31], s[0:1], 112")
        self.stamp("start")
        if self.o["clk"]:
            A("s_memtime s[100:101]")
        self.sL, self.sW, self.sTag, self.sE = S.get(), S.get(), S.get(), S.get()
        self.sOnes, self.sLo, self.sHi, self.sCh = S.get(), S.get(), S.get(), S.get()
        self.sB, self.sH, self.sa, self.sb = S.get(), S.get(), S.get(), S.get()
        sL, sW, sa, sb = self.sL, self.sW, self.sa, self.sb
        self.vL = V.get()
        self.vI = V.get()
        self.vG = V.get()
        t0, t1, t2, t3 = V.get(), V.get(), V.get(), V.get()
        self.vJunk = V.get(2)
        A(f"v_lshrrev_b32 {t0}, 6, v0\ns_lshr_b32 {sL}, s2, 3")
        if self.o["pf_code"]:
            nl = self.o["pf_lines"]
            self.sPc = S.get(2)
            A(f"s_getpc_b64 {self.sPc}")
            A.label("L_pc")
            A(f"""
            v_lshl_add_u32 {t2}, {sL}, 2, {t0}
            v_and_b32 {t2}, {256 // nl - 1}, {t2}
            v_and_b32 {t1}, {nl - 1}, v0
            v_lshl_add_u32 {t2}, {t2}, {nl.bit_length() - 1}, {t1}
            v_lshlrev_b32 {t2}, 7, {t2}
            v_min_u32 {t2}, L_all_end-L_pc-4, {t2}
            global_load_dword {self.vJunk[0]}, {t2}, {self.sPc}
            """)
        self.vTau, self.vHr, self.vRow, vP = V.get(), V.get(), V.get(), V.get()
        A(f"""
        v_readfirstlane_b32 {sW}, {t0}
        s_and_b32 s3, s2, 7
        s_lshl_b32 s3, s3, 5
        s_add_u32 {sL}, {sL}, s3
        {"" if self.o["xmap"] else f"s_mov_b32 {sL}, s2"}
        v_and_b32 {self.vL}, 63, v0
        v_lshrrev_b32 {self.vTau}, 5, v0
        v_and_b32 {t1}, 31, v0
        v_lshlrev_b32 {t1}, 4, {t1}
        v_lshl_add_u32 {self.vHr}, {self.vTau}, 10, {t1}
        s_lshl_b32 {sa}, {sL}, 13
        v_add_u32 {self.vRow}, {sa}, {self.vHr}
        s_lshr_b32 s3, {sL}, 6
        s_lshl_b32 {self.sCh}, s3, 7
        s_and_b32 s3, {sL}, 31
        s_lshl_b32 s3, s3, 2
        s_add_u32 {self.sCh}, {self.sCh}, s3
        s_bfe_u32 s3, {sL}, 0x10005
        s_add_u32 {self.sCh}, {self.sCh}, s3
        s_and_b32 s3, {sW}, 2
        s_add_u32 {self.sCh}, {self.sCh}, s3
        s_lshl_b32 s3, {self.sCh}, 8
        v_lshl_add_u32 {vP}, {self.vL}, 2, s3
        s_lshl_b32 {self.sE}, {self.sCh}, 1
        s_and_b32 {self.sE}, {self.sE}, -4
        v_and_b32 {self.vI}, 15, v0
        v_bfe_u32 {self.vG}, v0, 4, 2
        s_lshr_b32 {self.sB}, {sW}, 1
        s_and_b32 {self.sH}, {sW}, 1
        """)
        self.XB, self.XA, self.PAR, self.WR = V.get(8), V.get(8), V.get(4), V.get(8)
        self.sDt = S.get()
        lines = self.const_lines(t0, t1, t2, t3)
        npre = self.o["cpre"]
        for ln in lines[:npre]:
            A(ln)
        for k in range(4):
            A(f"global_load_dword {self.PAR[k]}, {vP}, s[{6 + 2 * k}:{7 + 2 * k}] {self.o['x_pol']}")
        A(f"global_load_dwordx4 {self.XB[0:4]}, {self.vRow}, s[4:5] {self.o['x_pol']}")
        A(f"global_load_dwordx4 {self.XB[4:8]}, {self.vRow}, s[4:5] offset:512 {self.o['x_pol']}")
        A(f"s_load_dword {self.sDt}, s[14:15], {self.sE}")
        A(f"s_load_dword {self.sE}, s[30:31], {WS_EPOCH}")
        self.stamp("karg")
        V.put(vP)
        for ln in lines[npre:]:
            A(ln)
        self.bg = self.background()
        if self.o["p3_at"] == "consts":
            for ln in self.p3_lines[:-1]:
                A(ln)
            self.p3_lines = self.p3_lines[-1:]
        if self.o["warm_at"] == "s1w":
            n = self.nwarm - (self.o["dma_at"] != "none")
            for ln in self.bg[:n]:
                A(ln)
            self.warm_line = self.bg[n:self.nwarm]
            self.bg = self.bg[self.nwarm:]
        if self.o["poison_at"] == "pub":
            self.vFo, self.vFi = V.get(), V.get()
            A(f"""
            s_lshl_b32 s3, {sW}, 12
            s_lshl_b32 {sb}, {sL}, 4
            s_add_u32 s3, s3, {sb}
            s_add_u32 s3, s3, {WS_FLG}
            v_mov_b32 {self.vFo}, s3
            s_lshr_b32 s3, {sL}, 6
            s_lshl_b32 s3, s3, 12
            s_add_u32 s3, s3, {WS_FLG}
            v_lshl_add_u32 {self.vFi}, v0, 4, s3
            """)
        if self.o["poison_at"] == "consts":
            self.poison2()
        self.stamp("consts")
        V.put(t0, t1, t2, t3, *self.ctmp)

    def poison2(self):
        A = self.A
        A(f"global_store_dwordx4 {self.vP2}, {self.M1}, s[30:31] sc1", tag="poison")
        A(f"global_store_dwordx4 {self.vP2}, {self.M1}, s[30:31] offset:1024 sc1", tag="poison")
        self.V.put(self.vP2)

    def const_lines(self, t0, t1, t2, t3):
        V, S = self.V, self.S
        vI, vG, vL, sW, sL, sB, sH, sa, sb = self.vI, self.vG, self.vL, self.sW, self.sL, self.sB, self.sH, self.sa, self.sb
        out = []

        def A(text):
            out.extend(x.strip() for x in text.strip().split("\n") if x.strip())
        self.BAND = {key: V.get(4) for key in BANDS}
        SEL = V.get(6)
        A(f"""
        v_lshlrev_b32 {t0}, 3, {vG}
        v_sub_u32 {t0}, {t0}, {vI}
        v_add_u32 {t0}, 20, {t0}
        v_mul_u32_u24 {t0}, 0x10001, {t0}
        v_mov_b32 {t3}, 0x70007
        s_mov_b32 {sb}, 0xc000c
        """)
        for k in range(6):
            c0, c1 = 32 - 2 * k, 31 - 2 * k
            A(f"""
            s_mov_b32 s3, {c0 | c1 << 16}
            v_pk_sub_i16 {t1}, {t0}, s3
            v_pk_sub_i16 {t2}, s3, {t0}
            v_pk_max_i16 {t1}, {t1}, {t2}
            v_pk_min_i16 {t1}, {t1}, {t3}
            v_lshl_or_b32 {SEL[k]}, {t1}, 8, {sb}
            """)
        for (delta, h), B in self.BAND.items():
            lut = sum(0x3C << (8 * i) for i in range(min(h + 1, 4)))
            A(f"s_mov_b32 s3, {lut}")
            for d in range(4):
                A(f"v_perm_b32 {B[d]}, {60 if h == 4 else 0}, s3, {SEL[d + (0 if delta == 12 else 2)]}")
        Z = SEL[0:4]
        for k in range(4):
            A(f"v_mov_b32 {Z[k]}, 0")
        self.vShift, self.vShiftR = V.get(), V.get()
        A(f"""
        v_lshlrev_b32 {t2}, 4, v0
        v_lshlrev_b32 {t3}, 2, {vL}
        v_and_b32 {t1}, 127, v0
        s_mul_i32 s3, {sB}, {UCH}
        s_add_u32 {sb}, s3, {L_U}
        v_lshl_add_u32 {t0}, {t1}, 2, {sb}
        ds_write_b128 {t2}, {Z} offset:{L_P}
        ds_write_b128 {t2}, {Z} offset:{L_P + 4096}
        ds_write_b128 {t2}, {Z} offset:{L_P + 8192}
        ds_write_b128 {t2}, {Z} offset:{L_P + 12288}
        ds_write_b32 {t3}, {Z[0]} offset:{L_P + 16384}
        ds_write_b32 {t0}, {Z[0]}
        s_mul_i32 s3, {sB}, {2 * PHALF}
        v_lshl_add_u32 {self.vShiftR}, {t1}, 4, s3
        """)
        self.vUf, self.vZw, self.vUw = V.get(), V.get(), V.get()
        self.vN, self.vF = V.get(), V.get()
        A(f"""
        v_lshl_add_u32 {t0}, {vI}, 5, {sb}
        v_lshl_add_u32 {self.vUf}, {vG}, 4, {t0}
        s_mul_i32 s3, {sB}, {KCH}
        v_lshl_add_u32 {self.vShift}, {t1}, 4, s3
        v_sub_u32 {t0}, 15, {vI}
        v_and_b32 {t1}, 3, {t0}
        v_and_b32 {t0}, 12, {t0}
        v_mul_u32_u24 {t1}, {KCOPY}, {t1}
        v_lshl_add_u32 {t0}, {t0}, 1, {t1}
        v_add_u32 {t0}, s3, {t0}
        v_lshl_add_u32 {self.vN}, {vG}, 4, {t0}
        v_lshl_add_u32 {self.vF}, {vG}, 3, {t0}
        v_and_b32 {t0}, 2, {vG}
        v_lshl_add_u32 {t0}, {vI}, 2, {t0}
        v_add_u32 {t0}, {sB}, {t0}
        v_lshrrev_b32 {t1}, 1, {vI}
        v_xor_b32 {t0}, {t0}, {t1}
        v_and_b32 {t1}, 1, {vG}
        v_lshlrev_b32 {t1}, 3, {t1}
        v_lshl_add_u32 {self.vZw}, {t0}, 4, {t1}
        """)
        self.sStM = S.get()
        self.vR, self.vS0, self.vS1r = V.get(), V.get(), V.get()
        A(f"""
        s_mul_i32 s3, {sB}, {STAGE_CH}
        s_lshl_b32 {sb}, {sH}, 8
        s_add_u32 s3, s3, {sb}
        s_add_u32 {self.sStM}, s3, {L_STAGE - 0x8000}
        s_add_u32 s3, s3, {L_STAGE}
        v_lshl_add_u32 {t2}, {vG}, 4, s3
        v_xor_b32 {t0}, 3, {vI}
        v_bfe_u32 {t1}, {t0}, 1, 1
        v_add_u32 {t1}, {t0}, {t1}
        v_lshrrev_b32 {t1}, 1, {t1}
        s_movk_i32 s3, {ROWB}
        v_mad_u32_u24 {self.vR}, {vI}, s3, {t2}
        v_mad_u32_u24 {self.vS0}, {t0}, s3, {t2}
        v_mad_u32_u24 {self.vS1r}, {t1}, s3, {t2}
        """)
        self.vK1, self.vK3, self.vKs = V.get(), V.get(), V.get()

        def pa(m):
            return ((m >> 2) & 1) * PPLANE + (m >> 3) * 16 + (m & 3) * 4
        A(f"""
        s_mul_i32 s3, {sW}, {PHALF}
        s_add_u32 s3, s3, {L_P}
        v_xor_b32 {t3}, 3, {vG}
        v_and_b32 {t0}, 1, {t3}
        v_mul_u32_u24 {t0}, {PPLANE}, {t0}
        v_lshrrev_b32 {t3}, 1, {t3}
        v_lshl_add_u32 {t3}, {t3}, 4, {t0}
        v_add_u32 {t3}, s3, {t3}
        v_lshlrev_b32 {t0}, 5, {vI}
        v_sub_u32 {t0}, {t3}, {t0}
        v_add_u32 {self.vK1}, {pa(528 - 256)}, {t0}
        v_lshrrev_b32 {t1}, 1, {vI}
        v_lshrrev_b32 {t2}, 2, {vI}
        v_add_u32 {t2}, 2, {t2}
        v_min_u32 {t1}, {t1}, {t2}
        v_add3_u32 {t1}, {t1}, {vI}, {FAR // 16 + 1}
        v_lshl_add_u32 {self.vK3}, {t1}, 5, {t3}
        v_cmp_gt_u32 vcc, 8, {vI}
        v_mov_b32 {t0}, {pa(28)}
        v_mov_b32 {t1}, {pa(NX + 24)}
        v_cndmask_b32 {t0}, {t0}, {t1}, vcc
        v_add_u32 {self.vKs}, s3, {t0}
        """)
        self.vS1o, self.vS1i, self.vS1i2, self.vP2 = V.get(), V.get(), V.get(), V.get()
        self.vMask, self.vHw2, self.M1 = V.get(), V.get(), V.get(4)
        A(f"""
        v_and_b32 {t0}, 1, v0
        v_lshrrev_b32 {t1}, 1, v0
        v_mul_u32_u24 {t2}, {UCH}, {t0}
        v_lshl_add_u32 {self.vUw}, {t1}, 4, {t2}
        v_lshlrev_b32 {t0}, 4, {t0}
        v_lshl_add_u32 {t2}, {t1}, 13, {t0}
        s_lshl_b32 s3, {sL}, 5
        s_add_u32 s3, s3, {WS_S1}
        v_add_u32 {self.vS1i}, s3, {t2}
        v_add_u32 {self.vS1i2}, 0x100000, {self.vS1i}
        s_lshl_b32 s3, {sW}, 11
        s_add_u32 s3, s3, {sa}
        s_add_u32 s3, s3, {WS_S1}
        v_lshl_add_u32 {self.vS1o}, {vL}, 4, s3
        v_add_u32 {self.vP2}, {WS_S2 - WS_S1}, {self.vS1o}
        s_mov_b32 s3, {L_H}
        v_lshl_add_u32 {self.vHw2}, v0, 2, s3
        v_mov_b32 {self.vMask}, {0xFFFFFFFF ^ TAGMASK}
        s_mov_b32 {self.sOnes}, 0x3f803f80
        s_mov_b32 {self.sLo}, 0x3f80
        s_mov_b32 {self.sHi}, 0x3f800000
        """)
        for k in range(4):
            A(f"v_mov_b32 {self.M1[k]}, -1")
        self.ctmp = [SEL]
        return out

    def background(self):
        V, S = self.V, self.S
        vL, sW, sL, sa, sb = self.vL, self.sW, self.sL, self.sa, self.sb
        t0, t1, t2 = V.get(), V.get(), V.get()
        out = []

        def A(text):
            out.extend(x.strip() for x in text.strip().split("\n") if x.strip())
        A(f"""
        s_lshr_b32 s3, {sL}, 5
        s_and_b32 {sb}, {sL}, 31
        s_mul_i32 s6, {sb}, {16 * 3584}
        s_mul_i32 s7, s3, 448
        s_add_u32 s6, s6, s7
        v_lshrrev_b32 {t0}, 2, {vL}
        v_and_b32 {t1}, 3, v0
        v_mul_u32_u24 {t0}, 3584, {t0}
        v_lshl_add_u32 {t0}, {t1}, 7, {t0}
        v_add_u32 {t0}, s6, {t0}
        s_mul_i32 s6, {sb}, {56 * 1024}
        s_lshl_b32 s7, s3, 7
        s_add_u32 s6, s6, s7
        s_mul_i32 s7, {self.sH}, {28 * 1024}
        s_add_u32 s6, s6, s7
        v_min_u32 {t1}, 27, {vL}
        v_lshl_add_u32 {t1}, {t1}, 10, s6
        s_cmp_eq_u32 {sW}, 0
        s_cselect_b32 s8, s22, s24
        s_cselect_b32 s9, s23, s25
        s_cmp_lt_u32 {sW}, 2
        s_cselect_b32 s8, s8, s26
        s_cselect_b32 s9, s9, s27
        s_cselect_b64 vcc, -1, 0
        v_cndmask_b32 {t0}, {t1}, {t0}, vcc
        """)
        if self.o["dma_at"] != "none":
            A(f"global_load_dword {self.vJunk[1]}, {t0}, s[8:9]")
        self.nwarm = len(out)
        warm_block = list(out)
        if self.o["warm_at"] == "bg":
            out.clear()
        A(f"s_lshr_b32 s3, {sL}, 5\ns_and_b32 {sb}, {sL}, 31")
        self.sBlk, self.sRole, self.sUp = S.get(), S.get(), S.get()
        A(f"""
        s_cmp_ge_u32 {sb}, 7
        s_cselect_b32 {self.sUp}, 1, 0
        s_cselect_b32 s6, 7, 0
        s_sub_u32 s6, {sb}, s6
        s_mul_i32 {self.sBlk}, s3, 7
        s_add_u32 {self.sBlk}, {self.sBlk}, s6
        s_cmp_ge_u32 {sb}, 14
        s_cselect_b32 {self.sRole}, 2, 0
        s_lshl_b32 s3, s3, 2
        s_sub_u32 s6, {sb}, {self.o["r1_at"]}
        s_add_u32 s3, s3, s6
        s_cmp_lt_u32 s6, 4
        s_cselect_b32 {self.sRole}, 1, {self.sRole}
        s_cselect_b32 {self.sBlk}, s3, {self.sBlk}
        """)
        self.p3_lines = [f"s_mul_i32 s3, {sL}, 2432", f"s_add_u32 s3, s3, {WS_S3}", f"v_lshl_add_u32 {t2}, v0, 4, s3",
                         f"v_cmp_gt_u32 s[10:11], {t1}, v0",
                         ("s_mov_b64 exec, s[10:11]", f"global_store_dwordx4 {t2}, {self.M1}, s[30:31] sc1", "s_mov_b64 exec, -1")]
        self.p3_lines.insert(0, f"v_mov_b32 {t1}, 152")
        if self.o["warm_at"] == "bg":
            out.extend(warm_block)
        self.vS2o, self.vS2o2, self.vS2i, self.vS2i2, self.vZr = V.get(), V.get(), V.get(), V.get(), V.get()
        A(f"""
        s_lshl_b32 s3, {sL}, 13
        s_add_u32 s3, s3, {WS_S2}
        v_lshl_add_u32 {self.vS2o}, v0, 4, s3
        v_add_u32 {self.vS2o2}, 0x1000, {self.vS2o}
        v_bfe_u32 {t0}, v0, 3, 3
        v_xor_b32 {t0}, v0, {t0}
        v_lshlrev_b32 {self.vZr}, 4, {t0}
        s_lshl_b32 s3, {sW}, 13
        s_add_u32 s3, s3, {self.rowid()}
        s_sub_u32 s3, s3, {sL}
        s_lshl_b32 s3, s3, 5
        s_add_u32 s3, s3, {WS_S2 - WS_S1}
        v_add_u32 {self.vS2i}, s3, {self.vS1i}
        v_add_u32 {self.vS2i2}, 0x40000, {self.vS2i}
        """)
        self.bgtmp = [t0, t1, t2, self.M1]
        return out

    def rowid(self):
        return getattr(self, "sR", self.sL)

    def make_tags(self, A):
        self.tags = [self.sTag, self.S.get(), self.S.get(), self.S.get()]
        A(f"s_add_u32 {self.sE}, {self.sE}, 1\ns_and_b32 {self.sTag}, {self.sE}, {TAGMASK}")
        for q in range(1, 4):
            A(f"s_lshr_b32 {self.tags[q]}, {self.sE}, {3 * q}\ns_and_b32 {self.tags[q]}, {self.tags[q]}, {TAGMASK}")

    def ln1(self):
        A, V = self.A, self.V
        glob = False
        s1, s2, nm, rs, ad = V.get(), V.get(), V.get(), V.get(), V.get()
        A(f"v_lshlrev_b32 {ad}, 2, {self.vTau}")
        for k in range(8):
            if not glob and k % 4 == 0:
                A(f"ds_write_b128 {self.vHr}, {self.XB[k:k + 4]} offset:{L_H + 128 * k}")
            A(f"v_dot2_f32_bf16 {s1}, {self.XB[k]}, {self.sOnes}, {s1 if k else 0}")
            A(f"v_dot2_f32_bf16 {s2}, {self.XB[k]}, {self.XB[k]}, {s2 if k else 0}")
            if k == 0:
                self.stamp("x")
                if self.o["poison_at"] == "x":
                    self.poison2()
        wv = self.o["wv"]
        take, self.ksl = self.ksl[:wv[1]], self.ksl[wv[1]:]
        self.allreduce(A, "v_add_f32", [s1, s2], 32, take)
        self.ln_stats(A, s1, s2, nm, rs)
        if self.o["poison_at"] == "stat":
            self.poison2()
        self.stamp("stat")
        A("s_mov_b64 exec, 1\ns_bitset1_b64 exec, 32")
        A(f"v_mul_f32 {rs}, 0x3d800000, {rs}")
        A(f"ds_write_b32 {ad}, {nm} offset:{L_ST}\nds_write_b32 {ad}, {rs} offset:{L_ST + 32}")
        A("s_mov_b64 exec, -1")
        A(f"v_mov_b32 {ad}, 0")
        V.put(self.XB)
        self.weave(wv[2])
        A.barrier()
        self.stamp("b1")
        NM, RS = V.get(8), V.get(8)
        XA = self.XA
        if not glob:
            for q in range(2):
                A(f"ds_read2st64_b32 {XA[2 * q:2 * q + 2]}, {self.vHw2} offset0:{8 * q} offset1:{8 * q + 4}")
        A(f"ds_read_b128 {NM[0:4]}, {ad} offset:{L_ST}")
        if not glob:
            for q in range(2, 4):
                A(f"ds_read2st64_b32 {XA[2 * q:2 * q + 2]}, {self.vHw2} offset0:{8 * q} offset1:{8 * q + 4}")
        A(f"ds_read_b128 {NM[4:8]}, {ad} offset:{L_ST + 16}")
        for k in range(2):
            A(f"ds_read_b128 {RS[4 * k:4 * k + 4]}, {ad} offset:{L_ST + 32 + 16 * k}")
        self.weave(wv[3])
        if self.o["poison_at"] == "b1":
            self.poison2()
        self.make_tags(A)
        T = V.get(8)
        for e in range(2):
            G = V.get(4)
            for j in range(8):
                A(f"v_dot2_f32_bf16 {T[j]}, {XA[j]}, {self.sHi if e else self.sLo}, {NM[j]}")
            for j in range(8):
                self.rnd(A, T[j], T[j])
            for q in range(4):
                A(f"v_pk_mul_f32 {T[2 * q:2 * q + 2]}, {T[2 * q:2 * q + 2]}, {RS[2 * q:2 * q + 2]}")
            for j in range(8):
                self.rnd(A, T[j], T[j])
            for q in range(4):
                A(f"v_cvt_pk_f16_f32 {G[q]}, {T[2 * q]}, {T[2 * q + 1]}")
            for q in range(4):
                A(f"v_and_or_b32 {G[q]}, {G[q]}, {self.vMask}, {self.tags[q]}")
            self.G = getattr(self, "G", []) + [G]
            if e == 0:
                self.stamp("norm")
            if self.o["st_late"] and e == 0:
                continue
            A.wait_tag("poison")
            for ee in ((0, 1) if self.o["st_late"] else (e,)):
                A(f"global_store_dwordx4 {self.vS1o}, {self.G[ee]}, s[30:31] offset:{1024 * ee} sc1", tag="s1st")
        self.stamp("pub1")
        V.put(T, NM, RS, s1, s2, nm, rs, ad, self.vS1o)

    def s1_loads(self, A):
        A(f"global_load_dwordx4 {self.UG[0:4]}, {self.vS1i}, s[30:31] sc1")
        A(f"global_load_dwordx4 {self.UG[4:8]}, {self.vS1i2}, s[30:31] sc1")

    def maybe_s1(self, where):
        if self.o["s1_at"] == where:
            self.UG = self.V.get(8)
            if self.o["poison_at"] == "pub":
                A = self.A
                A(f"v_mov_b32 {self.UG[0]}, {self.sE}")
                A.wait_tag("poison")
                A(f"s_mov_b64 exec, 1\nglobal_store_dword {self.vFo}, {self.UG[0]}, s[30:31] sc1\ns_mov_b64 exec, -1")
                self.V.put(self.vFo)
            self.s1_loads(self.A)

    def ksetup_lines(self):
        V = self.V
        P = self.PAR
        out = []

        class Rec:
            def __call__(self_, text):
                out.extend(x.strip() for x in text.strip().split("\n") if x.strip())
        A = Rec()
        t0, t1, dt = V.get(), V.get(), V.get()
        self.vG16 = V.get()
        sb = self.sb
        A(f"""
        s_and_b32 {sb}, {self.sCh}, 1
        s_xor_b32 {sb}, {sb}, 1
        s_lshl_b32 {sb}, {sb}, 4
        s_lshl_b32 {self.sDt}, {self.sDt}, {sb}
        s_and_b32 {self.sDt}, {self.sDt}, 0xffff0000
        v_mov_b32 {dt}, {LOG2E}
        v_mul_f32 {dt}, {self.sDt}, {dt}
        v_exp_f32 {dt}, {dt}
        s_cmp_eq_u32 {self.sH}, 0
        s_cselect_b32 {sb}, 16, 0
        """)
        self.rnd(A, dt, dt)
        A(f"""
        v_and_b32 {t0}, 0x7fff7fff, {P[2]}
        v_and_b32 {t1}, 0x7fff7fff, {P[3]}
        v_pk_max_u16 {t0}, {t0}, {t1}
        v_lshrrev_b32 {t1}, 16, {t0}
        v_and_b32 {t0}, 0xffff, {t0}
        v_max_u32 {t0}, {t0}, {t1}
        """)
        W = {p: V.get(2) for p in (1, 16, 256)}
        u0, u1 = V.get(), V.get()
        fill = [f"v_lshlrev_b32 {P[k]}, {sb}, {P[k]}" for k in range(4)]
        fill += [f"v_and_b32 {P[k]}, 0xffff0000, {P[k]}" for k in range(4)]
        fill += [f"v_mul_f32 {P[0]}, {LOG2E}, {P[0]}", f"v_exp_f32 {P[0]}, {P[0]}", f"v_mul_f32 {P[1]}, {P[1]}, {dt}",
                 f"v_cvt_pk_bf16_f32 {P[0]}, 0, {P[0]}", f"v_mul_f32 {P[1]}, {INV2PI}, {P[1]}", f"v_mul_f32 {P[0]}, {P[0]}, {dt}",
                 f"v_fract_f32 {u1}, {P[1]}", f"v_mul_f32 {P[0]}, {LOG2E | 0x80000000}, {P[0]}"]
        keep = V.get()
        V.put(keep)
        self.allreduce(A, "v_max_u32", [t0], 64, fill)
        again = V.get()
        assert str(again) == str(keep)
        A(f"v_exp_f32 {u0}, {P[0]}\nv_cos_f32 {W[1][0]}, {u1}\nv_sin_f32 {W[1][1]}, {u1}")
        A(f"""
        v_lshrrev_b32 {t0}, 7, {t0}
        v_mul_f32 {W[1][0]}, {W[1][0]}, {u0}
        v_mul_f32 {W[1][1]}, {W[1][1]}, {u0}
        v_max_u32 {t0}, 8, {t0}
        v_lshrrev_b32 {t1}, 23, {dt}
        v_add_u32 {t1}, {t1}, {t0}
        v_subrev_u32 {t1}, 127, {t1}
        v_max_i32 {t1}, 0, {t1}
        v_min_i32 {t1}, 254, {t1}
        v_lshlrev_b32 {self.vG16}, 23, {t1}
        v_sub_u32 {t0}, 259, {t0}
        v_and_b32 {dt}, 0x007fffff, {dt}
        v_lshl_or_b32 {dt}, {t0}, 23, {dt}
        """)
        L = V.get(2)
        for p, mul in ((16, 0x41800000), (256, 0x43800000)):
            w = W[p]
            A(f"v_mul_f32 {u0}, {mul}, {P[0]}\nv_mul_f32 {u1}, {mul}, {P[1]}")
            A(f"v_exp_f32 {u0}, {u0}\nv_fract_f32 {u1}, {u1}")
            A(f"v_cos_f32 {w[0]}, {u1}\nv_sin_f32 {w[1]}, {u1}")
            A(f"v_mul_f32 {L[p // 256]}, {P[2 + p // 256]}, {dt}")
            A(f"v_mul_f32 {w[0]}, {w[0]}, {u0}\nv_mul_f32 {w[1]}, {w[1]}, {u0}")
        self.ks = dict(W=W, L=L, t0=t0, tmp=[u0, u1, t1, dt, P, again])
        return out

    def weave(self, n):
        for _ in range(min(n, len(self.ksl))):
            self.A(self.ksl.pop(0))

    def kgen_steps(self):
        A, V = self.A, self.V
        self.weave(1000)
        W, L, t0 = self.ks["W"], self.ks["L"], self.ks["t0"]
        V.put(*self.ks["tmp"])
        M, Rr, T = V.get(2), V.get(2), V.get(2)
        self.stamp("ws")
        NB_ = self.o["recb"]
        pk = [V.get() for _ in range(2 * NB_)]
        cnt = [0]
        queue = []
        A(f"s_mov_b32 m0, {self.sStM}")

        def cmul(d, a, b):
            A(f"v_pk_mul_f32 {T}, {a}, {b} op_sel_hi:[0,1]")
            A(f"v_pk_fma_f32 {d}, {a}, {b}, {T} op_sel:[1,1,0] op_sel_hi:[1,0,1] neg_lo:[0,1,0]")

        if not self.o["addtid"]:
            vSt = V.get()
            A(f"v_lshl_add_u32 {vSt}, {self.vL}, 2, {self.sStM}")

        def flush_q():
            for row, r in queue:
                if self.o["addtid"]:
                    A(f"ds_write_addtid_b32 {r} offset:{32768 + row * ROWB}")
                else:
                    A(f"ds_write_b32 {vSt}, {r} offset:{32768 + row * ROWB}")
            queue.clear()

        def put(row, v, conj=False):
            r = pk[cnt[0] % (2 * NB_)]
            cnt[0] += 1
            A(f"v_cvt_pk_f16_f32 {r}, {v[0]}, {'-' if conj else ''}{v[1]}")
            queue.append((row, r))
            if len(queue) >= NB_:
                flush_q()

        Rf, S0, S1, FA = ([self.AC.get(4, 4) for _ in range(4)] for _ in range(4))
        D1, D2, D3 = V.get(4), V.get(4), V.get(4)

        def frags(regs, addr, row0):
            flush_q()
            for q in range(4):
                A(f"ds_read_b128 {regs[q]}, {addr} offset:{row0 * ROWB + 64 * q}")

        def product(D, a, b):
            for q in range(4):
                A(f"v_mfma_f32_16x16x32_f16 {D}, {a[q]}, {b[q]}, {D if q else 0}")

        A(f"v_mov_b32 {t0}, 0x3c00")
        queue.append((0, t0))
        yield
        put(1, W[16], conj=True)
        cmul(Rr, W[16], W[16])
        put(2, Rr, conj=True)
        for j in range(3, 16):
            yield
            cmul(Rr, Rr, W[16])
            put(j, Rr, conj=True)
        frags(Rf, self.vR, 0)
        self.stamp("recR")
        LE = {0: L}
        cur = L
        for al in range(17):
            yield
            if al:
                nxt = V.get(2) if al % 2 == 0 else M
                cmul(nxt, cur, W[1])
                cur = nxt
                if al % 2 == 0:
                    LE[al] = cur
            if al < 16:
                put(16 + al, cur)
        frags(S0, self.vS0, 16)
        self.maybe_s1("rec1")
        for al in range(0, 17, 2):
            yield
            cmul(LE[al], LE[al], W[256])
            put(32 + al // 2, LE[al])
        frags(S1, self.vS1r, 32)
        product(D1, S0, Rf)
        self.maybe_s1("seg1")
        for a in range(2):
            for al in (4, 8, 12, 16):
                yield
                cmul(LE[al], LE[al], W[256])
                put(41 + 2 * (al // 4 - 1) + 1 - a, LE[al])
        K3 = V.get(4)
        flush_q()
        A(f"ds_write_b128 {self.vK1}, {D1} offset:512")
        product(D2, S1, Rf)
        self.maybe_s1("far")
        for a in range(4):
            for al in (8, 16):
                yield
                cmul(LE[al], LE[al], W[256])
                put(49 + 4 * (al // 8 - 1) + 3 - a, LE[al])
        frags(FA, self.vR, 41)
        self.stamp("rec")
        self.maybe_s1("rec2")
        A(f"ds_write_b128 {self.vK1}, {D2}")
        A(f"v_cmp_gt_u32 vcc, 8, {self.vI}")
        product(D3, Rf, FA)
        self.maybe_s1("mfma")
        self.stamp("kmf0")
        A(f"v_cndmask_b32 {T[1]}, {D2[0]}, 0, vcc")
        for k in range(4):
            A(f"v_mov_b32 {K3[k]}, {D3[3 - k]}")
        A(f"v_cndmask_b32 {T[0]}, {D2[0]}, {D3[3]}, vcc")
        A(f"ds_write_b128 {self.vK3}, {K3}")
        A("s_mov_b32 exec_lo, 0\ns_mov_b32 exec_hi, 0x80400000")
        A(f"ds_write_b32 {self.vKs}, {T[0]} offset:12\nds_write2_b32 {self.vKs}, {T[1]}, {T[1]} offset0:1 offset1:2")
        A("s_mov_b32 exec_hi, 0x00400000")
        A(f"ds_write_b32 {self.vKs}, {T[0]} offset:{PPLANE}")
        A("s_mov_b64 exec, -1")
        A.barrier()
        V.put(M, Rr, T, *pk, *W.values(), t0, D1, D2, D3, K3, *LE.values(),
              self.vR, self.vS0, self.vS1r, self.vK1, self.vK3, self.vKs)
        self.AC.put(*Rf, *S0, *S1, *FA)

    def row_params(self):
        A, V = self.A, self.V
        t1, t2 = V.get(), V.get()
        self.vDk = V.get()
        A(f"""
        v_and_b32 {t1}, 0x1ff, {self.vHr}
        v_lshlrev_b32 {t2}, 2, v0
        global_load_dwordx4 {self.WR[0:4]}, {t1}, s[20:21]
        global_load_dwordx4 {self.WR[4:8]}, {t1}, s[20:21] offset:512
        global_load_dword {self.vDk}, {t2}, s[16:17]
        """)
        V.put(t1, t2)

    def kgen(self):
        A, V = self.A, self.V
        if self.o["poison_at"] == "pub":
            self.poison2()
        for item in self.p3_lines:
            A("\n".join(item) if isinstance(item, tuple) else item, tag="poison3" if isinstance(item, tuple) else None)
        self.row_params()
        for _ in self.ksteps:
            pass
        self.stamp("kmf")
        self.maybe_s1("shift")
        D, E = V.get(12), V.get(12)
        C = [V.get(4) for _ in range(4)]
        for k in range(3):
            off = L_P + (k & 1) * PPLANE + (k >> 1) * 16
            A(f"ds_read_b128 {D[4 * k:4 * k + 4]}, {self.vShiftR} offset:{off}")
            A(f"ds_read_b128 {E[4 * k:4 * k + 4]}, {self.vShiftR} offset:{off + PHALF}")
        for k in range(6):
            A(f"v_pk_add_f32 {D[2 * k:2 * k + 2]}, {D[2 * k:2 * k + 2]}, {E[2 * k:2 * k + 2]}")
        for c in range(4):
            for k in range(4):
                A(f"v_cvt_pk_f16_f32 {C[c][k]}, {D[c + 2 * k]}, {D[c + 2 * k + 1]}")
            if c % 2:
                for cc in (c - 1, c):
                    A(f"ds_write_b128 {self.vShift}, {C[cc]} offset:{L_K + cc * KCOPY}")
        if not self.o["frag_in"]:
            A.barrier()
        self.shift_regs = (D, E, *C, self.vShift, self.vShiftR)
        self.stamp("shift")
        self.maybe_s1("frag")
        AC = self.AC
        self.KN = [AC.get(4, 4) for _ in range(17)]
        self.KX = AC.get(4, 4)
        self.B2 = {(k, d): AC.get(4, 4) for k in range(2) for d in (2, 3, 4)}
        self.B3 = {d: AC.get(4, 4) for d in (4, 5, 6, 7)}
        rd = {}
        for q in range(17):
            rd[str(self.KN[q])] = [f"ds_read_b64 {self.KN[q][2 * hf:2 * hf + 2]}, {self.vN} offset:{64 * (16 - q) + 8 * hf}" for hf in range(2)]
        rd[str(self.KX)] = [f"ds_read_b64 {self.KX[2 * hf:2 * hf + 2]}, {self.vN} offset:{2 * NX + 8 * hf}" for hf in range(2)]
        for (k, d), r in self.B2.items():
            rd[str(r)] = [f"ds_read_b64 {r[2 * hf:2 * hf + 2]}, {self.vF} offset:{2 * (V2[2 * k + hf] + 32 - 16 * (d - 2))}" for hf in range(2)]
        for d, r in self.B3.items():
            rd[str(r)] = [f"ds_read_b64 {r[2 * hf:2 * hf + 2]}, {self.vF} offset:{2 * (V3[hf] + 48 - 16 * (d - 4))}" for hf in range(2)]
        self.frag_reads = {}
        if self.o["frag_in"]:
            self.frag_reads = rd
        else:
            for v in rd.values():
                A("\n".join(v))
        self.maybe_s1("end")
        self.stamp("frag")

    def s1_consume(self, A, sfx):
        V = self.V
        UG = self.UG
        t0, t1 = V.get(), V.get()

        def check(C):
            for k in range(8):
                C(f"v_xor_b32 {UG[k]}, {self.tags[k % 4]}, {UG[k]}")
            C(f"v_or3_b32 {t0}, {UG[0]}, {UG[1]}, {UG[2]}\nv_or3_b32 {t1}, {UG[3]}, {UG[4]}, {UG[5]}")
            C(f"v_or3_b32 {t0}, {t0}, {UG[6]}, {UG[7]}\nv_or_b32 {t0}, {t0}, {t1}")
            C(f"v_and_b32 {t0}, {TAGMASK}, {t0}\nv_cmp_ne_u32 vcc, 0, {t0}")
        self.poll(A, "s1" + sfx, self.s1_loads, check)
        self.stamp("s1w", A)
        if self.o["warm_at"] == "s1w":
            for ln in self.warm_line:
                A(ln)
        A(f"ds_write_b128 {self.vUw}, {UG[0:4]} offset:{L_U + 512}")
        A(f"ds_write_b128 {self.vUw}, {UG[4:8]} offset:{L_U + 512 + 2048}")
        self.stamp("s1", A)
        if not self.o["early_br"]:
            A.barrier()
            self.stamp("b5", A)
        V.put(t0, t1, *self.shift_regs)

    def conv(self, A, tiles, dma):
        V, AC = self.V, self.AC
        acc = {j: V.get(4) for j in tiles}
        NF, NG, NW, NP = self.o["nf"], self.o["ng"], self.o["nw"], 6
        PE, PD, NPRE = self.o["pe"], self.o["pd"], self.o["npre"]
        Fb = [AC.get(4, 4) for _ in range(NF)]
        Gb = [AC.get(4, 4) for _ in range(NG)]
        Wb = [V.get(4) for _ in range(NW)]
        Pb = [V.get(4) for _ in range(NP)]
        EY, EZ = V.get(4), V.get(2)
        qmax = {0: 7, 1: 15}
        b2 = sorted({j - d for j in tiles for d in (2, 3, 4) if j - d >= 0})
        b3 = sorted({j - d for j in tiles for d in (4, 5, 6, 7) if j - d >= 0})
        nlo = min(8 * j - qmax.get(j, 16) for j in tiles)
        nhi = 8 * max(tiles)
        near = []
        for fi, n in enumerate(range(nlo, nhi + 1)):
            for j in tiles:
                q = 8 * j - n
                if 0 <= q <= qmax.get(j, 16):
                    near.append((j, self.KN[q], fi, q == 0))
        far = []
        gfr, pcount = [], 0
        for b in sorted(set(b2) | set(b3)):
            ga, gb = len(gfr), len(gfr) + 1
            gfr += [256 * b - 16, 256 * b - 24]
            mains = []
            if b in b2:
                pa, pb = pcount, pcount + 1
                pcount += 2
                far += [("band", ga, (12, 1), pa, 0), ("band", ga, (8, 2), pa, 1), ("band", gb, (12, 1), pb, 0), ("band", gb, (8, 2), pb, 1)]
                mains += [("main", b + d, pa, self.B2[(0, d)]) for d in (2, 3, 4) if b + d in tiles]
                mains += [("main", b + d, pb, self.B2[(1, d)]) for d in (2, 3, 4) if b + d in tiles]
            if b in b3:
                pc = pcount
                pcount += 1
                far += [("band", ga, (8, 3), pc, 0), ("band", gb, (8, 4), pc, 1)]
                mains += [("main", b + d, pc, self.B3[d]) for d in (4, 5, 6, 7) if b + d in tiles]
            if b + 4 in tiles:
                far.append(("x", b + 4, ga))
            far += mains
        LAT = self.o["lat"]
        mf, fill = [], []
        started, done_at = set(), {}
        fuse, guse, plast, pready = {}, {}, {}, {}
        wcount = 0
        ni = 0
        farleft = list(far)
        span = self.o["far_span"][0 if 0 in tiles else 1]
        credit = 0.0

        def acc_mf(j, a, b):
            mf.append(f"v_mfma_f32_16x16x32_f16 {acc[j]}, {a}, {b}, {acc[j] if j in started else 0}")
            started.add(j)

        def far_ok(it):
            t = len(mf)
            if it[0] == "main":
                return pready.get(it[2], 10 ** 6) <= t
            if it[0] == "band":
                prev = it[3] - NP
                return prev < 0 or not any(o[0] == "main" and o[2] == prev for o in farleft)
            return True

        while ni < len(near) or farleft:
            t = len(mf)
            want_far = farleft and (credit >= 1.0 or ni >= len(near))
            if ni < len(near) and near[ni][3] and any(o[0] in ("main", "x") and o[1] == near[ni][0] for o in farleft):
                want_far = True
            pick = None
            if want_far:
                for it in farleft[:8]:
                    if far_ok(it):
                        if it[0] == "band" and any(o[0] == "band" for o in farleft[:farleft.index(it)]):
                            continue
                        pick = it
                        break
            if pick is None and ni < len(near) and not (near[ni][3] and any(o[0] in ("main", "x") and o[1] == near[ni][0] for o in farleft)):
                j, a, fi, last = near[ni]
                ni += 1
                acc_mf(j, a, Fb[fi % NF])
                fuse.setdefault(fi, [t, t])[1] = t
                if last:
                    done_at[j] = t
                credit += len(far) / span
                continue
            assert pick is not None, "conv schedule is stuck"
            farleft.remove(pick)
            credit -= 1.0
            if pick[0] == "band":
                _, g, key, p, hf = pick
                w = Wb[wcount % NW]
                wcount += 1
                mf.append(f"v_mfma_f32_16x16x32_f16 {w}, {Gb[g % NG]}, {self.BAND[key]}, 0")
                guse.setdefault(g, [t, t])[1] = t
                for k in range(2):
                    fill.append([t + self.o["cvt0"], t + LAT - 1, f"v_cvt_pk_f16_f32 {Pb[p % NP][2 * hf + k]}, {w[2 * k]}, {w[2 * k + 1]}", None])
                if hf == 1:
                    pready[p] = t + LAT
            elif pick[0] == "x":
                acc_mf(pick[1], self.KX, Gb[pick[2] % NG])
                guse.setdefault(pick[2], [t, t])[1] = t
            else:
                acc_mf(pick[1], Pb[pick[2] % NP], pick[3])
        nm = len(mf)
        pre = []
        reads = []
        for fi in sorted(fuse):
            txt = f"ds_read_b128 {Fb[fi % NF]}, {self.vUf} offset:{512 + 2 * (32 * (nlo + fi) - 16)}"
            reads.append((fuse[fi][0], fuse[fi - NF][1] if fi >= NF else -1, txt))
        for g in sorted(guse):
            txt = f"ds_read_b128 {Gb[g % NG]}, {self.vUf} offset:{512 + 2 * gfr[g]}"
            reads.append((guse[g][0], guse[g - NG][1] if g >= NG else -1, txt))
        seen = set()
        for t, txt in enumerate(mf):
            for name, two in self.frag_reads.items():
                if name not in seen and f" {name}," in txt:
                    seen.add(name)
                    reads += [(t, -1, two[0]), (t, -1, two[1])]
        reads.sort(key=lambda r: r[0])
        for first, free, txt in reads:
            if free < 0 and first <= NPRE:
                pre.append(txt)
            else:
                assert free < first
                fill.append([max(free, first - PE, 0), max(free, first - PD, 0), txt, None])
        order_t = sorted(tiles, key=lambda j: done_at[j])
        for k, j in enumerate(order_t):
            t = done_at[j]
            nxt = done_at[order_t[k + 1]] if k + 1 < len(order_t) else nm + 100
            seq2 = [f"v_mul_f32 {EY[r]}, {acc[j][r]}, {self.vG16}" for r in range(4)]
            seq2 += [f"v_cvt_pk_bf16_f32 {EZ[r]}, {EY[2 * r]}, {EY[2 * r + 1]}" for r in range(2)]
            seq2.append(f"ds_write_b64 {self.vZw}, {EZ} offset:{L_Z + 1024 * j}")
            for txt in seq2:
                fill.append([t + self.o["cvt0"], min(t + 12, nxt + 2), txt, f"e2_{j}"])
        for txt in pre:
            A(txt)
        for i, f in enumerate(fill):
            f.append(i)
        left = list(fill)
        bg = list(self.bg)
        A.prewait([mf[0]])
        for t in range(nm):
            A(mf[t])
            chosen = []
            for f in sorted([f for f in left if f[0] <= t], key=lambda f: (f[1], f[4])):
                if len(chosen) >= 2 and f[1] > t:
                    break
                if f[3] and any(g[3] == f[3] and g[4] < f[4] and g not in chosen for g in left):
                    continue
                mem = isinstance(f[2], tuple) or f[2].startswith("ds_")
                if mem and f[1] > t and any(g[3] == f[3] and f[3] for g in chosen):
                    continue
                chosen.append(f)
            memf = [f for f in chosen if (isinstance(f[2], tuple) or f[2].startswith("ds_")) and not any(g[3] == f[3] and f[3] and g[4] < f[4] for g in chosen)]
            rest = [f for f in chosen if f not in memf]
            c0 = A.count
            A.prewait([f[2] for f in chosen if not isinstance(f[2], tuple)] + ([mf[t + 1]] if t + 1 < nm else []))
            ns, nv = A.count - c0, len(chosen)
            while bg and isinstance(bg[0], str) and bg[0].startswith("s_") and ns + nv < 3 and t >= self.o["bg_from"]:
                A(bg.pop(0))
                ns += 1
            nv += max(0, ns - 1)
            if bg and not memf and nv < 2 and (isinstance(bg[0], tuple) or bg[0].startswith("global_")):
                item = bg.pop(0)
                A("\n".join(item) if isinstance(item, tuple) else item, tag="poison3" if isinstance(item, tuple) else None)
                nv += 1
            for f in memf + rest:
                A(f[2])
                left.remove(f)
            while bg and nv < 2 and isinstance(bg[0], str) and bg[0].startswith("v_") and t >= self.o["bg_from"]:
                A(bg.pop(0))
                nv += 1
        self.bg_left = max(getattr(self, "bg_left", 0), len(bg))
        tail_bg = bg
        for item in tail_bg:
            A("\n".join(item) if isinstance(item, tuple) else item, tag="poison3" if isinstance(item, tuple) else None)
        for f in sorted(left, key=lambda f: (f[1], f[4])):
            A(f[2])
        self.nmfma = getattr(self, "nmfma", []) + [nm]
        V.put(*acc.values(), *Wb, *Pb, EY, EZ)
        AC.put(*Fb, *Gb)

    def dma_plan(self, A, role):
        V = self.V
        vL, sW = self.vL, self.sW
        t0, t1 = V.get(), V.get()
        self.vWa = V.get()
        if role == 0:
            A(f"""
            s_lshl_b32 {self.sWb}, {sW}, 13
            s_add_u32 {self.sWb}, {self.sWb}, {L_STAGE}
            s_lshl_b32 s3, {sW}, 7
            v_lshrrev_b32 {t0}, 2, {vL}
            v_add_u32 {t0}, s3, {t0}
            v_mul_u32_u24 {t0}, 3584, {t0}
            v_and_b32 {t1}, 3, {vL}
            """)
            if self.o.get("g1v2"):
                A(f"s_and_b32 s3, {sW}, 2\nv_xor_b32 {t1}, s3, {t1}\nv_lshrrev_b32 {self.vWa}, 5, {vL}\nv_xor_b32 {t1}, {t1}, {self.vWa}")
            A(f"""
            v_lshl_add_u32 {t0}, {t1}, 4, {t0}
            s_lshl_b32 s3, {self.sBlk}, 6
            v_add_u32 {self.vWa}, s3, {t0}
            s_cmp_eq_u32 {self.sUp}, 0
            s_cselect_b32 s4, s22, s24
            s_cselect_b32 s5, s23, s25
            """)
            n, step = 8, 16 * 3584
        else:
            A(f"""
            s_mul_i32 {self.sWb}, {sW}, 14336
            s_add_u32 {self.sWb}, {self.sWb}, {L_STAGE}
            s_mul_i32 s3, {sW}, 448
            v_lshrrev_b32 {t0}, 1, {vL}
            v_add_u32 {t0}, s3, {t0}
            v_lshlrev_b32 {t0}, 10, {t0}
            v_and_b32 {t1}, 1, {vL}
            v_lshl_add_u32 {t0}, {t1}, 4, {t0}
            s_lshl_b32 s3, {self.sBlk}, 5
            v_add_u32 {self.vWa}, s3, {t0}
            s_mov_b64 s[4:5], s[26:27]
            """)
            n, step = 14, 0x8000
        V.put(t0, t1)
        return [(f"s_add_u32 m0, {self.sWb}, {m * 1024}" + (f"\ns_add_u32 s4, s4, {step}\ns_addc_u32 s5, s5, 0" if m else ""),
                 f"global_load_lds_dwordx4 {self.vWa}, s[4:5]") for m in range(n)]

    def conv_all(self):
        A = self.A
        nb = self.nwarm if self.o["warm_at"] == "pre" else 0
        for ln in self.bg[:nb]:
            A(ln)
        self.bg = self.bg[nb:]
        self.s1_consume(A, "")
        first, second = ([5, 6, 7], [0, 1, 2, 3, 4]) if self.o["b_first"] else ([0, 1, 2, 3, 4], [5, 6, 7])
        A(f"s_cmp_eq_u32 {self.sH}, {int(self.o['b_first'])}\ns_cbranch_scc0 L_conv_b")
        B = A.fork()
        if self.o["early_br"]:
            A.barrier()
            self.stamp("b5", A)
        self.conv(A, first, [])
        A.wait_tag("poison3")
        A.wait(lg=0)
        A.flush()
        A("s_branch L_conv_done")
        B.label("L_conv_b")
        if self.o["early_br"]:
            B.barrier()
            self.stamp("b5", B)
        self.conv(B, second, [])
        B.wait_tag("poison3")
        B.wait(lg=0)
        assert [t for _, t in A.vm] == [t for _, t in B.vm]
        B.flush()
        A.lines += B.lines
        A.count += B.count
        A.nops += B.nops
        A.label("L_conv_done")
        self.V.put(*self.bgtmp)
        self.V.put(*self.BAND.values(), self.vUf, self.vZw, self.vG16, self.UG, self.vUw,
                   self.vS1i, self.vS1i2, self.vN, self.vF)
        self.AC.put(*self.KN, self.KX, *self.B2.values(), *self.B3.values())
        self.stamp("conv", A)
        A("s_barrier")
        self.stamp("b6", A)
        self.ZT = ZT = self.V.get(8)
        A(f"ds_read_b128 {ZT[0:4]}, {self.vZr} offset:{L_Z}\nds_read_b128 {ZT[4:8]}, {self.vZr} offset:{L_Z + 4096}")
        A(f"global_store_dwordx4 {self.vS2o}, {ZT[0:4]}, s[30:31] sc1", tag="s2st")
        A(f"global_store_dwordx4 {self.vS2o2}, {ZT[4:8]}, s[30:31] sc1", tag="s2st")
        if self.o["poison_at"] == "pub":
            self.vFl = self.V.get()
            A(f"global_load_dword {self.vFl}, {self.vFi}, s[30:31] sc1")
        self.stamp("st2", A)
        self.V.put(self.vZr, self.vS2o, self.vS2o2)

    def poison_check(self, regs, t0):
        def chk(C):
            r = list(regs)
            if len(r) == 1:
                C(f"v_cmp_eq_u32 vcc, -1, {r[0]}")
                return
            C(f"v_max3_u32 {t0}, {r[0]}, {r[1]}, {r[2] if len(r) > 2 else r[1]}")
            r = r[3:]
            while r:
                C(f"v_max3_u32 {t0}, {t0}, {r[0]}, {r[1] if len(r) > 1 else r[0]}")
                r = r[2:]
            C(f"v_cmp_eq_u32 vcc, -1, {t0}")
        return chk

    def phase_c(self):
        A, V = self.A, self.V
        vL, vI, vG, sL, sW = self.vL, self.vI, self.vG, self.sL, self.sW
        get = V.get
        self.t = t0, t1, t2 = get(), get(), get()
        vSW, vKw, vS3o, vRo = get(), get(), get(), get()
        self.vS3i = get()
        vHr = self.vHr
        XL, XH, UD = get(8), get(8), Multi([get(4) for _ in range(4)])
        if self.o.get("s2_order") == 0:
            A.wait(vm=0)
        for j in range(8):
            A(f"v_lshlrev_b32 {XL[j]}, 16, {self.XA[j]}")
            A(f"v_and_b32 {XH[j]}, 0xffff0000, {self.XA[j]}")
        A(f"v_lshlrev_b32 {t0}, 16, {self.vDk}\nv_and_b32 {t1}, 0xffff0000, {self.vDk}")
        A(f"v_mul_f32 {t0}, 0x41800000, {t0}\nv_mul_f32 {t1}, 0x41800000, {t1}")
        for e in range(2):
            G = self.G[e]
            if e == 1 and self.o.get("s2_order") == 1:
                A.wait(vm=0)
            for q in range(4):
                A(f"v_and_b32 {G[q]}, {G[q]}, {self.vMask}")
            for j in range(8):
                A(f"v_fma_mix_f32 {UD[8 * e + j]}, {G[j // 2]}, {(t0, t1)[e]}, 0 op_sel:[{j % 2},0,0] op_sel_hi:[1,0,0]")
            for j in range(8):
                self.rnd(A, UD[8 * e + j], UD[8 * e + j])
        V.put(*self.G, self.vMask, self.vDk)
        if self.o.get("s2_order") == 2:
            A.wait(vm=0)
        for k in range(8):
            A(f"v_dot2_f32_bf16 {vSW}, {self.WR[k]}, {self.sOnes}, {vSW if k else 0}")
        self.allreduce(A, "v_add_f32", [vSW], 32)
        A(f"""
        v_and_b32 {t0}, 31, v0
        v_lshlrev_b32 {t0}, 4, {t0}
        v_lshlrev_b32 {vKw}, 2, {self.vTau}
        s_lshl_b32 s3, {sW}, 13
        s_lshl_b32 s16, {self.rowid()}, 4
        s_add_u32 s3, s3, s16
        s_add_u32 s3, s3, {WS_S3}
        v_lshl_add_u32 {vS3o}, {vL}, 12, s3
        s_lshr_b32 s3, {sL}, {5 + (8 // self.o.get("s3_rep", 8)).bit_length() - 1}
        s_lshl_b32 s3, s3, 12
        s_add_u32 s16, s3, {WS_S3}
        v_lshl_add_u32 {self.vS3i}, v0, 4, s16
        s_lshl_b32 s16, {self.rowid()}, 11
        s_add_u32 s16, s16, {WS_ROWS}
        v_add_u32 {vRo}, s16, {t0}
        s_lshl_b32 s3, {self.rowid()}, 3
        s_sub_u32 s3, 2047, s3
        v_sub_u32 {t2}, s3, {self.vTau}
        v_mov_b32 {t1}, 0
        """)
        if self.o["dma_ack2"] and self.o["dma_at"] != "none":
            A(f"s_cmp_eq_u32 {self.sRole}, 2\ns_cbranch_scc1 L_dma_done")
            A(f"s_cmp_eq_u32 {self.sRole}, 1\ns_cbranch_scc1 L_dma_r1")
            keep = list(A.vm)
            for role in (0, 1):
                if role:
                    A.label("L_dma_r1")
                plan = self.dma_plan(A, role)
                n = len(plan) if role == 0 else self.o["dma_ack2"]
                for a, b in plan[:n]:
                    A(a)
                    A(b, tag="dma")
                if role == 0:
                    A("s_branch L_dma_done")
                    V.put(self.vWa)
                else:
                    self.plan1 = plan[n:]
            A.label("L_dma_done")
        if self.o["dma0_ack2"] and self.o["dma_at"] != "none":
            A(f"s_cmp_eq_u32 {self.sRole}, 0\ns_cbranch_scc0 L_dma0_done")
            for a, b in self.dma_plan(A, 0):
                A(a)
                A(b, tag="dma")
            V.put(self.vWa)
            A.label("L_dma0_done")
        early = self.o["dma_s2"] and self.o["dma_at"] != "none"
        if early:
            A(f"s_cmp_eq_u32 {self.sRole}, 1\ns_cbranch_scc1 L_plan1")
            p0 = self.dma_plan(A, 0)
            keep = self.vWa
            A("s_branch L_plan_done")
            A.label("L_plan1")
            V.put(keep)
            p1 = self.dma_plan(A, 1)
            assert str(keep) == str(self.vWa)
            A.label("L_plan_done")
        self.stamp("dma", A)
        if self.o.get("early_z"):
            self.sEarly = self.S.get(2)
            A(f"s_lshr_b32 s3, {self.rowid()}, 5\ns_lshr_b32 s3, {sum(1 << j for j in self.o['early_z'])}, s3\ns_bitcmp1_b32 s3, 0")
            A(f"s_cselect_b64 {self.sEarly}, -1, 0")
            A("s_cbranch_scc1 L_noack\ns_waitcnt vmcnt(0)")
            A.label("L_noack")
        elif not self.o.get("s2_noack"):
            A.wait(vm=0)
        if self.o["poison_at"] == "pub":
            self.poll(A, "flg", lambda C: C(f"global_load_dword {self.vFl}, {self.vFi}, s[30:31] sc1"),
                      lambda C: C(f"v_cmp_ne_u32 vcc, {self.sE}, {self.vFl}"))
            V.put(self.vFl, self.vFi)
        self.stamp("ack2", A)
        ZT = self.ZT

        def s2_loads(C):
            C(f"global_load_dwordx4 {ZT[0:4]}, {self.vS2i}, s[30:31] sc1")
            C(f"global_load_dwordx4 {ZT[4:8]}, {self.vS2i2}, s[30:31] sc1")
        s2_loads(A)
        self.poll(A, "s2", s2_loads, self.poison_check([ZT[k] for k in range(8)], t0))
        self.stamp("s2", A)
        if early:
            n1 = self.o["dma_s2"] - 1
            A(f"s_cmp_eq_u32 {self.sRole}, 0\ns_cbranch_scc0 L_dma_n0")
            for a, b in p0:
                A(a)
                A(b)
            A.label("L_dma_n0")
            if n1:
                A(f"s_cmp_eq_u32 {self.sRole}, 1\ns_cbranch_scc0 L_dma_n1")
                for a, b in p1[:n1]:
                    A(a)
                    A(b)
                A.label("L_dma_n1")
            A.vm = []
            self.plan1 = p1[n1:]
        HP = get(8)
        self.T = T = get(8)
        for grp in range(2):
            for jj in range(4):
                j = 4 * grp + jj
                sel = self.sHi if j % 2 else self.sLo
                A(f"v_dot2_f32_bf16 {T[jj]}, {ZT[j // 2]}, {sel}, {UD[j]}")
                A(f"v_dot2_f32_bf16 {T[4 + jj]}, {ZT[4 + j // 2]}, {sel}, {UD[8 + j]}")
            for k in range(8):
                self.rnd(A, T[k], T[k])
            for q in range(2):
                j = 4 * grp + 2 * q
                A(f"v_pk_add_f32 {T[2 * q:2 * q + 2]}, {T[2 * q:2 * q + 2]}, {XL[j:j + 2]}")
                A(f"v_pk_add_f32 {T[4 + 2 * q:6 + 2 * q]}, {T[4 + 2 * q:6 + 2 * q]}, {XH[j:j + 2]}")
            for jj in range(4):
                A(f"v_cvt_pk_bf16_f32 {HP[4 * grp + jj]}, {T[jj]}, {T[4 + jj]}")
            for q in range(2):
                j = 4 * grp + 2 * q
                A(f"ds_write2st64_b32 {self.vHw2}, {HP[j]}, {HP[j + 1]} offset0:{4 * j} offset1:{4 * j + 4}")
        self.stamp("hw", A)
        A.barrier()
        self.stamp("b7", A)
        V.put(XL, XH, *UD.groups, HP, ZT, self.vS2i, self.vS2i2, self.XA)
        HB = get(8)
        A(f"ds_read_b128 {HB[0:4]}, {vHr} offset:{L_H}\nds_read_b128 {HB[4:8]}, {vHr} offset:{L_H + 512}")
        s1, s2, s3, NM, RS = get(), get(), get(), get(2), get(2)
        self.key = key = get()
        for k in range(8):
            A(f"v_dot2_f32_bf16 {s1}, {HB[k]}, {self.sOnes}, {s1 if k else 0}")
            A(f"v_dot2_f32_bf16 {s2}, {HB[k]}, {HB[k]}, {s2 if k else 0}")
            A(f"v_dot2_f32_bf16 {s3}, {HB[k]}, {self.WR[k]}, {s3 if k else 0}")
        self.allreduce(A, "v_add_f32", [s1, s2, s3], 32)
        self.ln_stats(A, s1, s2, NM[0], RS[0])
        A(f"v_fma_f32 {s3}, {NM[0]}, {vSW}, {s3}\nv_mul_f32 {s3}, {s3}, {RS[0]}")
        self.rnd(A, s3, s3)
        A(f"""
        v_ashrrev_i32 {t0}, 31, {s3}
        v_or_b32 {t0}, 0x80000000, {t0}
        v_xor_b32 {t0}, {s3}, {t0}
        v_and_b32 {t0}, 0xffff0000, {t0}
        v_or_b32 {key}, {t0}, {t2}
        s_mov_b64 exec, 1
        s_bitset1_b64 exec, 32
        ds_write_b32 {vKw}, {key} offset:{L_KEY}
        s_mov_b64 exec, -1
        """)
        self.stamp("key", A)
        V.put(self.WR, vSW, s1, s2, s3, vKw)
        H32 = Multi([get(4) for _ in range(4)])
        late = self.o.get("late_unpack")
        for k in range(0 if late else 8):
            A(f"v_lshlrev_b32 {H32[2 * k]}, 16, {HB[k]}\nv_and_b32 {H32[2 * k + 1]}, 0xffff0000, {HB[k]}")
        A.barrier()
        self.kmax = kmax = get()
        A(f"ds_read_b128 {T[0:4]}, {t1} offset:{L_KEY}\nds_read_b128 {T[4:8]}, {t1} offset:{L_KEY + 16}")
        HN = Multi([get(4) for _ in range(2)])
        self.D = D = Multi([get(4) for _ in range(8)])
        A(f"v_mov_b32 {NM[1]}, {NM[0]}\nv_mov_b32 {RS[1]}, {RS[0]}")
        for k in range(8):
            if not late:
                A(f"v_pk_add_f32 {D[2 * k:2 * k + 2]}, {H32[2 * k:2 * k + 2]}, {NM}")
            elif k < 5:
                A(f"v_lshlrev_b32 {H32[2 * k]}, 16, {HB[k]}\nv_and_b32 {H32[2 * k + 1]}, 0xffff0000, {HB[k]}")
        A(f"v_max3_u32 {kmax}, {T[0]}, {T[1]}, {T[2]}\nv_max3_u32 {t0}, {T[3]}, {T[4]}, {T[5]}")
        A(f"v_max3_u32 {kmax}, {kmax}, {T[6]}, {T[7]}\nv_max_u32 {kmax}, {kmax}, {t0}")
        rep = self.o.get("s3_rep", 8)
        if rep == 8:
            A("s_mov_b64 exec, 3")
        else:
            A(f"s_cmp_lt_u32 {sW}, {max(rep // 2, 1)}\ns_cselect_b64 exec, {3 if rep > 1 else 1}, 0")
        A(f"global_store_dword {vS3o}, {kmax}, s[30:31] sc1", tag="s3st")
        A("s_mov_b64 exec, -1")
        self.stamp("pub3", A)
        sC = self.sC
        A(f"v_cmp_eq_u32 {sC}, {key}, {kmax}")
        if late:
            for k in range(5, 8):
                A(f"v_lshlrev_b32 {H32[2 * k]}, 16, {HB[k]}\nv_and_b32 {H32[2 * k + 1]}, 0xffff0000, {HB[k]}")
            for k in range(8):
                A(f"v_pk_add_f32 {D[2 * k:2 * k + 2]}, {H32[2 * k:2 * k + 2]}, {NM}")
        for k in range(16):
            self.rnd(A, D[k], D[k])
        for k in range(8):
            A(f"v_pk_mul_f32 {D[2 * k:2 * k + 2]}, {D[2 * k:2 * k + 2]}, {RS}")
        for k in range(8):
            A(f"v_cvt_pk_bf16_f32 {HN[k]}, {D[2 * k]}, {D[2 * k + 1]}")
        A(f"s_mov_b64 exec, {sC}")
        A(f"global_store_dwordx4 {vRo}, {HN[0:4]}, s[30:31] sc1", tag="rowst")
        A(f"global_store_dwordx4 {vRo}, {HN[4:8]}, s[30:31] offset:512 sc1", tag="rowst")
        A(f"global_store_dwordx4 {vRo}, {HB[0:4]}, s[30:31] offset:1024 sc1", tag="rowst")
        A(f"global_store_dwordx4 {vRo}, {HB[4:8]}, s[30:31] offset:1536 sc1", tag="rowst")
        A("s_mov_b64 exec, -1")
        self.stamp("hn", A)
        self.O = O = Multi([get(4) for _ in range(2)])

        def outc(X):
            for k in range(8):
                X(f"v_dot2_f32_bf16 {D[2 * k]}, {HN[k]}, {self.sLo}, {H32[2 * k]}")
                X(f"v_dot2_f32_bf16 {D[2 * k + 1]}, {HN[k]}, {self.sHi}, {H32[2 * k + 1]}")
            for k in range(8):
                X(f"v_cvt_pk_bf16_f32 {O[k]}, {D[2 * k]}, {D[2 * k + 1]}")
            V.put(*H32.groups)
        V.put(NM, RS, vS3o, vRo)
        self.outc = outc
        if not self.o.get("early_poll"):
            outc(A)
            self.outc = lambda X: None
        self.stamp("outc", A)

    def out_stores(self, C):
        pol = self.o["out_pol"]
        C(f"global_store_dwordx4 {self.vRow}, {self.O[0:4]}, s[28:29] {pol}", tag="out")
        C(f"global_store_dwordx4 {self.vRow}, {self.O[4:8]}, s[28:29] offset:512 {pol}", tag="out")

    def resolve(self, A, sfx, between=None):
        t0, t1, t2 = self.t
        T, kin = self.T, self.kin

        def s3_loads(C):
            C(f"global_load_dword {kin}, {self.vS3i}, s[30:31] sc1")
        s3_loads(A)
        if between:
            between()
        A(f"v_lshrrev_b32 {t1}, 4, v0\nv_and_b32 {t1}, 12, {t1}\nv_mov_b32 {t2}, 0")
        self.poll(A, "s3" + sfx, s3_loads, self.poison_check([kin], t0))
        self.stamp("s3p", A)
        self.allreduce(A, "v_max_u32", [kin], 64)
        self.stamp("s3w", A)
        A(f"s_mov_b64 exec, 1\nds_write_b32 {t1}, {kin} offset:{L_KEY2}\ns_mov_b64 exec, -1")
        A.barrier()
        A(f"ds_read_b128 {T[0:4]}, {t2} offset:{L_KEY2}")
        A(f"v_max3_u32 {kin}, {T[0]}, {T[1]}, {T[2]}\nv_max_u32 {kin}, {kin}, {T[3]}")
        A(f"v_readfirstlane_b32 {self.sK}, {kin}")
        A(f"s_and_b32 {self.sT}, {self.sK}, 0x7ff\ns_sub_u32 {self.sT}, 2047, {self.sT}")
        self.stamp("s3", A)
        A(f"s_lshr_b32 s3, {self.sT}, 3\ns_lshl_b32 s3, s3, 11\ns_add_u32 s3, s3, {WS_ROWS}")

    def finish(self, A, sfx):
        A.flush()
        A.label(f"L_fin_{sfx}")
        if self.o["stamps"]:
            A.wait(vm=0)
            self.stamp("end", A)
            if self.o["clk"]:
                A("s_memtime s[96:97]")
                A.wait(lg=0)
                A("s_sub_u32 s100, s96, s100\ns_mov_b32 s101, 0")
            A("s_waitcnt vmcnt(0) lgkmcnt(0)")
            self.dump_stamps(A)
        A("s_endpgm")

    def early_rows(self, A):
        if self.o.get("early_pace"):
            A(f"s_andn2_b64 {self.sEarly}, {self.sEarly}, {self.sC}\ns_mov_b64 exec, {self.sEarly}")
            self.out_stores(A)
            A("s_mov_b64 exec, -1")
            A.wait(vm=0)

    def tail0(self, A):
        V = self.V
        get = V.get
        vL, vI, vG, sL, sW, sC = self.vL, self.vI, self.vG, self.sL, self.sW, self.sC
        t0, t1, t2 = self.t
        T, D = self.T, self.D
        vTr, vRed, vXs, vPub, vRd = get(), get(), get(), get(), get()
        WT = [self.AC.get(4, 4) for _ in range(8)]
        plan = [] if self.o["dma_ack2"] or self.o["dma0_ack2"] or self.o["dma_s2"] else self.dma_plan(A, 0)
        if self.o["dma_at"] == "none":
            plan = []

        def dma():
            for a, b in plan:
                A(a)
                A(b, tag="dma")
        if not self.o["r0_late"]:
            dma()

        v2 = self.o.get("g1v2")

        def tr_reads():
            A.wait_tag("dma")
            if v2:
                for m in range(8):
                    for e2 in range(2):
                        A(f"ds_read_b64_tr_b16 {WT[m][2 * e2:2 * e2 + 2]}, {vTr} offset:{(32 * m + 4 * e2) * 64}")
                return
            for ct in range(2):
                for m in range(4):
                    for e2 in range(2):
                        A(f"ds_read_b64_tr_b16 {WT[4 * ct + m][2 * e2:2 * e2 + 2]}, {vTr} offset:{(32 * m + 4 * e2) * 64 + 32 * ct}")

        def setup():
            if v2:
                A(f"""
                v_lshrrev_b32 {t2}, 2, {vI}
                v_lshl_add_u32 {t2}, {vG}, 3, {t2}
                v_and_b32 {t0}, 2, {vI}
                v_lshl_add_u32 {t2}, {t0}, 7, {t2}
                v_and_b32 {vRed}, 1, {vG}
                v_or_b32 {t0}, {t0}, {vRed}
                v_xor_b32 {t0}, {sW}, {t0}
                v_lshlrev_b32 {t0}, 4, {t0}
                v_lshl_add_u32 {t2}, {t2}, 6, {t0}
                v_and_b32 {t0}, 1, {vI}
                v_lshl_add_u32 {t2}, {t0}, 3, {t2}
                v_add_u32 {vTr}, {L_STAGE}, {t2}
                v_lshlrev_b32 {t0}, 6, {vI}
                v_lshl_add_u32 {vXs}, {vG}, 4, {t0}
                v_lshrrev_b32 {t2}, 3, {vL}
                s_lshl_b32 s3, {sW}, 4
                s_lshl_b32 s16, {self.sUp}, 12
                s_add_u32 s3, s3, s16
                s_lshl_b32 s16, {self.sBlk}, 6
                s_add_u32 s3, s3, s16
                s_add_u32 s3, s3, {WS_S4}
                v_lshl_add_u32 {vPub}, {t2}, 13, s3
                v_mov_b32 {vRed}, 0
                v_mov_b32 {vRd}, 0
                """)
                return
            A(f"""
            v_and_b32 {t0}, 3, {vI}
            v_lshlrev_b32 {t0}, 3, {t0}
            v_lshrrev_b32 {t2}, 2, {vI}
            v_lshl_add_u32 {t2}, {vG}, 3, {t2}
            v_lshl_add_u32 {t0}, {t2}, 6, {t0}
            v_add_u32 {vTr}, {self.sWb}, {t0}
            s_lshl_b32 s3, {sW}, 2
            v_lshl_add_u32 {vRed}, {vI}, 4, s3
            v_and_b32 {t0}, 3, {vI}
            v_lshlrev_b32 {t0}, 6, {t0}
            v_lshl_add_u32 {t0}, {vG}, 4, {t0}
            s_lshl_b32 s3, {sW}, 8
            v_add_u32 {vXs}, s3, {t0}
            v_and_b32 {t0}, 31, {vL}
            v_lshlrev_b32 {vRd}, 4, {t0}
            v_lshrrev_b32 {t2}, 5, {vL}
            v_lshlrev_b32 {t2}, 13, {t2}
            v_lshl_add_u32 {t2}, {t0}, 1, {t2}
            s_lshl_b32 s3, {sW}, 14
            s_lshl_b32 s16, {self.sUp}, 12
            s_add_u32 s3, s3, s16
            s_lshl_b32 s16, {self.sBlk}, 6
            s_add_u32 s3, s3, s16
            s_add_u32 s3, s3, {WS_S4}
            v_add_u32 {vPub}, s3, {t2}
            """)
        ep = self.o.get("early_poll")
        if ep == 2:
            self.outc(A)
        if not ep:
            setup()
        self.early_rows(A)
        A.wait_tag("s3st")
        self.stamp("ack3", A)

        late_out = self.o["r0_late"] == 2

        def between():
            if ep:
                setup()
            if ep == 1:
                self.outc(A)
            if self.o["r0_late"]:
                dma()
            if not late_out:
                A(f"s_andn2_b64 exec, -1, {sC}")
                self.out_stores(A)
                A("s_mov_b64 exec, -1")
            if not self.o["r0_late"]:
                tr_reads()
        self.resolve(A, "r0", between)
        XS = get(4)
        A(f"v_add_u32 {vXs}, s3, {vXs}")

        def row_loads(C):
            C(f"global_load_dwordx4 {XS}, {vXs}, s[30:31] sc1")
        row_loads(A)
        if late_out:
            A(f"v_cmp_ne_u32 {sC}, {self.kin}, {self.key}")
        else:
            A(f"v_cmp_ne_u32 vcc, {self.kin}, {self.kmax}\ns_and_b64 exec, vcc, {sC}")
            self.out_stores(A)
            A("s_mov_b64 exec, -1")
        if getattr(self, "late_barrier", False):
            A("s_barrier")
            self.late_barrier = False
        if self.o["r0_late"]:
            tr_reads()
        self.poll(A, "rowr0", row_loads, self.poison_check([XS[k] for k in range(4)], t0))
        self.stamp("row", A)
        if v2:
            acc = [vRed, vRd]
            for m in range(8 + 4):
                if m < 8:
                    A(f"v_mfma_f32_16x16x32_bf16 {D[4 * m:4 * m + 4]}, {XS}, {WT[m]}, 0")
                if m == 0:
                    A(f"s_cmp_eq_u32 {self.sUp}, 0\ns_cselect_b64 s[16:17], -1, 0")
                k = m - 4
                if k >= 0:
                    a = acc[k % 2]
                    A(f"v_add_f32_dpp {a}, {D[4 * k + k % 4]}, {a} quad_perm:[0,1,2,3] row_mask:{5 << (k // 4)} bank_mask:0xf")
            A(f"v_add_f32 {t0}, {vRed}, {vRd}\nv_add_f32 {T[0]}, {vRed}, {vRd}")
            A(f"v_mov_b32_dpp {T[0]}, {t0} row_ror:8 row_mask:0x3 bank_mask:0xc")
            A(f"v_mov_b32_dpp {T[0]}, {t0} row_ror:8 row_mask:0xc bank_mask:0x3")
            for sw in ("v_permlane16_swap_b32", "v_permlane32_swap_b32"):
                A(f"v_mov_b32 {t0}, {T[0]}\n{sw} {T[0]}, {t0}\nv_add_f32 {T[0]}, {T[0]}, {t0}")
            self.stamp("g1b", A)
        else:
            for k in range(8):
                A(f"v_mfma_f32_16x16x32_bf16 {D[4 * k:4 * k + 4]}, {XS}, {WT[k]}, 0")
            A(f"s_cmp_eq_u32 {self.sUp}, 0\ns_cselect_b64 s[16:17], -1, 0")
            A(f"""
            v_add_f32 {t0}, {D[0]}, {D[5]}
            v_add_f32 {t1}, {D[10]}, {D[15]}
            v_add_f32 {t0}, {t0}, {t1}
            v_add_f32 {t1}, {D[16]}, {D[21]}
            v_add_f32 {t2}, {D[26]}, {D[31]}
            v_add_f32 {t1}, {t1}, {t2}
            s_mov_b64 exec, 0xffff
            ds_write_b32 {vRed}, {t0} offset:{L_RED}
            ds_write_b32 {vRed}, {t1} offset:{L_RED + 256}
            s_mov_b64 exec, -1
            """)
            self.stamp("g1m", A)
            A.barrier()
            self.stamp("g1b", A)
            A(f"ds_read_b128 {T[0:4]}, {vRd} offset:{L_RED}")
            A(f"v_pk_add_f32 {T[0:2]}, {T[0:2]}, {T[2:4]}\nv_add_f32 {T[0]}, {T[0]}, {T[1]}")
        self.rnd(A, T[0], T[0])
        A(f"v_mul_f32 {t0}, {LOG2E | 0x80000000}, {T[0]}\nv_exp_f32 {t0}, {t0}\nv_add_f32 {t0}, 1.0, {t0}")
        A(f"v_rcp_f32 {t0}, {t0}\nv_mul_f32 {t0}, {T[0]}, {t0}")
        A(f"v_cndmask_b32 {t0}, {T[0]}, {t0}, s[16:17]")
        A(f"v_mov_b32_dpp {t1}, {t0} row_shl:1 row_mask:0xf bank_mask:0xf")
        A(f"v_cvt_pk_bf16_f32 {XS[0]}, {t0}, {t1}")
        for k in range(1, 4):
            A(f"v_mov_b32_dpp {XS[k]}, {XS[0]} row_shl:{2 * k} row_mask:0xf bank_mask:0xf")
        A("s_mov_b32 exec_lo, 0x01010101\ns_mov_b32 exec_hi, 0x01010101")
        A(f"global_store_dwordx4 {vPub}, {XS}, s[30:31] sc1")
        self.stamp("g1", A)
        if late_out:
            if self.o.get("r0_ackout"):
                A.wait(vm=0)
            A(f"s_andn2_b64 exec, {sC}, {self.sEarly}" if self.o.get("early_pace") else f"s_mov_b64 exec, {sC}")
            self.out_stores(A)
        self.finish(A, "r0")

    def tail2(self, A):
        self.outc(A)
        if self.o.get("r2_mode") == 2:
            A.wait_tag("s3st")
            A(f"s_andn2_b64 exec, -1, {self.sC}")
            self.out_stores(A)
            A("s_mov_b64 exec, -1")
            A.wait(vm=0)
            self.resolve(A, "r2")
            A(f"v_cmp_ne_u32 vcc, {self.kin}, {self.kmax}\ns_and_b64 exec, vcc, {self.sC}")
            self.out_stores(A)
            self.finish(A, "r2")
            return
        A.wait_tag("rowst" if self.o.get("r2_mode") == 1 else "s3st")
        self.stamp("ack3", A)

        def between():
            A(f"s_andn2_b64 exec, -1, {self.sC}")
            self.out_stores(A)
            A("s_mov_b64 exec, -1")
        if self.o["r2_late"]:
            self.resolve(A, "r2")
            A(f"v_cmp_ne_u32 vcc, {self.kin}, {self.key}\ns_mov_b64 exec, vcc")
        else:
            self.resolve(A, "r2", between)
            A(f"v_cmp_ne_u32 vcc, {self.kin}, {self.kmax}\ns_and_b64 exec, vcc, {self.sC}")
        self.out_stores(A)
        self.finish(A, "r2")

    def tail1(self, A):
        V = self.V
        get = V.get
        vL, vI, vG, sL, sW, sC = self.vL, self.vI, self.vG, self.sL, self.sW, self.sC
        t0, t1, t2 = self.t
        T, D = self.T, self.D
        plan = self.plan1 if self.o["dma_ack2"] or self.o["dma_s2"] else self.dma_plan(A, 1)
        if self.o["dma_at"] == "none":
            plan = []
        n1 = self.o["r1_split"]
        for a, b in plan[:n1]:
            A(a)
            A(b, tag="dma")
        self.early_rows(A)
        A.wait_tag("s3st")
        self.stamp("ack3", A)

        def between():
            self.outc(A)
            for a, b in plan[n1:]:
                A(a)
                A(b, tag="dma")
        self.resolve(A, "r1", between)
        vTr, vRed, vSig, vOut, vS4i = get(), get(), get(), get(), get()
        HH = get(2)
        A(f"""
        s_lshl_b32 s16, {self.sBlk}, 5
        s_add_u32 s3, s3, s16
        v_lshrrev_b32 {t1}, 1, {vI}
        v_lshl_add_u32 {t1}, {t1}, 2, s3
        """)

        def row_loads(C):
            C(f"global_load_dword {HH[0]}, {t1}, s[30:31] sc1")
            C(f"global_load_dword {HH[1]}, {t1}, s[30:31] offset:1024 sc1")
        row_loads(A)

        if getattr(self, "late_barrier", False):
            A("s_barrier")
            self.late_barrier = False

        def own_rows():
            A(f"v_cmp_eq_u32 vcc, {self.kin}, {self.key}\ns_andn2_b64 exec, -1, vcc")
            if self.o.get("early_pace"):
                A(f"s_andn2_b64 exec, exec, {self.sEarly}")
            self.out_stores(A)
            A("s_mov_b64 exec, -1")
        if self.o["r1_out"] == "row":
            own_rows()
        A(f"""
        v_and_b32 {t0}, 3, {vI}
        v_lshlrev_b32 {t0}, 3, {t0}
        v_lshrrev_b32 {t2}, 2, {vI}
        v_lshl_add_u32 {t2}, {vG}, 3, {t2}
        v_lshl_add_u32 {t0}, {t2}, 5, {t0}
        v_add_u32 {vTr}, {self.sWb}, {t0}
        """)
        self.poll(A, "rowr1", row_loads, self.poison_check([HH[0], HH[1]], t0))
        self.stamp("row", A)
        WT = [self.AC.get(4, 4) for _ in range(14)]
        A.wait_tag("dma")
        if self.o["r1_out"] == "tr":
            own_rows()
        self.stamp("r1o", A)
        for m in range(14):
            for e2 in range(2):
                A(f"ds_read_b64_tr_b16 {WT[m][2 * e2:2 * e2 + 2]}, {vTr} offset:{(32 * m + 4 * e2) * 32}")
        self.stamp("r1t", A)
        sK, sT = self.sK, self.sT
        vS4u = get()

        def prep_final():
            A(f"""
            s_and_b32 s16, {sK}, 0x7fff0000
            s_andn2_b32 s17, 0xffff0000, {sK}
            s_bitcmp1_b32 {sK}, 31
            s_cselect_b32 s16, s16, s17
            v_mov_b32 {t0}, s16
            v_mul_f32 {t0}, {LOG2E | 0x80000000}, {t0}
            v_exp_f32 {t0}, {t0}
            v_add_f32 {t0}, 1.0, {t0}
            v_rcp_f32 {t0}, {t0}
            """)
            self.rnd(A, vSig, t0)
            A(f"""
            v_and_b32 {t0}, 1, {vI}
            v_xor_b32 {t0}, 1, {t0}
            v_lshlrev_b32 {t0}, 4, {t0}
            v_lshlrev_b32 {HH[0]}, {t0}, {HH[0]}
            v_lshlrev_b32 {HH[1]}, {t0}, {HH[1]}
            v_and_b32 {HH[0]}, 0xffff0000, {HH[0]}
            v_and_b32 {HH[1]}, 0xffff0000, {HH[1]}
            s_lshl_b32 s3, {sT}, 10
            s_lshl_b32 s16, {self.sBlk}, 5
            s_add_u32 s3, s3, s16
            v_lshl_add_u32 {vOut}, {vI}, 1, s3
            s_lshl_b32 s3, {sW}, 2
            v_lshl_add_u32 {vRed}, {vI}, 4, s3
            v_mov_b32 {t2}, 0
            v_lshlrev_b32 {t1}, 4, {vI}
            """)
        if not self.o.get("r1_prep_late"):
            prep_final()
        A(f"""
        s_lshr_b32 s3, {sL}, 5
        s_lshl_b32 s3, s3, 13
        s_mul_i32 s16, {sW}, {56 * 16}
        s_add_u32 s3, s3, s16
        s_add_u32 s3, s3, {WS_S4}
        v_min_u32 {t0}, 13, {vI}
        v_lshl_add_u32 {t0}, {t0}, 2, {vG}
        v_lshl_add_u32 {vS4i}, {t0}, 4, s3
        v_add_u32 {vS4u}, 0x1000, {vS4i}
        """)
        if self.o["r1_out"] == "late":
            own_rows()
        A.wait(vm=0)
        self.stamp("r1a", A)
        GU, XS = Multi([get(4) for _ in range(2)]), get(4)

        def s4_loads(C):
            C(f"global_load_dwordx4 {GU[0:4]}, {vS4i}, s[30:31] sc1")
            C(f"global_load_dwordx4 {GU[4:8]}, {vS4u}, s[30:31] sc1")
        s4_loads(A)
        if self.o.get("r1_prep_late"):
            prep_final()
        self.poll(A, "s4", s4_loads, self.poison_check([GU[k] for k in range(8)], t0))
        self.stamp("g1", A)
        for k in range(4):
            A(f"v_and_b32 {T[2 * k]}, 0xffff, {GU[k]}\nv_and_b32 {T[2 * k + 1]}, 0xffff0000, {GU[k]}")
        for k in range(8):
            A(f"v_dot2_f32_bf16 {T[k]}, {T[k]}, {GU[4 + k // 2]}, 0")
        for k in range(4):
            A(f"v_cvt_pk_bf16_f32 {XS[k]}, {T[2 * k]}, {T[2 * k + 1]}")
        DD = [D[4 * k:4 * k + 4] for k in range(8)]
        acc = [t2, get()]
        A(f"v_mov_b32 {acc[1]}, 0")
        for m in range(14 + 4):
            if m < 14:
                A(f"v_mfma_f32_16x16x32_bf16 {DD[m % 8]}, {XS}, {WT[m]}, 0")
            k = m - 4
            if k >= 0:
                a = acc[k % 2]
                A(f"v_add_f32_dpp {a}, {DD[k % 8][k % 4]}, {a} quad_perm:[0,1,2,3] row_mask:{1 << (k // 4)} bank_mask:0xf")
        A(f"v_add_f32 {t2}, {t2}, {acc[1]}")
        for sw in ("v_permlane16_swap_b32", "v_permlane32_swap_b32"):
            A(f"v_mov_b32 {t0}, {t2}\n{sw} {t2}, {t0}\nv_add_f32 {t2}, {t2}, {t0}")
        A(f"s_mov_b64 exec, 0xffff\nds_write_b32 {vRed}, {t2} offset:{L_RED}\ns_mov_b64 exec, -1")
        self.stamp("g2m", A)
        if self.o["r1_out"] == "end":
            own_rows()
        A.barrier()
        A(f"s_cmp_eq_u32 {sW}, 0\ns_cbranch_scc0 L_fin_r1")
        A(f"ds_read_b128 {T[0:4]}, {t1} offset:{L_RED}")
        A(f"v_pk_add_f32 {T[0:2]}, {T[0:2]}, {T[2:4]}\nv_add_f32 {t0}, {T[0]}, {T[1]}")
        self.rnd(A, t0, t0)
        A(f"v_mul_f32 {t0}, {t0}, {vSig}")
        self.rnd(A, t0, t0)
        A(f"v_add_f32 {t0}, {t0}, {HH[0]}")
        self.rnd(A, t0, t0)
        A(f"v_add_f32 {t0}, {t0}, {HH[1]}")
        self.rnd(A, t0, t0)
        A("s_mov_b64 exec, 0xffff")
        A(f"global_store_short_d16_hi {vOut}, {t0}, s[28:29] {self.o['fin_pol']}")
        self.stamp("g2", A)
        A(f"s_cmp_eq_u32 {self.sBlk}, 0\ns_cbranch_scc0 L_fin_r1")
        A("s_mov_b64 exec, 1")
        A(f"v_mov_b32 {t0}, {self.sE}\nv_mov_b32 {t2}, 0")
        A(f"global_store_dword {t2}, {t0}, s[30:31] offset:{WS_EPOCH} {self.o['fin_pol']}")
        self.finish(A, "r1")

    def build(self):
        A = self.A
        self.prologue()
        self.ksl = self.ksetup_lines()
        self.ksteps = self.kgen_steps()
        self.weave(self.o["wv"][0])
        for _ in range(self.o["kpre"]):
            next(self.ksteps)
        if self.o["poison_at"] == "kpre":
            self.poison2()
        self.ln1()
        self.kgen()
        self.sWb, self.sC, self.sK, self.sT = self.S.get(), self.S.get(2), self.S.get(), self.S.get()
        self.conv_all()
        self.phase_c()
        self.kin = self.V.get()
        A(f"s_cmp_eq_u32 {self.sRole}, 1\ns_cbranch_scc1 L_role1")
        B = A.fork()
        B.label("L_role1")
        A(f"s_cmp_eq_u32 {self.sRole}, 2\ns_cbranch_scc1 L_role2")
        C = A.fork()
        C.label("L_role2")
        vfree, afree = set(self.V.free), set(self.AC.free)
        self.tail0(A)
        self.V.free, self.AC.free = set(vfree), set(afree)
        self.tail1(B)
        self.V.free, self.AC.free = set(vfree), set(afree)
        self.tail2(C)
        B.lines += C.lines
        B.count += C.count
        body = A.text() + B.text() + "".join(c.text() for c in self.cold)
        nv = self.V.top + 1
        accum = (nv + 3) // 4 * 4
        total = max(accum + self.AC.top + 1, 264)
        head = open(f"cdna_kernels/{NAME}.s.ref").read().split("; Override launch geometry")[0]
        self.stats = dict(instr=A.count + B.count, nops=A.nops + B.nops, vgpr=nv, agpr=self.AC.top + 1, mfma=self.nmfma, bg_left=self.bg_left)
        tab = ""
        if self.o["band_tab"]:
            tab = f".p2align 7\n.type L_tab,@object\nL_tab:\n{band_table()}\n.size L_tab, 4096\n"
        return head + f"""; One persistent launch: 256 workgroups, one per CU, exchanging data through d_ws.
; @launch grid=(256,1,1) block=(256,1,1) lds={LDS_BYTES}
.amdgcn_target "amdgcn-amd-amdhsa--gfx950"
.text
.globl {NAME}_kernel
.p2align 8
.type {NAME}_kernel,@function
{NAME}_kernel:
{body}L_end:
    s_endpgm
L_code_end:
{tab}L_all_end:
.section .rodata,"a"
.p2align 6
.amdhsa_kernel {NAME}_kernel
  .amdhsa_next_free_vgpr {total}
  .amdhsa_next_free_sgpr 102
  .amdhsa_accum_offset {accum}
  .amdhsa_group_segment_fixed_size 0
  .amdhsa_kernarg_size 120
  .amdhsa_user_sgpr_count 2
  .amdhsa_user_sgpr_kernarg_segment_ptr 1
  .amdhsa_system_sgpr_workgroup_id_x 1
  .amdhsa_float_denorm_mode_32 3
.end_amdhsa_kernel
"""


def generate(path, **opt):
    g = Gen(**opt)
    text = g.build()
    open(path, "w").write(text)
    return g.stats


if __name__ == "__main__":
    out = sys.argv[1] if len(sys.argv) > 1 else f"cdna_kernels/{NAME}.s"
    opts = {}
    for a in sys.argv[2:]:
        k, v = a.split("=")
        opts[k] = {"True": True, "False": False}.get(v, int(v) if v.isdigit() else v)
    print(generate(out, **opts))
```
